```python
import torch

def _softmax(x, axis=-1):
    return torch.softmax(x, dim=axis)

def _gelu(x):
    return torch.nn.functional.gelu(x, approximate='tanh')

def _silu(x):
    return torch.nn.functional.silu(x)

def _sigmoid(x):
    return torch.sigmoid(x)

def _layernorm(x, axis=-1, eps=1e-05):
    m = x.mean(dim=axis, keepdim=True)
    v = x.var(dim=axis, keepdim=True, unbiased=False)
    return (x - m) / torch.sqrt(v + eps)

def _scatter_add(tgt, idx, src, axis=0):
    return tgt.clone().index_add_(axis, idx, src)

def _segment_sum(src, seg, n):
    out = torch.zeros((n,) + src.shape[1:], dtype=src.dtype)
    return out.index_add_(0, seg, src)

def _pad(x, pw):
    flat = tuple((v for pair in reversed(pw) for v in pair))
    return torch.nn.functional.pad(x, flat)
kernel_name = 'sequential_preLN__linear_kernel_hedgehog__mixer_gmlp__prompt'

def setup_inputs():

    _w = lambda a: (lambda t: t.to(torch.bfloat16) if t.is_floating_point() else t)(torch.as_tensor(a))

    def _A_setup():
        B, S, D, H = (1, 2048, 1024, 32)
        Dh = D // H
        return {'x': _w((lambda *s: torch.randn(*s, dtype=torch.bfloat16) * 0.05)(B, S, D)), 'wqkv': _w((lambda *s: torch.randn(*s, dtype=torch.bfloat16) * 0.2)(D, 3 * D)), 'w_phi': _w((lambda *s: torch.randn(*s, dtype=torch.bfloat16) * 0.2)(H, Dh, Dh) * Dh ** (-0.5)), 'wo': _w((lambda *s: torch.randn(*s, dtype=torch.bfloat16) * 0.05)(D, D))}
    _A_in = _A_setup()

    def _B_setup():
        B, S, D, F = (1, 2048, 1024, 3584)
        Fh = F // 2
        return {'x': _w((lambda *s: torch.randn(*s, dtype=torch.bfloat16) * 0.05)(B, S, D)), 'w_in': _w((lambda *s: torch.randn(*s, dtype=torch.bfloat16) * 0.2)(D, 2 * Fh)), 'w_sp': _w(0.01 * (lambda *s: torch.randn(*s, dtype=torch.bfloat16) * 0.2)(S, S)), 'b_sp': _w(1.0 + 0.01 * (lambda *s: torch.randn(*s, dtype=torch.bfloat16) * 0.05)(S)), 'w_out': _w((lambda *s: torch.randn(*s, dtype=torch.bfloat16) * 0.05)(Fh, D))}
    _B_in = _B_setup()
    return {'A_x': _A_in['x'], 'A_wqkv': _A_in['wqkv'], 'A_w_phi': _A_in['w_phi'], 'A_wo': _A_in['wo'], 'B_x': _B_in['x'], 'B_w_in': _B_in['w_in'], 'B_w_sp': _B_in['w_sp'], 'B_b_sp': _B_in['b_sp'], 'B_w_out': _B_in['w_out']}

def reference(A_x, A_wqkv, A_w_phi, A_wo, B_x, B_w_in, B_w_sp, B_b_sp, B_w_out):

    def _A_ref(x, wqkv, w_phi, wo):
        B, S, D = x.shape
        H = 32
        Dh = D // H
        qkv = (lambda x, *d: x.permute(*d))((x @ wqkv).reshape(B, S, 3, H, Dh), 2, 0, 3, 1, 4)
        q, k, v = (qkv[0], qkv[1], qkv[2])
        pq = torch.einsum('bhsd,hdf->bhsf', q, w_phi)
        pk = torch.einsum('bhsd,hdf->bhsf', k, w_phi)
        phi_q = torch.concatenate([_softmax(pq, axis=-1), _softmax(-pq, axis=-1)], axis=-1)
        phi_k = torch.concatenate([_softmax(pk, axis=-1), _softmax(-pk, axis=-1)], axis=-1)
        kv = torch.einsum('bhsf,bhsd->bhfd', phi_k, v)
        z = torch.einsum('bhsf->bhf', phi_k)
        num = torch.einsum('bhqf,bhfd->bhqd', phi_q, kv)
        den = torch.einsum('bhqf,bhf->bhq', phi_q, z)[..., None] + 1e-06
        o = num / den
        return (lambda x, *d: x.permute(*d))(o, 0, 2, 1, 3).reshape(B, S, D) @ wo

    def _B_ref(x, w_in, w_sp, b_sp, w_out):
        B, S, D = x.shape
        F = w_in.shape[-1]
        Fh = F // 2
        z = _gelu(torch.einsum('bsd,df->bsf', x, w_in))
        z1 = z[..., :Fh].clone()
        z2 = _layernorm(z[..., Fh:], axis=-1)
        g = torch.einsum('ts,bsf->btf', w_sp, z2) + b_sp[None, :, None]
        return torch.einsum('bsf,fd->bsd', z1 * g, w_out)
    x = A_x
    h = x + _A_ref(_layernorm(x, axis=-1), A_wqkv, A_w_phi, A_wo)
    h2 = h + _B_ref(_layernorm(h, axis=-1), B_w_in, B_w_sp, B_b_sp, B_w_out)
    return h2
```

```python
import math

class Kern:
    def __init__(self, name):
        self.name = name
        self.L = []
        self.uid = 0
    def e(self, s):
        for ln in s.split("\n"):
            ln = ln.strip()
            if ln: self.L.append(("" if ln.endswith(":") else "    ") + ln)
    def lab(self, base):
        self.uid += 1
        return f"L_{self.name}_{base}_{self.uid}"
    def text(self):
        return "\n".join(self.L) + "\n"

def header(k):
    return f".globl {k}\n.p2align 8\n.type {k},@function\n{k}:\n"

def descriptor(k, vgpr, sgpr=100):
    acc = (vgpr + 3)//4*4
    return f""".p2align 6
.amdhsa_kernel {k}
  .amdhsa_next_free_vgpr {vgpr}
  .amdhsa_next_free_sgpr {sgpr}
  .amdhsa_accum_offset {acc}
  .amdhsa_group_segment_fixed_size 0
  .amdhsa_kernarg_size 96
  .amdhsa_user_sgpr_count 2
  .amdhsa_user_sgpr_kernarg_segment_ptr 1
  .amdhsa_system_sgpr_workgroup_id_x 1
  .amdhsa_float_denorm_mode_32 3
.end_amdhsa_kernel
"""

def vr(a, n=1):
    return f"v{a}" if n == 1 else f"v[{a}:{a+n-1}]"
def sr(a, n=1):
    return f"s{a}" if n == 1 else f"s[{a}:{a+n-1}]"
def srd(d): return f"s[{d}:{d+3}]"

S_WAVE=3; S_M=4; S_N=5; S_PH=6; S_T0=7
SRD_S=8; SRD_F=12; SRD_A=16; SRD_B=20; SRD_C=24; SRD_D=28
P0=32
S_T=56
S_WM=72; S_WN=73; S_LW=74
S_X=76
S_CNT=80; S_STG=81; S_DELTA=82; S_OS=83; S_OF=84; S_M0W=85; S_TAU=86
S_K=88

def ptr(i): return P0 + 2*i

def load_ptrs(k):
    k.e(f"s_load_dwordx16 s[32:47], s[0:1], 0\ns_load_dwordx8 s[48:55], s[0:1], 64")

def mk_srd(k, d, p, nbytes, off=0):
    if off:
        k.e(f"s_add_u32 s{d}, s{ptr(p)}, {off}\ns_addc_u32 s{d+1}, s{ptr(p)+1}, 0")
    else:
        k.e(f"s_mov_b32 s{d}, s{ptr(p)}\ns_mov_b32 s{d+1}, s{ptr(p)+1}")
    k.e(f"s_mov_b32 s{d+2}, {nbytes}\ns_mov_b32 s{d+3}, 0x20000")

class Cfg:
    def __init__(self, BM, BN, T, NS, WM, WN, U, strideS, strideF, ftiles, nb_from_wave, panel_from_wave, orient=None,
                 gm=4, gn=8, ntm=16, ntn=16, rot=(-1,0,2,-1), pre_mfma=2, rpg=0, smode='rows', fmode='rows',
                 noreads=False, nodma=False):
        self.BM=BM; self.BN=BN; self.T=T; self.NS=NS; self.WM=WM; self.WN=WN; self.U=U
        self.strideS=strideS; self.strideF=strideF
        self.TM = BM//WM//32
        self.ftiles = ftiles
        self.TN = len(ftiles)
        self.nb_from_wave = nb_from_wave
        self.panel_from_wave = panel_from_wave
        self.orient = orient or ['T']*self.TN
        self.NP = BN//64
        self.stage = BM*128 + self.NP*8192
        self.nS = BM//8//4; self.nF = self.NP*8//4
        self.nI = self.nS + self.nF
        self.gm=gm; self.gn=gn; self.ntm=ntm; self.ntn=ntn
        self.nwg = ntm*ntn
        self.rot = rot
        self.pre_mfma = pre_mfma
        self.rpg = rpg
        self.smode = smode; self.fmode = fmode
        self.noreads = noreads; self.nodma = nodma

def common_entry(k, c, endlab):
    k.e(f"s_cmp_ge_u32 s2, {c.nwg}\ns_cbranch_scc1 {endlab}")
    load_ptrs(k)
    k.e(f"v_lshrrev_b32 v2, 6, v0\nv_and_b32 v1, 63, v0\nv_readfirstlane_b32 s{S_WAVE}, v2")
    tile_map(k, c)

def tile_map(k, c):
    xn = c.ntn // c.gn
    lg = int(math.log2(c.gm)); lx = int(math.log2(xn))
    k.e(f"""s_and_b32 s{S_T}, s2, 7
    s_lshr_b32 s{S_T+1}, s2, 3
    s_and_b32 s{S_T+2}, s{S_T+1}, {c.gm-1}
    s_lshr_b32 s{S_T+3}, s{S_T+1}, {lg}
    s_lshr_b32 s{S_M}, s{S_T}, {lx}
    s_mul_i32 s{S_M}, s{S_M}, {c.gm}
    s_add_u32 s{S_M}, s{S_M}, s{S_T+2}
    s_and_b32 s{S_N}, s{S_T}, {xn-1}
    s_mul_i32 s{S_N}, s{S_N}, {c.gn}
    s_add_u32 s{S_N}, s{S_N}, s{S_T+3}
    s_add_u32 s{S_PH}, s{S_T+2}, s{S_T+3}""")

def loader_setup(k, c, panel_colbytes, vbase):
    w = S_LW
    k.e(f"s_sub_u32 s{w}, s{S_WAVE}, 4")
    k.e(f"v_lshrrev_b32 v2, 3, v1\nv_and_b32 v4, 7, v1\ns_lshl_b32 s{S_T+6}, s{w}, 3")
    if c.smode == 'rows':
        k.e(f"""v_lshrrev_b32 v3, 4, v1
        s_and_b32 s{S_T+5}, s{w}, 1
        s_lshl_b32 s{S_T+5}, s{S_T+5}, 2
        v_add_u32 v3, s{S_T+5}, v3
        v_xor_b32 v3, v3, v4
        v_lshlrev_b32 v3, 4, v3
        s_mul_i32 s{S_T+5}, s{S_M}, {c.BM}
        s_add_u32 s{S_T+5}, s{S_T+5}, s{S_T+6}
        v_add_u32 v5, s{S_T+5}, v2
        s_mov_b32 s{S_T+7}, {c.strideS}
        v_mul_lo_u32 v5, v5, s{S_T+7}
        v_add_u32 v{vbase}, v5, v3""")
    else:
        k.e(f"""s_mul_i32 s{S_T+5}, s{S_M}, {c.BM*c.strideS}
        s_lshl_b32 s{S_T+7}, s{w}, 10
        s_add_u32 s{S_T+5}, s{S_T+5}, s{S_T+7}
        v_lshlrev_b32 v3, 4, v1
        v_add_u32 v{vbase}, s{S_T+5}, v3""")
    for i in range(1, c.nS):
        k.e(f"v_add_u32 v{vbase+i}, {i*32*c.strideS}, v{vbase}")
    if c.fmode == 'rows':
        k.e(f"""v_lshrrev_b32 v3, 2, v1
        v_and_b32 v3, 4, v3
        v_xor_b32 v3, v3, v4
        v_lshlrev_b32 v3, 4, v3
        v_add_u32 v5, s{S_T+6}, v2
        s_mov_b32 s{S_T+7}, {c.strideF}
        v_mul_lo_u32 v5, v5, s{S_T+7}
        v_add_u32 v5, v5, v3""")
        for P in range(c.NP):
            sg, const = panel_colbytes(P)
            for hq in range(2):
                d = vbase + c.nS + 2*P + hq
                tot = const + hq*32*c.strideF
                k.e(f"v_add_u32 v{d}, {tot}, v5")
                if sg is not None: k.e(f"v_add_u32 v{d}, s{sg}, v{d}")
    else:
        k.e(f"""s_mul_i32 s{S_T+5}, s{S_N}, {c.T*c.BN*128}
        s_lshl_b32 s{S_T+7}, s{w}, 10
        s_add_u32 s{S_T+5}, s{S_T+5}, s{S_T+7}
        v_lshlrev_b32 v3, 4, v1
        v_add_u32 v{vbase+c.nS}, s{S_T+5}, v3""")
        for i in range(1, c.nF):
            k.e(f"v_add_u32 v{vbase+c.nS+i}, {i*4096}, v{vbase+c.nS}")
    k.e(f"s_lshl_b32 s{S_M0W}, s{w}, 10")
    k.e(f"s_mov_b32 s{S_STG}, 0\ns_mov_b32 s{S_TAU}, 0")

def loader_issue(k, c, vbase, auxS="", auxF=""):
    t = S_T+8
    if c.rot:
        P = len(c.rot); packed = 0
        for u, d in enumerate(c.rot): packed |= ((d+8) & 15) << (4*u)
        k.e(f"""s_sub_u32 s{t}, s{S_TAU}, s{S_PH}
        s_and_b32 s{t}, s{t}, {P-1}
        s_lshl_b32 s{t}, s{t}, 2
        s_lshr_b32 s{t}, {packed}, s{t}
        s_and_b32 s{t}, s{t}, 15
        s_add_u32 s{t}, s{t}, s{S_TAU}""")
        if c.T & (c.T-1) == 0:
            k.e(f"s_sub_u32 s{t}, s{t}, 8\ns_and_b32 s{t}, s{t}, {c.T-1}")
        else:
            k.e(f"""s_add_u32 s{t}, s{t}, {c.T-8}
            s_sub_u32 s{t+1}, s{t}, {c.T}
            s_cmp_ge_u32 s{t}, {c.T}
            s_cselect_b32 s{t}, s{t+1}, s{t}
            s_sub_u32 s{t+1}, s{t}, {c.T}
            s_cmp_ge_u32 s{t}, {c.T}
            s_cselect_b32 s{t}, s{t+1}, s{t}""")
    else:
        k.e(f"s_mov_b32 s{t}, s{S_TAU}")
    stepS = 7 if c.smode == 'rows' else 12
    stepF = 64*c.strideF if c.fmode == 'rows' else c.BN*128
    k.e(f"""s_lshl_b32 s{S_OS}, s{t}, {stepS}
    s_mul_i32 s{S_OF}, s{t}, {stepF}
    s_add_u32 m0, s{S_M0W}, s{S_STG}
    s_add_u32 s{S_TAU}, s{S_TAU}, 1""")
    for i in range(c.nI):
        if i < c.nS: k.e(f"buffer_load_dwordx4 v{vbase+i}, {srd(SRD_S)}, s{S_OS} offen {auxS} lds")
        else:        k.e(f"buffer_load_dwordx4 v{vbase+i}, {srd(SRD_F)}, s{S_OF} offen {auxF} lds")
        if i < c.nI-1: k.e("s_add_u32 m0, m0, 4096\ns_nop 0")
    k.e(f"""s_add_u32 s{S_STG}, s{S_STG}, {c.stage}
    s_cmp_eq_u32 s{S_STG}, {c.stage*c.NS}
    s_cselect_b32 s{S_STG}, 0, s{S_STG}""")

def loader_main(k, c, vbase, auxS="", auxF="", tail_hook=None):
    n = c.nI; NS = c.NS; T = c.T
    top = k.lab("ldtop"); l1 = k.lab("ld1"); l2 = k.lab("ld2"); done = k.lab("lddone")
    k.e(f"{top}:")
    loader_issue(k, c, vbase, auxS, auxF)
    k.e(f"s_cmp_eq_u32 s{S_TAU}, {T}\ns_cbranch_scc1 {done}")
    k.e(f"s_cmp_lg_u32 s{S_TAU}, 2\ns_cbranch_scc1 {l1}")
    k.e(f"s_waitcnt vmcnt({n})\ns_barrier")
    k.e(f"{l1}:")
    k.e(f"s_cmp_lt_u32 s{S_TAU}, {NS}\ns_cbranch_scc1 {top}")
    k.e(f"s_waitcnt vmcnt({(NS-2)*n})\ns_barrier\ns_branch {top}")
    k.e(f"{done}:")
    extra = tail_hook() if tail_hook else 0
    for r in range(NS-1):
        left = max(NS-2-r, 0)*n + extra
        k.e(f"s_waitcnt vmcnt({left})\ns_barrier")

class Regs:
    pass

def tr_lane_base(k, dst, t, hshift, rowshift=7, swz=True):
    k.e(f"""v_bfe_u32 v{t}, v1, 2, 2
    v_lshlrev_b32 v{dst}, {rowshift}, v{t}
    v_lshrrev_b32 v{t}, 5, v1
    v_lshl_add_u32 v{dst}, v{t}, {hshift}, v{dst}""")
    if swz:
        k.e(f"v_bfe_u32 v{t}, v1, 3, 1\nv_lshl_add_u32 v{dst}, v{t}, 6, v{dst}")
    k.e(f"""v_bfe_u32 v{t}, v1, 4, 1
    v_lshl_add_u32 v{dst}, v{t}, 5, v{dst}
    v_and_b32 v{t}, 1, v1
    v_lshl_add_u32 v{dst}, v{t}, 4, v{dst}
    v_bfe_u32 v{t}, v1, 1, 1
    v_lshl_add_u32 v{dst}, v{t}, 3, v{dst}""")

def blk_tr_base(k, dst, t, t2, hbit):
    k.e(f"""v_bfe_u32 v{dst}, v1, 2, 2
    v_lshrrev_b32 v{t}, 5, v1
    v_lshl_add_u32 v{dst}, v{t}, {hbit}, v{dst}
    v_and_b32 v{t}, 1, v1
    v_bfe_u32 v{t2}, v1, 4, 1
    v_lshl_add_u32 v{t}, v{t2}, 1, v{t}
    v_lshlrev_b32 v{t2}, 2, v{t}
    v_xor_b32 v{dst}, v{dst}, v{t2}
    v_lshlrev_b32 v{dst}, 4, v{dst}
    v_lshl_add_u32 v{dst}, v{t}, 9, v{dst}
    v_bfe_u32 v{t}, v1, 1, 1
    v_lshl_add_u32 v{dst}, v{t}, 3, v{dst}""")

def consumer_setup(k, c, R):
    wm = S_WM; wn = S_WN
    lw = int(math.log2(c.WN))
    k.e(f"s_lshr_b32 s{wm}, s{S_WAVE}, {lw}\ns_and_b32 s{wn}, s{S_WAVE}, {c.WN-1}")
    k.e(f"s_mul_i32 s{S_T+6}, s{wm}, {c.TM*4096}")
    if c.smode == 'rows':
        k.e(f"""v_and_b32 v2, 31, v1
        v_lshrrev_b32 v3, 5, v1
        v_bfe_u32 v4, v1, 1, 3
        v_xor_b32 v4, v4, v3
        v_lshlrev_b32 v4, 4, v4
        v_lshl_add_u32 v4, v2, 7, v4""")
        for kk in range(4):
            k.e(f"v_xor_b32 v{R.aS+kk}, {kk*32}, v4\nv_add_u32 v{R.aS+kk}, s{S_T+6}, v{R.aS+kk}")
    else:
        k.e(f"v_lshlrev_b32 v4, 4, v1\nv_add_u32 v{R.aS}, s{S_T+6}, v4")
    if c.fmode == 'rows':
        tr_lane_base(k, 6, 5, 10)
        if c.nb_from_wave:
            k.e(f"s_lshl_b32 s{S_T+6}, s{wn}, 6\nv_xor_b32 v6, s{S_T+6}, v6")
        if c.panel_from_wave:
            k.e(f"s_lshl_b32 s{S_T+6}, s{wn}, 13\nv_add_u32 v6, s{S_T+6}, v6")
    else:
        blk_tr_base(k, 6, 5, 7, 3)
        assert c.panel_from_wave
        k.e(f"s_lshl_b32 s{S_T+6}, s{wn}, 12\nv_add_u32 v6, s{S_T+6}, v6")
    k.e(f"v_xor_b32 v7, 64, v6")
    k.e(f"v_add_u32 v{R.aF}, {c.BM*128}, v6\nv_add_u32 v{R.aF+1}, {c.BM*128}, v7")

def consumer_main(k, c, R, zero_acc=True, hook_after_first_barrier=None):
    TM, TN, U = c.TM, c.TN, c.U
    setsz = U*(TM+TN)*4
    def fS(s, u, st): return R.fr + s*setsz + u*(TM+TN)*4 + st*4
    def fF(s, u, ft): return R.fr + s*setsz + u*(TM+TN)*4 + TM*4 + ft*4
    def acc(st, ft): return R.acc + 16*(ft*TM+st)
    nunit = 4//U
    useF = sorted(set(nb for _, nb in c.ftiles)) if c.fmode == 'rows' else [0, 1]
    useS = range(4) if c.smode == 'rows' else [0]
    def reads(unit, s):
        out = []
        for u in range(U):
            kk = unit*U + u
            order = []
            for i in range(max(TM, TN)):
                if i < TM: order.append(('S', i))
                if i < TN: order.append(('F', i))
            for typ, i in order:
                if typ == 'S':
                    if c.smode == 'rows':
                        out.append((f"ds_read_b128 {vr(fS(s,u,i),4)}, v{R.aS+kk} offset:{i*4096}", ('S', s, u, i)))
                    else:
                        out.append((f"ds_read_b128 {vr(fS(s,u,i),4)}, v{R.aS} offset:{i*4096+kk*1024}", ('S', s, u, i)))
                else:
                    P, nb = c.ftiles[i]
                    for rd in range(2):
                        if c.fmode == 'rows':
                            out.append((f"ds_read_b64_tr_b16 {vr(fF(s,u,i)+2*rd,2)}, v{R.aF+nb} offset:{P*8192+kk*2048+rd*512}", ('F', s, u, i)))
                        else:
                            off = (kk>>1)*(c.BN*64) + (P*2+nb)*2048 + (kk&1)*256
                            out.append((f"ds_read_b64_tr_b16 {vr(fF(s,u,i)+2*rd,2)}, v{R.aF+rd} offset:{off}", ('F', s, u, i)))
        return out
    def mfmas(s):
        out = []
        for u in range(U):
            prs = sorted([(st, ft) for st in range(TM) for ft in range(TN)], key=lambda p: (max(p[0], p[1]), p[1], p[0]))
            for st, ft in prs:
                a, b = (fF(s,u,ft), fS(s,u,st)) if c.orient[ft] == 'T' else (fS(s,u,st), fF(s,u,ft))
                out.append((f"v_mfma_f32_32x32x16_bf16 {vr(acc(st,ft),16)}, {vr(a,4)}, {vr(b,4)}, {vr(acc(st,ft),16)}", [('S',s,u,st), ('F',s,u,ft)]))
        return out
    if zero_acc:
        for i in range(0, TM*TN*16, 2): k.e(f"v_mov_b64 v[{R.acc+i}:{R.acc+i+1}], 0")
    k.e(f"s_mov_b32 s{S_CNT}, 0\ns_mov_b32 s{S_STG}, 0")
    k.e(f"s_mov_b32 s{S_OS}, {(-(c.NS-1)*c.stage) & 0xffffffff}\ns_mov_b32 s{S_OF}, {c.stage}")
    k.e("s_barrier")
    if hook_after_first_barrier: hook_after_first_barrier()
    q = []
    for ins, tag in reads(0, 0):
        k.e(ins); q.append(tag)
    loop = k.lab("cloop")
    k.e(f".p2align 6\n{loop}:")
    def need(tags):
        idx = max([i for i, t in enumerate(q) if t in tags], default=-1)
        if idx >= 0:
            n = len(q) - 1 - idx
            assert n <= 15
            k.e(f"s_waitcnt lgkmcnt({n})")
            del q[:idx+1]
    assert c.pre_mfma >= 1
    for unit in range(nunit):
        s = unit & 1
        last = unit == nunit-1
        rd = reads((unit+1) % nunit, s ^ 1)
        mf = mfmas(s)
        nm = len(mf)
        first = c.pre_mfma if last else 1
        nslots = max(nm - first, 1)
        per = -(-len(rd) // nslots)
        if c.rpg: per = max(per, c.rpg)
        ri = 0
        def put(nr):
            nonlocal ri
            for _ in range(nr):
                if ri < len(rd):
                    k.e(rd[ri][0]); q.append(rd[ri][1])
                    ri += 1
        for mi, (ins, tags) in enumerate(mf):
            if last and mi == 0:
                k.e(f"""s_add_u32 s{S_STG}, s{S_STG}, {c.stage}
                s_cmp_eq_u32 s{S_STG}, {c.stage*c.NS}
                s_cselect_b32 s{S_DELTA}, s{S_OS}, s{S_OF}
                s_cselect_b32 s{S_STG}, 0, s{S_STG}""")
            if last and mi == first:
                k.e("s_waitcnt lgkmcnt(0)"); q.clear()
                k.e("s_barrier")
            if mi >= first: put(per)
            need(tags)
            k.e(ins)
            if last and mi == 0:
                for a in useS: k.e(f"v_add_u32 v{R.aS+a}, s{S_DELTA}, v{R.aS+a}")
                for nb in useF: k.e(f"v_add_u32 v{R.aF+nb}, s{S_DELTA}, v{R.aF+nb}")
        put(len(rd))
    k.e(f"s_add_u32 s{S_CNT}, s{S_CNT}, 1\ns_cmp_lt_u32 s{S_CNT}, {c.T}\ns_cbranch_scc1 {loop}")
    k.e("s_waitcnt lgkmcnt(0)")
```

```python
import sys, struct
from core import *

MB = 1<<20
WS_XN=0; WS_O=4*MB; WS_H=8*MB; WS_Z1=12*MB; WS_Z2N=20*MB; WS_U=28*MB
WS_KVP=36*MB; WS_ZP=38*MB; WS_CSP=39*MB; WS_HST=40*MB; WS_ZST=41*MB; WS_FLAG=42*MB
WS_END=43*MB
P_X=0; P_WQKV=1; P_WPHI=2; P_WO=3; P_WIN=5; P_WSP=6; P_BSP=7; P_WOUT=8; P_OUT=9; P_DBG=10; P_WS=11

def f2u(x): return struct.unpack("<I", struct.pack("<f", x))[0]
LOG2E = 1.4426950408889634

class Opt:
    stamps = False
    rpq = False
    rnum = False
    rattn = False
    rg = False
    rout = False
    mimic2 = True
OPT = Opt()

def round_bf16(k, d, s):
    k.e(f"v_cvt_pk_bf16_f32 v{d}, v{s}, v{s}\nv_lshlrev_b32 v{d}, 16, v{d}")

def unpack(k, lo, hi, src):
    k.e(f"v_lshlrev_b32 v{lo}, 16, v{src}\nv_and_b32 v{hi}, 0xffff0000, v{src}")

def cvt16(k, dst, src):
    for i in range(8): k.e(f"v_cvt_pk_bf16_f32 v{dst+i}, v{src+2*i}, v{src+2*i+1}")

def round16_inplace(k, src, tmp):
    for i in range(8):
        k.e(f"v_cvt_pk_bf16_f32 v{tmp}, v{src+2*i}, v{src+2*i+1}")
        unpack(k, src+2*i, src+2*i+1, tmp)

def poll(k, vflag, voff, srdn, nflags, cnt):
    top = k.lab("poll"); done = k.lab("polld")
    k.e(f"s_mov_b32 s{cnt}, 0x40000")
    k.e(f"{top}:")
    k.e(f"""buffer_load_dword v{vflag}, v{voff}, {srd(srdn)}, 0 offen sc1
    s_waitcnt vmcnt(0)
    v_cmp_eq_u32 vcc, 1, v{vflag}
    s_and_b32 s{cnt+1}, vcc_lo, {(1<<nflags)-1}
    s_cmp_eq_u32 s{cnt+1}, {(1<<nflags)-1}
    s_cbranch_scc1 {done}
    s_sleep 1
    s_sub_u32 s{cnt}, s{cnt}, 1
    s_cmp_lg_u32 s{cnt}, 0
    s_cbranch_scc1 {top}""")
    k.e(f"{done}:")

def stamp(k, idx):
    if OPT.stamps: k.e(f"s_memrealtime s[{S_K+2*idx}:{S_K+2*idx+1}]\ns_waitcnt lgkmcnt(0)")

def stamp_out(k, kid, n):
    if not OPT.stamps: return
    sk = k.lab("nost")
    k.e(f"s_cmp_lg_u32 s{S_WAVE}, 0\ns_cbranch_scc1 {sk}")
    mk_srd(k, SRD_D, P_WS, 65536, WS_END + kid*65536)
    k.e(f"s_lshl_b32 s{S_T}, s2, 6\nv_mov_b32 v2, s{S_T}\nv_cmp_eq_u32 vcc, 0, v1\ns_and_saveexec_b64 s[{S_X}:{S_X+1}], vcc")
    for i in range(n):
        k.e(f"v_mov_b32 v3, s{S_K+2*i}\nbuffer_store_dword v3, v2, {srd(SRD_D)}, 0 offen offset:{4*i}\ns_nop 1")
    k.e(f"s_waitcnt vmcnt(0)\n{sk}:")

def k0():
    k = Kern("k0")
    k.e("s_cmp_ge_u32 s2, 256\ns_cbranch_scc1 L_k0_end")
    load_ptrs(k)
    stamp(k, 0)
    k.e(f"v_lshrrev_b32 v2, 6, v0\nv_and_b32 v1, 63, v0\nv_readfirstlane_b32 s{S_WAVE}, v2")
    k.e(f"""v_lshrrev_b32 v3, 3, v1
    v_and_b32 v4, 7, v1
    s_lshl_b32 s{S_T}, s2, 3
    v_add_u32 v5, s{S_T}, v3
    v_lshlrev_b32 v6, 11, v5
    v_lshl_add_u32 v6, v4, 4, v6
    s_lshl_b32 s{S_T+1}, s{S_WAVE}, 8
    v_add_u32 v6, s{S_T+1}, v6""")
    k.e(f"""s_and_b32 s{S_T+2}, s2, 15
    s_lshr_b32 s{S_T+3}, s2, 4
    s_lshl_b32 s{S_T+4}, s{S_T+2}, 6
    s_lshl_b32 s{S_T+5}, s{S_WAVE}, 3
    s_add_u32 s{S_T+4}, s{S_T+4}, s{S_T+5}
    v_lshrrev_b32 v7, 5, v1
    v_add_u32 v7, s{S_T+4}, v7
    s_mov_b32 s{S_T+6}, 7168
    v_mul_lo_u32 v7, v7, s{S_T+6}
    v_and_b32 v8, 31, v1
    v_lshl_add_u32 v7, v8, 4, v7
    s_lshl_b32 s{S_T+5}, s{S_T+3}, 9
    v_add_u32 v7, s{S_T+5}, v7""")
    k.e("s_waitcnt lgkmcnt(0)")
    mk_srd(k, SRD_S, P_X, 2048*1024*2); mk_srd(k, SRD_F, P_WIN, 1024*3584*2)
    mk_srd(k, SRD_A, P_WS, 4*MB, WS_XN); mk_srd(k, SRD_B, P_WS, 16*3584*4, WS_CSP); mk_srd(k, SRD_C, P_WS, 8192, WS_FLAG)
    k.e(f"buffer_load_dwordx4 v[16:19], v6, {srd(SRD_S)}, 0 offen\nbuffer_load_dwordx4 v[20:23], v6, {srd(SRD_S)}, 0 offen offset:128")
    k.e("s_cmp_ge_u32 s2, 224\ns_cbranch_scc1 L_k0_nocs0")
    for j in range(4):
        k.e(f"s_mov_b32 s{S_T+7}, {j*2*7168}\nbuffer_load_dwordx4 v[{24+4*j}:{27+4*j}], v7, {srd(SRD_F)}, s{S_T+7} offen")
    k.e("s_waitcnt vmcnt(4)\ns_branch L_k0_ln")
    k.e("L_k0_nocs0:")
    k.e(f"""s_cmp_lg_u32 s2, 255
    s_cbranch_scc1 L_k0_nofl
    v_mov_b32 v24, 0
    v_mov_b32 v25, 0
    v_mov_b32 v26, 0
    v_mov_b32 v27, 0
    v_lshlrev_b32 v9, 4, v0
    buffer_store_dwordx4 v[24:27], v9, {srd(SRD_C)}, 0 offen
    L_k0_nofl:
    s_waitcnt vmcnt(0)""")
    k.e("L_k0_ln:")
    X = 48
    for i in range(8): unpack(k, X+2*i, X+2*i+1, 16+i)
    def red8(v):
        k.e(f"""s_nop 1
        v_add_f32_dpp v{v}, v{v}, v{v} quad_perm:[1,0,3,2] row_mask:0xf bank_mask:0xf
        s_nop 1
        v_add_f32_dpp v{v}, v{v}, v{v} quad_perm:[2,3,0,1] row_mask:0xf bank_mask:0xf
        s_nop 1
        v_add_f32_dpp v{v}, v{v}, v{v} row_half_mirror row_mask:0xf bank_mask:0xf""")
    def xwave(v, off):
        k.e(f"""ds_write_b32 v10, v{v} offset:{off}
        s_waitcnt lgkmcnt(0)
        s_barrier
        ds_read_b128 v[40:43], v11 offset:{off}
        ds_read_b128 v[44:47], v11 offset:{off+16}
        s_waitcnt lgkmcnt(0)
        v_pk_add_f32 v[40:41], v[40:41], v[42:43]
        v_pk_add_f32 v[44:45], v[44:45], v[46:47]
        v_pk_add_f32 v[40:41], v[40:41], v[44:45]
        v_add_f32 v{v}, v40, v41""")
    k.e(f"v_lshlrev_b32 v11, 5, v3\ns_lshl_b32 s{S_T+7}, s{S_WAVE}, 2\nv_add_u32 v10, s{S_T+7}, v11")
    k.e(f"v_pk_add_f32 v[12:13], v[{X}:{X+1}], v[{X+2}:{X+3}]")
    for i in range(2, 8): k.e(f"v_pk_add_f32 v[12:13], v[12:13], v[{X+2*i}:{X+2*i+1}]")
    k.e("v_add_f32 v12, v12, v13")
    red8(12); xwave(12, 0)
    k.e(f"v_mul_f32 v12, {f2u(1/1024.)}, v12")
    k.e("v_mov_b32 v14, 0\nv_mov_b32 v15, 0")
    for i in range(8):
        k.e(f"v_pk_add_f32 v[64:65], v[{X+2*i}:{X+2*i+1}], v[12:13] op_sel_hi:[1,0] neg_lo:[0,1] neg_hi:[0,1]")
        k.e(f"v_pk_fma_f32 v[14:15], v[64:65], v[64:65], v[14:15]")
    k.e("v_add_f32 v14, v14, v15")
    red8(14); xwave(14, 256)
    k.e(f"v_mul_f32 v14, {f2u(1/1024.)}, v14")
    round_bf16(k, 14, 14)
    k.e(f"v_add_f32 v14, {f2u(1e-5)}, v14")
    round_bf16(k, 14, 14)
    k.e("v_sqrt_f32 v14, v14\ns_nop 0")
    round_bf16(k, 14, 14)
    k.e("v_rcp_f32 v14, v14")
    round_bf16(k, 12, 12)
    for i in range(8):
        k.e(f"v_pk_add_f32 v[64:65], v[{X+2*i}:{X+2*i+1}], v[12:13] op_sel_hi:[1,0] neg_lo:[0,1] neg_hi:[0,1]")
        k.e(f"v_cvt_pk_bf16_f32 v66, v64, v65")
        unpack(k, 64, 65, 66)
        k.e(f"v_pk_mul_f32 v[64:65], v[64:65], v[14:15] op_sel_hi:[1,0]")
        k.e(f"v_cvt_pk_bf16_f32 v{16+i}, v64, v65")
    k.e(f"""v_lshrrev_b32 v9, 5, v5
    v_lshlrev_b32 v9, 16, v9
    v_and_b32 v5, 31, v5
    v_lshl_add_u32 v9, v5, 4, v9
    v_lshl_add_u32 v9, v4, 9, v9
    s_lshl_b32 s{S_T+7}, s{S_WAVE}, 13
    v_add_u32 v9, s{S_T+7}, v9
    s_mov_b32 s{S_T+7}, 4096
    buffer_store_dwordx4 v[16:19], v9, {srd(SRD_A)}, 0 offen
    buffer_store_dwordx4 v[20:23], v9, {srd(SRD_A)}, s{S_T+7} offen""")
    k.e("s_cmp_ge_u32 s2, 224\ns_cbranch_scc1 L_k0_fin")
    k.e("s_waitcnt vmcnt(2)")
    for i in range(4): unpack(k, 64+2*i, 65+2*i, 24+i)
    for j in range(1, 4):
        for i in range(4):
            unpack(k, 72, 73, 24+4*j+i)
            k.e(f"v_pk_add_f32 v[{64+2*i}:{65+2*i}], v[{64+2*i}:{65+2*i}], v[72:73]")
    k.e(f"""v_lshlrev_b32 v9, 5, v0
    ds_write_b128 v9, v[64:67] offset:1024
    ds_write_b128 v9, v[68:71] offset:1040
    s_waitcnt lgkmcnt(0)
    s_barrier
    s_cmp_ge_u32 s{S_WAVE}, 4
    s_cbranch_scc1 L_k0_fin
    v_lshlrev_b32 v9, 2, v0""")
    for i in range(8): k.e(f"ds_read2st64_b32 v[{64+2*i}:{65+2*i}], v9 offset0:{4+8*i} offset1:{8+8*i}")
    k.e("s_waitcnt lgkmcnt(0)")
    for i in range(1, 8): k.e(f"v_pk_add_f32 v[64:65], v[64:65], v[{64+2*i}:{65+2*i}]")
    k.e(f"""v_add_f32 v64, v64, v65
    s_mul_i32 s{S_T+4}, s{S_T+2}, {3584*4}
    s_lshl_b32 s{S_T+5}, s{S_T+3}, 10
    s_add_u32 s{S_T+4}, s{S_T+4}, s{S_T+5}
    buffer_store_dword v64, v9, {srd(SRD_B)}, s{S_T+4} offen""")
    k.e("L_k0_fin:")
    k.e("s_waitcnt vmcnt(0)")
    stamp(k, 1); stamp_out(k, 0, 2)
    k.e("L_k0_end:\ns_endpgm")
    return k, 80, 256, 17408

def softmax_pm(k, P, EP, EN, T, OP, ON):
    L = S_K+10
    if OPT.rpq: round16_inplace(k, P, T)
    k.e(f"v_max3_f32 v{T}, v{P}, v{P+1}, v{P+2}\nv_min3_f32 v{T+1}, v{P}, v{P+1}, v{P+2}")
    for i in range(3, 15, 2):
        k.e(f"v_max3_f32 v{T}, v{T}, v{P+i}, v{P+i+1}\nv_min3_f32 v{T+1}, v{T+1}, v{P+i}, v{P+i+1}")
    k.e(f"""v_max_f32 v{T}, v{T}, v{P+15}
    v_max_f32 v{T+1}, -v{T+1}, -v{P+15}
    s_nop 1
    v_permlane32_swap_b32 v{T}, v{T+1}
    v_max_f32 v{T}, v{T}, v{T+1}
    v_mul_f32 v{T}, {f2u(-LOG2E)}, v{T}
    v_mov_b32 v{T+1}, v{T}
    s_nop 1
    v_permlane32_swap_b32 v{T}, v{T+1}""")
    for i in range(8):
        k.e(f"v_pk_fma_f32 v[{EP+2*i}:{EP+2*i+1}], v[{P+2*i}:{P+2*i+1}], s[{L}:{L+1}], v[{T}:{T+1}] op_sel_hi:[1,1,0]")
        k.e(f"v_pk_fma_f32 v[{EN+2*i}:{EN+2*i+1}], v[{P+2*i}:{P+2*i+1}], s[{L}:{L+1}], v[{T}:{T+1}] op_sel:[0,0,1] op_sel_hi:[1,1,1] neg_lo:[0,1,0] neg_hi:[0,1,0]")
    for i in range(16):
        k.e(f"v_exp_f32 v{EP+i}, v{EP+i}\nv_exp_f32 v{EN+i}, v{EN+i}")
    k.e(f"v_pk_add_f32 v[{T}:{T+1}], v[{EP}:{EP+1}], v[{EP+2}:{EP+3}]\nv_pk_add_f32 v[{T+2}:{T+3}], v[{EN}:{EN+1}], v[{EN+2}:{EN+3}]")
    for i in range(2, 8):
        k.e(f"v_pk_add_f32 v[{T}:{T+1}], v[{T}:{T+1}], v[{EP+2*i}:{EP+2*i+1}]\nv_pk_add_f32 v[{T+2}:{T+3}], v[{T+2}:{T+3}], v[{EN+2*i}:{EN+2*i+1}]")
    k.e(f"""v_add_f32 v{T}, v{T}, v{T+1}
    v_add_f32 v{T+1}, v{T+2}, v{T+3}
    s_nop 1
    v_permlane32_swap_b32 v{T}, v{T+1}
    v_add_f32 v{T}, v{T}, v{T+1}
    v_rcp_f32 v{T}, v{T}
    s_nop 0
    v_mov_b32 v{T+1}, v{T}
    s_nop 1
    v_permlane32_swap_b32 v{T}, v{T+1}""")
    for i in range(8):
        k.e(f"v_pk_mul_f32 v[{EP+2*i}:{EP+2*i+1}], v[{EP+2*i}:{EP+2*i+1}], v[{T}:{T+1}] op_sel_hi:[1,0]")
        k.e(f"v_pk_mul_f32 v[{EN+2*i}:{EN+2*i+1}], v[{EN+2*i}:{EN+2*i+1}], v[{T}:{T+1}] op_sel:[0,1] op_sel_hi:[1,1]")
    cvt16(k, OP, EP); cvt16(k, ON, EN)

MF = "v_mfma_f32_32x32x16_bf16"

def k1():
    c = Cfg(128,192,16,3,2,2,1, 2048, 6144, [(0,0),(1,0),(2,0)], True, False, orient=['T','T','N'], gm=8, gn=4, smode='frag')
    k = Kern("k1")
    R = Regs(); R.aS = 8; R.aF = 12; R.fr = 16; R.acc = 64
    L_PHK=0; L_VX=32768; L_KV=49152; L_Z=57344; L_WPHI=c.stage*c.NS
    common_entry(k, c, "L_k1_end")
    stamp(k, 0)
    k.e("s_waitcnt lgkmcnt(0)")
    mk_srd(k, SRD_S, P_WS, 4*MB, WS_XN); mk_srd(k, SRD_F, P_WQKV, 1024*3072*2)
    mk_srd(k, SRD_B, P_WS, 2*MB+65536, WS_KVP)
    k.e(f"s_cmp_lt_u32 s{S_WAVE}, 4\ns_cbranch_scc1 L_k1_cons")
    mk_srd(k, SRD_A, P_WPHI, 65536); mk_srd(k, SRD_C, P_WS, 4096, WS_FLAG)
    k.e(f"s_lshl_b32 s{S_T0}, s{S_N}, 7")
    loader_setup(k, c, lambda P: (S_T0, P*2048), 16)
    k.e(f"""s_lshl_b32 s{S_T}, s{S_N}, 12
    s_add_u32 s{S_T}, s{S_T}, s{S_M0W}
    v_lshlrev_b32 v2, 4, v1
    s_add_u32 m0, s{S_M0W}, {L_WPHI}
    s_nop 0
    buffer_load_dwordx4 v2, {srd(SRD_A)}, s{S_T} offen lds""")
    loader_main(k, c, 16)
    k.e("s_barrier")
    k.e("s_barrier")
    k.e(f"""s_and_b32 s{S_T}, s{S_LW}, 1
    s_lshr_b32 s{S_T+1}, s{S_LW}, 1
    s_lshl_b32 s{S_T+2}, s{S_N}, 1
    s_add_u32 s{S_T+2}, s{S_T+2}, s{S_T}
    s_lshl_b32 s{S_T+2}, s{S_T+2}, 1
    s_add_u32 s{S_T+2}, s{S_T+2}, s{S_T+1}
    s_lshl_b32 s{S_T+3}, s{S_T+2}, 15
    s_lshl_b32 s{S_T+4}, s{S_T+2}, 10
    s_add_u32 s{S_T+4}, s{S_T+4}, {2*MB}
    v_lshlrev_b32 v2, 4, v1
    v_and_b32 v3, 15, v1
    v_lshlrev_b32 v3, 6, v3
    v_lshrrev_b32 v4, 4, v1
    v_lshl_add_u32 v3, v4, 4, v3
    s_lshl_b32 s{S_T+5}, s{S_N}, 7
    v_lshlrev_b32 v5, 2, v1
    v_add_u32 v5, s{S_T+5}, v5
    s_lshl_b32 s{S_T+6}, s{S_M}, 2
    s_add_u32 s{S_T+6}, s{S_T+6}, s{S_T+5}
    v_mov_b32 v6, s{S_T+6}
    v_mov_b32 v7, 1""")
    k.e("s_barrier")
    k.e(f"""s_cmp_lg_u32 s{S_LW}, 0
    s_cbranch_scc1 L_k1_nofl
    s_mov_b64 s[{S_X}:{S_X+1}], exec
    s_mov_b64 exec, 1
    buffer_store_dword v7, v6, {srd(SRD_C)}, 0 offen sc1
    s_mov_b64 exec, s[{S_X}:{S_X+1}]
    L_k1_nofl:""")
    poll(k, 8, 5, SRD_C, 16, S_T+8)
    k.e(f"buffer_load_dwordx4 v[12:15], v3, {srd(SRD_B)}, s{S_T+4} offen sc1")
    D = 64
    for mt in range(16):
        for cc in range(2):
            r = D + (mt*2+cc)*4
            k.e(f"buffer_load_dwordx4 v[{r}:{r+3}], v2, {srd(SRD_B)}, s{S_T+3} offen offset:{(mt&1)*2048+cc*1024} sc1")
        if mt & 1: k.e(f"s_add_u32 s{S_T+3}, s{S_T+3}, 4096")
    k.e("s_waitcnt vmcnt(32)")
    for i in range(4): unpack(k, 16+2*i, 17+2*i, 12+i)
    for sh in (8, 4, 2, 1):
        k.e("s_nop 1")
        for i in range(8): k.e(f"v_add_f32_dpp v{16+i}, v{16+i}, v{16+i} row_ror:{sh} row_mask:0xf bank_mask:0xf")
    for i in range(4): k.e(f"v_cvt_pk_bf16_f32 v{12+i}, v{16+2*i}, v{17+2*i}")
    k.e(f"""s_lshl_b32 s{S_T+5}, s{S_T}, 1
    s_add_u32 s{S_T+5}, s{S_T+5}, s{S_T+1}
    s_lshl_b32 s{S_T+6}, s{S_T+5}, 6
    v_lshlrev_b32 v9, 4, v4
    v_add_u32 v9, s{S_T+6}, v9
    ds_write_b128 v9, v[12:15] offset:{L_Z}
    s_lshl_b32 s{S_T+6}, s{S_T+5}, 11
    v_add_u32 v9, s{S_T+6}, v2""")
    A = 32
    for mt in range(16):
        k.e(f"s_waitcnt vmcnt({30-2*mt})")
        for j in range(8):
            r = D + mt*8 + j
            if mt == 0: unpack(k, A+2*j, A+2*j+1, r)
            else:
                t = 24 + 2*(j & 1)
                unpack(k, t, t+1, r)
                k.e(f"v_pk_add_f32 v[{A+2*j}:{A+2*j+1}], v[{A+2*j}:{A+2*j+1}], v[{t}:{t+1}]")
    cvt16(k, 48, A)
    k.e(f"ds_write_b128 v9, v[48:51] offset:{L_KV}\nds_write_b128 v9, v[52:55] offset:{L_KV+1024}\ns_waitcnt lgkmcnt(0)")
    k.e("s_barrier")
    k.e("s_endpgm")
    k.e("L_k1_cons:")
    mk_srd(k, SRD_A, P_WS, 4*MB, WS_O)
    k.e(f"s_mov_b32 s{S_K+10}, {f2u(LOG2E)}\ns_mov_b32 s{S_K+11}, {f2u(LOG2E)}")
    consumer_setup(k, c, R)
    consumer_main(k, c, R, hook_after_first_barrier=lambda: stamp(k, 1))
    stamp(k, 2)
    Q0,Q1,K0,K1,V0,V1 = 64,80,96,112,128,144
    WP=16; KB=24; VB=40; PK=160; PQ=192; QB=96
    tr_lane_base(k, 2, 3, 9, rowshift=6, swz=False)
    k.e(f"s_lshl_b32 s{S_T}, s{S_WN}, 11\ns_add_u32 s{S_T}, s{S_T}, {L_WPHI}\nv_add_u32 v2, s{S_T}, v2")
    for cc in range(2):
        for rd in range(2):
            k.e(f"ds_read_b64_tr_b16 v[{WP+4*cc+2*rd}:{WP+4*cc+2*rd+1}], v2 offset:{cc*1024+rd*256}")
    k.e(f"""v_lshrrev_b32 v3, 5, v1
    v_and_b32 v4, 31, v1
    v_lshlrev_b32 v5, 2, v3
    v_xor_b32 v4, v4, v5
    v_lshlrev_b32 v4, 4, v4
    v_lshl_add_u32 v4, v3, 9, v4
    s_lshl_b32 s{S_T}, s{S_WN}, 14
    s_lshl_b32 s{S_T+1}, s{S_WM}, 13
    s_add_u32 s{S_T+2}, s{S_T}, s{S_T+1}
    v_add_u32 v4, s{S_T+2}, v4
    v_xor_b32 v5, 128, v4
    v_lshlrev_b32 v7, 4, v1
    s_lshl_b32 s{S_T+3}, s{S_WN}, 13
    v_add_u32 v6, s{S_T+3}, v7
    s_lshl_b32 s{S_T+4}, s{S_WM}, 12
    v_add_u32 v9, s{S_T+4}, v6""")
    cvt16(k, KB, K0); cvt16(k, KB+8, K1)
    k.e("s_waitcnt lgkmcnt(0)")
    for st in range(2):
        k.e(f"{MF} v[{PK+16*st}:{PK+16*st+15}], v[{WP}:{WP+3}], v[{KB+8*st}:{KB+8*st+3}], 0")
        k.e(f"{MF} v[{PK+16*st}:{PK+16*st+15}], v[{WP+4}:{WP+7}], v[{KB+8*st+4}:{KB+8*st+7}], v[{PK+16*st}:{PK+16*st+15}]")
    cvt16(k, QB, Q0); cvt16(k, QB+8, Q1)
    cvt16(k, VB, V0); cvt16(k, VB+8, V1)
    for st in range(2):
        k.e(f"{MF} v[{PQ+16*st}:{PQ+16*st+15}], v[{WP}:{WP+3}], v[{QB+8*st}:{QB+8*st+3}], 0")
        k.e(f"{MF} v[{PQ+16*st}:{PQ+16*st+15}], v[{WP+4}:{WP+7}], v[{QB+8*st+4}:{QB+8*st+7}], v[{PQ+16*st}:{PQ+16*st+15}]")
    for i in range(4):
        k.e(f"ds_write_b128 v9, v[{VB+4*i}:{VB+4*i+3}] offset:{L_VX+i*1024}")
    EP=64; EN=80; T=56; OP=112; ON=120
    for st in range(2):
        o = 16*st
        softmax_pm(k, PK+16*st, EP, EN, T, OP+o, ON+o)
        k.e(f"""ds_write_b128 v4, v[{OP+o}:{OP+o+3}] offset:{L_PHK+st*4096}
        ds_write_b128 v5, v[{OP+o+4}:{OP+o+7}] offset:{L_PHK+st*4096+1024}
        ds_write_b128 v4, v[{ON+o}:{ON+o+3}] offset:{L_PHK+st*4096+2048}
        ds_write_b128 v5, v[{ON+o+4}:{ON+o+7}] offset:{L_PHK+st*4096+3072}""")
    blk_tr_base(k, 10, 2, 3, 2)
    k.e(f"""s_lshl_b32 s{S_T+1}, s{S_WM}, 11
    s_add_u32 s{S_T+1}, s{S_T+1}, s{S_T}
    v_add_u32 v10, s{S_T+1}, v10
    v_xor_b32 v11, 128, v10""")
    ONES=24
    for i in range(4): k.e(f"v_mov_b32 v{ONES+i}, 0x3f803f80")
    k.e("s_waitcnt lgkmcnt(0)\ns_barrier")
    AF=64; VF=128; KV=160; ZZ=176
    for half in range(2):
        for kc in range(4*half, 4*half+4):
            off = L_PHK + (kc>>1)*4096 + (kc&1)*256
            k.e(f"""ds_read_b64_tr_b16 v[{AF+4*kc}:{AF+4*kc+1}], v10 offset:{off}
            ds_read_b64_tr_b16 v[{AF+4*kc+2}:{AF+4*kc+3}], v11 offset:{off}
            ds_read_b128 v[{VF+4*kc}:{VF+4*kc+3}], v6 offset:{L_VX+kc*1024}""")
        for kc in range(4*half, 4*half+4):
            k.e(f"s_waitcnt lgkmcnt({3*(4*half+3-kc)})")
            cin = "0" if kc == 0 else None
            k.e(f"{MF} v[{KV}:{KV+15}], v[{AF+4*kc}:{AF+4*kc+3}], v[{VF+4*kc}:{VF+4*kc+3}], {cin or f'v[{KV}:{KV+15}]'}")
            k.e(f"{MF} v[{ZZ}:{ZZ+15}], v[{AF+4*kc}:{AF+4*kc+3}], v[{ONES}:{ONES+3}], {cin or f'v[{ZZ}:{ZZ+15}]'}")
    k.e(f"""s_lshl_b32 s{S_T+5}, s{S_N}, 1
    s_add_u32 s{S_T+5}, s{S_T+5}, s{S_WN}
    s_lshl_b32 s{S_T+6}, s{S_T+5}, 1
    s_add_u32 s{S_T+6}, s{S_T+6}, s{S_WM}
    s_lshl_b32 s{S_T+6}, s{S_T+6}, 4
    s_add_u32 s{S_T+6}, s{S_T+6}, s{S_M}
    s_lshl_b32 s{S_T+7}, s{S_T+6}, 11
    s_lshl_b32 s{S_T+8}, s{S_T+6}, 6
    s_add_u32 s{S_T+8}, s{S_T+8}, {2*MB}
    v_lshrrev_b32 v2, 1, v1
    s_nop 3""")
    cvt16(k, 32, KV)
    k.e(f"buffer_store_dwordx4 v[32:35], v7, {srd(SRD_B)}, s{S_T+7} offen sc1\nbuffer_store_dwordx4 v[36:39], v7, {srd(SRD_B)}, s{S_T+7} offen offset:1024 sc1")
    cvt16(k, 40, ZZ)
    k.e(f"""s_mov_b64 s[{S_X}:{S_X+1}], exec
    s_mov_b32 exec_lo, 1
    s_mov_b32 exec_hi, 1
    buffer_store_dwordx4 v[40:43], v2, {srd(SRD_B)}, s{S_T+8} offen sc1
    buffer_store_dwordx4 v[44:47], v2, {srd(SRD_B)}, s{S_T+8} offen offset:32 sc1
    s_mov_b64 exec, s[{S_X}:{S_X+1}]""")
    PH=128
    softmax_pm(k, PQ, EP, EN, T, PH, PH+8)
    k.e("s_waitcnt vmcnt(0)\ns_barrier")
    stamp(k, 3)
    softmax_pm(k, PQ+16, EP, EN, T, PH+16, PH+24)
    k.e(f"""s_lshl_b32 s{S_T}, s{S_WN}, 12
    v_add_u32 v2, s{S_T}, v7
    v_lshrrev_b32 v3, 5, v1
    v_lshlrev_b32 v3, 4, v3
    s_lshl_b32 s{S_T}, s{S_WN}, 7
    v_add_u32 v3, s{S_T}, v3
    s_lshl_b32 s{S_T}, s{S_M}, 2
    s_lshl_b32 s{S_T+1}, s{S_WM}, 1
    s_add_u32 s{S_T}, s{S_T}, s{S_T+1}
    s_lshl_b32 s{S_T}, s{S_T}, 16
    s_lshl_b32 s{S_T+1}, s{S_T+5}, 11
    s_add_u32 s{S_T}, s{S_T}, s{S_T+1}
    s_add_u32 s{S_T+1}, s{S_T}, 65536""")
    k.e("s_barrier")
    stamp(k, 4)
    KF=16; ZF=32; NUM=64; DEN=96
    for i in range(4):
        k.e(f"ds_read_b128 v[{KF+4*i}:{KF+4*i+3}], v2 offset:{L_KV+i*1024}\nds_read_b128 v[{ZF+4*i}:{ZF+4*i+3}], v3 offset:{L_Z+i*32}")
    k.e("s_waitcnt lgkmcnt(0)")
    for st in range(2):
        for i in range(4):
            b = PH+16*st+4*i
            k.e(f"{MF} v[{DEN+16*st}:{DEN+16*st+15}], v[{ZF+4*i}:{ZF+4*i+3}], v[{b}:{b+3}], {'0' if i==0 else f'v[{DEN+16*st}:{DEN+16*st+15}]'}")
        for i in range(4):
            b = PH+16*st+4*i
            k.e(f"{MF} v[{NUM+16*st}:{NUM+16*st+15}], v[{KF+4*i}:{KF+4*i+3}], v[{b}:{b+3}], {'0' if i==0 else f'v[{NUM+16*st}:{NUM+16*st+15}]'}")
    k.e("s_nop 7")
    for st in range(2):
        d = DEN+16*st; n = NUM+16*st
        if OPT.rnum:
            round_bf16(k, d, d)
        k.e(f"v_add_f32 v{d}, {f2u(1e-6)}, v{d}")
        if OPT.rnum:
            round_bf16(k, d, d); round16_inplace(k, n, 56)
        k.e(f"v_rcp_f32 v{d}, v{d}\ns_nop 3")
        for i in range(8): k.e(f"v_pk_mul_f32 v[{n+2*i}:{n+2*i+1}], v[{n+2*i}:{n+2*i+1}], v[{d}:{d+1}] op_sel_hi:[1,0]")
        cvt16(k, 48+8*st-0 if False else 160+8*st, n)
        o = 160+8*st
        k.e(f"buffer_store_dwordx4 v[{o}:{o+3}], v7, {srd(SRD_A)}, s{S_T+st} offen\nbuffer_store_dwordx4 v[{o+4}:{o+7}], v7, {srd(SRD_A)}, s{S_T+st} offen offset:1024")
    if OPT.stamps:
        k.e("s_waitcnt vmcnt(0)"); stamp(k, 5 if False else 0) if False else None
    k.e("L_k1_fin:")
    if OPT.stamps:
        k.e(f"s_memrealtime s[{S_K+10}:{S_K+11}]\ns_waitcnt lgkmcnt(0)")
        stamp_out(k, 1, 6)
    k.e("L_k1_end:\ns_endpgm")
    return k, 224, c.nwg, L_WPHI+4096

def xhalf_sum2(k, a):
    k.e(f"""s_nop 1
    v_permlane32_swap_b32 v{a}, v{a+1}
    v_add_f32 v{a}, v{a}, v{a+1}
    v_mov_b32 v{a+1}, v{a}
    s_nop 1
    v_permlane32_swap_b32 v{a}, v{a+1}""")

def xhalf_sum1(k, a):
    k.e(f"""v_mov_b32 v{a+1}, v{a}
    s_nop 1
    v_permlane32_swap_b32 v{a}, v{a+1}
    v_add_f32 v{a}, v{a}, v{a+1}""")

def k25(which):
    g2 = which == 2
    name = f"k{which}"
    if g2: c = Cfg(128,64,16,4,4,1,2, 2048, 2048, [(0,0),(0,1)], False, False, gm=4, gn=8, smode='frag')
    else:  c = Cfg(128,64,28,4,4,1,2, 3584, 2048, [(0,0),(0,1)], False, False, gm=4, gn=8, smode='frag')
    k = Kern(name)
    R = Regs(); R.aS = 8; R.aF = 12; R.fr = 16; R.acc = 64
    common_entry(k, c, f"L_{name}_end")
    stamp(k, 0)
    k.e("s_waitcnt lgkmcnt(0)")
    k.e(f"s_cmp_lt_u32 s{S_WAVE}, 4\ns_cbranch_scc1 L_{name}_cons")
    if g2: mk_srd(k, SRD_S, P_WS, 4*MB, WS_O); mk_srd(k, SRD_F, P_WO, 1024*1024*2)
    else:  mk_srd(k, SRD_S, P_WS, 7*MB, WS_U); mk_srd(k, SRD_F, P_WOUT, 1792*1024*2)
    k.e(f"s_lshl_b32 s{S_T0}, s{S_N}, 7")
    loader_setup(k, c, lambda P: (S_T0, 0), 16)
    loader_main(k, c, 16)
    k.e("s_barrier\ns_endpgm")
    k.e(f"L_{name}_cons:")
    mk_srd(k, SRD_A, P_WS, 4*MB, WS_H)
    mk_srd(k, SRD_B, P_X if g2 else P_OUT, 4*MB)
    if g2: mk_srd(k, SRD_C, P_WS, 16*2048*8, WS_HST)
    consumer_setup(k, c, R)
    k.e(f"""s_lshl_b32 s{S_T}, s{S_M}, 2
    s_add_u32 s{S_T}, s{S_T}, s{S_WM}
    s_lshl_b32 s{S_T+1}, s{S_T}, 16
    s_lshl_b32 s{S_T+2}, s{S_N}, 7
    s_add_u32 s{S_T+2}, s{S_T+2}, s{S_T+1}
    v_and_b32 v2, 31, v1
    v_lshlrev_b32 v14, 11, v2
    v_lshrrev_b32 v3, 5, v1
    v_lshl_add_u32 v14, v3, 4, v14
    v_add_u32 v14, s{S_T+2}, v14
    s_lshl_b32 s{S_T+2}, s{S_N}, 12
    s_add_u32 s{S_T+2}, s{S_T+2}, s{S_T+1}
    v_lshlrev_b32 v15, 4, v1
    v_add_u32 v15, s{S_T+2}, v15""")
    RS = 96
    for i in range(4):
        if g2: k.e(f"buffer_load_dwordx4 v[{RS+4*i}:{RS+4*i+3}], v14, {srd(SRD_B)}, 0 offen offset:{32*i}")
        else:  k.e(f"buffer_load_dwordx4 v[{RS+4*i}:{RS+4*i+3}], v15, {srd(SRD_A)}, 0 offen offset:{1024*i}")
    if g2:
        k.e(f"""s_lshl_b32 s{S_T}, s{S_T}, 8
        s_lshl_b32 s{S_T+1}, s{S_N}, 14
        s_add_u32 s{S_T}, s{S_T}, s{S_T+1}
        v_lshlrev_b32 v9, 3, v2
        v_add_u32 v9, s{S_T}, v9""")
    consumer_main(k, c, R, hook_after_first_barrier=lambda: stamp(k, 1))
    stamp(k, 2)
    k.e("s_waitcnt vmcnt(0)\ns_nop 7\ns_nop 3")
    A = R.acc
    rnd = OPT.rattn if g2 else OPT.rout
    if rnd: round16_inplace(k, A, 16); round16_inplace(k, A+16, 16)
    for i in range(16):
        t = 16 + 2*(i & 1)
        unpack(k, t, t+1, RS+i)
        k.e(f"v_pk_add_f32 v[{A+2*i}:{A+2*i+1}], v[{A+2*i}:{A+2*i+1}], v[{t}:{t+1}]")
        k.e(f"v_cvt_pk_bf16_f32 v{32+i}, v{A+2*i}, v{A+2*i+1}")
        if i & 3 == 3:
            j = i >> 2
            if g2: k.e(f"buffer_store_dwordx4 v[{32+4*j}:{35+4*j}], v15, {srd(SRD_A)}, 0 offen offset:{1024*j}")
            else:  k.e(f"buffer_store_dwordx4 v[{32+4*j}:{35+4*j}], v14, {srd(SRD_B)}, 0 offen offset:{32*j}")
    if g2:
        for i in range(16): unpack(k, A+2*i, A+2*i+1, 32+i)
        k.e(f"v_pk_add_f32 v[20:21], v[{A}:{A+1}], v[{A+2}:{A+3}]\nv_pk_add_f32 v[22:23], v[{A+4}:{A+5}], v[{A+6}:{A+7}]")
        for i in range(4, 16):
            t = 20 + 2*(i & 1)
            k.e(f"v_pk_add_f32 v[{t}:{t+1}], v[{t}:{t+1}], v[{A+2*i}:{A+2*i+1}]")
        k.e("v_pk_add_f32 v[20:21], v[20:21], v[22:23]\nv_add_f32 v20, v20, v21")
        xhalf_sum1(k, 20)
        k.e(f"v_mul_f32 v20, {f2u(1/64.)}, v20")
        for i in range(16):
            k.e(f"v_pk_add_f32 v[{A+2*i}:{A+2*i+1}], v[{A+2*i}:{A+2*i+1}], v[20:21] op_sel_hi:[1,0] neg_lo:[0,1] neg_hi:[0,1]")
        k.e(f"v_pk_mul_f32 v[22:23], v[{A}:{A+1}], v[{A}:{A+1}]\nv_pk_mul_f32 v[24:25], v[{A+2}:{A+3}], v[{A+2}:{A+3}]")
        for i in range(2, 16):
            t = 22 + 2*(i & 1)
            k.e(f"v_pk_fma_f32 v[{t}:{t+1}], v[{A+2*i}:{A+2*i+1}], v[{A+2*i}:{A+2*i+1}], v[{t}:{t+1}]")
        k.e("v_pk_add_f32 v[22:23], v[22:23], v[24:25]\nv_add_f32 v22, v22, v23")
        xhalf_sum1(k, 22)
        k.e(f"""v_mov_b32 v21, v22
        s_mov_b32 exec_hi, 0
        buffer_store_dwordx2 v[20:21], v9, {srd(SRD_C)}, 0 offen""")
    if OPT.stamps:
        k.e("s_waitcnt vmcnt(0)"); stamp(k, 3); stamp_out(k, which, 4)
    k.e(f"L_{name}_end:\ns_endpgm")
    return k, 112, c.nwg, c.stage*c.NS

def combine_stats(k, P, stride, n, cnt, d, t):
    k.e(f"v_add_f32 v{d}, v{P}, v{P+stride}\nv_add_f32 v{d+1}, v{P+1}, v{P+stride+1}")
    for i in range(2, n):
        k.e(f"v_add_f32 v{d}, v{d}, v{P+stride*i}\nv_add_f32 v{d+1}, v{d+1}, v{P+stride*i+1}")
    k.e(f"v_mul_f32 v{d}, {f2u(1.0/n)}, v{d}\nv_mov_b32 v{t+1}, 0")
    for i in range(n):
        k.e(f"v_sub_f32 v{t}, v{P+stride*i}, v{d}\nv_fmac_f32 v{t+1}, v{t}, v{t}")
    k.e(f"v_fmac_f32 v{d+1}, {f2u(float(cnt))}, v{t+1}")

def finish_rstd(k, d, total, mimic):
    k.e(f"v_mul_f32 v{d+1}, {f2u(1.0/total)}, v{d+1}")
    if mimic:
        round_bf16(k, d+1, d+1)
        k.e(f"v_add_f32 v{d+1}, {f2u(1e-5)}, v{d+1}")
        round_bf16(k, d+1, d+1)
        k.e(f"v_sqrt_f32 v{d+1}, v{d+1}\ns_nop 0")
        round_bf16(k, d+1, d+1)
        k.e(f"v_rcp_f32 v{d+1}, v{d+1}")
        round_bf16(k, d, d)
    else:
        k.e(f"v_add_f32 v{d+1}, {f2u(1e-5)}, v{d+1}\nv_rsq_f32 v{d+1}, v{d+1}\ns_nop 0")
    k.e(f"v_mul_f32 v{d}, -v{d}, v{d+1}")

def k3():
    c = Cfg(128,256,16,3,2,2,1, 2048, 7168, [(0,0),(0,1),(2,0),(2,1)], False, True, gm=4, gn=7, ntn=14, smode='frag')
    k = Kern("k3")
    R = Regs(); R.aS = 8; R.aF = 12; R.fr = 16; R.acc = 64
    LB = c.stage*c.NS
    L_HS = LB; L_CS = LB+1024; L_ZP = LB+2048; L_ZS = LB+4096
    common_entry(k, c, "L_k3_end")
    stamp(k, 0)
    k.e("s_waitcnt lgkmcnt(0)")
    k.e(f"s_cmp_lt_u32 s{S_WAVE}, 4\ns_cbranch_scc1 L_k3_cons")
    mk_srd(k, SRD_S, P_WS, 4*MB, WS_H); mk_srd(k, SRD_F, P_WIN, 1024*3584*2)
    mk_srd(k, SRD_A, P_WS, 2*MB, WS_CSP)
    mk_srd(k, SRD_B, P_WS, 16*14*1024, WS_ZST); mk_srd(k, SRD_C, P_WS, 4096, WS_FLAG+4096)
    k.e(f"s_lshl_b32 s{S_T0}, s{S_N}, 8")
    loader_setup(k, c, lambda P: (S_T0, (P&1)*128 + (P>>1)*3584), 16)
    D = 64
    def side_loads():
        k.e(f"""v_lshlrev_b32 v2, 3, v1
        s_and_b32 s{S_T}, s{S_LW}, 1
        s_lshl_b32 s{S_T+1}, s{S_M}, 10
        s_lshl_b32 s{S_T+2}, s{S_T}, 9
        s_add_u32 s{S_T+1}, s{S_T+1}, s{S_T+2}
        s_add_u32 s{S_T+1}, s{S_T+1}, {MB}
        s_mul_i32 s{S_T+3}, s{S_T}, {1792*4}
        s_lshl_b32 s{S_T+4}, s{S_N}, 9
        s_add_u32 s{S_T+3}, s{S_T+3}, s{S_T+4}
        s_mov_b32 s{S_T+4}, 16384
        s_cmp_lt_u32 s{S_LW}, 2
        s_cselect_b32 s{S_T+1}, s{S_T+1}, s{S_T+3}
        s_cselect_b32 s{S_T+4}, s{S_T+4}, 14336""")
        for i in range(16):
            k.e(f"buffer_load_dwordx2 v[{D+2*i}:{D+2*i+1}], v2, {srd(SRD_A)}, s{S_T+1} offen\ns_add_u32 s{S_T+1}, s{S_T+1}, s{S_T+4}")
        return 16
    loader_main(k, c, 16, tail_hook=side_loads)
    k.e(f"s_waitcnt vmcnt(0)\nv_add_u32 v2, s{S_T+2}, v2\ns_cmp_lt_u32 s{S_LW}, 2\ns_cbranch_scc0 L_k3_cs")
    combine_stats(k, D, 2, 16, 64, 4, 6)
    finish_rstd(k, 4, 1024, OPT.mimic2)
    k.e(f"ds_write_b64 v2, v[4:5] offset:0\ns_branch L_k3_sd".replace("offset:0", "offset:0"))
    k.L[-2] = f"    v_add_u32 v2, {L_HS}, v2\n    ds_write_b64 v2, v[4:5]"
    k.e("L_k3_cs:")
    for i in range(1, 16): k.e(f"v_pk_add_f32 v[{D}:{D+1}], v[{D}:{D+1}], v[{D+2*i}:{D+2*i+1}]")
    k.e(f"v_add_u32 v2, {L_CS}, v2\nds_write_b64 v2, v[{D}:{D+1}]")
    k.e("L_k3_sd:\ns_waitcnt lgkmcnt(0)\ns_barrier")
    k.e(f"s_cmp_lg_u32 s{S_LW}, 0\ns_cbranch_scc1 L_k3_end")
    k.e(f"""v_lshlrev_b32 v2, 4, v1
    v_add_u32 v3, {L_ZP}, v2
    s_mul_i32 s{S_T}, s{S_M}, {14*1024}
    s_lshl_b32 s{S_T+1}, s{S_N}, 10
    s_add_u32 s{S_T+1}, s{S_T+1}, s{S_T}
    s_lshl_b32 s{S_T+2}, s{S_M}, 7
    v_lshlrev_b32 v5, 2, v1
    v_add_u32 v5, s{S_T+2}, v5
    s_lshl_b32 s{S_T+3}, s{S_N}, 2
    s_add_u32 s{S_T+3}, s{S_T+3}, s{S_T+2}
    v_mov_b32 v6, s{S_T+3}
    v_mov_b32 v7, 1""")
    k.e("s_barrier")
    k.e("ds_read_b128 v[16:19], v3\nds_read_b128 v[20:23], v3 offset:1024\ns_waitcnt lgkmcnt(0)")
    combine_stats(k, 16, 4, 2, 64, 24, 28)
    combine_stats(k, 18, 4, 2, 64, 26, 28)
    k.e(f"""buffer_store_dwordx4 v[24:27], v2, {srd(SRD_B)}, s{S_T+1} offen sc1
    s_waitcnt vmcnt(0)
    s_mov_b64 s[{S_X}:{S_X+1}], exec
    s_mov_b64 exec, 1
    buffer_store_dword v7, v6, {srd(SRD_C)}, 0 offen sc1
    s_mov_b64 exec, s[{S_X}:{S_X+1}]""")
    poll(k, 8, 5, SRD_C, 14, S_T+8)
    for i in range(14):
        k.e(f"buffer_load_dwordx4 v[{D+4*i}:{D+4*i+3}], v2, {srd(SRD_B)}, s{S_T} offen offset:{(i&3)*1024} sc1")
        if i & 3 == 3: k.e(f"s_add_u32 s{S_T}, s{S_T}, 4096")
    k.e("s_waitcnt vmcnt(0)")
    combine_stats(k, D, 4, 14, 128, 24, 28); finish_rstd(k, 24, 1792, False)
    combine_stats(k, D+2, 4, 14, 128, 26, 28); finish_rstd(k, 26, 1792, False)
    k.e(f"v_add_u32 v3, {L_ZS}, v2\nds_write_b128 v3, v[24:27]\ns_waitcnt lgkmcnt(0)\ns_barrier\ns_endpgm")
    k.e("L_k3_cons:")
    mk_srd(k, SRD_A, P_WS, 7*MB, WS_Z1); mk_srd(k, SRD_B, P_WS, 7*MB, WS_Z2N)
    C0 = -2*LOG2E*0.7978845608028654; C1 = C0*0.044715
    k.e(f"s_mov_b32 s{S_K+8}, {f2u(C1)}\ns_mov_b32 s{S_K+9}, {f2u(C1)}")
    consumer_setup(k, c, R)
    consumer_main(k, c, R, hook_after_first_barrier=lambda: stamp(k, 1))
    stamp(k, 2)
    k.e(f"""v_and_b32 v6, 31, v1
    s_lshl_b32 s{S_T}, s{S_WM}, 6
    v_add_u32 v6, s{S_T}, v6
    v_lshlrev_b32 v6, 3, v6
    v_add_u32 v6, {LB}, v6
    ds_read_b64 v[2:3], v6 offset:{L_HS-LB}
    ds_read_b64 v[4:5], v6 offset:{L_HS-LB+256}
    v_lshrrev_b32 v7, 5, v1
    v_lshlrev_b32 v9, 5, v7
    s_lshl_b32 s{S_T}, s{S_WN}, 8
    s_add_u32 s{S_T}, s{S_T}, {L_CS}
    v_add_u32 v9, s{S_T}, v9
    v_mov_b32 v10, {f2u(C0)}""")
    CS = 16
    def load_cs(ft, dst):
        base = (ft>>1)*512 + (ft&1)*128
        for q in range(4):
            k.e(f"ds_read_b128 v[{dst+4*q}:{dst+4*q+3}], v9 offset:{base + (q>>1)*64 + (q&1)*16}")
    def gelu_tile(a, cs, st):
        s = 2+2*st
        G = 4
        for g in range(0, 8, G):
            t = 48
            for i in range(g, g+G):
                p = t+2*(i-g)
                k.e(f"v_pk_mul_f32 v[{p}:{p+1}], v[{cs+2*i}:{cs+2*i+1}], v[{s}:{s+1}] op_sel_hi:[1,0]")
            for i in range(g, g+G):
                p = t+2*(i-g); y = a+2*i
                k.e(f"v_pk_fma_f32 v[{y}:{y+1}], v[{y}:{y+1}], v[{s}:{s+1}], v[{p}:{p+1}] op_sel:[0,1,0] op_sel_hi:[1,1,1]")
            for i in range(g, g+G):
                p = t+2*(i-g); y = a+2*i
                k.e(f"v_pk_mul_f32 v[{p}:{p+1}], v[{y}:{y+1}], v[{y}:{y+1}]")
            for i in range(g, g+G):
                p = t+2*(i-g)
                k.e(f"v_pk_fma_f32 v[{p}:{p+1}], v[{p}:{p+1}], s[{S_K+8}:{S_K+9}], v[10:11] op_sel_hi:[1,1,0]")
            for i in range(g, g+G):
                p = t+2*(i-g); y = a+2*i
                k.e(f"v_pk_mul_f32 v[{p}:{p+1}], v[{p}:{p+1}], v[{y}:{y+1}]")
            for j in range(2*G): k.e(f"v_exp_f32 v{t+j}, v{t+j}")
            for i in range(G): k.e(f"v_pk_add_f32 v[{t+2*i}:{t+2*i+1}], v[{t+2*i}:{t+2*i+1}], 1.0 op_sel_hi:[1,0]")
            for j in range(2*G): k.e(f"v_rcp_f32 v{t+j}, v{t+j}")
            for i in range(g, g+G):
                p = t+2*(i-g); y = a+2*i
                k.e(f"v_pk_mul_f32 v[{y}:{y+1}], v[{y}:{y+1}], v[{p}:{p+1}]")
    def acc(st, ft): return R.acc + 16*(ft*2+st)
    load_cs(2, CS); load_cs(3, CS+16)
    k.e("s_waitcnt lgkmcnt(0)")
    for ft in (2, 3):
        for st in range(2): gelu_tile(acc(st, ft), CS+16*(ft-2), st)
    load_cs(0, CS); load_cs(1, CS+16)
    for st in range(2):
        a = acc(st, 2); b = acc(st, 3); t = 48+4*st
        k.e(f"v_pk_add_f32 v[{t}:{t+1}], v[{a}:{a+1}], v[{a+2}:{a+3}]\nv_pk_add_f32 v[{t+2}:{t+3}], v[{b}:{b+1}], v[{b+2}:{b+3}]")
        for i in range(2, 8):
            k.e(f"v_pk_add_f32 v[{t}:{t+1}], v[{t}:{t+1}], v[{a+2*i}:{a+2*i+1}]\nv_pk_add_f32 v[{t+2}:{t+3}], v[{t+2}:{t+3}], v[{b+2*i}:{b+2*i+1}]")
        k.e(f"v_pk_add_f32 v[{t}:{t+1}], v[{t}:{t+1}], v[{t+2}:{t+3}]\nv_add_f32 v{56+st}, v{t}, v{t+1}")
    xhalf_sum2(k, 56)
    k.e(f"v_mul_f32 v56, {f2u(1/64.)}, v56\nv_mul_f32 v57, {f2u(1/64.)}, v57")
    for st in range(2):
        sel = "op_sel_hi:[1,0]" if st == 0 else "op_sel:[0,1] op_sel_hi:[1,1]"
        t = 48; first = True
        for j, a in enumerate((acc(st, 2), acc(st, 3))):
            for i in range(8):
                d = 60+2*(i & 1); u = t+2*(i & 1)
                k.e(f"v_pk_add_f32 v[{d}:{d+1}], v[{a+2*i}:{a+2*i+1}], v[56:57] {sel} neg_lo:[0,1] neg_hi:[0,1]")
                if j == 0 and i < 2: k.e(f"v_pk_mul_f32 v[{u}:{u+1}], v[{d}:{d+1}], v[{d}:{d+1}]")
                else: k.e(f"v_pk_fma_f32 v[{u}:{u+1}], v[{d}:{d+1}], v[{d}:{d+1}], v[{u}:{u+1}]")
        k.e(f"v_pk_add_f32 v[48:49], v[48:49], v[50:51]\nv_add_f32 v{58+st}, v48, v49")
    xhalf_sum2(k, 58)
    k.e(f"""v_cmp_gt_u32 vcc, 32, v1
    v_lshlrev_b32 v14, 3, v1
    s_lshl_b32 s{S_T}, s{S_WM}, 9
    s_lshl_b32 s{S_T+1}, s{S_WN}, 10
    s_add_u32 s{S_T}, s{S_T}, s{S_T+1}
    s_add_u32 s{S_T}, s{S_T}, {L_ZP}
    v_cndmask_b32 v60, v57, v56, vcc
    v_cndmask_b32 v61, v59, v58, vcc
    v_add_u32 v14, s{S_T}, v14
    ds_write_b64 v14, v[60:61]
    s_waitcnt lgkmcnt(0)
    s_barrier""")
    stamp(k, 3)
    k.e(f"""s_mul_i32 s{S_T}, s{S_M}, 14
    s_add_u32 s{S_T}, s{S_T}, s{S_N}
    s_lshl_b32 s{S_T}, s{S_T}, 2
    s_add_u32 s{S_T}, s{S_T}, s{S_WAVE}
    s_lshl_b32 s{S_T}, s{S_T}, 13
    v_lshlrev_b32 v15, 4, v1""")
    OB = 192
    for ft in (0, 1):
        for st in range(2):
            gelu_tile(acc(st, ft), CS+16*ft, st)
            o = OB + 8*(ft*2+st)
            cvt16(k, o, acc(st, ft))
            k.e(f"buffer_store_dwordx4 v[{o}:{o+3}], v15, {srd(SRD_A)}, s{S_T} offen offset:{st*2048}\nbuffer_store_dwordx4 v[{o+4}:{o+7}], v15, {srd(SRD_A)}, s{S_T} offen offset:{st*2048+1024}")
        k.e(f"s_add_u32 s{S_T}, s{S_T}, 4096")
    k.e(f"""v_and_b32 v12, 31, v1
    v_lshlrev_b32 v13, 2, v7
    v_xor_b32 v12, v12, v13
    v_lshlrev_b32 v12, 4, v12
    v_lshl_add_u32 v12, v7, 9, v12
    v_xor_b32 v13, 128, v12
    s_lshl_b32 s{S_T}, s{S_N}, 19
    s_lshl_b32 s{S_T+1}, s{S_M}, 15
    s_add_u32 s{S_T}, s{S_T}, s{S_T+1}
    s_lshl_b32 s{S_T+1}, s{S_WM}, 14
    s_add_u32 s{S_T}, s{S_T}, s{S_T+1}
    s_lshl_b32 s{S_T+1}, s{S_WN}, 12
    s_add_u32 s{S_T}, s{S_T}, s{S_T+1}
    s_add_u32 s{S_T+1}, s{S_T}, 8192""")
    k.e("s_barrier")
    stamp(k, 4)
    k.e(f"ds_read_b64 v[2:3], v6 offset:{L_ZS-LB}\nds_read_b64 v[4:5], v6 offset:{L_ZS-LB+256}\ns_waitcnt lgkmcnt(0)")
    for st in range(2):
        s = 2+2*st
        for ft in (2, 3):
            a = acc(st, ft); o = 16 + 8*((ft-2)+2*st)
            for i in range(8):
                k.e(f"v_pk_fma_f32 v[{a+2*i}:{a+2*i+1}], v[{a+2*i}:{a+2*i+1}], v[{s}:{s+1}], v[{s}:{s+1}] op_sel:[0,1,0] op_sel_hi:[1,1,0]")
            cvt16(k, o, a)
            k.e(f"buffer_store_dwordx4 v[{o}:{o+3}], v12, {srd(SRD_B)}, s{S_T+st} offen offset:{(ft-2)*2048}\nbuffer_store_dwordx4 v[{o+4}:{o+7}], v13, {srd(SRD_B)}, s{S_T+st} offen offset:{(ft-2)*2048+1024}")
    if OPT.stamps:
        k.e("s_waitcnt vmcnt(0)"); stamp(k, 5); stamp_out(k, 3, 6)
    k.e("L_k3_end:\ns_endpgm")
    return k, 224, c.nwg, LB+5120

def k4():
    c = Cfg(128,128,32,4,2,2,1, 4096, 0, [(0,0),(0,1)], False, True, gm=4, gn=7, ntn=14, smode='rows', fmode='blk')
    k = Kern("k4")
    R = Regs(); R.aS = 8; R.aF = 12; R.fr = 16; R.acc = 64
    common_entry(k, c, "L_k4_end")
    stamp(k, 0)
    k.e("s_waitcnt lgkmcnt(0)")
    k.e(f"s_cmp_lt_u32 s{S_WAVE}, 4\ns_cbranch_scc1 L_k4_cons")
    mk_srd(k, SRD_S, P_WSP, 2048*2048*2); mk_srd(k, SRD_F, P_WS, 7*MB, WS_Z2N)
    loader_setup(k, c, None, 16)
    loader_main(k, c, 16)
    k.e("s_barrier\ns_endpgm")
    k.e("L_k4_cons:")
    mk_srd(k, SRD_A, P_WS, 7*MB, WS_Z1); mk_srd(k, SRD_B, P_WS, 7*MB, WS_U); mk_srd(k, SRD_C, P_BSP, 4096)
    consumer_setup(k, c, R)
    Z = 128
    k.e(f"""s_mul_i32 s{S_T}, s{S_M}, 14
    s_add_u32 s{S_T}, s{S_T}, s{S_N}
    s_lshl_b32 s{S_T}, s{S_T}, 2
    s_add_u32 s{S_T}, s{S_T}, s{S_WAVE}
    s_lshl_b32 s{S_T}, s{S_T}, 13
    s_add_u32 s{S_T+1}, s{S_T}, 4096
    v_lshlrev_b32 v15, 4, v1
    v_and_b32 v14, 31, v1
    v_lshlrev_b32 v14, 1, v14
    s_lshl_b32 s{S_T+2}, s{S_M}, 8
    s_lshl_b32 s{S_T+3}, s{S_WM}, 7
    s_add_u32 s{S_T+2}, s{S_T+2}, s{S_T+3}
    buffer_load_ushort v48, v14, {srd(SRD_C)}, s{S_T+2} offen
    buffer_load_ushort v50, v14, {srd(SRD_C)}, s{S_T+2} offen offset:64""")
    def zloads():
        for i in range(8):
            k.e(f"buffer_load_dwordx4 v[{Z+4*i}:{Z+4*i+3}], v15, {srd(SRD_A)}, s{S_T+(i>>2)} offen offset:{(i&3)*1024}")
        stamp(k, 1)
    consumer_main(k, c, R, hook_after_first_barrier=zloads)
    stamp(k, 2)
    k.e(f"""s_lshl_b32 s{S_T}, s{S_M}, 2
    s_lshl_b32 s{S_T+1}, s{S_WM}, 1
    s_add_u32 s{S_T}, s{S_T}, s{S_T+1}
    s_mul_i32 s{S_T}, s{S_T}, 112
    s_lshl_b32 s{S_T+1}, s{S_N}, 3
    s_add_u32 s{S_T}, s{S_T}, s{S_T+1}
    s_lshl_b32 s{S_T+1}, s{S_WN}, 2
    s_add_u32 s{S_T}, s{S_T}, s{S_T+1}
    s_lshl_b32 s{S_T}, s{S_T}, 10
    s_add_u32 s{S_T+1}, s{S_T}, {112*1024}
    s_waitcnt vmcnt(0)
    v_lshlrev_b32 v48, 16, v48
    v_lshlrev_b32 v50, 16, v50""")
    for ft in range(2):
        for st in range(2):
            a = R.acc + 16*(ft*2+st); z = Z + 8*(ft*2+st); b = 48+2*st; o = 16+8*(ft*2+st)
            if OPT.rg: round16_inplace(k, a, 52)
            for i in range(8):
                k.e(f"v_pk_add_f32 v[{a+2*i}:{a+2*i+1}], v[{a+2*i}:{a+2*i+1}], v[{b}:{b+1}] op_sel_hi:[1,0]")
            if OPT.rg: round16_inplace(k, a, 52)
            for i in range(8):
                t = 52+2*(i & 1)
                unpack(k, t, t+1, z+i)
                k.e(f"v_pk_mul_f32 v[{a+2*i}:{a+2*i+1}], v[{a+2*i}:{a+2*i+1}], v[{t}:{t+1}]")
            cvt16(k, o, a)
            k.e(f"buffer_store_dwordx4 v[{o}:{o+3}], v15, {srd(SRD_B)}, s{S_T+st} offen offset:{ft*2048}\nbuffer_store_dwordx4 v[{o+4}:{o+7}], v15, {srd(SRD_B)}, s{S_T+st} offen offset:{ft*2048+1024}")
    if OPT.stamps:
        k.e("s_waitcnt vmcnt(0)"); stamp(k, 3); stamp_out(k, 4, 4)
    k.e("L_k4_end:\ns_endpgm")
    return k, 160, c.nwg, c.stage*c.NS

HEAD = open("sequential_preLN__linear_kernel_hedgehog__mixer_gmlp__prompt.s.ref").read().split("; Override launch")[0] if False else ""

def build_all():
    ks = [("k0_kernel", k0()), ("k1_kernel", k1()), ("k2_kernel", k25(2)), ("k3_kernel", k3()), ("k4_kernel", k4()), ("k5_kernel", k25(5))]
    out = []
    for n, (k, nv, nwg, lds) in ks:
        out.append(f"; @launch kernel={n} grid=({nwg},1,1) block=(512,1,1) lds={lds}")
    out.append('.amdgcn_target "amdgcn-amd-amdhsa--gfx950"\n.text')
    for n, (k, nv, nwg, lds) in ks:
        out.append(header(n) + k.text())
    out.append('.section .rodata,"a"')
    for n, (k, nv, nwg, lds) in ks:
        out.append(descriptor(n, nv))
    return "\n".join(out)

if __name__ == "__main__":
    for a in sys.argv[2:]:
        kk, v = a.split("="); setattr(OPT, kk, bool(int(v)))
    open(sys.argv[1], "w").write(build_all())
```

```python
import math
from core import Kern, header, descriptor, vr, sr, srd, Regs, tr_lane_base, blk_tr_base

S_WAVE=3; S_M=4; S_N=5; S_PH=6; S_T0=7
SRD_S=8; SRD_F=12; SRD_A=16; SRD_B=20; SRD_W=24; SRD_D=28
P0=32
S_T=56
S_WM=72; S_WN=73; S_LW=74; S_KB=75
S_X=76
S_CNT=80; S_SLOT=81; S_DS=82; S_DF=83; S_OS=84; S_OF=85; S_M0W=86; S_TAU=87
S_K=88
S_FB=96
S_ST=98

def ptr(i): return P0 + 2*i

def mk_srd(k, d, p, nbytes, off=0):
    if off:
        k.e(f"s_add_u32 s{d}, s{ptr(p)}, {off}\ns_addc_u32 s{d+1}, s{ptr(p)+1}, 0")
    else:
        k.e(f"s_mov_b32 s{d}, s{ptr(p)}\ns_mov_b32 s{d+1}, s{ptr(p)+1}")
    k.e(f"s_mov_b32 s{d+2}, {nbytes}\ns_mov_b32 s{d+3}, 0x20000")

class Cfg:
    def __init__(self, BM, BN, T, NS, WM, WN, U, strideS, strideF, ftiles, nb_from_wave, panel_from_wave, orient=None,
                 rot=(-1,0,2,-1), pre_mfma=2, smode='rows', fmode='rows', baseS=0, baseF=65536, auxS="", auxF="", kbase=False, slot0=0):
        self.BM=BM; self.BN=BN; self.T=T; self.NS=NS; self.WM=WM; self.WN=WN; self.U=U
        self.strideS=strideS; self.strideF=strideF
        self.TM = BM//WM//32
        self.ftiles = ftiles; self.TN = len(ftiles)
        self.nb_from_wave = nb_from_wave; self.panel_from_wave = panel_from_wave
        self.orient = orient or ['T']*self.TN
        self.NP = BN//64
        self.slotS = BM*128; self.slotF = BN*128
        self.nS = BM//32; self.nF = BN//32
        self.nI = self.nS + self.nF
        self.rot = rot; self.pre_mfma = pre_mfma
        self.smode = smode; self.fmode = fmode
        self.baseS = baseS; self.baseF = baseF
        self.auxS = auxS; self.auxF = auxF
        self.slot0 = slot0
        self.kbase = kbase

def tile_map(k, gm, gn, ntn):
    xn = ntn // gn
    lg = int(math.log2(gm)); lx = int(math.log2(xn))
    k.e(f"""s_and_b32 s{S_T}, s2, 7
    s_lshr_b32 s{S_T+1}, s2, 3
    s_and_b32 s{S_T+2}, s{S_T+1}, {gm-1}
    s_lshr_b32 s{S_T+3}, s{S_T+1}, {lg}
    s_lshr_b32 s{S_M}, s{S_T}, {lx}
    s_mul_i32 s{S_M}, s{S_M}, {gm}
    s_add_u32 s{S_M}, s{S_M}, s{S_T+2}
    s_and_b32 s{S_N}, s{S_T}, {xn-1}
    s_mul_i32 s{S_N}, s{S_N}, {gn}
    s_add_u32 s{S_N}, s{S_N}, s{S_T+3}
    s_add_u32 s{S_PH}, s{S_T+2}, s{S_T+3}""")

def loader_voff_S(k, c, vb):
    w = S_LW
    if c.smode == 'rows':
        k.e(f"""v_lshrrev_b32 v2, 3, v1
        v_and_b32 v4, 7, v1
        s_lshl_b32 s{S_T+6}, s{w}, 3
        v_lshrrev_b32 v3, 4, v1
        s_and_b32 s{S_T+5}, s{w}, 1
        s_lshl_b32 s{S_T+5}, s{S_T+5}, 2
        v_add_u32 v3, s{S_T+5}, v3
        v_xor_b32 v3, v3, v4
        v_lshlrev_b32 v3, 4, v3
        s_mul_i32 s{S_T+5}, s{S_M}, {c.BM}
        s_add_u32 s{S_T+5}, s{S_T+5}, s{S_T+6}
        v_add_u32 v5, s{S_T+5}, v2
        s_mov_b32 s{S_T+7}, {c.strideS}
        v_mul_lo_u32 v5, v5, s{S_T+7}
        v_add_u32 v{vb}, v5, v3""")
    else:
        k.e(f"""s_mul_i32 s{S_T+5}, s{S_M}, {c.BM*c.strideS}
        s_add_u32 s{S_T+5}, s{S_T+5}, s{S_M0W}
        v_lshlrev_b32 v3, 4, v1
        v_add_u32 v{vb}, s{S_T+5}, v3""")
    for i in range(1, c.nS):
        k.e(f"v_add_u32 v{vb+i}, {i*32*c.strideS}, v{vb}")

def loader_voff_F(k, c, vb, colsg=None, panelconst=None):
    w = S_LW
    if c.fmode == 'rows':
        k.e(f"""v_lshrrev_b32 v2, 3, v1
        v_and_b32 v4, 7, v1
        s_lshl_b32 s{S_T+6}, s{w}, 3
        v_lshrrev_b32 v3, 2, v1
        v_and_b32 v3, 4, v3
        v_xor_b32 v3, v3, v4
        v_lshlrev_b32 v3, 4, v3
        v_add_u32 v5, s{S_T+6}, v2
        s_mov_b32 s{S_T+7}, {c.strideF}
        v_mul_lo_u32 v5, v5, s{S_T+7}
        v_add3_u32 v5, v5, v3, s{colsg}""")
        for P in range(c.NP):
            for hq in range(2):
                k.e(f"v_add_u32 v{vb+2*P+hq}, {panelconst(P) + hq*32*c.strideF}, v5")
    else:
        k.e(f"""s_mul_i32 s{S_T+5}, s{S_N}, {c.T*c.BN*128}
        s_add_u32 s{S_T+5}, s{S_T+5}, s{S_M0W}
        v_lshlrev_b32 v3, 4, v1
        v_add_u32 v{vb}, s{S_T+5}, v3""")
        for i in range(1, c.nF):
            k.e(f"v_add_u32 v{vb+i}, {i*4096}, v{vb}")

def kstep(k, c, t):
    if c.kbase == 'move2':
        k.e(f"""s_cmp_gt_u32 s{S_TAU}, 2
        s_subb_u32 s{t}, s{S_TAU}, 0
        s_cmp_ge_u32 s{t}, s{S_KB}
        s_addc_u32 s{t}, s{t}, 0
        s_cmp_eq_u32 s{S_TAU}, 2
        s_cselect_b32 s{t}, s{S_KB}, s{t}""")
    elif c.rot:
        P = len(c.rot); packed = 0
        for u, d in enumerate(c.rot): packed |= ((d+8) & 15) << (4*u)
        k.e(f"""s_sub_u32 s{t}, s{S_TAU}, s{S_PH}
        s_and_b32 s{t}, s{t}, {P-1}
        s_lshl_b32 s{t}, s{t}, 2
        s_lshr_b32 s{t}, {packed}, s{t}
        s_and_b32 s{t}, s{t}, 15
        s_add_u32 s{t}, s{t}, s{S_TAU}""")
        if c.kbase: k.e(f"s_add_u32 s{t}, s{t}, s{S_KB}")
        if c.T & (c.T-1) == 0:
            k.e(f"s_sub_u32 s{t}, s{t}, 8\ns_and_b32 s{t}, s{t}, {c.T-1}")
        else:
            assert not c.kbase
            k.e(f"""s_add_u32 s{t}, s{t}, {c.T-8}
            s_sub_u32 s{t+1}, s{t}, {c.T}
            s_cmp_ge_u32 s{t}, {c.T}
            s_cselect_b32 s{t}, s{t+1}, s{t}
            s_sub_u32 s{t+1}, s{t}, {c.T}
            s_cmp_ge_u32 s{t}, {c.T}
            s_cselect_b32 s{t}, s{t+1}, s{t}""")
    else:
        k.e(f"s_mov_b32 s{t}, s{S_TAU}")

def issue(k, c, vS, vF, parts="SF", fbase=False):
    t = S_T+8
    kstep(k, c, t)
    stepS = 7 if c.smode == 'rows' else 12
    stepF = 64*c.strideF if c.fmode == 'rows' else c.BN*128
    if 'S' in parts:
        k.e(f"""s_lshl_b32 s{S_OS}, s{t}, {stepS}
        s_mul_i32 s{t+1}, s{S_SLOT}, {c.slotS}
        s_add_u32 s{t+1}, s{t+1}, s{S_M0W}
        s_add_u32 m0, s{t+1}, {c.baseS}
        s_nop 0""")
        for i in range(c.nS):
            k.e(f"buffer_load_dwordx4 v{vS+i}, {srd(SRD_S)}, s{S_OS} offen {c.auxS} lds")
            if i < c.nS-1: k.e("s_add_u32 m0, m0, 4096\ns_nop 0")
    if 'F' in parts:
        k.e(f"""s_mul_i32 s{S_OF}, s{t}, {stepF}
        s_mul_i32 s{t+1}, s{S_SLOT}, {c.slotF}
        s_add_u32 s{t+1}, s{t+1}, s{S_M0W}
        s_add_u32 m0, s{t+1}, {c.baseF}""")
        k.e(f"s_add_u32 s{S_OF}, s{S_OF}, s{S_FB}" if fbase else "s_nop 0")
        for i in range(c.nF):
            k.e(f"buffer_load_dwordx4 v{vF+i}, {srd(SRD_F)}, s{S_OF} offen {c.auxF} lds")
            if i < c.nF-1: k.e("s_add_u32 m0, m0, 4096\ns_nop 0")
    k.e(f"""s_add_u32 s{S_TAU}, s{S_TAU}, 1
    s_add_u32 s{S_SLOT}, s{S_SLOT}, 1
    s_cmp_eq_u32 s{S_SLOT}, {c.NS}
    s_cselect_b32 s{S_SLOT}, 0, s{S_SLOT}""")

def issue_first(k, c, vS, vF, parts, fbase=False, pbarrier=True, t0=0, t1=None):
    n = (c.nS if 'S' in parts else 0) + (c.nF if 'F' in parts else 0)
    top = k.lab("if"); l1 = k.lab("if1")
    t1 = c.NS if t1 is None else t1
    k.e(f"s_mov_b32 s{S_TAU}, {t0}\ns_mov_b32 s{S_SLOT}, {(t0+c.slot0) % c.NS}\n{top}:")
    issue(k, c, vS, vF, parts, fbase)
    if pbarrier:
        k.e(f"s_cmp_lg_u32 s{S_TAU}, 2\ns_cbranch_scc1 {l1}\ns_waitcnt vmcnt({n})\ns_barrier\n{l1}:")
    k.e(f"s_cmp_lt_u32 s{S_TAU}, {t1}\ns_cbranch_scc1 {top}")

def steady(k, c, vS, vF, upto, fbase=False, wait=None):
    top = k.lab("st")
    w = (c.NS-2)*c.nI if wait is None else wait
    k.e(f"{top}:\ns_waitcnt vmcnt({w})\ns_barrier")
    issue(k, c, vS, vF, "SF", fbase)
    k.e(f"s_cmp_lt_u32 s{S_TAU}, {upto}\ns_cbranch_scc1 {top}")

def one(k, c, vS, vF, fbase=False, wait=None):
    w = (c.NS-2)*c.nI if wait is None else wait
    k.e(f"s_waitcnt vmcnt({w})\ns_barrier")
    issue(k, c, vS, vF, "SF", fbase)

def after_split_prologue(k, c, vS, vF, first_n, fbase=False):
    for j in range(c.NS-2):
        one(k, c, vS, vF, fbase, wait=(c.NS-2-j)*first_n + j*c.nI)

def consumer_addr(k, c, R, slot_from_sgpr=False):
    wm = S_WM; wn = S_WN
    lw = int(math.log2(c.WN))
    if not slot_from_sgpr and c.slot0:
        k.e(f"s_mov_b32 s{S_SLOT}, {c.slot0}"); slot_from_sgpr = True
    k.e(f"s_lshr_b32 s{wm}, s{S_WAVE}, {lw}\ns_and_b32 s{wn}, s{S_WAVE}, {c.WN-1}")
    k.e(f"s_mul_i32 s{S_T+6}, s{wm}, {c.TM*4096}")
    if c.baseS: k.e(f"s_add_u32 s{S_T+6}, s{S_T+6}, {c.baseS}")
    if slot_from_sgpr: k.e(f"s_mul_i32 s{S_T+7}, s{S_SLOT}, {c.slotS}\ns_add_u32 s{S_T+6}, s{S_T+6}, s{S_T+7}")
    if c.smode == 'rows':
        k.e(f"""v_and_b32 v2, 31, v1
        v_lshrrev_b32 v3, 5, v1
        v_bfe_u32 v4, v1, 1, 3
        v_xor_b32 v4, v4, v3
        v_lshlrev_b32 v4, 4, v4
        v_lshl_add_u32 v4, v2, 7, v4""")
        for kk in range(4):
            k.e(f"v_xor_b32 v{R.aS+kk}, {kk*32}, v4\nv_add_u32 v{R.aS+kk}, s{S_T+6}, v{R.aS+kk}")
    else:
        k.e(f"v_lshlrev_b32 v4, 4, v1\nv_add_u32 v{R.aS}, s{S_T+6}, v4")
    if c.fmode == 'rows':
        tr_lane_base(k, 6, 5, 10)
        if c.nb_from_wave:
            k.e(f"s_lshl_b32 s{S_T+6}, s{wn}, 6\nv_xor_b32 v6, s{S_T+6}, v6")
        if c.panel_from_wave:
            k.e(f"s_lshl_b32 s{S_T+6}, s{wn}, 13\nv_add_u32 v6, s{S_T+6}, v6")
    else:
        blk_tr_base(k, 6, 5, 7, 3)
        k.e(f"s_lshl_b32 s{S_T+6}, s{wn}, 12\nv_add_u32 v6, s{S_T+6}, v6")
    k.e(f"v_xor_b32 v7, 64, v6\ns_mov_b32 s{S_T+6}, {c.baseF}")
    if slot_from_sgpr: k.e(f"s_mul_i32 s{S_T+7}, s{S_SLOT}, {c.slotF}\ns_add_u32 s{S_T+6}, s{S_T+6}, s{S_T+7}")
    else: k.e(f"s_mov_b32 s{S_SLOT}, 0")
    k.e(f"v_add_u32 v{R.aF}, s{S_T+6}, v6\nv_add_u32 v{R.aF+1}, s{S_T+6}, v7")

class Cons:
    def __init__(self, k, c, R):
        self.k = k; self.c = c; self.R = R
        TM, TN, U = c.TM, c.TN, c.U
        self.setsz = U*(TM+TN)*4
    def fS(s_, s, u, st): return s_.R.fr + s*s_.setsz + u*(s_.c.TM+s_.c.TN)*4 + st*4
    def fF(s_, s, u, ft): return s_.R.fr + s*s_.setsz + u*(s_.c.TM+s_.c.TN)*4 + s_.c.TM*4 + ft*4
    def acc(s_, st, ft): return s_.R.acc + 16*(ft*s_.c.TM+st)
    def reads(s_, unit, s):
        c, R = s_.c, s_.R; out = []
        for u in range(c.U):
            kk = unit*c.U + u
            order = []
            for i in range(max(c.TM, c.TN)):
                if i < c.TM: order.append(('S', i))
                if i < c.TN: order.append(('F', i))
            for typ, i in order:
                if typ == 'S':
                    if c.smode == 'rows':
                        out.append((f"ds_read_b128 {vr(s_.fS(s,u,i),4)}, v{R.aS+kk} offset:{i*4096}", ('S', s, u, i)))
                    else:
                        out.append((f"ds_read_b128 {vr(s_.fS(s,u,i),4)}, v{R.aS} offset:{i*4096+kk*1024}", ('S', s, u, i)))
                else:
                    P, nb = c.ftiles[i]
                    for rd in range(2):
                        if c.fmode == 'rows':
                            out.append((f"ds_read_b64_tr_b16 {vr(s_.fF(s,u,i)+2*rd,2)}, v{R.aF+nb} offset:{P*8192+kk*2048+rd*512}", ('F', s, u, i)))
                        else:
                            off = (kk>>1)*(c.BN*64) + (P*2+nb)*2048 + (kk&1)*256
                            out.append((f"ds_read_b64_tr_b16 {vr(s_.fF(s,u,i)+2*rd,2)}, v{R.aF+rd} offset:{off}", ('F', s, u, i)))
        return out
    def mfmas(s_, s):
        c = s_.c; out = []
        for u in range(c.U):
            prs = sorted([(st, ft) for st in range(c.TM) for ft in range(c.TN)], key=lambda p: (max(p[0], p[1]), p[1], p[0]))
            for st, ft in prs:
                a, b = (s_.fF(s,u,ft), s_.fS(s,u,st)) if c.orient[ft] == 'T' else (s_.fS(s,u,st), s_.fF(s,u,ft))
                out.append((f"v_mfma_f32_32x32x16_bf16 {vr(s_.acc(st,ft),16)}, {vr(a,4)}, {vr(b,4)}, {vr(s_.acc(st,ft),16)}", [('S',s,u,st), ('F',s,u,ft)]))
        return out
    def zero(s_):
        for i in range(0, s_.c.TM*s_.c.TN*16, 2): s_.k.e(f"v_mov_b64 v[{s_.R.acc+i}:{s_.R.acc+i+1}], 0")
    def first_reads(s_):
        for ins, tag in s_.reads(0, 0): s_.k.e(ins)
    def loop(s_, nsteps, pre_barrier=None):
        k, c, R = s_.k, s_.c, s_.R
        nunit = 4//c.U
        useF = sorted(set(nb for _, nb in c.ftiles)) if c.fmode == 'rows' else [0, 1]
        useS = range(4) if c.smode == 'rows' else [0]
        q = [tag for _, tag in s_.reads(0, 0)]
        lp = k.lab("cloop")
        if nsteps > 1: k.e(f"s_mov_b32 s{S_CNT}, 0\n.p2align 6\n{lp}:")
        def need(tags):
            idx = max([i for i, t in enumerate(q) if t in tags], default=-1)
            if idx >= 0:
                n = len(q) - 1 - idx
                assert n <= 15
                k.e(f"s_waitcnt lgkmcnt({n})")
                del q[:idx+1]
        for unit in range(nunit):
            s = unit & 1
            last = unit == nunit-1
            rd = s_.reads((unit+1) % nunit, s ^ 1)
            mf = s_.mfmas(s)
            nm = len(mf)
            first = c.pre_mfma if last else 1
            nslots = max(nm - first, 1)
            per = -(-len(rd) // nslots)
            ri = 0
            def put(nr):
                nonlocal ri
                for _ in range(nr):
                    if ri < len(rd):
                        k.e(rd[ri][0]); q.append(rd[ri][1]); ri += 1
            for mi, (ins, tags) in enumerate(mf):
                if last and mi == first:
                    k.e("s_waitcnt lgkmcnt(0)" + (" vmcnt(0)" if pre_barrier == "vm" else "")); q.clear()
                    k.e("s_barrier")
                if mi >= first: put(per)
                need(tags)
                k.e(ins)
                if unit == 0 and mi == 0:
                    k.e(f"""s_add_u32 s{S_SLOT}, s{S_SLOT}, 1
                    s_cmp_eq_u32 s{S_SLOT}, {c.NS}
                    s_cselect_b32 s{S_DS}, {-(c.NS-1)}, 1
                    s_cselect_b32 s{S_SLOT}, 0, s{S_SLOT}""")
                if unit == 0 and mi == 1:
                    k.e(f"s_mul_i32 s{S_DF}, s{S_DS}, {c.slotF}\ns_mul_i32 s{S_DS}, s{S_DS}, {c.slotS}")
                if last and mi == 0:
                    for a in useS: k.e(f"v_add_u32 v{R.aS+a}, s{S_DS}, v{R.aS+a}")
                    for nb in useF: k.e(f"v_add_u32 v{R.aF+nb}, s{S_DF}, v{R.aF+nb}")
            put(len(rd))
        if nsteps > 1:
            k.e(f"s_add_u32 s{S_CNT}, s{S_CNT}, 1\ns_cmp_lt_u32 s{S_CNT}, {nsteps}\ns_cbranch_scc1 {lp}")
```

```python
import sys, struct
from core2 import *

MB = 1<<20
WS_O=4*MB; WS_H=8*MB; WS_Z2N=20*MB; WS_U=28*MB
WS_KVP=36*MB; WS_ZP=38*MB; WS_XS=39*MB; WS_CQP=39*MB+65536; WS_HST=40*MB; WS_ZST=41*MB; WS_CSW=41*MB+512*1024
FLS=4352
WS_FLAG=42*MB; F_KV=WS_FLAG; F_O=WS_FLAG+16*FLS; F_H=WS_FLAG+32*FLS; F_Z=WS_FLAG+48*FLS; F_U=WS_FLAG+64*FLS; F_CS=WS_FLAG+80*FLS
WS_END=43*MB
P_X=0; P_WQKV=1; P_WPHI=2; P_WO=3; P_WIN=5; P_WSP=6; P_BSP=7; P_WOUT=8; P_OUT=9; P_DBG=10; P_WS=11
S_M1=92; S_N1=93
L_WPHI=147456; L_XS=L_WPHI+4096; L_CQ=L_XS+1024; L_HS=L_CQ+1024; L_CS=L_HS+1024; L_ZP=L_CS+1024; L_ZS=L_ZP+2048; L_END=L_ZS+1024
KNAME = "sequential_preLN__linear_kernel_hedgehog__mixer_gmlp__prompt_kernel"

def f2u(x): return struct.unpack("<I", struct.pack("<f", x))[0]
LOG2E = 1.4426950408889634
MF = "v_mfma_f32_32x32x16_bf16"

class Opt:
    stamps = 0
    pf = 1
    slp = 2
    gat = 19
OPT = Opt()

def unpack(k, lo, hi, src):
    k.e(f"v_lshlrev_b32 v{lo}, 16, v{src}\nv_and_b32 v{hi}, 0xffff0000, v{src}")
def cvt16(k, dst, src):
    for i in range(8): k.e(f"v_cvt_pk_bf16_f32 v{dst+i}, v{src+2*i}, v{src+2*i+1}")

def stamp(k, i):
    if OPT.stamps:
        k.e(f"s_memrealtime s[{S_ST}:{S_ST+1}]\ns_waitcnt lgkmcnt(0)\nv_writelane_b32 v255, s{S_ST}, {i}")

def check_flags(k, vflag, nflags, val, oklab):
    k.e(f"""v_cmp_eq_u32 vcc, {val}, v{vflag}
    s_and_b32 s{S_T+11}, vcc_lo, {(1<<nflags)-1}
    s_cmp_eq_u32 s{S_T+11}, {(1<<nflags)-1}
    s_cbranch_scc1 {oklab}""")

def poll(k, voff, nflags, srdn=SRD_W, val=1, pre=False):
    top = k.lab("poll"); done = k.lab("polld")
    k.e(f"s_cmp_lg_u32 s{S_LW}, 0\ns_cbranch_scc1 {done}")
    if pre is not False:
        k.e(f"s_waitcnt vmcnt({pre})")
        check_flags(k, 8, nflags, val, done)
    k.e(f"s_mov_b32 s{S_T+10}, 0x40000\n{top}:")
    k.e(f"buffer_load_dword v8, v{voff}, {srd(srdn)}, 0 offen sc1\ns_waitcnt vmcnt(0)")
    check_flags(k, 8, nflags, val, done)
    k.e(f"""s_sleep {OPT.slp}
    s_sub_u32 s{S_T+10}, s{S_T+10}, 1
    s_cmp_lg_u32 s{S_T+10}, 0
    s_cbranch_scc1 {top}""")
    k.e(f"{done}:")

def sample(k, voff):
    sk = k.lab("nosm")
    k.e(f"s_cmp_lg_u32 s{S_LW}, 0\ns_cbranch_scc1 {sk}\nbuffer_load_dword v8, v{voff}, {srd(SRD_W)}, 0 offen sc1\n{sk}:")

def flag_addrs(k, vset, base_set, sline, sidx):
    k.e(f"""s_mul_i32 s{S_T}, s{sline}, {FLS}
    s_lshl_b32 s{S_T+1}, s{sidx}, 2
    s_add_u32 s{S_T}, s{S_T}, s{S_T+1}
    s_add_u32 s{S_T}, s{S_T}, {base_set}
    v_mov_b32 v{vset}, s{S_T}""")
def poll_addr(k, vp, base, sline):
    k.e(f"""s_mul_i32 s{S_T}, s{sline}, {FLS}
    s_add_u32 s{S_T}, s{S_T}, {base}
    v_and_b32 v{vp}, 15, v1
    v_lshlrev_b32 v{vp}, 2, v{vp}
    v_add_u32 v{vp}, s{S_T}, v{vp}""")
def set_flag(k, vset, wave_sgpr=S_LW):
    sk = k.lab("nofl")
    k.e(f"""s_cmp_lg_u32 s{wave_sgpr}, 0
    s_cbranch_scc1 {sk}
    v_mov_b32 v11, 1
    s_mov_b64 exec, 1
    buffer_store_dword v11, v{vset}, {srd(SRD_W)}, 0 offen sc1
    s_mov_b64 exec, -1
    {sk}:""")

def softmax_pm(k, P, EP, EN, T, OP, ON):
    L = S_K
    k.e(f"v_max3_f32 v{T}, v{P}, v{P+1}, v{P+2}\nv_min3_f32 v{T+1}, v{P}, v{P+1}, v{P+2}")
    for i in range(3, 15, 2):
        k.e(f"v_max3_f32 v{T}, v{T}, v{P+i}, v{P+i+1}\nv_min3_f32 v{T+1}, v{T+1}, v{P+i}, v{P+i+1}")
    k.e(f"""v_max_f32 v{T}, v{T}, v{P+15}
    v_max_f32 v{T+1}, -v{T+1}, -v{P+15}
    s_nop 1
    v_permlane32_swap_b32 v{T}, v{T+1}
    v_max_f32 v{T}, v{T}, v{T+1}
    v_mul_f32 v{T}, {f2u(-LOG2E)}, v{T}
    v_mov_b32 v{T+1}, v{T}
    s_nop 1
    v_permlane32_swap_b32 v{T}, v{T+1}""")
    for i in range(8):
        k.e(f"v_pk_fma_f32 v[{EP+2*i}:{EP+2*i+1}], v[{P+2*i}:{P+2*i+1}], s[{L}:{L+1}], v[{T}:{T+1}] op_sel_hi:[1,1,0]")
        k.e(f"v_pk_fma_f32 v[{EN+2*i}:{EN+2*i+1}], v[{P+2*i}:{P+2*i+1}], s[{L}:{L+1}], v[{T}:{T+1}] op_sel:[0,0,1] op_sel_hi:[1,1,1] neg_lo:[0,1,0] neg_hi:[0,1,0]")
    for i in range(16):
        k.e(f"v_exp_f32 v{EP+i}, v{EP+i}\nv_exp_f32 v{EN+i}, v{EN+i}")
    k.e(f"v_pk_add_f32 v[{T}:{T+1}], v[{EP}:{EP+1}], v[{EP+2}:{EP+3}]\nv_pk_add_f32 v[{T+2}:{T+3}], v[{EN}:{EN+1}], v[{EN+2}:{EN+3}]")
    for i in range(2, 8):
        k.e(f"v_pk_add_f32 v[{T}:{T+1}], v[{T}:{T+1}], v[{EP+2*i}:{EP+2*i+1}]\nv_pk_add_f32 v[{T+2}:{T+3}], v[{T+2}:{T+3}], v[{EN+2*i}:{EN+2*i+1}]")
    k.e(f"""v_add_f32 v{T}, v{T}, v{T+1}
    v_add_f32 v{T+1}, v{T+2}, v{T+3}
    s_nop 1
    v_permlane32_swap_b32 v{T}, v{T+1}
    v_add_f32 v{T}, v{T}, v{T+1}
    v_rcp_f32 v{T}, v{T}
    s_nop 0
    v_mov_b32 v{T+1}, v{T}
    s_nop 1
    v_permlane32_swap_b32 v{T}, v{T+1}""")
    for i in range(8):
        k.e(f"v_pk_mul_f32 v[{EP+2*i}:{EP+2*i+1}], v[{EP+2*i}:{EP+2*i+1}], v[{T}:{T+1}] op_sel_hi:[1,0]")
        k.e(f"v_pk_mul_f32 v[{EN+2*i}:{EN+2*i+1}], v[{EN+2*i}:{EN+2*i+1}], v[{T}:{T+1}] op_sel:[0,1] op_sel_hi:[1,1]")
    cvt16(k, OP, EP); cvt16(k, ON, EN)

def xhalf_sum2(k, a):
    k.e(f"""s_nop 1
    v_permlane32_swap_b32 v{a}, v{a+1}
    v_add_f32 v{a}, v{a}, v{a+1}
    v_mov_b32 v{a+1}, v{a}
    s_nop 1
    v_permlane32_swap_b32 v{a}, v{a+1}""")
def xswap_sum1(k, a, t, which=32):
    k.e(f"""v_mov_b32 v{t}, v{a}
    s_nop 1
    v_permlane{which}_swap_b32 v{a}, v{t}
    v_add_f32 v{a}, v{a}, v{t}""")

def combine_half(k, P, n, ntot, cnt, d, t):
    k.e(f"v_pk_add_f32 v[{d}:{d+1}], v[{P}:{P+1}], v[{P+2}:{P+3}]")
    for i in range(2, n): k.e(f"v_pk_add_f32 v[{d}:{d+1}], v[{d}:{d+1}], v[{P+2*i}:{P+2*i+1}]")
    xswap_sum1(k, d, t)
    k.e(f"v_mul_f32 v{d}, {f2u(1.0/ntot)}, v{d}\nv_mov_b32 v{t+1}, 0")
    for i in range(n):
        k.e(f"v_sub_f32 v{t}, v{P+2*i}, v{d}\nv_fmac_f32 v{t+1}, v{t}, v{t}")
    k.e(f"v_fmac_f32 v{d+1}, {f2u(float(cnt))}, v{t+1}")
    xswap_sum1(k, d+1, t)

def finish_rstd(k, d, total):
    k.e(f"""v_mul_f32 v{d+1}, {f2u(1.0/total)}, v{d+1}
    v_add_f32 v{d+1}, {f2u(1e-5)}, v{d+1}
    v_rsq_f32 v{d+1}, v{d+1}
    s_nop 0
    v_mul_f32 v{d}, -v{d}, v{d+1}""")

c1 = Cfg(128,192,16,3,2,2,1, 2048, 6144, [(0,0),(1,0),(2,0)], True, False, orient=['T','T','N'], smode='rows', baseS=0, baseF=49152, kbase='move2')
c2 = Cfg(128,64,16,4,4,1,2, 2048, 2048, [(0,0),(0,1)], False, False, smode='frag', auxS="sc1")
c3 = Cfg(128,128,16,4,2,2,1, 2048, 7168, [(0,0),(0,1)], False, True, smode='frag', auxS="sc1", slot0=2)
c4 = Cfg(128,128,32,4,2,2,1, 4096, 0, [(0,0),(0,1)], False, True, smode='rows', fmode='blk', auxF="sc1")
c5 = Cfg(128,64,28,4,4,1,2, 3584, 2048, [(0,0),(0,1)], False, False, smode='frag', auxS="sc1", baseF=114688, slot0=2)
VS=16; VF=20; VS4=26; VF4=30
L_PHK=0; L_VX=32768; L_KV=49152; L_Z=57344

def tail_barriers(k, c, extra=0, upto=None):
    for r in range(c.NS-1):
        k.e(f"s_waitcnt vmcnt({max(c.NS-2-r,0)*c.nI + extra})\ns_barrier")

def loader(k):
    k.e(f"s_sub_u32 s{S_LW}, s{S_WAVE}, 4\ns_lshl_b32 s{S_M0W}, s{S_LW}, 10")
    c = c1
    k.e(f"s_mov_b32 s{S_KB}, s{S_M}\ns_mov_b32 s{S_PH}, s{S_N}\ns_lshl_b32 s{S_T0}, s{S_N}, 7")
    loader_voff_S(k, c, VS)
    loader_voff_F(k, c, VF, S_T0, lambda P: P*2048)
    k.e("s_waitcnt lgkmcnt(0)")
    mk_srd(k, SRD_S, P_X, 4*MB); mk_srd(k, SRD_F, P_WQKV, 6*MB)
    mk_srd(k, SRD_W, P_WS, WS_END); mk_srd(k, SRD_A, P_WPHI, 65536); mk_srd(k, SRD_D, P_DBG, 256)
    stamp(k, 0)
    issue_first(k, c, VS, VF, "SF")
    stamp(k, 1)
    k.e(f"""s_lshl_b32 s{S_T}, s{S_N}, 12
    s_add_u32 s{S_T}, s{S_T}, s{S_M0W}
    v_lshlrev_b32 v2, 4, v1
    s_add_u32 m0, s{S_M0W}, {L_WPHI}
    s_nop 0
    buffer_load_dwordx4 v2, {srd(SRD_A)}, s{S_T} offen lds""")
    one(k, c, VS, VF, wait=c.nI+1)
    one(k, c, VS, VF)
    k.e(f"""v_lshrrev_b32 v3, 2, v1
    v_and_b32 v3, 4, v3
    v_xor_b32 v3, v3, v1
    v_lshlrev_b32 v3, 4, v3
    s_lshl_b32 s{S_T}, s{S_LW}, 13
    s_add_u32 s{S_T}, s{S_T}, {c.baseF+2*c.slotF}
    v_add_u32 v3, s{S_T}, v3""")
    for j in range(8): k.e(f"ds_read_b128 v[{64+4*j}:{67+4*j}], v3 offset:{j*1024}")
    k.e("s_waitcnt lgkmcnt(0)")
    one(k, c, VS, VF)
    k.e(f"s_cmp_eq_u32 s{S_LW}, 3\ns_cbranch_scc1 L_init")
    for i in range(4): unpack(k, 40+2*i, 41+2*i, 64+i)
    for j in range(1, 8):
        for i in range(4):
            t = 48+2*(i & 1)
            unpack(k, t, t+1, 64+4*j+i)
            k.e(f"v_pk_add_f32 v[{40+2*i}:{41+2*i}], v[{40+2*i}:{41+2*i}], v[{t}:{t+1}]")
    k.e("s_nop 1")
    for i in range(8): k.e(f"v_add_f32_dpp v{40+i}, v{40+i}, v{40+i} row_ror:8 row_mask:0xf bank_mask:0xf")
    for which in (16, 32):
        for i in range(8): k.e(f"v_mov_b32 v{48+i}, v{40+i}")
        k.e("s_nop 1")
        for i in range(8): k.e(f"v_permlane{which}_swap_b32 v{40+i}, v{48+i}")
        for i in range(8): k.e(f"v_add_f32 v{40+i}, v{40+i}, v{48+i}")
    k.e(f"""s_lshl_b32 s{S_T}, s{S_N}, 4
    s_add_u32 s{S_T}, s{S_T}, s{S_M}
    s_mul_i32 s{S_T}, s{S_T}, 768
    s_lshl_b32 s{S_T+1}, s{S_LW}, 8
    s_add_u32 s{S_T}, s{S_T}, s{S_T+1}
    s_add_u32 s{S_T}, s{S_T}, {WS_CQP}
    v_lshlrev_b32 v3, 5, v1
    s_mov_b64 exec, 0xff
    buffer_store_dwordx4 v[40:43], v3, {srd(SRD_W)}, s{S_T} offen sc1
    buffer_store_dwordx4 v[44:47], v3, {srd(SRD_W)}, s{S_T} offen offset:16 sc1
    s_mov_b64 exec, -1
    s_branch L_init_done""")
    k.e(f"""L_init:
    v_mov_b32 v40, 0
    v_mov_b32 v44, -1
    v_mov_b32 v45, -1
    v_mov_b32 v46, -1
    v_mov_b32 v47, -1
    s_min_u32 s{S_T}, s2, 95
    s_mul_i32 s{S_T}, s{S_T}, {FLS}
    s_add_u32 s{S_T}, s{S_T}, {WS_FLAG}
    s_lshl_b32 s{S_T+2}, s2, 10
    s_add_u32 s{S_T+2}, s{S_T+2}, {WS_HST}
    s_mul_i32 s{S_T+1}, s2, 896
    s_add_u32 s{S_T+1}, s{S_T+1}, {WS_ZST}
    v_lshlrev_b32 v3, 2, v1
    buffer_store_dwordx4 v[44:47], v2, {srd(SRD_W)}, s{S_T+2} offen sc1
    s_mov_b64 exec, 0xffff
    buffer_store_dword v40, v3, {srd(SRD_W)}, s{S_T} offen sc1
    s_mov_b32 exec_lo, -1
    s_mov_b32 exec_hi, 0xffffff
    buffer_store_dwordx4 v[44:47], v2, {srd(SRD_W)}, s{S_T+1} offen sc1
    s_mov_b64 exec, -1
    L_init_done:""")
    steady(k, c, VS, VF, 9)
    k.e(f"""s_cmp_lg_u32 s{S_LW}, 3
    s_cbranch_scc1 L_noarr
    s_and_b32 s{S_T}, s2, 7
    s_lshl_b32 s{S_T}, s{S_T}, 5
    v_mov_b32 v3, s{S_T}
    v_mov_b32 v11, 1
    s_mov_b64 exec, 1
    buffer_atomic_add v11, v3, {srd(SRD_D)}, 0 offen sc1
    s_mov_b64 exec, -1
    L_noarr:""")
    steady(k, c, VS, VF, 15)
    k.e(f"v_lshlrev_b32 v10, 5, v1")
    poll(k, 10, 8, SRD_D, 32)
    k.e(f"v_lshlrev_b32 v10, 2, v1")
    one(k, c, VS, VF)
    k.e(f"""s_lshr_b32 s{S_T}, s{S_LW}, 1
    s_lshl_b32 s{S_T}, s{S_T}, 13
    s_and_b32 s{S_T+1}, s{S_LW}, 1
    s_lshl_b32 s{S_T+1}, s{S_T+1}, 8
    s_add_u32 s{S_T}, s{S_T}, s{S_T+1}
    s_lshl_b32 s{S_T+1}, s{S_M}, 9
    s_add_u32 s{S_T}, s{S_T}, s{S_T+1}
    s_add_u32 s{S_T}, s{S_T}, {WS_XS}
    s_lshl_b32 s{S_T+2}, s{S_LW}, 8
    s_add_u32 m0, s{S_T+2}, {L_XS}
    s_mul_i32 s{S_T+1}, s{S_N}, {16*768}
    buffer_load_dword v10, {srd(SRD_W)}, s{S_T} offen sc1 lds
    s_add_u32 s{S_T+1}, s{S_T+1}, s{S_T+2}
    s_add_u32 s{S_T+1}, s{S_T+1}, {WS_CQP}""")
    for i in range(16):
        k.e(f"buffer_load_dword v{64+i}, v10, {srd(SRD_W)}, s{S_T+1} offen offset:{(i&3)*768} sc1")
        if i & 3 == 3: k.e(f"s_add_u32 s{S_T+1}, s{S_T+1}, 3072")
    npf = 0
    if OPT.pf:
        mk_srd(k, SRD_A, P_WO, 2*MB); mk_srd(k, SRD_B, P_WIN, 7*MB)
        k.e(f"""s_lshl_b32 s{S_T}, s2, 2
        s_add_u32 s{S_T}, s{S_T}, s{S_LW}
        s_lshl_b32 s{S_T+1}, s{S_T}, 11
        s_mul_i32 s{S_T}, s{S_T}, {56*128}
        v_lshlrev_b32 v3, 7, v1
        s_mov_b64 exec, 0xffff
        buffer_load_dword v250, v3, {srd(SRD_A)}, s{S_T+1} offen
        s_mov_b32 exec_lo, -1
        s_mov_b32 exec_hi, 0xffffff
        buffer_load_dword v251, v3, {srd(SRD_B)}, s{S_T} offen
        s_mov_b64 exec, -1""")
        npf = 2
    tail_barriers(k, c, 17+npf)
    k.e(f"s_waitcnt vmcnt({npf})")
    for i in range(1, 8): k.e(f"v_pk_add_f32 v[64:65], v[64:65], v[{64+2*i}:{65+2*i}]")
    k.e(f"""v_add_f32 v64, v64, v65
    s_add_u32 s{S_T+2}, s{S_T+2}, {L_CQ}
    v_add_u32 v3, s{S_T+2}, v10
    ds_write_b32 v3, v64
    s_waitcnt lgkmcnt(0)
    s_barrier""")
    stamp(k, 2)
    k.e(f"s_mov_b32 s{S_M1}, s{S_M}\ns_mov_b32 s{S_N1}, s{S_N}")
    flag_addrs(k, 9, F_KV, S_N1, S_M1); poll_addr(k, 10, F_KV, S_N1); flag_addrs(k, 12, F_O, S_M1, S_N1)
    tile_map(k, 4, 8, 16)
    c = c2
    mk_srd(k, SRD_S, P_WS, 4*MB, WS_O); mk_srd(k, SRD_F, P_WO, 2*MB)
    k.e(f"s_lshl_b32 s{S_T0}, s{S_N}, 7")
    loader_voff_S(k, c, VS); loader_voff_F(k, c, VF, S_T0, lambda P: 0)
    issue_first(k, c, VS, VF, "F", pbarrier=False)
    poll_addr(k, 13, F_O, S_M)
    k.e("s_barrier")
    k.e(f"""s_and_b32 s{S_T}, s{S_LW}, 1
    s_lshr_b32 s{S_T+1}, s{S_LW}, 1
    s_lshl_b32 s{S_T+2}, s{S_N1}, 1
    s_add_u32 s{S_T+2}, s{S_T+2}, s{S_T}
    s_lshl_b32 s{S_T+2}, s{S_T+2}, 1
    s_add_u32 s{S_T+2}, s{S_T+2}, s{S_T+1}
    s_lshl_b32 s{S_T+3}, s{S_T+2}, 15
    s_add_u32 s{S_T+3}, s{S_T+3}, {WS_KVP}
    s_lshl_b32 s{S_T+4}, s{S_T+2}, 10
    s_add_u32 s{S_T+4}, s{S_T+4}, {WS_ZP}
    v_lshlrev_b32 v2, 4, v1
    v_and_b32 v3, 15, v1
    v_lshlrev_b32 v3, 6, v3
    v_lshrrev_b32 v4, 4, v1
    v_lshl_add_u32 v3, v4, 4, v3""")
    k.e("s_barrier")
    set_flag(k, 9)
    poll(k, 10, 16)
    k.e("s_barrier")
    stamp(k, 3)
    k.e(f"buffer_load_dwordx4 v[36:39], v3, {srd(SRD_W)}, s{S_T+4} offen sc1")
    D = 64
    k.e(f"s_lshl_b32 s{S_T+5}, s{S_M1}, 11")
    for mt in range(16):
        k.e(f"s_add_u32 s{S_T+6}, s{S_T+3}, s{S_T+5}")
        for cc in range(2):
            r = D + (mt*2+cc)*4
            k.e(f"buffer_load_dwordx4 v[{r}:{r+3}], v2, {srd(SRD_W)}, s{S_T+6} offen offset:{cc*1024} sc1")
        k.e(f"s_add_u32 s{S_T+5}, s{S_T+5}, 2048\ns_and_b32 s{S_T+5}, s{S_T+5}, 32767")
    k.e("s_waitcnt vmcnt(32)")
    for i in range(4): unpack(k, 40+2*i, 41+2*i, 36+i)
    for sh in (8, 4, 2, 1):
        k.e("s_nop 1")
        for i in range(8): k.e(f"v_add_f32_dpp v{40+i}, v{40+i}, v{40+i} row_ror:{sh} row_mask:0xf bank_mask:0xf")
    for i in range(4): k.e(f"v_cvt_pk_bf16_f32 v{36+i}, v{40+2*i}, v{41+2*i}")
    k.e(f"""s_lshl_b32 s{S_T+5}, s{S_T}, 1
    s_add_u32 s{S_T+5}, s{S_T+5}, s{S_T+1}
    s_lshl_b32 s{S_T+6}, s{S_T+5}, 6
    v_lshlrev_b32 v5, 4, v4
    v_add_u32 v5, s{S_T+6}, v5
    ds_write_b128 v5, v[36:39] offset:{L_Z}
    s_lshl_b32 s{S_T+6}, s{S_T+5}, 11
    v_add_u32 v5, s{S_T+6}, v2""")
    A = 192
    for mt in range(16):
        k.e(f"s_waitcnt vmcnt({30-2*mt})")
        for j in range(8):
            r = D + mt*8 + j
            if mt == 0: unpack(k, A+2*j, A+2*j+1, r)
            else:
                t = 48 + 2*(j & 1)
                unpack(k, t, t+1, r)
                k.e(f"v_pk_add_f32 v[{A+2*j}:{A+2*j+1}], v[{A+2*j}:{A+2*j+1}], v[{t}:{t+1}]")
    cvt16(k, 52, A)
    k.e(f"ds_write_b128 v5, v[52:55] offset:{L_KV}\nds_write_b128 v5, v[56:59] offset:{L_KV+1024}\ns_waitcnt lgkmcnt(0)")
    k.e("s_barrier")
    k.e("s_barrier")
    set_flag(k, 12)
    poll(k, 13, 16)
    k.e("s_barrier")
    stamp(k, 4)
    issue_first(k, c, VS, VF, "S")
    after_split_prologue(k, c, VS, VF, c.nS)
    steady(k, c, VS, VF, c.T)
    flag_addrs(k, 9, F_H, S_M, S_N); poll_addr(k, 10, F_H, S_M)
    k.e("s_cmp_ge_u32 s2, 224\ns_cbranch_scc1 L_ld_helper")
    c = c3
    tile_map(k, 4, 7, 14)
    mk_srd(k, SRD_S, P_WS, 4*MB, WS_H); mk_srd(k, SRD_F, P_WIN, 7*MB)
    k.e(f"s_lshl_b32 s{S_T0}, s{S_N}, 8\ns_mov_b32 s{S_FB}, 3584")
    loader_voff_S(k, c, VS); loader_voff_F(k, c, VF, S_T0, lambda P: P*128)
    k.e(f"s_waitcnt vmcnt({2*c2.nI})\ns_barrier")
    issue_first(k, c, VS, VF, "F", fbase=True, pbarrier=False, t1=2)
    k.e(f"s_waitcnt vmcnt({c2.nI+2*c.nF})\ns_barrier\ns_waitcnt vmcnt({2*c.nF})\ns_barrier")
    loader_voff_S(k, c4, VS4); loader_voff_F(k, c4, VF4)
    k.e("s_barrier")
    k.e("s_barrier")
    set_flag(k, 9)
    poll(k, 10, 16)
    k.e("s_barrier")
    stamp(k, 5)
    issue_first(k, c, VS, VF, "S", t1=2)
    issue_first(k, c, VS, VF, "SF", fbase=True, pbarrier=False, t0=2)
    steady(k, c, VS, VF, 12, fbase=True)
    k.e(f"""v_and_b32 v14, 31, v1
    s_lshl_b32 s{S_T}, s{S_LW}, 5
    v_add_u32 v14, s{S_T}, v14
    v_lshlrev_b32 v14, 3, v14
    v_lshrrev_b32 v15, 5, v1
    v_lshl_add_u32 v3, v15, 17, v14
    s_lshl_b32 s{S_T+12}, s{S_M}, 10
    s_add_u32 s{S_T+12}, s{S_T+12}, {WS_HST}
    v_mov_b32 v13, v3""")
    def hgather():
        k.e(f"s_mov_b32 s{S_T}, s{S_T+12}")
        for i in range(8):
            k.e(f"buffer_load_dwordx2 v[{64+2*i}:{65+2*i}], v13, {srd(SRD_W)}, s{S_T} offen sc1\ns_add_u32 s{S_T}, s{S_T}, 16384")
    def tagcheck(n, ok):
        k.e("v_max_u32 v3, v65, v67")
        for i in range(2, n): k.e(f"v_max_u32 v3, v3, v{65+2*i}")
        k.e(f"v_cmp_eq_u32 vcc, -1, v3\ns_cmp_eq_u64 vcc, 0\ns_cbranch_scc1 {ok}")
    def validated(gather, n, nm):
        tagcheck(n, f"L_{nm}ok")
        k.e(f"s_mov_b32 s{S_T+10}, 0x40000\nL_{nm}spin:")
        gather()
        k.e("s_waitcnt vmcnt(0)")
        tagcheck(n, f"L_{nm}ok")
        k.e(f"s_sleep {OPT.slp}\ns_sub_u32 s{S_T+10}, s{S_T+10}, 1\ns_cmp_lg_u32 s{S_T+10}, 0\ns_cbranch_scc1 L_{nm}spin\nL_{nm}ok:")
    hgather()
    poll_addr(k, 10, F_CS, S_N)
    one(k, c, VS, VF, fbase=True)
    sample(k, 10)
    one(k, c, VS, VF, fbase=True)
    k.e(f"s_waitcnt vmcnt({2*c.nI})")
    validated(hgather, 8, "h")
    combine_half(k, 64, 8, 16, 64, 4, 6); finish_rstd(k, 4, 1024)
    k.e(f"v_add_u32 v3, {L_HS}, v14\nds_write_b64 v3, v[4:5]")
    one(k, c, VS, VF, fbase=True)
    poll(k, 10, 2, pre=2*c.nI)
    one(k, c, VS, VF, fbase=True)
    k.e(f"""s_lshr_b32 s{S_T}, s{S_LW}, 1
    s_mul_i32 s{S_T}, s{S_T}, 14
    s_add_u32 s{S_T}, s{S_T}, s{S_N}
    s_lshl_b32 s{S_T}, s{S_T}, 9
    s_and_b32 s{S_T+1}, s{S_LW}, 1
    s_lshl_b32 s{S_T+1}, s{S_T+1}, 8
    s_add_u32 s{S_T}, s{S_T}, s{S_T+1}
    s_add_u32 s{S_T}, s{S_T}, {WS_CSW}
    s_lshl_b32 s{S_T+2}, s{S_LW}, 8
    s_add_u32 m0, s{S_T+2}, {L_CS}
    v_lshlrev_b32 v3, 2, v1
    buffer_load_dword v3, {srd(SRD_W)}, s{S_T} offen sc1 lds
    s_waitcnt lgkmcnt(0)""")
    k.e(f"s_mov_b32 s{S_TAU}, 0\ns_mov_b32 s{S_FB}, 0")
    steady(k, c, VS, VF, 5, fbase=True)
    stamp(k, 6)
    k.e(f"""v_add_u32 v3, {L_ZP}, v14
    ds_read_b64 v[64:65], v3
    ds_read_b64 v[66:67], v3 offset:1024
    s_mul_i32 s{S_T+12}, s{S_M}, {14*1024}
    s_add_u32 s{S_T+12}, s{S_T+12}, {WS_ZST}
    s_lshl_b32 s{S_T+1}, s{S_N}, 10
    s_add_u32 s{S_T+1}, s{S_T+1}, s{S_T+12}
    s_waitcnt lgkmcnt(0)
    v_add_f32 v4, v64, v66
    v_mul_f32 v4, 0.5, v4
    v_sub_f32 v6, v64, v66
    v_mul_f32 v6, v6, v6
    v_add_f32 v5, v65, v67
    v_fmac_f32 v5, {f2u(32.0)}, v6
    s_mov_b32 exec_hi, 0
    buffer_store_dwordx2 v[4:5], v14, {srd(SRD_W)}, s{S_T+1} offen sc1
    s_mov_b32 exec_hi, -1
    v_mul_u32_u24 v13, {7*1024}, v15
    v_add_u32 v13, v13, v14""")
    g = OPT.gat
    steady(k, c, VS, VF, g-11, fbase=True)
    def zgather():
        k.e(f"s_add_u32 s{S_T+1}, s{S_T+12}, 4096")
        for i in range(7):
            k.e(f"buffer_load_dwordx2 v[{64+2*i}:{65+2*i}], v13, {srd(SRD_W)}, s{S_T+12 if i < 4 else S_T+1} offen offset:{(i&3)*1024} sc1")
    zgather()
    one(k, c, VS, VF, fbase=True)
    k.e(f"s_waitcnt vmcnt({c.nI})")
    validated(zgather, 7, "z")
    stamp(k, 7)
    combine_half(k, 64, 7, 14, 128, 4, 6); finish_rstd(k, 4, 1792)
    k.e(f"v_add_u32 v3, {L_ZS}, v14\nds_write_b64 v3, v[4:5]")
    flag_addrs(k, 9, F_Z, S_N, S_M); poll_addr(k, 10, F_Z, S_N)
    k.e("s_waitcnt lgkmcnt(0)")
    steady(k, c, VS, VF, g+4-11, fbase=True)
    set_flag(k, 9)
    if g+4-11 < 15: steady(k, c, VS, VF, 15, fbase=True)
    sample(k, 10)
    one(k, c, VS, VF, fbase=True)
    poll(k, 10, 16, pre=c.nI)
    stamp(k, 8)
    c = c4
    mk_srd(k, SRD_S, P_WSP, 8*MB); mk_srd(k, SRD_F, P_WS, 7*MB, WS_Z2N)
    k.e(f"s_mov_b32 s{S_TAU}, 0")
    steady(k, c, VS4, VF4, 32)
    flag_addrs(k, 9, F_U, S_M, S_N)
    def p5_setup():
        tile_map(k, 4, 8, 16)
        mk_srd(k, SRD_S, P_WS, 7*MB, WS_U); mk_srd(k, SRD_F, P_WOUT, 1792*2048)
        k.e(f"s_lshl_b32 s{S_T0}, s{S_N}, 7")
        loader_voff_S(k, c5, VS); loader_voff_F(k, c5, VF, S_T0, lambda P: 0)
        issue_first(k, c5, VS, VF, "F", pbarrier=False, t1=2)
        poll_addr(k, 10, F_U, S_M)
    p5_setup()
    tail_barriers(k, c, 2*c5.nF)
    k.e("s_barrier")
    k.e("s_barrier")
    set_flag(k, 9)
    k.e("L_ld_p5:")
    c = c5
    poll(k, 10, 14)
    k.e("s_barrier")
    stamp(k, 9)
    issue_first(k, c, VS, VF, "S", t1=2)
    issue_first(k, c, VS, VF, "SF", pbarrier=False, t0=2)
    steady(k, c, VS, VF, c.T)
    tail_barriers(k, c)
    k.e("s_barrier")
    k.e("s_branch L_fin")
    k.e("L_ld_helper:")
    tail_barriers(k, c2)
    k.e("s_barrier")
    k.e("s_barrier")
    set_flag(k, 9)
    helper(k, "ld")
    p5_setup()
    k.e("s_branch L_ld_p5")

def helper(k, tag):
    mk_srd(k, SRD_A, P_WIN, 7*MB)
    k.e(f"""s_and_b32 s{S_T}, s2, 7
    s_lshr_b32 s{S_T+1}, s2, 3
    s_sub_u32 s{S_T+1}, s{S_T+1}, 28
    s_lshr_b32 s{S_T+2}, s{S_T}, 1
    s_lshl_b32 s{S_T+2}, s{S_T+2}, 2
    s_add_u32 s{S_T+2}, s{S_T+2}, s{S_T+1}
    s_cmp_ge_u32 s{S_T+2}, 14
    s_cbranch_scc1 L_h_pf_{tag}
    s_cmp_ge_u32 s{S_T+2}, 7
    s_cselect_b32 s{S_T+3}, 1, 0
    s_mul_i32 s{S_T+4}, s{S_T+3}, 7
    s_sub_u32 s{S_T+2}, s{S_T+2}, s{S_T+4}
    s_and_b32 s{S_T}, s{S_T}, 1
    s_mul_i32 s{S_T}, s{S_T}, 7
    s_add_u32 s{S_T+2}, s{S_T+2}, s{S_T}
    s_mul_i32 s{S_T+4}, s{S_T+3}, 3584
    s_lshl_b32 s{S_T+5}, s{S_T+2}, 8
    s_add_u32 s{S_T+4}, s{S_T+4}, s{S_T+5}
    s_mul_i32 s{S_T+5}, s{S_WAVE}, {4*7168}
    s_add_u32 s{S_T+4}, s{S_T+4}, s{S_T+5}
    v_lshrrev_b32 v2, 4, v1
    v_mul_u32_u24 v2, 7168, v2
    v_and_b32 v3, 15, v1
    v_lshl_add_u32 v2, v3, 4, v2""")
    for i in range(32):
        k.e(f"buffer_load_dwordx4 v[{64+4*i}:{67+4*i}], v2, {srd(SRD_A)}, s{S_T+4} offen\ns_add_u32 s{S_T+4}, s{S_T+4}, {32*7168}")
    for i in range(32):
        if i % 4 == 0: k.e(f"s_waitcnt vmcnt({28-i})")
        for j in range(4):
            if i == 0: unpack(k, 40+2*j, 41+2*j, 64+j)
            else:
                t = 48+2*(j & 1)
                unpack(k, t, t+1, 64+4*i+j)
                k.e(f"v_pk_add_f32 v[{40+2*j}:{41+2*j}], v[{40+2*j}:{41+2*j}], v[{t}:{t+1}]")
    stamp(k, 10)
    k.e(f"""s_lshl_b32 s{S_T+5}, s{S_WAVE}, 11
    v_lshlrev_b32 v4, 5, v1
    v_add_u32 v4, s{S_T+5}, v4
    ds_write_b128 v4, v[40:43]
    ds_write_b128 v4, v[44:47] offset:16
    s_waitcnt lgkmcnt(0)
    s_barrier
    s_cmp_lg_u32 s{S_WAVE}, 0
    s_cbranch_scc1 L_h_pub_{tag}
    v_lshlrev_b32 v4, 3, v1""")
    for half in range(4):
        for i in range(8): k.e(f"ds_read_b64 v[{64+2*i}:{65+2*i}], v4 offset:{(half*8+i)*512}")
        k.e("s_waitcnt lgkmcnt(0)")
        for i in range(8):
            if half == 0 and i == 0: k.e("v_mov_b32 v40, v64\nv_mov_b32 v41, v65")
            else: k.e(f"v_pk_add_f32 v[40:41], v[40:41], v[{64+2*i}:{65+2*i}]")
    k.e(f"""s_mul_i32 s{S_T+4}, s{S_T+3}, 14
    s_add_u32 s{S_T+4}, s{S_T+4}, s{S_T+2}
    s_lshl_b32 s{S_T+4}, s{S_T+4}, 9
    s_add_u32 s{S_T+4}, s{S_T+4}, {WS_CSW}
    buffer_store_dwordx2 v[40:41], v4, {srd(SRD_W)}, s{S_T+4} offen sc1
    s_mul_i32 s{S_T+4}, s{S_T+2}, {FLS}
    s_lshl_b32 s{S_T+5}, s{S_T+3}, 2
    s_add_u32 s{S_T+4}, s{S_T+4}, s{S_T+5}
    s_add_u32 s{S_T+4}, s{S_T+4}, {F_CS}
    v_mov_b32 v5, s{S_T+4}
    v_mov_b32 v6, 1
    s_waitcnt vmcnt(0)
    s_mov_b64 exec, 1
    buffer_store_dword v6, v5, {srd(SRD_W)}, 0 offen sc1
    s_mov_b64 exec, -1""")
    k.e(f"L_h_pub_{tag}:\ns_barrier")
    k.e(f"L_h_pf_{tag}:")
    stamp(k, 11)
    if OPT.pf:
        mk_srd(k, SRD_A, P_WSP, 8*MB); mk_srd(k, SRD_B, P_WOUT, 1792*2048)
        k.e(f"""s_sub_u32 s{S_T}, s2, 224
        s_lshl_b32 s{S_T+1}, s{S_T}, 18
        s_lshl_b32 s{S_T+2}, s{S_WAVE}, 7
        s_add_u32 s{S_T+1}, s{S_T+1}, s{S_T+2}
        v_lshlrev_b32 v2, 12, v1""")
        for i in range(4): k.e(f"buffer_load_dword v3, v2, {srd(SRD_A)}, s{S_T+1} offen offset:{i*1024}")
        k.e(f"""s_lshl_b32 s{S_T}, s{S_T}, 3
        s_add_u32 s{S_T}, s{S_T}, s{S_WAVE}
        s_mul_i32 s{S_T}, s{S_T}, {112*128}
        s_add_u32 s{S_T+1}, s{S_T}, {48*128}
        v_lshlrev_b32 v2, 7, v1
        buffer_load_dword v3, v2, {srd(SRD_B)}, s{S_T} offen
        buffer_load_dword v3, v2, {srd(SRD_B)}, s{S_T+1} offen
        s_waitcnt vmcnt(0)""")

def gelu_tile(k, a, cs, s):
    G = 4; t = 48
    for g in range(0, 8, G):
        R_ = range(g, g+G)
        for i in R_:
            p = t+2*(i-g); k.e(f"v_pk_mul_f32 v[{p}:{p+1}], v[{cs+2*i}:{cs+2*i+1}], v[{s}:{s+1}] op_sel_hi:[1,0]")
        for i in R_:
            p = t+2*(i-g); y = a+2*i; k.e(f"v_pk_fma_f32 v[{y}:{y+1}], v[{y}:{y+1}], v[{s}:{s+1}], v[{p}:{p+1}] op_sel:[0,1,0] op_sel_hi:[1,1,1]")
        for i in R_:
            p = t+2*(i-g); y = a+2*i; k.e(f"v_pk_mul_f32 v[{p}:{p+1}], v[{y}:{y+1}], v[{y}:{y+1}]")
        for i in R_:
            p = t+2*(i-g); k.e(f"v_pk_fma_f32 v[{p}:{p+1}], v[{p}:{p+1}], s[{S_K+2}:{S_K+3}], v[62:63] op_sel_hi:[1,1,0]")
        for i in R_:
            p = t+2*(i-g); y = a+2*i; k.e(f"v_pk_mul_f32 v[{p}:{p+1}], v[{p}:{p+1}], v[{y}:{y+1}]")
        for j in range(2*G): k.e(f"v_exp_f32 v{t+j}, v{t+j}")
        for i in range(G): k.e(f"v_pk_add_f32 v[{t+2*i}:{t+2*i+1}], v[{t+2*i}:{t+2*i+1}], 1.0 op_sel_hi:[1,0]")
        for j in range(2*G): k.e(f"v_rcp_f32 v{t+j}, v{t+j}")
        for i in R_:
            p = t+2*(i-g); y = a+2*i; k.e(f"v_pk_mul_f32 v[{y}:{y+1}], v[{y}:{y+1}], v[{p}:{p+1}]")

def consumer(k):
    R = Regs(); R.aS = 8; R.aF = 12; R.fr = 16; R.acc = 64
    C0 = -2*LOG2E*0.7978845608028654; C1 = C0*0.044715
    k.e(f"""s_lshl_b32 s{S_T}, s{S_M}, 7
    s_lshl_b32 s{S_T+1}, s{S_N}, 3
    s_add_u32 s{S_T}, s{S_T}, s{S_T+1}
    s_lshl_b32 s{S_T+1}, s{S_WAVE}, 1
    s_add_u32 s{S_T}, s{S_T}, s{S_T+1}
    v_lshrrev_b32 v14, 5, v1
    v_add_u32 v14, s{S_T}, v14
    v_and_b32 v3, 31, v1
    v_lshlrev_b32 v3, 4, v3
    v_lshl_add_u32 v3, v14, 11, v3
    s_waitcnt lgkmcnt(0)""")
    mk_srd(k, SRD_B, P_X, 4*MB)
    for j in range(4): k.e(f"buffer_load_dwordx4 v[{16+4*j}:{19+4*j}], v3, {srd(SRD_B)}, 0 offen offset:{512*j}")
    mk_srd(k, SRD_W, P_WS, WS_END)
    stamp(k, 0)
    k.e(f"s_mov_b32 s{S_K}, {f2u(LOG2E)}\ns_mov_b32 s{S_K+1}, {f2u(LOG2E)}\ns_mov_b32 s{S_K+2}, {f2u(C1)}\ns_mov_b32 s{S_K+3}, {f2u(C1)}")
    c = c1; C = Cons(k, c, R)
    consumer_addr(k, c, R)
    C.zero()
    X = 160
    k.e("s_waitcnt vmcnt(0)")
    for i in range(16): unpack(k, X+2*i, X+2*i+1, 16+i)
    def red32(v):
        for sh in (8, 4, 2, 1):
            k.e(f"s_nop 1\nv_add_f32_dpp v{v}, v{v}, v{v} row_ror:{sh} row_mask:0xf bank_mask:0xf")
        xswap_sum1(k, v, v+1, 16)
    k.e(f"v_pk_add_f32 v[32:33], v[{X}:{X+1}], v[{X+2}:{X+3}]\nv_pk_add_f32 v[34:35], v[{X+4}:{X+5}], v[{X+6}:{X+7}]")
    for i in range(4, 16):
        t = 32+2*(i & 1); k.e(f"v_pk_add_f32 v[{t}:{t+1}], v[{t}:{t+1}], v[{X+2*i}:{X+2*i+1}]")
    k.e("v_pk_add_f32 v[32:33], v[32:33], v[34:35]\nv_add_f32 v32, v32, v33")
    red32(32)
    k.e(f"v_mul_f32 v32, {f2u(1/1024.)}, v32")
    for i in range(16):
        k.e(f"v_pk_add_f32 v[{X+2*i}:{X+2*i+1}], v[{X+2*i}:{X+2*i+1}], v[32:33] op_sel_hi:[1,0] neg_lo:[0,1] neg_hi:[0,1]")
    k.e(f"v_pk_mul_f32 v[34:35], v[{X}:{X+1}], v[{X}:{X+1}]\nv_pk_mul_f32 v[36:37], v[{X+2}:{X+3}], v[{X+2}:{X+3}]")
    for i in range(2, 16):
        t = 34+2*(i & 1); k.e(f"v_pk_fma_f32 v[{t}:{t+1}], v[{X+2*i}:{X+2*i+1}], v[{X+2*i}:{X+2*i+1}], v[{t}:{t+1}]")
    k.e("v_pk_add_f32 v[34:35], v[34:35], v[36:37]\nv_add_f32 v34, v34, v35")
    red32(34)
    k.e("v_mov_b32 v33, v34")
    finish_rstd(k, 32, 1024)
    k.e(f"""v_lshlrev_b32 v14, 2, v14
    s_mov_b32 s{S_T}, {WS_XS}
    s_mov_b32 s{S_T+1}, {WS_XS+8192}
    s_mov_b32 exec_lo, 1
    s_mov_b32 exec_hi, 1
    buffer_store_dword v32, v14, {srd(SRD_W)}, s{S_T} offen sc1
    buffer_store_dword v33, v14, {srd(SRD_W)}, s{S_T+1} offen sc1
    s_mov_b64 exec, -1""")
    k.e("s_barrier")
    stamp(k, 1)
    C.first_reads(); C.loop(16, pre_barrier="vm")
    k.e("s_waitcnt lgkmcnt(0)")
    stamp(k, 2)
    Q0,Q1,K0,K1,V0,V1 = 64,80,96,112,128,144
    WP=16; KB=24; VB=40; PK=160; PQ=192; QB=96
    tr_lane_base(k, 2, 3, 9, rowshift=6, swz=False)
    k.e(f"s_lshl_b32 s{S_T}, s{S_WN}, 11\ns_add_u32 s{S_T}, s{S_T}, {L_WPHI}\nv_add_u32 v2, s{S_T}, v2")
    for cc in range(2):
        for rd in range(2):
            k.e(f"ds_read_b64_tr_b16 v[{WP+4*cc+2*rd}:{WP+4*cc+2*rd+1}], v2 offset:{cc*1024+rd*256}")
    k.e(f"""v_lshrrev_b32 v3, 5, v1
    v_and_b32 v4, 31, v1
    s_lshl_b32 s{S_T}, s{S_WM}, 8
    s_add_u32 s{S_T}, s{S_T}, {L_XS}
    v_lshl_add_u32 v5, v4, 2, s{S_T}
    ds_read2st64_b32 v[56:57], v5 offset0:0 offset1:2
    v_add_u32 v6, 128, v5
    ds_read2st64_b32 v[58:59], v6 offset0:0 offset1:2
    s_lshl_b32 s{S_T+1}, s{S_WN}, 7
    s_add_u32 s{S_T+1}, s{S_T+1}, {L_CQ}
    v_lshl_add_u32 v6, v3, 5, s{S_T+1}""")
    for q in range(4): k.e(f"ds_read_b128 v[{160+4*q}:{163+4*q}], v6 offset:{256 + (q>>1)*64 + (q&1)*16}")
    for q in range(4): k.e(f"ds_read_b128 v[{176+4*q}:{179+4*q}], v6 offset:{(q>>1)*64 + (q&1)*16}")
    k.e(f"""v_and_b32 v7, 0x13, v4
    v_bfe_u32 v9, v4, 2, 1
    v_lshl_or_b32 v7, v9, 3, v7
    v_bfe_u32 v9, v4, 3, 1
    v_lshl_or_b32 v7, v9, 2, v7
    v_lshl_add_u32 v7, v7, 2, s{S_T+1}
    s_waitcnt lgkmcnt(4)
    ds_read_b32 v60, v7 offset:512
    v_lshl_add_u32 v15, v3, 4, s{S_T}""")
    def corrT(a, cs, s):
        for g in range(0, 8, 4):
            for i in range(g, g+4):
                p = 48+2*(i-g); k.e(f"v_pk_mul_f32 v[{p}:{p+1}], v[{cs+2*i}:{cs+2*i+1}], v[{s}:{s+1}] op_sel_hi:[1,0]")
            for i in range(g, g+4):
                p = 48+2*(i-g); y = a+2*i; k.e(f"v_pk_fma_f32 v[{y}:{y+1}], v[{y}:{y+1}], v[{s}:{s+1}], v[{p}:{p+1}] op_sel:[0,1,0] op_sel_hi:[1,1,1]")
    corrT(K0, 160, 56); corrT(K1, 160, 58)
    cvt16(k, KB, K0); cvt16(k, KB+8, K1)
    k.e("s_waitcnt lgkmcnt(0)")
    for a in range(4):
        k.e(f"ds_read_b128 v[{192+4*a}:{195+4*a}], v15 offset:{a*32}\nds_read_b128 v[{208+4*a}:{211+4*a}], v15 offset:{512+a*32}")
    corrT(Q0, 176, 56); corrT(Q1, 176, 58)
    for st in range(2):
        k.e(f"{MF} v[{PK+16*st}:{PK+16*st+15}], v[{WP}:{WP+3}], v[{KB+8*st}:{KB+8*st+3}], 0")
        k.e(f"{MF} v[{PK+16*st}:{PK+16*st+15}], v[{WP+4}:{WP+7}], v[{KB+8*st+4}:{KB+8*st+7}], v[{PK+16*st}:{PK+16*st+15}]")
    cvt16(k, QB, Q0); cvt16(k, QB+8, Q1)
    def corrN(a):
        for i in range(8): k.e(f"v_pk_mul_f32 v[{192+2*i}:{193+2*i}], v[{192+2*i}:{193+2*i}], v[60:61] op_sel_hi:[1,0]")
        for i in range(8): k.e(f"v_pk_fma_f32 v[{a+2*i}:{a+2*i+1}], v[{a+2*i}:{a+2*i+1}], v[{208+2*i}:{209+2*i}], v[{192+2*i}:{193+2*i}]")
    k.e("s_waitcnt lgkmcnt(0)")
    corrN(V0)
    for a in range(4):
        k.e(f"ds_read_b128 v[{192+4*a}:{195+4*a}], v15 offset:{128+a*32}\nds_read_b128 v[{208+4*a}:{211+4*a}], v15 offset:{640+a*32}")
    cvt16(k, VB, V0)
    k.e(f"""v_lshlrev_b32 v5, 2, v3
    v_xor_b32 v4, v4, v5
    v_lshlrev_b32 v4, 4, v4
    v_lshl_add_u32 v4, v3, 9, v4
    s_lshl_b32 s{S_T}, s{S_WN}, 14
    s_lshl_b32 s{S_T+1}, s{S_WM}, 13
    s_add_u32 s{S_T+2}, s{S_T}, s{S_T+1}
    v_add_u32 v4, s{S_T+2}, v4
    v_xor_b32 v5, 128, v4
    v_lshlrev_b32 v7, 4, v1
    s_lshl_b32 s{S_T+3}, s{S_WN}, 13
    v_add_u32 v6, s{S_T+3}, v7
    s_lshl_b32 s{S_T+4}, s{S_WM}, 12
    v_add_u32 v9, s{S_T+4}, v6
    s_waitcnt lgkmcnt(0)""")
    corrN(V1)
    cvt16(k, VB+8, V1)
    for st in range(2):
        k.e(f"{MF} v[{PQ+16*st}:{PQ+16*st+15}], v[{WP}:{WP+3}], v[{QB+8*st}:{QB+8*st+3}], 0")
        k.e(f"{MF} v[{PQ+16*st}:{PQ+16*st+15}], v[{WP+4}:{WP+7}], v[{QB+8*st+4}:{QB+8*st+7}], v[{PQ+16*st}:{PQ+16*st+15}]")
    for i in range(4):
        k.e(f"ds_write_b128 v9, v[{VB+4*i}:{VB+4*i+3}] offset:{L_VX+i*1024}")
    EP=64; EN=80; T=56; OP=112; ON=120
    for st in range(2):
        o = 16*st
        softmax_pm(k, PK+16*st, EP, EN, T, OP+o, ON+o)
        k.e(f"""ds_write_b128 v4, v[{OP+o}:{OP+o+3}] offset:{L_PHK+st*4096}
        ds_write_b128 v5, v[{OP+o+4}:{OP+o+7}] offset:{L_PHK+st*4096+1024}
        ds_write_b128 v4, v[{ON+o}:{ON+o+3}] offset:{L_PHK+st*4096+2048}
        ds_write_b128 v5, v[{ON+o+4}:{ON+o+7}] offset:{L_PHK+st*4096+3072}""")
    blk_tr_base(k, 10, 2, 3, 2)
    k.e(f"""s_lshl_b32 s{S_T+1}, s{S_WM}, 11
    s_add_u32 s{S_T+1}, s{S_T+1}, s{S_T}
    v_add_u32 v10, s{S_T+1}, v10
    v_xor_b32 v11, 128, v10""")
    ONES=24
    for i in range(4): k.e(f"v_mov_b32 v{ONES+i}, 0x3f803f80")
    k.e("s_waitcnt lgkmcnt(0)\ns_barrier")
    stamp(k, 3)
    AF=64; VF_=128; KV=160; ZZ=176
    for half in range(2):
        for kc in range(4*half, 4*half+4):
            off = L_PHK + (kc>>1)*4096 + (kc&1)*256
            k.e(f"""ds_read_b64_tr_b16 v[{AF+4*kc}:{AF+4*kc+1}], v10 offset:{off}
            ds_read_b64_tr_b16 v[{AF+4*kc+2}:{AF+4*kc+3}], v11 offset:{off}
            ds_read_b128 v[{VF_+4*kc}:{VF_+4*kc+3}], v6 offset:{L_VX+kc*1024}""")
        for kc in range(4*half, 4*half+4):
            k.e(f"s_waitcnt lgkmcnt({3*(4*half+3-kc)})")
            cin = "0" if kc == 0 else None
            k.e(f"{MF} v[{KV}:{KV+15}], v[{AF+4*kc}:{AF+4*kc+3}], v[{VF_+4*kc}:{VF_+4*kc+3}], {cin or f'v[{KV}:{KV+15}]'}")
            k.e(f"{MF} v[{ZZ}:{ZZ+15}], v[{AF+4*kc}:{AF+4*kc+3}], v[{ONES}:{ONES+3}], {cin or f'v[{ZZ}:{ZZ+15}]'}")
    k.e(f"""s_lshl_b32 s{S_T+5}, s{S_N}, 1
    s_add_u32 s{S_T+5}, s{S_T+5}, s{S_WN}
    s_lshl_b32 s{S_T+6}, s{S_T+5}, 1
    s_add_u32 s{S_T+6}, s{S_T+6}, s{S_WM}
    s_lshl_b32 s{S_T+6}, s{S_T+6}, 4
    s_add_u32 s{S_T+6}, s{S_T+6}, s{S_M}
    s_lshl_b32 s{S_T+7}, s{S_T+6}, 11
    s_add_u32 s{S_T+7}, s{S_T+7}, {WS_KVP}
    s_lshl_b32 s{S_T+8}, s{S_T+6}, 6
    s_add_u32 s{S_T+8}, s{S_T+8}, {WS_ZP}
    v_lshrrev_b32 v2, 1, v1
    s_nop 2""")
    cvt16(k, 32, KV)
    k.e(f"buffer_store_dwordx4 v[32:35], v7, {srd(SRD_W)}, s{S_T+7} offen sc1\nbuffer_store_dwordx4 v[36:39], v7, {srd(SRD_W)}, s{S_T+7} offen offset:1024 sc1")
    cvt16(k, 40, ZZ)
    k.e(f"""s_mov_b32 exec_lo, 1
    s_mov_b32 exec_hi, 1
    buffer_store_dwordx4 v[40:43], v2, {srd(SRD_W)}, s{S_T+8} offen sc1
    buffer_store_dwordx4 v[44:47], v2, {srd(SRD_W)}, s{S_T+8} offen offset:32 sc1
    s_mov_b64 exec, -1""")
    PH=128
    softmax_pm(k, PQ, EP, EN, T, PH, PH+8)
    k.e("s_waitcnt vmcnt(0)\ns_barrier")
    stamp(k, 4)
    softmax_pm(k, PQ+16, EP, EN, T, PH+16, PH+24)
    k.e(f"""s_lshl_b32 s{S_T}, s{S_WN}, 12
    v_add_u32 v2, s{S_T}, v7
    v_lshrrev_b32 v3, 5, v1
    v_lshlrev_b32 v3, 4, v3
    s_lshl_b32 s{S_T}, s{S_WN}, 7
    v_add_u32 v3, s{S_T}, v3
    s_lshl_b32 s{S_T}, s{S_M}, 2
    s_lshl_b32 s{S_T+1}, s{S_WM}, 1
    s_add_u32 s{S_T}, s{S_T}, s{S_T+1}
    s_lshl_b32 s{S_T}, s{S_T}, 16
    s_lshl_b32 s{S_T+1}, s{S_T+5}, 11
    s_add_u32 s{S_T}, s{S_T}, s{S_T+1}
    s_add_u32 s{S_T+12}, s{S_T}, {WS_O}
    s_add_u32 s{S_T+13}, s{S_T+12}, 65536""")
    def p25_addr():
        tile_map(k, 4, 8, 16)
        k.e(f"""s_lshl_b32 s{S_T}, s{S_M}, 2
        s_add_u32 s{S_T}, s{S_T}, s{S_WAVE}
        s_lshl_b32 s{S_T+1}, s{S_T}, 16
        s_lshl_b32 s{S_T+2}, s{S_N}, 7
        s_add_u32 s{S_T+2}, s{S_T+2}, s{S_T+1}
        v_and_b32 v4, 31, v1
        v_lshlrev_b32 v14, 11, v4
        v_lshrrev_b32 v5, 5, v1
        v_lshl_add_u32 v14, v5, 4, v14
        v_add_u32 v14, s{S_T+2}, v14""")
    p25_addr()
    RS = 224
    for i in range(4): k.e(f"buffer_load_dwordx4 v[{RS+4*i}:{RS+4*i+3}], v14, {srd(SRD_B)}, 0 offen offset:{32*i}")
    k.e(f"""s_lshl_b32 s{S_T+2}, s{S_N}, 12
    s_add_u32 s{S_T+2}, s{S_T+2}, s{S_T+1}
    s_add_u32 s{S_T+2}, s{S_T+2}, {WS_H}
    v_add_u32 v15, s{S_T+2}, v7
    s_lshl_b32 s{S_T}, s{S_T}, 8
    s_lshl_b32 s{S_T+1}, s{S_N}, 14
    s_add_u32 s{S_T}, s{S_T}, s{S_T+1}
    s_add_u32 s{S_T}, s{S_T}, {WS_HST}
    v_lshlrev_b32 v9, 3, v4
    v_add_u32 v9, s{S_T}, v9""")
    k.e("s_barrier\ns_barrier")
    stamp(k, 5)
    KF=16; ZF=32; NUM=64; DEN=96
    for i in range(4):
        k.e(f"ds_read_b128 v[{KF+4*i}:{KF+4*i+3}], v2 offset:{L_KV+i*1024}\nds_read_b128 v[{ZF+4*i}:{ZF+4*i+3}], v3 offset:{L_Z+i*32}")
    k.e("s_waitcnt lgkmcnt(0)")
    for st in range(2):
        for i in range(4):
            b = PH+16*st+4*i
            k.e(f"{MF} v[{DEN+16*st}:{DEN+16*st+15}], v[{ZF+4*i}:{ZF+4*i+3}], v[{b}:{b+3}], {'0' if i==0 else f'v[{DEN+16*st}:{DEN+16*st+15}]'}")
        for i in range(4):
            b = PH+16*st+4*i
            k.e(f"{MF} v[{NUM+16*st}:{NUM+16*st+15}], v[{KF+4*i}:{KF+4*i+3}], v[{b}:{b+3}], {'0' if i==0 else f'v[{NUM+16*st}:{NUM+16*st+15}]'}")
    k.e("s_nop 3")
    for st in range(2):
        d = DEN+16*st; n = NUM+16*st
        k.e(f"v_add_f32 v{d}, {f2u(1e-6)}, v{d}\nv_rcp_f32 v{d}, v{d}\ns_nop 0")
        for i in range(8): k.e(f"v_pk_mul_f32 v[{n+2*i}:{n+2*i+1}], v[{n+2*i}:{n+2*i+1}], v[{d}:{d+1}] op_sel_hi:[1,0]")
        o = 160+8*st
        cvt16(k, o, n)
        k.e(f"buffer_store_dwordx4 v[{o}:{o+3}], v7, {srd(SRD_W)}, s{S_T+12+st} offen sc1\nbuffer_store_dwordx4 v[{o+4}:{o+7}], v7, {srd(SRD_W)}, s{S_T+12+st} offen offset:1024 sc1")
    c = c2; C = Cons(k, c, R)
    consumer_addr(k, c, R); C.zero()
    k.e("s_waitcnt vmcnt(0)\ns_barrier")
    stamp(k, 6)
    k.e("s_barrier\ns_barrier")
    stamp(k, 7)
    C.first_reads(); C.loop(16)
    k.e("s_waitcnt lgkmcnt(0)")
    stamp(k, 8)
    k.e("s_nop 7\ns_nop 3")
    A = 64
    for i in range(16):
        t = 16 + 2*(i & 1)
        unpack(k, t, t+1, RS+i)
        k.e(f"v_pk_add_f32 v[{A+2*i}:{A+2*i+1}], v[{A+2*i}:{A+2*i+1}], v[{t}:{t+1}]")
        k.e(f"v_cvt_pk_bf16_f32 v{RS+i}, v{A+2*i}, v{A+2*i+1}")
        if i & 3 == 3:
            j = i >> 2
            k.e(f"buffer_store_dwordx4 v[{RS+4*j}:{RS+3+4*j}], v15, {srd(SRD_W)}, 0 offen offset:{1024*j} sc1")
    for i in range(16): unpack(k, A+2*i, A+2*i+1, RS+i)
    k.e(f"v_pk_add_f32 v[20:21], v[{A}:{A+1}], v[{A+2}:{A+3}]\nv_pk_add_f32 v[22:23], v[{A+4}:{A+5}], v[{A+6}:{A+7}]")
    for i in range(4, 16):
        t = 20 + 2*(i & 1); k.e(f"v_pk_add_f32 v[{t}:{t+1}], v[{t}:{t+1}], v[{A+2*i}:{A+2*i+1}]")
    k.e("v_pk_add_f32 v[20:21], v[20:21], v[22:23]\nv_add_f32 v20, v20, v21")
    xswap_sum1(k, 20, 21)
    k.e(f"v_mul_f32 v20, {f2u(1/64.)}, v20")
    for i in range(16):
        k.e(f"v_pk_add_f32 v[{A+2*i}:{A+2*i+1}], v[{A+2*i}:{A+2*i+1}], v[20:21] op_sel_hi:[1,0] neg_lo:[0,1] neg_hi:[0,1]")
    k.e(f"v_pk_mul_f32 v[22:23], v[{A}:{A+1}], v[{A}:{A+1}]\nv_pk_mul_f32 v[24:25], v[{A+2}:{A+3}], v[{A+2}:{A+3}]")
    for i in range(2, 16):
        t = 22 + 2*(i & 1); k.e(f"v_pk_fma_f32 v[{t}:{t+1}], v[{A+2*i}:{A+2*i+1}], v[{A+2*i}:{A+2*i+1}], v[{t}:{t+1}]")
    k.e("v_pk_add_f32 v[22:23], v[22:23], v[24:25]\nv_add_f32 v22, v22, v23")
    xswap_sum1(k, 22, 23)
    k.e(f"""v_mov_b32 v21, v22
    s_mov_b32 exec_hi, 0
    buffer_store_dwordx2 v[20:21], v9, {srd(SRD_W)}, 0 offen sc1
    s_mov_b32 exec_hi, -1""")
    k.e("s_cmp_ge_u32 s2, 224\ns_cbranch_scc1 L_c_helper")
    c = c3
    tile_map(k, 4, 7, 14)
    Ra = Regs(); Ra.aS = 8; Ra.aF = 12; Ra.fr = 16; Ra.acc = 128
    Ca = Cons(k, c, Ra); Cb = Cons(k, c, R)
    k.e("s_waitcnt vmcnt(1)\ns_barrier")
    consumer_addr(k, c, R); Ca.zero()
    stamp(k, 9)
    Cb.zero()
    mk_srd(k, SRD_A, P_BSP, 4096)
    k.e(f"""v_and_b32 v14, 31, v1
    v_lshlrev_b32 v2, 1, v14
    s_lshl_b32 s{S_T+2}, s{S_M}, 8
    s_lshl_b32 s{S_T+3}, s{S_WM}, 7
    s_add_u32 s{S_T+2}, s{S_T+2}, s{S_T+3}
    buffer_load_ushort v240, v2, {srd(SRD_A)}, s{S_T+2} offen
    buffer_load_ushort v242, v2, {srd(SRD_A)}, s{S_T+2} offen offset:64
    s_lshl_b32 s{S_T}, s{S_WM}, 6
    v_add_u32 v14, s{S_T}, v14
    v_lshlrev_b32 v14, 3, v14
    v_add_u32 v14, {L_HS}, v14
    v_lshrrev_b32 v7, 5, v1
    v_lshlrev_b32 v9, 5, v7
    s_lshl_b32 s{S_T}, s{S_WN}, 8
    s_add_u32 s{S_T}, s{S_T}, {L_CS}
    v_add_u32 v9, s{S_T}, v9
    v_mov_b32 v62, {f2u(C0)}
    v_and_b32 v10, 31, v1
    v_lshlrev_b32 v11, 2, v7
    v_xor_b32 v10, v10, v11
    v_lshlrev_b32 v10, 4, v10
    v_lshl_add_u32 v10, v7, 9, v10
    v_xor_b32 v11, 128, v10""")
    k.e("s_barrier\ns_waitcnt vmcnt(2)\ns_barrier")
    stamp(k, 10)
    Ca.first_reads(); Ca.loop(16)
    k.e("s_waitcnt lgkmcnt(0)")
    stamp(k, 11)
    CS = 16
    def load_cs(half):
        k.e("ds_read_b64 v[2:3], v14\nds_read_b64 v[4:5], v14 offset:256")
        for ft in range(2):
            for q in range(4):
                k.e(f"ds_read_b128 v[{CS+16*ft+4*q}:{CS+16*ft+4*q+3}], v9 offset:{half*512 + ft*128 + (q>>1)*64 + (q&1)*16}")
        k.e("s_waitcnt lgkmcnt(0)")
    load_cs(1)
    for ft in range(2):
        for st in range(2): gelu_tile(k, Ca.acc(st, ft), CS+16*ft, 2+2*st)
    Cb.first_reads()
    for st in range(2):
        a = Ca.acc(st, 0); b = Ca.acc(st, 1); t = 48+4*st
        k.e(f"v_pk_add_f32 v[{t}:{t+1}], v[{a}:{a+1}], v[{a+2}:{a+3}]\nv_pk_add_f32 v[{t+2}:{t+3}], v[{b}:{b+1}], v[{b+2}:{b+3}]")
        for i in range(2, 8):
            k.e(f"v_pk_add_f32 v[{t}:{t+1}], v[{t}:{t+1}], v[{a+2*i}:{a+2*i+1}]\nv_pk_add_f32 v[{t+2}:{t+3}], v[{t+2}:{t+3}], v[{b+2*i}:{b+2*i+1}]")
        k.e(f"v_pk_add_f32 v[{t}:{t+1}], v[{t}:{t+1}], v[{t+2}:{t+3}]\nv_add_f32 v{56+st}, v{t}, v{t+1}")
    xhalf_sum2(k, 56)
    k.e(f"v_mul_f32 v56, {f2u(1/64.)}, v56\nv_mul_f32 v57, {f2u(1/64.)}, v57")
    for st in range(2):
        sel = "op_sel_hi:[1,0]" if st == 0 else "op_sel:[0,1] op_sel_hi:[1,1]"
        for j, a in enumerate((Ca.acc(st, 0), Ca.acc(st, 1))):
            for i in range(8):
                d = 52+2*(i & 1); u = 48+2*(i & 1)
                k.e(f"v_pk_add_f32 v[{d}:{d+1}], v[{a+2*i}:{a+2*i+1}], v[56:57] {sel} neg_lo:[0,1] neg_hi:[0,1]")
                if j == 0 and i < 2: k.e(f"v_pk_mul_f32 v[{u}:{u+1}], v[{d}:{d+1}], v[{d}:{d+1}]")
                else: k.e(f"v_pk_fma_f32 v[{u}:{u+1}], v[{d}:{d+1}], v[{d}:{d+1}], v[{u}:{u+1}]")
        k.e(f"v_pk_add_f32 v[48:49], v[48:49], v[50:51]\nv_add_f32 v{58+st}, v48, v49")
    xhalf_sum2(k, 58)
    k.e(f"""v_cmp_gt_u32 vcc, 32, v1
    v_lshlrev_b32 v2, 3, v1
    s_lshl_b32 s{S_T}, s{S_WM}, 9
    s_lshl_b32 s{S_T+1}, s{S_WN}, 10
    s_add_u32 s{S_T}, s{S_T}, s{S_T+1}
    s_add_u32 s{S_T}, s{S_T}, {L_ZP}
    v_cndmask_b32 v60, v57, v56, vcc
    v_cndmask_b32 v61, v59, v58, vcc
    v_add_u32 v2, s{S_T}, v2
    ds_write_b64 v2, v[60:61]
    s_lshl_b32 s{S_T+12}, s{S_N}, 19
    s_lshl_b32 s{S_T+1}, s{S_M}, 15
    s_add_u32 s{S_T+12}, s{S_T+12}, s{S_T+1}
    s_lshl_b32 s{S_T+1}, s{S_WM}, 14
    s_add_u32 s{S_T+12}, s{S_T+12}, s{S_T+1}
    s_lshl_b32 s{S_T+1}, s{S_WN}, 12
    s_add_u32 s{S_T+12}, s{S_T+12}, s{S_T+1}
    s_add_u32 s{S_T+12}, s{S_T+12}, {WS_Z2N}
    s_add_u32 s{S_T+13}, s{S_T+12}, 8192
    s_waitcnt lgkmcnt(0)""")
    stamp(k, 12)
    g = OPT.gat
    n1 = g+2-16+1
    Cb.loop(n1)
    k.e(f"ds_read_b64 v[2:3], v14 offset:{L_ZS-L_HS}\nds_read_b64 v[4:5], v14 offset:{L_ZS-L_HS+256}\ns_waitcnt lgkmcnt(0)")
    stamp(k, 13)
    for st in range(2):
        s = 2+2*st
        for ft in range(2):
            a = Ca.acc(st, ft); o = 192 + 8*(ft+2*st)
            for i in range(8):
                k.e(f"v_pk_fma_f32 v[{a+2*i}:{a+2*i+1}], v[{a+2*i}:{a+2*i+1}], v[{s}:{s+1}], v[{s}:{s+1}] op_sel:[0,1,0] op_sel_hi:[1,1,0]")
            cvt16(k, o, a)
            k.e(f"buffer_store_dwordx4 v[{o}:{o+3}], v10, {srd(SRD_W)}, s{S_T+12+st} offen offset:{ft*2048} sc1\nbuffer_store_dwordx4 v[{o+4}:{o+7}], v11, {srd(SRD_W)}, s{S_T+12+st} offen offset:{ft*2048+1024} sc1")
    Cb.loop(1)
    Cb.loop(16-n1-1, pre_barrier="vm")
    k.e("s_waitcnt lgkmcnt(0)")
    stamp(k, 14)
    load_cs(0)
    Z = 192
    for ft in range(2):
        for st in range(2):
            gelu_tile(k, Cb.acc(st, ft), CS+16*ft, 2+2*st)
            cvt16(k, Z+8*(ft*2+st), Cb.acc(st, ft))
    c = c4; C = Cons(k, c, R)
    consumer_addr(k, c, R, slot_from_sgpr=True)
    C.first_reads(); C.zero()
    stamp(k, 15)
    C.loop(32)
    k.e("s_waitcnt lgkmcnt(0)")
    stamp(k, 16)
    k.e(f"""s_lshl_b32 s{S_T}, s{S_M}, 2
    s_lshl_b32 s{S_T+1}, s{S_WM}, 1
    s_add_u32 s{S_T}, s{S_T}, s{S_T+1}
    s_mul_i32 s{S_T}, s{S_T}, 112
    s_lshl_b32 s{S_T+1}, s{S_N}, 3
    s_add_u32 s{S_T}, s{S_T}, s{S_T+1}
    s_lshl_b32 s{S_T+1}, s{S_WN}, 2
    s_add_u32 s{S_T}, s{S_T}, s{S_T+1}
    s_lshl_b32 s{S_T}, s{S_T}, 10
    s_add_u32 s{S_T+12}, s{S_T}, {WS_U}
    s_add_u32 s{S_T+13}, s{S_T+12}, {112*1024}
    v_lshlrev_b32 v240, 16, v240
    v_lshlrev_b32 v242, 16, v242
    v_lshlrev_b32 v15, 4, v1""")
    for ft in range(2):
        for st in range(2):
            a = C.acc(st, ft); z = Z + 8*(ft*2+st); b = 240+2*st; o = 16+8*(ft*2+st)
            for i in range(8):
                t = 52+2*(i & 1)
                k.e(f"v_pk_add_f32 v[{a+2*i}:{a+2*i+1}], v[{a+2*i}:{a+2*i+1}], v[{b}:{b+1}] op_sel_hi:[1,0]")
                unpack(k, t, t+1, z+i)
                k.e(f"v_pk_mul_f32 v[{a+2*i}:{a+2*i+1}], v[{a+2*i}:{a+2*i+1}], v[{t}:{t+1}]")
            cvt16(k, o, a)
            k.e(f"buffer_store_dwordx4 v[{o}:{o+3}], v15, {srd(SRD_W)}, s{S_T+12+st} offen offset:{ft*2048} sc1\nbuffer_store_dwordx4 v[{o+4}:{o+7}], v15, {srd(SRD_W)}, s{S_T+12+st} offen offset:{ft*2048+1024} sc1")
    k.e("s_waitcnt vmcnt(0)\ns_barrier")
    stamp(k, 17)
    k.e("L_c_p5:")
    c = c5; C = Cons(k, c, R)
    p25_addr()
    consumer_addr(k, c, R); C.zero()
    mk_srd(k, SRD_B, P_OUT, 4*MB)
    k.e("s_barrier\ns_barrier")
    stamp(k, 18)
    C.first_reads(); C.loop(28)
    k.e("s_waitcnt lgkmcnt(0)")
    stamp(k, 19)
    k.e("s_nop 7\ns_nop 3")
    for i in range(16):
        t = 16 + 2*(i & 1)
        unpack(k, t, t+1, RS+i)
        k.e(f"v_pk_add_f32 v[{A+2*i}:{A+2*i+1}], v[{A+2*i}:{A+2*i+1}], v[{t}:{t+1}]")
        k.e(f"v_cvt_pk_bf16_f32 v{32+i}, v{A+2*i}, v{A+2*i+1}")
        if i & 3 == 3:
            j = i >> 2
            k.e(f"buffer_store_dwordx4 v[{32+4*j}:{35+4*j}], v14, {srd(SRD_B)}, 0 offen offset:{32*j}")
    k.e("s_branch L_fin")
    k.e("L_c_helper:")
    k.e("s_waitcnt vmcnt(1)\ns_barrier")
    stamp(k, 9)
    helper(k, "c")
    stamp(k, 17)
    k.e("s_branch L_c_p5")

def build():
    k = Kern("p")
    k.e("s_cmp_ge_u32 s2, 256\ns_cbranch_scc1 L_end")
    k.e("s_load_dwordx16 s[32:47], s[0:1], 0\ns_load_dwordx8 s[48:55], s[0:1], 64")
    k.e(f"v_lshrrev_b32 v2, 6, v0\nv_and_b32 v1, 63, v0\nv_readfirstlane_b32 s{S_WAVE}, v2")
    if OPT.stamps: k.e("v_mov_b32 v255, 0")
    tile_map(k, 8, 4, 16)
    k.e(f"s_cmp_lt_u32 s{S_WAVE}, 4\ns_cbranch_scc1 L_cons")
    loader(k)
    k.e("L_cons:")
    consumer(k)
    k.e("L_fin:")
    if OPT.stamps:
        k.e("s_waitcnt vmcnt(0)")
        stamp(k, 20)
        mk_srd(k, SRD_D, P_WS, MB, WS_END)
        k.e(f"""s_lshl_b32 s{S_T}, s2, 3
        s_add_u32 s{S_T}, s{S_T}, s{S_WAVE}
        s_lshl_b32 s{S_T}, s{S_T}, 8
        v_lshlrev_b32 v2, 2, v1
        buffer_store_dword v255, v2, {srd(SRD_D)}, s{S_T} offen""")
    k.e("L_end:\ns_endpgm")
    out = [f"; @launch grid=(256,1,1) block=(512,1,1) lds={L_END}",
           '.amdgcn_target "amdgcn-amd-amdhsa--gfx950"\n.text', header(KNAME) + k.text(), '.section .rodata,"a"', descriptor(KNAME, 256, 100)]
    return "\n".join(out)

if __name__ == "__main__":
    for a in sys.argv[2:]:
        kk, v = a.split("="); setattr(OPT, kk, int(v))
    open(sys.argv[1], "w").write(build())
```

```python
import sys, struct
from core2 import *

MB = 1<<20
WS_O=4*MB; WS_H=8*MB; WS_Z2N=20*MB; WS_U=28*MB
WS_KVP=36*MB; WS_ZP=38*MB; WS_XS=39*MB; WS_CQP=39*MB+65536; WS_HST=40*MB; WS_ZST=41*MB; WS_CSW=41*MB+512*1024
FLS=4352
WS_FLAG=42*MB; F_KV=WS_FLAG; F_O=WS_FLAG+16*FLS; F_H=WS_FLAG+32*FLS; F_Z=WS_FLAG+48*FLS; F_U=WS_FLAG+64*FLS; F_CS=WS_FLAG+80*FLS
WS_END=43*MB
P_X=0; P_WQKV=1; P_WPHI=2; P_WO=3; P_WIN=5; P_WSP=6; P_BSP=7; P_WOUT=8; P_OUT=9; P_DBG=10; P_WS=11
S_M1=92; S_N1=93
L_WPHI=147456; L_XS=L_WPHI+4096; L_CQ=L_XS+1024; L_HS=L_CQ+1024; L_CS=L_HS+1024; L_ZP=L_CS+1024; L_ZS=L_ZP+2048; L_END=L_ZS+1024
KNAME = "sequential_preLN__linear_kernel_hedgehog__mixer_gmlp__prompt_kernel"

def f2u(x): return struct.unpack("<I", struct.pack("<f", x))[0]
LOG2E = 1.4426950408889634
MF = "v_mfma_f32_32x32x16_bf16"

class Opt:
    stamps = 0
    pf = 1
    slp = 2
    dbgout = 0
    spin = 0
    gat = 19
OPT = Opt()

def unpack(k, lo, hi, src):
    k.e(f"v_lshlrev_b32 v{lo}, 16, v{src}\nv_and_b32 v{hi}, 0xffff0000, v{src}")
def cvt16(k, dst, src):
    for i in range(8): k.e(f"v_cvt_pk_bf16_f32 v{dst+i}, v{src+2*i}, v{src+2*i+1}")

def stamp(k, i):
    if OPT.stamps:
        k.e(f"s_memrealtime s[{S_ST}:{S_ST+1}]\ns_waitcnt lgkmcnt(0)\nv_writelane_b32 v255, s{S_ST}, {i}")

def check_flags(k, vflag, nflags, val, oklab):
    k.e(f"""v_cmp_{'le' if val > 1 else 'eq'}_u32 vcc, {val}, v{vflag}
    s_and_b32 s{S_T+11}, vcc_lo, {(1<<nflags)-1}
    s_cmp_eq_u32 s{S_T+11}, {(1<<nflags)-1}
    s_cbranch_scc1 {oklab}""")

def poll(k, voff, nflags, srdn=SRD_W, val=1, pre=False):
    top = k.lab("poll"); done = k.lab("polld")
    k.e(f"s_cmp_lg_u32 s{S_LW}, 0\ns_cbranch_scc1 {done}")
    if pre is not False:
        k.e(f"s_waitcnt vmcnt({pre})")
        check_flags(k, 8, nflags, val, done)
    k.e(f"s_mov_b32 s{S_T+10}, 0x40000\n{top}:")
    k.e(f"buffer_load_dword v8, v{voff}, {srd(srdn)}, 0 offen sc1\ns_waitcnt vmcnt(0)")
    check_flags(k, 8, nflags, val, done)
    k.e(f"""s_sleep {OPT.slp}
    s_sub_u32 s{S_T+10}, s{S_T+10}, 1
    s_cmp_lg_u32 s{S_T+10}, 0
    s_cbranch_scc1 {top}""")
    k.e(f"{done}:")

def sample(k, voff):
    sk = k.lab("nosm")
    k.e(f"s_cmp_lg_u32 s{S_LW}, 0\ns_cbranch_scc1 {sk}\nbuffer_load_dword v8, v{voff}, {srd(SRD_W)}, 0 offen sc1\n{sk}:")

def flag_addrs(k, vset, base_set, sline, sidx):
    k.e(f"""s_mul_i32 s{S_T}, s{sline}, {FLS}
    s_lshl_b32 s{S_T+1}, s{sidx}, 2
    s_add_u32 s{S_T}, s{S_T}, s{S_T+1}
    s_add_u32 s{S_T}, s{S_T}, {base_set}
    v_mov_b32 v{vset}, s{S_T}""")
def poll_addr(k, vp, base, sline):
    k.e(f"""s_mul_i32 s{S_T}, s{sline}, {FLS}
    s_add_u32 s{S_T}, s{S_T}, {base}
    v_and_b32 v{vp}, 15, v1
    v_lshlrev_b32 v{vp}, 2, v{vp}
    v_add_u32 v{vp}, s{S_T}, v{vp}""")
def set_flag(k, vset, wave_sgpr=S_LW):
    sk = k.lab("nofl")
    k.e(f"""s_cmp_lg_u32 s{wave_sgpr}, 0
    s_cbranch_scc1 {sk}
    v_mov_b32 v11, 1
    s_mov_b64 exec, 1
    buffer_store_dword v11, v{vset}, {srd(SRD_W)}, 0 offen sc1
    s_mov_b64 exec, -1
    {sk}:""")

def softmax_pm(k, P, EP, EN, T, OP, ON):
    L = S_K
    k.e(f"v_max3_f32 v{T}, v{P}, v{P+1}, v{P+2}\nv_min3_f32 v{T+1}, v{P}, v{P+1}, v{P+2}")
    for i in range(3, 15, 2):
        k.e(f"v_max3_f32 v{T}, v{T}, v{P+i}, v{P+i+1}\nv_min3_f32 v{T+1}, v{T+1}, v{P+i}, v{P+i+1}")
    k.e(f"""v_max_f32 v{T}, v{T}, v{P+15}
    v_max_f32 v{T+1}, -v{T+1}, -v{P+15}
    s_nop 1
    v_permlane32_swap_b32 v{T}, v{T+1}
    v_max_f32 v{T}, v{T}, v{T+1}
    v_mul_f32 v{T}, {f2u(-LOG2E)}, v{T}
    v_mov_b32 v{T+1}, v{T}
    s_nop 1
    v_permlane32_swap_b32 v{T}, v{T+1}""")
    for i in range(8):
        k.e(f"v_pk_fma_f32 v[{EP+2*i}:{EP+2*i+1}], v[{P+2*i}:{P+2*i+1}], s[{L}:{L+1}], v[{T}:{T+1}] op_sel_hi:[1,1,0]")
        k.e(f"v_pk_fma_f32 v[{EN+2*i}:{EN+2*i+1}], v[{P+2*i}:{P+2*i+1}], s[{L}:{L+1}], v[{T}:{T+1}] op_sel:[0,0,1] op_sel_hi:[1,1,1] neg_lo:[0,1,0] neg_hi:[0,1,0]")
    for i in range(16):
        k.e(f"v_exp_f32 v{EP+i}, v{EP+i}\nv_exp_f32 v{EN+i}, v{EN+i}")
    k.e(f"v_pk_add_f32 v[{T}:{T+1}], v[{EP}:{EP+1}], v[{EP+2}:{EP+3}]\nv_pk_add_f32 v[{T+2}:{T+3}], v[{EN}:{EN+1}], v[{EN+2}:{EN+3}]")
    for i in range(2, 8):
        k.e(f"v_pk_add_f32 v[{T}:{T+1}], v[{T}:{T+1}], v[{EP+2*i}:{EP+2*i+1}]\nv_pk_add_f32 v[{T+2}:{T+3}], v[{T+2}:{T+3}], v[{EN+2*i}:{EN+2*i+1}]")
    k.e(f"""v_add_f32 v{T}, v{T}, v{T+1}
    v_add_f32 v{T+1}, v{T+2}, v{T+3}
    s_nop 1
    v_permlane32_swap_b32 v{T}, v{T+1}
    v_add_f32 v{T}, v{T}, v{T+1}
    v_rcp_f32 v{T}, v{T}
    s_nop 0
    v_mov_b32 v{T+1}, v{T}
    s_nop 1
    v_permlane32_swap_b32 v{T}, v{T+1}""")
    for i in range(8):
        k.e(f"v_pk_mul_f32 v[{EP+2*i}:{EP+2*i+1}], v[{EP+2*i}:{EP+2*i+1}], v[{T}:{T+1}] op_sel_hi:[1,0]")
        k.e(f"v_pk_mul_f32 v[{EN+2*i}:{EN+2*i+1}], v[{EN+2*i}:{EN+2*i+1}], v[{T}:{T+1}] op_sel:[0,1] op_sel_hi:[1,1]")
    cvt16(k, OP, EP); cvt16(k, ON, EN)

def xhalf_sum2(k, a):
    k.e(f"""s_nop 1
    v_permlane32_swap_b32 v{a}, v{a+1}
    v_add_f32 v{a}, v{a}, v{a+1}
    v_mov_b32 v{a+1}, v{a}
    s_nop 1
    v_permlane32_swap_b32 v{a}, v{a+1}""")
def xswap_sum1(k, a, t, which=32):
    k.e(f"""v_mov_b32 v{t}, v{a}
    s_nop 1
    v_permlane{which}_swap_b32 v{a}, v{t}
    v_add_f32 v{a}, v{a}, v{t}""")

def combine_half(k, P, n, ntot, cnt, d, t):
    k.e(f"v_pk_add_f32 v[{d}:{d+1}], v[{P}:{P+1}], v[{P+2}:{P+3}]")
    for i in range(2, n): k.e(f"v_pk_add_f32 v[{d}:{d+1}], v[{d}:{d+1}], v[{P+2*i}:{P+2*i+1}]")
    xswap_sum1(k, d, t)
    k.e(f"v_mul_f32 v{d}, {f2u(1.0/ntot)}, v{d}\nv_mov_b32 v{t+1}, 0")
    for i in range(n):
        k.e(f"v_sub_f32 v{t}, v{P+2*i}, v{d}\nv_fmac_f32 v{t+1}, v{t}, v{t}")
    k.e(f"v_fmac_f32 v{d+1}, {f2u(float(cnt))}, v{t+1}")
    xswap_sum1(k, d+1, t)

def finish_rstd(k, d, total):
    k.e(f"""v_mul_f32 v{d+1}, {f2u(1.0/total)}, v{d+1}
    v_add_f32 v{d+1}, {f2u(1e-5)}, v{d+1}
    v_rsq_f32 v{d+1}, v{d+1}
    s_nop 0
    v_mul_f32 v{d}, -v{d}, v{d+1}""")

c1 = Cfg(128,192,16,3,2,2,1, 2048, 6144, [(0,0),(1,0),(2,0)], True, False, orient=['T','T','N'], smode='rows', baseS=0, baseF=49152, kbase='move2')
c2 = Cfg(128,64,16,4,4,1,2, 2048, 2048, [(0,0),(0,1)], False, False, smode='frag', auxS="sc1")
c3 = Cfg(128,128,16,4,2,2,1, 2048, 7168, [(0,0),(0,1)], False, True, smode='frag', auxS="sc1", slot0=2)
c4 = Cfg(128,128,32,4,2,2,1, 4096, 0, [(0,0),(0,1)], False, True, smode='rows', fmode='blk', auxF="sc1")
c5 = Cfg(128,64,28,4,4,1,2, 3584, 2048, [(0,0),(0,1)], False, False, smode='frag', auxS="sc1", baseF=114688, slot0=2)
VS=16; VF=20; VS4=26; VF4=30
L_PHK=0; L_VX=32768; L_KV=49152; L_Z=57344

def tail_barriers(k, c, extra=0, upto=None):
    for r in range(c.NS-1):
        k.e(f"s_waitcnt vmcnt({max(c.NS-2-r,0)*c.nI + extra})\ns_barrier")

def loader(k):
    k.e(f"s_sub_u32 s{S_LW}, s{S_WAVE}, 4\ns_lshl_b32 s{S_M0W}, s{S_LW}, 10")
    c = c1
    k.e(f"s_mov_b32 s{S_KB}, s{S_M}\ns_mov_b32 s{S_PH}, s{S_N}\ns_lshl_b32 s{S_T0}, s{S_N}, 7")
    loader_voff_S(k, c, VS)
    loader_voff_F(k, c, VF, S_T0, lambda P: P*2048)
    k.e("s_waitcnt lgkmcnt(0)")
    mk_srd(k, SRD_S, P_X, 4*MB); mk_srd(k, SRD_F, P_WQKV, 6*MB)
    mk_srd(k, SRD_W, P_WS, WS_END); mk_srd(k, SRD_A, P_WPHI, 65536); mk_srd(k, SRD_D, P_DBG, 256)
    stamp(k, 0)
    issue_first(k, c, VS, VF, "SF")
    stamp(k, 1)
    k.e(f"""s_lshl_b32 s{S_T}, s{S_N}, 12
    s_add_u32 s{S_T}, s{S_T}, s{S_M0W}
    v_lshlrev_b32 v2, 4, v1
    s_add_u32 m0, s{S_M0W}, {L_WPHI}
    s_nop 0
    buffer_load_dwordx4 v2, {srd(SRD_A)}, s{S_T} offen lds""")
    one(k, c, VS, VF, wait=c.nI+1)
    one(k, c, VS, VF)
    k.e(f"""v_lshrrev_b32 v3, 2, v1
    v_and_b32 v3, 4, v3
    v_xor_b32 v3, v3, v1
    v_lshlrev_b32 v3, 4, v3
    s_lshl_b32 s{S_T}, s{S_LW}, 13
    s_add_u32 s{S_T}, s{S_T}, {c.baseF+2*c.slotF}
    v_add_u32 v3, s{S_T}, v3""")
    for j in range(8): k.e(f"ds_read_b128 v[{64+4*j}:{67+4*j}], v3 offset:{j*1024}")
    k.e("s_waitcnt lgkmcnt(0)")
    one(k, c, VS, VF)
    k.e(f"s_cmp_eq_u32 s{S_LW}, 3\ns_cbranch_scc1 L_init")
    for i in range(4): unpack(k, 40+2*i, 41+2*i, 64+i)
    for j in range(1, 8):
        for i in range(4):
            t = 48+2*(i & 1)
            unpack(k, t, t+1, 64+4*j+i)
            k.e(f"v_pk_add_f32 v[{40+2*i}:{41+2*i}], v[{40+2*i}:{41+2*i}], v[{t}:{t+1}]")
    k.e("s_nop 1")
    for i in range(8): k.e(f"v_add_f32_dpp v{40+i}, v{40+i}, v{40+i} row_ror:8 row_mask:0xf bank_mask:0xf")
    for which in (16, 32):
        for i in range(8): k.e(f"v_mov_b32 v{48+i}, v{40+i}")
        k.e("s_nop 1")
        for i in range(8): k.e(f"v_permlane{which}_swap_b32 v{40+i}, v{48+i}")
        for i in range(8): k.e(f"v_add_f32 v{40+i}, v{40+i}, v{48+i}")
    k.e(f"""s_lshl_b32 s{S_T}, s{S_N}, 4
    s_add_u32 s{S_T}, s{S_T}, s{S_M}
    s_mul_i32 s{S_T}, s{S_T}, 768
    s_lshl_b32 s{S_T+1}, s{S_LW}, 8
    s_add_u32 s{S_T}, s{S_T}, s{S_T+1}
    s_add_u32 s{S_T}, s{S_T}, {WS_CQP}
    v_lshlrev_b32 v3, 5, v1
    s_mov_b64 exec, 0xff
    buffer_store_dwordx4 v[40:43], v3, {srd(SRD_W)}, s{S_T} offen sc1
    buffer_store_dwordx4 v[44:47], v3, {srd(SRD_W)}, s{S_T} offen offset:16 sc1
    s_mov_b64 exec, -1
    s_branch L_init_done""")
    k.e(f"""L_init:
    v_mov_b32 v40, 0
    v_mov_b32 v44, -1
    v_mov_b32 v45, -1
    v_mov_b32 v46, -1
    v_mov_b32 v47, -1
    s_min_u32 s{S_T}, s2, 95
    s_mul_i32 s{S_T}, s{S_T}, {FLS}
    s_add_u32 s{S_T}, s{S_T}, {WS_FLAG}
    s_lshl_b32 s{S_T+2}, s2, 10
    s_add_u32 s{S_T+2}, s{S_T+2}, {WS_HST}
    s_mul_i32 s{S_T+1}, s2, 896
    s_add_u32 s{S_T+1}, s{S_T+1}, {WS_ZST}
    v_lshlrev_b32 v3, 2, v1
    buffer_store_dwordx4 v[44:47], v2, {srd(SRD_W)}, s{S_T+2} offen sc1
    s_mov_b64 exec, 0xffff
    buffer_store_dword v40, v3, {srd(SRD_W)}, s{S_T} offen sc1
    s_mov_b32 exec_lo, -1
    s_mov_b32 exec_hi, 0xffffff
    buffer_store_dwordx4 v[44:47], v2, {srd(SRD_W)}, s{S_T+1} offen sc1
    s_mov_b64 exec, -1
    L_init_done:""")
    steady(k, c, VS, VF, 9)
    k.e(f"""s_cmp_lg_u32 s{S_LW}, 3
    s_cbranch_scc1 L_noarr
    s_and_b32 s{S_T}, s2, 7
    s_lshl_b32 s{S_T}, s{S_T}, 5
    v_mov_b32 v3, s{S_T}
    v_mov_b32 v11, 1
    s_mov_b64 exec, 1
    buffer_atomic_add v11, v3, {srd(SRD_D)}, 0 offen sc1
    s_mov_b64 exec, -1
    L_noarr:""")
    steady(k, c, VS, VF, 15)
    k.e(f"v_lshlrev_b32 v10, 5, v1")
    poll(k, 10, 8, SRD_D, 32)
    k.e(f"v_lshlrev_b32 v10, 2, v1")
    one(k, c, VS, VF)
    k.e(f"""s_lshr_b32 s{S_T}, s{S_LW}, 1
    s_lshl_b32 s{S_T}, s{S_T}, 13
    s_and_b32 s{S_T+1}, s{S_LW}, 1
    s_lshl_b32 s{S_T+1}, s{S_T+1}, 8
    s_add_u32 s{S_T}, s{S_T}, s{S_T+1}
    s_lshl_b32 s{S_T+1}, s{S_M}, 9
    s_add_u32 s{S_T}, s{S_T}, s{S_T+1}
    s_add_u32 s{S_T}, s{S_T}, {WS_XS}
    s_lshl_b32 s{S_T+2}, s{S_LW}, 8
    s_add_u32 m0, s{S_T+2}, {L_XS}
    s_mul_i32 s{S_T+1}, s{S_N}, {16*768}
    buffer_load_dword v10, {srd(SRD_W)}, s{S_T} offen sc1 lds
    s_add_u32 s{S_T+1}, s{S_T+1}, s{S_T+2}
    s_add_u32 s{S_T+1}, s{S_T+1}, {WS_CQP}""")
    for i in range(16):
        k.e(f"buffer_load_dword v{64+i}, v10, {srd(SRD_W)}, s{S_T+1} offen offset:{(i&3)*768} sc1")
        if i & 3 == 3: k.e(f"s_add_u32 s{S_T+1}, s{S_T+1}, 3072")
    npf = 0
    if OPT.pf:
        mk_srd(k, SRD_A, P_WO, 2*MB); mk_srd(k, SRD_B, P_WIN, 7*MB)
        k.e(f"""s_lshl_b32 s{S_T}, s2, 2
        s_add_u32 s{S_T}, s{S_T}, s{S_LW}
        s_lshl_b32 s{S_T+1}, s{S_T}, 11
        s_mul_i32 s{S_T}, s{S_T}, {56*128}
        v_lshlrev_b32 v3, 7, v1
        s_mov_b64 exec, 0xffff
        buffer_load_dword v250, v3, {srd(SRD_A)}, s{S_T+1} offen
        s_mov_b32 exec_lo, -1
        s_mov_b32 exec_hi, 0xffffff
        buffer_load_dword v251, v3, {srd(SRD_B)}, s{S_T} offen
        s_mov_b64 exec, -1""")
        npf = 2
    tail_barriers(k, c, 17+npf)
    k.e(f"s_waitcnt vmcnt({npf})")
    for i in range(1, 8): k.e(f"v_pk_add_f32 v[64:65], v[64:65], v[{64+2*i}:{65+2*i}]")
    k.e(f"""v_add_f32 v64, v64, v65
    s_add_u32 s{S_T+2}, s{S_T+2}, {L_CQ}
    v_add_u32 v3, s{S_T+2}, v10
    ds_write_b32 v3, v64
    s_waitcnt lgkmcnt(0)
    s_barrier""")
    stamp(k, 2)
    k.e(f"s_mov_b32 s{S_M1}, s{S_M}\ns_mov_b32 s{S_N1}, s{S_N}")
    flag_addrs(k, 9, F_KV, S_N1, S_M1); poll_addr(k, 10, F_KV, S_N1); flag_addrs(k, 12, F_O, S_M1, S_N1)
    tile_map(k, 4, 8, 16)
    c = c2
    mk_srd(k, SRD_S, P_WS, 4*MB, WS_O); mk_srd(k, SRD_F, P_WO, 2*MB)
    k.e(f"s_lshl_b32 s{S_T0}, s{S_N}, 7")
    loader_voff_S(k, c, VS); loader_voff_F(k, c, VF, S_T0, lambda P: 0)
    issue_first(k, c, VS, VF, "F", pbarrier=False)
    poll_addr(k, 13, F_O, S_M)
    k.e("s_barrier")
    k.e(f"""s_and_b32 s{S_T}, s{S_LW}, 1
    s_lshr_b32 s{S_T+1}, s{S_LW}, 1
    s_lshl_b32 s{S_T+2}, s{S_N1}, 1
    s_add_u32 s{S_T+2}, s{S_T+2}, s{S_T}
    s_lshl_b32 s{S_T+2}, s{S_T+2}, 1
    s_add_u32 s{S_T+2}, s{S_T+2}, s{S_T+1}
    s_lshl_b32 s{S_T+3}, s{S_T+2}, 15
    s_add_u32 s{S_T+3}, s{S_T+3}, {WS_KVP}
    s_lshl_b32 s{S_T+4}, s{S_T+2}, 10
    s_add_u32 s{S_T+4}, s{S_T+4}, {WS_ZP}
    v_lshlrev_b32 v2, 4, v1
    v_and_b32 v3, 15, v1
    v_lshlrev_b32 v3, 6, v3
    v_lshrrev_b32 v4, 4, v1
    v_lshl_add_u32 v3, v4, 4, v3""")
    k.e("s_barrier")
    set_flag(k, 9)
    poll(k, 10, 16)
    k.e("s_barrier")
    stamp(k, 3)
    k.e(f"buffer_load_dwordx4 v[36:39], v3, {srd(SRD_W)}, s{S_T+4} offen sc1")
    D = 64
    k.e(f"s_lshl_b32 s{S_T+5}, s{S_M1}, 11")
    for mt in range(16):
        k.e(f"s_add_u32 s{S_T+6}, s{S_T+3}, s{S_T+5}")
        for cc in range(2):
            r = D + (mt*2+cc)*4
            k.e(f"buffer_load_dwordx4 v[{r}:{r+3}], v2, {srd(SRD_W)}, s{S_T+6} offen offset:{cc*1024} sc1")
        k.e(f"s_add_u32 s{S_T+5}, s{S_T+5}, 2048\ns_and_b32 s{S_T+5}, s{S_T+5}, 32767")
    k.e("s_waitcnt vmcnt(32)")
    for i in range(4): unpack(k, 40+2*i, 41+2*i, 36+i)
    for sh in (8, 4, 2, 1):
        k.e("s_nop 1")
        for i in range(8): k.e(f"v_add_f32_dpp v{40+i}, v{40+i}, v{40+i} row_ror:{sh} row_mask:0xf bank_mask:0xf")
    for i in range(4): k.e(f"v_cvt_pk_bf16_f32 v{36+i}, v{40+2*i}, v{41+2*i}")
    k.e(f"""s_lshl_b32 s{S_T+5}, s{S_T}, 1
    s_add_u32 s{S_T+5}, s{S_T+5}, s{S_T+1}
    s_lshl_b32 s{S_T+6}, s{S_T+5}, 6
    v_lshlrev_b32 v5, 4, v4
    v_add_u32 v5, s{S_T+6}, v5
    ds_write_b128 v5, v[36:39] offset:{L_Z}
    s_lshl_b32 s{S_T+6}, s{S_T+5}, 11
    v_add_u32 v5, s{S_T+6}, v2""")
    A = 192
    for mt in range(16):
        k.e(f"s_waitcnt vmcnt({30-2*mt})")
        for j in range(8):
            r = D + mt*8 + j
            if mt == 0: unpack(k, A+2*j, A+2*j+1, r)
            else:
                t = 48 + 2*(j & 1)
                unpack(k, t, t+1, r)
                k.e(f"v_pk_add_f32 v[{A+2*j}:{A+2*j+1}], v[{A+2*j}:{A+2*j+1}], v[{t}:{t+1}]")
    cvt16(k, 52, A)
    k.e(f"ds_write_b128 v5, v[52:55] offset:{L_KV}\nds_write_b128 v5, v[56:59] offset:{L_KV+1024}\ns_waitcnt lgkmcnt(0)")
    k.e("s_barrier")
    k.e("s_barrier")
    set_flag(k, 12)
    poll(k, 13, 16)
    k.e("s_barrier")
    stamp(k, 4)
    issue_first(k, c, VS, VF, "S")
    after_split_prologue(k, c, VS, VF, c.nS)
    steady(k, c, VS, VF, c.T)
    flag_addrs(k, 9, F_H, S_M, S_N); poll_addr(k, 10, F_H, S_M)
    k.e("s_cmp_ge_u32 s2, 224\ns_cbranch_scc1 L_ld_helper")
    c = c3
    tile_map(k, 4, 7, 14)
    mk_srd(k, SRD_S, P_WS, 4*MB, WS_H); mk_srd(k, SRD_F, P_WIN, 7*MB)
    k.e(f"s_lshl_b32 s{S_T0}, s{S_N}, 8\ns_mov_b32 s{S_FB}, 3584")
    loader_voff_S(k, c, VS); loader_voff_F(k, c, VF, S_T0, lambda P: P*128)
    k.e(f"s_waitcnt vmcnt({2*c2.nI})\ns_barrier")
    issue_first(k, c, VS, VF, "F", fbase=True, pbarrier=False, t1=2)
    k.e(f"s_waitcnt vmcnt({c2.nI+2*c.nF})\ns_barrier\ns_waitcnt vmcnt({2*c.nF})\ns_barrier")
    loader_voff_S(k, c4, VS4); loader_voff_F(k, c4, VF4)
    k.e("s_barrier")
    k.e("s_barrier")
    set_flag(k, 9)
    poll(k, 10, 16)
    k.e("s_barrier")
    stamp(k, 5)
    issue_first(k, c, VS, VF, "S", t1=2)
    issue_first(k, c, VS, VF, "SF", fbase=True, pbarrier=False, t0=2)
    steady(k, c, VS, VF, 12, fbase=True)
    k.e(f"""v_and_b32 v14, 31, v1
    s_lshl_b32 s{S_T}, s{S_LW}, 5
    v_add_u32 v14, s{S_T}, v14
    v_lshlrev_b32 v14, 3, v14
    v_lshrrev_b32 v15, 5, v1
    v_lshl_add_u32 v3, v15, 17, v14
    s_lshl_b32 s{S_T+12}, s{S_M}, 10
    s_add_u32 s{S_T+12}, s{S_T+12}, {WS_HST}
    v_mov_b32 v13, v3""")
    def hgather():
        k.e(f"s_mov_b32 s{S_T}, s{S_T+12}")
        for i in range(8):
            k.e(f"buffer_load_dwordx2 v[{64+2*i}:{65+2*i}], v13, {srd(SRD_W)}, s{S_T} offen sc1\ns_add_u32 s{S_T}, s{S_T}, 16384")
    def tagcheck(n, ok):
        k.e("v_max_u32 v3, v65, v67")
        for i in range(2, n): k.e(f"v_max_u32 v3, v3, v{65+2*i}")
        k.e(f"v_cmp_eq_u32 vcc, -1, v3\ns_cmp_eq_u64 vcc, 0\ns_cbranch_scc1 {ok}")
    def validated(gather, n, nm):
        tagcheck(n, f"L_{nm}ok")
        k.e(f"s_mov_b32 s{S_T+10}, 0x40000\nL_{nm}spin:")
        gather()
        k.e("s_waitcnt vmcnt(0)")
        tagcheck(n, f"L_{nm}ok")
        k.e(f"s_sleep {OPT.slp}\ns_sub_u32 s{S_T+10}, s{S_T+10}, 1\ns_cmp_lg_u32 s{S_T+10}, 0\ns_cbranch_scc1 L_{nm}spin\nL_{nm}ok:")
    hgather()
    poll_addr(k, 10, F_CS, S_N)
    one(k, c, VS, VF, fbase=True)
    sample(k, 10)
    one(k, c, VS, VF, fbase=True)
    k.e(f"s_waitcnt vmcnt({2*c.nI})")
    validated(hgather, 8, "h")
    combine_half(k, 64, 8, 16, 64, 4, 6); finish_rstd(k, 4, 1024)
    k.e(f"v_add_u32 v3, {L_HS}, v14\nds_write_b64 v3, v[4:5]")
    one(k, c, VS, VF, fbase=True)
    poll(k, 10, 2, pre=2*c.nI)
    one(k, c, VS, VF, fbase=True)
    k.e(f"""s_lshr_b32 s{S_T}, s{S_LW}, 1
    s_mul_i32 s{S_T}, s{S_T}, 14
    s_add_u32 s{S_T}, s{S_T}, s{S_N}
    s_lshl_b32 s{S_T}, s{S_T}, 9
    s_and_b32 s{S_T+1}, s{S_LW}, 1
    s_lshl_b32 s{S_T+1}, s{S_T+1}, 8
    s_add_u32 s{S_T}, s{S_T}, s{S_T+1}
    s_add_u32 s{S_T}, s{S_T}, {WS_CSW}
    s_lshl_b32 s{S_T+2}, s{S_LW}, 8
    s_add_u32 m0, s{S_T+2}, {L_CS}
    v_lshlrev_b32 v3, 2, v1
    buffer_load_dword v3, {srd(SRD_W)}, s{S_T} offen sc1 lds
    s_waitcnt lgkmcnt(0)""")
    k.e(f"s_mov_b32 s{S_TAU}, 0\ns_mov_b32 s{S_FB}, 0")
    steady(k, c, VS, VF, 5, fbase=True)
    stamp(k, 6)
    k.e(f"""v_add_u32 v3, {L_ZP}, v14
    ds_read_b64 v[64:65], v3
    ds_read_b64 v[66:67], v3 offset:1024
    s_mul_i32 s{S_T+12}, s{S_M}, {14*1024}
    s_add_u32 s{S_T+12}, s{S_T+12}, {WS_ZST}
    s_lshl_b32 s{S_T+1}, s{S_N}, 10
    s_add_u32 s{S_T+1}, s{S_T+1}, s{S_T+12}
    s_waitcnt lgkmcnt(0)
    v_add_f32 v4, v64, v66
    v_mul_f32 v4, 0.5, v4
    v_sub_f32 v6, v64, v66
    v_mul_f32 v6, v6, v6
    v_add_f32 v5, v65, v67
    v_fmac_f32 v5, {f2u(32.0)}, v6
    s_mov_b32 exec_hi, 0
    buffer_store_dwordx2 v[4:5], v14, {srd(SRD_W)}, s{S_T+1} offen sc1
    s_mov_b32 exec_hi, -1
    v_mul_u32_u24 v13, {7*1024}, v15
    v_add_u32 v13, v13, v14""")
    g = OPT.gat
    steady(k, c, VS, VF, g-11, fbase=True)
    def zgather():
        k.e(f"s_add_u32 s{S_T+1}, s{S_T+12}, 4096")
        for i in range(7):
            k.e(f"buffer_load_dwordx2 v[{64+2*i}:{65+2*i}], v13, {srd(SRD_W)}, s{S_T+12 if i < 4 else S_T+1} offen offset:{(i&3)*1024} sc1")
    zgather()
    one(k, c, VS, VF, fbase=True)
    k.e(f"s_waitcnt vmcnt({c.nI})")
    validated(zgather, 7, "z")
    stamp(k, 7)
    combine_half(k, 64, 7, 14, 128, 4, 6); finish_rstd(k, 4, 1792)
    k.e(f"v_add_u32 v3, {L_ZS}, v14\nds_write_b64 v3, v[4:5]")
    flag_addrs(k, 9, F_Z, S_N, S_M); poll_addr(k, 10, F_Z, S_N)
    k.e("s_waitcnt lgkmcnt(0)")
    steady(k, c, VS, VF, g+4-11, fbase=True)
    set_flag(k, 9)
    if g+4-11 < 15: steady(k, c, VS, VF, 15, fbase=True)
    sample(k, 10)
    one(k, c, VS, VF, fbase=True)
    poll(k, 10, 16, pre=c.nI)
    stamp(k, 8)
    c = c4
    mk_srd(k, SRD_S, P_WSP, 8*MB); mk_srd(k, SRD_F, P_WS, 7*MB, WS_Z2N)
    k.e(f"s_mov_b32 s{S_TAU}, 0")
    steady(k, c, VS4, VF4, 32)
    flag_addrs(k, 9, F_U, S_M, S_N)
    def p5_setup():
        tile_map(k, 4, 8, 16)
        mk_srd(k, SRD_S, P_WS, 7*MB, WS_U); mk_srd(k, SRD_F, P_WOUT, 1792*2048)
        k.e(f"s_lshl_b32 s{S_T0}, s{S_N}, 7")
        loader_voff_S(k, c5, VS); loader_voff_F(k, c5, VF, S_T0, lambda P: 0)
        issue_first(k, c5, VS, VF, "F", pbarrier=False, t1=2)
        poll_addr(k, 10, F_U, S_M)
    p5_setup()
    tail_barriers(k, c, 2*c5.nF)
    k.e("s_barrier")
    k.e("s_barrier")
    set_flag(k, 9)
    k.e("L_ld_p5:")
    c = c5
    poll(k, 10, 14)
    k.e("s_barrier")
    stamp(k, 9)
    issue_first(k, c, VS, VF, "S", t1=2)
    issue_first(k, c, VS, VF, "SF", pbarrier=False, t0=2)
    steady(k, c, VS, VF, c.T)
    tail_barriers(k, c)
    k.e("s_barrier")
    k.e("s_branch L_fin")
    k.e("L_ld_helper:")
    tail_barriers(k, c2)
    k.e("s_barrier")
    k.e("s_barrier")
    set_flag(k, 9)
    helper(k, "ld")
    p5_setup()
    k.e("s_branch L_ld_p5")

def helper(k, tag):
    mk_srd(k, SRD_A, P_WIN, 7*MB)
    k.e(f"""s_and_b32 s{S_T}, s2, 7
    s_lshr_b32 s{S_T+1}, s2, 3
    s_sub_u32 s{S_T+1}, s{S_T+1}, 28
    s_lshr_b32 s{S_T+2}, s{S_T}, 1
    s_lshl_b32 s{S_T+2}, s{S_T+2}, 2
    s_add_u32 s{S_T+2}, s{S_T+2}, s{S_T+1}
    s_cmp_ge_u32 s{S_T+2}, 14
    s_cbranch_scc1 L_h_pf_{tag}
    s_cmp_ge_u32 s{S_T+2}, 7
    s_cselect_b32 s{S_T+3}, 1, 0
    s_mul_i32 s{S_T+4}, s{S_T+3}, 7
    s_sub_u32 s{S_T+2}, s{S_T+2}, s{S_T+4}
    s_and_b32 s{S_T}, s{S_T}, 1
    s_mul_i32 s{S_T}, s{S_T}, 7
    s_add_u32 s{S_T+2}, s{S_T+2}, s{S_T}
    s_mul_i32 s{S_T+4}, s{S_T+3}, 3584
    s_lshl_b32 s{S_T+5}, s{S_T+2}, 8
    s_add_u32 s{S_T+4}, s{S_T+4}, s{S_T+5}
    s_mul_i32 s{S_T+5}, s{S_WAVE}, {4*7168}
    s_add_u32 s{S_T+4}, s{S_T+4}, s{S_T+5}
    v_lshrrev_b32 v2, 4, v1
    v_mul_u32_u24 v2, 7168, v2
    v_and_b32 v3, 15, v1
    v_lshl_add_u32 v2, v3, 4, v2""")
    for i in range(32):
        k.e(f"buffer_load_dwordx4 v[{64+4*i}:{67+4*i}], v2, {srd(SRD_A)}, s{S_T+4} offen\ns_add_u32 s{S_T+4}, s{S_T+4}, {32*7168}")
    for i in range(32):
        if i % 4 == 0: k.e(f"s_waitcnt vmcnt({28-i})")
        for j in range(4):
            if i == 0: unpack(k, 40+2*j, 41+2*j, 64+j)
            else:
                t = 48+2*(j & 1)
                unpack(k, t, t+1, 64+4*i+j)
                k.e(f"v_pk_add_f32 v[{40+2*j}:{41+2*j}], v[{40+2*j}:{41+2*j}], v[{t}:{t+1}]")
    stamp(k, 10)
    k.e(f"""s_lshl_b32 s{S_T+5}, s{S_WAVE}, 11
    v_lshlrev_b32 v4, 5, v1
    v_add_u32 v4, s{S_T+5}, v4
    ds_write_b128 v4, v[40:43]
    ds_write_b128 v4, v[44:47] offset:16
    s_waitcnt lgkmcnt(0)
    s_barrier
    s_cmp_lg_u32 s{S_WAVE}, 0
    s_cbranch_scc1 L_h_pub_{tag}
    v_lshlrev_b32 v4, 3, v1""")
    for half in range(4):
        for i in range(8): k.e(f"ds_read_b64 v[{64+2*i}:{65+2*i}], v4 offset:{(half*8+i)*512}")
        k.e("s_waitcnt lgkmcnt(0)")
        for i in range(8):
            if half == 0 and i == 0: k.e("v_mov_b32 v40, v64\nv_mov_b32 v41, v65")
            else: k.e(f"v_pk_add_f32 v[40:41], v[40:41], v[{64+2*i}:{65+2*i}]")
    k.e(f"""s_mul_i32 s{S_T+4}, s{S_T+3}, 14
    s_add_u32 s{S_T+4}, s{S_T+4}, s{S_T+2}
    s_lshl_b32 s{S_T+4}, s{S_T+4}, 9
    s_add_u32 s{S_T+4}, s{S_T+4}, {WS_CSW}
    buffer_store_dwordx2 v[40:41], v4, {srd(SRD_W)}, s{S_T+4} offen sc1
    s_mul_i32 s{S_T+4}, s{S_T+2}, {FLS}
    s_lshl_b32 s{S_T+5}, s{S_T+3}, 2
    s_add_u32 s{S_T+4}, s{S_T+4}, s{S_T+5}
    s_add_u32 s{S_T+4}, s{S_T+4}, {F_CS}
    v_mov_b32 v5, s{S_T+4}
    v_mov_b32 v6, 1
    s_waitcnt vmcnt(0)
    s_mov_b64 exec, 1
    buffer_store_dword v6, v5, {srd(SRD_W)}, 0 offen sc1
    s_mov_b64 exec, -1""")
    k.e(f"L_h_pub_{tag}:\ns_barrier")
    k.e(f"L_h_pf_{tag}:")
    stamp(k, 11)
    if OPT.pf:
        mk_srd(k, SRD_A, P_WSP, 8*MB); mk_srd(k, SRD_B, P_WOUT, 1792*2048)
        k.e(f"""s_sub_u32 s{S_T}, s2, 224
        s_lshl_b32 s{S_T+1}, s{S_T}, 18
        s_lshl_b32 s{S_T+2}, s{S_WAVE}, 7
        s_add_u32 s{S_T+1}, s{S_T+1}, s{S_T+2}
        v_lshlrev_b32 v2, 12, v1""")
        for i in range(4): k.e(f"buffer_load_dword v3, v2, {srd(SRD_A)}, s{S_T+1} offen offset:{i*1024}")
        k.e(f"""s_lshl_b32 s{S_T}, s{S_T}, 3
        s_add_u32 s{S_T}, s{S_T}, s{S_WAVE}
        s_mul_i32 s{S_T}, s{S_T}, {112*128}
        s_add_u32 s{S_T+1}, s{S_T}, {48*128}
        v_lshlrev_b32 v2, 7, v1
        buffer_load_dword v3, v2, {srd(SRD_B)}, s{S_T} offen
        buffer_load_dword v3, v2, {srd(SRD_B)}, s{S_T+1} offen
        s_waitcnt vmcnt(0)""")

def gelu_tile(k, a, cs, s):
    G = 4; t = 48
    for g in range(0, 8, G):
        R_ = range(g, g+G)
        for i in R_:
            p = t+2*(i-g); k.e(f"v_pk_mul_f32 v[{p}:{p+1}], v[{cs+2*i}:{cs+2*i+1}], v[{s}:{s+1}] op_sel_hi:[1,0]")
        for i in R_:
            p = t+2*(i-g); y = a+2*i; k.e(f"v_pk_fma_f32 v[{y}:{y+1}], v[{y}:{y+1}], v[{s}:{s+1}], v[{p}:{p+1}] op_sel:[0,1,0] op_sel_hi:[1,1,1]")
        for i in R_:
            p = t+2*(i-g); y = a+2*i; k.e(f"v_pk_mul_f32 v[{p}:{p+1}], v[{y}:{y+1}], v[{y}:{y+1}]")
        for i in R_:
            p = t+2*(i-g); k.e(f"v_pk_fma_f32 v[{p}:{p+1}], v[{p}:{p+1}], s[{S_K+2}:{S_K+3}], v[62:63] op_sel_hi:[1,1,0]")
        for i in R_:
            p = t+2*(i-g); y = a+2*i; k.e(f"v_pk_mul_f32 v[{p}:{p+1}], v[{p}:{p+1}], v[{y}:{y+1}]")
        for j in range(2*G): k.e(f"v_exp_f32 v{t+j}, v{t+j}")
        for i in range(G): k.e(f"v_pk_add_f32 v[{t+2*i}:{t+2*i+1}], v[{t+2*i}:{t+2*i+1}], 1.0 op_sel_hi:[1,0]")
        for j in range(2*G): k.e(f"v_rcp_f32 v{t+j}, v{t+j}")
        for i in R_:
            p = t+2*(i-g); y = a+2*i; k.e(f"v_pk_mul_f32 v[{y}:{y+1}], v[{y}:{y+1}], v[{p}:{p+1}]")

def consumer(k):
    R = Regs(); R.aS = 8; R.aF = 12; R.fr = 16; R.acc = 64
    C0 = -2*LOG2E*0.7978845608028654; C1 = C0*0.044715
    k.e(f"""s_lshl_b32 s{S_T}, s{S_M}, 7
    s_lshl_b32 s{S_T+1}, s{S_N}, 3
    s_add_u32 s{S_T}, s{S_T}, s{S_T+1}
    s_lshl_b32 s{S_T+1}, s{S_WAVE}, 1
    s_add_u32 s{S_T}, s{S_T}, s{S_T+1}
    v_lshrrev_b32 v14, 5, v1
    v_add_u32 v14, s{S_T}, v14
    v_and_b32 v3, 31, v1
    v_lshlrev_b32 v3, 4, v3
    v_lshl_add_u32 v3, v14, 11, v3
    s_waitcnt lgkmcnt(0)""")
    mk_srd(k, SRD_B, P_X, 4*MB)
    for j in range(4): k.e(f"buffer_load_dwordx4 v[{16+4*j}:{19+4*j}], v3, {srd(SRD_B)}, 0 offen offset:{512*j}")
    mk_srd(k, SRD_W, P_WS, WS_END)
    stamp(k, 0)
    k.e(f"s_mov_b32 s{S_K}, {f2u(LOG2E)}\ns_mov_b32 s{S_K+1}, {f2u(LOG2E)}\ns_mov_b32 s{S_K+2}, {f2u(C1)}\ns_mov_b32 s{S_K+3}, {f2u(C1)}")
    c = c1; C = Cons(k, c, R)
    consumer_addr(k, c, R)
    C.zero()
    X = 160
    k.e("s_waitcnt vmcnt(0)")
    for i in range(16): unpack(k, X+2*i, X+2*i+1, 16+i)
    def red32(v):
        for sh in (8, 4, 2, 1):
            k.e(f"s_nop 1\nv_add_f32_dpp v{v}, v{v}, v{v} row_ror:{sh} row_mask:0xf bank_mask:0xf")
        xswap_sum1(k, v, v+1, 16)
    k.e(f"v_pk_add_f32 v[32:33], v[{X}:{X+1}], v[{X+2}:{X+3}]\nv_pk_add_f32 v[34:35], v[{X+4}:{X+5}], v[{X+6}:{X+7}]")
    for i in range(4, 16):
        t = 32+2*(i & 1); k.e(f"v_pk_add_f32 v[{t}:{t+1}], v[{t}:{t+1}], v[{X+2*i}:{X+2*i+1}]")
    k.e("v_pk_add_f32 v[32:33], v[32:33], v[34:35]\nv_add_f32 v32, v32, v33")
    red32(32)
    k.e(f"v_mul_f32 v32, {f2u(1/1024.)}, v32")
    for i in range(16):
        k.e(f"v_pk_add_f32 v[{X+2*i}:{X+2*i+1}], v[{X+2*i}:{X+2*i+1}], v[32:33] op_sel_hi:[1,0] neg_lo:[0,1] neg_hi:[0,1]")
    k.e(f"v_pk_mul_f32 v[34:35], v[{X}:{X+1}], v[{X}:{X+1}]\nv_pk_mul_f32 v[36:37], v[{X+2}:{X+3}], v[{X+2}:{X+3}]")
    for i in range(2, 16):
        t = 34+2*(i & 1); k.e(f"v_pk_fma_f32 v[{t}:{t+1}], v[{X+2*i}:{X+2*i+1}], v[{X+2*i}:{X+2*i+1}], v[{t}:{t+1}]")
    k.e("v_pk_add_f32 v[34:35], v[34:35], v[36:37]\nv_add_f32 v34, v34, v35")
    red32(34)
    k.e("v_mov_b32 v33, v34")
    finish_rstd(k, 32, 1024)
    k.e(f"""v_lshlrev_b32 v14, 2, v14
    s_mov_b32 s{S_T}, {WS_XS}
    s_mov_b32 s{S_T+1}, {WS_XS+8192}
    s_mov_b32 exec_lo, 1
    s_mov_b32 exec_hi, 1
    buffer_store_dword v32, v14, {srd(SRD_W)}, s{S_T} offen sc1
    buffer_store_dword v33, v14, {srd(SRD_W)}, s{S_T+1} offen sc1
    s_mov_b64 exec, -1""")
    k.e("s_barrier")
    stamp(k, 1)
    C.first_reads(); C.loop(16, pre_barrier="vm")
    k.e("s_waitcnt lgkmcnt(0)")
    stamp(k, 2)
    Q0,Q1,K0,K1,V0,V1 = 64,80,96,112,128,144
    WP=16; KB=24; VB=40; PK=160; PQ=192; QB=96
    tr_lane_base(k, 2, 3, 9, rowshift=6, swz=False)
    k.e(f"s_lshl_b32 s{S_T}, s{S_WN}, 11\ns_add_u32 s{S_T}, s{S_T}, {L_WPHI}\nv_add_u32 v2, s{S_T}, v2")
    for cc in range(2):
        for rd in range(2):
            k.e(f"ds_read_b64_tr_b16 v[{WP+4*cc+2*rd}:{WP+4*cc+2*rd+1}], v2 offset:{cc*1024+rd*256}")
    k.e(f"""v_lshrrev_b32 v3, 5, v1
    v_and_b32 v4, 31, v1
    s_lshl_b32 s{S_T}, s{S_WM}, 8
    s_add_u32 s{S_T}, s{S_T}, {L_XS}
    v_lshl_add_u32 v5, v4, 2, s{S_T}
    ds_read2st64_b32 v[56:57], v5 offset0:0 offset1:2
    v_add_u32 v6, 128, v5
    ds_read2st64_b32 v[58:59], v6 offset0:0 offset1:2
    s_lshl_b32 s{S_T+1}, s{S_WN}, 7
    s_add_u32 s{S_T+1}, s{S_T+1}, {L_CQ}
    v_lshl_add_u32 v6, v3, 5, s{S_T+1}""")
    for q in range(4): k.e(f"ds_read_b128 v[{160+4*q}:{163+4*q}], v6 offset:{256 + (q>>1)*64 + (q&1)*16}")
    for q in range(4): k.e(f"ds_read_b128 v[{176+4*q}:{179+4*q}], v6 offset:{(q>>1)*64 + (q&1)*16}")
    k.e(f"""v_and_b32 v7, 0x13, v4
    v_bfe_u32 v9, v4, 2, 1
    v_lshl_or_b32 v7, v9, 3, v7
    v_bfe_u32 v9, v4, 3, 1
    v_lshl_or_b32 v7, v9, 2, v7
    v_lshl_add_u32 v7, v7, 2, s{S_T+1}
    s_waitcnt lgkmcnt(4)
    ds_read_b32 v60, v7 offset:512
    v_lshl_add_u32 v15, v3, 4, s{S_T}""")
    def corrT(a, cs, s):
        for g in range(0, 8, 4):
            for i in range(g, g+4):
                p = 48+2*(i-g); k.e(f"v_pk_mul_f32 v[{p}:{p+1}], v[{cs+2*i}:{cs+2*i+1}], v[{s}:{s+1}] op_sel_hi:[1,0]")
            for i in range(g, g+4):
                p = 48+2*(i-g); y = a+2*i; k.e(f"v_pk_fma_f32 v[{y}:{y+1}], v[{y}:{y+1}], v[{s}:{s+1}], v[{p}:{p+1}] op_sel:[0,1,0] op_sel_hi:[1,1,1]")
    corrT(K0, 160, 56); corrT(K1, 160, 58)
    cvt16(k, KB, K0); cvt16(k, KB+8, K1)
    k.e("s_waitcnt lgkmcnt(0)")
    for a in range(4):
        k.e(f"ds_read_b128 v[{192+4*a}:{195+4*a}], v15 offset:{a*32}\nds_read_b128 v[{208+4*a}:{211+4*a}], v15 offset:{512+a*32}")
    corrT(Q0, 176, 56); corrT(Q1, 176, 58)
    for st in range(2):
        k.e(f"{MF} v[{PK+16*st}:{PK+16*st+15}], v[{WP}:{WP+3}], v[{KB+8*st}:{KB+8*st+3}], 0")
        k.e(f"{MF} v[{PK+16*st}:{PK+16*st+15}], v[{WP+4}:{WP+7}], v[{KB+8*st+4}:{KB+8*st+7}], v[{PK+16*st}:{PK+16*st+15}]")
    cvt16(k, QB, Q0); cvt16(k, QB+8, Q1)
    def corrN(a):
        for i in range(8): k.e(f"v_pk_mul_f32 v[{192+2*i}:{193+2*i}], v[{192+2*i}:{193+2*i}], v[60:61] op_sel_hi:[1,0]")
        for i in range(8): k.e(f"v_pk_fma_f32 v[{a+2*i}:{a+2*i+1}], v[{a+2*i}:{a+2*i+1}], v[{208+2*i}:{209+2*i}], v[{192+2*i}:{193+2*i}]")
    k.e("s_waitcnt lgkmcnt(0)")
    corrN(V0)
    for a in range(4):
        k.e(f"ds_read_b128 v[{192+4*a}:{195+4*a}], v15 offset:{128+a*32}\nds_read_b128 v[{208+4*a}:{211+4*a}], v15 offset:{640+a*32}")
    cvt16(k, VB, V0)
    k.e(f"""v_lshlrev_b32 v5, 2, v3
    v_xor_b32 v4, v4, v5
    v_lshlrev_b32 v4, 4, v4
    v_lshl_add_u32 v4, v3, 9, v4
    s_lshl_b32 s{S_T}, s{S_WN}, 14
    s_lshl_b32 s{S_T+1}, s{S_WM}, 13
    s_add_u32 s{S_T+2}, s{S_T}, s{S_T+1}
    v_add_u32 v4, s{S_T+2}, v4
    v_xor_b32 v5, 128, v4
    v_lshlrev_b32 v7, 4, v1
    s_lshl_b32 s{S_T+3}, s{S_WN}, 13
    v_add_u32 v6, s{S_T+3}, v7
    s_lshl_b32 s{S_T+4}, s{S_WM}, 12
    v_add_u32 v9, s{S_T+4}, v6
    s_waitcnt lgkmcnt(0)""")
    corrN(V1)
    cvt16(k, VB+8, V1)
    for st in range(2):
        k.e(f"{MF} v[{PQ+16*st}:{PQ+16*st+15}], v[{WP}:{WP+3}], v[{QB+8*st}:{QB+8*st+3}], 0")
        k.e(f"{MF} v[{PQ+16*st}:{PQ+16*st+15}], v[{WP+4}:{WP+7}], v[{QB+8*st+4}:{QB+8*st+7}], v[{PQ+16*st}:{PQ+16*st+15}]")
    for i in range(4):
        k.e(f"ds_write_b128 v9, v[{VB+4*i}:{VB+4*i+3}] offset:{L_VX+i*1024}")
    EP=64; EN=80; T=56; OP=112; ON=120
    for st in range(2):
        o = 16*st
        softmax_pm(k, PK+16*st, EP, EN, T, OP+o, ON+o)
        k.e(f"""ds_write_b128 v4, v[{OP+o}:{OP+o+3}] offset:{L_PHK+st*4096}
        ds_write_b128 v5, v[{OP+o+4}:{OP+o+7}] offset:{L_PHK+st*4096+1024}
        ds_write_b128 v4, v[{ON+o}:{ON+o+3}] offset:{L_PHK+st*4096+2048}
        ds_write_b128 v5, v[{ON+o+4}:{ON+o+7}] offset:{L_PHK+st*4096+3072}""")
    blk_tr_base(k, 10, 2, 3, 2)
    k.e(f"""s_lshl_b32 s{S_T+1}, s{S_WM}, 11
    s_add_u32 s{S_T+1}, s{S_T+1}, s{S_T}
    v_add_u32 v10, s{S_T+1}, v10
    v_xor_b32 v11, 128, v10""")
    ONES=24
    for i in range(4): k.e(f"v_mov_b32 v{ONES+i}, 0x3f803f80")
    k.e("s_waitcnt lgkmcnt(0)\ns_barrier")
    stamp(k, 3)
    AF=64; VF_=128; KV=160; ZZ=176
    for half in range(2):
        for kc in range(4*half, 4*half+4):
            off = L_PHK + (kc>>1)*4096 + (kc&1)*256
            k.e(f"""ds_read_b64_tr_b16 v[{AF+4*kc}:{AF+4*kc+1}], v10 offset:{off}
            ds_read_b64_tr_b16 v[{AF+4*kc+2}:{AF+4*kc+3}], v11 offset:{off}
            ds_read_b128 v[{VF_+4*kc}:{VF_+4*kc+3}], v6 offset:{L_VX+kc*1024}""")
        for kc in range(4*half, 4*half+4):
            k.e(f"s_waitcnt lgkmcnt({3*(4*half+3-kc)})")
            cin = "0" if kc == 0 else None
            k.e(f"{MF} v[{KV}:{KV+15}], v[{AF+4*kc}:{AF+4*kc+3}], v[{VF_+4*kc}:{VF_+4*kc+3}], {cin or f'v[{KV}:{KV+15}]'}")
            k.e(f"{MF} v[{ZZ}:{ZZ+15}], v[{AF+4*kc}:{AF+4*kc+3}], v[{ONES}:{ONES+3}], {cin or f'v[{ZZ}:{ZZ+15}]'}")
    k.e(f"""s_lshl_b32 s{S_T+5}, s{S_N}, 1
    s_add_u32 s{S_T+5}, s{S_T+5}, s{S_WN}
    s_lshl_b32 s{S_T+6}, s{S_T+5}, 1
    s_add_u32 s{S_T+6}, s{S_T+6}, s{S_WM}
    s_lshl_b32 s{S_T+6}, s{S_T+6}, 4
    s_add_u32 s{S_T+6}, s{S_T+6}, s{S_M}
    s_lshl_b32 s{S_T+7}, s{S_T+6}, 11
    s_add_u32 s{S_T+7}, s{S_T+7}, {WS_KVP}
    s_lshl_b32 s{S_T+8}, s{S_T+6}, 6
    s_add_u32 s{S_T+8}, s{S_T+8}, {WS_ZP}
    v_lshrrev_b32 v2, 1, v1
    s_nop 2""")
    cvt16(k, 32, KV)
    k.e(f"buffer_store_dwordx4 v[32:35], v7, {srd(SRD_W)}, s{S_T+7} offen sc1\nbuffer_store_dwordx4 v[36:39], v7, {srd(SRD_W)}, s{S_T+7} offen offset:1024 sc1")
    cvt16(k, 40, ZZ)
    k.e(f"""s_mov_b32 exec_lo, 1
    s_mov_b32 exec_hi, 1
    buffer_store_dwordx4 v[40:43], v2, {srd(SRD_W)}, s{S_T+8} offen sc1
    buffer_store_dwordx4 v[44:47], v2, {srd(SRD_W)}, s{S_T+8} offen offset:32 sc1
    s_mov_b64 exec, -1""")
    PH=128
    softmax_pm(k, PQ, EP, EN, T, PH, PH+8)
    k.e("s_waitcnt vmcnt(0)\ns_barrier")
    stamp(k, 4)
    softmax_pm(k, PQ+16, EP, EN, T, PH+16, PH+24)
    k.e(f"""s_lshl_b32 s{S_T}, s{S_WN}, 12
    v_add_u32 v2, s{S_T}, v7
    v_lshrrev_b32 v3, 5, v1
    v_lshlrev_b32 v3, 4, v3
    s_lshl_b32 s{S_T}, s{S_WN}, 7
    v_add_u32 v3, s{S_T}, v3
    s_lshl_b32 s{S_T}, s{S_M}, 2
    s_lshl_b32 s{S_T+1}, s{S_WM}, 1
    s_add_u32 s{S_T}, s{S_T}, s{S_T+1}
    s_lshl_b32 s{S_T}, s{S_T}, 16
    s_lshl_b32 s{S_T+1}, s{S_T+5}, 11
    s_add_u32 s{S_T}, s{S_T}, s{S_T+1}
    s_add_u32 s{S_T+12}, s{S_T}, {WS_O}
    s_add_u32 s{S_T+13}, s{S_T+12}, 65536""")
    def p25_addr():
        tile_map(k, 4, 8, 16)
        k.e(f"""s_lshl_b32 s{S_T}, s{S_M}, 2
        s_add_u32 s{S_T}, s{S_T}, s{S_WAVE}
        s_lshl_b32 s{S_T+1}, s{S_T}, 16
        s_lshl_b32 s{S_T+2}, s{S_N}, 7
        s_add_u32 s{S_T+2}, s{S_T+2}, s{S_T+1}
        v_and_b32 v4, 31, v1
        v_lshlrev_b32 v14, 11, v4
        v_lshrrev_b32 v5, 5, v1
        v_lshl_add_u32 v14, v5, 4, v14
        v_add_u32 v14, s{S_T+2}, v14""")
    p25_addr()
    RS = 224
    for i in range(4): k.e(f"buffer_load_dwordx4 v[{RS+4*i}:{RS+4*i+3}], v14, {srd(SRD_B)}, 0 offen offset:{32*i}")
    k.e(f"""s_lshl_b32 s{S_T+2}, s{S_N}, 12
    s_add_u32 s{S_T+2}, s{S_T+2}, s{S_T+1}
    s_add_u32 s{S_T+2}, s{S_T+2}, {WS_H}
    v_add_u32 v15, s{S_T+2}, v7
    s_lshl_b32 s{S_T}, s{S_T}, 8
    s_lshl_b32 s{S_T+1}, s{S_N}, 14
    s_add_u32 s{S_T}, s{S_T}, s{S_T+1}
    s_add_u32 s{S_T}, s{S_T}, {WS_HST}
    v_lshlrev_b32 v9, 3, v4
    v_add_u32 v9, s{S_T}, v9""")
    k.e("s_barrier\ns_barrier")
    stamp(k, 5)
    KF=16; ZF=32; NUM=64; DEN=96
    for i in range(4):
        k.e(f"ds_read_b128 v[{KF+4*i}:{KF+4*i+3}], v2 offset:{L_KV+i*1024}\nds_read_b128 v[{ZF+4*i}:{ZF+4*i+3}], v3 offset:{L_Z+i*32}")
    k.e("s_waitcnt lgkmcnt(0)")
    for st in range(2):
        for i in range(4):
            b = PH+16*st+4*i
            k.e(f"{MF} v[{DEN+16*st}:{DEN+16*st+15}], v[{ZF+4*i}:{ZF+4*i+3}], v[{b}:{b+3}], {'0' if i==0 else f'v[{DEN+16*st}:{DEN+16*st+15}]'}")
        for i in range(4):
            b = PH+16*st+4*i
            k.e(f"{MF} v[{NUM+16*st}:{NUM+16*st+15}], v[{KF+4*i}:{KF+4*i+3}], v[{b}:{b+3}], {'0' if i==0 else f'v[{NUM+16*st}:{NUM+16*st+15}]'}")
    k.e("s_nop 3")
    for st in range(2):
        d = DEN+16*st; n = NUM+16*st
        k.e(f"v_add_f32 v{d}, {f2u(1e-6)}, v{d}\nv_rcp_f32 v{d}, v{d}\ns_nop 0")
        for i in range(8): k.e(f"v_pk_mul_f32 v[{n+2*i}:{n+2*i+1}], v[{n+2*i}:{n+2*i+1}], v[{d}:{d+1}] op_sel_hi:[1,0]")
        o = 160+8*st
        cvt16(k, o, n)
        k.e(f"buffer_store_dwordx4 v[{o}:{o+3}], v7, {srd(SRD_W)}, s{S_T+12+st} offen sc1\nbuffer_store_dwordx4 v[{o+4}:{o+7}], v7, {srd(SRD_W)}, s{S_T+12+st} offen offset:1024 sc1")
    c = c2; C = Cons(k, c, R)
    consumer_addr(k, c, R); C.zero()
    k.e("s_waitcnt vmcnt(0)\ns_barrier")
    stamp(k, 6)
    k.e("s_barrier\ns_barrier")
    stamp(k, 7)
    C.first_reads(); C.loop(16)
    k.e("s_waitcnt lgkmcnt(0)")
    stamp(k, 8)
    k.e("s_nop 7\ns_nop 3")
    A = 64
    for i in range(16):
        t = 16 + 2*(i & 1)
        unpack(k, t, t+1, RS+i)
        k.e(f"v_pk_add_f32 v[{A+2*i}:{A+2*i+1}], v[{A+2*i}:{A+2*i+1}], v[{t}:{t+1}]")
        k.e(f"v_cvt_pk_bf16_f32 v{RS+i}, v{A+2*i}, v{A+2*i+1}")
        if i & 3 == 3:
            j = i >> 2
            k.e(f"buffer_store_dwordx4 v[{RS+4*j}:{RS+3+4*j}], v15, {srd(SRD_W)}, 0 offen offset:{1024*j} sc1")
    for i in range(16): unpack(k, A+2*i, A+2*i+1, RS+i)
    k.e(f"v_pk_add_f32 v[20:21], v[{A}:{A+1}], v[{A+2}:{A+3}]\nv_pk_add_f32 v[22:23], v[{A+4}:{A+5}], v[{A+6}:{A+7}]")
    for i in range(4, 16):
        t = 20 + 2*(i & 1); k.e(f"v_pk_add_f32 v[{t}:{t+1}], v[{t}:{t+1}], v[{A+2*i}:{A+2*i+1}]")
    k.e("v_pk_add_f32 v[20:21], v[20:21], v[22:23]\nv_add_f32 v20, v20, v21")
    xswap_sum1(k, 20, 21)
    k.e(f"v_mul_f32 v20, {f2u(1/64.)}, v20")
    for i in range(16):
        k.e(f"v_pk_add_f32 v[{A+2*i}:{A+2*i+1}], v[{A+2*i}:{A+2*i+1}], v[20:21] op_sel_hi:[1,0] neg_lo:[0,1] neg_hi:[0,1]")
    k.e(f"v_pk_mul_f32 v[22:23], v[{A}:{A+1}], v[{A}:{A+1}]\nv_pk_mul_f32 v[24:25], v[{A+2}:{A+3}], v[{A+2}:{A+3}]")
    for i in range(2, 16):
        t = 22 + 2*(i & 1); k.e(f"v_pk_fma_f32 v[{t}:{t+1}], v[{A+2*i}:{A+2*i+1}], v[{A+2*i}:{A+2*i+1}], v[{t}:{t+1}]")
    k.e("v_pk_add_f32 v[22:23], v[22:23], v[24:25]\nv_add_f32 v22, v22, v23")
    xswap_sum1(k, 22, 23)
    k.e(f"""v_mov_b32 v21, v22
    s_mov_b32 exec_hi, 0
    buffer_store_dwordx2 v[20:21], v9, {srd(SRD_W)}, 0 offen sc1
    s_mov_b32 exec_hi, -1""")
    k.e("s_cmp_ge_u32 s2, 224\ns_cbranch_scc1 L_c_helper")
    c = c3
    tile_map(k, 4, 7, 14)
    Ra = Regs(); Ra.aS = 8; Ra.aF = 12; Ra.fr = 16; Ra.acc = 128
    Ca = Cons(k, c, Ra); Cb = Cons(k, c, R)
    k.e("s_waitcnt vmcnt(1)\ns_barrier")
    consumer_addr(k, c, R); Ca.zero()
    stamp(k, 9)
    Cb.zero()
    mk_srd(k, SRD_A, P_BSP, 4096)
    k.e(f"""v_and_b32 v14, 31, v1
    v_lshlrev_b32 v2, 1, v14
    s_lshl_b32 s{S_T+2}, s{S_M}, 8
    s_lshl_b32 s{S_T+3}, s{S_WM}, 7
    s_add_u32 s{S_T+2}, s{S_T+2}, s{S_T+3}
    buffer_load_ushort v240, v2, {srd(SRD_A)}, s{S_T+2} offen
    buffer_load_ushort v242, v2, {srd(SRD_A)}, s{S_T+2} offen offset:64
    s_lshl_b32 s{S_T}, s{S_WM}, 6
    v_add_u32 v14, s{S_T}, v14
    v_lshlrev_b32 v14, 3, v14
    v_add_u32 v14, {L_HS}, v14
    v_lshrrev_b32 v7, 5, v1
    v_lshlrev_b32 v9, 5, v7
    s_lshl_b32 s{S_T}, s{S_WN}, 8
    s_add_u32 s{S_T}, s{S_T}, {L_CS}
    v_add_u32 v9, s{S_T}, v9
    v_mov_b32 v62, {f2u(C0)}
    v_and_b32 v10, 31, v1
    v_lshlrev_b32 v11, 2, v7
    v_xor_b32 v10, v10, v11
    v_lshlrev_b32 v10, 4, v10
    v_lshl_add_u32 v10, v7, 9, v10
    v_xor_b32 v11, 128, v10""")
    k.e("s_barrier\ns_waitcnt vmcnt(2)\ns_barrier")
    stamp(k, 10)
    Ca.first_reads(); Ca.loop(16)
    k.e("s_waitcnt lgkmcnt(0)")
    stamp(k, 11)
    CS = 16
    def load_cs(half):
        k.e("ds_read_b64 v[2:3], v14\nds_read_b64 v[4:5], v14 offset:256")
        for ft in range(2):
            for q in range(4):
                k.e(f"ds_read_b128 v[{CS+16*ft+4*q}:{CS+16*ft+4*q+3}], v9 offset:{half*512 + ft*128 + (q>>1)*64 + (q&1)*16}")
        k.e("s_waitcnt lgkmcnt(0)")
    load_cs(1)
    for ft in range(2):
        for st in range(2): gelu_tile(k, Ca.acc(st, ft), CS+16*ft, 2+2*st)
    Cb.first_reads()
    for st in range(2):
        a = Ca.acc(st, 0); b = Ca.acc(st, 1); t = 48+4*st
        k.e(f"v_pk_add_f32 v[{t}:{t+1}], v[{a}:{a+1}], v[{a+2}:{a+3}]\nv_pk_add_f32 v[{t+2}:{t+3}], v[{b}:{b+1}], v[{b+2}:{b+3}]")
        for i in range(2, 8):
            k.e(f"v_pk_add_f32 v[{t}:{t+1}], v[{t}:{t+1}], v[{a+2*i}:{a+2*i+1}]\nv_pk_add_f32 v[{t+2}:{t+3}], v[{t+2}:{t+3}], v[{b+2*i}:{b+2*i+1}]")
        k.e(f"v_pk_add_f32 v[{t}:{t+1}], v[{t}:{t+1}], v[{t+2}:{t+3}]\nv_add_f32 v{56+st}, v{t}, v{t+1}")
    xhalf_sum2(k, 56)
    k.e(f"v_mul_f32 v56, {f2u(1/64.)}, v56\nv_mul_f32 v57, {f2u(1/64.)}, v57")
    for st in range(2):
        sel = "op_sel_hi:[1,0]" if st == 0 else "op_sel:[0,1] op_sel_hi:[1,1]"
        for j, a in enumerate((Ca.acc(st, 0), Ca.acc(st, 1))):
            for i in range(8):
                d = 52+2*(i & 1); u = 48+2*(i & 1)
                k.e(f"v_pk_add_f32 v[{d}:{d+1}], v[{a+2*i}:{a+2*i+1}], v[56:57] {sel} neg_lo:[0,1] neg_hi:[0,1]")
                if j == 0 and i < 2: k.e(f"v_pk_mul_f32 v[{u}:{u+1}], v[{d}:{d+1}], v[{d}:{d+1}]")
                else: k.e(f"v_pk_fma_f32 v[{u}:{u+1}], v[{d}:{d+1}], v[{d}:{d+1}], v[{u}:{u+1}]")
        k.e(f"v_pk_add_f32 v[48:49], v[48:49], v[50:51]\nv_add_f32 v{58+st}, v48, v49")
    xhalf_sum2(k, 58)
    k.e(f"""v_cmp_gt_u32 vcc, 32, v1
    v_lshlrev_b32 v2, 3, v1
    s_lshl_b32 s{S_T}, s{S_WM}, 9
    s_lshl_b32 s{S_T+1}, s{S_WN}, 10
    s_add_u32 s{S_T}, s{S_T}, s{S_T+1}
    s_add_u32 s{S_T}, s{S_T}, {L_ZP}
    v_cndmask_b32 v60, v57, v56, vcc
    v_cndmask_b32 v61, v59, v58, vcc
    v_add_u32 v2, s{S_T}, v2
    ds_write_b64 v2, v[60:61]
    s_lshl_b32 s{S_T+12}, s{S_N}, 19
    s_lshl_b32 s{S_T+1}, s{S_M}, 15
    s_add_u32 s{S_T+12}, s{S_T+12}, s{S_T+1}
    s_lshl_b32 s{S_T+1}, s{S_WM}, 14
    s_add_u32 s{S_T+12}, s{S_T+12}, s{S_T+1}
    s_lshl_b32 s{S_T+1}, s{S_WN}, 12
    s_add_u32 s{S_T+12}, s{S_T+12}, s{S_T+1}
    s_add_u32 s{S_T+12}, s{S_T+12}, {WS_Z2N}
    s_add_u32 s{S_T+13}, s{S_T+12}, 8192
    s_waitcnt lgkmcnt(0)""")
    stamp(k, 12)
    g = OPT.gat
    n1 = g+2-16+1
    Cb.loop(n1)
    k.e(f"ds_read_b64 v[2:3], v14 offset:{L_ZS-L_HS}\nds_read_b64 v[4:5], v14 offset:{L_ZS-L_HS+256}\ns_waitcnt lgkmcnt(0)")
    stamp(k, 13)
    for st in range(2):
        s = 2+2*st
        for ft in range(2):
            a = Ca.acc(st, ft); o = 192 + 8*(ft+2*st)
            for i in range(8):
                k.e(f"v_pk_fma_f32 v[{a+2*i}:{a+2*i+1}], v[{a+2*i}:{a+2*i+1}], v[{s}:{s+1}], v[{s}:{s+1}] op_sel:[0,1,0] op_sel_hi:[1,1,0]")
            cvt16(k, o, a)
            k.e(f"buffer_store_dwordx4 v[{o}:{o+3}], v10, {srd(SRD_W)}, s{S_T+12+st} offen offset:{ft*2048} sc1\nbuffer_store_dwordx4 v[{o+4}:{o+7}], v11, {srd(SRD_W)}, s{S_T+12+st} offen offset:{ft*2048+1024} sc1")
    Cb.loop(1)
    Cb.loop(16-n1-1, pre_barrier="vm")
    k.e("s_waitcnt lgkmcnt(0)")
    stamp(k, 14)
    load_cs(0)
    Z = 192
    for ft in range(2):
        for st in range(2):
            gelu_tile(k, Cb.acc(st, ft), CS+16*ft, 2+2*st)
            cvt16(k, Z+8*(ft*2+st), Cb.acc(st, ft))
    c = c4; C = Cons(k, c, R)
    consumer_addr(k, c, R, slot_from_sgpr=True)
    C.first_reads(); C.zero()
    stamp(k, 15)
    C.loop(32)
    k.e("s_waitcnt lgkmcnt(0)")
    stamp(k, 16)
    k.e(f"""s_lshl_b32 s{S_T}, s{S_M}, 2
    s_lshl_b32 s{S_T+1}, s{S_WM}, 1
    s_add_u32 s{S_T}, s{S_T}, s{S_T+1}
    s_mul_i32 s{S_T}, s{S_T}, 112
    s_lshl_b32 s{S_T+1}, s{S_N}, 3
    s_add_u32 s{S_T}, s{S_T}, s{S_T+1}
    s_lshl_b32 s{S_T+1}, s{S_WN}, 2
    s_add_u32 s{S_T}, s{S_T}, s{S_T+1}
    s_lshl_b32 s{S_T}, s{S_T}, 10
    s_add_u32 s{S_T+12}, s{S_T}, {WS_U}
    s_add_u32 s{S_T+13}, s{S_T+12}, {112*1024}
    v_lshlrev_b32 v240, 16, v240
    v_lshlrev_b32 v242, 16, v242
    v_lshlrev_b32 v15, 4, v1""")
    for ft in range(2):
        for st in range(2):
            a = C.acc(st, ft); z = Z + 8*(ft*2+st); b = 240+2*st; o = 16+8*(ft*2+st)
            for i in range(8):
                t = 52+2*(i & 1)
                k.e(f"v_pk_add_f32 v[{a+2*i}:{a+2*i+1}], v[{a+2*i}:{a+2*i+1}], v[{b}:{b+1}] op_sel_hi:[1,0]")
                unpack(k, t, t+1, z+i)
                k.e(f"v_pk_mul_f32 v[{a+2*i}:{a+2*i+1}], v[{a+2*i}:{a+2*i+1}], v[{t}:{t+1}]")
            cvt16(k, o, a)
            k.e(f"buffer_store_dwordx4 v[{o}:{o+3}], v15, {srd(SRD_W)}, s{S_T+12+st} offen offset:{ft*2048} sc1\nbuffer_store_dwordx4 v[{o+4}:{o+7}], v15, {srd(SRD_W)}, s{S_T+12+st} offen offset:{ft*2048+1024} sc1")
    k.e("s_waitcnt vmcnt(0)\ns_barrier")
    stamp(k, 17)
    k.e("L_c_p5:")
    c = c5; C = Cons(k, c, R)
    p25_addr()
    consumer_addr(k, c, R); C.zero()
    mk_srd(k, SRD_B, P_OUT, 4*MB)
    k.e("s_barrier\ns_barrier")
    stamp(k, 18)
    C.first_reads(); C.loop(28)
    k.e("s_waitcnt lgkmcnt(0)")
    stamp(k, 19)
    k.e("s_nop 7\ns_nop 3")
    for i in range(16):
        t = 16 + 2*(i & 1)
        unpack(k, t, t+1, RS+i)
        k.e(f"v_pk_add_f32 v[{A+2*i}:{A+2*i+1}], v[{A+2*i}:{A+2*i+1}], v[{t}:{t+1}]")
        k.e(f"v_cvt_pk_bf16_f32 v{32+i}, v{A+2*i}, v{A+2*i+1}")
        if i & 3 == 3:
            j = i >> 2
            k.e(f"buffer_store_dwordx4 v[{32+4*j}:{35+4*j}], v14, {srd(SRD_B)}, 0 offen offset:{32*j}")
    k.e("s_branch L_fin")
    k.e("L_c_helper:")
    k.e("s_waitcnt vmcnt(1)\ns_barrier")
    stamp(k, 9)
    helper(k, "c")
    stamp(k, 17)
    k.e("s_branch L_c_p5")

def build():
    k = Kern("p")
    k.e("s_cmp_ge_u32 s2, 256\ns_cbranch_scc1 L_end")
    k.e("s_load_dwordx16 s[32:47], s[0:1], 0\ns_load_dwordx8 s[48:55], s[0:1], 64")
    k.e(f"v_lshrrev_b32 v2, 6, v0\nv_and_b32 v1, 63, v0\nv_readfirstlane_b32 s{S_WAVE}, v2")
    if OPT.stamps: k.e("v_mov_b32 v255, 0")
    tile_map(k, 8, 4, 16)
    k.e(f"s_cmp_lt_u32 s{S_WAVE}, 4\ns_cbranch_scc1 L_cons")
    loader(k)
    k.e("L_cons:")
    consumer(k)
    k.e("L_fin:")
    if OPT.stamps:
        k.e("s_waitcnt vmcnt(0)")
        stamp(k, 20)
        mk_srd(k, SRD_D, P_WS, MB, WS_END)
        k.e(f"""s_lshl_b32 s{S_T}, s2, 3
        s_add_u32 s{S_T}, s{S_T}, s{S_WAVE}
        s_lshl_b32 s{S_T}, s{S_T}, 8
        v_lshlrev_b32 v2, 2, v1
        buffer_store_dword v255, v2, {srd(SRD_D)}, s{S_T} offen""")
        if OPT.dbgout:
            mk_srd(k, SRD_D, P_DBG, 256)
            sel = [1,2,5,7,8,10,11,14,15,16,18,19,20]
            dst = [1,2,3,4,5,6,7,9,10,11,12,13,14]
            k.e(f"s_cmp_lg_u32 s2, {OPT.dbgout}\ns_cbranch_scc1 L_nodbg\ns_cmp_lg_u32 s{S_WAVE}, 0\ns_cbranch_scc1 L_nodbg")
            k.e(f"v_readlane_b32 s{S_T}, v255, 0\ns_mov_b64 exec, 1\nv_mov_b32 v2, 0")
            for a, b in zip(sel, dst):
                k.e(f"v_readlane_b32 s{S_T+1}, v255, {a}\ns_nop 3\ns_sub_u32 s{S_T+1}, s{S_T+1}, s{S_T}\nv_mov_b32 v3, s{S_T+1}\nbuffer_store_dword v3, v2, {srd(SRD_D)}, 0 offen offset:{4*b}\ns_nop 1")
            k.e("L_nodbg:")
        if OPT.spin:
            k.e(f"v_readlane_b32 s{S_T}, v255, 0\nL_spin:\ns_memrealtime s[{S_ST}:{S_ST+1}]\ns_waitcnt lgkmcnt(0)\ns_sub_u32 s{S_T+1}, s{S_ST}, s{S_T}\ns_cmp_lt_u32 s{S_T+1}, {OPT.spin}\ns_cbranch_scc1 L_spin")
    k.e("L_end:\ns_endpgm")
    out = [f"; @launch grid=(256,1,1) block=(512,1,1) lds={L_END}",
           '.amdgcn_target "amdgcn-amd-amdhsa--gfx950"\n.text', header(KNAME) + k.text(), '.section .rodata,"a"', descriptor(KNAME, 256, 100)]
    return "\n".join(out)

if __name__ == "__main__":
    for a in sys.argv[2:]:
        kk, v = a.split("="); setattr(OPT, kk, int(v))
    open(sys.argv[1], "w").write(build())
```

```python
import sys, struct
from core2 import *

MB = 1<<20
WS_O=4*MB; WS_H=8*MB; WS_Z2N=20*MB; WS_U=28*MB
WS_KVP=36*MB; WS_ZP=38*MB; WS_XS=39*MB; WS_CQP=39*MB+65536; WS_HST=40*MB; WS_ZST=41*MB; WS_CSW=41*MB+512*1024
FLS=4352
WS_FLAG=42*MB; F_KV=WS_FLAG; F_O=WS_FLAG+16*FLS; F_H=WS_FLAG+32*FLS; F_Z=WS_FLAG+48*FLS; F_U=WS_FLAG+64*FLS; F_CS=WS_FLAG+80*FLS
WS_END=43*MB
P_X=0; P_WQKV=1; P_WPHI=2; P_WO=3; P_WIN=5; P_WSP=6; P_BSP=7; P_WOUT=8; P_OUT=9; P_DBG=10; P_WS=11
S_M1=92; S_N1=93
L_WPHI=147456; L_XS=L_WPHI+4096; L_CQ=L_XS+1024; L_HS=L_CQ+1024; L_CS=L_HS+1024; L_ZP=L_CS+1024; L_ZS=L_ZP+2048; L_END=L_ZS+1024
KNAME = "sequential_preLN__linear_kernel_hedgehog__mixer_gmlp__prompt_kernel"

def f2u(x): return struct.unpack("<I", struct.pack("<f", x))[0]
LOG2E = 1.4426950408889634
MF = "v_mfma_f32_32x32x16_bf16"

class Opt:
    stamps = 0
    pf = 1
    slp = 2
    dbgout = 0
    early = 0
    outaux = 0
    spin = 0
    gat = 19
OPT = Opt()

def unpack(k, lo, hi, src):
    k.e(f"v_lshlrev_b32 v{lo}, 16, v{src}\nv_and_b32 v{hi}, 0xffff0000, v{src}")
def cvt16(k, dst, src):
    for i in range(8): k.e(f"v_cvt_pk_bf16_f32 v{dst+i}, v{src+2*i}, v{src+2*i+1}")

def stamp(k, i):
    if OPT.stamps:
        k.e(f"s_memrealtime s[{S_ST}:{S_ST+1}]\ns_waitcnt lgkmcnt(0)\nv_writelane_b32 v255, s{S_ST}, {i}")

def check_flags(k, vflag, nflags, val, oklab):
    k.e(f"""v_cmp_{'le' if val > 1 else 'eq'}_u32 vcc, {val}, v{vflag}
    s_and_b32 s{S_T+11}, vcc_lo, {(1<<nflags)-1}
    s_cmp_eq_u32 s{S_T+11}, {(1<<nflags)-1}
    s_cbranch_scc1 {oklab}""")

def poll(k, voff, nflags, srdn=SRD_W, val=1, pre=False):
    top = k.lab("poll"); done = k.lab("polld")
    k.e(f"s_cmp_lg_u32 s{S_LW}, 0\ns_cbranch_scc1 {done}")
    if pre is not False:
        k.e(f"s_waitcnt vmcnt({pre})")
        check_flags(k, 8, nflags, val, done)
    k.e(f"s_mov_b32 s{S_T+10}, 0x40000\n{top}:")
    k.e(f"buffer_load_dword v8, v{voff}, {srd(srdn)}, 0 offen sc1\ns_waitcnt vmcnt(0)")
    check_flags(k, 8, nflags, val, done)
    k.e(f"""s_sleep {OPT.slp}
    s_sub_u32 s{S_T+10}, s{S_T+10}, 1
    s_cmp_lg_u32 s{S_T+10}, 0
    s_cbranch_scc1 {top}""")
    k.e(f"{done}:")

def sample(k, voff):
    sk = k.lab("nosm")
    k.e(f"s_cmp_lg_u32 s{S_LW}, 0\ns_cbranch_scc1 {sk}\nbuffer_load_dword v8, v{voff}, {srd(SRD_W)}, 0 offen sc1\n{sk}:")

def flag_addrs(k, vset, base_set, sline, sidx):
    k.e(f"""s_mul_i32 s{S_T}, s{sline}, {FLS}
    s_lshl_b32 s{S_T+1}, s{sidx}, 2
    s_add_u32 s{S_T}, s{S_T}, s{S_T+1}
    s_add_u32 s{S_T}, s{S_T}, {base_set}
    v_mov_b32 v{vset}, s{S_T}""")
def poll_addr(k, vp, base, sline):
    k.e(f"""s_mul_i32 s{S_T}, s{sline}, {FLS}
    s_add_u32 s{S_T}, s{S_T}, {base}
    v_and_b32 v{vp}, 15, v1
    v_lshlrev_b32 v{vp}, 2, v{vp}
    v_add_u32 v{vp}, s{S_T}, v{vp}""")
def set_flag(k, vset, wave_sgpr=S_LW):
    sk = k.lab("nofl")
    k.e(f"""s_cmp_lg_u32 s{wave_sgpr}, 0
    s_cbranch_scc1 {sk}
    v_mov_b32 v11, 1
    s_mov_b64 exec, 1
    buffer_store_dword v11, v{vset}, {srd(SRD_W)}, 0 offen sc1
    s_mov_b64 exec, -1
    {sk}:""")

def softmax_pm(k, P, EP, EN, T, OP, ON):
    L = S_K
    k.e(f"v_max3_f32 v{T}, v{P}, v{P+1}, v{P+2}\nv_min3_f32 v{T+1}, v{P}, v{P+1}, v{P+2}")
    for i in range(3, 15, 2):
        k.e(f"v_max3_f32 v{T}, v{T}, v{P+i}, v{P+i+1}\nv_min3_f32 v{T+1}, v{T+1}, v{P+i}, v{P+i+1}")
    k.e(f"""v_max_f32 v{T}, v{T}, v{P+15}
    v_max_f32 v{T+1}, -v{T+1}, -v{P+15}
    s_nop 1
    v_permlane32_swap_b32 v{T}, v{T+1}
    v_max_f32 v{T}, v{T}, v{T+1}
    v_mul_f32 v{T}, {f2u(-LOG2E)}, v{T}
    v_mov_b32 v{T+1}, v{T}
    s_nop 1
    v_permlane32_swap_b32 v{T}, v{T+1}""")
    for i in range(8):
        k.e(f"v_pk_fma_f32 v[{EP+2*i}:{EP+2*i+1}], v[{P+2*i}:{P+2*i+1}], s[{L}:{L+1}], v[{T}:{T+1}] op_sel_hi:[1,1,0]")
        k.e(f"v_pk_fma_f32 v[{EN+2*i}:{EN+2*i+1}], v[{P+2*i}:{P+2*i+1}], s[{L}:{L+1}], v[{T}:{T+1}] op_sel:[0,0,1] op_sel_hi:[1,1,1] neg_lo:[0,1,0] neg_hi:[0,1,0]")
    for i in range(16):
        k.e(f"v_exp_f32 v{EP+i}, v{EP+i}\nv_exp_f32 v{EN+i}, v{EN+i}")
    k.e(f"v_pk_add_f32 v[{T}:{T+1}], v[{EP}:{EP+1}], v[{EP+2}:{EP+3}]\nv_pk_add_f32 v[{T+2}:{T+3}], v[{EN}:{EN+1}], v[{EN+2}:{EN+3}]")
    for i in range(2, 8):
        k.e(f"v_pk_add_f32 v[{T}:{T+1}], v[{T}:{T+1}], v[{EP+2*i}:{EP+2*i+1}]\nv_pk_add_f32 v[{T+2}:{T+3}], v[{T+2}:{T+3}], v[{EN+2*i}:{EN+2*i+1}]")
    k.e(f"""v_add_f32 v{T}, v{T}, v{T+1}
    v_add_f32 v{T+1}, v{T+2}, v{T+3}
    s_nop 1
    v_permlane32_swap_b32 v{T}, v{T+1}
    v_add_f32 v{T}, v{T}, v{T+1}
    v_rcp_f32 v{T}, v{T}
    s_nop 0
    v_mov_b32 v{T+1}, v{T}
    s_nop 1
    v_permlane32_swap_b32 v{T}, v{T+1}""")
    for i in range(8):
        k.e(f"v_pk_mul_f32 v[{EP+2*i}:{EP+2*i+1}], v[{EP+2*i}:{EP+2*i+1}], v[{T}:{T+1}] op_sel_hi:[1,0]")
        k.e(f"v_pk_mul_f32 v[{EN+2*i}:{EN+2*i+1}], v[{EN+2*i}:{EN+2*i+1}], v[{T}:{T+1}] op_sel:[0,1] op_sel_hi:[1,1]")
    cvt16(k, OP, EP); cvt16(k, ON, EN)

def xhalf_sum2(k, a):
    k.e(f"""s_nop 1
    v_permlane32_swap_b32 v{a}, v{a+1}
    v_add_f32 v{a}, v{a}, v{a+1}
    v_mov_b32 v{a+1}, v{a}
    s_nop 1
    v_permlane32_swap_b32 v{a}, v{a+1}""")
def xswap_sum1(k, a, t, which=32):
    k.e(f"""v_mov_b32 v{t}, v{a}
    s_nop 1
    v_permlane{which}_swap_b32 v{a}, v{t}
    v_add_f32 v{a}, v{a}, v{t}""")

def combine_half(k, P, n, ntot, cnt, d, t):
    k.e(f"v_pk_add_f32 v[{d}:{d+1}], v[{P}:{P+1}], v[{P+2}:{P+3}]")
    for i in range(2, n): k.e(f"v_pk_add_f32 v[{d}:{d+1}], v[{d}:{d+1}], v[{P+2*i}:{P+2*i+1}]")
    xswap_sum1(k, d, t)
    k.e(f"v_mul_f32 v{d}, {f2u(1.0/ntot)}, v{d}\nv_mov_b32 v{t+1}, 0")
    for i in range(n):
        k.e(f"v_sub_f32 v{t}, v{P+2*i}, v{d}\nv_fmac_f32 v{t+1}, v{t}, v{t}")
    k.e(f"v_fmac_f32 v{d+1}, {f2u(float(cnt))}, v{t+1}")
    xswap_sum1(k, d+1, t)

def finish_rstd(k, d, total):
    k.e(f"""v_mul_f32 v{d+1}, {f2u(1.0/total)}, v{d+1}
    v_add_f32 v{d+1}, {f2u(1e-5)}, v{d+1}
    v_rsq_f32 v{d+1}, v{d+1}
    s_nop 0
    v_mul_f32 v{d}, -v{d}, v{d+1}""")

c1 = Cfg(128,192,16,3,2,2,1, 2048, 6144, [(0,0),(1,0),(2,0)], True, False, orient=['T','T','N'], smode='rows', baseS=0, baseF=49152, kbase='move2')
c2 = Cfg(128,64,16,4,4,1,2, 2048, 2048, [(0,0),(0,1)], False, False, smode='frag', auxS="sc1")
c3 = Cfg(128,128,16,4,2,2,1, 2048, 7168, [(0,0),(0,1)], False, True, smode='frag', auxS="sc1", slot0=2)
c4 = Cfg(128,128,32,4,2,2,1, 4096, 0, [(0,0),(0,1)], False, True, smode='rows', fmode='blk', auxF="sc1")
c5 = Cfg(128,64,28,4,4,1,2, 3584, 2048, [(0,0),(0,1)], False, False, smode='frag', auxS="sc1", baseF=114688, slot0=2)
VS=16; VF=20; VS4=26; VF4=30
L_PHK=0; L_VX=32768; L_KV=49152; L_Z=57344

def tail_barriers(k, c, extra=0, upto=None):
    for r in range(c.NS-1):
        k.e(f"s_waitcnt vmcnt({max(c.NS-2-r,0)*c.nI + extra})\ns_barrier")

def loader(k):
    k.e(f"s_sub_u32 s{S_LW}, s{S_WAVE}, 4\ns_lshl_b32 s{S_M0W}, s{S_LW}, 10")
    c = c1
    k.e(f"s_mov_b32 s{S_KB}, s{S_M}\ns_mov_b32 s{S_PH}, s{S_N}\ns_lshl_b32 s{S_T0}, s{S_N}, 7")
    loader_voff_S(k, c, VS)
    loader_voff_F(k, c, VF, S_T0, lambda P: P*2048)
    k.e("s_waitcnt lgkmcnt(0)")
    mk_srd(k, SRD_S, P_X, 4*MB); mk_srd(k, SRD_F, P_WQKV, 6*MB)
    mk_srd(k, SRD_W, P_WS, WS_END); mk_srd(k, SRD_A, P_WPHI, 65536); mk_srd(k, SRD_D, P_DBG, 256)
    stamp(k, 0)
    issue_first(k, c, VS, VF, "SF")
    stamp(k, 1)
    k.e(f"""s_lshl_b32 s{S_T}, s{S_N}, 12
    s_add_u32 s{S_T}, s{S_T}, s{S_M0W}
    v_lshlrev_b32 v2, 4, v1
    s_add_u32 m0, s{S_M0W}, {L_WPHI}
    s_nop 0
    buffer_load_dwordx4 v2, {srd(SRD_A)}, s{S_T} offen lds""")
    one(k, c, VS, VF, wait=c.nI+1)
    one(k, c, VS, VF)
    k.e(f"""v_lshrrev_b32 v3, 2, v1
    v_and_b32 v3, 4, v3
    v_xor_b32 v3, v3, v1
    v_lshlrev_b32 v3, 4, v3
    s_lshl_b32 s{S_T}, s{S_LW}, 13
    s_add_u32 s{S_T}, s{S_T}, {c.baseF+2*c.slotF}
    v_add_u32 v3, s{S_T}, v3""")
    for j in range(8): k.e(f"ds_read_b128 v[{64+4*j}:{67+4*j}], v3 offset:{j*1024}")
    k.e("s_waitcnt lgkmcnt(0)")
    one(k, c, VS, VF)
    k.e(f"s_cmp_eq_u32 s{S_LW}, 3\ns_cbranch_scc1 L_init")
    for i in range(4): unpack(k, 40+2*i, 41+2*i, 64+i)
    for j in range(1, 8):
        for i in range(4):
            t = 48+2*(i & 1)
            unpack(k, t, t+1, 64+4*j+i)
            k.e(f"v_pk_add_f32 v[{40+2*i}:{41+2*i}], v[{40+2*i}:{41+2*i}], v[{t}:{t+1}]")
    k.e("s_nop 1")
    for i in range(8): k.e(f"v_add_f32_dpp v{40+i}, v{40+i}, v{40+i} row_ror:8 row_mask:0xf bank_mask:0xf")
    for which in (16, 32):
        for i in range(8): k.e(f"v_mov_b32 v{48+i}, v{40+i}")
        k.e("s_nop 1")
        for i in range(8): k.e(f"v_permlane{which}_swap_b32 v{40+i}, v{48+i}")
        for i in range(8): k.e(f"v_add_f32 v{40+i}, v{40+i}, v{48+i}")
    k.e(f"""s_lshl_b32 s{S_T}, s{S_N}, 4
    s_add_u32 s{S_T}, s{S_T}, s{S_M}
    s_mul_i32 s{S_T}, s{S_T}, 768
    s_lshl_b32 s{S_T+1}, s{S_LW}, 8
    s_add_u32 s{S_T}, s{S_T}, s{S_T+1}
    s_add_u32 s{S_T}, s{S_T}, {WS_CQP}
    v_lshlrev_b32 v3, 5, v1
    s_mov_b64 exec, 0xff
    buffer_store_dwordx4 v[40:43], v3, {srd(SRD_W)}, s{S_T} offen sc1
    buffer_store_dwordx4 v[44:47], v3, {srd(SRD_W)}, s{S_T} offen offset:16 sc1
    s_mov_b64 exec, -1
    s_branch L_init_done""")
    k.e(f"""L_init:
    v_mov_b32 v40, 0
    v_mov_b32 v44, -1
    v_mov_b32 v45, -1
    v_mov_b32 v46, -1
    v_mov_b32 v47, -1
    s_min_u32 s{S_T}, s2, 95
    s_mul_i32 s{S_T}, s{S_T}, {FLS}
    s_add_u32 s{S_T}, s{S_T}, {WS_FLAG}
    s_lshl_b32 s{S_T+2}, s2, 10
    s_add_u32 s{S_T+2}, s{S_T+2}, {WS_HST}
    s_mul_i32 s{S_T+1}, s2, 896
    s_add_u32 s{S_T+1}, s{S_T+1}, {WS_ZST}
    v_lshlrev_b32 v3, 2, v1
    buffer_store_dwordx4 v[44:47], v2, {srd(SRD_W)}, s{S_T+2} offen sc1
    s_mov_b64 exec, 0xffff
    buffer_store_dword v40, v3, {srd(SRD_W)}, s{S_T} offen sc1
    s_mov_b32 exec_lo, -1
    s_mov_b32 exec_hi, 0xffffff
    buffer_store_dwordx4 v[44:47], v2, {srd(SRD_W)}, s{S_T+1} offen sc1
    s_mov_b64 exec, -1
    L_init_done:""")
    steady(k, c, VS, VF, 9)
    k.e(f"""s_cmp_lg_u32 s{S_LW}, 3
    s_cbranch_scc1 L_noarr
    s_and_b32 s{S_T}, s2, 7
    s_lshl_b32 s{S_T}, s{S_T}, 5
    v_mov_b32 v3, s{S_T}
    v_mov_b32 v11, 1
    s_mov_b64 exec, 1
    buffer_atomic_add v11, v3, {srd(SRD_D)}, 0 offen sc1
    s_mov_b64 exec, -1
    L_noarr:""")
    steady(k, c, VS, VF, 15)
    k.e(f"v_lshlrev_b32 v10, 5, v1")
    poll(k, 10, 8, SRD_D, 32)
    k.e(f"v_lshlrev_b32 v10, 2, v1")
    one(k, c, VS, VF)
    k.e(f"""s_lshr_b32 s{S_T}, s{S_LW}, 1
    s_lshl_b32 s{S_T}, s{S_T}, 13
    s_and_b32 s{S_T+1}, s{S_LW}, 1
    s_lshl_b32 s{S_T+1}, s{S_T+1}, 8
    s_add_u32 s{S_T}, s{S_T}, s{S_T+1}
    s_lshl_b32 s{S_T+1}, s{S_M}, 9
    s_add_u32 s{S_T}, s{S_T}, s{S_T+1}
    s_add_u32 s{S_T}, s{S_T}, {WS_XS}
    s_lshl_b32 s{S_T+2}, s{S_LW}, 8
    s_add_u32 m0, s{S_T+2}, {L_XS}
    s_mul_i32 s{S_T+1}, s{S_N}, {16*768}
    buffer_load_dword v10, {srd(SRD_W)}, s{S_T} offen sc1 lds
    s_add_u32 s{S_T+1}, s{S_T+1}, s{S_T+2}
    s_add_u32 s{S_T+1}, s{S_T+1}, {WS_CQP}""")
    for i in range(16):
        k.e(f"buffer_load_dword v{64+i}, v10, {srd(SRD_W)}, s{S_T+1} offen offset:{(i&3)*768} sc1")
        if i & 3 == 3: k.e(f"s_add_u32 s{S_T+1}, s{S_T+1}, 3072")
    npf = 0
    if OPT.pf:
        mk_srd(k, SRD_A, P_WO, 2*MB); mk_srd(k, SRD_B, P_WIN, 7*MB)
        k.e(f"""s_lshl_b32 s{S_T}, s2, 2
        s_add_u32 s{S_T}, s{S_T}, s{S_LW}
        s_lshl_b32 s{S_T+1}, s{S_T}, 11
        s_mul_i32 s{S_T}, s{S_T}, {56*128}
        v_lshlrev_b32 v3, 7, v1
        s_mov_b64 exec, 0xffff
        buffer_load_dword v250, v3, {srd(SRD_A)}, s{S_T+1} offen
        s_mov_b32 exec_lo, -1
        s_mov_b32 exec_hi, 0xffffff
        buffer_load_dword v251, v3, {srd(SRD_B)}, s{S_T} offen
        s_mov_b64 exec, -1""")
        npf = 2
    tail_barriers(k, c, 17+npf)
    k.e(f"s_waitcnt vmcnt({npf})")
    for i in range(1, 8): k.e(f"v_pk_add_f32 v[64:65], v[64:65], v[{64+2*i}:{65+2*i}]")
    k.e(f"""v_add_f32 v64, v64, v65
    s_add_u32 s{S_T+2}, s{S_T+2}, {L_CQ}
    v_add_u32 v3, s{S_T+2}, v10
    ds_write_b32 v3, v64
    s_waitcnt lgkmcnt(0)
    s_barrier""")
    stamp(k, 2)
    k.e(f"s_mov_b32 s{S_M1}, s{S_M}\ns_mov_b32 s{S_N1}, s{S_N}")
    flag_addrs(k, 9, F_KV, S_N1, S_M1); poll_addr(k, 10, F_KV, S_N1); flag_addrs(k, 12, F_O, S_M1, S_N1)
    tile_map(k, 4, 8, 16)
    c = c2
    mk_srd(k, SRD_S, P_WS, 4*MB, WS_O); mk_srd(k, SRD_F, P_WO, 2*MB)
    k.e(f"s_lshl_b32 s{S_T0}, s{S_N}, 7")
    loader_voff_S(k, c, VS); loader_voff_F(k, c, VF, S_T0, lambda P: 0)
    issue_first(k, c, VS, VF, "F", pbarrier=False)
    poll_addr(k, 13, F_O, S_M)
    k.e("s_barrier")
    k.e(f"""s_and_b32 s{S_T}, s{S_LW}, 1
    s_lshr_b32 s{S_T+1}, s{S_LW}, 1
    s_lshl_b32 s{S_T+2}, s{S_N1}, 1
    s_add_u32 s{S_T+2}, s{S_T+2}, s{S_T}
    s_lshl_b32 s{S_T+2}, s{S_T+2}, 1
    s_add_u32 s{S_T+2}, s{S_T+2}, s{S_T+1}
    s_lshl_b32 s{S_T+3}, s{S_T+2}, 15
    s_add_u32 s{S_T+3}, s{S_T+3}, {WS_KVP}
    s_lshl_b32 s{S_T+4}, s{S_T+2}, 10
    s_add_u32 s{S_T+4}, s{S_T+4}, {WS_ZP}
    v_lshlrev_b32 v2, 4, v1
    v_and_b32 v3, 15, v1
    v_lshlrev_b32 v3, 6, v3
    v_lshrrev_b32 v4, 4, v1
    v_lshl_add_u32 v3, v4, 4, v3""")
    k.e("s_barrier")
    set_flag(k, 9)
    poll(k, 10, 16)
    k.e("s_barrier")
    stamp(k, 3)
    k.e(f"buffer_load_dwordx4 v[36:39], v3, {srd(SRD_W)}, s{S_T+4} offen sc1")
    D = 64
    k.e(f"s_lshl_b32 s{S_T+5}, s{S_M1}, 11")
    for mt in range(16):
        k.e(f"s_add_u32 s{S_T+6}, s{S_T+3}, s{S_T+5}")
        for cc in range(2):
            r = D + (mt*2+cc)*4
            k.e(f"buffer_load_dwordx4 v[{r}:{r+3}], v2, {srd(SRD_W)}, s{S_T+6} offen offset:{cc*1024} sc1")
        k.e(f"s_add_u32 s{S_T+5}, s{S_T+5}, 2048\ns_and_b32 s{S_T+5}, s{S_T+5}, 32767")
    k.e("s_waitcnt vmcnt(32)")
    for i in range(4): unpack(k, 40+2*i, 41+2*i, 36+i)
    for sh in (8, 4, 2, 1):
        k.e("s_nop 1")
        for i in range(8): k.e(f"v_add_f32_dpp v{40+i}, v{40+i}, v{40+i} row_ror:{sh} row_mask:0xf bank_mask:0xf")
    for i in range(4): k.e(f"v_cvt_pk_bf16_f32 v{36+i}, v{40+2*i}, v{41+2*i}")
    k.e(f"""s_lshl_b32 s{S_T+5}, s{S_T}, 1
    s_add_u32 s{S_T+5}, s{S_T+5}, s{S_T+1}
    s_lshl_b32 s{S_T+6}, s{S_T+5}, 6
    v_lshlrev_b32 v5, 4, v4
    v_add_u32 v5, s{S_T+6}, v5
    ds_write_b128 v5, v[36:39] offset:{L_Z}
    s_lshl_b32 s{S_T+6}, s{S_T+5}, 11
    v_add_u32 v5, s{S_T+6}, v2""")
    A = 192
    for mt in range(16):
        k.e(f"s_waitcnt vmcnt({30-2*mt})")
        for j in range(8):
            r = D + mt*8 + j
            if mt == 0: unpack(k, A+2*j, A+2*j+1, r)
            else:
                t = 48 + 2*(j & 1)
                unpack(k, t, t+1, r)
                k.e(f"v_pk_add_f32 v[{A+2*j}:{A+2*j+1}], v[{A+2*j}:{A+2*j+1}], v[{t}:{t+1}]")
    cvt16(k, 52, A)
    k.e(f"ds_write_b128 v5, v[52:55] offset:{L_KV}\nds_write_b128 v5, v[56:59] offset:{L_KV+1024}\ns_waitcnt lgkmcnt(0)")
    k.e("s_barrier")
    k.e("s_barrier")
    set_flag(k, 12)
    poll(k, 13, 16)
    k.e("s_barrier")
    stamp(k, 4)
    issue_first(k, c, VS, VF, "S")
    after_split_prologue(k, c, VS, VF, c.nS)
    steady(k, c, VS, VF, c.T)
    flag_addrs(k, 9, F_H, S_M, S_N); poll_addr(k, 10, F_H, S_M)
    k.e("s_cmp_ge_u32 s2, 224\ns_cbranch_scc1 L_ld_helper")
    c = c3
    tile_map(k, 4, 7, 14)
    mk_srd(k, SRD_S, P_WS, 4*MB, WS_H); mk_srd(k, SRD_F, P_WIN, 7*MB)
    k.e(f"s_lshl_b32 s{S_T0}, s{S_N}, 8\ns_mov_b32 s{S_FB}, 3584")
    loader_voff_S(k, c, VS); loader_voff_F(k, c, VF, S_T0, lambda P: P*128)
    k.e(f"s_waitcnt vmcnt({2*c2.nI})\ns_barrier")
    issue_first(k, c, VS, VF, "F", fbase=True, pbarrier=False, t1=2)
    k.e(f"s_waitcnt vmcnt({c2.nI+2*c.nF})\ns_barrier\ns_waitcnt vmcnt({2*c.nF})\ns_barrier")
    loader_voff_S(k, c4, VS4); loader_voff_F(k, c4, VF4)
    k.e("s_barrier")
    k.e("s_barrier")
    set_flag(k, 9)
    poll(k, 10, 16)
    k.e("s_barrier")
    stamp(k, 5)
    issue_first(k, c, VS, VF, "S", t1=2)
    issue_first(k, c, VS, VF, "SF", fbase=True, pbarrier=False, t0=2)
    steady(k, c, VS, VF, 12, fbase=True)
    k.e(f"""v_and_b32 v14, 31, v1
    s_lshl_b32 s{S_T}, s{S_LW}, 5
    v_add_u32 v14, s{S_T}, v14
    v_lshlrev_b32 v14, 3, v14
    v_lshrrev_b32 v15, 5, v1
    v_lshl_add_u32 v3, v15, 17, v14
    s_lshl_b32 s{S_T+12}, s{S_M}, 10
    s_add_u32 s{S_T+12}, s{S_T+12}, {WS_HST}
    v_mov_b32 v13, v3""")
    def hgather():
        k.e(f"s_mov_b32 s{S_T}, s{S_T+12}")
        for i in range(8):
            k.e(f"buffer_load_dwordx2 v[{64+2*i}:{65+2*i}], v13, {srd(SRD_W)}, s{S_T} offen sc1\ns_add_u32 s{S_T}, s{S_T}, 16384")
    def tagcheck(n, ok):
        k.e("v_max_u32 v3, v65, v67")
        for i in range(2, n): k.e(f"v_max_u32 v3, v3, v{65+2*i}")
        k.e(f"v_cmp_eq_u32 vcc, -1, v3\ns_cmp_eq_u64 vcc, 0\ns_cbranch_scc1 {ok}")
    def validated(gather, n, nm):
        tagcheck(n, f"L_{nm}ok")
        k.e(f"s_mov_b32 s{S_T+10}, 0x40000\nL_{nm}spin:")
        gather()
        k.e("s_waitcnt vmcnt(0)")
        tagcheck(n, f"L_{nm}ok")
        k.e(f"s_sleep {OPT.slp}\ns_sub_u32 s{S_T+10}, s{S_T+10}, 1\ns_cmp_lg_u32 s{S_T+10}, 0\ns_cbranch_scc1 L_{nm}spin\nL_{nm}ok:")
    hgather()
    poll_addr(k, 10, F_CS, S_N)
    one(k, c, VS, VF, fbase=True)
    sample(k, 10)
    one(k, c, VS, VF, fbase=True)
    k.e(f"s_waitcnt vmcnt({2*c.nI})")
    validated(hgather, 8, "h")
    combine_half(k, 64, 8, 16, 64, 4, 6); finish_rstd(k, 4, 1024)
    k.e(f"v_add_u32 v3, {L_HS}, v14\nds_write_b64 v3, v[4:5]")
    one(k, c, VS, VF, fbase=True)
    poll(k, 10, 2, pre=2*c.nI)
    one(k, c, VS, VF, fbase=True)
    k.e(f"""s_lshr_b32 s{S_T}, s{S_LW}, 1
    s_mul_i32 s{S_T}, s{S_T}, 14
    s_add_u32 s{S_T}, s{S_T}, s{S_N}
    s_lshl_b32 s{S_T}, s{S_T}, 9
    s_and_b32 s{S_T+1}, s{S_LW}, 1
    s_lshl_b32 s{S_T+1}, s{S_T+1}, 8
    s_add_u32 s{S_T}, s{S_T}, s{S_T+1}
    s_add_u32 s{S_T}, s{S_T}, {WS_CSW}
    s_lshl_b32 s{S_T+2}, s{S_LW}, 8
    s_add_u32 m0, s{S_T+2}, {L_CS}
    v_lshlrev_b32 v3, 2, v1
    buffer_load_dword v3, {srd(SRD_W)}, s{S_T} offen sc1 lds
    s_waitcnt lgkmcnt(0)""")
    k.e(f"s_mov_b32 s{S_TAU}, 0\ns_mov_b32 s{S_FB}, 0")
    steady(k, c, VS, VF, 5, fbase=True)
    stamp(k, 6)
    k.e(f"""v_add_u32 v3, {L_ZP}, v14
    ds_read_b64 v[64:65], v3
    ds_read_b64 v[66:67], v3 offset:1024
    s_mul_i32 s{S_T+12}, s{S_M}, {14*1024}
    s_add_u32 s{S_T+12}, s{S_T+12}, {WS_ZST}
    s_lshl_b32 s{S_T+1}, s{S_N}, 10
    s_add_u32 s{S_T+1}, s{S_T+1}, s{S_T+12}
    s_waitcnt lgkmcnt(0)
    v_add_f32 v4, v64, v66
    v_mul_f32 v4, 0.5, v4
    v_sub_f32 v6, v64, v66
    v_mul_f32 v6, v6, v6
    v_add_f32 v5, v65, v67
    v_fmac_f32 v5, {f2u(32.0)}, v6
    s_mov_b32 exec_hi, 0
    buffer_store_dwordx2 v[4:5], v14, {srd(SRD_W)}, s{S_T+1} offen sc1
    s_mov_b32 exec_hi, -1
    v_mul_u32_u24 v13, {7*1024}, v15
    v_add_u32 v13, v13, v14""")
    g = OPT.gat
    steady(k, c, VS, VF, g-11, fbase=True)
    def zgather():
        k.e(f"s_add_u32 s{S_T+1}, s{S_T+12}, 4096")
        for i in range(7):
            k.e(f"buffer_load_dwordx2 v[{64+2*i}:{65+2*i}], v13, {srd(SRD_W)}, s{S_T+12 if i < 4 else S_T+1} offen offset:{(i&3)*1024} sc1")
    zgather()
    one(k, c, VS, VF, fbase=True)
    k.e(f"s_waitcnt vmcnt({c.nI})")
    validated(zgather, 7, "z")
    stamp(k, 7)
    combine_half(k, 64, 7, 14, 128, 4, 6); finish_rstd(k, 4, 1792)
    k.e(f"v_add_u32 v3, {L_ZS}, v14\nds_write_b64 v3, v[4:5]")
    flag_addrs(k, 9, F_Z, S_N, S_M); poll_addr(k, 10, F_Z, S_N)
    k.e("s_waitcnt lgkmcnt(0)")
    steady(k, c, VS, VF, g+4-11, fbase=True)
    set_flag(k, 9)
    if g+4-11 < 15: steady(k, c, VS, VF, 15, fbase=True)
    sample(k, 10)
    one(k, c, VS, VF, fbase=True)
    poll(k, 10, 16, pre=c.nI)
    stamp(k, 8)
    c = c4
    mk_srd(k, SRD_S, P_WSP, 8*MB); mk_srd(k, SRD_F, P_WS, 7*MB, WS_Z2N)
    k.e(f"s_mov_b32 s{S_TAU}, 0")
    steady(k, c, VS4, VF4, 32)
    flag_addrs(k, 9, F_U, S_M, S_N)
    def p5_setup():
        tile_map(k, 4, 8, 16)
        mk_srd(k, SRD_S, P_WS, 7*MB, WS_U); mk_srd(k, SRD_F, P_WOUT, 1792*2048)
        k.e(f"s_lshl_b32 s{S_T0}, s{S_N}, 7")
        loader_voff_S(k, c5, VS); loader_voff_F(k, c5, VF, S_T0, lambda P: 0)
        issue_first(k, c5, VS, VF, "F", pbarrier=False, t1=2)
        poll_addr(k, 10, F_U, S_M)
    p5_setup()
    tail_barriers(k, c, 2*c5.nF)
    k.e("s_barrier")
    k.e("s_barrier")
    set_flag(k, 9)
    k.e("L_ld_p5:")
    c = c5
    poll(k, 10, 14)
    k.e("s_barrier")
    stamp(k, 9)
    issue_first(k, c, VS, VF, "S", t1=2)
    issue_first(k, c, VS, VF, "SF", pbarrier=False, t0=2)
    steady(k, c, VS, VF, c.T)
    tail_barriers(k, c)
    k.e("s_barrier")
    k.e("s_branch L_fin")
    k.e("L_ld_helper:")
    tail_barriers(k, c2)
    k.e("s_barrier")
    k.e("s_barrier")
    set_flag(k, 9)
    helper(k, "ld")
    p5_setup()
    k.e("s_branch L_ld_p5")

def helper(k, tag):
    mk_srd(k, SRD_A, P_WIN, 7*MB)
    k.e(f"""s_and_b32 s{S_T}, s2, 7
    s_lshr_b32 s{S_T+1}, s2, 3
    s_sub_u32 s{S_T+1}, s{S_T+1}, 28
    s_lshr_b32 s{S_T+2}, s{S_T}, 1
    s_lshl_b32 s{S_T+2}, s{S_T+2}, 2
    s_add_u32 s{S_T+2}, s{S_T+2}, s{S_T+1}
    s_cmp_ge_u32 s{S_T+2}, 14
    s_cbranch_scc1 L_h_pf_{tag}
    s_cmp_ge_u32 s{S_T+2}, 7
    s_cselect_b32 s{S_T+3}, 1, 0
    s_mul_i32 s{S_T+4}, s{S_T+3}, 7
    s_sub_u32 s{S_T+2}, s{S_T+2}, s{S_T+4}
    s_and_b32 s{S_T}, s{S_T}, 1
    s_mul_i32 s{S_T}, s{S_T}, 7
    s_add_u32 s{S_T+2}, s{S_T+2}, s{S_T}
    s_mul_i32 s{S_T+4}, s{S_T+3}, 3584
    s_lshl_b32 s{S_T+5}, s{S_T+2}, 8
    s_add_u32 s{S_T+4}, s{S_T+4}, s{S_T+5}
    s_mul_i32 s{S_T+5}, s{S_WAVE}, {4*7168}
    s_add_u32 s{S_T+4}, s{S_T+4}, s{S_T+5}
    v_lshrrev_b32 v2, 4, v1
    v_mul_u32_u24 v2, 7168, v2
    v_and_b32 v3, 15, v1
    v_lshl_add_u32 v2, v3, 4, v2""")
    for i in range(32):
        k.e(f"buffer_load_dwordx4 v[{64+4*i}:{67+4*i}], v2, {srd(SRD_A)}, s{S_T+4} offen\ns_add_u32 s{S_T+4}, s{S_T+4}, {32*7168}")
    for i in range(32):
        if i % 4 == 0: k.e(f"s_waitcnt vmcnt({28-i})")
        for j in range(4):
            if i == 0: unpack(k, 40+2*j, 41+2*j, 64+j)
            else:
                t = 48+2*(j & 1)
                unpack(k, t, t+1, 64+4*i+j)
                k.e(f"v_pk_add_f32 v[{40+2*j}:{41+2*j}], v[{40+2*j}:{41+2*j}], v[{t}:{t+1}]")
    stamp(k, 10)
    k.e(f"""s_lshl_b32 s{S_T+5}, s{S_WAVE}, 11
    v_lshlrev_b32 v4, 5, v1
    v_add_u32 v4, s{S_T+5}, v4
    ds_write_b128 v4, v[40:43]
    ds_write_b128 v4, v[44:47] offset:16
    s_waitcnt lgkmcnt(0)
    s_barrier
    s_cmp_lg_u32 s{S_WAVE}, 0
    s_cbranch_scc1 L_h_pub_{tag}
    v_lshlrev_b32 v4, 3, v1""")
    for half in range(4):
        for i in range(8): k.e(f"ds_read_b64 v[{64+2*i}:{65+2*i}], v4 offset:{(half*8+i)*512}")
        k.e("s_waitcnt lgkmcnt(0)")
        for i in range(8):
            if half == 0 and i == 0: k.e("v_mov_b32 v40, v64\nv_mov_b32 v41, v65")
            else: k.e(f"v_pk_add_f32 v[40:41], v[40:41], v[{64+2*i}:{65+2*i}]")
    k.e(f"""s_mul_i32 s{S_T+4}, s{S_T+3}, 14
    s_add_u32 s{S_T+4}, s{S_T+4}, s{S_T+2}
    s_lshl_b32 s{S_T+4}, s{S_T+4}, 9
    s_add_u32 s{S_T+4}, s{S_T+4}, {WS_CSW}
    buffer_store_dwordx2 v[40:41], v4, {srd(SRD_W)}, s{S_T+4} offen sc1
    s_mul_i32 s{S_T+4}, s{S_T+2}, {FLS}
    s_lshl_b32 s{S_T+5}, s{S_T+3}, 2
    s_add_u32 s{S_T+4}, s{S_T+4}, s{S_T+5}
    s_add_u32 s{S_T+4}, s{S_T+4}, {F_CS}
    v_mov_b32 v5, s{S_T+4}
    v_mov_b32 v6, 1
    s_waitcnt vmcnt(0)
    s_mov_b64 exec, 1
    buffer_store_dword v6, v5, {srd(SRD_W)}, 0 offen sc1
    s_mov_b64 exec, -1""")
    k.e(f"L_h_pub_{tag}:\ns_barrier")
    k.e(f"L_h_pf_{tag}:")
    stamp(k, 11)
    if OPT.pf:
        mk_srd(k, SRD_A, P_WSP, 8*MB); mk_srd(k, SRD_B, P_WOUT, 1792*2048)
        k.e(f"""s_sub_u32 s{S_T}, s2, 224
        s_lshl_b32 s{S_T+1}, s{S_T}, 18
        s_lshl_b32 s{S_T+2}, s{S_WAVE}, 7
        s_add_u32 s{S_T+1}, s{S_T+1}, s{S_T+2}
        v_lshlrev_b32 v2, 12, v1""")
        for i in range(4): k.e(f"buffer_load_dword v3, v2, {srd(SRD_A)}, s{S_T+1} offen offset:{i*1024}")
        k.e(f"""s_lshl_b32 s{S_T}, s{S_T}, 3
        s_add_u32 s{S_T}, s{S_T}, s{S_WAVE}
        s_mul_i32 s{S_T}, s{S_T}, {112*128}
        s_add_u32 s{S_T+1}, s{S_T}, {48*128}
        v_lshlrev_b32 v2, 7, v1
        buffer_load_dword v3, v2, {srd(SRD_B)}, s{S_T} offen
        buffer_load_dword v3, v2, {srd(SRD_B)}, s{S_T+1} offen
        s_waitcnt vmcnt(0)""")

def gelu_tile(k, a, cs, s):
    G = 4; t = 48
    for g in range(0, 8, G):
        R_ = range(g, g+G)
        for i in R_:
            p = t+2*(i-g); k.e(f"v_pk_mul_f32 v[{p}:{p+1}], v[{cs+2*i}:{cs+2*i+1}], v[{s}:{s+1}] op_sel_hi:[1,0]")
        for i in R_:
            p = t+2*(i-g); y = a+2*i; k.e(f"v_pk_fma_f32 v[{y}:{y+1}], v[{y}:{y+1}], v[{s}:{s+1}], v[{p}:{p+1}] op_sel:[0,1,0] op_sel_hi:[1,1,1]")
        for i in R_:
            p = t+2*(i-g); y = a+2*i; k.e(f"v_pk_mul_f32 v[{p}:{p+1}], v[{y}:{y+1}], v[{y}:{y+1}]")
        for i in R_:
            p = t+2*(i-g); k.e(f"v_pk_fma_f32 v[{p}:{p+1}], v[{p}:{p+1}], s[{S_K+2}:{S_K+3}], v[62:63] op_sel_hi:[1,1,0]")
        for i in R_:
            p = t+2*(i-g); y = a+2*i; k.e(f"v_pk_mul_f32 v[{p}:{p+1}], v[{p}:{p+1}], v[{y}:{y+1}]")
        for j in range(2*G): k.e(f"v_exp_f32 v{t+j}, v{t+j}")
        for i in range(G): k.e(f"v_pk_add_f32 v[{t+2*i}:{t+2*i+1}], v[{t+2*i}:{t+2*i+1}], 1.0 op_sel_hi:[1,0]")
        for j in range(2*G): k.e(f"v_rcp_f32 v{t+j}, v{t+j}")
        for i in R_:
            p = t+2*(i-g); y = a+2*i; k.e(f"v_pk_mul_f32 v[{y}:{y+1}], v[{y}:{y+1}], v[{p}:{p+1}]")

def consumer(k):
    R = Regs(); R.aS = 8; R.aF = 12; R.fr = 16; R.acc = 64
    C0 = -2*LOG2E*0.7978845608028654; C1 = C0*0.044715
    k.e(f"""s_lshl_b32 s{S_T}, s{S_M}, 7
    s_lshl_b32 s{S_T+1}, s{S_N}, 3
    s_add_u32 s{S_T}, s{S_T}, s{S_T+1}
    s_lshl_b32 s{S_T+1}, s{S_WAVE}, 1
    s_add_u32 s{S_T}, s{S_T}, s{S_T+1}
    v_lshrrev_b32 v14, 5, v1
    v_add_u32 v14, s{S_T}, v14
    v_and_b32 v3, 31, v1
    v_lshlrev_b32 v3, 4, v3
    v_lshl_add_u32 v3, v14, 11, v3
    s_waitcnt lgkmcnt(0)""")
    mk_srd(k, SRD_B, P_X, 4*MB)
    for j in range(4): k.e(f"buffer_load_dwordx4 v[{16+4*j}:{19+4*j}], v3, {srd(SRD_B)}, 0 offen offset:{512*j}")
    mk_srd(k, SRD_W, P_WS, WS_END)
    stamp(k, 0)
    k.e(f"s_mov_b32 s{S_K}, {f2u(LOG2E)}\ns_mov_b32 s{S_K+1}, {f2u(LOG2E)}\ns_mov_b32 s{S_K+2}, {f2u(C1)}\ns_mov_b32 s{S_K+3}, {f2u(C1)}")
    c = c1; C = Cons(k, c, R)
    consumer_addr(k, c, R)
    C.zero()
    X = 160
    k.e("s_waitcnt vmcnt(0)")
    for i in range(16): unpack(k, X+2*i, X+2*i+1, 16+i)
    def red32(v):
        for sh in (8, 4, 2, 1):
            k.e(f"s_nop 1\nv_add_f32_dpp v{v}, v{v}, v{v} row_ror:{sh} row_mask:0xf bank_mask:0xf")
        xswap_sum1(k, v, v+1, 16)
    k.e(f"v_pk_add_f32 v[32:33], v[{X}:{X+1}], v[{X+2}:{X+3}]\nv_pk_add_f32 v[34:35], v[{X+4}:{X+5}], v[{X+6}:{X+7}]")
    for i in range(4, 16):
        t = 32+2*(i & 1); k.e(f"v_pk_add_f32 v[{t}:{t+1}], v[{t}:{t+1}], v[{X+2*i}:{X+2*i+1}]")
    k.e("v_pk_add_f32 v[32:33], v[32:33], v[34:35]\nv_add_f32 v32, v32, v33")
    red32(32)
    k.e(f"v_mul_f32 v32, {f2u(1/1024.)}, v32")
    for i in range(16):
        k.e(f"v_pk_add_f32 v[{X+2*i}:{X+2*i+1}], v[{X+2*i}:{X+2*i+1}], v[32:33] op_sel_hi:[1,0] neg_lo:[0,1] neg_hi:[0,1]")
    k.e(f"v_pk_mul_f32 v[34:35], v[{X}:{X+1}], v[{X}:{X+1}]\nv_pk_mul_f32 v[36:37], v[{X+2}:{X+3}], v[{X+2}:{X+3}]")
    for i in range(2, 16):
        t = 34+2*(i & 1); k.e(f"v_pk_fma_f32 v[{t}:{t+1}], v[{X+2*i}:{X+2*i+1}], v[{X+2*i}:{X+2*i+1}], v[{t}:{t+1}]")
    k.e("v_pk_add_f32 v[34:35], v[34:35], v[36:37]\nv_add_f32 v34, v34, v35")
    red32(34)
    k.e("v_mov_b32 v33, v34")
    finish_rstd(k, 32, 1024)
    k.e(f"""v_lshlrev_b32 v14, 2, v14
    s_mov_b32 s{S_T}, {WS_XS}
    s_mov_b32 s{S_T+1}, {WS_XS+8192}
    s_mov_b32 exec_lo, 1
    s_mov_b32 exec_hi, 1
    buffer_store_dword v32, v14, {srd(SRD_W)}, s{S_T} offen sc1
    buffer_store_dword v33, v14, {srd(SRD_W)}, s{S_T+1} offen sc1
    s_mov_b64 exec, -1""")
    k.e("s_barrier")
    stamp(k, 1)
    C.first_reads(); C.loop(16, pre_barrier="vm")
    k.e("s_waitcnt lgkmcnt(0)")
    stamp(k, 2)
    Q0,Q1,K0,K1,V0,V1 = 64,80,96,112,128,144
    WP=16; KB=24; VB=40; PK=160; PQ=192; QB=96
    tr_lane_base(k, 2, 3, 9, rowshift=6, swz=False)
    k.e(f"s_lshl_b32 s{S_T}, s{S_WN}, 11\ns_add_u32 s{S_T}, s{S_T}, {L_WPHI}\nv_add_u32 v2, s{S_T}, v2")
    for cc in range(2):
        for rd in range(2):
            k.e(f"ds_read_b64_tr_b16 v[{WP+4*cc+2*rd}:{WP+4*cc+2*rd+1}], v2 offset:{cc*1024+rd*256}")
    k.e(f"""v_lshrrev_b32 v3, 5, v1
    v_and_b32 v4, 31, v1
    s_lshl_b32 s{S_T}, s{S_WM}, 8
    s_add_u32 s{S_T}, s{S_T}, {L_XS}
    v_lshl_add_u32 v5, v4, 2, s{S_T}
    ds_read2st64_b32 v[56:57], v5 offset0:0 offset1:2
    v_add_u32 v6, 128, v5
    ds_read2st64_b32 v[58:59], v6 offset0:0 offset1:2
    s_lshl_b32 s{S_T+1}, s{S_WN}, 7
    s_add_u32 s{S_T+1}, s{S_T+1}, {L_CQ}
    v_lshl_add_u32 v6, v3, 5, s{S_T+1}""")
    for q in range(4): k.e(f"ds_read_b128 v[{160+4*q}:{163+4*q}], v6 offset:{256 + (q>>1)*64 + (q&1)*16}")
    for q in range(4): k.e(f"ds_read_b128 v[{176+4*q}:{179+4*q}], v6 offset:{(q>>1)*64 + (q&1)*16}")
    k.e(f"""v_and_b32 v7, 0x13, v4
    v_bfe_u32 v9, v4, 2, 1
    v_lshl_or_b32 v7, v9, 3, v7
    v_bfe_u32 v9, v4, 3, 1
    v_lshl_or_b32 v7, v9, 2, v7
    v_lshl_add_u32 v7, v7, 2, s{S_T+1}
    s_waitcnt lgkmcnt(4)
    ds_read_b32 v60, v7 offset:512
    v_lshl_add_u32 v15, v3, 4, s{S_T}""")
    def corrT(a, cs, s):
        for g in range(0, 8, 4):
            for i in range(g, g+4):
                p = 48+2*(i-g); k.e(f"v_pk_mul_f32 v[{p}:{p+1}], v[{cs+2*i}:{cs+2*i+1}], v[{s}:{s+1}] op_sel_hi:[1,0]")
            for i in range(g, g+4):
                p = 48+2*(i-g); y = a+2*i; k.e(f"v_pk_fma_f32 v[{y}:{y+1}], v[{y}:{y+1}], v[{s}:{s+1}], v[{p}:{p+1}] op_sel:[0,1,0] op_sel_hi:[1,1,1]")
    corrT(K0, 160, 56); corrT(K1, 160, 58)
    cvt16(k, KB, K0); cvt16(k, KB+8, K1)
    k.e("s_waitcnt lgkmcnt(0)")
    for a in range(4):
        k.e(f"ds_read_b128 v[{192+4*a}:{195+4*a}], v15 offset:{a*32}\nds_read_b128 v[{208+4*a}:{211+4*a}], v15 offset:{512+a*32}")
    corrT(Q0, 176, 56); corrT(Q1, 176, 58)
    for st in range(2):
        k.e(f"{MF} v[{PK+16*st}:{PK+16*st+15}], v[{WP}:{WP+3}], v[{KB+8*st}:{KB+8*st+3}], 0")
        k.e(f"{MF} v[{PK+16*st}:{PK+16*st+15}], v[{WP+4}:{WP+7}], v[{KB+8*st+4}:{KB+8*st+7}], v[{PK+16*st}:{PK+16*st+15}]")
    cvt16(k, QB, Q0); cvt16(k, QB+8, Q1)
    def corrN(a):
        for i in range(8): k.e(f"v_pk_mul_f32 v[{192+2*i}:{193+2*i}], v[{192+2*i}:{193+2*i}], v[60:61] op_sel_hi:[1,0]")
        for i in range(8): k.e(f"v_pk_fma_f32 v[{a+2*i}:{a+2*i+1}], v[{a+2*i}:{a+2*i+1}], v[{208+2*i}:{209+2*i}], v[{192+2*i}:{193+2*i}]")
    k.e("s_waitcnt lgkmcnt(0)")
    corrN(V0)
    for a in range(4):
        k.e(f"ds_read_b128 v[{192+4*a}:{195+4*a}], v15 offset:{128+a*32}\nds_read_b128 v[{208+4*a}:{211+4*a}], v15 offset:{640+a*32}")
    cvt16(k, VB, V0)
    k.e(f"""v_lshlrev_b32 v5, 2, v3
    v_xor_b32 v4, v4, v5
    v_lshlrev_b32 v4, 4, v4
    v_lshl_add_u32 v4, v3, 9, v4
    s_lshl_b32 s{S_T}, s{S_WN}, 14
    s_lshl_b32 s{S_T+1}, s{S_WM}, 13
    s_add_u32 s{S_T+2}, s{S_T}, s{S_T+1}
    v_add_u32 v4, s{S_T+2}, v4
    v_xor_b32 v5, 128, v4
    v_lshlrev_b32 v7, 4, v1
    s_lshl_b32 s{S_T+3}, s{S_WN}, 13
    v_add_u32 v6, s{S_T+3}, v7
    s_lshl_b32 s{S_T+4}, s{S_WM}, 12
    v_add_u32 v9, s{S_T+4}, v6
    s_waitcnt lgkmcnt(0)""")
    corrN(V1)
    cvt16(k, VB+8, V1)
    for st in range(2):
        k.e(f"{MF} v[{PQ+16*st}:{PQ+16*st+15}], v[{WP}:{WP+3}], v[{QB+8*st}:{QB+8*st+3}], 0")
        k.e(f"{MF} v[{PQ+16*st}:{PQ+16*st+15}], v[{WP+4}:{WP+7}], v[{QB+8*st+4}:{QB+8*st+7}], v[{PQ+16*st}:{PQ+16*st+15}]")
    for i in range(4):
        k.e(f"ds_write_b128 v9, v[{VB+4*i}:{VB+4*i+3}] offset:{L_VX+i*1024}")
    EP=64; EN=80; T=56; OP=112; ON=120
    for st in range(2):
        o = 16*st
        softmax_pm(k, PK+16*st, EP, EN, T, OP+o, ON+o)
        k.e(f"""ds_write_b128 v4, v[{OP+o}:{OP+o+3}] offset:{L_PHK+st*4096}
        ds_write_b128 v5, v[{OP+o+4}:{OP+o+7}] offset:{L_PHK+st*4096+1024}
        ds_write_b128 v4, v[{ON+o}:{ON+o+3}] offset:{L_PHK+st*4096+2048}
        ds_write_b128 v5, v[{ON+o+4}:{ON+o+7}] offset:{L_PHK+st*4096+3072}""")
    blk_tr_base(k, 10, 2, 3, 2)
    k.e(f"""s_lshl_b32 s{S_T+1}, s{S_WM}, 11
    s_add_u32 s{S_T+1}, s{S_T+1}, s{S_T}
    v_add_u32 v10, s{S_T+1}, v10
    v_xor_b32 v11, 128, v10""")
    ONES=24
    for i in range(4): k.e(f"v_mov_b32 v{ONES+i}, 0x3f803f80")
    k.e("s_waitcnt lgkmcnt(0)\ns_barrier")
    stamp(k, 3)
    AF=64; VF_=128; KV=160; ZZ=176
    for half in range(2):
        for kc in range(4*half, 4*half+4):
            off = L_PHK + (kc>>1)*4096 + (kc&1)*256
            k.e(f"""ds_read_b64_tr_b16 v[{AF+4*kc}:{AF+4*kc+1}], v10 offset:{off}
            ds_read_b64_tr_b16 v[{AF+4*kc+2}:{AF+4*kc+3}], v11 offset:{off}
            ds_read_b128 v[{VF_+4*kc}:{VF_+4*kc+3}], v6 offset:{L_VX+kc*1024}""")
        for kc in range(4*half, 4*half+4):
            k.e(f"s_waitcnt lgkmcnt({3*(4*half+3-kc)})")
            cin = "0" if kc == 0 else None
            k.e(f"{MF} v[{KV}:{KV+15}], v[{AF+4*kc}:{AF+4*kc+3}], v[{VF_+4*kc}:{VF_+4*kc+3}], {cin or f'v[{KV}:{KV+15}]'}")
            k.e(f"{MF} v[{ZZ}:{ZZ+15}], v[{AF+4*kc}:{AF+4*kc+3}], v[{ONES}:{ONES+3}], {cin or f'v[{ZZ}:{ZZ+15}]'}")
    k.e(f"""s_lshl_b32 s{S_T+5}, s{S_N}, 1
    s_add_u32 s{S_T+5}, s{S_T+5}, s{S_WN}
    s_lshl_b32 s{S_T+6}, s{S_T+5}, 1
    s_add_u32 s{S_T+6}, s{S_T+6}, s{S_WM}
    s_lshl_b32 s{S_T+6}, s{S_T+6}, 4
    s_add_u32 s{S_T+6}, s{S_T+6}, s{S_M}
    s_lshl_b32 s{S_T+7}, s{S_T+6}, 11
    s_add_u32 s{S_T+7}, s{S_T+7}, {WS_KVP}
    s_lshl_b32 s{S_T+8}, s{S_T+6}, 6
    s_add_u32 s{S_T+8}, s{S_T+8}, {WS_ZP}
    v_lshrrev_b32 v2, 1, v1
    s_nop 2""")
    cvt16(k, 32, KV)
    k.e(f"buffer_store_dwordx4 v[32:35], v7, {srd(SRD_W)}, s{S_T+7} offen sc1\nbuffer_store_dwordx4 v[36:39], v7, {srd(SRD_W)}, s{S_T+7} offen offset:1024 sc1")
    cvt16(k, 40, ZZ)
    k.e(f"""s_mov_b32 exec_lo, 1
    s_mov_b32 exec_hi, 1
    buffer_store_dwordx4 v[40:43], v2, {srd(SRD_W)}, s{S_T+8} offen sc1
    buffer_store_dwordx4 v[44:47], v2, {srd(SRD_W)}, s{S_T+8} offen offset:32 sc1
    s_mov_b64 exec, -1""")
    PH=128
    softmax_pm(k, PQ, EP, EN, T, PH, PH+8)
    k.e("s_waitcnt vmcnt(0)\ns_barrier")
    stamp(k, 4)
    softmax_pm(k, PQ+16, EP, EN, T, PH+16, PH+24)
    k.e(f"""s_lshl_b32 s{S_T}, s{S_WN}, 12
    v_add_u32 v2, s{S_T}, v7
    v_lshrrev_b32 v3, 5, v1
    v_lshlrev_b32 v3, 4, v3
    s_lshl_b32 s{S_T}, s{S_WN}, 7
    v_add_u32 v3, s{S_T}, v3
    s_lshl_b32 s{S_T}, s{S_M}, 2
    s_lshl_b32 s{S_T+1}, s{S_WM}, 1
    s_add_u32 s{S_T}, s{S_T}, s{S_T+1}
    s_lshl_b32 s{S_T}, s{S_T}, 16
    s_lshl_b32 s{S_T+1}, s{S_T+5}, 11
    s_add_u32 s{S_T}, s{S_T}, s{S_T+1}
    s_add_u32 s{S_T+12}, s{S_T}, {WS_O}
    s_add_u32 s{S_T+13}, s{S_T+12}, 65536""")
    def p25_addr():
        tile_map(k, 4, 8, 16)
        k.e(f"""s_lshl_b32 s{S_T}, s{S_M}, 2
        s_add_u32 s{S_T}, s{S_T}, s{S_WAVE}
        s_lshl_b32 s{S_T+1}, s{S_T}, 16
        s_lshl_b32 s{S_T+2}, s{S_N}, 7
        s_add_u32 s{S_T+2}, s{S_T+2}, s{S_T+1}
        v_and_b32 v4, 31, v1
        v_lshlrev_b32 v14, 11, v4
        v_lshrrev_b32 v5, 5, v1
        v_lshl_add_u32 v14, v5, 4, v14
        v_add_u32 v14, s{S_T+2}, v14""")
    p25_addr()
    RS = 224
    for i in range(4): k.e(f"buffer_load_dwordx4 v[{RS+4*i}:{RS+4*i+3}], v14, {srd(SRD_B)}, 0 offen offset:{32*i}")
    k.e(f"""s_lshl_b32 s{S_T+2}, s{S_N}, 12
    s_add_u32 s{S_T+2}, s{S_T+2}, s{S_T+1}
    s_add_u32 s{S_T+2}, s{S_T+2}, {WS_H}
    v_add_u32 v15, s{S_T+2}, v7
    s_lshl_b32 s{S_T}, s{S_T}, 8
    s_lshl_b32 s{S_T+1}, s{S_N}, 14
    s_add_u32 s{S_T}, s{S_T}, s{S_T+1}
    s_add_u32 s{S_T}, s{S_T}, {WS_HST}
    v_lshlrev_b32 v9, 3, v4
    v_add_u32 v9, s{S_T}, v9""")
    k.e("s_barrier\ns_barrier")
    stamp(k, 5)
    KF=16; ZF=32; NUM=64; DEN=96
    for i in range(4):
        k.e(f"ds_read_b128 v[{KF+4*i}:{KF+4*i+3}], v2 offset:{L_KV+i*1024}\nds_read_b128 v[{ZF+4*i}:{ZF+4*i+3}], v3 offset:{L_Z+i*32}")
    k.e("s_waitcnt lgkmcnt(0)")
    for st in range(2):
        for i in range(4):
            b = PH+16*st+4*i
            k.e(f"{MF} v[{DEN+16*st}:{DEN+16*st+15}], v[{ZF+4*i}:{ZF+4*i+3}], v[{b}:{b+3}], {'0' if i==0 else f'v[{DEN+16*st}:{DEN+16*st+15}]'}")
        for i in range(4):
            b = PH+16*st+4*i
            k.e(f"{MF} v[{NUM+16*st}:{NUM+16*st+15}], v[{KF+4*i}:{KF+4*i+3}], v[{b}:{b+3}], {'0' if i==0 else f'v[{NUM+16*st}:{NUM+16*st+15}]'}")
    k.e("s_nop 3")
    for st in range(2):
        d = DEN+16*st; n = NUM+16*st
        k.e(f"v_add_f32 v{d}, {f2u(1e-6)}, v{d}\nv_rcp_f32 v{d}, v{d}\ns_nop 0")
        for i in range(8): k.e(f"v_pk_mul_f32 v[{n+2*i}:{n+2*i+1}], v[{n+2*i}:{n+2*i+1}], v[{d}:{d+1}] op_sel_hi:[1,0]")
        o = 160+8*st
        cvt16(k, o, n)
        k.e(f"buffer_store_dwordx4 v[{o}:{o+3}], v7, {srd(SRD_W)}, s{S_T+12+st} offen sc1\nbuffer_store_dwordx4 v[{o+4}:{o+7}], v7, {srd(SRD_W)}, s{S_T+12+st} offen offset:1024 sc1")
    c = c2; C = Cons(k, c, R)
    consumer_addr(k, c, R); C.zero()
    k.e("s_waitcnt vmcnt(0)\ns_barrier")
    stamp(k, 6)
    k.e("s_barrier\ns_barrier")
    stamp(k, 7)
    C.first_reads(); C.loop(16)
    k.e("s_waitcnt lgkmcnt(0)")
    stamp(k, 8)
    k.e("s_nop 7\ns_nop 3")
    A = 64
    for i in range(16):
        t = 16 + 2*(i & 1)
        unpack(k, t, t+1, RS+i)
        k.e(f"v_pk_add_f32 v[{A+2*i}:{A+2*i+1}], v[{A+2*i}:{A+2*i+1}], v[{t}:{t+1}]")
        k.e(f"v_cvt_pk_bf16_f32 v{RS+i}, v{A+2*i}, v{A+2*i+1}")
        if i & 3 == 3:
            j = i >> 2
            k.e(f"buffer_store_dwordx4 v[{RS+4*j}:{RS+3+4*j}], v15, {srd(SRD_W)}, 0 offen offset:{1024*j} sc1")
    for i in range(16): unpack(k, A+2*i, A+2*i+1, RS+i)
    k.e(f"v_pk_add_f32 v[20:21], v[{A}:{A+1}], v[{A+2}:{A+3}]\nv_pk_add_f32 v[22:23], v[{A+4}:{A+5}], v[{A+6}:{A+7}]")
    for i in range(4, 16):
        t = 20 + 2*(i & 1); k.e(f"v_pk_add_f32 v[{t}:{t+1}], v[{t}:{t+1}], v[{A+2*i}:{A+2*i+1}]")
    k.e("v_pk_add_f32 v[20:21], v[20:21], v[22:23]\nv_add_f32 v20, v20, v21")
    xswap_sum1(k, 20, 21)
    k.e(f"v_mul_f32 v20, {f2u(1/64.)}, v20")
    for i in range(16):
        k.e(f"v_pk_add_f32 v[{A+2*i}:{A+2*i+1}], v[{A+2*i}:{A+2*i+1}], v[20:21] op_sel_hi:[1,0] neg_lo:[0,1] neg_hi:[0,1]")
    k.e(f"v_pk_mul_f32 v[22:23], v[{A}:{A+1}], v[{A}:{A+1}]\nv_pk_mul_f32 v[24:25], v[{A+2}:{A+3}], v[{A+2}:{A+3}]")
    for i in range(2, 16):
        t = 22 + 2*(i & 1); k.e(f"v_pk_fma_f32 v[{t}:{t+1}], v[{A+2*i}:{A+2*i+1}], v[{A+2*i}:{A+2*i+1}], v[{t}:{t+1}]")
    k.e("v_pk_add_f32 v[22:23], v[22:23], v[24:25]\nv_add_f32 v22, v22, v23")
    xswap_sum1(k, 22, 23)
    k.e(f"""v_mov_b32 v21, v22
    s_mov_b32 exec_hi, 0
    buffer_store_dwordx2 v[20:21], v9, {srd(SRD_W)}, 0 offen sc1
    s_mov_b32 exec_hi, -1""")
    k.e("s_cmp_ge_u32 s2, 224\ns_cbranch_scc1 L_c_helper")
    c = c3
    tile_map(k, 4, 7, 14)
    Ra = Regs(); Ra.aS = 8; Ra.aF = 12; Ra.fr = 16; Ra.acc = 128
    Ca = Cons(k, c, Ra); Cb = Cons(k, c, R)
    k.e("s_waitcnt vmcnt(1)\ns_barrier")
    consumer_addr(k, c, R); Ca.zero()
    stamp(k, 9)
    Cb.zero()
    mk_srd(k, SRD_A, P_BSP, 4096)
    k.e(f"""v_and_b32 v14, 31, v1
    v_lshlrev_b32 v2, 1, v14
    s_lshl_b32 s{S_T+2}, s{S_M}, 8
    s_lshl_b32 s{S_T+3}, s{S_WM}, 7
    s_add_u32 s{S_T+2}, s{S_T+2}, s{S_T+3}
    buffer_load_ushort v240, v2, {srd(SRD_A)}, s{S_T+2} offen
    buffer_load_ushort v242, v2, {srd(SRD_A)}, s{S_T+2} offen offset:64
    s_lshl_b32 s{S_T}, s{S_WM}, 6
    v_add_u32 v14, s{S_T}, v14
    v_lshlrev_b32 v14, 3, v14
    v_add_u32 v14, {L_HS}, v14
    v_lshrrev_b32 v7, 5, v1
    v_lshlrev_b32 v9, 5, v7
    s_lshl_b32 s{S_T}, s{S_WN}, 8
    s_add_u32 s{S_T}, s{S_T}, {L_CS}
    v_add_u32 v9, s{S_T}, v9
    v_mov_b32 v62, {f2u(C0)}
    v_and_b32 v10, 31, v1
    v_lshlrev_b32 v11, 2, v7
    v_xor_b32 v10, v10, v11
    v_lshlrev_b32 v10, 4, v10
    v_lshl_add_u32 v10, v7, 9, v10
    v_xor_b32 v11, 128, v10""")
    k.e("s_barrier\ns_waitcnt vmcnt(2)\ns_barrier")
    stamp(k, 10)
    Ca.first_reads(); Ca.loop(16)
    k.e("s_waitcnt lgkmcnt(0)")
    stamp(k, 11)
    CS = 16
    def load_cs(half):
        k.e("ds_read_b64 v[2:3], v14\nds_read_b64 v[4:5], v14 offset:256")
        for ft in range(2):
            for q in range(4):
                k.e(f"ds_read_b128 v[{CS+16*ft+4*q}:{CS+16*ft+4*q+3}], v9 offset:{half*512 + ft*128 + (q>>1)*64 + (q&1)*16}")
        k.e("s_waitcnt lgkmcnt(0)")
    load_cs(1)
    for ft in range(2):
        for st in range(2): gelu_tile(k, Ca.acc(st, ft), CS+16*ft, 2+2*st)
    Cb.first_reads()
    for st in range(2):
        a = Ca.acc(st, 0); b = Ca.acc(st, 1); t = 48+4*st
        k.e(f"v_pk_add_f32 v[{t}:{t+1}], v[{a}:{a+1}], v[{a+2}:{a+3}]\nv_pk_add_f32 v[{t+2}:{t+3}], v[{b}:{b+1}], v[{b+2}:{b+3}]")
        for i in range(2, 8):
            k.e(f"v_pk_add_f32 v[{t}:{t+1}], v[{t}:{t+1}], v[{a+2*i}:{a+2*i+1}]\nv_pk_add_f32 v[{t+2}:{t+3}], v[{t+2}:{t+3}], v[{b+2*i}:{b+2*i+1}]")
        k.e(f"v_pk_add_f32 v[{t}:{t+1}], v[{t}:{t+1}], v[{t+2}:{t+3}]\nv_add_f32 v{56+st}, v{t}, v{t+1}")
    xhalf_sum2(k, 56)
    k.e(f"v_mul_f32 v56, {f2u(1/64.)}, v56\nv_mul_f32 v57, {f2u(1/64.)}, v57")
    for st in range(2):
        sel = "op_sel_hi:[1,0]" if st == 0 else "op_sel:[0,1] op_sel_hi:[1,1]"
        for j, a in enumerate((Ca.acc(st, 0), Ca.acc(st, 1))):
            for i in range(8):
                d = 52+2*(i & 1); u = 48+2*(i & 1)
                k.e(f"v_pk_add_f32 v[{d}:{d+1}], v[{a+2*i}:{a+2*i+1}], v[56:57] {sel} neg_lo:[0,1] neg_hi:[0,1]")
                if j == 0 and i < 2: k.e(f"v_pk_mul_f32 v[{u}:{u+1}], v[{d}:{d+1}], v[{d}:{d+1}]")
                else: k.e(f"v_pk_fma_f32 v[{u}:{u+1}], v[{d}:{d+1}], v[{d}:{d+1}], v[{u}:{u+1}]")
        k.e(f"v_pk_add_f32 v[48:49], v[48:49], v[50:51]\nv_add_f32 v{58+st}, v48, v49")
    xhalf_sum2(k, 58)
    k.e(f"""v_cmp_gt_u32 vcc, 32, v1
    v_lshlrev_b32 v2, 3, v1
    s_lshl_b32 s{S_T}, s{S_WM}, 9
    s_lshl_b32 s{S_T+1}, s{S_WN}, 10
    s_add_u32 s{S_T}, s{S_T}, s{S_T+1}
    s_add_u32 s{S_T}, s{S_T}, {L_ZP}
    v_cndmask_b32 v60, v57, v56, vcc
    v_cndmask_b32 v61, v59, v58, vcc
    v_add_u32 v2, s{S_T}, v2
    ds_write_b64 v2, v[60:61]
    s_lshl_b32 s{S_T+12}, s{S_N}, 19
    s_lshl_b32 s{S_T+1}, s{S_M}, 15
    s_add_u32 s{S_T+12}, s{S_T+12}, s{S_T+1}
    s_lshl_b32 s{S_T+1}, s{S_WM}, 14
    s_add_u32 s{S_T+12}, s{S_T+12}, s{S_T+1}
    s_lshl_b32 s{S_T+1}, s{S_WN}, 12
    s_add_u32 s{S_T+12}, s{S_T+12}, s{S_T+1}
    s_add_u32 s{S_T+12}, s{S_T+12}, {WS_Z2N}
    s_add_u32 s{S_T+13}, s{S_T+12}, 8192
    s_waitcnt lgkmcnt(0)""")
    stamp(k, 12)
    g = OPT.gat
    n1 = g+2-16+1
    Cb.loop(n1)
    k.e(f"ds_read_b64 v[2:3], v14 offset:{L_ZS-L_HS}\nds_read_b64 v[4:5], v14 offset:{L_ZS-L_HS+256}\ns_waitcnt lgkmcnt(0)")
    stamp(k, 13)
    for st in range(2):
        s = 2+2*st
        for ft in range(2):
            a = Ca.acc(st, ft); o = 192 + 8*(ft+2*st)
            for i in range(8):
                k.e(f"v_pk_fma_f32 v[{a+2*i}:{a+2*i+1}], v[{a+2*i}:{a+2*i+1}], v[{s}:{s+1}], v[{s}:{s+1}] op_sel:[0,1,0] op_sel_hi:[1,1,0]")
            cvt16(k, o, a)
            k.e(f"buffer_store_dwordx4 v[{o}:{o+3}], v10, {srd(SRD_W)}, s{S_T+12+st} offen offset:{ft*2048} sc1\nbuffer_store_dwordx4 v[{o+4}:{o+7}], v11, {srd(SRD_W)}, s{S_T+12+st} offen offset:{ft*2048+1024} sc1")
    Cb.loop(1)
    Cb.loop(16-n1-1, pre_barrier="vm")
    k.e("s_waitcnt lgkmcnt(0)")
    stamp(k, 14)
    load_cs(0)
    Z = 192
    for ft in range(2):
        for st in range(2):
            gelu_tile(k, Cb.acc(st, ft), CS+16*ft, 2+2*st)
            cvt16(k, Z+8*(ft*2+st), Cb.acc(st, ft))
    c = c4; C = Cons(k, c, R)
    consumer_addr(k, c, R, slot_from_sgpr=True)
    C.first_reads(); C.zero()
    stamp(k, 15)
    C.loop(32)
    k.e("s_waitcnt lgkmcnt(0)")
    stamp(k, 16)
    k.e(f"""s_lshl_b32 s{S_T}, s{S_M}, 2
    s_lshl_b32 s{S_T+1}, s{S_WM}, 1
    s_add_u32 s{S_T}, s{S_T}, s{S_T+1}
    s_mul_i32 s{S_T}, s{S_T}, 112
    s_lshl_b32 s{S_T+1}, s{S_N}, 3
    s_add_u32 s{S_T}, s{S_T}, s{S_T+1}
    s_lshl_b32 s{S_T+1}, s{S_WN}, 2
    s_add_u32 s{S_T}, s{S_T}, s{S_T+1}
    s_lshl_b32 s{S_T}, s{S_T}, 10
    s_add_u32 s{S_T+12}, s{S_T}, {WS_U}
    s_add_u32 s{S_T+13}, s{S_T+12}, {112*1024}
    v_lshlrev_b32 v240, 16, v240
    v_lshlrev_b32 v242, 16, v242
    v_lshlrev_b32 v15, 4, v1""")
    for ft in range(2):
        for st in range(2):
            a = C.acc(st, ft); z = Z + 8*(ft*2+st); b = 240+2*st; o = 16+8*(ft*2+st)
            for i in range(8):
                t = 52+2*(i & 1)
                k.e(f"v_pk_add_f32 v[{a+2*i}:{a+2*i+1}], v[{a+2*i}:{a+2*i+1}], v[{b}:{b+1}] op_sel_hi:[1,0]")
                unpack(k, t, t+1, z+i)
                k.e(f"v_pk_mul_f32 v[{a+2*i}:{a+2*i+1}], v[{a+2*i}:{a+2*i+1}], v[{t}:{t+1}]")
            cvt16(k, o, a)
            k.e(f"buffer_store_dwordx4 v[{o}:{o+3}], v15, {srd(SRD_W)}, s{S_T+12+st} offen offset:{ft*2048} sc1\nbuffer_store_dwordx4 v[{o+4}:{o+7}], v15, {srd(SRD_W)}, s{S_T+12+st} offen offset:{ft*2048+1024} sc1")
    k.e("s_waitcnt vmcnt(0)\ns_barrier")
    stamp(k, 17)
    k.e("L_c_p5:")
    c = c5; C = Cons(k, c, R)
    p25_addr()
    consumer_addr(k, c, R); C.zero()
    mk_srd(k, SRD_B, P_OUT, 4*MB)
    k.e("s_barrier\ns_barrier")
    stamp(k, 18)
    C.first_reads(); C.loop(28)
    k.e("s_waitcnt lgkmcnt(0)")
    stamp(k, 19)
    k.e("s_nop 7\ns_nop 3")
    for i in range(16):
        t = 16 + 2*(i & 1)
        unpack(k, t, t+1, RS+i)
        k.e(f"v_pk_add_f32 v[{A+2*i}:{A+2*i+1}], v[{A+2*i}:{A+2*i+1}], v[{t}:{t+1}]")
        k.e(f"v_cvt_pk_bf16_f32 v{32+i}, v{A+2*i}, v{A+2*i+1}")
        if i & 3 == 3:
            j = i >> 2
            k.e(f"buffer_store_dwordx4 v[{32+4*j}:{35+4*j}], v14, {srd(SRD_B)}, 0 offen offset:{32*j} {['','sc1','nt','sc0 sc1'][OPT.outaux]}")
    k.e("s_branch L_fin")
    k.e("L_c_helper:")
    k.e("s_waitcnt vmcnt(1)\ns_barrier")
    stamp(k, 9)
    helper(k, "c")
    stamp(k, 17)
    k.e("s_branch L_c_p5")

def build():
    k = Kern("p")
    if OPT.early: k.e("s_memrealtime s[94:95]")
    k.e("s_cmp_ge_u32 s2, 256\ns_cbranch_scc1 L_end")
    k.e("s_load_dwordx16 s[32:47], s[0:1], 0\ns_load_dwordx8 s[48:55], s[0:1], 64")
    k.e(f"v_lshrrev_b32 v2, 6, v0\nv_and_b32 v1, 63, v0\nv_readfirstlane_b32 s{S_WAVE}, v2")
    if OPT.stamps: k.e("v_mov_b32 v255, 0")
    tile_map(k, 8, 4, 16)
    k.e(f"s_cmp_lt_u32 s{S_WAVE}, 4\ns_cbranch_scc1 L_cons")
    loader(k)
    k.e("L_cons:")
    consumer(k)
    k.e("L_fin:")
    if OPT.stamps:
        k.e("s_waitcnt vmcnt(0)")
        stamp(k, 20)
        mk_srd(k, SRD_D, P_WS, MB, WS_END)
        k.e(f"""s_lshl_b32 s{S_T}, s2, 3
        s_add_u32 s{S_T}, s{S_T}, s{S_WAVE}
        s_lshl_b32 s{S_T}, s{S_T}, 8
        v_lshlrev_b32 v2, 2, v1
        buffer_store_dword v255, v2, {srd(SRD_D)}, s{S_T} offen""")
        if OPT.dbgout:
            mk_srd(k, SRD_D, P_DBG, 256)
            sel = [1,2,5,7,8,10,11,14,15,16,18,19,20]
            dst = [1,2,3,4,5,6,7,9,10,11,12,13,14]
            k.e(f"s_cmp_lg_u32 s2, {OPT.dbgout}\ns_cbranch_scc1 L_nodbg\ns_cmp_lg_u32 s{S_WAVE}, 0\ns_cbranch_scc1 L_nodbg")
            k.e(f"v_readlane_b32 s{S_T}, v255, 0\ns_mov_b64 exec, 1\nv_mov_b32 v2, 0")
            for a, b in zip(sel, dst):
                k.e(f"v_readlane_b32 s{S_T+1}, v255, {a}\ns_nop 3\ns_sub_u32 s{S_T+1}, s{S_T+1}, s{S_T}\nv_mov_b32 v3, s{S_T+1}\nbuffer_store_dword v3, v2, {srd(SRD_D)}, 0 offen offset:{4*b}\ns_nop 1")
            k.e("L_nodbg:")
        if OPT.spin:
            k.e((f"s_mov_b32 s{S_T}, s94" if OPT.early else f"v_readlane_b32 s{S_T}, v255, 0") + f"\nL_spin:\ns_memrealtime s[{S_ST}:{S_ST+1}]\ns_waitcnt lgkmcnt(0)\ns_sub_u32 s{S_T+1}, s{S_ST}, s{S_T}\ns_cmp_lt_u32 s{S_T+1}, {OPT.spin}\ns_cbranch_scc1 L_spin")
    k.e("L_end:\ns_endpgm")
    out = [f"; @launch grid=(256,1,1) block=(512,1,1) lds={L_END}",
           '.amdgcn_target "amdgcn-amd-amdhsa--gfx950"\n.text', header(KNAME) + k.text(), '.section .rodata,"a"', descriptor(KNAME, 256, 100)]
    return "\n".join(out)

if __name__ == "__main__":
    for a in sys.argv[2:]:
        kk, v = a.split("="); setattr(OPT, kk, int(v))
    open(sys.argv[1], "w").write(build())
```

```python
import math
from core import Kern, header, descriptor, vr, sr, srd, Regs, tr_lane_base, blk_tr_base

S_WAVE=3; S_M=4; S_N=5; S_PH=6; S_T0=7
SRD_S=8; SRD_F=12; SRD_A=16; SRD_B=20; SRD_W=24; SRD_D=28
P0=32
S_T=56
S_WM=72; S_WN=73; S_LW=74; S_KB=75
S_X=76
S_CNT=80; S_SLOT=81; S_DS=82; S_DF=83; S_OS=84; S_OF=85; S_M0W=86; S_TAU=87
S_K=88
S_FB=96
S_ST=98

def ptr(i): return P0 + 2*i

def mk_srd(k, d, p, nbytes, off=0):
    if off:
        k.e(f"s_add_u32 s{d}, s{ptr(p)}, {off}\ns_addc_u32 s{d+1}, s{ptr(p)+1}, 0")
    else:
        k.e(f"s_mov_b32 s{d}, s{ptr(p)}\ns_mov_b32 s{d+1}, s{ptr(p)+1}")
    k.e(f"s_mov_b32 s{d+2}, {nbytes}\ns_mov_b32 s{d+3}, 0x20000")

class Cfg:
    def __init__(self, BM, BN, T, NS, WM, WN, U, strideS, strideF, ftiles, nb_from_wave, panel_from_wave, orient=None,
                 rot=(-1,0,2,-1), pre_mfma=2, smode='rows', fmode='rows', baseS=0, baseF=65536, auxS="", auxF="", kbase=False, slot0=0, own2=False):
        self.BM=BM; self.BN=BN; self.T=T; self.NS=NS; self.WM=WM; self.WN=WN; self.U=U
        self.strideS=strideS; self.strideF=strideF
        self.TM = BM//WM//32
        self.ftiles = ftiles; self.TN = len(ftiles)
        self.nb_from_wave = nb_from_wave; self.panel_from_wave = panel_from_wave
        self.orient = orient or ['T']*self.TN
        self.NP = BN//64
        self.slotS = BM*128; self.slotF = BN*128
        self.nS = BM//16; self.nF = BN//16
        self.nI = self.nS + self.nF
        self.rot = rot; self.pre_mfma = pre_mfma
        self.smode = smode; self.fmode = fmode
        self.baseS = baseS; self.baseF = baseF
        self.auxS = auxS; self.auxF = auxF
        self.slot0 = slot0; self.own2 = own2
        self.kbase = kbase

def tile_map(k, gm, gn, ntn):
    xn = ntn // gn
    lg = int(math.log2(gm)); lx = int(math.log2(xn))
    k.e(f"""s_and_b32 s{S_T}, s2, 7
    s_lshr_b32 s{S_T+1}, s2, 3
    s_and_b32 s{S_T+2}, s{S_T+1}, {gm-1}
    s_lshr_b32 s{S_T+3}, s{S_T+1}, {lg}
    s_lshr_b32 s{S_M}, s{S_T}, {lx}
    s_mul_i32 s{S_M}, s{S_M}, {gm}
    s_add_u32 s{S_M}, s{S_M}, s{S_T+2}
    s_and_b32 s{S_N}, s{S_T}, {xn-1}
    s_mul_i32 s{S_N}, s{S_N}, {gn}
    s_add_u32 s{S_N}, s{S_N}, s{S_T+3}
    s_add_u32 s{S_PH}, s{S_T+2}, s{S_T+3}""")

def loader_voff_S(k, c, vb):
    w = S_LW
    if c.smode == 'rows':
        k.e(f"""v_lshrrev_b32 v2, 3, v1
        v_and_b32 v4, 7, v1
        s_lshl_b32 s{S_T+6}, s{w}, 3
        v_lshrrev_b32 v3, 4, v1
        s_lshl_b32 s{S_T+5}, s{w}, 2
        v_add_u32 v3, s{S_T+5}, v3
        v_xor_b32 v3, v3, v4
        v_lshlrev_b32 v3, 4, v3
        s_mul_i32 s{S_T+5}, s{S_M}, {c.BM}
        s_add_u32 s{S_T+5}, s{S_T+5}, s{S_T+6}
        v_add_u32 v5, s{S_T+5}, v2
        s_mov_b32 s{S_T+7}, {c.strideS}
        v_mul_lo_u32 v5, v5, s{S_T+7}
        v_add_u32 v{vb}, v5, v3""")
        for i in range(1, c.nS):
            k.e(f"v_add_u32 v{vb+i}, {i*16*c.strideS}, v{vb}")
    else:
        k.e(f"""s_mul_i32 s{S_T+5}, s{S_M}, {c.BM*c.strideS}
        s_add_u32 s{S_T+5}, s{S_T+5}, s{S_M0W}
        v_lshlrev_b32 v3, 4, v1
        v_add_u32 v{vb}, s{S_T+5}, v3""")
        for i in range(1, c.nS):
            k.e(f"v_add_u32 v{vb+i}, {(i>>1)*32*c.strideS + (i&1)*2048}, v{vb}")

def loader_voff_F(k, c, vb, colsg=None, panelconst=None):
    w = S_LW
    if c.fmode == 'rows':
        k.e(f"""v_lshrrev_b32 v2, 3, v1
        v_and_b32 v4, 7, v1
        s_lshl_b32 s{S_T+6}, s{w}, 3
        v_lshrrev_b32 v3, 2, v1
        v_and_b32 v3, 4, v3
        v_xor_b32 v3, v3, v4
        v_lshlrev_b32 v3, 4, v3
        v_add_u32 v5, s{S_T+6}, v2
        s_mov_b32 s{S_T+7}, {c.strideF}
        v_mul_lo_u32 v5, v5, s{S_T+7}
        v_add3_u32 v5, v5, v3, s{colsg}""")
        for i in range(c.nF):
            k.e(f"v_add_u32 v{vb+i}, {panelconst(i>>2) + (i&3)*16*c.strideF}, v5")
    else:
        k.e(f"""s_mul_i32 s{S_T+5}, s{S_N}, {c.T*c.BN*128}
        s_add_u32 s{S_T+5}, s{S_T+5}, s{S_M0W}
        v_lshlrev_b32 v3, 4, v1
        v_add_u32 v{vb}, s{S_T+5}, v3""")
        for i in range(1, c.nF):
            k.e(f"v_add_u32 v{vb+i}, {i*2048}, v{vb}")

def kstep(k, c, t):
    src = S_TAU
    if c.kbase is not False:
        q = c.kbase
        k.e(f"""s_cmp_gt_u32 s{S_TAU}, {q}
        s_subb_u32 s{t+1}, s{S_TAU}, 0
        s_cmp_ge_u32 s{t+1}, s{S_KB}
        s_addc_u32 s{t+1}, s{t+1}, 0
        s_cmp_eq_u32 s{S_TAU}, {q}
        s_cselect_b32 s{t+1}, s{S_KB}, s{t+1}""")
        src = t+1
    if c.rot:
        P = len(c.rot); packed = 0
        for u, d in enumerate(c.rot): packed |= ((d+8) & 15) << (4*u)
        k.e(f"""s_sub_u32 s{t}, s{src}, s{S_PH}
        s_and_b32 s{t}, s{t}, {P-1}
        s_lshl_b32 s{t}, s{t}, 2
        s_lshr_b32 s{t}, {packed}, s{t}
        s_and_b32 s{t}, s{t}, 15
        s_add_u32 s{t}, s{t}, s{src}""")
        if c.T & (c.T-1) == 0:
            k.e(f"s_sub_u32 s{t}, s{t}, 8\ns_and_b32 s{t}, s{t}, {c.T-1}")
        else:
            k.e(f"""s_add_u32 s{t}, s{t}, {c.T-8}
            s_sub_u32 s{t+1}, s{t}, {c.T}
            s_cmp_ge_u32 s{t}, {c.T}
            s_cselect_b32 s{t}, s{t+1}, s{t}
            s_sub_u32 s{t+1}, s{t}, {c.T}
            s_cmp_ge_u32 s{t}, {c.T}
            s_cselect_b32 s{t}, s{t+1}, s{t}""")
    else:
        k.e(f"s_mov_b32 s{t}, s{src}")
    if c.own2:
        k.e(f"""s_min_u32 s{t+1}, s{t}, s{S_TAU}
        s_max_u32 s{t+2}, s{t}, s{S_TAU}
        s_cmp_lt_u32 s{t+1}, 2
        s_cselect_b32 s{t+1}, s{t+2}, 0
        s_cmp_ge_u32 s{t+1}, 2
        s_cselect_b32 s{t}, s{S_TAU}, s{t}
        s_add_u32 s{t}, s{t}, s{S_KB}
        s_and_b32 s{t}, s{t}, {c.T-1}""")

def issue(k, c, vS, vF, parts="SF", fbase=False):
    t = S_T+8
    kstep(k, c, t)
    stepS = 7 if c.smode == 'rows' else 12
    stepF = 64*c.strideF if c.fmode == 'rows' else c.BN*128
    if 'S' in parts:
        k.e(f"""s_lshl_b32 s{S_OS}, s{t}, {stepS}
        s_mul_i32 s{t+1}, s{S_SLOT}, {c.slotS}
        s_add_u32 s{t+1}, s{t+1}, s{S_M0W}
        s_add_u32 m0, s{t+1}, {c.baseS}
        {gapi()}""")
        for i in range(c.nS):
            k.e(f"buffer_load_dwordx4 v{vS+i}, {srd(SRD_S)}, s{S_OS} offen {c.auxS} lds")
            if i < c.nS-1: k.e("s_add_u32 m0, m0, 2048\n" + gapi())
    if 'F' in parts:
        k.e(f"""s_mul_i32 s{S_OF}, s{t}, {stepF}
        s_mul_i32 s{t+1}, s{S_SLOT}, {c.slotF}
        s_add_u32 s{t+1}, s{t+1}, s{S_M0W}
        s_add_u32 m0, s{t+1}, {c.baseF}""")
        if fbase: k.e(f"s_add_u32 s{S_OF}, s{S_OF}, s{S_FB}")
        if CAP[0] or not fbase: k.e(gapi())
        for i in range(c.nF):
            k.e(f"buffer_load_dwordx4 v{vF+i}, {srd(SRD_F)}, s{S_OF} offen {c.auxF} lds")
            if i < c.nF-1: k.e("s_add_u32 m0, m0, 2048\n" + gapi())
    k.e(f"""s_add_u32 s{S_TAU}, s{S_TAU}, 1
    s_add_u32 s{S_SLOT}, s{S_SLOT}, 1
    s_cmp_eq_u32 s{S_SLOT}, {c.NS}
    s_cselect_b32 s{S_SLOT}, 0, s{S_SLOT}""")

def issue_first(k, c, vS, vF, parts, fbase=False, pbarrier=True, t0=0, t1=None):
    n = (c.nS if 'S' in parts else 0) + (c.nF if 'F' in parts else 0)
    top = k.lab("if"); l1 = k.lab("if1")
    t1 = c.NS if t1 is None else t1
    k.e(f"s_mov_b32 s{S_TAU}, {t0}\ns_mov_b32 s{S_SLOT}, {(t0+c.slot0) % c.NS}\n{top}:")
    issue(k, c, vS, vF, parts, fbase)
    if pbarrier:
        k.e(f"s_cmp_lg_u32 s{S_TAU}, 2\ns_cbranch_scc1 {l1}\ns_waitcnt vmcnt({n})\ns_barrier\n{l1}:")
    k.e(f"s_cmp_lt_u32 s{S_TAU}, {t1}\ns_cbranch_scc1 {top}")

CAP = [0]
def gapi():
    return f"s_waitcnt vmcnt({CAP[0]})" if CAP[0] else "s_nop 0"
ITST = [0, 254]
def itstamp(k):
    if ITST[0]:
        k.e(f"s_memrealtime s[{S_ST}:{S_ST+1}]\ns_waitcnt lgkmcnt(0)\ns_mov_b32 m0, s97\ns_nop 0\nv_writelane_b32 v{ITST[1]}, s{S_ST}, m0\ns_add_u32 s97, s97, 1")

def steady(k, c, vS, vF, upto, fbase=False, wait=None):
    top = k.lab("st")
    w = (c.NS-2)*c.nI if wait is None else wait
    k.e(f"{top}:\ns_waitcnt vmcnt({w})\ns_barrier")
    itstamp(k)
    issue(k, c, vS, vF, "SF", fbase)
    k.e(f"s_cmp_lt_u32 s{S_TAU}, {upto}\ns_cbranch_scc1 {top}")

def one(k, c, vS, vF, fbase=False, wait=None):
    w = (c.NS-2)*c.nI if wait is None else wait
    k.e(f"s_waitcnt vmcnt({w})\ns_barrier")
    itstamp(k)
    issue(k, c, vS, vF, "SF", fbase)

def after_split_prologue(k, c, vS, vF, first_n, fbase=False):
    for j in range(c.NS-2):
        one(k, c, vS, vF, fbase, wait=(c.NS-2-j)*first_n + j*c.nI)

def consumer_addr(k, c, R, slot_from_sgpr=False):
    wm = S_WM; wn = S_WN
    lw = int(math.log2(c.WN))
    if not slot_from_sgpr and c.slot0:
        k.e(f"s_mov_b32 s{S_SLOT}, {c.slot0}"); slot_from_sgpr = True
    k.e(f"s_lshr_b32 s{wm}, s{S_WAVE}, {lw}\ns_and_b32 s{wn}, s{S_WAVE}, {c.WN-1}")
    k.e(f"s_mul_i32 s{S_T+6}, s{wm}, {c.TM*4096}")
    if c.baseS: k.e(f"s_add_u32 s{S_T+6}, s{S_T+6}, {c.baseS}")
    if slot_from_sgpr: k.e(f"s_mul_i32 s{S_T+7}, s{S_SLOT}, {c.slotS}\ns_add_u32 s{S_T+6}, s{S_T+6}, s{S_T+7}")
    if c.smode == 'rows':
        k.e(f"""v_and_b32 v2, 31, v1
        v_lshrrev_b32 v3, 5, v1
        v_bfe_u32 v4, v1, 1, 3
        v_xor_b32 v4, v4, v3
        v_lshlrev_b32 v4, 4, v4
        v_lshl_add_u32 v4, v2, 7, v4""")
        for kk in range(4):
            k.e(f"v_xor_b32 v{R.aS+kk}, {kk*32}, v4\nv_add_u32 v{R.aS+kk}, s{S_T+6}, v{R.aS+kk}")
    else:
        k.e(f"v_lshlrev_b32 v4, 4, v1\nv_add_u32 v{R.aS}, s{S_T+6}, v4")
    if c.fmode == 'rows':
        tr_lane_base(k, 6, 5, 10)
        if c.nb_from_wave:
            k.e(f"s_lshl_b32 s{S_T+6}, s{wn}, 6\nv_xor_b32 v6, s{S_T+6}, v6")
        if c.panel_from_wave:
            k.e(f"s_lshl_b32 s{S_T+6}, s{wn}, 13\nv_add_u32 v6, s{S_T+6}, v6")
    else:
        blk_tr_base(k, 6, 5, 7, 3)
        k.e(f"s_lshl_b32 s{S_T+6}, s{wn}, 12\nv_add_u32 v6, s{S_T+6}, v6")
    k.e(f"v_xor_b32 v7, 64, v6\ns_mov_b32 s{S_T+6}, {c.baseF}")
    if slot_from_sgpr: k.e(f"s_mul_i32 s{S_T+7}, s{S_SLOT}, {c.slotF}\ns_add_u32 s{S_T+6}, s{S_T+6}, s{S_T+7}")
    else: k.e(f"s_mov_b32 s{S_SLOT}, 0")
    k.e(f"v_add_u32 v{R.aF}, s{S_T+6}, v6\nv_add_u32 v{R.aF+1}, s{S_T+6}, v7")

class Cons:
    def __init__(self, k, c, R):
        self.k = k; self.c = c; self.R = R
        TM, TN, U = c.TM, c.TN, c.U
        self.setsz = U*(TM+TN)*4
    def fS(s_, s, u, st): return s_.R.fr + s*s_.setsz + u*(s_.c.TM+s_.c.TN)*4 + st*4
    def fF(s_, s, u, ft): return s_.R.fr + s*s_.setsz + u*(s_.c.TM+s_.c.TN)*4 + s_.c.TM*4 + ft*4
    def acc(s_, st, ft): return s_.R.acc + 16*(ft*s_.c.TM+st)
    def reads(s_, unit, s):
        c, R = s_.c, s_.R; out = []
        for u in range(c.U):
            kk = unit*c.U + u
            order = []
            for i in range(max(c.TM, c.TN)):
                if i < c.TM: order.append(('S', i))
                if i < c.TN: order.append(('F', i))
            for typ, i in order:
                if typ == 'S':
                    if c.smode == 'rows':
                        out.append((f"ds_read_b128 {vr(s_.fS(s,u,i),4)}, v{R.aS+kk} offset:{i*4096}", ('S', s, u, i)))
                    else:
                        out.append((f"ds_read_b128 {vr(s_.fS(s,u,i),4)}, v{R.aS} offset:{i*4096+kk*1024}", ('S', s, u, i)))
                else:
                    P, nb = c.ftiles[i]
                    for rd in range(2):
                        if c.fmode == 'rows':
                            out.append((f"ds_read_b64_tr_b16 {vr(s_.fF(s,u,i)+2*rd,2)}, v{R.aF+nb} offset:{P*8192+kk*2048+rd*512}", ('F', s, u, i)))
                        else:
                            off = (kk>>1)*(c.BN*64) + (P*2+nb)*2048 + (kk&1)*256
                            out.append((f"ds_read_b64_tr_b16 {vr(s_.fF(s,u,i)+2*rd,2)}, v{R.aF+rd} offset:{off}", ('F', s, u, i)))
        return out
    def mfmas(s_, s):
        c = s_.c; out = []
        for u in range(c.U):
            prs = sorted([(st, ft) for st in range(c.TM) for ft in range(c.TN)], key=lambda p: (max(p[0], p[1]), p[1], p[0]))
            for st, ft in prs:
                a, b = (s_.fF(s,u,ft), s_.fS(s,u,st)) if c.orient[ft] == 'T' else (s_.fS(s,u,st), s_.fF(s,u,ft))
                out.append((f"v_mfma_f32_32x32x16_bf16 {vr(s_.acc(st,ft),16)}, {vr(a,4)}, {vr(b,4)}, {vr(s_.acc(st,ft),16)}", [('S',s,u,st), ('F',s,u,ft)]))
        return out
    def zero(s_):
        for i in range(0, s_.c.TM*s_.c.TN*16, 2): s_.k.e(f"v_mov_b64 v[{s_.R.acc+i}:{s_.R.acc+i+1}], 0")
    def first_reads(s_):
        for ins, tag in s_.reads(0, 0): s_.k.e(ins)
    def loop(s_, nsteps, pre_barrier=None, fillers=None, budget=24):
        k, c, R = s_.k, s_.c, s_.R
        nunit = 4//c.U
        useF = sorted(set(nb for _, nb in c.ftiles)) if c.fmode == 'rows' else [0, 1]
        useS = range(4) if c.smode == 'rows' else [0]
        q = [tag for _, tag in s_.reads(0, 0)]
        lp = k.lab("cloop")
        if nsteps > 1: k.e(f"s_mov_b32 s{S_CNT}, 0\n.p2align 6\n{lp}:")
        gaps = [[]]
        mfs = []
        def em(x):
            for ln in x.split("\n"):
                if ln.strip(): gaps[-1].append(ln.strip())
        def need(tags):
            idx = max([i for i, t in enumerate(q) if t in tags], default=-1)
            if idx >= 0:
                n = len(q) - 1 - idx
                assert n <= 15
                em(f"s_waitcnt lgkmcnt({n})")
                del q[:idx+1]
        for unit in range(nunit):
            s = unit & 1
            last = unit == nunit-1
            rd = s_.reads((unit+1) % nunit, s ^ 1)
            mf = s_.mfmas(s)
            nm = len(mf)
            first = c.pre_mfma if last else 1
            nslots = max(nm - first, 1)
            per = -(-len(rd) // nslots)
            ri = 0
            def put(nr):
                nonlocal ri
                for _ in range(nr):
                    if ri < len(rd):
                        em(rd[ri][0]); q.append(rd[ri][1]); ri += 1
            for mi, (ins, tags) in enumerate(mf):
                if last and mi == first:
                    em("s_waitcnt lgkmcnt(0)" + (" vmcnt(0)" if pre_barrier == "vm" else "")); q.clear()
                    em("s_barrier")
                if mi >= first: put(per)
                need(tags)
                mfs.append(ins); gaps.append([])
                if unit == 0 and mi == nm-1:
                    em(f"""s_add_u32 s{S_SLOT}, s{S_SLOT}, 1
                    s_cmp_eq_u32 s{S_SLOT}, {c.NS}
                    s_cselect_b32 s{S_DS}, {-(c.NS-1)}, 1
                    s_cselect_b32 s{S_SLOT}, 0, s{S_SLOT}""")
                if (unit == 1 and mi == nm-1 and nunit > 2) or (nunit == 2 and unit == 0 and mi == nm-1):
                    em(f"s_mul_i32 s{S_DF}, s{S_DS}, {c.slotF}\ns_mul_i32 s{S_DS}, s{S_DS}, {c.slotS}")
                if last and mi == 0:
                    for a in useS: em(f"v_add_u32 v{R.aS+a}, s{S_DS}, v{R.aS+a}")
                    for nb in useF: em(f"v_add_u32 v{R.aF+nb}, s{S_DF}, v{R.aF+nb}")
            put(len(rd))
        if nsteps > 1:
            em(f"s_add_u32 s{S_CNT}, s{S_CNT}, 1\ns_cmp_lt_u32 s{S_CNT}, {nsteps}\ns_cbranch_scc1 {lp}")
        def cost(x):
            if x.startswith(("v_exp", "v_rcp", "v_rsq", "v_sqrt")): return 8
            if x.startswith("buffer_"): return 16
            if x.startswith("s_barrier"): return 24
            return 4
        fl = list(fillers or [])
        place = [[] for _ in gaps]
        if fl:
            ng = len(gaps)
            used = [sum(cost(x) for x in g) for g in gaps]
            used[-1] += used[0]
            b = budget
            while True:
                fi = 0; place = [[] for _ in gaps]
                tot = sum(cost(x) for x in fl); free = sum(max(b-used[g], 0) for g in range(1, ng)); acc = 0; done = 0
                for g in range(1, ng):
                    room = max(b - used[g], 0); acc += room
                    while fi < len(fl) and cost(fl[fi]) <= room and done < acc*tot/max(free, 1) :
                        room -= cost(fl[fi]); done += cost(fl[fi]); place[g].append(fl[fi]); fi += 1
                if fi == len(fl): break
                b += 4
        for g in range(len(gaps)):
            for x in place[g]: k.e(x)
            for x in gaps[g]: k.e(x)
            if g < len(mfs): k.e(mfs[g])
```

```python
import sys, struct
from core3 import *
import core3

MB = 1<<20
WS_O=4*MB; WS_H=8*MB; WS_Z2N=20*MB; WS_U=28*MB
WS_KVP=36*MB; WS_ZP=38*MB; WS_KVF=38*MB+131072; WS_XS=39*MB; WS_CQP=39*MB+65536; WS_CSP=39*MB+512*1024
WS_HST=40*MB; WS_ZST=41*MB
FLS=4352
WS_FLAG=42*MB; F_O=WS_FLAG; F_H=WS_FLAG+16*FLS; F_Z=WS_FLAG+32*FLS; F_U=WS_FLAG+48*FLS
WS_END=43*MB
P_X=0; P_WQKV=1; P_WPHI=2; P_WO=3; P_WIN=5; P_WSP=6; P_BSP=7; P_WOUT=8; P_OUT=9; P_DBG=10; P_WS=11
S_Q=92
L_CW=131072
L_WPHI=147456; L_XS=L_WPHI+4096; L_CQ=L_XS+1024; L_HS=L_CQ+1024; L_CS=L_HS+2048; L_ZP=L_CS+1024; L_ZS=L_ZP+2048; L_END=L_ZS+1024
KNAME = "sequential_preLN__linear_kernel_hedgehog__mixer_gmlp__prompt_kernel"

def f2u(x): return struct.unpack("<I", struct.pack("<f", x))[0]
LOG2E = 1.4426950408889634
C0 = -2*LOG2E*0.7978845608028654; C1 = C0*0.044715
MF = "v_mfma_f32_32x32x16_bf16"
W = srd(SRD_W)

class Opt:
    stamps = 0
    pf = 1
    slp = 2
    gat = 18
    spq = 5
    z1fill = 1
    nfill = 2
    p1ph = 1
    own2 = 1
    p4ph = 0
    vprio = 1
    zsp = 3
    dsx = 0
    cap = 0
    vmd = 1
    z1n = 2
    pa = 3
    pl = 2
    pc = 0
    kvslp = 0
OPT = Opt()

def unpack(k, lo, hi, src):
    k.e(f"v_lshlrev_b32 v{lo}, 16, v{src}\nv_and_b32 v{hi}, 0xffff0000, v{src}")
def cvt16(k, dst, src):
    for i in range(8): k.e(f"v_cvt_pk_bf16_f32 v{dst+i}, v{src+2*i}, v{src+2*i+1}")
def stamp(k, i):
    if OPT.stamps:
        k.e(f"s_memrealtime s[{S_ST}:{S_ST+1}]\ns_waitcnt lgkmcnt(0)\nv_writelane_b32 v255, s{S_ST}, {i}")
def bars(k, n):
    if n <= 4:
        for _ in range(n): k.e("s_barrier")
    else:
        t = k.lab("bars")
        k.e(f"s_mov_b32 s{S_CNT}, {n}\n{t}:\ns_barrier\ns_sub_u32 s{S_CNT}, s{S_CNT}, 1\ns_cmp_lg_u32 s{S_CNT}, 0\ns_cbranch_scc1 {t}")

def check_flags(k, nflags, val, oklab):
    k.e(f"""v_cmp_{'le' if val > 1 else 'eq'}_u32 vcc, {val}, v8
    s_and_b32 s{S_T+11}, vcc_lo, {(1<<nflags)-1}
    s_cmp_eq_u32 s{S_T+11}, {(1<<nflags)-1}
    s_cbranch_scc1 {oklab}""")
def spin_tail(k, top):
    k.e(f"s_sleep {OPT.slp}\ns_sub_u32 s{S_T+10}, s{S_T+10}, 1\ns_cmp_lg_u32 s{S_T+10}, 0\ns_cbranch_scc1 {top}")
def poll(k, voff, nflags, srdn=SRD_W, val=1, pre=False):
    top = k.lab("poll"); done = k.lab("polld")
    k.e(f"s_cmp_lg_u32 s{S_LW}, 0\ns_cbranch_scc1 {done}")
    if pre:
        k.e("s_waitcnt vmcnt(0)")
        check_flags(k, nflags, val, done)
    k.e(f"s_mov_b32 s{S_T+10}, 0x40000\n{top}:")
    k.e(f"buffer_load_dword v8, v{voff}, {srd(srdn)}, 0 offen sc1\ns_waitcnt vmcnt(0)")
    check_flags(k, nflags, val, done)
    spin_tail(k, top)
    k.e(f"{done}:")
def sample(k, voff, srdn=SRD_W):
    sk = k.lab("nosm")
    k.e(f"s_cmp_lg_u32 s{S_LW}, 0\ns_cbranch_scc1 {sk}\nbuffer_load_dword v8, v{voff}, {srd(srdn)}, 0 offen sc1\n{sk}:")
def tagcheck(k, regs, t, ok):
    regs = list(regs)
    if len(regs) % 2 == 0:
        k.e(f"v_max_u32 v{t}, v{regs[0]}, v{regs[1]}"); rest = regs[2:]
    else:
        k.e(f"v_max3_u32 v{t}, v{regs[0]}, v{regs[1]}, v{regs[2]}"); rest = regs[3:]
    for i in range(0, len(rest), 2): k.e(f"v_max3_u32 v{t}, v{t}, v{rest[i]}, v{rest[i+1]}")
    k.e(f"v_cmp_eq_u32 vcc, -1, v{t}\ns_cmp_eq_u64 vcc, 0\ns_cbranch_scc1 {ok}")
def validated(k, gather, regs, t, pre=True):
    top = k.lab("vsp"); ok = k.lab("vok")
    if pre: tagcheck(k, regs, t, ok)
    k.e(f"s_mov_b32 s{S_T+10}, 0x40000\n{top}:")
    gather()
    k.e("s_waitcnt vmcnt(0)")
    tagcheck(k, regs, t, ok)
    spin_tail(k, top)
    k.e(f"{ok}:")

def flag_addr(k, vset, base, sline, sidx):
    k.e(f"""s_mul_i32 s{S_T}, s{sline}, {FLS}
    s_lshl_b32 s{S_T+1}, s{sidx}, 2
    s_add_u32 s{S_T}, s{S_T}, s{S_T+1}
    s_add_u32 s{S_T}, s{S_T}, {base}
    v_mov_b32 v{vset}, s{S_T}""")
def poll_addr(k, vp, base, sline):
    k.e(f"""s_mul_i32 s{S_T}, s{sline}, {FLS}
    s_add_u32 s{S_T}, s{S_T}, {base}
    v_and_b32 v{vp}, 15, v1
    v_lshlrev_b32 v{vp}, 2, v{vp}
    v_add_u32 v{vp}, s{S_T}, v{vp}""")
def set_flag(k, vset):
    sk = k.lab("nofl")
    k.e(f"""s_cmp_lg_u32 s{S_LW}, 0
    s_cbranch_scc1 {sk}
    s_mov_b64 exec, 1
    buffer_store_dword v11, v{vset}, {W}, 0 offen sc1
    s_mov_b64 exec, -1
    {sk}:""")

def softmax_pm(k, P, EP, EN, T, OP, ON):
    L = S_K
    k.e(f"v_max3_f32 v{T}, v{P}, v{P+1}, v{P+2}\nv_min3_f32 v{T+1}, v{P}, v{P+1}, v{P+2}")
    for i in range(3, 15, 2):
        k.e(f"v_max3_f32 v{T}, v{T}, v{P+i}, v{P+i+1}\nv_min3_f32 v{T+1}, v{T+1}, v{P+i}, v{P+i+1}")
    k.e(f"""v_max_f32 v{T}, v{T}, v{P+15}
    v_max_f32 v{T+1}, -v{T+1}, -v{P+15}
    s_nop 1
    v_permlane32_swap_b32 v{T}, v{T+1}
    v_max_f32 v{T}, v{T}, v{T+1}
    v_mul_f32 v{T}, {f2u(-LOG2E)}, v{T}
    v_mov_b32 v{T+1}, v{T}
    s_nop 1
    v_permlane32_swap_b32 v{T}, v{T+1}""")
    for i in range(8):
        k.e(f"v_pk_fma_f32 v[{EP+2*i}:{EP+2*i+1}], v[{P+2*i}:{P+2*i+1}], s[{L}:{L+1}], v[{T}:{T+1}] op_sel_hi:[1,1,0]")
        k.e(f"v_pk_fma_f32 v[{EN+2*i}:{EN+2*i+1}], v[{P+2*i}:{P+2*i+1}], s[{L}:{L+1}], v[{T}:{T+1}] op_sel:[0,0,1] op_sel_hi:[1,1,1] neg_lo:[0,1,0] neg_hi:[0,1,0]")
    for i in range(16):
        k.e(f"v_exp_f32 v{EP+i}, v{EP+i}\nv_exp_f32 v{EN+i}, v{EN+i}")
    k.e(f"v_pk_add_f32 v[{T}:{T+1}], v[{EP}:{EP+1}], v[{EP+2}:{EP+3}]\nv_pk_add_f32 v[{T+2}:{T+3}], v[{EN}:{EN+1}], v[{EN+2}:{EN+3}]")
    for i in range(2, 8):
        k.e(f"v_pk_add_f32 v[{T}:{T+1}], v[{T}:{T+1}], v[{EP+2*i}:{EP+2*i+1}]\nv_pk_add_f32 v[{T+2}:{T+3}], v[{T+2}:{T+3}], v[{EN+2*i}:{EN+2*i+1}]")
    k.e(f"""v_add_f32 v{T}, v{T}, v{T+1}
    v_add_f32 v{T+1}, v{T+2}, v{T+3}
    s_nop 1
    v_permlane32_swap_b32 v{T}, v{T+1}
    v_add_f32 v{T}, v{T}, v{T+1}
    v_rcp_f32 v{T}, v{T}
    s_nop 0
    v_mov_b32 v{T+1}, v{T}
    s_nop 1
    v_permlane32_swap_b32 v{T}, v{T+1}""")
    for i in range(8):
        k.e(f"v_pk_mul_f32 v[{EP+2*i}:{EP+2*i+1}], v[{EP+2*i}:{EP+2*i+1}], v[{T}:{T+1}] op_sel_hi:[1,0]")
        k.e(f"v_pk_mul_f32 v[{EN+2*i}:{EN+2*i+1}], v[{EN+2*i}:{EN+2*i+1}], v[{T}:{T+1}] op_sel:[0,1] op_sel_hi:[1,1]")
    cvt16(k, OP, EP); cvt16(k, ON, EN)

def xhalf_sum2(k, a):
    k.e(f"""s_nop 1
    v_permlane32_swap_b32 v{a}, v{a+1}
    v_add_f32 v{a}, v{a}, v{a+1}
    v_mov_b32 v{a+1}, v{a}
    s_nop 1
    v_permlane32_swap_b32 v{a}, v{a+1}""")
def xswap_sum1(k, a, t, which=32):
    k.e(f"v_mov_b32 v{t}, v{a}\ns_nop 1\nv_permlane{which}_swap_b32 v{a}, v{t}\nv_add_f32 v{a}, v{a}, v{t}")
def xswap_sum(k, a, t, n, which):
    for i in range(n): k.e(f"v_mov_b32 v{t+i}, v{a+i}")
    k.e("s_nop 1")
    for i in range(n): k.e(f"v_permlane{which}_swap_b32 v{a+i}, v{t+i}")
    for i in range(n): k.e(f"v_add_f32 v{a+i}, v{a+i}, v{t+i}")
def ror_sum(k, a, n, sh):
    k.e("s_nop 1")
    for i in range(n): k.e(f"v_add_f32_dpp v{a+i}, v{a+i}, v{a+i} row_ror:{sh} row_mask:0xf bank_mask:0xf")
def acc_bf16(k, A, src, n, first, t, plain=False):
    for j in range(n):
        if first: unpack(k, A+2*j, A+2*j+1, src+j)
        elif plain:
            tt = t+2*(j & 1)
            unpack(k, tt, tt+1, src+j)
            k.e(f"v_add_f32 v{A+2*j}, v{A+2*j}, v{tt}\nv_add_f32 v{A+2*j+1}, v{A+2*j+1}, v{tt+1}")
        else:
            tt = t+2*(j & 1)
            unpack(k, tt, tt+1, src+j)
            k.e(f"v_pk_add_f32 v[{A+2*j}:{A+2*j+1}], v[{A+2*j}:{A+2*j+1}], v[{tt}:{tt+1}]")
def combine(k, P, n, cnt, d, t):
    k.e(f"v_pk_add_f32 v[{d}:{d+1}], v[{P}:{P+1}], v[{P+2}:{P+3}]")
    for i in range(2, n): k.e(f"v_pk_add_f32 v[{d}:{d+1}], v[{d}:{d+1}], v[{P+2*i}:{P+2*i+1}]")
    k.e(f"v_mul_f32 v{d}, {f2u(1.0/n)}, v{d}\nv_mov_b32 v{t+1}, 0")
    for i in range(n): k.e(f"v_sub_f32 v{t}, v{P+2*i}, v{d}\nv_fmac_f32 v{t+1}, v{t}, v{t}")
    k.e(f"v_fmac_f32 v{d+1}, {f2u(float(cnt))}, v{t+1}")
def finish_rstd(k, d, total):
    k.e(f"""v_mul_f32 v{d+1}, {f2u(1.0/total)}, v{d+1}
    v_add_f32 v{d+1}, {f2u(1e-5)}, v{d+1}
    v_rsq_f32 v{d+1}, v{d+1}
    s_nop 0
    v_mul_f32 v{d}, -v{d}, v{d+1}""")

def cfgs():
    c1 = Cfg(128,192,16,3,2,2,1, 2048, 6144, [(0,0),(1,0),(2,0)], True, False, orient=['T','T','N'], smode='rows', baseS=0, baseF=49152, kbase=OPT.spq)
    c2 = Cfg(128,64,16,4,4,1,2, 2048, 2048, [(0,0),(0,1)], False, False, smode='frag', auxS="sc1")
    c3 = Cfg(128,128,16,4,2,2,1, 2048, 7168, [(0,0),(0,1)], False, True, smode='frag', auxS="sc1", slot0=2)
    c4 = Cfg(128,128,32,4,2,2,1, 4096, 0, [(0,0),(0,1)], False, True, smode='rows', fmode='blk', auxF="sc1", rot=(-1,0,0,1) if OPT.own2 else (-1,0,2,-1), own2=bool(OPT.own2))
    c5 = Cfg(128,64,28,4,4,1,2, 3584, 2048, [(0,0),(0,1)], False, False, smode='frag', auxS="sc1", baseF=114688, slot0=2)
    return c1, c2, c3, c4, c5
VS=16; VF=24; VS4=36; VF4=44
L_PHK=0; L_VX=32768; L_Z=57344

def tail_barriers(k, c, extra=0):
    for r in range(c.NS-1):
        k.e(f"s_waitcnt vmcnt({max(c.NS-2-r,0)*c.nI + extra})\ns_barrier")

def win_loads(k, tag):
    mk_srd(k, SRD_A, P_WO, 2*MB); mk_srd(k, SRD_B, P_WIN, 7*MB)
    k.e(f"""s_lshl_b32 s{S_T}, s2, 2
    s_add_u32 s{S_T}, s{S_T}, s{S_Q}
    s_lshl_b32 s{S_T+1}, s{S_T}, 11
    v_lshlrev_b32 v3, 7, v1
    s_mov_b64 exec, 0xffff
    buffer_load_dword v250, v3, {srd(SRD_A)}, s{S_T+1} offen
    s_mov_b64 exec, -1
    s_and_b32 s{S_T}, s2, 15
    s_lshl_b32 s{S_T}, s{S_T}, 2
    s_add_u32 s{S_T}, s{S_T}, s{S_Q}
    s_mul_i32 s{S_T}, s{S_T}, {16*7168}
    s_lshr_b32 s{S_T+1}, s2, 4
    s_lshl_b32 s{S_T+1}, s{S_T+1}, 9
    s_add_u32 s{S_T}, s{S_T}, s{S_T+1}
    s_cmp_ge_u32 s2, 224
    s_cselect_b32 s{S_T}, {7*MB}, s{S_T}
    v_lshrrev_b32 v3, 5, v1
    v_mul_u32_u24 v3, 7168, v3
    v_and_b32 v4, 31, v1
    v_lshl_add_u32 v3, v4, 4, v3""")
    for j in range(8):
        k.e(f"buffer_load_dwordx4 v[{192+4*j}:{195+4*j}], v3, {srd(SRD_B)}, s{S_T} offen\ns_add_u32 s{S_T}, s{S_T}, {2*7168}")
    return 9
def win_reduce(k):
    for j in range(8): acc_bf16(k, 224, 192+4*j, 4, j == 0, 232)
    xswap_sum(k, 224, 232, 8, 32)
    k.e(f"""s_lshl_b32 s{S_T}, s{S_Q}, 10
    s_add_u32 s{S_T}, s{S_T}, {L_CW}
    v_and_b32 v4, 31, v1
    v_lshl_add_u32 v4, v4, 5, s{S_T}
    ds_write_b128 v4, v[224:227]
    ds_write_b128 v4, v[228:231] offset:16
    s_waitcnt lgkmcnt(0)""")

def helper_pf(k):
    if not OPT.pf: return
    mk_srd(k, SRD_A, P_WSP, 8*MB); mk_srd(k, SRD_B, P_WOUT, 1792*2048)
    k.e(f"""s_sub_u32 s{S_T}, s2, 224
    s_lshl_b32 s{S_T+1}, s{S_T}, 18
    s_lshl_b32 s{S_T+2}, s{S_WAVE}, 7
    s_add_u32 s{S_T+1}, s{S_T+1}, s{S_T+2}
    v_lshlrev_b32 v2, 12, v1""")
    for i in range(4): k.e(f"buffer_load_dword v3, v2, {srd(SRD_A)}, s{S_T+1} offen offset:{i*1024}")
    k.e(f"""s_lshl_b32 s{S_T}, s{S_T}, 3
    s_add_u32 s{S_T}, s{S_T}, s{S_WAVE}
    s_mul_i32 s{S_T}, s{S_T}, {112*128}
    s_add_u32 s{S_T+1}, s{S_T}, {48*128}
    v_lshlrev_b32 v2, 7, v1
    buffer_load_dword v3, v2, {srd(SRD_B)}, s{S_T} offen
    buffer_load_dword v3, v2, {srd(SRD_B)}, s{S_T+1} offen
    s_waitcnt vmcnt(0)""")

def loader(k):
    c1, c2, c3, c4, c5 = cfgs()
    k.e(f"s_lshl_b32 s{S_M0W}, s{S_LW}, 10")
    c = c1
    if OPT.p1ph:
        inv = [0]*4
        for u, d in enumerate(c.rot): inv[(u+d) & 3] = -d
        packed = sum(((d+8) & 15) << (4*u) for u, d in enumerate(inv))
        k.e(f"""s_sub_u32 s{S_T}, s{S_M}, s{S_PH}
        s_and_b32 s{S_T}, s{S_T}, 3
        s_lshl_b32 s{S_T}, s{S_T}, 2
        s_lshr_b32 s{S_T}, {packed}, s{S_T}
        s_and_b32 s{S_T}, s{S_T}, 15
        s_add_u32 s{S_T}, s{S_T}, s{S_M}
        s_sub_u32 s{S_T}, s{S_T}, 8
        s_and_b32 s{S_KB}, s{S_T}, 15""")
    else:
        k.e(f"s_mov_b32 s{S_KB}, s{S_M}\ns_mov_b32 s{S_PH}, s{S_N}")
    k.e(f"s_lshl_b32 s{S_T0}, s{S_N}, 7")
    loader_voff_S(k, c, VS)
    loader_voff_F(k, c, VF, S_T0, lambda P: P*2048)
    k.e("s_waitcnt lgkmcnt(0)")
    mk_srd(k, SRD_S, P_X, 4*MB); mk_srd(k, SRD_F, P_WQKV, 6*MB)
    stamp(k, 0)
    issue_first(k, c, VS, VF, "SF")
    mk_srd(k, SRD_W, P_WS, WS_END)
    steady(k, c, VS, VF, 16)
    n = win_loads(k, "l")
    tail_barriers(k, c, n)
    tile_map(k, 4, 8, 16)
    c = c2
    mk_srd(k, SRD_S, P_WS, 4*MB, WS_O); mk_srd(k, SRD_F, P_WO, 2*MB)
    k.e(f"s_lshl_b32 s{S_T0}, s{S_N}, 7")
    loader_voff_S(k, c, VS); loader_voff_F(k, c, VF, S_T0, lambda P: 0)
    k.e("s_barrier")
    issue_first(k, c, VS, VF, "F", pbarrier=False)
    k.e(f"s_waitcnt vmcnt({c.NS*c.nF})")
    win_reduce(k)
    k.e("s_barrier")
    k.e(f"""s_cmp_lg_u32 s{S_LW}, 0
    s_cbranch_scc1 L_l_nocs
    s_cmp_ge_u32 s2, 224
    s_cbranch_scc1 L_l_nocs
    v_lshlrev_b32 v2, 4, v1
    v_add_u32 v3, {L_CW}, v2""")
    for i in range(4): k.e(f"ds_read_b128 v[{192+4*i}:{195+4*i}], v3 offset:{i*1024}")
    k.e(f"""s_and_b32 s{S_T}, s2, 15
    s_mul_i32 s{S_T}, s{S_T}, 14336
    s_lshr_b32 s{S_T+1}, s2, 4
    s_lshl_b32 s{S_T+1}, s{S_T+1}, 10
    s_add_u32 s{S_T}, s{S_T}, s{S_T+1}
    s_add_u32 s{S_T}, s{S_T}, {WS_CSP}
    s_waitcnt lgkmcnt(0)""")
    for i in range(1, 4):
        k.e(f"v_pk_add_f32 v[192:193], v[192:193], v[{192+4*i}:{193+4*i}]\nv_pk_add_f32 v[194:195], v[194:195], v[{194+4*i}:{195+4*i}]")
    k.e(f"buffer_store_dwordx4 v[192:195], v2, {W}, s{S_T} offen sc1\nL_l_nocs:")
    bars(k, 4)
    stamp(k, 4)
    issue_first(k, c, VS, VF, "S")
    after_split_prologue(k, c, VS, VF, c.nS)
    steady(k, c, VS, VF, c.T)
    k.e("s_cmp_ge_u32 s2, 224\ns_cbranch_scc1 L_ld_helper")
    c = c3
    tile_map(k, 4, 7, 14)
    mk_srd(k, SRD_S, P_WS, 4*MB, WS_H); mk_srd(k, SRD_F, P_WIN, 7*MB)
    k.e(f"s_lshl_b32 s{S_T0}, s{S_N}, 8\ns_mov_b32 s{S_FB}, 3584")
    loader_voff_F(k, c, VF, S_T0, lambda P: P*128)
    k.e(f"s_waitcnt vmcnt({2*c2.nI})\ns_barrier")
    issue_first(k, c, VS, VF, "F", fbase=True, pbarrier=False, t1=1)
    k.e(f"s_waitcnt vmcnt({c2.nI+c.nF})\ns_barrier")
    issue_first(k, c, VS, VF, "F", fbase=True, pbarrier=False, t0=1, t1=2)
    k.e(f"s_waitcnt vmcnt({2*c.nF})\ns_barrier\ns_barrier")
    loader_voff_S(k, c, VS); loader_voff_S(k, c4, VS4); loader_voff_F(k, c4, VF4)
    bars(k, 2)
    stamp(k, 5)
    ITST[1] = 253
    if ITST[0]: k.e("s_mov_b32 s97, 0")
    issue_first(k, c, VS, VF, "S", t1=2)
    issue_first(k, c, VS, VF, "SF", fbase=True, pbarrier=False, t0=2)
    steady(k, c, VS, VF, 16, fbase=True)
    k.e(f"s_mov_b32 s{S_TAU}, 0\ns_mov_b32 s{S_FB}, 0")
    steady(k, c, VS, VF, 16, fbase=True)
    c = c4
    mk_srd(k, SRD_S, P_WSP, 8*MB); mk_srd(k, SRD_F, P_WS, 7*MB, WS_Z2N)
    k.e(f"s_mov_b32 s{S_TAU}, 0\ns_lshl_b32 s{S_KB}, s{S_M}, 1")
    if OPT.own2 and not OPT.p4ph: k.e(f"s_mov_b32 s{S_PH}, s{S_N}")
    steady(k, c, VS4, VF4, 32)
    def p5_setup():
        tile_map(k, 4, 8, 16)
        mk_srd(k, SRD_S, P_WS, 7*MB, WS_U); mk_srd(k, SRD_F, P_WOUT, 1792*2048)
        k.e(f"s_lshl_b32 s{S_T0}, s{S_N}, 7")
        loader_voff_S(k, c5, VS); loader_voff_F(k, c5, VF, S_T0, lambda P: 0)
        issue_first(k, c5, VS, VF, "F", pbarrier=False, t1=2)
    k.e(f"s_waitcnt vmcnt({2*c.nI})\ns_barrier")
    p5_setup()
    k.e(f"s_waitcnt vmcnt({c.nI+2*c5.nF})\ns_barrier\ns_waitcnt vmcnt({2*c5.nF})\ns_barrier")
    bars(k, 2)
    k.e("L_ld_p5:")
    ITST[1] = 254
    if ITST[0]: k.e("s_mov_b32 s97, 32")
    c = c5
    k.e("s_barrier")
    stamp(k, 9)
    issue_first(k, c, VS, VF, "S", t1=2)
    issue_first(k, c, VS, VF, "SF", pbarrier=False, t0=2)
    steady(k, c, VS, VF, c.T)
    tail_barriers(k, c)
    k.e("s_barrier")
    k.e("s_branch L_fin")
    k.e("L_ld_helper:")
    tail_barriers(k, c2)
    bars(k, 3)
    helper_pf(k)
    p5_setup()
    k.e("s_branch L_ld_p5")

def spread(k, fn, nbar):
    t = Kern(k.name); t.uid = k.uid
    fn(t); k.uid = t.uid
    L = [x.strip() for x in t.L]
    assert not any(x.endswith(":") for x in L)
    wt = lambda x: 10 if x.startswith("buffer_") else (1 if x.startswith(("v_", "ds_")) else 0.25)
    tot = sum(map(wt, L)); acc = 0; nb = 0
    low = OPT.vprio and sum(x.startswith("v_") for x in L) > 20
    if low: k.e("s_setprio 0")
    for x in L:
        k.e(x); acc += wt(x)
        if nb < nbar-1 and acc >= tot*(nb+1)/nbar - 1e-9:
            k.e("s_barrier"); nb += 1
    if low: k.e(f"s_setprio {OPT.pa}")
    while nb < nbar:
        k.e("s_barrier"); nb += 1

def combine_half(k, P, stride, n, ntot, cnt, d, t):
    k.e(f"v_add_f32 v{d}, v{P}, v{P+stride}\nv_add_f32 v{d+1}, v{P+1}, v{P+stride+1}")
    for i in range(2, n): k.e(f"v_add_f32 v{d}, v{d}, v{P+stride*i}\nv_add_f32 v{d+1}, v{d+1}, v{P+stride*i+1}")
    if ntot != n: xswap_sum1(k, d, t)
    k.e(f"v_mul_f32 v{d}, {f2u(1.0/ntot)}, v{d}\nv_sub_f32 v{t}, v{P}, v{d}\nv_mul_f32 v{t+1}, v{t}, v{t}")
    for i in range(1, n): k.e(f"v_sub_f32 v{t}, v{P+stride*i}, v{d}\nv_fmac_f32 v{t+1}, v{t}, v{t}")
    k.e(f"v_fmac_f32 v{d+1}, {f2u(float(cnt))}, v{t+1}")
    if ntot != n: xswap_sum1(k, d+1, t)

def aux(k):
    c1, c2, c3, c4, c5 = cfgs()
    a = S_LW
    k.e(f"""s_lshl_b32 s{S_T}, s{S_M}, 7
    s_lshl_b32 s{S_T+1}, s{S_N}, 3
    s_add_u32 s{S_T}, s{S_T}, s{S_T+1}
    s_lshl_b32 s{S_T+1}, s{a}, 2
    s_add_u32 s{S_T}, s{S_T}, s{S_T+1}
    v_lshrrev_b32 v14, 4, v1
    v_add_u32 v14, s{S_T}, v14
    v_and_b32 v3, 15, v1
    v_lshlrev_b32 v3, 4, v3
    v_lshl_add_u32 v3, v14, 11, v3
    s_waitcnt lgkmcnt(0)""")
    mk_srd(k, SRD_B, P_X, 4*MB)
    for j in range(8): k.e(f"buffer_load_dwordx4 v[{64+4*j}:{67+4*j}], v3, {srd(SRD_B)}, 0 offen offset:{256*j}")
    mk_srd(k, SRD_W, P_WS, WS_END); mk_srd(k, SRD_A, P_WPHI, 65536); mk_srd(k, SRD_D, P_DBG, 256)
    stamp(k, 0)
    q = OPT.spq
    k.e(f"""v_lshlrev_b32 v2, 4, v1
    v_mov_b32 v11, 1
    v_mov_b32 v48, 0
    v_mov_b32 v44, -1
    v_mov_b32 v45, -1
    v_mov_b32 v46, -1
    v_mov_b32 v47, -1
    v_lshrrev_b32 v4, 5, v1
    v_lshlrev_b32 v4, 13, v4
    v_and_b32 v5, 31, v1
    v_lshl_add_u32 v4, v5, 4, v4
    v_bfe_u32 v12, v1, 2, 2
    v_min_u32 v12, 2, v12
    v_lshlrev_b32 v12, 13, v12
    v_lshrrev_b32 v5, 4, v1
    v_lshl_add_u32 v12, v5, 11, v12
    v_and_b32 v5, 3, v1
    v_lshl_add_u32 v12, v5, 4, v12
    v_add_u32 v12, {c1.baseF + (q % 3)*c1.slotF}, v12
    v_bfe_u32 v13, v1, 2, 2
    v_lshl_add_u32 v12, v13, 7, v12
    v_lshrrev_b32 v13, 1, v13
    v_xor_b32 v13, s{a}, v13
    v_lshl_add_u32 v24, v13, 6, v12
    v_xor_b32 v25, 128, v24
    v_xor_b32 v26, 320, v24
    v_xor_b32 v27, 448, v24""")
    X = 128
    for j in range(8):
        k.e(f"s_waitcnt vmcnt({7-j})")
        for i in range(4*j, 4*j+4):
            unpack(k, X+2*i, X+2*i+1, 64+i)
            t = 32+2*(i & 1)
            if i >= 2: k.e(f"v_pk_add_f32 v[{t}:{t+1}], v[{X+2*i-4 if i < 4 else t}:{X+2*i-3 if i < 4 else t+1}], v[{X+2*i}:{X+2*i+1}]")
    k.e("v_pk_add_f32 v[32:33], v[32:33], v[34:35]\nv_add_f32 v32, v32, v33")
    for sh in (8, 4, 2, 1): ror_sum(k, 32, 1, sh)
    k.e(f"v_mul_f32 v32, {f2u(1/1024.)}, v32")
    for i in range(32):
        d = 40+2*(i & 1); t = 34+2*(i & 1)
        k.e(f"v_pk_add_f32 v[{d}:{d+1}], v[{X+2*i}:{X+2*i+1}], v[32:33] op_sel_hi:[1,0] neg_lo:[0,1] neg_hi:[0,1]")
        k.e(f"v_pk_mul_f32 v[{t}:{t+1}], v[{d}:{d+1}], v[{d}:{d+1}]" if i < 2 else f"v_pk_fma_f32 v[{t}:{t+1}], v[{d}:{d+1}], v[{d}:{d+1}], v[{t}:{t+1}]")
    k.e("v_pk_add_f32 v[34:35], v[34:35], v[36:37]\nv_add_f32 v33, v34, v35")
    for sh in (8, 4, 2, 1): ror_sum(k, 33, 1, sh)
    finish_rstd(k, 32, 1024)
    stamp(k, 10)
    k.e("s_barrier")
    def init(k):
        k.e(f"""v_lshlrev_b32 v14, 2, v14
        s_mov_b32 s{S_T}, {WS_XS}
        s_mov_b32 s{S_T+1}, {WS_XS+8192}
        s_mov_b32 exec_lo, 0x10001
        s_mov_b32 exec_hi, 0x10001
        buffer_store_dword v32, v14, {W}, s{S_T} offen sc1
        buffer_store_dword v33, v14, {W}, s{S_T+1} offen sc1
        s_mov_b64 exec, -1
        s_lshl_b32 s{S_T}, s{S_N}, 17
        s_lshl_b32 s{S_T+1}, s{S_M}, 9
        s_add_u32 s{S_T}, s{S_T}, s{S_T+1}
        s_lshl_b32 s{S_T+1}, s{a}, 16
        s_add_u32 s{S_T}, s{S_T}, s{S_T+1}
        s_add_u32 s{S_T}, s{S_T}, {WS_KVP}""")
        for x in range(4): k.e(f"buffer_store_dwordx4 v[44:47], v4, {W}, s{S_T} offen sc1\ns_add_u32 s{S_T}, s{S_T}, 16384")
        k.e(f"""s_lshl_b32 s{S_T+12}, s{S_N}, 4
        s_add_u32 s{S_T+12}, s{S_T+12}, s{S_M}
        s_lshl_b32 s{S_T+12}, s{S_T+12}, 1
        s_add_u32 s{S_T+12}, s{S_T+12}, s{a}
        s_mul_i32 s{S_T+12}, s{S_T+12}, 384
        s_add_u32 s{S_T+12}, s{S_T+12}, {WS_CQP}
        s_mov_b64 exec, 0xffffff
        buffer_store_dwordx4 v[44:47], v2, {W}, s{S_T+12} offen sc1
        s_lshl_b32 s{S_T}, s2, 10
        s_add_u32 s{S_T}, s{S_T}, {WS_HST}
        s_lshl_b32 s{S_T+1}, s2, 9
        s_add_u32 s{S_T+1}, s{S_T+1}, {WS_KVF}
        s_mul_i32 s{S_T+2}, s2, 896
        s_add_u32 s{S_T+3}, s{S_T+2}, {WS_CSP}
        s_add_u32 s{S_T+2}, s{S_T+2}, {WS_ZST}
        s_mov_b32 s{S_T+4}, 0xffffff
        s_cmp_eq_u32 s{a}, 0
        s_cselect_b32 s{S_T}, s{S_T}, s{S_T+2}
        s_cselect_b32 s{S_T+1}, s{S_T+1}, s{S_T+3}
        s_cselect_b32 s{S_T+5}, -1, s{S_T+4}
        s_cselect_b32 s{S_T+6}, 0, s{S_T+4}
        s_mov_b32 exec_lo, -1
        s_mov_b32 exec_hi, s{S_T+5}
        buffer_store_dwordx4 v[44:47], v2, {W}, s{S_T} offen sc1
        s_mov_b32 exec_hi, s{S_T+6}
        buffer_store_dwordx4 v[44:47], v2, {W}, s{S_T+1} offen sc1
        s_mov_b64 exec, -1
        s_mul_i32 s{S_T}, s2, {FLS}
        s_add_u32 s{S_T}, s{S_T}, {WS_FLAG}
        s_cmp_lt_u32 s2, 64
        s_cselect_b32 s{S_T}, s{S_T}, {WS_END}
        s_lshl_b32 s{S_T+1}, s2, 8
        s_add_u32 s{S_T+1}, s{S_T+1}, {WS_ZP}
        s_cmp_eq_u32 s{a}, 0
        s_cselect_b32 s{S_T}, s{S_T}, s{S_T+1}
        s_cselect_b32 s{S_T+1}, 0, -1
        v_mov_b32 v48, s{S_T+1}
        v_lshlrev_b32 v5, 2, v1
        buffer_store_dword v48, v5, {W}, s{S_T} offen sc1
        s_lshl_b32 s{S_T}, s{S_N}, 12
        s_lshl_b32 s{S_T+1}, s{a}, 11
        s_add_u32 s{S_T}, s{S_T}, s{S_T+1}
        s_add_u32 m0, s{S_T+1}, {L_WPHI}
        s_nop 0
        buffer_load_dwordx4 v2, {srd(SRD_A)}, s{S_T} offen lds
        buffer_load_dwordx4 v2, {srd(SRD_A)}, s{S_T} offen offset:1024 lds""")
    spread(k, init, 3)
    k.e("s_barrier\ns_waitcnt vmcnt(0)\ns_barrier")
    k.e(f"""s_cmp_lg_u32 s{a}, 0
    s_cbranch_scc1 L_a_noarr
    s_and_b32 s{S_T}, s2, 7
    s_lshl_b32 s{S_T}, s{S_T}, 5
    v_mov_b32 v4, s{S_T}
    s_mov_b64 exec, 1
    buffer_atomic_add v11, v4, {srd(SRD_D)}, 0 offen sc1
    s_mov_b64 exec, -1
    L_a_noarr:""")
    assert q == 5
    for j in range(16):
        k.e(f"ds_read_b128 v[{64+4*j}:{67+4*j}], v{24 + (j&3)} offset:{(j>>2)*512}")
        if j == 7: k.e("s_waitcnt lgkmcnt(4)")
    k.e("s_waitcnt lgkmcnt(0)\ns_barrier")
    A = 128
    def csum(k):
        for j in range(16): acc_bf16(k, A, 64+4*j, 4, j == 0, 48, plain=True)
        xswap_sum(k, A, 160, 8, 16); xswap_sum(k, A, 160, 8, 32)
        k.e(f"""v_lshlrev_b32 v4, 5, v1
        s_mov_b64 exec, 0xfff
        buffer_store_dwordx4 v[{A}:{A+3}], v4, {W}, s{S_T+12} offen sc1
        buffer_store_dwordx4 v[{A+4}:{A+7}], v4, {W}, s{S_T+12} offen offset:16 sc1
        s_mov_b64 exec, -1
        v_lshlrev_b32 v10, 5, v1""")
    spread(k, csum, 5)
    sample(k, 10, SRD_D)
    k.e(f"""s_lshl_b32 s{S_T+14}, s{a}, 13
    s_lshl_b32 s{S_T+1}, s{S_M}, 9
    s_add_u32 s{S_T+14}, s{S_T+14}, s{S_T+1}
    s_add_u32 s{S_T+14}, s{S_T+14}, {WS_XS}
    s_lshl_b32 s{S_T+1}, s{a}, 9
    s_add_u32 m0, s{S_T+1}, {L_XS}
    s_mul_i32 s{S_T+12}, s{S_N}, {16*768}
    s_mul_i32 s{S_T+13}, s{a}, 384
    s_add_u32 s{S_T+12}, s{S_T+12}, s{S_T+13}
    s_add_u32 s{S_T+12}, s{S_T+12}, {WS_CQP}
    v_and_b32 v12, 31, v1
    v_min_u32 v12, 23, v12
    v_lshlrev_b32 v12, 4, v12
    v_lshrrev_b32 v13, 5, v1
    v_mul_u32_u24 v13, 768, v13
    v_add_u32 v13, v13, v12
    v_lshlrev_b32 v5, 2, v1""")
    k.e("s_barrier")
    poll(k, 10, 8, SRD_D, 32, pre=True)
    stamp(k, 1)
    k.e("s_barrier")
    def cqg():
        k.e(f"s_mov_b32 s{S_T}, s{S_T+12}")
        for i in range(8):
            k.e(f"buffer_load_dwordx4 v[{64+4*i}:{67+4*i}], v13, {W}, s{S_T} offen offset:{(i&1)*1536} sc1")
            if i & 1: k.e(f"s_add_u32 s{S_T}, s{S_T}, 3072")
    cqg()
    k.e(f"buffer_load_dword v5, {W}, s{S_T+14} offen sc1 lds\nbuffer_load_dword v5, {W}, s{S_T+14} offen offset:256 sc1 lds")
    k.e("s_barrier")
    k.e("s_waitcnt vmcnt(0)")
    validated(k, cqg, range(64, 96), 3)
    for i in range(1, 8):
        for j in range(4): k.e(f"v_add_f32 v{64+j}, v{64+j}, v{64+4*i+j}")
    xswap_sum(k, 64, 68, 4, 32)
    k.e(f"s_add_u32 s{S_T+13}, s{S_T+13}, {L_CQ}\nv_add_u32 v3, s{S_T+13}, v12\nds_write_b128 v3, v[64:67]")
    k.e("s_barrier")
    win_loads(k, "a")
    k.e("s_waitcnt lgkmcnt(0)\ns_barrier")
    stamp(k, 2)
    k.e("s_waitcnt vmcnt(0)")
    win_reduce(k)
    flag_addr(k, 9, F_O, S_M, S_N)
    k.e("s_barrier")
    k.e(f"s_cmp_lg_u32 s{a}, 0\ns_cbranch_scc1 L_a_z")
    k.e(f"""s_lshl_b32 s{S_T+12}, s{S_N}, 17
    s_lshl_b32 s{S_T+1}, s{S_M}, 13
    s_add_u32 s{S_T+12}, s{S_T+12}, s{S_T+1}
    s_add_u32 s{S_T+12}, s{S_T+12}, {WS_KVP}
    s_add_u32 s{S_T+13}, s{S_T+12}, 4096
    s_lshl_b32 s{S_T+14}, s{S_N}, 13
    s_lshl_b32 s{S_T+1}, s{S_M}, 9
    s_add_u32 s{S_T+14}, s{S_T+14}, s{S_T+1}
    s_add_u32 s{S_T+14}, s{S_T+14}, {WS_KVF}
    s_barrier""")
    if OPT.kvslp: k.e(f"s_sleep {OPT.kvslp}")
    def kvg():
        for i in range(8): k.e(f"buffer_load_dwordx4 v[{64+4*i}:{67+4*i}], v2, {W}, s{S_T+12+(i>>2)} offen offset:{(i&3)*1024} sc1")
    validated(k, kvg, range(64, 96), 3, pre=False)
    stamp(k, 3)
    for i in range(8): acc_bf16(k, 128, 64+4*i, 4, i == 0, 48)
    xswap_sum(k, 128, 160, 8, 32)
    for i in range(4): k.e(f"v_cvt_pk_bf16_f32 v{52+i}, v{128+2*i}, v{129+2*i}")
    k.e(f"s_mov_b32 exec_hi, 0\nbuffer_store_dwordx4 v[52:55], v2, {W}, s{S_T+14} offen sc1\ns_mov_b32 exec_hi, -1\ns_branch L_a_kvd")
    k.e("L_a_z:")
    k.e(f"""s_lshl_b32 s{S_T+12}, s{S_N}, 12
    s_add_u32 s{S_T+12}, s{S_T+12}, {WS_ZP}
    v_and_b32 v13, 15, v1
    v_lshlrev_b32 v13, 6, v13
    v_lshrrev_b32 v4, 4, v1
    v_lshl_add_u32 v13, v4, 4, v13
    v_lshlrev_b32 v5, 4, v4
    s_barrier""")
    if OPT.kvslp: k.e(f"s_sleep {OPT.kvslp}")
    def zg():
        for i in range(4): k.e(f"buffer_load_dwordx4 v[{64+4*i}:{67+4*i}], v13, {W}, s{S_T+12} offen offset:{i*1024} sc1")
    validated(k, zg, range(64, 80), 3, pre=False)
    stamp(k, 3)
    acc_bf16(k, 128, 64, 16, True, 48)
    for sh in (8, 4, 2, 1): ror_sum(k, 128, 32, sh)
    cvt16(k, 64, 128); cvt16(k, 72, 144)
    for i in range(4): k.e(f"ds_write_b128 v5, v[{64+4*i}:{67+4*i}] offset:{L_Z+i*64}")
    k.e("s_waitcnt lgkmcnt(0)\nL_a_kvd:")
    stamp(k, 4)
    k.e("s_barrier")
    tile_map(k, 4, 8, 16)
    poll_addr(k, 10, F_O, S_M)
    k.e("s_barrier")
    set_flag(k, 9)
    poll(k, 10, 16)
    k.e("s_barrier")
    flag_addr(k, 9, F_H, S_M, S_N); poll_addr(k, 10, F_H, S_M)
    tile_map(k, 4, 7, 14)
    k.e(f"""v_and_b32 v14, 31, v1
    v_lshlrev_b32 v14, 4, v14
    v_lshrrev_b32 v15, 5, v1
    v_mul_u32_u24 v13, {1792*4}, v15
    v_add_u32 v13, v13, v14
    s_lshl_b32 s{S_T}, s{a}, 9
    v_add_u32 v14, s{S_T}, v14
    s_lshl_b32 s{S_T+13}, s{S_N}, 9
    s_add_u32 s{S_T+13}, s{S_T+13}, {WS_CSP}
    s_lshl_b32 s{S_T+12}, s{S_M}, 10
    s_add_u32 s{S_T+12}, s{S_T+12}, {WS_HST}""")
    bars(k, 18)
    set_flag(k, 9)
    k.e("s_cmp_ge_u32 s2, 224\ns_cbranch_scc1 L_a_helper")
    poll(k, 10, 16)
    k.e(f"s_cmp_eq_u32 s{a}, 0\ns_cbranch_scc1 L_a_nocs")
    def cg():
        k.e(f"s_mov_b32 s{S_T}, s{S_T+13}")
        for i in range(16): k.e(f"buffer_load_dwordx4 v[{64+4*i}:{67+4*i}], v13, {W}, s{S_T} offen sc1\ns_add_u32 s{S_T}, s{S_T}, 14336")
    validated(k, cg, range(64, 128), 3, pre=False)
    for i in range(1, 16): k.e(f"v_pk_add_f32 v[64:65], v[64:65], v[{64+4*i}:{65+4*i}]\nv_pk_add_f32 v[66:67], v[66:67], v[{66+4*i}:{67+4*i}]")
    k.e(f"v_add_u32 v3, {L_CS}, v2\nds_write_b128 v3, v[64:67]\nL_a_nocs:")
    k.e("s_barrier")
    k.e(f"v_lshl_add_u32 v13, v15, 17, v14")
    def hg(k=k):
        k.e(f"s_mov_b32 s{S_T}, s{S_T+12}")
        for i in range(8): k.e(f"buffer_load_dwordx4 v[{64+4*i}:{67+4*i}], v13, {W}, s{S_T} offen sc1\ns_add_u32 s{S_T}, s{S_T}, 16384")
    bars(k, 3)
    spread(k, hg, 4)
    k.e("s_barrier\ns_waitcnt vmcnt(0)")
    validated(k, hg, range(65, 96, 2), 3)
    def hfin(k):
        for r in range(2):
            d = 4+4*r if r == 0 else 16
            combine_half(k, 64+2*r, 4, 8, 16, 64, d, 20)
            k.e(f"""v_mul_f32 v{d+1}, {f2u(1.0/1024)}, v{d+1}
            v_add_f32 v{d+1}, {f2u(1e-5)}, v{d+1}
            v_rsq_f32 v20, v{d+1}
            v_sqrt_f32 v{d+3}, v{d+1}
            v_sub_f32 v{d}, 0, v{d}
            v_mul_f32 v{d+1}, {f2u(C0)}, v20
            v_mul_f32 v{d+2}, v20, v20
            v_mul_f32 v{d+2}, v{d+2}, v20
            v_mul_f32 v{d+2}, {f2u(C1)}, v{d+2}""")
        k.e(f"""v_lshlrev_b32 v3, 1, v14
        v_add_u32 v3, {L_HS}, v3
        s_mul_i32 s{S_T+12}, s{S_M}, {14*1024}
        s_add_u32 s{S_T+12}, s{S_T+12}, {WS_ZST}
        s_lshl_b32 s{S_T+13}, s{S_N}, 10
        s_add_u32 s{S_T+13}, s{S_T+13}, s{S_T+12}
        s_lshl_b32 s{S_T}, s{a}, 9
        v_lshlrev_b32 v22, 3, v1
        v_add_u32 v22, s{S_T}, v22
        v_add_u32 v12, {L_ZP}, v22
        v_mul_u32_u24 v13, {7*1024}, v15
        v_add_u32 v13, v13, v14""")
        flag_addr(k, 9, F_Z, S_N, S_M); poll_addr(k, 10, F_Z, S_N)
    spread(k, hfin, 6)
    k.e("ds_write_b128 v3, v[4:7]\nds_write_b128 v3, v[16:19] offset:16")
    k.e("s_barrier\ns_waitcnt lgkmcnt(0)")
    bars(k, 3)
    k.e(f"""ds_read_b64 v[64:65], v12
    ds_read_b64 v[66:67], v12 offset:1024
    s_waitcnt lgkmcnt(0)
    v_add_f32 v4, v64, v66
    v_mul_f32 v4, 0.5, v4
    v_sub_f32 v6, v64, v66
    v_mul_f32 v6, v6, v6
    v_add_f32 v5, v65, v67
    v_fmac_f32 v5, {f2u(32.0)}, v6
    buffer_store_dwordx2 v[4:5], v22, {W}, s{S_T+13} offen sc1""")
    stamp(k, 6)
    g = OPT.gat
    bars(k, g-16)
    def zsg():
        k.e(f"s_add_u32 s{S_T}, s{S_T+12}, 4096")
        for i in range(7):
            k.e(f"buffer_load_dwordx4 v[{64+4*i}:{67+4*i}], v13, {W}, s{S_T+12 if i < 4 else S_T} offen offset:{(i&3)*1024} sc1")
    zsg()
    k.e("s_barrier\ns_waitcnt vmcnt(0)")
    validated(k, zsg, range(65, 92, 2), 3)
    stamp(k, 7)
    def zfin(k):
        for r in range(2):
            combine_half(k, 64+2*r, 4, 7, 14, 128, 4+2*r, 20); finish_rstd(k, 4+2*r, 1792)
        k.e(f"v_add_u32 v3, {L_ZS}, v14")
    spread(k, zfin, OPT.zsp-1)
    k.e("ds_write_b128 v3, v[4:7]\ns_waitcnt lgkmcnt(0)\ns_barrier")
    nf = (4//OPT.nfill if OPT.nfill else 1)
    zb = g+1+OPT.zsp
    fb = zb+nf+1+OPT.vmd
    cb = 28 if OPT.own2 else 26
    assert fb <= cb
    bars(k, fb-zb)
    set_flag(k, 9)
    flag_addr(k, 9, F_U, S_M, S_N)
    bars(k, cb-fb)
    sample(k, 10)
    k.e("s_barrier")
    poll(k, 10, 16, pre=True)
    stamp(k, 8)
    poll_addr(k, 10, F_U, S_M)
    if OPT.dsx:
        ops = {1: "ds_write_b128 v60, v[4:7]", 2: "ds_write_b64 v60, v[4:5]", 3: "ds_write_b32 v60, v4", 4: "ds_read_b128 v[64:67], v60",
               5: "ds_write_b128 v60, v[4:7]\nds_write_b128 v60, v[4:7] offset:1024\nds_write_b128 v60, v[4:7] offset:2048\nds_write_b128 v60, v[4:7] offset:3072",
               6: "ds_write_b128 v61, v[4:7]", 7: "s_mov_b64 exec, 1\nds_write_b32 v60, v4\ns_mov_b64 exec, -1"}[OPT.dsx]
        k.e(f"v_add_u32 v60, {L_CW}, v2\nv_lshlrev_b32 v61, 1, v14\nv_add_u32 v61, {L_CW}, v61")
        bars(k, 63-cb-25)
        for i in range(6):
            k.e(ops); bars(k, 4)
        k.e("s_waitcnt lgkmcnt(0)\ns_barrier")
    else:
        bars(k, 63-cb)
    set_flag(k, 9)
    k.e("L_a_p5:")
    poll(k, 10, 14)
    k.e("s_barrier")
    k.e("s_branch L_fin")
    k.e("L_a_helper:")
    k.e("s_barrier")
    helper_pf(k)
    poll_addr(k, 10, F_U, S_M)
    k.e("s_branch L_a_p5")

def gelu_tile(k, a, cs, s):
    G = 4; t = 48
    for g in range(0, 8, G):
        R_ = range(g, g+G)
        for i in R_:
            y = a+2*i; k.e(f"v_pk_fma_f32 v[{y}:{y+1}], v[{cs+2*i}:{cs+2*i+1}], v[{s}:{s+1}], v[{y}:{y+1}] op_sel_hi:[1,0,1]")
        for i in R_:
            p = t+2*(i-g); y = a+2*i; k.e(f"v_pk_mul_f32 v[{p}:{p+1}], v[{y}:{y+1}], v[{y}:{y+1}]")
        for i in R_:
            p = t+2*(i-g); k.e(f"v_pk_fma_f32 v[{p}:{p+1}], v[{p}:{p+1}], v[{s+2}:{s+3}], v[{s}:{s+1}] op_sel:[0,0,1] op_sel_hi:[1,0,1]")
        for i in R_:
            p = t+2*(i-g); y = a+2*i; k.e(f"v_pk_mul_f32 v[{p}:{p+1}], v[{p}:{p+1}], v[{y}:{y+1}]")
        for j in range(2*G): k.e(f"v_exp_f32 v{t+j}, v{t+j}")
        for i in range(G): k.e(f"v_pk_fma_f32 v[{t+2*i}:{t+2*i+1}], v[{t+2*i}:{t+2*i+1}], v[{s+2}:{s+3}], v[{s+2}:{s+3}] op_sel:[0,1,1] op_sel_hi:[1,1,1]")
        for j in range(2*G): k.e(f"v_rcp_f32 v{t+j}, v{t+j}")
        for i in R_:
            p = t+2*(i-g); y = a+2*i; k.e(f"v_pk_mul_f32 v[{y}:{y+1}], v[{y}:{y+1}], v[{p}:{p+1}]")

def gelu_fill(a, cs, s, i0, n, t=48):
    E = range(n); L = []
    L += [f"v_fmac_f32 v{a+i0+j}, v{cs+i0+j}, v{s}" for j in E]
    L += [f"v_mul_f32 v{t+j}, v{a+i0+j}, v{a+i0+j}" for j in E]
    L += [f"v_fma_f32 v{t+j}, v{t+j}, v{s+2}, v{s+1}" for j in E]
    L += [f"v_mul_f32 v{t+j}, v{t+j}, v{a+i0+j}" for j in E]
    L += [f"v_exp_f32 v{t+j}, v{t+j}" for j in E]
    L += [f"v_fma_f32 v{t+j}, v{t+j}, v{s+3}, v{s+3}" for j in E]
    L += [f"v_rcp_f32 v{t+j}, v{t+j}" for j in E]
    L += [f"v_mul_f32 v{t+j}, v{t+j}, v{a+i0+j}" for j in E]
    L += [f"v_cvt_pk_bf16_f32 v{a+(i0+j)//2}, v{t+j}, v{t+j+1}" for j in range(0, n, 2)]
    return L

def consumer(k):
    c1, c2, c3, c4, c5 = cfgs()
    R = Regs(); R.aS = 8; R.aF = 12; R.fr = 16; R.acc = 64
    k.e(f"s_mov_b32 s{S_K}, {f2u(LOG2E)}\ns_mov_b32 s{S_K+1}, {f2u(LOG2E)}")
    c = c1; C = Cons(k, c, R)
    consumer_addr(k, c, R)
    C.zero()
    k.e("s_waitcnt lgkmcnt(0)")
    mk_srd(k, SRD_B, P_X, 4*MB); mk_srd(k, SRD_W, P_WS, WS_END)
    stamp(k, 0)
    aWP=240; aXS=241; aCQ=242; aCV=243; aVS=244; aPW=245; aVX=247; aVW=248; aPR=249; L16=15
    tr_lane_base(k, aWP, 3, 9, rowshift=6, swz=False)
    k.e(f"""s_lshl_b32 s{S_T}, s{S_WN}, 11
    s_add_u32 s{S_T}, s{S_T}, {L_WPHI}
    v_add_u32 v{aWP}, s{S_T}, v{aWP}
    v_lshrrev_b32 v3, 5, v1
    v_and_b32 v4, 31, v1
    s_lshl_b32 s{S_T}, s{S_WM}, 8
    s_add_u32 s{S_T}, s{S_T}, {L_XS}
    v_lshl_add_u32 v{aXS}, v4, 2, s{S_T}
    v_lshl_add_u32 v{aVS}, v3, 4, s{S_T}
    s_mul_i32 s{S_T+1}, s{S_WN}, 384
    s_add_u32 s{S_T+1}, s{S_T+1}, {L_CQ}
    v_lshl_add_u32 v{aCQ}, v3, 5, s{S_T+1}
    v_and_b32 v7, 0x13, v4
    v_bfe_u32 v5, v4, 2, 1
    v_lshl_or_b32 v7, v5, 3, v7
    v_bfe_u32 v5, v4, 3, 1
    v_lshl_or_b32 v7, v5, 2, v7
    v_lshl_add_u32 v{aCV}, v7, 2, s{S_T+1}
    v_lshlrev_b32 v5, 2, v3
    v_xor_b32 v5, v4, v5
    v_lshlrev_b32 v5, 4, v5
    v_lshl_add_u32 v5, v3, 9, v5
    s_lshl_b32 s{S_T}, s{S_WN}, 14
    s_lshl_b32 s{S_T+1}, s{S_WM}, 13
    s_add_u32 s{S_T+2}, s{S_T}, s{S_T+1}
    v_add_u32 v{aPW}, s{S_T+2}, v5
    v_xor_b32 v{aPW+1}, 128, v{aPW}
    v_lshlrev_b32 v{L16}, 4, v1
    s_lshl_b32 s{S_T+3}, s{S_WN}, 13
    v_add_u32 v{aVX}, s{S_T+3}, v{L16}
    s_lshl_b32 s{S_T+4}, s{S_WM}, 12
    v_add_u32 v{aVW}, s{S_T+4}, v{aVX}
    v_lshlrev_b32 v14, 13, v3
    v_lshl_add_u32 v14, v4, 4, v14""")
    blk_tr_base(k, aPR, 2, 3, 2)
    k.e(f"""s_lshl_b32 s{S_T+1}, s{S_WM}, 11
    s_add_u32 s{S_T+1}, s{S_T+1}, s{S_T}
    v_add_u32 v{aPR}, s{S_T+1}, v{aPR}
    v_xor_b32 v{aPR+1}, 128, v{aPR}""")
    ONES=60
    for i in range(4): k.e(f"v_mov_b32 v{ONES+i}, 0x3f803f80")
    k.e(f"""s_lshl_b32 s{S_T}, s{S_WN}, 1
    s_add_u32 s{S_T}, s{S_T}, s{S_WM}
    s_lshl_b32 s{S_T+1}, s{S_N}, 2
    s_add_u32 s{S_T}, s{S_T}, s{S_T+1}
    s_lshl_b32 s{S_T+2}, s{S_T}, 15
    s_lshl_b32 s{S_T+1}, s{S_M}, 9
    s_add_u32 s{S_T+2}, s{S_T+2}, s{S_T+1}
    s_add_u32 s{S_T+2}, s{S_T+2}, {WS_KVP}
    s_add_u32 s{S_T+3}, s{S_T+2}, 16384
    s_lshl_b32 s{S_T+4}, s{S_T}, 10
    s_lshl_b32 s{S_T+1}, s{S_M}, 6
    s_add_u32 s{S_T+4}, s{S_T+4}, s{S_T+1}
    s_add_u32 s{S_T+4}, s{S_T+4}, {WS_ZP}
    s_lshl_b32 s{S_T}, s{S_N}, 1
    s_add_u32 s{S_T}, s{S_T}, s{S_WN}
    s_lshl_b32 s{S_T+14}, s{S_T}, 12
    s_add_u32 s{S_T+14}, s{S_T+14}, {WS_KVF}
    s_lshl_b32 s{S_T+12}, s{S_M}, 2
    s_lshl_b32 s{S_T+1}, s{S_WM}, 1
    s_add_u32 s{S_T+12}, s{S_T+12}, s{S_T+1}
    s_lshl_b32 s{S_T+12}, s{S_T+12}, 16
    s_lshl_b32 s{S_T+1}, s{S_T}, 11
    s_add_u32 s{S_T+12}, s{S_T+12}, s{S_T+1}
    s_add_u32 s{S_T+12}, s{S_T+12}, {WS_O}
    s_add_u32 s{S_T+13}, s{S_T+12}, 65536""")
    k.e("s_barrier")
    stamp(k, 1)
    C.first_reads(); C.loop(16)
    stamp(k, 2)
    Q0,Q1,K0,K1,V0,V1 = 64,80,96,112,128,144
    WP=224; KB=24; VB=40; PK=160; PQ=192; ST=232
    k.e(f"""ds_read2st64_b32 v[{ST}:{ST+1}], v{aXS} offset0:0 offset1:2
    ds_read2_b32 v[{ST+2}:{ST+3}], v{aXS} offset0:32 offset1:160""")
    for q in range(4): k.e(f"ds_read_b128 v[{160+4*q}:{163+4*q}], v{aCQ} offset:{128 + (q>>1)*64 + (q&1)*16}")
    k.e("s_waitcnt lgkmcnt(6)")
    for cc in range(2):
        for rd in range(2):
            k.e(f"ds_read_b64_tr_b16 v[{WP+4*cc+2*rd}:{WP+4*cc+2*rd+1}], v{aWP} offset:{cc*1024+rd*256}")
    k.e(f"ds_read_b32 v236, v{aCV} offset:256")
    k.e("s_waitcnt lgkmcnt(5)")
    for a_ in range(4):
        k.e(f"ds_read_b128 v[{192+4*a_}:{195+4*a_}], v{aVS} offset:{a_*32}\nds_read_b128 v[{208+4*a_}:{211+4*a_}], v{aVS} offset:{512+a_*32}")
    def corrT(a, cs, s):
        for g in range(0, 8, 4):
            for i in range(g, g+4):
                p = 16+2*(i-g); k.e(f"v_pk_mul_f32 v[{p}:{p+1}], v[{cs+2*i}:{cs+2*i+1}], v[{s}:{s+1}] op_sel_hi:[1,0]")
            for i in range(g, g+4):
                p = 16+2*(i-g); y = a+2*i; k.e(f"v_pk_fma_f32 v[{y}:{y+1}], v[{y}:{y+1}], v[{s}:{s+1}], v[{p}:{p+1}] op_sel:[0,1,0] op_sel_hi:[1,1,1]")
    def corrN(a):
        for i in range(8): k.e(f"v_pk_mul_f32 v[{192+2*i}:{193+2*i}], v[{192+2*i}:{193+2*i}], v[236:237] op_sel_hi:[1,0]")
        for i in range(8): k.e(f"v_pk_fma_f32 v[{a+2*i}:{a+2*i+1}], v[{a+2*i}:{a+2*i+1}], v[{208+2*i}:{209+2*i}], v[{192+2*i}:{193+2*i}]")
    corrT(K0, 160, ST); corrT(K1, 160, ST+2)
    cvt16(k, KB, K0); cvt16(k, KB+8, K1)
    k.e("s_waitcnt lgkmcnt(0)")
    for st in range(2):
        k.e(f"{MF} v[{PK+16*st}:{PK+16*st+15}], v[{WP}:{WP+3}], v[{KB+8*st}:{KB+8*st+3}], 0")
        k.e(f"{MF} v[{PK+16*st}:{PK+16*st+15}], v[{WP+4}:{WP+7}], v[{KB+8*st+4}:{KB+8*st+7}], v[{PK+16*st}:{PK+16*st+15}]")
    corrN(V0)
    for a_ in range(4):
        k.e(f"ds_read_b128 v[{192+4*a_}:{195+4*a_}], v{aVS} offset:{128+a_*32}\nds_read_b128 v[{208+4*a_}:{211+4*a_}], v{aVS} offset:{640+a_*32}")
    cvt16(k, VB, V0)
    EP=96; EN=112; T=56; OP=16; ON=24
    def phk_out(st):
        k.e(f"""ds_write_b128 v{aPW}, v[{OP}:{OP+3}] offset:{L_PHK+st*4096}
        ds_write_b128 v{aPW+1}, v[{OP+4}:{OP+7}] offset:{L_PHK+st*4096+1024}
        ds_write_b128 v{aPW}, v[{ON}:{ON+3}] offset:{L_PHK+st*4096+2048}
        ds_write_b128 v{aPW+1}, v[{ON+4}:{ON+7}] offset:{L_PHK+st*4096+3072}""")
    softmax_pm(k, PK, EP, EN, T, OP, ON)
    k.e("s_waitcnt lgkmcnt(0)")
    phk_out(0)
    corrN(V1)
    cvt16(k, VB+8, V1)
    for i in range(4): k.e(f"ds_write_b128 v{aVW}, v[{VB+4*i}:{VB+4*i+3}] offset:{L_VX+i*1024}")
    for q in range(4): k.e(f"ds_read_b128 v[{192+4*q}:{195+4*q}], v{aCQ} offset:{(q>>1)*64 + (q&1)*16}")
    softmax_pm(k, PK+16, EP, EN, T, OP, ON)
    k.e("s_waitcnt lgkmcnt(0)")
    phk_out(1)
    k.e("s_waitcnt lgkmcnt(0)\ns_barrier")
    stamp(k, 3)
    AF=96; VF_=128; KV=160; ZZ=176; QB=32
    def rdkc(kc):
        off = L_PHK + (kc>>1)*4096 + (kc&1)*256
        k.e(f"""ds_read_b64_tr_b16 v[{AF+4*kc}:{AF+4*kc+1}], v{aPR} offset:{off}
        ds_read_b64_tr_b16 v[{AF+4*kc+2}:{AF+4*kc+3}], v{aPR+1} offset:{off}
        ds_read_b128 v[{VF_+4*kc}:{VF_+4*kc+3}], v{aVX} offset:{L_VX+kc*1024}""")
    for kc in range(5): rdkc(kc)
    for kc in range(8):
        k.e(f"s_waitcnt lgkmcnt({3*(min(kc+5, 8)-kc-1)})")
        k.e(f"{MF} v[{KV}:{KV+15}], v[{AF+4*kc}:{AF+4*kc+3}], v[{VF_+4*kc}:{VF_+4*kc+3}], {'0' if kc==0 else f'v[{KV}:{KV+15}]'}")
        if kc+5 < 8: rdkc(kc+5)
    for kc in range(8):
        k.e(f"{MF} v[{ZZ}:{ZZ+15}], v[{AF+4*kc}:{AF+4*kc+3}], v[{ONES}:{ONES+3}], {'0' if kc==0 else f'v[{ZZ}:{ZZ+15}]'}")
        if kc == 2:
            k.e("s_nop 7\ns_nop 1")
            for i in range(4): k.e(f"v_cvt_pk_bf16_f32 v{16+i}, v{KV+2*i}, v{KV+2*i+1}")
            k.e(f"buffer_store_dwordx4 v[16:19], v14, {W}, s{S_T+2} offen sc1")
        if kc == 3:
            for i in range(4, 8): k.e(f"v_cvt_pk_bf16_f32 v{16+i}, v{KV+2*i}, v{KV+2*i+1}")
            k.e(f"buffer_store_dwordx4 v[20:23], v14, {W}, s{S_T+3} offen sc1")
    k.e("v_lshrrev_b32 v2, 1, v1\ns_nop 7\ns_nop 2")
    cvt16(k, 24, ZZ)
    k.e(f"""s_mov_b32 exec_lo, 1
    s_mov_b32 exec_hi, 1
    buffer_store_dwordx4 v[24:27], v2, {W}, s{S_T+4} offen sc1
    buffer_store_dwordx4 v[28:31], v2, {W}, s{S_T+4} offen offset:32 sc1
    s_mov_b64 exec, -1
    s_barrier""")
    stamp(k, 4)
    def corrT2(a, cs, s):
        for g in range(0, 8, 4):
            for i in range(g, g+4):
                p = 48+2*(i-g); k.e(f"v_pk_mul_f32 v[{p}:{p+1}], v[{cs+2*i}:{cs+2*i+1}], v[{s}:{s+1}] op_sel_hi:[1,0]")
            for i in range(g, g+4):
                p = 48+2*(i-g); y = a+2*i; k.e(f"v_pk_fma_f32 v[{y}:{y+1}], v[{y}:{y+1}], v[{s}:{s+1}], v[{p}:{p+1}] op_sel:[0,1,0] op_sel_hi:[1,1,1]")
    corrT2(Q0, 192, ST); corrT2(Q1, 192, ST+2)
    cvt16(k, QB, Q0); cvt16(k, QB+8, Q1)
    k.e("s_nop 0")
    for st in range(2):
        k.e(f"{MF} v[{PQ+16*st}:{PQ+16*st+15}], v[{WP}:{WP+3}], v[{QB+8*st}:{QB+8*st+3}], 0")
        k.e(f"{MF} v[{PQ+16*st}:{PQ+16*st+15}], v[{WP+4}:{WP+7}], v[{QB+8*st+4}:{QB+8*st+7}], v[{PQ+16*st}:{PQ+16*st+15}]")
    k.e(f"""v_lshrrev_b32 v3, 5, v1
    v_lshlrev_b32 v3, 4, v3
    s_lshl_b32 s{S_T}, s{S_WN}, 7
    v_add_u32 v3, s{S_T}, v3""")
    def p25_addr():
        tile_map(k, 4, 8, 16)
        k.e(f"""s_lshl_b32 s{S_T}, s{S_M}, 2
        s_add_u32 s{S_T}, s{S_T}, s{S_WAVE}
        s_lshl_b32 s{S_T+1}, s{S_T}, 16
        s_lshl_b32 s{S_T+2}, s{S_N}, 7
        s_add_u32 s{S_T+2}, s{S_T+2}, s{S_T+1}
        v_and_b32 v4, 31, v1
        v_lshlrev_b32 v14, 11, v4
        v_lshrrev_b32 v5, 5, v1
        v_lshl_add_u32 v14, v5, 4, v14
        v_add_u32 v14, s{S_T+2}, v14""")
    p25_addr()
    RS = 224
    for i in range(4): k.e(f"buffer_load_dwordx4 v[{RS+4*i}:{RS+4*i+3}], v14, {srd(SRD_B)}, 0 offen offset:{32*i}")
    k.e(f"""s_lshl_b32 s{S_T+2}, s{S_N}, 12
    s_add_u32 s{S_T+2}, s{S_T+2}, s{S_T+1}
    s_add_u32 s{S_T+2}, s{S_T+2}, {WS_H}
    v_add_u32 v10, s{S_T+2}, v{L16}
    s_lshl_b32 s{S_T}, s{S_T}, 8
    s_lshl_b32 s{S_T+1}, s{S_N}, 14
    s_add_u32 s{S_T}, s{S_T}, s{S_T+1}
    s_add_u32 s{S_T}, s{S_T}, {WS_HST}
    v_lshlrev_b32 v9, 3, v4
    v_add_u32 v9, s{S_T}, v9""")
    PH=128; EP=64; EN=80
    softmax_pm(k, PQ, EP, EN, T, PH, PH+8)
    softmax_pm(k, PQ+16, EP, EN, T, PH+16, PH+24)
    stamp(k, 21)
    k.e("s_barrier")
    KF=16; ZF=32; NUM=64; DEN=96
    def kfg():
        for i in range(4): k.e(f"buffer_load_dwordx4 v[{KF+4*i}:{KF+4*i+3}], v{L16}, {W}, s{S_T+14} offen offset:{i*1024} sc1")
    kfg()
    for i in range(4): k.e(f"ds_read_b128 v[{ZF+4*i}:{ZF+4*i+3}], v3 offset:{L_Z+i*32}")
    k.e("s_waitcnt lgkmcnt(0)")
    for st in range(2):
        for i in range(4):
            b = PH+16*st+4*i
            k.e(f"{MF} v[{DEN+16*st}:{DEN+16*st+15}], v[{ZF+4*i}:{ZF+4*i+3}], v[{b}:{b+3}], {'0' if i==0 else f'v[{DEN+16*st}:{DEN+16*st+15}]'}")
    k.e("s_waitcnt vmcnt(0)")
    validated(k, kfg, range(KF, KF+16), 2)
    stamp(k, 5)
    for st in range(2):
        for i in range(4):
            b = PH+16*st+4*i
            k.e(f"{MF} v[{NUM+16*st}:{NUM+16*st+15}], v[{KF+4*i}:{KF+4*i+3}], v[{b}:{b+3}], {'0' if i==0 else f'v[{NUM+16*st}:{NUM+16*st+15}]'}")
    for st in range(2):
        d = DEN+16*st
        k.e(f"v_add_f32 v{d}, {f2u(1e-6)}, v{d}\nv_rcp_f32 v{d}, v{d}")
    k.e("s_nop 3")
    for st in range(2):
        d = DEN+16*st; n = NUM+16*st; o = 160+8*st
        for hh in range(2):
            for i in range(4*hh, 4*hh+4): k.e(f"v_pk_mul_f32 v[{n+2*i}:{n+2*i+1}], v[{n+2*i}:{n+2*i+1}], v[{d}:{d+1}] op_sel_hi:[1,0]")
            for i in range(4*hh, 4*hh+4): k.e(f"v_cvt_pk_bf16_f32 v{o+i}, v{n+2*i}, v{n+2*i+1}")
            k.e(f"buffer_store_dwordx4 v[{o+4*hh}:{o+4*hh+3}], v{L16}, {W}, s{S_T+12+st} offen offset:{1024*hh} sc1")
    c = c2; C = Cons(k, c, R)
    consumer_addr(k, c, R); C.zero()
    k.e("s_waitcnt vmcnt(0)\ns_barrier")
    stamp(k, 6)
    k.e("s_barrier\ns_barrier")
    stamp(k, 7)
    C.first_reads(); C.loop(16)
    k.e("s_waitcnt lgkmcnt(0)")
    stamp(k, 8)
    k.e("s_nop 7")
    A = 64
    for i in range(16):
        t = 16 + 2*(i & 1)
        unpack(k, t, t+1, RS+i)
        k.e(f"v_pk_add_f32 v[{A+2*i}:{A+2*i+1}], v[{A+2*i}:{A+2*i+1}], v[{t}:{t+1}]")
        k.e(f"v_cvt_pk_bf16_f32 v{RS+i}, v{A+2*i}, v{A+2*i+1}")
        if i & 3 == 3:
            j = i >> 2
            k.e(f"buffer_store_dwordx4 v[{RS+4*j}:{RS+3+4*j}], v10, {W}, 0 offen offset:{1024*j} sc1")
    for i in range(16): unpack(k, A+2*i, A+2*i+1, RS+i)
    k.e(f"v_pk_add_f32 v[20:21], v[{A}:{A+1}], v[{A+2}:{A+3}]\nv_pk_add_f32 v[22:23], v[{A+4}:{A+5}], v[{A+6}:{A+7}]")
    for i in range(4, 16):
        t = 20 + 2*(i & 1); k.e(f"v_pk_add_f32 v[{t}:{t+1}], v[{t}:{t+1}], v[{A+2*i}:{A+2*i+1}]")
    k.e("v_pk_add_f32 v[20:21], v[20:21], v[22:23]\nv_add_f32 v20, v20, v21")
    xswap_sum1(k, 20, 21)
    k.e(f"v_mul_f32 v20, {f2u(1/64.)}, v20")
    for i in range(16):
        k.e(f"v_pk_add_f32 v[{A+2*i}:{A+2*i+1}], v[{A+2*i}:{A+2*i+1}], v[20:21] op_sel_hi:[1,0] neg_lo:[0,1] neg_hi:[0,1]")
    k.e(f"v_pk_mul_f32 v[22:23], v[{A}:{A+1}], v[{A}:{A+1}]\nv_pk_mul_f32 v[24:25], v[{A+2}:{A+3}], v[{A+2}:{A+3}]")
    for i in range(2, 16):
        t = 22 + 2*(i & 1); k.e(f"v_pk_fma_f32 v[{t}:{t+1}], v[{A+2*i}:{A+2*i+1}], v[{A+2*i}:{A+2*i+1}], v[{t}:{t+1}]")
    k.e("v_pk_add_f32 v[22:23], v[22:23], v[24:25]\nv_add_f32 v22, v22, v23")
    xswap_sum1(k, 22, 23)
    k.e(f"""v_mov_b32 v21, v22
    s_mov_b32 exec_hi, 0
    buffer_store_dwordx2 v[20:21], v9, {W}, 0 offen sc1
    s_mov_b32 exec_hi, -1
    s_waitcnt vmcnt(1)
    s_barrier""")
    stamp(k, 9)
    k.e("s_cmp_ge_u32 s2, 224\ns_cbranch_scc1 L_c_helper")
    c = c3
    tile_map(k, 4, 7, 14)
    Ra = Regs(); Ra.aS = 8; Ra.aF = 12; Ra.fr = 16; Ra.acc = 128
    Ca = Cons(k, c, Ra); Cb = Cons(k, c, R)
    consumer_addr(k, c, R); Ca.zero(); Cb.zero()
    mk_srd(k, SRD_A, P_BSP, 4096)
    k.e(f"""v_and_b32 v14, 31, v1
    v_lshlrev_b32 v2, 1, v14
    s_lshl_b32 s{S_T+2}, s{S_M}, 8
    s_lshl_b32 s{S_T+3}, s{S_WM}, 7
    s_add_u32 s{S_T+2}, s{S_T+2}, s{S_T+3}
    buffer_load_ushort v240, v2, {srd(SRD_A)}, s{S_T+2} offen
    buffer_load_ushort v242, v2, {srd(SRD_A)}, s{S_T+2} offen offset:64
    s_lshl_b32 s{S_T}, s{S_WM}, 6
    v_add_u32 v14, s{S_T}, v14
    v_lshlrev_b32 v62, 3, v14
    v_add_u32 v62, {L_ZS}, v62
    v_lshlrev_b32 v14, 4, v14
    v_add_u32 v14, {L_HS}, v14
    v_lshrrev_b32 v7, 5, v1
    v_lshlrev_b32 v9, 5, v7
    s_lshl_b32 s{S_T}, s{S_WN}, 8
    s_add_u32 s{S_T}, s{S_T}, {L_CS}
    v_add_u32 v9, s{S_T}, v9
    v_and_b32 v10, 31, v1
    v_lshlrev_b32 v11, 2, v7
    v_xor_b32 v10, v10, v11
    v_lshlrev_b32 v10, 4, v10
    v_lshl_add_u32 v10, v7, 9, v10
    v_xor_b32 v11, 128, v10
    v_lshlrev_b32 v63, 3, v1
    s_lshl_b32 s{S_T}, s{S_WM}, 9
    s_lshl_b32 s{S_T+1}, s{S_WN}, 10
    s_add_u32 s{S_T}, s{S_T}, s{S_T+1}
    s_add_u32 s{S_T}, s{S_T}, {L_ZP}
    v_add_u32 v63, s{S_T}, v63
    s_lshl_b32 s{S_T+12}, s{S_N}, 19
    s_lshl_b32 s{S_T+1}, s{S_M}, 15
    s_add_u32 s{S_T+12}, s{S_T+12}, s{S_T+1}
    s_lshl_b32 s{S_T+1}, s{S_WM}, 14
    s_add_u32 s{S_T+12}, s{S_T+12}, s{S_T+1}
    s_lshl_b32 s{S_T+1}, s{S_WN}, 12
    s_add_u32 s{S_T+12}, s{S_T+12}, s{S_T+1}
    s_add_u32 s{S_T+12}, s{S_T+12}, {WS_Z2N}
    s_add_u32 s{S_T+13}, s{S_T+12}, 8192""")
    k.e("s_barrier\ns_waitcnt vmcnt(2)\ns_barrier")
    stamp(k, 10)
    Ca.first_reads(); Ca.loop(16)
    stamp(k, 11)
    CS = 192; HS = 244
    def load_cs(half):
        for ft in range(2):
            for q in range(4):
                k.e(f"ds_read_b128 v[{CS+16*ft+4*q}:{CS+16*ft+4*q+3}], v9 offset:{half*512 + ft*128 + (q>>1)*64 + (q&1)*16}")
    k.e(f"ds_read_b128 v[{HS}:{HS+3}], v14\nds_read_b128 v[{HS+4}:{HS+7}], v14 offset:512\ns_waitcnt lgkmcnt(2)")
    load_cs(1)
    k.e("s_waitcnt lgkmcnt(4)\ns_nop 1")
    for ft in range(2):
        if ft == 1: k.e("s_waitcnt lgkmcnt(0)")
        for st in range(2): gelu_tile(k, Ca.acc(st, ft), CS+16*ft, HS+4*st)
    for st in range(2):
        a = Ca.acc(st, 0); b = Ca.acc(st, 1); t = 48+4*st
        k.e(f"v_pk_add_f32 v[{t}:{t+1}], v[{a}:{a+1}], v[{a+2}:{a+3}]\nv_pk_add_f32 v[{t+2}:{t+3}], v[{b}:{b+1}], v[{b+2}:{b+3}]")
        for i in range(2, 8):
            k.e(f"v_pk_add_f32 v[{t}:{t+1}], v[{t}:{t+1}], v[{a+2*i}:{a+2*i+1}]\nv_pk_add_f32 v[{t+2}:{t+3}], v[{t+2}:{t+3}], v[{b+2*i}:{b+2*i+1}]")
        k.e(f"v_pk_add_f32 v[{t}:{t+1}], v[{t}:{t+1}], v[{t+2}:{t+3}]\nv_add_f32 v{56+st}, v{t}, v{t+1}")
    xhalf_sum2(k, 56)
    k.e(f"v_mul_f32 v56, {f2u(1/64.)}, v56\nv_mul_f32 v57, {f2u(1/64.)}, v57")
    for st in range(2):
        sel = "op_sel_hi:[1,0]" if st == 0 else "op_sel:[0,1] op_sel_hi:[1,1]"
        for j, a in enumerate((Ca.acc(st, 0), Ca.acc(st, 1))):
            for i in range(8):
                d = 52+2*(i & 1); u = 48+2*(i & 1)
                k.e(f"v_pk_add_f32 v[{d}:{d+1}], v[{a+2*i}:{a+2*i+1}], v[56:57] {sel} neg_lo:[0,1] neg_hi:[0,1]")
                if j == 0 and i < 2: k.e(f"v_pk_mul_f32 v[{u}:{u+1}], v[{d}:{d+1}], v[{d}:{d+1}]")
                else: k.e(f"v_pk_fma_f32 v[{u}:{u+1}], v[{d}:{d+1}], v[{d}:{d+1}], v[{u}:{u+1}]")
        k.e(f"v_pk_add_f32 v[48:49], v[48:49], v[50:51]\nv_add_f32 v{58+st}, v48, v49")
    k.e("v_cmp_gt_u32 vcc, 32, v1")
    xhalf_sum2(k, 58)
    k.e(f"""v_cndmask_b32 v60, v57, v56, vcc
    v_cndmask_b32 v61, v59, v58, vcc
    ds_write_b64 v63, v[60:61]""")
    load_cs(0)
    k.e("s_waitcnt lgkmcnt(0)")
    stamp(k, 12)
    g = OPT.gat
    n1 = g+1+OPT.zsp-16+1
    Cb.loop(n1)
    k.e(f"ds_read_b64 v[2:3], v62\nds_read_b64 v[4:5], v62 offset:256\ns_waitcnt lgkmcnt(0)")
    stamp(k, 13)
    def norm_tile(st, ft, packed):
        s = 2+2*st; a = Ca.acc(st, ft); L = []
        for hh in range(2):
            if packed:
                L += [f"v_pk_fma_f32 v[{a+2*i}:{a+2*i+1}], v[{a+2*i}:{a+2*i+1}], v[{s}:{s+1}], v[{s}:{s+1}] op_sel:[0,1,0] op_sel_hi:[1,1,0]" for i in range(4*hh, 4*hh+4)]
            else:
                L += [f"v_fma_f32 v{a+i}, v{a+i}, v{s+1}, v{s}" for i in range(8*hh, 8*hh+8)]
            L += [f"v_cvt_pk_bf16_f32 v{a+8*hh+i}, v{a+8*hh+2*i}, v{a+8*hh+2*i+1}" for i in range(4)]
            L += [f"buffer_store_dwordx4 v[{a+8*hh}:{a+8*hh+3}], v{10+hh}, {W}, s{S_T+12+st} offen offset:{ft*2048+hh*1024} sc1"]
        return L
    tiles = [(st, ft) for st in range(2) for ft in range(2)]
    if OPT.nfill:
        for j in range(0, 4, OPT.nfill):
            L = []
            for st, ft in tiles[j:j+OPT.nfill]: L += norm_tile(st, ft, False)
            Cb.loop(1, fillers=L)
        nf = 4//OPT.nfill
    else:
        for st, ft in tiles:
            for ins in norm_tile(st, ft, True): k.e(ins)
        Cb.loop(1); nf = 1
    if OPT.vmd: Cb.loop(OPT.vmd)
    Cb.loop(1, pre_barrier="vm")
    zl = [f"v_mov_b64 v[{128+i}:{129+i}], 0" for i in range(0, 64, 2)]
    Cb.loop(1, fillers=zl)
    Cb.loop(16-n1-nf-2-OPT.vmd)
    k.e("s_waitcnt lgkmcnt(0)")
    stamp(k, 14)
    c = c4; C = Cons(k, c, Ra)
    consumer_addr(k, c, Ra, slot_from_sgpr=True)
    C.first_reads()
    if not OPT.z1fill:
        for ft in range(2):
            for st in range(2):
                a = Cb.acc(st, ft)
                gelu_tile(k, a, CS+16*ft, HS+4*st); cvt16(k, a, a)
    stamp(k, 15)
    if OPT.z1fill:
        zn = OPT.z1n; per = 16//zn
        for j in range(4*per):
            st, ft = (j // per) & 1, j // (2*per)
            C.loop(1, fillers=gelu_fill(Cb.acc(st, ft), CS+16*ft, HS+4*st, zn*(j % per), zn))
        if 4*per < 32: C.loop(32-4*per)
    else:
        C.loop(32)
    k.e("s_waitcnt lgkmcnt(0)")
    stamp(k, 16)
    k.e(f"""s_lshl_b32 s{S_T}, s{S_M}, 2
    s_lshl_b32 s{S_T+1}, s{S_WM}, 1
    s_add_u32 s{S_T}, s{S_T}, s{S_T+1}
    s_mul_i32 s{S_T}, s{S_T}, 112
    s_lshl_b32 s{S_T+1}, s{S_N}, 3
    s_add_u32 s{S_T}, s{S_T}, s{S_T+1}
    s_lshl_b32 s{S_T+1}, s{S_WN}, 2
    s_add_u32 s{S_T}, s{S_T}, s{S_T+1}
    s_lshl_b32 s{S_T}, s{S_T}, 10
    s_add_u32 s{S_T+12}, s{S_T}, {WS_U}
    s_add_u32 s{S_T+13}, s{S_T+12}, {112*1024}
    v_lshlrev_b32 v240, 16, v240
    v_lshlrev_b32 v242, 16, v242""")
    for ft in range(2):
        for st in range(2):
            a = C.acc(st, ft); z = Cb.acc(st, ft); b = 240+2*st; o = 16+8*(ft*2+st)
            for i in range(8):
                t = 52+2*(i & 1)
                k.e(f"v_pk_add_f32 v[{a+2*i}:{a+2*i+1}], v[{a+2*i}:{a+2*i+1}], v[{b}:{b+1}] op_sel_hi:[1,0]")
                unpack(k, t, t+1, z+i)
                k.e(f"v_pk_mul_f32 v[{a+2*i}:{a+2*i+1}], v[{a+2*i}:{a+2*i+1}], v[{t}:{t+1}]")
                k.e(f"v_cvt_pk_bf16_f32 v{o+i}, v{a+2*i}, v{a+2*i+1}")
                if i & 3 == 3:
                    k.e(f"buffer_store_dwordx4 v[{o+i-3}:{o+i}], v{L16}, {W}, s{S_T+12+st} offen offset:{ft*2048+(i>>2)*1024} sc1")
    k.e("s_waitcnt vmcnt(0)\ns_barrier")
    stamp(k, 17)
    k.e("L_c_p5:")
    c = c5; C = Cons(k, c, R)
    p25_addr()
    consumer_addr(k, c, R); C.zero()
    mk_srd(k, SRD_B, P_OUT, 4*MB)
    k.e("s_barrier\ns_barrier")
    stamp(k, 18)
    C.first_reads(); C.loop(28)
    k.e("s_waitcnt lgkmcnt(0)")
    stamp(k, 19)
    k.e("s_nop 7")
    for i in range(16):
        t = 16 + 2*(i & 1)
        unpack(k, t, t+1, RS+i)
        k.e(f"v_pk_add_f32 v[{A+2*i}:{A+2*i+1}], v[{A+2*i}:{A+2*i+1}], v[{t}:{t+1}]")
        k.e(f"v_cvt_pk_bf16_f32 v{32+i}, v{A+2*i}, v{A+2*i+1}")
        if i & 3 == 3:
            j = i >> 2
            k.e(f"buffer_store_dwordx4 v[{32+4*j}:{35+4*j}], v14, {srd(SRD_B)}, 0 offen offset:{32*j}")
    k.e("s_branch L_fin")
    k.e("L_c_helper:")
    k.e("s_barrier")
    helper_pf(k)
    stamp(k, 17)
    k.e("s_branch L_c_p5")

def build():
    k = Kern("p")
    k.e("s_cmp_ge_u32 s2, 256\ns_cbranch_scc1 L_end")
    k.e("s_load_dwordx16 s[32:47], s[0:1], 0\ns_load_dwordx8 s[48:55], s[0:1], 64")
    k.e(f"v_lshrrev_b32 v2, 6, v0\nv_and_b32 v1, 63, v0\nv_readfirstlane_b32 s{S_WAVE}, v2")
    if OPT.stamps: k.e("v_mov_b32 v255, 0\nv_mov_b32 v254, 0\nv_mov_b32 v253, 0\ns_mov_b32 s97, 0")
    ITST[0] = OPT.stamps > 1; ITST[1] = 254; CAP[0] = OPT.cap
    tile_map(k, 8, 4, 16)
    k.e(f"s_cmp_lt_u32 s{S_WAVE}, 4\ns_cbranch_scc1 L_cons")
    k.e(f"s_and_b32 s{S_LW}, s{S_WAVE}, 1\ns_sub_u32 s{S_Q}, s{S_WAVE}, 4\ns_cmp_ge_u32 s{S_WAVE}, 6\ns_cbranch_scc1 L_aux")
    if OPT.pl: k.e(f"s_setprio {OPT.pl}")
    loader(k)
    k.e("L_aux:")
    if OPT.pa: k.e(f"s_setprio {OPT.pa}")
    aux(k)
    k.e("L_cons:")
    if OPT.pc: k.e(f"s_setprio {OPT.pc}")
    consumer(k)
    k.e("L_fin:")
    if OPT.stamps:
        k.e("s_waitcnt vmcnt(0)")
        stamp(k, 20)
        mk_srd(k, SRD_D, P_WS, 2*MB, WS_END)
        k.e(f"""s_lshl_b32 s{S_T}, s2, 3
        s_add_u32 s{S_T}, s{S_T}, s{S_WAVE}
        s_lshl_b32 s{S_T}, s{S_T}, 8
        v_lshlrev_b32 v2, 2, v1
        buffer_store_dword v255, v2, {srd(SRD_D)}, s{S_T} offen
        s_add_u32 s{S_T}, s{S_T}, 0x80000
        buffer_store_dword v254, v2, {srd(SRD_D)}, s{S_T} offen
        s_add_u32 s{S_T}, s{S_T}, 0x80000
        buffer_store_dword v253, v2, {srd(SRD_D)}, s{S_T} offen""")
    k.e("L_end:\ns_endpgm")
    out = [f"; @launch grid=(256,1,1) block=(512,1,1) lds={L_END}",
           '.amdgcn_target "amdgcn-amd-amdhsa--gfx950"\n.text', header(KNAME) + k.text(), '.section .rodata,"a"', descriptor(KNAME, 256, 100)]
    return "\n".join(out)

if __name__ == "__main__":
    for a in sys.argv[2:]:
        kk, v = a.split("="); setattr(OPT, kk, int(v))
    open(sys.argv[1], "w").write(build())
```

```python
import sys, struct
from core3 import *
import core3

MB = 1<<20
WS_O=4*MB; WS_H=8*MB; WS_Z2N=20*MB; WS_U=28*MB
WS_KVP=36*MB; WS_ZP=38*MB; WS_KVF=38*MB+131072; WS_XS=39*MB; WS_CQP=39*MB+65536; WS_CSP=39*MB+512*1024
WS_HST=40*MB; WS_ZST=41*MB
FLS=4352
WS_FLAG=42*MB; F_O=WS_FLAG; F_H=WS_FLAG+16*FLS; F_Z=WS_FLAG+32*FLS; F_U=WS_FLAG+48*FLS
WS_END=43*MB
P_X=0; P_WQKV=1; P_WPHI=2; P_WO=3; P_WIN=5; P_WSP=6; P_BSP=7; P_WOUT=8; P_OUT=9; P_DBG=10; P_WS=11
S_Q=92
L_CW=131072
L_WPHI=147456; L_XS=L_WPHI+4096; L_CQ=L_XS+1024; L_HS=L_CQ+1024; L_CS=L_HS+2048; L_ZP=L_CS+1024; L_ZS=L_ZP+2048; L_END=L_ZS+1024
KNAME = "sequential_preLN__linear_kernel_hedgehog__mixer_gmlp__prompt_kernel"

def f2u(x): return struct.unpack("<I", struct.pack("<f", x))[0]
LOG2E = 1.4426950408889634
C0 = -2*LOG2E*0.7978845608028654; C1 = C0*0.044715
MF = "v_mfma_f32_32x32x16_bf16"
W = srd(SRD_W)

class Opt:
    stamps = 0
    pf = 1
    slp = 2
    gat = 18
    spq = 5
    z1fill = 1
    nfill = 2
    p1ph = 1
    own2 = 1
    p4ph = 0
    vprio = 0
    zsp = 2
    dsx = 0
    probe = 0
    pwg = -1
    cap = 0
    vmd = 1
    z1n = 2
    pa = 3
    pl = 2
    pc = 0
    kvslp = 0
OPT = Opt()

def unpack(k, lo, hi, src):
    k.e(f"v_lshlrev_b32 v{lo}, 16, v{src}\nv_and_b32 v{hi}, 0xffff0000, v{src}")
def cvt16(k, dst, src):
    for i in range(8): k.e(f"v_cvt_pk_bf16_f32 v{dst+i}, v{src+2*i}, v{src+2*i+1}")
def stamp(k, i):
    if OPT.stamps:
        k.e(f"s_memrealtime s[{S_ST}:{S_ST+1}]\ns_waitcnt lgkmcnt(0)\nv_writelane_b32 v255, s{S_ST}, {i}")
def bars(k, n):
    if n <= 4:
        for _ in range(n): k.e("s_barrier")
    else:
        t = k.lab("bars")
        k.e(f"s_mov_b32 s{S_CNT}, {n}\n{t}:\ns_barrier\ns_sub_u32 s{S_CNT}, s{S_CNT}, 1\ns_cmp_lg_u32 s{S_CNT}, 0\ns_cbranch_scc1 {t}")

def check_flags(k, nflags, val, oklab):
    k.e(f"""v_cmp_{'le' if val > 1 else 'eq'}_u32 vcc, {val}, v8
    s_and_b32 s{S_T+11}, vcc_lo, {(1<<nflags)-1}
    s_cmp_eq_u32 s{S_T+11}, {(1<<nflags)-1}
    s_cbranch_scc1 {oklab}""")
def spin_tail(k, top):
    k.e(f"s_sleep {OPT.slp}\ns_sub_u32 s{S_T+10}, s{S_T+10}, 1\ns_cmp_lg_u32 s{S_T+10}, 0\ns_cbranch_scc1 {top}")
def poll(k, voff, nflags, srdn=SRD_W, val=1, pre=False):
    top = k.lab("poll"); done = k.lab("polld")
    k.e(f"s_cmp_lg_u32 s{S_LW}, 0\ns_cbranch_scc1 {done}")
    if pre:
        k.e("s_waitcnt vmcnt(0)")
        check_flags(k, nflags, val, done)
    k.e(f"s_mov_b32 s{S_T+10}, 0x40000\n{top}:")
    k.e(f"buffer_load_dword v8, v{voff}, {srd(srdn)}, 0 offen sc1\ns_waitcnt vmcnt(0)")
    check_flags(k, nflags, val, done)
    spin_tail(k, top)
    k.e(f"{done}:")
def sample(k, voff, srdn=SRD_W):
    sk = k.lab("nosm")
    k.e(f"s_cmp_lg_u32 s{S_LW}, 0\ns_cbranch_scc1 {sk}\nbuffer_load_dword v8, v{voff}, {srd(srdn)}, 0 offen sc1\n{sk}:")
def tagcheck(k, regs, t, ok):
    regs = list(regs)
    if len(regs) % 2 == 0:
        k.e(f"v_max_u32 v{t}, v{regs[0]}, v{regs[1]}"); rest = regs[2:]
    else:
        k.e(f"v_max3_u32 v{t}, v{regs[0]}, v{regs[1]}, v{regs[2]}"); rest = regs[3:]
    for i in range(0, len(rest), 2): k.e(f"v_max3_u32 v{t}, v{t}, v{rest[i]}, v{rest[i+1]}")
    k.e(f"v_cmp_eq_u32 vcc, -1, v{t}\ns_cmp_eq_u64 vcc, 0\ns_cbranch_scc1 {ok}")
def validated(k, gather, regs, t, pre=True):
    top = k.lab("vsp"); ok = k.lab("vok")
    if pre: tagcheck(k, regs, t, ok)
    k.e(f"s_mov_b32 s{S_T+10}, 0x40000\n{top}:")
    gather()
    k.e("s_waitcnt vmcnt(0)")
    tagcheck(k, regs, t, ok)
    spin_tail(k, top)
    k.e(f"{ok}:")

def flag_addr(k, vset, base, sline, sidx):
    k.e(f"""s_mul_i32 s{S_T}, s{sline}, {FLS}
    s_lshl_b32 s{S_T+1}, s{sidx}, 2
    s_add_u32 s{S_T}, s{S_T}, s{S_T+1}
    s_add_u32 s{S_T}, s{S_T}, {base}
    v_mov_b32 v{vset}, s{S_T}""")
def poll_addr(k, vp, base, sline):
    k.e(f"""s_mul_i32 s{S_T}, s{sline}, {FLS}
    s_add_u32 s{S_T}, s{S_T}, {base}
    v_and_b32 v{vp}, 15, v1
    v_lshlrev_b32 v{vp}, 2, v{vp}
    v_add_u32 v{vp}, s{S_T}, v{vp}""")
def set_flag(k, vset):
    sk = k.lab("nofl")
    k.e(f"""s_cmp_lg_u32 s{S_LW}, 0
    s_cbranch_scc1 {sk}
    s_mov_b64 exec, 1
    buffer_store_dword v11, v{vset}, {W}, 0 offen sc1
    s_mov_b64 exec, -1
    {sk}:""")

def softmax_pm(k, P, EP, EN, T, OP, ON):
    L = S_K
    k.e(f"v_max3_f32 v{T}, v{P}, v{P+1}, v{P+2}\nv_min3_f32 v{T+1}, v{P}, v{P+1}, v{P+2}")
    for i in range(3, 15, 2):
        k.e(f"v_max3_f32 v{T}, v{T}, v{P+i}, v{P+i+1}\nv_min3_f32 v{T+1}, v{T+1}, v{P+i}, v{P+i+1}")
    k.e(f"""v_max_f32 v{T}, v{T}, v{P+15}
    v_max_f32 v{T+1}, -v{T+1}, -v{P+15}
    s_nop 1
    v_permlane32_swap_b32 v{T}, v{T+1}
    v_max_f32 v{T}, v{T}, v{T+1}
    v_mul_f32 v{T}, {f2u(-LOG2E)}, v{T}
    v_mov_b32 v{T+1}, v{T}
    s_nop 1
    v_permlane32_swap_b32 v{T}, v{T+1}""")
    for i in range(8):
        k.e(f"v_pk_fma_f32 v[{EP+2*i}:{EP+2*i+1}], v[{P+2*i}:{P+2*i+1}], s[{L}:{L+1}], v[{T}:{T+1}] op_sel_hi:[1,1,0]")
        k.e(f"v_pk_fma_f32 v[{EN+2*i}:{EN+2*i+1}], v[{P+2*i}:{P+2*i+1}], s[{L}:{L+1}], v[{T}:{T+1}] op_sel:[0,0,1] op_sel_hi:[1,1,1] neg_lo:[0,1,0] neg_hi:[0,1,0]")
    for i in range(16):
        k.e(f"v_exp_f32 v{EP+i}, v{EP+i}\nv_exp_f32 v{EN+i}, v{EN+i}")
    k.e(f"v_pk_add_f32 v[{T}:{T+1}], v[{EP}:{EP+1}], v[{EP+2}:{EP+3}]\nv_pk_add_f32 v[{T+2}:{T+3}], v[{EN}:{EN+1}], v[{EN+2}:{EN+3}]")
    for i in range(2, 8):
        k.e(f"v_pk_add_f32 v[{T}:{T+1}], v[{T}:{T+1}], v[{EP+2*i}:{EP+2*i+1}]\nv_pk_add_f32 v[{T+2}:{T+3}], v[{T+2}:{T+3}], v[{EN+2*i}:{EN+2*i+1}]")
    k.e(f"""v_add_f32 v{T}, v{T}, v{T+1}
    v_add_f32 v{T+1}, v{T+2}, v{T+3}
    s_nop 1
    v_permlane32_swap_b32 v{T}, v{T+1}
    v_add_f32 v{T}, v{T}, v{T+1}
    v_rcp_f32 v{T}, v{T}
    s_nop 0
    v_mov_b32 v{T+1}, v{T}
    s_nop 1
    v_permlane32_swap_b32 v{T}, v{T+1}""")
    for i in range(8):
        k.e(f"v_pk_mul_f32 v[{EP+2*i}:{EP+2*i+1}], v[{EP+2*i}:{EP+2*i+1}], v[{T}:{T+1}] op_sel_hi:[1,0]")
        k.e(f"v_pk_mul_f32 v[{EN+2*i}:{EN+2*i+1}], v[{EN+2*i}:{EN+2*i+1}], v[{T}:{T+1}] op_sel:[0,1] op_sel_hi:[1,1]")
    cvt16(k, OP, EP); cvt16(k, ON, EN)

def xhalf_sum2(k, a):
    k.e(f"""s_nop 1
    v_permlane32_swap_b32 v{a}, v{a+1}
    v_add_f32 v{a}, v{a}, v{a+1}
    v_mov_b32 v{a+1}, v{a}
    s_nop 1
    v_permlane32_swap_b32 v{a}, v{a+1}""")
def xswap_sum1(k, a, t, which=32):
    k.e(f"v_mov_b32 v{t}, v{a}\ns_nop 1\nv_permlane{which}_swap_b32 v{a}, v{t}\nv_add_f32 v{a}, v{a}, v{t}")
def xswap_sum(k, a, t, n, which):
    for i in range(n): k.e(f"v_mov_b32 v{t+i}, v{a+i}")
    k.e("s_nop 1")
    for i in range(n): k.e(f"v_permlane{which}_swap_b32 v{a+i}, v{t+i}")
    for i in range(n): k.e(f"v_add_f32 v{a+i}, v{a+i}, v{t+i}")
def ror_sum(k, a, n, sh):
    k.e("s_nop 1")
    for i in range(n): k.e(f"v_add_f32_dpp v{a+i}, v{a+i}, v{a+i} row_ror:{sh} row_mask:0xf bank_mask:0xf")
def acc_bf16(k, A, src, n, first, t, plain=False):
    for j in range(n):
        if first: unpack(k, A+2*j, A+2*j+1, src+j)
        elif plain:
            tt = t+2*(j & 1)
            unpack(k, tt, tt+1, src+j)
            k.e(f"v_add_f32 v{A+2*j}, v{A+2*j}, v{tt}\nv_add_f32 v{A+2*j+1}, v{A+2*j+1}, v{tt+1}")
        else:
            tt = t+2*(j & 1)
            unpack(k, tt, tt+1, src+j)
            k.e(f"v_pk_add_f32 v[{A+2*j}:{A+2*j+1}], v[{A+2*j}:{A+2*j+1}], v[{tt}:{tt+1}]")
def combine(k, P, n, cnt, d, t):
    k.e(f"v_pk_add_f32 v[{d}:{d+1}], v[{P}:{P+1}], v[{P+2}:{P+3}]")
    for i in range(2, n): k.e(f"v_pk_add_f32 v[{d}:{d+1}], v[{d}:{d+1}], v[{P+2*i}:{P+2*i+1}]")
    k.e(f"v_mul_f32 v{d}, {f2u(1.0/n)}, v{d}\nv_mov_b32 v{t+1}, 0")
    for i in range(n): k.e(f"v_sub_f32 v{t}, v{P+2*i}, v{d}\nv_fmac_f32 v{t+1}, v{t}, v{t}")
    k.e(f"v_fmac_f32 v{d+1}, {f2u(float(cnt))}, v{t+1}")
def finish_rstd(k, d, total):
    k.e(f"""v_mul_f32 v{d+1}, {f2u(1.0/total)}, v{d+1}
    v_add_f32 v{d+1}, {f2u(1e-5)}, v{d+1}
    v_rsq_f32 v{d+1}, v{d+1}
    s_nop 0
    v_mul_f32 v{d}, -v{d}, v{d+1}""")

def cfgs():
    c1 = Cfg(128,192,16,3,2,2,1, 2048, 6144, [(0,0),(1,0),(2,0)], True, False, orient=['T','T','N'], smode='rows', baseS=0, baseF=49152, kbase=OPT.spq)
    c2 = Cfg(128,64,16,4,4,1,2, 2048, 2048, [(0,0),(0,1)], False, False, smode='frag', auxS="sc1")
    c3 = Cfg(128,128,16,4,2,2,1, 2048, 7168, [(0,0),(0,1)], False, True, smode='frag', auxS="sc1", slot0=2)
    c4 = Cfg(128,128,32,4,2,2,1, 4096, 0, [(0,0),(0,1)], False, True, smode='rows', fmode='blk', auxF="sc1", rot=(-1,0,0,1) if OPT.own2 else (-1,0,2,-1), own2=bool(OPT.own2))
    c5 = Cfg(128,64,28,4,4,1,2, 3584, 2048, [(0,0),(0,1)], False, False, smode='frag', auxS="sc1", baseF=114688, slot0=2)
    return c1, c2, c3, c4, c5
VS=16; VF=24; VS4=36; VF4=44
L_PHK=0; L_VX=32768; L_Z=57344

def tail_barriers(k, c, extra=0):
    for r in range(c.NS-1):
        k.e(f"s_waitcnt vmcnt({max(c.NS-2-r,0)*c.nI + extra})\ns_barrier")

def win_loads(k, tag):
    mk_srd(k, SRD_A, P_WO, 2*MB); mk_srd(k, SRD_B, P_WIN, 7*MB)
    k.e(f"""s_lshl_b32 s{S_T}, s2, 2
    s_add_u32 s{S_T}, s{S_T}, s{S_Q}
    s_lshl_b32 s{S_T+1}, s{S_T}, 11
    v_lshlrev_b32 v3, 7, v1
    s_mov_b64 exec, 0xffff
    buffer_load_dword v250, v3, {srd(SRD_A)}, s{S_T+1} offen
    s_mov_b64 exec, -1
    s_and_b32 s{S_T}, s2, 15
    s_lshl_b32 s{S_T}, s{S_T}, 2
    s_add_u32 s{S_T}, s{S_T}, s{S_Q}
    s_mul_i32 s{S_T}, s{S_T}, {16*7168}
    s_lshr_b32 s{S_T+1}, s2, 4
    s_lshl_b32 s{S_T+1}, s{S_T+1}, 9
    s_add_u32 s{S_T}, s{S_T}, s{S_T+1}
    s_cmp_ge_u32 s2, 224
    s_cselect_b32 s{S_T}, {7*MB}, s{S_T}
    v_lshrrev_b32 v3, 5, v1
    v_mul_u32_u24 v3, 7168, v3
    v_and_b32 v4, 31, v1
    v_lshl_add_u32 v3, v4, 4, v3""")
    for j in range(8):
        k.e(f"buffer_load_dwordx4 v[{192+4*j}:{195+4*j}], v3, {srd(SRD_B)}, s{S_T} offen\ns_add_u32 s{S_T}, s{S_T}, {2*7168}")
    return 9
def win_reduce(k):
    for j in range(8): acc_bf16(k, 224, 192+4*j, 4, j == 0, 232)
    xswap_sum(k, 224, 232, 8, 32)
    k.e(f"""s_lshl_b32 s{S_T}, s{S_Q}, 10
    s_add_u32 s{S_T}, s{S_T}, {L_CW}
    v_and_b32 v4, 31, v1
    v_lshl_add_u32 v4, v4, 5, s{S_T}
    ds_write_b128 v4, v[224:227]
    ds_write_b128 v4, v[228:231] offset:16
    s_waitcnt lgkmcnt(0)""")

def helper_pf(k):
    if not OPT.pf: return
    mk_srd(k, SRD_A, P_WSP, 8*MB); mk_srd(k, SRD_B, P_WOUT, 1792*2048)
    k.e(f"""s_sub_u32 s{S_T}, s2, 224
    s_lshl_b32 s{S_T+1}, s{S_T}, 18
    s_lshl_b32 s{S_T+2}, s{S_WAVE}, 7
    s_add_u32 s{S_T+1}, s{S_T+1}, s{S_T+2}
    v_lshlrev_b32 v2, 12, v1""")
    for i in range(4): k.e(f"buffer_load_dword v3, v2, {srd(SRD_A)}, s{S_T+1} offen offset:{i*1024}")
    k.e(f"""s_lshl_b32 s{S_T}, s{S_T}, 3
    s_add_u32 s{S_T}, s{S_T}, s{S_WAVE}
    s_mul_i32 s{S_T}, s{S_T}, {112*128}
    s_add_u32 s{S_T+1}, s{S_T}, {48*128}
    v_lshlrev_b32 v2, 7, v1
    buffer_load_dword v3, v2, {srd(SRD_B)}, s{S_T} offen
    buffer_load_dword v3, v2, {srd(SRD_B)}, s{S_T+1} offen
    s_waitcnt vmcnt(0)""")

def loader(k):
    c1, c2, c3, c4, c5 = cfgs()
    k.e(f"s_lshl_b32 s{S_M0W}, s{S_LW}, 10")
    c = c1
    if OPT.p1ph:
        inv = [0]*4
        for u, d in enumerate(c.rot): inv[(u+d) & 3] = -d
        packed = sum(((d+8) & 15) << (4*u) for u, d in enumerate(inv))
        k.e(f"""s_sub_u32 s{S_T}, s{S_M}, s{S_PH}
        s_and_b32 s{S_T}, s{S_T}, 3
        s_lshl_b32 s{S_T}, s{S_T}, 2
        s_lshr_b32 s{S_T}, {packed}, s{S_T}
        s_and_b32 s{S_T}, s{S_T}, 15
        s_add_u32 s{S_T}, s{S_T}, s{S_M}
        s_sub_u32 s{S_T}, s{S_T}, 8
        s_and_b32 s{S_KB}, s{S_T}, 15""")
    else:
        k.e(f"s_mov_b32 s{S_KB}, s{S_M}\ns_mov_b32 s{S_PH}, s{S_N}")
    k.e(f"s_lshl_b32 s{S_T0}, s{S_N}, 7")
    loader_voff_S(k, c, VS)
    loader_voff_F(k, c, VF, S_T0, lambda P: P*2048)
    k.e("s_waitcnt lgkmcnt(0)")
    mk_srd(k, SRD_S, P_X, 4*MB); mk_srd(k, SRD_F, P_WQKV, 6*MB)
    stamp(k, 0)
    issue_first(k, c, VS, VF, "SF")
    mk_srd(k, SRD_W, P_WS, WS_END)
    steady(k, c, VS, VF, 16)
    n = win_loads(k, "l")
    tail_barriers(k, c, n)
    tile_map(k, 4, 8, 16)
    c = c2
    mk_srd(k, SRD_S, P_WS, 4*MB, WS_O); mk_srd(k, SRD_F, P_WO, 2*MB)
    k.e(f"s_lshl_b32 s{S_T0}, s{S_N}, 7")
    loader_voff_S(k, c, VS); loader_voff_F(k, c, VF, S_T0, lambda P: 0)
    k.e("s_barrier")
    issue_first(k, c, VS, VF, "F", pbarrier=False)
    k.e(f"s_waitcnt vmcnt({c.NS*c.nF})")
    win_reduce(k)
    k.e("s_barrier")
    k.e(f"""s_cmp_lg_u32 s{S_LW}, 0
    s_cbranch_scc1 L_l_nocs
    s_cmp_ge_u32 s2, 224
    s_cbranch_scc1 L_l_nocs
    v_lshlrev_b32 v2, 4, v1
    v_add_u32 v3, {L_CW}, v2""")
    for i in range(4): k.e(f"ds_read_b128 v[{192+4*i}:{195+4*i}], v3 offset:{i*1024}")
    k.e(f"""s_and_b32 s{S_T}, s2, 15
    s_mul_i32 s{S_T}, s{S_T}, 14336
    s_lshr_b32 s{S_T+1}, s2, 4
    s_lshl_b32 s{S_T+1}, s{S_T+1}, 10
    s_add_u32 s{S_T}, s{S_T}, s{S_T+1}
    s_add_u32 s{S_T}, s{S_T}, {WS_CSP}
    s_waitcnt lgkmcnt(0)""")
    for i in range(1, 4):
        k.e(f"v_pk_add_f32 v[192:193], v[192:193], v[{192+4*i}:{193+4*i}]\nv_pk_add_f32 v[194:195], v[194:195], v[{194+4*i}:{195+4*i}]")
    k.e(f"buffer_store_dwordx4 v[192:195], v2, {W}, s{S_T} offen sc1\nL_l_nocs:")
    bars(k, 4)
    stamp(k, 4)
    issue_first(k, c, VS, VF, "S")
    after_split_prologue(k, c, VS, VF, c.nS)
    steady(k, c, VS, VF, c.T)
    k.e("s_cmp_ge_u32 s2, 224\ns_cbranch_scc1 L_ld_helper")
    c = c3
    tile_map(k, 4, 7, 14)
    mk_srd(k, SRD_S, P_WS, 4*MB, WS_H); mk_srd(k, SRD_F, P_WIN, 7*MB)
    k.e(f"s_lshl_b32 s{S_T0}, s{S_N}, 8\ns_mov_b32 s{S_FB}, 3584")
    loader_voff_F(k, c, VF, S_T0, lambda P: P*128)
    k.e(f"s_waitcnt vmcnt({2*c2.nI})\ns_barrier")
    issue_first(k, c, VS, VF, "F", fbase=True, pbarrier=False, t1=1)
    k.e(f"s_waitcnt vmcnt({c2.nI+c.nF})\ns_barrier")
    issue_first(k, c, VS, VF, "F", fbase=True, pbarrier=False, t0=1, t1=2)
    k.e(f"s_waitcnt vmcnt({2*c.nF})\ns_barrier\ns_barrier")
    loader_voff_S(k, c, VS); loader_voff_S(k, c4, VS4); loader_voff_F(k, c4, VF4)
    bars(k, 2)
    stamp(k, 5)
    ITST[1] = 253
    if ITST[0]: k.e("s_mov_b32 s97, 0")
    issue_first(k, c, VS, VF, "S", t1=2)
    issue_first(k, c, VS, VF, "SF", fbase=True, pbarrier=False, t0=2)
    steady(k, c, VS, VF, 16, fbase=True)
    k.e(f"s_mov_b32 s{S_TAU}, 0\ns_mov_b32 s{S_FB}, 0")
    steady(k, c, VS, VF, 16, fbase=True)
    c = c4
    mk_srd(k, SRD_S, P_WSP, 8*MB); mk_srd(k, SRD_F, P_WS, 7*MB, WS_Z2N)
    k.e(f"s_mov_b32 s{S_TAU}, 0\ns_lshl_b32 s{S_KB}, s{S_M}, 1")
    if OPT.own2 and not OPT.p4ph: k.e(f"s_mov_b32 s{S_PH}, s{S_N}")
    steady(k, c, VS4, VF4, 32)
    def p5_setup():
        tile_map(k, 4, 8, 16)
        mk_srd(k, SRD_S, P_WS, 7*MB, WS_U); mk_srd(k, SRD_F, P_WOUT, 1792*2048)
        k.e(f"s_lshl_b32 s{S_T0}, s{S_N}, 7")
        loader_voff_S(k, c5, VS); loader_voff_F(k, c5, VF, S_T0, lambda P: 0)
        issue_first(k, c5, VS, VF, "F", pbarrier=False, t1=2)
    k.e(f"s_waitcnt vmcnt({2*c.nI})\ns_barrier")
    p5_setup()
    k.e(f"s_waitcnt vmcnt({c.nI+2*c5.nF})\ns_barrier\ns_waitcnt vmcnt({2*c5.nF})\ns_barrier")
    bars(k, 2)
    k.e("L_ld_p5:")
    ITST[1] = 254
    if ITST[0]: k.e("s_mov_b32 s97, 32")
    c = c5
    k.e("s_barrier")
    stamp(k, 9)
    issue_first(k, c, VS, VF, "S", t1=2)
    issue_first(k, c, VS, VF, "SF", pbarrier=False, t0=2)
    steady(k, c, VS, VF, c.T)
    tail_barriers(k, c)
    k.e("s_barrier")
    k.e("s_branch L_fin")
    k.e("L_ld_helper:")
    tail_barriers(k, c2)
    bars(k, 3)
    helper_pf(k)
    p5_setup()
    k.e("s_branch L_ld_p5")

def spread(k, fn, nbar):
    t = Kern(k.name); t.uid = k.uid
    fn(t); k.uid = t.uid
    L = [x.strip() for x in t.L]
    assert not any(x.endswith(":") for x in L)
    wt = lambda x: 10 if x.startswith("buffer_") else (1 if x.startswith(("v_", "ds_")) else 0.25)
    tot = sum(map(wt, L)); acc = 0; nb = 0
    low = OPT.vprio and sum(x.startswith("v_") for x in L) > 20
    if low: k.e("s_setprio 0")
    for x in L:
        k.e(x); acc += wt(x)
        if nb < nbar-1 and acc >= tot*(nb+1)/nbar - 1e-9:
            k.e("s_barrier"); nb += 1
    if low: k.e(f"s_setprio {OPT.pa}")
    while nb < nbar:
        k.e("s_barrier"); nb += 1

def combine_half(k, P, stride, n, ntot, cnt, d, t):
    k.e(f"v_add_f32 v{d}, v{P}, v{P+stride}\nv_add_f32 v{d+1}, v{P+1}, v{P+stride+1}")
    for i in range(2, n): k.e(f"v_add_f32 v{d}, v{d}, v{P+stride*i}\nv_add_f32 v{d+1}, v{d+1}, v{P+stride*i+1}")
    if ntot != n: xswap_sum1(k, d, t)
    k.e(f"v_mul_f32 v{d}, {f2u(1.0/ntot)}, v{d}\nv_sub_f32 v{t}, v{P}, v{d}\nv_mul_f32 v{t+1}, v{t}, v{t}")
    for i in range(1, n): k.e(f"v_sub_f32 v{t}, v{P+stride*i}, v{d}\nv_fmac_f32 v{t+1}, v{t}, v{t}")
    k.e(f"v_fmac_f32 v{d+1}, {f2u(float(cnt))}, v{t+1}")
    if ntot != n: xswap_sum1(k, d+1, t)

def aux(k):
    c1, c2, c3, c4, c5 = cfgs()
    a = S_LW
    k.e(f"""s_lshl_b32 s{S_T}, s{S_M}, 7
    s_lshl_b32 s{S_T+1}, s{S_N}, 3
    s_add_u32 s{S_T}, s{S_T}, s{S_T+1}
    s_lshl_b32 s{S_T+1}, s{a}, 2
    s_add_u32 s{S_T}, s{S_T}, s{S_T+1}
    v_lshrrev_b32 v14, 4, v1
    v_add_u32 v14, s{S_T}, v14
    v_and_b32 v3, 15, v1
    v_lshlrev_b32 v3, 4, v3
    v_lshl_add_u32 v3, v14, 11, v3
    s_waitcnt lgkmcnt(0)""")
    mk_srd(k, SRD_B, P_X, 4*MB)
    for j in range(8): k.e(f"buffer_load_dwordx4 v[{64+4*j}:{67+4*j}], v3, {srd(SRD_B)}, 0 offen offset:{256*j}")
    mk_srd(k, SRD_W, P_WS, WS_END); mk_srd(k, SRD_A, P_WPHI, 65536); mk_srd(k, SRD_D, P_DBG, 256)
    stamp(k, 0)
    q = OPT.spq
    k.e(f"""v_lshlrev_b32 v2, 4, v1
    v_mov_b32 v11, 1
    v_mov_b32 v48, 0
    v_mov_b32 v44, -1
    v_mov_b32 v45, -1
    v_mov_b32 v46, -1
    v_mov_b32 v47, -1
    v_lshrrev_b32 v4, 5, v1
    v_lshlrev_b32 v4, 13, v4
    v_and_b32 v5, 31, v1
    v_lshl_add_u32 v4, v5, 4, v4
    v_bfe_u32 v12, v1, 2, 2
    v_min_u32 v12, 2, v12
    v_lshlrev_b32 v12, 13, v12
    v_lshrrev_b32 v5, 4, v1
    v_lshl_add_u32 v12, v5, 11, v12
    v_and_b32 v5, 3, v1
    v_lshl_add_u32 v12, v5, 4, v12
    v_add_u32 v12, {c1.baseF + (q % 3)*c1.slotF}, v12
    v_bfe_u32 v13, v1, 2, 2
    v_lshl_add_u32 v12, v13, 7, v12
    v_lshrrev_b32 v13, 1, v13
    v_xor_b32 v13, s{a}, v13
    v_lshl_add_u32 v24, v13, 6, v12
    v_xor_b32 v25, 128, v24
    v_xor_b32 v26, 320, v24
    v_xor_b32 v27, 448, v24""")
    X = 128
    for j in range(8):
        k.e(f"s_waitcnt vmcnt({7-j})")
        for i in range(4*j, 4*j+4):
            unpack(k, X+2*i, X+2*i+1, 64+i)
            t = 32+2*(i & 1)
            if i >= 2: k.e(f"v_pk_add_f32 v[{t}:{t+1}], v[{X+2*i-4 if i < 4 else t}:{X+2*i-3 if i < 4 else t+1}], v[{X+2*i}:{X+2*i+1}]")
    k.e("v_pk_add_f32 v[32:33], v[32:33], v[34:35]\nv_add_f32 v32, v32, v33")
    for sh in (8, 4, 2, 1): ror_sum(k, 32, 1, sh)
    k.e(f"v_mul_f32 v32, {f2u(1/1024.)}, v32")
    for i in range(32):
        d = 40+2*(i & 1); t = 34+2*(i & 1)
        k.e(f"v_pk_add_f32 v[{d}:{d+1}], v[{X+2*i}:{X+2*i+1}], v[32:33] op_sel_hi:[1,0] neg_lo:[0,1] neg_hi:[0,1]")
        k.e(f"v_pk_mul_f32 v[{t}:{t+1}], v[{d}:{d+1}], v[{d}:{d+1}]" if i < 2 else f"v_pk_fma_f32 v[{t}:{t+1}], v[{d}:{d+1}], v[{d}:{d+1}], v[{t}:{t+1}]")
    k.e("v_pk_add_f32 v[34:35], v[34:35], v[36:37]\nv_add_f32 v33, v34, v35")
    for sh in (8, 4, 2, 1): ror_sum(k, 33, 1, sh)
    finish_rstd(k, 32, 1024)
    stamp(k, 10)
    k.e("s_barrier")
    def init(k):
        k.e(f"""v_lshlrev_b32 v14, 2, v14
        s_mov_b32 s{S_T}, {WS_XS}
        s_mov_b32 s{S_T+1}, {WS_XS+8192}
        s_mov_b32 exec_lo, 0x10001
        s_mov_b32 exec_hi, 0x10001
        buffer_store_dword v32, v14, {W}, s{S_T} offen sc1
        buffer_store_dword v33, v14, {W}, s{S_T+1} offen sc1
        s_mov_b64 exec, -1
        s_lshl_b32 s{S_T}, s{S_N}, 17
        s_lshl_b32 s{S_T+1}, s{S_M}, 9
        s_add_u32 s{S_T}, s{S_T}, s{S_T+1}
        s_lshl_b32 s{S_T+1}, s{a}, 16
        s_add_u32 s{S_T}, s{S_T}, s{S_T+1}
        s_add_u32 s{S_T}, s{S_T}, {WS_KVP}""")
        for x in range(4): k.e(f"buffer_store_dwordx4 v[44:47], v4, {W}, s{S_T} offen sc1\ns_add_u32 s{S_T}, s{S_T}, 16384")
        k.e(f"""s_lshl_b32 s{S_T+12}, s{S_N}, 4
        s_add_u32 s{S_T+12}, s{S_T+12}, s{S_M}
        s_lshl_b32 s{S_T+12}, s{S_T+12}, 1
        s_add_u32 s{S_T+12}, s{S_T+12}, s{a}
        s_mul_i32 s{S_T+12}, s{S_T+12}, 384
        s_add_u32 s{S_T+12}, s{S_T+12}, {WS_CQP}
        s_mov_b64 exec, 0xffffff
        buffer_store_dwordx4 v[44:47], v2, {W}, s{S_T+12} offen sc1
        s_lshl_b32 s{S_T}, s2, 10
        s_add_u32 s{S_T}, s{S_T}, {WS_HST}
        s_lshl_b32 s{S_T+1}, s2, 9
        s_add_u32 s{S_T+1}, s{S_T+1}, {WS_KVF}
        s_mul_i32 s{S_T+2}, s2, 896
        s_add_u32 s{S_T+3}, s{S_T+2}, {WS_CSP}
        s_add_u32 s{S_T+2}, s{S_T+2}, {WS_ZST}
        s_mov_b32 s{S_T+4}, 0xffffff
        s_cmp_eq_u32 s{a}, 0
        s_cselect_b32 s{S_T}, s{S_T}, s{S_T+2}
        s_cselect_b32 s{S_T+1}, s{S_T+1}, s{S_T+3}
        s_cselect_b32 s{S_T+5}, -1, s{S_T+4}
        s_cselect_b32 s{S_T+6}, 0, s{S_T+4}
        s_mov_b32 exec_lo, -1
        s_mov_b32 exec_hi, s{S_T+5}
        buffer_store_dwordx4 v[44:47], v2, {W}, s{S_T} offen sc1
        s_mov_b32 exec_hi, s{S_T+6}
        buffer_store_dwordx4 v[44:47], v2, {W}, s{S_T+1} offen sc1
        s_mov_b64 exec, -1
        s_mul_i32 s{S_T}, s2, {FLS}
        s_add_u32 s{S_T}, s{S_T}, {WS_FLAG}
        s_cmp_lt_u32 s2, 64
        s_cselect_b32 s{S_T}, s{S_T}, {WS_END}
        s_lshl_b32 s{S_T+1}, s2, 8
        s_add_u32 s{S_T+1}, s{S_T+1}, {WS_ZP}
        s_cmp_eq_u32 s{a}, 0
        s_cselect_b32 s{S_T}, s{S_T}, s{S_T+1}
        s_cselect_b32 s{S_T+1}, 0, -1
        v_mov_b32 v48, s{S_T+1}
        v_lshlrev_b32 v5, 2, v1
        buffer_store_dword v48, v5, {W}, s{S_T} offen sc1
        s_lshl_b32 s{S_T}, s{S_N}, 12
        s_lshl_b32 s{S_T+1}, s{a}, 11
        s_add_u32 s{S_T}, s{S_T}, s{S_T+1}
        s_add_u32 m0, s{S_T+1}, {L_WPHI}
        s_nop 0
        buffer_load_dwordx4 v2, {srd(SRD_A)}, s{S_T} offen lds
        buffer_load_dwordx4 v2, {srd(SRD_A)}, s{S_T} offen offset:1024 lds""")
    spread(k, init, 3)
    k.e("s_barrier\ns_waitcnt vmcnt(0)\ns_barrier")
    k.e(f"""s_cmp_lg_u32 s{a}, 0
    s_cbranch_scc1 L_a_noarr
    s_and_b32 s{S_T}, s2, 7
    s_lshl_b32 s{S_T}, s{S_T}, 5
    v_mov_b32 v4, s{S_T}
    s_mov_b64 exec, 1
    buffer_atomic_add v11, v4, {srd(SRD_D)}, 0 offen sc1
    s_mov_b64 exec, -1
    L_a_noarr:""")
    assert q == 5
    for j in range(16):
        k.e(f"ds_read_b128 v[{64+4*j}:{67+4*j}], v{24 + (j&3)} offset:{(j>>2)*512}")
        if j == 7: k.e("s_waitcnt lgkmcnt(4)")
    k.e("s_waitcnt lgkmcnt(0)\ns_barrier")
    A = 128
    def csum(k):
        for j in range(16): acc_bf16(k, A, 64+4*j, 4, j == 0, 48, plain=True)
        xswap_sum(k, A, 160, 8, 16); xswap_sum(k, A, 160, 8, 32)
        k.e(f"""v_lshlrev_b32 v4, 5, v1
        s_mov_b64 exec, 0xfff
        buffer_store_dwordx4 v[{A}:{A+3}], v4, {W}, s{S_T+12} offen sc1
        buffer_store_dwordx4 v[{A+4}:{A+7}], v4, {W}, s{S_T+12} offen offset:16 sc1
        s_mov_b64 exec, -1
        v_lshlrev_b32 v10, 5, v1""")
    spread(k, csum, 5)
    sample(k, 10, SRD_D)
    k.e(f"""s_lshl_b32 s{S_T+14}, s{a}, 13
    s_lshl_b32 s{S_T+1}, s{S_M}, 9
    s_add_u32 s{S_T+14}, s{S_T+14}, s{S_T+1}
    s_add_u32 s{S_T+14}, s{S_T+14}, {WS_XS}
    s_lshl_b32 s{S_T+1}, s{a}, 9
    s_add_u32 m0, s{S_T+1}, {L_XS}
    s_mul_i32 s{S_T+12}, s{S_N}, {16*768}
    s_mul_i32 s{S_T+13}, s{a}, 384
    s_add_u32 s{S_T+12}, s{S_T+12}, s{S_T+13}
    s_add_u32 s{S_T+12}, s{S_T+12}, {WS_CQP}
    v_and_b32 v12, 31, v1
    v_min_u32 v12, 23, v12
    v_lshlrev_b32 v12, 4, v12
    v_lshrrev_b32 v13, 5, v1
    v_mul_u32_u24 v13, 768, v13
    v_add_u32 v13, v13, v12
    v_lshlrev_b32 v5, 2, v1""")
    k.e("s_barrier")
    poll(k, 10, 8, SRD_D, 32, pre=True)
    stamp(k, 1)
    k.e("s_barrier")
    def cqg():
        k.e(f"s_mov_b32 s{S_T}, s{S_T+12}")
        for i in range(8):
            k.e(f"buffer_load_dwordx4 v[{64+4*i}:{67+4*i}], v13, {W}, s{S_T} offen offset:{(i&1)*1536} sc1")
            if i & 1: k.e(f"s_add_u32 s{S_T}, s{S_T}, 3072")
    cqg()
    k.e(f"buffer_load_dword v5, {W}, s{S_T+14} offen sc1 lds\nbuffer_load_dword v5, {W}, s{S_T+14} offen offset:256 sc1 lds")
    k.e("s_barrier")
    k.e("s_waitcnt vmcnt(0)")
    validated(k, cqg, range(64, 96), 3)
    for i in range(1, 8):
        for j in range(4): k.e(f"v_add_f32 v{64+j}, v{64+j}, v{64+4*i+j}")
    xswap_sum(k, 64, 68, 4, 32)
    k.e(f"s_add_u32 s{S_T+13}, s{S_T+13}, {L_CQ}\nv_add_u32 v3, s{S_T+13}, v12\nds_write_b128 v3, v[64:67]")
    k.e("s_barrier")
    win_loads(k, "a")
    k.e("s_waitcnt lgkmcnt(0)\ns_barrier")
    stamp(k, 2)
    k.e("s_waitcnt vmcnt(0)")
    win_reduce(k)
    flag_addr(k, 9, F_O, S_M, S_N)
    k.e("s_barrier")
    k.e(f"s_cmp_lg_u32 s{a}, 0\ns_cbranch_scc1 L_a_z")
    k.e(f"""s_lshl_b32 s{S_T+12}, s{S_N}, 17
    s_lshl_b32 s{S_T+1}, s{S_M}, 13
    s_add_u32 s{S_T+12}, s{S_T+12}, s{S_T+1}
    s_add_u32 s{S_T+12}, s{S_T+12}, {WS_KVP}
    s_add_u32 s{S_T+13}, s{S_T+12}, 4096
    s_lshl_b32 s{S_T+14}, s{S_N}, 13
    s_lshl_b32 s{S_T+1}, s{S_M}, 9
    s_add_u32 s{S_T+14}, s{S_T+14}, s{S_T+1}
    s_add_u32 s{S_T+14}, s{S_T+14}, {WS_KVF}
    s_barrier""")
    if OPT.kvslp: k.e(f"s_sleep {OPT.kvslp}")
    def kvg():
        for i in range(8): k.e(f"buffer_load_dwordx4 v[{64+4*i}:{67+4*i}], v2, {W}, s{S_T+12+(i>>2)} offen offset:{(i&3)*1024} sc1")
    validated(k, kvg, range(64, 96), 3, pre=False)
    stamp(k, 3)
    for i in range(8): acc_bf16(k, 128, 64+4*i, 4, i == 0, 48)
    xswap_sum(k, 128, 160, 8, 32)
    for i in range(4): k.e(f"v_cvt_pk_bf16_f32 v{52+i}, v{128+2*i}, v{129+2*i}")
    k.e(f"s_mov_b32 exec_hi, 0\nbuffer_store_dwordx4 v[52:55], v2, {W}, s{S_T+14} offen sc1\ns_mov_b32 exec_hi, -1\ns_branch L_a_kvd")
    k.e("L_a_z:")
    k.e(f"""s_lshl_b32 s{S_T+12}, s{S_N}, 12
    s_add_u32 s{S_T+12}, s{S_T+12}, {WS_ZP}
    v_and_b32 v13, 15, v1
    v_lshlrev_b32 v13, 6, v13
    v_lshrrev_b32 v4, 4, v1
    v_lshl_add_u32 v13, v4, 4, v13
    v_lshlrev_b32 v5, 4, v4
    s_barrier""")
    if OPT.kvslp: k.e(f"s_sleep {OPT.kvslp}")
    def zg():
        for i in range(4): k.e(f"buffer_load_dwordx4 v[{64+4*i}:{67+4*i}], v13, {W}, s{S_T+12} offen offset:{i*1024} sc1")
    validated(k, zg, range(64, 80), 3, pre=False)
    stamp(k, 3)
    acc_bf16(k, 128, 64, 16, True, 48)
    for sh in (8, 4, 2, 1): ror_sum(k, 128, 32, sh)
    cvt16(k, 64, 128); cvt16(k, 72, 144)
    for i in range(4): k.e(f"ds_write_b128 v5, v[{64+4*i}:{67+4*i}] offset:{L_Z+i*64}")
    k.e("s_waitcnt lgkmcnt(0)\nL_a_kvd:")
    stamp(k, 4)
    k.e("s_barrier")
    tile_map(k, 4, 8, 16)
    poll_addr(k, 10, F_O, S_M)
    k.e("s_barrier")
    set_flag(k, 9)
    poll(k, 10, 16)
    k.e("s_barrier")
    flag_addr(k, 9, F_H, S_M, S_N); poll_addr(k, 10, F_H, S_M)
    tile_map(k, 4, 7, 14)
    k.e(f"""v_and_b32 v14, 31, v1
    v_lshlrev_b32 v14, 4, v14
    v_lshrrev_b32 v15, 5, v1
    v_mul_u32_u24 v13, {1792*4}, v15
    v_add_u32 v13, v13, v14
    s_lshl_b32 s{S_T}, s{a}, 9
    v_add_u32 v14, s{S_T}, v14
    s_lshl_b32 s{S_T+13}, s{S_N}, 9
    s_add_u32 s{S_T+13}, s{S_T+13}, {WS_CSP}
    s_lshl_b32 s{S_T+12}, s{S_M}, 10
    s_add_u32 s{S_T+12}, s{S_T+12}, {WS_HST}""")
    bars(k, 18)
    set_flag(k, 9)
    k.e("s_cmp_ge_u32 s2, 224\ns_cbranch_scc1 L_a_helper")
    poll(k, 10, 16)
    k.e(f"s_cmp_eq_u32 s{a}, 0\ns_cbranch_scc1 L_a_nocs")
    def cg():
        k.e(f"s_mov_b32 s{S_T}, s{S_T+13}")
        for i in range(16): k.e(f"buffer_load_dwordx4 v[{64+4*i}:{67+4*i}], v13, {W}, s{S_T} offen sc1\ns_add_u32 s{S_T}, s{S_T}, 14336")
    validated(k, cg, range(64, 128), 3, pre=False)
    for i in range(1, 16): k.e(f"v_pk_add_f32 v[64:65], v[64:65], v[{64+4*i}:{65+4*i}]\nv_pk_add_f32 v[66:67], v[66:67], v[{66+4*i}:{67+4*i}]")
    k.e(f"v_add_u32 v3, {L_CS}, v2\nds_write_b128 v3, v[64:67]\nL_a_nocs:")
    k.e("s_barrier")
    k.e(f"v_lshl_add_u32 v13, v15, 17, v14")
    def hg(k=k):
        k.e(f"s_mov_b32 s{S_T}, s{S_T+12}")
        for i in range(8): k.e(f"buffer_load_dwordx4 v[{64+4*i}:{67+4*i}], v13, {W}, s{S_T} offen sc1\ns_add_u32 s{S_T}, s{S_T}, 16384")
    bars(k, 3)
    spread(k, hg, 4)
    k.e("s_barrier\ns_waitcnt vmcnt(0)")
    validated(k, hg, range(65, 96, 2), 3)
    def hfin(k):
        for r in range(2):
            d = 4+4*r if r == 0 else 16
            combine_half(k, 64+2*r, 4, 8, 16, 64, d, 20)
            k.e(f"""v_mul_f32 v{d+1}, {f2u(1.0/1024)}, v{d+1}
            v_add_f32 v{d+1}, {f2u(1e-5)}, v{d+1}
            v_rsq_f32 v20, v{d+1}
            v_sqrt_f32 v{d+3}, v{d+1}
            v_sub_f32 v{d}, 0, v{d}
            v_mul_f32 v{d+1}, {f2u(C0)}, v20
            v_mul_f32 v{d+2}, v20, v20
            v_mul_f32 v{d+2}, v{d+2}, v20
            v_mul_f32 v{d+2}, {f2u(C1)}, v{d+2}""")
        k.e(f"""v_lshlrev_b32 v3, 1, v14
        v_add_u32 v3, {L_HS}, v3
        s_mul_i32 s{S_T+12}, s{S_M}, {14*1024}
        s_add_u32 s{S_T+12}, s{S_T+12}, {WS_ZST}
        s_lshl_b32 s{S_T+13}, s{S_N}, 10
        s_add_u32 s{S_T+13}, s{S_T+13}, s{S_T+12}
        s_lshl_b32 s{S_T}, s{a}, 9
        v_lshlrev_b32 v22, 3, v1
        v_add_u32 v22, s{S_T}, v22
        v_add_u32 v12, {L_ZP}, v22
        v_mul_u32_u24 v13, {7*1024}, v15
        v_add_u32 v13, v13, v14""")
        flag_addr(k, 9, F_Z, S_N, S_M); poll_addr(k, 10, F_Z, S_N)
    spread(k, hfin, 6)
    k.e("ds_write_b128 v3, v[4:7]\nds_write_b128 v3, v[16:19] offset:16")
    k.e("s_barrier\ns_waitcnt lgkmcnt(0)")
    bars(k, 3)
    k.e(f"""ds_read_b64 v[64:65], v12
    ds_read_b64 v[66:67], v12 offset:1024
    s_waitcnt lgkmcnt(0)
    v_add_f32 v4, v64, v66
    v_mul_f32 v4, 0.5, v4
    v_sub_f32 v6, v64, v66
    v_mul_f32 v6, v6, v6
    v_add_f32 v5, v65, v67
    v_fmac_f32 v5, {f2u(32.0)}, v6
    buffer_store_dwordx2 v[4:5], v22, {W}, s{S_T+13} offen sc1""")
    stamp(k, 6)
    g = OPT.gat
    bars(k, g-16)
    def zsg():
        k.e(f"s_add_u32 s{S_T}, s{S_T+12}, 4096")
        for i in range(7):
            k.e(f"buffer_load_dwordx4 v[{64+4*i}:{67+4*i}], v13, {W}, s{S_T+12 if i < 4 else S_T} offen offset:{(i&3)*1024} sc1")
    zsg()
    k.e("s_barrier\ns_waitcnt vmcnt(0)")
    validated(k, zsg, range(65, 92, 2), 3)
    stamp(k, 7)
    def zfin(k):
        for r in range(2):
            combine_half(k, 64+2*r, 4, 7, 14, 128, 4+2*r, 20); finish_rstd(k, 4+2*r, 1792)
        k.e(f"v_add_u32 v3, {L_ZS}, v14")
    spread(k, zfin, OPT.zsp-1)
    k.e("ds_write_b128 v3, v[4:7]\ns_waitcnt lgkmcnt(0)\ns_barrier")
    nf = (4//OPT.nfill if OPT.nfill else 1)
    zb = g+1+OPT.zsp
    fb = zb+nf+1+OPT.vmd
    cb = 28 if OPT.own2 else 26
    assert fb <= cb
    bars(k, fb-zb)
    set_flag(k, 9)
    flag_addr(k, 9, F_U, S_M, S_N)
    bars(k, cb-fb)
    sample(k, 10)
    k.e("s_barrier")
    poll(k, 10, 16, pre=True)
    stamp(k, 8)
    poll_addr(k, 10, F_U, S_M)
    if OPT.dsx:
        ops = {1: "ds_write_b128 v60, v[4:7]", 2: "ds_write_b64 v60, v[4:5]", 3: "ds_write_b32 v60, v4", 4: "ds_read_b128 v[64:67], v60",
               5: "ds_write_b128 v60, v[4:7]\nds_write_b128 v60, v[4:7] offset:1024\nds_write_b128 v60, v[4:7] offset:2048\nds_write_b128 v60, v[4:7] offset:3072",
               6: "ds_write_b128 v61, v[4:7]", 7: "s_mov_b64 exec, 1\nds_write_b32 v60, v4\ns_mov_b64 exec, -1"}[OPT.dsx]
        k.e(f"v_add_u32 v60, {L_CW}, v2\nv_lshlrev_b32 v61, 1, v14\nv_add_u32 v61, {L_CW}, v61")
        bars(k, 63-cb-25)
        for i in range(6):
            k.e(ops); bars(k, 4)
        k.e("s_waitcnt lgkmcnt(0)\ns_barrier")
    else:
        bars(k, 63-cb)
    set_flag(k, 9)
    k.e("L_a_p5:")
    poll(k, 10, 14)
    k.e("s_barrier")
    k.e("s_branch L_fin")
    k.e("L_a_helper:")
    k.e("s_barrier")
    helper_pf(k)
    poll_addr(k, 10, F_U, S_M)
    k.e("s_branch L_a_p5")

def gelu_tile(k, a, cs, s):
    G = 4; t = 48
    for g in range(0, 8, G):
        R_ = range(g, g+G)
        for i in R_:
            y = a+2*i; k.e(f"v_pk_fma_f32 v[{y}:{y+1}], v[{cs+2*i}:{cs+2*i+1}], v[{s}:{s+1}], v[{y}:{y+1}] op_sel_hi:[1,0,1]")
        for i in R_:
            p = t+2*(i-g); y = a+2*i; k.e(f"v_pk_mul_f32 v[{p}:{p+1}], v[{y}:{y+1}], v[{y}:{y+1}]")
        for i in R_:
            p = t+2*(i-g); k.e(f"v_pk_fma_f32 v[{p}:{p+1}], v[{p}:{p+1}], v[{s+2}:{s+3}], v[{s}:{s+1}] op_sel:[0,0,1] op_sel_hi:[1,0,1]")
        for i in R_:
            p = t+2*(i-g); y = a+2*i; k.e(f"v_pk_mul_f32 v[{p}:{p+1}], v[{p}:{p+1}], v[{y}:{y+1}]")
        for j in range(2*G): k.e(f"v_exp_f32 v{t+j}, v{t+j}")
        for i in range(G): k.e(f"v_pk_fma_f32 v[{t+2*i}:{t+2*i+1}], v[{t+2*i}:{t+2*i+1}], v[{s+2}:{s+3}], v[{s+2}:{s+3}] op_sel:[0,1,1] op_sel_hi:[1,1,1]")
        for j in range(2*G): k.e(f"v_rcp_f32 v{t+j}, v{t+j}")
        for i in R_:
            p = t+2*(i-g); y = a+2*i; k.e(f"v_pk_mul_f32 v[{y}:{y+1}], v[{y}:{y+1}], v[{p}:{p+1}]")

def gelu_fill(a, cs, s, i0, n, t=48):
    E = range(n); L = []
    L += [f"v_fmac_f32 v{a+i0+j}, v{cs+i0+j}, v{s}" for j in E]
    L += [f"v_mul_f32 v{t+j}, v{a+i0+j}, v{a+i0+j}" for j in E]
    L += [f"v_fma_f32 v{t+j}, v{t+j}, v{s+2}, v{s+1}" for j in E]
    L += [f"v_mul_f32 v{t+j}, v{t+j}, v{a+i0+j}" for j in E]
    L += [f"v_exp_f32 v{t+j}, v{t+j}" for j in E]
    L += [f"v_fma_f32 v{t+j}, v{t+j}, v{s+3}, v{s+3}" for j in E]
    L += [f"v_rcp_f32 v{t+j}, v{t+j}" for j in E]
    L += [f"v_mul_f32 v{t+j}, v{t+j}, v{a+i0+j}" for j in E]
    L += [f"v_cvt_pk_bf16_f32 v{a+(i0+j)//2}, v{t+j}, v{t+j+1}" for j in range(0, n, 2)]
    return L

def consumer(k):
    c1, c2, c3, c4, c5 = cfgs()
    R = Regs(); R.aS = 8; R.aF = 12; R.fr = 16; R.acc = 64
    k.e(f"s_mov_b32 s{S_K}, {f2u(LOG2E)}\ns_mov_b32 s{S_K+1}, {f2u(LOG2E)}")
    c = c1; C = Cons(k, c, R)
    consumer_addr(k, c, R)
    C.zero()
    k.e("s_waitcnt lgkmcnt(0)")
    mk_srd(k, SRD_B, P_X, 4*MB); mk_srd(k, SRD_W, P_WS, WS_END)
    stamp(k, 0)
    aWP=240; aXS=241; aCQ=242; aCV=243; aVS=244; aPW=245; aVX=247; aVW=248; aPR=249; L16=15
    tr_lane_base(k, aWP, 3, 9, rowshift=6, swz=False)
    k.e(f"""s_lshl_b32 s{S_T}, s{S_WN}, 11
    s_add_u32 s{S_T}, s{S_T}, {L_WPHI}
    v_add_u32 v{aWP}, s{S_T}, v{aWP}
    v_lshrrev_b32 v3, 5, v1
    v_and_b32 v4, 31, v1
    s_lshl_b32 s{S_T}, s{S_WM}, 8
    s_add_u32 s{S_T}, s{S_T}, {L_XS}
    v_lshl_add_u32 v{aXS}, v4, 2, s{S_T}
    v_lshl_add_u32 v{aVS}, v3, 4, s{S_T}
    s_mul_i32 s{S_T+1}, s{S_WN}, 384
    s_add_u32 s{S_T+1}, s{S_T+1}, {L_CQ}
    v_lshl_add_u32 v{aCQ}, v3, 5, s{S_T+1}
    v_and_b32 v7, 0x13, v4
    v_bfe_u32 v5, v4, 2, 1
    v_lshl_or_b32 v7, v5, 3, v7
    v_bfe_u32 v5, v4, 3, 1
    v_lshl_or_b32 v7, v5, 2, v7
    v_lshl_add_u32 v{aCV}, v7, 2, s{S_T+1}
    v_lshlrev_b32 v5, 2, v3
    v_xor_b32 v5, v4, v5
    v_lshlrev_b32 v5, 4, v5
    v_lshl_add_u32 v5, v3, 9, v5
    s_lshl_b32 s{S_T}, s{S_WN}, 14
    s_lshl_b32 s{S_T+1}, s{S_WM}, 13
    s_add_u32 s{S_T+2}, s{S_T}, s{S_T+1}
    v_add_u32 v{aPW}, s{S_T+2}, v5
    v_xor_b32 v{aPW+1}, 128, v{aPW}
    v_lshlrev_b32 v{L16}, 4, v1
    s_lshl_b32 s{S_T+3}, s{S_WN}, 13
    v_add_u32 v{aVX}, s{S_T+3}, v{L16}
    s_lshl_b32 s{S_T+4}, s{S_WM}, 12
    v_add_u32 v{aVW}, s{S_T+4}, v{aVX}
    v_lshlrev_b32 v14, 13, v3
    v_lshl_add_u32 v14, v4, 4, v14""")
    blk_tr_base(k, aPR, 2, 3, 2)
    k.e(f"""s_lshl_b32 s{S_T+1}, s{S_WM}, 11
    s_add_u32 s{S_T+1}, s{S_T+1}, s{S_T}
    v_add_u32 v{aPR}, s{S_T+1}, v{aPR}
    v_xor_b32 v{aPR+1}, 128, v{aPR}""")
    ONES=60
    for i in range(4): k.e(f"v_mov_b32 v{ONES+i}, 0x3f803f80")
    k.e(f"""s_lshl_b32 s{S_T}, s{S_WN}, 1
    s_add_u32 s{S_T}, s{S_T}, s{S_WM}
    s_lshl_b32 s{S_T+1}, s{S_N}, 2
    s_add_u32 s{S_T}, s{S_T}, s{S_T+1}
    s_lshl_b32 s{S_T+2}, s{S_T}, 15
    s_lshl_b32 s{S_T+1}, s{S_M}, 9
    s_add_u32 s{S_T+2}, s{S_T+2}, s{S_T+1}
    s_add_u32 s{S_T+2}, s{S_T+2}, {WS_KVP}
    s_add_u32 s{S_T+3}, s{S_T+2}, 16384
    s_lshl_b32 s{S_T+4}, s{S_T}, 10
    s_lshl_b32 s{S_T+1}, s{S_M}, 6
    s_add_u32 s{S_T+4}, s{S_T+4}, s{S_T+1}
    s_add_u32 s{S_T+4}, s{S_T+4}, {WS_ZP}
    s_lshl_b32 s{S_T}, s{S_N}, 1
    s_add_u32 s{S_T}, s{S_T}, s{S_WN}
    s_lshl_b32 s{S_T+14}, s{S_T}, 12
    s_add_u32 s{S_T+14}, s{S_T+14}, {WS_KVF}
    s_lshl_b32 s{S_T+12}, s{S_M}, 2
    s_lshl_b32 s{S_T+1}, s{S_WM}, 1
    s_add_u32 s{S_T+12}, s{S_T+12}, s{S_T+1}
    s_lshl_b32 s{S_T+12}, s{S_T+12}, 16
    s_lshl_b32 s{S_T+1}, s{S_T}, 11
    s_add_u32 s{S_T+12}, s{S_T+12}, s{S_T+1}
    s_add_u32 s{S_T+12}, s{S_T+12}, {WS_O}
    s_add_u32 s{S_T+13}, s{S_T+12}, 65536""")
    k.e("s_barrier")
    stamp(k, 1)
    C.first_reads(); C.loop(16)
    stamp(k, 2)
    Q0,Q1,K0,K1,V0,V1 = 64,80,96,112,128,144
    WP=224; KB=24; VB=40; PK=160; PQ=192; ST=232
    k.e(f"""ds_read2st64_b32 v[{ST}:{ST+1}], v{aXS} offset0:0 offset1:2
    ds_read2_b32 v[{ST+2}:{ST+3}], v{aXS} offset0:32 offset1:160""")
    for q in range(4): k.e(f"ds_read_b128 v[{160+4*q}:{163+4*q}], v{aCQ} offset:{128 + (q>>1)*64 + (q&1)*16}")
    k.e("s_waitcnt lgkmcnt(6)")
    for cc in range(2):
        for rd in range(2):
            k.e(f"ds_read_b64_tr_b16 v[{WP+4*cc+2*rd}:{WP+4*cc+2*rd+1}], v{aWP} offset:{cc*1024+rd*256}")
    k.e(f"ds_read_b32 v236, v{aCV} offset:256")
    k.e("s_waitcnt lgkmcnt(5)")
    for a_ in range(4):
        k.e(f"ds_read_b128 v[{192+4*a_}:{195+4*a_}], v{aVS} offset:{a_*32}\nds_read_b128 v[{208+4*a_}:{211+4*a_}], v{aVS} offset:{512+a_*32}")
    def corrT(a, cs, s):
        for g in range(0, 8, 4):
            for i in range(g, g+4):
                p = 16+2*(i-g); k.e(f"v_pk_mul_f32 v[{p}:{p+1}], v[{cs+2*i}:{cs+2*i+1}], v[{s}:{s+1}] op_sel_hi:[1,0]")
            for i in range(g, g+4):
                p = 16+2*(i-g); y = a+2*i; k.e(f"v_pk_fma_f32 v[{y}:{y+1}], v[{y}:{y+1}], v[{s}:{s+1}], v[{p}:{p+1}] op_sel:[0,1,0] op_sel_hi:[1,1,1]")
    def corrN(a):
        for i in range(8): k.e(f"v_pk_mul_f32 v[{192+2*i}:{193+2*i}], v[{192+2*i}:{193+2*i}], v[236:237] op_sel_hi:[1,0]")
        for i in range(8): k.e(f"v_pk_fma_f32 v[{a+2*i}:{a+2*i+1}], v[{a+2*i}:{a+2*i+1}], v[{208+2*i}:{209+2*i}], v[{192+2*i}:{193+2*i}]")
    corrT(K0, 160, ST); corrT(K1, 160, ST+2)
    cvt16(k, KB, K0); cvt16(k, KB+8, K1)
    k.e("s_waitcnt lgkmcnt(0)")
    for st in range(2):
        k.e(f"{MF} v[{PK+16*st}:{PK+16*st+15}], v[{WP}:{WP+3}], v[{KB+8*st}:{KB+8*st+3}], 0")
        k.e(f"{MF} v[{PK+16*st}:{PK+16*st+15}], v[{WP+4}:{WP+7}], v[{KB+8*st+4}:{KB+8*st+7}], v[{PK+16*st}:{PK+16*st+15}]")
    corrN(V0)
    for a_ in range(4):
        k.e(f"ds_read_b128 v[{192+4*a_}:{195+4*a_}], v{aVS} offset:{128+a_*32}\nds_read_b128 v[{208+4*a_}:{211+4*a_}], v{aVS} offset:{640+a_*32}")
    cvt16(k, VB, V0)
    EP=96; EN=112; T=56; OP=16; ON=24
    def phk_out(st):
        k.e(f"""ds_write_b128 v{aPW}, v[{OP}:{OP+3}] offset:{L_PHK+st*4096}
        ds_write_b128 v{aPW+1}, v[{OP+4}:{OP+7}] offset:{L_PHK+st*4096+1024}
        ds_write_b128 v{aPW}, v[{ON}:{ON+3}] offset:{L_PHK+st*4096+2048}
        ds_write_b128 v{aPW+1}, v[{ON+4}:{ON+7}] offset:{L_PHK+st*4096+3072}""")
    softmax_pm(k, PK, EP, EN, T, OP, ON)
    k.e("s_waitcnt lgkmcnt(0)")
    phk_out(0)
    corrN(V1)
    cvt16(k, VB+8, V1)
    for i in range(4): k.e(f"ds_write_b128 v{aVW}, v[{VB+4*i}:{VB+4*i+3}] offset:{L_VX+i*1024}")
    for q in range(4): k.e(f"ds_read_b128 v[{192+4*q}:{195+4*q}], v{aCQ} offset:{(q>>1)*64 + (q&1)*16}")
    softmax_pm(k, PK+16, EP, EN, T, OP, ON)
    k.e("s_waitcnt lgkmcnt(0)")
    phk_out(1)
    k.e("s_waitcnt lgkmcnt(0)\ns_barrier")
    stamp(k, 3)
    AF=96; VF_=128; KV=160; ZZ=176; QB=32
    def rdkc(kc):
        off = L_PHK + (kc>>1)*4096 + (kc&1)*256
        k.e(f"""ds_read_b64_tr_b16 v[{AF+4*kc}:{AF+4*kc+1}], v{aPR} offset:{off}
        ds_read_b64_tr_b16 v[{AF+4*kc+2}:{AF+4*kc+3}], v{aPR+1} offset:{off}
        ds_read_b128 v[{VF_+4*kc}:{VF_+4*kc+3}], v{aVX} offset:{L_VX+kc*1024}""")
    for kc in range(5): rdkc(kc)
    for kc in range(8):
        k.e(f"s_waitcnt lgkmcnt({3*(min(kc+5, 8)-kc-1)})")
        k.e(f"{MF} v[{KV}:{KV+15}], v[{AF+4*kc}:{AF+4*kc+3}], v[{VF_+4*kc}:{VF_+4*kc+3}], {'0' if kc==0 else f'v[{KV}:{KV+15}]'}")
        if kc+5 < 8: rdkc(kc+5)
    for kc in range(8):
        k.e(f"{MF} v[{ZZ}:{ZZ+15}], v[{AF+4*kc}:{AF+4*kc+3}], v[{ONES}:{ONES+3}], {'0' if kc==0 else f'v[{ZZ}:{ZZ+15}]'}")
        if kc == 2:
            k.e("s_nop 7\ns_nop 1")
            for i in range(4): k.e(f"v_cvt_pk_bf16_f32 v{16+i}, v{KV+2*i}, v{KV+2*i+1}")
            k.e(f"buffer_store_dwordx4 v[16:19], v14, {W}, s{S_T+2} offen sc1")
        if kc == 3:
            for i in range(4, 8): k.e(f"v_cvt_pk_bf16_f32 v{16+i}, v{KV+2*i}, v{KV+2*i+1}")
            k.e(f"buffer_store_dwordx4 v[20:23], v14, {W}, s{S_T+3} offen sc1")
    k.e("v_lshrrev_b32 v2, 1, v1\ns_nop 7\ns_nop 2")
    cvt16(k, 24, ZZ)
    k.e(f"""s_mov_b32 exec_lo, 1
    s_mov_b32 exec_hi, 1
    buffer_store_dwordx4 v[24:27], v2, {W}, s{S_T+4} offen sc1
    buffer_store_dwordx4 v[28:31], v2, {W}, s{S_T+4} offen offset:32 sc1
    s_mov_b64 exec, -1
    s_barrier""")
    stamp(k, 4)
    def corrT2(a, cs, s):
        for g in range(0, 8, 4):
            for i in range(g, g+4):
                p = 48+2*(i-g); k.e(f"v_pk_mul_f32 v[{p}:{p+1}], v[{cs+2*i}:{cs+2*i+1}], v[{s}:{s+1}] op_sel_hi:[1,0]")
            for i in range(g, g+4):
                p = 48+2*(i-g); y = a+2*i; k.e(f"v_pk_fma_f32 v[{y}:{y+1}], v[{y}:{y+1}], v[{s}:{s+1}], v[{p}:{p+1}] op_sel:[0,1,0] op_sel_hi:[1,1,1]")
    corrT2(Q0, 192, ST); corrT2(Q1, 192, ST+2)
    cvt16(k, QB, Q0); cvt16(k, QB+8, Q1)
    k.e("s_nop 0")
    for st in range(2):
        k.e(f"{MF} v[{PQ+16*st}:{PQ+16*st+15}], v[{WP}:{WP+3}], v[{QB+8*st}:{QB+8*st+3}], 0")
        k.e(f"{MF} v[{PQ+16*st}:{PQ+16*st+15}], v[{WP+4}:{WP+7}], v[{QB+8*st+4}:{QB+8*st+7}], v[{PQ+16*st}:{PQ+16*st+15}]")
    k.e(f"""v_lshrrev_b32 v3, 5, v1
    v_lshlrev_b32 v3, 4, v3
    s_lshl_b32 s{S_T}, s{S_WN}, 7
    v_add_u32 v3, s{S_T}, v3""")
    def p25_addr():
        tile_map(k, 4, 8, 16)
        k.e(f"""s_lshl_b32 s{S_T}, s{S_M}, 2
        s_add_u32 s{S_T}, s{S_T}, s{S_WAVE}
        s_lshl_b32 s{S_T+1}, s{S_T}, 16
        s_lshl_b32 s{S_T+2}, s{S_N}, 7
        s_add_u32 s{S_T+2}, s{S_T+2}, s{S_T+1}
        v_and_b32 v4, 31, v1
        v_lshlrev_b32 v14, 11, v4
        v_lshrrev_b32 v5, 5, v1
        v_lshl_add_u32 v14, v5, 4, v14
        v_add_u32 v14, s{S_T+2}, v14""")
    p25_addr()
    RS = 224
    for i in range(4): k.e(f"buffer_load_dwordx4 v[{RS+4*i}:{RS+4*i+3}], v14, {srd(SRD_B)}, 0 offen offset:{32*i}")
    k.e(f"""s_lshl_b32 s{S_T+2}, s{S_N}, 12
    s_add_u32 s{S_T+2}, s{S_T+2}, s{S_T+1}
    s_add_u32 s{S_T+2}, s{S_T+2}, {WS_H}
    v_add_u32 v10, s{S_T+2}, v{L16}
    s_lshl_b32 s{S_T}, s{S_T}, 8
    s_lshl_b32 s{S_T+1}, s{S_N}, 14
    s_add_u32 s{S_T}, s{S_T}, s{S_T+1}
    s_add_u32 s{S_T}, s{S_T}, {WS_HST}
    v_lshlrev_b32 v9, 3, v4
    v_add_u32 v9, s{S_T}, v9""")
    PH=128; EP=64; EN=80
    softmax_pm(k, PQ, EP, EN, T, PH, PH+8)
    softmax_pm(k, PQ+16, EP, EN, T, PH+16, PH+24)
    stamp(k, 21)
    k.e("s_barrier")
    KF=16; ZF=32; NUM=64; DEN=96
    def kfg():
        for i in range(4): k.e(f"buffer_load_dwordx4 v[{KF+4*i}:{KF+4*i+3}], v{L16}, {W}, s{S_T+14} offen offset:{i*1024} sc1")
    kfg()
    for i in range(4): k.e(f"ds_read_b128 v[{ZF+4*i}:{ZF+4*i+3}], v3 offset:{L_Z+i*32}")
    k.e("s_waitcnt lgkmcnt(0)")
    for st in range(2):
        for i in range(4):
            b = PH+16*st+4*i
            k.e(f"{MF} v[{DEN+16*st}:{DEN+16*st+15}], v[{ZF+4*i}:{ZF+4*i+3}], v[{b}:{b+3}], {'0' if i==0 else f'v[{DEN+16*st}:{DEN+16*st+15}]'}")
    k.e("s_waitcnt vmcnt(0)")
    validated(k, kfg, range(KF, KF+16), 2)
    stamp(k, 5)
    for st in range(2):
        for i in range(4):
            b = PH+16*st+4*i
            k.e(f"{MF} v[{NUM+16*st}:{NUM+16*st+15}], v[{KF+4*i}:{KF+4*i+3}], v[{b}:{b+3}], {'0' if i==0 else f'v[{NUM+16*st}:{NUM+16*st+15}]'}")
    for st in range(2):
        d = DEN+16*st
        k.e(f"v_add_f32 v{d}, {f2u(1e-6)}, v{d}\nv_rcp_f32 v{d}, v{d}")
    k.e("s_nop 3")
    for st in range(2):
        d = DEN+16*st; n = NUM+16*st; o = 160+8*st
        for hh in range(2):
            for i in range(4*hh, 4*hh+4): k.e(f"v_pk_mul_f32 v[{n+2*i}:{n+2*i+1}], v[{n+2*i}:{n+2*i+1}], v[{d}:{d+1}] op_sel_hi:[1,0]")
            for i in range(4*hh, 4*hh+4): k.e(f"v_cvt_pk_bf16_f32 v{o+i}, v{n+2*i}, v{n+2*i+1}")
            k.e(f"buffer_store_dwordx4 v[{o+4*hh}:{o+4*hh+3}], v{L16}, {W}, s{S_T+12+st} offen offset:{1024*hh} sc1")
    c = c2; C = Cons(k, c, R)
    consumer_addr(k, c, R); C.zero()
    k.e("s_waitcnt vmcnt(0)\ns_barrier")
    stamp(k, 6)
    k.e("s_barrier\ns_barrier")
    stamp(k, 7)
    C.first_reads(); C.loop(16)
    k.e("s_waitcnt lgkmcnt(0)")
    stamp(k, 8)
    k.e("s_nop 7")
    A = 64
    for i in range(16):
        t = 16 + 2*(i & 1)
        unpack(k, t, t+1, RS+i)
        k.e(f"v_pk_add_f32 v[{A+2*i}:{A+2*i+1}], v[{A+2*i}:{A+2*i+1}], v[{t}:{t+1}]")
        k.e(f"v_cvt_pk_bf16_f32 v{RS+i}, v{A+2*i}, v{A+2*i+1}")
        if i & 3 == 3:
            j = i >> 2
            k.e(f"buffer_store_dwordx4 v[{RS+4*j}:{RS+3+4*j}], v10, {W}, 0 offen offset:{1024*j} sc1")
    for i in range(16): unpack(k, A+2*i, A+2*i+1, RS+i)
    k.e(f"v_pk_add_f32 v[20:21], v[{A}:{A+1}], v[{A+2}:{A+3}]\nv_pk_add_f32 v[22:23], v[{A+4}:{A+5}], v[{A+6}:{A+7}]")
    for i in range(4, 16):
        t = 20 + 2*(i & 1); k.e(f"v_pk_add_f32 v[{t}:{t+1}], v[{t}:{t+1}], v[{A+2*i}:{A+2*i+1}]")
    k.e("v_pk_add_f32 v[20:21], v[20:21], v[22:23]\nv_add_f32 v20, v20, v21")
    xswap_sum1(k, 20, 21)
    k.e(f"v_mul_f32 v20, {f2u(1/64.)}, v20")
    for i in range(16):
        k.e(f"v_pk_add_f32 v[{A+2*i}:{A+2*i+1}], v[{A+2*i}:{A+2*i+1}], v[20:21] op_sel_hi:[1,0] neg_lo:[0,1] neg_hi:[0,1]")
    k.e(f"v_pk_mul_f32 v[22:23], v[{A}:{A+1}], v[{A}:{A+1}]\nv_pk_mul_f32 v[24:25], v[{A+2}:{A+3}], v[{A+2}:{A+3}]")
    for i in range(2, 16):
        t = 22 + 2*(i & 1); k.e(f"v_pk_fma_f32 v[{t}:{t+1}], v[{A+2*i}:{A+2*i+1}], v[{A+2*i}:{A+2*i+1}], v[{t}:{t+1}]")
    k.e("v_pk_add_f32 v[22:23], v[22:23], v[24:25]\nv_add_f32 v22, v22, v23")
    xswap_sum1(k, 22, 23)
    k.e(f"""v_mov_b32 v21, v22
    s_mov_b32 exec_hi, 0
    buffer_store_dwordx2 v[20:21], v9, {W}, 0 offen sc1
    s_mov_b32 exec_hi, -1
    s_waitcnt vmcnt(1)
    s_barrier""")
    stamp(k, 9)
    k.e("s_cmp_ge_u32 s2, 224\ns_cbranch_scc1 L_c_helper")
    c = c3
    tile_map(k, 4, 7, 14)
    Ra = Regs(); Ra.aS = 8; Ra.aF = 12; Ra.fr = 16; Ra.acc = 128
    Ca = Cons(k, c, Ra); Cb = Cons(k, c, R)
    consumer_addr(k, c, R); Ca.zero(); Cb.zero()
    mk_srd(k, SRD_A, P_BSP, 4096)
    k.e(f"""v_and_b32 v14, 31, v1
    v_lshlrev_b32 v2, 1, v14
    s_lshl_b32 s{S_T+2}, s{S_M}, 8
    s_lshl_b32 s{S_T+3}, s{S_WM}, 7
    s_add_u32 s{S_T+2}, s{S_T+2}, s{S_T+3}
    buffer_load_ushort v240, v2, {srd(SRD_A)}, s{S_T+2} offen
    buffer_load_ushort v242, v2, {srd(SRD_A)}, s{S_T+2} offen offset:64
    s_lshl_b32 s{S_T}, s{S_WM}, 6
    v_add_u32 v14, s{S_T}, v14
    v_lshlrev_b32 v62, 3, v14
    v_add_u32 v62, {L_ZS}, v62
    v_lshlrev_b32 v14, 4, v14
    v_add_u32 v14, {L_HS}, v14
    v_lshrrev_b32 v7, 5, v1
    v_lshlrev_b32 v9, 5, v7
    s_lshl_b32 s{S_T}, s{S_WN}, 8
    s_add_u32 s{S_T}, s{S_T}, {L_CS}
    v_add_u32 v9, s{S_T}, v9
    v_and_b32 v10, 31, v1
    v_lshlrev_b32 v11, 2, v7
    v_xor_b32 v10, v10, v11
    v_lshlrev_b32 v10, 4, v10
    v_lshl_add_u32 v10, v7, 9, v10
    v_xor_b32 v11, 128, v10
    v_lshlrev_b32 v63, 3, v1
    s_lshl_b32 s{S_T}, s{S_WM}, 9
    s_lshl_b32 s{S_T+1}, s{S_WN}, 10
    s_add_u32 s{S_T}, s{S_T}, s{S_T+1}
    s_add_u32 s{S_T}, s{S_T}, {L_ZP}
    v_add_u32 v63, s{S_T}, v63
    s_lshl_b32 s{S_T+12}, s{S_N}, 19
    s_lshl_b32 s{S_T+1}, s{S_M}, 15
    s_add_u32 s{S_T+12}, s{S_T+12}, s{S_T+1}
    s_lshl_b32 s{S_T+1}, s{S_WM}, 14
    s_add_u32 s{S_T+12}, s{S_T+12}, s{S_T+1}
    s_lshl_b32 s{S_T+1}, s{S_WN}, 12
    s_add_u32 s{S_T+12}, s{S_T+12}, s{S_T+1}
    s_add_u32 s{S_T+12}, s{S_T+12}, {WS_Z2N}
    s_add_u32 s{S_T+13}, s{S_T+12}, 8192""")
    k.e("s_barrier\ns_waitcnt vmcnt(2)\ns_barrier")
    stamp(k, 10)
    Ca.first_reads(); Ca.loop(16)
    stamp(k, 11)
    CS = 192; HS = 244
    def load_cs(half):
        for ft in range(2):
            for q in range(4):
                k.e(f"ds_read_b128 v[{CS+16*ft+4*q}:{CS+16*ft+4*q+3}], v9 offset:{half*512 + ft*128 + (q>>1)*64 + (q&1)*16}")
    k.e(f"ds_read_b128 v[{HS}:{HS+3}], v14\nds_read_b128 v[{HS+4}:{HS+7}], v14 offset:512\ns_waitcnt lgkmcnt(2)")
    load_cs(1)
    k.e("s_waitcnt lgkmcnt(4)\ns_nop 1")
    for ft in range(2):
        if ft == 1: k.e("s_waitcnt lgkmcnt(0)")
        for st in range(2): gelu_tile(k, Ca.acc(st, ft), CS+16*ft, HS+4*st)
    for st in range(2):
        a = Ca.acc(st, 0); b = Ca.acc(st, 1); t = 48+4*st
        k.e(f"v_pk_add_f32 v[{t}:{t+1}], v[{a}:{a+1}], v[{a+2}:{a+3}]\nv_pk_add_f32 v[{t+2}:{t+3}], v[{b}:{b+1}], v[{b+2}:{b+3}]")
        for i in range(2, 8):
            k.e(f"v_pk_add_f32 v[{t}:{t+1}], v[{t}:{t+1}], v[{a+2*i}:{a+2*i+1}]\nv_pk_add_f32 v[{t+2}:{t+3}], v[{t+2}:{t+3}], v[{b+2*i}:{b+2*i+1}]")
        k.e(f"v_pk_add_f32 v[{t}:{t+1}], v[{t}:{t+1}], v[{t+2}:{t+3}]\nv_add_f32 v{56+st}, v{t}, v{t+1}")
    xhalf_sum2(k, 56)
    k.e(f"v_mul_f32 v56, {f2u(1/64.)}, v56\nv_mul_f32 v57, {f2u(1/64.)}, v57")
    for st in range(2):
        sel = "op_sel_hi:[1,0]" if st == 0 else "op_sel:[0,1] op_sel_hi:[1,1]"
        for j, a in enumerate((Ca.acc(st, 0), Ca.acc(st, 1))):
            for i in range(8):
                d = 52+2*(i & 1); u = 48+2*(i & 1)
                k.e(f"v_pk_add_f32 v[{d}:{d+1}], v[{a+2*i}:{a+2*i+1}], v[56:57] {sel} neg_lo:[0,1] neg_hi:[0,1]")
                if j == 0 and i < 2: k.e(f"v_pk_mul_f32 v[{u}:{u+1}], v[{d}:{d+1}], v[{d}:{d+1}]")
                else: k.e(f"v_pk_fma_f32 v[{u}:{u+1}], v[{d}:{d+1}], v[{d}:{d+1}], v[{u}:{u+1}]")
        k.e(f"v_pk_add_f32 v[48:49], v[48:49], v[50:51]\nv_add_f32 v{58+st}, v48, v49")
    k.e("v_cmp_gt_u32 vcc, 32, v1")
    xhalf_sum2(k, 58)
    k.e(f"""v_cndmask_b32 v60, v57, v56, vcc
    v_cndmask_b32 v61, v59, v58, vcc
    ds_write_b64 v63, v[60:61]""")
    load_cs(0)
    k.e("s_waitcnt lgkmcnt(0)")
    stamp(k, 12)
    g = OPT.gat
    n1 = g+1+OPT.zsp-16+1
    Cb.loop(n1)
    k.e(f"ds_read_b64 v[2:3], v62\nds_read_b64 v[4:5], v62 offset:256\ns_waitcnt lgkmcnt(0)")
    stamp(k, 13)
    def norm_tile(st, ft, packed):
        s = 2+2*st; a = Ca.acc(st, ft); L = []
        for hh in range(2):
            if packed:
                L += [f"v_pk_fma_f32 v[{a+2*i}:{a+2*i+1}], v[{a+2*i}:{a+2*i+1}], v[{s}:{s+1}], v[{s}:{s+1}] op_sel:[0,1,0] op_sel_hi:[1,1,0]" for i in range(4*hh, 4*hh+4)]
            else:
                L += [f"v_fma_f32 v{a+i}, v{a+i}, v{s+1}, v{s}" for i in range(8*hh, 8*hh+8)]
            L += [f"v_cvt_pk_bf16_f32 v{a+8*hh+i}, v{a+8*hh+2*i}, v{a+8*hh+2*i+1}" for i in range(4)]
            L += [f"buffer_store_dwordx4 v[{a+8*hh}:{a+8*hh+3}], v{10+hh}, {W}, s{S_T+12+st} offen offset:{ft*2048+hh*1024} sc1"]
        return L
    tiles = [(st, ft) for st in range(2) for ft in range(2)]
    if OPT.nfill:
        for j in range(0, 4, OPT.nfill):
            L = []
            for st, ft in tiles[j:j+OPT.nfill]: L += norm_tile(st, ft, False)
            Cb.loop(1, fillers=L)
        nf = 4//OPT.nfill
    else:
        for st, ft in tiles:
            for ins in norm_tile(st, ft, True): k.e(ins)
        Cb.loop(1); nf = 1
    if OPT.vmd: Cb.loop(OPT.vmd)
    Cb.loop(1, pre_barrier="vm")
    zl = [f"v_mov_b64 v[{128+i}:{129+i}], 0" for i in range(0, 64, 2)]
    Cb.loop(1, fillers=zl)
    Cb.loop(16-n1-nf-2-OPT.vmd)
    k.e("s_waitcnt lgkmcnt(0)")
    stamp(k, 14)
    c = c4; C = Cons(k, c, Ra)
    consumer_addr(k, c, Ra, slot_from_sgpr=True)
    C.first_reads()
    if not OPT.z1fill:
        for ft in range(2):
            for st in range(2):
                a = Cb.acc(st, ft)
                gelu_tile(k, a, CS+16*ft, HS+4*st); cvt16(k, a, a)
    stamp(k, 15)
    if OPT.z1fill:
        zn = OPT.z1n; per = 16//zn
        for j in range(4*per):
            st, ft = (j // per) & 1, j // (2*per)
            C.loop(1, fillers=gelu_fill(Cb.acc(st, ft), CS+16*ft, HS+4*st, zn*(j % per), zn))
        if 4*per < 32: C.loop(32-4*per)
    else:
        C.loop(32)
    k.e("s_waitcnt lgkmcnt(0)")
    stamp(k, 16)
    k.e(f"""s_lshl_b32 s{S_T}, s{S_M}, 2
    s_lshl_b32 s{S_T+1}, s{S_WM}, 1
    s_add_u32 s{S_T}, s{S_T}, s{S_T+1}
    s_mul_i32 s{S_T}, s{S_T}, 112
    s_lshl_b32 s{S_T+1}, s{S_N}, 3
    s_add_u32 s{S_T}, s{S_T}, s{S_T+1}
    s_lshl_b32 s{S_T+1}, s{S_WN}, 2
    s_add_u32 s{S_T}, s{S_T}, s{S_T+1}
    s_lshl_b32 s{S_T}, s{S_T}, 10
    s_add_u32 s{S_T+12}, s{S_T}, {WS_U}
    s_add_u32 s{S_T+13}, s{S_T+12}, {112*1024}
    v_lshlrev_b32 v240, 16, v240
    v_lshlrev_b32 v242, 16, v242""")
    for ft in range(2):
        for st in range(2):
            a = C.acc(st, ft); z = Cb.acc(st, ft); b = 240+2*st; o = 16+8*(ft*2+st)
            for i in range(8):
                t = 52+2*(i & 1)
                k.e(f"v_pk_add_f32 v[{a+2*i}:{a+2*i+1}], v[{a+2*i}:{a+2*i+1}], v[{b}:{b+1}] op_sel_hi:[1,0]")
                unpack(k, t, t+1, z+i)
                k.e(f"v_pk_mul_f32 v[{a+2*i}:{a+2*i+1}], v[{a+2*i}:{a+2*i+1}], v[{t}:{t+1}]")
                k.e(f"v_cvt_pk_bf16_f32 v{o+i}, v{a+2*i}, v{a+2*i+1}")
                if i & 3 == 3:
                    k.e(f"buffer_store_dwordx4 v[{o+i-3}:{o+i}], v{L16}, {W}, s{S_T+12+st} offen offset:{ft*2048+(i>>2)*1024} sc1")
    k.e("s_waitcnt vmcnt(0)\ns_barrier")
    stamp(k, 17)
    k.e("L_c_p5:")
    c = c5; C = Cons(k, c, R)
    p25_addr()
    consumer_addr(k, c, R); C.zero()
    mk_srd(k, SRD_B, P_OUT, 4*MB)
    k.e("s_barrier\ns_barrier")
    stamp(k, 18)
    C.first_reads(); C.loop(28)
    k.e("s_waitcnt lgkmcnt(0)")
    stamp(k, 19)
    k.e("s_nop 7")
    for i in range(16):
        t = 16 + 2*(i & 1)
        unpack(k, t, t+1, RS+i)
        k.e(f"v_pk_add_f32 v[{A+2*i}:{A+2*i+1}], v[{A+2*i}:{A+2*i+1}], v[{t}:{t+1}]")
        k.e(f"v_cvt_pk_bf16_f32 v{32+i}, v{A+2*i}, v{A+2*i+1}")
        if i & 3 == 3:
            j = i >> 2
            k.e(f"buffer_store_dwordx4 v[{32+4*j}:{35+4*j}], v14, {srd(SRD_B)}, 0 offen offset:{32*j}")
    k.e("s_branch L_fin")
    k.e("L_c_helper:")
    k.e("s_barrier")
    helper_pf(k)
    stamp(k, 17)
    k.e("s_branch L_c_p5")

def build():
    k = Kern("p")
    if OPT.probe: k.e("s_memrealtime s[94:95]")
    k.e("s_cmp_ge_u32 s2, 256\ns_cbranch_scc1 L_end")
    k.e("s_load_dwordx16 s[32:47], s[0:1], 0\ns_load_dwordx8 s[48:55], s[0:1], 64")
    k.e(f"v_lshrrev_b32 v2, 6, v0\nv_and_b32 v1, 63, v0\nv_readfirstlane_b32 s{S_WAVE}, v2")
    if OPT.stamps: k.e("v_mov_b32 v255, 0\nv_mov_b32 v254, 0\nv_mov_b32 v253, 0\ns_mov_b32 s97, 0")
    ITST[0] = OPT.stamps > 1; ITST[1] = 254; CAP[0] = OPT.cap
    tile_map(k, 8, 4, 16)
    k.e(f"s_cmp_lt_u32 s{S_WAVE}, 4\ns_cbranch_scc1 L_cons")
    k.e(f"s_and_b32 s{S_LW}, s{S_WAVE}, 1\ns_sub_u32 s{S_Q}, s{S_WAVE}, 4\ns_cmp_ge_u32 s{S_WAVE}, 6\ns_cbranch_scc1 L_aux")
    if OPT.pl: k.e(f"s_setprio {OPT.pl}")
    loader(k)
    k.e("L_aux:")
    if OPT.pa: k.e(f"s_setprio {OPT.pa}")
    aux(k)
    k.e("L_cons:")
    if OPT.pc: k.e(f"s_setprio {OPT.pc}")
    consumer(k)
    k.e("L_fin:")
    if OPT.stamps:
        k.e("s_waitcnt vmcnt(0)")
        stamp(k, 20)
        mk_srd(k, SRD_D, P_WS, 2*MB, WS_END)
        k.e(f"""s_lshl_b32 s{S_T}, s2, 3
        s_add_u32 s{S_T}, s{S_T}, s{S_WAVE}
        s_lshl_b32 s{S_T}, s{S_T}, 8
        v_lshlrev_b32 v2, 2, v1
        buffer_store_dword v255, v2, {srd(SRD_D)}, s{S_T} offen
        s_add_u32 s{S_T}, s{S_T}, 0x80000
        buffer_store_dword v254, v2, {srd(SRD_D)}, s{S_T} offen
        s_add_u32 s{S_T}, s{S_T}, 0x80000
        buffer_store_dword v253, v2, {srd(SRD_D)}, s{S_T} offen""")
    if OPT.probe:
        k.e(f"s_cmp_lg_u32 s{S_WAVE}, 0\ns_cbranch_scc1 L_end\ns_cmp_ge_u32 s2, 224\ns_cbranch_scc1 L_end")
        if OPT.pwg >= 0: k.e(f"s_cmp_lg_u32 s2, {OPT.pwg}\ns_cbranch_scc1 L_end")
        k.e(f"v_readlane_b32 s{S_T}, v255, {OPT.probe}\ns_nop 3\ns_add_u32 s{S_T}, s{S_T}, 10000\nL_spin:\ns_memrealtime s[{S_ST}:{S_ST+1}]\ns_waitcnt lgkmcnt(0)\ns_sub_u32 s{S_T+1}, s{S_ST}, s{S_T}\ns_cmp_lt_i32 s{S_T+1}, 0\ns_cbranch_scc1 L_spin")
    k.e("L_end:\ns_endpgm")
    out = [f"; @launch grid=(256,1,1) block=(512,1,1) lds={L_END}",
           '.amdgcn_target "amdgcn-amd-amdhsa--gfx950"\n.text', header(KNAME) + k.text(), '.section .rodata,"a"', descriptor(KNAME, 256, 100)]
    return "\n".join(out)

if __name__ == "__main__":
    for a in sys.argv[2:]:
        kk, v = a.split("="); setattr(OPT, kk, int(v))
    open(sys.argv[1], "w").write(build())
```

```python
import math
from core import Kern, header, descriptor, vr, sr, srd, Regs, tr_lane_base, blk_tr_base

S_WAVE=3; S_M=4; S_N=5; S_PH=6; S_T0=7
SRD_S=8; SRD_F=12; SRD_A=16; SRD_B=20; SRD_W=24; SRD_D=28
P0=32
S_T=56
S_WM=72; S_WN=73; S_LW=74; S_KB=75
S_X=76
S_CNT=80; S_SLOT=81; S_DS=82; S_DF=83; S_OS=84; S_OF=85; S_M0W=86; S_TAU=87
S_K=88
S_FB=96
S_ST=98

def ptr(i): return P0 + 2*i

def mk_srd(k, d, p, nbytes, off=0):
    if off:
        k.e(f"s_add_u32 s{d}, s{ptr(p)}, {off}\ns_addc_u32 s{d+1}, s{ptr(p)+1}, 0")
    else:
        k.e(f"s_mov_b32 s{d}, s{ptr(p)}\ns_mov_b32 s{d+1}, s{ptr(p)+1}")
    k.e(f"s_mov_b32 s{d+2}, {nbytes}\ns_mov_b32 s{d+3}, 0x20000")

class Cfg:
    def __init__(self, BM, BN, T, NS, WM, WN, U, strideS, strideF, ftiles, nb_from_wave, panel_from_wave, orient=None,
                 rot=(-1,0,2,-1), pre_mfma=2, smode='rows', fmode='rows', baseS=0, baseF=65536, auxS="", auxF="", kbase=False, slot0=0, own2=False):
        self.BM=BM; self.BN=BN; self.T=T; self.NS=NS; self.WM=WM; self.WN=WN; self.U=U
        self.strideS=strideS; self.strideF=strideF
        self.TM = BM//WM//32
        self.ftiles = ftiles; self.TN = len(ftiles)
        self.nb_from_wave = nb_from_wave; self.panel_from_wave = panel_from_wave
        self.orient = orient or ['T']*self.TN
        self.NP = BN//64
        self.slotS = BM*128; self.slotF = BN*128
        self.nS = BM//16; self.nF = BN//16
        self.nI = self.nS + self.nF
        self.rot = rot; self.pre_mfma = pre_mfma
        self.smode = smode; self.fmode = fmode
        self.baseS = baseS; self.baseF = baseF
        self.auxS = auxS; self.auxF = auxF
        self.slot0 = slot0; self.own2 = own2
        self.kbase = kbase

def tile_map(k, gm, gn, ntn):
    xn = ntn // gn
    lg = int(math.log2(gm)); lx = int(math.log2(xn))
    k.e(f"""s_and_b32 s{S_T}, s2, 7
    s_lshr_b32 s{S_T+1}, s2, 3
    s_and_b32 s{S_T+2}, s{S_T+1}, {gm-1}
    s_lshr_b32 s{S_T+3}, s{S_T+1}, {lg}
    s_lshr_b32 s{S_M}, s{S_T}, {lx}
    s_mul_i32 s{S_M}, s{S_M}, {gm}
    s_add_u32 s{S_M}, s{S_M}, s{S_T+2}
    s_and_b32 s{S_N}, s{S_T}, {xn-1}
    s_mul_i32 s{S_N}, s{S_N}, {gn}
    s_add_u32 s{S_N}, s{S_N}, s{S_T+3}
    s_add_u32 s{S_PH}, s{S_T+2}, s{S_T+3}""")

def loader_voff_S(k, c, vb):
    w = S_LW
    if c.smode == 'rows':
        k.e(f"""v_lshrrev_b32 v2, 3, v1
        v_and_b32 v4, 7, v1
        s_lshl_b32 s{S_T+6}, s{w}, 3
        v_lshrrev_b32 v3, 4, v1
        s_lshl_b32 s{S_T+5}, s{w}, 2
        v_add_u32 v3, s{S_T+5}, v3
        v_xor_b32 v3, v3, v4
        v_lshlrev_b32 v3, 4, v3
        s_mul_i32 s{S_T+5}, s{S_M}, {c.BM}
        s_add_u32 s{S_T+5}, s{S_T+5}, s{S_T+6}
        v_add_u32 v5, s{S_T+5}, v2
        s_mov_b32 s{S_T+7}, {c.strideS}
        v_mul_lo_u32 v5, v5, s{S_T+7}
        v_add_u32 v{vb}, v5, v3""")
        for i in range(1, c.nS):
            k.e(f"v_add_u32 v{vb+i}, {i*16*c.strideS}, v{vb}")
    else:
        k.e(f"""s_mul_i32 s{S_T+5}, s{S_M}, {c.BM*c.strideS}
        s_add_u32 s{S_T+5}, s{S_T+5}, s{S_M0W}
        v_lshlrev_b32 v3, 4, v1
        v_add_u32 v{vb}, s{S_T+5}, v3""")
        for i in range(1, c.nS):
            k.e(f"v_add_u32 v{vb+i}, {(i>>1)*32*c.strideS + (i&1)*2048}, v{vb}")

def loader_voff_F(k, c, vb, colsg=None, panelconst=None):
    w = S_LW
    if c.fmode == 'rows':
        k.e(f"""v_lshrrev_b32 v2, 3, v1
        v_and_b32 v4, 7, v1
        s_lshl_b32 s{S_T+6}, s{w}, 3
        v_lshrrev_b32 v3, 2, v1
        v_and_b32 v3, 4, v3
        v_xor_b32 v3, v3, v4
        v_lshlrev_b32 v3, 4, v3
        v_add_u32 v5, s{S_T+6}, v2
        s_mov_b32 s{S_T+7}, {c.strideF}
        v_mul_lo_u32 v5, v5, s{S_T+7}
        v_add3_u32 v5, v5, v3, s{colsg}""")
        for i in range(c.nF):
            k.e(f"v_add_u32 v{vb+i}, {panelconst(i>>2) + (i&3)*16*c.strideF}, v5")
    else:
        k.e(f"""s_mul_i32 s{S_T+5}, s{S_N}, {c.T*c.BN*128}
        s_add_u32 s{S_T+5}, s{S_T+5}, s{S_M0W}
        v_lshlrev_b32 v3, 4, v1
        v_add_u32 v{vb}, s{S_T+5}, v3""")
        for i in range(1, c.nF):
            k.e(f"v_add_u32 v{vb+i}, {i*2048}, v{vb}")

def kstep(k, c, t):
    src = S_TAU
    if c.kbase is not False:
        q = c.kbase
        k.e(f"""s_cmp_gt_u32 s{S_TAU}, {q}
        s_subb_u32 s{t+1}, s{S_TAU}, 0
        s_cmp_ge_u32 s{t+1}, s{S_KB}
        s_addc_u32 s{t+1}, s{t+1}, 0
        s_cmp_eq_u32 s{S_TAU}, {q}
        s_cselect_b32 s{t+1}, s{S_KB}, s{t+1}""")
        src = t+1
    if c.rot:
        P = len(c.rot); packed = 0
        for u, d in enumerate(c.rot): packed |= ((d+8) & 15) << (4*u)
        k.e(f"""s_sub_u32 s{t}, s{src}, s{S_PH}
        s_and_b32 s{t}, s{t}, {P-1}
        s_lshl_b32 s{t}, s{t}, 2
        s_lshr_b32 s{t}, {packed}, s{t}
        s_and_b32 s{t}, s{t}, 15
        s_add_u32 s{t}, s{t}, s{src}""")
        if c.T & (c.T-1) == 0:
            k.e(f"s_sub_u32 s{t}, s{t}, 8\ns_and_b32 s{t}, s{t}, {c.T-1}")
        else:
            k.e(f"""s_add_u32 s{t}, s{t}, {c.T-8}
            s_sub_u32 s{t+1}, s{t}, {c.T}
            s_cmp_ge_u32 s{t}, {c.T}
            s_cselect_b32 s{t}, s{t+1}, s{t}
            s_sub_u32 s{t+1}, s{t}, {c.T}
            s_cmp_ge_u32 s{t}, {c.T}
            s_cselect_b32 s{t}, s{t+1}, s{t}""")
    else:
        k.e(f"s_mov_b32 s{t}, s{src}")
    if c.own2:
        k.e(f"""s_min_u32 s{t+1}, s{t}, s{S_TAU}
        s_max_u32 s{t+2}, s{t}, s{S_TAU}
        s_cmp_lt_u32 s{t+1}, 2
        s_cselect_b32 s{t+1}, s{t+2}, 0
        s_cmp_ge_u32 s{t+1}, 2
        s_cselect_b32 s{t}, s{S_TAU}, s{t}
        s_add_u32 s{t}, s{t}, s{S_KB}
        s_and_b32 s{t}, s{t}, {c.T-1}""")

def issue(k, c, vS, vF, parts="SF", fbase=False):
    t = S_T+8
    kstep(k, c, t)
    stepS = 7 if c.smode == 'rows' else 12
    stepF = 64*c.strideF if c.fmode == 'rows' else c.BN*128
    if 'S' in parts:
        k.e(f"""s_lshl_b32 s{S_OS}, s{t}, {stepS}
        s_mul_i32 s{t+1}, s{S_SLOT}, {c.slotS}
        s_add_u32 s{t+1}, s{t+1}, s{S_M0W}
        s_add_u32 m0, s{t+1}, {c.baseS}
        {gapi()}""")
        for i in range(c.nS):
            k.e(f"buffer_load_dwordx4 v{vS+i}, {srd(SRD_S)}, s{S_OS} offen {c.auxS} lds")
            if i < c.nS-1: k.e("s_add_u32 m0, m0, 2048\n" + gapi())
    if 'F' in parts:
        k.e(f"""s_mul_i32 s{S_OF}, s{t}, {stepF}
        s_mul_i32 s{t+1}, s{S_SLOT}, {c.slotF}
        s_add_u32 s{t+1}, s{t+1}, s{S_M0W}
        s_add_u32 m0, s{t+1}, {c.baseF}""")
        if fbase: k.e(f"s_add_u32 s{S_OF}, s{S_OF}, s{S_FB}")
        if CAP[0] or not fbase: k.e(gapi())
        for i in range(c.nF):
            k.e(f"buffer_load_dwordx4 v{vF+i}, {srd(SRD_F)}, s{S_OF} offen {c.auxF} lds")
            if i < c.nF-1: k.e("s_add_u32 m0, m0, 2048\n" + gapi())
    k.e(f"""s_add_u32 s{S_TAU}, s{S_TAU}, 1
    s_add_u32 s{S_SLOT}, s{S_SLOT}, 1
    s_cmp_eq_u32 s{S_SLOT}, {c.NS}
    s_cselect_b32 s{S_SLOT}, 0, s{S_SLOT}""")

def issue_first(k, c, vS, vF, parts, fbase=False, pbarrier=True, t0=0, t1=None):
    n = (c.nS if 'S' in parts else 0) + (c.nF if 'F' in parts else 0)
    top = k.lab("if"); l1 = k.lab("if1")
    t1 = c.NS if t1 is None else t1
    k.e(f"s_mov_b32 s{S_TAU}, {t0}\ns_mov_b32 s{S_SLOT}, {(t0+c.slot0) % c.NS}\n{top}:")
    issue(k, c, vS, vF, parts, fbase)
    if pbarrier:
        k.e(f"s_cmp_lg_u32 s{S_TAU}, 2\ns_cbranch_scc1 {l1}\ns_waitcnt vmcnt({n})\ns_barrier\n{l1}:")
    k.e(f"s_cmp_lt_u32 s{S_TAU}, {t1}\ns_cbranch_scc1 {top}")

CAP = [0]
def gapi():
    return f"s_waitcnt vmcnt({CAP[0]})" if CAP[0] else "s_nop 0"
ITST = [0, 254]
def itstamp(k):
    if ITST[0]:
        k.e(f"s_memrealtime s[{S_ST}:{S_ST+1}]\ns_waitcnt lgkmcnt(0)\ns_mov_b32 m0, s97\ns_nop 0\nv_writelane_b32 v{ITST[1]}, s{S_ST}, m0\ns_add_u32 s97, s97, 1")

def steady(k, c, vS, vF, upto, fbase=False, wait=None):
    top = k.lab("st")
    w = (c.NS-2)*c.nI if wait is None else wait
    k.e(f"{top}:\ns_waitcnt vmcnt({w})\ns_barrier")
    itstamp(k)
    issue(k, c, vS, vF, "SF", fbase)
    k.e(f"s_cmp_lt_u32 s{S_TAU}, {upto}\ns_cbranch_scc1 {top}")

def issue_noadv(k, c, vS, vF, parts, fbase=False):
    n0 = len(k.L)
    issue(k, c, vS, vF, parts, fbase)
    del k.L[-4:]

def steady_skew(k, c, vS, vF):
    top = k.lab("sk"); done = k.lab("skd")
    k.e(f"{top}:\ns_waitcnt vmcnt({c.nS+2*c.nF})\ns_barrier")
    itstamp(k)
    issue(k, c, vS, vF, "S")
    k.e(f"s_cmp_eq_u32 s{S_TAU}, {c.T}\ns_cbranch_scc1 {done}")
    issue_noadv(k, c, vS, vF, "F")
    k.e(f"s_branch {top}\n{done}:")

def one(k, c, vS, vF, fbase=False, wait=None):
    w = (c.NS-2)*c.nI if wait is None else wait
    k.e(f"s_waitcnt vmcnt({w})\ns_barrier")
    itstamp(k)
    issue(k, c, vS, vF, "SF", fbase)

def after_split_prologue(k, c, vS, vF, first_n, fbase=False):
    for j in range(c.NS-2):
        one(k, c, vS, vF, fbase, wait=(c.NS-2-j)*first_n + j*c.nI)

def consumer_addr(k, c, R, slot_from_sgpr=False, static_slot=None):
    wm = S_WM; wn = S_WN
    lw = int(math.log2(c.WN))
    if not slot_from_sgpr and c.slot0:
        k.e(f"s_mov_b32 s{S_SLOT}, {c.slot0}"); slot_from_sgpr = True
    k.e(f"s_lshr_b32 s{wm}, s{S_WAVE}, {lw}\ns_and_b32 s{wn}, s{S_WAVE}, {c.WN-1}")
    k.e(f"s_mul_i32 s{S_T+6}, s{wm}, {c.TM*4096}")
    if static_slot is not None: k.e(f"s_add_u32 s{S_T+6}, s{S_T+6}, {c.baseS + static_slot*c.slotS}")
    elif c.baseS: k.e(f"s_add_u32 s{S_T+6}, s{S_T+6}, {c.baseS}")
    if slot_from_sgpr: k.e(f"s_mul_i32 s{S_T+7}, s{S_SLOT}, {c.slotS}\ns_add_u32 s{S_T+6}, s{S_T+6}, s{S_T+7}")
    if c.smode == 'rows':
        k.e(f"""v_and_b32 v2, 31, v1
        v_lshrrev_b32 v3, 5, v1
        v_bfe_u32 v4, v1, 1, 3
        v_xor_b32 v4, v4, v3
        v_lshlrev_b32 v4, 4, v4
        v_lshl_add_u32 v4, v2, 7, v4""")
        for kk in range(4):
            k.e(f"v_xor_b32 v{R.aS+kk}, {kk*32}, v4\nv_add_u32 v{R.aS+kk}, s{S_T+6}, v{R.aS+kk}")
    else:
        k.e(f"v_lshlrev_b32 v4, 4, v1\nv_add_u32 v{R.aS}, s{S_T+6}, v4")
    if c.fmode == 'rows':
        tr_lane_base(k, 6, 5, 10)
        if c.nb_from_wave:
            k.e(f"s_lshl_b32 s{S_T+6}, s{wn}, 6\nv_xor_b32 v6, s{S_T+6}, v6")
        if c.panel_from_wave:
            k.e(f"s_lshl_b32 s{S_T+6}, s{wn}, 13\nv_add_u32 v6, s{S_T+6}, v6")
    else:
        blk_tr_base(k, 6, 5, 7, 3)
        k.e(f"s_lshl_b32 s{S_T+6}, s{wn}, 12\nv_add_u32 v6, s{S_T+6}, v6")
    k.e(f"v_xor_b32 v7, 64, v6\ns_mov_b32 s{S_T+6}, {c.baseF + (static_slot or 0)*c.slotF}")
    if static_slot is not None: pass
    elif slot_from_sgpr: k.e(f"s_mul_i32 s{S_T+7}, s{S_SLOT}, {c.slotF}\ns_add_u32 s{S_T+6}, s{S_T+6}, s{S_T+7}")
    else: k.e(f"s_mov_b32 s{S_SLOT}, 0")
    k.e(f"v_add_u32 v{R.aF}, s{S_T+6}, v6\nv_add_u32 v{R.aF+1}, s{S_T+6}, v7")

class Cons:
    def __init__(self, k, c, R):
        self.k = k; self.c = c; self.R = R
        TM, TN, U = c.TM, c.TN, c.U
        self.setsz = U*(TM+TN)*4
    def fS(s_, s, u, st): return s_.R.fr + s*s_.setsz + u*(s_.c.TM+s_.c.TN)*4 + st*4
    def fF(s_, s, u, ft): return s_.R.fr + s*s_.setsz + u*(s_.c.TM+s_.c.TN)*4 + s_.c.TM*4 + ft*4
    def acc(s_, st, ft): return s_.R.acc + 16*(ft*s_.c.TM+st)
    def reads(s_, unit, s):
        c, R = s_.c, s_.R; out = []
        for u in range(c.U):
            kk = unit*c.U + u
            order = []
            for i in range(max(c.TM, c.TN)):
                if i < c.TM: order.append(('S', i))
                if i < c.TN: order.append(('F', i))
            for typ, i in order:
                if typ == 'S':
                    if c.smode == 'rows':
                        out.append((f"ds_read_b128 {vr(s_.fS(s,u,i),4)}, v{R.aS+kk} offset:{i*4096}", ('S', s, u, i)))
                    else:
                        out.append((f"ds_read_b128 {vr(s_.fS(s,u,i),4)}, v{R.aS} offset:{i*4096+kk*1024}", ('S', s, u, i)))
                else:
                    P, nb = c.ftiles[i]
                    for rd in range(2):
                        if c.fmode == 'rows':
                            out.append((f"ds_read_b64_tr_b16 {vr(s_.fF(s,u,i)+2*rd,2)}, v{R.aF+nb} offset:{P*8192+kk*2048+rd*512}", ('F', s, u, i)))
                        else:
                            off = (kk>>1)*(c.BN*64) + (P*2+nb)*2048 + (kk&1)*256
                            out.append((f"ds_read_b64_tr_b16 {vr(s_.fF(s,u,i)+2*rd,2)}, v{R.aF+rd} offset:{off}", ('F', s, u, i)))
        return out
    def mfmas(s_, s):
        c = s_.c; out = []
        for u in range(c.U):
            prs = sorted([(st, ft) for st in range(c.TM) for ft in range(c.TN)], key=lambda p: (max(p[0], p[1]), p[1], p[0]))
            for st, ft in prs:
                a, b = (s_.fF(s,u,ft), s_.fS(s,u,st)) if c.orient[ft] == 'T' else (s_.fS(s,u,st), s_.fF(s,u,ft))
                out.append((f"v_mfma_f32_32x32x16_bf16 {vr(s_.acc(st,ft),16)}, {vr(a,4)}, {vr(b,4)}, {vr(s_.acc(st,ft),16)}", [('S',s,u,st), ('F',s,u,ft)]))
        return out
    def zero(s_):
        for i in range(0, s_.c.TM*s_.c.TN*16, 2): s_.k.e(f"v_mov_b64 v[{s_.R.acc+i}:{s_.R.acc+i+1}], 0")
    def first_reads(s_):
        for ins, tag in s_.reads(0, 0): s_.k.e(ins)
    def loop(s_, nsteps, pre_barrier=None, fillers=None, budget=24, next_cons=None):
        k, c, R = s_.k, s_.c, s_.R
        nunit = 4//c.U
        useF = sorted(set(nb for _, nb in c.ftiles)) if c.fmode == 'rows' else [0, 1]
        useS = range(4) if c.smode == 'rows' else [0]
        q = [tag for _, tag in s_.reads(0, 0)]
        lp = k.lab("cloop")
        if nsteps > 1: k.e(f"s_mov_b32 s{S_CNT}, 0\n.p2align 6\n{lp}:")
        gaps = [[]]
        mfs = []
        def em(x):
            for ln in x.split("\n"):
                if ln.strip(): gaps[-1].append(ln.strip())
        def need(tags):
            idx = max([i for i, t in enumerate(q) if t in tags], default=-1)
            if idx >= 0:
                n = len(q) - 1 - idx
                assert n <= 15
                em(f"s_waitcnt lgkmcnt({n})")
                del q[:idx+1]
        for unit in range(nunit):
            s = unit & 1
            last = unit == nunit-1
            rd = s_.reads((unit+1) % nunit, s ^ 1)
            if last and next_cons is not None: rd = next_cons.reads(0, 0) if next_cons else []
            mf = s_.mfmas(s)
            nm = len(mf)
            first = c.pre_mfma if last else 1
            nslots = max(nm - first, 1)
            per = -(-len(rd) // nslots)
            ri = 0
            def put(nr):
                nonlocal ri
                for _ in range(nr):
                    if ri < len(rd):
                        em(rd[ri][0]); q.append(rd[ri][1]); ri += 1
            for mi, (ins, tags) in enumerate(mf):
                if last and mi == first:
                    em("s_waitcnt lgkmcnt(0)" + (" vmcnt(0)" if pre_barrier == "vm" else "")); q.clear()
                    em("s_barrier")
                if mi >= first: put(per)
                need(tags)
                mfs.append(ins); gaps.append([])
                if unit == 0 and mi == nm-1:
                    em(f"""s_add_u32 s{S_SLOT}, s{S_SLOT}, 1
                    s_cmp_eq_u32 s{S_SLOT}, {c.NS}
                    s_cselect_b32 s{S_DS}, {-(c.NS-1)}, 1
                    s_cselect_b32 s{S_SLOT}, 0, s{S_SLOT}""")
                if (unit == 1 and mi == nm-1 and nunit > 2) or (nunit == 2 and unit == 0 and mi == nm-1):
                    em(f"s_mul_i32 s{S_DF}, s{S_DS}, {c.slotF}\ns_mul_i32 s{S_DS}, s{S_DS}, {c.slotS}")
                if last and mi == 0:
                    for a in useS: em(f"v_add_u32 v{R.aS+a}, s{S_DS}, v{R.aS+a}")
                    for nb in useF: em(f"v_add_u32 v{R.aF+nb}, s{S_DF}, v{R.aF+nb}")
            put(len(rd))
        if nsteps > 1:
            em(f"s_add_u32 s{S_CNT}, s{S_CNT}, 1\ns_cmp_lt_u32 s{S_CNT}, {nsteps}\ns_cbranch_scc1 {lp}")
        def cost(x):
            if x.startswith(("v_exp", "v_rcp", "v_rsq", "v_sqrt")): return 8
            if x.startswith("buffer_"): return 16
            if x.startswith("s_barrier"): return 24
            return 4
        fl = list(fillers or [])
        place = [[] for _ in gaps]
        if fl:
            ng = len(gaps)
            used = [sum(cost(x) for x in g) for g in gaps]
            used[-1] += used[0]
            b = budget
            while True:
                fi = 0; place = [[] for _ in gaps]
                tot = sum(cost(x) for x in fl); free = sum(max(b-used[g], 0) for g in range(1, ng)); acc = 0; done = 0
                for g in range(1, ng):
                    room = max(b - used[g], 0); acc += room
                    while fi < len(fl) and cost(fl[fi]) <= room and done < acc*tot/max(free, 1) :
                        room -= cost(fl[fi]); done += cost(fl[fi]); place[g].append(fl[fi]); fi += 1
                if fi == len(fl): break
                b += 4
        for g in range(len(gaps)):
            for x in place[g]: k.e(x)
            for x in gaps[g]: k.e(x)
            if g < len(mfs): k.e(mfs[g])
```

```python
import sys, struct
from core3 import *
import core3

MB = 1<<20
WS_O=4*MB; WS_H=8*MB; WS_Z2N=20*MB; WS_U=28*MB
WS_KVP=36*MB; WS_ZP=38*MB; WS_KVF=38*MB+131072; WS_ZF=38*MB+262144; WS_HC=38*MB+524288; WS_XS=39*MB; WS_CQP=39*MB+65536; WS_CSP=39*MB+512*1024
WS_HST=40*MB; WS_ZST=41*MB
FLS=4352
WS_FLAG=42*MB; F_O=WS_FLAG; F_H=WS_FLAG+16*FLS; F_Z=WS_FLAG+32*FLS; F_U=WS_FLAG+48*FLS
WS_END=43*MB
P_X=0; P_WQKV=1; P_WPHI=2; P_WO=3; P_WIN=5; P_WSP=6; P_BSP=7; P_WOUT=8; P_OUT=9; P_DBG=10; P_WS=11
S_Q=92; S_CW=90
L_CW=131072
L_WPHI=147456; L_XS=L_WPHI+4096; L_CQ=L_XS+1024; L_HS=L_CQ+1024; L_CS=L_HS+2048; L_ZP=L_CS+1024; L_ZS=L_ZP+2048; L_END=L_ZS+1024
KNAME = "sequential_preLN__linear_kernel_hedgehog__mixer_gmlp__prompt_kernel"

def f2u(x): return struct.unpack("<I", struct.pack("<f", x))[0]
LOG2E = 1.4426950408889634
C0 = -2*LOG2E*0.7978845608028654; C1 = C0*0.044715
MF = "v_mfma_f32_32x32x16_bf16"
W = srd(SRD_W)

class Opt:
    stamps = 0
    pf = 0
    slp = 4
    gat = 18
    spq = 5
    z1fill = 1
    nfill = 2
    p1ph = 1
    own2 = 1
    p4ph = 0
    vprio = 0
    zsp = 2
    dsx = 0
    kfslp = 14
    zskip = 4
    cyc = 0
    lead = 2
    fpos = 2
    l2 = 0
    r8 = 0
    kfe = 0
    kvr = 5
    probe = 0
    pwg = -1
    cap = 0
    vmd = 1
    z1n = 2
    pa = 3
    pl = 2
    pc = 0
    kvslp = 16
OPT = Opt()

def unpack(k, lo, hi, src):
    k.e(f"v_lshlrev_b32 v{lo}, 16, v{src}\nv_and_b32 v{hi}, 0xffff0000, v{src}")
def cvt16(k, dst, src):
    for i in range(8): k.e(f"v_cvt_pk_bf16_f32 v{dst+i}, v{src+2*i}, v{src+2*i+1}")
def stamp(k, i):
    if OPT.stamps:
        k.e(f"s_memrealtime s[{S_ST}:{S_ST+1}]\ns_waitcnt lgkmcnt(0)\nv_writelane_b32 v255, s{S_ST}, {i}")
        if OPT.cyc: k.e(f"s_memtime s[{S_ST}:{S_ST+1}]\ns_waitcnt lgkmcnt(0)\nv_writelane_b32 v255, s{S_ST}, {i+32}")
def bars(k, n):
    if n <= 4:
        for _ in range(n): k.e("s_barrier")
    else:
        t = k.lab("bars")
        k.e(f"s_mov_b32 s{S_CNT}, {n}\n{t}:\ns_barrier\ns_sub_u32 s{S_CNT}, s{S_CNT}, 1\ns_cmp_lg_u32 s{S_CNT}, 0\ns_cbranch_scc1 {t}")

def check_flags(k, nflags, val, oklab):
    k.e(f"""v_cmp_le_u32 vcc, {val}, v8
    s_and_b32 s{S_T+11}, vcc_lo, {(1<<nflags)-1}
    s_cmp_eq_u32 s{S_T+11}, {(1<<nflags)-1}
    s_cbranch_scc1 {oklab}""")
def spin_tail(k, top):
    k.e(f"s_sleep {OPT.slp}\ns_sub_u32 s{S_T+10}, s{S_T+10}, 1\ns_cmp_lg_u32 s{S_T+10}, 0\ns_cbranch_scc1 {top}")
def poll(k, voff, nflags, srdn=SRD_W, val=1, pre=False):
    top = k.lab("poll"); done = k.lab("polld")
    k.e(f"s_cmp_lg_u32 s{S_LW}, 0\ns_cbranch_scc1 {done}")
    if pre:
        k.e("s_waitcnt vmcnt(0)")
        check_flags(k, nflags, val, done)
    k.e(f"s_mov_b32 s{S_T+10}, 0x40000\n{top}:")
    k.e(f"buffer_load_dword v8, v{voff}, {srd(srdn)}, 0 offen sc1\ns_waitcnt vmcnt(0)")
    check_flags(k, nflags, val, done)
    spin_tail(k, top)
    k.e(f"{done}:")
def sample(k, voff, srdn=SRD_W):
    sk = k.lab("nosm")
    k.e(f"s_cmp_lg_u32 s{S_LW}, 0\ns_cbranch_scc1 {sk}\nbuffer_load_dword v8, v{voff}, {srd(srdn)}, 0 offen sc1\n{sk}:")
def tagcheck(k, regs, t, ok):
    regs = list(regs)
    if len(regs) % 2 == 0:
        k.e(f"v_max_u32 v{t}, v{regs[0]}, v{regs[1]}"); rest = regs[2:]
    else:
        k.e(f"v_max3_u32 v{t}, v{regs[0]}, v{regs[1]}, v{regs[2]}"); rest = regs[3:]
    for i in range(0, len(rest), 2): k.e(f"v_max3_u32 v{t}, v{t}, v{rest[i]}, v{rest[i+1]}")
    k.e(f"v_cmp_eq_u32 vcc, -1, v{t}\ns_cmp_eq_u64 vcc, 0\ns_cbranch_scc1 {ok}")
def validated(k, gather, regs, t, pre=True):
    top = k.lab("vsp"); ok = k.lab("vok")
    if pre: tagcheck(k, regs, t, ok)
    k.e(f"s_mov_b32 s{S_T+10}, 0x40000\n{top}:")
    gather()
    k.e("s_waitcnt vmcnt(0)")
    tagcheck(k, regs, t, ok)
    spin_tail(k, top)
    k.e(f"{ok}:")

def cnt_addr(k, v, base, sline):
    k.e(f"""s_mul_i32 s{S_T}, s{sline}, {FLS}
    s_add_u32 s{S_T}, s{S_T}, {base}
    v_mov_b32 v{v}, s{S_T}""")
def set_flag(k, vset):
    sk = k.lab("nofl")
    k.e(f"""s_cmp_lg_u32 s{S_LW}, 0
    s_cbranch_scc1 {sk}
    s_mov_b64 exec, 1
    buffer_atomic_add v11, v{vset}, {W}, 0 offen sc1
    s_mov_b64 exec, -1
    {sk}:""")

def softmax_pm(k, P, EP, EN, T, OP, ON):
    L = S_K
    k.e(f"v_max3_f32 v{T}, v{P}, v{P+1}, v{P+2}\nv_min3_f32 v{T+1}, v{P}, v{P+1}, v{P+2}")
    for i in range(3, 15, 2):
        k.e(f"v_max3_f32 v{T}, v{T}, v{P+i}, v{P+i+1}\nv_min3_f32 v{T+1}, v{T+1}, v{P+i}, v{P+i+1}")
    k.e(f"""v_max_f32 v{T}, v{T}, v{P+15}
    v_max_f32 v{T+1}, -v{T+1}, -v{P+15}
    s_nop 1
    v_permlane32_swap_b32 v{T}, v{T+1}
    v_max_f32 v{T}, v{T}, v{T+1}
    v_mul_f32 v{T}, {f2u(-LOG2E)}, v{T}
    v_mov_b32 v{T+1}, v{T}
    s_nop 1
    v_permlane32_swap_b32 v{T}, v{T+1}""")
    for i in range(8):
        k.e(f"v_pk_fma_f32 v[{EP+2*i}:{EP+2*i+1}], v[{P+2*i}:{P+2*i+1}], s[{L}:{L+1}], v[{T}:{T+1}] op_sel_hi:[1,1,0]")
        k.e(f"v_pk_fma_f32 v[{EN+2*i}:{EN+2*i+1}], v[{P+2*i}:{P+2*i+1}], s[{L}:{L+1}], v[{T}:{T+1}] op_sel:[0,0,1] op_sel_hi:[1,1,1] neg_lo:[0,1,0] neg_hi:[0,1,0]")
    for i in range(16):
        k.e(f"v_exp_f32 v{EP+i}, v{EP+i}\nv_exp_f32 v{EN+i}, v{EN+i}")
    k.e(f"v_pk_add_f32 v[{T}:{T+1}], v[{EP}:{EP+1}], v[{EP+2}:{EP+3}]\nv_pk_add_f32 v[{T+2}:{T+3}], v[{EN}:{EN+1}], v[{EN+2}:{EN+3}]")
    for i in range(2, 8):
        k.e(f"v_pk_add_f32 v[{T}:{T+1}], v[{T}:{T+1}], v[{EP+2*i}:{EP+2*i+1}]\nv_pk_add_f32 v[{T+2}:{T+3}], v[{T+2}:{T+3}], v[{EN+2*i}:{EN+2*i+1}]")
    k.e(f"""v_add_f32 v{T}, v{T}, v{T+1}
    v_add_f32 v{T+1}, v{T+2}, v{T+3}
    s_nop 1
    v_permlane32_swap_b32 v{T}, v{T+1}
    v_add_f32 v{T}, v{T}, v{T+1}
    v_rcp_f32 v{T}, v{T}
    s_nop 0
    v_mov_b32 v{T+1}, v{T}
    s_nop 1
    v_permlane32_swap_b32 v{T}, v{T+1}""")
    for i in range(8):
        k.e(f"v_pk_mul_f32 v[{EP+2*i}:{EP+2*i+1}], v[{EP+2*i}:{EP+2*i+1}], v[{T}:{T+1}] op_sel_hi:[1,0]")
        k.e(f"v_pk_mul_f32 v[{EN+2*i}:{EN+2*i+1}], v[{EN+2*i}:{EN+2*i+1}], v[{T}:{T+1}] op_sel:[0,1] op_sel_hi:[1,1]")
    cvt16(k, OP, EP); cvt16(k, ON, EN)

def xhalf_sum2(k, a):
    k.e(f"""s_nop 1
    v_permlane32_swap_b32 v{a}, v{a+1}
    v_add_f32 v{a}, v{a}, v{a+1}
    v_mov_b32 v{a+1}, v{a}
    s_nop 1
    v_permlane32_swap_b32 v{a}, v{a+1}""")
def xswap_sum1(k, a, t, which=32):
    k.e(f"v_mov_b32 v{t}, v{a}\ns_nop 1\nv_permlane{which}_swap_b32 v{a}, v{t}\nv_add_f32 v{a}, v{a}, v{t}")
def xswap_sum(k, a, t, n, which):
    for i in range(n): k.e(f"v_mov_b32 v{t+i}, v{a+i}")
    k.e("s_nop 1")
    for i in range(n): k.e(f"v_permlane{which}_swap_b32 v{a+i}, v{t+i}")
    for i in range(n): k.e(f"v_add_f32 v{a+i}, v{a+i}, v{t+i}")
def ror_sum(k, a, n, sh):
    k.e("s_nop 1")
    for i in range(n): k.e(f"v_add_f32_dpp v{a+i}, v{a+i}, v{a+i} row_ror:{sh} row_mask:0xf bank_mask:0xf")
def acc_bf16(k, A, src, n, first, t, plain=False):
    for j in range(n):
        if first: unpack(k, A+2*j, A+2*j+1, src+j)
        elif plain:
            tt = t+2*(j & 1)
            unpack(k, tt, tt+1, src+j)
            k.e(f"v_add_f32 v{A+2*j}, v{A+2*j}, v{tt}\nv_add_f32 v{A+2*j+1}, v{A+2*j+1}, v{tt+1}")
        else:
            tt = t+2*(j & 1)
            unpack(k, tt, tt+1, src+j)
            k.e(f"v_pk_add_f32 v[{A+2*j}:{A+2*j+1}], v[{A+2*j}:{A+2*j+1}], v[{tt}:{tt+1}]")
def combine(k, P, n, cnt, d, t):
    k.e(f"v_pk_add_f32 v[{d}:{d+1}], v[{P}:{P+1}], v[{P+2}:{P+3}]")
    for i in range(2, n): k.e(f"v_pk_add_f32 v[{d}:{d+1}], v[{d}:{d+1}], v[{P+2*i}:{P+2*i+1}]")
    k.e(f"v_mul_f32 v{d}, {f2u(1.0/n)}, v{d}\nv_mov_b32 v{t+1}, 0")
    for i in range(n): k.e(f"v_sub_f32 v{t}, v{P+2*i}, v{d}\nv_fmac_f32 v{t+1}, v{t}, v{t}")
    k.e(f"v_fmac_f32 v{d+1}, {f2u(float(cnt))}, v{t+1}")
def finish_rstd(k, d, total):
    k.e(f"""v_mul_f32 v{d+1}, {f2u(1.0/total)}, v{d+1}
    v_add_f32 v{d+1}, {f2u(1e-5)}, v{d+1}
    v_rsq_f32 v{d+1}, v{d+1}
    s_nop 0
    v_mul_f32 v{d}, -v{d}, v{d+1}""")

def cfgs():
    c1 = Cfg(128,192,16,3,2,2,1, 2048, 6144, [(1,0),(2,0),(0,0)], True, False, orient=['T','N','T'], smode='rows', baseS=0, baseF=49152, kbase=OPT.spq)
    R8 = (-1,0,0,0,0,0,2,-1); R4 = (-1,0,2,-1)
    c2 = Cfg(128,64,16,4,4,1,2, 2048, 2048, [(0,0),(0,1)], False, False, smode='frag', auxS="sc1", rot=R8 if OPT.r8 & 1 else R4)
    c3 = Cfg(128,128,16,4,2,2,1, 2048, 7168, [(0,0),(0,1)], False, True, smode='frag', auxS="sc1", slot0=2, rot=R8 if OPT.r8 & 2 else R4)
    c4 = Cfg(128,128,32,4,2,2,1, 4096, 0, [(0,0),(0,1)], False, True, smode='rows', fmode='blk', auxF="sc1", rot=(-1,0,0,1) if OPT.own2 else (-1,0,2,-1), own2=bool(OPT.own2))
    c5 = Cfg(128,64,28,4,4,1,2, 3584, 2048, [(0,0),(0,1)], False, False, smode='frag', auxS="sc1", baseF=114688, slot0=2)
    return c1, c2, c3, c4, c5
VS=16; VF=24; VS4=36; VF4=44
L_PHK=0; L_VX=32768; L_KV=49152; L_Z=57344

def tail_barriers(k, c, extra=0):
    for r in range(c.NS-1):
        k.e(f"s_waitcnt vmcnt({max(c.NS-2-r,0)*c.nI + extra})\ns_barrier")

def win_loads(k, tag):
    mk_srd(k, SRD_A, P_WO, 2*MB); mk_srd(k, SRD_B, P_WIN, 7*MB)
    n = 8
    k.e(f"""s_lshr_b32 s{S_T}, s2, 3
    s_lshl_b32 s{S_T+2}, s{S_T}, 2
    s_add_u32 s{S_T+2}, s{S_T+2}, s{S_Q}
    s_and_b32 s{S_T+3}, s2, 1""")
    if OPT.l2 & 1:
        k.e(f"""s_lshl_b32 s{S_T+1}, s{S_T+2}, 14
        s_lshl_b32 s{S_T+4}, s{S_T+3}, 10
        s_add_u32 s{S_T+1}, s{S_T+1}, s{S_T+4}
        v_lshrrev_b32 v3, 3, v1
        v_lshlrev_b32 v3, 11, v3
        v_and_b32 v4, 7, v1
        v_lshl_add_u32 v3, v4, 7, v3
        buffer_load_dword v250, v3, {srd(SRD_A)}, s{S_T+1} offen""")
    else:
        k.e(f"""s_lshl_b32 s{S_T+1}, s2, 2
        s_add_u32 s{S_T+1}, s{S_T+1}, s{S_Q}
        s_lshl_b32 s{S_T+1}, s{S_T+1}, 11
        v_lshlrev_b32 v3, 7, v1
        s_mov_b64 exec, 0xffff
        buffer_load_dword v250, v3, {srd(SRD_A)}, s{S_T+1} offen
        s_mov_b64 exec, -1""")
    n += 1
    k.e(f"""s_lshr_b32 s{S_T+4}, s{S_T}, 1
    s_cmp_ge_u32 s{S_T+4}, 7
    s_cselect_b32 s{S_T+5}, 7, 0
    s_add_u32 s{S_T+4}, s{S_T+4}, s{S_T+5}
    s_mul_i32 s{S_T+5}, s{S_T+3}, 7
    s_add_u32 s{S_CW}, s{S_T+4}, s{S_T+5}
    s_and_b32 s{S_T+5}, s2, 6
    s_and_b32 s{S_T+6}, s{S_T}, 1
    s_add_u32 s{S_CW+1}, s{S_T+5}, s{S_T+6}
    s_lshl_b32 s{S_T+5}, s{S_CW+1}, 2
    s_add_u32 s{S_T+5}, s{S_T+5}, s{S_Q}
    s_mul_i32 s{S_T+5}, s{S_T+5}, {32*7168}
    s_lshl_b32 s{S_T+4}, s{S_CW}, 8
    s_add_u32 s{S_T+5}, s{S_T+5}, s{S_T+4}
    s_cmp_ge_u32 s2, 224
    s_cselect_b32 s{S_T+5}, {7*MB}, s{S_T+5}
    v_lshrrev_b32 v3, 4, v1
    v_mul_u32_u24 v3, 7168, v3
    v_and_b32 v4, 15, v1
    v_lshl_add_u32 v5, v4, 4, v3""")
    for j in range(8):
        k.e(f"buffer_load_dwordx4 v[{192+4*j}:{195+4*j}], v5, {srd(SRD_B)}, s{S_T+5} offen\ns_add_u32 s{S_T+5}, s{S_T+5}, {4*7168}")
    if OPT.l2 & 2:
        k.e(f"""v_min_u32 v4, 13, v4
        v_lshl_add_u32 v3, v4, 7, v3
        s_mul_i32 s{S_T+1}, s{S_T+2}, {4*7168}
        s_mul_i32 s{S_T+4}, s{S_T+3}, 1792
        s_add_u32 s{S_T+1}, s{S_T+1}, s{S_T+4}
        s_add_u32 s{S_T+1}, s{S_T+1}, 3584
        buffer_load_dword v251, v3, {srd(SRD_B)}, s{S_T+1} offen
        s_add_u32 s{S_T+1}, s{S_T+1}, {512*7168}
        buffer_load_dword v252, v3, {srd(SRD_B)}, s{S_T+1} offen""")
        n += 2
    return n
def win_reduce(k):
    for j in range(8): acc_bf16(k, 224, 192+4*j, 4, j == 0, 232)
    xswap_sum(k, 224, 232, 8, 32)
    k.e(f"""s_lshl_b32 s{S_T}, s{S_Q}, 10
    s_add_u32 s{S_T}, s{S_T}, {L_CW}
    v_and_b32 v4, 31, v1
    v_lshl_add_u32 v4, v4, 5, s{S_T}
    ds_write_b128 v4, v[224:227]
    ds_write_b128 v4, v[228:231] offset:16
    s_waitcnt lgkmcnt(0)""")

def pf_loop(k, srdn, n, stride, wrap=None, base=None):
    t = k.lab("pf")
    k.e(f"s_mov_b32 s{S_CNT}, {n}\n{t}:")
    if wrap:
        k.e(f"""s_add_u32 s{S_T+6}, s{S_T+4}, s{S_T+5}
        buffer_load_dword v3, v2, {srd(srdn)}, s{S_T+6} offen
        s_add_u32 s{S_T+5}, s{S_T+5}, {stride}
        s_and_b32 s{S_T+5}, s{S_T+5}, {wrap-1}""")
    else:
        k.e(f"buffer_load_dword v3, v2, {srd(srdn)}, s{S_T+4} offen\ns_add_u32 s{S_T+4}, s{S_T+4}, {stride}")
    k.e(f"s_waitcnt vmcnt(1)\ns_sub_u32 s{S_CNT}, s{S_CNT}, 1\ns_cmp_lg_u32 s{S_CNT}, 0\ns_cbranch_scc1 {t}")

def helper_pf(k, role):
    J = OPT.pf
    if not J: return
    mk_srd(k, SRD_A, P_WIN, 7*MB); mk_srd(k, SRD_B, P_WSP, 8*MB)
    k.e(f"""s_and_b32 s{S_T}, s2, 7
    s_lshr_b32 s{S_T+1}, s2, 3
    s_sub_u32 s{S_T+1}, s{S_T+1}, 28
    s_lshl_b32 s{S_T+1}, s{S_T+1}, 3
    s_add_u32 s{S_T+1}, s{S_T+1}, s{S_WAVE}
    s_and_b32 s{S_T+2}, s{S_T}, 1
    s_lshr_b32 s{S_T+3}, s{S_T}, 1""")
    if J & 2:
        k.e(f"""v_lshrrev_b32 v2, 4, v1
        v_mul_u32_u24 v2, 7168, v2
        v_and_b32 v4, 15, v1
        v_min_u32 v4, 13, v4
        v_lshl_add_u32 v2, v4, 7, v2
        s_mul_i32 s{S_T+7}, s{S_T+1}, {4*7168}
        s_mul_i32 s{S_T+4}, s{S_T+2}, 1792
        s_add_u32 s{S_T+7}, s{S_T+7}, s{S_T+4}
        s_add_u32 s{S_T+4}, s{S_T+7}, 3584""")
        pf_loop(k, SRD_A, 8, 128*7168)
        k.e(f"s_mov_b32 s{S_T+4}, s{S_T+7}")
        pf_loop(k, SRD_A, 8, 128*7168)
    stamp(k, 11)
    k.e(f"""v_lshrrev_b32 v2, 2, v1
    v_lshlrev_b32 v2, 12, v2
    v_and_b32 v4, 3, v1
    v_lshl_add_u32 v2, v4, 7, v2
    s_lshl_b32 s{S_T+4}, s{S_T+3}, 21
    s_lshl_b32 s{S_T+5}, s{S_T+1}, 16
    s_add_u32 s{S_T+4}, s{S_T+4}, s{S_T+5}
    s_lshl_b32 s{S_T+5}, s{S_T+3}, 10""")
    pf_loop(k, SRD_B, 8, 512, wrap=4096)
    stamp(k, 12)
    mk_srd(k, SRD_A, P_WOUT, 1792*2048)
    def wout():
        k.e(f"""v_lshrrev_b32 v2, 3, v1
        v_lshlrev_b32 v2, 11, v2
        v_and_b32 v4, 7, v1
        v_lshl_add_u32 v2, v4, 7, v2
        s_lshl_b32 s{S_T+4}, s{S_T+1}, 14
        s_lshl_b32 s{S_T+5}, s{S_T+2}, 10
        s_add_u32 s{S_T+4}, s{S_T+4}, s{S_T+5}""")
        pf_loop(k, SRD_A, 7, 256*2048)
    if J & 4:
        if J & 8: wout()
        if role == 'a':
            k.e(f"""s_mul_i32 s{S_T+4}, s{S_T+2}, {7*FLS}
            s_add_u32 s{S_T+4}, s{S_T+4}, {F_Z}
            v_min_u32 v10, 6, v1
            v_mul_u32_u24 v10, {FLS}, v10
            v_add_u32 v10, s{S_T+4}, v10""")
            poll(k, 10, 7, val=16)
        k.e("s_barrier")
        stamp(k, 13)
        k.e(f"""s_cmp_ge_u32 s{S_T+1}, 28
        s_cbranch_scc1 L_noz_{role}
        v_lshlrev_b32 v2, 7, v1
        s_mul_i32 s{S_T+4}, s{S_T+2}, 7
        s_lshr_b32 s{S_T+5}, s{S_T+1}, 2
        s_add_u32 s{S_T+4}, s{S_T+4}, s{S_T+5}
        s_lshl_b32 s{S_T+4}, s{S_T+4}, 19
        s_and_b32 s{S_T+5}, s{S_T+1}, 3
        s_lshl_b32 s{S_T+5}, s{S_T+5}, 13
        s_add_u32 s{S_T+4}, s{S_T+4}, s{S_T+5}
        s_add_u32 s{S_T+4}, s{S_T+4}, {WS_Z2N}
        s_lshl_b32 s{S_T+5}, s{S_T+3}, 17
        s_add_u32 s{S_T+5}, s{S_T+5}, {OPT.zskip*32768}
        s_and_b32 s{S_T+5}, s{S_T+5}, {(1<<19)-1}""")
        pf_loop(k, SRD_W, 16-OPT.zskip, 32768, wrap=1<<19)
        k.e(f"L_noz_{role}:")
        stamp(k, 14)
    wout()
    k.e("s_waitcnt vmcnt(0)")

def loader(k):
    c1, c2, c3, c4, c5 = cfgs()
    k.e(f"s_lshl_b32 s{S_M0W}, s{S_LW}, 10")
    c = c1
    if OPT.p1ph:
        inv = [0]*4
        for u, d in enumerate(c.rot): inv[(u+d) & 3] = -d
        packed = sum(((d+8) & 15) << (4*u) for u, d in enumerate(inv))
        k.e(f"""s_sub_u32 s{S_T}, s{S_M}, s{S_PH}
        s_and_b32 s{S_T}, s{S_T}, 3
        s_lshl_b32 s{S_T}, s{S_T}, 2
        s_lshr_b32 s{S_T}, {packed}, s{S_T}
        s_and_b32 s{S_T}, s{S_T}, 15
        s_add_u32 s{S_T}, s{S_T}, s{S_M}
        s_sub_u32 s{S_T}, s{S_T}, 8
        s_and_b32 s{S_KB}, s{S_T}, 15""")
    else:
        k.e(f"s_mov_b32 s{S_KB}, s{S_M}\ns_mov_b32 s{S_PH}, s{S_N}")
    k.e(f"s_lshl_b32 s{S_T0}, s{S_N}, 7")
    loader_voff_S(k, c, VS)
    loader_voff_F(k, c, VF, S_T0, lambda P: P*2048)
    k.e("s_waitcnt lgkmcnt(0)")
    mk_srd(k, SRD_S, P_X, 4*MB); mk_srd(k, SRD_F, P_WQKV, 6*MB)
    stamp(k, 0)
    issue_first(k, c, VS, VF, "SF")
    mk_srd(k, SRD_W, P_WS, WS_END)
    steady(k, c, VS, VF, 16)
    n = win_loads(k, "l")
    tail_barriers(k, c, n)
    tile_map(k, 4, 8, 16)
    c = c2
    mk_srd(k, SRD_S, P_WS, 4*MB, WS_O); mk_srd(k, SRD_F, P_WO, 2*MB)
    k.e(f"s_lshl_b32 s{S_T0}, s{S_N}, 7")
    loader_voff_S(k, c, VS); loader_voff_F(k, c, VF, S_T0, lambda P: 0)
    bars(k, 1+OPT.fpos)
    issue_first(k, c, VS, VF, "F", pbarrier=False)
    bars(k, 4-OPT.fpos)
    k.e(f"s_waitcnt vmcnt({c.NS*c.nF})")
    win_reduce(k)
    k.e("s_barrier")
    stamp(k, 4)
    if OPT.lead & 1:
        issue_first(k, c, VS, VF, "S", t1=3)
        for w_ in (c.nS, c.nS+c.nF):
            k.e(f"s_waitcnt vmcnt({w_})\ns_barrier"); itstamp(k)
            issue(k, c, VS, VF, "S"); issue_noadv(k, c, VS, VF, "F")
        steady_skew(k, c, VS, VF)
        tw = [c.nS+c.nF, 0]
    else:
        issue_first(k, c, VS, VF, "S")
        after_split_prologue(k, c, VS, VF, c.nS)
        steady(k, c, VS, VF, c.T)
        k.e(f"s_waitcnt vmcnt({2*c2.nI})\ns_barrier")
        tw = [c.nI, 0]
    k.e("s_cmp_ge_u32 s2, 224\ns_cbranch_scc1 L_ld_helper")
    c = c3
    tile_map(k, 4, 7, 14)
    mk_srd(k, SRD_S, P_WS, 4*MB, WS_H); mk_srd(k, SRD_F, P_WIN, 7*MB)
    k.e(f"s_lshl_b32 s{S_T0}, s{S_N}, 8\ns_mov_b32 s{S_FB}, 3584")
    loader_voff_F(k, c, VF, S_T0, lambda P: P*128)
    if OPT.lead & 1:
        k.e(f"s_waitcnt vmcnt({tw[0]})\ns_barrier")
        issue_first(k, c, VS, VF, "F", fbase=True, pbarrier=False, t1=1)
        k.e(f"s_waitcnt vmcnt({c.nF})\ns_barrier")
        issue_first(k, c, VS, VF, "F", fbase=True, pbarrier=False, t0=1, t1=2)
        k.e("s_barrier")
    else:
        issue_first(k, c, VS, VF, "F", fbase=True, pbarrier=False, t1=1)
        k.e(f"s_waitcnt vmcnt({c2.nI+c.nF})\ns_barrier")
        issue_first(k, c, VS, VF, "F", fbase=True, pbarrier=False, t0=1, t1=2)
        k.e(f"s_waitcnt vmcnt({2*c.nF})\ns_barrier\ns_barrier")
    loader_voff_S(k, c, VS); loader_voff_S(k, c4, VS4); loader_voff_F(k, c4, VF4)
    bars(k, 2)
    stamp(k, 5)
    ITST[1] = 253
    if ITST[0]: k.e("s_mov_b32 s97, 0")
    issue_first(k, c, VS, VF, "S", t1=2)
    if OPT.lead & 2:
        issue(k, c, VS, VF, "SF", True)
        steady(k, c, VS, VF, 16, fbase=True, wait=c.nI)
        k.e(f"s_mov_b32 s{S_TAU}, 0\ns_mov_b32 s{S_FB}, 0")
        steady(k, c, VS, VF, 3, fbase=True, wait=c.nI)
        issue(k, c, VS, VF, "SF", True)
        steady(k, c, VS, VF, 16, fbase=True)
    else:
        issue_first(k, c, VS, VF, "SF", fbase=True, pbarrier=False, t0=2)
        steady(k, c, VS, VF, 16, fbase=True)
        k.e(f"s_mov_b32 s{S_TAU}, 0\ns_mov_b32 s{S_FB}, 0")
        steady(k, c, VS, VF, 16, fbase=True)
    c = c4
    mk_srd(k, SRD_S, P_WSP, 8*MB); mk_srd(k, SRD_F, P_WS, 7*MB, WS_Z2N)
    k.e(f"s_mov_b32 s{S_TAU}, 0\ns_lshl_b32 s{S_KB}, s{S_M}, 1")
    if OPT.own2 and not OPT.p4ph: k.e(f"s_mov_b32 s{S_PH}, s{S_N}")
    steady(k, c, VS4, VF4, 32)
    def p5_setup():
        tile_map(k, 4, 8, 16)
        mk_srd(k, SRD_S, P_WS, 7*MB, WS_U); mk_srd(k, SRD_F, P_WOUT, 1792*2048)
        k.e(f"s_lshl_b32 s{S_T0}, s{S_N}, 7")
        loader_voff_S(k, c5, VS); loader_voff_F(k, c5, VF, S_T0, lambda P: 0)
        issue_first(k, c5, VS, VF, "F", pbarrier=False, t1=2)
    k.e(f"s_waitcnt vmcnt({2*c.nI})\ns_barrier")
    p5_setup()
    k.e(f"s_waitcnt vmcnt({c.nI+2*c5.nF})\ns_barrier\ns_waitcnt vmcnt({2*c5.nF})\ns_barrier")
    bars(k, 2)
    k.e("L_ld_p5:")
    ITST[1] = 254
    if ITST[0]: k.e("s_mov_b32 s97, 32")
    c = c5
    k.e("s_barrier")
    stamp(k, 9)
    issue_first(k, c, VS, VF, "S", t1=2)
    if OPT.lead & 4:
        issue_noadv(k, c, VS, VF, "F"); issue(k, c, VS, VF, "S"); issue_noadv(k, c, VS, VF, "F")
        steady_skew(k, c, VS, VF)
        k.e(f"s_waitcnt vmcnt({c.nS+c.nF})\ns_barrier\ns_waitcnt vmcnt(0)\ns_barrier")
    else:
        issue_first(k, c, VS, VF, "SF", pbarrier=False, t0=2)
        steady(k, c, VS, VF, c.T)
        tail_barriers(k, c)
    k.e("s_barrier")
    k.e("s_branch L_fin")
    k.e("L_ld_helper:")
    k.e(f"s_waitcnt vmcnt({tw[0]})\ns_barrier\ns_waitcnt vmcnt(0)\ns_barrier")
    bars(k, 3)
    helper_pf(k, 'l')
    p5_setup()
    k.e("s_branch L_ld_p5")

def spread(k, fn, nbar):
    t = Kern(k.name); t.uid = k.uid
    fn(t); k.uid = t.uid
    L = [x.strip() for x in t.L]
    assert not any(x.endswith(":") for x in L)
    wt = lambda x: 10 if x.startswith("buffer_") else (1 if x.startswith(("v_", "ds_")) else 0.25)
    tot = sum(map(wt, L)); acc = 0; nb = 0
    low = OPT.vprio and sum(x.startswith("v_") for x in L) > 20
    if low: k.e("s_setprio 0")
    for x in L:
        k.e(x); acc += wt(x)
        if nb < nbar-1 and acc >= tot*(nb+1)/nbar - 1e-9:
            k.e("s_barrier"); nb += 1
    if low: k.e(f"s_setprio {OPT.pa}")
    while nb < nbar:
        k.e("s_barrier"); nb += 1

_carry = []
def merge(k, vm, va, nbar, share):
    def cap(fns):
        t = Kern(k.name); t.uid = k.uid
        for f in fns: f(t)
        k.uid = t.uid
        return [x.strip() for x in t.L]
    M = cap(vm); _carry.extend(cap(va))
    nv = len(_carry) if share >= 1 else int(len(_carry)*share)
    V = _carry[:nv]; del _carry[:nv]
    nm = sum(x.startswith("buffer_") for x in M)
    mi = 0; seen = 0; full = True
    for b in range(nbar):
        tgt = nm*(b+1)/nbar
        while mi < len(M) and (seen < tgt or not full or b == nbar-1):
            x = M[mi]; k.e(x); mi += 1
            if x.startswith("buffer_"): seen += 1
            if "exec" in x.split(",")[0]: full = x.replace(" ", "") == "s_mov_b64exec,-1"
        for x in V[len(V)*b//nbar: len(V)*(b+1)//nbar]: k.e(x)
        k.e("s_barrier")

def combine_half(k, P, stride, n, ntot, cnt, d, t):
    k.e(f"v_add_f32 v{d}, v{P}, v{P+stride}\nv_add_f32 v{d+1}, v{P+1}, v{P+stride+1}")
    for i in range(2, n): k.e(f"v_add_f32 v{d}, v{d}, v{P+stride*i}\nv_add_f32 v{d+1}, v{d+1}, v{P+stride*i+1}")
    if ntot != n: xswap_sum1(k, d, t)
    k.e(f"v_mul_f32 v{d}, {f2u(1.0/ntot)}, v{d}\nv_sub_f32 v{t}, v{P}, v{d}\nv_mul_f32 v{t+1}, v{t}, v{t}")
    for i in range(1, n): k.e(f"v_sub_f32 v{t}, v{P+stride*i}, v{d}\nv_fmac_f32 v{t+1}, v{t}, v{t}")
    k.e(f"v_fmac_f32 v{d+1}, {f2u(float(cnt))}, v{t+1}")
    if ntot != n: xswap_sum1(k, d+1, t)

def aux(k):
    c1, c2, c3, c4, c5 = cfgs()
    a = S_LW
    k.e(f"""s_lshl_b32 s{S_T}, s{S_M}, 7
    s_lshl_b32 s{S_T+1}, s{S_N}, 3
    s_add_u32 s{S_T}, s{S_T}, s{S_T+1}
    s_lshl_b32 s{S_T+1}, s{a}, 2
    s_add_u32 s{S_T}, s{S_T}, s{S_T+1}
    v_lshrrev_b32 v14, 4, v1
    v_add_u32 v14, s{S_T}, v14
    v_and_b32 v3, 15, v1
    v_lshlrev_b32 v3, 4, v3
    v_lshl_add_u32 v3, v14, 11, v3
    s_waitcnt lgkmcnt(0)""")
    mk_srd(k, SRD_B, P_X, 4*MB)
    for j in range(8): k.e(f"buffer_load_dwordx4 v[{64+4*j}:{67+4*j}], v3, {srd(SRD_B)}, 0 offen offset:{256*j}")
    mk_srd(k, SRD_W, P_WS, WS_END); mk_srd(k, SRD_A, P_WPHI, 65536); mk_srd(k, SRD_D, P_DBG, 256)
    stamp(k, 0)
    q = OPT.spq
    k.e(f"""v_lshlrev_b32 v2, 4, v1
    v_mov_b32 v11, 1
    v_mov_b32 v44, -1
    v_mov_b32 v45, -1
    v_mov_b32 v46, -1
    v_mov_b32 v47, -1
    v_lshrrev_b32 v4, 5, v1
    v_lshlrev_b32 v4, 13, v4
    v_and_b32 v5, 31, v1
    v_lshl_add_u32 v4, v5, 4, v4
    v_bfe_u32 v12, v1, 2, 2
    v_min_u32 v12, 2, v12
    v_lshlrev_b32 v12, 13, v12
    v_lshrrev_b32 v5, 4, v1
    v_lshl_add_u32 v12, v5, 11, v12
    v_and_b32 v5, 3, v1
    v_lshl_add_u32 v12, v5, 4, v12
    v_add_u32 v12, {c1.baseF + (q % 3)*c1.slotF}, v12
    v_bfe_u32 v13, v1, 2, 2
    v_lshl_add_u32 v12, v13, 7, v12
    v_lshrrev_b32 v13, 1, v13
    v_xor_b32 v13, s{a}, v13
    v_lshl_add_u32 v24, v13, 6, v12
    v_xor_b32 v25, 128, v24
    v_xor_b32 v26, 320, v24
    v_xor_b32 v27, 448, v24
    v_lshlrev_b32 v14, 2, v14""")
    X = 128
    for j in range(8):
        k.e(f"s_waitcnt vmcnt({7-j})")
        for i in range(4*j, 4*j+4):
            unpack(k, X+2*i, X+2*i+1, 64+i)
            t = 32+2*(i & 1)
            if i >= 2: k.e(f"v_pk_add_f32 v[{t}:{t+1}], v[{X+2*i-4 if i < 4 else t}:{X+2*i-3 if i < 4 else t+1}], v[{X+2*i}:{X+2*i+1}]")
    stamp(k, 10)
    k.e("s_barrier")
    def init(k):
        k.e(f"""s_mov_b32 s{S_T+14}, {WS_XS}
        s_mov_b32 s{S_T+15}, {WS_XS+8192}
        s_mov_b32 exec_lo, 0x10001
        s_mov_b32 exec_hi, 0x10001
        buffer_store_dword v44, v14, {W}, s{S_T+14} offen sc1
        buffer_store_dword v44, v14, {W}, s{S_T+15} offen sc1
        s_mov_b64 exec, -1
        s_lshl_b32 s{S_T}, s{S_N}, 17
        s_lshl_b32 s{S_T+1}, s{S_M}, 9
        s_add_u32 s{S_T}, s{S_T}, s{S_T+1}
        s_lshl_b32 s{S_T+1}, s{a}, 16
        s_add_u32 s{S_T}, s{S_T}, s{S_T+1}
        s_add_u32 s{S_T}, s{S_T}, {WS_KVP}""")
        for x in range(4): k.e(f"buffer_store_dwordx4 v[44:47], v4, {W}, s{S_T} offen sc1\ns_add_u32 s{S_T}, s{S_T}, 16384")
        k.e(f"""s_lshl_b32 s{S_T+12}, s{S_N}, 4
        s_add_u32 s{S_T+12}, s{S_T+12}, s{S_M}
        s_lshl_b32 s{S_T+12}, s{S_T+12}, 1
        s_add_u32 s{S_T+12}, s{S_T+12}, s{a}
        s_mul_i32 s{S_T+12}, s{S_T+12}, 384
        s_add_u32 s{S_T+12}, s{S_T+12}, {WS_CQP}
        s_mov_b64 exec, 0xffffff
        buffer_store_dwordx4 v[44:47], v2, {W}, s{S_T+12} offen sc1
        s_lshl_b32 s{S_T}, s2, 10
        s_add_u32 s{S_T}, s{S_T}, {WS_HST}
        s_mul_i32 s{S_T+1}, s2, 528
        s_add_u32 s{S_T+1}, s{S_T+1}, {WS_KVF}
        s_mul_i32 s{S_T+2}, s2, 896
        s_add_u32 s{S_T+3}, s{S_T+2}, {WS_CSP}
        s_add_u32 s{S_T+2}, s{S_T+2}, {WS_ZST}
        s_mov_b32 s{S_T+4}, 0xffffff
        s_cmp_eq_u32 s{a}, 0
        s_cselect_b32 s{S_T}, s{S_T}, s{S_T+2}
        s_cselect_b32 s{S_T+1}, s{S_T+1}, s{S_T+3}
        s_cselect_b32 s{S_T+5}, -1, s{S_T+4}
        s_cselect_b32 s{S_T+6}, 1, s{S_T+4}
        s_mov_b32 exec_lo, -1
        s_mov_b32 exec_hi, s{S_T+5}
        buffer_store_dwordx4 v[44:47], v2, {W}, s{S_T} offen sc1
        s_mov_b32 exec_hi, s{S_T+6}
        buffer_store_dwordx4 v[44:47], v2, {W}, s{S_T+1} offen sc1
        s_mov_b64 exec, -1
        s_mul_i32 s{S_T}, s2, {FLS}
        s_add_u32 s{S_T}, s{S_T}, {WS_FLAG}
        s_cmp_lt_u32 s2, 64
        s_cselect_b32 s{S_T}, s{S_T}, {WS_END}
        s_lshl_b32 s{S_T+1}, s2, 8
        s_add_u32 s{S_T+1}, s{S_T+1}, {WS_ZP}
        s_cmp_eq_u32 s{a}, 0
        s_cselect_b32 s{S_T}, s{S_T}, s{S_T+1}
        s_cselect_b32 s{S_T+1}, 0, -1
        v_mov_b32 v48, s{S_T+1}
        v_lshlrev_b32 v5, 2, v1
        buffer_store_dword v48, v5, {W}, s{S_T} offen sc1""")
    def xs2(k):
        k.e("v_add_f32 v32, v32, v34\nv_add_f32 v33, v33, v35\nv_add_f32 v32, v32, v33")
        for sh in (8, 4, 2, 1): ror_sum(k, 32, 1, sh)
        k.e(f"v_mul_f32 v32, {f2u(1/1024.)}, v32")
        for i in range(64):
            d = 40+(i & 3); t = 34+(i & 3)
            k.e(f"v_sub_f32 v{d}, v{X+i}, v32")
            k.e(f"v_mul_f32 v{t}, v{d}, v{d}" if i < 4 else f"v_fmac_f32 v{t}, v{d}, v{d}")
        k.e("v_add_f32 v34, v34, v35\nv_add_f32 v36, v36, v37\nv_add_f32 v33, v34, v36")
        for sh in (8, 4, 2, 1): ror_sum(k, 33, 1, sh)
        finish_rstd(k, 32, 1024)
    def qld(k):
        k.e(f"""s_lshl_b32 s{S_T}, s{S_N}, 12
        s_lshl_b32 s{S_T+1}, s{a}, 11
        s_add_u32 s{S_T}, s{S_T}, s{S_T+1}
        s_add_u32 m0, s{S_T+1}, {L_WPHI}
        s_nop 0
        buffer_load_dwordx4 v2, {srd(SRD_A)}, s{S_T} offen lds
        buffer_load_dwordx4 v2, {srd(SRD_A)}, s{S_T} offen offset:1024 lds""")
    assert q == 5
    merge(k, [init], [xs2], 2, 0.3)
    merge(k, [], [], 1, 0.4)
    merge(k, [], [], 1, 0.67)
    k.L.insert(len(k.L)-1, "    s_waitcnt vmcnt(0)")
    k.e(f"""s_cmp_lg_u32 s{a}, 0
    s_cbranch_scc1 L_a_noarr
    s_and_b32 s{S_T}, s2, 7
    s_lshl_b32 s{S_T}, s{S_T}, 5
    v_mov_b32 v4, s{S_T}
    s_mov_b64 exec, 1
    buffer_atomic_add v11, v4, {srd(SRD_D)}, 0 offen sc1
    s_mov_b64 exec, -1
    L_a_noarr:""")
    merge(k, [qld], [], 1, 1.0)
    k.e(f"""s_mov_b32 exec_lo, 0x10001
    s_mov_b32 exec_hi, 0x10001
    buffer_store_dword v32, v14, {W}, s{S_T+14} offen sc1
    buffer_store_dword v33, v14, {W}, s{S_T+15} offen sc1
    s_mov_b64 exec, -1""")
    for j in range(16):
        k.e(f"ds_read_b128 v[{64+4*j}:{67+4*j}], v{24 + (j&3)} offset:{(j>>2)*512}")
        if j == 7: k.e("s_waitcnt lgkmcnt(4)")
    k.e("s_waitcnt lgkmcnt(0)\ns_barrier")
    A = 128; Q = 136
    def csum(k):
        for j in range(16): acc_bf16(k, A, 64+4*j, 4, j == 0, 48, plain=True)
        xswap_sum(k, A, 160, 8, 16); xswap_sum(k, A, 160, 8, 32)
        k.e(f"""v_lshlrev_b32 v4, 5, v1
        s_mov_b64 exec, 0xfff
        buffer_store_dwordx4 v[{A}:{A+3}], v4, {W}, s{S_T+12} offen sc1
        buffer_store_dwordx4 v[{A+4}:{A+7}], v4, {W}, s{S_T+12} offen offset:16 sc1
        s_mov_b64 exec, -1
        v_lshlrev_b32 v10, 5, v1""")
    spread(k, csum, 5)
    sample(k, 10, SRD_D)
    k.e(f"""s_lshl_b32 s{S_T+14}, s{a}, 13
    s_lshl_b32 s{S_T+1}, s{S_M}, 9
    s_add_u32 s{S_T+14}, s{S_T+14}, s{S_T+1}
    s_add_u32 s{S_T+14}, s{S_T+14}, {WS_XS}
    s_mul_i32 s{S_T+12}, s{S_N}, {16*768}
    s_mul_i32 s{S_T+13}, s{a}, 384
    s_add_u32 s{S_T+12}, s{S_T+12}, s{S_T+13}
    s_add_u32 s{S_T+12}, s{S_T+12}, {WS_CQP}
    v_and_b32 v12, 31, v1
    v_min_u32 v12, 23, v12
    v_lshlrev_b32 v12, 4, v12
    v_lshrrev_b32 v13, 5, v1
    v_mul_u32_u24 v13, 768, v13
    v_add_u32 v13, v13, v12
    v_lshlrev_b32 v5, 3, v1""")
    k.e("s_barrier")
    poll(k, 10, 8, SRD_D, 32, pre=True)
    stamp(k, 1)
    k.e("s_barrier")
    def cqg():
        k.e(f"s_mov_b32 s{S_T}, s{S_T+12}")
        for i in range(8):
            k.e(f"buffer_load_dwordx4 v[{64+4*i}:{67+4*i}], v13, {W}, s{S_T} offen offset:{(i&1)*1536} sc1")
            if i & 1: k.e(f"s_add_u32 s{S_T}, s{S_T}, 3072")
        k.e(f"buffer_load_dwordx2 v[96:97], v5, {W}, s{S_T+14} offen sc1")
    cqg()
    k.e("s_barrier")
    k.e("s_waitcnt vmcnt(0)")
    validated(k, cqg, range(64, 98), 3)
    for i in range(1, 8):
        for j in range(4): k.e(f"v_add_f32 v{64+j}, v{64+j}, v{64+4*i+j}")
    k.e("s_barrier")
    xswap_sum(k, 64, 68, 4, 32)
    k.e(f"""s_add_u32 s{S_T+13}, s{S_T+13}, {L_CQ}
    v_add_u32 v3, s{S_T+13}, v12
    ds_write_b128 v3, v[64:67]
    s_lshl_b32 s{S_T}, s{a}, 9
    s_add_u32 s{S_T}, s{S_T}, {L_XS}
    v_add_u32 v5, s{S_T}, v5
    ds_write_b64 v5, v[96:97]
    s_waitcnt lgkmcnt(0)
    s_barrier""")
    stamp(k, 2)
    win_loads(k, "a")
    cnt_addr(k, 9, F_O, S_M)
    k.e(f"s_cmp_lg_u32 s{a}, 0\ns_cbranch_scc1 L_a_z")
    k.e(f"""s_lshl_b32 s{S_T+12}, s{S_N}, 17
    s_lshl_b32 s{S_T+1}, s{S_M}, 13
    s_add_u32 s{S_T+12}, s{S_T+12}, s{S_T+1}
    s_add_u32 s{S_T+12}, s{S_T+12}, {WS_KVP}
    s_add_u32 s{S_T+13}, s{S_T+12}, 4096
    s_lshl_b32 s{S_T+14}, s{S_N}, 13
    s_lshl_b32 s{S_T+1}, s{S_M}, 9
    s_add_u32 s{S_T+14}, s{S_T+14}, s{S_T+1}
    s_add_u32 s{S_T+14}, s{S_T+14}, {WS_KVF}""")
    bars(k, 2)
    if OPT.kvslp: k.e(f"s_sleep {OPT.kvslp}")
    def kvg(k=k):
        for i in range(8): k.e(f"buffer_load_dwordx4 v[{64+4*i}:{67+4*i}], v2, {W}, s{S_T+12+(i>>2)} offen offset:{(i&3)*1024} sc1")
    validated(k, kvg, range(64, 96), 3, pre=False)
    stamp(k, 3)
    for i in range(8): acc_bf16(k, 128, 64+4*i, 4, i == 0, 48)
    xswap_sum(k, 128, 160, 8, 32)
    for i in range(4): k.e(f"v_cvt_pk_bf16_f32 v{52+i}, v{128+2*i}, v{129+2*i}")
    k.e(f"s_mov_b32 exec_hi, 0\nbuffer_store_dwordx4 v[52:55], v2, {W}, s{S_T+14} offen sc1\ns_mov_b32 exec_hi, -1")
    stamp(k, 4)
    if OPT.kfslp: k.e(f"s_sleep {OPT.kfslp}")
    k.e("s_branch L_a_kvd\nL_a_z:")
    k.e(f"""s_lshl_b32 s{S_T+12}, s{S_N}, 4
    s_add_u32 s{S_T+12}, s{S_T+12}, s{S_M}
    s_lshl_b32 s{S_T+14}, s{S_T+12}, 4
    s_add_u32 s{S_T+14}, s{S_T+14}, {WS_ZF}
    s_lshl_b32 s{S_T+12}, s{S_T+12}, 8
    s_add_u32 s{S_T+12}, s{S_T+12}, {WS_ZP}
    v_and_b32 v13, 15, v1
    v_lshlrev_b32 v13, 4, v13""")
    bars(k, 2)
    if OPT.kvslp: k.e(f"s_sleep {OPT.kvslp}")
    def zg(): k.e(f"buffer_load_dwordx4 v[64:67], v13, {W}, s{S_T+12} offen sc1")
    validated(k, zg, range(64, 68), 3, pre=False)
    stamp(k, 3)
    acc_bf16(k, 128, 64, 4, True, 48)
    for sh in (8, 4, 2, 1): ror_sum(k, 128, 8, sh)
    for i in range(4): k.e(f"v_cvt_pk_bf16_f32 v{52+i}, v{128+2*i}, v{129+2*i}")
    k.e(f"s_mov_b64 exec, 1\nbuffer_store_dwordx4 v[52:55], v13, {W}, s{S_T+14} offen sc1\ns_mov_b64 exec, -1")
    stamp(k, 4)
    if OPT.kfslp: k.e(f"s_sleep {OPT.kfslp+6}")
    k.e("L_a_kvd:")
    k.e(f"""s_lshl_b32 s{S_T}, s{S_N}, 1
    s_add_u32 s{S_T}, s{S_T}, s{a}
    s_lshl_b32 s{S_T+12}, s{S_T}, 12
    s_add_u32 s{S_T+12}, s{S_T+12}, {WS_KVF}
    s_lshl_b32 s{S_T+13}, s{S_T}, 7
    s_add_u32 s{S_T+13}, s{S_T+13}, {WS_ZF}
    v_and_b32 v13, 7, v1
    v_lshlrev_b32 v13, 4, v13
    s_lshl_b32 s{S_T}, s{a}, 12
    v_add_u32 v4, s{S_T}, v2
    s_lshl_b32 s{S_T}, s{a}, 7
    v_add_u32 v5, s{S_T}, v13""")
    def kfg():
        for i in range(4): k.e(f"buffer_load_dwordx4 v[{64+4*i}:{67+4*i}], v2, {W}, s{S_T+12} offen offset:{i*1024} sc1")
        k.e(f"buffer_load_dwordx4 v[80:83], v13, {W}, s{S_T+13} offen sc1")
    validated(k, kfg, range(64, 84), 3, pre=False)
    for i in range(4): k.e(f"ds_write_b128 v4, v[{64+4*i}:{67+4*i}] offset:{L_KV+i*1024}")
    k.e(f"ds_write_b128 v5, v[80:83] offset:{L_Z}\ns_waitcnt lgkmcnt(0)\ns_barrier")
    tile_map(k, 4, 8, 16)
    cnt_addr(k, 10, F_O, S_M)
    k.e("s_barrier")
    set_flag(k, 9)
    win_reduce(k)
    poll(k, 10, 1, val=16)
    k.e("s_barrier")
    k.e(f"""s_cmp_eq_u32 s{a}, 0
    s_cbranch_scc1 L_a_nocw
    s_cmp_ge_u32 s2, 224
    s_cbranch_scc1 L_a_nocw
    v_lshlrev_b32 v4, 3, v1
    v_add_u32 v3, {L_CW}, v4""")
    for i in range(8): k.e(f"ds_read_b64 v[{192+2*i}:{193+2*i}], v3 offset:{i*512}")
    k.e(f"""s_mul_i32 s{S_T}, s{S_CW+1}, 14336
    s_lshl_b32 s{S_T+1}, s{S_CW}, 9
    s_add_u32 s{S_T}, s{S_T}, s{S_T+1}
    s_add_u32 s{S_T}, s{S_T}, {WS_CSP}
    s_waitcnt lgkmcnt(0)""")
    for i in range(1, 8): k.e(f"v_pk_add_f32 v[192:193], v[192:193], v[{192+2*i}:{193+2*i}]")
    k.e(f"buffer_store_dwordx2 v[192:193], v4, {W}, s{S_T} offen sc1\nL_a_nocw:")
    cnt_addr(k, 9, F_H, S_M)
    tile_map(k, 4, 7, 14)
    k.e(f"""v_and_b32 v14, 31, v1
    v_lshlrev_b32 v14, 4, v14
    v_lshrrev_b32 v15, 5, v1
    v_mul_u32_u24 v13, {1792*4}, v15
    v_add_u32 v13, v13, v14
    s_lshl_b32 s{S_T}, s{a}, 9
    v_add_u32 v14, s{S_T}, v14
    s_lshl_b32 s{S_T+13}, s{S_N}, 9
    s_add_u32 s{S_T+13}, s{S_T+13}, {WS_CSP}
    s_lshl_b32 s{S_T+12}, s{S_M}, 10
    s_add_u32 s{S_T+12}, s{S_T+12}, {WS_HST}""")
    bars(k, 18)
    set_flag(k, 9)
    k.e("s_cmp_ge_u32 s2, 224\ns_cbranch_scc1 L_a_helper")
    poll(k, 9, 1, val=16)
    k.e(f"s_cmp_eq_u32 s{a}, 0\ns_cbranch_scc1 L_a_nocs")
    def cg():
        k.e(f"s_mov_b32 s{S_T}, s{S_T+13}")
        for i in range(8): k.e(f"buffer_load_dwordx4 v[{64+4*i}:{67+4*i}], v13, {W}, s{S_T} offen sc1\ns_add_u32 s{S_T}, s{S_T}, 14336")
    validated(k, cg, range(64, 96), 3, pre=False)
    for i in range(1, 8): k.e(f"v_pk_add_f32 v[64:65], v[64:65], v[{64+4*i}:{65+4*i}]\nv_pk_add_f32 v[66:67], v[66:67], v[{66+4*i}:{67+4*i}]")
    k.e(f"v_add_u32 v3, {L_CS}, v2\nds_write_b128 v3, v[64:67]\nL_a_nocs:")
    k.e("s_barrier")
    k.e(f"v_lshl_add_u32 v13, v15, 17, v14")
    def hg(k=k):
        k.e(f"s_mov_b32 s{S_T}, s{S_T+12}")
        for i in range(8): k.e(f"buffer_load_dwordx4 v[{64+4*i}:{67+4*i}], v13, {W}, s{S_T} offen sc1\ns_add_u32 s{S_T}, s{S_T}, 16384")
    bars(k, 3)
    spread(k, hg, 4)
    k.e("s_barrier\ns_waitcnt vmcnt(0)")
    validated(k, hg, range(65, 96, 2), 3)
    def hfin(k):
        for r in range(2):
            d = 4+4*r if r == 0 else 16
            combine_half(k, 64+2*r, 4, 8, 16, 64, d, 20)
            k.e(f"""v_mul_f32 v{d+1}, {f2u(1.0/1024)}, v{d+1}
            v_add_f32 v{d+1}, {f2u(1e-5)}, v{d+1}
            v_rsq_f32 v20, v{d+1}
            v_sqrt_f32 v{d+3}, v{d+1}
            v_sub_f32 v{d}, 0, v{d}
            v_mul_f32 v{d+1}, {f2u(C0)}, v20
            v_mul_f32 v{d+2}, v20, v20
            v_mul_f32 v{d+2}, v{d+2}, v20
            v_mul_f32 v{d+2}, {f2u(C1)}, v{d+2}""")
        k.e(f"""v_lshlrev_b32 v3, 1, v14
        s_lshl_b32 s{S_T+14}, s2, 11
        s_add_u32 s{S_T+14}, s{S_T+14}, {WS_HC}
        s_mov_b32 exec_hi, 0
        buffer_store_dwordx4 v[4:7], v3, {W}, s{S_T+14} offen sc1
        buffer_store_dwordx4 v[16:19], v3, {W}, s{S_T+14} offen offset:16 sc1
        s_mov_b32 exec_hi, -1
        s_lshl_b32 s{S_T}, s{a}, 10
        s_add_u32 s{S_T+14}, s{S_T+14}, s{S_T}
        s_add_u32 m0, s{S_T}, {L_HS}
        s_mul_i32 s{S_T+12}, s{S_M}, {14*1024}
        s_add_u32 s{S_T+12}, s{S_T+12}, {WS_ZST}
        s_lshl_b32 s{S_T+13}, s{S_N}, 10
        s_add_u32 s{S_T+13}, s{S_T+13}, s{S_T+12}
        s_lshl_b32 s{S_T}, s{a}, 9
        v_lshlrev_b32 v22, 3, v1
        v_add_u32 v22, s{S_T}, v22
        v_add_u32 v12, {L_ZP}, v22
        v_mul_u32_u24 v13, {7*1024}, v15
        v_add_u32 v13, v13, v14""")
        cnt_addr(k, 10, F_Z, S_N); cnt_addr(k, 9, F_U, S_M)
    spread(k, hfin, 4)
    k.e(f"s_barrier\ns_barrier\ns_waitcnt vmcnt(0) lgkmcnt(0)\nbuffer_load_dwordx4 v2, {W}, s{S_T+14} offen sc1 lds")
    k.e("s_barrier\ns_barrier\ns_waitcnt vmcnt(0)")
    bars(k, 2)
    k.e(f"""ds_read_b64 v[64:65], v12
    ds_read_b64 v[66:67], v12 offset:1024
    s_waitcnt lgkmcnt(0)
    v_add_f32 v4, v64, v66
    v_mul_f32 v4, 0.5, v4
    v_sub_f32 v6, v64, v66
    v_mul_f32 v6, v6, v6
    v_add_f32 v5, v65, v67
    v_fmac_f32 v5, {f2u(32.0)}, v6
    buffer_store_dwordx2 v[4:5], v22, {W}, s{S_T+13} offen sc1""")
    stamp(k, 6)
    g = OPT.gat
    bars(k, g-16)
    def zsg():
        k.e(f"s_add_u32 s{S_T}, s{S_T+12}, 4096")
        for i in range(7):
            k.e(f"buffer_load_dwordx4 v[{64+4*i}:{67+4*i}], v13, {W}, s{S_T+12 if i < 4 else S_T} offen offset:{(i&3)*1024} sc1")
    zsg()
    k.e("s_barrier\ns_waitcnt vmcnt(0)")
    validated(k, zsg, range(65, 92, 2), 3)
    stamp(k, 7)
    def zfin(k):
        for r in range(2):
            combine_half(k, 64+2*r, 4, 7, 14, 128, 4+2*r, 20); finish_rstd(k, 4+2*r, 1792)
        k.e(f"v_add_u32 v3, {L_ZS}, v14")
    spread(k, zfin, OPT.zsp-1)
    k.e("ds_write_b128 v3, v[4:7]\ns_waitcnt lgkmcnt(0)\ns_barrier")
    nf = (4//OPT.nfill if OPT.nfill else 1)
    zb = g+1+OPT.zsp
    fb = zb+nf+1+OPT.vmd
    cb = 28 if OPT.own2 else 26
    assert fb <= cb
    bars(k, fb-zb)
    set_flag(k, 10)
    bars(k, cb-fb)
    sample(k, 10)
    k.e("s_barrier")
    poll(k, 10, 1, val=16, pre=True)
    stamp(k, 8)
    if OPT.dsx:
        ops = {1: "ds_write_b128 v60, v[4:7]", 2: "ds_write_b64 v60, v[4:5]", 3: "ds_write_b32 v60, v4", 4: "ds_read_b128 v[64:67], v60",
               5: "ds_write_b128 v60, v[4:7]\nds_write_b128 v60, v[4:7] offset:1024\nds_write_b128 v60, v[4:7] offset:2048\nds_write_b128 v60, v[4:7] offset:3072",
               6: "ds_write_b128 v61, v[4:7]", 7: "s_mov_b64 exec, 1\nds_write_b32 v60, v4\ns_mov_b64 exec, -1"}[OPT.dsx]
        k.e(f"v_add_u32 v60, {L_CW}, v2\nv_lshlrev_b32 v61, 1, v14\nv_add_u32 v61, {L_CW}, v61")
        bars(k, 63-cb-25)
        for i in range(6):
            k.e(ops); bars(k, 4)
        k.e("s_waitcnt lgkmcnt(0)\ns_barrier")
    else:
        bars(k, 63-cb)
    set_flag(k, 9)
    k.e("L_a_p5:")
    poll(k, 9, 1, val=14)
    k.e("s_barrier")
    k.e("s_branch L_fin")
    k.e("L_a_helper:")
    k.e("s_barrier")
    helper_pf(k, 'a')
    cnt_addr(k, 9, F_U, S_M)
    k.e("s_branch L_a_p5")

def gelu_tile(k, a, cs, s):
    G = 4; t = 48
    for g in range(0, 8, G):
        R_ = range(g, g+G)
        for i in R_:
            y = a+2*i; k.e(f"v_pk_fma_f32 v[{y}:{y+1}], v[{cs+2*i}:{cs+2*i+1}], v[{s}:{s+1}], v[{y}:{y+1}] op_sel_hi:[1,0,1]")
        for i in R_:
            p = t+2*(i-g); y = a+2*i; k.e(f"v_pk_mul_f32 v[{p}:{p+1}], v[{y}:{y+1}], v[{y}:{y+1}]")
        for i in R_:
            p = t+2*(i-g); k.e(f"v_pk_fma_f32 v[{p}:{p+1}], v[{p}:{p+1}], v[{s+2}:{s+3}], v[{s}:{s+1}] op_sel:[0,0,1] op_sel_hi:[1,0,1]")
        for i in R_:
            p = t+2*(i-g); y = a+2*i; k.e(f"v_pk_mul_f32 v[{p}:{p+1}], v[{p}:{p+1}], v[{y}:{y+1}]")
        for j in range(2*G): k.e(f"v_exp_f32 v{t+j}, v{t+j}")
        for i in range(G): k.e(f"v_pk_fma_f32 v[{t+2*i}:{t+2*i+1}], v[{t+2*i}:{t+2*i+1}], v[{s+2}:{s+3}], v[{s+2}:{s+3}] op_sel:[0,1,1] op_sel_hi:[1,1,1]")
        for j in range(2*G): k.e(f"v_rcp_f32 v{t+j}, v{t+j}")
        for i in R_:
            p = t+2*(i-g); y = a+2*i; k.e(f"v_pk_mul_f32 v[{y}:{y+1}], v[{y}:{y+1}], v[{p}:{p+1}]")

def gelu_fill(a, cs, s, i0, n, t=48):
    E = range(n); L = []
    L += [f"v_fmac_f32 v{a+i0+j}, v{cs+i0+j}, v{s}" for j in E]
    L += [f"v_mul_f32 v{t+j}, v{a+i0+j}, v{a+i0+j}" for j in E]
    L += [f"v_fma_f32 v{t+j}, v{t+j}, v{s+2}, v{s+1}" for j in E]
    L += [f"v_mul_f32 v{t+j}, v{t+j}, v{a+i0+j}" for j in E]
    L += [f"v_exp_f32 v{t+j}, v{t+j}" for j in E]
    L += [f"v_fma_f32 v{t+j}, v{t+j}, v{s+3}, v{s+3}" for j in E]
    L += [f"v_rcp_f32 v{t+j}, v{t+j}" for j in E]
    L += [f"v_mul_f32 v{a+i0+j}, v{t+j}, v{a+i0+j}" for j in E]
    return L

def capture(k, fn):
    t = Kern(k.name); t.uid = k.uid; fn(t); k.uid = t.uid
    return [x.strip() for x in t.L]

def consumer(k):
    c1, c2, c3, c4, c5 = cfgs()
    R = Regs(); R.aS = 8; R.aF = 12; R.fr = 16; R.acc = 64
    k.e(f"s_mov_b32 s{S_K}, {f2u(LOG2E)}\ns_mov_b32 s{S_K+1}, {f2u(LOG2E)}")
    c = c1; C = Cons(k, c, R)
    consumer_addr(k, c, R)
    C.zero()
    k.e("s_waitcnt lgkmcnt(0)")
    mk_srd(k, SRD_B, P_X, 4*MB); mk_srd(k, SRD_W, P_WS, WS_END)
    stamp(k, 0)
    aWP=240; aXS=241; aCQ=242; aCV=243; aVS=244; aPW=245; aVX=247; aVW=248; aPR=249; L16=15
    tr_lane_base(k, aWP, 3, 9, rowshift=6, swz=False)
    k.e(f"""s_lshl_b32 s{S_T}, s{S_WN}, 11
    s_add_u32 s{S_T}, s{S_T}, {L_WPHI}
    v_add_u32 v{aWP}, s{S_T}, v{aWP}
    v_lshrrev_b32 v3, 5, v1
    v_and_b32 v4, 31, v1
    s_lshl_b32 s{S_T}, s{S_WM}, 8
    s_add_u32 s{S_T}, s{S_T}, {L_XS}
    v_lshl_add_u32 v{aXS}, v4, 2, s{S_T}
    v_lshl_add_u32 v{aVS}, v3, 4, s{S_T}
    s_mul_i32 s{S_T+1}, s{S_WN}, 384
    s_add_u32 s{S_T+1}, s{S_T+1}, {L_CQ}
    v_lshl_add_u32 v{aCQ}, v3, 5, s{S_T+1}
    v_and_b32 v7, 0x13, v4
    v_bfe_u32 v5, v4, 2, 1
    v_lshl_or_b32 v7, v5, 3, v7
    v_bfe_u32 v5, v4, 3, 1
    v_lshl_or_b32 v7, v5, 2, v7
    v_lshl_add_u32 v{aCV}, v7, 2, s{S_T+1}
    v_lshlrev_b32 v5, 2, v3
    v_xor_b32 v5, v4, v5
    v_lshlrev_b32 v5, 4, v5
    v_lshl_add_u32 v5, v3, 9, v5
    s_lshl_b32 s{S_T}, s{S_WN}, 14
    s_add_u32 s{S_T}, s{S_T}, {L_PHK}
    s_lshl_b32 s{S_T+1}, s{S_WM}, 13
    s_add_u32 s{S_T+2}, s{S_T}, s{S_T+1}
    v_add_u32 v{aPW}, s{S_T+2}, v5
    v_xor_b32 v{aPW+1}, 128, v{aPW}
    v_lshlrev_b32 v{L16}, 4, v1
    s_lshl_b32 s{S_T+3}, s{S_WN}, 13
    s_add_u32 s{S_T+3}, s{S_T+3}, {L_VX}
    v_add_u32 v{aVX}, s{S_T+3}, v{L16}
    s_lshl_b32 s{S_T+4}, s{S_WM}, 12
    v_add_u32 v{aVW}, s{S_T+4}, v{aVX}
    v_lshlrev_b32 v14, 13, v3
    v_lshl_add_u32 v14, v4, 4, v14
    v_lshlrev_b32 v251, 8, v3
    v_lshlrev_b32 v252, 4, v3""")
    blk_tr_base(k, aPR, 2, 3, 2)
    k.e(f"""s_lshl_b32 s{S_T+1}, s{S_WM}, 11
    s_add_u32 s{S_T+1}, s{S_T+1}, s{S_T}
    v_add_u32 v{aPR}, s{S_T+1}, v{aPR}
    v_xor_b32 v{aPR+1}, 128, v{aPR}""")
    ONES=60
    for i in range(4): k.e(f"v_mov_b32 v{ONES+i}, 0x3f803f80")
    k.e(f"""s_lshl_b32 s{S_T}, s{S_WN}, 1
    s_add_u32 s{S_T}, s{S_T}, s{S_WM}
    s_lshl_b32 s{S_T+1}, s{S_N}, 2
    s_add_u32 s{S_T}, s{S_T}, s{S_T+1}
    s_lshl_b32 s{S_T+2}, s{S_T}, 15
    s_lshl_b32 s{S_T+1}, s{S_M}, 9
    s_add_u32 s{S_T+2}, s{S_T+2}, s{S_T+1}
    s_add_u32 s{S_T+2}, s{S_T+2}, {WS_KVP}
    s_add_u32 s{S_T+3}, s{S_T+2}, 16384
    s_lshl_b32 s{S_T+4}, s{S_T}, 10
    s_lshl_b32 s{S_T+1}, s{S_M}, 4
    s_add_u32 s{S_T+4}, s{S_T+4}, s{S_T+1}
    s_add_u32 s{S_T+4}, s{S_T+4}, {WS_ZP}
    s_lshl_b32 s{S_T}, s{S_N}, 1
    s_add_u32 s{S_T}, s{S_T}, s{S_WN}
    s_lshl_b32 s{S_T+14}, s{S_T}, 12
    s_add_u32 s{S_T+14}, s{S_T+14}, {WS_KVF}
    s_lshl_b32 s{S_T+15}, s{S_T}, 7
    s_add_u32 s{S_T+15}, s{S_T+15}, {WS_ZF}
    s_lshl_b32 s{S_T+12}, s{S_M}, 2
    s_lshl_b32 s{S_T+1}, s{S_WM}, 1
    s_add_u32 s{S_T+12}, s{S_T+12}, s{S_T+1}
    s_lshl_b32 s{S_T+12}, s{S_T+12}, 16
    s_lshl_b32 s{S_T+1}, s{S_T}, 11
    s_add_u32 s{S_T+12}, s{S_T+12}, s{S_T+1}
    s_add_u32 s{S_T+12}, s{S_T+12}, {WS_O}
    s_add_u32 s{S_T+13}, s{S_T+12}, 65536""")
    k.e("s_barrier")
    stamp(k, 1)
    C.first_reads(); C.loop(16)
    stamp(k, 2)
    K0,K1,V0,V1 = 64,80,96,112
    WP=224; ST=232; KB=24; VB=40; PK=160; NM=192; RSD=208; CK=160
    k.e(f"""ds_read2st64_b32 v[{ST}:{ST+1}], v{aXS} offset0:0 offset1:2
    ds_read2_b32 v[{ST+2}:{ST+3}], v{aXS} offset0:32 offset1:160""")
    for q in range(4): k.e(f"ds_read_b128 v[{CK+4*q}:{CK+3+4*q}], v{aCQ} offset:{128 + (q>>1)*64 + (q&1)*16}")
    k.e("s_waitcnt lgkmcnt(6)")
    for cc in range(2):
        for rd in range(2):
            k.e(f"ds_read_b64_tr_b16 v[{WP+4*cc+2*rd}:{WP+4*cc+2*rd+1}], v{aWP} offset:{cc*1024+rd*256}")
    k.e(f"ds_read_b32 v236, v{aCV} offset:256")
    k.e("s_waitcnt lgkmcnt(5)")
    def vstat(st):
        for a_ in range(4):
            k.e(f"ds_read_b128 v[{NM+4*a_}:{NM+3+4*a_}], v{aVS} offset:{128*st+a_*32}\nds_read_b128 v[{RSD+4*a_}:{RSD+3+4*a_}], v{aVS} offset:{512+128*st+a_*32}")
    vstat(0)
    def corrT(a, cs, s, t):
        for g in range(0, 8, 4):
            for i in range(g, g+4):
                p = t+2*(i-g); k.e(f"v_pk_mul_f32 v[{p}:{p+1}], v[{cs+2*i}:{cs+2*i+1}], v[{s}:{s+1}] op_sel_hi:[1,0]")
            for i in range(g, g+4):
                p = t+2*(i-g); y = a+2*i; k.e(f"v_pk_fma_f32 v[{y}:{y+1}], v[{y}:{y+1}], v[{s}:{s+1}], v[{p}:{p+1}] op_sel:[0,1,0] op_sel_hi:[1,1,1]")
    def corrN(a):
        for i in range(8): k.e(f"v_pk_mul_f32 v[{NM+2*i}:{NM+1+2*i}], v[{NM+2*i}:{NM+1+2*i}], v[236:237] op_sel_hi:[1,0]")
        for i in range(8): k.e(f"v_pk_fma_f32 v[{a+2*i}:{a+2*i+1}], v[{a+2*i}:{a+2*i+1}], v[{RSD+2*i}:{RSD+1+2*i}], v[{NM+2*i}:{NM+1+2*i}]")
    def pmf(P, B):
        for st in range(2):
            k.e(f"{MF} v[{P+16*st}:{P+16*st+15}], v[{WP}:{WP+3}], v[{B+8*st}:{B+8*st+3}], 0")
            k.e(f"{MF} v[{P+16*st}:{P+16*st+15}], v[{WP+4}:{WP+7}], v[{B+8*st+4}:{B+8*st+7}], v[{P+16*st}:{P+16*st+15}]")
    corrT(K0, CK, ST, 16); corrT(K1, CK, ST+2, 16)
    cvt16(k, KB, K0); cvt16(k, KB+8, K1)
    k.e("s_waitcnt lgkmcnt(0)")
    pmf(PK, KB)
    corrN(V0)
    vstat(1)
    cvt16(k, VB, V0)
    EP=64; EN=80; T=56; OP=16; ON=24
    def phk_out(st):
        k.e(f"""ds_write_b128 v{aPW}, v[{OP}:{OP+3}] offset:{st*4096}
        ds_write_b128 v{aPW+1}, v[{OP+4}:{OP+7}] offset:{st*4096+1024}
        ds_write_b128 v{aPW}, v[{ON}:{ON+3}] offset:{st*4096+2048}
        ds_write_b128 v{aPW+1}, v[{ON+4}:{ON+7}] offset:{st*4096+3072}""")
    softmax_pm(k, PK, EP, EN, T, OP, ON)
    k.e("s_waitcnt lgkmcnt(0)")
    corrN(V1)
    cvt16(k, VB+8, V1)
    phk_out(0)
    for i in range(4): k.e(f"ds_write_b128 v{aVW}, v[{VB+4*i}:{VB+4*i+3}] offset:{i*1024}")
    CK = 192
    for q in range(4): k.e(f"ds_read_b128 v[{CK+4*q}:{CK+3+4*q}], v{aCQ} offset:{(q>>1)*64 + (q&1)*16}")
    OP=96; ON=104
    softmax_pm(k, PK+16, EP, EN, T, OP, ON)
    k.e("s_waitcnt lgkmcnt(0)")
    phk_out(1)
    k.e("s_waitcnt lgkmcnt(0)\ns_barrier")
    stamp(k, 3)
    AF=64; VF_=96; KV=160; ZZ=176
    def rdkc(kc):
        off = (kc>>1)*4096 + (kc&1)*256
        k.e(f"""ds_read_b64_tr_b16 v[{AF+4*kc}:{AF+4*kc+1}], v{aPR} offset:{off}
        ds_read_b64_tr_b16 v[{AF+4*kc+2}:{AF+4*kc+3}], v{aPR+1} offset:{off}
        ds_read_b128 v[{VF_+4*kc}:{VF_+4*kc+3}], v{aVX} offset:{kc*1024}""")
    for kc in range(5): rdkc(kc)
    for kc in range(8):
        k.e(f"s_waitcnt lgkmcnt({3*(min(kc+5, 8)-kc-1)})")
        k.e(f"{MF} v[{KV}:{KV+15}], v[{AF+4*kc}:{AF+4*kc+3}], v[{VF_+4*kc}:{VF_+4*kc+3}], {'0' if kc==0 else f'v[{KV}:{KV+15}]'}")
        if kc+5 < 8: rdkc(kc+5)
    for kc in range(8):
        k.e(f"{MF} v[{ZZ}:{ZZ+15}], v[{AF+4*kc}:{AF+4*kc+3}], v[{ONES}:{ONES+3}], {'0' if kc==0 else f'v[{ZZ}:{ZZ+15}]'}")
        if kc == 2:
            k.e("s_nop 7\ns_nop 1")
            for i in range(4): k.e(f"v_cvt_pk_bf16_f32 v{212+i}, v{KV+2*i}, v{KV+2*i+1}")
            k.e(f"buffer_store_dwordx4 v[212:215], v14, {W}, s{S_T+2} offen sc1")
        if kc == 3:
            for i in range(4, 8): k.e(f"v_cvt_pk_bf16_f32 v{212+i}, v{KV+2*i}, v{KV+2*i+1}")
            k.e(f"buffer_store_dwordx4 v[216:219], v14, {W}, s{S_T+3} offen sc1")
    k.e("s_barrier")
    k.e("s_nop 7\ns_nop 2")
    cvt16(k, 16, ZZ)
    k.e(f"""s_mov_b32 exec_lo, 1
    s_mov_b32 exec_hi, 1
    buffer_store_dwordx4 v[16:19], v251, {W}, s{S_T+4} offen sc1
    buffer_store_dwordx4 v[20:23], v251, {W}, s{S_T+4} offen offset:512 sc1
    s_mov_b64 exec, -1""")
    stamp(k, 4)
    Q0, Q1 = 128, 144; QB=32; PQ=160
    def p25_addr():
        tile_map(k, 4, 8, 16)
        k.e(f"""s_lshl_b32 s{S_T}, s{S_M}, 2
        s_add_u32 s{S_T}, s{S_T}, s{S_WAVE}
        s_lshl_b32 s{S_T+1}, s{S_T}, 16
        s_lshl_b32 s{S_T+2}, s{S_N}, 7
        s_add_u32 s{S_T+2}, s{S_T+2}, s{S_T+1}
        v_and_b32 v4, 31, v1
        v_lshlrev_b32 v14, 11, v4
        v_lshrrev_b32 v5, 5, v1
        v_lshl_add_u32 v14, v5, 4, v14
        v_add_u32 v14, s{S_T+2}, v14""")
    corrT(Q0, CK, ST, 48); corrT(Q1, CK, ST+2, 48)
    cvt16(k, QB, Q0); cvt16(k, QB+8, Q1)
    k.e("s_nop 0")
    pmf(PQ, QB)
    p25_addr()
    RS = 224
    for i in range(4): k.e(f"buffer_load_dwordx4 v[{RS+4*i}:{RS+4*i+3}], v14, {srd(SRD_B)}, 0 offen offset:{32*i}")
    k.e(f"""s_lshl_b32 s{S_T+2}, s{S_N}, 12
    s_add_u32 s{S_T+2}, s{S_T+2}, s{S_T+1}
    s_add_u32 s{S_T+2}, s{S_T+2}, {WS_H}
    v_add_u32 v10, s{S_T+2}, v{L16}
    s_lshl_b32 s{S_T}, s{S_T}, 8
    s_lshl_b32 s{S_T+1}, s{S_N}, 14
    s_add_u32 s{S_T}, s{S_T}, s{S_T+1}
    s_add_u32 s{S_T}, s{S_T}, {WS_HST}
    v_lshlrev_b32 v9, 3, v4
    v_add_u32 v9, s{S_T}, v9""")
    PH=128; EP=64; EN=80
    KF=16; ZF=32; NUM=96; DEN=192
    k.e(f"""s_lshl_b32 s{S_T}, s{S_WN}, 12
    v_add_u32 v2, s{S_T}, v{L16}
    s_lshl_b32 s{S_T}, s{S_WN}, 7
    v_add_u32 v3, s{S_T}, v252""")
    softmax_pm(k, PQ, EP, EN, T, PH, PH+8)
    def ndm(st):
        for A_, D_ in ((ZF, DEN), (KF, NUM)):
            for i in range(4):
                b = PH+16*st+4*i
                k.e(f"{MF} v[{D_+16*st}:{D_+16*st+15}], v[{A_+4*i}:{A_+4*i+3}], v[{b}:{b+3}], {'0' if i==0 else f'v[{D_+16*st}:{D_+16*st+15}]'}")
    def oout(st):
        d = DEN+16*st; n = NUM+16*st; o = 160+8*st
        k.e(f"v_add_f32 v{d}, {f2u(1e-6)}, v{d}\nv_rcp_f32 v{d}, v{d}\ns_nop 0")
        for hh in range(2):
            for i in range(4*hh, 4*hh+4): k.e(f"v_pk_mul_f32 v[{n+2*i}:{n+2*i+1}], v[{n+2*i}:{n+2*i+1}], v[{d}:{d+1}] op_sel_hi:[1,0]")
            for i in range(4*hh, 4*hh+4): k.e(f"v_cvt_pk_bf16_f32 v{o+i}, v{n+2*i}, v{n+2*i+1}")
            k.e(f"buffer_store_dwordx4 v[{o+4*hh}:{o+4*hh+3}], v{L16}, {W}, s{S_T+12+st} offen offset:{1024*hh} sc1")
    softmax_pm(k, PQ+16, EP, EN, T, PH+16, PH+24)
    k.e("s_waitcnt vmcnt(0)")
    for i in range(16): unpack(k, 64+2*i, 65+2*i, RS+i)
    stamp(k, 21)
    k.e("s_barrier")
    stamp(k, 5)
    for i in range(4): k.e(f"ds_read_b128 v[{ZF+4*i}:{ZF+4*i+3}], v3 offset:{L_Z+i*32}")
    for i in range(4): k.e(f"ds_read_b128 v[{KF+4*i}:{KF+4*i+3}], v2 offset:{L_KV+i*1024}")
    k.e("s_waitcnt lgkmcnt(0)")
    ndm(0); ndm(1)
    k.e("s_nop 3")
    oout(0); oout(1)
    c = c2; C = Cons(k, c, R)
    consumer_addr(k, c, R)
    k.e("s_waitcnt vmcnt(0)\ns_barrier")
    stamp(k, 6)
    k.e("s_barrier\ns_barrier")
    stamp(k, 7)
    C.first_reads(); C.loop(16)
    k.e("s_waitcnt lgkmcnt(0)")
    stamp(k, 8)
    k.e("s_nop 6")
    A = 64
    for i in range(16):
        k.e(f"v_cvt_pk_bf16_f32 v{RS+i}, v{A+2*i}, v{A+2*i+1}")
        if i & 3 == 3:
            j = i >> 2
            k.e(f"buffer_store_dwordx4 v[{RS+4*j}:{RS+3+4*j}], v10, {W}, 0 offen offset:{1024*j} sc1")
    for i in range(16): unpack(k, A+2*i, A+2*i+1, RS+i)
    k.e(f"v_pk_add_f32 v[20:21], v[{A}:{A+1}], v[{A+2}:{A+3}]\nv_pk_add_f32 v[22:23], v[{A+4}:{A+5}], v[{A+6}:{A+7}]")
    for i in range(4, 16):
        t = 20 + 2*(i & 1); k.e(f"v_pk_add_f32 v[{t}:{t+1}], v[{t}:{t+1}], v[{A+2*i}:{A+2*i+1}]")
    k.e("v_pk_add_f32 v[20:21], v[20:21], v[22:23]\nv_add_f32 v20, v20, v21")
    xswap_sum1(k, 20, 21)
    k.e(f"v_mul_f32 v20, {f2u(1/64.)}, v20")
    for i in range(16):
        k.e(f"v_pk_add_f32 v[{A+2*i}:{A+2*i+1}], v[{A+2*i}:{A+2*i+1}], v[20:21] op_sel_hi:[1,0] neg_lo:[0,1] neg_hi:[0,1]")
    k.e(f"v_pk_mul_f32 v[22:23], v[{A}:{A+1}], v[{A}:{A+1}]\nv_pk_mul_f32 v[24:25], v[{A+2}:{A+3}], v[{A+2}:{A+3}]")
    for i in range(2, 16):
        t = 22 + 2*(i & 1); k.e(f"v_pk_fma_f32 v[{t}:{t+1}], v[{A+2*i}:{A+2*i+1}], v[{A+2*i}:{A+2*i+1}], v[{t}:{t+1}]")
    k.e("v_pk_add_f32 v[22:23], v[22:23], v[24:25]\nv_add_f32 v22, v22, v23")
    xswap_sum1(k, 22, 23)
    k.e(f"""v_mov_b32 v21, v22
    s_mov_b32 exec_hi, 0
    buffer_store_dwordx2 v[20:21], v9, {W}, 0 offen sc1
    s_mov_b32 exec_hi, -1
    s_waitcnt vmcnt(1)
    s_barrier""")
    stamp(k, 9)
    k.e("s_cmp_ge_u32 s2, 224\ns_cbranch_scc1 L_c_helper")
    c = c3
    tile_map(k, 4, 7, 14)
    Ra = Regs(); Ra.aS = 8; Ra.aF = 12; Ra.fr = 16; Ra.acc = 128
    Ca = Cons(k, c, Ra); Cb = Cons(k, c, R)
    consumer_addr(k, c, R); Ca.zero(); Cb.zero()
    mk_srd(k, SRD_A, P_BSP, 4096)
    k.e(f"""v_and_b32 v14, 31, v1
    v_lshlrev_b32 v2, 1, v14
    s_lshl_b32 s{S_T+2}, s{S_M}, 8
    s_lshl_b32 s{S_T+3}, s{S_WM}, 7
    s_add_u32 s{S_T+2}, s{S_T+2}, s{S_T+3}
    buffer_load_ushort v240, v2, {srd(SRD_A)}, s{S_T+2} offen
    buffer_load_ushort v242, v2, {srd(SRD_A)}, s{S_T+2} offen offset:64
    s_lshl_b32 s{S_T}, s{S_WM}, 6
    v_add_u32 v14, s{S_T}, v14
    v_lshlrev_b32 v62, 3, v14
    v_add_u32 v62, {L_ZS}, v62
    v_lshlrev_b32 v14, 4, v14
    v_add_u32 v14, {L_HS}, v14
    v_lshrrev_b32 v7, 5, v1
    v_lshlrev_b32 v9, 5, v7
    s_lshl_b32 s{S_T}, s{S_WN}, 8
    s_add_u32 s{S_T}, s{S_T}, {L_CS}
    v_add_u32 v9, s{S_T}, v9
    v_and_b32 v10, 31, v1
    v_lshlrev_b32 v11, 2, v7
    v_xor_b32 v10, v10, v11
    v_lshlrev_b32 v10, 4, v10
    v_lshl_add_u32 v10, v7, 9, v10
    v_xor_b32 v11, 128, v10
    v_lshlrev_b32 v63, 3, v1
    s_lshl_b32 s{S_T}, s{S_WM}, 9
    s_lshl_b32 s{S_T+1}, s{S_WN}, 10
    s_add_u32 s{S_T}, s{S_T}, s{S_T+1}
    s_add_u32 s{S_T}, s{S_T}, {L_ZP}
    v_add_u32 v63, s{S_T}, v63
    s_lshl_b32 s{S_T+12}, s{S_N}, 19
    s_lshl_b32 s{S_T+1}, s{S_M}, 15
    s_add_u32 s{S_T+12}, s{S_T+12}, s{S_T+1}
    s_lshl_b32 s{S_T+1}, s{S_WM}, 14
    s_add_u32 s{S_T+12}, s{S_T+12}, s{S_T+1}
    s_lshl_b32 s{S_T+1}, s{S_WN}, 12
    s_add_u32 s{S_T+12}, s{S_T+12}, s{S_T+1}
    s_add_u32 s{S_T+12}, s{S_T+12}, {WS_Z2N}
    s_add_u32 s{S_T+13}, s{S_T+12}, 8192""")
    k.e("s_barrier\ns_waitcnt vmcnt(2)\ns_barrier")
    stamp(k, 10)
    Ca.first_reads(); Ca.loop(16)
    stamp(k, 11)
    CS = 192; HS = 244
    def load_cs(half):
        for ft in range(2):
            for q in range(4):
                k.e(f"ds_read_b128 v[{CS+16*ft+4*q}:{CS+16*ft+4*q+3}], v9 offset:{half*512 + ft*128 + (q>>1)*64 + (q&1)*16}")
    k.e(f"ds_read_b128 v[{HS}:{HS+3}], v14\nds_read_b128 v[{HS+4}:{HS+7}], v14 offset:512\ns_waitcnt lgkmcnt(2)")
    load_cs(1)
    k.e("s_waitcnt lgkmcnt(4)\ns_nop 1")
    for ft in range(2):
        if ft == 1: k.e("s_waitcnt lgkmcnt(0)")
        for st in range(2): gelu_tile(k, Ca.acc(st, ft), CS+16*ft, HS+4*st)
    for st in range(2):
        a = Ca.acc(st, 0); b = Ca.acc(st, 1); t = 48+4*st
        k.e(f"v_pk_add_f32 v[{t}:{t+1}], v[{a}:{a+1}], v[{a+2}:{a+3}]\nv_pk_add_f32 v[{t+2}:{t+3}], v[{b}:{b+1}], v[{b+2}:{b+3}]")
        for i in range(2, 8):
            k.e(f"v_pk_add_f32 v[{t}:{t+1}], v[{t}:{t+1}], v[{a+2*i}:{a+2*i+1}]\nv_pk_add_f32 v[{t+2}:{t+3}], v[{t+2}:{t+3}], v[{b+2*i}:{b+2*i+1}]")
        k.e(f"v_pk_add_f32 v[{t}:{t+1}], v[{t}:{t+1}], v[{t+2}:{t+3}]\nv_add_f32 v{56+st}, v{t}, v{t+1}")
    xhalf_sum2(k, 56)
    k.e(f"v_mul_f32 v56, {f2u(1/64.)}, v56\nv_mul_f32 v57, {f2u(1/64.)}, v57")
    for st in range(2):
        sel = "op_sel_hi:[1,0]" if st == 0 else "op_sel:[0,1] op_sel_hi:[1,1]"
        for j, a in enumerate((Ca.acc(st, 0), Ca.acc(st, 1))):
            for i in range(8):
                d = 52+2*(i & 1); u = 48+2*(i & 1)
                k.e(f"v_pk_add_f32 v[{d}:{d+1}], v[{a+2*i}:{a+2*i+1}], v[56:57] {sel} neg_lo:[0,1] neg_hi:[0,1]")
                if j == 0 and i < 2: k.e(f"v_pk_mul_f32 v[{u}:{u+1}], v[{d}:{d+1}], v[{d}:{d+1}]")
                else: k.e(f"v_pk_fma_f32 v[{u}:{u+1}], v[{d}:{d+1}], v[{d}:{d+1}], v[{u}:{u+1}]")
        k.e(f"v_pk_add_f32 v[48:49], v[48:49], v[50:51]\nv_add_f32 v{58+st}, v48, v49")
    k.e("v_cmp_gt_u32 vcc, 32, v1")
    xhalf_sum2(k, 58)
    k.e(f"""v_cndmask_b32 v60, v57, v56, vcc
    v_cndmask_b32 v61, v59, v58, vcc
    ds_write_b64 v63, v[60:61]""")
    load_cs(0)
    k.e("s_waitcnt lgkmcnt(0)")
    stamp(k, 12)
    g = OPT.gat
    n1 = g+1+OPT.zsp-16+1
    R4 = Regs(); R4.aS = 50; R4.aF = 54; R4.fr = 16; R4.acc = 128
    C4 = Cons(k, c4, R4)
    def pre4(t):
        consumer_addr(t, c4, R4, static_slot=2)
        t.e(f"""s_lshl_b32 s{S_T}, s{S_M}, 2
        s_lshl_b32 s{S_T+1}, s{S_WM}, 1
        s_add_u32 s{S_T}, s{S_T}, s{S_T+1}
        s_mul_i32 s{S_T}, s{S_T}, 112
        s_lshl_b32 s{S_T+1}, s{S_N}, 3
        s_add_u32 s{S_T}, s{S_T}, s{S_T+1}
        s_lshl_b32 s{S_T+1}, s{S_WN}, 2
        s_add_u32 s{S_T}, s{S_T}, s{S_T+1}
        s_lshl_b32 s{S_T}, s{S_T}, 10
        s_add_u32 s{S_T+14}, s{S_T}, {WS_U}
        s_add_u32 s{S_T+15}, s{S_T+14}, {112*1024}""")
    p4l = capture(k, pre4); hl = len(p4l)//2
    Cb.loop(1, fillers=p4l[:hl]); Cb.loop(1, fillers=p4l[hl:])
    Cb.loop(n1-2)
    k.e(f"ds_read_b64 v[2:3], v62\nds_read_b64 v[4:5], v62 offset:256\ns_waitcnt lgkmcnt(0)")
    stamp(k, 13)
    def norm_tile(st, ft, packed):
        s = 2+2*st; a = Ca.acc(st, ft); L = []
        for hh in range(2):
            if packed:
                L += [f"v_pk_fma_f32 v[{a+2*i}:{a+2*i+1}], v[{a+2*i}:{a+2*i+1}], v[{s}:{s+1}], v[{s}:{s+1}] op_sel:[0,1,0] op_sel_hi:[1,1,0]" for i in range(4*hh, 4*hh+4)]
            else:
                L += [f"v_fma_f32 v{a+i}, v{a+i}, v{s+1}, v{s}" for i in range(8*hh, 8*hh+8)]
            L += [f"v_cvt_pk_bf16_f32 v{a+8*hh+i}, v{a+8*hh+2*i}, v{a+8*hh+2*i+1}" for i in range(4)]
            L += [f"buffer_store_dwordx4 v[{a+8*hh}:{a+8*hh+3}], v{10+hh}, {W}, s{S_T+12+st} offen offset:{ft*2048+hh*1024} sc1"]
        return L
    tiles = [(st, ft) for st in range(2) for ft in range(2)]
    if OPT.nfill:
        for j in range(0, 4, OPT.nfill):
            L = []
            for st, ft in tiles[j:j+OPT.nfill]: L += norm_tile(st, ft, False)
            Cb.loop(1, fillers=L)
        nf = 4//OPT.nfill
    else:
        for st, ft in tiles:
            for ins in norm_tile(st, ft, True): k.e(ins)
        Cb.loop(1); nf = 1
    if OPT.vmd: Cb.loop(OPT.vmd)
    Cb.loop(1, pre_barrier="vm")
    zl = ["v_lshlrev_b32 v240, 16, v240", "v_lshlrev_b32 v242, 16, v242"] + [f"v_mov_b32 v{128+i}, v{240+2*((i>>4)&1)}" for i in range(64)]
    Cb.loop(1, fillers=zl[:34]); Cb.loop(1, fillers=zl[34:])
    rest = 16-n1-nf-3-OPT.vmd
    if rest > 1: Cb.loop(rest-1)
    Cb.loop(1, next_cons=C4)
    stamp(k, 14)
    C = C4
    zn = OPT.z1n; per = 16//zn
    for j in range(4*per):
        st, ft = (j // per) & 1, j // (2*per)
        fl = gelu_fill(Cb.acc(st, ft), CS+16*ft, HS+4*st, zn*(j % per), zn, t=56)
        if j == 0: fl = ["s_nop 0"]*3 + fl
        C.loop(1, fillers=fl, next_cons=(False if j == 31 else None))
    if 4*per < 32: C.loop(32-4*per)
    k.e("s_waitcnt lgkmcnt(0)")
    stamp(k, 16)
    k.e("s_nop 6")
    for ft in range(2):
        for st in range(2):
            a = C.acc(st, ft); z = Cb.acc(st, ft); o = 16+8*(ft*2+st)
            for hh in range(2):
                for i in range(4*hh, 4*hh+4): k.e(f"v_pk_mul_f32 v[{a+2*i}:{a+2*i+1}], v[{a+2*i}:{a+2*i+1}], v[{z+2*i}:{z+2*i+1}]")
                for i in range(4*hh, 4*hh+4): k.e(f"v_cvt_pk_bf16_f32 v{o+i}, v{a+2*i}, v{a+2*i+1}")
                k.e(f"buffer_store_dwordx4 v[{o+4*hh}:{o+4*hh+3}], v{L16}, {W}, s{S_T+14+st} offen offset:{ft*2048+hh*1024} sc1")
    k.e("s_waitcnt vmcnt(0)\ns_barrier")
    stamp(k, 17)
    k.e("L_c_p5:")
    c = c5; C = Cons(k, c, R)
    p25_addr()
    consumer_addr(k, c, R)
    for i in range(16): unpack(k, 64+2*i, 65+2*i, RS+i)
    mk_srd(k, SRD_B, P_OUT, 4*MB)
    k.e("s_barrier\ns_barrier")
    stamp(k, 18)
    C.first_reads(); C.loop(28)
    k.e("s_waitcnt lgkmcnt(0)")
    stamp(k, 19)
    k.e("s_nop 6")
    for i in range(16):
        k.e(f"v_cvt_pk_bf16_f32 v{32+i}, v{A+2*i}, v{A+2*i+1}")
        if i & 3 == 3:
            j = i >> 2
            k.e(f"buffer_store_dwordx4 v[{32+4*j}:{35+4*j}], v14, {srd(SRD_B)}, 0 offen offset:{32*j}")
    k.e("s_branch L_fin")
    k.e("L_c_helper:")
    k.e("s_barrier")
    helper_pf(k, 'c')
    stamp(k, 17)
    k.e("s_branch L_c_p5")

def build():
    k = Kern("p")
    if OPT.probe: k.e("s_memrealtime s[94:95]")
    k.e("s_cmp_ge_u32 s2, 256\ns_cbranch_scc1 L_end")
    k.e("s_load_dwordx16 s[32:47], s[0:1], 0\ns_load_dwordx8 s[48:55], s[0:1], 64")
    k.e(f"v_lshrrev_b32 v2, 6, v0\nv_and_b32 v1, 63, v0\nv_readfirstlane_b32 s{S_WAVE}, v2")
    if OPT.stamps: k.e("v_mov_b32 v255, 0\nv_mov_b32 v254, 0\nv_mov_b32 v253, 0\ns_mov_b32 s97, 0")
    ITST[0] = OPT.stamps > 1; ITST[1] = 254; CAP[0] = OPT.cap
    tile_map(k, 8, 4, 16)
    k.e(f"s_cmp_lt_u32 s{S_WAVE}, 4\ns_cbranch_scc1 L_cons")
    k.e(f"s_and_b32 s{S_LW}, s{S_WAVE}, 1\ns_sub_u32 s{S_Q}, s{S_WAVE}, 4\ns_cmp_ge_u32 s{S_WAVE}, 6\ns_cbranch_scc1 L_aux")
    if OPT.pl: k.e(f"s_setprio {OPT.pl}")
    loader(k)
    k.e("L_aux:")
    if OPT.pa: k.e(f"s_setprio {OPT.pa}")
    aux(k)
    k.e("L_cons:")
    if OPT.pc: k.e(f"s_setprio {OPT.pc}")
    consumer(k)
    k.e("L_fin:")
    if OPT.stamps:
        k.e("s_waitcnt vmcnt(0)")
        stamp(k, 20)
        mk_srd(k, SRD_D, P_WS, 2*MB, WS_END)
        k.e(f"""s_lshl_b32 s{S_T}, s2, 3
        s_add_u32 s{S_T}, s{S_T}, s{S_WAVE}
        s_lshl_b32 s{S_T}, s{S_T}, 8
        v_lshlrev_b32 v2, 2, v1
        buffer_store_dword v255, v2, {srd(SRD_D)}, s{S_T} offen
        s_add_u32 s{S_T}, s{S_T}, 0x80000
        buffer_store_dword v254, v2, {srd(SRD_D)}, s{S_T} offen
        s_add_u32 s{S_T}, s{S_T}, 0x80000
        buffer_store_dword v253, v2, {srd(SRD_D)}, s{S_T} offen""")
    if OPT.probe:
        k.e(f"s_cmp_lg_u32 s{S_WAVE}, 0\ns_cbranch_scc1 L_end\ns_cmp_ge_u32 s2, 224\ns_cbranch_scc1 L_end")
        if OPT.pwg >= 0: k.e(f"s_cmp_lg_u32 s2, {OPT.pwg}\ns_cbranch_scc1 L_end")
        k.e(f"v_readlane_b32 s{S_T}, v255, {OPT.probe}\ns_nop 3\ns_add_u32 s{S_T}, s{S_T}, 10000\nL_spin:\ns_memrealtime s[{S_ST}:{S_ST+1}]\ns_waitcnt lgkmcnt(0)\ns_sub_u32 s{S_T+1}, s{S_ST}, s{S_T}\ns_cmp_lt_i32 s{S_T+1}, 0\ns_cbranch_scc1 L_spin")
    k.e("L_end:\ns_endpgm")
    out = [f"; @launch grid=(256,1,1) block=(512,1,1) lds={L_END}",
           '.amdgcn_target "amdgcn-amd-amdhsa--gfx950"\n.text', header(KNAME) + k.text(), '.section .rodata,"a"', descriptor(KNAME, 256, 100)]
    return "\n".join(out)

if __name__ == "__main__":
    for a in sys.argv[2:]:
        kk, v = a.split("="); setattr(OPT, kk, int(v))
    open(sys.argv[1], "w").write(build())
```

```python
import math
from core import Kern, header, descriptor, vr, sr, srd, Regs, tr_lane_base, blk_tr_base

S_WAVE=3; S_M=4; S_N=5; S_PH=6; S_T0=7
SRD_S=8; SRD_F=12; SRD_A=16; SRD_B=20; SRD_W=24; SRD_D=28
P0=32
S_T=56
S_WM=72; S_WN=73; S_LW=74; S_KB=75
S_X=76
S_CNT=80; S_SLOT=81; S_DS=82; S_DF=83; S_OS=84; S_OF=85; S_M0W=86; S_TAU=87
S_K=88
S_FB=96
S_ST=98

def ptr(i): return P0 + 2*i

def mk_srd(k, d, p, nbytes, off=0):
    if off:
        k.e(f"s_add_u32 s{d}, s{ptr(p)}, {off}\ns_addc_u32 s{d+1}, s{ptr(p)+1}, 0")
    else:
        k.e(f"s_mov_b32 s{d}, s{ptr(p)}\ns_mov_b32 s{d+1}, s{ptr(p)+1}")
    k.e(f"s_mov_b32 s{d+2}, {nbytes}\ns_mov_b32 s{d+3}, 0x20000")

class Cfg:
    def __init__(self, BM, BN, T, NS, WM, WN, U, strideS, strideF, ftiles, nb_from_wave, panel_from_wave, orient=None,
                 rot=(-1,0,2,-1), pre_mfma=2, smode='rows', fmode='rows', baseS=0, baseF=65536, auxS="", auxF="", kbase=False, slot0=0, own2=False, pb=22, burst=3, cap2=False, old=7):
        self.BM=BM; self.BN=BN; self.T=T; self.NS=NS; self.WM=WM; self.WN=WN; self.U=U
        self.strideS=strideS; self.strideF=strideF
        self.TM = BM//WM//32
        self.ftiles = ftiles; self.TN = len(ftiles)
        self.nb_from_wave = nb_from_wave; self.panel_from_wave = panel_from_wave
        self.orient = orient or ['T']*self.TN
        self.NP = BN//64
        self.slotS = BM*128; self.slotF = BN*128
        self.nS = BM//16; self.nF = BN//16
        self.nI = self.nS + self.nF
        self.rot = rot; self.pre_mfma = pre_mfma
        self.smode = smode; self.fmode = fmode
        self.baseS = baseS; self.baseF = baseF
        self.auxS = auxS; self.auxF = auxF
        self.slot0 = slot0; self.own2 = own2; self.pb = pb; self.burst = burst; self.cap2 = cap2; self.old = old
        self.kbase = kbase

def tile_map(k, gm, gn, ntn):
    xn = ntn // gn
    lg = int(math.log2(gm)); lx = int(math.log2(xn))
    k.e(f"""s_and_b32 s{S_T}, s2, 7
    s_lshr_b32 s{S_T+1}, s2, 3
    s_and_b32 s{S_T+2}, s{S_T+1}, {gm-1}
    s_lshr_b32 s{S_T+3}, s{S_T+1}, {lg}
    s_lshr_b32 s{S_M}, s{S_T}, {lx}
    s_mul_i32 s{S_M}, s{S_M}, {gm}
    s_add_u32 s{S_M}, s{S_M}, s{S_T+2}
    s_and_b32 s{S_N}, s{S_T}, {xn-1}
    s_mul_i32 s{S_N}, s{S_N}, {gn}
    s_add_u32 s{S_N}, s{S_N}, s{S_T+3}
    s_add_u32 s{S_PH}, s{S_T+2}, s{S_T+3}""")

def loader_voff_S(k, c, vb):
    w = S_LW
    if c.smode == 'rows':
        k.e(f"""v_lshrrev_b32 v2, 3, v1
        v_and_b32 v4, 7, v1
        s_lshl_b32 s{S_T+6}, s{w}, 3
        v_lshrrev_b32 v3, 4, v1
        s_lshl_b32 s{S_T+5}, s{w}, 2
        v_add_u32 v3, s{S_T+5}, v3
        v_xor_b32 v3, v3, v4
        v_lshlrev_b32 v3, 4, v3
        s_mul_i32 s{S_T+5}, s{S_M}, {c.BM}
        s_add_u32 s{S_T+5}, s{S_T+5}, s{S_T+6}
        v_add_u32 v5, s{S_T+5}, v2
        s_mov_b32 s{S_T+7}, {c.strideS}
        v_mul_lo_u32 v5, v5, s{S_T+7}
        v_add_u32 v{vb}, v5, v3""")
        for i in range(1, c.nS):
            k.e(f"v_add_u32 v{vb+i}, {i*16*c.strideS}, v{vb}")
    else:
        k.e(f"""s_mul_i32 s{S_T+5}, s{S_M}, {c.BM*c.strideS}
        s_add_u32 s{S_T+5}, s{S_T+5}, s{S_M0W}
        v_lshlrev_b32 v3, 4, v1
        v_add_u32 v{vb}, s{S_T+5}, v3""")
        for i in range(1, c.nS):
            k.e(f"v_add_u32 v{vb+i}, {(i>>1)*32*c.strideS + (i&1)*2048}, v{vb}")

def loader_voff_F(k, c, vb, colsg=None, panelconst=None):
    w = S_LW
    if c.fmode == 'rows':
        k.e(f"""v_lshrrev_b32 v2, 3, v1
        v_and_b32 v4, 7, v1
        s_lshl_b32 s{S_T+6}, s{w}, 3
        v_lshrrev_b32 v3, 2, v1
        v_and_b32 v3, 4, v3
        v_xor_b32 v3, v3, v4
        s_lshl_b32 s{S_T+5}, s{w}, 1
        v_xor_b32 v3, s{S_T+5}, v3
        v_lshlrev_b32 v3, 4, v3
        v_add_u32 v5, s{S_T+6}, v2
        s_mov_b32 s{S_T+7}, {c.strideF}
        v_mul_lo_u32 v5, v5, s{S_T+7}
        v_add3_u32 v5, v5, v3, s{colsg}""")
        for i in range(c.nF):
            k.e(f"v_add_u32 v{vb+i}, {panelconst(i>>2) + (i&3)*16*c.strideF}, v5")
    else:
        k.e(f"""s_mul_i32 s{S_T+5}, s{S_N}, {c.T*c.BN*128}
        s_add_u32 s{S_T+5}, s{S_T+5}, s{S_M0W}
        v_lshlrev_b32 v3, 4, v1
        v_add_u32 v{vb}, s{S_T+5}, v3""")
        for i in range(1, c.nF):
            k.e(f"v_add_u32 v{vb+i}, {i*2048}, v{vb}")

def kstep(k, c, t):
    src = S_TAU
    if c.own2 == 2:
        P = len(c.rot); packed = 0
        for u, d in enumerate(c.rot): packed |= ((d+8) & 15) << (4*u)
        k.e(f"""s_lshr_b32 s{t+1}, s{S_TAU}, 1
        s_sub_u32 s{t+2}, s{t+1}, 1
        s_cmp_ge_u32 s{t+2}, s{S_KB}
        s_addc_u32 s{t+2}, s{t+2}, 0
        s_cmp_eq_u32 s{t+1}, 0
        s_cselect_b32 s{t+2}, s{S_KB}, s{t+2}
        s_sub_u32 s{t}, s{t+2}, s{S_PH}
        s_and_b32 s{t}, s{t}, {P-1}
        s_lshl_b32 s{t}, s{t}, 2
        s_lshr_b32 s{t}, {packed}, s{t}
        s_and_b32 s{t}, s{t}, 15
        s_add_u32 s{t}, s{t}, s{t+2}
        s_sub_u32 s{t}, s{t}, 8
        s_and_b32 s{t}, s{t}, 15
        s_lshl_b32 s{t}, s{t}, 1
        s_and_b32 s{t+1}, s{S_TAU}, 1
        s_add_u32 s{t}, s{t}, s{t+1}""")
        return
    if c.kbase is not False:
        q = c.kbase
        k.e(f"""s_cmp_gt_u32 s{S_TAU}, {q}
        s_subb_u32 s{t+1}, s{S_TAU}, 0
        s_cmp_ge_u32 s{t+1}, s{S_KB}
        s_addc_u32 s{t+1}, s{t+1}, 0
        s_cmp_eq_u32 s{S_TAU}, {q}
        s_cselect_b32 s{t+1}, s{S_KB}, s{t+1}""")
        src = t+1
    if c.rot:
        P = len(c.rot); packed = 0
        for u, d in enumerate(c.rot): packed |= ((d+8) & 15) << (4*u)
        k.e(f"""s_sub_u32 s{t}, s{src}, s{S_PH}
        s_and_b32 s{t}, s{t}, {P-1}
        s_lshl_b32 s{t}, s{t}, 2
        s_lshr_b32 s{t}, {packed}, s{t}
        s_and_b32 s{t}, s{t}, 15
        s_add_u32 s{t}, s{t}, s{src}""")
        if c.T & (c.T-1) == 0:
            k.e(f"s_sub_u32 s{t}, s{t}, 8\ns_and_b32 s{t}, s{t}, {c.T-1}")
        else:
            k.e(f"""s_add_u32 s{t}, s{t}, {c.T-8}
            s_sub_u32 s{t+1}, s{t}, {c.T}
            s_cmp_ge_u32 s{t}, {c.T}
            s_cselect_b32 s{t}, s{t+1}, s{t}
            s_sub_u32 s{t+1}, s{t}, {c.T}
            s_cmp_ge_u32 s{t}, {c.T}
            s_cselect_b32 s{t}, s{t+1}, s{t}""")
    else:
        k.e(f"s_mov_b32 s{t}, s{src}")
    if c.own2 == 1:
        k.e(f"""s_min_u32 s{t+1}, s{t}, s{S_TAU}
        s_max_u32 s{t+2}, s{t}, s{S_TAU}
        s_cmp_lt_u32 s{t+1}, 2
        s_cselect_b32 s{t+1}, s{t+2}, 0
        s_cmp_ge_u32 s{t+1}, 2
        s_cselect_b32 s{t}, s{S_TAU}, s{t}
        s_add_u32 s{t}, s{t}, s{S_KB}
        s_and_b32 s{t}, s{t}, {c.T-1}""")

def issue(k, c, vS, vF, parts="SF", fbase=False):
    t = S_T+8
    kstep(k, c, t)
    if DG[0] & 2: k.e(f"s_and_b32 s{t}, s{t}, 1")
    stepS = 7 if c.smode == 'rows' else 12
    stepF = 64*c.strideF if c.fmode == 'rows' else c.BN*128
    if 'S' in parts:
        k.e(f"""s_lshl_b32 s{S_OS}, s{t}, {stepS}
        s_mul_i32 s{t+1}, s{S_SLOT}, {c.slotS}
        s_add_u32 s{t+1}, s{t+1}, s{S_M0W}
        s_add_u32 m0, s{t+1}, {c.baseS}
        {gapi()}""")
        for i in range(c.nS):
            k.e(f"buffer_load_dwordx4 v{vS+i}, {srd(SRD_S)}, s{S_OS} offen {c.auxS} lds")
            if i < c.nS-1: k.e("s_add_u32 m0, m0, 2048\n" + gapi())
    if 'F' in parts:
        k.e(f"""s_mul_i32 s{S_OF}, s{t}, {stepF}
        s_mul_i32 s{t+1}, s{S_SLOT}, {c.slotF}
        s_add_u32 s{t+1}, s{t+1}, s{S_M0W}
        s_add_u32 m0, s{t+1}, {c.baseF}""")
        if fbase: k.e(f"s_add_u32 s{S_OF}, s{S_OF}, s{S_FB}")
        if CAP[0] or not fbase: k.e(gapi())
        for i in range(c.nF):
            k.e(f"buffer_load_dwordx4 v{vF+i}, {srd(SRD_F)}, s{S_OF} offen {c.auxF} lds")
            if i < c.nF-1: k.e("s_add_u32 m0, m0, 2048\n" + gapi())
    k.e(f"""s_add_u32 s{S_TAU}, s{S_TAU}, 1
    s_add_u32 s{S_SLOT}, s{S_SLOT}, 1
    s_cmp_eq_u32 s{S_SLOT}, {c.NS}
    s_cselect_b32 s{S_SLOT}, 0, s{S_SLOT}""")

def issue_first(k, c, vS, vF, parts, fbase=False, pbarrier=True, t0=0, t1=None):
    n = (c.nS if 'S' in parts else 0) + (c.nF if 'F' in parts else 0)
    top = k.lab("if"); l1 = k.lab("if1")
    t1 = c.NS if t1 is None else t1
    k.e(f"s_mov_b32 s{S_TAU}, {t0}\ns_mov_b32 s{S_SLOT}, {(t0+c.slot0) % c.NS}\n{top}:")
    issue(k, c, vS, vF, parts, fbase)
    if pbarrier:
        k.e(f"s_cmp_lg_u32 s{S_TAU}, 2\ns_cbranch_scc1 {l1}\ns_waitcnt vmcnt({n})\ns_barrier\n{l1}:")
    k.e(f"s_cmp_lt_u32 s{S_TAU}, {t1}\ns_cbranch_scc1 {top}")

CAP = [0]
DG = [0]
def gapi():
    return f"s_waitcnt vmcnt({CAP[0]})" if CAP[0] else "s_nop 0"
ITST = [0, 254]
def itstamp(k):
    if ITST[0]:
        k.e(f"{'s_memtime' if ITST[0] == 2 else 's_memrealtime'} s[{S_ST}:{S_ST+1}]\ns_waitcnt lgkmcnt(0)\ns_mov_b32 m0, s97\ns_nop 0\nv_writelane_b32 v{ITST[1]}, s{S_ST}, m0\ns_add_u32 s97, s97, 1")

S_PA = 60
UNR = [2]
def prep_groups(k, c, dst, fbase):
    t = S_T+8
    tk = Kern(k.name); kstep(tk, c, t)
    if DG[0] & 2: tk.e(f"s_and_b32 s{t}, s{t}, 1")
    stepS = 7 if c.smode == 'rows' else 12
    stepF = 64*c.strideF if c.fmode == 'rows' else c.BN*128
    tk.e(f"s_lshl_b32 s{dst}, s{t}, {stepS}\ns_mul_i32 s{dst+1}, s{t}, {stepF}")
    if fbase: tk.e(f"s_add_u32 s{dst+1}, s{dst+1}, s{S_FB}")
    tk.e(f"""s_mul_i32 s{dst+2}, s{S_SLOT}, {c.slotS}
    s_add_u32 s{dst+2}, s{dst+2}, s{S_M0W}
    s_mul_i32 s{dst+3}, s{S_SLOT}, {c.slotF}
    s_add_u32 s{dst+3}, s{dst+3}, s{S_M0W}
    s_add_u32 s{S_TAU}, s{S_TAU}, 1
    s_add_u32 s{S_SLOT}, s{S_SLOT}, 1
    s_cmp_eq_u32 s{S_SLOT}, {c.NS}
    s_cselect_b32 s{S_SLOT}, 0, s{S_SLOT}""")
    L = [x.strip() for x in tk.L]; G = []
    for x in L:
        if x.startswith(("s_cselect", "s_addc", "s_subb")): G[-1].append(x)
        else: G.append([x])
    return G

def steady(k, c, vS, vF, upto, fbase=False, wait=None):
    top = k.lab("st"); done = k.lab("std")
    w = (c.NS-2)*c.nI if wait is None else wait
    sets = [S_PA, S_PA+8]
    for g in prep_groups(k, c, sets[0], fbase):
        for x in g: k.e(x)
    k.e(f"{top}:")
    for h in range(2):
        cur, nx = sets[h], sets[h ^ 1]
        G = prep_groups(k, c, nx, fbase)
        dm = []
        if not DG[0] & 4: dm += [(f"buffer_load_dwordx4 v{vS+i}, {srd(SRD_S)}, s{cur} offen {c.auxS} lds", f"s_add_u32 m0, s{cur+2}, {c.baseS + i*2048}") for i in range(c.nS)]
        if not DG[0] & 8: dm += [(f"buffer_load_dwordx4 v{vF+i}, {srd(SRD_F)}, s{cur+1} offen {c.auxF} lds", f"s_add_u32 m0, s{cur+3}, {c.baseF + i*2048}") for i in range(c.nF)]
        if dm and not ITST[0]: k.e(dm[0][1])
        k.e(f"s_waitcnt vmcnt({w})\ns_barrier")
        if ITST[0]:
            itstamp(k)
            if dm: k.e(dm[0][1] + "\ns_nop 0")
        ng = max(len(dm)-1, 1); gi = 0
        for i, (ld, m0) in enumerate(dm):
            k.e(ld)
            if i < len(dm)-1:
                k.e(dm[i+1][1])
                tgt = -(-len(G)*(i+1)//ng); n0 = gi
                while gi < tgt:
                    for x in G[gi]: k.e(x)
                    gi += 1
                if gi == n0: k.e("s_nop 0")
        while gi < len(G):
            for x in G[gi]: k.e(x)
            gi += 1
        if h == 0: k.e(f"s_cmp_gt_u32 s{S_TAU}, {upto}\ns_cbranch_scc1 {done}")
        else: k.e(f"s_cmp_le_u32 s{S_TAU}, {upto}\ns_cbranch_scc1 {top}")
    k.e(f"""{done}:
    s_sub_u32 s{S_TAU}, s{S_TAU}, 1
    s_cmp_eq_u32 s{S_SLOT}, 0
    s_cselect_b32 s{S_SLOT}, {c.NS}, s{S_SLOT}
    s_sub_u32 s{S_SLOT}, s{S_SLOT}, 1""")

def issue_noadv(k, c, vS, vF, parts, fbase=False):
    n0 = len(k.L)
    issue(k, c, vS, vF, parts, fbase)
    del k.L[-4:]

def steady_skew(k, c, vS, vF):
    top = k.lab("sk"); done = k.lab("skd")
    k.e(f"{top}:\ns_waitcnt vmcnt({c.nS+2*c.nF})\ns_barrier")
    itstamp(k)
    issue(k, c, vS, vF, "S")
    k.e(f"s_cmp_eq_u32 s{S_TAU}, {c.T}\ns_cbranch_scc1 {done}")
    issue_noadv(k, c, vS, vF, "F")
    k.e(f"s_branch {top}\n{done}:")

def one(k, c, vS, vF, fbase=False, wait=None):
    w = (c.NS-2)*c.nI if wait is None else wait
    k.e(f"s_waitcnt vmcnt({w})\ns_barrier")
    itstamp(k)
    issue(k, c, vS, vF, "SF", fbase)

def after_split_prologue(k, c, vS, vF, first_n, fbase=False):
    for j in range(c.NS-2):
        one(k, c, vS, vF, fbase, wait=(c.NS-2-j)*first_n + j*c.nI)

def consumer_addr(k, c, R, slot=None, t=16, setslot=True):
    wm = S_WM; wn = S_WN
    lw = int(math.log2(c.WN))
    slot = c.slot0 if slot is None else slot
    if setslot:
        k.e(f"s_mov_b32 s{S_SLOT}, {slot}\ns_mov_b32 s{S_OS}, {-(c.NS-1)*c.slotS}\ns_mov_b32 s{S_OF}, {-(c.NS-1)*c.slotF}")
        for g in slot_adv(c): k.e(g)
    k.e(f"s_lshr_b32 s{wm}, s{S_WAVE}, {lw}\ns_and_b32 s{wn}, s{S_WAVE}, {c.WN-1}")
    k.e(f"s_mul_i32 s{S_T+6}, s{wm}, {c.TM*4096}\ns_add_u32 s{S_T+6}, s{S_T+6}, {c.baseS + slot*c.slotS}")
    k.e(f"v_and_b32 v{t}, 15, v1\nv_lshrrev_b32 v{t+1}, 4, v1")
    if c.smode == 'rows':
        k.e(f"""v_bfe_u32 v{t+2}, v1, 1, 3
        v_xor_b32 v{t+2}, v{t+2}, v{t+1}
        v_lshlrev_b32 v{t+2}, 4, v{t+2}
        v_lshl_add_u32 v{t+2}, v{t}, 7, v{t+2}
        v_add_u32 v{R.aS[0]}, s{S_T+6}, v{t+2}
        v_xor_b32 v{R.aS[1]}, 64, v{R.aS[0]}""")
    else:
        k.e(f"""v_lshlrev_b32 v{t+2}, 4, v{t}
        v_lshl_add_u32 v{t+2}, v{t+1}, 9, v{t+2}
        v_add_u32 v{R.aS[0]}, s{S_T+6}, v{t+2}""")
    a0 = R.aF[0]
    if c.fmode == 'rows':
        k.e(f"""v_bfe_u32 v{t+2}, v1, 2, 2
        v_lshlrev_b32 v{a0}, 7, v{t+2}
        v_lshl_add_u32 v{a0}, v{t+1}, 10, v{a0}
        v_bfe_u32 v{t+2}, v1, 3, 1
        v_lshl_add_u32 v{a0}, v{t+2}, 6, v{a0}
        v_bfe_u32 v{t+2}, v1, 4, 1
        v_lshl_add_u32 v{a0}, v{t+2}, 5, v{a0}
        s_mov_b32 s{S_T+6}, {c.baseF + slot*c.slotF}""")
        if c.panel_from_wave: k.e(f"s_lshl_b32 s{S_T+7}, s{wn}, 13\ns_add_u32 s{S_T+6}, s{S_T+6}, s{S_T+7}")
        k.e(f"v_add_u32 v{a0}, s{S_T+6}, v{a0}")
        if c.nb_from_wave:
            k.e(f"s_lshl_b32 s{S_T+7}, s{wn}, 6\nv_xor_b32 v{a0}, s{S_T+7}, v{a0}")
            k.e(f"""v_and_b32 v{t+2}, 1, v1
            v_lshl_add_u32 v{R.aF[2]}, v{t+2}, 4, v{a0}
            v_bfe_u32 v{t+2}, v1, 1, 1
            v_lshl_add_u32 v{R.aF[2]}, v{t+2}, 3, v{R.aF[2]}
            v_xor_b32 v{R.aF[3]}, 32, v{R.aF[2]}""")
        k.e(f"v_and_b32 v{t+2}, 3, v1\nv_lshl_add_u32 v{a0}, v{t+2}, 3, v{a0}")
        for b in range(1, 2 if c.nb_from_wave else 4): k.e(f"v_xor_b32 v{R.aF[b]}, {32*b}, v{a0}")
    else:
        k.e(f"""v_bfe_u32 v{t+2}, v1, 2, 2
        v_lshl_add_u32 v{t+2}, v{t+1}, 3, v{t+2}
        v_lshlrev_b32 v{a0}, 4, v{t+2}
        v_bfe_u32 v{t+2}, v1, 1, 1
        v_lshl_add_u32 v{a0}, v{t+2}, 6, v{a0}
        v_lshl_add_u32 v{a0}, v{t+2}, 9, v{a0}
        v_and_b32 v{t+2}, 1, v1
        v_lshl_add_u32 v{a0}, v{t+2}, 3, v{a0}
        s_lshl_b32 s{S_T+6}, s{wn}, 12
        s_add_u32 s{S_T+6}, s{S_T+6}, {c.baseF + slot*c.slotF}
        v_add_u32 v{a0}, s{S_T+6}, v{a0}
        v_xor_b32 v{R.aF[1]}, 64, v{a0}""")

def slot_adv(c):
    if c.NS == 4:
        g = [f"s_add_u32 s{S_SLOT}, s{S_SLOT}, 1", f"s_and_b32 s{S_SLOT}, s{S_SLOT}, 3\ns_cselect_b32 s{S_DS}, {c.slotS}, s{S_OS}"]
        if c.slotF != c.slotS:
            assert 2*c.slotF == c.slotS
            g.append(f"s_ashr_i32 s{S_DF}, s{S_DS}, 1")
        return g
    return [f"s_add_u32 s{S_SLOT}, s{S_SLOT}, 1\ns_cmp_lg_u32 s{S_SLOT}, {c.NS}",
            f"s_cselect_b32 s{S_DS}, {c.slotS}, s{S_OS}\ns_cselect_b32 s{S_DF}, {c.slotF}, s{S_OF}", f"s_cselect_b32 s{S_SLOT}, s{S_SLOT}, 0"]

M16 = "v_mfma_f32_16x16x32_bf16"
class Cons:
    def __init__(s_, k, c, R):
        s_.k = k; s_.c = c; s_.R = R
        s_.TS = 2*c.TM; s_.TF = 2*c.TN
        s_.NF = (48 - 8*s_.TS)//4
        assert (2*s_.TF) % s_.NF == 0
        s_.NM = 2*s_.TS*s_.TF
        s_.plan()
    def acc(s_, st, ft): return s_.R.acc + 16*(ft*s_.c.TM+st)
    def sub(s_, t, f):
        a = s_.acc(t >> 1, f >> 1)
        return a + (8*(f & 1) + 4*(t & 1) if s_.c.orient[f >> 1] == 'T' else 8*(t & 1) + 4*(f & 1))
    def rS(s_, u, t): return s_.R.fr + (u*s_.TS + t)*4
    def rF(s_, j): return s_.R.fr + 8*s_.TS + (j % s_.NF)*4
    def order(s_, f): return list(range(s_.TS)) if f % 2 == 0 else list(range(s_.TS-1, -1, -1))
    def rdS(s_, u, t):
        c, R = s_.c, s_.R
        if c.smode == 'rows': return f"ds_read_b128 {vr(s_.rS(u,t),4)}, v{R.aS[u]} offset:{t*2048}"
        return f"ds_read_b128 {vr(s_.rS(u,t),4)}, v{R.aS[0]} offset:{(t>>1)*4096 + u*2048 + (t&1)*256}"
    def rdF(s_, j, rd):
        c, R = s_.c, s_.R
        u, f = divmod(j, s_.TF); P, nb = c.ftiles[f >> 1]
        if c.fmode == 'rows':
            if c.nb_from_wave: a = R.aF[(f & 1) + (2 if c.orient[f >> 1] == 'N' else 0)]
            else: a = R.aF[2*nb + (f & 1)]
            return f"ds_read_b64_tr_b16 {vr(s_.rF(j)+2*rd,2)}, v{a} offset:{P*8192 + u*4096 + rd*512}"
        return f"ds_read_b64_tr_b16 {vr(s_.rF(j)+2*rd,2)}, v{R.aF[rd]} offset:{u*c.BN*64 + ((P*2+nb)*2 + (f&1))*1024}"
    def plan(s_):
        TS, TF, NF, NM = s_.TS, s_.TF, s_.NF, s_.NM
        G = TS*TF
        pb = s_.c.pb
        items = []
        for u in range(2):
            for t in range(TS): items.append((u*G + t, (u-1)*G, s_.rdS(u, t), ('S', u, t)))
        for j in range(2*TF):
            for rd in range(2): items.append((j*TS - 0.5 + 0.1*rd, (j-NF+1)*TS, s_.rdF(j, rd), ('F', j)))
        items.sort(key=lambda x: x[0])
        cnt = {}; sched = []; g = pb - NM
        for use, e, txt, tag in items:
            g = max(g, e)
            cap = lambda gg: 2 if (gg < pb - NM + s_.c.burst or s_.c.cap2) else 1
            while cnt.get(g, 0) >= cap(g): g += 1
            cnt[g] = cnt.get(g, 0) + 1
            sched.append((g, txt, tag))
            assert g <= use + 0.5, (g, use, tag)
        s_.sched = sched; s_.lastcur = max(g for g, _, _ in sched)
        assert s_.lastcur < pb, (s_.lastcur, pb)
    def first_reads_static(s_, slot):
        for g, txt, tag in s_.sched:
            if g < 0:
                a, b = txt.rsplit("offset:", 1)
                s_.k.e(f"{a}offset:{int(b) + slot*(s_.c.slotS if tag[0] == 'S' else s_.c.slotF)}")
    def loop4(s_, nrep, slot):
        k = s_.k; lp = k.lab("c4")
        k.e(f"s_mov_b32 s{S_CNT}, {nrep}\n.p2align 6\n{lp}:")
        for i in range(s_.c.NS):
            s_.loop(1, slot=(slot+i) % s_.c.NS, fillers=([f"s_sub_u32 s{S_CNT}, s{S_CNT}, 1", f"s_cmp_lg_u32 s{S_CNT}, 0"] if i == s_.c.NS-1 else None))
        k.e(f"s_cbranch_scc1 {lp}")
    def loopu(s_, nrep, unr):
        k = s_.k; lp = k.lab("cu")
        if nrep > 1: k.e(f"s_mov_b32 s{S_CNT}, {nrep}\n.p2align 6\n{lp}:")
        for i in range(unr): s_.loop(1)
        if nrep > 1: k.e(f"s_sub_u32 s{S_CNT}, s{S_CNT}, 1\ns_cmp_lg_u32 s{S_CNT}, 0\ns_cbranch_scc1 {lp}")
    def zero(s_):
        for i in range(0, s_.c.TM*s_.c.TN*16, 2): s_.k.e(f"v_mov_b64 v[{s_.R.acc+i}:{s_.R.acc+i+1}], 0")
    def first_reads(s_):
        for g, txt, tag in s_.sched:
            if g < 0: s_.k.e(txt)
    def loop(s_, nsteps, pre_barrier=None, fillers=None, budget=8, next_cons=None, tail=None, slot=None, nslot=None):
        k, c, R = s_.k, s_.c, s_.R
        TS, TF, NM, pb = s_.TS, s_.TF, s_.NM, s_.c.pb
        q = [tag for g, _, tag in s_.sched if g < 0]
        lp = k.lab("cloop")
        if nsteps > 1: k.e(f"s_mov_b32 s{S_CNT}, 0\n.p2align 6\n{lp}:")
        gaps = [[] for _ in range(NM+1)]; mfs = []
        nxt = s_ if next_cons is None else next_cons
        byg = {}
        def sh(txt, tag, cc, sl):
            if sl is None: return txt
            a, b = txt.rsplit("offset:", 1)
            o = int(b) + sl*(cc.slotS if tag[0] == 'S' else cc.slotF)
            assert o < 65536
            return f"{a}offset:{o}"
        if slot is not None and nslot is None: nslot = (slot+1) % c.NS
        for g, txt, tag in s_.sched:
            if g >= 0: byg.setdefault(g, []).append((sh(txt, tag, c, slot), tag))
        if nxt:
            for g, txt, tag in nxt.sched:
                if g < 0: byg.setdefault(max(g + NM, pb), []).append((sh(txt, tag, nxt.c, nslot), ('n',)+tag))
        for i, txt in enumerate(tail or []): byg.setdefault(min(pb + i//2, NM), []).append((txt, ('x', i)))
        dF = S_DF if c.slotF != c.slotS else S_DS
        upd = [f"v_add_u32 v{a}, s{S_DS}, v{a}" for a in R.aS] + [f"v_add_u32 v{a}, s{dF}, v{a}" for a in R.aF]
        if slot is not None: upd = []
        ng = max(pb - s_.lastcur - 1, 1); per = max(-(-len(upd)//ng), 1)
        misc = {}
        for i, x in enumerate(upd): misc.setdefault(s_.lastcur + 1 + i//per, []).append(x)
        sal = ([f"s_add_u32 s{S_CNT}, s{S_CNT}, 1"] if nsteps > 1 else []) + slot_adv(c)
        if slot is not None: sal = []
        assert c.NS == 4 or not fillers
        assert len(sal) <= NM-pb-1
        free = sorted(range(pb+1, NM), key=lambda g: (len(byg.get(g, [])), -g))[:len(sal)]
        for g, x in zip(sorted(free), sal): misc.setdefault(g, []).extend(x.split("\n"))
        when = {tag: g for g, _, tag in s_.sched}
        p = 0
        for j in range(2*TF):
            u, f = divmod(j, TF)
            for t in s_.order(f):
                G_ = gaps[p]
                G_ += misc.get(p, [])
                if p == pb:
                    G_.append("s_waitcnt lgkmcnt(0)" + (" vmcnt(0)" if pre_barrier == "vm" else "")); q.clear()
                    G_.append("s_barrier")
                for txt, tag in byg.get(p, []): G_.append(txt); q.append(tag)
                tags = [('S', u, t), ('F', j)]
                idx = max([i for i, tg in enumerate(q) if tg in tags], default=-1)
                if idx >= 0:
                    while idx+1 < len(q) and when.get(q[idx+1], 99) <= p - c.old: idx += 1
                    n = len(q) - 1 - idx
                    assert n <= 15
                    G_.append(f"s_waitcnt lgkmcnt({n})"); del q[:idx+1]
                a, b = (s_.rF(j), s_.rS(u, t)) if c.orient[f >> 1] == 'T' else (s_.rS(u, t), s_.rF(j))
                d = s_.sub(t, f)
                mfs.append(f"{M16} {vr(d,4)}, {vr(a,4)}, {vr(b,4)}, {vr(d,4)}")
                p += 1
        for txt, tag in byg.get(NM, []): gaps[NM].append(txt)
        if nsteps > 1: gaps[NM] += [f"s_cmp_lt_u32 s{S_CNT}, {nsteps}", f"s_cbranch_scc1 {lp}"]
        def cost(x):
            if x.startswith(("v_exp", "v_rcp", "v_rsq", "v_sqrt")): return 8
            if x.startswith("buffer_"): return 8
            if x.startswith("s_barrier"): return 8
            return 4
        fl = list(fillers or [])
        place = [[] for _ in gaps]
        if fl:
            ngp = len(gaps)
            used = [sum(cost(x) for x in g) for g in gaps]
            used[-1] += used[0]
            b = budget
            while True:
                fi = 0; place = [[] for _ in gaps]
                tot = sum(cost(x) for x in fl); fre = sum(max(b-used[g], 0) for g in range(1, ngp)); acc = 0; done = 0
                for g in range(1, ngp):
                    room = max(b - used[g], 0); acc += room
                    while fi < len(fl) and cost(fl[fi]) <= room and done < acc*tot/max(fre, 1):
                        room -= cost(fl[fi]); done += cost(fl[fi]); place[g].append(fl[fi]); fi += 1
                if fi == len(fl): break
                b += 4
        for g in range(len(gaps)):
            for x in place[g]: k.e(x)
            for x in gaps[g]: k.e(x)
            if g < len(mfs): k.e(mfs[g])
```

```python
import sys, struct
from core4 import *

MB = 1<<20
WS_O=4*MB; WS_H=8*MB; WS_Z2N=20*MB; WS_U=28*MB
WS_KVP=36*MB; WS_ZP=38*MB; WS_KVF=38*MB+131072; WS_ZF=38*MB+262144; WS_HC=38*MB+524288; WS_XS=39*MB; WS_CQP=39*MB+65536; WS_CSP=39*MB+512*1024
WS_HST=40*MB; WS_ZST=41*MB
FLS=4352
WS_FLAG=42*MB; F_O=WS_FLAG; F_H=WS_FLAG+16*FLS; F_Z=WS_FLAG+32*FLS; F_U=WS_FLAG+48*FLS
WS_END=43*MB
P_X=0; P_WQKV=1; P_WPHI=2; P_WO=3; P_WIN=5; P_WSP=6; P_BSP=7; P_WOUT=8; P_OUT=9; P_DBG=10; P_WS=11
S_Q=92; S_CW=90
L_CW=131072
L_WPHI=147456; L_XS=L_WPHI+4096; L_CQ=L_XS+1024; L_HS=L_CQ+1024; L_CS=L_HS+2048; L_ZP=L_CS+1024; L_ZS=L_ZP+2048; L_END=L_ZS+1024
KNAME = "sequential_preLN__linear_kernel_hedgehog__mixer_gmlp__prompt_kernel"

def f2u(x): return struct.unpack("<I", struct.pack("<f", x))[0]
LOG2E = 1.4426950408889634
C0 = -2*LOG2E*0.7978845608028654; C1 = C0*0.044715
MF = "v_mfma_f32_32x32x16_bf16"
W = srd(SRD_W)

class Opt:
    stamps = 0
    pf = 1
    slp = 4
    gat = 18
    spq = 2
    z1fill = 1
    nfill = 2
    p1ph = 1
    own2 = 1
    p4ph = 0
    vprio = 0
    zsp = 2
    dsx = 0
    kfslp = 14
    pfd = 2
    qpf = 0
    pb1 = 40
    pb2 = 10
    pb3 = 24
    bu = 3
    p4loop = 0
    u1 = 3
    u3 = 3
    dg = 0
    bud = 8
    r1 = 0
    r2 = 0
    r3 = 0
    r4 = 0
    r5 = 0
    st4 = 5
    old = 7
    old2 = 7
    cyc = 0
    lead = 2
    fpos = 1
    l2 = 0
    r8 = 0
    kfe = 0
    kvr = 5
    probe = 0
    pwg = 83
    pfrom = 0
    cap = 0
    vmd = 1
    z1n = 2
    pa = 3
    pl = 2
    pc = 0
    kvslp = 16
OPT = Opt()

def unpack(k, lo, hi, src):
    k.e(f"v_lshlrev_b32 v{lo}, 16, v{src}\nv_and_b32 v{hi}, 0xffff0000, v{src}")
def cvt16(k, dst, src):
    for i in range(8): k.e(f"v_cvt_pk_bf16_f32 v{dst+i}, v{src+2*i}, v{src+2*i+1}")
def stamp(k, i):
    if OPT.stamps:
        k.e(f"s_memrealtime s[{S_ST}:{S_ST+1}]\ns_waitcnt lgkmcnt(0)\nv_writelane_b32 v255, s{S_ST}, {i}")
        if OPT.cyc: k.e(f"s_memtime s[{S_ST}:{S_ST+1}]\ns_waitcnt lgkmcnt(0)\nv_writelane_b32 v255, s{S_ST}, {i+32}")
def bars(k, n):
    if n <= 4:
        for _ in range(n): k.e("s_barrier")
    else:
        t = k.lab("bars")
        k.e(f"s_mov_b32 s{S_CNT}, {n}\n{t}:\ns_barrier\ns_sub_u32 s{S_CNT}, s{S_CNT}, 1\ns_cmp_lg_u32 s{S_CNT}, 0\ns_cbranch_scc1 {t}")

def check_flags(k, nflags, val, oklab):
    k.e(f"""v_cmp_le_u32 vcc, {val}, v8
    s_and_b32 s{S_T+11}, vcc_lo, {(1<<nflags)-1}
    s_cmp_eq_u32 s{S_T+11}, {(1<<nflags)-1}
    s_cbranch_scc1 {oklab}""")
def spin_tail(k, top):
    k.e(f"s_sleep {OPT.slp}\ns_sub_u32 s{S_T+10}, s{S_T+10}, 1\ns_cmp_lg_u32 s{S_T+10}, 0\ns_cbranch_scc1 {top}")
def poll(k, voff, nflags, srdn=SRD_W, val=1, pre=False):
    top = k.lab("poll"); done = k.lab("polld")
    k.e(f"s_cmp_lg_u32 s{S_LW}, 0\ns_cbranch_scc1 {done}")
    if pre:
        k.e("s_waitcnt vmcnt(0)")
        check_flags(k, nflags, val, done)
    k.e(f"s_mov_b32 s{S_T+10}, 0x40000\n{top}:")
    k.e(f"buffer_load_dword v8, v{voff}, {srd(srdn)}, 0 offen sc1\ns_waitcnt vmcnt(0)")
    check_flags(k, nflags, val, done)
    spin_tail(k, top)
    k.e(f"{done}:")
def sample(k, voff, srdn=SRD_W):
    sk = k.lab("nosm")
    k.e(f"s_cmp_lg_u32 s{S_LW}, 0\ns_cbranch_scc1 {sk}\nbuffer_load_dword v8, v{voff}, {srd(srdn)}, 0 offen sc1\n{sk}:")
def tagcheck(k, regs, t, ok):
    regs = list(regs)
    if len(regs) % 2 == 0:
        k.e(f"v_max_u32 v{t}, v{regs[0]}, v{regs[1]}"); rest = regs[2:]
    else:
        k.e(f"v_max3_u32 v{t}, v{regs[0]}, v{regs[1]}, v{regs[2]}"); rest = regs[3:]
    for i in range(0, len(rest), 2): k.e(f"v_max3_u32 v{t}, v{t}, v{rest[i]}, v{rest[i+1]}")
    k.e(f"v_cmp_eq_u32 vcc, -1, v{t}\ns_cmp_eq_u64 vcc, 0\ns_cbranch_scc1 {ok}")
def validated(k, gather, regs, t, pre=True):
    top = k.lab("vsp"); ok = k.lab("vok")
    if pre: tagcheck(k, regs, t, ok)
    k.e(f"s_mov_b32 s{S_T+10}, 0x40000\n{top}:")
    gather()
    k.e("s_waitcnt vmcnt(0)")
    tagcheck(k, regs, t, ok)
    spin_tail(k, top)
    k.e(f"{ok}:")

def cnt_addr(k, v, base, sline):
    k.e(f"""s_mul_i32 s{S_T}, s{sline}, {FLS}
    s_add_u32 s{S_T}, s{S_T}, {base}
    v_mov_b32 v{v}, s{S_T}""")
def set_flag(k, vset):
    sk = k.lab("nofl")
    k.e(f"""s_cmp_lg_u32 s{S_LW}, 0
    s_cbranch_scc1 {sk}
    s_mov_b64 exec, 1
    buffer_atomic_add v11, v{vset}, {W}, 0 offen sc1
    s_mov_b64 exec, -1
    {sk}:""")

def softmax_pm(k0, P, EP, EN, T, OP, ON, inject=(), wpos=(), wneg=()):
    L = S_K
    k = Kern(k0.name)
    k.e(f"v_max3_f32 v{T}, v{P}, v{P+1}, v{P+2}\nv_min3_f32 v{T+1}, v{P}, v{P+1}, v{P+2}")
    for i in range(3, 15, 2):
        k.e(f"v_max3_f32 v{T}, v{T}, v{P+i}, v{P+i+1}\nv_min3_f32 v{T+1}, v{T+1}, v{P+i}, v{P+i+1}")
    k.e(f"""v_max_f32 v{T}, v{T}, v{P+15}
    v_max_f32 v{T+1}, -v{T+1}, -v{P+15}
    s_nop 1
    v_permlane32_swap_b32 v{T}, v{T+1}
    v_max_f32 v{T}, v{T}, v{T+1}
    v_mul_f32 v{T}, {f2u(-LOG2E)}, v{T}
    v_mov_b32 v{T+1}, v{T}
    s_nop 1
    v_permlane32_swap_b32 v{T}, v{T+1}""")
    for i in range(8):
        k.e(f"v_pk_fma_f32 v[{EP+2*i}:{EP+2*i+1}], v[{P+2*i}:{P+2*i+1}], s[{L}:{L+1}], v[{T}:{T+1}] op_sel_hi:[1,1,0]")
        k.e(f"v_pk_fma_f32 v[{EN+2*i}:{EN+2*i+1}], v[{P+2*i}:{P+2*i+1}], s[{L}:{L+1}], v[{T}:{T+1}] op_sel:[0,0,1] op_sel_hi:[1,1,1] neg_lo:[0,1,0] neg_hi:[0,1,0]")
    for i in range(16):
        k.e(f"v_exp_f32 v{EP+i}, v{EP+i}\nv_exp_f32 v{EN+i}, v{EN+i}")
    k.e(f"v_pk_add_f32 v[{T}:{T+1}], v[{EP}:{EP+1}], v[{EP+2}:{EP+3}]\nv_pk_add_f32 v[{T+2}:{T+3}], v[{EN}:{EN+1}], v[{EN+2}:{EN+3}]")
    for i in range(2, 8):
        k.e(f"v_pk_add_f32 v[{T}:{T+1}], v[{T}:{T+1}], v[{EP+2*i}:{EP+2*i+1}]\nv_pk_add_f32 v[{T+2}:{T+3}], v[{T+2}:{T+3}], v[{EN+2*i}:{EN+2*i+1}]")
    k.e(f"""v_add_f32 v{T}, v{T}, v{T+1}
    v_add_f32 v{T+1}, v{T+2}, v{T+3}
    s_nop 1
    v_permlane32_swap_b32 v{T}, v{T+1}
    v_add_f32 v{T}, v{T}, v{T+1}
    v_rcp_f32 v{T}, v{T}
    s_nop 0
    v_mov_b32 v{T+1}, v{T}
    s_nop 1
    v_permlane32_swap_b32 v{T}, v{T+1}""")
    inj = list(inject); step = max(len(k.L)//(len(inj)+1), 1)
    for i, x in enumerate(k.L):
        k0.e(x)
        if inj and i % step == step-1: k0.e(inj.pop(0))
    for x in inj: k0.e(x)
    k = k0
    for E, O, sel, wr in ((EP, OP, "op_sel_hi:[1,0]", wpos), (EN, ON, "op_sel:[0,1] op_sel_hi:[1,1]", wneg)):
        for hh in range(2):
            for i in range(4*hh, 4*hh+4): k.e(f"v_pk_mul_f32 v[{E+2*i}:{E+2*i+1}], v[{E+2*i}:{E+2*i+1}], v[{T}:{T+1}] {sel}")
            for i in range(4*hh, 4*hh+4): k.e(f"v_cvt_pk_bf16_f32 v{O+i}, v{E+2*i}, v{E+2*i+1}")
            if wr: k.e(wr[hh])

def xhalf_sum2(k, a):
    k.e(f"""s_nop 1
    v_permlane32_swap_b32 v{a}, v{a+1}
    v_add_f32 v{a}, v{a}, v{a+1}
    v_mov_b32 v{a+1}, v{a}
    s_nop 1
    v_permlane32_swap_b32 v{a}, v{a+1}""")
def xswap_sum1(k, a, t, which=32):
    k.e(f"v_mov_b32 v{t}, v{a}\ns_nop 1\nv_permlane{which}_swap_b32 v{a}, v{t}\nv_add_f32 v{a}, v{a}, v{t}")
def xswap_sum(k, a, t, n, which):
    for i in range(n): k.e(f"v_mov_b32 v{t+i}, v{a+i}")
    k.e("s_nop 1")
    for i in range(n): k.e(f"v_permlane{which}_swap_b32 v{a+i}, v{t+i}")
    for i in range(n): k.e(f"v_add_f32 v{a+i}, v{a+i}, v{t+i}")
def ror_sum(k, a, n, sh):
    k.e("s_nop 1")
    for i in range(n): k.e(f"v_add_f32_dpp v{a+i}, v{a+i}, v{a+i} row_ror:{sh} row_mask:0xf bank_mask:0xf")
def acc_bf16(k, A, src, n, first, t, plain=False):
    for j in range(n):
        if first: unpack(k, A+2*j, A+2*j+1, src+j)
        elif plain:
            tt = t+2*(j & 1)
            unpack(k, tt, tt+1, src+j)
            k.e(f"v_add_f32 v{A+2*j}, v{A+2*j}, v{tt}\nv_add_f32 v{A+2*j+1}, v{A+2*j+1}, v{tt+1}")
        else:
            tt = t+2*(j & 1)
            unpack(k, tt, tt+1, src+j)
            k.e(f"v_pk_add_f32 v[{A+2*j}:{A+2*j+1}], v[{A+2*j}:{A+2*j+1}], v[{tt}:{tt+1}]")
def combine(k, P, n, cnt, d, t):
    k.e(f"v_pk_add_f32 v[{d}:{d+1}], v[{P}:{P+1}], v[{P+2}:{P+3}]")
    for i in range(2, n): k.e(f"v_pk_add_f32 v[{d}:{d+1}], v[{d}:{d+1}], v[{P+2*i}:{P+2*i+1}]")
    k.e(f"v_mul_f32 v{d}, {f2u(1.0/n)}, v{d}\nv_mov_b32 v{t+1}, 0")
    for i in range(n): k.e(f"v_sub_f32 v{t}, v{P+2*i}, v{d}\nv_fmac_f32 v{t+1}, v{t}, v{t}")
    k.e(f"v_fmac_f32 v{d+1}, {f2u(float(cnt))}, v{t+1}")
def finish_rstd(k, d, total):
    k.e(f"""v_mul_f32 v{d+1}, {f2u(1.0/total)}, v{d+1}
    v_add_f32 v{d+1}, {f2u(1e-5)}, v{d+1}
    v_rsq_f32 v{d+1}, v{d+1}
    s_nop 0
    v_mul_f32 v{d}, -v{d}, v{d+1}""")

ROTS = [(-1,0,2,-1), (-1,0,0,1), (-1,3,-1,-1), (-2,-2,-1,5), (0,0,0,0), (-2,-2,6,-2)]
def cfgs():
    c1 = Cfg(128,192,16,3,2,2,1, 2048, 6144, [(1,0),(2,0),(0,0)], True, False, orient=['T','N','T'], smode='rows', baseS=0, baseF=49152, kbase=OPT.spq, rot=ROTS[OPT.r1], pb=OPT.pb1, burst=OPT.bu, old=OPT.old)
    c2 = Cfg(128,64,16,4,4,1,2, 2048, 2048, [(0,0),(0,1)], False, False, smode='frag', auxS="sc1", rot=ROTS[OPT.r2], pb=OPT.pb2, cap2=True, old=OPT.old2)
    c3 = Cfg(128,128,16,4,2,2,1, 2048, 7168, [(0,0),(0,1)], False, True, smode='frag', auxS="sc1", slot0=2, rot=ROTS[OPT.r3], pb=OPT.pb3, burst=OPT.bu, old=OPT.old)
    c4 = Cfg(128,128,32,4,2,2,1, 4096, 0, [(0,0),(0,1)], False, True, smode='rows', fmode='blk', auxF="sc1", rot=(-1,0,0,1) if OPT.own2 == 1 else ROTS[OPT.r4], own2=OPT.own2, pb=OPT.pb3, burst=OPT.bu, old=OPT.old)
    c5 = Cfg(128,64,28,4,4,1,2, 3584, 2048, [(0,0),(0,1)], False, False, smode='frag', auxS="sc1", baseF=114688, slot0=2, rot=ROTS[OPT.r5], pb=OPT.pb2, cap2=True, old=OPT.old2)
    return c1, c2, c3, c4, c5
VS=16; VF=24; VS4=36; VF4=44
L_PHK=0; L_VX=32768; L_KV=49152; L_Z=57344

def tail_barriers(k, c, extra=0):
    for r in range(c.NS-1):
        k.e(f"s_waitcnt vmcnt({max(c.NS-2-r,0)*c.nI + extra})\ns_barrier")

def win_loads(k, tag):
    mk_srd(k, SRD_A, P_WO, 2*MB); mk_srd(k, SRD_B, P_WIN, 7*MB)
    n = 8
    k.e(f"""s_lshr_b32 s{S_T}, s2, 3
    s_lshl_b32 s{S_T+2}, s{S_T}, 2
    s_add_u32 s{S_T+2}, s{S_T+2}, s{S_Q}
    s_and_b32 s{S_T+3}, s2, 1""")
    if OPT.l2 & 1:
        k.e(f"""s_lshl_b32 s{S_T+1}, s{S_T+2}, 14
        s_lshl_b32 s{S_T+4}, s{S_T+3}, 10
        s_add_u32 s{S_T+1}, s{S_T+1}, s{S_T+4}
        v_lshrrev_b32 v3, 3, v1
        v_lshlrev_b32 v3, 11, v3
        v_and_b32 v4, 7, v1
        v_lshl_add_u32 v3, v4, 7, v3
        buffer_load_dword v250, v3, {srd(SRD_A)}, s{S_T+1} offen""")
    else:
        k.e(f"""s_lshl_b32 s{S_T+1}, s2, 2
        s_add_u32 s{S_T+1}, s{S_T+1}, s{S_Q}
        s_lshl_b32 s{S_T+1}, s{S_T+1}, 11
        v_lshlrev_b32 v3, 7, v1
        s_mov_b64 exec, 0xffff
        buffer_load_dword v250, v3, {srd(SRD_A)}, s{S_T+1} offen
        s_mov_b64 exec, -1""")
    n += 1
    k.e(f"""s_lshr_b32 s{S_T+4}, s{S_T}, 1
    s_cmp_ge_u32 s{S_T+4}, 7
    s_cselect_b32 s{S_T+5}, 7, 0
    s_add_u32 s{S_T+4}, s{S_T+4}, s{S_T+5}
    s_mul_i32 s{S_T+5}, s{S_T+3}, 7
    s_add_u32 s{S_CW}, s{S_T+4}, s{S_T+5}
    s_and_b32 s{S_T+5}, s2, 6
    s_and_b32 s{S_T+6}, s{S_T}, 1
    s_add_u32 s{S_CW+1}, s{S_T+5}, s{S_T+6}
    s_lshl_b32 s{S_T+5}, s{S_CW+1}, 2
    s_add_u32 s{S_T+5}, s{S_T+5}, s{S_Q}
    s_mul_i32 s{S_T+5}, s{S_T+5}, {32*7168}
    s_lshl_b32 s{S_T+4}, s{S_CW}, 8
    s_add_u32 s{S_T+5}, s{S_T+5}, s{S_T+4}
    s_cmp_ge_u32 s2, 224
    s_cselect_b32 s{S_T+5}, {7*MB}, s{S_T+5}
    v_lshrrev_b32 v3, 4, v1
    v_mul_u32_u24 v3, 7168, v3
    v_and_b32 v4, 15, v1
    v_lshl_add_u32 v5, v4, 4, v3""")
    for j in range(8):
        k.e(f"buffer_load_dwordx4 v[{192+4*j}:{195+4*j}], v5, {srd(SRD_B)}, s{S_T+5} offen\ns_add_u32 s{S_T+5}, s{S_T+5}, {4*7168}")
    if OPT.l2 & 2:
        k.e(f"""v_min_u32 v4, 13, v4
        v_lshl_add_u32 v3, v4, 7, v3
        s_mul_i32 s{S_T+1}, s{S_T+2}, {4*7168}
        s_mul_i32 s{S_T+4}, s{S_T+3}, 1792
        s_add_u32 s{S_T+1}, s{S_T+1}, s{S_T+4}
        s_add_u32 s{S_T+1}, s{S_T+1}, 3584
        buffer_load_dword v251, v3, {srd(SRD_B)}, s{S_T+1} offen
        s_add_u32 s{S_T+1}, s{S_T+1}, {512*7168}
        buffer_load_dword v252, v3, {srd(SRD_B)}, s{S_T+1} offen""")
        n += 2
    return n
def win_reduce(k):
    for j in range(8): acc_bf16(k, 224, 192+4*j, 4, j == 0, 232)
    xswap_sum(k, 224, 232, 8, 32)
    k.e(f"""s_lshl_b32 s{S_T}, s{S_Q}, 10
    s_add_u32 s{S_T}, s{S_T}, {L_CW}
    v_and_b32 v4, 31, v1
    v_lshl_add_u32 v4, v4, 5, s{S_T}
    ds_write_b128 v4, v[224:227]
    ds_write_b128 v4, v[228:231] offset:16
    s_waitcnt lgkmcnt(0)""")

def pf_loop(k, srdn, n, stride):
    t = k.lab("pf")
    k.e(f"s_mov_b32 s{S_CNT}, {n}\n{t}:")
    k.e(f"buffer_load_dword v3, v2, {srd(srdn)}, s{S_T+4} offen\ns_add_u32 s{S_T+4}, s{S_T+4}, {stride}")
    k.e(f"s_waitcnt vmcnt({OPT.pfd})\ns_sub_u32 s{S_CNT}, s{S_CNT}, 1\ns_cmp_lg_u32 s{S_CNT}, 0\ns_cbranch_scc1 {t}")

def helper_pf(k, role):
    nw = OPT.pf
    if not nw or role != 'c': return
    k.e(f"s_cmp_ge_u32 s{S_WAVE}, {nw}\ns_cbranch_scc1 L_nopf")
    mk_srd(k, SRD_A, P_WOUT, 1792*2048); mk_srd(k, SRD_B, P_WSP, 8*MB)
    k.e(f"""s_sub_u32 s{S_T}, s2, 224
    s_mul_i32 s{S_T}, s{S_T}, {nw}
    s_add_u32 s{S_T}, s{S_T}, s{S_WAVE}
    s_lshl_b32 s{S_T+4}, s{S_T}, 13
    v_lshlrev_b32 v2, 7, v1""")
    pf_loop(k, SRD_B, 32//nw, 8192*32*nw)
    stamp(k, 12)
    k.e(f"s_lshl_b32 s{S_T+4}, s{S_T}, 13")
    pf_loop(k, SRD_A, -(-14//nw), 8192*32*nw)
    k.e("s_waitcnt vmcnt(0)\nL_nopf:")

def inv_pos(k, rot):
    inv = [0]*4
    for u, d in enumerate(rot): inv[(u+d) & 3] = -d
    packed = sum(((d+8) & 15) << (4*u) for u, d in enumerate(inv))
    k.e(f"""s_sub_u32 s{S_T}, s{S_M}, s{S_PH}
    s_and_b32 s{S_T}, s{S_T}, 3
    s_lshl_b32 s{S_T}, s{S_T}, 2
    s_lshr_b32 s{S_T}, {packed}, s{S_T}
    s_and_b32 s{S_T}, s{S_T}, 15
    s_add_u32 s{S_T}, s{S_T}, s{S_M}
    s_sub_u32 s{S_T}, s{S_T}, 8
    s_and_b32 s{S_KB}, s{S_T}, 15""")

def loader(k):
    c1, c2, c3, c4, c5 = cfgs()
    k.e(f"s_lshl_b32 s{S_M0W}, s{S_LW}, 10")
    c = c1
    if OPT.p1ph:
        inv_pos(k, c.rot)
    else:
        k.e(f"s_mov_b32 s{S_KB}, s{S_M}\ns_mov_b32 s{S_PH}, s{S_N}")
    k.e(f"s_lshl_b32 s{S_T0}, s{S_N}, 7")
    loader_voff_S(k, c, VS)
    loader_voff_F(k, c, VF, S_T0, lambda P: P*2048)
    k.e("s_waitcnt lgkmcnt(0)")
    mk_srd(k, SRD_S, P_X, 4*MB); mk_srd(k, SRD_F, P_WQKV, 6*MB)
    stamp(k, 0)
    issue_first(k, c, VS, VF, "SF")
    mk_srd(k, SRD_W, P_WS, WS_END)
    steady(k, c, VS, VF, 16)
    n = win_loads(k, "l")
    tail_barriers(k, c, n)
    tile_map(k, 4, 8, 16)
    c = c2
    mk_srd(k, SRD_S, P_WS, 4*MB, WS_O); mk_srd(k, SRD_F, P_WO, 2*MB)
    k.e(f"s_lshl_b32 s{S_T0}, s{S_N}, 7")
    loader_voff_S(k, c, VS); loader_voff_F(k, c, VF, S_T0, lambda P: 0)
    bars(k, 1+OPT.fpos)
    issue_first(k, c, VS, VF, "F", pbarrier=False)
    bars(k, 4-OPT.fpos)
    k.e(f"s_waitcnt vmcnt({c.NS*c.nF})")
    win_reduce(k)
    k.e("s_barrier")
    stamp(k, 4)
    if OPT.lead & 1:
        issue_first(k, c, VS, VF, "S", t1=3)
        for w_ in (c.nS, c.nS+c.nF):
            k.e(f"s_waitcnt vmcnt({w_})\ns_barrier"); itstamp(k)
            issue(k, c, VS, VF, "S"); issue_noadv(k, c, VS, VF, "F")
        steady_skew(k, c, VS, VF)
        tw = [c.nS+c.nF, 0]
    else:
        issue_first(k, c, VS, VF, "S")
        after_split_prologue(k, c, VS, VF, c.nS)
        steady(k, c, VS, VF, c.T)
        k.e(f"s_waitcnt vmcnt({2*c2.nI})\ns_barrier")
        tw = [c.nI, 0]
    k.e("s_cmp_ge_u32 s2, 224\ns_cbranch_scc1 L_ld_helper")
    c = c3
    tile_map(k, 4, 7, 14)
    mk_srd(k, SRD_S, P_WS, 4*MB, WS_H); mk_srd(k, SRD_F, P_WIN, 7*MB)
    k.e(f"s_lshl_b32 s{S_T0}, s{S_N}, 8\ns_mov_b32 s{S_FB}, 3584")
    loader_voff_F(k, c, VF, S_T0, lambda P: P*128)
    if OPT.lead & 1:
        k.e(f"s_waitcnt vmcnt({tw[0]})\ns_barrier")
        issue_first(k, c, VS, VF, "F", fbase=True, pbarrier=False, t1=1)
        k.e(f"s_waitcnt vmcnt({c.nF})\ns_barrier")
        issue_first(k, c, VS, VF, "F", fbase=True, pbarrier=False, t0=1, t1=2)
        k.e("s_barrier")
    else:
        issue_first(k, c, VS, VF, "F", fbase=True, pbarrier=False, t1=1)
        k.e(f"s_waitcnt vmcnt({c2.nI+c.nF})\ns_barrier")
        issue_first(k, c, VS, VF, "F", fbase=True, pbarrier=False, t0=1, t1=2)
        k.e(f"s_waitcnt vmcnt({2*c.nF})\ns_barrier\ns_barrier")
    loader_voff_S(k, c, VS); loader_voff_S(k, c4, VS4); loader_voff_F(k, c4, VF4)
    bars(k, 2)
    stamp(k, 5)
    ITST[1] = 253
    if ITST[0]: k.e("s_mov_b32 s97, 0")
    issue_first(k, c, VS, VF, "S", t1=2)
    if OPT.lead & 2:
        issue(k, c, VS, VF, "SF", True)
        steady(k, c, VS, VF, 16, fbase=True, wait=c.nI)
        k.e(f"s_mov_b32 s{S_TAU}, 0\ns_mov_b32 s{S_FB}, 0")
        steady(k, c, VS, VF, 3, fbase=True, wait=c.nI)
        issue(k, c, VS, VF, "SF", True)
        steady(k, c, VS, VF, 16, fbase=True)
    else:
        issue_first(k, c, VS, VF, "SF", fbase=True, pbarrier=False, t0=2)
        steady(k, c, VS, VF, 16, fbase=True)
        k.e(f"s_mov_b32 s{S_TAU}, 0\ns_mov_b32 s{S_FB}, 0")
        steady(k, c, VS, VF, 16, fbase=True)
    c = c4
    mk_srd(k, SRD_S, P_WSP, 8*MB); mk_srd(k, SRD_F, P_WS, 7*MB, WS_Z2N)
    k.e(f"s_mov_b32 s{S_TAU}, 0\ns_lshl_b32 s{S_KB}, s{S_M}, 1")
    if OPT.own2 == 1 and not OPT.p4ph: k.e(f"s_mov_b32 s{S_PH}, s{S_N}")
    if OPT.own2 == 2: inv_pos(k, c.rot)
    steady(k, c, VS4, VF4, 32)
    def p5_setup():
        tile_map(k, 4, 8, 16)
        mk_srd(k, SRD_S, P_WS, 7*MB, WS_U); mk_srd(k, SRD_F, P_WOUT, 1792*2048)
        k.e(f"s_lshl_b32 s{S_T0}, s{S_N}, 7")
        loader_voff_S(k, c5, VS); loader_voff_F(k, c5, VF, S_T0, lambda P: 0)
        issue_first(k, c5, VS, VF, "F", pbarrier=False, t1=2)
    k.e(f"s_waitcnt vmcnt({2*c.nI})\ns_barrier")
    p5_setup()
    k.e(f"s_waitcnt vmcnt({c.nI+2*c5.nF})\ns_barrier\ns_waitcnt vmcnt({2*c5.nF})\ns_barrier")
    bars(k, 2)
    k.e("L_ld_p5:")
    ITST[1] = 254
    if ITST[0]: k.e("s_mov_b32 s97, 32")
    c = c5
    k.e("s_barrier")
    stamp(k, 9)
    issue_first(k, c, VS, VF, "S", t1=2)
    if OPT.lead & 4:
        issue_noadv(k, c, VS, VF, "F"); issue(k, c, VS, VF, "S"); issue_noadv(k, c, VS, VF, "F")
        steady_skew(k, c, VS, VF)
        k.e(f"s_waitcnt vmcnt({c.nS+c.nF})\ns_barrier\ns_waitcnt vmcnt(0)\ns_barrier")
    else:
        issue_first(k, c, VS, VF, "SF", pbarrier=False, t0=2)
        steady(k, c, VS, VF, c.T)
        tail_barriers(k, c)
    k.e("s_barrier")
    k.e("s_branch L_fin")
    k.e("L_ld_helper:")
    k.e(f"s_waitcnt vmcnt({tw[0]})\ns_barrier\ns_waitcnt vmcnt(0)\ns_barrier")
    bars(k, 3)
    helper_pf(k, 'l')
    p5_setup()
    k.e("s_branch L_ld_p5")

def spread(k, fn, nbar):
    t = Kern(k.name); t.uid = k.uid
    fn(t); k.uid = t.uid
    L = [x.strip() for x in t.L]
    assert not any(x.endswith(":") for x in L)
    wt = lambda x: 10 if x.startswith("buffer_") else (1 if x.startswith(("v_", "ds_")) else 0.25)
    tot = sum(map(wt, L)); acc = 0; nb = 0
    low = OPT.vprio and sum(x.startswith("v_") for x in L) > 20
    if low: k.e("s_setprio 0")
    for x in L:
        k.e(x); acc += wt(x)
        if nb < nbar-1 and acc >= tot*(nb+1)/nbar - 1e-9:
            k.e("s_barrier"); nb += 1
    if low: k.e(f"s_setprio {OPT.pa}")
    while nb < nbar:
        k.e("s_barrier"); nb += 1

_carry = []
def merge(k, vm, va, nbar, share, hook=None):
    def cap(fns):
        t = Kern(k.name); t.uid = k.uid
        for f in fns: f(t)
        k.uid = t.uid
        return [x.strip() for x in t.L]
    M = cap(vm); _carry.extend(cap(va))
    nv = len(_carry) if share >= 1 else int(len(_carry)*share)
    V = _carry[:nv]; del _carry[:nv]
    nm = sum(x.startswith("buffer_") for x in M)
    mi = 0; seen = 0; full = True
    for b in range(nbar):
        tgt = nm*(b+1)/nbar
        while mi < len(M) and (seen < tgt or not full or b == nbar-1):
            x = M[mi]; k.e(x); mi += 1
            if x.startswith("buffer_"): seen += 1
            if "exec" in x.split(",")[0]: full = x.replace(" ", "") == "s_mov_b64exec,-1"
        for x in V[len(V)*b//nbar: len(V)*(b+1)//nbar]: k.e(x)
        k.e("s_barrier")
        if hook: hook(b)

def combine_half(k, P, stride, n, ntot, cnt, d, t):
    k.e(f"v_add_f32 v{d}, v{P}, v{P+stride}\nv_add_f32 v{d+1}, v{P+1}, v{P+stride+1}")
    for i in range(2, n): k.e(f"v_add_f32 v{d}, v{d}, v{P+stride*i}\nv_add_f32 v{d+1}, v{d+1}, v{P+stride*i+1}")
    if ntot != n: xswap_sum1(k, d, t)
    k.e(f"v_mul_f32 v{d}, {f2u(1.0/ntot)}, v{d}\nv_sub_f32 v{t}, v{P}, v{d}\nv_mul_f32 v{t+1}, v{t}, v{t}")
    for i in range(1, n): k.e(f"v_sub_f32 v{t}, v{P+stride*i}, v{d}\nv_fmac_f32 v{t+1}, v{t}, v{t}")
    k.e(f"v_fmac_f32 v{d+1}, {f2u(float(cnt))}, v{t+1}")
    if ntot != n: xswap_sum1(k, d+1, t)

def aux(k):
    c1, c2, c3, c4, c5 = cfgs()
    a = S_LW
    k.e(f"""s_lshl_b32 s{S_T}, s{S_M}, 7
    s_lshl_b32 s{S_T+1}, s{S_N}, 3
    s_add_u32 s{S_T}, s{S_T}, s{S_T+1}
    s_lshl_b32 s{S_T+1}, s{a}, 2
    s_add_u32 s{S_T}, s{S_T}, s{S_T+1}
    v_lshrrev_b32 v14, 4, v1
    v_add_u32 v14, s{S_T}, v14
    v_and_b32 v3, 15, v1
    v_lshlrev_b32 v3, 4, v3
    v_lshl_add_u32 v3, v14, 11, v3
    s_waitcnt lgkmcnt(0)""")
    mk_srd(k, SRD_B, P_X, 4*MB)
    for j in range(8): k.e(f"buffer_load_dwordx4 v[{64+4*j}:{67+4*j}], v3, {srd(SRD_B)}, 0 offen offset:{256*j}")
    mk_srd(k, SRD_W, P_WS, WS_END); mk_srd(k, SRD_A, P_WPHI, 65536); mk_srd(k, SRD_D, P_DBG, 256)
    stamp(k, 0)
    q = OPT.spq
    k.e(f"""v_lshlrev_b32 v2, 4, v1
    v_mov_b32 v11, 1
    v_mov_b32 v44, -1
    v_mov_b32 v45, -1
    v_mov_b32 v46, -1
    v_mov_b32 v47, -1
    v_lshrrev_b32 v4, 5, v1
    v_lshlrev_b32 v4, 13, v4
    v_and_b32 v5, 31, v1
    v_lshl_add_u32 v4, v5, 4, v4
    v_bfe_u32 v12, v1, 2, 2
    v_min_u32 v12, 2, v12
    v_lshlrev_b32 v12, 13, v12
    v_lshrrev_b32 v5, 4, v1
    v_lshl_add_u32 v12, v5, 11, v12
    v_and_b32 v5, 3, v1
    v_lshl_add_u32 v12, v5, 4, v12
    v_add_u32 v12, {c1.baseF + (q % 3)*c1.slotF}, v12
    v_bfe_u32 v13, v1, 2, 2
    v_lshl_add_u32 v12, v13, 7, v12
    v_lshrrev_b32 v13, 1, v13
    v_xor_b32 v13, s{a}, v13
    v_lshl_add_u32 v24, v13, 6, v12
    v_xor_b32 v25, 128, v24
    v_xor_b32 v26, 320, v24
    v_xor_b32 v27, 448, v24
    v_lshlrev_b32 v14, 2, v14""")
    X = 128
    for j in range(8):
        k.e(f"s_waitcnt vmcnt({7-j})")
        for i in range(4*j, 4*j+4):
            unpack(k, X+2*i, X+2*i+1, 64+i)
            t = 32+2*(i & 1)
            if i >= 2: k.e(f"v_pk_add_f32 v[{t}:{t+1}], v[{X+2*i-4 if i < 4 else t}:{X+2*i-3 if i < 4 else t+1}], v[{X+2*i}:{X+2*i+1}]")
    stamp(k, 10)
    k.e("s_barrier")
    def init(k):
        k.e(f"""s_mov_b32 s{S_T+14}, {WS_XS}
        s_mov_b32 s{S_T+15}, {WS_XS+8192}
        s_mov_b32 exec_lo, 0x10001
        s_mov_b32 exec_hi, 0x10001
        buffer_store_dword v44, v14, {W}, s{S_T+14} offen sc1
        buffer_store_dword v44, v14, {W}, s{S_T+15} offen sc1
        s_mov_b64 exec, -1
        s_lshl_b32 s{S_T}, s{S_N}, 17
        s_lshl_b32 s{S_T+1}, s{S_M}, 9
        s_add_u32 s{S_T}, s{S_T}, s{S_T+1}
        s_lshl_b32 s{S_T+1}, s{a}, 16
        s_add_u32 s{S_T}, s{S_T}, s{S_T+1}
        s_add_u32 s{S_T}, s{S_T}, {WS_KVP}""")
        for x in range(4): k.e(f"buffer_store_dwordx4 v[44:47], v4, {W}, s{S_T} offen sc1\ns_add_u32 s{S_T}, s{S_T}, 16384")
        k.e(f"""s_lshl_b32 s{S_T+12}, s{S_N}, 4
        s_add_u32 s{S_T+12}, s{S_T+12}, s{S_M}
        s_lshl_b32 s{S_T+12}, s{S_T+12}, 1
        s_add_u32 s{S_T+12}, s{S_T+12}, s{a}
        s_mul_i32 s{S_T+12}, s{S_T+12}, 384
        s_add_u32 s{S_T+12}, s{S_T+12}, {WS_CQP}
        s_mov_b64 exec, 0xffffff
        buffer_store_dwordx4 v[44:47], v2, {W}, s{S_T+12} offen sc1
        s_lshl_b32 s{S_T}, s2, 10
        s_add_u32 s{S_T}, s{S_T}, {WS_HST}
        s_mul_i32 s{S_T+1}, s2, 528
        s_add_u32 s{S_T+1}, s{S_T+1}, {WS_KVF}
        s_mul_i32 s{S_T+2}, s2, 896
        s_add_u32 s{S_T+3}, s{S_T+2}, {WS_CSP}
        s_add_u32 s{S_T+2}, s{S_T+2}, {WS_ZST}
        s_mov_b32 s{S_T+4}, 0xffffff
        s_cmp_eq_u32 s{a}, 0
        s_cselect_b32 s{S_T}, s{S_T}, s{S_T+2}
        s_cselect_b32 s{S_T+1}, s{S_T+1}, s{S_T+3}
        s_cselect_b32 s{S_T+5}, -1, s{S_T+4}
        s_cselect_b32 s{S_T+6}, 1, s{S_T+4}
        s_mov_b32 exec_lo, -1
        s_mov_b32 exec_hi, s{S_T+5}
        buffer_store_dwordx4 v[44:47], v2, {W}, s{S_T} offen sc1
        s_mov_b32 exec_hi, s{S_T+6}
        buffer_store_dwordx4 v[44:47], v2, {W}, s{S_T+1} offen sc1
        s_mov_b64 exec, -1
        s_mul_i32 s{S_T}, s2, {FLS}
        s_add_u32 s{S_T}, s{S_T}, {WS_FLAG}
        s_cmp_lt_u32 s2, 64
        s_cselect_b32 s{S_T}, s{S_T}, {WS_END}
        s_lshl_b32 s{S_T+1}, s2, 8
        s_add_u32 s{S_T+1}, s{S_T+1}, {WS_ZP}
        s_cmp_eq_u32 s{a}, 0
        s_cselect_b32 s{S_T}, s{S_T}, s{S_T+1}
        s_cselect_b32 s{S_T+1}, 0, -1
        v_mov_b32 v48, s{S_T+1}
        v_lshlrev_b32 v5, 2, v1
        buffer_store_dword v48, v5, {W}, s{S_T} offen sc1""")
    def xs2(k):
        k.e("v_add_f32 v32, v32, v34\nv_add_f32 v33, v33, v35\nv_add_f32 v32, v32, v33")
        for sh in (8, 4, 2, 1): ror_sum(k, 32, 1, sh)
        k.e(f"v_mul_f32 v32, {f2u(1/1024.)}, v32")
        for i in range(64):
            d = 40+(i & 3); t = 34+(i & 3)
            k.e(f"v_sub_f32 v{d}, v{X+i}, v32")
            k.e(f"v_mul_f32 v{t}, v{d}, v{d}" if i < 4 else f"v_fmac_f32 v{t}, v{d}, v{d}")
        k.e("v_add_f32 v34, v34, v35\nv_add_f32 v36, v36, v37\nv_add_f32 v33, v34, v36")
        for sh in (8, 4, 2, 1): ror_sum(k, 33, 1, sh)
        finish_rstd(k, 32, 1024)
    def qld(k):
        k.e(f"""s_lshl_b32 s{S_T}, s{S_N}, 12
        s_lshl_b32 s{S_T+1}, s{a}, 11
        s_add_u32 s{S_T}, s{S_T}, s{S_T+1}
        s_add_u32 m0, s{S_T+1}, {L_WPHI}
        s_nop 0
        buffer_load_dwordx4 v2, {srd(SRD_A)}, s{S_T} offen lds
        buffer_load_dwordx4 v2, {srd(SRD_A)}, s{S_T} offen offset:1024 lds""")
    def sprd(b):
        if b == q-1:
            for j in range(16):
                k.e(f"ds_read_b128 v[{64+4*j}:{67+4*j}], v{24 + (j&3)} offset:{(j>>2)*512}")
                if j == 7:
                    k.e("s_waitcnt lgkmcnt(4)")
                    for r_ in range(24, 28): k.e(f"v_xor_b32 v{r_}, 32, v{r_}")
            k.e("s_waitcnt lgkmcnt(0)")
    assert 0 <= q <= 5
    sprd(-1)
    if OPT.qpf:
        mk_srd(k, SRD_B, P_WQKV, 6*MB)
        k.e(f"""s_lshl_b32 s{S_T}, s2, 1
        s_add_u32 s{S_T}, s{S_T}, s{a}
        s_mul_i32 s{S_T}, s{S_T}, {96*128}
        v_lshlrev_b32 v3, 7, v1
        buffer_load_dword v250, v3, {srd(SRD_B)}, s{S_T} offen
        s_add_u32 s{S_T}, s{S_T}, 4096
        buffer_load_dword v251, v3, {srd(SRD_B)}, s{S_T} offen""")
    merge(k, [init], [xs2], 2, 0.3, hook=sprd)
    merge(k, [], [], 1, 0.4)
    sprd(2)
    merge(k, [], [], 1, 0.67)
    k.L.insert(len(k.L)-1, "    s_waitcnt vmcnt(0)")
    k.e(f"""s_cmp_lg_u32 s{a}, 0
    s_cbranch_scc1 L_a_noarr
    s_and_b32 s{S_T}, s2, 7
    s_lshl_b32 s{S_T}, s{S_T}, 5
    v_mov_b32 v4, s{S_T}
    s_mov_b64 exec, 1
    buffer_atomic_add v11, v4, {srd(SRD_D)}, 0 offen sc1
    s_mov_b64 exec, -1
    L_a_noarr:""")
    sprd(3)
    merge(k, [qld], [], 1, 1.0)
    k.e(f"""s_mov_b32 exec_lo, 0x10001
    s_mov_b32 exec_hi, 0x10001
    buffer_store_dword v32, v14, {W}, s{S_T+14} offen sc1
    buffer_store_dword v33, v14, {W}, s{S_T+15} offen sc1
    s_mov_b64 exec, -1""")
    sprd(4)
    k.e("s_barrier")
    A = 128; Q = 136
    def csum(k):
        for j in range(16): acc_bf16(k, A, 64+4*j, 4, j == 0, 48, plain=True)
        xswap_sum(k, A, 160, 8, 16); xswap_sum(k, A, 160, 8, 32)
        k.e(f"""v_lshlrev_b32 v4, 5, v1
        s_mov_b64 exec, 0xfff
        buffer_store_dwordx4 v[{A}:{A+3}], v4, {W}, s{S_T+12} offen sc1
        buffer_store_dwordx4 v[{A+4}:{A+7}], v4, {W}, s{S_T+12} offen offset:16 sc1
        s_mov_b64 exec, -1
        v_lshlrev_b32 v10, 5, v1""")
    spread(k, csum, 5)
    sample(k, 10, SRD_D)
    k.e(f"""s_lshl_b32 s{S_T+14}, s{a}, 13
    s_lshl_b32 s{S_T+1}, s{S_M}, 9
    s_add_u32 s{S_T+14}, s{S_T+14}, s{S_T+1}
    s_add_u32 s{S_T+14}, s{S_T+14}, {WS_XS}
    s_mul_i32 s{S_T+12}, s{S_N}, {16*768}
    s_mul_i32 s{S_T+13}, s{a}, 384
    s_add_u32 s{S_T+12}, s{S_T+12}, s{S_T+13}
    s_add_u32 s{S_T+12}, s{S_T+12}, {WS_CQP}
    v_and_b32 v12, 31, v1
    v_min_u32 v12, 23, v12
    v_lshlrev_b32 v12, 4, v12
    v_lshrrev_b32 v13, 5, v1
    v_mul_u32_u24 v13, 768, v13
    v_add_u32 v13, v13, v12
    v_lshlrev_b32 v5, 3, v1""")
    k.e("s_barrier")
    poll(k, 10, 8, SRD_D, 32, pre=True)
    stamp(k, 1)
    k.e("s_barrier")
    def cqg():
        k.e(f"s_mov_b32 s{S_T}, s{S_T+12}")
        for i in range(8):
            k.e(f"buffer_load_dwordx4 v[{64+4*i}:{67+4*i}], v13, {W}, s{S_T} offen offset:{(i&1)*1536} sc1")
            if i & 1: k.e(f"s_add_u32 s{S_T}, s{S_T}, 3072")
        k.e(f"buffer_load_dwordx2 v[96:97], v5, {W}, s{S_T+14} offen sc1")
    cqg()
    k.e("s_barrier")
    k.e("s_waitcnt vmcnt(0)")
    validated(k, cqg, range(64, 98), 3)
    for i in range(1, 8):
        for j in range(4): k.e(f"v_add_f32 v{64+j}, v{64+j}, v{64+4*i+j}")
    k.e("s_barrier")
    xswap_sum(k, 64, 68, 4, 32)
    k.e(f"""s_add_u32 s{S_T+13}, s{S_T+13}, {L_CQ}
    v_add_u32 v3, s{S_T+13}, v12
    ds_write_b128 v3, v[64:67]
    s_lshl_b32 s{S_T}, s{a}, 9
    s_add_u32 s{S_T}, s{S_T}, {L_XS}
    v_add_u32 v5, s{S_T}, v5
    ds_write_b64 v5, v[96:97]
    s_waitcnt lgkmcnt(0)
    s_barrier""")
    stamp(k, 2)
    win_loads(k, "a")
    cnt_addr(k, 9, F_O, S_M)
    k.e(f"s_cmp_lg_u32 s{a}, 0\ns_cbranch_scc1 L_a_z")
    k.e(f"""s_lshl_b32 s{S_T+12}, s{S_N}, 17
    s_lshl_b32 s{S_T+1}, s{S_M}, 13
    s_add_u32 s{S_T+12}, s{S_T+12}, s{S_T+1}
    s_add_u32 s{S_T+12}, s{S_T+12}, {WS_KVP}
    s_add_u32 s{S_T+13}, s{S_T+12}, 4096
    s_lshl_b32 s{S_T+14}, s{S_N}, 13
    s_lshl_b32 s{S_T+1}, s{S_M}, 9
    s_add_u32 s{S_T+14}, s{S_T+14}, s{S_T+1}
    s_add_u32 s{S_T+14}, s{S_T+14}, {WS_KVF}""")
    bars(k, 2)
    if OPT.kvslp: k.e(f"s_sleep {OPT.kvslp}")
    def kvg(k=k):
        for i in range(8): k.e(f"buffer_load_dwordx4 v[{64+4*i}:{67+4*i}], v2, {W}, s{S_T+12+(i>>2)} offen offset:{(i&3)*1024} sc1")
    validated(k, kvg, range(64, 96), 3, pre=False)
    stamp(k, 3)
    for i in range(8): acc_bf16(k, 128, 64+4*i, 4, i == 0, 48)
    xswap_sum(k, 128, 160, 8, 32)
    for i in range(4): k.e(f"v_cvt_pk_bf16_f32 v{52+i}, v{128+2*i}, v{129+2*i}")
    k.e(f"s_mov_b32 exec_hi, 0\nbuffer_store_dwordx4 v[52:55], v2, {W}, s{S_T+14} offen sc1\ns_mov_b32 exec_hi, -1")
    stamp(k, 4)
    if OPT.kfslp: k.e(f"s_sleep {OPT.kfslp}")
    k.e("s_branch L_a_kvd\nL_a_z:")
    k.e(f"""s_lshl_b32 s{S_T+12}, s{S_N}, 4
    s_add_u32 s{S_T+12}, s{S_T+12}, s{S_M}
    s_lshl_b32 s{S_T+14}, s{S_T+12}, 4
    s_add_u32 s{S_T+14}, s{S_T+14}, {WS_ZF}
    s_lshl_b32 s{S_T+12}, s{S_T+12}, 8
    s_add_u32 s{S_T+12}, s{S_T+12}, {WS_ZP}
    v_and_b32 v13, 15, v1
    v_lshlrev_b32 v13, 4, v13""")
    bars(k, 2)
    if OPT.kvslp: k.e(f"s_sleep {OPT.kvslp}")
    def zg(): k.e(f"buffer_load_dwordx4 v[64:67], v13, {W}, s{S_T+12} offen sc1")
    validated(k, zg, range(64, 68), 3, pre=False)
    stamp(k, 3)
    acc_bf16(k, 128, 64, 4, True, 48)
    for sh in (8, 4, 2, 1): ror_sum(k, 128, 8, sh)
    for i in range(4): k.e(f"v_cvt_pk_bf16_f32 v{52+i}, v{128+2*i}, v{129+2*i}")
    k.e(f"s_mov_b64 exec, 1\nbuffer_store_dwordx4 v[52:55], v13, {W}, s{S_T+14} offen sc1\ns_mov_b64 exec, -1")
    stamp(k, 4)
    if OPT.kfslp: k.e(f"s_sleep {OPT.kfslp+6}")
    k.e("L_a_kvd:")
    k.e(f"""s_lshl_b32 s{S_T}, s{S_N}, 1
    s_add_u32 s{S_T}, s{S_T}, s{a}
    s_lshl_b32 s{S_T+12}, s{S_T}, 12
    s_add_u32 s{S_T+12}, s{S_T+12}, {WS_KVF}
    s_lshl_b32 s{S_T+13}, s{S_T}, 7
    s_add_u32 s{S_T+13}, s{S_T+13}, {WS_ZF}
    v_and_b32 v13, 7, v1
    v_lshlrev_b32 v13, 4, v13
    s_lshl_b32 s{S_T}, s{a}, 12
    v_add_u32 v4, s{S_T}, v2
    s_lshl_b32 s{S_T}, s{a}, 7
    v_add_u32 v5, s{S_T}, v13""")
    def kfg():
        for i in range(4): k.e(f"buffer_load_dwordx4 v[{64+4*i}:{67+4*i}], v2, {W}, s{S_T+12} offen offset:{i*1024} sc1")
        k.e(f"buffer_load_dwordx4 v[80:83], v13, {W}, s{S_T+13} offen sc1")
    validated(k, kfg, range(64, 84), 3, pre=False)
    for i in range(4): k.e(f"ds_write_b128 v4, v[{64+4*i}:{67+4*i}] offset:{L_KV+i*1024}")
    k.e(f"ds_write_b128 v5, v[80:83] offset:{L_Z}\ns_waitcnt lgkmcnt(0)\ns_barrier")
    tile_map(k, 4, 8, 16)
    cnt_addr(k, 10, F_O, S_M)
    k.e("s_barrier")
    set_flag(k, 9)
    win_reduce(k)
    poll(k, 10, 1, val=16)
    k.e("s_barrier")
    k.e(f"""s_cmp_eq_u32 s{a}, 0
    s_cbranch_scc1 L_a_nocw
    s_cmp_ge_u32 s2, 224
    s_cbranch_scc1 L_a_nocw
    v_lshlrev_b32 v4, 3, v1
    v_add_u32 v3, {L_CW}, v4""")
    for i in range(8): k.e(f"ds_read_b64 v[{192+2*i}:{193+2*i}], v3 offset:{i*512}")
    k.e(f"""s_mul_i32 s{S_T}, s{S_CW+1}, 14336
    s_lshl_b32 s{S_T+1}, s{S_CW}, 9
    s_add_u32 s{S_T}, s{S_T}, s{S_T+1}
    s_add_u32 s{S_T}, s{S_T}, {WS_CSP}
    s_waitcnt lgkmcnt(0)""")
    for i in range(1, 8): k.e(f"v_pk_add_f32 v[192:193], v[192:193], v[{192+2*i}:{193+2*i}]")
    k.e(f"buffer_store_dwordx2 v[192:193], v4, {W}, s{S_T} offen sc1\nL_a_nocw:")
    cnt_addr(k, 9, F_H, S_M)
    tile_map(k, 4, 7, 14)
    k.e(f"""v_and_b32 v14, 31, v1
    v_lshlrev_b32 v14, 4, v14
    v_lshrrev_b32 v15, 5, v1
    v_mul_u32_u24 v13, {1792*4}, v15
    v_add_u32 v13, v13, v14
    s_lshl_b32 s{S_T}, s{a}, 9
    v_add_u32 v14, s{S_T}, v14
    s_lshl_b32 s{S_T+13}, s{S_N}, 9
    s_add_u32 s{S_T+13}, s{S_T+13}, {WS_CSP}
    s_lshl_b32 s{S_T+12}, s{S_M}, 10
    s_add_u32 s{S_T+12}, s{S_T+12}, {WS_HST}""")
    bars(k, 18)
    set_flag(k, 9)
    k.e("s_cmp_ge_u32 s2, 224\ns_cbranch_scc1 L_a_helper")
    poll(k, 9, 1, val=16)
    k.e(f"s_cmp_eq_u32 s{a}, 0\ns_cbranch_scc1 L_a_nocs")
    def cg():
        k.e(f"s_mov_b32 s{S_T}, s{S_T+13}")
        for i in range(8): k.e(f"buffer_load_dwordx4 v[{64+4*i}:{67+4*i}], v13, {W}, s{S_T} offen sc1\ns_add_u32 s{S_T}, s{S_T}, 14336")
    validated(k, cg, range(64, 96), 3, pre=False)
    for i in range(1, 8): k.e(f"v_pk_add_f32 v[64:65], v[64:65], v[{64+4*i}:{65+4*i}]\nv_pk_add_f32 v[66:67], v[66:67], v[{66+4*i}:{67+4*i}]")
    k.e(f"v_add_u32 v3, {L_CS}, v2\nds_write_b128 v3, v[64:67]\nL_a_nocs:")
    k.e("s_barrier")
    k.e(f"v_lshl_add_u32 v13, v15, 17, v14")
    def hg(k=k):
        k.e(f"s_mov_b32 s{S_T}, s{S_T+12}")
        for i in range(8): k.e(f"buffer_load_dwordx4 v[{64+4*i}:{67+4*i}], v13, {W}, s{S_T} offen sc1\ns_add_u32 s{S_T}, s{S_T}, 16384")
    bars(k, 3)
    spread(k, hg, 4)
    k.e("s_barrier\ns_waitcnt vmcnt(0)")
    validated(k, hg, range(65, 96, 2), 3)
    def hfin(k):
        for r in range(2):
            d = 4+4*r if r == 0 else 16
            combine_half(k, 64+2*r, 4, 8, 16, 64, d, 20)
            k.e(f"""v_mul_f32 v{d+1}, {f2u(1.0/1024)}, v{d+1}
            v_add_f32 v{d+1}, {f2u(1e-5)}, v{d+1}
            v_rsq_f32 v20, v{d+1}
            v_sqrt_f32 v{d+3}, v{d+1}
            v_sub_f32 v{d}, 0, v{d}
            v_mul_f32 v{d+1}, {f2u(C0)}, v20
            v_mul_f32 v{d+2}, v20, v20
            v_mul_f32 v{d+2}, v{d+2}, v20
            v_mul_f32 v{d+2}, {f2u(C1)}, v{d+2}""")
        k.e(f"""v_lshlrev_b32 v3, 1, v14
        s_lshl_b32 s{S_T+14}, s2, 11
        s_add_u32 s{S_T+14}, s{S_T+14}, {WS_HC}
        s_mov_b32 exec_hi, 0
        buffer_store_dwordx4 v[4:7], v3, {W}, s{S_T+14} offen sc1
        buffer_store_dwordx4 v[16:19], v3, {W}, s{S_T+14} offen offset:16 sc1
        s_mov_b32 exec_hi, -1
        s_lshl_b32 s{S_T}, s{a}, 10
        s_add_u32 s{S_T+14}, s{S_T+14}, s{S_T}
        s_add_u32 m0, s{S_T}, {L_HS}
        s_mul_i32 s{S_T+12}, s{S_M}, {14*1024}
        s_add_u32 s{S_T+12}, s{S_T+12}, {WS_ZST}
        s_lshl_b32 s{S_T+13}, s{S_N}, 10
        s_add_u32 s{S_T+13}, s{S_T+13}, s{S_T+12}
        s_lshl_b32 s{S_T}, s{a}, 9
        v_lshlrev_b32 v22, 3, v1
        v_add_u32 v22, s{S_T}, v22
        v_add_u32 v12, {L_ZP}, v22
        v_mul_u32_u24 v13, {7*1024}, v15
        v_add_u32 v13, v13, v14""")
        cnt_addr(k, 10, F_Z, S_N); cnt_addr(k, 9, F_U, S_M)
    spread(k, hfin, 4)
    k.e(f"s_barrier\ns_barrier\ns_waitcnt vmcnt(0) lgkmcnt(0)\nbuffer_load_dwordx4 v2, {W}, s{S_T+14} offen sc1 lds")
    k.e("s_barrier\ns_barrier\ns_waitcnt vmcnt(0)")
    bars(k, 2)
    k.e(f"""ds_read_b64 v[64:65], v12
    ds_read_b64 v[66:67], v12 offset:1024
    s_waitcnt lgkmcnt(0)
    v_add_f32 v4, v64, v66
    v_mul_f32 v4, 0.5, v4
    v_sub_f32 v6, v64, v66
    v_mul_f32 v6, v6, v6
    v_add_f32 v5, v65, v67
    v_fmac_f32 v5, {f2u(32.0)}, v6
    buffer_store_dwordx2 v[4:5], v22, {W}, s{S_T+13} offen sc1""")
    stamp(k, 6)
    g = OPT.gat
    bars(k, g-16)
    def zsg():
        k.e(f"s_add_u32 s{S_T}, s{S_T+12}, 4096")
        for i in range(7):
            k.e(f"buffer_load_dwordx4 v[{64+4*i}:{67+4*i}], v13, {W}, s{S_T+12 if i < 4 else S_T} offen offset:{(i&3)*1024} sc1")
    zsg()
    k.e("s_barrier\ns_waitcnt vmcnt(0)")
    validated(k, zsg, range(65, 92, 2), 3)
    stamp(k, 7)
    def zfin(k):
        for r in range(2):
            combine_half(k, 64+2*r, 4, 7, 14, 128, 4+2*r, 20); finish_rstd(k, 4+2*r, 1792)
        k.e(f"v_add_u32 v3, {L_ZS}, v14")
    spread(k, zfin, OPT.zsp-1)
    k.e("ds_write_b128 v3, v[4:7]\ns_waitcnt lgkmcnt(0)\ns_barrier")
    nf = (4//OPT.nfill if OPT.nfill else 1)
    zb = g+1+OPT.zsp
    fb = zb+nf+1+OPT.vmd
    cb = 28 if OPT.own2 else 26
    assert fb <= cb
    bars(k, fb-zb)
    set_flag(k, 10)
    bars(k, cb-fb)
    sample(k, 10)
    k.e("s_barrier")
    poll(k, 10, 1, val=16, pre=True)
    stamp(k, 8)
    if OPT.dsx:
        ops = {1: "ds_write_b128 v60, v[4:7]", 2: "ds_write_b64 v60, v[4:5]", 3: "ds_write_b32 v60, v4", 4: "ds_read_b128 v[64:67], v60",
               5: "ds_write_b128 v60, v[4:7]\nds_write_b128 v60, v[4:7] offset:1024\nds_write_b128 v60, v[4:7] offset:2048\nds_write_b128 v60, v[4:7] offset:3072",
               6: "ds_write_b128 v61, v[4:7]", 7: "s_mov_b64 exec, 1\nds_write_b32 v60, v4\ns_mov_b64 exec, -1"}[OPT.dsx]
        k.e(f"v_add_u32 v60, {L_CW}, v2\nv_lshlrev_b32 v61, 1, v14\nv_add_u32 v61, {L_CW}, v61")
        bars(k, 63-cb-25)
        for i in range(6):
            k.e(ops); bars(k, 4)
        k.e("s_waitcnt lgkmcnt(0)\ns_barrier")
    else:
        bars(k, 63-cb)
    set_flag(k, 9)
    k.e("L_a_p5:")
    poll(k, 9, 1, val=14)
    k.e("s_barrier")
    k.e("s_branch L_fin")
    k.e("L_a_helper:")
    k.e("s_barrier")
    helper_pf(k, 'a')
    cnt_addr(k, 9, F_U, S_M)
    k.e("s_branch L_a_p5")

def swaps(p):
    return [f"v_permlane16_swap_b32 v{p}, v{p+2}", f"v_permlane16_swap_b32 v{p+1}, v{p+3}"]
def pack32(k, dst, a):
    cvt16(k, dst, a)
    for x in swaps(dst): k.e(x)
    for x in swaps(dst+4): k.e(x)

def gelu_quads(k, quads, t):
    for g in range(0, len(quads), 2):
        P = [(y+2*i, cs+2*i, s, t+4*j+2*i) for j, (y, cs, s) in enumerate(quads[g:g+2]) for i in range(2)]
        for y, cs, s, p in P: k.e(f"v_pk_fma_f32 v[{y}:{y+1}], v[{cs}:{cs+1}], v[{s}:{s+1}], v[{y}:{y+1}] op_sel_hi:[1,0,1]")
        for y, cs, s, p in P: k.e(f"v_pk_mul_f32 v[{p}:{p+1}], v[{y}:{y+1}], v[{y}:{y+1}]")
        for y, cs, s, p in P: k.e(f"v_pk_fma_f32 v[{p}:{p+1}], v[{p}:{p+1}], v[{s+2}:{s+3}], v[{s}:{s+1}] op_sel:[0,0,1] op_sel_hi:[1,0,1]")
        for y, cs, s, p in P: k.e(f"v_pk_mul_f32 v[{p}:{p+1}], v[{p}:{p+1}], v[{y}:{y+1}]")
        for j in range(8): k.e(f"v_exp_f32 v{t+j}, v{t+j}")
        for y, cs, s, p in P: k.e(f"v_pk_fma_f32 v[{p}:{p+1}], v[{p}:{p+1}], v[{s+2}:{s+3}], v[{s+2}:{s+3}] op_sel:[0,1,1] op_sel_hi:[1,1,1]")
        for j in range(8): k.e(f"v_rcp_f32 v{t+j}, v{t+j}")
        for y, cs, s, p in P: k.e(f"v_pk_mul_f32 v[{y}:{y+1}], v[{y}:{y+1}], v[{p}:{p+1}]")

def gelu_fill(y, cs, s, n, t):
    E = range(n); L = []
    L += [f"v_fmac_f32 v{y+j}, v{cs+j}, v{s}" for j in E]
    L += [f"v_mul_f32 v{t+j}, v{y+j}, v{y+j}" for j in E]
    L += [f"v_fma_f32 v{t+j}, v{t+j}, v{s+2}, v{s+1}" for j in E]
    L += [f"v_mul_f32 v{t+j}, v{t+j}, v{y+j}" for j in E]
    L += [f"v_exp_f32 v{t+j}, v{t+j}" for j in E]
    L += [f"v_fma_f32 v{t+j}, v{t+j}, v{s+3}, v{s+3}" for j in E]
    L += [f"v_rcp_f32 v{t+j}, v{t+j}" for j in E]
    L += [f"v_mul_f32 v{y+j}, v{t+j}, v{y+j}" for j in E]
    return L

def treduce(k, a):
    k.e(f"""s_nop 1
    v_permlane32_swap_b32 v{a}, v{a+2}
    v_permlane32_swap_b32 v{a+1}, v{a+3}
    v_add_f32 v{a}, v{a}, v{a+2}
    v_add_f32 v{a+1}, v{a+1}, v{a+3}
    s_nop 1
    v_permlane16_swap_b32 v{a}, v{a+1}
    v_add_f32 v{a}, v{a}, v{a+1}""")

def consumer(k):
    c1, c2, c3, c4, c5 = cfgs()
    def regs(aS, aF, acc):
        R = Regs(); R.aS = aS; R.aF = aF; R.fr = 16; R.acc = acc; return R
    k.e(f"s_mov_b32 s{S_K}, {f2u(LOG2E)}\ns_mov_b32 s{S_K+1}, {f2u(LOG2E)}")
    c = c1; R = regs([8, 9], [10, 11, 12, 13], 64); C = Cons(k, c, R)
    consumer_addr(k, c, R)
    C.zero()
    k.e("s_waitcnt lgkmcnt(0)")
    mk_srd(k, SRD_B, P_X, 4*MB); mk_srd(k, SRD_W, P_WS, WS_END)
    stamp(k, 0)
    aWP=240; aXS=241; aCQ=242; aCV=243; aVS=244; aPW=245; aVX=247; aVW=248; aPR=249; L16=15
    tr_lane_base(k, aWP, 3, 9, rowshift=6, swz=False)
    k.e(f"""s_lshl_b32 s{S_T}, s{S_WN}, 11
    s_add_u32 s{S_T}, s{S_T}, {L_WPHI}
    v_add_u32 v{aWP}, s{S_T}, v{aWP}
    v_lshrrev_b32 v3, 4, v1
    v_and_b32 v4, 15, v1
    s_lshl_b32 s{S_T}, s{S_WM}, 8
    s_add_u32 s{S_T}, s{S_T}, {L_XS}
    v_lshl_add_u32 v{aXS}, v4, 2, s{S_T}
    v_lshl_add_u32 v{aVS}, v3, 4, s{S_T}
    s_mul_i32 s{S_T+1}, s{S_WN}, 384
    s_add_u32 s{S_T+1}, s{S_T+1}, {L_CQ}
    v_lshl_add_u32 v{aCQ}, v3, 4, s{S_T+1}
    v_and_b32 v7, 3, v4
    v_bfe_u32 v5, v4, 2, 1
    v_lshl_or_b32 v7, v5, 3, v7
    v_bfe_u32 v5, v4, 3, 1
    v_lshl_or_b32 v7, v5, 2, v7
    v_lshl_add_u32 v{aCV}, v7, 2, s{S_T+1}
    v_lshrrev_b32 v3, 5, v1
    v_and_b32 v4, 31, v1
    v_lshlrev_b32 v5, 2, v3
    v_xor_b32 v5, v4, v5
    v_lshlrev_b32 v5, 4, v5
    v_lshl_add_u32 v5, v3, 9, v5
    s_lshl_b32 s{S_T}, s{S_WN}, 14
    s_add_u32 s{S_T}, s{S_T}, {L_PHK}
    s_lshl_b32 s{S_T+1}, s{S_WM}, 13
    s_add_u32 s{S_T+2}, s{S_T}, s{S_T+1}
    v_add_u32 v{aPW}, s{S_T+2}, v5
    v_xor_b32 v{aPW+1}, 128, v{aPW}
    v_lshlrev_b32 v{L16}, 4, v1
    s_lshl_b32 s{S_T+3}, s{S_WN}, 13
    s_add_u32 s{S_T+3}, s{S_T+3}, {L_VX}
    v_add_u32 v{aVX}, s{S_T+3}, v{L16}
    s_lshl_b32 s{S_T+4}, s{S_WM}, 12
    v_add_u32 v{aVW}, s{S_T+4}, v{aVX}
    v_lshlrev_b32 v14, 13, v3
    v_lshl_add_u32 v14, v4, 4, v14
    v_lshlrev_b32 v251, 8, v3
    v_lshlrev_b32 v252, 4, v3""")
    blk_tr_base(k, aPR, 2, 3, 3)
    k.e(f"""s_lshl_b32 s{S_T+1}, s{S_WM}, 11
    s_add_u32 s{S_T+1}, s{S_T+1}, s{S_T}
    v_add_u32 v{aPR}, s{S_T+1}, v{aPR}
    v_xor_b32 v{aPR+1}, 64, v{aPR}""")
    ONES=4
    for i in range(4): k.e(f"v_mov_b32 v{ONES+i}, 0x3f803f80")
    k.e(f"""s_lshl_b32 s{S_T}, s{S_WN}, 1
    s_add_u32 s{S_T}, s{S_T}, s{S_WM}
    s_lshl_b32 s{S_T+1}, s{S_N}, 2
    s_add_u32 s{S_T}, s{S_T}, s{S_T+1}
    s_lshl_b32 s{S_T+2}, s{S_T}, 15
    s_lshl_b32 s{S_T+1}, s{S_M}, 9
    s_add_u32 s{S_T+2}, s{S_T+2}, s{S_T+1}
    s_add_u32 s{S_T+2}, s{S_T+2}, {WS_KVP}
    s_add_u32 s{S_T+3}, s{S_T+2}, 16384
    s_lshl_b32 s{S_T+4}, s{S_T}, 10
    s_lshl_b32 s{S_T+1}, s{S_M}, 4
    s_add_u32 s{S_T+4}, s{S_T+4}, s{S_T+1}
    s_add_u32 s{S_T+4}, s{S_T+4}, {WS_ZP}
    s_lshl_b32 s{S_T}, s{S_N}, 1
    s_add_u32 s{S_T}, s{S_T}, s{S_WN}
    s_lshl_b32 s{S_T+12}, s{S_M}, 2
    s_lshl_b32 s{S_T+1}, s{S_WM}, 1
    s_add_u32 s{S_T+12}, s{S_T+12}, s{S_T+1}
    s_lshl_b32 s{S_T+12}, s{S_T+12}, 16
    s_lshl_b32 s{S_T+1}, s{S_T}, 11
    s_add_u32 s{S_T+12}, s{S_T+12}, s{S_T+1}
    s_add_u32 s{S_T+12}, s{S_T+12}, {WS_O}
    s_add_u32 s{S_T+13}, s{S_T+12}, 65536""")
    k.e("s_barrier")
    stamp(k, 1)
    K0,K1,V0,V1,Q0,Q1 = 64,80,96,112,128,144
    WP=224; ST=232; KB=24; VB=40; PK=160; NM=192; RSD=208; CK=160; CV=2
    tl = [f"ds_read2_b32 v[{ST+2*t}:{ST+2*t+1}], v{aXS} offset0:{16*t} offset1:{128+16*t}" for t in range(4)]
    tl += [f"ds_read_b128 v[{CK+4*fh}:{CK+4*fh+3}], v{aCQ} offset:{128+64*fh}" for fh in range(2)]
    tl += [f"ds_read_b64_tr_b16 v[{WP+4*cc+2*rd}:{WP+4*cc+2*rd+1}], v{aWP} offset:{cc*1024+rd*256}" for cc in range(2) for rd in range(2)]
    tl += [f"ds_read2_b32 v[{CV}:{CV+1}], v{aCV} offset0:64 offset1:80"]
    C.first_reads(); C.loopu(15//OPT.u1, OPT.u1); C.loop(1, next_cons=False, tail=tl)
    stamp(k, 2)
    k.e("s_waitcnt lgkmcnt(5)")
    for t in range(4):
        k.e(f"ds_read_b128 v[{NM+4*t}:{NM+3+4*t}], v{aVS} offset:{64*t}\nds_read_b128 v[{RSD+4*t}:{RSD+3+4*t}], v{aVS} offset:{512+64*t}")
    def corrT(a, cs, st, t):
        for fh in range(2):
            P = [(a+8*fh+4*sh+2*i, cs+4*fh+2*i, ST+2*(2*st+sh), t+4*sh+2*i) for sh in range(2) for i in range(2)]
            for y, c_, s_, p in P: k.e(f"v_pk_mul_f32 v[{p}:{p+1}], v[{c_}:{c_+1}], v[{s_}:{s_+1}] op_sel_hi:[1,0]")
            for y, c_, s_, p in P: k.e(f"v_pk_fma_f32 v[{y}:{y+1}], v[{y}:{y+1}], v[{s_}:{s_+1}], v[{p}:{p+1}] op_sel:[0,1,0] op_sel_hi:[1,1,1]")
    def corrN(a, st, t):
        for sh in range(2):
            P = [(a+8*sh+4*dh+2*i, 4*(2*st+sh)+2*i, dh, t+4*dh+2*i) for dh in range(2) for i in range(2)]
            for y, o_, dh, p in P: k.e(f"v_pk_mul_f32 v[{p}:{p+1}], v[{NM+o_}:{NM+o_+1}], v[{CV}:{CV+1}] op_sel:[0,{dh}] op_sel_hi:[1,{dh}]")
            for y, o_, dh, p in P: k.e(f"v_pk_fma_f32 v[{y}:{y+1}], v[{y}:{y+1}], v[{RSD+o_}:{RSD+o_+1}], v[{p}:{p+1}]")
    def pmf(P, B, st):
        k.e(f"{MF} v[{P+16*st}:{P+16*st+15}], v[{WP}:{WP+3}], v[{B+8*st}:{B+8*st+3}], 0")
        k.e(f"{MF} v[{P+16*st}:{P+16*st+15}], v[{WP+4}:{WP+7}], v[{B+8*st+4}:{B+8*st+7}], v[{P+16*st}:{P+16*st+15}]")
    corrT(K0, CK, 0, 16); corrT(K1, CK, 1, 16)
    pack32(k, KB, K0); pack32(k, KB+8, K1)
    k.e("s_waitcnt lgkmcnt(0)")
    pmf(PK, KB, 0); pmf(PK, KB, 1)
    corrN(V0, 0, 16); corrN(V1, 1, 16)
    pack32(k, VB, V0); pack32(k, VB+8, V1)
    CK = 192
    EP=64; EN=80; T=56
    def wr(st, O, nb): return [f"ds_write_b128 v{aPW+hh}, v[{O+4*hh}:{O+4*hh+3}] offset:{st*4096+nb*2048+hh*1024}" for hh in range(2)]
    inj = [f"ds_write_b128 v{aVW}, v[{VB+4*i}:{VB+4*i+3}] offset:{i*1024}" for i in range(4)]
    inj += [f"ds_read_b128 v[{CK+4*fh}:{CK+4*fh+3}], v{aCQ} offset:{64*fh}" for fh in range(2)]
    softmax_pm(k, PK, EP, EN, T, 96, 104, inject=inj, wpos=wr(0, 96, 0), wneg=wr(0, 104, 1))
    softmax_pm(k, PK+16, EP, EN, T, 112, 120, wpos=wr(1, 112, 0), wneg=wr(1, 120, 1))
    k.e("s_waitcnt lgkmcnt(0)\ns_barrier")
    stamp(k, 3)
    AF=64; VF_=96; KV=160; ZZ=176
    def rdkc(kc):
        off = (kc>>1)*4096 + (kc&1)*256
        k.e(f"""ds_read_b64_tr_b16 v[{AF+4*kc}:{AF+4*kc+1}], v{aPR} offset:{off}
        ds_read_b64_tr_b16 v[{AF+4*kc+2}:{AF+4*kc+3}], v{aPR+1} offset:{off}
        ds_read_b128 v[{VF_+4*kc}:{VF_+4*kc+3}], v{aVX} offset:{kc*1024}""")
    for kc in range(5): rdkc(kc)
    for kc in range(8):
        k.e(f"s_waitcnt lgkmcnt({3*(min(kc+5, 8)-kc-1)})")
        k.e(f"{MF} v[{KV}:{KV+15}], v[{AF+4*kc}:{AF+4*kc+3}], v[{VF_+4*kc}:{VF_+4*kc+3}], {'0' if kc==0 else f'v[{KV}:{KV+15}]'}")
        if kc+5 < 8: rdkc(kc+5)
    for kc in range(8):
        k.e(f"{MF} v[{ZZ}:{ZZ+15}], v[{AF+4*kc}:{AF+4*kc+3}], v[{ONES}:{ONES+3}], {'0' if kc==0 else f'v[{ZZ}:{ZZ+15}]'}")
        if kc == 2:
            k.e("s_nop 7\ns_nop 1")
            for i in range(4): k.e(f"v_cvt_pk_bf16_f32 v{212+i}, v{KV+2*i}, v{KV+2*i+1}")
            k.e(f"buffer_store_dwordx4 v[212:215], v14, {W}, s{S_T+2} offen sc1")
        if kc == 3:
            for i in range(4, 8): k.e(f"v_cvt_pk_bf16_f32 v{212+i}, v{KV+2*i}, v{KV+2*i+1}")
            k.e(f"buffer_store_dwordx4 v[216:219], v14, {W}, s{S_T+3} offen sc1")
    k.e("s_barrier")
    k.e("s_nop 7\ns_nop 2")
    cvt16(k, 16, ZZ)
    k.e(f"""s_mov_b32 exec_lo, 1
    s_mov_b32 exec_hi, 1
    buffer_store_dwordx4 v[16:19], v251, {W}, s{S_T+4} offen sc1
    buffer_store_dwordx4 v[20:23], v251, {W}, s{S_T+4} offen offset:512 sc1
    s_mov_b64 exec, -1""")
    stamp(k, 4)
    QB=32; PQ=160
    def p25_addr():
        tile_map(k, 4, 8, 16)
        k.e(f"""s_lshl_b32 s{S_T}, s{S_M}, 2
        s_add_u32 s{S_T}, s{S_T}, s{S_WAVE}
        s_lshl_b32 s{S_T+1}, s{S_T}, 16
        s_lshl_b32 s{S_T+2}, s{S_N}, 7
        s_add_u32 s{S_T+2}, s{S_T+2}, s{S_T+1}
        v_and_b32 v4, 31, v1
        v_lshlrev_b32 v14, 11, v4
        v_lshrrev_b32 v5, 5, v1
        v_lshl_add_u32 v14, v5, 4, v14
        v_add_u32 v14, s{S_T+2}, v14""")
    corrT(Q0, CK, 0, 48); corrT(Q1, CK, 1, 48)
    pack32(k, QB, Q0); pack32(k, QB+8, Q1)
    pmf(PQ, QB, 0); pmf(PQ, QB, 1)
    p25_addr()
    RS = 224
    for i in range(4): k.e(f"buffer_load_dwordx4 v[{RS+4*i}:{RS+4*i+3}], v14, {srd(SRD_B)}, 0 offen offset:{32*i}")
    k.e(f"""s_lshl_b32 s{S_T+2}, s{S_N}, 12
    s_add_u32 s{S_T+2}, s{S_T+2}, s{S_T+1}
    s_add_u32 s{S_T+2}, s{S_T+2}, {WS_H}
    v_add_u32 v7, s{S_T+2}, v{L16}
    s_lshl_b32 s{S_T}, s{S_T}, 8
    s_lshl_b32 s{S_T+1}, s{S_N}, 14
    s_add_u32 s{S_T}, s{S_T}, s{S_T+1}
    s_add_u32 s{S_T}, s{S_T}, {WS_HST}
    v_lshlrev_b32 v9, 3, v4
    v_add_u32 v9, s{S_T}, v9
    s_lshl_b32 s{S_T}, s{S_WN}, 12
    v_add_u32 v2, s{S_T}, v{L16}
    s_lshl_b32 s{S_T}, s{S_WN}, 7
    v_add_u32 v3, s{S_T}, v252""")
    PH=128; KF=16; ZF=32; NUM=96; DEN=192
    softmax_pm(k, PQ, EP, EN, T, PH, PH+8)
    softmax_pm(k, PQ+16, EP, EN, T, PH+16, PH+24)
    def res_init():
        for j in range(4):
            for x in swaps(RS+4*j): k.e(x)
        for i in range(16): unpack(k, 64+2*i, 65+2*i, RS+i)
    R25 = regs([8], [10, 11, 12, 13], 64)
    consumer_addr(k, c2, R25, t=48)
    k.e("s_waitcnt vmcnt(0)")
    res_init()
    stamp(k, 21)
    k.e("s_barrier")
    stamp(k, 5)
    for i in range(4): k.e(f"ds_read_b128 v[{ZF+4*i}:{ZF+4*i+3}], v3 offset:{L_Z+i*32}")
    for i in range(4): k.e(f"ds_read_b128 v[{KF+4*i}:{KF+4*i+3}], v2 offset:{L_KV+i*1024}")
    for st in range(2):
        for A_, D_ in ((ZF, DEN), (KF, NUM)):
            if st == 0: k.e(f"s_waitcnt lgkmcnt({4 if A_ == ZF else 0})")
            for i in range(4):
                b = PH+16*st+4*i
                k.e(f"{MF} v[{D_+16*st}:{D_+16*st+15}], v[{A_+4*i}:{A_+4*i+3}], v[{b}:{b+3}], {'0' if i==0 else f'v[{D_+16*st}:{D_+16*st+15}]'}")
    k.e("s_nop 0")
    for st in range(2):
        d = DEN+16*st; n = NUM+16*st; o = 160+8*st
        k.e(f"v_add_f32 v{d}, {f2u(1e-6)}, v{d}\nv_rcp_f32 v{d}, v{d}\ns_nop 0")
        for hh in range(2):
            for i in range(4*hh, 4*hh+4): k.e(f"v_pk_mul_f32 v[{n+2*i}:{n+2*i+1}], v[{n+2*i}:{n+2*i+1}], v[{d}:{d+1}] op_sel_hi:[1,0]")
            for i in range(4*hh, 4*hh+4): k.e(f"v_cvt_pk_bf16_f32 v{o+i}, v{n+2*i}, v{n+2*i+1}")
            k.e(f"buffer_store_dwordx4 v[{o+4*hh}:{o+4*hh+3}], v{L16}, {W}, s{S_T+12+st} offen offset:{1024*hh} sc1")
    C = Cons(k, c2, R25)
    k.e("s_waitcnt vmcnt(0)\ns_barrier")
    stamp(k, 6)
    k.e("s_barrier\ns_barrier")
    stamp(k, 7)
    if OPT.st4 & 1:
        C.first_reads(); C.loop4(4, 0); k.e("s_waitcnt lgkmcnt(0)")
    else:
        C.first_reads(); C.loop(15); C.loop(1, next_cons=False)
    stamp(k, 8)
    A = 64
    def out4(dst, store):
        k.e("s_nop 1")
        for i in range(4): k.e(f"v_cvt_pk_bf16_f32 v{dst+i}, v{A+2*i}, v{A+2*i+1}")
        for j in range(4):
            if j < 3:
                for i in range(4*j+4, 4*j+8): k.e(f"v_cvt_pk_bf16_f32 v{dst+i}, v{A+2*i}, v{A+2*i+1}")
            for x in swaps(dst+4*j): k.e(x)
            k.e(store(dst+4*j, j))
    out4(RS, lambda r, j: f"buffer_store_dwordx4 v[{r}:{r+3}], v7, {W}, 0 offen offset:{1024*j} sc1")
    for i in range(16): unpack(k, A+2*i, A+2*i+1, RS+i)
    k.e(f"v_pk_add_f32 v[20:21], v[{A}:{A+1}], v[{A+2}:{A+3}]\nv_pk_add_f32 v[22:23], v[{A+4}:{A+5}], v[{A+6}:{A+7}]")
    for i in range(4, 16):
        t = 20 + 2*(i & 1); k.e(f"v_pk_add_f32 v[{t}:{t+1}], v[{t}:{t+1}], v[{A+2*i}:{A+2*i+1}]")
    k.e("v_pk_add_f32 v[20:21], v[20:21], v[22:23]\nv_add_f32 v20, v20, v21")
    xswap_sum1(k, 20, 21)
    k.e(f"v_mul_f32 v20, {f2u(1/64.)}, v20")
    for i in range(16):
        k.e(f"v_pk_add_f32 v[{A+2*i}:{A+2*i+1}], v[{A+2*i}:{A+2*i+1}], v[20:21] op_sel_hi:[1,0] neg_lo:[0,1] neg_hi:[0,1]")
    k.e(f"v_pk_mul_f32 v[22:23], v[{A}:{A+1}], v[{A}:{A+1}]\nv_pk_mul_f32 v[24:25], v[{A+2}:{A+3}], v[{A+2}:{A+3}]")
    for i in range(2, 16):
        t = 22 + 2*(i & 1); k.e(f"v_pk_fma_f32 v[{t}:{t+1}], v[{A+2*i}:{A+2*i+1}], v[{A+2*i}:{A+2*i+1}], v[{t}:{t+1}]")
    k.e("v_pk_add_f32 v[22:23], v[22:23], v[24:25]\nv_add_f32 v22, v22, v23")
    xswap_sum1(k, 22, 23)
    k.e(f"""v_mov_b32 v21, v22
    s_mov_b32 exec_hi, 0
    buffer_store_dwordx2 v[20:21], v9, {W}, 0 offen sc1
    s_mov_b32 exec_hi, -1
    s_waitcnt vmcnt(1)
    s_barrier""")
    stamp(k, 9)
    k.e("s_cmp_ge_u32 s2, 224\ns_cbranch_scc1 L_c_helper")
    tile_map(k, 4, 7, 14)
    Ra = regs([2], [3, 4, 5, 6], 128); Rb = regs([2], [3, 4, 5, 6], 64); R4 = regs([8, 9], [10, 11], 128)
    Ca = Cons(k, c3, Ra); Cb = Cons(k, c3, Rb); C4 = Cons(k, c4, R4)
    consumer_addr(k, c3, Ra, t=32); consumer_addr(k, c4, R4, slot=0, t=32, setslot=False)
    Ca.zero(); Cb.zero()
    mk_srd(k, SRD_A, P_BSP, 4096)
    aCS=7; aZN=12; aHS=13; aZS=14; aZP=252; CS=192; HS=208; BB=240; ZS=244
    k.e(f"""v_and_b32 v32, 15, v1
    v_lshlrev_b32 v33, 1, v32
    s_lshl_b32 s{S_T+2}, s{S_M}, 8
    s_lshl_b32 s{S_T+3}, s{S_WM}, 7
    s_add_u32 s{S_T+2}, s{S_T+2}, s{S_T+3}""")
    for t in range(4): k.e(f"buffer_load_ushort v{BB+t}, v33, {srd(SRD_A)}, s{S_T+2} offen offset:{32*t}")
    k.e(f"""s_lshl_b32 s{S_T}, s{S_WM}, 6
    v_add_u32 v32, s{S_T}, v32
    v_lshlrev_b32 v{aZS}, 3, v32
    v_add_u32 v{aZS}, {L_ZS}, v{aZS}
    v_lshlrev_b32 v{aHS}, 4, v32
    v_add_u32 v{aHS}, {L_HS}, v{aHS}
    v_lshrrev_b32 v34, 4, v1
    s_lshl_b32 s{S_T}, s{S_WN}, 8
    s_add_u32 s{S_T}, s{S_T}, {L_CS}
    v_lshl_add_u32 v{aCS}, v34, 4, s{S_T}
    v_lshrrev_b32 v34, 5, v1
    v_lshlrev_b32 v34, 6, v34
    v_xor_b32 v{aZN}, v34, v{L16}
    s_lshl_b32 s{S_T}, s{S_WM}, 9
    s_lshl_b32 s{S_T+1}, s{S_WN}, 10
    s_add_u32 s{S_T}, s{S_T}, s{S_T+1}
    s_add_u32 s{S_T}, s{S_T}, {L_ZP}
    v_lshl_add_u32 v{aZP}, v1, 3, s{S_T}
    s_lshl_b32 s{S_T+12}, s{S_N}, 19
    s_lshl_b32 s{S_T+1}, s{S_M}, 15
    s_add_u32 s{S_T+12}, s{S_T+12}, s{S_T+1}
    s_lshl_b32 s{S_T+1}, s{S_WM}, 14
    s_add_u32 s{S_T+12}, s{S_T+12}, s{S_T+1}
    s_lshl_b32 s{S_T+1}, s{S_WN}, 12
    s_add_u32 s{S_T+12}, s{S_T+12}, s{S_T+1}
    s_add_u32 s{S_T+12}, s{S_T+12}, {WS_Z2N}
    s_add_u32 s{S_T+13}, s{S_T+12}, 8192
    s_lshl_b32 s{S_T}, s{S_M}, 2
    s_lshl_b32 s{S_T+1}, s{S_WM}, 1
    s_add_u32 s{S_T}, s{S_T}, s{S_T+1}
    s_mul_i32 s{S_T}, s{S_T}, 112
    s_lshl_b32 s{S_T+1}, s{S_N}, 3
    s_add_u32 s{S_T}, s{S_T}, s{S_T+1}
    s_lshl_b32 s{S_T+1}, s{S_WN}, 2
    s_add_u32 s{S_T}, s{S_T}, s{S_T+1}
    s_lshl_b32 s{S_T}, s{S_T}, 10
    s_add_u32 s{S_T+14}, s{S_T}, {WS_U}
    s_add_u32 s{S_T+15}, s{S_T+14}, {112*1024}""")
    k.e("s_barrier\ns_waitcnt vmcnt(4)\ns_barrier")
    stamp(k, 10)
    rcs = lambda half: [f"ds_read_b128 v[{CS+4*f}:{CS+4*f+3}], v{aCS} offset:{half*512 + f*64}" for f in range(4)]
    rhs = [f"ds_read_b128 v[{HS+4*t}:{HS+4*t+3}], v{aHS} offset:{t*256}" for t in range(4)]
    Ca.first_reads(); Ca.loopu(15//OPT.u3, OPT.u3); Ca.loop(1, next_cons=False, tail=rhs+rcs(1))
    stamp(k, 11)
    k.e("s_waitcnt lgkmcnt(0)")
    Cb.first_reads()
    gelu_quads(k, [(Ca.sub(t, f), CS+4*f, HS+4*t) for f in range(4) for t in Ca.order(f)], 32)
    for x in rcs(0): k.e(x)
    SM = 40
    for t in range(4):
        ys = [Ca.sub(t, f)+2*i for f in range(4) for i in range(2)]
        p = 32+2*(t & 1)*2
        k.e(f"v_pk_add_f32 v[{p}:{p+1}], v[{ys[0]}:{ys[0]+1}], v[{ys[1]}:{ys[1]+1}]\nv_pk_add_f32 v[{p+2}:{p+3}], v[{ys[2]}:{ys[2]+1}], v[{ys[3]}:{ys[3]+1}]")
        for i in range(4, 8):
            q_ = p+2*(i & 1); k.e(f"v_pk_add_f32 v[{q_}:{q_+1}], v[{q_}:{q_+1}], v[{ys[i]}:{ys[i]+1}]")
        k.e(f"v_pk_add_f32 v[{p}:{p+1}], v[{p}:{p+1}], v[{p+2}:{p+3}]\nv_add_f32 v{SM+t}, v{p}, v{p+1}")
    treduce(k, SM)
    k.e(f"""v_mul_f32 v{ZS}, {f2u(1/64.)}, v{SM}
    v_mov_b32 v44, v{ZS}
    v_mov_b32 v45, v{ZS}
    s_nop 1
    v_permlane16_swap_b32 v44, v45
    v_mov_b32 v46, v44
    v_mov_b32 v47, v45
    s_nop 1
    v_permlane32_swap_b32 v44, v46
    v_permlane32_swap_b32 v45, v47""")
    for t in range(4):
        ys = [Ca.sub(t, f)+2*i for f in range(4) for i in range(2)]
        m = 44 + (t & 2); sel = "op_sel_hi:[1,0]" if t & 1 == 0 else "op_sel:[0,1] op_sel_hi:[1,1]"
        for i, y in enumerate(ys):
            d = 36+2*(i & 1); u = 32+2*(i & 1)
            k.e(f"v_pk_add_f32 v[{d}:{d+1}], v[{y}:{y+1}], v[{m}:{m+1}] {sel} neg_lo:[0,1] neg_hi:[0,1]")
            k.e(f"v_pk_mul_f32 v[{u}:{u+1}], v[{d}:{d+1}], v[{d}:{d+1}]" if i < 2 else f"v_pk_fma_f32 v[{u}:{u+1}], v[{d}:{d+1}], v[{d}:{d+1}], v[{u}:{u+1}]")
        k.e(f"v_pk_add_f32 v[32:33], v[32:33], v[34:35]\nv_add_f32 v{SM+t}, v32, v33")
    treduce(k, SM)
    k.e(f"v_mov_b32 v{ZS+1}, v{SM}\nds_write_b64 v{aZP}, v[{ZS}:{ZS+1}]\ns_waitcnt lgkmcnt(0)")
    stamp(k, 12)
    g = OPT.gat
    n1 = g+1+OPT.zsp-16+1
    Cb.loop(n1)
    for t in range(4): k.e(f"ds_read_b64 v[{ZS+2*t}:{ZS+2*t+1}], v{aZS} offset:{t*128}")
    k.e("s_waitcnt lgkmcnt(0)")
    stamp(k, 13)
    def norm_tile(st, ft):
        a = Ca.acc(st, ft); L = []
        for fh in range(2):
            for sh in range(2):
                s = ZS+2*(2*st+sh)
                L += [f"v_fma_f32 v{a+8*fh+4*sh+i}, v{a+8*fh+4*sh+i}, v{s+1}, v{s}" for i in range(4)]
        L += [f"v_cvt_pk_bf16_f32 v{a+8*fh+i}, v{a+8*fh+2*i}, v{a+8*fh+2*i+1}" for fh in range(2) for i in range(4)]
        for fh in range(2):
            L += swaps(a+8*fh)
            L += [f"buffer_store_dwordx4 v[{a+8*fh}:{a+8*fh+3}], v{aZN}, {W}, s{S_T+12+st} offen offset:{ft*2048+fh*1024} sc1"]
        return L
    tiles = [(st, ft) for st in range(2) for ft in range(2)]
    for j in range(0, 4, OPT.nfill):
        L = []
        for st, ft in tiles[j:j+OPT.nfill]: L += norm_tile(st, ft)
        Cb.loop(1, fillers=L)
    nf = 4//OPT.nfill
    if OPT.vmd: Cb.loop(OPT.vmd)
    Cb.loop(1, pre_barrier="vm")
    zl = [f"v_lshlrev_b32 v{C4.sub(t, f)+i}, 16, v{BB+t}" for f in range(4) for t in range(4) for i in range(4)]
    rest = 16-n1-nf-1-OPT.vmd
    nz = min(3, rest-1)
    for j in range(nz): Cb.loop(1, fillers=zl[64*j//nz: 64*(j+1)//nz])
    if rest-nz > 1: Cb.loop(rest-nz-1)
    Cb.loop(1, next_cons=C4, nslot=2)
    stamp(k, 14)
    j = 0
    if not OPT.z1fill:
        OPT.dg |= 1
        gelu_quads(k, [(Cb.sub(t, f), CS+4*f, HS+4*t) for f in range(4) for t in Cb.order(f)], 32)
        stamp(k, 15)
    if OPT.p4loop:
        C4.loop4(8, 2); k.e("s_waitcnt lgkmcnt(0)")
    for f in range(0 if OPT.p4loop else 4):
        for t in Cb.order(f):
            for i in range(2):
                C4.loop(1, fillers=(gelu_fill(Cb.sub(t, f)+2*i, CS+4*f+2*i, HS+4*t, 2, ZS) if not OPT.dg & 1 else None), budget=OPT.bud, next_cons=(False if j == 31 else None), slot=(2+j) % 4)
                j += 1
    stamp(k, 16)
    pend = None
    for f in range(4):
        for st in range(2):
            a = C4.acc(st, f >> 1) + 8*(f & 1); z = Cb.acc(st, f >> 1) + 8*(f & 1); o = 16+4*(f*2+st)
            for i in range(4): k.e(f"v_pk_mul_f32 v[{a+2*i}:{a+2*i+1}], v[{a+2*i}:{a+2*i+1}], v[{z+2*i}:{z+2*i+1}]")
            if pend:
                for x in pend: k.e(x)
            for i in range(4): k.e(f"v_cvt_pk_bf16_f32 v{o+i}, v{a+2*i}, v{a+2*i+1}")
            pend = swaps(o) + [f"buffer_store_dwordx4 v[{o}:{o+3}], v{L16}, {W}, s{S_T+14+st} offen offset:{f*1024} sc1"]
    k.e("s_nop 0")
    for x in pend: k.e(x)
    k.e("s_waitcnt vmcnt(0)\ns_barrier")
    stamp(k, 17)
    k.e("L_c_p5:")
    C = Cons(k, c5, R25)
    p25_addr()
    consumer_addr(k, c5, R25, t=48, slot=(0 if OPT.st4 & 4 else None))
    res_init()
    mk_srd(k, SRD_B, P_OUT, 4*MB)
    k.e("s_barrier\ns_barrier")
    stamp(k, 18)
    if OPT.st4 & 4:
        C.first_reads_static(2); C.loop4(7, 2); k.e("s_waitcnt lgkmcnt(0)")
    else:
        C.first_reads(); C.loop(27); C.loop(1, next_cons=False)
    stamp(k, 19)
    out4(96, lambda r, j: f"buffer_store_dwordx4 v[{r}:{r+3}], v14, {srd(SRD_B)}, 0 offen offset:{32*j}")
    k.e("s_branch L_fin")
    k.e("L_c_helper:")
    k.e("s_barrier")
    helper_pf(k, 'c')
    stamp(k, 17)
    k.e("s_branch L_c_p5")

def build():
    k = Kern("p")
    if OPT.probe: k.e("s_memrealtime s[94:95]")
    k.e("s_cmp_ge_u32 s2, 256\ns_cbranch_scc1 L_end")
    k.e("s_load_dwordx16 s[32:47], s[0:1], 0\ns_load_dwordx8 s[48:55], s[0:1], 64")
    k.e(f"v_lshrrev_b32 v2, 6, v0\nv_and_b32 v1, 63, v0\nv_readfirstlane_b32 s{S_WAVE}, v2")
    if OPT.stamps: k.e("v_mov_b32 v255, 0\nv_mov_b32 v254, 0\nv_mov_b32 v253, 0\ns_mov_b32 s97, 0")
    import core4; core4.DG[0] = OPT.dg
    ITST[0] = max(OPT.stamps - 1, 0); ITST[1] = 254; CAP[0] = OPT.cap
    tile_map(k, 8, 4, 16)
    k.e(f"s_cmp_lt_u32 s{S_WAVE}, 4\ns_cbranch_scc1 L_cons")
    k.e(f"s_and_b32 s{S_LW}, s{S_WAVE}, 1\ns_sub_u32 s{S_Q}, s{S_WAVE}, 4\ns_cmp_ge_u32 s{S_WAVE}, 6\ns_cbranch_scc1 L_aux")
    if OPT.pl: k.e(f"s_setprio {OPT.pl}")
    loader(k)
    k.e("L_aux:")
    if OPT.pa: k.e(f"s_setprio {OPT.pa}")
    aux(k)
    k.e("L_cons:")
    if OPT.pc: k.e(f"s_setprio {OPT.pc}")
    consumer(k)
    k.e("L_fin:")
    if OPT.stamps:
        k.e("s_waitcnt vmcnt(0)")
        stamp(k, 20)
        mk_srd(k, SRD_D, P_WS, 2*MB, WS_END)
        k.e(f"""s_lshl_b32 s{S_T}, s2, 3
        s_add_u32 s{S_T}, s{S_T}, s{S_WAVE}
        s_lshl_b32 s{S_T}, s{S_T}, 8
        v_lshlrev_b32 v2, 2, v1
        buffer_store_dword v255, v2, {srd(SRD_D)}, s{S_T} offen
        s_add_u32 s{S_T}, s{S_T}, 0x80000
        buffer_store_dword v254, v2, {srd(SRD_D)}, s{S_T} offen
        s_add_u32 s{S_T}, s{S_T}, 0x80000
        buffer_store_dword v253, v2, {srd(SRD_D)}, s{S_T} offen""")
    if OPT.probe:
        k.e(f"s_cmp_lg_u32 s{S_WAVE}, 0\ns_cbranch_scc1 L_end\ns_cmp_ge_u32 s2, 224\ns_cbranch_scc1 L_end")
        if OPT.pwg >= 0: k.e(f"s_cmp_lg_u32 s2, {OPT.pwg}\ns_cbranch_scc1 L_end")
        k.e(f"v_readlane_b32 s{S_T}, v255, {OPT.probe}\nv_readlane_b32 s{S_T+1}, v255, {OPT.pfrom}\ns_nop 3\ns_sub_u32 s{S_T}, s{S_T}, s{S_T+1}\ns_mul_i32 s{S_T}, s{S_T}, 10\ns_add_u32 s{S_T}, s{S_T}, s94\ns_add_u32 s{S_T}, s{S_T}, 10000\nL_spin:\ns_memrealtime s[{S_ST}:{S_ST+1}]\ns_waitcnt lgkmcnt(0)\ns_sub_u32 s{S_T+1}, s{S_ST}, s{S_T}\ns_cmp_lt_i32 s{S_T+1}, 0\ns_cbranch_scc1 L_spin")
    k.e("L_end:\ns_endpgm")
    out = [f"; @launch grid=(256,1,1) block=(512,1,1) lds={L_END}",
           '.amdgcn_target "amdgcn-amd-amdhsa--gfx950"\n.text', header(KNAME) + k.text(), '.section .rodata,"a"', descriptor(KNAME, 256, 100)]
    return "\n".join(out)

if __name__ == "__main__":
    for a in sys.argv[2:]:
        kk, v = a.split("="); setattr(OPT, kk, int(v))
    open(sys.argv[1], "w").write(build())
```

```python
import math
from core import Kern, header, descriptor, vr, sr, srd, Regs, tr_lane_base, blk_tr_base

S_WAVE=3; S_M=4; S_N=5; S_PH=6; S_T0=7
SRD_S=8; SRD_F=12; SRD_A=16; SRD_B=20; SRD_W=24; SRD_D=28
P0=32
S_T=56
S_WM=72; S_WN=73; S_LW=74; S_KB=75
S_X=76
S_CNT=80; S_SLOT=81; S_DS=82; S_DF=83; S_OS=84; S_OF=85; S_M0W=86; S_TAU=87
S_K=88
S_FB=96
S_ST=98

def ptr(i): return P0 + 2*i

def mk_srd(k, d, p, nbytes, off=0):
    if off:
        k.e(f"s_add_u32 s{d}, s{ptr(p)}, {off}\ns_addc_u32 s{d+1}, s{ptr(p)+1}, 0")
    else:
        k.e(f"s_mov_b32 s{d}, s{ptr(p)}\ns_mov_b32 s{d+1}, s{ptr(p)+1}")
    k.e(f"s_mov_b32 s{d+2}, {nbytes}\ns_mov_b32 s{d+3}, 0x20000")

class Cfg:
    def __init__(self, BM, BN, T, NS, WM, WN, U, strideS, strideF, ftiles, nb_from_wave, panel_from_wave, orient=None,
                 rot=(-1,0,2,-1), pre_mfma=2, smode='rows', fmode='rows', baseS=0, baseF=65536, auxS="", auxF="", kbase=False, slot0=0, own2=False, pb=22, burst=3, cap2=False, old=7, jorder=None):
        self.BM=BM; self.BN=BN; self.T=T; self.NS=NS; self.WM=WM; self.WN=WN; self.U=U
        self.strideS=strideS; self.strideF=strideF
        self.TM = BM//WM//32
        self.ftiles = ftiles; self.TN = len(ftiles)
        self.nb_from_wave = nb_from_wave; self.panel_from_wave = panel_from_wave
        self.orient = orient or ['T']*self.TN
        self.NP = BN//64
        self.slotS = BM*128; self.slotF = BN*128
        self.nS = BM//16; self.nF = BN//16
        self.nI = self.nS + self.nF
        self.rot = rot; self.pre_mfma = pre_mfma
        self.smode = smode; self.fmode = fmode
        self.baseS = baseS; self.baseF = baseF
        self.auxS = auxS; self.auxF = auxF
        self.slot0 = slot0; self.own2 = own2; self.pb = pb; self.burst = burst; self.cap2 = cap2; self.old = old; self.jorder = jorder
        self.kbase = kbase

def tile_map(k, gm, gn, ntn):
    xn = ntn // gn
    lg = int(math.log2(gm)); lx = int(math.log2(xn))
    k.e(f"""s_and_b32 s{S_T}, s2, 7
    s_lshr_b32 s{S_T+1}, s2, 3
    s_and_b32 s{S_T+2}, s{S_T+1}, {gm-1}
    s_lshr_b32 s{S_T+3}, s{S_T+1}, {lg}
    s_lshr_b32 s{S_M}, s{S_T}, {lx}
    s_mul_i32 s{S_M}, s{S_M}, {gm}
    s_add_u32 s{S_M}, s{S_M}, s{S_T+2}
    s_and_b32 s{S_N}, s{S_T}, {xn-1}
    s_mul_i32 s{S_N}, s{S_N}, {gn}
    s_add_u32 s{S_N}, s{S_N}, s{S_T+3}
    s_add_u32 s{S_PH}, s{S_T+2}, s{S_T+3}""")

def loader_voff_S(k, c, vb):
    w = S_LW
    if c.smode == 'rows':
        k.e(f"""v_lshrrev_b32 v2, 3, v1
        v_and_b32 v4, 7, v1
        s_lshl_b32 s{S_T+6}, s{w}, 3
        v_lshrrev_b32 v3, 4, v1
        s_lshl_b32 s{S_T+5}, s{w}, 2
        v_add_u32 v3, s{S_T+5}, v3
        v_xor_b32 v3, v3, v4
        v_lshlrev_b32 v3, 4, v3
        s_mul_i32 s{S_T+5}, s{S_M}, {c.BM}
        s_add_u32 s{S_T+5}, s{S_T+5}, s{S_T+6}
        v_add_u32 v5, s{S_T+5}, v2
        s_mov_b32 s{S_T+7}, {c.strideS}
        v_mul_lo_u32 v5, v5, s{S_T+7}
        v_add_u32 v{vb}, v5, v3""")
        for i in range(1, c.nS):
            k.e(f"v_add_u32 v{vb+i}, {i*16*c.strideS}, v{vb}")
    else:
        k.e(f"""s_mul_i32 s{S_T+5}, s{S_M}, {c.BM*c.strideS}
        s_add_u32 s{S_T+5}, s{S_T+5}, s{S_M0W}
        v_lshlrev_b32 v3, 4, v1
        v_add_u32 v{vb}, s{S_T+5}, v3""")
        for i in range(1, c.nS):
            k.e(f"v_add_u32 v{vb+i}, {(i>>1)*32*c.strideS + (i&1)*2048}, v{vb}")

def loader_voff_F(k, c, vb, colsg=None, panelconst=None):
    w = S_LW
    if c.fmode == 'rows':
        k.e(f"""v_lshrrev_b32 v2, 3, v1
        v_and_b32 v4, 7, v1
        s_lshl_b32 s{S_T+6}, s{w}, 3
        v_lshrrev_b32 v3, 2, v1
        v_and_b32 v3, 4, v3
        v_xor_b32 v3, v3, v4
        s_lshl_b32 s{S_T+5}, s{w}, 1
        v_xor_b32 v3, s{S_T+5}, v3
        v_lshlrev_b32 v3, 4, v3
        v_add_u32 v5, s{S_T+6}, v2
        s_mov_b32 s{S_T+7}, {c.strideF}
        v_mul_lo_u32 v5, v5, s{S_T+7}
        v_add3_u32 v5, v5, v3, s{colsg}""")
        for i in range(c.nF):
            k.e(f"v_add_u32 v{vb+i}, {panelconst(i>>2) + (i&3)*16*c.strideF}, v5")
    else:
        k.e(f"""s_mul_i32 s{S_T+5}, s{S_N}, {c.T*c.BN*128}
        s_add_u32 s{S_T+5}, s{S_T+5}, s{S_M0W}
        v_lshlrev_b32 v3, 4, v1
        v_add_u32 v{vb}, s{S_T+5}, v3""")
        for i in range(1, c.nF):
            k.e(f"v_add_u32 v{vb+i}, {i*2048}, v{vb}")

def kstep(k, c, t):
    src = S_TAU
    if c.own2 == 2:
        P = len(c.rot); packed = 0
        for u, d in enumerate(c.rot): packed |= ((d+8) & 15) << (4*u)
        k.e(f"""s_lshr_b32 s{t+1}, s{S_TAU}, 1
        s_sub_u32 s{t+2}, s{t+1}, 1
        s_cmp_ge_u32 s{t+2}, s{S_KB}
        s_addc_u32 s{t+2}, s{t+2}, 0
        s_cmp_eq_u32 s{t+1}, 0
        s_cselect_b32 s{t+2}, s{S_KB}, s{t+2}
        s_sub_u32 s{t}, s{t+2}, s{S_PH}
        s_and_b32 s{t}, s{t}, {P-1}
        s_lshl_b32 s{t}, s{t}, 2
        s_lshr_b32 s{t}, {packed}, s{t}
        s_and_b32 s{t}, s{t}, 15
        s_add_u32 s{t}, s{t}, s{t+2}
        s_sub_u32 s{t}, s{t}, 8
        s_and_b32 s{t}, s{t}, 15
        s_lshl_b32 s{t}, s{t}, 1
        s_and_b32 s{t+1}, s{S_TAU}, 1
        s_add_u32 s{t}, s{t}, s{t+1}""")
        return
    if c.kbase is not False:
        q = c.kbase
        k.e(f"""s_cmp_gt_u32 s{S_TAU}, {q}
        s_subb_u32 s{t+1}, s{S_TAU}, 0
        s_cmp_ge_u32 s{t+1}, s{S_KB}
        s_addc_u32 s{t+1}, s{t+1}, 0
        s_cmp_eq_u32 s{S_TAU}, {q}
        s_cselect_b32 s{t+1}, s{S_KB}, s{t+1}""")
        src = t+1
    if c.rot:
        P = len(c.rot); packed = 0
        for u, d in enumerate(c.rot): packed |= ((d+8) & 15) << (4*u)
        k.e(f"""s_sub_u32 s{t}, s{src}, s{S_PH}
        s_and_b32 s{t}, s{t}, {P-1}
        s_lshl_b32 s{t}, s{t}, 2
        s_lshr_b32 s{t}, {packed}, s{t}
        s_and_b32 s{t}, s{t}, 15
        s_add_u32 s{t}, s{t}, s{src}""")
        if c.T & (c.T-1) == 0:
            k.e(f"s_sub_u32 s{t}, s{t}, 8\ns_and_b32 s{t}, s{t}, {c.T-1}")
        else:
            RT = c.T - c.T % 4
            k.e(f"""s_add_u32 s{t}, s{t}, {RT-8}
            s_sub_u32 s{t+1}, s{t}, {RT}
            s_cmp_ge_u32 s{t}, {RT}
            s_cselect_b32 s{t}, s{t+1}, s{t}
            s_sub_u32 s{t+1}, s{t}, {RT}
            s_cmp_ge_u32 s{t}, {RT}
            s_cselect_b32 s{t}, s{t+1}, s{t}""")
            if RT != c.T: k.e(f"s_cmp_ge_u32 s{src}, {RT}\ns_cselect_b32 s{t}, s{src}, s{t}")
    else:
        k.e(f"s_mov_b32 s{t}, s{src}")
    if c.own2 == 1:
        k.e(f"""s_min_u32 s{t+1}, s{t}, s{S_TAU}
        s_max_u32 s{t+2}, s{t}, s{S_TAU}
        s_cmp_lt_u32 s{t+1}, 2
        s_cselect_b32 s{t+1}, s{t+2}, 0
        s_cmp_ge_u32 s{t+1}, 2
        s_cselect_b32 s{t}, s{S_TAU}, s{t}
        s_add_u32 s{t}, s{t}, s{S_KB}
        s_and_b32 s{t}, s{t}, {c.T-1}""")

def issue(k, c, vS, vF, parts="SF", fbase=False):
    t = S_T+8
    kstep(k, c, t)
    if DG[0] & 2: k.e(f"s_and_b32 s{t}, s{t}, 1")
    stepS = 7 if c.smode == 'rows' else 12
    stepF = 64*c.strideF if c.fmode == 'rows' else c.BN*128
    if 'S' in parts:
        k.e(f"""s_lshl_b32 s{S_OS}, s{t}, {stepS}
        s_mul_i32 s{t+1}, s{S_SLOT}, {c.slotS}
        s_add_u32 s{t+1}, s{t+1}, s{S_M0W}
        s_add_u32 m0, s{t+1}, {c.baseS}
        {gapi()}""")
        for i in range(c.nS):
            k.e(f"buffer_load_dwordx4 v{vS+i}, {srd(SRD_S)}, s{S_OS} offen {c.auxS} lds")
            if i < c.nS-1: k.e("s_add_u32 m0, m0, 2048\n" + gapi())
    if 'F' in parts:
        k.e(f"""s_mul_i32 s{S_OF}, s{t}, {stepF}
        s_mul_i32 s{t+1}, s{S_SLOT}, {c.slotF}
        s_add_u32 s{t+1}, s{t+1}, s{S_M0W}
        s_add_u32 m0, s{t+1}, {c.baseF}""")
        if fbase: k.e(f"s_add_u32 s{S_OF}, s{S_OF}, s{S_FB}")
        if CAP[0] or not fbase: k.e(gapi())
        for i in range(c.nF):
            k.e(f"buffer_load_dwordx4 v{vF+i}, {srd(SRD_F)}, s{S_OF} offen {c.auxF} lds")
            if i < c.nF-1: k.e("s_add_u32 m0, m0, 2048\n" + gapi())
    k.e(f"""s_add_u32 s{S_TAU}, s{S_TAU}, 1
    s_add_u32 s{S_SLOT}, s{S_SLOT}, 1
    s_cmp_eq_u32 s{S_SLOT}, {c.NS}
    s_cselect_b32 s{S_SLOT}, 0, s{S_SLOT}""")

def issue_first(k, c, vS, vF, parts, fbase=False, pbarrier=True, t0=0, t1=None):
    n = (c.nS if 'S' in parts else 0) + (c.nF if 'F' in parts else 0)
    top = k.lab("if"); l1 = k.lab("if1")
    t1 = c.NS if t1 is None else t1
    k.e(f"s_mov_b32 s{S_TAU}, {t0}\ns_mov_b32 s{S_SLOT}, {(t0+c.slot0) % c.NS}\n{top}:")
    issue(k, c, vS, vF, parts, fbase)
    if pbarrier:
        k.e(f"s_cmp_lg_u32 s{S_TAU}, 2\ns_cbranch_scc1 {l1}\ns_waitcnt vmcnt({n})\ns_barrier\n{l1}:")
    k.e(f"s_cmp_lt_u32 s{S_TAU}, {t1}\ns_cbranch_scc1 {top}")

CAP = [0]
DG = [0]
def gapi():
    return f"s_waitcnt vmcnt({CAP[0]})" if CAP[0] else "s_nop 0"
ITST = [0, 254]
def itstamp(k):
    if ITST[0]:
        k.e(f"{'s_memtime' if ITST[0] == 2 else 's_memrealtime'} s[{S_ST}:{S_ST+1}]\ns_waitcnt lgkmcnt(0)\ns_mov_b32 m0, s97\ns_nop 0\nv_writelane_b32 v{ITST[1]}, s{S_ST}, m0\ns_add_u32 s97, s97, 1")

S_PA = 60
UNR = [2]
def prep_groups(k, c, dst, fbase):
    t = S_T+8
    tk = Kern(k.name); kstep(tk, c, t)
    if DG[0] & 2: tk.e(f"s_and_b32 s{t}, s{t}, 1")
    stepS = 7 if c.smode == 'rows' else 12
    stepF = 64*c.strideF if c.fmode == 'rows' else c.BN*128
    tk.e(f"s_lshl_b32 s{dst}, s{t}, {stepS}\ns_mul_i32 s{dst+1}, s{t}, {stepF}")
    if fbase: tk.e(f"s_add_u32 s{dst+1}, s{dst+1}, s{S_FB}")
    tk.e(f"""s_mul_i32 s{dst+2}, s{S_SLOT}, {c.slotS}
    s_add_u32 s{dst+2}, s{dst+2}, s{S_M0W}
    s_mul_i32 s{dst+3}, s{S_SLOT}, {c.slotF}
    s_add_u32 s{dst+3}, s{dst+3}, s{S_M0W}
    s_add_u32 s{S_TAU}, s{S_TAU}, 1
    s_add_u32 s{S_SLOT}, s{S_SLOT}, 1
    s_cmp_eq_u32 s{S_SLOT}, {c.NS}
    s_cselect_b32 s{S_SLOT}, 0, s{S_SLOT}""")
    L = [x.strip() for x in tk.L]; G = []
    for x in L:
        if x.startswith(("s_cselect", "s_addc", "s_subb")): G[-1].append(x)
        else: G.append([x])
    return G

def steady(k, c, vS, vF, upto, fbase=False, wait=None):
    top = k.lab("st"); done = k.lab("std")
    w = (c.NS-2)*c.nI if wait is None else wait
    sets = [S_PA, S_PA+8]
    for g in prep_groups(k, c, sets[0], fbase):
        for x in g: k.e(x)
    k.e(f"{top}:")
    for h in range(2):
        cur, nx = sets[h], sets[h ^ 1]
        G = prep_groups(k, c, nx, fbase)
        dm = []
        if not DG[0] & 4: dm += [(f"buffer_load_dwordx4 v{vS+i}, {srd(SRD_S)}, s{cur} offen {c.auxS} lds", f"s_add_u32 m0, s{cur+2}, {c.baseS + i*2048}") for i in range(c.nS)]
        if not DG[0] & 8: dm += [(f"buffer_load_dwordx4 v{vF+i}, {srd(SRD_F)}, s{cur+1} offen {c.auxF} lds", f"s_add_u32 m0, s{cur+3}, {c.baseF + i*2048}") for i in range(c.nF)]
        if dm and not ITST[0]: k.e(dm[0][1])
        k.e(f"s_waitcnt vmcnt({w})\ns_barrier")
        if ITST[0]:
            itstamp(k)
            if dm: k.e(dm[0][1] + "\ns_nop 0")
        ng = max(len(dm)-1, 1); gi = 0
        for i, (ld, m0) in enumerate(dm):
            k.e(ld)
            if i < len(dm)-1:
                k.e(dm[i+1][1])
                tgt = -(-len(G)*(i+1)//ng); n0 = gi
                while gi < tgt:
                    for x in G[gi]: k.e(x)
                    gi += 1
                if gi == n0: k.e("s_nop 0")
        while gi < len(G):
            for x in G[gi]: k.e(x)
            gi += 1
        if h == 0: k.e(f"s_cmp_gt_u32 s{S_TAU}, {upto}\ns_cbranch_scc1 {done}")
        else: k.e(f"s_cmp_le_u32 s{S_TAU}, {upto}\ns_cbranch_scc1 {top}")
    k.e(f"""{done}:
    s_sub_u32 s{S_TAU}, s{S_TAU}, 1
    s_cmp_eq_u32 s{S_SLOT}, 0
    s_cselect_b32 s{S_SLOT}, {c.NS}, s{S_SLOT}
    s_sub_u32 s{S_SLOT}, s{S_SLOT}, 1""")

def issue_noadv(k, c, vS, vF, parts, fbase=False):
    n0 = len(k.L)
    issue(k, c, vS, vF, parts, fbase)
    del k.L[-4:]

def steady_skew(k, c, vS, vF):
    top = k.lab("sk"); done = k.lab("skd")
    k.e(f"{top}:\ns_waitcnt vmcnt({c.nS+2*c.nF})\ns_barrier")
    itstamp(k)
    issue(k, c, vS, vF, "S")
    k.e(f"s_cmp_eq_u32 s{S_TAU}, {c.T}\ns_cbranch_scc1 {done}")
    issue_noadv(k, c, vS, vF, "F")
    k.e(f"s_branch {top}\n{done}:")

def one(k, c, vS, vF, fbase=False, wait=None):
    w = (c.NS-2)*c.nI if wait is None else wait
    k.e(f"s_waitcnt vmcnt({w})\ns_barrier")
    itstamp(k)
    issue(k, c, vS, vF, "SF", fbase)

def after_split_prologue(k, c, vS, vF, first_n, fbase=False):
    for j in range(c.NS-2):
        one(k, c, vS, vF, fbase, wait=(c.NS-2-j)*first_n + j*c.nI)

def consumer_addr(k, c, R, slot=None, t=16, setslot=True):
    wm = S_WM; wn = S_WN
    lw = int(math.log2(c.WN))
    slot = c.slot0 if slot is None else slot
    if setslot:
        k.e(f"s_mov_b32 s{S_SLOT}, {slot}\ns_mov_b32 s{S_OS}, {-(c.NS-1)*c.slotS}\ns_mov_b32 s{S_OF}, {-(c.NS-1)*c.slotF}")
        for g in slot_adv(c): k.e(g)
    k.e(f"s_lshr_b32 s{wm}, s{S_WAVE}, {lw}\ns_and_b32 s{wn}, s{S_WAVE}, {c.WN-1}")
    k.e(f"s_mul_i32 s{S_T+6}, s{wm}, {c.TM*4096}\ns_add_u32 s{S_T+6}, s{S_T+6}, {c.baseS + slot*c.slotS}")
    k.e(f"v_and_b32 v{t}, 15, v1\nv_lshrrev_b32 v{t+1}, 4, v1")
    if c.smode == 'rows':
        k.e(f"""v_bfe_u32 v{t+2}, v1, 1, 3
        v_xor_b32 v{t+2}, v{t+2}, v{t+1}
        v_lshlrev_b32 v{t+2}, 4, v{t+2}
        v_lshl_add_u32 v{t+2}, v{t}, 7, v{t+2}
        v_add_u32 v{R.aS[0]}, s{S_T+6}, v{t+2}
        v_xor_b32 v{R.aS[1]}, 64, v{R.aS[0]}""")
    else:
        k.e(f"""v_lshlrev_b32 v{t+2}, 4, v{t}
        v_lshl_add_u32 v{t+2}, v{t+1}, 9, v{t+2}
        v_add_u32 v{R.aS[0]}, s{S_T+6}, v{t+2}""")
    a0 = R.aF[0]
    if c.fmode == 'rows':
        k.e(f"""v_bfe_u32 v{t+2}, v1, 2, 2
        v_lshlrev_b32 v{a0}, 7, v{t+2}
        v_lshl_add_u32 v{a0}, v{t+1}, 10, v{a0}
        v_bfe_u32 v{t+2}, v1, 3, 1
        v_lshl_add_u32 v{a0}, v{t+2}, 6, v{a0}
        v_bfe_u32 v{t+2}, v1, 4, 1
        v_lshl_add_u32 v{a0}, v{t+2}, 5, v{a0}
        s_mov_b32 s{S_T+6}, {c.baseF + slot*c.slotF}""")
        if c.panel_from_wave: k.e(f"s_lshl_b32 s{S_T+7}, s{wn}, 13\ns_add_u32 s{S_T+6}, s{S_T+6}, s{S_T+7}")
        k.e(f"v_add_u32 v{a0}, s{S_T+6}, v{a0}")
        if c.nb_from_wave:
            k.e(f"s_lshl_b32 s{S_T+7}, s{wn}, 6\nv_xor_b32 v{a0}, s{S_T+7}, v{a0}")
            k.e(f"""v_and_b32 v{t+2}, 1, v1
            v_lshl_add_u32 v{R.aF[2]}, v{t+2}, 4, v{a0}
            v_bfe_u32 v{t+2}, v1, 1, 1
            v_lshl_add_u32 v{R.aF[2]}, v{t+2}, 3, v{R.aF[2]}
            v_xor_b32 v{R.aF[3]}, 32, v{R.aF[2]}""")
        k.e(f"v_and_b32 v{t+2}, 3, v1\nv_lshl_add_u32 v{a0}, v{t+2}, 3, v{a0}")
        for b in range(1, 2 if c.nb_from_wave else 4): k.e(f"v_xor_b32 v{R.aF[b]}, {32*b}, v{a0}")
    else:
        k.e(f"""v_bfe_u32 v{t+2}, v1, 2, 2
        v_lshl_add_u32 v{t+2}, v{t+1}, 3, v{t+2}
        v_lshlrev_b32 v{a0}, 4, v{t+2}
        v_bfe_u32 v{t+2}, v1, 1, 1
        v_lshl_add_u32 v{a0}, v{t+2}, 6, v{a0}
        v_lshl_add_u32 v{a0}, v{t+2}, 9, v{a0}
        v_and_b32 v{t+2}, 1, v1
        v_lshl_add_u32 v{a0}, v{t+2}, 3, v{a0}
        s_lshl_b32 s{S_T+6}, s{wn}, 12
        s_add_u32 s{S_T+6}, s{S_T+6}, {c.baseF + slot*c.slotF}
        v_add_u32 v{a0}, s{S_T+6}, v{a0}
        v_xor_b32 v{R.aF[1]}, 64, v{a0}""")

def slot_adv(c):
    if c.NS == 4:
        g = [f"s_add_u32 s{S_SLOT}, s{S_SLOT}, 1", f"s_and_b32 s{S_SLOT}, s{S_SLOT}, 3\ns_cselect_b32 s{S_DS}, {c.slotS}, s{S_OS}"]
        if c.slotF != c.slotS:
            assert 2*c.slotF == c.slotS
            g.append(f"s_ashr_i32 s{S_DF}, s{S_DS}, 1")
        return g
    return [f"s_add_u32 s{S_SLOT}, s{S_SLOT}, 1\ns_cmp_lg_u32 s{S_SLOT}, {c.NS}",
            f"s_cselect_b32 s{S_DS}, {c.slotS}, s{S_OS}\ns_cselect_b32 s{S_DF}, {c.slotF}, s{S_OF}", f"s_cselect_b32 s{S_SLOT}, s{S_SLOT}, 0"]

M16 = "v_mfma_f32_16x16x32_bf16"
class Cons:
    def __init__(s_, k, c, R):
        s_.k = k; s_.c = c; s_.R = R
        s_.TS = 2*c.TM; s_.TF = 2*c.TN
        s_.NF = (48 - 8*s_.TS)//4
        assert (2*s_.TF) % s_.NF == 0
        s_.NM = 2*s_.TS*s_.TF
        s_.jo = list(c.jorder) if c.jorder else list(range(2*s_.TF))
        s_.pos = {j: i for i, j in enumerate(s_.jo)}
        s_.plan()
    def acc(s_, st, ft): return s_.R.acc + 16*(ft*s_.c.TM+st)
    def sub(s_, t, f):
        a = s_.acc(t >> 1, f >> 1)
        return a + (8*(f & 1) + 4*(t & 1) if s_.c.orient[f >> 1] == 'T' else 8*(t & 1) + 4*(f & 1))
    def rS(s_, u, t): return s_.R.fr + (u*s_.TS + t)*4
    def rF(s_, j): return s_.R.fr + 8*s_.TS + (s_.pos[j] % s_.NF)*4
    def order(s_, f): return list(range(s_.TS)) if f % 2 == 0 else list(range(s_.TS-1, -1, -1))
    def rdS(s_, u, t):
        c, R = s_.c, s_.R
        if c.smode == 'rows': return f"ds_read_b128 {vr(s_.rS(u,t),4)}, v{R.aS[u]} offset:{t*2048}"
        return f"ds_read_b128 {vr(s_.rS(u,t),4)}, v{R.aS[0]} offset:{(t>>1)*4096 + u*2048 + (t&1)*256}"
    def rdF(s_, j, rd):
        c, R = s_.c, s_.R
        u, f = divmod(j, s_.TF); P, nb = c.ftiles[f >> 1]
        if c.fmode == 'rows':
            if c.nb_from_wave: a = R.aF[(f & 1) + (2 if c.orient[f >> 1] == 'N' else 0)]
            else: a = R.aF[2*nb + (f & 1)]
            return f"ds_read_b64_tr_b16 {vr(s_.rF(j)+2*rd,2)}, v{a} offset:{P*8192 + u*4096 + rd*512}"
        return f"ds_read_b64_tr_b16 {vr(s_.rF(j)+2*rd,2)}, v{R.aF[rd]} offset:{u*c.BN*64 + ((P*2+nb)*2 + (f&1))*1024}"
    def plan(s_):
        TS, TF, NF, NM = s_.TS, s_.TF, s_.NF, s_.NM
        G = TS*TF
        pb = s_.c.pb
        items = []
        for u in range(2):
            ps = [s_.pos[j] for j in range(u*TF, (u+1)*TF)]
            for t in range(TS): items.append((min(ps)*TS + t, (max(ps)+1)*TS - NM, s_.rdS(u, t), ('S', u, t)))
        for j in range(2*TF):
            i = s_.pos[j]
            for rd in range(2): items.append((i*TS - 0.5 + 0.1*rd, (i-NF+1)*TS, s_.rdF(j, rd), ('F', j)))
        items.sort(key=lambda x: x[0])
        cnt = {}; sched = []; g = pb - NM
        for use, e, txt, tag in items:
            g = max(g, e)
            cap = lambda gg: 2 if (gg < pb - NM + s_.c.burst or s_.c.cap2) else 1
            while cnt.get(g, 0) >= cap(g): g += 1
            cnt[g] = cnt.get(g, 0) + 1
            sched.append((g, txt, tag))
            assert g <= use + 0.5, (g, use, tag)
        s_.sched = sched; s_.lastcur = max(g for g, _, _ in sched)
        assert s_.lastcur < pb, (s_.lastcur, pb)
    def first_reads_static(s_, slot):
        for g, txt, tag in s_.sched:
            if g < 0:
                a, b = txt.rsplit("offset:", 1)
                s_.k.e(f"{a}offset:{int(b) + slot*(s_.c.slotS if tag[0] == 'S' else s_.c.slotF)}")
    def loop4(s_, nrep, slot):
        k = s_.k; lp = k.lab("c4")
        k.e(f"s_mov_b32 s{S_CNT}, {nrep}\n.p2align 6\n{lp}:")
        for i in range(s_.c.NS):
            s_.loop(1, slot=(slot+i) % s_.c.NS, fillers=([f"s_sub_u32 s{S_CNT}, s{S_CNT}, 1", f"s_cmp_lg_u32 s{S_CNT}, 0"] if i == s_.c.NS-1 else None))
        k.e(f"s_cbranch_scc1 {lp}")
    def loopu(s_, nrep, unr):
        k = s_.k; lp = k.lab("cu")
        if nrep > 1: k.e(f"s_mov_b32 s{S_CNT}, {nrep}\n.p2align 6\n{lp}:")
        for i in range(unr): s_.loop(1)
        if nrep > 1: k.e(f"s_sub_u32 s{S_CNT}, s{S_CNT}, 1\ns_cmp_lg_u32 s{S_CNT}, 0\ns_cbranch_scc1 {lp}")
    def zero(s_):
        for i in range(0, s_.c.TM*s_.c.TN*16, 2): s_.k.e(f"v_mov_b64 v[{s_.R.acc+i}:{s_.R.acc+i+1}], 0")
    def first_reads(s_):
        for g, txt, tag in s_.sched:
            if g < 0: s_.k.e(txt)
    def loop(s_, nsteps, pre_barrier=None, fillers=None, budget=8, next_cons=None, tail=None, slot=None, nslot=None, fstart=1):
        k, c, R = s_.k, s_.c, s_.R
        TS, TF, NM, pb = s_.TS, s_.TF, s_.NM, s_.c.pb
        q = [tag for g, _, tag in s_.sched if g < 0]
        lp = k.lab("cloop")
        if nsteps > 1: k.e(f"s_mov_b32 s{S_CNT}, 0\n.p2align 6\n{lp}:")
        gaps = [[] for _ in range(NM+1)]; mfs = []
        nxt = s_ if next_cons is None else next_cons
        byg = {}
        def sh(txt, tag, cc, sl):
            if sl is None: return txt
            a, b = txt.rsplit("offset:", 1)
            o = int(b) + sl*(cc.slotS if tag[0] == 'S' else cc.slotF)
            assert o < 65536
            return f"{a}offset:{o}"
        if slot is not None and nslot is None: nslot = (slot+1) % c.NS
        for g, txt, tag in s_.sched:
            if g >= 0: byg.setdefault(g, []).append((sh(txt, tag, c, slot), tag))
        if nxt:
            for g, txt, tag in nxt.sched:
                if g < 0: byg.setdefault(max(g + NM, pb), []).append((sh(txt, tag, nxt.c, nslot), ('n',)+tag))
        for i, txt in enumerate(tail or []): byg.setdefault(min(pb + i//2, NM), []).append((txt, ('x', i)))
        dF = S_DF if c.slotF != c.slotS else S_DS
        upd = [f"v_add_u32 v{a}, s{S_DS}, v{a}" for a in R.aS] + [f"v_add_u32 v{a}, s{dF}, v{a}" for a in R.aF]
        if slot is not None: upd = []
        ng = max(pb - s_.lastcur - 1, 1); per = max(-(-len(upd)//ng), 1)
        misc = {}
        for i, x in enumerate(upd): misc.setdefault(s_.lastcur + 1 + i//per, []).append(x)
        sal = ([f"s_add_u32 s{S_CNT}, s{S_CNT}, 1"] if nsteps > 1 else []) + slot_adv(c)
        if slot is not None: sal = []
        assert c.NS == 4 or not fillers
        assert len(sal) <= NM-pb-1
        free = sorted(range(pb+1, NM), key=lambda g: (len(byg.get(g, [])), -g))[:len(sal)]
        for g, x in zip(sorted(free), sal): misc.setdefault(g, []).extend(x.split("\n"))
        when = {tag: g for g, _, tag in s_.sched}
        p = 0
        for j in s_.jo:
            u, f = divmod(j, TF)
            for t in s_.order(f):
                G_ = gaps[p]
                G_ += misc.get(p, [])
                if p == pb:
                    G_.append("s_waitcnt lgkmcnt(0)" + (" vmcnt(0)" if pre_barrier == "vm" else "")); q.clear()
                    G_.append("s_barrier")
                tags = [('S', u, t), ('F', j)]
                if len(q) + len(byg.get(p, [])) > 15:
                    idx = max([i for i, tg in enumerate(q) if tg in tags] + [len(q) + len(byg[p]) - 16])
                    while idx+1 < len(q) and when.get(q[idx+1], 99) <= p - c.old: idx += 1
                    G_.append(f"s_waitcnt lgkmcnt({len(q)-1-idx})"); del q[:idx+1]
                for txt, tag in byg.get(p, []): G_.append(txt); q.append(tag)
                idx = max([i for i, tg in enumerate(q) if tg in tags], default=-1)
                if idx >= 0:
                    while idx+1 < len(q) and when.get(q[idx+1], 99) <= p - c.old: idx += 1
                    n = len(q) - 1 - idx
                    assert n <= 15
                    G_.append(f"s_waitcnt lgkmcnt({n})"); del q[:idx+1]
                a, b = (s_.rF(j), s_.rS(u, t)) if c.orient[f >> 1] == 'T' else (s_.rS(u, t), s_.rF(j))
                d = s_.sub(t, f)
                mfs.append(f"{M16} {vr(d,4)}, {vr(a,4)}, {vr(b,4)}, {vr(d,4)}")
                p += 1
        for txt, tag in byg.get(NM, []): gaps[NM].append(txt)
        if nsteps > 1: gaps[NM] += [f"s_cmp_lt_u32 s{S_CNT}, {nsteps}", f"s_cbranch_scc1 {lp}"]
        def cost(x):
            if x.startswith(("v_exp", "v_rcp", "v_rsq", "v_sqrt")): return 8
            if x.startswith("buffer_"): return 8
            if x.startswith("s_barrier"): return 8
            return 4
        fl = list(fillers or [])
        place = [[] for _ in gaps]
        if fl:
            ngp = len(gaps)
            used = [sum(cost(x) for x in g) for g in gaps]
            used[-1] += used[0]
            b = budget
            while True:
                fi = 0; place = [[] for _ in gaps]
                tot = sum(cost(x) for x in fl); fre = sum(max(b-used[g], 0) for g in range(fstart, ngp)); acc = 0; done = 0
                for g in range(fstart, ngp):
                    room = max(b - used[g], 0); acc += room
                    while fi < len(fl) and cost(fl[fi]) <= room and done < acc*tot/max(fre, 1):
                        room -= cost(fl[fi]); done += cost(fl[fi]); place[g].append(fl[fi]); fi += 1
                if fi == len(fl): break
                b += 4
        for g in range(len(gaps)):
            for x in place[g]:
                if x != 'PAD': k.e(x)
            for x in gaps[g]: k.e(x)
            if g < len(mfs): k.e(mfs[g])
```

```python
import sys, struct
from core4 import *

MB = 1<<20
WS_O=4*MB; WS_H=8*MB; WS_Z2N=20*MB; WS_U=28*MB
WS_KVP=36*MB; WS_ZP=38*MB; WS_KVF=38*MB+131072; WS_ZF=38*MB+262144; WS_HC=38*MB+524288; WS_XS=39*MB; WS_CQP=39*MB+65536; WS_CSP=39*MB+512*1024
WS_XP=12*MB; WS_HST=40*MB; WS_ZST=41*MB
FLS=4352
WS_FLAG=42*MB; F_O=WS_FLAG; F_H=WS_FLAG+16*FLS; F_Z=WS_FLAG+32*FLS; F_U=WS_FLAG+48*FLS
WS_END=43*MB
P_X=0; P_WQKV=1; P_WPHI=2; P_WO=3; P_WIN=5; P_WSP=6; P_BSP=7; P_WOUT=8; P_OUT=9; P_DBG=10; P_WS=11
S_Q=92; S_CW=90
L_CW=131072
L_WPHI=147456; L_XS=L_WPHI+4096; L_CQ=L_XS+1024; L_HS=L_CQ+1024; L_CS=L_HS+2048; L_ZP=L_CS+1024; L_ZS=L_ZP+2048; L_END=L_ZS+1024
KNAME = "sequential_preLN__linear_kernel_hedgehog__mixer_gmlp__prompt_kernel"

def f2u(x): return struct.unpack("<I", struct.pack("<f", x))[0]
LOG2E = 1.4426950408889634
C0 = -2*LOG2E*0.7978845608028654; C1 = C0*0.044715
MF = "v_mfma_f32_32x32x16_bf16"
W = srd(SRD_W)

class Opt:
    stamps = 0
    pf = 1
    slp = 4
    gat = 17
    spq = 2
    z1fill = 1
    nfill = 2
    p1ph = 1
    own2 = 1
    p4ph = 0
    vprio = 0
    zsp = 2
    dsx = 0
    kfslp = 14
    pfd = 2
    qpf = 0
    pb1 = 40
    pb2 = 10
    pb3 = 24
    bu = 3
    pads = 1
    xa = 0
    gb = 1
    nst = 2
    xl = 0
    sk = 1
    jo = 1
    jpad = 10
    f5 = 1
    pb5 = 25
    xslp = 6
    ct = 2
    p4loop = 0
    u1 = 3
    u3 = 3
    dg = 0
    bud = 8
    r1 = 0
    r2 = 0
    r3 = 0
    r4 = 0
    r5 = 0
    st4 = 5
    old = 7
    old2 = 7
    cyc = 0
    lead = 6
    fpos = 1
    l2 = 0
    r8 = 0
    kfe = 0
    kvr = 5
    probe = 0
    pwg = 83
    pfrom = 0
    pwave = 0
    cap = 0
    vmd = 1
    z1n = 2
    pa = 3
    pl = 2
    pc = 0
    kvslp = 16
OPT = Opt()

def unpack(k, lo, hi, src):
    k.e(f"v_lshlrev_b32 v{lo}, 16, v{src}\nv_and_b32 v{hi}, 0xffff0000, v{src}")
def cvt16(k, dst, src):
    for i in range(8): k.e(f"v_cvt_pk_bf16_f32 v{dst+i}, v{src+2*i}, v{src+2*i+1}")
def stamp(k, i):
    if OPT.stamps:
        k.e(f"s_memrealtime s[{S_ST}:{S_ST+1}]\ns_waitcnt lgkmcnt(0)\nv_writelane_b32 v255, s{S_ST}, {i}")
        if OPT.cyc: k.e(f"s_memtime s[{S_ST}:{S_ST+1}]\ns_waitcnt lgkmcnt(0)\nv_writelane_b32 v255, s{S_ST}, {i+32}")
def bars(k, n):
    if n <= 4:
        for _ in range(n): k.e("s_barrier")
    else:
        t = k.lab("bars")
        k.e(f"s_mov_b32 s{S_CNT}, {n}\n{t}:\ns_barrier\ns_sub_u32 s{S_CNT}, s{S_CNT}, 1\ns_cmp_lg_u32 s{S_CNT}, 0\ns_cbranch_scc1 {t}")

def check_flags(k, nflags, val, oklab):
    k.e(f"""v_cmp_le_u32 vcc, {val}, v8
    s_and_b32 s{S_T+11}, vcc_lo, {(1<<nflags)-1}
    s_cmp_eq_u32 s{S_T+11}, {(1<<nflags)-1}
    s_cbranch_scc1 {oklab}""")
def spin_tail(k, top):
    k.e(f"s_sleep {OPT.slp}\ns_sub_u32 s{S_T+10}, s{S_T+10}, 1\ns_cmp_lg_u32 s{S_T+10}, 0\ns_cbranch_scc1 {top}")
def poll(k, voff, nflags, srdn=SRD_W, val=1, pre=False):
    top = k.lab("poll"); done = k.lab("polld")
    k.e(f"s_cmp_lg_u32 s{S_LW}, 0\ns_cbranch_scc1 {done}")
    if pre:
        k.e("s_waitcnt vmcnt(0)")
        check_flags(k, nflags, val, done)
    k.e(f"s_mov_b32 s{S_T+10}, 0x40000\n{top}:")
    k.e(f"buffer_load_dword v8, v{voff}, {srd(srdn)}, 0 offen sc1\ns_waitcnt vmcnt(0)")
    check_flags(k, nflags, val, done)
    spin_tail(k, top)
    k.e(f"{done}:")
def sample(k, voff, srdn=SRD_W):
    sk = k.lab("nosm")
    k.e(f"s_cmp_lg_u32 s{S_LW}, 0\ns_cbranch_scc1 {sk}\nbuffer_load_dword v8, v{voff}, {srd(srdn)}, 0 offen sc1\n{sk}:")
def tagcheck(k, regs, t, ok):
    regs = list(regs)
    if len(regs) % 2 == 0:
        k.e(f"v_max_u32 v{t}, v{regs[0]}, v{regs[1]}"); rest = regs[2:]
    else:
        k.e(f"v_max3_u32 v{t}, v{regs[0]}, v{regs[1]}, v{regs[2]}"); rest = regs[3:]
    for i in range(0, len(rest), 2): k.e(f"v_max3_u32 v{t}, v{t}, v{rest[i]}, v{rest[i+1]}")
    k.e(f"v_cmp_eq_u32 vcc, -1, v{t}\ns_cmp_eq_u64 vcc, 0\ns_cbranch_scc1 {ok}")
def validated(k, gather, regs, t, pre=True):
    top = k.lab("vsp"); ok = k.lab("vok")
    if pre: tagcheck(k, regs, t, ok)
    k.e(f"s_mov_b32 s{S_T+10}, 0x40000\n{top}:")
    gather()
    k.e("s_waitcnt vmcnt(0)")
    tagcheck(k, regs, t, ok)
    spin_tail(k, top)
    k.e(f"{ok}:")

def cnt_addr(k, v, base, sline):
    k.e(f"""s_mul_i32 s{S_T}, s{sline}, {FLS}
    s_add_u32 s{S_T}, s{S_T}, {base}
    v_mov_b32 v{v}, s{S_T}""")
def set_flag(k, vset):
    sk = k.lab("nofl")
    k.e(f"""s_cmp_lg_u32 s{S_LW}, 0
    s_cbranch_scc1 {sk}
    s_mov_b64 exec, 1
    buffer_atomic_add v11, v{vset}, {W}, 0 offen sc1
    s_mov_b64 exec, -1
    {sk}:""")

def softmax_pm(k0, P, EP, EN, T, OP, ON, inject=(), wpos=(), wneg=()):
    L = S_K
    k = Kern(k0.name)
    k.e(f"v_max3_f32 v{T}, v{P}, v{P+1}, v{P+2}\nv_min3_f32 v{T+1}, v{P}, v{P+1}, v{P+2}")
    for i in range(3, 15, 2):
        k.e(f"v_max3_f32 v{T}, v{T}, v{P+i}, v{P+i+1}\nv_min3_f32 v{T+1}, v{T+1}, v{P+i}, v{P+i+1}")
    k.e(f"""v_max_f32 v{T}, v{T}, v{P+15}
    v_max_f32 v{T+1}, -v{T+1}, -v{P+15}
    s_nop 1
    v_permlane32_swap_b32 v{T}, v{T+1}
    v_max_f32 v{T}, v{T}, v{T+1}
    v_mul_f32 v{T}, {f2u(-LOG2E)}, v{T}
    v_mov_b32 v{T+1}, v{T}
    s_nop 1
    v_permlane32_swap_b32 v{T}, v{T+1}""")
    for i in range(8):
        k.e(f"v_pk_fma_f32 v[{EP+2*i}:{EP+2*i+1}], v[{P+2*i}:{P+2*i+1}], s[{L}:{L+1}], v[{T}:{T+1}] op_sel_hi:[1,1,0]")
        k.e(f"v_pk_fma_f32 v[{EN+2*i}:{EN+2*i+1}], v[{P+2*i}:{P+2*i+1}], s[{L}:{L+1}], v[{T}:{T+1}] op_sel:[0,0,1] op_sel_hi:[1,1,1] neg_lo:[0,1,0] neg_hi:[0,1,0]")
    for i in range(16):
        k.e(f"v_exp_f32 v{EP+i}, v{EP+i}\nv_exp_f32 v{EN+i}, v{EN+i}")
    k.e(f"v_pk_add_f32 v[{T}:{T+1}], v[{EP}:{EP+1}], v[{EP+2}:{EP+3}]\nv_pk_add_f32 v[{T+2}:{T+3}], v[{EN}:{EN+1}], v[{EN+2}:{EN+3}]")
    for i in range(2, 8):
        k.e(f"v_pk_add_f32 v[{T}:{T+1}], v[{T}:{T+1}], v[{EP+2*i}:{EP+2*i+1}]\nv_pk_add_f32 v[{T+2}:{T+3}], v[{T+2}:{T+3}], v[{EN+2*i}:{EN+2*i+1}]")
    k.e(f"""v_add_f32 v{T}, v{T}, v{T+1}
    v_add_f32 v{T+1}, v{T+2}, v{T+3}
    s_nop 1
    v_permlane32_swap_b32 v{T}, v{T+1}
    v_add_f32 v{T}, v{T}, v{T+1}
    v_rcp_f32 v{T}, v{T}
    s_nop 0
    v_mov_b32 v{T+1}, v{T}
    s_nop 1
    v_permlane32_swap_b32 v{T}, v{T+1}""")
    inj = list(inject); step = max(len(k.L)//(len(inj)+1), 1)
    for i, x in enumerate(k.L):
        k0.e(x)
        if inj and i % step == step-1: k0.e(inj.pop(0))
    for x in inj: k0.e(x)
    k = k0
    for E, O, sel, wr in ((EP, OP, "op_sel_hi:[1,0]", wpos), (EN, ON, "op_sel:[0,1] op_sel_hi:[1,1]", wneg)):
        for hh in range(2):
            for i in range(4*hh, 4*hh+4): k.e(f"v_pk_mul_f32 v[{E+2*i}:{E+2*i+1}], v[{E+2*i}:{E+2*i+1}], v[{T}:{T+1}] {sel}")
            for i in range(4*hh, 4*hh+4): k.e(f"v_cvt_pk_bf16_f32 v{O+i}, v{E+2*i}, v{E+2*i+1}")
            if wr: k.e(wr[hh])

def xhalf_sum2(k, a):
    k.e(f"""s_nop 1
    v_permlane32_swap_b32 v{a}, v{a+1}
    v_add_f32 v{a}, v{a}, v{a+1}
    v_mov_b32 v{a+1}, v{a}
    s_nop 1
    v_permlane32_swap_b32 v{a}, v{a+1}""")
def xswap_sum1(k, a, t, which=32):
    k.e(f"v_mov_b32 v{t}, v{a}\ns_nop 1\nv_permlane{which}_swap_b32 v{a}, v{t}\nv_add_f32 v{a}, v{a}, v{t}")
def xswap_sum(k, a, t, n, which):
    for i in range(n): k.e(f"v_mov_b32 v{t+i}, v{a+i}")
    k.e("s_nop 1")
    for i in range(n): k.e(f"v_permlane{which}_swap_b32 v{a+i}, v{t+i}")
    for i in range(n): k.e(f"v_add_f32 v{a+i}, v{a+i}, v{t+i}")
def ror_sum(k, a, n, sh):
    k.e("s_nop 1")
    for i in range(n): k.e(f"v_add_f32_dpp v{a+i}, v{a+i}, v{a+i} row_ror:{sh} row_mask:0xf bank_mask:0xf")
def acc_bf16(k, A, src, n, first, t, plain=False):
    for j in range(n):
        if first: unpack(k, A+2*j, A+2*j+1, src+j)
        elif plain:
            tt = t+2*(j & 1)
            unpack(k, tt, tt+1, src+j)
            k.e(f"v_add_f32 v{A+2*j}, v{A+2*j}, v{tt}\nv_add_f32 v{A+2*j+1}, v{A+2*j+1}, v{tt+1}")
        else:
            tt = t+2*(j & 1)
            unpack(k, tt, tt+1, src+j)
            k.e(f"v_pk_add_f32 v[{A+2*j}:{A+2*j+1}], v[{A+2*j}:{A+2*j+1}], v[{tt}:{tt+1}]")
def combine(k, P, n, cnt, d, t):
    k.e(f"v_pk_add_f32 v[{d}:{d+1}], v[{P}:{P+1}], v[{P+2}:{P+3}]")
    for i in range(2, n): k.e(f"v_pk_add_f32 v[{d}:{d+1}], v[{d}:{d+1}], v[{P+2*i}:{P+2*i+1}]")
    k.e(f"v_mul_f32 v{d}, {f2u(1.0/n)}, v{d}\nv_mov_b32 v{t+1}, 0")
    for i in range(n): k.e(f"v_sub_f32 v{t}, v{P+2*i}, v{d}\nv_fmac_f32 v{t+1}, v{t}, v{t}")
    k.e(f"v_fmac_f32 v{d+1}, {f2u(float(cnt))}, v{t+1}")
def finish_rstd(k, d, total):
    k.e(f"""v_mul_f32 v{d+1}, {f2u(1.0/total)}, v{d+1}
    v_add_f32 v{d+1}, {f2u(1e-5)}, v{d+1}
    v_rsq_f32 v{d+1}, v{d+1}
    s_nop 0
    v_mul_f32 v{d}, -v{d}, v{d+1}""")

ROTS = [(-1,0,2,-1), (-1,0,0,1), (-1,3,-1,-1), (-2,-2,-1,5), (0,0,0,0), (-2,-2,6,-2)]
def cfgs():
    c1 = Cfg(128,192,16,3,2,2,1, 2048, 6144, [(1,0),(2,0),(0,0)], True, False, orient=['T','N','T'], smode='rows', baseS=0, baseF=49152, kbase=OPT.spq, rot=ROTS[OPT.r1], pb=OPT.pb1, burst=OPT.bu, old=OPT.old)
    c2 = Cfg(128,64,16,4,4,1,2, 2048, 2048, [(0,0),(0,1)], False, False, smode='frag', auxS="sc1", rot=ROTS[OPT.r2], pb=OPT.pb2, cap2=True, old=OPT.old2)
    c3 = Cfg(128,128,16,4,2,2,1, 2048, 7168, [(0,0),(0,1)], False, True, smode='frag', auxS="sc1", slot0=2, rot=ROTS[OPT.r3], pb=OPT.pb3, burst=OPT.bu, old=OPT.old)
    c4 = Cfg(128,128,32,4,2,2,1, 4096, 0, [(0,0),(0,1)], False, True, smode='rows', fmode='blk', auxF="sc1", rot=(-1,0,0,1) if OPT.own2 == 1 else ROTS[OPT.r4], own2=OPT.own2, pb=OPT.pb3, burst=OPT.bu, old=OPT.old)
    c5 = Cfg(128,64,28,4,4,1,2, 3584, 2048, [(0,0),(0,1)], False, False, smode='frag', auxS="sc1", baseF=114688, slot0=2, rot=ROTS[OPT.r5], pb=OPT.pb2, cap2=True, old=OPT.old2)
    if OPT.sk:
        c5 = Cfg(128,128,14,4,4,1,2, 3584, 2048, [(0,0),(0,1),(1,0),(1,1)], False, False, smode='frag', auxS="sc1", baseF=98304, slot0=2, rot=ROTS[OPT.r5], pb=OPT.pb5, cap2=True, old=OPT.old2, jorder=[0,1,2,3,8,9,10,11,4,5,6,7,12,13,14,15] if OPT.jo else None)
    return c1, c2, c3, c4, c5
VS=16; VF=24; VS4=36; VF4=44; VS5=52; VF5=60
L_PHK=0; L_VX=32768; L_KV=49152; L_Z=57344

def tail_barriers(k, c, extra=0):
    for r in range(c.NS-1):
        k.e(f"s_waitcnt vmcnt({max(c.NS-2-r,0)*c.nI + extra})\ns_barrier")

def win_loads(k, tag):
    mk_srd(k, SRD_A, P_WO, 2*MB); mk_srd(k, SRD_B, P_WIN, 7*MB)
    n = 8
    k.e(f"""s_lshr_b32 s{S_T}, s2, 3
    s_lshl_b32 s{S_T+2}, s{S_T}, 2
    s_add_u32 s{S_T+2}, s{S_T+2}, s{S_Q}
    s_and_b32 s{S_T+3}, s2, 1""")
    if OPT.l2 & 1:
        k.e(f"""s_lshl_b32 s{S_T+1}, s{S_T+2}, 14
        s_lshl_b32 s{S_T+4}, s{S_T+3}, 10
        s_add_u32 s{S_T+1}, s{S_T+1}, s{S_T+4}
        v_lshrrev_b32 v3, 3, v1
        v_lshlrev_b32 v3, 11, v3
        v_and_b32 v4, 7, v1
        v_lshl_add_u32 v3, v4, 7, v3
        buffer_load_dword v250, v3, {srd(SRD_A)}, s{S_T+1} offen""")
    else:
        k.e(f"""s_lshl_b32 s{S_T+1}, s2, 2
        s_add_u32 s{S_T+1}, s{S_T+1}, s{S_Q}
        s_lshl_b32 s{S_T+1}, s{S_T+1}, 11
        v_lshlrev_b32 v3, 7, v1
        s_mov_b64 exec, 0xffff
        buffer_load_dword v250, v3, {srd(SRD_A)}, s{S_T+1} offen
        s_mov_b64 exec, -1""")
    n += 1
    k.e(f"""s_lshr_b32 s{S_T+4}, s{S_T}, 1
    s_cmp_ge_u32 s{S_T+4}, 7
    s_cselect_b32 s{S_T+5}, 7, 0
    s_add_u32 s{S_T+4}, s{S_T+4}, s{S_T+5}
    s_mul_i32 s{S_T+5}, s{S_T+3}, 7
    s_add_u32 s{S_CW}, s{S_T+4}, s{S_T+5}
    s_and_b32 s{S_T+5}, s2, 6
    s_and_b32 s{S_T+6}, s{S_T}, 1
    s_add_u32 s{S_CW+1}, s{S_T+5}, s{S_T+6}
    s_lshl_b32 s{S_T+5}, s{S_CW+1}, 2
    s_add_u32 s{S_T+5}, s{S_T+5}, s{S_Q}
    s_mul_i32 s{S_T+5}, s{S_T+5}, {32*7168}
    s_lshl_b32 s{S_T+4}, s{S_CW}, 8
    s_add_u32 s{S_T+5}, s{S_T+5}, s{S_T+4}
    s_cmp_ge_u32 s2, 224
    s_cselect_b32 s{S_T+5}, {7*MB}, s{S_T+5}
    v_lshrrev_b32 v3, 4, v1
    v_mul_u32_u24 v3, 7168, v3
    v_and_b32 v4, 15, v1
    v_lshl_add_u32 v5, v4, 4, v3""")
    for j in range(8):
        k.e(f"buffer_load_dwordx4 v[{192+4*j}:{195+4*j}], v5, {srd(SRD_B)}, s{S_T+5} offen\ns_add_u32 s{S_T+5}, s{S_T+5}, {4*7168}")
    if OPT.l2 & 2:
        k.e(f"""v_min_u32 v4, 13, v4
        v_lshl_add_u32 v3, v4, 7, v3
        s_mul_i32 s{S_T+1}, s{S_T+2}, {4*7168}
        s_mul_i32 s{S_T+4}, s{S_T+3}, 1792
        s_add_u32 s{S_T+1}, s{S_T+1}, s{S_T+4}
        s_add_u32 s{S_T+1}, s{S_T+1}, 3584
        buffer_load_dword v251, v3, {srd(SRD_B)}, s{S_T+1} offen
        s_add_u32 s{S_T+1}, s{S_T+1}, {512*7168}
        buffer_load_dword v252, v3, {srd(SRD_B)}, s{S_T+1} offen""")
        n += 2
    return n
def win_reduce(k):
    for j in range(8): acc_bf16(k, 224, 192+4*j, 4, j == 0, 232)
    xswap_sum(k, 224, 232, 8, 32)
    k.e(f"""s_lshl_b32 s{S_T}, s{S_Q}, 10
    s_add_u32 s{S_T}, s{S_T}, {L_CW}
    v_and_b32 v4, 31, v1
    v_lshl_add_u32 v4, v4, 5, s{S_T}
    ds_write_b128 v4, v[224:227]
    ds_write_b128 v4, v[228:231] offset:16
    s_waitcnt lgkmcnt(0)""")

def pf_loop(k, srdn, n, stride):
    t = k.lab("pf")
    k.e(f"s_mov_b32 s{S_CNT}, {n}\n{t}:")
    k.e(f"buffer_load_dword v3, v2, {srd(srdn)}, s{S_T+4} offen\ns_add_u32 s{S_T+4}, s{S_T+4}, {stride}")
    k.e(f"s_waitcnt vmcnt({OPT.pfd})\ns_sub_u32 s{S_CNT}, s{S_CNT}, 1\ns_cmp_lg_u32 s{S_CNT}, 0\ns_cbranch_scc1 {t}")

def helper_pf(k, role):
    nw = OPT.pf
    if not nw or role != 'c': return
    k.e(f"s_cmp_ge_u32 s{S_WAVE}, {nw}\ns_cbranch_scc1 L_nopf")
    mk_srd(k, SRD_A, P_WOUT, 1792*2048); mk_srd(k, SRD_B, P_WSP, 8*MB)
    k.e(f"""s_sub_u32 s{S_T}, s2, 224
    s_mul_i32 s{S_T}, s{S_T}, {nw}
    s_add_u32 s{S_T}, s{S_T}, s{S_WAVE}
    s_lshl_b32 s{S_T+4}, s{S_T}, 13
    v_lshlrev_b32 v2, 7, v1""")
    pf_loop(k, SRD_B, 32//nw, 8192*32*nw)
    stamp(k, 12)
    k.e(f"s_lshl_b32 s{S_T+4}, s{S_T}, 13")
    pf_loop(k, SRD_A, -(-14//nw), 8192*32*nw)
    k.e("s_waitcnt vmcnt(0)\nL_nopf:")

def inv_pos(k, rot):
    inv = [0]*4
    for u, d in enumerate(rot): inv[(u+d) & 3] = -d
    packed = sum(((d+8) & 15) << (4*u) for u, d in enumerate(inv))
    k.e(f"""s_sub_u32 s{S_T}, s{S_M}, s{S_PH}
    s_and_b32 s{S_T}, s{S_T}, 3
    s_lshl_b32 s{S_T}, s{S_T}, 2
    s_lshr_b32 s{S_T}, {packed}, s{S_T}
    s_and_b32 s{S_T}, s{S_T}, 15
    s_add_u32 s{S_T}, s{S_T}, s{S_M}
    s_sub_u32 s{S_T}, s{S_T}, 8
    s_and_b32 s{S_KB}, s{S_T}, 15""")

def loader(k):
    c1, c2, c3, c4, c5 = cfgs()
    k.e(f"s_lshl_b32 s{S_M0W}, s{S_LW}, 10")
    c = c1
    if OPT.p1ph:
        inv_pos(k, c.rot)
    else:
        k.e(f"s_mov_b32 s{S_KB}, s{S_M}\ns_mov_b32 s{S_PH}, s{S_N}")
    k.e(f"s_lshl_b32 s{S_T0}, s{S_N}, 7")
    loader_voff_S(k, c, VS)
    loader_voff_F(k, c, VF, S_T0, lambda P: P*2048)
    k.e("s_waitcnt lgkmcnt(0)")
    mk_srd(k, SRD_S, P_X, 4*MB); mk_srd(k, SRD_F, P_WQKV, 6*MB)
    stamp(k, 0); stamp(k, 1)
    if OPT.xl:
        k.e(f"s_mov_b32 s{S_TAU}, 0\ns_mov_b32 s{S_SLOT}, 0")
        issue(k, c, VS, VF, "SF"); issue_noadv(k, c, VS, VF, "S")
        k.e(f"s_waitcnt vmcnt({c.nS})\ns_barrier")
        issue(k, c, VS, VF, "F"); issue(k, c, VS, VF, "SF")
    else:
        issue_first(k, c, VS, VF, "SF")
    mk_srd(k, SRD_W, P_WS, WS_END)
    if OPT.pads:
        for d in (SRD_A, SRD_B, SRD_D): mk_srd(k, d, P_X, 0)
    steady(k, c, VS, VF, 16)
    if OPT.pads: k.e("s_branch L_ld\nALIGN4K\nL_ld:")
    n = win_loads(k, "l")
    tail_barriers(k, c, n)
    tile_map(k, 4, 8, 16)
    c = c2
    mk_srd(k, SRD_S, P_WS, 4*MB, WS_O); mk_srd(k, SRD_F, P_WO, 2*MB)
    k.e(f"s_lshl_b32 s{S_T0}, s{S_N}, 7")
    loader_voff_S(k, c, VS); loader_voff_F(k, c, VF, S_T0, lambda P: 0)
    bars(k, 1+OPT.fpos)
    issue_first(k, c, VS, VF, "F", pbarrier=False)
    k.e("s_barrier")
    grp(k, 1)
    loader_voff_S(k, c5, VS5); loader_voff_F(k, c5, VF5, S_T0, lambda P: 0)
    if OPT.sk:
        k.e(f"""s_and_b32 s{S_T}, s2, 1
        s_mul_i32 s{S_T+1}, s{S_T}, {14*4096}
        s_mul_i32 s{S_T+2}, s{S_T}, {896*2048}""")
        for i in range(c5.nS): k.e(f"v_add_u32 v{VS5+i}, s{S_T+1}, v{VS5+i}")
        for i in range(c5.nF):
            if i < 4: k.e(f"v_xor_b32 v{VF5+i}, 1024, v{VF5+i}")
            k.e(f"v_add_u32 v{VF5+i}, s{S_T+2}, v{VF5+i}")
    bars(k, 3-OPT.fpos)
    k.e(f"s_waitcnt vmcnt({c.NS*c.nF})")
    win_reduce(k)
    k.e("s_barrier")
    stamp(k, 4)
    if OPT.lead & 1:
        issue_first(k, c, VS, VF, "S", t1=3)
        for w_ in (c.nS, c.nS+c.nF):
            k.e(f"s_waitcnt vmcnt({w_})\ns_barrier"); itstamp(k)
            issue(k, c, VS, VF, "S"); issue_noadv(k, c, VS, VF, "F")
        steady_skew(k, c, VS, VF)
        tw = [c.nS+c.nF, 0]
    else:
        issue_first(k, c, VS, VF, "S")
        after_split_prologue(k, c, VS, VF, c.nS)
        steady(k, c, VS, VF, c.T)
        k.e(f"s_waitcnt vmcnt({2*c2.nI})\ns_barrier")
        tw = [c.nI, 0]
    k.e("s_cmp_ge_u32 s2, 224\ns_cbranch_scc1 L_ld_helper")
    c = c3
    tile_map(k, 4, 7, 14)
    mk_srd(k, SRD_S, P_WS, 4*MB, WS_H); mk_srd(k, SRD_F, P_WIN, 7*MB)
    k.e(f"s_lshl_b32 s{S_T0}, s{S_N}, 8\ns_mov_b32 s{S_FB}, 3584")
    loader_voff_F(k, c, VF, S_T0, lambda P: P*128)
    if OPT.lead & 1:
        k.e(f"s_waitcnt vmcnt({tw[0]})\ns_barrier")
        issue_first(k, c, VS, VF, "F", fbase=True, pbarrier=False, t1=1)
        k.e(f"s_waitcnt vmcnt({c.nF})\ns_barrier")
        issue_first(k, c, VS, VF, "F", fbase=True, pbarrier=False, t0=1, t1=2)
        k.e("s_barrier")
    else:
        issue_first(k, c, VS, VF, "F", fbase=True, pbarrier=False, t1=1)
        k.e(f"s_waitcnt vmcnt({c2.nI+c.nF})\ns_barrier")
        issue_first(k, c, VS, VF, "F", fbase=True, pbarrier=False, t0=1, t1=2)
        k.e(f"s_waitcnt vmcnt({2*c.nF})\ns_barrier\ns_barrier")
    loader_voff_S(k, c, VS); loader_voff_S(k, c4, VS4); loader_voff_F(k, c4, VF4)
    bars(k, 2)
    stamp(k, 5)
    ITST[1] = 253
    if ITST[0]: k.e("s_mov_b32 s97, 0")
    issue_first(k, c, VS, VF, "S", t1=2)
    if OPT.lead & 2:
        issue(k, c, VS, VF, "SF", True)
        steady(k, c, VS, VF, 16, fbase=True, wait=c.nI)
        k.e(f"s_mov_b32 s{S_TAU}, 0\ns_mov_b32 s{S_FB}, 0")
        steady(k, c, VS, VF, 3, fbase=True, wait=c.nI)
        issue(k, c, VS, VF, "SF", True)
        if OPT.gb: k.e("s_barrier")
        steady(k, c, VS, VF, 16, fbase=True)
    else:
        issue_first(k, c, VS, VF, "SF", fbase=True, pbarrier=False, t0=2)
        steady(k, c, VS, VF, 16, fbase=True)
        k.e(f"s_mov_b32 s{S_TAU}, 0\ns_mov_b32 s{S_FB}, 0")
        steady(k, c, VS, VF, 16, fbase=True)
    c = c4
    mk_srd(k, SRD_S, P_WSP, 8*MB); mk_srd(k, SRD_F, P_WS, 7*MB, WS_Z2N)
    k.e(f"s_mov_b32 s{S_TAU}, 0\ns_lshl_b32 s{S_KB}, s{S_M}, 1")
    if OPT.own2 == 1 and not OPT.p4ph: k.e(f"s_mov_b32 s{S_PH}, s{S_N}")
    if OPT.own2 == 2: inv_pos(k, c.rot)
    steady(k, c, VS4, VF4, 32)
    def p5_setup():
        tile_map(k, 4, 8, 16)
        mk_srd(k, SRD_S, P_WS, 7*MB, WS_U); mk_srd(k, SRD_F, P_WOUT, 1792*2048)
    p5_setup()
    k.e(f"s_waitcnt vmcnt({2*c.nI})\ns_barrier")
    if OPT.f5 == 1:
        issue_first(k, c5, VS5, VF5, "F", pbarrier=False, t1=1)
        k.e(f"s_waitcnt vmcnt({c.nI+c5.nF})\ns_barrier")
        issue_first(k, c5, VS5, VF5, "F", pbarrier=False, t0=1, t1=2)
        k.e(f"s_waitcnt vmcnt({2*c5.nF})\ns_barrier")
        bars(k, 2)
    else:
        k.e(f"s_waitcnt vmcnt({c.nI})\ns_barrier\ns_waitcnt vmcnt(0)\ns_barrier")
        bars(k, 2)
        issue_first(k, c5, VS5, VF5, "F", pbarrier=False, t1=2)
    k.e("L_ld_p5:")
    ITST[1] = 254
    if ITST[0]: k.e("s_mov_b32 s97, 32")
    c = c5
    k.e("s_barrier")
    stamp(k, 9)
    issue_first(k, c, VS5, VF5, "S", t1=2)
    if OPT.lead & 4:
        issue(k, c, VS5, VF5, "SF")
        steady(k, c, VS5, VF5, c.T, wait=c.nI)
        k.e(f"s_waitcnt vmcnt({c.nI})\ns_barrier\ns_waitcnt vmcnt(0)\ns_barrier")
    else:
        issue_first(k, c, VS5, VF5, "SF", pbarrier=False, t0=2)
        steady(k, c, VS5, VF5, c.T)
        tail_barriers(k, c)
    k.e("s_barrier")
    k.e("s_branch L_fin")
    k.e("L_ld_helper:")
    k.e(f"s_waitcnt vmcnt({tw[0]})\ns_barrier\ns_waitcnt vmcnt(0)\ns_barrier")
    bars(k, 3)
    p5_setup()
    issue_first(k, c5, VS5, VF5, "F", pbarrier=False, t1=2)
    k.e("s_branch L_ld_p5")

def spread(k, fn, nbar):
    t = Kern(k.name); t.uid = k.uid
    fn(t); k.uid = t.uid
    L = [x.strip() for x in t.L]
    assert not any(x.endswith(":") for x in L)
    wt = lambda x: 10 if x.startswith("buffer_") else (1 if x.startswith(("v_", "ds_")) else 0.25)
    tot = sum(map(wt, L)); acc = 0; nb = 0
    low = OPT.vprio and sum(x.startswith("v_") for x in L) > 20
    if low: k.e("s_setprio 0")
    for x in L:
        k.e(x); acc += wt(x)
        if nb < nbar-1 and acc >= tot*(nb+1)/nbar - 1e-9:
            k.e("s_barrier"); nb += 1
    if low: k.e(f"s_setprio {OPT.pa}")
    while nb < nbar:
        k.e("s_barrier"); nb += 1

_carry = []
def merge(k, vm, va, nbar, share, hook=None):
    def cap(fns):
        t = Kern(k.name); t.uid = k.uid
        for f in fns: f(t)
        k.uid = t.uid
        return [x.strip() for x in t.L]
    M = cap(vm); _carry.extend(cap(va))
    nv = len(_carry) if share >= 1 else int(len(_carry)*share)
    V = _carry[:nv]; del _carry[:nv]
    nm = sum(x.startswith("buffer_") for x in M)
    mi = 0; seen = 0; full = True
    for b in range(nbar):
        tgt = nm*(b+1)/nbar
        while mi < len(M) and (seen < tgt or not full or b == nbar-1):
            x = M[mi]; k.e(x); mi += 1
            if x.startswith("buffer_"): seen += 1
            if "exec" in x.split(",")[0]: full = x.replace(" ", "") == "s_mov_b64exec,-1"
        for x in V[len(V)*b//nbar: len(V)*(b+1)//nbar]: k.e(x)
        k.e("s_barrier")
        if hook: hook(b)

def combine_half(k, P, stride, n, ntot, cnt, d, t):
    k.e(f"v_add_f32 v{d}, v{P}, v{P+stride}\nv_add_f32 v{d+1}, v{P+1}, v{P+stride+1}")
    for i in range(2, n): k.e(f"v_add_f32 v{d}, v{d}, v{P+stride*i}\nv_add_f32 v{d+1}, v{d+1}, v{P+stride*i+1}")
    if ntot != n: xswap_sum1(k, d, t)
    k.e(f"v_mul_f32 v{d}, {f2u(1.0/ntot)}, v{d}\nv_sub_f32 v{t}, v{P}, v{d}\nv_mul_f32 v{t+1}, v{t}, v{t}")
    for i in range(1, n): k.e(f"v_sub_f32 v{t}, v{P+stride*i}, v{d}\nv_fmac_f32 v{t+1}, v{t}, v{t}")
    k.e(f"v_fmac_f32 v{d+1}, {f2u(float(cnt))}, v{t+1}")
    if ntot != n: xswap_sum1(k, d+1, t)

def code_touch(k, lo, nchunk):
    if not OPT.ct: return
    here = k.lab("pc")
    k.e(f"""s_getpc_b64 s[{S_X}:{S_X+1}]
    {here}:
    s_add_u32 s{S_X}, s{S_X}, {lo}-{here}
    s_addc_u32 s{S_X+1}, s{S_X+1}, {'-1' if lo == KNAME else '0'}
    s_lshr_b32 s{S_T}, s2, 3
    s_lshl_b32 s{S_T}, s{S_T}, 1
    s_add_u32 s{S_T}, s{S_T}, s{S_LW}
    s_mul_i32 s{S_T+1}, s{S_T}, {-(-65536//nchunk)}
    s_lshr_b32 s{S_T+1}, s{S_T+1}, 16
    s_mul_i32 s{S_T+1}, s{S_T+1}, {nchunk}
    s_sub_u32 s{S_T}, s{S_T}, s{S_T+1}
    s_lshl_b32 s{S_T}, s{S_T}, 13
    v_lshlrev_b32 v249, 7, v1
    v_add_u32 v249, s{S_T}, v249
    v_min_u32 v249, L_end-{lo}, v249
    global_load_dword v250, v249, s[{S_X}:{S_X+1}]""")

def xp_init(k):
    if not OPT.sk: return
    k.e(f"""s_lshl_b32 s{S_T}, s2, 14
    s_lshl_b32 s{S_T+1}, s{S_LW}, 13
    s_add_u32 s{S_T}, s{S_T}, s{S_T+1}
    s_add_u32 s{S_T}, s{S_T}, {WS_XP}
    s_add_u32 s{S_T+1}, s{S_T}, 4096""")
    for i in range(8): k.e(f"buffer_store_dwordx4 v[44:47], v2, {W}, s{S_T+(i>>2)} offen offset:{(i&3)*1024} sc1")
    k.e("s_waitcnt vmcnt(0)")
def u_cnt(k):
    cnt_addr(k, 9, F_U, S_M)
    if OPT.sk: k.e(f"s_and_b32 s{S_T}, s2, 1\ns_lshl_b32 s{S_T}, s{S_T}, 7\nv_add_u32 v9, s{S_T}, v9")

def aux(k):
    c1, c2, c3, c4, c5 = cfgs()
    a = S_LW
    k.e(f"""s_lshl_b32 s{S_T}, s{S_M}, 7
    s_lshl_b32 s{S_T+1}, s{S_N}, 3
    s_add_u32 s{S_T}, s{S_T}, s{S_T+1}
    s_lshl_b32 s{S_T+1}, s{a}, 2
    s_add_u32 s{S_T}, s{S_T}, s{S_T+1}
    v_lshrrev_b32 v14, 4, v1
    v_add_u32 v14, s{S_T}, v14
    v_and_b32 v3, 15, v1
    v_lshlrev_b32 v3, 4, v3
    v_lshl_add_u32 v3, v14, 11, v3
    s_waitcnt lgkmcnt(0)""")
    mk_srd(k, SRD_B, P_X, 4*MB)
    XR = 192 if OPT.xa else 64
    if OPT.xa: k.e(f"s_sleep {OPT.xa}")
    for j in range(8): k.e(f"buffer_load_dwordx4 v[{XR+4*j}:{XR+3+4*j}], v3, {srd(SRD_B)}, 0 offen offset:{256*j}")
    mk_srd(k, SRD_W, P_WS, WS_END); mk_srd(k, SRD_A, P_WPHI, 65536); mk_srd(k, SRD_D, P_DBG, 256)
    if OPT.pads:
        for d in (SRD_S, SRD_F): mk_srd(k, d, P_X, 0)
    stamp(k, 0)
    q = OPT.spq
    k.e(f"""v_lshlrev_b32 v2, 4, v1
    v_mov_b32 v11, 1
    v_mov_b32 v44, -1
    v_mov_b32 v45, -1
    v_mov_b32 v46, -1
    v_mov_b32 v47, -1
    v_lshrrev_b32 v4, 5, v1
    v_lshlrev_b32 v4, 13, v4
    v_and_b32 v5, 31, v1
    v_lshl_add_u32 v4, v5, 4, v4
    v_bfe_u32 v12, v1, 2, 2
    v_min_u32 v12, 2, v12
    v_lshlrev_b32 v12, 13, v12
    v_lshrrev_b32 v5, 4, v1
    v_lshl_add_u32 v12, v5, 11, v12
    v_and_b32 v5, 3, v1
    v_lshl_add_u32 v12, v5, 4, v12
    v_add_u32 v12, {c1.baseF + (q % 3)*c1.slotF}, v12
    v_bfe_u32 v13, v1, 2, 2
    v_lshl_add_u32 v12, v13, 7, v12
    v_lshrrev_b32 v13, 1, v13
    v_xor_b32 v13, s{a}, v13
    v_lshl_add_u32 v24, v13, 6, v12
    v_xor_b32 v25, 128, v24
    v_xor_b32 v26, 320, v24
    v_xor_b32 v27, 448, v24
    v_lshlrev_b32 v14, 2, v14""")
    X = 128
    for j in range(0 if OPT.xa else 8):
        k.e(f"s_waitcnt vmcnt({7-j})")
        for i in range(4*j, 4*j+4):
            unpack(k, X+2*i, X+2*i+1, 64+i)
            t = 32+2*(i & 1)
            if i >= 2: k.e(f"v_pk_add_f32 v[{t}:{t+1}], v[{X+2*i-4 if i < 4 else t}:{X+2*i-3 if i < 4 else t+1}], v[{X+2*i}:{X+2*i+1}]")
    stamp(k, 10)
    k.e("s_barrier")
    def init(k):
        k.e(f"""s_mov_b32 s{S_T+14}, {WS_XS}
        s_mov_b32 s{S_T+15}, {WS_XS+8192}
        s_mov_b32 exec_lo, 0x10001
        s_mov_b32 exec_hi, 0x10001
        buffer_store_dword v44, v14, {W}, s{S_T+14} offen sc1
        buffer_store_dword v44, v14, {W}, s{S_T+15} offen sc1
        s_mov_b64 exec, -1
        s_lshl_b32 s{S_T}, s{S_N}, 17
        s_lshl_b32 s{S_T+1}, s{S_M}, 9
        s_add_u32 s{S_T}, s{S_T}, s{S_T+1}
        s_lshl_b32 s{S_T+1}, s{a}, 16
        s_add_u32 s{S_T}, s{S_T}, s{S_T+1}
        s_add_u32 s{S_T}, s{S_T}, {WS_KVP}""")
        for x in range(4): k.e(f"buffer_store_dwordx4 v[44:47], v4, {W}, s{S_T} offen sc1\ns_add_u32 s{S_T}, s{S_T}, 16384")
        k.e(f"""s_lshl_b32 s{S_T+12}, s{S_N}, 4
        s_add_u32 s{S_T+12}, s{S_T+12}, s{S_M}
        s_lshl_b32 s{S_T+12}, s{S_T+12}, 1
        s_add_u32 s{S_T+12}, s{S_T+12}, s{a}
        s_mul_i32 s{S_T+12}, s{S_T+12}, 384
        s_add_u32 s{S_T+12}, s{S_T+12}, {WS_CQP}
        s_mov_b64 exec, 0xffffff
        buffer_store_dwordx4 v[44:47], v2, {W}, s{S_T+12} offen sc1
        s_lshl_b32 s{S_T}, s2, 10
        s_add_u32 s{S_T}, s{S_T}, {WS_HST}
        s_mul_i32 s{S_T+1}, s2, 528
        s_add_u32 s{S_T+1}, s{S_T+1}, {WS_KVF}
        s_mul_i32 s{S_T+2}, s2, 896
        s_add_u32 s{S_T+3}, s{S_T+2}, {WS_CSP}
        s_add_u32 s{S_T+2}, s{S_T+2}, {WS_ZST}
        s_mov_b32 s{S_T+4}, 0xffffff
        s_cmp_eq_u32 s{a}, 0
        s_cselect_b32 s{S_T}, s{S_T}, s{S_T+2}
        s_cselect_b32 s{S_T+1}, s{S_T+1}, s{S_T+3}
        s_cselect_b32 s{S_T+5}, -1, s{S_T+4}
        s_cselect_b32 s{S_T+6}, 1, s{S_T+4}
        s_mov_b32 exec_lo, -1
        s_mov_b32 exec_hi, s{S_T+5}
        buffer_store_dwordx4 v[44:47], v2, {W}, s{S_T} offen sc1
        s_mov_b32 exec_hi, s{S_T+6}
        buffer_store_dwordx4 v[44:47], v2, {W}, s{S_T+1} offen sc1
        s_mov_b64 exec, -1
        s_mul_i32 s{S_T}, s2, {FLS}
        s_add_u32 s{S_T}, s{S_T}, {WS_FLAG}
        s_cmp_lt_u32 s2, 64
        s_cselect_b32 s{S_T}, s{S_T}, {WS_END}
        s_lshl_b32 s{S_T+1}, s2, 8
        s_add_u32 s{S_T+1}, s{S_T+1}, {WS_ZP}
        s_cmp_eq_u32 s{a}, 0
        s_cselect_b32 s{S_T}, s{S_T}, s{S_T+1}
        s_cselect_b32 s{S_T+1}, 0, -1
        v_mov_b32 v48, s{S_T+1}
        v_lshlrev_b32 v5, 2, v1
        buffer_store_dword v48, v5, {W}, s{S_T} offen sc1""")
    def xs2(k):
        if OPT.xa:
            for i in range(32):
                unpack(k, X+2*i, X+2*i+1, XR+i)
                t = 32+2*(i & 1)
                if i >= 2:
                    for e_ in range(2): k.e(f"v_add_f32 v{t+e_}, v{X+2*i-4+e_ if i < 4 else t+e_}, v{X+2*i+e_}")
        k.e("v_add_f32 v32, v32, v34\nv_add_f32 v33, v33, v35\nv_add_f32 v32, v32, v33")
        for sh in (8, 4, 2, 1): ror_sum(k, 32, 1, sh)
        k.e(f"v_mul_f32 v32, {f2u(1/1024.)}, v32")
        for i in range(64):
            d = 40+(i & 3); t = 34+(i & 3)
            k.e(f"v_sub_f32 v{d}, v{X+i}, v32")
            k.e(f"v_mul_f32 v{t}, v{d}, v{d}" if i < 4 else f"v_fmac_f32 v{t}, v{d}, v{d}")
        k.e("v_add_f32 v34, v34, v35\nv_add_f32 v36, v36, v37\nv_add_f32 v33, v34, v36")
        for sh in (8, 4, 2, 1): ror_sum(k, 33, 1, sh)
        finish_rstd(k, 32, 1024)
    def qld(k):
        k.e(f"""s_lshl_b32 s{S_T}, s{S_N}, 12
        s_lshl_b32 s{S_T+1}, s{a}, 11
        s_add_u32 s{S_T}, s{S_T}, s{S_T+1}
        s_add_u32 m0, s{S_T+1}, {L_WPHI}
        s_nop 0
        buffer_load_dwordx4 v2, {srd(SRD_A)}, s{S_T} offen lds
        buffer_load_dwordx4 v2, {srd(SRD_A)}, s{S_T} offen offset:1024 lds""")
    def sprd(b):
        if b == q-1:
            for j in range(16):
                k.e(f"ds_read_b128 v[{64+4*j}:{67+4*j}], v{24 + (j&3)} offset:{(j>>2)*512}")
                if j == 7:
                    k.e("s_waitcnt lgkmcnt(4)")
                    for r_ in range(24, 28): k.e(f"v_xor_b32 v{r_}, 32, v{r_}")
            k.e("s_waitcnt lgkmcnt(0)")
    assert 0 <= q <= 5
    sprd(-1)
    if OPT.qpf:
        mk_srd(k, SRD_B, P_WQKV, 6*MB)
        k.e(f"""s_lshl_b32 s{S_T}, s2, 1
        s_add_u32 s{S_T}, s{S_T}, s{a}
        s_mul_i32 s{S_T}, s{S_T}, {96*128}
        v_lshlrev_b32 v3, 7, v1
        buffer_load_dword v250, v3, {srd(SRD_B)}, s{S_T} offen
        s_add_u32 s{S_T}, s{S_T}, 4096
        buffer_load_dword v251, v3, {srd(SRD_B)}, s{S_T} offen""")
    if OPT.xa: k.e("s_waitcnt vmcnt(0)")
    code_touch(k, KNAME, 10)
    merge(k, [init], [xs2], 2, 0.3, hook=sprd)
    merge(k, [], [], 1, 0.4)
    sprd(2)
    merge(k, [], [], 1, 0.67)
    k.L.insert(len(k.L)-1, "    s_waitcnt vmcnt(0)")
    k.e(f"""s_cmp_lg_u32 s{a}, 0
    s_cbranch_scc1 L_a_noarr
    s_and_b32 s{S_T}, s2, 7
    s_lshl_b32 s{S_T}, s{S_T}, 5
    v_mov_b32 v4, s{S_T}
    s_mov_b64 exec, 1
    buffer_atomic_add v11, v4, {srd(SRD_D)}, 0 offen sc1
    s_mov_b64 exec, -1
    L_a_noarr:""")
    sprd(3)
    merge(k, [qld], [], 1, 1.0)
    k.e(f"""s_mov_b32 exec_lo, 0x10001
    s_mov_b32 exec_hi, 0x10001
    buffer_store_dword v32, v14, {W}, s{S_T+14} offen sc1
    buffer_store_dword v33, v14, {W}, s{S_T+15} offen sc1
    s_mov_b64 exec, -1""")
    sprd(4)
    k.e("s_barrier")
    A = 128; Q = 136
    def csum(k):
        for j in range(16): acc_bf16(k, A, 64+4*j, 4, j == 0, 48, plain=True)
        xswap_sum(k, A, 160, 8, 16); xswap_sum(k, A, 160, 8, 32)
        k.e(f"""v_lshlrev_b32 v4, 5, v1
        s_mov_b64 exec, 0xfff
        buffer_store_dwordx4 v[{A}:{A+3}], v4, {W}, s{S_T+12} offen sc1
        buffer_store_dwordx4 v[{A+4}:{A+7}], v4, {W}, s{S_T+12} offen offset:16 sc1
        s_mov_b64 exec, -1
        v_lshlrev_b32 v10, 5, v1""")
    spread(k, csum, 5)
    sample(k, 10, SRD_D)
    k.e(f"""s_lshl_b32 s{S_T+14}, s{a}, 13
    s_lshl_b32 s{S_T+1}, s{S_M}, 9
    s_add_u32 s{S_T+14}, s{S_T+14}, s{S_T+1}
    s_add_u32 s{S_T+14}, s{S_T+14}, {WS_XS}
    s_mul_i32 s{S_T+12}, s{S_N}, {16*768}
    s_mul_i32 s{S_T+13}, s{a}, 384
    s_add_u32 s{S_T+12}, s{S_T+12}, s{S_T+13}
    s_add_u32 s{S_T+12}, s{S_T+12}, {WS_CQP}
    v_and_b32 v12, 31, v1
    v_min_u32 v12, 23, v12
    v_lshlrev_b32 v12, 4, v12
    v_lshrrev_b32 v13, 5, v1
    v_mul_u32_u24 v13, 768, v13
    v_add_u32 v13, v13, v12
    v_lshlrev_b32 v5, 3, v1""")
    k.e("s_barrier")
    poll(k, 10, 8, SRD_D, 32, pre=True)
    stamp(k, 1)
    k.e("s_barrier")
    def cqg():
        k.e(f"s_mov_b32 s{S_T}, s{S_T+12}")
        for i in range(8):
            k.e(f"buffer_load_dwordx4 v[{64+4*i}:{67+4*i}], v13, {W}, s{S_T} offen offset:{(i&1)*1536} sc1")
            if i & 1: k.e(f"s_add_u32 s{S_T}, s{S_T}, 3072")
        k.e(f"buffer_load_dwordx2 v[96:97], v5, {W}, s{S_T+14} offen sc1")
    cqg()
    k.e("s_barrier")
    k.e("s_waitcnt vmcnt(0)")
    validated(k, cqg, range(64, 98), 3)
    for i in range(1, 8):
        for j in range(4): k.e(f"v_add_f32 v{64+j}, v{64+j}, v{64+4*i+j}")
    k.e("s_barrier")
    xswap_sum(k, 64, 68, 4, 32)
    k.e(f"""s_add_u32 s{S_T+13}, s{S_T+13}, {L_CQ}
    v_add_u32 v3, s{S_T+13}, v12
    ds_write_b128 v3, v[64:67]
    s_lshl_b32 s{S_T}, s{a}, 9
    s_add_u32 s{S_T}, s{S_T}, {L_XS}
    v_add_u32 v5, s{S_T}, v5
    ds_write_b64 v5, v[96:97]
    s_waitcnt lgkmcnt(0)
    s_barrier""")
    stamp(k, 2)
    win_loads(k, "a")
    cnt_addr(k, 9, F_O, S_M)
    k.e(f"s_cmp_lg_u32 s{a}, 0\ns_cbranch_scc1 L_a_z")
    k.e(f"""s_lshl_b32 s{S_T+12}, s{S_N}, 17
    s_lshl_b32 s{S_T+1}, s{S_M}, 13
    s_add_u32 s{S_T+12}, s{S_T+12}, s{S_T+1}
    s_add_u32 s{S_T+12}, s{S_T+12}, {WS_KVP}
    s_add_u32 s{S_T+13}, s{S_T+12}, 4096
    s_lshl_b32 s{S_T+14}, s{S_N}, 13
    s_lshl_b32 s{S_T+1}, s{S_M}, 9
    s_add_u32 s{S_T+14}, s{S_T+14}, s{S_T+1}
    s_add_u32 s{S_T+14}, s{S_T+14}, {WS_KVF}""")
    bars(k, 2)
    if OPT.kvslp: k.e(f"s_sleep {OPT.kvslp}")
    def kvg(k=k):
        for i in range(8): k.e(f"buffer_load_dwordx4 v[{64+4*i}:{67+4*i}], v2, {W}, s{S_T+12+(i>>2)} offen offset:{(i&3)*1024} sc1")
    validated(k, kvg, range(64, 96), 3, pre=False)
    stamp(k, 3)
    for i in range(8): acc_bf16(k, 128, 64+4*i, 4, i == 0, 48)
    xswap_sum(k, 128, 160, 8, 32)
    for i in range(4): k.e(f"v_cvt_pk_bf16_f32 v{52+i}, v{128+2*i}, v{129+2*i}")
    k.e(f"s_mov_b32 exec_hi, 0\nbuffer_store_dwordx4 v[52:55], v2, {W}, s{S_T+14} offen sc1\ns_mov_b32 exec_hi, -1")
    stamp(k, 4)
    if OPT.kfslp: k.e(f"s_sleep {OPT.kfslp}")
    k.e("s_branch L_a_kvd\nL_a_z:")
    k.e(f"""s_lshl_b32 s{S_T+12}, s{S_N}, 4
    s_add_u32 s{S_T+12}, s{S_T+12}, s{S_M}
    s_lshl_b32 s{S_T+14}, s{S_T+12}, 4
    s_add_u32 s{S_T+14}, s{S_T+14}, {WS_ZF}
    s_lshl_b32 s{S_T+12}, s{S_T+12}, 8
    s_add_u32 s{S_T+12}, s{S_T+12}, {WS_ZP}
    v_and_b32 v13, 15, v1
    v_lshlrev_b32 v13, 4, v13""")
    bars(k, 2)
    if OPT.kvslp: k.e(f"s_sleep {OPT.kvslp}")
    def zg(): k.e(f"buffer_load_dwordx4 v[64:67], v13, {W}, s{S_T+12} offen sc1")
    validated(k, zg, range(64, 68), 3, pre=False)
    stamp(k, 3)
    acc_bf16(k, 128, 64, 4, True, 48)
    for sh in (8, 4, 2, 1): ror_sum(k, 128, 8, sh)
    for i in range(4): k.e(f"v_cvt_pk_bf16_f32 v{52+i}, v{128+2*i}, v{129+2*i}")
    k.e(f"s_mov_b64 exec, 1\nbuffer_store_dwordx4 v[52:55], v13, {W}, s{S_T+14} offen sc1\ns_mov_b64 exec, -1")
    stamp(k, 4)
    if OPT.kfslp: k.e(f"s_sleep {OPT.kfslp+6}")
    k.e("L_a_kvd:")
    k.e(f"""s_lshl_b32 s{S_T}, s{S_N}, 1
    s_add_u32 s{S_T}, s{S_T}, s{a}
    s_lshl_b32 s{S_T+12}, s{S_T}, 12
    s_add_u32 s{S_T+12}, s{S_T+12}, {WS_KVF}
    s_lshl_b32 s{S_T+13}, s{S_T}, 7
    s_add_u32 s{S_T+13}, s{S_T+13}, {WS_ZF}
    v_and_b32 v13, 7, v1
    v_lshlrev_b32 v13, 4, v13
    s_lshl_b32 s{S_T}, s{a}, 12
    v_add_u32 v4, s{S_T}, v2
    s_lshl_b32 s{S_T}, s{a}, 7
    v_add_u32 v5, s{S_T}, v13""")
    def kfg():
        for i in range(4): k.e(f"buffer_load_dwordx4 v[{64+4*i}:{67+4*i}], v2, {W}, s{S_T+12} offen offset:{i*1024} sc1")
        k.e(f"buffer_load_dwordx4 v[80:83], v13, {W}, s{S_T+13} offen sc1")
    validated(k, kfg, range(64, 84), 3, pre=False)
    for i in range(4): k.e(f"ds_write_b128 v4, v[{64+4*i}:{67+4*i}] offset:{L_KV+i*1024}")
    k.e(f"ds_write_b128 v5, v[80:83] offset:{L_Z}\ns_waitcnt lgkmcnt(0)\ns_barrier")
    grp(k, 1)
    tile_map(k, 4, 8, 16)
    cnt_addr(k, 10, F_O, S_M)
    k.e("s_barrier")
    set_flag(k, 9)
    win_reduce(k)
    poll(k, 10, 1, val=16)
    k.e("s_barrier")
    k.e(f"""s_cmp_eq_u32 s{a}, 0
    s_cbranch_scc1 L_a_nocw
    s_cmp_ge_u32 s2, 224
    s_cbranch_scc1 L_a_nocw
    v_lshlrev_b32 v4, 3, v1
    v_add_u32 v3, {L_CW}, v4""")
    for i in range(8): k.e(f"ds_read_b64 v[{192+2*i}:{193+2*i}], v3 offset:{i*512}")
    k.e(f"""s_mul_i32 s{S_T}, s{S_CW+1}, 14336
    s_lshl_b32 s{S_T+1}, s{S_CW}, 9
    s_add_u32 s{S_T}, s{S_T}, s{S_T+1}
    s_add_u32 s{S_T}, s{S_T}, {WS_CSP}
    s_waitcnt lgkmcnt(0)""")
    for i in range(1, 8): k.e(f"v_pk_add_f32 v[192:193], v[192:193], v[{192+2*i}:{193+2*i}]")
    k.e(f"buffer_store_dwordx2 v[192:193], v4, {W}, s{S_T} offen sc1\nL_a_nocw:")
    cnt_addr(k, 9, F_H, S_M)
    tile_map(k, 4, 7, 14)
    k.e(f"""v_and_b32 v14, 31, v1
    v_lshlrev_b32 v14, 4, v14
    v_lshrrev_b32 v15, 5, v1
    v_mul_u32_u24 v13, {1792*4}, v15
    v_add_u32 v13, v13, v14
    s_lshl_b32 s{S_T}, s{a}, 9
    v_add_u32 v14, s{S_T}, v14
    s_lshl_b32 s{S_T+13}, s{S_N}, 9
    s_add_u32 s{S_T+13}, s{S_T+13}, {WS_CSP}
    s_lshl_b32 s{S_T+12}, s{S_M}, 10
    s_add_u32 s{S_T+12}, s{S_T+12}, {WS_HST}""")
    bars(k, 18)
    set_flag(k, 9)
    k.e("s_cmp_ge_u32 s2, 224\ns_cbranch_scc1 L_a_helper")
    poll(k, 9, 1, val=16)
    k.e(f"s_cmp_eq_u32 s{a}, 0\ns_cbranch_scc1 L_a_nocs")
    def cg():
        k.e(f"s_mov_b32 s{S_T}, s{S_T+13}")
        for i in range(8): k.e(f"buffer_load_dwordx4 v[{64+4*i}:{67+4*i}], v13, {W}, s{S_T} offen sc1\ns_add_u32 s{S_T}, s{S_T}, 14336")
    validated(k, cg, range(64, 96), 3, pre=False)
    for i in range(1, 8): k.e(f"v_pk_add_f32 v[64:65], v[64:65], v[{64+4*i}:{65+4*i}]\nv_pk_add_f32 v[66:67], v[66:67], v[{66+4*i}:{67+4*i}]")
    k.e(f"v_add_u32 v3, {L_CS}, v2\nds_write_b128 v3, v[64:67]\nL_a_nocs:")
    k.e("s_barrier")
    k.e(f"v_lshl_add_u32 v13, v15, 17, v14")
    def hg(k=k):
        k.e(f"s_mov_b32 s{S_T}, s{S_T+12}")
        for i in range(8): k.e(f"buffer_load_dwordx4 v[{64+4*i}:{67+4*i}], v13, {W}, s{S_T} offen sc1\ns_add_u32 s{S_T}, s{S_T}, 16384")
    bars(k, 3)
    if OPT.ct > 1: code_touch(k, "L_c_p3", 4)
    spread(k, hg, 4)
    k.e("s_barrier\ns_waitcnt vmcnt(0)")
    validated(k, hg, range(65, 96, 2), 3)
    def hfin(k):
        for r in range(2):
            d = 4+4*r if r == 0 else 16
            combine_half(k, 64+2*r, 4, 8, 16, 64, d, 20)
            k.e(f"""v_mul_f32 v{d+1}, {f2u(1.0/1024)}, v{d+1}
            v_add_f32 v{d+1}, {f2u(1e-5)}, v{d+1}
            v_rsq_f32 v20, v{d+1}
            v_sqrt_f32 v{d+3}, v{d+1}
            v_sub_f32 v{d}, 0, v{d}
            v_mul_f32 v{d+1}, {f2u(C0)}, v20
            v_mul_f32 v{d+2}, v20, v20
            v_mul_f32 v{d+2}, v{d+2}, v20
            v_mul_f32 v{d+2}, {f2u(C1)}, v{d+2}""")
        k.e(f"""v_lshlrev_b32 v3, 1, v14
        s_lshl_b32 s{S_T+14}, s2, 11
        s_add_u32 s{S_T+14}, s{S_T+14}, {WS_HC}
        s_mov_b32 exec_hi, 0
        buffer_store_dwordx4 v[4:7], v3, {W}, s{S_T+14} offen sc1
        buffer_store_dwordx4 v[16:19], v3, {W}, s{S_T+14} offen offset:16 sc1
        s_mov_b32 exec_hi, -1
        s_lshl_b32 s{S_T}, s{a}, 10
        s_add_u32 s{S_T+14}, s{S_T+14}, s{S_T}
        s_add_u32 m0, s{S_T}, {L_HS}
        s_mul_i32 s{S_T+12}, s{S_M}, {14*1024}
        s_add_u32 s{S_T+12}, s{S_T+12}, {WS_ZST}
        s_lshl_b32 s{S_T+13}, s{S_N}, 10
        s_add_u32 s{S_T+13}, s{S_T+13}, s{S_T+12}
        s_lshl_b32 s{S_T}, s{a}, 9
        v_lshlrev_b32 v22, 3, v1
        v_add_u32 v22, s{S_T}, v22
        v_add_u32 v12, {L_ZP}, v22
        v_mul_u32_u24 v13, {7*1024}, v15
        v_add_u32 v13, v13, v14""")
        cnt_addr(k, 10, F_Z, S_N); u_cnt(k)
    spread(k, hfin, 4)
    k.e(f"s_barrier\ns_barrier\ns_waitcnt vmcnt(0) lgkmcnt(0)\nbuffer_load_dwordx4 v2, {W}, s{S_T+14} offen sc1 lds")
    k.e("s_barrier\ns_barrier\ns_waitcnt vmcnt(0)")
    k.e("s_barrier")
    if OPT.sk: k.e("s_sleep 12")
    xp_init(k)
    k.e("s_barrier")
    k.e(f"""ds_read_b64 v[64:65], v12
    ds_read_b64 v[66:67], v12 offset:1024
    s_waitcnt lgkmcnt(0)
    v_add_f32 v4, v64, v66
    v_mul_f32 v4, 0.5, v4
    v_sub_f32 v6, v64, v66
    v_mul_f32 v6, v6, v6
    v_add_f32 v5, v65, v67
    v_fmac_f32 v5, {f2u(32.0)}, v6
    buffer_store_dwordx2 v[4:5], v22, {W}, s{S_T+13} offen sc1""")
    stamp(k, 6)
    g = OPT.gat
    bars(k, g-16+OPT.gb)
    def zsg():
        k.e(f"s_add_u32 s{S_T}, s{S_T+12}, 4096")
        for i in range(7):
            k.e(f"buffer_load_dwordx4 v[{64+4*i}:{67+4*i}], v13, {W}, s{S_T+12 if i < 4 else S_T} offen offset:{(i&3)*1024} sc1")
    zsg()
    k.e("s_barrier\ns_waitcnt vmcnt(0)")
    validated(k, zsg, range(65, 92, 2), 3)
    stamp(k, 7)
    def zfin(k):
        for r in range(2):
            combine_half(k, 64+2*r, 4, 7, 14, 128, 4+2*r, 20); finish_rstd(k, 4+2*r, 1792)
        k.e(f"v_add_u32 v3, {L_ZS}, v14")
    spread(k, zfin, OPT.zsp-1)
    k.e("ds_write_b128 v3, v[4:7]\ns_waitcnt lgkmcnt(0)\ns_barrier")
    nf = OPT.nst
    zb = g+1+OPT.zsp
    fb = zb+nf+1+OPT.vmd
    cb = 28 if OPT.own2 else 26
    assert fb <= cb
    bars(k, fb-zb)
    set_flag(k, 10)
    bars(k, cb-fb)
    sample(k, 10)
    k.e("s_barrier")
    poll(k, 10, 1, val=16, pre=True)
    stamp(k, 8)
    if OPT.dsx:
        ops = {1: "ds_write_b128 v60, v[4:7]", 2: "ds_write_b64 v60, v[4:5]", 3: "ds_write_b32 v60, v4", 4: "ds_read_b128 v[64:67], v60",
               5: "ds_write_b128 v60, v[4:7]\nds_write_b128 v60, v[4:7] offset:1024\nds_write_b128 v60, v[4:7] offset:2048\nds_write_b128 v60, v[4:7] offset:3072",
               6: "ds_write_b128 v61, v[4:7]", 7: "s_mov_b64 exec, 1\nds_write_b32 v60, v4\ns_mov_b64 exec, -1"}[OPT.dsx]
        k.e(f"v_add_u32 v60, {L_CW}, v2\nv_lshlrev_b32 v61, 1, v14\nv_add_u32 v61, {L_CW}, v61")
        bars(k, 63-cb-25)
        for i in range(6):
            k.e(ops); bars(k, 4)
        k.e("s_waitcnt lgkmcnt(0)\ns_barrier")
    else:
        bars(k, 63-cb)
    set_flag(k, 9)
    k.e("L_a_p5:")
    poll(k, 9, 1, val=7 if OPT.sk else 14)
    k.e("s_barrier")
    k.e("s_branch L_fin")
    k.e("L_a_helper:")
    k.e("s_barrier")
    if OPT.sk:
        xp_init(k)
        k.e(f"""v_mov_b32 v9, {F_Z + 14*FLS}
        s_mov_b64 exec, 1
        buffer_atomic_add v11, v9, {W}, 0 offen sc1
        s_mov_b64 exec, -1
        s_sleep 64""")
        poll(k, 9, 1, val=64)
    u_cnt(k)
    k.e("s_branch L_a_p5")

def swaps(p):
    return [f"v_permlane16_swap_b32 v{p}, v{p+2}", f"v_permlane16_swap_b32 v{p+1}, v{p+3}"]
def pack32(k, dst, a):
    cvt16(k, dst, a)
    for x in swaps(dst): k.e(x)
    for x in swaps(dst+4): k.e(x)

def gelu_quads(k, quads, t):
    for g in range(0, len(quads), 2):
        P = [(y+2*i, cs+2*i, s, t+4*j+2*i) for j, (y, cs, s) in enumerate(quads[g:g+2]) for i in range(2)]
        for y, cs, s, p in P: k.e(f"v_pk_fma_f32 v[{y}:{y+1}], v[{cs}:{cs+1}], v[{s}:{s+1}], v[{y}:{y+1}] op_sel_hi:[1,0,1]")
        for y, cs, s, p in P: k.e(f"v_pk_mul_f32 v[{p}:{p+1}], v[{y}:{y+1}], v[{y}:{y+1}]")
        for y, cs, s, p in P: k.e(f"v_pk_fma_f32 v[{p}:{p+1}], v[{p}:{p+1}], v[{s+2}:{s+3}], v[{s}:{s+1}] op_sel:[0,0,1] op_sel_hi:[1,0,1]")
        for y, cs, s, p in P: k.e(f"v_pk_mul_f32 v[{p}:{p+1}], v[{p}:{p+1}], v[{y}:{y+1}]")
        for j in range(8): k.e(f"v_exp_f32 v{t+j}, v{t+j}")
        for y, cs, s, p in P: k.e(f"v_pk_fma_f32 v[{p}:{p+1}], v[{p}:{p+1}], v[{s+2}:{s+3}], v[{s+2}:{s+3}] op_sel:[0,1,1] op_sel_hi:[1,1,1]")
        for j in range(8): k.e(f"v_rcp_f32 v{t+j}, v{t+j}")
        for y, cs, s, p in P: k.e(f"v_pk_mul_f32 v[{y}:{y+1}], v[{y}:{y+1}], v[{p}:{p+1}]")

def gelu_fill(y, cs, s, n, t):
    E = range(n); L = []
    L += [f"v_fmac_f32 v{y+j}, v{cs+j}, v{s}" for j in E]
    L += [f"v_mul_f32 v{t+j}, v{y+j}, v{y+j}" for j in E]
    L += [f"v_fma_f32 v{t+j}, v{t+j}, v{s+2}, v{s+1}" for j in E]
    L += [f"v_mul_f32 v{t+j}, v{t+j}, v{y+j}" for j in E]
    L += [f"v_exp_f32 v{t+j}, v{t+j}" for j in E]
    L += [f"v_fma_f32 v{t+j}, v{t+j}, v{s+3}, v{s+3}" for j in E]
    L += [f"v_rcp_f32 v{t+j}, v{t+j}" for j in E]
    L += [f"v_mul_f32 v{y+j}, v{t+j}, v{y+j}" for j in E]
    return L

def treduce(k, a):
    k.e(f"""s_nop 1
    v_permlane32_swap_b32 v{a}, v{a+2}
    v_permlane32_swap_b32 v{a+1}, v{a+3}
    v_add_f32 v{a}, v{a}, v{a+2}
    v_add_f32 v{a+1}, v{a+1}, v{a+3}
    s_nop 1
    v_permlane16_swap_b32 v{a}, v{a+1}
    v_add_f32 v{a}, v{a}, v{a+1}""")

NWARM = [8, 8, 8, 4]
def grp(k, g):
    if OPT.pads: k.e(f'GRP {g}')
def warm(k, grp):
    if not OPT.pads: return
    k.e("s_mov_b64 exec, 0")
    for i in range(NWARM[grp]): k.e(f"WARM {grp} {i}")
    k.e("s_mov_b64 exec, -1")

def consumer(k):
    c1, c2, c3, c4, c5 = cfgs()
    def regs(aS, aF, acc):
        R = Regs(); R.aS = aS; R.aF = aF; R.fr = 16; R.acc = acc; return R
    k.e(f"s_mov_b32 s{S_K}, {f2u(LOG2E)}\ns_mov_b32 s{S_K+1}, {f2u(LOG2E)}")
    c = c1; R = regs([8, 9], [10, 11, 12, 13], 64); C = Cons(k, c, R)
    k.e("s_waitcnt lgkmcnt(0)")
    mk_srd(k, SRD_B, P_X, 4*MB); mk_srd(k, SRD_W, P_WS, WS_END)
    if OPT.pads:
        for d in (SRD_S, SRD_F, SRD_A, SRD_D): mk_srd(k, d, P_X, 0)
    stamp(k, 0)
    consumer_addr(k, c, R)
    C.zero()
    aWP=240; aXS=241; aCQ=242; aCV=243; aVS=244; aPW=245; aVX=247; aVW=248; aPR=249; L16=15
    tr_lane_base(k, aWP, 3, 9, rowshift=6, swz=False)
    k.e(f"""s_lshl_b32 s{S_T}, s{S_WN}, 11
    s_add_u32 s{S_T}, s{S_T}, {L_WPHI}
    v_add_u32 v{aWP}, s{S_T}, v{aWP}
    v_lshrrev_b32 v3, 4, v1
    v_and_b32 v4, 15, v1
    s_lshl_b32 s{S_T}, s{S_WM}, 8
    s_add_u32 s{S_T}, s{S_T}, {L_XS}
    v_lshl_add_u32 v{aXS}, v4, 2, s{S_T}
    v_lshl_add_u32 v{aVS}, v3, 4, s{S_T}
    s_mul_i32 s{S_T+1}, s{S_WN}, 384
    s_add_u32 s{S_T+1}, s{S_T+1}, {L_CQ}
    v_lshl_add_u32 v{aCQ}, v3, 4, s{S_T+1}
    v_and_b32 v7, 3, v4
    v_bfe_u32 v5, v4, 2, 1
    v_lshl_or_b32 v7, v5, 3, v7
    v_bfe_u32 v5, v4, 3, 1
    v_lshl_or_b32 v7, v5, 2, v7
    v_lshl_add_u32 v{aCV}, v7, 2, s{S_T+1}
    v_lshrrev_b32 v3, 5, v1
    v_and_b32 v4, 31, v1
    v_lshlrev_b32 v5, 2, v3
    v_xor_b32 v5, v4, v5
    v_lshlrev_b32 v5, 4, v5
    v_lshl_add_u32 v5, v3, 9, v5
    s_lshl_b32 s{S_T}, s{S_WN}, 14
    s_add_u32 s{S_T}, s{S_T}, {L_PHK}
    s_lshl_b32 s{S_T+1}, s{S_WM}, 13
    s_add_u32 s{S_T+2}, s{S_T}, s{S_T+1}
    v_add_u32 v{aPW}, s{S_T+2}, v5
    v_xor_b32 v{aPW+1}, 128, v{aPW}
    v_lshlrev_b32 v{L16}, 4, v1
    s_lshl_b32 s{S_T+3}, s{S_WN}, 13
    s_add_u32 s{S_T+3}, s{S_T+3}, {L_VX}
    v_add_u32 v{aVX}, s{S_T+3}, v{L16}
    s_lshl_b32 s{S_T+4}, s{S_WM}, 12
    v_add_u32 v{aVW}, s{S_T+4}, v{aVX}
    v_lshlrev_b32 v14, 13, v3
    v_lshl_add_u32 v14, v4, 4, v14
    v_lshlrev_b32 v251, 8, v3
    v_lshlrev_b32 v252, 4, v3""")
    blk_tr_base(k, aPR, 2, 3, 3)
    k.e(f"""s_lshl_b32 s{S_T+1}, s{S_WM}, 11
    s_add_u32 s{S_T+1}, s{S_T+1}, s{S_T}
    v_add_u32 v{aPR}, s{S_T+1}, v{aPR}
    v_xor_b32 v{aPR+1}, 64, v{aPR}""")
    ONES=4
    for i in range(4): k.e(f"v_mov_b32 v{ONES+i}, 0x3f803f80")
    k.e(f"""s_lshl_b32 s{S_T}, s{S_WN}, 1
    s_add_u32 s{S_T}, s{S_T}, s{S_WM}
    s_lshl_b32 s{S_T+1}, s{S_N}, 2
    s_add_u32 s{S_T}, s{S_T}, s{S_T+1}
    s_lshl_b32 s{S_T+2}, s{S_T}, 15
    s_lshl_b32 s{S_T+1}, s{S_M}, 9
    s_add_u32 s{S_T+2}, s{S_T+2}, s{S_T+1}
    s_add_u32 s{S_T+2}, s{S_T+2}, {WS_KVP}
    s_add_u32 s{S_T+3}, s{S_T+2}, 16384
    s_lshl_b32 s{S_T+4}, s{S_T}, 10
    s_lshl_b32 s{S_T+1}, s{S_M}, 4
    s_add_u32 s{S_T+4}, s{S_T+4}, s{S_T+1}
    s_add_u32 s{S_T+4}, s{S_T+4}, {WS_ZP}
    s_lshl_b32 s{S_T}, s{S_N}, 1
    s_add_u32 s{S_T}, s{S_T}, s{S_WN}
    s_lshl_b32 s{S_T+12}, s{S_M}, 2
    s_lshl_b32 s{S_T+1}, s{S_WM}, 1
    s_add_u32 s{S_T+12}, s{S_T+12}, s{S_T+1}
    s_lshl_b32 s{S_T+12}, s{S_T+12}, 16
    s_lshl_b32 s{S_T+1}, s{S_T}, 11
    s_add_u32 s{S_T+12}, s{S_T+12}, s{S_T+1}
    s_add_u32 s{S_T+12}, s{S_T+12}, {WS_O}
    s_add_u32 s{S_T+13}, s{S_T+12}, 65536""")
    warm(k, 0)
    k.e("s_barrier")
    stamp(k, 1)
    K0,K1,V0,V1,Q0,Q1 = 64,80,96,112,128,144
    WP=224; ST=232; KB=24; VB=40; PK=160; NM=192; RSD=208; CK=160; CV=2
    tl = [f"ds_read2_b32 v[{ST+2*t}:{ST+2*t+1}], v{aXS} offset0:{16*t} offset1:{128+16*t}" for t in range(4)]
    tl += [f"ds_read_b128 v[{CK+4*fh}:{CK+4*fh+3}], v{aCQ} offset:{128+64*fh}" for fh in range(2)]
    tl += [f"ds_read_b64_tr_b16 v[{WP+4*cc+2*rd}:{WP+4*cc+2*rd+1}], v{aWP} offset:{cc*1024+rd*256}" for cc in range(2) for rd in range(2)]
    tl += [f"ds_read2_b32 v[{CV}:{CV+1}], v{aCV} offset0:64 offset1:80"]
    C.first_reads(); C.loopu(15//OPT.u1, OPT.u1); C.loop(1, next_cons=False, tail=tl)
    stamp(k, 2)
    k.e("s_waitcnt lgkmcnt(5)")
    for t in range(4):
        k.e(f"ds_read_b128 v[{NM+4*t}:{NM+3+4*t}], v{aVS} offset:{64*t}\nds_read_b128 v[{RSD+4*t}:{RSD+3+4*t}], v{aVS} offset:{512+64*t}")
    def corrT(a, cs, st, t):
        for fh in range(2):
            P = [(a+8*fh+4*sh+2*i, cs+4*fh+2*i, ST+2*(2*st+sh), t+4*sh+2*i) for sh in range(2) for i in range(2)]
            for y, c_, s_, p in P: k.e(f"v_pk_mul_f32 v[{p}:{p+1}], v[{c_}:{c_+1}], v[{s_}:{s_+1}] op_sel_hi:[1,0]")
            for y, c_, s_, p in P: k.e(f"v_pk_fma_f32 v[{y}:{y+1}], v[{y}:{y+1}], v[{s_}:{s_+1}], v[{p}:{p+1}] op_sel:[0,1,0] op_sel_hi:[1,1,1]")
    def corrN(a, st, t):
        for sh in range(2):
            P = [(a+8*sh+4*dh+2*i, 4*(2*st+sh)+2*i, dh, t+4*dh+2*i) for dh in range(2) for i in range(2)]
            for y, o_, dh, p in P: k.e(f"v_pk_mul_f32 v[{p}:{p+1}], v[{NM+o_}:{NM+o_+1}], v[{CV}:{CV+1}] op_sel:[0,{dh}] op_sel_hi:[1,{dh}]")
            for y, o_, dh, p in P: k.e(f"v_pk_fma_f32 v[{y}:{y+1}], v[{y}:{y+1}], v[{RSD+o_}:{RSD+o_+1}], v[{p}:{p+1}]")
    def pmf(P, B, st):
        k.e(f"{MF} v[{P+16*st}:{P+16*st+15}], v[{WP}:{WP+3}], v[{B+8*st}:{B+8*st+3}], 0")
        k.e(f"{MF} v[{P+16*st}:{P+16*st+15}], v[{WP+4}:{WP+7}], v[{B+8*st+4}:{B+8*st+7}], v[{P+16*st}:{P+16*st+15}]")
    corrT(K0, CK, 0, 16); corrT(K1, CK, 1, 16)
    pack32(k, KB, K0); pack32(k, KB+8, K1)
    k.e("s_waitcnt lgkmcnt(0)")
    pmf(PK, KB, 0); pmf(PK, KB, 1)
    corrN(V0, 0, 16); corrN(V1, 1, 16)
    pack32(k, VB, V0); pack32(k, VB+8, V1)
    CK = 192
    EP=64; EN=80; T=56
    def wr(st, O, nb): return [f"ds_write_b128 v{aPW+hh}, v[{O+4*hh}:{O+4*hh+3}] offset:{st*4096+nb*2048+hh*1024}" for hh in range(2)]
    inj = [f"ds_write_b128 v{aVW}, v[{VB+4*i}:{VB+4*i+3}] offset:{i*1024}" for i in range(4)]
    inj += [f"ds_read_b128 v[{CK+4*fh}:{CK+4*fh+3}], v{aCQ} offset:{64*fh}" for fh in range(2)]
    softmax_pm(k, PK, EP, EN, T, 96, 104, inject=inj, wpos=wr(0, 96, 0), wneg=wr(0, 104, 1))
    softmax_pm(k, PK+16, EP, EN, T, 112, 120, wpos=wr(1, 112, 0), wneg=wr(1, 120, 1))
    k.e("s_waitcnt lgkmcnt(0)\ns_barrier")
    stamp(k, 3)
    AF=64; VF_=96; KV=160; ZZ=176
    def rdkc(kc):
        off = (kc>>1)*4096 + (kc&1)*256
        k.e(f"""ds_read_b64_tr_b16 v[{AF+4*kc}:{AF+4*kc+1}], v{aPR} offset:{off}
        ds_read_b64_tr_b16 v[{AF+4*kc+2}:{AF+4*kc+3}], v{aPR+1} offset:{off}
        ds_read_b128 v[{VF_+4*kc}:{VF_+4*kc+3}], v{aVX} offset:{kc*1024}""")
    for kc in range(5): rdkc(kc)
    for kc in range(8):
        k.e(f"s_waitcnt lgkmcnt({3*(min(kc+5, 8)-kc-1)})")
        k.e(f"{MF} v[{KV}:{KV+15}], v[{AF+4*kc}:{AF+4*kc+3}], v[{VF_+4*kc}:{VF_+4*kc+3}], {'0' if kc==0 else f'v[{KV}:{KV+15}]'}")
        if kc+5 < 8: rdkc(kc+5)
    for kc in range(8):
        k.e(f"{MF} v[{ZZ}:{ZZ+15}], v[{AF+4*kc}:{AF+4*kc+3}], v[{ONES}:{ONES+3}], {'0' if kc==0 else f'v[{ZZ}:{ZZ+15}]'}")
        if kc == 2:
            k.e("s_nop 7\ns_nop 1")
            for i in range(4): k.e(f"v_cvt_pk_bf16_f32 v{212+i}, v{KV+2*i}, v{KV+2*i+1}")
            k.e(f"buffer_store_dwordx4 v[212:215], v14, {W}, s{S_T+2} offen sc1")
        if kc == 3:
            for i in range(4, 8): k.e(f"v_cvt_pk_bf16_f32 v{212+i}, v{KV+2*i}, v{KV+2*i+1}")
            k.e(f"buffer_store_dwordx4 v[216:219], v14, {W}, s{S_T+3} offen sc1")
    k.e("s_barrier")
    k.e("s_nop 7\ns_nop 2")
    cvt16(k, 16, ZZ)
    k.e(f"""s_mov_b32 exec_lo, 1
    s_mov_b32 exec_hi, 1
    buffer_store_dwordx4 v[16:19], v251, {W}, s{S_T+4} offen sc1
    buffer_store_dwordx4 v[20:23], v251, {W}, s{S_T+4} offen offset:512 sc1
    s_mov_b64 exec, -1""")
    stamp(k, 4)
    QB=32; PQ=160
    def p25_addr():
        tile_map(k, 4, 8, 16)
        k.e(f"""s_lshl_b32 s{S_T}, s{S_M}, 2
        s_add_u32 s{S_T}, s{S_T}, s{S_WAVE}
        s_lshl_b32 s{S_T+1}, s{S_T}, 16
        s_lshl_b32 s{S_T+2}, s{S_N}, 7
        s_add_u32 s{S_T+2}, s{S_T+2}, s{S_T+1}
        v_and_b32 v4, 31, v1
        v_lshlrev_b32 v14, 11, v4
        v_lshrrev_b32 v5, 5, v1
        v_lshl_add_u32 v14, v5, 4, v14
        v_add_u32 v14, s{S_T+2}, v14""")
    corrT(Q0, CK, 0, 48); corrT(Q1, CK, 1, 48)
    pack32(k, QB, Q0); pack32(k, QB+8, Q1)
    pmf(PQ, QB, 0); pmf(PQ, QB, 1)
    p25_addr()
    RS = 224
    for i in range(4): k.e(f"buffer_load_dwordx4 v[{RS+4*i}:{RS+4*i+3}], v14, {srd(SRD_B)}, 0 offen offset:{32*i}")
    k.e(f"""s_lshl_b32 s{S_T+2}, s{S_N}, 12
    s_add_u32 s{S_T+2}, s{S_T+2}, s{S_T+1}
    s_add_u32 s{S_T+2}, s{S_T+2}, {WS_H}
    v_add_u32 v7, s{S_T+2}, v{L16}
    s_lshl_b32 s{S_T}, s{S_T}, 8
    s_lshl_b32 s{S_T+1}, s{S_N}, 14
    s_add_u32 s{S_T}, s{S_T}, s{S_T+1}
    s_add_u32 s{S_T}, s{S_T}, {WS_HST}
    v_lshlrev_b32 v9, 3, v4
    v_add_u32 v9, s{S_T}, v9
    s_lshl_b32 s{S_T}, s{S_WN}, 12
    v_add_u32 v2, s{S_T}, v{L16}
    s_lshl_b32 s{S_T}, s{S_WN}, 7
    v_add_u32 v3, s{S_T}, v252""")
    PH=128; KF=16; ZF=32; NUM=96; DEN=192
    softmax_pm(k, PQ, EP, EN, T, PH, PH+8)
    softmax_pm(k, PQ+16, EP, EN, T, PH+16, PH+24)
    def res_init():
        for j in range(4):
            for x in swaps(RS+4*j): k.e(x)
        for i in range(16): unpack(k, 64+2*i, 65+2*i, RS+i)
    R25 = regs([8], [10, 11, 12, 13], 64)
    consumer_addr(k, c2, R25, t=48)
    k.e("s_waitcnt vmcnt(0)")
    res_init()
    stamp(k, 21)
    warm(k, 1); grp(k, 1)
    k.e("s_barrier")
    stamp(k, 5)
    for i in range(4): k.e(f"ds_read_b128 v[{ZF+4*i}:{ZF+4*i+3}], v3 offset:{L_Z+i*32}")
    for i in range(4): k.e(f"ds_read_b128 v[{KF+4*i}:{KF+4*i+3}], v2 offset:{L_KV+i*1024}")
    for st in range(2):
        for A_, D_ in ((ZF, DEN), (KF, NUM)):
            if st == 0: k.e(f"s_waitcnt lgkmcnt({4 if A_ == ZF else 0})")
            for i in range(4):
                b = PH+16*st+4*i
                k.e(f"{MF} v[{D_+16*st}:{D_+16*st+15}], v[{A_+4*i}:{A_+4*i+3}], v[{b}:{b+3}], {'0' if i==0 else f'v[{D_+16*st}:{D_+16*st+15}]'}")
    k.e("s_nop 0")
    for st in range(2):
        d = DEN+16*st; n = NUM+16*st; o = 160+8*st
        k.e(f"v_add_f32 v{d}, {f2u(1e-6)}, v{d}\nv_rcp_f32 v{d}, v{d}\ns_nop 0")
        for hh in range(2):
            for i in range(4*hh, 4*hh+4): k.e(f"v_pk_mul_f32 v[{n+2*i}:{n+2*i+1}], v[{n+2*i}:{n+2*i+1}], v[{d}:{d+1}] op_sel_hi:[1,0]")
            for i in range(4*hh, 4*hh+4): k.e(f"v_cvt_pk_bf16_f32 v{o+i}, v{n+2*i}, v{n+2*i+1}")
            k.e(f"buffer_store_dwordx4 v[{o+4*hh}:{o+4*hh+3}], v{L16}, {W}, s{S_T+12+st} offen offset:{1024*hh} sc1")
    C = Cons(k, c2, R25)
    k.e("s_waitcnt vmcnt(0)\ns_barrier")
    stamp(k, 6)
    warm(k, 2)
    k.e("s_barrier\ns_barrier")
    stamp(k, 7)
    if OPT.st4 & 1:
        C.first_reads(); C.loopu(5, 3); C.loop(1, next_cons=False)
    else:
        C.first_reads(); C.loop(15); C.loop(1, next_cons=False)
    stamp(k, 8)
    A = 64
    def out4(dst, store):
        k.e("s_nop 1")
        for i in range(4): k.e(f"v_cvt_pk_bf16_f32 v{dst+i}, v{A+2*i}, v{A+2*i+1}")
        for j in range(4):
            if j < 3:
                for i in range(4*j+4, 4*j+8): k.e(f"v_cvt_pk_bf16_f32 v{dst+i}, v{A+2*i}, v{A+2*i+1}")
            for x in swaps(dst+4*j): k.e(x)
            k.e(store(dst+4*j, j))
    out4(RS, lambda r, j: f"buffer_store_dwordx4 v[{r}:{r+3}], v7, {W}, 0 offen offset:{1024*j} sc1")
    for i in range(16): unpack(k, A+2*i, A+2*i+1, RS+i)
    k.e(f"v_pk_add_f32 v[20:21], v[{A}:{A+1}], v[{A+2}:{A+3}]\nv_pk_add_f32 v[22:23], v[{A+4}:{A+5}], v[{A+6}:{A+7}]")
    for i in range(4, 16):
        t = 20 + 2*(i & 1); k.e(f"v_pk_add_f32 v[{t}:{t+1}], v[{t}:{t+1}], v[{A+2*i}:{A+2*i+1}]")
    k.e("v_pk_add_f32 v[20:21], v[20:21], v[22:23]\nv_add_f32 v20, v20, v21")
    xswap_sum1(k, 20, 21)
    k.e(f"v_mul_f32 v20, {f2u(1/64.)}, v20")
    for i in range(16):
        k.e(f"v_pk_add_f32 v[{A+2*i}:{A+2*i+1}], v[{A+2*i}:{A+2*i+1}], v[20:21] op_sel_hi:[1,0] neg_lo:[0,1] neg_hi:[0,1]")
    k.e(f"v_pk_mul_f32 v[22:23], v[{A}:{A+1}], v[{A}:{A+1}]\nv_pk_mul_f32 v[24:25], v[{A+2}:{A+3}], v[{A+2}:{A+3}]")
    for i in range(2, 16):
        t = 22 + 2*(i & 1); k.e(f"v_pk_fma_f32 v[{t}:{t+1}], v[{A+2*i}:{A+2*i+1}], v[{A+2*i}:{A+2*i+1}], v[{t}:{t+1}]")
    k.e("v_pk_add_f32 v[22:23], v[22:23], v[24:25]\nv_add_f32 v22, v22, v23")
    xswap_sum1(k, 22, 23)
    k.e(f"""v_mov_b32 v21, v22
    s_mov_b32 exec_hi, 0
    buffer_store_dwordx2 v[20:21], v9, {W}, 0 offen sc1
    s_mov_b32 exec_hi, -1
    s_waitcnt vmcnt(1)
    s_barrier""")
    stamp(k, 9)
    k.e("s_cmp_ge_u32 s2, 224\ns_cbranch_scc1 L_c_helper")
    k.e("L_c_p3:")
    tile_map(k, 4, 7, 14)
    Ra = regs([2], [3, 4, 5, 6], 128); Rb = regs([2], [3, 4, 5, 6], 64); R4 = regs([8, 9], [10, 11], 128)
    Ca = Cons(k, c3, Ra); Cb = Cons(k, c3, Rb); C4 = Cons(k, c4, R4)
    consumer_addr(k, c3, Ra, t=32, slot=0); consumer_addr(k, c4, R4, slot=0, t=32, setslot=False)
    Ca.zero(); Cb.zero()
    mk_srd(k, SRD_A, P_BSP, 4096)
    aCS=7; aZN=12; aHS=13; aZS=14; aZP=252; CS=192; HS=208; BB=240; ZS=244
    k.e(f"""v_and_b32 v32, 15, v1
    v_lshlrev_b32 v33, 1, v32
    s_lshl_b32 s{S_T+2}, s{S_M}, 8
    s_lshl_b32 s{S_T+3}, s{S_WM}, 7
    s_add_u32 s{S_T+2}, s{S_T+2}, s{S_T+3}""")
    for t in range(4): k.e(f"buffer_load_ushort v{BB+t}, v33, {srd(SRD_A)}, s{S_T+2} offen offset:{32*t}")
    k.e(f"""s_lshl_b32 s{S_T}, s{S_WM}, 6
    v_add_u32 v32, s{S_T}, v32
    v_lshlrev_b32 v{aZS}, 3, v32
    v_add_u32 v{aZS}, {L_ZS}, v{aZS}
    v_lshlrev_b32 v{aHS}, 4, v32
    v_add_u32 v{aHS}, {L_HS}, v{aHS}
    v_lshrrev_b32 v34, 4, v1
    s_lshl_b32 s{S_T}, s{S_WN}, 8
    s_add_u32 s{S_T}, s{S_T}, {L_CS}
    v_lshl_add_u32 v{aCS}, v34, 4, s{S_T}
    v_lshrrev_b32 v34, 5, v1
    v_lshlrev_b32 v34, 6, v34
    v_xor_b32 v{aZN}, v34, v{L16}
    s_lshl_b32 s{S_T}, s{S_WM}, 9
    s_lshl_b32 s{S_T+1}, s{S_WN}, 10
    s_add_u32 s{S_T}, s{S_T}, s{S_T+1}
    s_add_u32 s{S_T}, s{S_T}, {L_ZP}
    v_lshl_add_u32 v{aZP}, v1, 3, s{S_T}
    s_lshl_b32 s{S_T+12}, s{S_N}, 19
    s_lshl_b32 s{S_T+1}, s{S_M}, 15
    s_add_u32 s{S_T+12}, s{S_T+12}, s{S_T+1}
    s_lshl_b32 s{S_T+1}, s{S_WM}, 14
    s_add_u32 s{S_T+12}, s{S_T+12}, s{S_T+1}
    s_lshl_b32 s{S_T+1}, s{S_WN}, 12
    s_add_u32 s{S_T+12}, s{S_T+12}, s{S_T+1}
    s_add_u32 s{S_T+12}, s{S_T+12}, {WS_Z2N}
    s_add_u32 s{S_T+13}, s{S_T+12}, 8192
    s_lshl_b32 s{S_T}, s{S_M}, 2
    s_lshl_b32 s{S_T+1}, s{S_WM}, 1
    s_add_u32 s{S_T}, s{S_T}, s{S_T+1}
    s_mul_i32 s{S_T}, s{S_T}, 112
    s_lshl_b32 s{S_T+1}, s{S_N}, 3
    s_add_u32 s{S_T}, s{S_T}, s{S_T+1}
    s_lshl_b32 s{S_T+1}, s{S_WN}, 2
    s_add_u32 s{S_T}, s{S_T}, s{S_T+1}
    s_lshl_b32 s{S_T}, s{S_T}, 10
    s_add_u32 s{S_T+14}, s{S_T}, {WS_U}
    s_add_u32 s{S_T+15}, s{S_T+14}, {112*1024}""")
    warm(k, 3)
    k.e("s_barrier\ns_waitcnt vmcnt(4)\ns_barrier")
    stamp(k, 10)
    rcs = lambda half: [f"ds_read_b128 v[{CS+4*f}:{CS+4*f+3}], v{aCS} offset:{half*512 + f*64}" for f in range(4)]
    rhs = [f"ds_read_b128 v[{HS+4*t}:{HS+4*t+3}], v{aHS} offset:{t*256}" for t in range(4)]
    Ca.first_reads_static(2); Ca.loop4(3, 2)
    for j in range(3): Ca.loop(1, slot=(2+j) % 4)
    Ca.loop(1, next_cons=False, tail=rhs+rcs(1), slot=1)
    stamp(k, 11)
    k.e("s_waitcnt lgkmcnt(0)")
    Cb.first_reads_static(2)
    gelu_quads(k, [(Ca.sub(t, f), CS+4*f, HS+4*t) for f in range(4) for t in Ca.order(f)], 32)
    for x in rcs(0): k.e(x)
    SM = 40
    for t in range(4):
        ys = [Ca.sub(t, f)+2*i for f in range(4) for i in range(2)]
        p = 32+2*(t & 1)*2
        k.e(f"v_pk_add_f32 v[{p}:{p+1}], v[{ys[0]}:{ys[0]+1}], v[{ys[1]}:{ys[1]+1}]\nv_pk_add_f32 v[{p+2}:{p+3}], v[{ys[2]}:{ys[2]+1}], v[{ys[3]}:{ys[3]+1}]")
        for i in range(4, 8):
            q_ = p+2*(i & 1); k.e(f"v_pk_add_f32 v[{q_}:{q_+1}], v[{q_}:{q_+1}], v[{ys[i]}:{ys[i]+1}]")
        k.e(f"v_pk_add_f32 v[{p}:{p+1}], v[{p}:{p+1}], v[{p+2}:{p+3}]\nv_add_f32 v{SM+t}, v{p}, v{p+1}")
    treduce(k, SM)
    k.e(f"""v_mul_f32 v{ZS}, {f2u(1/64.)}, v{SM}
    v_mov_b32 v44, v{ZS}
    v_mov_b32 v45, v{ZS}
    s_nop 1
    v_permlane16_swap_b32 v44, v45
    v_mov_b32 v46, v44
    v_mov_b32 v47, v45
    s_nop 1
    v_permlane32_swap_b32 v44, v46
    v_permlane32_swap_b32 v45, v47""")
    for t in range(4):
        ys = [Ca.sub(t, f)+2*i for f in range(4) for i in range(2)]
        m = 44 + (t & 2); sel = "op_sel_hi:[1,0]" if t & 1 == 0 else "op_sel:[0,1] op_sel_hi:[1,1]"
        for i, y in enumerate(ys):
            d = 36+2*(i & 1); u = 32+2*(i & 1)
            k.e(f"v_pk_add_f32 v[{d}:{d+1}], v[{y}:{y+1}], v[{m}:{m+1}] {sel} neg_lo:[0,1] neg_hi:[0,1]")
            k.e(f"v_pk_mul_f32 v[{u}:{u+1}], v[{d}:{d+1}], v[{d}:{d+1}]" if i < 2 else f"v_pk_fma_f32 v[{u}:{u+1}], v[{d}:{d+1}], v[{d}:{d+1}], v[{u}:{u+1}]")
        k.e(f"v_pk_add_f32 v[32:33], v[32:33], v[34:35]\nv_add_f32 v{SM+t}, v32, v33")
    treduce(k, SM)
    k.e(f"v_mov_b32 v{ZS+1}, v{SM}\nds_write_b64 v{aZP}, v[{ZS}:{ZS+1}]\ns_waitcnt lgkmcnt(0)")
    if OPT.gb: k.e("s_barrier")
    grp(k, 2)
    stamp(k, 12)
    g = OPT.gat
    n1 = g+1+OPT.zsp-16+1
    def norm_tile(st, ft):
        a = Ca.acc(st, ft); L = []
        for fh in range(2):
            for sh in range(2):
                s = ZS+2*(2*st+sh)
                L += [f"v_fma_f32 v{a+8*fh+4*sh+i}, v{a+8*fh+4*sh+i}, v{s+1}, v{s}" for i in range(4)]
        L += [f"v_cvt_pk_bf16_f32 v{a+8*fh+i}, v{a+8*fh+2*i}, v{a+8*fh+2*i+1}" for fh in range(2) for i in range(4)]
        for fh in range(2):
            L += swaps(a+8*fh)
            L += [f"buffer_store_dwordx4 v[{a+8*fh}:{a+8*fh+3}], v{aZN}, {W}, s{S_T+12+st} offen offset:{ft*2048+fh*1024} sc1"]
        return L
    NL = sum((norm_tile(st, ft) for st in range(2) for ft in range(2)), [])
    nf = OPT.nst
    zl = [f"v_lshlrev_b32 v{C4.sub(t, f)+i}, 16, v{BB+t}" for f in range(4) for t in range(4) for i in range(4)]
    vm = n1+nf+OPT.vmd
    nz = 15-vm
    rz = [f"ds_read_b64 v[{ZS+2*t}:{ZS+2*t+1}], v{aZS} offset:{t*128}" for t in range(4)]
    for j in range(16):
        kw = dict(slot=(2+j) % 4)
        if j == n1-1: kw['tail'] = rz
        if j == n1:
            k.e("s_waitcnt lgkmcnt(4)"); stamp(k, 13)
        if n1 <= j < n1+nf: kw['fillers'] = NL[len(NL)*(j-n1)//nf: len(NL)*(j-n1+1)//nf]
        if j == vm: kw['pre_barrier'] = "vm"
        if j > vm: kw['fillers'] = zl[64*(j-vm-1)//nz: 64*(j-vm)//nz]
        if j == 15: kw['next_cons'] = C4; kw['nslot'] = 2
        Cb.loop(1, **kw)
    stamp(k, 14)
    j = 0
    if not OPT.z1fill:
        OPT.dg |= 1
        gelu_quads(k, [(Cb.sub(t, f), CS+4*f, HS+4*t) for f in range(4) for t in Cb.order(f)], 32)
        stamp(k, 15)
    if OPT.p4loop:
        C4.loop4(8, 2); k.e("s_waitcnt lgkmcnt(0)")
    for f in range(0 if OPT.p4loop else 4):
        for t in Cb.order(f):
            for i in range(2):
                C4.loop(1, fillers=(gelu_fill(Cb.sub(t, f)+2*i, CS+4*f+2*i, HS+4*t, 2, ZS) if not OPT.dg & 1 else None), budget=OPT.bud, next_cons=(False if j == 31 else None), slot=(2+j) % 4)
                j += 1
                if j == 18: grp(k, 3)
    stamp(k, 16)
    pend = None
    for f in range(4):
        for st in range(2):
            a = C4.acc(st, f >> 1) + 8*(f & 1); z = Cb.acc(st, f >> 1) + 8*(f & 1); o = 16+4*(f*2+st)
            for i in range(4): k.e(f"v_pk_mul_f32 v[{a+2*i}:{a+2*i+1}], v[{a+2*i}:{a+2*i+1}], v[{z+2*i}:{z+2*i+1}]")
            if pend:
                for x in pend: k.e(x)
            for i in range(4): k.e(f"v_cvt_pk_bf16_f32 v{o+i}, v{a+2*i}, v{a+2*i+1}")
            pend = swaps(o) + [f"buffer_store_dwordx4 v[{o}:{o+3}], v{L16}, {W}, s{S_T+14+st} offen offset:{f*1024} sc1"]
    k.e("s_nop 0")
    for x in pend: k.e(x)
    k.e("s_waitcnt vmcnt(0)\ns_barrier")
    stamp(k, 17)
    k.e("L_c_p5:")
    p25_addr()
    if OPT.sk:
        R5 = regs([8], [10, 11, 12, 13], 96); C = Cons(k, c5, R5)
        consumer_addr(k, c5, R5, t=48, slot=0)
        A = 128
        for j in range(4):
            for x in swaps(RS+4*j): k.e(x)
        for i in range(16): unpack(k, A+2*i, A+1+2*i, RS+i)
        for i in range(96, 128, 2): k.e(f"v_mov_b64 v[{i}:{i+1}], 0")
        k.e(f"""s_lshl_b32 s{S_T+12}, s2, 2
        s_add_u32 s{S_T+12}, s{S_T+12}, s{S_WAVE}
        s_lshl_b32 s{S_T+12}, s{S_T+12}, 12
        s_xor_b32 s{S_T+13}, s{S_T+12}, 16384
        s_add_u32 s{S_T+12}, s{S_T+12}, {WS_XP}
        s_add_u32 s{S_T+13}, s{S_T+13}, {WS_XP}""")
        mk_srd(k, SRD_B, P_OUT, 4*MB)
        k.e("s_barrier\ns_barrier")
        stamp(k, 18)
        C.first_reads_static(2); C.loop4(3, 2); C.loop(1, slot=2)
        snd = []
        for j in range(4):
            snd += [f"v_cvt_pk_bf16_f32 v{64+i}, v{96+2*i}, v{97+2*i}" for i in range(4*j, 4*j+4)]
            snd += [f"buffer_store_dwordx4 v[{64+4*j}:{67+4*j}], v{L16}, {W}, s{S_T+12} offen offset:{1024*j} sc1"]
        if OPT.jo:
            C.loop(1, slot=3, next_cons=False, fillers=snd + ["PAD"]*OPT.jpad, fstart=15, budget=12)
        else:
            C.loop(1, slot=3, next_cons=False)
            for x in snd: k.e(x)
        stamp(k, 19)
        if OPT.xslp: k.e(f"s_sleep {OPT.xslp}")
        def xg():
            for j in range(4): k.e(f"buffer_load_dwordx4 v[{80+4*j}:{83+4*j}], v{L16}, {W}, s{S_T+13} offen offset:{1024*j} sc1")
        validated(k, xg, range(80, 96), 2, pre=False)
        stamp(k, 22)
        pend = []
        for j in range(4):
            acc_bf16(k, A+8*j, 80+4*j, 4, False, 16)
            for x in pend: k.e(x)
            for i in range(4): k.e(f"v_cvt_pk_bf16_f32 v{160+4*j+i}, v{A+8*j+2*i}, v{A+8*j+2*i+1}")
            pend = swaps(160+4*j) + [f"buffer_store_dwordx4 v[{160+4*j}:{163+4*j}], v14, {srd(SRD_B)}, 0 offen offset:{32*j}"]
        k.e("s_nop 0")
        for x in pend: k.e(x)
    else:
        C = Cons(k, c5, R25)
        consumer_addr(k, c5, R25, t=48, slot=(0 if OPT.st4 & 4 else None))
        res_init()
        mk_srd(k, SRD_B, P_OUT, 4*MB)
        k.e("s_barrier\ns_barrier")
        stamp(k, 18)
        if OPT.st4 & 4:
            C.first_reads_static(2); C.loop4(7, 2); k.e("s_waitcnt lgkmcnt(0)")
        else:
            C.first_reads(); C.loop(27); C.loop(1, next_cons=False)
        stamp(k, 19)
        out4(96, lambda r, j: f"buffer_store_dwordx4 v[{r}:{r+3}], v14, {srd(SRD_B)}, 0 offen offset:{32*j}")
    k.e("s_branch L_fin")
    k.e("L_c_helper:")
    k.e("s_barrier")
    helper_pf(k, 'c')
    stamp(k, 17)
    k.e("s_branch L_c_p5")

def place_pads(k):
    import subprocess, re, tempfile, os
    L = [x.strip() for x in k.L]
    isins = lambda x: not (x.endswith(":") or x.startswith(".") or x.startswith(("WARM", "ALIGN4K", "GRP")))
    txt = '.amdgcn_target "amdgcn-amd-amdhsa--gfx950"\n.text\n' + KNAME + ":\n" + "\n".join(x for x in L if isins(x) or x.endswith(":")) + "\n"
    d = tempfile.mkdtemp(); open(d+"/a.s", "w").write(txt)
    subprocess.run(["clang", "-x", "assembler", "-target", "amdgcn-amd-amdhsa", "-mcpu=gfx950", "-c", d+"/a.s", "-o", d+"/a.o"], check=True)
    dis = subprocess.run(["llvm-objdump", "-d", "--mcpu=gfx950", d+"/a.o"], capture_output=True, text=True).stdout
    sizes = [4*len(m.group(1).split()) for m in re.finditer(r"// [0-9A-F]{12}: ((?:[0-9A-F]{8} ?)+)", dis)]
    assert len(sizes) == sum(map(isins, L)), (len(sizes), sum(map(isins, L)))
    out = []; off = None; it = iter(sizes); nextpage = 0; pads = [[] for _ in NWARM]; grp = 0; inwarm = False
    for x in L:
        if x == "ALIGN4K":
            out.append(".p2align 12"); off = 0; continue
        if x.startswith("GRP"):
            grp = int(x.split()[1]); continue
        if x == "s_mov_b64 exec, 0": inwarm = True
        if off is not None and off >= nextpage and not inwarm and (isins(x) or x.startswith(".p2align")):
            n = sum(map(len, pads)); pads[grp].append(n)
            out.append(f"L_pad{n}:"); out.append(f"s_cbranch_execz L_padr{n}"); off += 4; nextpage += 4096
        if x == "s_mov_b64 exec, -1": inwarm = False
        out.append(x)
        if isins(x):
            sz = next(it)
            if off is not None: off += sz
        elif x.startswith("WARM"): off += 12
        elif x.startswith(".p2align") and off is not None:
            a = 1 << int(x.split()[1]); off = (off + a-1)//a*a
    fin = []
    for x in out:
        if x.startswith("WARM"):
            g, i = map(int, x.split()[1:])
            if i < len(pads[g]):
                n = pads[g][i]
                fin += [f"s_cmp_lg_u32 s{S_WAVE}, {i % 4}", f"s_cbranch_scc1 L_padr{n}", f"s_branch L_pad{n}", f"L_padr{n}:"]
            else: fin += ["s_nop 0"]*3
        else: fin.append(x)
    assert all(len(p) <= n for p, n in zip(pads, NWARM)), pads
    print('pads', pads, file=sys.stderr)
    k.L = [("" if x.endswith(":") else "    ") + x for x in fin]

def build():
    k = Kern("p")
    if OPT.probe: k.e("s_memrealtime s[94:95]")
    k.e("s_cmp_ge_u32 s2, 256\ns_cbranch_scc1 L_end")
    k.e("s_load_dwordx16 s[32:47], s[0:1], 0\ns_load_dwordx8 s[48:55], s[0:1], 64")
    k.e(f"v_lshrrev_b32 v2, 6, v0\nv_and_b32 v1, 63, v0\nv_readfirstlane_b32 s{S_WAVE}, v2")
    if OPT.stamps: k.e("v_mov_b32 v255, 0\nv_mov_b32 v254, 0\nv_mov_b32 v253, 0\ns_mov_b32 s97, 0")
    import core4; core4.DG[0] = OPT.dg
    ITST[0] = max(OPT.stamps - 1, 0); ITST[1] = 254; CAP[0] = OPT.cap
    tile_map(k, 8, 4, 16)
    k.e(f"s_cmp_lt_u32 s{S_WAVE}, 4\ns_cbranch_scc1 L_cons")
    k.e(f"s_and_b32 s{S_LW}, s{S_WAVE}, 1\ns_sub_u32 s{S_Q}, s{S_WAVE}, 4\ns_cmp_ge_u32 s{S_WAVE}, 6\ns_cbranch_scc1 L_aux")
    if OPT.pl: k.e(f"s_setprio {OPT.pl}")
    loader(k)
    k.e("L_aux:")
    grp(k, 0)
    if OPT.pa: k.e(f"s_setprio {OPT.pa}")
    aux(k)
    k.e("L_cons:")
    grp(k, 0)
    if OPT.pc: k.e(f"s_setprio {OPT.pc}")
    consumer(k)
    k.e("L_fin:")
    if OPT.stamps:
        k.e("s_waitcnt vmcnt(0)")
        stamp(k, 20)
        mk_srd(k, SRD_D, P_WS, 2*MB, WS_END)
        k.e(f"""s_lshl_b32 s{S_T}, s2, 3
        s_add_u32 s{S_T}, s{S_T}, s{S_WAVE}
        s_lshl_b32 s{S_T}, s{S_T}, 8
        v_lshlrev_b32 v2, 2, v1
        buffer_store_dword v255, v2, {srd(SRD_D)}, s{S_T} offen
        s_add_u32 s{S_T}, s{S_T}, 0x80000
        buffer_store_dword v254, v2, {srd(SRD_D)}, s{S_T} offen
        s_add_u32 s{S_T}, s{S_T}, 0x80000
        buffer_store_dword v253, v2, {srd(SRD_D)}, s{S_T} offen""")
    if OPT.probe:
        k.e(f"s_cmp_lg_u32 s{S_WAVE}, {OPT.pwave}\ns_cbranch_scc1 L_end\ns_cmp_ge_u32 s2, 224\ns_cbranch_scc1 L_end")
        if OPT.pwg >= 0: k.e(f"s_cmp_lg_u32 s2, {OPT.pwg}\ns_cbranch_scc1 L_end")
        k.e(f"v_writelane_b32 v255, s94, 31\ns_nop 1")
        k.e(f"v_readlane_b32 s{S_T}, v255, {OPT.probe}\nv_readlane_b32 s{S_T+1}, v255, {OPT.pfrom}\ns_nop 3\ns_sub_u32 s{S_T}, s{S_T}, s{S_T+1}\ns_mul_i32 s{S_T}, s{S_T}, 10\ns_add_u32 s{S_T}, s{S_T}, s94\ns_add_u32 s{S_T}, s{S_T}, 10000\nL_spin:\ns_memrealtime s[{S_ST}:{S_ST+1}]\ns_waitcnt lgkmcnt(0)\ns_sub_u32 s{S_T+1}, s{S_ST}, s{S_T}\ns_cmp_lt_i32 s{S_T+1}, 0\ns_cbranch_scc1 L_spin")
    k.e("L_end:\ns_endpgm")
    if OPT.pads: place_pads(k)
    out = [f"; @launch grid=(256,1,1) block=(512,1,1) lds={163840 if OPT.sk else L_END}",
           '.amdgcn_target "amdgcn-amd-amdhsa--gfx950"\n.text', header(KNAME) + k.text(), '.section .rodata,"a"', descriptor(KNAME, 256, 100)]
    return "\n".join(out)

if __name__ == "__main__":
    for a in sys.argv[2:]:
        kk, v = a.split("="); setattr(OPT, kk, int(v))
    open(sys.argv[1], "w").write(build())
```

```python
import math
from core import Kern, header, descriptor, vr, sr, srd, Regs, tr_lane_base, blk_tr_base

S_WAVE=3; S_M=4; S_N=5; S_PH=6; S_T0=7
SRD_S=8; SRD_F=12; SRD_A=16; SRD_B=20; SRD_W=24; SRD_D=28
P0=32
S_T=56
S_WM=72; S_WN=73; S_LW=74; S_KB=75
S_X=76
S_CNT=80; S_SLOT=81; S_DS=82; S_DF=83; S_OS=84; S_OF=85; S_M0W=86; S_TAU=87
S_K=88
S_FB=96
S_ST=98

def ptr(i): return P0 + 2*i

def mk_srd(k, d, p, nbytes, off=0):
    if off:
        k.e(f"s_add_u32 s{d}, s{ptr(p)}, {off}\ns_addc_u32 s{d+1}, s{ptr(p)+1}, 0")
    else:
        k.e(f"s_mov_b32 s{d}, s{ptr(p)}\ns_mov_b32 s{d+1}, s{ptr(p)+1}")
    k.e(f"s_mov_b32 s{d+2}, {nbytes}\ns_mov_b32 s{d+3}, 0x20000")

class Cfg:
    def __init__(self, BM, BN, T, NS, WM, WN, U, strideS, strideF, ftiles, nb_from_wave, panel_from_wave, orient=None,
                 rot=(-1,0,2,-1), pre_mfma=2, smode='rows', fmode='rows', baseS=0, baseF=65536, auxS="", auxF="", kbase=False, slot0=0, own2=False, pb=22, burst=3, cap2=False, old=7, jorder=None):
        self.BM=BM; self.BN=BN; self.T=T; self.NS=NS; self.WM=WM; self.WN=WN; self.U=U
        self.strideS=strideS; self.strideF=strideF
        self.TM = BM//WM//32
        self.ftiles = ftiles; self.TN = len(ftiles)
        self.nb_from_wave = nb_from_wave; self.panel_from_wave = panel_from_wave
        self.orient = orient or ['T']*self.TN
        self.NP = BN//64
        self.slotS = BM*128; self.slotF = BN*128
        self.nS = BM//16; self.nF = BN//16
        self.nI = self.nS + self.nF
        self.rot = rot; self.pre_mfma = pre_mfma
        self.smode = smode; self.fmode = fmode
        self.baseS = baseS; self.baseF = baseF
        self.auxS = auxS; self.auxF = auxF
        self.slot0 = slot0; self.own2 = own2; self.pb = pb; self.burst = burst; self.cap2 = cap2; self.old = old; self.jorder = jorder
        self.kbase = kbase

def tile_map(k, gm, gn, ntn):
    xn = ntn // gn
    lg = int(math.log2(gm)); lx = int(math.log2(xn))
    k.e(f"""s_and_b32 s{S_T}, s2, 7
    s_lshr_b32 s{S_T+1}, s2, 3
    s_and_b32 s{S_T+2}, s{S_T+1}, {gm-1}
    s_lshr_b32 s{S_T+3}, s{S_T+1}, {lg}
    s_lshr_b32 s{S_M}, s{S_T}, {lx}
    s_mul_i32 s{S_M}, s{S_M}, {gm}
    s_add_u32 s{S_M}, s{S_M}, s{S_T+2}
    s_and_b32 s{S_N}, s{S_T}, {xn-1}
    s_mul_i32 s{S_N}, s{S_N}, {gn}
    s_add_u32 s{S_N}, s{S_N}, s{S_T+3}
    s_add_u32 s{S_PH}, s{S_T+2}, s{S_T+3}""")

def loader_voff_S(k, c, vb):
    w = S_LW
    if c.smode == 'rows':
        k.e(f"""v_lshrrev_b32 v2, 3, v1
        v_and_b32 v4, 7, v1
        s_lshl_b32 s{S_T+6}, s{w}, 3
        v_lshrrev_b32 v3, 4, v1
        s_lshl_b32 s{S_T+5}, s{w}, 2
        v_add_u32 v3, s{S_T+5}, v3
        v_xor_b32 v3, v3, v4
        v_lshlrev_b32 v3, 4, v3
        s_mul_i32 s{S_T+5}, s{S_M}, {c.BM}
        s_add_u32 s{S_T+5}, s{S_T+5}, s{S_T+6}
        v_add_u32 v5, s{S_T+5}, v2
        s_mov_b32 s{S_T+7}, {c.strideS}
        v_mul_lo_u32 v5, v5, s{S_T+7}
        v_add_u32 v{vb}, v5, v3""")
        for i in range(1, c.nS):
            k.e(f"v_add_u32 v{vb+i}, {i*16*c.strideS}, v{vb}")
    else:
        k.e(f"""s_mul_i32 s{S_T+5}, s{S_M}, {c.BM*c.strideS}
        s_add_u32 s{S_T+5}, s{S_T+5}, s{S_M0W}
        v_lshlrev_b32 v3, 4, v1
        v_add_u32 v{vb}, s{S_T+5}, v3""")
        for i in range(1, c.nS):
            k.e(f"v_add_u32 v{vb+i}, {(i>>1)*32*c.strideS + (i&1)*2048}, v{vb}")

def loader_voff_F(k, c, vb, colsg=None, panelconst=None):
    w = S_LW
    if c.fmode == 'rows':
        k.e(f"""v_lshrrev_b32 v2, 3, v1
        v_and_b32 v4, 7, v1
        s_lshl_b32 s{S_T+6}, s{w}, 3
        v_lshrrev_b32 v3, 2, v1
        v_and_b32 v3, 4, v3
        v_xor_b32 v3, v3, v4
        s_lshl_b32 s{S_T+5}, s{w}, 1
        v_xor_b32 v3, s{S_T+5}, v3
        v_lshlrev_b32 v3, 4, v3
        v_add_u32 v5, s{S_T+6}, v2
        s_mov_b32 s{S_T+7}, {c.strideF}
        v_mul_lo_u32 v5, v5, s{S_T+7}
        v_add3_u32 v5, v5, v3, s{colsg}""")
        for i in range(c.nF):
            k.e(f"v_add_u32 v{vb+i}, {panelconst(i>>2) + (i&3)*16*c.strideF}, v5")
    else:
        k.e(f"""s_mul_i32 s{S_T+5}, s{S_N}, {c.T*c.BN*128}
        s_add_u32 s{S_T+5}, s{S_T+5}, s{S_M0W}
        v_lshlrev_b32 v3, 4, v1
        v_add_u32 v{vb}, s{S_T+5}, v3""")
        for i in range(1, c.nF):
            k.e(f"v_add_u32 v{vb+i}, {i*2048}, v{vb}")

def kstep(k, c, t):
    src = S_TAU
    if c.own2 == 2:
        P = len(c.rot); packed = 0
        for u, d in enumerate(c.rot): packed |= ((d+8) & 15) << (4*u)
        k.e(f"""s_lshr_b32 s{t+1}, s{S_TAU}, 1
        s_sub_u32 s{t+2}, s{t+1}, 1
        s_cmp_ge_u32 s{t+2}, s{S_KB}
        s_addc_u32 s{t+2}, s{t+2}, 0
        s_cmp_eq_u32 s{t+1}, 0
        s_cselect_b32 s{t+2}, s{S_KB}, s{t+2}
        s_sub_u32 s{t}, s{t+2}, s{S_PH}
        s_and_b32 s{t}, s{t}, {P-1}
        s_lshl_b32 s{t}, s{t}, 2
        s_lshr_b32 s{t}, {packed}, s{t}
        s_and_b32 s{t}, s{t}, 15
        s_add_u32 s{t}, s{t}, s{t+2}
        s_sub_u32 s{t}, s{t}, 8
        s_and_b32 s{t}, s{t}, 15
        s_lshl_b32 s{t}, s{t}, 1
        s_and_b32 s{t+1}, s{S_TAU}, 1
        s_add_u32 s{t}, s{t}, s{t+1}""")
        return
    if c.kbase is not False:
        q = c.kbase if c.kbase >= 0 else 's93'
        k.e(f"""s_cmp_gt_u32 s{S_TAU}, {q}
        s_subb_u32 s{t+1}, s{S_TAU}, 0
        s_cmp_ge_u32 s{t+1}, s{S_KB}
        s_addc_u32 s{t+1}, s{t+1}, 0
        s_cmp_eq_u32 s{S_TAU}, {q}
        s_cselect_b32 s{t+1}, s{S_KB}, s{t+1}""")
        src = t+1
    if c.rot:
        P = len(c.rot); packed = 0
        for u, d in enumerate(c.rot): packed |= ((d+8) & 15) << (4*u)
        k.e(f"""s_sub_u32 s{t}, s{src}, s{S_PH}
        s_and_b32 s{t}, s{t}, {P-1}
        s_lshl_b32 s{t}, s{t}, 2
        s_lshr_b32 s{t}, {packed}, s{t}
        s_and_b32 s{t}, s{t}, 15
        s_add_u32 s{t}, s{t}, s{src}""")
        if c.T & (c.T-1) == 0:
            k.e(f"s_sub_u32 s{t}, s{t}, 8\ns_and_b32 s{t}, s{t}, {c.T-1}")
        else:
            RT = c.T - c.T % 4
            k.e(f"""s_add_u32 s{t}, s{t}, {RT-8}
            s_sub_u32 s{t+1}, s{t}, {RT}
            s_cmp_ge_u32 s{t}, {RT}
            s_cselect_b32 s{t}, s{t+1}, s{t}
            s_sub_u32 s{t+1}, s{t}, {RT}
            s_cmp_ge_u32 s{t}, {RT}
            s_cselect_b32 s{t}, s{t+1}, s{t}""")
            if RT != c.T: k.e(f"s_cmp_ge_u32 s{src}, {RT}\ns_cselect_b32 s{t}, s{src}, s{t}")
    else:
        k.e(f"s_mov_b32 s{t}, s{src}")
    if c.own2 == 1:
        k.e(f"""s_min_u32 s{t+1}, s{t}, s{S_TAU}
        s_max_u32 s{t+2}, s{t}, s{S_TAU}
        s_cmp_lt_u32 s{t+1}, 2
        s_cselect_b32 s{t+1}, s{t+2}, 0
        s_cmp_ge_u32 s{t+1}, 2
        s_cselect_b32 s{t}, s{S_TAU}, s{t}
        s_add_u32 s{t}, s{t}, s{S_KB}
        s_and_b32 s{t}, s{t}, {c.T-1}""")

def issue(k, c, vS, vF, parts="SF", fbase=False):
    t = S_T+8
    kstep(k, c, t)
    if DG[0] & 2: k.e(f"s_and_b32 s{t}, s{t}, 1")
    stepS = 7 if c.smode == 'rows' else 12
    stepF = 64*c.strideF if c.fmode == 'rows' else c.BN*128
    if 'S' in parts:
        k.e(f"""s_lshl_b32 s{S_OS}, s{t}, {stepS}
        s_mul_i32 s{t+1}, s{S_SLOT}, {c.slotS}
        s_add_u32 s{t+1}, s{t+1}, s{S_M0W}
        s_add_u32 m0, s{t+1}, {c.baseS}
        {gapi()}""")
        for i in range(c.nS):
            k.e(f"buffer_load_dwordx4 v{vS+i}, {srd(SRD_S)}, s{S_OS} offen {c.auxS} lds")
            if i < c.nS-1: k.e("s_add_u32 m0, m0, 2048\n" + gapi())
    if 'F' in parts:
        k.e(f"""s_mul_i32 s{S_OF}, s{t}, {stepF}
        s_mul_i32 s{t+1}, s{S_SLOT}, {c.slotF}
        s_add_u32 s{t+1}, s{t+1}, s{S_M0W}
        s_add_u32 m0, s{t+1}, {c.baseF}""")
        if fbase: k.e(f"s_add_u32 s{S_OF}, s{S_OF}, s{S_FB}")
        if CAP[0] or not fbase: k.e(gapi())
        for i in range(c.nF):
            k.e(f"buffer_load_dwordx4 v{vF+i}, {srd(SRD_F)}, s{S_OF} offen {c.auxF} lds")
            if i < c.nF-1: k.e("s_add_u32 m0, m0, 2048\n" + gapi())
    k.e(f"""s_add_u32 s{S_TAU}, s{S_TAU}, 1
    s_add_u32 s{S_SLOT}, s{S_SLOT}, 1
    s_cmp_eq_u32 s{S_SLOT}, {c.NS}
    s_cselect_b32 s{S_SLOT}, 0, s{S_SLOT}""")

def issue_first(k, c, vS, vF, parts, fbase=False, pbarrier=True, t0=0, t1=None):
    n = (c.nS if 'S' in parts else 0) + (c.nF if 'F' in parts else 0)
    top = k.lab("if"); l1 = k.lab("if1")
    t1 = c.NS if t1 is None else t1
    k.e(f"s_mov_b32 s{S_TAU}, {t0}\ns_mov_b32 s{S_SLOT}, {(t0+c.slot0) % c.NS}\n{top}:")
    issue(k, c, vS, vF, parts, fbase)
    if pbarrier:
        k.e(f"s_cmp_lg_u32 s{S_TAU}, 2\ns_cbranch_scc1 {l1}\ns_waitcnt vmcnt({n})\ns_barrier\n{l1}:")
    k.e(f"s_cmp_lt_u32 s{S_TAU}, {t1}\ns_cbranch_scc1 {top}")

CAP = [0]
DG = [0]
def gapi():
    return f"s_waitcnt vmcnt({CAP[0]})" if CAP[0] else "s_nop 0"
ITST = [0, 254]
def itstamp(k):
    if ITST[0]:
        k.e(f"{'s_memtime' if ITST[0] == 2 else 's_memrealtime'} s[{S_ST}:{S_ST+1}]\ns_waitcnt lgkmcnt(0)\ns_mov_b32 m0, s97\ns_nop 0\nv_writelane_b32 v{ITST[1]}, s{S_ST}, m0\ns_add_u32 s97, s97, 1")

S_PA = 60
UNR = [2]
def prep_groups(k, c, dst, fbase):
    t = S_T+8
    tk = Kern(k.name); kstep(tk, c, t)
    if DG[0] & 2: tk.e(f"s_and_b32 s{t}, s{t}, 1")
    stepS = 7 if c.smode == 'rows' else 12
    stepF = 64*c.strideF if c.fmode == 'rows' else c.BN*128
    tk.e(f"s_lshl_b32 s{dst}, s{t}, {stepS}\ns_mul_i32 s{dst+1}, s{t}, {stepF}")
    if fbase: tk.e(f"s_add_u32 s{dst+1}, s{dst+1}, s{S_FB}")
    tk.e(f"""s_mul_i32 s{dst+2}, s{S_SLOT}, {c.slotS}
    s_add_u32 s{dst+2}, s{dst+2}, s{S_M0W}
    s_mul_i32 s{dst+3}, s{S_SLOT}, {c.slotF}
    s_add_u32 s{dst+3}, s{dst+3}, s{S_M0W}
    s_add_u32 s{S_TAU}, s{S_TAU}, 1
    s_add_u32 s{S_SLOT}, s{S_SLOT}, 1
    s_cmp_eq_u32 s{S_SLOT}, {c.NS}
    s_cselect_b32 s{S_SLOT}, 0, s{S_SLOT}""")
    L = [x.strip() for x in tk.L]; G = []
    for x in L:
        if x.startswith(("s_cselect", "s_addc", "s_subb")): G[-1].append(x)
        else: G.append([x])
    return G

def steady(k, c, vS, vF, upto, fbase=False, wait=None):
    top = k.lab("st"); done = k.lab("std")
    w = (c.NS-2)*c.nI if wait is None else wait
    sets = [S_PA, S_PA+8]
    for g in prep_groups(k, c, sets[0], fbase):
        for x in g: k.e(x)
    k.e(f"{top}:")
    for h in range(2):
        cur, nx = sets[h], sets[h ^ 1]
        G = prep_groups(k, c, nx, fbase)
        dm = []
        if not DG[0] & 4: dm += [(f"buffer_load_dwordx4 v{vS+i}, {srd(SRD_S)}, s{cur} offen {c.auxS} lds", f"s_add_u32 m0, s{cur+2}, {c.baseS + i*2048}") for i in range(c.nS)]
        if not DG[0] & 8: dm += [(f"buffer_load_dwordx4 v{vF+i}, {srd(SRD_F)}, s{cur+1} offen {c.auxF} lds", f"s_add_u32 m0, s{cur+3}, {c.baseF + i*2048}") for i in range(c.nF)]
        if dm and not ITST[0]: k.e(dm[0][1])
        k.e(f"s_waitcnt vmcnt({w})\ns_barrier")
        if ITST[0]:
            itstamp(k)
            if dm: k.e(dm[0][1] + "\ns_nop 0")
        ng = max(len(dm)-1, 1); gi = 0
        for i, (ld, m0) in enumerate(dm):
            k.e(ld)
            if i < len(dm)-1:
                k.e(dm[i+1][1])
                tgt = -(-len(G)*(i+1)//ng); n0 = gi
                while gi < tgt:
                    for x in G[gi]: k.e(x)
                    gi += 1
                if gi == n0: k.e("s_nop 0")
        while gi < len(G):
            for x in G[gi]: k.e(x)
            gi += 1
        if h == 0: k.e(f"s_cmp_gt_u32 s{S_TAU}, {upto}\ns_cbranch_scc1 {done}")
        else: k.e(f"s_cmp_le_u32 s{S_TAU}, {upto}\ns_cbranch_scc1 {top}")
    k.e(f"""{done}:
    s_sub_u32 s{S_TAU}, s{S_TAU}, 1
    s_cmp_eq_u32 s{S_SLOT}, 0
    s_cselect_b32 s{S_SLOT}, {c.NS}, s{S_SLOT}
    s_sub_u32 s{S_SLOT}, s{S_SLOT}, 1""")

class Seg:
    def __init__(s_, c, vS, vF, fbase=False, srdS=SRD_S, srdF=SRD_F):
        s_.c = c; s_.vS = vS; s_.vF = vF; s_.fbase = fbase; s_.srdS = srdS; s_.srdF = srdF

class LProg:
    def __init__(s_, k): s_.k = k; s_.h = 0
    def prep(s_, seg, pre=()):
        for x in pre: s_.k.e(x)
        for g in prep_groups(s_.k, seg.c, S_PA + 8*s_.h, seg.fbase):
            for x in g: s_.k.e(x)
    def stage(s_, seg, parts="SF", sync="", nxt=True, pre=(), stampit=False):
        k = s_.k; c = seg.c; cur = S_PA + 8*s_.h; nx = S_PA + 8*(s_.h ^ 1)
        ns = seg if nxt is True else nxt
        G = ([[x] for x in pre] + prep_groups(k, ns.c, nx, ns.fbase)) if ns else []
        dm = []
        if 'S' in parts: dm += [(f"buffer_load_dwordx4 v{seg.vS+i}, {srd(seg.srdS)}, s{cur} offen {c.auxS} lds", f"s_add_u32 m0, s{cur+2}, {c.baseS + i*2048}") for i in range(c.nS)]
        if 'F' in parts: dm += [(f"buffer_load_dwordx4 v{seg.vF+i}, {srd(seg.srdF)}, s{cur+1} offen {c.auxF} lds", f"s_add_u32 m0, s{cur+3}, {c.baseF + i*2048}") for i in range(c.nF)]
        st = stampit and ITST[0]
        if not st: k.e(dm[0][1])
        k.e(sync if sync else "s_nop 0")
        if st:
            itstamp(k); k.e(dm[0][1] + "\ns_nop 0")
        ng = max(len(dm)-1, 1); gi = 0
        for i, (ld, m0) in enumerate(dm):
            k.e(ld)
            if i < len(dm)-1:
                k.e(dm[i+1][1])
                tgt = -(-len(G)*(i+1)//ng); n0 = gi
                while gi < tgt:
                    for x in G[gi]: k.e(x)
                    gi += 1
                if gi == n0: k.e("s_nop 0")
        s_.h ^= 1
    def run(s_, seg, n, wait, nxt=False, pre=()):
        k = s_.k; sync = f"s_waitcnt vmcnt({wait})\ns_barrier"
        m = n - 1
        if m % 2: s_.stage(seg, sync=sync, stampit=True); m -= 1
        if m >= 4:
            top = k.lab("lp")
            k.e(f"s_mov_b32 s{S_CNT}, {m//2}\n{top}:")
            s_.stage(seg, sync=sync, stampit=True, pre=[f"s_sub_u32 s{S_CNT}, s{S_CNT}, 1"]); s_.stage(seg, sync=sync, stampit=True)
            k.e(f"s_cmp_lg_u32 s{S_CNT}, 0\ns_cbranch_scc1 {top}")
        else:
            for _ in range(m): s_.stage(seg, sync=sync, stampit=True)
        s_.stage(seg, sync=sync, nxt=nxt, pre=pre, stampit=True)

def issue_noadv(k, c, vS, vF, parts, fbase=False):
    n0 = len(k.L)
    issue(k, c, vS, vF, parts, fbase)
    del k.L[-4:]

def steady_skew(k, c, vS, vF):
    top = k.lab("sk"); done = k.lab("skd")
    k.e(f"{top}:\ns_waitcnt vmcnt({c.nS+2*c.nF})\ns_barrier")
    itstamp(k)
    issue(k, c, vS, vF, "S")
    k.e(f"s_cmp_eq_u32 s{S_TAU}, {c.T}\ns_cbranch_scc1 {done}")
    issue_noadv(k, c, vS, vF, "F")
    k.e(f"s_branch {top}\n{done}:")

def one(k, c, vS, vF, fbase=False, wait=None):
    w = (c.NS-2)*c.nI if wait is None else wait
    k.e(f"s_waitcnt vmcnt({w})\ns_barrier")
    itstamp(k)
    issue(k, c, vS, vF, "SF", fbase)

def after_split_prologue(k, c, vS, vF, first_n, fbase=False):
    for j in range(c.NS-2):
        one(k, c, vS, vF, fbase, wait=(c.NS-2-j)*first_n + j*c.nI)

def consumer_addr(k, c, R, slot=None, t=16, setslot=True):
    wm = S_WM; wn = S_WN
    lw = int(math.log2(c.WN))
    slot = c.slot0 if slot is None else slot
    if setslot:
        k.e(f"s_mov_b32 s{S_SLOT}, {slot}\ns_mov_b32 s{S_OS}, {-(c.NS-1)*c.slotS}\ns_mov_b32 s{S_OF}, {-(c.NS-1)*c.slotF}")
        for g in slot_adv(c): k.e(g)
    k.e(f"s_lshr_b32 s{wm}, s{S_WAVE}, {lw}\ns_and_b32 s{wn}, s{S_WAVE}, {c.WN-1}")
    k.e(f"s_mul_i32 s{S_T+6}, s{wm}, {c.TM*4096}\ns_add_u32 s{S_T+6}, s{S_T+6}, {c.baseS + slot*c.slotS}")
    k.e(f"v_and_b32 v{t}, 15, v1\nv_lshrrev_b32 v{t+1}, 4, v1")
    if c.smode == 'rows':
        k.e(f"""v_bfe_u32 v{t+2}, v1, 1, 3
        v_xor_b32 v{t+2}, v{t+2}, v{t+1}
        v_lshlrev_b32 v{t+2}, 4, v{t+2}
        v_lshl_add_u32 v{t+2}, v{t}, 7, v{t+2}
        v_add_u32 v{R.aS[0]}, s{S_T+6}, v{t+2}
        v_xor_b32 v{R.aS[1]}, 64, v{R.aS[0]}""")
    else:
        k.e(f"""v_lshlrev_b32 v{t+2}, 4, v{t}
        v_lshl_add_u32 v{t+2}, v{t+1}, 9, v{t+2}
        v_add_u32 v{R.aS[0]}, s{S_T+6}, v{t+2}""")
    a0 = R.aF[0]
    if c.fmode == 'rows':
        k.e(f"""v_bfe_u32 v{t+2}, v1, 2, 2
        v_lshlrev_b32 v{a0}, 7, v{t+2}
        v_lshl_add_u32 v{a0}, v{t+1}, 10, v{a0}
        v_bfe_u32 v{t+2}, v1, 3, 1
        v_lshl_add_u32 v{a0}, v{t+2}, 6, v{a0}
        v_bfe_u32 v{t+2}, v1, 4, 1
        v_lshl_add_u32 v{a0}, v{t+2}, 5, v{a0}
        s_mov_b32 s{S_T+6}, {c.baseF + slot*c.slotF}""")
        if c.panel_from_wave: k.e(f"s_lshl_b32 s{S_T+7}, s{wn}, 13\ns_add_u32 s{S_T+6}, s{S_T+6}, s{S_T+7}")
        k.e(f"v_add_u32 v{a0}, s{S_T+6}, v{a0}")
        if c.nb_from_wave:
            k.e(f"s_lshl_b32 s{S_T+7}, s{wn}, 6\nv_xor_b32 v{a0}, s{S_T+7}, v{a0}")
            k.e(f"""v_and_b32 v{t+2}, 1, v1
            v_lshl_add_u32 v{R.aF[2]}, v{t+2}, 4, v{a0}
            v_bfe_u32 v{t+2}, v1, 1, 1
            v_lshl_add_u32 v{R.aF[2]}, v{t+2}, 3, v{R.aF[2]}
            v_add_u32 v{R.aF[2]}, {8192*c.ftiles[c.orient.index('N')][0]}, v{R.aF[2]}
            v_xor_b32 v{R.aF[3]}, 32, v{R.aF[2]}""")
        k.e(f"v_and_b32 v{t+2}, 3, v1\nv_lshl_add_u32 v{a0}, v{t+2}, 3, v{a0}")
        for b in range(1, 2 if c.nb_from_wave else 4): k.e(f"v_xor_b32 v{R.aF[b]}, {32*b}, v{a0}")
    else:
        k.e(f"""v_bfe_u32 v{t+2}, v1, 2, 2
        v_lshl_add_u32 v{t+2}, v{t+1}, 3, v{t+2}
        v_lshlrev_b32 v{a0}, 4, v{t+2}
        v_bfe_u32 v{t+2}, v1, 1, 1
        v_lshl_add_u32 v{a0}, v{t+2}, 6, v{a0}
        v_lshl_add_u32 v{a0}, v{t+2}, 9, v{a0}
        v_and_b32 v{t+2}, 1, v1
        v_lshl_add_u32 v{a0}, v{t+2}, 3, v{a0}
        s_lshl_b32 s{S_T+6}, s{wn}, 12
        s_add_u32 s{S_T+6}, s{S_T+6}, {c.baseF + slot*c.slotF}
        v_add_u32 v{a0}, s{S_T+6}, v{a0}
        v_xor_b32 v{R.aF[1]}, 64, v{a0}""")

def slot_adv(c):
    if c.NS == 4:
        g = [f"s_add_u32 s{S_SLOT}, s{S_SLOT}, 1", f"s_and_b32 s{S_SLOT}, s{S_SLOT}, 3\ns_cselect_b32 s{S_DS}, {c.slotS}, s{S_OS}"]
        if c.slotF != c.slotS:
            assert 2*c.slotF == c.slotS
            g.append(f"s_ashr_i32 s{S_DF}, s{S_DS}, 1")
        return g
    return [f"s_add_u32 s{S_SLOT}, s{S_SLOT}, 1\ns_cmp_lg_u32 s{S_SLOT}, {c.NS}",
            f"s_cselect_b32 s{S_DS}, {c.slotS}, s{S_OS}\ns_cselect_b32 s{S_DF}, {c.slotF}, s{S_OF}", f"s_cselect_b32 s{S_SLOT}, s{S_SLOT}, 0"]

M16 = "v_mfma_f32_16x16x32_bf16"
class Cons:
    def __init__(s_, k, c, R):
        s_.k = k; s_.c = c; s_.R = R
        s_.TS = 2*c.TM; s_.TF = 2*c.TN
        s_.NF = (getattr(R, 'nfr', 48) - 8*s_.TS)//4
        assert (2*s_.TF) % s_.NF == 0
        s_.NM = 2*s_.TS*s_.TF
        s_.jo = list(c.jorder) if c.jorder else list(range(2*s_.TF))
        s_.pos = {j: i for i, j in enumerate(s_.jo)}
        s_.plan()
    def acc(s_, st, ft): return s_.R.acc + 16*(ft*s_.c.TM+st)
    def sub(s_, t, f):
        a = s_.acc(t >> 1, f >> 1)
        return a + (8*(f & 1) + 4*(t & 1) if s_.c.orient[f >> 1] == 'T' else 8*(t & 1) + 4*(f & 1))
    def rS(s_, u, t): return s_.R.fr + (u*s_.TS + t)*4
    def rF(s_, j): return s_.R.fr + 8*s_.TS + (s_.pos[j] % s_.NF)*4
    def order(s_, f): return list(range(s_.TS)) if f % 2 == 0 else list(range(s_.TS-1, -1, -1))
    def rdS(s_, u, t):
        c, R = s_.c, s_.R
        if c.smode == 'rows': return f"ds_read_b128 {vr(s_.rS(u,t),4)}, v{R.aS[u]} offset:{t*2048}"
        return f"ds_read_b128 {vr(s_.rS(u,t),4)}, v{R.aS[0]} offset:{(t>>1)*4096 + u*2048 + (t&1)*256}"
    def rdF(s_, j, rd):
        c, R = s_.c, s_.R
        u, f = divmod(j, s_.TF); P, nb = c.ftiles[f >> 1]
        if c.fmode == 'rows':
            if c.nb_from_wave:
                a = R.aF[(f & 1) + (2 if c.orient[f >> 1] == 'N' else 0)]
                if c.orient[f >> 1] == 'N': P = 0
            else: a = R.aF[2*nb + (f & 1)]
            return f"ds_read_b64_tr_b16 {vr(s_.rF(j)+2*rd,2)}, v{a} offset:{P*8192 + u*4096 + rd*512}"
        return f"ds_read_b64_tr_b16 {vr(s_.rF(j)+2*rd,2)}, v{R.aF[rd]} offset:{u*c.BN*64 + ((P*2+nb)*2 + (f&1))*1024}"
    def plan(s_):
        TS, TF, NF, NM = s_.TS, s_.TF, s_.NF, s_.NM
        G = TS*TF
        pb = s_.c.pb
        items = []
        for u in range(2):
            ps = [s_.pos[j] for j in range(u*TF, (u+1)*TF)]
            for t in range(TS): items.append((min(ps)*TS + t, (max(ps)+1)*TS - NM, s_.rdS(u, t), ('S', u, t)))
        for j in range(2*TF):
            i = s_.pos[j]
            for rd in range(2): items.append((i*TS - 0.5 + 0.1*rd, (i-NF+1)*TS, s_.rdF(j, rd), ('F', j)))
        items.sort(key=lambda x: x[0])
        cnt = {}; sched = []; g = pb - NM
        for use, e, txt, tag in items:
            g = max(g, e)
            cap = lambda gg: 2 if (gg < pb - NM + s_.c.burst or s_.c.cap2 is True) else 1
            while cnt.get(g, 0) >= cap(g): g += 1
            cnt[g] = cnt.get(g, 0) + 1
            sched.append((g, txt, tag))
            assert g <= use + 0.5, (g, use, tag)
        s_.sched = sched; s_.lastcur = max(g for g, _, _ in sched)
        assert s_.lastcur < pb, (s_.lastcur, pb)
    def first_reads_static(s_, slot):
        for g, txt, tag in s_.sched:
            if g < 0:
                a, b = txt.rsplit("offset:", 1)
                s_.k.e(f"{a}offset:{int(b) + slot*(s_.c.slotS if tag[0] == 'S' else s_.c.slotF)}")
    def loop4(s_, nrep, slot):
        k = s_.k; lp = k.lab("c4")
        k.e(f"s_mov_b32 s{S_CNT}, {nrep}\n.p2align 6\n{lp}:")
        for i in range(s_.c.NS):
            s_.loop(1, slot=(slot+i) % s_.c.NS, fillers=([f"s_sub_u32 s{S_CNT}, s{S_CNT}, 1", f"s_cmp_lg_u32 s{S_CNT}, 0"] if i == s_.c.NS-1 else None))
        k.e(f"s_cbranch_scc1 {lp}")
    def loopu(s_, nrep, unr):
        k = s_.k; lp = k.lab("cu")
        if nrep > 1: k.e(f"s_mov_b32 s{S_CNT}, {nrep}\n.p2align 6\n{lp}:")
        for i in range(unr): s_.loop(1)
        if nrep > 1: k.e(f"s_sub_u32 s{S_CNT}, s{S_CNT}, 1\ns_cmp_lg_u32 s{S_CNT}, 0\ns_cbranch_scc1 {lp}")
    def zero(s_):
        for i in range(0, s_.c.TM*s_.c.TN*16, 2): s_.k.e(f"v_mov_b64 v[{s_.R.acc+i}:{s_.R.acc+i+1}], 0")
    def first_reads(s_):
        for g, txt, tag in s_.sched:
            if g < 0: s_.k.e(txt)
    def loop(s_, nsteps, pre_barrier=None, fillers=None, budget=8, next_cons=None, tail=None, slot=None, nslot=None, fstart=1):
        k, c, R = s_.k, s_.c, s_.R
        TS, TF, NM, pb = s_.TS, s_.TF, s_.NM, s_.c.pb
        q = [tag for g, _, tag in s_.sched if g < 0]
        lp = k.lab("cloop")
        if nsteps > 1: k.e(f"s_mov_b32 s{S_CNT}, 0\n.p2align 6\n{lp}:")
        gaps = [[] for _ in range(NM+1)]; mfs = []
        nxt = s_ if next_cons is None else next_cons
        byg = {}
        def sh(txt, tag, cc, sl):
            if sl is None: return txt
            a, b = txt.rsplit("offset:", 1)
            o = int(b) + sl*(cc.slotS if tag[0] == 'S' else cc.slotF)
            assert o < 65536
            return f"{a}offset:{o}"
        if slot is not None and nslot is None: nslot = (slot+1) % c.NS
        for g, txt, tag in s_.sched:
            if g >= 0: byg.setdefault(g, []).append((sh(txt, tag, c, slot), tag))
        if nxt:
            for g, txt, tag in nxt.sched:
                if g < 0: byg.setdefault(max(g + NM, pb), []).append((sh(txt, tag, nxt.c, nslot), ('n',)+tag))
        for i, txt in enumerate(tail or []): byg.setdefault(min(pb + i//2, NM), []).append((txt, ('x', i)))
        dF = S_DF if c.slotF != c.slotS else S_DS
        upd = [f"v_add_u32 v{a}, s{S_DS}, v{a}" for a in R.aS] + [f"v_add_u32 v{a}, s{dF}, v{a}" for a in R.aF]
        if slot is not None: upd = []
        ng = max(pb - s_.lastcur - 1, 1); per = max(-(-len(upd)//ng), 1)
        misc = {}
        for i, x in enumerate(upd): misc.setdefault(s_.lastcur + 1 + i//per, []).append(x)
        sal = ([f"s_add_u32 s{S_CNT}, s{S_CNT}, 1"] if nsteps > 1 else []) + slot_adv(c)
        if slot is not None: sal = []
        assert c.NS == 4 or not fillers or slot is not None
        assert len(sal) <= NM-pb-1
        free = sorted(range(pb+1, NM), key=lambda g: (len(byg.get(g, [])), -g))[:len(sal)]
        for g, x in zip(sorted(free), sal): misc.setdefault(g, []).extend(x.split("\n"))
        when = {tag: g for g, _, tag in s_.sched}
        p = 0
        for j in s_.jo:
            u, f = divmod(j, TF)
            for t in s_.order(f):
                G_ = gaps[p]
                G_ += misc.get(p, [])
                if p == pb:
                    G_.append("s_waitcnt lgkmcnt(0)" + (" vmcnt(0)" if pre_barrier == "vm" else "")); q.clear()
                    G_.append("s_barrier")
                tags = [('S', u, t), ('F', j)]
                if len(q) + len(byg.get(p, [])) > 15:
                    idx = max([i for i, tg in enumerate(q) if tg in tags] + [len(q) + len(byg[p]) - 16])
                    while idx+1 < len(q) and when.get(q[idx+1], 99) <= p - c.old: idx += 1
                    G_.append(f"s_waitcnt lgkmcnt({len(q)-1-idx})"); del q[:idx+1]
                for txt, tag in byg.get(p, []): G_.append(txt); q.append(tag)
                idx = max([i for i, tg in enumerate(q) if tg in tags], default=-1)
                if idx >= 0:
                    while idx+1 < len(q) and when.get(q[idx+1], 99) <= p - c.old: idx += 1
                    n = len(q) - 1 - idx
                    assert n <= 15
                    G_.append(f"s_waitcnt lgkmcnt({n})"); del q[:idx+1]
                a, b = (s_.rF(j), s_.rS(u, t)) if c.orient[f >> 1] == 'T' else (s_.rS(u, t), s_.rF(j))
                d = s_.sub(t, f)
                mfs.append(f"{M16} {vr(d,4)}, {vr(a,4)}, {vr(b,4)}, {vr(d,4)}")
                p += 1
        for txt, tag in byg.get(NM, []): gaps[NM].append(txt)
        if nsteps > 1: gaps[NM] += [f"s_cmp_lt_u32 s{S_CNT}, {nsteps}", f"s_cbranch_scc1 {lp}"]
        isv = lambda x: x.startswith("v_")
        tr = lambda x: x.startswith(("v_exp", "v_rcp", "v_rsq", "v_sqrt"))
        def cost(x):
            if tr(x) or x.startswith("buffer_"): return 2
            if x.startswith("s_"): return 0.5
            return 1
        def base_used(g):
            nd = sum(x.startswith("ds_") for x in g); nw = sum(x.startswith("s_waitcnt") for x in g)
            if any(x.startswith(("s_barrier", "s_cbranch")) for x in g): return 9
            return nd*(1 if nd < 2 else 0.5) + (nw if nd else 0.5*nw) + sum(isv(x) for x in g) + 0.3*sum(x.startswith("s_") and not x.startswith("s_waitcnt") for x in g)
        fl = list(fillers or [])
        place = [[] for _ in gaps]
        if fl:
            ngp = len(gaps) - 1
            used = [base_used(g) for g in gaps]
            b = budget/4
            while True:
                fi = 0; place = [[] for _ in gaps]
                tot = sum(cost(x) for x in fl); fre = sum(max(int(b-used[g]), 0) for g in range(fstart, ngp)); acc = 0; done = 0
                for g in range(fstart, ngp):
                    room = max(int(b - used[g]), 0); acc += room
                    while fi < len(fl) and cost(fl[fi]) <= room and done < 1.15*acc*tot/max(fre, 1):
                        room -= cost(fl[fi]); done += cost(fl[fi]); place[g].append(fl[fi]); fi += 1
                if fi == len(fl): break
                b += 1
        for g in range(len(gaps)):
            G_ = gaps[g]
            if g != pb: G_ = [x for x in G_ if not isv(x)] + [x for x in G_ if isv(x)]
            for x in G_: k.e(x)
            for x in place[g]:
                if x != 'PAD': k.e(x)
            if g < len(mfs): k.e(mfs[g])
```

```python
import sys, struct
from core4 import *

MB = 1<<20
WS_O=4*MB; WS_H=8*MB; WS_Z2N=20*MB; WS_U=28*MB
WS_KVP=36*MB; WS_ZP=38*MB; WS_KVF=38*MB+131072; WS_ZF=38*MB+262144; WS_HC=38*MB+524288; WS_XS=39*MB; WS_CQP=39*MB+65536; WS_CSP=39*MB+512*1024
WS_XP=12*MB; WS_HST=40*MB; WS_ZST=41*MB
FLS=4352
WS_FLAG=42*MB; F_O=WS_FLAG; F_H=WS_FLAG+16*FLS; F_Z=WS_FLAG+32*FLS; F_U=WS_FLAG+48*FLS
WS_END=43*MB
P_X=0; P_WQKV=1; P_WPHI=2; P_WO=3; P_WIN=5; P_WSP=6; P_BSP=7; P_WOUT=8; P_OUT=9; P_DBG=10; P_WS=11
S_Q=92; S_CW=90
L_CW=131072
L_WPHI=147456; L_XS=L_WPHI+4096; L_CQ=L_XS+1024; L_HS=L_CQ+1024; L_CS=L_HS+2048; L_ZP=L_CS+1024; L_ZS=L_ZP+2048; L_END=L_ZS+1024
KNAME = "sequential_preLN__linear_kernel_hedgehog__mixer_gmlp__prompt_kernel"

def f2u(x): return struct.unpack("<I", struct.pack("<f", x))[0]
LOG2E = 1.4426950408889634
C0 = -2*LOG2E*0.7978845608028654; C1 = C0*0.044715
MF = "v_mfma_f32_32x32x16_bf16"
W = srd(SRD_W)

class Opt:
    stamps = 0
    pf = 2
    slp = 4
    vslp = 2
    pfw = 0
    gat = 18
    spq = -1
    z1fill = 1
    nfill = 2
    p1ph = 1
    own2 = 2
    p4ph = 0
    vprio = 0
    zsp = 4
    dsx = 0
    kfslp = 17
    pfd = 1
    qpf = 0
    pb1 = 40
    pb2 = 10
    pb3 = 24
    bu = 2
    tw = 0
    tlb = 0
    wpos = 1
    hsp = 1
    hpos = 1
    zdma = 1
    xis = 4
    bu5 = 9
    nprio = 1
    qm = 4
    q0 = 2
    pads = 1
    xa = 0
    gb = 1
    nst = 0
    xl = 0
    sk = 1
    jo = 1
    jpad = 10
    f5 = 1
    pb5 = 25
    xslp = 6
    ct = 2
    p4loop = 0
    u1 = 3
    u3 = 3
    dg = 0
    bud = 8
    r1 = 0
    r2 = 0
    r3 = 0
    r4 = 0
    r5 = 0
    st4 = 5
    old = 7
    old2 = 7
    cyc = 0
    lead = 6
    fpos = 1
    l2 = 0
    r8 = 0
    kfe = 0
    kvr = 5
    probe = 0
    pwg = 83
    pfrom = 0
    pwave = 0
    cap = 0
    vmd = 1
    z1n = 2
    pa = 3
    pl = 2
    pc = 0
    kvslp = 14
OPT = Opt()

def unpack(k, lo, hi, src):
    k.e(f"v_lshlrev_b32 v{lo}, 16, v{src}\nv_and_b32 v{hi}, 0xffff0000, v{src}")
def cvt16(k, dst, src):
    for i in range(8): k.e(f"v_cvt_pk_bf16_f32 v{dst+i}, v{src+2*i}, v{src+2*i+1}")
def stamp(k, i):
    if OPT.stamps:
        k.e(f"s_memrealtime s[{S_ST}:{S_ST+1}]\ns_waitcnt lgkmcnt(0)\nv_writelane_b32 v255, s{S_ST}, {i}")
        if OPT.cyc: k.e(f"s_memtime s[{S_ST}:{S_ST+1}]\ns_waitcnt lgkmcnt(0)\nv_writelane_b32 v255, s{S_ST}, {i+32}")
def bars(k, n):
    if n <= 4:
        for _ in range(n): k.e("s_barrier")
    else:
        t = k.lab("bars")
        k.e(f"s_mov_b32 s{S_CNT}, {n}\n{t}:\ns_barrier\ns_sub_u32 s{S_CNT}, s{S_CNT}, 1\ns_cmp_lg_u32 s{S_CNT}, 0\ns_cbranch_scc1 {t}")

def check_flags(k, nflags, val, oklab):
    k.e(f"""v_cmp_le_u32 vcc, {val}, v8
    s_and_b32 s{S_T+11}, vcc_lo, {(1<<nflags)-1}
    s_cmp_eq_u32 s{S_T+11}, {(1<<nflags)-1}
    s_cbranch_scc1 {oklab}""")
def spin_tail(k, top, slp=None):
    k.e(f"s_sleep {OPT.slp if slp is None else slp}\ns_sub_u32 s{S_T+10}, s{S_T+10}, 1\ns_cmp_lg_u32 s{S_T+10}, 0\ns_cbranch_scc1 {top}")
def poll(k, voff, nflags, srdn=SRD_W, val=1, pre=False):
    top = k.lab("poll"); done = k.lab("polld")
    k.e(f"s_cmp_lg_u32 s{S_LW}, 0\ns_cbranch_scc1 {done}")
    if pre:
        k.e("s_waitcnt vmcnt(0)")
        check_flags(k, nflags, val, done)
    k.e(f"s_mov_b32 s{S_T+10}, 0x40000\n{top}:")
    k.e(f"buffer_load_dword v8, v{voff}, {srd(srdn)}, 0 offen sc1\ns_waitcnt vmcnt(0)")
    check_flags(k, nflags, val, done)
    spin_tail(k, top)
    k.e(f"{done}:")
def sample(k, voff, srdn=SRD_W):
    sk = k.lab("nosm")
    k.e(f"s_cmp_lg_u32 s{S_LW}, 0\ns_cbranch_scc1 {sk}\nbuffer_load_dword v8, v{voff}, {srd(srdn)}, 0 offen sc1\n{sk}:")
def tagcheck(k, regs, t, ok):
    regs = list(regs)
    if len(regs) % 2 == 0:
        k.e(f"v_max_u32 v{t}, v{regs[0]}, v{regs[1]}"); rest = regs[2:]
    else:
        k.e(f"v_max3_u32 v{t}, v{regs[0]}, v{regs[1]}, v{regs[2]}"); rest = regs[3:]
    for i in range(0, len(rest), 2): k.e(f"v_max3_u32 v{t}, v{t}, v{rest[i]}, v{rest[i+1]}")
    k.e(f"v_cmp_eq_u32 vcc, -1, v{t}\ns_cmp_eq_u64 vcc, 0\ns_cbranch_scc1 {ok}")
def validated(k, gather, regs, t, pre=True):
    top = k.lab("vsp"); ok = k.lab("vok")
    if pre: tagcheck(k, regs, t, ok)
    k.e(f"s_mov_b32 s{S_T+10}, 0x40000\n{top}:")
    gather()
    k.e("s_waitcnt vmcnt(0)")
    tagcheck(k, regs, t, ok)
    spin_tail(k, top, OPT.vslp)
    k.e(f"{ok}:")

def cnt_addr(k, v, base, sline):
    k.e(f"""s_mul_i32 s{S_T}, s{sline}, {FLS}
    s_add_u32 s{S_T}, s{S_T}, {base}
    v_mov_b32 v{v}, s{S_T}""")
def set_flag(k, vset):
    sk = k.lab("nofl")
    k.e(f"""s_cmp_lg_u32 s{S_LW}, 0
    s_cbranch_scc1 {sk}
    s_mov_b64 exec, 1
    buffer_atomic_add v11, v{vset}, {W}, 0 offen sc1
    s_mov_b64 exec, -1
    {sk}:""")

def softmax_pm(k0, P, EP, EN, T, OP, ON, inject=(), wpos=(), wneg=()):
    L = S_K
    k = Kern(k0.name)
    k.e(f"v_max3_f32 v{T}, v{P}, v{P+1}, v{P+2}\nv_min3_f32 v{T+1}, v{P}, v{P+1}, v{P+2}")
    for i in range(3, 15, 2):
        k.e(f"v_max3_f32 v{T}, v{T}, v{P+i}, v{P+i+1}\nv_min3_f32 v{T+1}, v{T+1}, v{P+i}, v{P+i+1}")
    k.e(f"""v_max_f32 v{T}, v{T}, v{P+15}
    v_max_f32 v{T+1}, -v{T+1}, -v{P+15}
    s_nop 1
    v_permlane32_swap_b32 v{T}, v{T+1}
    v_max_f32 v{T}, v{T}, v{T+1}
    v_mul_f32 v{T}, {f2u(-LOG2E)}, v{T}
    v_mov_b32 v{T+1}, v{T}
    s_nop 1
    v_permlane32_swap_b32 v{T}, v{T+1}""")
    for i in range(8):
        k.e(f"v_pk_fma_f32 v[{EP+2*i}:{EP+2*i+1}], v[{P+2*i}:{P+2*i+1}], s[{L}:{L+1}], v[{T}:{T+1}] op_sel_hi:[1,1,0]")
        k.e(f"v_pk_fma_f32 v[{EN+2*i}:{EN+2*i+1}], v[{P+2*i}:{P+2*i+1}], s[{L}:{L+1}], v[{T}:{T+1}] op_sel:[0,0,1] op_sel_hi:[1,1,1] neg_lo:[0,1,0] neg_hi:[0,1,0]")
    for i in range(16):
        k.e(f"v_exp_f32 v{EP+i}, v{EP+i}\nv_exp_f32 v{EN+i}, v{EN+i}")
    k.e(f"v_pk_add_f32 v[{T}:{T+1}], v[{EP}:{EP+1}], v[{EP+2}:{EP+3}]\nv_pk_add_f32 v[{T+2}:{T+3}], v[{EN}:{EN+1}], v[{EN+2}:{EN+3}]")
    for i in range(2, 8):
        k.e(f"v_pk_add_f32 v[{T}:{T+1}], v[{T}:{T+1}], v[{EP+2*i}:{EP+2*i+1}]\nv_pk_add_f32 v[{T+2}:{T+3}], v[{T+2}:{T+3}], v[{EN+2*i}:{EN+2*i+1}]")
    k.e(f"""v_add_f32 v{T}, v{T}, v{T+1}
    v_add_f32 v{T+1}, v{T+2}, v{T+3}
    s_nop 1
    v_permlane32_swap_b32 v{T}, v{T+1}
    v_add_f32 v{T}, v{T}, v{T+1}
    v_rcp_f32 v{T}, v{T}
    s_nop 0
    v_mov_b32 v{T+1}, v{T}
    s_nop 1
    v_permlane32_swap_b32 v{T}, v{T+1}""")
    inj = list(inject); step = max(len(k.L)//(len(inj)+1), 1)
    for i, x in enumerate(k.L):
        k0.e(x)
        if inj and i % step == step-1: k0.e(inj.pop(0))
    for x in inj: k0.e(x)
    k = k0
    for E, O, sel, wr in ((EP, OP, "op_sel_hi:[1,0]", wpos), (EN, ON, "op_sel:[0,1] op_sel_hi:[1,1]", wneg)):
        for hh in range(2):
            for i in range(4*hh, 4*hh+4): k.e(f"v_pk_mul_f32 v[{E+2*i}:{E+2*i+1}], v[{E+2*i}:{E+2*i+1}], v[{T}:{T+1}] {sel}")
            for i in range(4*hh, 4*hh+4): k.e(f"v_cvt_pk_bf16_f32 v{O+i}, v{E+2*i}, v{E+2*i+1}")
            if wr: k.e(wr[hh])

def xhalf_sum2(k, a):
    k.e(f"""s_nop 1
    v_permlane32_swap_b32 v{a}, v{a+1}
    v_add_f32 v{a}, v{a}, v{a+1}
    v_mov_b32 v{a+1}, v{a}
    s_nop 1
    v_permlane32_swap_b32 v{a}, v{a+1}""")
def xswap_sum1(k, a, t, which=32):
    k.e(f"v_mov_b32 v{t}, v{a}\ns_nop 1\nv_permlane{which}_swap_b32 v{a}, v{t}\nv_add_f32 v{a}, v{a}, v{t}")
def xswap_sum(k, a, t, n, which):
    for i in range(n): k.e(f"v_mov_b32 v{t+i}, v{a+i}")
    k.e("s_nop 1")
    for i in range(n): k.e(f"v_permlane{which}_swap_b32 v{a+i}, v{t+i}")
    for i in range(n): k.e(f"v_add_f32 v{a+i}, v{a+i}, v{t+i}")
def ror_sum(k, a, n, sh):
    k.e("s_nop 1")
    for i in range(n): k.e(f"v_add_f32_dpp v{a+i}, v{a+i}, v{a+i} row_ror:{sh} row_mask:0xf bank_mask:0xf")
def acc_bf16(k, A, src, n, first, t, plain=False):
    for j in range(n):
        if first: unpack(k, A+2*j, A+2*j+1, src+j)
        elif plain:
            tt = t+2*(j & 1)
            unpack(k, tt, tt+1, src+j)
            k.e(f"v_add_f32 v{A+2*j}, v{A+2*j}, v{tt}\nv_add_f32 v{A+2*j+1}, v{A+2*j+1}, v{tt+1}")
        else:
            tt = t+2*(j & 1)
            unpack(k, tt, tt+1, src+j)
            k.e(f"v_pk_add_f32 v[{A+2*j}:{A+2*j+1}], v[{A+2*j}:{A+2*j+1}], v[{tt}:{tt+1}]")
def combine(k, P, n, cnt, d, t):
    k.e(f"v_pk_add_f32 v[{d}:{d+1}], v[{P}:{P+1}], v[{P+2}:{P+3}]")
    for i in range(2, n): k.e(f"v_pk_add_f32 v[{d}:{d+1}], v[{d}:{d+1}], v[{P+2*i}:{P+2*i+1}]")
    k.e(f"v_mul_f32 v{d}, {f2u(1.0/n)}, v{d}\nv_mov_b32 v{t+1}, 0")
    for i in range(n): k.e(f"v_sub_f32 v{t}, v{P+2*i}, v{d}\nv_fmac_f32 v{t+1}, v{t}, v{t}")
    k.e(f"v_fmac_f32 v{d+1}, {f2u(float(cnt))}, v{t+1}")
def finish_rstd(k, d, total):
    k.e(f"""v_mul_f32 v{d+1}, {f2u(1.0/total)}, v{d+1}
    v_add_f32 v{d+1}, {f2u(1e-5)}, v{d+1}
    v_rsq_f32 v{d+1}, v{d+1}
    s_nop 0
    v_mul_f32 v{d}, -v{d}, v{d+1}""")

ROTS = [(-1,0,2,-1), (-1,0,0,1), (-1,3,-1,-1), (-2,-2,-1,5), (0,0,0,0), (-2,-2,6,-2)]
def cfgs():
    c1 = Cfg(128,192,16,3,2,2,1, 2048, 6144, [(1,0),(2,0),(0,0)], True, False, orient=['T','N','T'], smode='rows', baseS=0, baseF=49152, kbase=OPT.spq, rot=ROTS[OPT.r1], pb=OPT.pb1, burst=OPT.bu, old=OPT.old)
    c2 = Cfg(128,64,16,4,4,1,2, 2048, 2048, [(0,0),(0,1)], False, False, smode='frag', auxS="sc1", rot=ROTS[OPT.r2], pb=OPT.pb2, cap2=True, old=OPT.old2)
    c3 = Cfg(128,128,16,4,2,2,1, 2048, 7168, [(0,0),(0,1)], False, True, smode='frag', auxS="sc1", slot0=2, rot=ROTS[OPT.r3], pb=OPT.pb3, burst=OPT.bu, old=OPT.old)
    c4 = Cfg(128,128,32,4,2,2,1, 4096, 0, [(0,0),(0,1)], False, True, smode='rows', fmode='blk', auxF="sc1", rot=(-1,0,0,1) if OPT.own2 == 1 else ROTS[OPT.r4], own2=OPT.own2, pb=OPT.pb3, burst=OPT.bu, old=OPT.old)
    c5 = Cfg(128,64,28,4,4,1,2, 3584, 2048, [(0,0),(0,1)], False, False, smode='frag', auxS="sc1", baseF=114688, slot0=2, rot=ROTS[OPT.r5], pb=OPT.pb2, cap2=True, old=OPT.old2)
    if OPT.sk:
        c5 = Cfg(128,128,14,4,4,1,2, 3584, 2048, [(0,0),(0,1),(1,0),(1,1)], False, False, smode='frag', auxS="sc1", baseF=98304, slot0=2, rot=ROTS[OPT.r5], pb=OPT.pb5, cap2=(OPT.bu5 == 0), burst=OPT.bu5, old=OPT.old2, jorder=[0,1,2,3,8,9,10,11,4,5,6,7,12,13,14,15] if OPT.jo else None)
    return c1, c2, c3, c4, c5
VS=16; VF=24; VS4=36; VF4=44; VS5=52; VF5=60; VF3=68
L_PHK=0; L_VX=32768; L_KV=49152; L_Z=57344

def tail_barriers(k, c, extra=0):
    for r in range(c.NS-1):
        k.e(f"s_waitcnt vmcnt({max(c.NS-2-r,0)*c.nI + extra})\ns_barrier")

def win_loads(k, tag):
    mk_srd(k, SRD_A, P_WO, 2*MB); mk_srd(k, SRD_B, P_WIN, 7*MB)
    n = 8
    k.e(f"""s_lshr_b32 s{S_T}, s2, 3
    s_lshl_b32 s{S_T+2}, s{S_T}, 2
    s_add_u32 s{S_T+2}, s{S_T+2}, s{S_Q}
    s_and_b32 s{S_T+3}, s2, 1""")
    if OPT.l2 & 1:
        k.e(f"""s_lshl_b32 s{S_T+1}, s{S_T+2}, 14
        s_lshl_b32 s{S_T+4}, s{S_T+3}, 10
        s_add_u32 s{S_T+1}, s{S_T+1}, s{S_T+4}
        v_lshrrev_b32 v3, 3, v1
        v_lshlrev_b32 v3, 11, v3
        v_and_b32 v4, 7, v1
        v_lshl_add_u32 v3, v4, 7, v3
        buffer_load_dword v250, v3, {srd(SRD_A)}, s{S_T+1} offen""")
    else:
        k.e(f"""s_lshl_b32 s{S_T+1}, s2, 2
        s_add_u32 s{S_T+1}, s{S_T+1}, s{S_Q}
        s_lshl_b32 s{S_T+1}, s{S_T+1}, 11
        v_lshlrev_b32 v3, 7, v1
        s_mov_b64 exec, 0xffff
        buffer_load_dword v250, v3, {srd(SRD_A)}, s{S_T+1} offen
        s_mov_b64 exec, -1""")
    n += 1
    k.e(f"""s_lshr_b32 s{S_T+4}, s{S_T}, 1
    s_cmp_ge_u32 s{S_T+4}, 7
    s_cselect_b32 s{S_T+5}, 7, 0
    s_add_u32 s{S_T+4}, s{S_T+4}, s{S_T+5}
    s_mul_i32 s{S_T+5}, s{S_T+3}, 7
    s_add_u32 s{S_CW}, s{S_T+4}, s{S_T+5}
    s_and_b32 s{S_T+5}, s2, 6
    s_and_b32 s{S_T+6}, s{S_T}, 1
    s_add_u32 s{S_CW+1}, s{S_T+5}, s{S_T+6}
    s_lshl_b32 s{S_T+5}, s{S_CW+1}, 2
    s_add_u32 s{S_T+5}, s{S_T+5}, s{S_Q}
    s_mul_i32 s{S_T+5}, s{S_T+5}, {32*7168}
    s_lshl_b32 s{S_T+4}, s{S_CW}, 8
    s_add_u32 s{S_T+5}, s{S_T+5}, s{S_T+4}
    s_cmp_ge_u32 s2, 224
    s_cselect_b32 s{S_T+5}, {7*MB}, s{S_T+5}
    v_lshrrev_b32 v3, 4, v1
    v_mul_u32_u24 v3, 7168, v3
    v_and_b32 v4, 15, v1
    v_lshl_add_u32 v5, v4, 4, v3""")
    for j in range(8):
        k.e(f"buffer_load_dwordx4 v[{192+4*j}:{195+4*j}], v5, {srd(SRD_B)}, s{S_T+5} offen\ns_add_u32 s{S_T+5}, s{S_T+5}, {4*7168}")
    if OPT.l2 & 2:
        k.e(f"""v_min_u32 v4, 13, v4
        v_lshl_add_u32 v3, v4, 7, v3
        s_mul_i32 s{S_T+1}, s{S_T+2}, {4*7168}
        s_mul_i32 s{S_T+4}, s{S_T+3}, 1792
        s_add_u32 s{S_T+1}, s{S_T+1}, s{S_T+4}
        s_add_u32 s{S_T+1}, s{S_T+1}, 3584
        buffer_load_dword v251, v3, {srd(SRD_B)}, s{S_T+1} offen
        s_add_u32 s{S_T+1}, s{S_T+1}, {512*7168}
        buffer_load_dword v252, v3, {srd(SRD_B)}, s{S_T+1} offen""")
        n += 2
    return n
def win_reduce(k):
    for j in range(8): acc_bf16(k, 224, 192+4*j, 4, j == 0, 232)
    xswap_sum(k, 224, 232, 8, 32)
    k.e(f"""s_lshl_b32 s{S_T}, s{S_Q}, 10
    s_add_u32 s{S_T}, s{S_T}, {L_CW}
    v_and_b32 v4, 31, v1
    v_lshl_add_u32 v4, v4, 5, s{S_T}
    ds_write_b128 v4, v[224:227]
    ds_write_b128 v4, v[228:231] offset:16
    s_waitcnt lgkmcnt(0)""")

def pf_loop(k, srdn, n, stride):
    t = k.lab("pf")
    k.e(f"s_mov_b32 s{S_CNT}, {n}\n{t}:")
    k.e(f"buffer_load_dword v3, v2, {srd(srdn)}, s{S_T+4} offen\ns_add_u32 s{S_T+4}, s{S_T+4}, {stride}")
    k.e(f"s_waitcnt vmcnt({OPT.pfd})\ns_sub_u32 s{S_CNT}, s{S_CNT}, 1\ns_cmp_lg_u32 s{S_CNT}, 0\ns_cbranch_scc1 {t}")

def helper_pf(k, role):
    nw = OPT.pf
    if OPT.tlb and role == 'c':
        st = 1 << OPT.tlb
        mk_srd(k, SRD_A, P_WOUT, 1792*2048); mk_srd(k, SRD_B, P_WSP, 8*MB)
        k.e(f"""s_lshr_b32 s{S_T}, s2, 3
        s_sub_u32 s{S_T}, s{S_T}, 28
        s_lshl_b32 s{S_T}, s{S_T}, 2
        s_add_u32 s{S_T}, s{S_T}, s{S_WAVE}
        s_lshl_b32 s{S_T+4}, s{S_T}, {OPT.tlb+6}
        v_and_b32 v3, 31, v1
        v_lshlrev_b32 v3, 7, v3
        v_lshlrev_b32 v2, {OPT.tlb}, v1
        v_add_u32 v2, v2, v3""")
        pf_loop(k, SRD_B, max(8*MB//(st*1024), 1), st*1024)
        k.e(f"s_lshl_b32 s{S_T+4}, s{S_T}, {OPT.tlb+6}")
        pf_loop(k, SRD_A, max(4*MB//(st*1024), 1), st*1024)
        k.e("s_waitcnt vmcnt(0)")
        return
    if not nw or role != 'c': return
    k.e(f"s_cmp_ge_u32 s{S_WAVE}, {nw}\ns_cbranch_scc1 L_nopf")
    mk_srd(k, SRD_A, P_WOUT, 1792*2048); mk_srd(k, SRD_B, P_WSP, 8*MB)
    k.e(f"""s_sub_u32 s{S_T}, s2, 224
    s_mul_i32 s{S_T}, s{S_T}, {nw}
    s_add_u32 s{S_T}, s{S_T}, s{S_WAVE}
    s_lshl_b32 s{S_T+4}, s{S_T}, 13
    v_lshlrev_b32 v2, 7, v1""")
    for _ in range(OPT.pfw): k.e("s_sleep 127")
    pf_loop(k, SRD_B, 32//nw, 8192*32*nw)
    stamp(k, 12)
    k.e(f"s_lshl_b32 s{S_T+4}, s{S_T}, 13")
    pf_loop(k, SRD_A, -(-14//nw), 8192*32*nw)
    k.e("s_waitcnt vmcnt(0)\nL_nopf:")

def inv_pos(k, rot):
    inv = [0]*4
    for u, d in enumerate(rot): inv[(u+d) & 3] = -d
    packed = sum(((d+8) & 15) << (4*u) for u, d in enumerate(inv))
    k.e(f"""s_sub_u32 s{S_T}, s{S_M}, s{S_PH}
    s_and_b32 s{S_T}, s{S_T}, 3
    s_lshl_b32 s{S_T}, s{S_T}, 2
    s_lshr_b32 s{S_T}, {packed}, s{S_T}
    s_and_b32 s{S_T}, s{S_T}, 15
    s_add_u32 s{S_T}, s{S_T}, s{S_M}
    s_sub_u32 s{S_T}, s{S_T}, 8
    s_and_b32 s{S_KB}, s{S_T}, 15""")

def loader(k):
    c1, c2, c3, c4, c5 = cfgs()
    LP = LProg(k)
    def start(c, t=0): return [f"s_mov_b32 s{S_TAU}, {t}", f"s_mov_b32 s{S_SLOT}, {(t+c.slot0) % c.NS}"]
    def W_(n): return f"s_waitcnt vmcnt({n})\ns_barrier"
    k.e(f"s_lshl_b32 s{S_M0W}, s{S_LW}, 10")
    c = c1; g1 = Seg(c1, VS, VF)
    inv_pos(k, c.rot)
    k.e(f"s_lshl_b32 s{S_T0}, s{S_N}, 7")
    loader_voff_S(k, c, VS)
    loader_voff_F(k, c, VF, S_T0, lambda P: P*2048)
    LP.prep(g1, start(c))
    k.e("s_waitcnt lgkmcnt(0)")
    mk_srd(k, SRD_S, P_X, 4*MB); mk_srd(k, SRD_F, P_WQKV, 6*MB)
    stamp(k, 0); stamp(k, 1)
    LP.stage(g1); LP.stage(g1)
    LP.stage(g1, sync=W_(c.nI))
    mk_srd(k, SRD_W, P_WS, WS_END)
    if OPT.pads:
        for d in (SRD_A, SRD_B, SRD_D): mk_srd(k, d, P_X, 0)
    LP.run(g1, 13, c.nI)
    if OPT.pads: k.e("s_branch L_ld\nALIGN4K\nL_ld:")
    k.e(W_(c.nI)); itstamp(k)
    n = win_loads(k, "l")
    k.e(W_(n)); itstamp(k)
    k.e(f"""s_lshl_b32 s{S_T+12}, s{S_N}, 4
    s_add_u32 s{S_T+12}, s{S_T+12}, s{S_M}
    s_lshl_b32 s{S_T+14}, s{S_T+12}, 4
    s_add_u32 s{S_T+14}, s{S_T+14}, {WS_ZF}
    s_lshl_b32 s{S_T+12}, s{S_T+12}, 8
    s_add_u32 s{S_T+12}, s{S_T+12}, {WS_ZP}
    v_and_b32 v13, 15, v1
    v_lshlrev_b32 v13, 4, v13""")
    tile_map(k, 4, 8, 16)
    c = c2; g2 = Seg(c2, VS, VF)
    mk_srd(k, SRD_S, P_WS, 4*MB, WS_O); mk_srd(k, SRD_F, P_WO, 2*MB)
    k.e(f"s_lshl_b32 s{S_T0}, s{S_N}, 7")
    loader_voff_S(k, c, VS); loader_voff_F(k, c, VF, S_T0, lambda P: 0)
    k.e("s_barrier"); itstamp(k)
    if OPT.tw:
        mk_srd(k, SRD_D, P_OUT, 4*MB)
        k.e(f"""s_lshr_b32 s{S_T}, s2, 3
        s_lshl_b32 s{S_T}, s{S_T}, 1
        s_add_u32 s{S_T}, s{S_T}, s{S_LW}
        s_and_b32 s{S_T}, s{S_T}, {(1 << (20-OPT.tw)) - 1}
        s_lshl_b32 s{S_T}, s{S_T}, {OPT.tw}
        v_lshlrev_b32 v3, 20, v1
        v_lshl_add_u32 v3, v1, 7, v3
        buffer_load_dword v251, v3, {W}, s{S_T} offen
        buffer_load_dword v252, v3, {srd(SRD_D)}, s{S_T} offen""")
    k.e("s_barrier")
    issue_first(k, c, VS, VF, "F", pbarrier=False)
    k.e("s_barrier")
    grp(k, 1)
    loader_voff_S(k, c5, VS5); loader_voff_F(k, c5, VF5, S_T0, lambda P: 0)
    k.e(f"""s_and_b32 s{S_T}, s2, 1
    s_mul_i32 s{S_T+1}, s{S_T}, {14*4096}
    s_mul_i32 s{S_T+2}, s{S_T}, {896*2048}""")
    for i in range(c5.nS): k.e(f"v_add_u32 v{VS5+i}, s{S_T+1}, v{VS5+i}")
    for i in range(c5.nF):
        if i < 4: k.e(f"v_xor_b32 v{VF5+i}, 1024, v{VF5+i}")
        k.e(f"v_add_u32 v{VF5+i}, s{S_T+2}, v{VF5+i}")
    k.e(f"s_sub_u32 s{S_T0}, s{S_N}, s{S_T}\ns_lshl_b32 s{S_T0}, s{S_T0}, 8\ns_mov_b32 s{S_FB}, 3584")
    loader_voff_F(k, c3, VF3, S_T0, lambda P: P*128)
    k.e(f"s_cmp_eq_u32 s{S_LW}, 0\ns_cbranch_scc1 L_l_noz\ns_sleep {max(OPT.kvslp-8, 1)}")
    def zg(): k.e(f"buffer_load_dwordx4 v[128:131], v13, {W}, s{S_T+12} offen sc1")
    validated(k, zg, range(128, 132), 3, pre=False)
    acc_bf16(k, 136, 128, 4, True, 132)
    for sh in (8, 4, 2, 1): ror_sum(k, 136, 8, sh)
    for i in range(4): k.e(f"v_cvt_pk_bf16_f32 v{132+i}, v{136+2*i}, v{137+2*i}")
    k.e(f"s_mov_b64 exec, 1\nbuffer_store_dwordx4 v[132:135], v13, {W}, s{S_T+14} offen sc1\ns_mov_b64 exec, -1\nL_l_noz:")
    bars(k, 2)
    k.e(f"s_waitcnt vmcnt({c.NS*c.nF})")
    win_reduce(k)
    LP.prep(g2, start(c))
    LP.stage(g2, "S", sync="s_barrier")
    LP.stage(g2, "S")
    LP.stage(g2, "S", sync=W_(c.nS))
    LP.stage(g2, "S")
    LP.stage(g2, sync=W_(2*c.nS), stampit=True)
    LP.stage(g2, sync=W_(c.nS+c.nI), stampit=True)
    g3 = Seg(c3, VS, VF3, True, SRD_S, SRD_B); g4 = Seg(c4, VS4, VF4, False, SRD_A, SRD_D); g5 = Seg(c5, VS5, VF5)
    LP.run(g2, 10, 2*c.nI, nxt=g3, pre=start(c3))
    k.e("s_cmp_ge_u32 s2, 224\ns_cbranch_scc1 L_ld_helper")
    c = c3
    LP.stage(g3, "F", sync=W_(2*c2.nI))
    LP.stage(g3, "F", sync=W_(c2.nI+c.nF), nxt=False)
    k.e(W_(2*c.nF) + "\ns_barrier")
    tile_map(k, 4, 7, 14)
    mk_srd(k, SRD_S, P_WS, 4*MB, WS_H); mk_srd(k, SRD_A, P_WSP, 8*MB); mk_srd(k, SRD_D, P_WS, 7*MB, WS_Z2N)
    k.e("s_barrier")
    loader_voff_S(k, c, VS); loader_voff_S(k, c4, VS4); loader_voff_F(k, c4, VF4)
    assert OPT.own2 == 2
    inv_pos(k, c4.rot)
    LP.prep(g3, start(c))
    ITST[1] = 253
    if ITST[0]: k.e("s_mov_b32 s97, 0")
    LP.stage(g3, "S", sync="s_barrier")
    LP.stage(g3, "S")
    LP.stage(g3, sync=W_(c.nS))
    LP.run(g3, 13, c.nI, nxt=g3, pre=[f"s_mov_b32 s{S_TAU}, 0", f"s_mov_b32 s{S_FB}, 0"])
    LP.run(g3, 3, c.nI, nxt=g3)
    LP.stage(g3)
    if OPT.gb: k.e("s_barrier")
    LP.run(g3, 12, 2*c.nI, nxt=g4, pre=[f"s_mov_b32 s{S_TAU}, 0"])
    mk_srd(k, SRD_S, P_WS, 7*MB, WS_U); mk_srd(k, SRD_F, P_WOUT, 1792*2048)
    c = c4
    LP.run(g4, 32, 2*c.nI, nxt=g5, pre=start(c5))
    LP.stage(g5, "F", sync=W_(2*c.nI))
    LP.stage(g5, "F", sync=W_(c.nI+c5.nF), nxt=False)
    k.e(W_(2*c5.nF))
    bars(k, 2)
    k.e("L_ld_p5:")
    ITST[1] = 254
    if ITST[0]: k.e("s_mov_b32 s97, 32")
    c = c5
    LP.prep(g5, start(c))
    LP.stage(g5, "S", sync="s_barrier")
    LP.stage(g5, "S")
    LP.stage(g5, sync=W_(c.nS))
    LP.run(g5, 11, c.nI)
    k.e(W_(c.nI) + "\n" + W_(0) + "\ns_barrier")
    k.e("s_branch L_fin")
    k.e("L_ld_helper:")
    k.e(W_(2*c2.nI) + "\n" + W_(c2.nI) + "\n" + W_(0))
    bars(k, 3)
    mk_srd(k, SRD_S, P_WS, 7*MB, WS_U); mk_srd(k, SRD_F, P_WOUT, 1792*2048)
    issue_first(k, c5, VS5, VF5, "F", pbarrier=False, t1=2)
    k.e("s_branch L_ld_p5")

def spread(k, fn, nbar):
    t = Kern(k.name); t.uid = k.uid
    fn(t); k.uid = t.uid
    L = [x.strip() for x in t.L]
    assert not any(x.endswith(":") for x in L)
    wt = lambda x: 10 if x.startswith("buffer_") else (1 if x.startswith(("v_", "ds_")) else 0.25)
    tot = sum(map(wt, L)); acc = 0; nb = 0
    low = OPT.vprio and sum(x.startswith("v_") for x in L) > 20
    if low: k.e("s_setprio 0")
    for x in L:
        k.e(x); acc += wt(x)
        if nb < nbar-1 and acc >= tot*(nb+1)/nbar - 1e-9:
            k.e("s_barrier"); nb += 1
    if low: k.e(f"s_setprio {OPT.pa}")
    while nb < nbar:
        k.e("s_barrier"); nb += 1

_carry = []
def merge(k, vm, va, nbar, share, hook=None):
    def cap(fns):
        t = Kern(k.name); t.uid = k.uid
        for f in fns: f(t)
        k.uid = t.uid
        return [x.strip() for x in t.L]
    M = cap(vm); _carry.extend(cap(va))
    nv = len(_carry) if share >= 1 else int(len(_carry)*share)
    V = _carry[:nv]; del _carry[:nv]
    nm = sum(x.startswith("buffer_") for x in M)
    mi = 0; seen = 0; full = True
    for b in range(nbar):
        tgt = nm*(b+1)/nbar
        while mi < len(M) and (seen < tgt or not full or b == nbar-1):
            x = M[mi]; k.e(x); mi += 1
            if x.startswith("buffer_"): seen += 1
            if "exec" in x.split(",")[0]: full = x.replace(" ", "") == "s_mov_b64exec,-1"
        for x in V[len(V)*b//nbar: len(V)*(b+1)//nbar]: k.e(x)
        k.e("s_barrier")
        if hook: hook(b)

def combine_half(k, P, stride, n, ntot, cnt, d, t):
    k.e(f"v_add_f32 v{d}, v{P}, v{P+stride}\nv_add_f32 v{d+1}, v{P+1}, v{P+stride+1}")
    for i in range(2, n): k.e(f"v_add_f32 v{d}, v{d}, v{P+stride*i}\nv_add_f32 v{d+1}, v{d+1}, v{P+stride*i+1}")
    if ntot != n: xswap_sum1(k, d, t)
    k.e(f"v_mul_f32 v{d}, {f2u(1.0/ntot)}, v{d}\nv_sub_f32 v{t}, v{P}, v{d}\nv_mul_f32 v{t+1}, v{t}, v{t}")
    for i in range(1, n): k.e(f"v_sub_f32 v{t}, v{P+stride*i}, v{d}\nv_fmac_f32 v{t+1}, v{t}, v{t}")
    k.e(f"v_fmac_f32 v{d+1}, {f2u(float(cnt))}, v{t+1}")
    if ntot != n: xswap_sum1(k, d+1, t)

def code_touch(k, lo, first, nlines):
    if not OPT.ct: return
    here = k.lab("pc")
    k.e(f"""s_getpc_b64 s[{S_X}:{S_X+1}]
    {here}:
    s_add_u32 s{S_X}, s{S_X}, {lo}-{here}
    s_addc_u32 s{S_X+1}, s{S_X+1}, {'-1' if lo == KNAME else '0'}
    s_lshr_b32 s{S_T}, s2, 3
    s_sub_u32 s{S_T}, s{S_T}, {first}
    s_lshl_b32 s{S_T}, s{S_T}, 1
    s_add_u32 s{S_T}, s{S_T}, s{S_LW}
    s_mul_i32 s{S_T}, s{S_T}, {nlines*128}
    v_min_u32 v249, {nlines-1}, v1
    v_lshlrev_b32 v249, 7, v249
    v_add_u32 v249, s{S_T}, v249
    v_min_u32 v249, L_end-{lo}, v249
    global_load_dword v250, v249, s[{S_X}:{S_X+1}]""")

def xp_init(k):
    if not OPT.sk: return
    k.e(f"""s_lshl_b32 s{S_T}, s2, 14
    s_lshl_b32 s{S_T+1}, s{S_LW}, 13
    s_add_u32 s{S_T}, s{S_T}, s{S_T+1}
    s_add_u32 s{S_T}, s{S_T}, {WS_XP}
    s_add_u32 s{S_T+1}, s{S_T}, 4096""")
    for i in range(8): k.e(f"buffer_store_dwordx4 v[44:47], v2, {W}, s{S_T+(i>>2)} offen offset:{(i&3)*1024} sc1")
    k.e("s_waitcnt vmcnt(0)")
def u_cnt(k):
    cnt_addr(k, 9, F_U, S_M)
    if OPT.sk: k.e(f"s_and_b32 s{S_T}, s2, 1\ns_lshl_b32 s{S_T}, s{S_T}, 7\nv_add_u32 v9, s{S_T}, v9")

def aux(k):
    c1, c2, c3, c4, c5 = cfgs()
    a = S_LW
    k.e(f"""s_lshl_b32 s{S_T}, s{S_M}, 7
    s_lshl_b32 s{S_T+1}, s{S_N}, 3
    s_add_u32 s{S_T}, s{S_T}, s{S_T+1}
    s_lshl_b32 s{S_T+1}, s{a}, 2
    s_add_u32 s{S_T}, s{S_T}, s{S_T+1}
    v_lshrrev_b32 v14, 4, v1
    v_add_u32 v14, s{S_T}, v14
    v_and_b32 v3, 15, v1
    v_lshlrev_b32 v3, 4, v3
    v_lshl_add_u32 v3, v14, 11, v3
    s_waitcnt lgkmcnt(0)""")
    mk_srd(k, SRD_B, P_X, 4*MB)
    XR = 192 if OPT.xa else 64
    if OPT.xa: k.e(f"s_sleep {OPT.xa}")
    for j in range(8): k.e(f"buffer_load_dwordx4 v[{XR+4*j}:{XR+3+4*j}], v3, {srd(SRD_B)}, 0 offen offset:{256*j}")
    mk_srd(k, SRD_W, P_WS, WS_END); mk_srd(k, SRD_A, P_WPHI, 65536); mk_srd(k, SRD_D, P_DBG, 256)
    if OPT.pads:
        for d in (SRD_S, SRD_F): mk_srd(k, d, P_X, 0)
    stamp(k, 0)
    q = OPT.spq
    k.e(f"""v_lshlrev_b32 v2, 4, v1
    v_mov_b32 v11, 1
    v_mov_b32 v44, -1
    v_mov_b32 v45, -1
    v_mov_b32 v46, -1
    v_mov_b32 v47, -1
    v_lshrrev_b32 v4, 5, v1
    v_lshlrev_b32 v4, 13, v4
    v_and_b32 v5, 31, v1
    v_lshl_add_u32 v4, v5, 4, v4
    v_bfe_u32 v12, v1, 2, 2
    v_min_u32 v12, 2, v12
    v_lshlrev_b32 v12, 13, v12
    v_lshrrev_b32 v5, 4, v1
    v_lshl_add_u32 v12, v5, 11, v12
    v_and_b32 v5, 3, v1
    v_lshl_add_u32 v12, v5, 4, v12
    s_mov_b32 s{S_T}, {q if q >= 0 else 's93'}
    s_sub_u32 s{S_T+1}, s{S_T}, 3
    s_cmp_ge_u32 s{S_T}, 3
    s_cselect_b32 s{S_T}, s{S_T+1}, s{S_T}
    s_mul_i32 s{S_T}, s{S_T}, {c1.slotF}
    s_add_u32 s{S_T}, s{S_T}, {c1.baseF}
    v_add_u32 v12, s{S_T}, v12
    v_bfe_u32 v13, v1, 2, 2
    v_lshl_add_u32 v12, v13, 7, v12
    v_lshrrev_b32 v13, 1, v13
    v_xor_b32 v13, s{a}, v13
    v_lshl_add_u32 v24, v13, 6, v12
    v_xor_b32 v25, 128, v24
    v_xor_b32 v26, 320, v24
    v_xor_b32 v27, 448, v24
    v_lshlrev_b32 v14, 2, v14""")
    X = 128
    for j in range(0 if OPT.xa else 8):
        k.e(f"s_waitcnt vmcnt({7-j})")
        for i in range(4*j, 4*j+4):
            unpack(k, X+2*i, X+2*i+1, 64+i)
            t = 32+2*(i & 1)
            if i >= 2: k.e(f"v_pk_add_f32 v[{t}:{t+1}], v[{X+2*i-4 if i < 4 else t}:{X+2*i-3 if i < 4 else t+1}], v[{X+2*i}:{X+2*i+1}]")
    stamp(k, 10)
    k.e("s_barrier")
    def init(k):
        k.e(f"""s_mov_b32 s{S_T+14}, {WS_XS}
        s_mov_b32 s{S_T+15}, {WS_XS+8192}
        s_mov_b32 exec_lo, 0x10001
        s_mov_b32 exec_hi, 0x10001
        buffer_store_dword v44, v14, {W}, s{S_T+14} offen sc1
        buffer_store_dword v44, v14, {W}, s{S_T+15} offen sc1
        s_mov_b64 exec, -1
        s_lshl_b32 s{S_T}, s{S_N}, 17
        s_lshl_b32 s{S_T+1}, s{S_M}, 9
        s_add_u32 s{S_T}, s{S_T}, s{S_T+1}
        s_lshl_b32 s{S_T+1}, s{a}, 16
        s_add_u32 s{S_T}, s{S_T}, s{S_T+1}
        s_add_u32 s{S_T}, s{S_T}, {WS_KVP}""")
        for x in range(4): k.e(f"buffer_store_dwordx4 v[44:47], v4, {W}, s{S_T} offen sc1\ns_add_u32 s{S_T}, s{S_T}, 16384")
        k.e(f"""s_lshl_b32 s{S_T+12}, s{S_N}, 4
        s_add_u32 s{S_T+12}, s{S_T+12}, s{S_M}
        s_lshl_b32 s{S_T+12}, s{S_T+12}, 1
        s_add_u32 s{S_T+12}, s{S_T+12}, s{a}
        s_mul_i32 s{S_T+12}, s{S_T+12}, 384
        s_add_u32 s{S_T+12}, s{S_T+12}, {WS_CQP}
        s_mov_b64 exec, 0xffffff
        buffer_store_dwordx4 v[44:47], v2, {W}, s{S_T+12} offen sc1
        s_lshl_b32 s{S_T}, s2, 10
        s_add_u32 s{S_T}, s{S_T}, {WS_HST}
        s_mul_i32 s{S_T+1}, s2, 528
        s_add_u32 s{S_T+1}, s{S_T+1}, {WS_KVF}
        s_mul_i32 s{S_T+2}, s2, 896
        s_add_u32 s{S_T+3}, s{S_T+2}, {WS_CSP}
        s_add_u32 s{S_T+2}, s{S_T+2}, {WS_ZST}
        s_mov_b32 s{S_T+4}, 0xffffff
        s_cmp_eq_u32 s{a}, 0
        s_cselect_b32 s{S_T}, s{S_T}, s{S_T+2}
        s_cselect_b32 s{S_T+1}, s{S_T+1}, s{S_T+3}
        s_cselect_b32 s{S_T+5}, -1, s{S_T+4}
        s_cselect_b32 s{S_T+6}, 1, s{S_T+4}
        s_mov_b32 exec_lo, -1
        s_mov_b32 exec_hi, s{S_T+5}
        buffer_store_dwordx4 v[44:47], v2, {W}, s{S_T} offen sc1
        s_mov_b32 exec_hi, s{S_T+6}
        buffer_store_dwordx4 v[44:47], v2, {W}, s{S_T+1} offen sc1
        s_mov_b64 exec, -1
        s_mul_i32 s{S_T}, s2, {FLS}
        s_add_u32 s{S_T}, s{S_T}, {WS_FLAG}
        s_cmp_lt_u32 s2, 64
        s_cselect_b32 s{S_T}, s{S_T}, {WS_END}
        s_lshl_b32 s{S_T+1}, s2, 8
        s_add_u32 s{S_T+1}, s{S_T+1}, {WS_ZP}
        s_cmp_eq_u32 s{a}, 0
        s_cselect_b32 s{S_T}, s{S_T}, s{S_T+1}
        s_cselect_b32 s{S_T+1}, 0, -1
        v_mov_b32 v48, s{S_T+1}
        v_lshlrev_b32 v5, 2, v1
        buffer_store_dword v48, v5, {W}, s{S_T} offen sc1""")
    def xs2(k):
        if OPT.xa:
            for i in range(32):
                unpack(k, X+2*i, X+2*i+1, XR+i)
                t = 32+2*(i & 1)
                if i >= 2:
                    for e_ in range(2): k.e(f"v_add_f32 v{t+e_}, v{X+2*i-4+e_ if i < 4 else t+e_}, v{X+2*i+e_}")
        k.e("v_add_f32 v32, v32, v34\nv_add_f32 v33, v33, v35\nv_add_f32 v32, v32, v33")
        for sh in (8, 4, 2, 1): ror_sum(k, 32, 1, sh)
        k.e(f"v_mul_f32 v32, {f2u(1/1024.)}, v32")
        for i in range(64):
            d = 40+(i & 3); t = 34+(i & 3)
            k.e(f"v_sub_f32 v{d}, v{X+i}, v32")
            k.e(f"v_mul_f32 v{t}, v{d}, v{d}" if i < 4 else f"v_fmac_f32 v{t}, v{d}, v{d}")
        k.e("v_add_f32 v34, v34, v35\nv_add_f32 v36, v36, v37\nv_add_f32 v33, v34, v36")
        for sh in (8, 4, 2, 1): ror_sum(k, 33, 1, sh)
        finish_rstd(k, 32, 1024)
    def qld(k):
        k.e(f"""s_lshl_b32 s{S_T}, s{S_N}, 12
        s_lshl_b32 s{S_T+1}, s{a}, 11
        s_add_u32 s{S_T}, s{S_T}, s{S_T+1}
        s_add_u32 m0, s{S_T+1}, {L_WPHI}
        s_nop 0
        buffer_load_dwordx4 v2, {srd(SRD_A)}, s{S_T} offen lds
        buffer_load_dwordx4 v2, {srd(SRD_A)}, s{S_T} offen offset:1024 lds""")
    def sprd(b):
        if b == q-1 or (q < 0 and OPT.q0 <= b+1 <= OPT.q0 + 7*OPT.qm//8):
            if q < 0: k.e(f"s_cmp_lg_u32 s93, {b+1}\ns_cbranch_scc1 L_nsp{b+1}")
            for j in range(16):
                k.e(f"ds_read_b128 v[{64+4*j}:{67+4*j}], v{24 + (j&3)} offset:{(j>>2)*512}")
                if j == 7:
                    k.e("s_waitcnt lgkmcnt(4)")
                    for r_ in range(24, 28): k.e(f"v_xor_b32 v{r_}, 32, v{r_}")
            k.e("s_waitcnt lgkmcnt(0)")
            if q < 0: k.e(f"L_nsp{b+1}:")
    assert q <= 5
    sprd(-1)
    if OPT.qpf:
        mk_srd(k, SRD_B, P_WQKV, 6*MB)
        k.e(f"""s_lshl_b32 s{S_T}, s2, 1
        s_add_u32 s{S_T}, s{S_T}, s{a}
        s_mul_i32 s{S_T}, s{S_T}, {96*128}
        v_lshlrev_b32 v3, 7, v1
        buffer_load_dword v250, v3, {srd(SRD_B)}, s{S_T} offen
        s_add_u32 s{S_T}, s{S_T}, 4096
        buffer_load_dword v251, v3, {srd(SRD_B)}, s{S_T} offen""")
    if OPT.xa: k.e("s_waitcnt vmcnt(0)")
    code_touch(k, KNAME, 0, 11)
    merge(k, [init], [xs2], 2, 0.3, hook=sprd)
    merge(k, [], [], 1, 0.4)
    sprd(2)
    merge(k, [], [], 1, 0.67)
    k.L.insert(len(k.L)-1, "    s_waitcnt vmcnt(0)")
    k.e(f"""s_cmp_lg_u32 s{a}, 0
    s_cbranch_scc1 L_a_noarr
    s_and_b32 s{S_T}, s2, 7
    s_lshl_b32 s{S_T}, s{S_T}, 5
    v_mov_b32 v4, s{S_T}
    s_mov_b64 exec, 1
    buffer_atomic_add v11, v4, {srd(SRD_D)}, 0 offen sc1
    s_mov_b64 exec, -1
    L_a_noarr:""")
    sprd(3)
    merge(k, [qld], [], 1, 1.0)
    k.e(f"""s_mov_b32 exec_lo, 0x10001
    s_mov_b32 exec_hi, 0x10001
    buffer_store_dword v32, v14, {W}, s{S_T+14} offen sc1
    buffer_store_dword v33, v14, {W}, s{S_T+15} offen sc1
    s_mov_b64 exec, -1""")
    sprd(4)
    k.e("s_barrier")
    A = 128; Q = 136
    def csum(k):
        for j in range(16): acc_bf16(k, A, 64+4*j, 4, j == 0, 48, plain=True)
        xswap_sum(k, A, 160, 8, 16); xswap_sum(k, A, 160, 8, 32)
        k.e(f"""v_lshlrev_b32 v4, 5, v1
        s_mov_b64 exec, 0xfff
        buffer_store_dwordx4 v[{A}:{A+3}], v4, {W}, s{S_T+12} offen sc1
        buffer_store_dwordx4 v[{A+4}:{A+7}], v4, {W}, s{S_T+12} offen offset:16 sc1
        s_mov_b64 exec, -1
        v_lshlrev_b32 v10, 5, v1""")
    spread(k, csum, 5)
    sample(k, 10, SRD_D)
    k.e(f"""s_lshl_b32 s{S_T+14}, s{a}, 13
    s_lshl_b32 s{S_T+1}, s{S_M}, 9
    s_add_u32 s{S_T+14}, s{S_T+14}, s{S_T+1}
    s_add_u32 s{S_T+14}, s{S_T+14}, {WS_XS}
    s_mul_i32 s{S_T+12}, s{S_N}, {16*768}
    s_mul_i32 s{S_T+13}, s{a}, 384
    s_add_u32 s{S_T+12}, s{S_T+12}, s{S_T+13}
    s_add_u32 s{S_T+12}, s{S_T+12}, {WS_CQP}
    v_and_b32 v12, 31, v1
    v_min_u32 v12, 23, v12
    v_lshlrev_b32 v12, 4, v12
    v_lshrrev_b32 v13, 5, v1
    v_mul_u32_u24 v13, 768, v13
    v_add_u32 v13, v13, v12
    v_lshlrev_b32 v5, 3, v1""")
    k.e("s_barrier")
    poll(k, 10, 8, SRD_D, 32, pre=True)
    stamp(k, 1)
    k.e("s_barrier")
    def cqg():
        k.e(f"s_mov_b32 s{S_T}, s{S_T+12}")
        for i in range(8):
            k.e(f"buffer_load_dwordx4 v[{64+4*i}:{67+4*i}], v13, {W}, s{S_T} offen offset:{(i&1)*1536} sc1")
            if i & 1: k.e(f"s_add_u32 s{S_T}, s{S_T}, 3072")
        k.e(f"buffer_load_dwordx2 v[96:97], v5, {W}, s{S_T+14} offen sc1")
    cqg()
    k.e("s_barrier")
    k.e("s_waitcnt vmcnt(0)")
    validated(k, cqg, range(64, 98), 3)
    for i in range(1, 8):
        for j in range(4): k.e(f"v_add_f32 v{64+j}, v{64+j}, v{64+4*i+j}")
    k.e("s_barrier")
    xswap_sum(k, 64, 68, 4, 32)
    k.e(f"""s_add_u32 s{S_T+13}, s{S_T+13}, {L_CQ}
    v_add_u32 v3, s{S_T+13}, v12
    ds_write_b128 v3, v[64:67]
    s_lshl_b32 s{S_T}, s{a}, 9
    s_add_u32 s{S_T}, s{S_T}, {L_XS}
    v_add_u32 v5, s{S_T}, v5
    ds_write_b64 v5, v[96:97]
    s_waitcnt lgkmcnt(0)
    s_barrier""")
    stamp(k, 2)
    win_loads(k, "a")
    cnt_addr(k, 9, F_O, S_M)
    k.e(f"""s_lshl_b32 s{S_T+12}, s{S_N}, 17
    s_lshl_b32 s{S_T+1}, s{S_M}, 13
    s_add_u32 s{S_T+12}, s{S_T+12}, s{S_T+1}
    s_lshl_b32 s{S_T+2}, s{a}, 8
    s_add_u32 s{S_T+12}, s{S_T+12}, s{S_T+2}
    s_add_u32 s{S_T+12}, s{S_T+12}, {WS_KVP}
    s_add_u32 s{S_T+13}, s{S_T+12}, 4096
    s_lshl_b32 s{S_T+14}, s{S_N}, 13
    s_lshl_b32 s{S_T+1}, s{S_M}, 9
    s_add_u32 s{S_T+14}, s{S_T+14}, s{S_T+1}
    s_add_u32 s{S_T+14}, s{S_T+14}, s{S_T+2}
    s_add_u32 s{S_T+14}, s{S_T+14}, {WS_KVF}
    v_and_b32 v12, 15, v1
    v_lshlrev_b32 v12, 4, v12
    v_lshrrev_b32 v5, 4, v1
    v_lshl_add_u32 v13, v5, 9, v12
    v_lshl_add_u32 v12, v5, 2, v12""")
    bars(k, 2)
    if OPT.kvslp: k.e(f"s_sleep {OPT.kvslp}")
    def kvg(k=k):
        for i in range(4): k.e(f"buffer_load_dwordx4 v[{64+4*i}:{67+4*i}], v13, {W}, s{S_T+12+(i>>1)} offen offset:{(i&1)*2048} sc1")
    validated(k, kvg, range(64, 80), 3, pre=False)
    stamp(k, 3)
    for i in range(4): acc_bf16(k, 128, 64+4*i, 4, i == 0, 48)
    k.e("s_nop 0")
    for i in range(4): k.e(f"v_permlane32_swap_b32 v{128+i}, v{132+i}")
    k.e("v_pk_add_f32 v[128:129], v[128:129], v[132:133]\nv_pk_add_f32 v[130:131], v[130:131], v[134:135]\ns_nop 1")
    k.e("v_permlane16_swap_b32 v128, v130\nv_permlane16_swap_b32 v129, v131\nv_pk_add_f32 v[128:129], v[128:129], v[130:131]\nv_cvt_pk_bf16_f32 v52, v128, v129")
    k.e(f"buffer_store_dword v52, v12, {W}, s{S_T+14} offen sc1")
    stamp(k, 4)
    if OPT.kfslp: k.e(f"s_sleep {OPT.kfslp}")
    k.e("L_a_kvd:")
    k.e(f"""s_lshl_b32 s{S_T}, s{S_N}, 1
    s_add_u32 s{S_T}, s{S_T}, s{a}
    s_lshl_b32 s{S_T+12}, s{S_T}, 12
    s_add_u32 s{S_T+12}, s{S_T+12}, {WS_KVF}
    s_lshl_b32 s{S_T+13}, s{S_T}, 7
    s_add_u32 s{S_T+13}, s{S_T+13}, {WS_ZF}
    v_and_b32 v13, 7, v1
    v_lshlrev_b32 v13, 4, v13
    s_lshl_b32 s{S_T}, s{a}, 12
    v_add_u32 v4, s{S_T}, v2
    s_lshl_b32 s{S_T}, s{a}, 7
    v_add_u32 v5, s{S_T}, v13""")
    def kfg():
        for i in range(4): k.e(f"buffer_load_dwordx4 v[{64+4*i}:{67+4*i}], v2, {W}, s{S_T+12} offen offset:{i*1024} sc1")
        k.e(f"buffer_load_dwordx4 v[80:83], v13, {W}, s{S_T+13} offen sc1")
    validated(k, kfg, range(64, 84), 3, pre=False)
    for i in range(4): k.e(f"ds_write_b128 v4, v[{64+4*i}:{67+4*i}] offset:{L_KV+i*1024}")
    k.e(f"ds_write_b128 v5, v[80:83] offset:{L_Z}\ns_waitcnt lgkmcnt(0)\ns_barrier")
    grp(k, 1)
    tile_map(k, 4, 8, 16)
    cnt_addr(k, 10, F_O, S_M)
    k.e("s_barrier")
    set_flag(k, 9)
    win_reduce(k)
    poll(k, 10, 1, val=16)
    k.e("s_barrier")
    k.e(f"""s_cmp_eq_u32 s{a}, 0
    s_cbranch_scc1 L_a_nocw
    s_cmp_ge_u32 s2, 224
    s_cbranch_scc1 L_a_nocw
    v_lshlrev_b32 v4, 3, v1
    v_add_u32 v3, {L_CW}, v4""")
    for i in range(8): k.e(f"ds_read_b64 v[{192+2*i}:{193+2*i}], v3 offset:{i*512}")
    k.e(f"""s_mul_i32 s{S_T}, s{S_CW+1}, 14336
    s_lshl_b32 s{S_T+1}, s{S_CW}, 9
    s_add_u32 s{S_T}, s{S_T}, s{S_T+1}
    s_add_u32 s{S_T}, s{S_T}, {WS_CSP}
    s_waitcnt lgkmcnt(0)""")
    for i in range(1, 8): k.e(f"v_pk_add_f32 v[192:193], v[192:193], v[{192+2*i}:{193+2*i}]")
    k.e(f"buffer_store_dwordx2 v[192:193], v4, {W}, s{S_T} offen sc1\nL_a_nocw:")
    cnt_addr(k, 9, F_H, S_M)
    tile_map(k, 4, 7, 14)
    k.e(f"""v_and_b32 v14, 31, v1
    v_lshlrev_b32 v14, 4, v14
    v_lshrrev_b32 v15, 5, v1
    v_mul_u32_u24 v13, {1792*4}, v15
    v_add_u32 v13, v13, v14
    s_lshl_b32 s{S_T}, s{a}, 9
    v_add_u32 v14, s{S_T}, v14
    s_lshl_b32 s{S_T+13}, s{S_N}, 9
    s_add_u32 s{S_T+13}, s{S_T+13}, {WS_CSP}
    s_lshl_b32 s{S_T+12}, s{S_M}, 10
    s_add_u32 s{S_T+12}, s{S_T+12}, {WS_HST}""")
    bars(k, 18)
    set_flag(k, 9)
    k.e("s_cmp_ge_u32 s2, 224\ns_cbranch_scc1 L_a_helper")
    poll(k, 9, 1, val=16)
    k.e(f"s_cmp_eq_u32 s{a}, 0\ns_cbranch_scc1 L_a_nocs")
    def cg():
        k.e(f"s_mov_b32 s{S_T}, s{S_T+13}")
        for i in range(8): k.e(f"buffer_load_dwordx4 v[{64+4*i}:{67+4*i}], v13, {W}, s{S_T} offen sc1\ns_add_u32 s{S_T}, s{S_T}, 14336")
    validated(k, cg, range(64, 96), 3, pre=False)
    for i in range(1, 8): k.e(f"v_pk_add_f32 v[64:65], v[64:65], v[{64+4*i}:{65+4*i}]\nv_pk_add_f32 v[66:67], v[66:67], v[{66+4*i}:{67+4*i}]")
    k.e(f"v_add_u32 v3, {L_CS}, v2\nds_write_b128 v3, v[64:67]\nL_a_nocs:")
    k.e("s_barrier")
    k.e(f"v_lshl_add_u32 v13, v15, 17, v14")
    def hg(k=k):
        k.e(f"s_mov_b32 s{S_T}, s{S_T+12}")
        for i in range(8): k.e(f"buffer_load_dwordx4 v[{64+4*i}:{67+4*i}], v13, {W}, s{S_T} offen sc1\ns_add_u32 s{S_T}, s{S_T}, 16384")
    bars(k, OPT.hpos)
    spread(k, hg, OPT.hsp); bars(k, 7-OPT.hpos-OPT.hsp)
    k.e("s_barrier\ns_waitcnt vmcnt(0)")
    validated(k, hg, range(65, 96, 2), 3)
    def hfin(k):
        for r in range(2):
            d = 4+4*r if r == 0 else 16
            combine_half(k, 64+2*r, 4, 8, 16, 64, d, 20)
            k.e(f"""v_mul_f32 v{d+1}, {f2u(1.0/1024)}, v{d+1}
            v_add_f32 v{d+1}, {f2u(1e-5)}, v{d+1}
            v_rsq_f32 v20, v{d+1}
            v_sqrt_f32 v{d+3}, v{d+1}
            v_sub_f32 v{d}, 0, v{d}
            v_mul_f32 v{d+1}, {f2u(C0)}, v20
            v_mul_f32 v{d+2}, v20, v20
            v_mul_f32 v{d+2}, v{d+2}, v20
            v_mul_f32 v{d+2}, {f2u(C1)}, v{d+2}""")
        k.e(f"""v_lshlrev_b32 v3, 1, v14
        s_lshl_b32 s{S_T+14}, s2, 11
        s_add_u32 s{S_T+14}, s{S_T+14}, {WS_HC}
        v_cmp_gt_u32 vcc, 32, v1
        v_lshl_add_u32 v3, v15, 4, v3
        s_nop 0
        v_cndmask_b32 v4, v16, v4, vcc
        v_cndmask_b32 v5, v17, v5, vcc
        v_cndmask_b32 v6, v18, v6, vcc
        v_cndmask_b32 v7, v19, v7, vcc
        buffer_store_dwordx4 v[4:7], v3, {W}, s{S_T+14} offen
        s_lshl_b32 s{S_T}, s{a}, 10
        s_add_u32 s{S_T+14}, s{S_T+14}, s{S_T}
        s_add_u32 m0, s{S_T}, {L_HS}
        s_mul_i32 s{S_T+12}, s{S_M}, {14*1024}
        s_add_u32 s{S_T+12}, s{S_T+12}, {WS_ZST}
        s_lshl_b32 s{S_T+13}, s{S_N}, 10
        s_add_u32 s{S_T+13}, s{S_T+13}, s{S_T+12}
        s_lshl_b32 s{S_T}, s{a}, 9
        v_lshlrev_b32 v22, 3, v1
        v_add_u32 v22, s{S_T}, v22
        v_add_u32 v12, {L_ZP}, v22
        v_mul_u32_u24 v13, {7*1024}, v15
        v_add_u32 v13, v13, v14""")
        cnt_addr(k, 10, F_Z, S_N); u_cnt(k)
    spread(k, hfin, 4)
    k.e(f"s_barrier\ns_barrier\ns_waitcnt vmcnt(0) lgkmcnt(0)\nbuffer_load_dwordx4 v2, {W}, s{S_T+14} offen sc1 lds")
    k.e("s_barrier\ns_barrier\ns_waitcnt vmcnt(0)")
    k.e("s_barrier")
    if OPT.sk and OPT.xis: k.e(f"s_sleep {OPT.xis}")
    xp_init(k)
    k.e("s_barrier")
    k.e(f"""ds_read_b64 v[64:65], v12
    ds_read_b64 v[66:67], v12 offset:1024
    s_waitcnt lgkmcnt(0)
    v_add_f32 v4, v64, v66
    v_mul_f32 v4, 0.5, v4
    v_sub_f32 v6, v64, v66
    v_mul_f32 v6, v6, v6
    v_add_f32 v5, v65, v67
    v_fmac_f32 v5, {f2u(32.0)}, v6
    buffer_store_dwordx2 v[4:5], v22, {W}, s{S_T+13} offen sc1""")
    stamp(k, 6)
    g = OPT.gat
    bars(k, g-16+OPT.gb)
    def zsg():
        k.e(f"s_add_u32 s{S_T}, s{S_T+12}, 4096")
        for i in range(7):
            k.e(f"buffer_load_dwordx4 v[{64+4*i}:{67+4*i}], v13, {W}, s{S_T+12 if i < 4 else S_T} offen offset:{(i&3)*1024} sc1")
    zsg()
    k.e("s_barrier\ns_waitcnt vmcnt(0)")
    validated(k, zsg, range(65, 92, 2), 3)
    stamp(k, 7)
    def zfin(k):
        for r in range(2):
            combine_half(k, 64+2*r, 4, 7, 14, 128, 4+2*r, 20); finish_rstd(k, 4+2*r, 1792)
        if OPT.zdma:
            k.e(f"""s_lshl_b32 s{S_T}, s{a}, 9
            s_add_u32 m0, s{S_T}, {L_ZS}
            s_mov_b32 exec_hi, 0
            buffer_store_dwordx4 v[4:7], v2, {W}, s{S_T+14} offen""")
        else: k.e(f"v_add_u32 v3, {L_ZS}, v14")
    if OPT.zdma:
        spread(k, zfin, OPT.zsp-2)
        k.e(f"s_waitcnt vmcnt(0)\nbuffer_load_dwordx4 v2, {W}, s{S_T+14} offen sc1 lds\ns_mov_b32 exec_hi, -1\ns_barrier\ns_waitcnt vmcnt(0)\ns_barrier")
    else:
        spread(k, zfin, OPT.zsp-1)
        k.e("ds_write_b128 v3, v[4:7]\ns_waitcnt lgkmcnt(0)\ns_barrier")
    nf = OPT.nst
    zb = g+1+OPT.zsp
    fb = zb+nf+1+OPT.vmd
    cb = 28 if OPT.own2 else 26
    assert fb <= cb
    bars(k, fb-zb)
    set_flag(k, 10)
    bars(k, cb-fb)
    sample(k, 10)
    k.e("s_barrier")
    poll(k, 10, 1, val=16, pre=True)
    stamp(k, 8)
    if OPT.dsx:
        ops = {1: "ds_write_b128 v60, v[4:7]", 2: "ds_write_b64 v60, v[4:5]", 3: "ds_write_b32 v60, v4", 4: "ds_read_b128 v[64:67], v60",
               5: "ds_write_b128 v60, v[4:7]\nds_write_b128 v60, v[4:7] offset:1024\nds_write_b128 v60, v[4:7] offset:2048\nds_write_b128 v60, v[4:7] offset:3072",
               6: "ds_write_b128 v61, v[4:7]", 7: "s_mov_b64 exec, 1\nds_write_b32 v60, v4\ns_mov_b64 exec, -1"}[OPT.dsx]
        k.e(f"v_add_u32 v60, {L_CW}, v2\nv_lshlrev_b32 v61, 1, v14\nv_add_u32 v61, {L_CW}, v61")
        bars(k, 63-cb-25)
        for i in range(6):
            k.e(ops); bars(k, 4)
        k.e("s_waitcnt lgkmcnt(0)\ns_barrier")
    else:
        bars(k, 63-cb)
    set_flag(k, 9)
    k.e("L_a_p5:")
    poll(k, 9, 1, val=7 if OPT.sk else 14)
    k.e("s_barrier")
    k.e("s_branch L_fin")
    k.e("L_a_helper:")
    k.e("s_barrier")
    if OPT.ct > 1: code_touch(k, "L_c_p3", 28, 44)
    if OPT.sk:
        xp_init(k)
        k.e(f"""v_mov_b32 v9, {F_Z + 14*FLS}
        s_mov_b64 exec, 1
        buffer_atomic_add v11, v9, {W}, 0 offen sc1
        s_mov_b64 exec, -1
        s_sleep 64""")
        poll(k, 9, 1, val=64)
    u_cnt(k)
    k.e("s_branch L_a_p5")

def swaps(p):
    return [f"v_permlane16_swap_b32 v{p}, v{p+2}", f"v_permlane16_swap_b32 v{p+1}, v{p+3}"]
def pack32(k, dst, a):
    cvt16(k, dst, a)
    for x in swaps(dst): k.e(x)
    for x in swaps(dst+4): k.e(x)

def gelu_quads(k, quads, t):
    for g in range(0, len(quads), 2):
        P = [(y+2*i, cs+2*i, s, t+4*j+2*i) for j, (y, cs, s) in enumerate(quads[g:g+2]) for i in range(2)]
        for y, cs, s, p in P: k.e(f"v_pk_fma_f32 v[{y}:{y+1}], v[{cs}:{cs+1}], v[{s}:{s+1}], v[{y}:{y+1}] op_sel_hi:[1,0,1]")
        for y, cs, s, p in P: k.e(f"v_pk_mul_f32 v[{p}:{p+1}], v[{y}:{y+1}], v[{y}:{y+1}]")
        for y, cs, s, p in P: k.e(f"v_pk_fma_f32 v[{p}:{p+1}], v[{p}:{p+1}], v[{s+2}:{s+3}], v[{s}:{s+1}] op_sel:[0,0,1] op_sel_hi:[1,0,1]")
        for y, cs, s, p in P: k.e(f"v_pk_mul_f32 v[{p}:{p+1}], v[{p}:{p+1}], v[{y}:{y+1}]")
        for j in range(8): k.e(f"v_exp_f32 v{t+j}, v{t+j}")
        for y, cs, s, p in P: k.e(f"v_pk_fma_f32 v[{p}:{p+1}], v[{p}:{p+1}], v[{s+2}:{s+3}], v[{s+2}:{s+3}] op_sel:[0,1,1] op_sel_hi:[1,1,1]")
        for j in range(8): k.e(f"v_rcp_f32 v{t+j}, v{t+j}")
        for y, cs, s, p in P: k.e(f"v_pk_mul_f32 v[{y}:{y+1}], v[{y}:{y+1}], v[{p}:{p+1}]")

def gelu_fill(y, cs, s, n, t):
    E = range(n); L = []
    L += [f"v_fmac_f32 v{y+j}, v{cs+j}, v{s}" for j in E]
    L += [f"v_mul_f32 v{t+j}, v{y+j}, v{y+j}" for j in E]
    L += [f"v_fma_f32 v{t+j}, v{t+j}, v{s+2}, v{s+1}" for j in E]
    L += [f"v_mul_f32 v{t+j}, v{t+j}, v{y+j}" for j in E]
    L += [f"v_exp_f32 v{t+j}, v{t+j}" for j in E]
    L += [f"v_fma_f32 v{t+j}, v{t+j}, v{s+3}, v{s+3}" for j in E]
    L += [f"v_rcp_f32 v{t+j}, v{t+j}" for j in E]
    L += [f"v_mul_f32 v{y+j}, v{t+j}, v{y+j}" for j in E]
    return L

def treduce(k, a):
    k.e(f"""s_nop 1
    v_permlane32_swap_b32 v{a}, v{a+2}
    v_permlane32_swap_b32 v{a+1}, v{a+3}
    v_add_f32 v{a}, v{a}, v{a+2}
    v_add_f32 v{a+1}, v{a+1}, v{a+3}
    s_nop 1
    v_permlane16_swap_b32 v{a}, v{a+1}
    v_add_f32 v{a}, v{a}, v{a+1}""")

NWARM = [8, 8, 8, 4]
def grp(k, g):
    if OPT.pads: k.e(f'GRP {g}')
def warm(k, grp):
    if not OPT.pads: return
    k.e("s_mov_b64 exec, 0")
    for i in range(NWARM[grp]): k.e(f"WARM {grp} {i}")
    k.e("s_mov_b64 exec, -1")

def consumer(k):
    c1, c2, c3, c4, c5 = cfgs()
    def regs(aS, aF, acc):
        R = Regs(); R.aS = aS; R.aF = aF; R.fr = 16; R.acc = acc; return R
    k.e(f"s_mov_b32 s{S_K}, {f2u(LOG2E)}\ns_mov_b32 s{S_K+1}, {f2u(LOG2E)}")
    c = c1; R = regs([8, 9], [10, 11, 12, 13], 64); C = Cons(k, c, R)
    k.e("s_waitcnt lgkmcnt(0)")
    mk_srd(k, SRD_B, P_X, 4*MB); mk_srd(k, SRD_W, P_WS, WS_END)
    if OPT.pads:
        for d in (SRD_S, SRD_F, SRD_A, SRD_D): mk_srd(k, d, P_X, 0)
    stamp(k, 0)
    consumer_addr(k, c, R)
    C.zero()
    aWP=240; aXS=241; aCQ=242; aCV=243; aVS=244; aPW=245; aVX=247; aVW=248; aPR=249; L16=15
    tr_lane_base(k, aWP, 3, 9, rowshift=6, swz=False)
    k.e(f"""s_lshl_b32 s{S_T}, s{S_WN}, 11
    s_add_u32 s{S_T}, s{S_T}, {L_WPHI}
    v_add_u32 v{aWP}, s{S_T}, v{aWP}
    v_lshrrev_b32 v3, 4, v1
    v_and_b32 v4, 15, v1
    s_lshl_b32 s{S_T}, s{S_WM}, 8
    s_add_u32 s{S_T}, s{S_T}, {L_XS}
    v_lshl_add_u32 v{aXS}, v4, 2, s{S_T}
    v_lshl_add_u32 v{aVS}, v3, 4, s{S_T}
    s_mul_i32 s{S_T+1}, s{S_WN}, 384
    s_add_u32 s{S_T+1}, s{S_T+1}, {L_CQ}
    v_lshl_add_u32 v{aCQ}, v3, 4, s{S_T+1}
    v_and_b32 v7, 3, v4
    v_bfe_u32 v5, v4, 2, 1
    v_lshl_or_b32 v7, v5, 3, v7
    v_bfe_u32 v5, v4, 3, 1
    v_lshl_or_b32 v7, v5, 2, v7
    v_lshl_add_u32 v{aCV}, v7, 2, s{S_T+1}
    v_lshrrev_b32 v3, 5, v1
    v_and_b32 v4, 31, v1
    v_lshlrev_b32 v5, 2, v3
    v_xor_b32 v5, v4, v5
    v_lshlrev_b32 v5, 4, v5
    v_lshl_add_u32 v5, v3, 9, v5
    s_lshl_b32 s{S_T}, s{S_WN}, 14
    s_add_u32 s{S_T}, s{S_T}, {L_PHK}
    s_lshl_b32 s{S_T+1}, s{S_WM}, 13
    s_add_u32 s{S_T+2}, s{S_T}, s{S_T+1}
    v_add_u32 v{aPW}, s{S_T+2}, v5
    v_xor_b32 v{aPW+1}, 128, v{aPW}
    v_lshlrev_b32 v{L16}, 4, v1
    s_lshl_b32 s{S_T+3}, s{S_WN}, 13
    s_add_u32 s{S_T+3}, s{S_T+3}, {L_VX}
    v_add_u32 v{aVX}, s{S_T+3}, v{L16}
    s_lshl_b32 s{S_T+4}, s{S_WM}, 12
    v_add_u32 v{aVW}, s{S_T+4}, v{aVX}
    v_lshlrev_b32 v14, 13, v3
    v_lshl_add_u32 v14, v4, 4, v14
    v_lshlrev_b32 v251, 8, v3
    v_lshlrev_b32 v252, 4, v3""")
    blk_tr_base(k, aPR, 2, 3, 3)
    k.e(f"""s_lshl_b32 s{S_T+1}, s{S_WM}, 11
    s_add_u32 s{S_T+1}, s{S_T+1}, s{S_T}
    v_add_u32 v{aPR}, s{S_T+1}, v{aPR}
    v_xor_b32 v{aPR+1}, 64, v{aPR}""")
    ONES=4
    for i in range(4): k.e(f"v_mov_b32 v{ONES+i}, 0x3f803f80")
    k.e(f"""s_lshl_b32 s{S_T}, s{S_WN}, 1
    s_add_u32 s{S_T}, s{S_T}, s{S_WM}
    s_lshl_b32 s{S_T+1}, s{S_N}, 2
    s_add_u32 s{S_T}, s{S_T}, s{S_T+1}
    s_lshl_b32 s{S_T+2}, s{S_T}, 15
    s_lshl_b32 s{S_T+1}, s{S_M}, 9
    s_add_u32 s{S_T+2}, s{S_T+2}, s{S_T+1}
    s_add_u32 s{S_T+2}, s{S_T+2}, {WS_KVP}
    s_add_u32 s{S_T+3}, s{S_T+2}, 16384
    s_lshl_b32 s{S_T+4}, s{S_T}, 10
    s_lshl_b32 s{S_T+1}, s{S_M}, 4
    s_add_u32 s{S_T+4}, s{S_T+4}, s{S_T+1}
    s_add_u32 s{S_T+4}, s{S_T+4}, {WS_ZP}
    s_lshl_b32 s{S_T}, s{S_N}, 1
    s_add_u32 s{S_T}, s{S_T}, s{S_WN}
    s_lshl_b32 s{S_T+12}, s{S_M}, 2
    s_lshl_b32 s{S_T+1}, s{S_WM}, 1
    s_add_u32 s{S_T+12}, s{S_T+12}, s{S_T+1}
    s_lshl_b32 s{S_T+12}, s{S_T+12}, 16
    s_lshl_b32 s{S_T+1}, s{S_T}, 11
    s_add_u32 s{S_T+12}, s{S_T+12}, s{S_T+1}
    s_add_u32 s{S_T+12}, s{S_T+12}, {WS_O}
    s_add_u32 s{S_T+13}, s{S_T+12}, 65536""")
    warm(k, 0)
    k.e("s_barrier")
    stamp(k, 1)
    K0,K1,V0,V1,Q0,Q1 = 64,80,96,112,128,144
    WP=224; ST=232; KB=24; VB=40; PK=160; NM=192; RSD=208; CK=160; CV=2
    tl = [f"ds_read2_b32 v[{ST+2*t}:{ST+2*t+1}], v{aXS} offset0:{16*t} offset1:{128+16*t}" for t in range(4)]
    tl += [f"ds_read_b128 v[{CK+4*fh}:{CK+4*fh+3}], v{aCQ} offset:{128+64*fh}" for fh in range(2)]
    tl += [f"ds_read_b64_tr_b16 v[{WP+4*cc+2*rd}:{WP+4*cc+2*rd+1}], v{aWP} offset:{cc*1024+rd*256}" for cc in range(2) for rd in range(2)]
    tl += [f"ds_read2_b32 v[{CV}:{CV+1}], v{aCV} offset0:64 offset1:80"]
    C.first_reads(); C.loop4(5, 0); C.loop(1, next_cons=False, tail=tl, slot=0)
    stamp(k, 2)
    k.e("s_waitcnt lgkmcnt(5)")
    for t in range(4):
        k.e(f"ds_read_b128 v[{NM+4*t}:{NM+3+4*t}], v{aVS} offset:{64*t}\nds_read_b128 v[{RSD+4*t}:{RSD+3+4*t}], v{aVS} offset:{512+64*t}")
    def corrT(a, cs, st, t):
        for fh in range(2):
            P = [(a+8*fh+4*sh+2*i, cs+4*fh+2*i, ST+2*(2*st+sh), t+4*sh+2*i) for sh in range(2) for i in range(2)]
            for y, c_, s_, p in P: k.e(f"v_pk_mul_f32 v[{p}:{p+1}], v[{c_}:{c_+1}], v[{s_}:{s_+1}] op_sel_hi:[1,0]")
            for y, c_, s_, p in P: k.e(f"v_pk_fma_f32 v[{y}:{y+1}], v[{y}:{y+1}], v[{s_}:{s_+1}], v[{p}:{p+1}] op_sel:[0,1,0] op_sel_hi:[1,1,1]")
    def corrN(a, st, t):
        for sh in range(2):
            P = [(a+8*sh+4*dh+2*i, 4*(2*st+sh)+2*i, dh, t+4*dh+2*i) for dh in range(2) for i in range(2)]
            for y, o_, dh, p in P: k.e(f"v_pk_mul_f32 v[{p}:{p+1}], v[{NM+o_}:{NM+o_+1}], v[{CV}:{CV+1}] op_sel:[0,{dh}] op_sel_hi:[1,{dh}]")
            for y, o_, dh, p in P: k.e(f"v_pk_fma_f32 v[{y}:{y+1}], v[{y}:{y+1}], v[{RSD+o_}:{RSD+o_+1}], v[{p}:{p+1}]")
    def pmf(P, B, st):
        k.e(f"{MF} v[{P+16*st}:{P+16*st+15}], v[{WP}:{WP+3}], v[{B+8*st}:{B+8*st+3}], 0")
        k.e(f"{MF} v[{P+16*st}:{P+16*st+15}], v[{WP+4}:{WP+7}], v[{B+8*st+4}:{B+8*st+7}], v[{P+16*st}:{P+16*st+15}]")
    corrT(K0, CK, 0, 16); corrT(K1, CK, 1, 16)
    pack32(k, KB, K0); pack32(k, KB+8, K1)
    k.e("s_waitcnt lgkmcnt(0)")
    pmf(PK, KB, 0); pmf(PK, KB, 1)
    corrN(V0, 0, 16); corrN(V1, 1, 16)
    pack32(k, VB, V0); pack32(k, VB+8, V1)
    CK = 192
    EP=64; EN=80; T=56
    def wr(st, O, nb): return [f"ds_write_b128 v{aPW+hh}, v[{O+4*hh}:{O+4*hh+3}] offset:{st*4096+nb*2048+hh*1024}" for hh in range(2)]
    inj = [f"ds_write_b128 v{aVW}, v[{VB+4*i}:{VB+4*i+3}] offset:{i*1024}" for i in range(4)]
    inj += [f"ds_read_b128 v[{CK+4*fh}:{CK+4*fh+3}], v{aCQ} offset:{64*fh}" for fh in range(2)]
    softmax_pm(k, PK, EP, EN, T, 96, 104, inject=inj, wpos=wr(0, 96, 0), wneg=wr(0, 104, 1))
    softmax_pm(k, PK+16, EP, EN, T, 112, 120, wpos=wr(1, 112, 0), wneg=wr(1, 120, 1))
    k.e("s_waitcnt lgkmcnt(0)\ns_barrier")
    stamp(k, 3)
    AF=64; VF_=96; KV=160; ZZ=176
    def rdkc(kc):
        off = (kc>>1)*4096 + (kc&1)*256
        k.e(f"""ds_read_b64_tr_b16 v[{AF+4*kc}:{AF+4*kc+1}], v{aPR} offset:{off}
        ds_read_b64_tr_b16 v[{AF+4*kc+2}:{AF+4*kc+3}], v{aPR+1} offset:{off}
        ds_read_b128 v[{VF_+4*kc}:{VF_+4*kc+3}], v{aVX} offset:{kc*1024}""")
    for kc in range(5): rdkc(kc)
    for kc in range(8):
        k.e(f"s_waitcnt lgkmcnt({3*(min(kc+5, 8)-kc-1)})")
        k.e(f"{MF} v[{KV}:{KV+15}], v[{AF+4*kc}:{AF+4*kc+3}], v[{VF_+4*kc}:{VF_+4*kc+3}], {'0' if kc==0 else f'v[{KV}:{KV+15}]'}")
        if kc+5 < 8: rdkc(kc+5)
    for kc in range(8):
        k.e(f"{MF} v[{ZZ}:{ZZ+15}], v[{AF+4*kc}:{AF+4*kc+3}], v[{ONES}:{ONES+3}], {'0' if kc==0 else f'v[{ZZ}:{ZZ+15}]'}")
        if kc == 2:
            k.e("s_nop 7\ns_nop 1")
            for i in range(4): k.e(f"v_cvt_pk_bf16_f32 v{212+i}, v{KV+2*i}, v{KV+2*i+1}")
            k.e(f"buffer_store_dwordx4 v[212:215], v14, {W}, s{S_T+2} offen sc1")
        if kc == 3:
            for i in range(4, 8): k.e(f"v_cvt_pk_bf16_f32 v{212+i}, v{KV+2*i}, v{KV+2*i+1}")
            k.e(f"buffer_store_dwordx4 v[216:219], v14, {W}, s{S_T+3} offen sc1")
    k.e("s_barrier")
    k.e("s_nop 7\ns_nop 2")
    cvt16(k, 16, ZZ)
    k.e(f"""s_mov_b32 exec_lo, 1
    s_mov_b32 exec_hi, 1
    buffer_store_dwordx4 v[16:19], v251, {W}, s{S_T+4} offen sc1
    buffer_store_dwordx4 v[20:23], v251, {W}, s{S_T+4} offen offset:512 sc1
    s_mov_b64 exec, -1""")
    stamp(k, 4)
    QB=32; PQ=160
    def p25_addr():
        tile_map(k, 4, 8, 16)
        k.e(f"""s_lshl_b32 s{S_T}, s{S_M}, 2
        s_add_u32 s{S_T}, s{S_T}, s{S_WAVE}
        s_lshl_b32 s{S_T+1}, s{S_T}, 16
        s_lshl_b32 s{S_T+2}, s{S_N}, 7
        s_add_u32 s{S_T+2}, s{S_T+2}, s{S_T+1}
        v_and_b32 v4, 31, v1
        v_lshlrev_b32 v14, 11, v4
        v_lshrrev_b32 v5, 5, v1
        v_lshl_add_u32 v14, v5, 4, v14
        v_add_u32 v14, s{S_T+2}, v14""")
    corrT(Q0, CK, 0, 48); corrT(Q1, CK, 1, 48)
    pack32(k, QB, Q0); pack32(k, QB+8, Q1)
    pmf(PQ, QB, 0); pmf(PQ, QB, 1)
    p25_addr()
    RS = 224
    for i in range(4): k.e(f"buffer_load_dwordx4 v[{RS+4*i}:{RS+4*i+3}], v14, {srd(SRD_B)}, 0 offen offset:{32*i}")
    k.e(f"""s_lshl_b32 s{S_T+2}, s{S_N}, 12
    s_add_u32 s{S_T+2}, s{S_T+2}, s{S_T+1}
    s_add_u32 s{S_T+2}, s{S_T+2}, {WS_H}
    v_add_u32 v7, s{S_T+2}, v{L16}
    s_lshl_b32 s{S_T}, s{S_T}, 8
    s_lshl_b32 s{S_T+1}, s{S_N}, 14
    s_add_u32 s{S_T}, s{S_T}, s{S_T+1}
    s_add_u32 s{S_T}, s{S_T}, {WS_HST}
    v_lshlrev_b32 v9, 3, v4
    v_add_u32 v9, s{S_T}, v9
    s_lshl_b32 s{S_T}, s{S_WN}, 12
    v_add_u32 v2, s{S_T}, v{L16}
    s_lshl_b32 s{S_T}, s{S_WN}, 7
    v_add_u32 v3, s{S_T}, v252""")
    PH=128; KF=16; ZF=32; NUM=96; DEN=192
    softmax_pm(k, PQ, EP, EN, T, PH, PH+8)
    softmax_pm(k, PQ+16, EP, EN, T, PH+16, PH+24)
    def res_init():
        for j in range(4):
            for x in swaps(RS+4*j): k.e(x)
        for i in range(16): unpack(k, 64+2*i, 65+2*i, RS+i)
    R25 = regs([8], [10, 11, 12, 13], 64)
    consumer_addr(k, c2, R25, t=48)
    k.e("s_waitcnt vmcnt(0)")
    res_init()
    stamp(k, 21)
    warm(k, 1); grp(k, 1)
    k.e("s_barrier")
    stamp(k, 5)
    for i in range(4): k.e(f"ds_read_b128 v[{ZF+4*i}:{ZF+4*i+3}], v3 offset:{L_Z+i*32}")
    for i in range(4): k.e(f"ds_read_b128 v[{KF+4*i}:{KF+4*i+3}], v2 offset:{L_KV+i*1024}")
    for st in range(2):
        for A_, D_ in ((ZF, DEN), (KF, NUM)):
            if st == 0: k.e(f"s_waitcnt lgkmcnt({4 if A_ == ZF else 0})")
            for i in range(4):
                b = PH+16*st+4*i
                k.e(f"{MF} v[{D_+16*st}:{D_+16*st+15}], v[{A_+4*i}:{A_+4*i+3}], v[{b}:{b+3}], {'0' if i==0 else f'v[{D_+16*st}:{D_+16*st+15}]'}")
    k.e("s_nop 0")
    for st in range(2):
        d = DEN+16*st; n = NUM+16*st; o = 160+8*st
        k.e(f"v_add_f32 v{d}, {f2u(1e-6)}, v{d}\nv_rcp_f32 v{d}, v{d}\ns_nop 0")
        for hh in range(2):
            for i in range(4*hh, 4*hh+4): k.e(f"v_pk_mul_f32 v[{n+2*i}:{n+2*i+1}], v[{n+2*i}:{n+2*i+1}], v[{d}:{d+1}] op_sel_hi:[1,0]")
            for i in range(4*hh, 4*hh+4): k.e(f"v_cvt_pk_bf16_f32 v{o+i}, v{n+2*i}, v{n+2*i+1}")
            k.e(f"buffer_store_dwordx4 v[{o+4*hh}:{o+4*hh+3}], v{L16}, {W}, s{S_T+12+st} offen offset:{1024*hh} sc1")
    C = Cons(k, c2, R25)
    k.e("s_waitcnt vmcnt(0)\ns_barrier")
    stamp(k, 6)
    warm(k, 2)
    k.e("s_barrier\ns_barrier")
    stamp(k, 7)
    if OPT.st4 & 1:
        C.first_reads(); C.loopu(5, 3); C.loop(1, next_cons=False)
    else:
        C.first_reads(); C.loop(15); C.loop(1, next_cons=False)
    stamp(k, 8)
    A = 64
    def out4(dst, store):
        k.e("s_nop 1")
        for i in range(4): k.e(f"v_cvt_pk_bf16_f32 v{dst+i}, v{A+2*i}, v{A+2*i+1}")
        for j in range(4):
            if j < 3:
                for i in range(4*j+4, 4*j+8): k.e(f"v_cvt_pk_bf16_f32 v{dst+i}, v{A+2*i}, v{A+2*i+1}")
            for x in swaps(dst+4*j): k.e(x)
            k.e(store(dst+4*j, j))
    out4(RS, lambda r, j: f"buffer_store_dwordx4 v[{r}:{r+3}], v7, {W}, 0 offen offset:{1024*j} sc1")
    for i in range(16): unpack(k, A+2*i, A+2*i+1, RS+i)
    k.e(f"v_pk_add_f32 v[20:21], v[{A}:{A+1}], v[{A+2}:{A+3}]\nv_pk_add_f32 v[22:23], v[{A+4}:{A+5}], v[{A+6}:{A+7}]")
    for i in range(4, 16):
        t = 20 + 2*(i & 1); k.e(f"v_pk_add_f32 v[{t}:{t+1}], v[{t}:{t+1}], v[{A+2*i}:{A+2*i+1}]")
    k.e("v_pk_add_f32 v[20:21], v[20:21], v[22:23]\nv_add_f32 v20, v20, v21")
    xswap_sum1(k, 20, 21)
    k.e(f"v_mul_f32 v20, {f2u(1/64.)}, v20")
    for i in range(16):
        k.e(f"v_pk_add_f32 v[{A+2*i}:{A+2*i+1}], v[{A+2*i}:{A+2*i+1}], v[20:21] op_sel_hi:[1,0] neg_lo:[0,1] neg_hi:[0,1]")
    k.e(f"v_pk_mul_f32 v[22:23], v[{A}:{A+1}], v[{A}:{A+1}]\nv_pk_mul_f32 v[24:25], v[{A+2}:{A+3}], v[{A+2}:{A+3}]")
    for i in range(2, 16):
        t = 22 + 2*(i & 1); k.e(f"v_pk_fma_f32 v[{t}:{t+1}], v[{A+2*i}:{A+2*i+1}], v[{A+2*i}:{A+2*i+1}], v[{t}:{t+1}]")
    k.e("v_pk_add_f32 v[22:23], v[22:23], v[24:25]\nv_add_f32 v22, v22, v23")
    xswap_sum1(k, 22, 23)
    k.e(f"""v_mov_b32 v21, v22
    s_mov_b32 exec_hi, 0
    buffer_store_dwordx2 v[20:21], v9, {W}, 0 offen sc1
    s_mov_b32 exec_hi, -1
    s_waitcnt vmcnt(1)
    s_barrier""")
    stamp(k, 9)
    k.e("s_cmp_ge_u32 s2, 224\ns_cbranch_scc1 L_c_helper")
    k.e("L_c_p3:")
    tile_map(k, 4, 7, 14)
    Ra = regs([2], [3, 4, 5, 6], 128); Rb = regs([2], [3, 4, 5, 6], 64); R4 = regs([8, 9], [10, 11], 128)
    Ca = Cons(k, c3, Ra); Cb = Cons(k, c3, Rb); C4 = Cons(k, c4, R4)
    consumer_addr(k, c3, Ra, t=32, slot=0); consumer_addr(k, c4, R4, slot=0, t=32, setslot=False)
    Ca.zero(); Cb.zero()
    mk_srd(k, SRD_A, P_BSP, 4096)
    aCS=7; aZN=12; aHS=13; aZS=14; aZP=252; CS=192; HS=208; BB=240; ZS=244
    k.e(f"""v_and_b32 v32, 15, v1
    v_lshlrev_b32 v33, 1, v32
    s_lshl_b32 s{S_T+2}, s{S_M}, 8
    s_lshl_b32 s{S_T+3}, s{S_WM}, 7
    s_add_u32 s{S_T+2}, s{S_T+2}, s{S_T+3}""")
    for t in range(4): k.e(f"buffer_load_ushort v{BB+t}, v33, {srd(SRD_A)}, s{S_T+2} offen offset:{32*t}")
    k.e(f"""s_lshl_b32 s{S_T}, s{S_WM}, 6
    v_add_u32 v32, s{S_T}, v32
    v_lshlrev_b32 v{aZS}, 3, v32
    v_add_u32 v{aZS}, {L_ZS}, v{aZS}
    v_lshlrev_b32 v{aHS}, 4, v32
    v_add_u32 v{aHS}, {L_HS}, v{aHS}
    v_lshrrev_b32 v34, 4, v1
    s_lshl_b32 s{S_T}, s{S_WN}, 8
    s_add_u32 s{S_T}, s{S_T}, {L_CS}
    v_lshl_add_u32 v{aCS}, v34, 4, s{S_T}
    v_lshrrev_b32 v34, 5, v1
    v_lshlrev_b32 v34, 6, v34
    v_xor_b32 v{aZN}, v34, v{L16}
    s_lshl_b32 s{S_T}, s{S_WM}, 9
    s_lshl_b32 s{S_T+1}, s{S_WN}, 10
    s_add_u32 s{S_T}, s{S_T}, s{S_T+1}
    s_add_u32 s{S_T}, s{S_T}, {L_ZP}
    v_lshl_add_u32 v{aZP}, v1, 3, s{S_T}
    s_lshl_b32 s{S_T+12}, s{S_N}, 19
    s_lshl_b32 s{S_T+1}, s{S_M}, 15
    s_add_u32 s{S_T+12}, s{S_T+12}, s{S_T+1}
    s_lshl_b32 s{S_T+1}, s{S_WM}, 14
    s_add_u32 s{S_T+12}, s{S_T+12}, s{S_T+1}
    s_lshl_b32 s{S_T+1}, s{S_WN}, 12
    s_add_u32 s{S_T+12}, s{S_T+12}, s{S_T+1}
    s_add_u32 s{S_T+12}, s{S_T+12}, {WS_Z2N}
    s_add_u32 s{S_T+13}, s{S_T+12}, 8192
    s_lshl_b32 s{S_T}, s{S_M}, 2
    s_lshl_b32 s{S_T+1}, s{S_WM}, 1
    s_add_u32 s{S_T}, s{S_T}, s{S_T+1}
    s_mul_i32 s{S_T}, s{S_T}, 112
    s_lshl_b32 s{S_T+1}, s{S_N}, 3
    s_add_u32 s{S_T}, s{S_T}, s{S_T+1}
    s_lshl_b32 s{S_T+1}, s{S_WN}, 2
    s_add_u32 s{S_T}, s{S_T}, s{S_T+1}
    s_lshl_b32 s{S_T}, s{S_T}, 10
    s_add_u32 s{S_T+14}, s{S_T}, {WS_U}
    s_add_u32 s{S_T+15}, s{S_T+14}, {112*1024}""")
    warm(k, 3)
    k.e("s_barrier\ns_waitcnt vmcnt(4)\ns_barrier")
    stamp(k, 10)
    rcs = lambda half: [f"ds_read_b128 v[{CS+4*f}:{CS+4*f+3}], v{aCS} offset:{half*512 + f*64}" for f in range(4)]
    rhs = [f"ds_read_b128 v[{HS+4*t}:{HS+4*t+3}], v{aHS} offset:{t*256}" for t in range(4)]
    Ca.first_reads_static(2); Ca.loop4(3, 2)
    for j in range(3): Ca.loop(1, slot=(2+j) % 4)
    Ca.loop(1, next_cons=False, tail=rhs+rcs(1), slot=1)
    stamp(k, 11)
    k.e("s_waitcnt lgkmcnt(0)")
    Cb.first_reads_static(2)
    gelu_quads(k, [(Ca.sub(t, f), CS+4*f, HS+4*t) for f in range(4) for t in Ca.order(f)], 32)
    for x in rcs(0): k.e(x)
    SM = 40
    for t in range(4):
        ys = [Ca.sub(t, f)+2*i for f in range(4) for i in range(2)]
        p = 32+2*(t & 1)*2
        k.e(f"v_pk_add_f32 v[{p}:{p+1}], v[{ys[0]}:{ys[0]+1}], v[{ys[1]}:{ys[1]+1}]\nv_pk_add_f32 v[{p+2}:{p+3}], v[{ys[2]}:{ys[2]+1}], v[{ys[3]}:{ys[3]+1}]")
        for i in range(4, 8):
            q_ = p+2*(i & 1); k.e(f"v_pk_add_f32 v[{q_}:{q_+1}], v[{q_}:{q_+1}], v[{ys[i]}:{ys[i]+1}]")
        k.e(f"v_pk_add_f32 v[{p}:{p+1}], v[{p}:{p+1}], v[{p+2}:{p+3}]\nv_add_f32 v{SM+t}, v{p}, v{p+1}")
    treduce(k, SM)
    k.e(f"""v_mul_f32 v{ZS}, {f2u(1/64.)}, v{SM}
    v_mov_b32 v44, v{ZS}
    v_mov_b32 v45, v{ZS}
    s_nop 1
    v_permlane16_swap_b32 v44, v45
    v_mov_b32 v46, v44
    v_mov_b32 v47, v45
    s_nop 1
    v_permlane32_swap_b32 v44, v46
    v_permlane32_swap_b32 v45, v47""")
    for t in range(4):
        ys = [Ca.sub(t, f)+2*i for f in range(4) for i in range(2)]
        m = 44 + (t & 2); sel = "op_sel_hi:[1,0]" if t & 1 == 0 else "op_sel:[0,1] op_sel_hi:[1,1]"
        for i, y in enumerate(ys):
            d = 36+2*(i & 1); u = 32+2*(i & 1)
            k.e(f"v_pk_add_f32 v[{d}:{d+1}], v[{y}:{y+1}], v[{m}:{m+1}] {sel} neg_lo:[0,1] neg_hi:[0,1]")
            k.e(f"v_pk_mul_f32 v[{u}:{u+1}], v[{d}:{d+1}], v[{d}:{d+1}]" if i < 2 else f"v_pk_fma_f32 v[{u}:{u+1}], v[{d}:{d+1}], v[{d}:{d+1}], v[{u}:{u+1}]")
        k.e(f"v_pk_add_f32 v[32:33], v[32:33], v[34:35]\nv_add_f32 v{SM+t}, v32, v33")
    treduce(k, SM)
    k.e(f"v_mov_b32 v{ZS+1}, v{SM}\nds_write_b64 v{aZP}, v[{ZS}:{ZS+1}]\ns_waitcnt lgkmcnt(0)")
    if OPT.gb: k.e("s_barrier")
    grp(k, 2)
    stamp(k, 12)
    g = OPT.gat
    n1 = g+1+OPT.zsp-16+1
    def norm_tile(st, ft):
        a = Ca.acc(st, ft); L = []
        for fh in range(2):
            for sh in range(2):
                s = ZS+2*(2*st+sh)
                L += [f"v_fma_f32 v{a+8*fh+4*sh+i}, v{a+8*fh+4*sh+i}, v{s+1}, v{s}" for i in range(4)]
        L += [f"v_cvt_pk_bf16_f32 v{a+8*fh+i}, v{a+8*fh+2*i}, v{a+8*fh+2*i+1}" for fh in range(2) for i in range(4)]
        for fh in range(2):
            L += swaps(a+8*fh)
            L += [f"buffer_store_dwordx4 v[{a+8*fh}:{a+8*fh+3}], v{aZN}, {W}, s{S_T+12+st} offen offset:{ft*2048+fh*1024} sc1"]
        return L
    NL = sum((norm_tile(st, ft) for st in range(2) for ft in range(2)), [])
    nf = OPT.nst
    zl = [f"v_lshlrev_b32 v{C4.sub(t, f)+i}, 16, v{BB+t}" for f in range(4) for t in range(4) for i in range(4)]
    vm = n1+nf+OPT.vmd
    nz = 15-vm
    rz = [f"ds_read_b64 v[{ZS+2*t}:{ZS+2*t+1}], v{aZS} offset:{t*128}" for t in range(4)]
    for j in range(16):
        kw = dict(slot=(2+j) % 4)
        if j == n1-1: kw['tail'] = rz
        if j == n1:
            k.e("s_waitcnt lgkmcnt(4)"); stamp(k, 13)
            if OPT.nprio: k.e("s_setprio 3")
            if nf == 0:
                pend = []
                for st in range(2):
                    for f in range(4):
                        a = Ca.acc(st, f >> 1) + 8*(f & 1)
                        for i in range(4):
                            s_ = ZS+2*(2*st+(i >> 1))
                            k.e(f"v_pk_fma_f32 v[{a+2*i}:{a+2*i+1}], v[{a+2*i}:{a+2*i+1}], v[{s_}:{s_+1}], v[{s_}:{s_+1}] op_sel:[0,1,0] op_sel_hi:[1,1,0]")
                        for x in pend: k.e(x)
                        for i in range(4): k.e(f"v_cvt_pk_bf16_f32 v{a+i}, v{a+2*i}, v{a+2*i+1}")
                        pend = swaps(a) + [f"buffer_store_dwordx4 v[{a}:{a+3}], v{aZN}, {W}, s{S_T+12+st} offen offset:{f*1024} sc1"]
                k.e("s_nop 0")
                for x in pend: k.e(x)
        if OPT.nprio and j == n1+nf: k.e("s_setprio 0")
        if n1 <= j < n1+nf: kw['fillers'] = NL[len(NL)*(j-n1)//nf: len(NL)*(j-n1+1)//nf]
        if j == vm: kw['pre_barrier'] = "vm"
        if j > vm: kw['fillers'] = zl[64*(j-vm-1)//nz: 64*(j-vm)//nz]
        if j == 15: kw['next_cons'] = C4; kw['nslot'] = 2
        Cb.loop(1, **kw)
    stamp(k, 14)
    j = 0
    if not OPT.z1fill:
        OPT.dg |= 1
        gelu_quads(k, [(Cb.sub(t, f), CS+4*f, HS+4*t) for f in range(4) for t in Cb.order(f)], 32)
        stamp(k, 15)
    if OPT.p4loop:
        C4.loop4(8, 2); k.e("s_waitcnt lgkmcnt(0)")
    for f in range(0 if OPT.p4loop else 4):
        for t in Cb.order(f):
            for i in range(2):
                C4.loop(1, fillers=(gelu_fill(Cb.sub(t, f)+2*i, CS+4*f+2*i, HS+4*t, 2, ZS) if not OPT.dg & 1 else None), budget=OPT.bud, next_cons=(False if j == 31 else None), slot=(2+j) % 4)
                j += 1
                if j == 18: grp(k, 3)
    stamp(k, 16)
    pend = None
    for f in range(4):
        for st in range(2):
            a = C4.acc(st, f >> 1) + 8*(f & 1); z = Cb.acc(st, f >> 1) + 8*(f & 1); o = 16+4*(f*2+st)
            for i in range(4): k.e(f"v_pk_mul_f32 v[{a+2*i}:{a+2*i+1}], v[{a+2*i}:{a+2*i+1}], v[{z+2*i}:{z+2*i+1}]")
            if pend:
                for x in pend: k.e(x)
            for i in range(4): k.e(f"v_cvt_pk_bf16_f32 v{o+i}, v{a+2*i}, v{a+2*i+1}")
            pend = swaps(o) + [f"buffer_store_dwordx4 v[{o}:{o+3}], v{L16}, {W}, s{S_T+14+st} offen offset:{f*1024} sc1"]
    k.e("s_nop 0")
    for x in pend: k.e(x)
    k.e("s_waitcnt vmcnt(0)\ns_barrier")
    stamp(k, 17)
    k.e("L_c_p5:")
    p25_addr()
    if OPT.sk:
        R5 = regs([8], [10, 11, 12, 13], 96)
        if OPT.bu5: R5.nfr = 80
        C = Cons(k, c5, R5)
        consumer_addr(k, c5, R5, t=48, slot=0)
        A = 128
        for j in range(4):
            for x in swaps(RS+4*j): k.e(x)
        for i in range(16): unpack(k, A+2*i, A+1+2*i, RS+i)
        for i in range(96, 128, 2): k.e(f"v_mov_b64 v[{i}:{i+1}], 0")
        k.e(f"""s_lshl_b32 s{S_T+12}, s2, 2
        s_add_u32 s{S_T+12}, s{S_T+12}, s{S_WAVE}
        s_lshl_b32 s{S_T+12}, s{S_T+12}, 12
        s_xor_b32 s{S_T+13}, s{S_T+12}, 16384
        s_add_u32 s{S_T+12}, s{S_T+12}, {WS_XP}
        s_add_u32 s{S_T+13}, s{S_T+13}, {WS_XP}""")
        mk_srd(k, SRD_B, P_OUT, 4*MB)
        k.e("s_barrier\ns_barrier")
        stamp(k, 18)
        C.first_reads_static(2); C.loop4(3, 2); C.loop(1, slot=2)
        snd = []
        for j in range(4):
            snd += [f"v_cvt_pk_bf16_f32 v{176+i}, v{96+2*i}, v{97+2*i}" for i in range(4*j, 4*j+4)]
            snd += [f"buffer_store_dwordx4 v[{176+4*j}:{179+4*j}], v{L16}, {W}, s{S_T+12} offen offset:{1024*j} sc1"]
        if OPT.jo:
            C.loop(1, slot=3, next_cons=False, fillers=snd + ["PAD"]*OPT.jpad, fstart=15, budget=12)
        else:
            C.loop(1, slot=3, next_cons=False)
            for x in snd: k.e(x)
        stamp(k, 19)
        if OPT.xslp: k.e(f"s_sleep {OPT.xslp}")
        def xg():
            for j in range(4): k.e(f"buffer_load_dwordx4 v[{80+4*j}:{83+4*j}], v{L16}, {W}, s{S_T+13} offen offset:{1024*j} sc1")
        validated(k, xg, range(80, 96), 2, pre=False)
        stamp(k, 22)
        pend = []
        for j in range(4):
            acc_bf16(k, A+8*j, 80+4*j, 4, False, 16)
            for x in pend: k.e(x)
            for i in range(4): k.e(f"v_cvt_pk_bf16_f32 v{160+4*j+i}, v{A+8*j+2*i}, v{A+8*j+2*i+1}")
            pend = swaps(160+4*j) + [f"buffer_store_dwordx4 v[{160+4*j}:{163+4*j}], v14, {srd(SRD_B)}, 0 offen offset:{32*j}"]
        k.e("s_nop 0")
        for x in pend: k.e(x)
    else:
        C = Cons(k, c5, R25)
        consumer_addr(k, c5, R25, t=48, slot=(0 if OPT.st4 & 4 else None))
        res_init()
        mk_srd(k, SRD_B, P_OUT, 4*MB)
        k.e("s_barrier\ns_barrier")
        stamp(k, 18)
        if OPT.st4 & 4:
            C.first_reads_static(2); C.loop4(7, 2); k.e("s_waitcnt lgkmcnt(0)")
        else:
            C.first_reads(); C.loop(27); C.loop(1, next_cons=False)
        stamp(k, 19)
        out4(96, lambda r, j: f"buffer_store_dwordx4 v[{r}:{r+3}], v14, {srd(SRD_B)}, 0 offen offset:{32*j}")
    k.e("s_branch L_fin")
    k.e("L_c_helper:")
    k.e("s_barrier")
    helper_pf(k, 'c')
    stamp(k, 17)
    k.e("s_branch L_c_p5")

def place_pads(k):
    import subprocess, re, tempfile, os
    L = [x.strip() for x in k.L]
    isins = lambda x: not (x.endswith(":") or x.startswith(".") or x.startswith(("WARM", "ALIGN4K", "GRP")))
    txt = '.amdgcn_target "amdgcn-amd-amdhsa--gfx950"\n.text\n' + KNAME + ":\n" + "\n".join(x for x in L if isins(x) or x.endswith(":")) + "\n"
    d = tempfile.mkdtemp(); open(d+"/a.s", "w").write(txt)
    subprocess.run(["clang", "-x", "assembler", "-target", "amdgcn-amd-amdhsa", "-mcpu=gfx950", "-c", d+"/a.s", "-o", d+"/a.o"], check=True)
    dis = subprocess.run(["llvm-objdump", "-d", "--mcpu=gfx950", d+"/a.o"], capture_output=True, text=True).stdout
    sizes = [4*len(m.group(1).split()) for m in re.finditer(r"// [0-9A-F]{12}: ((?:[0-9A-F]{8} ?)+)", dis)]
    assert len(sizes) == sum(map(isins, L)), (len(sizes), sum(map(isins, L)))
    out = []; off = None; it = iter(sizes); nextpage = 0; pads = [[] for _ in NWARM]; grp = 0; inwarm = False
    for x in L:
        if x == "ALIGN4K":
            out.append(".p2align 12"); off = 0; continue
        if x.startswith("GRP"):
            grp = int(x.split()[1]); continue
        if x == "s_mov_b64 exec, 0": inwarm = True
        if off is not None and off >= nextpage and not inwarm and (isins(x) or x.startswith(".p2align")):
            n = sum(map(len, pads)); pads[grp].append(n)
            out.append(f"L_pad{n}:"); out.append(f"s_cbranch_execz L_padr{n}"); off += 4; nextpage += 4096
        if x == "s_mov_b64 exec, -1": inwarm = False
        out.append(x)
        if isins(x):
            sz = next(it)
            if off is not None: off += sz
        elif x.startswith("WARM"): off += 12
        elif x.startswith(".p2align") and off is not None:
            a = 1 << int(x.split()[1]); off = (off + a-1)//a*a
    fin = []
    for x in out:
        if x.startswith("WARM"):
            g, i = map(int, x.split()[1:])
            if i < len(pads[g]):
                n = pads[g][i]
                fin += [f"s_cmp_lg_u32 s{S_WAVE}, {i % 4}", f"s_cbranch_scc1 L_padr{n}", f"s_branch L_pad{n}", f"L_padr{n}:"]
            else: fin += ["s_nop 0"]*3
        else: fin.append(x)
    assert all(len(p) <= n for p, n in zip(pads, NWARM)), pads
    print('pads', pads, file=sys.stderr)
    k.L = [("" if x.endswith(":") else "    ") + x for x in fin]

def build():
    k = Kern("p")
    if OPT.probe: k.e("s_memrealtime s[94:95]")
    k.e("s_cmp_ge_u32 s2, 256\ns_cbranch_scc1 L_end")
    k.e("s_load_dwordx16 s[32:47], s[0:1], 0\ns_load_dwordx8 s[48:55], s[0:1], 64")
    k.e(f"v_lshrrev_b32 v2, 6, v0\nv_and_b32 v1, 63, v0\nv_readfirstlane_b32 s{S_WAVE}, v2")
    if OPT.stamps: k.e("v_mov_b32 v255, 0\nv_mov_b32 v254, 0\nv_mov_b32 v253, 0\ns_mov_b32 s97, 0")
    import core4; core4.DG[0] = OPT.dg
    ITST[0] = max(OPT.stamps - 1, 0); ITST[1] = 254; CAP[0] = OPT.cap
    tile_map(k, 8, 4, 16)
    k.e(f"s_cmp_lt_u32 s{S_WAVE}, 4\ns_cbranch_scc1 L_cons")
    if OPT.spq < 0:
        k.e(f"s_and_b32 s93, s{S_M}, 7\ns_mul_i32 s93, s93, {OPT.qm}\ns_lshr_b32 s93, s93, 3\ns_add_u32 s93, s93, {OPT.q0}")
    k.e(f"s_and_b32 s{S_LW}, s{S_WAVE}, 1\ns_sub_u32 s{S_Q}, s{S_WAVE}, 4\ns_cmp_ge_u32 s{S_WAVE}, 6\ns_cbranch_scc1 L_aux")
    if OPT.pl: k.e(f"s_setprio {OPT.pl}")
    loader(k)
    k.e("L_aux:")
    grp(k, 0)
    if OPT.pa: k.e(f"s_setprio {OPT.pa}")
    aux(k)
    k.e("L_cons:")
    grp(k, 0)
    if OPT.pc: k.e(f"s_setprio {OPT.pc}")
    consumer(k)
    k.e("L_fin:")
    if OPT.stamps:
        k.e("s_waitcnt vmcnt(0)")
        stamp(k, 20)
        mk_srd(k, SRD_D, P_WS, 2*MB, WS_END)
        k.e(f"""s_lshl_b32 s{S_T}, s2, 3
        s_add_u32 s{S_T}, s{S_T}, s{S_WAVE}
        s_lshl_b32 s{S_T}, s{S_T}, 8
        v_lshlrev_b32 v2, 2, v1
        buffer_store_dword v255, v2, {srd(SRD_D)}, s{S_T} offen
        s_add_u32 s{S_T}, s{S_T}, 0x80000
        buffer_store_dword v254, v2, {srd(SRD_D)}, s{S_T} offen
        s_add_u32 s{S_T}, s{S_T}, 0x80000
        buffer_store_dword v253, v2, {srd(SRD_D)}, s{S_T} offen""")
    if OPT.probe:
        k.e(f"s_cmp_lg_u32 s{S_WAVE}, {OPT.pwave}\ns_cbranch_scc1 L_end\ns_cmp_ge_u32 s2, 224\ns_cbranch_scc1 L_end")
        if OPT.pwg >= 0: k.e(f"s_cmp_lg_u32 s2, {OPT.pwg}\ns_cbranch_scc1 L_end")
        k.e(f"v_writelane_b32 v255, s94, 31\ns_nop 1")
        k.e(f"v_readlane_b32 s{S_T}, v255, {OPT.probe}\nv_readlane_b32 s{S_T+1}, v255, {OPT.pfrom}\ns_nop 3\ns_sub_u32 s{S_T}, s{S_T}, s{S_T+1}\ns_mul_i32 s{S_T}, s{S_T}, 10\ns_add_u32 s{S_T}, s{S_T}, s94\ns_add_u32 s{S_T}, s{S_T}, 10000\nL_spin:\ns_memrealtime s[{S_ST}:{S_ST+1}]\ns_waitcnt lgkmcnt(0)\ns_sub_u32 s{S_T+1}, s{S_ST}, s{S_T}\ns_cmp_lt_i32 s{S_T+1}, 0\ns_cbranch_scc1 L_spin")
    k.e("L_end:\ns_endpgm")
    if OPT.pads: place_pads(k)
    out = [f"; @launch grid=(256,1,1) block=(512,1,1) lds={163840 if OPT.sk else L_END}",
           '.amdgcn_target "amdgcn-amd-amdhsa--gfx950"\n.text', header(KNAME) + k.text(), '.section .rodata,"a"', descriptor(KNAME, 256, 100)]
    return "\n".join(out)

if __name__ == "__main__":
    for a in sys.argv[2:]:
        kk, v = a.split("="); setattr(OPT, kk, int(v))
    open(sys.argv[1], "w").write(build())
```

```python
import math
from core import Kern, header, descriptor, vr, sr, srd, Regs, tr_lane_base, blk_tr_base

S_WAVE=3; S_M=4; S_N=5; S_PH=6; S_T0=7
SRD_S=8; SRD_F=12; SRD_A=16; SRD_B=20; SRD_W=24; SRD_D=28
P0=32
S_T=56
S_WM=72; S_WN=73; S_LW=74; S_KB=75
S_X=76
S_CNT=80; S_SLOT=81; S_DS=82; S_DF=83; S_OS=84; S_OF=85; S_M0W=86; S_TAU=87
S_K=88
S_FB=96
S_ST=98

def ptr(i): return P0 + 2*i

def mk_srd(k, d, p, nbytes, off=0):
    if off:
        k.e(f"s_add_u32 s{d}, s{ptr(p)}, {off}\ns_addc_u32 s{d+1}, s{ptr(p)+1}, 0")
    else:
        k.e(f"s_mov_b32 s{d}, s{ptr(p)}\ns_mov_b32 s{d+1}, s{ptr(p)+1}")
    k.e(f"s_mov_b32 s{d+2}, {nbytes}\ns_mov_b32 s{d+3}, 0x20000")

class Cfg:
    def __init__(self, BM, BN, T, NS, WM, WN, U, strideS, strideF, ftiles, nb_from_wave, panel_from_wave, orient=None,
                 rot=(-1,0,2,-1), pre_mfma=2, smode='rows', fmode='rows', baseS=0, baseF=65536, auxS="", auxF="", kbase=False, slot0=0, own2=False, pb=22, burst=3, cap2=False, old=7, jorder=None, half=0):
        self.BM=BM; self.BN=BN; self.T=T; self.NS=NS; self.WM=WM; self.WN=WN; self.U=U
        self.strideS=strideS; self.strideF=strideF
        self.TM = BM//WM//32
        self.ftiles = ftiles; self.TN = len(ftiles)
        self.nb_from_wave = nb_from_wave; self.panel_from_wave = panel_from_wave
        self.orient = orient or ['T']*self.TN
        self.NP = BN//64
        self.slotS = BM*128; self.slotF = BN*128
        self.nS = BM//16; self.nF = BN//16
        self.nI = self.nS + self.nF
        self.rot = rot; self.pre_mfma = pre_mfma
        self.smode = smode; self.fmode = fmode
        self.baseS = baseS; self.baseF = baseF
        self.auxS = auxS; self.auxF = auxF
        self.slot0 = slot0; self.own2 = own2; self.pb = pb; self.burst = burst; self.cap2 = cap2; self.old = old; self.jorder = jorder; self.half = half
        self.kbase = kbase

def tile_map(k, gm, gn, ntn):
    xn = ntn // gn
    lg = int(math.log2(gm)); lx = int(math.log2(xn))
    k.e(f"""s_and_b32 s{S_T}, s2, 7
    s_lshr_b32 s{S_T+1}, s2, 3
    s_and_b32 s{S_T+2}, s{S_T+1}, {gm-1}
    s_lshr_b32 s{S_T+3}, s{S_T+1}, {lg}
    s_lshr_b32 s{S_M}, s{S_T}, {lx}
    s_mul_i32 s{S_M}, s{S_M}, {gm}
    s_add_u32 s{S_M}, s{S_M}, s{S_T+2}
    s_and_b32 s{S_N}, s{S_T}, {xn-1}
    s_mul_i32 s{S_N}, s{S_N}, {gn}
    s_add_u32 s{S_N}, s{S_N}, s{S_T+3}
    s_add_u32 s{S_PH}, s{S_T+2}, s{S_T+3}""")

def loader_voff_S(k, c, vb):
    w = S_LW
    if c.smode == 'rows':
        k.e(f"""v_lshrrev_b32 v2, 3, v1
        v_and_b32 v4, 7, v1
        s_lshl_b32 s{S_T+6}, s{w}, 3
        v_lshrrev_b32 v3, 4, v1
        s_lshl_b32 s{S_T+5}, s{w}, 2
        v_add_u32 v3, s{S_T+5}, v3
        v_xor_b32 v3, v3, v4
        v_lshlrev_b32 v3, 4, v3
        s_mul_i32 s{S_T+5}, s{S_M}, {c.BM}
        s_add_u32 s{S_T+5}, s{S_T+5}, s{S_T+6}
        v_add_u32 v5, s{S_T+5}, v2
        s_mov_b32 s{S_T+7}, {c.strideS}
        v_mul_lo_u32 v5, v5, s{S_T+7}
        v_add_u32 v{vb}, v5, v3""")
        for i in range(1, c.nS):
            k.e(f"v_add_u32 v{vb+i}, {i*16*c.strideS}, v{vb}")
    else:
        k.e(f"""s_mul_i32 s{S_T+5}, s{S_M}, {c.BM*c.strideS}
        s_add_u32 s{S_T+5}, s{S_T+5}, s{S_M0W}
        v_lshlrev_b32 v3, 4, v1
        v_add_u32 v{vb}, s{S_T+5}, v3""")
        for i in range(1, c.nS):
            k.e(f"v_add_u32 v{vb+i}, {(i>>1)*32*c.strideS + (i&1)*2048}, v{vb}")

def loader_voff_F(k, c, vb, colsg=None, panelconst=None):
    w = S_LW
    if c.fmode == 'rows':
        k.e(f"""v_lshrrev_b32 v2, 3, v1
        v_and_b32 v4, 7, v1
        s_lshl_b32 s{S_T+6}, s{w}, 3
        v_lshrrev_b32 v3, 2, v1
        v_and_b32 v3, 4, v3
        v_xor_b32 v3, v3, v4
        s_lshl_b32 s{S_T+5}, s{w}, 1
        v_xor_b32 v3, s{S_T+5}, v3
        v_lshlrev_b32 v3, 4, v3
        v_add_u32 v5, s{S_T+6}, v2
        s_mov_b32 s{S_T+7}, {c.strideF}
        v_mul_lo_u32 v5, v5, s{S_T+7}
        v_add3_u32 v5, v5, v3, s{colsg}""")
        for i in range(c.nF):
            k.e(f"v_add_u32 v{vb+i}, {panelconst(i>>2) + (i&3)*16*c.strideF}, v5")
    else:
        k.e(f"""s_mul_i32 s{S_T+5}, s{S_N}, {c.T*c.BN*128}
        s_add_u32 s{S_T+5}, s{S_T+5}, s{S_M0W}
        v_lshlrev_b32 v3, 4, v1
        v_add_u32 v{vb}, s{S_T+5}, v3""")
        for i in range(1, c.nF):
            k.e(f"v_add_u32 v{vb+i}, {i*2048}, v{vb}")

def kstep(k, c, t):
    src = S_TAU
    if c.own2 == 2:
        P = len(c.rot); packed = 0
        for u, d in enumerate(c.rot): packed |= ((d+8) & 15) << (4*u)
        k.e(f"""s_lshr_b32 s{t+1}, s{S_TAU}, 1
        s_sub_u32 s{t+2}, s{t+1}, 1
        s_cmp_ge_u32 s{t+2}, s{S_KB}
        s_addc_u32 s{t+2}, s{t+2}, 0
        s_cmp_eq_u32 s{t+1}, 0
        s_cselect_b32 s{t+2}, s{S_KB}, s{t+2}
        s_sub_u32 s{t}, s{t+2}, s{S_PH}
        s_and_b32 s{t}, s{t}, {P-1}
        s_lshl_b32 s{t}, s{t}, 2
        s_lshr_b32 s{t}, {packed}, s{t}
        s_and_b32 s{t}, s{t}, 15
        s_add_u32 s{t}, s{t}, s{t+2}
        s_sub_u32 s{t}, s{t}, 8
        s_and_b32 s{t}, s{t}, 15
        s_lshl_b32 s{t}, s{t}, 1
        s_and_b32 s{t+1}, s{S_TAU}, 1
        s_add_u32 s{t}, s{t}, s{t+1}""")
        return
    if c.kbase is not False:
        q = c.kbase if c.kbase >= 0 else 's93'
        k.e(f"""s_cmp_gt_u32 s{S_TAU}, {q}
        s_subb_u32 s{t+1}, s{S_TAU}, 0
        s_cmp_ge_u32 s{t+1}, s{S_KB}
        s_addc_u32 s{t+1}, s{t+1}, 0
        s_cmp_eq_u32 s{S_TAU}, {q}
        s_cselect_b32 s{t+1}, s{S_KB}, s{t+1}""")
        src = t+1
    if c.rot:
        P = len(c.rot); packed = 0
        for u, d in enumerate(c.rot): packed |= ((d+8) & 15) << (4*u)
        k.e(f"""s_sub_u32 s{t}, s{src}, s{S_PH}
        s_and_b32 s{t}, s{t}, {P-1}
        s_lshl_b32 s{t}, s{t}, 2
        s_lshr_b32 s{t}, {packed}, s{t}
        s_and_b32 s{t}, s{t}, 15
        s_add_u32 s{t}, s{t}, s{src}""")
        if c.half == 8:
            k.e(f"s_and_b32 s{t}, s{t}, 7\ns_and_b32 s{t+1}, s{src}, 8\ns_or_b32 s{t}, s{t}, s{t+1}")
        elif c.half == 7:
            k.e(f"""s_sub_u32 s{t}, s{t}, 8
            s_add_u32 s{t+1}, s{t}, s{src}
            s_cmp_eq_u32 s{t+1}, 13
            s_cselect_b32 s{t}, s{src}, s{t}
            s_cmp_ge_u32 s{t}, 14
            s_cselect_b32 s{t}, s{src}, s{t}
            s_add_u32 s{t+1}, s{t}, 7
            s_cmp_ge_u32 s{t}, 7
            s_cselect_b32 s{t}, s{t+1}, s{t}""")
        elif c.T & (c.T-1) == 0:
            k.e(f"s_sub_u32 s{t}, s{t}, 8\ns_and_b32 s{t}, s{t}, {c.T-1}")
        else:
            RT = c.T - c.T % 4
            k.e(f"""s_add_u32 s{t}, s{t}, {RT-8}
            s_sub_u32 s{t+1}, s{t}, {RT}
            s_cmp_ge_u32 s{t}, {RT}
            s_cselect_b32 s{t}, s{t+1}, s{t}
            s_sub_u32 s{t+1}, s{t}, {RT}
            s_cmp_ge_u32 s{t}, {RT}
            s_cselect_b32 s{t}, s{t+1}, s{t}""")
            if RT != c.T: k.e(f"s_cmp_ge_u32 s{src}, {RT}\ns_cselect_b32 s{t}, s{src}, s{t}")
    else:
        k.e(f"s_mov_b32 s{t}, s{src}")
    if c.own2 == 1:
        k.e(f"""s_min_u32 s{t+1}, s{t}, s{S_TAU}
        s_max_u32 s{t+2}, s{t}, s{S_TAU}
        s_cmp_lt_u32 s{t+1}, 2
        s_cselect_b32 s{t+1}, s{t+2}, 0
        s_cmp_ge_u32 s{t+1}, 2
        s_cselect_b32 s{t}, s{S_TAU}, s{t}
        s_add_u32 s{t}, s{t}, s{S_KB}
        s_and_b32 s{t}, s{t}, {c.T-1}""")

def issue(k, c, vS, vF, parts="SF", fbase=False):
    t = S_T+8
    kstep(k, c, t)
    if DG[0] & 2: k.e(f"s_and_b32 s{t}, s{t}, 1")
    stepS = 7 if c.smode == 'rows' else 12
    stepF = 64*c.strideF if c.fmode == 'rows' else c.BN*128
    if 'S' in parts:
        k.e(f"""s_lshl_b32 s{S_OS}, s{t}, {stepS}
        s_mul_i32 s{t+1}, s{S_SLOT}, {c.slotS}
        s_add_u32 s{t+1}, s{t+1}, s{S_M0W}
        s_add_u32 m0, s{t+1}, {c.baseS}
        {gapi()}""")
        for i in range(c.nS):
            k.e(f"buffer_load_dwordx4 v{vS+i}, {srd(SRD_S)}, s{S_OS} offen {c.auxS} lds")
            if i < c.nS-1: k.e("s_add_u32 m0, m0, 2048\n" + gapi())
    if 'F' in parts:
        k.e(f"""s_mul_i32 s{S_OF}, s{t}, {stepF}
        s_mul_i32 s{t+1}, s{S_SLOT}, {c.slotF}
        s_add_u32 s{t+1}, s{t+1}, s{S_M0W}
        s_add_u32 m0, s{t+1}, {c.baseF}""")
        if fbase: k.e(f"s_add_u32 s{S_OF}, s{S_OF}, s{S_FB}")
        if CAP[0] or not fbase: k.e(gapi())
        for i in range(c.nF):
            k.e(f"buffer_load_dwordx4 v{vF+i}, {srd(SRD_F)}, s{S_OF} offen {c.auxF} lds")
            if i < c.nF-1: k.e("s_add_u32 m0, m0, 2048\n" + gapi())
    k.e(f"""s_add_u32 s{S_TAU}, s{S_TAU}, 1
    s_add_u32 s{S_SLOT}, s{S_SLOT}, 1
    s_cmp_eq_u32 s{S_SLOT}, {c.NS}
    s_cselect_b32 s{S_SLOT}, 0, s{S_SLOT}""")

def issue_first(k, c, vS, vF, parts, fbase=False, pbarrier=True, t0=0, t1=None):
    n = (c.nS if 'S' in parts else 0) + (c.nF if 'F' in parts else 0)
    top = k.lab("if"); l1 = k.lab("if1")
    t1 = c.NS if t1 is None else t1
    k.e(f"s_mov_b32 s{S_TAU}, {t0}\ns_mov_b32 s{S_SLOT}, {(t0+c.slot0) % c.NS}\n{top}:")
    issue(k, c, vS, vF, parts, fbase)
    if pbarrier:
        k.e(f"s_cmp_lg_u32 s{S_TAU}, 2\ns_cbranch_scc1 {l1}\ns_waitcnt vmcnt({n})\ns_barrier\n{l1}:")
    k.e(f"s_cmp_lt_u32 s{S_TAU}, {t1}\ns_cbranch_scc1 {top}")

CAP = [0]
DG = [0]
def gapi():
    return f"s_waitcnt vmcnt({CAP[0]})" if CAP[0] else "s_nop 0"
ITST = [0, 254]
def itstamp(k):
    if ITST[0]:
        k.e(f"{'s_memtime' if ITST[0] == 2 else 's_memrealtime'} s[{S_ST}:{S_ST+1}]\ns_waitcnt lgkmcnt(0)\ns_mov_b32 m0, s97\ns_nop 0\nv_writelane_b32 v{ITST[1]}, s{S_ST}, m0\ns_add_u32 s97, s97, 1")

S_PA = 60
UNR = [2]
def prep_groups(k, c, dst, fbase):
    t = S_T+8
    tk = Kern(k.name); kstep(tk, c, t)
    if DG[0] & 2: tk.e(f"s_and_b32 s{t}, s{t}, 1")
    stepS = 7 if c.smode == 'rows' else 12
    stepF = 64*c.strideF if c.fmode == 'rows' else c.BN*128
    tk.e(f"s_lshl_b32 s{dst}, s{t}, {stepS}\ns_mul_i32 s{dst+1}, s{t}, {stepF}")
    if fbase: tk.e(f"s_add_u32 s{dst+1}, s{dst+1}, s{S_FB}")
    tk.e(f"""s_mul_i32 s{dst+2}, s{S_SLOT}, {c.slotS}
    s_add_u32 s{dst+2}, s{dst+2}, s{S_M0W}
    s_mul_i32 s{dst+3}, s{S_SLOT}, {c.slotF}
    s_add_u32 s{dst+3}, s{dst+3}, s{S_M0W}
    s_add_u32 s{S_TAU}, s{S_TAU}, 1
    s_add_u32 s{S_SLOT}, s{S_SLOT}, 1
    s_cmp_eq_u32 s{S_SLOT}, {c.NS}
    s_cselect_b32 s{S_SLOT}, 0, s{S_SLOT}""")
    L = [x.strip() for x in tk.L]; G = []
    for x in L:
        if x.startswith(("s_cselect", "s_addc", "s_subb")): G[-1].append(x)
        else: G.append([x])
    return G

def steady(k, c, vS, vF, upto, fbase=False, wait=None):
    top = k.lab("st"); done = k.lab("std")
    w = (c.NS-2)*c.nI if wait is None else wait
    sets = [S_PA, S_PA+8]
    for g in prep_groups(k, c, sets[0], fbase):
        for x in g: k.e(x)
    k.e(f"{top}:")
    for h in range(2):
        cur, nx = sets[h], sets[h ^ 1]
        G = prep_groups(k, c, nx, fbase)
        dm = []
        if not DG[0] & 4: dm += [(f"buffer_load_dwordx4 v{vS+i}, {srd(SRD_S)}, s{cur} offen {c.auxS} lds", f"s_add_u32 m0, s{cur+2}, {c.baseS + i*2048}") for i in range(c.nS)]
        if not DG[0] & 8: dm += [(f"buffer_load_dwordx4 v{vF+i}, {srd(SRD_F)}, s{cur+1} offen {c.auxF} lds", f"s_add_u32 m0, s{cur+3}, {c.baseF + i*2048}") for i in range(c.nF)]
        if dm and not ITST[0]: k.e(dm[0][1])
        k.e(f"s_waitcnt vmcnt({w})\ns_barrier")
        if ITST[0]:
            itstamp(k)
            if dm: k.e(dm[0][1] + "\ns_nop 0")
        ng = max(len(dm)-1, 1); gi = 0
        for i, (ld, m0) in enumerate(dm):
            k.e(ld)
            if i < len(dm)-1:
                k.e(dm[i+1][1])
                tgt = -(-len(G)*(i+1)//ng); n0 = gi
                while gi < tgt:
                    for x in G[gi]: k.e(x)
                    gi += 1
                if gi == n0: k.e("s_nop 0")
        while gi < len(G):
            for x in G[gi]: k.e(x)
            gi += 1
        if h == 0: k.e(f"s_cmp_gt_u32 s{S_TAU}, {upto}\ns_cbranch_scc1 {done}")
        else: k.e(f"s_cmp_le_u32 s{S_TAU}, {upto}\ns_cbranch_scc1 {top}")
    k.e(f"""{done}:
    s_sub_u32 s{S_TAU}, s{S_TAU}, 1
    s_cmp_eq_u32 s{S_SLOT}, 0
    s_cselect_b32 s{S_SLOT}, {c.NS}, s{S_SLOT}
    s_sub_u32 s{S_SLOT}, s{S_SLOT}, 1""")

class Seg:
    def __init__(s_, c, vS, vF, fbase=False, srdS=SRD_S, srdF=SRD_F):
        s_.c = c; s_.vS = vS; s_.vF = vF; s_.fbase = fbase; s_.srdS = srdS; s_.srdF = srdF

class LProg:
    def __init__(s_, k): s_.k = k; s_.h = 0
    def prep(s_, seg, pre=()):
        for x in pre: s_.k.e(x)
        for g in prep_groups(s_.k, seg.c, S_PA + 8*s_.h, seg.fbase):
            for x in g: s_.k.e(x)
    def stage(s_, seg, parts="SF", sync="", nxt=True, pre=(), stampit=False):
        k = s_.k; c = seg.c; cur = S_PA + 8*s_.h; nx = S_PA + 8*(s_.h ^ 1)
        ns = seg if nxt is True else nxt
        G = ([[x] for x in pre] + prep_groups(k, ns.c, nx, ns.fbase)) if ns else []
        dm = []
        if 'S' in parts: dm += [(f"buffer_load_dwordx4 v{seg.vS+i}, {srd(seg.srdS)}, s{cur} offen {c.auxS} lds", f"s_add_u32 m0, s{cur+2}, {c.baseS + i*2048}") for i in range(c.nS)]
        if 'F' in parts: dm += [(f"buffer_load_dwordx4 v{seg.vF+i}, {srd(seg.srdF)}, s{cur+1} offen {c.auxF} lds", f"s_add_u32 m0, s{cur+3}, {c.baseF + i*2048}") for i in range(c.nF)]
        st = stampit and ITST[0]
        if not st: k.e(dm[0][1])
        k.e(sync if sync else "s_nop 0")
        if st:
            itstamp(k); k.e(dm[0][1] + "\ns_nop 0")
        ng = max(len(dm)-1, 1); gi = 0
        for i, (ld, m0) in enumerate(dm):
            k.e(ld)
            if i < len(dm)-1:
                k.e(dm[i+1][1])
                tgt = -(-len(G)*(i+1)//ng); n0 = gi
                while gi < tgt:
                    for x in G[gi]: k.e(x)
                    gi += 1
                if gi == n0: k.e("s_nop 0")
        s_.h ^= 1
    def run(s_, seg, n, wait, nxt=False, pre=()):
        k = s_.k; sync = f"s_waitcnt vmcnt({wait})\ns_barrier"
        m = n - 1
        if m % 2: s_.stage(seg, sync=sync, stampit=True); m -= 1
        if m >= 4:
            top = k.lab("lp")
            k.e(f"s_mov_b32 s{S_CNT}, {m//2}\n{top}:")
            s_.stage(seg, sync=sync, stampit=True, pre=[f"s_sub_u32 s{S_CNT}, s{S_CNT}, 1"]); s_.stage(seg, sync=sync, stampit=True)
            k.e(f"s_cmp_lg_u32 s{S_CNT}, 0\ns_cbranch_scc1 {top}")
        else:
            for _ in range(m): s_.stage(seg, sync=sync, stampit=True)
        s_.stage(seg, sync=sync, nxt=nxt, pre=pre, stampit=True)

def issue_noadv(k, c, vS, vF, parts, fbase=False):
    n0 = len(k.L)
    issue(k, c, vS, vF, parts, fbase)
    del k.L[-4:]

def steady_skew(k, c, vS, vF):
    top = k.lab("sk"); done = k.lab("skd")
    k.e(f"{top}:\ns_waitcnt vmcnt({c.nS+2*c.nF})\ns_barrier")
    itstamp(k)
    issue(k, c, vS, vF, "S")
    k.e(f"s_cmp_eq_u32 s{S_TAU}, {c.T}\ns_cbranch_scc1 {done}")
    issue_noadv(k, c, vS, vF, "F")
    k.e(f"s_branch {top}\n{done}:")

def one(k, c, vS, vF, fbase=False, wait=None):
    w = (c.NS-2)*c.nI if wait is None else wait
    k.e(f"s_waitcnt vmcnt({w})\ns_barrier")
    itstamp(k)
    issue(k, c, vS, vF, "SF", fbase)

def after_split_prologue(k, c, vS, vF, first_n, fbase=False):
    for j in range(c.NS-2):
        one(k, c, vS, vF, fbase, wait=(c.NS-2-j)*first_n + j*c.nI)

def consumer_addr(k, c, R, slot=None, t=16, setslot=True):
    wm = S_WM; wn = S_WN
    lw = int(math.log2(c.WN))
    slot = c.slot0 if slot is None else slot
    if setslot:
        k.e(f"s_mov_b32 s{S_SLOT}, {slot}\ns_mov_b32 s{S_OS}, {-(c.NS-1)*c.slotS}\ns_mov_b32 s{S_OF}, {-(c.NS-1)*c.slotF}")
        for g in slot_adv(c): k.e(g)
    k.e(f"s_lshr_b32 s{wm}, s{S_WAVE}, {lw}\ns_and_b32 s{wn}, s{S_WAVE}, {c.WN-1}")
    k.e(f"s_mul_i32 s{S_T+6}, s{wm}, {c.TM*4096}\ns_add_u32 s{S_T+6}, s{S_T+6}, {c.baseS + slot*c.slotS}")
    k.e(f"v_and_b32 v{t}, 15, v1\nv_lshrrev_b32 v{t+1}, 4, v1")
    if c.smode == 'rows':
        k.e(f"""v_bfe_u32 v{t+2}, v1, 1, 3
        v_xor_b32 v{t+2}, v{t+2}, v{t+1}
        v_lshlrev_b32 v{t+2}, 4, v{t+2}
        v_lshl_add_u32 v{t+2}, v{t}, 7, v{t+2}
        v_add_u32 v{R.aS[0]}, s{S_T+6}, v{t+2}
        v_xor_b32 v{R.aS[1]}, 64, v{R.aS[0]}""")
    else:
        k.e(f"""v_lshlrev_b32 v{t+2}, 4, v{t}
        v_lshl_add_u32 v{t+2}, v{t+1}, 9, v{t+2}
        v_add_u32 v{R.aS[0]}, s{S_T+6}, v{t+2}""")
    a0 = R.aF[0]
    if c.fmode == 'rows':
        k.e(f"""v_bfe_u32 v{t+2}, v1, 2, 2
        v_lshlrev_b32 v{a0}, 7, v{t+2}
        v_lshl_add_u32 v{a0}, v{t+1}, 10, v{a0}
        v_bfe_u32 v{t+2}, v1, 3, 1
        v_lshl_add_u32 v{a0}, v{t+2}, 6, v{a0}
        v_bfe_u32 v{t+2}, v1, 4, 1
        v_lshl_add_u32 v{a0}, v{t+2}, 5, v{a0}
        s_mov_b32 s{S_T+6}, {c.baseF + slot*c.slotF}""")
        if c.panel_from_wave: k.e(f"s_lshl_b32 s{S_T+7}, s{wn}, 13\ns_add_u32 s{S_T+6}, s{S_T+6}, s{S_T+7}")
        k.e(f"v_add_u32 v{a0}, s{S_T+6}, v{a0}")
        if c.nb_from_wave:
            k.e(f"s_lshl_b32 s{S_T+7}, s{wn}, 6\nv_xor_b32 v{a0}, s{S_T+7}, v{a0}")
            k.e(f"""v_and_b32 v{t+2}, 1, v1
            v_lshl_add_u32 v{R.aF[2]}, v{t+2}, 4, v{a0}
            v_bfe_u32 v{t+2}, v1, 1, 1
            v_lshl_add_u32 v{R.aF[2]}, v{t+2}, 3, v{R.aF[2]}
            v_add_u32 v{R.aF[2]}, {8192*c.ftiles[c.orient.index('N')][0]}, v{R.aF[2]}
            v_xor_b32 v{R.aF[3]}, 32, v{R.aF[2]}""")
        k.e(f"v_and_b32 v{t+2}, 3, v1\nv_lshl_add_u32 v{a0}, v{t+2}, 3, v{a0}")
        for b in range(1, 2 if c.nb_from_wave else 4): k.e(f"v_xor_b32 v{R.aF[b]}, {32*b}, v{a0}")
    else:
        k.e(f"""v_bfe_u32 v{t+2}, v1, 2, 2
        v_lshl_add_u32 v{t+2}, v{t+1}, 3, v{t+2}
        v_lshlrev_b32 v{a0}, 4, v{t+2}
        v_bfe_u32 v{t+2}, v1, 1, 1
        v_lshl_add_u32 v{a0}, v{t+2}, 6, v{a0}
        v_lshl_add_u32 v{a0}, v{t+2}, 9, v{a0}
        v_and_b32 v{t+2}, 1, v1
        v_lshl_add_u32 v{a0}, v{t+2}, 3, v{a0}
        s_lshl_b32 s{S_T+6}, s{wn}, 12
        s_add_u32 s{S_T+6}, s{S_T+6}, {c.baseF + slot*c.slotF}
        v_add_u32 v{a0}, s{S_T+6}, v{a0}
        v_xor_b32 v{R.aF[1]}, 64, v{a0}""")

def slot_adv(c):
    if c.NS == 4:
        g = [f"s_add_u32 s{S_SLOT}, s{S_SLOT}, 1", f"s_and_b32 s{S_SLOT}, s{S_SLOT}, 3\ns_cselect_b32 s{S_DS}, {c.slotS}, s{S_OS}"]
        if c.slotF != c.slotS:
            assert 2*c.slotF == c.slotS
            g.append(f"s_ashr_i32 s{S_DF}, s{S_DS}, 1")
        return g
    return [f"s_add_u32 s{S_SLOT}, s{S_SLOT}, 1\ns_cmp_lg_u32 s{S_SLOT}, {c.NS}",
            f"s_cselect_b32 s{S_DS}, {c.slotS}, s{S_OS}\ns_cselect_b32 s{S_DF}, {c.slotF}, s{S_OF}", f"s_cselect_b32 s{S_SLOT}, s{S_SLOT}, 0"]

M16 = "v_mfma_f32_16x16x32_bf16"
class Cons:
    def __init__(s_, k, c, R):
        s_.k = k; s_.c = c; s_.R = R
        s_.TS = 2*c.TM; s_.TF = 2*c.TN
        s_.NF = (getattr(R, 'nfr', 48) - 8*s_.TS)//4
        assert (2*s_.TF) % s_.NF == 0
        s_.NM = 2*s_.TS*s_.TF
        s_.jo = list(c.jorder) if c.jorder else list(range(2*s_.TF))
        s_.pos = {j: i for i, j in enumerate(s_.jo)}
        s_.plan()
    def acc(s_, st, ft): return s_.R.acc + 16*(ft*s_.c.TM+st)
    def sub(s_, t, f):
        a = s_.acc(t >> 1, f >> 1)
        return a + (8*(f & 1) + 4*(t & 1) if s_.c.orient[f >> 1] == 'T' else 8*(t & 1) + 4*(f & 1))
    def rS(s_, u, t): return s_.R.fr + (u*s_.TS + t)*4
    def rF(s_, j): return s_.R.fr + 8*s_.TS + (s_.pos[j] % s_.NF)*4
    def order(s_, f): return list(range(s_.TS)) if f % 2 == 0 else list(range(s_.TS-1, -1, -1))
    def rdS(s_, u, t):
        c, R = s_.c, s_.R
        if c.smode == 'rows': return f"ds_read_b128 {vr(s_.rS(u,t),4)}, v{R.aS[u]} offset:{t*2048}"
        return f"ds_read_b128 {vr(s_.rS(u,t),4)}, v{R.aS[0]} offset:{(t>>1)*4096 + u*2048 + (t&1)*256}"
    def rdF(s_, j, rd):
        c, R = s_.c, s_.R
        u, f = divmod(j, s_.TF); P, nb = c.ftiles[f >> 1]
        if c.fmode == 'rows':
            if c.nb_from_wave:
                a = R.aF[(f & 1) + (2 if c.orient[f >> 1] == 'N' else 0)]
                if c.orient[f >> 1] == 'N': P = 0
            else: a = R.aF[2*nb + (f & 1)]
            return f"ds_read_b64_tr_b16 {vr(s_.rF(j)+2*rd,2)}, v{a} offset:{P*8192 + u*4096 + rd*512}"
        return f"ds_read_b64_tr_b16 {vr(s_.rF(j)+2*rd,2)}, v{R.aF[rd]} offset:{u*c.BN*64 + ((P*2+nb)*2 + (f&1))*1024}"
    def plan(s_):
        TS, TF, NF, NM = s_.TS, s_.TF, s_.NF, s_.NM
        G = TS*TF
        pb = s_.c.pb
        items = []
        for u in range(2):
            ps = [s_.pos[j] for j in range(u*TF, (u+1)*TF)]
            for t in range(TS): items.append((min(ps)*TS + t, (max(ps)+1)*TS - NM, s_.rdS(u, t), ('S', u, t)))
        for j in range(2*TF):
            i = s_.pos[j]
            for rd in range(2): items.append((i*TS - 0.5 + 0.1*rd, (i-NF+1)*TS, s_.rdF(j, rd), ('F', j)))
        items.sort(key=lambda x: x[0])
        cnt = {}; sched = []; g = pb - NM
        for use, e, txt, tag in items:
            g = max(g, e)
            cap = lambda gg: 2 if (gg < pb - NM + s_.c.burst or s_.c.cap2 is True) else 1
            while cnt.get(g, 0) >= cap(g): g += 1
            cnt[g] = cnt.get(g, 0) + 1
            sched.append((g, txt, tag))
            assert g <= use + 0.5, (g, use, tag)
        s_.sched = sched; s_.lastcur = max(g for g, _, _ in sched)
        assert s_.lastcur < pb, (s_.lastcur, pb)
    def first_reads_static(s_, slot):
        for g, txt, tag in s_.sched:
            if g < 0:
                a, b = txt.rsplit("offset:", 1)
                s_.k.e(f"{a}offset:{int(b) + slot*(s_.c.slotS if tag[0] == 'S' else s_.c.slotF)}")
    def loop4(s_, nrep, slot):
        k = s_.k; lp = k.lab("c4")
        k.e(f"s_mov_b32 s{S_CNT}, {nrep}\n.p2align 6\n{lp}:")
        for i in range(s_.c.NS):
            s_.loop(1, slot=(slot+i) % s_.c.NS, fillers=([f"s_sub_u32 s{S_CNT}, s{S_CNT}, 1", f"s_cmp_lg_u32 s{S_CNT}, 0"] if i == s_.c.NS-1 else None))
        k.e(f"s_cbranch_scc1 {lp}")
    def loopu(s_, nrep, unr):
        k = s_.k; lp = k.lab("cu")
        if nrep > 1: k.e(f"s_mov_b32 s{S_CNT}, {nrep}\n.p2align 6\n{lp}:")
        for i in range(unr): s_.loop(1)
        if nrep > 1: k.e(f"s_sub_u32 s{S_CNT}, s{S_CNT}, 1\ns_cmp_lg_u32 s{S_CNT}, 0\ns_cbranch_scc1 {lp}")
    def zero(s_):
        for i in range(0, s_.c.TM*s_.c.TN*16, 2): s_.k.e(f"v_mov_b64 v[{s_.R.acc+i}:{s_.R.acc+i+1}], 0")
    def first_reads(s_):
        for g, txt, tag in s_.sched:
            if g < 0: s_.k.e(txt)
    def loop(s_, nsteps, pre_barrier=None, fillers=None, budget=8, next_cons=None, tail=None, slot=None, nslot=None, fstart=1):
        k, c, R = s_.k, s_.c, s_.R
        TS, TF, NM, pb = s_.TS, s_.TF, s_.NM, s_.c.pb
        q = [tag for g, _, tag in s_.sched if g < 0]
        lp = k.lab("cloop")
        if nsteps > 1: k.e(f"s_mov_b32 s{S_CNT}, 0\n.p2align 6\n{lp}:")
        gaps = [[] for _ in range(NM+1)]; mfs = []
        nxt = s_ if next_cons is None else next_cons
        byg = {}
        def sh(txt, tag, cc, sl):
            if sl is None: return txt
            a, b = txt.rsplit("offset:", 1)
            o = int(b) + sl*(cc.slotS if tag[0] == 'S' else cc.slotF)
            assert o < 65536
            return f"{a}offset:{o}"
        if slot is not None and nslot is None: nslot = (slot+1) % c.NS
        for g, txt, tag in s_.sched:
            if g >= 0: byg.setdefault(g, []).append((sh(txt, tag, c, slot), tag))
        if nxt:
            for g, txt, tag in nxt.sched:
                if g < 0: byg.setdefault(max(g + NM, pb), []).append((sh(txt, tag, nxt.c, nslot), ('n',)+tag))
        for i, txt in enumerate(tail or []): byg.setdefault(min(pb + i//2, NM), []).append((txt, ('x', i)))
        dF = S_DF if c.slotF != c.slotS else S_DS
        upd = [f"v_add_u32 v{a}, s{S_DS}, v{a}" for a in R.aS] + [f"v_add_u32 v{a}, s{dF}, v{a}" for a in R.aF]
        if slot is not None: upd = []
        ng = max(pb - s_.lastcur - 1, 1); per = max(-(-len(upd)//ng), 1)
        misc = {}
        for i, x in enumerate(upd): misc.setdefault(s_.lastcur + 1 + i//per, []).append(x)
        sal = ([f"s_add_u32 s{S_CNT}, s{S_CNT}, 1"] if nsteps > 1 else []) + slot_adv(c)
        if slot is not None: sal = []
        assert c.NS == 4 or not fillers or slot is not None
        assert len(sal) <= NM-pb-1
        free = sorted(range(pb+1, NM), key=lambda g: (len(byg.get(g, [])), -g))[:len(sal)]
        for g, x in zip(sorted(free), sal): misc.setdefault(g, []).extend(x.split("\n"))
        when = {tag: g for g, _, tag in s_.sched}
        p = 0
        for j in s_.jo:
            u, f = divmod(j, TF)
            for t in s_.order(f):
                G_ = gaps[p]
                G_ += misc.get(p, [])
                if p == pb:
                    G_.append("s_waitcnt lgkmcnt(0)" + (" vmcnt(0)" if pre_barrier == "vm" else "")); q.clear()
                    G_.append("s_barrier")
                tags = [('S', u, t), ('F', j)]
                if len(q) + len(byg.get(p, [])) > 15:
                    idx = max([i for i, tg in enumerate(q) if tg in tags] + [len(q) + len(byg[p]) - 16])
                    while idx+1 < len(q) and when.get(q[idx+1], 99) <= p - c.old: idx += 1
                    G_.append(f"s_waitcnt lgkmcnt({len(q)-1-idx})"); del q[:idx+1]
                for txt, tag in byg.get(p, []): G_.append(txt); q.append(tag)
                idx = max([i for i, tg in enumerate(q) if tg in tags], default=-1)
                if idx >= 0:
                    while idx+1 < len(q) and when.get(q[idx+1], 99) <= p - c.old: idx += 1
                    n = len(q) - 1 - idx
                    assert n <= 15
                    G_.append(f"s_waitcnt lgkmcnt({n})"); del q[:idx+1]
                a, b = (s_.rF(j), s_.rS(u, t)) if c.orient[f >> 1] == 'T' else (s_.rS(u, t), s_.rF(j))
                d = s_.sub(t, f)
                mfs.append(f"{M16} {vr(d,4)}, {vr(a,4)}, {vr(b,4)}, {vr(d,4)}")
                p += 1
        for txt, tag in byg.get(NM, []): gaps[NM].append(txt)
        if nsteps > 1: gaps[NM] += [f"s_cmp_lt_u32 s{S_CNT}, {nsteps}", f"s_cbranch_scc1 {lp}"]
        isv = lambda x: x.startswith("v_")
        tr = lambda x: x.startswith(("v_exp", "v_rcp", "v_rsq", "v_sqrt"))
        def cost(x):
            if tr(x) or x.startswith("buffer_"): return 2
            if x.startswith("s_"): return 0.5
            return 1
        def base_used(g):
            nd = sum(x.startswith("ds_") for x in g); nw = sum(x.startswith("s_waitcnt") for x in g)
            if any(x.startswith(("s_barrier", "s_cbranch")) for x in g): return 9
            return nd*(1 if nd < 2 else 0.5) + (nw if nd else 0.5*nw) + sum(isv(x) for x in g) + 0.3*sum(x.startswith("s_") and not x.startswith("s_waitcnt") for x in g)
        fl = list(fillers or [])
        place = [[] for _ in gaps]
        if fl:
            ngp = len(gaps) - 1
            used = [base_used(g) for g in gaps]
            b = budget/4
            while True:
                fi = 0; place = [[] for _ in gaps]
                tot = sum(cost(x) for x in fl); fre = sum(max(int(b-used[g]), 0) for g in range(fstart, ngp)); acc = 0; done = 0
                for g in range(fstart, ngp):
                    room = max(int(b - used[g]), 0); acc += room
                    while fi < len(fl) and cost(fl[fi]) <= room and done < 1.15*acc*tot/max(fre, 1):
                        room -= cost(fl[fi]); done += cost(fl[fi]); place[g].append(fl[fi]); fi += 1
                if fi == len(fl): break
                b += 1
        for g in range(len(gaps)):
            G_ = gaps[g]
            if g != pb: G_ = [x for x in G_ if not isv(x)] + [x for x in G_ if isv(x)]
            for x in G_: k.e(x)
            for x in place[g]:
                if x != 'PAD': k.e(x)
            if g < len(mfs): k.e(mfs[g])
```

```python
import sys, struct
from core4 import *

MB = 1<<20
WS_O=4*MB; WS_H=8*MB; WS_Z2N=20*MB; WS_U=28*MB
WS_KVP=36*MB; WS_ZP=38*MB; WS_KVF=38*MB+131072; WS_ZF=38*MB+262144; WS_HC=38*MB+524288; WS_XS=39*MB; WS_CQP=39*MB+65536; WS_CSP=39*MB+512*1024
WS_XP=12*MB; WS_HST=40*MB; WS_ZST=41*MB
FLS=4352
WS_FLAG=42*MB; F_O=WS_FLAG; F_H=WS_FLAG+16*FLS; F_Z=WS_FLAG+32*FLS; F_U=WS_FLAG+48*FLS
WS_END=43*MB
P_X=0; P_WQKV=1; P_WPHI=2; P_WO=3; P_WIN=5; P_WSP=6; P_BSP=7; P_WOUT=8; P_OUT=9; P_DBG=10; P_WS=11
S_Q=92; S_CW=90
L_CW=131072
L_WPHI=147456; L_XS=L_WPHI+4096; L_CQ=L_XS+1024; L_HS=L_CQ+1024; L_CS=L_HS+2048; L_ZP=L_CS+1024; L_ZS=L_ZP+2048; L_END=L_ZS+1024
KNAME = "sequential_preLN__linear_kernel_hedgehog__mixer_gmlp__prompt_kernel"

def f2u(x): return struct.unpack("<I", struct.pack("<f", x))[0]
LOG2E = 1.4426950408889634
C0 = -2*LOG2E*0.7978845608028654; C1 = C0*0.044715
MF = "v_mfma_f32_32x32x16_bf16"
W = srd(SRD_W)

class Opt:
    stamps = 0
    pf = 2
    slp = 4
    vslp = 2
    pfw = 0
    gat = 18
    spq = -1
    z1fill = 1
    nfill = 2
    p1ph = 1
    own2 = 2
    p4ph = 0
    vprio = 0
    zsp = 4
    dsx = 0
    kfslp = 17
    pfd = 1
    qpf = 0
    pb1 = 40
    pb2 = 10
    pb3 = 24
    bu = 2
    late = 0
    two = 1
    tw = 0
    tlb = 0
    wpos = 1
    hsp = 1
    hpos = 1
    zdma = 1
    xis = 4
    bu5 = 9
    nprio = 1
    qm = 4
    q0 = 2
    pads = 1
    xa = 0
    gb = 1
    nst = 0
    xl = 0
    sk = 1
    jo = 1
    jpad = 10
    f5 = 1
    pb5 = 25
    xslp = 6
    ct = 2
    p4loop = 0
    u1 = 3
    u3 = 3
    dg = 0
    bud = 8
    r1 = 0
    r2 = 0
    r3 = 0
    r4 = 0
    r5 = 0
    st4 = 5
    old = 7
    old2 = 7
    cyc = 0
    lead = 6
    fpos = 1
    l2 = 0
    r8 = 0
    kfe = 0
    kvr = 5
    probe = 0
    pwg = 83
    pfrom = 0
    pwave = 0
    cap = 0
    vmd = 1
    z1n = 2
    pa = 3
    pl = 2
    pc = 0
    kvslp = 14
OPT = Opt()

def unpack(k, lo, hi, src):
    k.e(f"v_lshlrev_b32 v{lo}, 16, v{src}\nv_and_b32 v{hi}, 0xffff0000, v{src}")
def cvt16(k, dst, src):
    for i in range(8): k.e(f"v_cvt_pk_bf16_f32 v{dst+i}, v{src+2*i}, v{src+2*i+1}")
def stamp(k, i):
    if OPT.stamps:
        k.e(f"s_memrealtime s[{S_ST}:{S_ST+1}]\ns_waitcnt lgkmcnt(0)\nv_writelane_b32 v255, s{S_ST}, {i}")
        if OPT.cyc: k.e(f"s_memtime s[{S_ST}:{S_ST+1}]\ns_waitcnt lgkmcnt(0)\nv_writelane_b32 v255, s{S_ST}, {i+32}")
def bars(k, n):
    if n <= 4:
        for _ in range(n): k.e("s_barrier")
    else:
        t = k.lab("bars")
        k.e(f"s_mov_b32 s{S_CNT}, {n}\n{t}:\ns_barrier\ns_sub_u32 s{S_CNT}, s{S_CNT}, 1\ns_cmp_lg_u32 s{S_CNT}, 0\ns_cbranch_scc1 {t}")

def if_par(k, par, text):
    sk = k.lab("par")
    k.e(f"s_bitcmp1_b32 s2, 0\ns_cbranch_scc{1 if par == 0 else 0} {sk}\n{text}\n{sk}:")

def check_flags(k, nflags, val, oklab):
    k.e(f"""v_cmp_le_u32 vcc, {val}, v8
    s_and_b32 s{S_T+11}, vcc_lo, {(1<<nflags)-1}
    s_cmp_eq_u32 s{S_T+11}, {(1<<nflags)-1}
    s_cbranch_scc1 {oklab}""")
def spin_tail(k, top, slp=None):
    k.e(f"s_sleep {OPT.slp if slp is None else slp}\ns_sub_u32 s{S_T+10}, s{S_T+10}, 1\ns_cmp_lg_u32 s{S_T+10}, 0\ns_cbranch_scc1 {top}")
def poll(k, voff, nflags, srdn=SRD_W, val=1, pre=False):
    top = k.lab("poll"); done = k.lab("polld")
    k.e(f"s_cmp_lg_u32 s{S_LW}, 0\ns_cbranch_scc1 {done}")
    if pre:
        k.e("s_waitcnt vmcnt(0)")
        check_flags(k, nflags, val, done)
    k.e(f"s_mov_b32 s{S_T+10}, 0x40000\n{top}:")
    k.e(f"buffer_load_dword v8, v{voff}, {srd(srdn)}, 0 offen sc1\ns_waitcnt vmcnt(0)")
    check_flags(k, nflags, val, done)
    spin_tail(k, top)
    k.e(f"{done}:")
def sample(k, voff, srdn=SRD_W):
    sk = k.lab("nosm")
    k.e(f"s_cmp_lg_u32 s{S_LW}, 0\ns_cbranch_scc1 {sk}\nbuffer_load_dword v8, v{voff}, {srd(srdn)}, 0 offen sc1\n{sk}:")
def tagcheck(k, regs, t, ok):
    regs = list(regs)
    if len(regs) % 2 == 0:
        k.e(f"v_max_u32 v{t}, v{regs[0]}, v{regs[1]}"); rest = regs[2:]
    else:
        k.e(f"v_max3_u32 v{t}, v{regs[0]}, v{regs[1]}, v{regs[2]}"); rest = regs[3:]
    for i in range(0, len(rest), 2): k.e(f"v_max3_u32 v{t}, v{t}, v{rest[i]}, v{rest[i+1]}")
    k.e(f"v_cmp_eq_u32 vcc, -1, v{t}\ns_cmp_eq_u64 vcc, 0\ns_cbranch_scc1 {ok}")
def validated(k, gather, regs, t, pre=True):
    top = k.lab("vsp"); ok = k.lab("vok")
    if pre: tagcheck(k, regs, t, ok)
    k.e(f"s_mov_b32 s{S_T+10}, 0x40000\n{top}:")
    gather()
    k.e("s_waitcnt vmcnt(0)")
    tagcheck(k, regs, t, ok)
    spin_tail(k, top, OPT.vslp)
    k.e(f"{ok}:")

def cnt_addr(k, v, base, sline):
    k.e(f"""s_mul_i32 s{S_T}, s{sline}, {FLS}
    s_add_u32 s{S_T}, s{S_T}, {base}
    v_mov_b32 v{v}, s{S_T}""")
def set_flag(k, vset):
    sk = k.lab("nofl")
    k.e(f"""s_cmp_lg_u32 s{S_LW}, 0
    s_cbranch_scc1 {sk}
    s_mov_b64 exec, 1
    buffer_atomic_add v11, v{vset}, {W}, 0 offen sc1
    s_mov_b64 exec, -1
    {sk}:""")

def softmax_pm(k0, P, EP, EN, T, OP, ON, inject=(), wpos=(), wneg=()):
    L = S_K
    k = Kern(k0.name)
    k.e(f"v_max3_f32 v{T}, v{P}, v{P+1}, v{P+2}\nv_min3_f32 v{T+1}, v{P}, v{P+1}, v{P+2}")
    for i in range(3, 15, 2):
        k.e(f"v_max3_f32 v{T}, v{T}, v{P+i}, v{P+i+1}\nv_min3_f32 v{T+1}, v{T+1}, v{P+i}, v{P+i+1}")
    k.e(f"""v_max_f32 v{T}, v{T}, v{P+15}
    v_max_f32 v{T+1}, -v{T+1}, -v{P+15}
    s_nop 1
    v_permlane32_swap_b32 v{T}, v{T+1}
    v_max_f32 v{T}, v{T}, v{T+1}
    v_mul_f32 v{T}, {f2u(-LOG2E)}, v{T}
    v_mov_b32 v{T+1}, v{T}
    s_nop 1
    v_permlane32_swap_b32 v{T}, v{T+1}""")
    for i in range(8):
        k.e(f"v_pk_fma_f32 v[{EP+2*i}:{EP+2*i+1}], v[{P+2*i}:{P+2*i+1}], s[{L}:{L+1}], v[{T}:{T+1}] op_sel_hi:[1,1,0]")
        k.e(f"v_pk_fma_f32 v[{EN+2*i}:{EN+2*i+1}], v[{P+2*i}:{P+2*i+1}], s[{L}:{L+1}], v[{T}:{T+1}] op_sel:[0,0,1] op_sel_hi:[1,1,1] neg_lo:[0,1,0] neg_hi:[0,1,0]")
    for i in range(16):
        k.e(f"v_exp_f32 v{EP+i}, v{EP+i}\nv_exp_f32 v{EN+i}, v{EN+i}")
    k.e(f"v_pk_add_f32 v[{T}:{T+1}], v[{EP}:{EP+1}], v[{EP+2}:{EP+3}]\nv_pk_add_f32 v[{T+2}:{T+3}], v[{EN}:{EN+1}], v[{EN+2}:{EN+3}]")
    for i in range(2, 8):
        k.e(f"v_pk_add_f32 v[{T}:{T+1}], v[{T}:{T+1}], v[{EP+2*i}:{EP+2*i+1}]\nv_pk_add_f32 v[{T+2}:{T+3}], v[{T+2}:{T+3}], v[{EN+2*i}:{EN+2*i+1}]")
    k.e(f"""v_add_f32 v{T}, v{T}, v{T+1}
    v_add_f32 v{T+1}, v{T+2}, v{T+3}
    s_nop 1
    v_permlane32_swap_b32 v{T}, v{T+1}
    v_add_f32 v{T}, v{T}, v{T+1}
    v_rcp_f32 v{T}, v{T}
    s_nop 0
    v_mov_b32 v{T+1}, v{T}
    s_nop 1
    v_permlane32_swap_b32 v{T}, v{T+1}""")
    inj = list(inject); step = max(len(k.L)//(len(inj)+1), 1)
    for i, x in enumerate(k.L):
        k0.e(x)
        if inj and i % step == step-1: k0.e(inj.pop(0))
    for x in inj: k0.e(x)
    k = k0
    for E, O, sel, wr in ((EP, OP, "op_sel_hi:[1,0]", wpos), (EN, ON, "op_sel:[0,1] op_sel_hi:[1,1]", wneg)):
        for hh in range(2):
            for i in range(4*hh, 4*hh+4): k.e(f"v_pk_mul_f32 v[{E+2*i}:{E+2*i+1}], v[{E+2*i}:{E+2*i+1}], v[{T}:{T+1}] {sel}")
            for i in range(4*hh, 4*hh+4): k.e(f"v_cvt_pk_bf16_f32 v{O+i}, v{E+2*i}, v{E+2*i+1}")
            if wr: k.e(wr[hh])

def xhalf_sum2(k, a):
    k.e(f"""s_nop 1
    v_permlane32_swap_b32 v{a}, v{a+1}
    v_add_f32 v{a}, v{a}, v{a+1}
    v_mov_b32 v{a+1}, v{a}
    s_nop 1
    v_permlane32_swap_b32 v{a}, v{a+1}""")
def xswap_sum1(k, a, t, which=32):
    k.e(f"v_mov_b32 v{t}, v{a}\ns_nop 1\nv_permlane{which}_swap_b32 v{a}, v{t}\nv_add_f32 v{a}, v{a}, v{t}")
def xswap_sum(k, a, t, n, which):
    for i in range(n): k.e(f"v_mov_b32 v{t+i}, v{a+i}")
    k.e("s_nop 1")
    for i in range(n): k.e(f"v_permlane{which}_swap_b32 v{a+i}, v{t+i}")
    for i in range(n): k.e(f"v_add_f32 v{a+i}, v{a+i}, v{t+i}")
def ror_sum(k, a, n, sh):
    k.e("s_nop 1")
    for i in range(n): k.e(f"v_add_f32_dpp v{a+i}, v{a+i}, v{a+i} row_ror:{sh} row_mask:0xf bank_mask:0xf")
def acc_bf16(k, A, src, n, first, t, plain=False):
    for j in range(n):
        if first: unpack(k, A+2*j, A+2*j+1, src+j)
        elif plain:
            tt = t+2*(j & 1)
            unpack(k, tt, tt+1, src+j)
            k.e(f"v_add_f32 v{A+2*j}, v{A+2*j}, v{tt}\nv_add_f32 v{A+2*j+1}, v{A+2*j+1}, v{tt+1}")
        else:
            tt = t+2*(j & 1)
            unpack(k, tt, tt+1, src+j)
            k.e(f"v_pk_add_f32 v[{A+2*j}:{A+2*j+1}], v[{A+2*j}:{A+2*j+1}], v[{tt}:{tt+1}]")
def combine(k, P, n, cnt, d, t):
    k.e(f"v_pk_add_f32 v[{d}:{d+1}], v[{P}:{P+1}], v[{P+2}:{P+3}]")
    for i in range(2, n): k.e(f"v_pk_add_f32 v[{d}:{d+1}], v[{d}:{d+1}], v[{P+2*i}:{P+2*i+1}]")
    k.e(f"v_mul_f32 v{d}, {f2u(1.0/n)}, v{d}\nv_mov_b32 v{t+1}, 0")
    for i in range(n): k.e(f"v_sub_f32 v{t}, v{P+2*i}, v{d}\nv_fmac_f32 v{t+1}, v{t}, v{t}")
    k.e(f"v_fmac_f32 v{d+1}, {f2u(float(cnt))}, v{t+1}")
def finish_rstd(k, d, total):
    k.e(f"""v_mul_f32 v{d+1}, {f2u(1.0/total)}, v{d+1}
    v_add_f32 v{d+1}, {f2u(1e-5)}, v{d+1}
    v_rsq_f32 v{d+1}, v{d+1}
    s_nop 0
    v_mul_f32 v{d}, -v{d}, v{d+1}""")

ROTS = [(-1,0,2,-1), (-1,0,0,1), (-1,3,-1,-1), (-2,-2,-1,5), (0,0,0,0), (-2,-2,6,-2)]
def cfgs():
    c1 = Cfg(128,192,16,3,2,2,1, 2048, 6144, [(1,0),(2,0),(0,0)], True, False, orient=['T','N','T'], smode='rows', baseS=0, baseF=49152, kbase=OPT.spq, rot=ROTS[OPT.r1], pb=OPT.pb1, burst=OPT.bu, old=OPT.old)
    c2 = Cfg(128,64,16,4,4,1,2, 2048, 2048, [(0,0),(0,1)], False, False, smode='frag', auxS="sc1", rot=ROTS[OPT.r2], pb=OPT.pb2, cap2=True, old=OPT.old2)
    c3 = Cfg(128,128,16,4,2,2,1, 2048, 7168, [(0,0),(0,1)], False, True, smode='frag', auxS="sc1", slot0=2, rot=ROTS[OPT.r3], half=(8 if OPT.two & 1 else 0), pb=OPT.pb3, burst=OPT.bu, old=OPT.old)
    c4 = Cfg(128,128,32,4,2,2,1, 4096, 0, [(0,0),(0,1)], False, True, smode='rows', fmode='blk', auxF="sc1", rot=(-1,0,0,1) if OPT.own2 == 1 else ROTS[OPT.r4], own2=OPT.own2, pb=OPT.pb3, burst=OPT.bu, old=OPT.old)
    c5 = Cfg(128,64,28,4,4,1,2, 3584, 2048, [(0,0),(0,1)], False, False, smode='frag', auxS="sc1", baseF=114688, slot0=2, rot=ROTS[OPT.r5], pb=OPT.pb2, cap2=True, old=OPT.old2)
    if OPT.sk:
        c5 = Cfg(128,128,14,4,4,1,2, 3584, 2048, [(0,0),(0,1),(1,0),(1,1)], False, False, smode='frag', auxS="sc1", baseF=98304, slot0=2, rot=ROTS[1 if OPT.two & 2 else OPT.r5], half=(7 if OPT.two & 2 else 0), pb=OPT.pb5, cap2=(OPT.bu5 == 0), burst=OPT.bu5, old=OPT.old2, jorder=[0,1,2,3,8,9,10,11,4,5,6,7,12,13,14,15] if OPT.jo else None)
    return c1, c2, c3, c4, c5
VS=16; VF=24; VS4=36; VF4=44; VS5=52; VF5=60; VF3=68
L_PHK=0; L_VX=32768; L_KV=49152; L_Z=57344

def tail_barriers(k, c, extra=0):
    for r in range(c.NS-1):
        k.e(f"s_waitcnt vmcnt({max(c.NS-2-r,0)*c.nI + extra})\ns_barrier")

def win_loads(k, tag):
    mk_srd(k, SRD_A, P_WO, 2*MB); mk_srd(k, SRD_B, P_WIN, 7*MB)
    n = 8
    k.e(f"""s_lshr_b32 s{S_T}, s2, 3
    s_lshl_b32 s{S_T+2}, s{S_T}, 2
    s_add_u32 s{S_T+2}, s{S_T+2}, s{S_Q}
    s_and_b32 s{S_T+3}, s2, 1""")
    if OPT.l2 & 1:
        k.e(f"""s_lshl_b32 s{S_T+1}, s{S_T+2}, 14
        s_lshl_b32 s{S_T+4}, s{S_T+3}, 10
        s_add_u32 s{S_T+1}, s{S_T+1}, s{S_T+4}
        v_lshrrev_b32 v3, 3, v1
        v_lshlrev_b32 v3, 11, v3
        v_and_b32 v4, 7, v1
        v_lshl_add_u32 v3, v4, 7, v3
        buffer_load_dword v250, v3, {srd(SRD_A)}, s{S_T+1} offen""")
    else:
        k.e(f"""s_lshl_b32 s{S_T+1}, s2, 2
        s_add_u32 s{S_T+1}, s{S_T+1}, s{S_Q}
        s_lshl_b32 s{S_T+1}, s{S_T+1}, 11
        v_lshlrev_b32 v3, 7, v1
        s_mov_b64 exec, 0xffff
        buffer_load_dword v250, v3, {srd(SRD_A)}, s{S_T+1} offen
        s_mov_b64 exec, -1""")
    n += 1
    k.e(f"""s_lshr_b32 s{S_T+4}, s{S_T}, 1
    s_cmp_ge_u32 s{S_T+4}, 7
    s_cselect_b32 s{S_T+5}, 7, 0
    s_add_u32 s{S_T+4}, s{S_T+4}, s{S_T+5}
    s_mul_i32 s{S_T+5}, s{S_T+3}, 7
    s_add_u32 s{S_CW}, s{S_T+4}, s{S_T+5}
    s_and_b32 s{S_T+5}, s2, 6
    s_and_b32 s{S_T+6}, s{S_T}, 1
    s_add_u32 s{S_CW+1}, s{S_T+5}, s{S_T+6}
    s_lshl_b32 s{S_T+5}, s{S_CW+1}, 2
    s_add_u32 s{S_T+5}, s{S_T+5}, s{S_Q}
    s_mul_i32 s{S_T+5}, s{S_T+5}, {32*7168}
    s_lshl_b32 s{S_T+4}, s{S_CW}, 8
    s_add_u32 s{S_T+5}, s{S_T+5}, s{S_T+4}
    s_cmp_ge_u32 s2, 224
    s_cselect_b32 s{S_T+5}, {7*MB}, s{S_T+5}
    v_lshrrev_b32 v3, 4, v1
    v_mul_u32_u24 v3, 7168, v3
    v_and_b32 v4, 15, v1
    v_lshl_add_u32 v5, v4, 4, v3""")
    for j in range(8):
        k.e(f"buffer_load_dwordx4 v[{192+4*j}:{195+4*j}], v5, {srd(SRD_B)}, s{S_T+5} offen\ns_add_u32 s{S_T+5}, s{S_T+5}, {4*7168}")
    if OPT.l2 & 2:
        k.e(f"""v_min_u32 v4, 13, v4
        v_lshl_add_u32 v3, v4, 7, v3
        s_mul_i32 s{S_T+1}, s{S_T+2}, {4*7168}
        s_mul_i32 s{S_T+4}, s{S_T+3}, 1792
        s_add_u32 s{S_T+1}, s{S_T+1}, s{S_T+4}
        s_add_u32 s{S_T+1}, s{S_T+1}, 3584
        buffer_load_dword v251, v3, {srd(SRD_B)}, s{S_T+1} offen
        s_add_u32 s{S_T+1}, s{S_T+1}, {512*7168}
        buffer_load_dword v252, v3, {srd(SRD_B)}, s{S_T+1} offen""")
        n += 2
    return n
def win_reduce(k):
    for j in range(8): acc_bf16(k, 224, 192+4*j, 4, j == 0, 232)
    xswap_sum(k, 224, 232, 8, 32)
    k.e(f"""s_lshl_b32 s{S_T}, s{S_Q}, 10
    s_add_u32 s{S_T}, s{S_T}, {L_CW}
    v_and_b32 v4, 31, v1
    v_lshl_add_u32 v4, v4, 5, s{S_T}
    ds_write_b128 v4, v[224:227]
    ds_write_b128 v4, v[228:231] offset:16
    s_waitcnt lgkmcnt(0)""")

def pf_loop(k, srdn, n, stride):
    t = k.lab("pf")
    k.e(f"s_mov_b32 s{S_CNT}, {n}\n{t}:")
    k.e(f"buffer_load_dword v3, v2, {srd(srdn)}, s{S_T+4} offen\ns_add_u32 s{S_T+4}, s{S_T+4}, {stride}")
    k.e(f"s_waitcnt vmcnt({OPT.pfd})\ns_sub_u32 s{S_CNT}, s{S_CNT}, 1\ns_cmp_lg_u32 s{S_CNT}, 0\ns_cbranch_scc1 {t}")

def helper_pf(k, role):
    nw = OPT.pf
    if OPT.tlb and role == 'c':
        st = 1 << OPT.tlb
        mk_srd(k, SRD_A, P_WOUT, 1792*2048); mk_srd(k, SRD_B, P_WSP, 8*MB)
        k.e(f"""s_lshr_b32 s{S_T}, s2, 3
        s_sub_u32 s{S_T}, s{S_T}, 28
        s_lshl_b32 s{S_T}, s{S_T}, 2
        s_add_u32 s{S_T}, s{S_T}, s{S_WAVE}
        s_lshl_b32 s{S_T+4}, s{S_T}, {OPT.tlb+6}
        v_and_b32 v3, 31, v1
        v_lshlrev_b32 v3, 7, v3
        v_lshlrev_b32 v2, {OPT.tlb}, v1
        v_add_u32 v2, v2, v3""")
        pf_loop(k, SRD_B, max(8*MB//(st*1024), 1), st*1024)
        k.e(f"s_lshl_b32 s{S_T+4}, s{S_T}, {OPT.tlb+6}")
        pf_loop(k, SRD_A, max(4*MB//(st*1024), 1), st*1024)
        k.e("s_waitcnt vmcnt(0)")
        return
    if not nw or role != 'c': return
    k.e(f"s_cmp_ge_u32 s{S_WAVE}, {nw}\ns_cbranch_scc1 L_nopf")
    mk_srd(k, SRD_A, P_WOUT, 1792*2048); mk_srd(k, SRD_B, P_WSP, 8*MB)
    k.e(f"""s_sub_u32 s{S_T}, s2, 224
    s_mul_i32 s{S_T}, s{S_T}, {nw}
    s_add_u32 s{S_T}, s{S_T}, s{S_WAVE}
    s_lshl_b32 s{S_T+4}, s{S_T}, 13
    v_lshlrev_b32 v2, 7, v1""")
    for _ in range(OPT.pfw): k.e("s_sleep 127")
    pf_loop(k, SRD_B, 32//nw, 8192*32*nw)
    stamp(k, 12)
    k.e(f"s_lshl_b32 s{S_T+4}, s{S_T}, 13")
    pf_loop(k, SRD_A, -(-14//nw), 8192*32*nw)
    k.e("s_waitcnt vmcnt(0)\nL_nopf:")

def inv_pos(k, rot):
    inv = [0]*4
    for u, d in enumerate(rot): inv[(u+d) & 3] = -d
    packed = sum(((d+8) & 15) << (4*u) for u, d in enumerate(inv))
    k.e(f"""s_sub_u32 s{S_T}, s{S_M}, s{S_PH}
    s_and_b32 s{S_T}, s{S_T}, 3
    s_lshl_b32 s{S_T}, s{S_T}, 2
    s_lshr_b32 s{S_T}, {packed}, s{S_T}
    s_and_b32 s{S_T}, s{S_T}, 15
    s_add_u32 s{S_T}, s{S_T}, s{S_M}
    s_sub_u32 s{S_T}, s{S_T}, 8
    s_and_b32 s{S_KB}, s{S_T}, 15""")

def loader(k):
    c1, c2, c3, c4, c5 = cfgs()
    LP = LProg(k)
    def start(c, t=0): return [f"s_mov_b32 s{S_TAU}, {t}", f"s_mov_b32 s{S_SLOT}, {(t+c.slot0) % c.NS}"]
    def W_(n): return f"s_waitcnt vmcnt({n})\ns_barrier"
    k.e(f"s_lshl_b32 s{S_M0W}, s{S_LW}, 10")
    c = c1; g1 = Seg(c1, VS, VF)
    inv_pos(k, c.rot)
    k.e(f"s_lshl_b32 s{S_T0}, s{S_N}, 7")
    loader_voff_S(k, c, VS)
    loader_voff_F(k, c, VF, S_T0, lambda P: P*2048)
    LP.prep(g1, start(c))
    k.e("s_waitcnt lgkmcnt(0)")
    mk_srd(k, SRD_S, P_X, 4*MB); mk_srd(k, SRD_F, P_WQKV, 6*MB)
    stamp(k, 0); stamp(k, 1)
    LP.stage(g1); LP.stage(g1)
    LP.stage(g1, sync=W_(c.nI))
    mk_srd(k, SRD_W, P_WS, WS_END)
    if OPT.pads:
        for d in (SRD_A, SRD_B, SRD_D): mk_srd(k, d, P_X, 0)
    LP.run(g1, 13, c.nI)
    if OPT.pads: k.e("s_branch L_ld\nALIGN4K\nL_ld:")
    k.e(W_(c.nI)); itstamp(k)
    n = win_loads(k, "l")
    k.e(W_(n)); itstamp(k)
    k.e(f"""s_lshl_b32 s{S_T+12}, s{S_N}, 4
    s_add_u32 s{S_T+12}, s{S_T+12}, s{S_M}
    s_lshl_b32 s{S_T+14}, s{S_T+12}, 4
    s_add_u32 s{S_T+14}, s{S_T+14}, {WS_ZF}
    s_lshl_b32 s{S_T+12}, s{S_T+12}, 8
    s_add_u32 s{S_T+12}, s{S_T+12}, {WS_ZP}
    v_and_b32 v13, 15, v1
    v_lshlrev_b32 v13, 4, v13""")
    tile_map(k, 4, 8, 16)
    c = c2; g2 = Seg(c2, VS, VF)
    mk_srd(k, SRD_S, P_WS, 4*MB, WS_O); mk_srd(k, SRD_F, P_WO, 2*MB)
    k.e(f"s_lshl_b32 s{S_T0}, s{S_N}, 7")
    loader_voff_S(k, c, VS); loader_voff_F(k, c, VF, S_T0, lambda P: 0)
    k.e("s_barrier"); itstamp(k)
    if OPT.tw:
        mk_srd(k, SRD_D, P_OUT, 4*MB)
        k.e(f"""s_lshr_b32 s{S_T}, s2, 3
        s_lshl_b32 s{S_T}, s{S_T}, 1
        s_add_u32 s{S_T}, s{S_T}, s{S_LW}
        s_and_b32 s{S_T}, s{S_T}, {(1 << (20-OPT.tw)) - 1}
        s_lshl_b32 s{S_T}, s{S_T}, {OPT.tw}
        v_lshlrev_b32 v3, 20, v1
        v_lshl_add_u32 v3, v1, 7, v3
        buffer_load_dword v251, v3, {W}, s{S_T} offen
        buffer_load_dword v252, v3, {srd(SRD_D)}, s{S_T} offen""")
    k.e("s_barrier")
    issue_first(k, c, VS, VF, "F", pbarrier=False)
    k.e("s_barrier")
    grp(k, 1)
    loader_voff_S(k, c5, VS5); loader_voff_F(k, c5, VF5, S_T0, lambda P: 0)
    k.e(f"""s_and_b32 s{S_T}, s2, 1
    s_mul_i32 s{S_T+1}, s{S_T}, {(7 if OPT.two & 2 else 14)*4096}
    s_mul_i32 s{S_T+2}, s{S_T}, {(7 if OPT.two & 2 else 14)*64*2048}""")
    for i in range(c5.nS): k.e(f"v_add_u32 v{VS5+i}, s{S_T+1}, v{VS5+i}")
    for i in range(c5.nF):
        if i < 4: k.e(f"v_xor_b32 v{VF5+i}, 1024, v{VF5+i}")
        k.e(f"v_add_u32 v{VF5+i}, s{S_T+2}, v{VF5+i}")
    k.e(f"s_sub_u32 s{S_T0}, s{S_N}, s{S_T}\ns_lshl_b32 s{S_T0}, s{S_T0}, 8\ns_mov_b32 s{S_FB}, 3584")
    loader_voff_F(k, c3, VF3, S_T0, lambda P: P*128)
    k.e(f"s_cmp_eq_u32 s{S_LW}, 0\ns_cbranch_scc1 L_l_noz\ns_sleep {max(OPT.kvslp-8, 1)}")
    def zg(): k.e(f"buffer_load_dwordx4 v[128:131], v13, {W}, s{S_T+12} offen sc1")
    validated(k, zg, range(128, 132), 3, pre=False)
    acc_bf16(k, 136, 128, 4, True, 132)
    for sh in (8, 4, 2, 1): ror_sum(k, 136, 8, sh)
    for i in range(4): k.e(f"v_cvt_pk_bf16_f32 v{132+i}, v{136+2*i}, v{137+2*i}")
    k.e(f"s_mov_b64 exec, 1\nbuffer_store_dwordx4 v[132:135], v13, {W}, s{S_T+14} offen sc1\ns_mov_b64 exec, -1\nL_l_noz:")
    bars(k, 2)
    k.e(f"s_waitcnt vmcnt({c.NS*c.nF})")
    win_reduce(k)
    LP.prep(g2, start(c))
    LP.stage(g2, "S", sync="s_barrier")
    LP.stage(g2, "S")
    LP.stage(g2, "S", sync=W_(c.nS))
    LP.stage(g2, "S")
    LP.stage(g2, sync=W_(2*c.nS), stampit=True)
    LP.stage(g2, sync=W_(c.nS+c.nI), stampit=True)
    g3 = Seg(c3, VS, VF3, True, SRD_S, SRD_B); g4 = Seg(c4, VS4, VF4, False, SRD_A, SRD_D); g5 = Seg(c5, VS5, VF5)
    LP.run(g2, 10, 2*c.nI, nxt=g3, pre=start(c3))
    k.e("s_cmp_ge_u32 s2, 224\ns_cbranch_scc1 L_ld_helper")
    c = c3
    LP.stage(g3, "F", sync=W_(2*c2.nI))
    LP.stage(g3, "F", sync=W_(c2.nI+c.nF), nxt=False)
    k.e(W_(2*c.nF) + "\ns_barrier")
    tile_map(k, 4, 7, 14)
    mk_srd(k, SRD_S, P_WS, 4*MB, WS_H); mk_srd(k, SRD_A, P_WSP, 8*MB); mk_srd(k, SRD_D, P_WS, 7*MB, WS_Z2N)
    if not OPT.two & 1: k.e("s_barrier")
    loader_voff_S(k, c, VS); loader_voff_S(k, c4, VS4); loader_voff_F(k, c4, VF4)
    assert OPT.own2 == 2
    inv_pos(k, c4.rot)
    LP.prep(g3, start(c))
    ITST[1] = 253
    if ITST[0]: k.e("s_mov_b32 s97, 0")
    if OPT.two & 1: if_par(k, 0, "s_barrier")
    LP.stage(g3, "S", sync="s_barrier")
    LP.stage(g3, "S")
    if OPT.two & 1: if_par(k, 1, "s_barrier")
    LP.stage(g3, sync=W_(c.nS))
    LP.run(g3, 13, c.nI, nxt=g3, pre=[f"s_mov_b32 s{S_TAU}, 0", f"s_mov_b32 s{S_FB}, 0"])
    LP.run(g3, 3, c.nI, nxt=g3)
    LP.stage(g3)
    if OPT.gb: k.e("s_barrier")
    LP.run(g3, 12, 2*c.nI, nxt=g4, pre=[f"s_mov_b32 s{S_TAU}, 0"])
    mk_srd(k, SRD_S, P_WS, 7*MB, WS_U); mk_srd(k, SRD_F, P_WOUT, 1792*2048)
    c = c4
    LP.run(g4, 32, 2*c.nI, nxt=g5, pre=start(c5))
    LP.stage(g5, "F", sync=W_(2*c.nI))
    LP.stage(g5, "F", sync=W_(c.nI+c5.nF), nxt=False)
    k.e(W_(2*c5.nF))
    bars(k, 1 if OPT.two & 2 else 2)
    k.e("L_ld_p5:")
    ITST[1] = 254
    if ITST[0]: k.e("s_mov_b32 s97, 32")
    c = c5
    LP.prep(g5, start(c))
    if OPT.two & 2: if_par(k, 0, "s_barrier")
    LP.stage(g5, "S", sync="s_barrier")
    LP.stage(g5, "S")
    if OPT.two & 2: if_par(k, 1, "s_barrier")
    LP.stage(g5, sync=W_(c.nS))
    LP.run(g5, 11, c.nI)
    k.e(W_(c.nI) + "\n" + W_(0) + "\ns_barrier")
    k.e("s_branch L_fin")
    k.e("L_ld_helper:")
    k.e(W_(2*c2.nI) + "\n" + W_(c2.nI) + "\n" + W_(0))
    bars(k, 3)
    mk_srd(k, SRD_S, P_WS, 7*MB, WS_U); mk_srd(k, SRD_F, P_WOUT, 1792*2048)
    issue_first(k, c5, VS5, VF5, "F", pbarrier=False, t1=2)
    k.e("s_branch L_ld_p5")

def spread(k, fn, nbar):
    t = Kern(k.name); t.uid = k.uid
    fn(t); k.uid = t.uid
    L = [x.strip() for x in t.L]
    assert not any(x.endswith(":") for x in L)
    wt = lambda x: 10 if x.startswith("buffer_") else (1 if x.startswith(("v_", "ds_")) else 0.25)
    tot = sum(map(wt, L)); acc = 0; nb = 0
    low = OPT.vprio and sum(x.startswith("v_") for x in L) > 20
    if low: k.e("s_setprio 0")
    for x in L:
        k.e(x); acc += wt(x)
        if nb < nbar-1 and acc >= tot*(nb+1)/nbar - 1e-9:
            k.e("s_barrier"); nb += 1
    if low: k.e(f"s_setprio {OPT.pa}")
    while nb < nbar:
        k.e("s_barrier"); nb += 1

_carry = []
def merge(k, vm, va, nbar, share, hook=None):
    def cap(fns):
        t = Kern(k.name); t.uid = k.uid
        for f in fns: f(t)
        k.uid = t.uid
        return [x.strip() for x in t.L]
    M = cap(vm); _carry.extend(cap(va))
    nv = len(_carry) if share >= 1 else int(len(_carry)*share)
    V = _carry[:nv]; del _carry[:nv]
    nm = sum(x.startswith("buffer_") for x in M)
    mi = 0; seen = 0; full = True
    for b in range(nbar):
        tgt = nm*(b+1)/nbar
        while mi < len(M) and (seen < tgt or not full or b == nbar-1):
            x = M[mi]; k.e(x); mi += 1
            if x.startswith("buffer_"): seen += 1
            if "exec" in x.split(",")[0]: full = x.replace(" ", "") == "s_mov_b64exec,-1"
        for x in V[len(V)*b//nbar: len(V)*(b+1)//nbar]: k.e(x)
        k.e("s_barrier")
        if hook: hook(b)

def combine_half(k, P, stride, n, ntot, cnt, d, t):
    k.e(f"v_add_f32 v{d}, v{P}, v{P+stride}\nv_add_f32 v{d+1}, v{P+1}, v{P+stride+1}")
    for i in range(2, n): k.e(f"v_add_f32 v{d}, v{d}, v{P+stride*i}\nv_add_f32 v{d+1}, v{d+1}, v{P+stride*i+1}")
    if ntot != n: xswap_sum1(k, d, t)
    k.e(f"v_mul_f32 v{d}, {f2u(1.0/ntot)}, v{d}\nv_sub_f32 v{t}, v{P}, v{d}\nv_mul_f32 v{t+1}, v{t}, v{t}")
    for i in range(1, n): k.e(f"v_sub_f32 v{t}, v{P+stride*i}, v{d}\nv_fmac_f32 v{t+1}, v{t}, v{t}")
    k.e(f"v_fmac_f32 v{d+1}, {f2u(float(cnt))}, v{t+1}")
    if ntot != n: xswap_sum1(k, d+1, t)

def code_touch(k, lo, first, nlines):
    if not OPT.ct: return
    here = k.lab("pc")
    k.e(f"""s_getpc_b64 s[{S_X}:{S_X+1}]
    {here}:
    s_add_u32 s{S_X}, s{S_X}, {lo}-{here}
    s_addc_u32 s{S_X+1}, s{S_X+1}, {'-1' if lo == KNAME else '0'}
    s_lshr_b32 s{S_T}, s2, 3
    s_sub_u32 s{S_T}, s{S_T}, {first}
    s_lshl_b32 s{S_T}, s{S_T}, 1
    s_add_u32 s{S_T}, s{S_T}, s{S_LW}
    s_mul_i32 s{S_T}, s{S_T}, {nlines*128}
    v_min_u32 v249, {nlines-1}, v1
    v_lshlrev_b32 v249, 7, v249
    v_add_u32 v249, s{S_T}, v249
    v_min_u32 v249, L_end-{lo}, v249
    global_load_dword v250, v249, s[{S_X}:{S_X+1}]""")

def xp_init(k):
    if not OPT.sk: return
    k.e(f"""s_lshl_b32 s{S_T}, s2, 14
    s_lshl_b32 s{S_T+1}, s{S_LW}, 13
    s_add_u32 s{S_T}, s{S_T}, s{S_T+1}
    s_add_u32 s{S_T}, s{S_T}, {WS_XP}
    s_add_u32 s{S_T+1}, s{S_T}, 4096""")
    for i in range(8): k.e(f"buffer_store_dwordx4 v[44:47], v2, {W}, s{S_T+(i>>2)} offen offset:{(i&3)*1024} sc1")
    k.e("s_waitcnt vmcnt(0)")
def u_cnt(k):
    cnt_addr(k, 9, F_U, S_M)
    if OPT.sk: k.e(f"s_and_b32 s{S_T}, s2, 1\ns_lshl_b32 s{S_T}, s{S_T}, 7\nv_add_u32 v9, s{S_T}, v9")

def aux(k):
    c1, c2, c3, c4, c5 = cfgs()
    a = S_LW
    k.e(f"""s_lshl_b32 s{S_T}, s{S_M}, 7
    s_lshl_b32 s{S_T+1}, s{S_N}, 3
    s_add_u32 s{S_T}, s{S_T}, s{S_T+1}
    s_lshl_b32 s{S_T+1}, s{a}, 2
    s_add_u32 s{S_T}, s{S_T}, s{S_T+1}
    v_lshrrev_b32 v14, 4, v1
    v_add_u32 v14, s{S_T}, v14
    v_and_b32 v3, 15, v1
    v_lshlrev_b32 v3, 4, v3
    v_lshl_add_u32 v3, v14, 11, v3
    s_waitcnt lgkmcnt(0)""")
    mk_srd(k, SRD_B, P_X, 4*MB)
    XR = 192 if OPT.xa else 64
    if OPT.xa: k.e(f"s_sleep {OPT.xa}")
    for j in range(8): k.e(f"buffer_load_dwordx4 v[{XR+4*j}:{XR+3+4*j}], v3, {srd(SRD_B)}, 0 offen offset:{256*j}")
    mk_srd(k, SRD_W, P_WS, WS_END); mk_srd(k, SRD_A, P_WPHI, 65536); mk_srd(k, SRD_D, P_DBG, 256)
    if OPT.pads:
        for d in (SRD_S, SRD_F): mk_srd(k, d, P_X, 0)
    stamp(k, 0)
    q = OPT.spq
    k.e(f"""v_lshlrev_b32 v2, 4, v1
    v_mov_b32 v11, 1
    v_mov_b32 v44, -1
    v_mov_b32 v45, -1
    v_mov_b32 v46, -1
    v_mov_b32 v47, -1
    v_lshrrev_b32 v4, 5, v1
    v_lshlrev_b32 v4, 13, v4
    v_and_b32 v5, 31, v1
    v_lshl_add_u32 v4, v5, 4, v4
    v_bfe_u32 v12, v1, 2, 2
    v_min_u32 v12, 2, v12
    v_lshlrev_b32 v12, 13, v12
    v_lshrrev_b32 v5, 4, v1
    v_lshl_add_u32 v12, v5, 11, v12
    v_and_b32 v5, 3, v1
    v_lshl_add_u32 v12, v5, 4, v12
    s_mov_b32 s{S_T}, {q if q >= 0 else 's93'}
    s_sub_u32 s{S_T+1}, s{S_T}, 3
    s_cmp_ge_u32 s{S_T}, 3
    s_cselect_b32 s{S_T}, s{S_T+1}, s{S_T}
    s_mul_i32 s{S_T}, s{S_T}, {c1.slotF}
    s_add_u32 s{S_T}, s{S_T}, {c1.baseF}
    v_add_u32 v12, s{S_T}, v12
    v_bfe_u32 v13, v1, 2, 2
    v_lshl_add_u32 v12, v13, 7, v12
    v_lshrrev_b32 v13, 1, v13
    v_xor_b32 v13, s{a}, v13
    v_lshl_add_u32 v24, v13, 6, v12
    v_xor_b32 v25, 128, v24
    v_xor_b32 v26, 320, v24
    v_xor_b32 v27, 448, v24
    v_lshlrev_b32 v14, 2, v14""")
    X = 128
    for j in range(0 if OPT.xa else 8):
        k.e(f"s_waitcnt vmcnt({7-j})")
        for i in range(4*j, 4*j+4):
            unpack(k, X+2*i, X+2*i+1, 64+i)
            t = 32+2*(i & 1)
            if i >= 2: k.e(f"v_pk_add_f32 v[{t}:{t+1}], v[{X+2*i-4 if i < 4 else t}:{X+2*i-3 if i < 4 else t+1}], v[{X+2*i}:{X+2*i+1}]")
    stamp(k, 10)
    k.e("s_barrier")
    def init(k):
        k.e(f"""s_mov_b32 s{S_T+14}, {WS_XS}
        s_mov_b32 s{S_T+15}, {WS_XS+8192}
        s_mov_b32 exec_lo, 0x10001
        s_mov_b32 exec_hi, 0x10001
        buffer_store_dword v44, v14, {W}, s{S_T+14} offen sc1
        buffer_store_dword v44, v14, {W}, s{S_T+15} offen sc1
        s_mov_b64 exec, -1
        s_lshl_b32 s{S_T}, s{S_N}, 17
        s_lshl_b32 s{S_T+1}, s{S_M}, 9
        s_add_u32 s{S_T}, s{S_T}, s{S_T+1}
        s_lshl_b32 s{S_T+1}, s{a}, 16
        s_add_u32 s{S_T}, s{S_T}, s{S_T+1}
        s_add_u32 s{S_T}, s{S_T}, {WS_KVP}""")
        for x in range(4): k.e(f"buffer_store_dwordx4 v[44:47], v4, {W}, s{S_T} offen sc1\ns_add_u32 s{S_T}, s{S_T}, 16384")
        k.e(f"""s_lshl_b32 s{S_T+12}, s{S_N}, 4
        s_add_u32 s{S_T+12}, s{S_T+12}, s{S_M}
        s_lshl_b32 s{S_T+12}, s{S_T+12}, 1
        s_add_u32 s{S_T+12}, s{S_T+12}, s{a}
        s_mul_i32 s{S_T+12}, s{S_T+12}, 384
        s_add_u32 s{S_T+12}, s{S_T+12}, {WS_CQP}
        s_mov_b64 exec, 0xffffff
        buffer_store_dwordx4 v[44:47], v2, {W}, s{S_T+12} offen sc1
        s_lshl_b32 s{S_T}, s2, 10
        s_add_u32 s{S_T}, s{S_T}, {WS_HST}
        s_mul_i32 s{S_T+1}, s2, 528
        s_add_u32 s{S_T+1}, s{S_T+1}, {WS_KVF}
        s_mul_i32 s{S_T+2}, s2, 896
        s_add_u32 s{S_T+3}, s{S_T+2}, {WS_CSP}
        s_add_u32 s{S_T+2}, s{S_T+2}, {WS_ZST}
        s_mov_b32 s{S_T+4}, 0xffffff
        s_cmp_eq_u32 s{a}, 0
        s_cselect_b32 s{S_T}, s{S_T}, s{S_T+2}
        s_cselect_b32 s{S_T+1}, s{S_T+1}, s{S_T+3}
        s_cselect_b32 s{S_T+5}, -1, s{S_T+4}
        s_cselect_b32 s{S_T+6}, 1, s{S_T+4}
        s_mov_b32 exec_lo, -1
        s_mov_b32 exec_hi, s{S_T+5}
        buffer_store_dwordx4 v[44:47], v2, {W}, s{S_T} offen sc1
        s_mov_b32 exec_hi, s{S_T+6}
        buffer_store_dwordx4 v[44:47], v2, {W}, s{S_T+1} offen sc1
        s_mov_b64 exec, -1
        s_mul_i32 s{S_T}, s2, {FLS}
        s_add_u32 s{S_T}, s{S_T}, {WS_FLAG}
        s_cmp_lt_u32 s2, 64
        s_cselect_b32 s{S_T}, s{S_T}, {WS_END}
        s_lshl_b32 s{S_T+1}, s2, 8
        s_add_u32 s{S_T+1}, s{S_T+1}, {WS_ZP}
        s_cmp_eq_u32 s{a}, 0
        s_cselect_b32 s{S_T}, s{S_T}, s{S_T+1}
        s_cselect_b32 s{S_T+1}, 0, -1
        v_mov_b32 v48, s{S_T+1}
        v_lshlrev_b32 v5, 2, v1
        buffer_store_dword v48, v5, {W}, s{S_T} offen sc1""")
    def xs2(k):
        if OPT.xa:
            for i in range(32):
                unpack(k, X+2*i, X+2*i+1, XR+i)
                t = 32+2*(i & 1)
                if i >= 2:
                    for e_ in range(2): k.e(f"v_add_f32 v{t+e_}, v{X+2*i-4+e_ if i < 4 else t+e_}, v{X+2*i+e_}")
        k.e("v_add_f32 v32, v32, v34\nv_add_f32 v33, v33, v35\nv_add_f32 v32, v32, v33")
        for sh in (8, 4, 2, 1): ror_sum(k, 32, 1, sh)
        k.e(f"v_mul_f32 v32, {f2u(1/1024.)}, v32")
        for i in range(64):
            d = 40+(i & 3); t = 34+(i & 3)
            k.e(f"v_sub_f32 v{d}, v{X+i}, v32")
            k.e(f"v_mul_f32 v{t}, v{d}, v{d}" if i < 4 else f"v_fmac_f32 v{t}, v{d}, v{d}")
        k.e("v_add_f32 v34, v34, v35\nv_add_f32 v36, v36, v37\nv_add_f32 v33, v34, v36")
        for sh in (8, 4, 2, 1): ror_sum(k, 33, 1, sh)
        finish_rstd(k, 32, 1024)
    def qld(k):
        k.e(f"""s_lshl_b32 s{S_T}, s{S_N}, 12
        s_lshl_b32 s{S_T+1}, s{a}, 11
        s_add_u32 s{S_T}, s{S_T}, s{S_T+1}
        s_add_u32 m0, s{S_T+1}, {L_WPHI}
        s_nop 0
        buffer_load_dwordx4 v2, {srd(SRD_A)}, s{S_T} offen lds
        buffer_load_dwordx4 v2, {srd(SRD_A)}, s{S_T} offen offset:1024 lds""")
    def sprd(b):
        if b == q-1 or (q < 0 and OPT.q0 <= b+1 <= OPT.q0 + 7*OPT.qm//8):
            if q < 0: k.e(f"s_cmp_lg_u32 s93, {b+1}\ns_cbranch_scc1 L_nsp{b+1}")
            for j in range(16):
                k.e(f"ds_read_b128 v[{64+4*j}:{67+4*j}], v{24 + (j&3)} offset:{(j>>2)*512}")
                if j == 7:
                    k.e("s_waitcnt lgkmcnt(4)")
                    for r_ in range(24, 28): k.e(f"v_xor_b32 v{r_}, 32, v{r_}")
            k.e("s_waitcnt lgkmcnt(0)")
            if q < 0: k.e(f"L_nsp{b+1}:")
    assert q <= 5
    sprd(-1)
    if OPT.qpf:
        mk_srd(k, SRD_B, P_WQKV, 6*MB)
        k.e(f"""s_lshl_b32 s{S_T}, s2, 1
        s_add_u32 s{S_T}, s{S_T}, s{a}
        s_mul_i32 s{S_T}, s{S_T}, {96*128}
        v_lshlrev_b32 v3, 7, v1
        buffer_load_dword v250, v3, {srd(SRD_B)}, s{S_T} offen
        s_add_u32 s{S_T}, s{S_T}, 4096
        buffer_load_dword v251, v3, {srd(SRD_B)}, s{S_T} offen""")
    if OPT.xa: k.e("s_waitcnt vmcnt(0)")
    A = 128
    arr = f"""s_cmp_lg_u32 s{a}, 0
    s_cbranch_scc1 L_a_noarr
    s_and_b32 s{S_T}, s2, 7
    s_lshl_b32 s{S_T}, s{S_T}, 5
    v_mov_b32 v4, s{S_T}
    s_mov_b64 exec, 1
    buffer_atomic_add v11, v4, {srd(SRD_D)}, 0 offen sc1
    s_mov_b64 exec, -1
    L_a_noarr:"""
    xst = f"""s_mov_b32 exec_lo, 0x10001
    s_mov_b32 exec_hi, 0x10001
    buffer_store_dword v32, v14, {W}, s{S_T+14} offen sc1
    buffer_store_dword v33, v14, {W}, s{S_T+15} offen sc1
    s_mov_b64 exec, -1"""
    def csum(k):
        for j in range(16): acc_bf16(k, A, 64+4*j, 4, j == 0, 50, plain=True)
        xswap_sum(k, A, 160, 8, 16); xswap_sum(k, A, 160, 8, 32)
    cst = f"""v_lshlrev_b32 v4, 5, v1
    s_mov_b64 exec, 0xfff
    buffer_store_dwordx4 v[{A}:{A+3}], v4, {W}, s{S_T+12} offen sc1
    buffer_store_dwordx4 v[{A+4}:{A+7}], v4, {W}, s{S_T+12} offen offset:16 sc1
    s_mov_b64 exec, -1
    v_lshlrev_b32 v10, 5, v1"""
    def before_bar(text):
        b = k.L.pop(); k.e(text); k.L.append(b)
    if not OPT.late:
        code_touch(k, KNAME, 0, 11)
        merge(k, [init], [xs2], 2, 0.3, hook=sprd)
        merge(k, [], [], 1, 0.4); sprd(2)
        merge(k, [], [], 1, 0.67)
        before_bar("s_waitcnt vmcnt(0)")
        k.e(arr); sprd(3)
        merge(k, [qld], [], 1, 1.0)
        k.e(xst); sprd(4)
        k.e("s_barrier")
        merge(k, [], [csum], 5, 1.0)
    else:
        merge(k, [], [xs2], 3, 0.8, hook=sprd)
        code_touch(k, KNAME, 0, 11)
        merge(k, [init], [], 3, 1.0, hook=lambda b: sprd(b+3) if b < 2 else None)
        merge(k, [], [csum], 2, 0.4)
        before_bar("s_waitcnt vmcnt(0)")
        k.e(arr); k.e(xst)
        merge(k, [qld], [], 3, 1.0)
    before_bar(cst)
    sample(k, 10, SRD_D)
    k.e(f"""s_lshl_b32 s{S_T+14}, s{a}, 13
    s_lshl_b32 s{S_T+1}, s{S_M}, 9
    s_add_u32 s{S_T+14}, s{S_T+14}, s{S_T+1}
    s_add_u32 s{S_T+14}, s{S_T+14}, {WS_XS}
    s_mul_i32 s{S_T+12}, s{S_N}, {16*768}
    s_mul_i32 s{S_T+13}, s{a}, 384
    s_add_u32 s{S_T+12}, s{S_T+12}, s{S_T+13}
    s_add_u32 s{S_T+12}, s{S_T+12}, {WS_CQP}
    v_and_b32 v12, 31, v1
    v_min_u32 v12, 23, v12
    v_lshlrev_b32 v12, 4, v12
    v_lshrrev_b32 v13, 5, v1
    v_mul_u32_u24 v13, 768, v13
    v_add_u32 v13, v13, v12
    v_lshlrev_b32 v5, 3, v1""")
    k.e("s_barrier")
    poll(k, 10, 8, SRD_D, 32, pre=True)
    stamp(k, 1)
    k.e("s_barrier")
    def cqg():
        k.e(f"s_mov_b32 s{S_T}, s{S_T+12}")
        for i in range(8):
            k.e(f"buffer_load_dwordx4 v[{64+4*i}:{67+4*i}], v13, {W}, s{S_T} offen offset:{(i&1)*1536} sc1")
            if i & 1: k.e(f"s_add_u32 s{S_T}, s{S_T}, 3072")
        k.e(f"buffer_load_dwordx2 v[96:97], v5, {W}, s{S_T+14} offen sc1")
    cqg()
    k.e("s_barrier")
    k.e("s_waitcnt vmcnt(0)")
    validated(k, cqg, range(64, 98), 3)
    for i in range(1, 8):
        for j in range(4): k.e(f"v_add_f32 v{64+j}, v{64+j}, v{64+4*i+j}")
    k.e("s_barrier")
    xswap_sum(k, 64, 68, 4, 32)
    k.e(f"""s_add_u32 s{S_T+13}, s{S_T+13}, {L_CQ}
    v_add_u32 v3, s{S_T+13}, v12
    ds_write_b128 v3, v[64:67]
    s_lshl_b32 s{S_T}, s{a}, 9
    s_add_u32 s{S_T}, s{S_T}, {L_XS}
    v_add_u32 v5, s{S_T}, v5
    ds_write_b64 v5, v[96:97]
    s_waitcnt lgkmcnt(0)
    s_barrier""")
    stamp(k, 2)
    win_loads(k, "a")
    cnt_addr(k, 9, F_O, S_M)
    k.e(f"""s_lshl_b32 s{S_T+12}, s{S_N}, 17
    s_lshl_b32 s{S_T+1}, s{S_M}, 13
    s_add_u32 s{S_T+12}, s{S_T+12}, s{S_T+1}
    s_lshl_b32 s{S_T+2}, s{a}, 8
    s_add_u32 s{S_T+12}, s{S_T+12}, s{S_T+2}
    s_add_u32 s{S_T+12}, s{S_T+12}, {WS_KVP}
    s_add_u32 s{S_T+13}, s{S_T+12}, 4096
    s_lshl_b32 s{S_T+14}, s{S_N}, 13
    s_lshl_b32 s{S_T+1}, s{S_M}, 9
    s_add_u32 s{S_T+14}, s{S_T+14}, s{S_T+1}
    s_add_u32 s{S_T+14}, s{S_T+14}, s{S_T+2}
    s_add_u32 s{S_T+14}, s{S_T+14}, {WS_KVF}
    v_and_b32 v12, 15, v1
    v_lshlrev_b32 v12, 4, v12
    v_lshrrev_b32 v5, 4, v1
    v_lshl_add_u32 v13, v5, 9, v12
    v_lshl_add_u32 v12, v5, 2, v12""")
    bars(k, 2)
    if OPT.kvslp: k.e(f"s_sleep {OPT.kvslp}")
    def kvg(k=k):
        for i in range(4): k.e(f"buffer_load_dwordx4 v[{64+4*i}:{67+4*i}], v13, {W}, s{S_T+12+(i>>1)} offen offset:{(i&1)*2048} sc1")
    validated(k, kvg, range(64, 80), 3, pre=False)
    stamp(k, 3)
    for i in range(4): acc_bf16(k, 128, 64+4*i, 4, i == 0, 48)
    k.e("s_nop 0")
    for i in range(4): k.e(f"v_permlane32_swap_b32 v{128+i}, v{132+i}")
    k.e("v_pk_add_f32 v[128:129], v[128:129], v[132:133]\nv_pk_add_f32 v[130:131], v[130:131], v[134:135]\ns_nop 1")
    k.e("v_permlane16_swap_b32 v128, v130\nv_permlane16_swap_b32 v129, v131\nv_pk_add_f32 v[128:129], v[128:129], v[130:131]\nv_cvt_pk_bf16_f32 v52, v128, v129")
    k.e(f"buffer_store_dword v52, v12, {W}, s{S_T+14} offen sc1")
    stamp(k, 4)
    if OPT.kfslp: k.e(f"s_sleep {OPT.kfslp}")
    k.e("L_a_kvd:")
    k.e(f"""s_lshl_b32 s{S_T}, s{S_N}, 1
    s_add_u32 s{S_T}, s{S_T}, s{a}
    s_lshl_b32 s{S_T+12}, s{S_T}, 12
    s_add_u32 s{S_T+12}, s{S_T+12}, {WS_KVF}
    s_lshl_b32 s{S_T+13}, s{S_T}, 7
    s_add_u32 s{S_T+13}, s{S_T+13}, {WS_ZF}
    v_and_b32 v13, 7, v1
    v_lshlrev_b32 v13, 4, v13
    s_lshl_b32 s{S_T}, s{a}, 12
    v_add_u32 v4, s{S_T}, v2
    s_lshl_b32 s{S_T}, s{a}, 7
    v_add_u32 v5, s{S_T}, v13""")
    def kfg():
        for i in range(4): k.e(f"buffer_load_dwordx4 v[{64+4*i}:{67+4*i}], v2, {W}, s{S_T+12} offen offset:{i*1024} sc1")
        k.e(f"buffer_load_dwordx4 v[80:83], v13, {W}, s{S_T+13} offen sc1")
    validated(k, kfg, range(64, 84), 3, pre=False)
    for i in range(4): k.e(f"ds_write_b128 v4, v[{64+4*i}:{67+4*i}] offset:{L_KV+i*1024}")
    k.e(f"ds_write_b128 v5, v[80:83] offset:{L_Z}\ns_waitcnt lgkmcnt(0)\ns_barrier")
    grp(k, 1)
    tile_map(k, 4, 8, 16)
    cnt_addr(k, 10, F_O, S_M)
    k.e("s_barrier")
    set_flag(k, 9)
    win_reduce(k)
    poll(k, 10, 1, val=16)
    stamp(k, 11)
    k.e("s_barrier")
    stamp(k, 12)
    k.e(f"""s_cmp_eq_u32 s{a}, 0
    s_cbranch_scc1 L_a_nocw
    s_cmp_ge_u32 s2, 224
    s_cbranch_scc1 L_a_nocw
    v_lshlrev_b32 v4, 3, v1
    v_add_u32 v3, {L_CW}, v4""")
    for i in range(8): k.e(f"ds_read_b64 v[{192+2*i}:{193+2*i}], v3 offset:{i*512}")
    k.e(f"""s_mul_i32 s{S_T}, s{S_CW+1}, 14336
    s_lshl_b32 s{S_T+1}, s{S_CW}, 9
    s_add_u32 s{S_T}, s{S_T}, s{S_T+1}
    s_add_u32 s{S_T}, s{S_T}, {WS_CSP}
    s_waitcnt lgkmcnt(0)""")
    for i in range(1, 8): k.e(f"v_pk_add_f32 v[192:193], v[192:193], v[{192+2*i}:{193+2*i}]")
    k.e(f"buffer_store_dwordx2 v[192:193], v4, {W}, s{S_T} offen sc1\nL_a_nocw:")
    cnt_addr(k, 9, F_H, S_M)
    tile_map(k, 4, 7, 14)
    k.e(f"""v_and_b32 v14, 31, v1
    v_lshlrev_b32 v14, 4, v14
    v_lshrrev_b32 v15, 5, v1
    v_mul_u32_u24 v13, {1792*4}, v15
    v_add_u32 v13, v13, v14
    s_lshl_b32 s{S_T}, s{a}, 9
    v_add_u32 v14, s{S_T}, v14
    s_lshl_b32 s{S_T+13}, s{S_N}, 9
    s_add_u32 s{S_T+13}, s{S_T+13}, {WS_CSP}
    s_lshl_b32 s{S_T+12}, s{S_M}, 10
    s_add_u32 s{S_T+12}, s{S_T+12}, {WS_HST}""")
    def cap_(fn):
        t = Kern(k.name); t.uid = k.uid; fn(t); k.uid = t.uid; return "\n".join(t.L)
    def two_addr():
        k.e(f"v_mov_b32 v23, v9\nv_add_u32 v24, 128, v9\ns_and_b32 s{S_T}, s2, 1\ns_lshl_b32 s{S_T}, s{S_T}, 7\nv_add_u32 v9, s{S_T}, v9")
    def two_sync(val, st):
        if_par(k, 0, "s_barrier\n" + cap_(lambda t: set_flag(t, 9)))
        poll(k, 23, 1, val=val)
        stamp(k, st)
        k.e("s_barrier")
        if_par(k, 1, "s_barrier\n" + cap_(lambda t: set_flag(t, 9)))
    if OPT.two & 1: two_addr()
    def cg():
        k.e(f"s_mov_b32 s{S_T}, s{S_T+13}")
        for i in range(8): k.e(f"buffer_load_dwordx4 v[{64+4*i}:{67+4*i}], v13, {W}, s{S_T} offen sc1\ns_add_u32 s{S_T}, s{S_T}, 14336")
    bars(k, 14)
    k.e(f"s_cmp_ge_u32 s2, 224\ns_cbranch_scc1 L_a_helper\ns_cmp_eq_u32 s{a}, 0\ns_cbranch_scc1 L_a_nocs")
    cg()
    k.e("s_barrier\ns_barrier\ns_barrier\ns_waitcnt vmcnt(0)")
    validated(k, cg, range(64, 96), 3)
    for i in range(1, 8): k.e(f"v_pk_add_f32 v[64:65], v[64:65], v[{64+4*i}:{65+4*i}]\nv_pk_add_f32 v[66:67], v[66:67], v[{66+4*i}:{67+4*i}]")
    k.e(f"v_add_u32 v3, {L_CS}, v2\nds_write_b128 v3, v[64:67]\ns_branch L_a_cs\nL_a_nocs:\ns_barrier\ns_barrier\ns_barrier\nL_a_cs:")
    if OPT.two & 1: two_sync(8, 13)
    else:
        k.e("s_barrier")
        set_flag(k, 9)
        poll(k, 9, 1, val=16)
        stamp(k, 13)
        k.e("s_barrier")
    stamp(k, 14)
    k.e(f"v_lshl_add_u32 v13, v15, 17, v14")
    def hg(k=k):
        k.e(f"s_mov_b32 s{S_T}, s{S_T+12}")
        for i in range(8): k.e(f"buffer_load_dwordx4 v[{64+4*i}:{67+4*i}], v13, {W}, s{S_T} offen sc1\ns_add_u32 s{S_T}, s{S_T}, 16384")
    if OPT.two & 1:
        bars(k, 4)
        sample(k, 24)
        bars(k, 2)
        poll(k, 24, 1, val=8, pre=True)
        hg()
        k.e("s_barrier")
    else:
        bars(k, OPT.hpos)
        spread(k, hg, OPT.hsp); bars(k, 7-OPT.hpos-OPT.hsp)
    k.e("s_barrier\ns_waitcnt vmcnt(0)")
    validated(k, hg, range(65, 96, 2), 3)
    def hfin(k):
        for r in range(2):
            d = 4+4*r if r == 0 else 16
            combine_half(k, 64+2*r, 4, 8, 16, 64, d, 20)
            k.e(f"""v_mul_f32 v{d+1}, {f2u(1.0/1024)}, v{d+1}
            v_add_f32 v{d+1}, {f2u(1e-5)}, v{d+1}
            v_rsq_f32 v20, v{d+1}
            v_sqrt_f32 v{d+3}, v{d+1}
            v_sub_f32 v{d}, 0, v{d}
            v_mul_f32 v{d+1}, {f2u(C0)}, v20
            v_mul_f32 v{d+2}, v20, v20
            v_mul_f32 v{d+2}, v{d+2}, v20
            v_mul_f32 v{d+2}, {f2u(C1)}, v{d+2}""")
        k.e(f"""v_lshlrev_b32 v3, 1, v14
        s_lshl_b32 s{S_T+14}, s2, 11
        s_add_u32 s{S_T+14}, s{S_T+14}, {WS_HC}
        v_cmp_gt_u32 vcc, 32, v1
        v_lshl_add_u32 v3, v15, 4, v3
        s_nop 0
        v_cndmask_b32 v4, v16, v4, vcc
        v_cndmask_b32 v5, v17, v5, vcc
        v_cndmask_b32 v6, v18, v6, vcc
        v_cndmask_b32 v7, v19, v7, vcc
        buffer_store_dwordx4 v[4:7], v3, {W}, s{S_T+14} offen
        s_lshl_b32 s{S_T}, s{a}, 10
        s_add_u32 s{S_T+14}, s{S_T+14}, s{S_T}
        s_add_u32 m0, s{S_T}, {L_HS}
        s_mul_i32 s{S_T+12}, s{S_M}, {14*1024}
        s_add_u32 s{S_T+12}, s{S_T+12}, {WS_ZST}
        s_lshl_b32 s{S_T+13}, s{S_N}, 10
        s_add_u32 s{S_T+13}, s{S_T+13}, s{S_T+12}
        s_lshl_b32 s{S_T}, s{a}, 9
        v_lshlrev_b32 v22, 3, v1
        v_add_u32 v22, s{S_T}, v22
        v_add_u32 v12, {L_ZP}, v22
        v_mul_u32_u24 v13, {7*1024}, v15
        v_add_u32 v13, v13, v14""")
        cnt_addr(k, 10, F_Z, S_N); u_cnt(k)
    spread(k, hfin, 4)
    k.e(f"s_barrier\ns_barrier\ns_waitcnt vmcnt(0) lgkmcnt(0)\nbuffer_load_dwordx4 v2, {W}, s{S_T+14} offen sc1 lds")
    k.e("s_barrier\ns_barrier\ns_waitcnt vmcnt(0)")
    k.e("s_barrier")
    if OPT.sk and OPT.xis: k.e(f"s_sleep {OPT.xis}")
    xp_init(k)
    k.e("s_barrier")
    k.e(f"""ds_read_b64 v[64:65], v12
    ds_read_b64 v[66:67], v12 offset:1024
    s_waitcnt lgkmcnt(0)
    v_add_f32 v4, v64, v66
    v_mul_f32 v4, 0.5, v4
    v_sub_f32 v6, v64, v66
    v_mul_f32 v6, v6, v6
    v_add_f32 v5, v65, v67
    v_fmac_f32 v5, {f2u(32.0)}, v6
    buffer_store_dwordx2 v[4:5], v22, {W}, s{S_T+13} offen sc1""")
    stamp(k, 6)
    g = OPT.gat
    bars(k, g-16+OPT.gb)
    def zsg():
        k.e(f"s_add_u32 s{S_T}, s{S_T+12}, 4096")
        for i in range(7):
            k.e(f"buffer_load_dwordx4 v[{64+4*i}:{67+4*i}], v13, {W}, s{S_T+12 if i < 4 else S_T} offen offset:{(i&3)*1024} sc1")
    zsg()
    k.e("s_barrier\ns_waitcnt vmcnt(0)")
    validated(k, zsg, range(65, 92, 2), 3)
    stamp(k, 7)
    def zfin(k):
        for r in range(2):
            combine_half(k, 64+2*r, 4, 7, 14, 128, 4+2*r, 20); finish_rstd(k, 4+2*r, 1792)
        if OPT.zdma:
            k.e(f"""s_lshl_b32 s{S_T}, s{a}, 9
            s_add_u32 m0, s{S_T}, {L_ZS}
            s_mov_b32 exec_hi, 0
            buffer_store_dwordx4 v[4:7], v2, {W}, s{S_T+14} offen""")
        else: k.e(f"v_add_u32 v3, {L_ZS}, v14")
    if OPT.zdma:
        spread(k, zfin, OPT.zsp-2)
        k.e(f"s_waitcnt vmcnt(0)\nbuffer_load_dwordx4 v2, {W}, s{S_T+14} offen sc1 lds\ns_mov_b32 exec_hi, -1\ns_barrier\ns_waitcnt vmcnt(0)\ns_barrier")
    else:
        spread(k, zfin, OPT.zsp-1)
        k.e("ds_write_b128 v3, v[4:7]\ns_waitcnt lgkmcnt(0)\ns_barrier")
    nf = OPT.nst
    zb = g+1+OPT.zsp
    fb = zb+nf+1+OPT.vmd
    cb = 28 if OPT.own2 else 26
    assert fb <= cb
    bars(k, fb-zb)
    set_flag(k, 10)
    bars(k, cb-fb)
    sample(k, 10)
    k.e("s_barrier")
    poll(k, 10, 1, val=16, pre=True)
    stamp(k, 8)
    if OPT.two & 2:
        bars(k, 62-cb)
        k.e("L_a_p5:")
        cnt_addr(k, 9, F_U, S_M); two_addr()
        two_sync(7, 15)
        bars(k, 3)
        sample(k, 24)
        bars(k, 2)
        poll(k, 24, 1, val=7, pre=True)
    else:
        bars(k, 63-cb)
        set_flag(k, 9)
        k.e("L_a_p5:")
        poll(k, 9, 1, val=7 if OPT.sk else 14)
        stamp(k, 15)
        k.e("s_barrier")
    k.e("s_branch L_fin")
    k.e("L_a_helper:")
    bars(k, 4)
    set_flag(k, 9)
    k.e("s_barrier")
    if OPT.ct > 1: code_touch(k, "L_c_p3", 28, 44)
    if OPT.sk:
        xp_init(k)
        k.e(f"""v_mov_b32 v9, {F_Z + 14*FLS}
        s_mov_b64 exec, 1
        buffer_atomic_add v11, v9, {W}, 0 offen sc1
        s_mov_b64 exec, -1
        s_sleep 64""")
        poll(k, 9, 1, val=64)
    u_cnt(k)
    k.e("v_mov_b32 v11, 0")
    k.e("s_branch L_a_p5")

def swaps(p):
    return [f"v_permlane16_swap_b32 v{p}, v{p+2}", f"v_permlane16_swap_b32 v{p+1}, v{p+3}"]
def pack32(k, dst, a):
    cvt16(k, dst, a)
    for x in swaps(dst): k.e(x)
    for x in swaps(dst+4): k.e(x)

def gelu_quads(k, quads, t):
    for g in range(0, len(quads), 2):
        P = [(y+2*i, cs+2*i, s, t+4*j+2*i) for j, (y, cs, s) in enumerate(quads[g:g+2]) for i in range(2)]
        for y, cs, s, p in P: k.e(f"v_pk_fma_f32 v[{y}:{y+1}], v[{cs}:{cs+1}], v[{s}:{s+1}], v[{y}:{y+1}] op_sel_hi:[1,0,1]")
        for y, cs, s, p in P: k.e(f"v_pk_mul_f32 v[{p}:{p+1}], v[{y}:{y+1}], v[{y}:{y+1}]")
        for y, cs, s, p in P: k.e(f"v_pk_fma_f32 v[{p}:{p+1}], v[{p}:{p+1}], v[{s+2}:{s+3}], v[{s}:{s+1}] op_sel:[0,0,1] op_sel_hi:[1,0,1]")
        for y, cs, s, p in P: k.e(f"v_pk_mul_f32 v[{p}:{p+1}], v[{p}:{p+1}], v[{y}:{y+1}]")
        for j in range(8): k.e(f"v_exp_f32 v{t+j}, v{t+j}")
        for y, cs, s, p in P: k.e(f"v_pk_fma_f32 v[{p}:{p+1}], v[{p}:{p+1}], v[{s+2}:{s+3}], v[{s+2}:{s+3}] op_sel:[0,1,1] op_sel_hi:[1,1,1]")
        for j in range(8): k.e(f"v_rcp_f32 v{t+j}, v{t+j}")
        for y, cs, s, p in P: k.e(f"v_pk_mul_f32 v[{y}:{y+1}], v[{y}:{y+1}], v[{p}:{p+1}]")

def gelu_fill(y, cs, s, n, t):
    E = range(n); L = []
    L += [f"v_fmac_f32 v{y+j}, v{cs+j}, v{s}" for j in E]
    L += [f"v_mul_f32 v{t+j}, v{y+j}, v{y+j}" for j in E]
    L += [f"v_fma_f32 v{t+j}, v{t+j}, v{s+2}, v{s+1}" for j in E]
    L += [f"v_mul_f32 v{t+j}, v{t+j}, v{y+j}" for j in E]
    L += [f"v_exp_f32 v{t+j}, v{t+j}" for j in E]
    L += [f"v_fma_f32 v{t+j}, v{t+j}, v{s+3}, v{s+3}" for j in E]
    L += [f"v_rcp_f32 v{t+j}, v{t+j}" for j in E]
    L += [f"v_mul_f32 v{y+j}, v{t+j}, v{y+j}" for j in E]
    return L

def treduce(k, a):
    k.e(f"""s_nop 1
    v_permlane32_swap_b32 v{a}, v{a+2}
    v_permlane32_swap_b32 v{a+1}, v{a+3}
    v_add_f32 v{a}, v{a}, v{a+2}
    v_add_f32 v{a+1}, v{a+1}, v{a+3}
    s_nop 1
    v_permlane16_swap_b32 v{a}, v{a+1}
    v_add_f32 v{a}, v{a}, v{a+1}""")

NWARM = [8, 8, 8, 4]
def grp(k, g):
    if OPT.pads: k.e(f'GRP {g}')
def warm(k, grp):
    if not OPT.pads: return
    k.e("s_mov_b64 exec, 0")
    for i in range(NWARM[grp]): k.e(f"WARM {grp} {i}")
    k.e("s_mov_b64 exec, -1")

def consumer(k):
    c1, c2, c3, c4, c5 = cfgs()
    def regs(aS, aF, acc):
        R = Regs(); R.aS = aS; R.aF = aF; R.fr = 16; R.acc = acc; return R
    k.e(f"s_mov_b32 s{S_K}, {f2u(LOG2E)}\ns_mov_b32 s{S_K+1}, {f2u(LOG2E)}")
    c = c1; R = regs([8, 9], [10, 11, 12, 13], 64); C = Cons(k, c, R)
    k.e("s_waitcnt lgkmcnt(0)")
    mk_srd(k, SRD_B, P_X, 4*MB); mk_srd(k, SRD_W, P_WS, WS_END)
    if OPT.pads:
        for d in (SRD_S, SRD_F, SRD_A, SRD_D): mk_srd(k, d, P_X, 0)
    stamp(k, 0)
    consumer_addr(k, c, R)
    C.zero()
    aWP=240; aXS=241; aCQ=242; aCV=243; aVS=244; aPW=245; aVX=247; aVW=248; aPR=249; L16=15
    tr_lane_base(k, aWP, 3, 9, rowshift=6, swz=False)
    k.e(f"""s_lshl_b32 s{S_T}, s{S_WN}, 11
    s_add_u32 s{S_T}, s{S_T}, {L_WPHI}
    v_add_u32 v{aWP}, s{S_T}, v{aWP}
    v_lshrrev_b32 v3, 4, v1
    v_and_b32 v4, 15, v1
    s_lshl_b32 s{S_T}, s{S_WM}, 8
    s_add_u32 s{S_T}, s{S_T}, {L_XS}
    v_lshl_add_u32 v{aXS}, v4, 2, s{S_T}
    v_lshl_add_u32 v{aVS}, v3, 4, s{S_T}
    s_mul_i32 s{S_T+1}, s{S_WN}, 384
    s_add_u32 s{S_T+1}, s{S_T+1}, {L_CQ}
    v_lshl_add_u32 v{aCQ}, v3, 4, s{S_T+1}
    v_and_b32 v7, 3, v4
    v_bfe_u32 v5, v4, 2, 1
    v_lshl_or_b32 v7, v5, 3, v7
    v_bfe_u32 v5, v4, 3, 1
    v_lshl_or_b32 v7, v5, 2, v7
    v_lshl_add_u32 v{aCV}, v7, 2, s{S_T+1}
    v_lshrrev_b32 v3, 5, v1
    v_and_b32 v4, 31, v1
    v_lshlrev_b32 v5, 2, v3
    v_xor_b32 v5, v4, v5
    v_lshlrev_b32 v5, 4, v5
    v_lshl_add_u32 v5, v3, 9, v5
    s_lshl_b32 s{S_T}, s{S_WN}, 14
    s_add_u32 s{S_T}, s{S_T}, {L_PHK}
    s_lshl_b32 s{S_T+1}, s{S_WM}, 13
    s_add_u32 s{S_T+2}, s{S_T}, s{S_T+1}
    v_add_u32 v{aPW}, s{S_T+2}, v5
    v_xor_b32 v{aPW+1}, 128, v{aPW}
    v_lshlrev_b32 v{L16}, 4, v1
    s_lshl_b32 s{S_T+3}, s{S_WN}, 13
    s_add_u32 s{S_T+3}, s{S_T+3}, {L_VX}
    v_add_u32 v{aVX}, s{S_T+3}, v{L16}
    s_lshl_b32 s{S_T+4}, s{S_WM}, 12
    v_add_u32 v{aVW}, s{S_T+4}, v{aVX}
    v_lshlrev_b32 v14, 13, v3
    v_lshl_add_u32 v14, v4, 4, v14
    v_lshlrev_b32 v251, 8, v3
    v_lshlrev_b32 v252, 4, v3""")
    blk_tr_base(k, aPR, 2, 3, 3)
    k.e(f"""s_lshl_b32 s{S_T+1}, s{S_WM}, 11
    s_add_u32 s{S_T+1}, s{S_T+1}, s{S_T}
    v_add_u32 v{aPR}, s{S_T+1}, v{aPR}
    v_xor_b32 v{aPR+1}, 64, v{aPR}""")
    ONES=4
    for i in range(4): k.e(f"v_mov_b32 v{ONES+i}, 0x3f803f80")
    k.e(f"""s_lshl_b32 s{S_T}, s{S_WN}, 1
    s_add_u32 s{S_T}, s{S_T}, s{S_WM}
    s_lshl_b32 s{S_T+1}, s{S_N}, 2
    s_add_u32 s{S_T}, s{S_T}, s{S_T+1}
    s_lshl_b32 s{S_T+2}, s{S_T}, 15
    s_lshl_b32 s{S_T+1}, s{S_M}, 9
    s_add_u32 s{S_T+2}, s{S_T+2}, s{S_T+1}
    s_add_u32 s{S_T+2}, s{S_T+2}, {WS_KVP}
    s_add_u32 s{S_T+3}, s{S_T+2}, 16384
    s_lshl_b32 s{S_T+4}, s{S_T}, 10
    s_lshl_b32 s{S_T+1}, s{S_M}, 4
    s_add_u32 s{S_T+4}, s{S_T+4}, s{S_T+1}
    s_add_u32 s{S_T+4}, s{S_T+4}, {WS_ZP}
    s_lshl_b32 s{S_T}, s{S_N}, 1
    s_add_u32 s{S_T}, s{S_T}, s{S_WN}
    s_lshl_b32 s{S_T+12}, s{S_M}, 2
    s_lshl_b32 s{S_T+1}, s{S_WM}, 1
    s_add_u32 s{S_T+12}, s{S_T+12}, s{S_T+1}
    s_lshl_b32 s{S_T+12}, s{S_T+12}, 16
    s_lshl_b32 s{S_T+1}, s{S_T}, 11
    s_add_u32 s{S_T+12}, s{S_T+12}, s{S_T+1}
    s_add_u32 s{S_T+12}, s{S_T+12}, {WS_O}
    s_add_u32 s{S_T+13}, s{S_T+12}, 65536""")
    warm(k, 0)
    k.e("s_barrier")
    stamp(k, 1)
    K0,K1,V0,V1,Q0,Q1 = 64,80,96,112,128,144
    WP=224; ST=232; KB=24; VB=40; PK=160; NM=192; RSD=208; CK=160; CV=2
    tl = [f"ds_read2_b32 v[{ST+2*t}:{ST+2*t+1}], v{aXS} offset0:{16*t} offset1:{128+16*t}" for t in range(4)]
    tl += [f"ds_read_b128 v[{CK+4*fh}:{CK+4*fh+3}], v{aCQ} offset:{128+64*fh}" for fh in range(2)]
    tl += [f"ds_read_b64_tr_b16 v[{WP+4*cc+2*rd}:{WP+4*cc+2*rd+1}], v{aWP} offset:{cc*1024+rd*256}" for cc in range(2) for rd in range(2)]
    tl += [f"ds_read2_b32 v[{CV}:{CV+1}], v{aCV} offset0:64 offset1:80"]
    C.first_reads(); C.loop4(5, 0); C.loop(1, next_cons=False, tail=tl, slot=0)
    stamp(k, 2)
    k.e("s_waitcnt lgkmcnt(5)")
    for t in range(4):
        k.e(f"ds_read_b128 v[{NM+4*t}:{NM+3+4*t}], v{aVS} offset:{64*t}\nds_read_b128 v[{RSD+4*t}:{RSD+3+4*t}], v{aVS} offset:{512+64*t}")
    def corrT(a, cs, st, t):
        for fh in range(2):
            P = [(a+8*fh+4*sh+2*i, cs+4*fh+2*i, ST+2*(2*st+sh), t+4*sh+2*i) for sh in range(2) for i in range(2)]
            for y, c_, s_, p in P: k.e(f"v_pk_mul_f32 v[{p}:{p+1}], v[{c_}:{c_+1}], v[{s_}:{s_+1}] op_sel_hi:[1,0]")
            for y, c_, s_, p in P: k.e(f"v_pk_fma_f32 v[{y}:{y+1}], v[{y}:{y+1}], v[{s_}:{s_+1}], v[{p}:{p+1}] op_sel:[0,1,0] op_sel_hi:[1,1,1]")
    def corrN(a, st, t):
        for sh in range(2):
            P = [(a+8*sh+4*dh+2*i, 4*(2*st+sh)+2*i, dh, t+4*dh+2*i) for dh in range(2) for i in range(2)]
            for y, o_, dh, p in P: k.e(f"v_pk_mul_f32 v[{p}:{p+1}], v[{NM+o_}:{NM+o_+1}], v[{CV}:{CV+1}] op_sel:[0,{dh}] op_sel_hi:[1,{dh}]")
            for y, o_, dh, p in P: k.e(f"v_pk_fma_f32 v[{y}:{y+1}], v[{y}:{y+1}], v[{RSD+o_}:{RSD+o_+1}], v[{p}:{p+1}]")
    def pmf(P, B, st):
        k.e(f"{MF} v[{P+16*st}:{P+16*st+15}], v[{WP}:{WP+3}], v[{B+8*st}:{B+8*st+3}], 0")
        k.e(f"{MF} v[{P+16*st}:{P+16*st+15}], v[{WP+4}:{WP+7}], v[{B+8*st+4}:{B+8*st+7}], v[{P+16*st}:{P+16*st+15}]")
    corrT(K0, CK, 0, 16); corrT(K1, CK, 1, 16)
    pack32(k, KB, K0); pack32(k, KB+8, K1)
    k.e("s_waitcnt lgkmcnt(0)")
    pmf(PK, KB, 0); pmf(PK, KB, 1)
    corrN(V0, 0, 16); corrN(V1, 1, 16)
    pack32(k, VB, V0); pack32(k, VB+8, V1)
    CK = 192
    EP=64; EN=80; T=56
    def wr(st, O, nb): return [f"ds_write_b128 v{aPW+hh}, v[{O+4*hh}:{O+4*hh+3}] offset:{st*4096+nb*2048+hh*1024}" for hh in range(2)]
    inj = [f"ds_write_b128 v{aVW}, v[{VB+4*i}:{VB+4*i+3}] offset:{i*1024}" for i in range(4)]
    inj += [f"ds_read_b128 v[{CK+4*fh}:{CK+4*fh+3}], v{aCQ} offset:{64*fh}" for fh in range(2)]
    softmax_pm(k, PK, EP, EN, T, 96, 104, inject=inj, wpos=wr(0, 96, 0), wneg=wr(0, 104, 1))
    softmax_pm(k, PK+16, EP, EN, T, 112, 120, wpos=wr(1, 112, 0), wneg=wr(1, 120, 1))
    k.e("s_waitcnt lgkmcnt(0)\ns_barrier")
    stamp(k, 3)
    AF=64; VF_=96; KV=160; ZZ=176
    def rdkc(kc):
        off = (kc>>1)*4096 + (kc&1)*256
        k.e(f"""ds_read_b64_tr_b16 v[{AF+4*kc}:{AF+4*kc+1}], v{aPR} offset:{off}
        ds_read_b64_tr_b16 v[{AF+4*kc+2}:{AF+4*kc+3}], v{aPR+1} offset:{off}
        ds_read_b128 v[{VF_+4*kc}:{VF_+4*kc+3}], v{aVX} offset:{kc*1024}""")
    for kc in range(5): rdkc(kc)
    for kc in range(8):
        k.e(f"s_waitcnt lgkmcnt({3*(min(kc+5, 8)-kc-1)})")
        k.e(f"{MF} v[{KV}:{KV+15}], v[{AF+4*kc}:{AF+4*kc+3}], v[{VF_+4*kc}:{VF_+4*kc+3}], {'0' if kc==0 else f'v[{KV}:{KV+15}]'}")
        if kc+5 < 8: rdkc(kc+5)
    for kc in range(8):
        k.e(f"{MF} v[{ZZ}:{ZZ+15}], v[{AF+4*kc}:{AF+4*kc+3}], v[{ONES}:{ONES+3}], {'0' if kc==0 else f'v[{ZZ}:{ZZ+15}]'}")
        if kc == 2:
            k.e("s_nop 7\ns_nop 1")
            for i in range(4): k.e(f"v_cvt_pk_bf16_f32 v{212+i}, v{KV+2*i}, v{KV+2*i+1}")
            k.e(f"buffer_store_dwordx4 v[212:215], v14, {W}, s{S_T+2} offen sc1")
        if kc == 3:
            for i in range(4, 8): k.e(f"v_cvt_pk_bf16_f32 v{212+i}, v{KV+2*i}, v{KV+2*i+1}")
            k.e(f"buffer_store_dwordx4 v[216:219], v14, {W}, s{S_T+3} offen sc1")
    k.e("s_barrier")
    k.e("s_nop 7\ns_nop 2")
    cvt16(k, 16, ZZ)
    k.e(f"""s_mov_b32 exec_lo, 1
    s_mov_b32 exec_hi, 1
    buffer_store_dwordx4 v[16:19], v251, {W}, s{S_T+4} offen sc1
    buffer_store_dwordx4 v[20:23], v251, {W}, s{S_T+4} offen offset:512 sc1
    s_mov_b64 exec, -1""")
    stamp(k, 4)
    QB=32; PQ=160
    def p25_addr():
        tile_map(k, 4, 8, 16)
        k.e(f"""s_lshl_b32 s{S_T}, s{S_M}, 2
        s_add_u32 s{S_T}, s{S_T}, s{S_WAVE}
        s_lshl_b32 s{S_T+1}, s{S_T}, 16
        s_lshl_b32 s{S_T+2}, s{S_N}, 7
        s_add_u32 s{S_T+2}, s{S_T+2}, s{S_T+1}
        v_and_b32 v4, 31, v1
        v_lshlrev_b32 v14, 11, v4
        v_lshrrev_b32 v5, 5, v1
        v_lshl_add_u32 v14, v5, 4, v14
        v_add_u32 v14, s{S_T+2}, v14""")
    corrT(Q0, CK, 0, 48); corrT(Q1, CK, 1, 48)
    pack32(k, QB, Q0); pack32(k, QB+8, Q1)
    pmf(PQ, QB, 0); pmf(PQ, QB, 1)
    p25_addr()
    RS = 224
    for i in range(4): k.e(f"buffer_load_dwordx4 v[{RS+4*i}:{RS+4*i+3}], v14, {srd(SRD_B)}, 0 offen offset:{32*i}")
    k.e(f"""s_lshl_b32 s{S_T+2}, s{S_N}, 12
    s_add_u32 s{S_T+2}, s{S_T+2}, s{S_T+1}
    s_add_u32 s{S_T+2}, s{S_T+2}, {WS_H}
    v_add_u32 v7, s{S_T+2}, v{L16}
    s_lshl_b32 s{S_T}, s{S_T}, 8
    s_lshl_b32 s{S_T+1}, s{S_N}, 14
    s_add_u32 s{S_T}, s{S_T}, s{S_T+1}
    s_add_u32 s{S_T}, s{S_T}, {WS_HST}
    v_lshlrev_b32 v9, 3, v4
    v_add_u32 v9, s{S_T}, v9
    s_lshl_b32 s{S_T}, s{S_WN}, 12
    v_add_u32 v2, s{S_T}, v{L16}
    s_lshl_b32 s{S_T}, s{S_WN}, 7
    v_add_u32 v3, s{S_T}, v252""")
    PH=128; KF=16; ZF=32; NUM=96; DEN=192
    softmax_pm(k, PQ, EP, EN, T, PH, PH+8)
    softmax_pm(k, PQ+16, EP, EN, T, PH+16, PH+24)
    def res_init():
        for j in range(4):
            for x in swaps(RS+4*j): k.e(x)
        for i in range(16): unpack(k, 64+2*i, 65+2*i, RS+i)
    R25 = regs([8], [10, 11, 12, 13], 64)
    consumer_addr(k, c2, R25, t=48)
    k.e("s_waitcnt vmcnt(0)")
    res_init()
    stamp(k, 21)
    warm(k, 1); grp(k, 1)
    k.e("s_barrier")
    stamp(k, 5)
    for i in range(4): k.e(f"ds_read_b128 v[{ZF+4*i}:{ZF+4*i+3}], v3 offset:{L_Z+i*32}")
    for i in range(4): k.e(f"ds_read_b128 v[{KF+4*i}:{KF+4*i+3}], v2 offset:{L_KV+i*1024}")
    for st in range(2):
        for A_, D_ in ((ZF, DEN), (KF, NUM)):
            if st == 0: k.e(f"s_waitcnt lgkmcnt({4 if A_ == ZF else 0})")
            for i in range(4):
                b = PH+16*st+4*i
                k.e(f"{MF} v[{D_+16*st}:{D_+16*st+15}], v[{A_+4*i}:{A_+4*i+3}], v[{b}:{b+3}], {'0' if i==0 else f'v[{D_+16*st}:{D_+16*st+15}]'}")
    k.e("s_nop 0")
    for st in range(2):
        d = DEN+16*st; n = NUM+16*st; o = 160+8*st
        k.e(f"v_add_f32 v{d}, {f2u(1e-6)}, v{d}\nv_rcp_f32 v{d}, v{d}\ns_nop 0")
        for hh in range(2):
            for i in range(4*hh, 4*hh+4): k.e(f"v_pk_mul_f32 v[{n+2*i}:{n+2*i+1}], v[{n+2*i}:{n+2*i+1}], v[{d}:{d+1}] op_sel_hi:[1,0]")
            for i in range(4*hh, 4*hh+4): k.e(f"v_cvt_pk_bf16_f32 v{o+i}, v{n+2*i}, v{n+2*i+1}")
            k.e(f"buffer_store_dwordx4 v[{o+4*hh}:{o+4*hh+3}], v{L16}, {W}, s{S_T+12+st} offen offset:{1024*hh} sc1")
    C = Cons(k, c2, R25)
    k.e("s_waitcnt vmcnt(0)\ns_barrier")
    stamp(k, 6)
    warm(k, 2)
    k.e("s_barrier\ns_barrier")
    stamp(k, 7)
    if OPT.st4 & 1:
        C.first_reads(); C.loopu(5, 3); C.loop(1, next_cons=False)
    else:
        C.first_reads(); C.loop(15); C.loop(1, next_cons=False)
    stamp(k, 8)
    A = 64
    def out4(dst, store):
        k.e("s_nop 1")
        for i in range(4): k.e(f"v_cvt_pk_bf16_f32 v{dst+i}, v{A+2*i}, v{A+2*i+1}")
        for j in range(4):
            if j < 3:
                for i in range(4*j+4, 4*j+8): k.e(f"v_cvt_pk_bf16_f32 v{dst+i}, v{A+2*i}, v{A+2*i+1}")
            for x in swaps(dst+4*j): k.e(x)
            k.e(store(dst+4*j, j))
    out4(RS, lambda r, j: f"buffer_store_dwordx4 v[{r}:{r+3}], v7, {W}, 0 offen offset:{1024*j} sc1")
    for i in range(16): unpack(k, A+2*i, A+2*i+1, RS+i)
    k.e(f"v_pk_add_f32 v[20:21], v[{A}:{A+1}], v[{A+2}:{A+3}]\nv_pk_add_f32 v[22:23], v[{A+4}:{A+5}], v[{A+6}:{A+7}]")
    for i in range(4, 16):
        t = 20 + 2*(i & 1); k.e(f"v_pk_add_f32 v[{t}:{t+1}], v[{t}:{t+1}], v[{A+2*i}:{A+2*i+1}]")
    k.e("v_pk_add_f32 v[20:21], v[20:21], v[22:23]\nv_add_f32 v20, v20, v21")
    xswap_sum1(k, 20, 21)
    k.e(f"v_mul_f32 v20, {f2u(1/64.)}, v20")
    for i in range(16):
        k.e(f"v_pk_add_f32 v[{A+2*i}:{A+2*i+1}], v[{A+2*i}:{A+2*i+1}], v[20:21] op_sel_hi:[1,0] neg_lo:[0,1] neg_hi:[0,1]")
    k.e(f"v_pk_mul_f32 v[22:23], v[{A}:{A+1}], v[{A}:{A+1}]\nv_pk_mul_f32 v[24:25], v[{A+2}:{A+3}], v[{A+2}:{A+3}]")
    for i in range(2, 16):
        t = 22 + 2*(i & 1); k.e(f"v_pk_fma_f32 v[{t}:{t+1}], v[{A+2*i}:{A+2*i+1}], v[{A+2*i}:{A+2*i+1}], v[{t}:{t+1}]")
    k.e("v_pk_add_f32 v[22:23], v[22:23], v[24:25]\nv_add_f32 v22, v22, v23")
    xswap_sum1(k, 22, 23)
    k.e(f"""v_mov_b32 v21, v22
    s_mov_b32 exec_hi, 0
    buffer_store_dwordx2 v[20:21], v9, {W}, 0 offen sc1
    s_mov_b32 exec_hi, -1""")
    k.e("s_cmp_ge_u32 s2, 224\ns_cbranch_scc1 L_c_helper")
    if OPT.two & 1: if_par(k, 0, "s_waitcnt vmcnt(1)")
    else: k.e("s_waitcnt vmcnt(1)")
    k.e("s_barrier")
    stamp(k, 9)
    k.e("L_c_p3:")
    tile_map(k, 4, 7, 14)
    Ra = regs([2], [3, 4, 5, 6], 128); Rb = regs([2], [3, 4, 5, 6], 64); R4 = regs([8, 9], [10, 11], 128)
    Ca = Cons(k, c3, Ra); Cb = Cons(k, c3, Rb); C4 = Cons(k, c4, R4)
    consumer_addr(k, c3, Ra, t=32, slot=0); consumer_addr(k, c4, R4, slot=0, t=32, setslot=False)
    Ca.zero(); Cb.zero()
    mk_srd(k, SRD_A, P_BSP, 4096)
    aCS=7; aZN=12; aHS=13; aZS=14; aZP=252; CS=192; HS=208; BB=240; ZS=244
    k.e(f"""v_and_b32 v32, 15, v1
    v_lshlrev_b32 v33, 1, v32
    s_lshl_b32 s{S_T+2}, s{S_M}, 8
    s_lshl_b32 s{S_T+3}, s{S_WM}, 7
    s_add_u32 s{S_T+2}, s{S_T+2}, s{S_T+3}""")
    for t in range(4): k.e(f"buffer_load_ushort v{BB+t}, v33, {srd(SRD_A)}, s{S_T+2} offen offset:{32*t}")
    k.e(f"""s_lshl_b32 s{S_T}, s{S_WM}, 6
    v_add_u32 v32, s{S_T}, v32
    v_lshlrev_b32 v{aZS}, 3, v32
    v_add_u32 v{aZS}, {L_ZS}, v{aZS}
    v_lshlrev_b32 v{aHS}, 4, v32
    v_add_u32 v{aHS}, {L_HS}, v{aHS}
    v_lshrrev_b32 v34, 4, v1
    s_lshl_b32 s{S_T}, s{S_WN}, 8
    s_add_u32 s{S_T}, s{S_T}, {L_CS}
    v_lshl_add_u32 v{aCS}, v34, 4, s{S_T}
    v_lshrrev_b32 v34, 5, v1
    v_lshlrev_b32 v34, 6, v34
    v_xor_b32 v{aZN}, v34, v{L16}
    s_lshl_b32 s{S_T}, s{S_WM}, 9
    s_lshl_b32 s{S_T+1}, s{S_WN}, 10
    s_add_u32 s{S_T}, s{S_T}, s{S_T+1}
    s_add_u32 s{S_T}, s{S_T}, {L_ZP}
    v_lshl_add_u32 v{aZP}, v1, 3, s{S_T}
    s_lshl_b32 s{S_T+12}, s{S_N}, 19
    s_lshl_b32 s{S_T+1}, s{S_M}, 15
    s_add_u32 s{S_T+12}, s{S_T+12}, s{S_T+1}
    s_lshl_b32 s{S_T+1}, s{S_WM}, 14
    s_add_u32 s{S_T+12}, s{S_T+12}, s{S_T+1}
    s_lshl_b32 s{S_T+1}, s{S_WN}, 12
    s_add_u32 s{S_T+12}, s{S_T+12}, s{S_T+1}
    s_add_u32 s{S_T+12}, s{S_T+12}, {WS_Z2N}
    s_add_u32 s{S_T+13}, s{S_T+12}, 8192
    s_lshl_b32 s{S_T}, s{S_M}, 2
    s_lshl_b32 s{S_T+1}, s{S_WM}, 1
    s_add_u32 s{S_T}, s{S_T}, s{S_T+1}
    s_mul_i32 s{S_T}, s{S_T}, 112
    s_lshl_b32 s{S_T+1}, s{S_N}, 3
    s_add_u32 s{S_T}, s{S_T}, s{S_T+1}
    s_lshl_b32 s{S_T+1}, s{S_WN}, 2
    s_add_u32 s{S_T}, s{S_T}, s{S_T+1}
    s_lshl_b32 s{S_T}, s{S_T}, 10
    s_add_u32 s{S_T+14}, s{S_T}, {WS_U}
    s_add_u32 s{S_T+15}, s{S_T+14}, {112*1024}""")
    warm(k, 3)
    k.e("s_waitcnt vmcnt(0)\ns_barrier\ns_barrier")
    stamp(k, 10)
    rcs = lambda half: [f"ds_read_b128 v[{CS+4*f}:{CS+4*f+3}], v{aCS} offset:{half*512 + f*64}" for f in range(4)]
    rhs = [f"ds_read_b128 v[{HS+4*t}:{HS+4*t+3}], v{aHS} offset:{t*256}" for t in range(4)]
    Ca.first_reads_static(2); Ca.loop4(3, 2)
    for j in range(3): Ca.loop(1, slot=(2+j) % 4)
    Ca.loop(1, next_cons=False, tail=rhs+rcs(1), slot=1)
    stamp(k, 11)
    k.e("s_waitcnt lgkmcnt(0)")
    Cb.first_reads_static(2)
    gelu_quads(k, [(Ca.sub(t, f), CS+4*f, HS+4*t) for f in range(4) for t in Ca.order(f)], 32)
    for x in rcs(0): k.e(x)
    SM = 40
    for t in range(4):
        ys = [Ca.sub(t, f)+2*i for f in range(4) for i in range(2)]
        p = 32+2*(t & 1)*2
        k.e(f"v_pk_add_f32 v[{p}:{p+1}], v[{ys[0]}:{ys[0]+1}], v[{ys[1]}:{ys[1]+1}]\nv_pk_add_f32 v[{p+2}:{p+3}], v[{ys[2]}:{ys[2]+1}], v[{ys[3]}:{ys[3]+1}]")
        for i in range(4, 8):
            q_ = p+2*(i & 1); k.e(f"v_pk_add_f32 v[{q_}:{q_+1}], v[{q_}:{q_+1}], v[{ys[i]}:{ys[i]+1}]")
        k.e(f"v_pk_add_f32 v[{p}:{p+1}], v[{p}:{p+1}], v[{p+2}:{p+3}]\nv_add_f32 v{SM+t}, v{p}, v{p+1}")
    treduce(k, SM)
    k.e(f"""v_mul_f32 v{ZS}, {f2u(1/64.)}, v{SM}
    v_mov_b32 v44, v{ZS}
    v_mov_b32 v45, v{ZS}
    s_nop 1
    v_permlane16_swap_b32 v44, v45
    v_mov_b32 v46, v44
    v_mov_b32 v47, v45
    s_nop 1
    v_permlane32_swap_b32 v44, v46
    v_permlane32_swap_b32 v45, v47""")
    for t in range(4):
        ys = [Ca.sub(t, f)+2*i for f in range(4) for i in range(2)]
        m = 44 + (t & 2); sel = "op_sel_hi:[1,0]" if t & 1 == 0 else "op_sel:[0,1] op_sel_hi:[1,1]"
        for i, y in enumerate(ys):
            d = 36+2*(i & 1); u = 32+2*(i & 1)
            k.e(f"v_pk_add_f32 v[{d}:{d+1}], v[{y}:{y+1}], v[{m}:{m+1}] {sel} neg_lo:[0,1] neg_hi:[0,1]")
            k.e(f"v_pk_mul_f32 v[{u}:{u+1}], v[{d}:{d+1}], v[{d}:{d+1}]" if i < 2 else f"v_pk_fma_f32 v[{u}:{u+1}], v[{d}:{d+1}], v[{d}:{d+1}], v[{u}:{u+1}]")
        k.e(f"v_pk_add_f32 v[32:33], v[32:33], v[34:35]\nv_add_f32 v{SM+t}, v32, v33")
    treduce(k, SM)
    k.e(f"v_mov_b32 v{ZS+1}, v{SM}\nds_write_b64 v{aZP}, v[{ZS}:{ZS+1}]\ns_waitcnt lgkmcnt(0)")
    if OPT.gb: k.e("s_barrier")
    grp(k, 2)
    stamp(k, 12)
    g = OPT.gat
    n1 = g+1+OPT.zsp-16+1
    def norm_tile(st, ft):
        a = Ca.acc(st, ft); L = []
        for fh in range(2):
            for sh in range(2):
                s = ZS+2*(2*st+sh)
                L += [f"v_fma_f32 v{a+8*fh+4*sh+i}, v{a+8*fh+4*sh+i}, v{s+1}, v{s}" for i in range(4)]
        L += [f"v_cvt_pk_bf16_f32 v{a+8*fh+i}, v{a+8*fh+2*i}, v{a+8*fh+2*i+1}" for fh in range(2) for i in range(4)]
        for fh in range(2):
            L += swaps(a+8*fh)
            L += [f"buffer_store_dwordx4 v[{a+8*fh}:{a+8*fh+3}], v{aZN}, {W}, s{S_T+12+st} offen offset:{ft*2048+fh*1024} sc1"]
        return L
    NL = sum((norm_tile(st, ft) for st in range(2) for ft in range(2)), [])
    nf = OPT.nst
    zl = [f"v_lshlrev_b32 v{C4.sub(t, f)+i}, 16, v{BB+t}" for f in range(4) for t in range(4) for i in range(4)]
    vm = n1+nf+OPT.vmd
    nz = 15-vm
    rz = [f"ds_read_b64 v[{ZS+2*t}:{ZS+2*t+1}], v{aZS} offset:{t*128}" for t in range(4)]
    for j in range(16):
        kw = dict(slot=(2+j) % 4)
        if j == n1-1: kw['tail'] = rz
        if j == n1:
            k.e("s_waitcnt lgkmcnt(4)"); stamp(k, 13)
            if OPT.nprio: k.e("s_setprio 3")
            if nf == 0:
                pend = []
                for st in range(2):
                    for f in range(4):
                        a = Ca.acc(st, f >> 1) + 8*(f & 1)
                        for i in range(4):
                            s_ = ZS+2*(2*st+(i >> 1))
                            k.e(f"v_pk_fma_f32 v[{a+2*i}:{a+2*i+1}], v[{a+2*i}:{a+2*i+1}], v[{s_}:{s_+1}], v[{s_}:{s_+1}] op_sel:[0,1,0] op_sel_hi:[1,1,0]")
                        for x in pend: k.e(x)
                        for i in range(4): k.e(f"v_cvt_pk_bf16_f32 v{a+i}, v{a+2*i}, v{a+2*i+1}")
                        pend = swaps(a) + [f"buffer_store_dwordx4 v[{a}:{a+3}], v{aZN}, {W}, s{S_T+12+st} offen offset:{f*1024} sc1"]
                k.e("s_nop 0")
                for x in pend: k.e(x)
        if OPT.nprio and j == n1+nf: k.e("s_setprio 0")
        if n1 <= j < n1+nf: kw['fillers'] = NL[len(NL)*(j-n1)//nf: len(NL)*(j-n1+1)//nf]
        if j == vm: kw['pre_barrier'] = "vm"
        if j > vm: kw['fillers'] = zl[64*(j-vm-1)//nz: 64*(j-vm)//nz]
        if j == 15: kw['next_cons'] = C4; kw['nslot'] = 2
        Cb.loop(1, **kw)
    stamp(k, 14)
    j = 0
    if not OPT.z1fill:
        OPT.dg |= 1
        gelu_quads(k, [(Cb.sub(t, f), CS+4*f, HS+4*t) for f in range(4) for t in Cb.order(f)], 32)
        stamp(k, 15)
    if OPT.p4loop:
        C4.loop4(8, 2); k.e("s_waitcnt lgkmcnt(0)")
    for f in range(0 if OPT.p4loop else 4):
        for t in Cb.order(f):
            for i in range(2):
                C4.loop(1, fillers=(gelu_fill(Cb.sub(t, f)+2*i, CS+4*f+2*i, HS+4*t, 2, ZS) if not OPT.dg & 1 else None), budget=OPT.bud, next_cons=(False if j == 31 else None), slot=(2+j) % 4)
                j += 1
                if j == 18: grp(k, 3)
    stamp(k, 16)
    pend = None
    for f in range(4):
        for st in range(2):
            a = C4.acc(st, f >> 1) + 8*(f & 1); z = Cb.acc(st, f >> 1) + 8*(f & 1); o = 16+4*(f*2+st)
            for i in range(4): k.e(f"v_pk_mul_f32 v[{a+2*i}:{a+2*i+1}], v[{a+2*i}:{a+2*i+1}], v[{z+2*i}:{z+2*i+1}]")
            if pend:
                for x in pend: k.e(x)
            for i in range(4): k.e(f"v_cvt_pk_bf16_f32 v{o+i}, v{a+2*i}, v{a+2*i+1}")
            pend = swaps(o) + [f"buffer_store_dwordx4 v[{o}:{o+3}], v{L16}, {W}, s{S_T+14+st} offen offset:{f*1024} sc1"]
    k.e("s_nop 0")
    for x in pend: k.e(x)
    if OPT.two & 2:
        k.e("L_c_p5:")
        if_par(k, 0, "s_waitcnt vmcnt(0)")
        k.e("s_barrier")
        stamp(k, 17)
    else:
        k.e("s_waitcnt vmcnt(0)\ns_barrier")
        stamp(k, 17)
        k.e("L_c_p5:")
    p25_addr()
    if OPT.sk:
        R5 = regs([8], [10, 11, 12, 13], 96)
        if OPT.bu5: R5.nfr = 80
        C = Cons(k, c5, R5)
        consumer_addr(k, c5, R5, t=48, slot=0)
        A = 128
        for j in range(4):
            for x in swaps(RS+4*j): k.e(x)
        for i in range(16): unpack(k, A+2*i, A+1+2*i, RS+i)
        for i in range(96, 128, 2): k.e(f"v_mov_b64 v[{i}:{i+1}], 0")
        k.e(f"""s_lshl_b32 s{S_T+12}, s2, 2
        s_add_u32 s{S_T+12}, s{S_T+12}, s{S_WAVE}
        s_lshl_b32 s{S_T+12}, s{S_T+12}, 12
        s_xor_b32 s{S_T+13}, s{S_T+12}, 16384
        s_add_u32 s{S_T+12}, s{S_T+12}, {WS_XP}
        s_add_u32 s{S_T+13}, s{S_T+13}, {WS_XP}""")
        mk_srd(k, SRD_B, P_OUT, 4*MB)
        k.e("s_waitcnt vmcnt(0)\ns_barrier\ns_barrier")
        stamp(k, 18)
        C.first_reads_static(2); C.loop4(3, 2); C.loop(1, slot=2)
        snd = []
        for j in range(4):
            snd += [f"v_cvt_pk_bf16_f32 v{176+i}, v{96+2*i}, v{97+2*i}" for i in range(4*j, 4*j+4)]
            snd += [f"buffer_store_dwordx4 v[{176+4*j}:{179+4*j}], v{L16}, {W}, s{S_T+12} offen offset:{1024*j} sc1"]
        if OPT.jo:
            C.loop(1, slot=3, next_cons=False, fillers=snd + ["PAD"]*OPT.jpad, fstart=15, budget=12)
        else:
            C.loop(1, slot=3, next_cons=False)
            for x in snd: k.e(x)
        stamp(k, 19)
        if OPT.xslp: k.e(f"s_sleep {OPT.xslp}")
        def xg():
            for j in range(4): k.e(f"buffer_load_dwordx4 v[{80+4*j}:{83+4*j}], v{L16}, {W}, s{S_T+13} offen offset:{1024*j} sc1")
        validated(k, xg, range(80, 96), 2, pre=False)
        stamp(k, 22)
        pend = []
        for j in range(4):
            acc_bf16(k, A+8*j, 80+4*j, 4, False, 16)
            for x in pend: k.e(x)
            for i in range(4): k.e(f"v_cvt_pk_bf16_f32 v{160+4*j+i}, v{A+8*j+2*i}, v{A+8*j+2*i+1}")
            pend = swaps(160+4*j) + [f"buffer_store_dwordx4 v[{160+4*j}:{163+4*j}], v14, {srd(SRD_B)}, 0 offen offset:{32*j}"]
        k.e("s_nop 0")
        for x in pend: k.e(x)
    else:
        C = Cons(k, c5, R25)
        consumer_addr(k, c5, R25, t=48, slot=(0 if OPT.st4 & 4 else None))
        res_init()
        mk_srd(k, SRD_B, P_OUT, 4*MB)
        k.e("s_barrier\ns_barrier")
        stamp(k, 18)
        if OPT.st4 & 4:
            C.first_reads_static(2); C.loop4(7, 2); k.e("s_waitcnt lgkmcnt(0)")
        else:
            C.first_reads(); C.loop(27); C.loop(1, next_cons=False)
        stamp(k, 19)
        out4(96, lambda r, j: f"buffer_store_dwordx4 v[{r}:{r+3}], v14, {srd(SRD_B)}, 0 offen offset:{32*j}")
    k.e("s_branch L_fin")
    k.e("L_c_helper:")
    k.e("s_waitcnt vmcnt(1)\ns_barrier")
    stamp(k, 9)
    k.e("s_barrier")
    helper_pf(k, 'c')
    stamp(k, 17)
    k.e("s_branch L_c_p5")

def place_pads(k):
    import subprocess, re, tempfile, os
    L = [x.strip() for x in k.L]
    isins = lambda x: not (x.endswith(":") or x.startswith(".") or x.startswith(("WARM", "ALIGN4K", "GRP")))
    txt = '.amdgcn_target "amdgcn-amd-amdhsa--gfx950"\n.text\n' + KNAME + ":\n" + "\n".join(x for x in L if isins(x) or x.endswith(":")) + "\n"
    d = tempfile.mkdtemp(); open(d+"/a.s", "w").write(txt)
    subprocess.run(["clang", "-x", "assembler", "-target", "amdgcn-amd-amdhsa", "-mcpu=gfx950", "-c", d+"/a.s", "-o", d+"/a.o"], check=True)
    dis = subprocess.run(["llvm-objdump", "-d", "--mcpu=gfx950", d+"/a.o"], capture_output=True, text=True).stdout
    sizes = [4*len(m.group(1).split()) for m in re.finditer(r"// [0-9A-F]{12}: ((?:[0-9A-F]{8} ?)+)", dis)]
    assert len(sizes) == sum(map(isins, L)), (len(sizes), sum(map(isins, L)))
    out = []; off = None; it = iter(sizes); nextpage = 0; pads = [[] for _ in NWARM]; grp = 0; inwarm = False
    for x in L:
        if x == "ALIGN4K":
            out.append(".p2align 12"); off = 0; continue
        if x.startswith("GRP"):
            grp = int(x.split()[1]); continue
        if x == "s_mov_b64 exec, 0": inwarm = True
        if off is not None and off >= nextpage and not inwarm and (isins(x) or x.startswith(".p2align")):
            n = sum(map(len, pads)); pads[grp].append(n)
            out.append(f"L_pad{n}:"); out.append(f"s_cbranch_execz L_padr{n}"); off += 4; nextpage += 4096
        if x == "s_mov_b64 exec, -1": inwarm = False
        out.append(x)
        if isins(x):
            sz = next(it)
            if off is not None: off += sz
        elif x.startswith("WARM"): off += 12
        elif x.startswith(".p2align") and off is not None:
            a = 1 << int(x.split()[1]); off = (off + a-1)//a*a
    fin = []
    for x in out:
        if x.startswith("WARM"):
            g, i = map(int, x.split()[1:])
            if i < len(pads[g]):
                n = pads[g][i]
                fin += [f"s_cmp_lg_u32 s{S_WAVE}, {i % 4}", f"s_cbranch_scc1 L_padr{n}", f"s_branch L_pad{n}", f"L_padr{n}:"]
            else: fin += ["s_nop 0"]*3
        else: fin.append(x)
    assert all(len(p) <= n for p, n in zip(pads, NWARM)), pads
    print('pads', pads, file=sys.stderr)
    k.L = [("" if x.endswith(":") else "    ") + x for x in fin]

def build():
    k = Kern("p")
    if OPT.probe: k.e("s_memrealtime s[94:95]")
    k.e("s_cmp_ge_u32 s2, 256\ns_cbranch_scc1 L_end")
    k.e("s_load_dwordx16 s[32:47], s[0:1], 0\ns_load_dwordx8 s[48:55], s[0:1], 64")
    k.e(f"v_lshrrev_b32 v2, 6, v0\nv_and_b32 v1, 63, v0\nv_readfirstlane_b32 s{S_WAVE}, v2")
    if OPT.stamps: k.e("v_mov_b32 v255, 0\nv_mov_b32 v254, 0\nv_mov_b32 v253, 0\ns_mov_b32 s97, 0")
    import core4; core4.DG[0] = OPT.dg
    ITST[0] = max(OPT.stamps - 1, 0); ITST[1] = 254; CAP[0] = OPT.cap
    tile_map(k, 8, 4, 16)
    k.e(f"s_cmp_lt_u32 s{S_WAVE}, 4\ns_cbranch_scc1 L_cons")
    if OPT.spq < 0:
        k.e(f"s_and_b32 s93, s{S_M}, 7\ns_mul_i32 s93, s93, {OPT.qm}\ns_lshr_b32 s93, s93, 3\ns_add_u32 s93, s93, {OPT.q0}")
    k.e(f"s_and_b32 s{S_LW}, s{S_WAVE}, 1\ns_sub_u32 s{S_Q}, s{S_WAVE}, 4\ns_cmp_ge_u32 s{S_WAVE}, 6\ns_cbranch_scc1 L_aux")
    if OPT.pl: k.e(f"s_setprio {OPT.pl}")
    loader(k)
    k.e("L_aux:")
    grp(k, 0)
    if OPT.pa: k.e(f"s_setprio {OPT.pa}")
    aux(k)
    k.e("L_cons:")
    grp(k, 0)
    if OPT.pc: k.e(f"s_setprio {OPT.pc}")
    consumer(k)
    k.e("L_fin:")
    if OPT.stamps:
        k.e("s_waitcnt vmcnt(0)")
        stamp(k, 20)
        mk_srd(k, SRD_D, P_WS, 2*MB, WS_END)
        k.e(f"""s_lshl_b32 s{S_T}, s2, 3
        s_add_u32 s{S_T}, s{S_T}, s{S_WAVE}
        s_lshl_b32 s{S_T}, s{S_T}, 8
        v_lshlrev_b32 v2, 2, v1
        buffer_store_dword v255, v2, {srd(SRD_D)}, s{S_T} offen
        s_add_u32 s{S_T}, s{S_T}, 0x80000
        buffer_store_dword v254, v2, {srd(SRD_D)}, s{S_T} offen
        s_add_u32 s{S_T}, s{S_T}, 0x80000
        buffer_store_dword v253, v2, {srd(SRD_D)}, s{S_T} offen""")
    if OPT.probe:
        k.e(f"s_cmp_lg_u32 s{S_WAVE}, {OPT.pwave}\ns_cbranch_scc1 L_end\ns_cmp_ge_u32 s2, 224\ns_cbranch_scc1 L_end")
        if OPT.pwg >= 0: k.e(f"s_cmp_lg_u32 s2, {OPT.pwg}\ns_cbranch_scc1 L_end")
        k.e(f"v_writelane_b32 v255, s94, 31\ns_nop 1")
        k.e(f"v_readlane_b32 s{S_T}, v255, {OPT.probe}\nv_readlane_b32 s{S_T+1}, v255, {OPT.pfrom}\ns_nop 3\ns_sub_u32 s{S_T}, s{S_T}, s{S_T+1}\ns_mul_i32 s{S_T}, s{S_T}, 10\ns_add_u32 s{S_T}, s{S_T}, s94\ns_add_u32 s{S_T}, s{S_T}, 10000\nL_spin:\ns_memrealtime s[{S_ST}:{S_ST+1}]\ns_waitcnt lgkmcnt(0)\ns_sub_u32 s{S_T+1}, s{S_ST}, s{S_T}\ns_cmp_lt_i32 s{S_T+1}, 0\ns_cbranch_scc1 L_spin")
    k.e("L_end:\ns_endpgm")
    if OPT.pads: place_pads(k)
    out = [f"; @launch grid=(256,1,1) block=(512,1,1) lds={163840 if OPT.sk else L_END}",
           '.amdgcn_target "amdgcn-amd-amdhsa--gfx950"\n.text', header(KNAME) + k.text(), '.section .rodata,"a"', descriptor(KNAME, 256, 100)]
    return "\n".join(out)

if __name__ == "__main__":
    for a in sys.argv[2:]:
        kk, v = a.split("="); setattr(OPT, kk, int(v))
    open(sys.argv[1], "w").write(build())
```

```python
import math
from core import Kern, header, descriptor, vr, sr, srd, Regs, tr_lane_base, blk_tr_base

S_WAVE=3; S_M=4; S_N=5; S_PH=6; S_T0=7
SRD_S=8; SRD_F=12; SRD_A=16; SRD_B=20; SRD_W=24; SRD_D=28
P0=32
S_T=56
S_WM=72; S_WN=73; S_LW=74; S_KB=75
S_X=76
S_CNT=80; S_SLOT=81; S_DS=82; S_DF=83; S_OS=84; S_OF=85; S_M0W=86; S_TAU=87
S_K=88
S_FB=96
S_ST=98

def ptr(i): return P0 + 2*i

WSB = [0]
def mk_srd(k, d, p, nbytes, off=0):
    if p == 11: off += WSB[0]
    if off:
        k.e(f"s_add_u32 s{d}, s{ptr(p)}, {off}\ns_addc_u32 s{d+1}, s{ptr(p)+1}, 0")
    else:
        k.e(f"s_mov_b32 s{d}, s{ptr(p)}\ns_mov_b32 s{d+1}, s{ptr(p)+1}")
    k.e(f"s_mov_b32 s{d+2}, {nbytes}\ns_mov_b32 s{d+3}, 0x20000")

class Cfg:
    def __init__(self, BM, BN, T, NS, WM, WN, U, strideS, strideF, ftiles, nb_from_wave, panel_from_wave, orient=None,
                 rot=(-1,0,2,-1), pre_mfma=2, smode='rows', fmode='rows', baseS=0, baseF=65536, auxS="", auxF="", kbase=False, slot0=0, own2=False, pb=22, burst=3, cap2=False, old=7, jorder=None, half=0):
        self.BM=BM; self.BN=BN; self.T=T; self.NS=NS; self.WM=WM; self.WN=WN; self.U=U
        self.strideS=strideS; self.strideF=strideF
        self.TM = BM//WM//32
        self.ftiles = ftiles; self.TN = len(ftiles)
        self.nb_from_wave = nb_from_wave; self.panel_from_wave = panel_from_wave
        self.orient = orient or ['T']*self.TN
        self.NP = BN//64
        self.slotS = BM*128; self.slotF = BN*128
        self.nS = BM//16; self.nF = BN//16
        self.nI = self.nS + self.nF
        self.rot = rot; self.pre_mfma = pre_mfma
        self.smode = smode; self.fmode = fmode
        self.baseS = baseS; self.baseF = baseF
        self.auxS = auxS; self.auxF = auxF
        self.slot0 = slot0; self.own2 = own2; self.pb = pb; self.burst = burst; self.cap2 = cap2; self.old = old; self.jorder = jorder; self.half = half
        self.kbase = kbase

def tile_map(k, gm, gn, ntn):
    xn = ntn // gn
    lg = int(math.log2(gm)); lx = int(math.log2(xn))
    k.e(f"""s_and_b32 s{S_T}, s2, 7
    s_lshr_b32 s{S_T+1}, s2, 3
    s_and_b32 s{S_T+2}, s{S_T+1}, {gm-1}
    s_lshr_b32 s{S_T+3}, s{S_T+1}, {lg}
    s_lshr_b32 s{S_M}, s{S_T}, {lx}
    s_mul_i32 s{S_M}, s{S_M}, {gm}
    s_add_u32 s{S_M}, s{S_M}, s{S_T+2}
    s_and_b32 s{S_N}, s{S_T}, {xn-1}
    s_mul_i32 s{S_N}, s{S_N}, {gn}
    s_add_u32 s{S_N}, s{S_N}, s{S_T+3}
    s_add_u32 s{S_PH}, s{S_T+2}, s{S_T+3}""")

def loader_voff_S(k, c, vb):
    w = S_LW
    if c.smode == 'rows':
        k.e(f"""v_lshrrev_b32 v2, 3, v1
        v_and_b32 v4, 7, v1
        s_lshl_b32 s{S_T+6}, s{w}, 3
        v_lshrrev_b32 v3, 4, v1
        s_lshl_b32 s{S_T+5}, s{w}, 2
        v_add_u32 v3, s{S_T+5}, v3
        v_xor_b32 v3, v3, v4
        v_lshlrev_b32 v3, 4, v3
        s_mul_i32 s{S_T+5}, s{S_M}, {c.BM}
        s_add_u32 s{S_T+5}, s{S_T+5}, s{S_T+6}
        v_add_u32 v5, s{S_T+5}, v2
        s_mov_b32 s{S_T+7}, {c.strideS}
        v_mul_lo_u32 v5, v5, s{S_T+7}
        v_add_u32 v{vb}, v5, v3""")
        for i in range(1, c.nS):
            k.e(f"v_add_u32 v{vb+i}, {i*16*c.strideS}, v{vb}")
    else:
        k.e(f"""s_mul_i32 s{S_T+5}, s{S_M}, {c.BM*c.strideS}
        s_add_u32 s{S_T+5}, s{S_T+5}, s{S_M0W}
        v_lshlrev_b32 v3, 4, v1
        v_add_u32 v{vb}, s{S_T+5}, v3""")
        for i in range(1, c.nS):
            k.e(f"v_add_u32 v{vb+i}, {(i>>1)*32*c.strideS + (i&1)*2048}, v{vb}")

def loader_voff_F(k, c, vb, colsg=None, panelconst=None):
    w = S_LW
    if c.fmode == 'rows':
        k.e(f"""v_lshrrev_b32 v2, 3, v1
        v_and_b32 v4, 7, v1
        s_lshl_b32 s{S_T+6}, s{w}, 3
        v_lshrrev_b32 v3, 2, v1
        v_and_b32 v3, 4, v3
        v_xor_b32 v3, v3, v4
        s_lshl_b32 s{S_T+5}, s{w}, 1
        v_xor_b32 v3, s{S_T+5}, v3
        v_lshlrev_b32 v3, 4, v3
        v_add_u32 v5, s{S_T+6}, v2
        s_mov_b32 s{S_T+7}, {c.strideF}
        v_mul_lo_u32 v5, v5, s{S_T+7}
        v_add3_u32 v5, v5, v3, s{colsg}""")
        for i in range(c.nF):
            k.e(f"v_add_u32 v{vb+i}, {panelconst(i>>2) + (i&3)*16*c.strideF}, v5")
    else:
        k.e(f"""s_mul_i32 s{S_T+5}, s{S_N}, {c.T*c.BN*128}
        s_add_u32 s{S_T+5}, s{S_T+5}, s{S_M0W}
        v_lshlrev_b32 v3, 4, v1
        v_add_u32 v{vb}, s{S_T+5}, v3""")
        for i in range(1, c.nF):
            k.e(f"v_add_u32 v{vb+i}, {i*2048}, v{vb}")

def kstep(k, c, t):
    src = S_TAU
    if c.own2 == 3:
        packed = sum(((d+8) & 15) << (4*u) for u, d in enumerate(c.rot))
        k.e(f"""s_sub_u32 s{t}, s{S_TAU}, s{S_PH}
        s_and_b32 s{t}, s{t}, 3
        s_lshl_b32 s{t}, s{t}, 2
        s_lshr_b32 s{t}, {packed}, s{t}
        s_and_b32 s{t}, s{t}, 15
        s_add_u32 s{t}, s{t}, s{S_TAU}
        s_sub_u32 s{t}, s{t}, 8
        s_sub_u32 s{t+1}, s{S_PH}, s{S_TAU}
        s_and_b32 s{t+1}, s{t+1}, 3
        s_add_u32 s{t+1}, s{t+1}, s{S_TAU}
        s_sub_u32 s{t+1}, s{t+1}, 4
        s_cmp_ge_u32 s{t+1}, 28
        s_cselect_b32 s{t}, s{S_TAU}, s{t}
        s_sub_u32 s{t+1}, s{t}, 2
        s_cmp_lt_u32 s{t+1}, s{S_KB}
        s_cselect_b32 s{t}, s{t+1}, s{t}
        s_add_u32 s{t+1}, s{S_KB}, s{S_TAU}
        s_cmp_lt_u32 s{S_TAU}, 2
        s_cselect_b32 s{t}, s{t+1}, s{t}
        s_add_u32 s{t}, s{t}, s93
        s_and_b32 s{t}, s{t}, 31""")
        return
    if c.own2 == 2:
        P = len(c.rot); packed = 0
        for u, d in enumerate(c.rot): packed |= ((d+8) & 15) << (4*u)
        k.e(f"""s_lshr_b32 s{t+1}, s{S_TAU}, 1
        s_sub_u32 s{t+2}, s{t+1}, 1
        s_cmp_ge_u32 s{t+2}, s{S_KB}
        s_addc_u32 s{t+2}, s{t+2}, 0
        s_cmp_eq_u32 s{t+1}, 0
        s_cselect_b32 s{t+2}, s{S_KB}, s{t+2}
        s_sub_u32 s{t}, s{t+2}, s{S_PH}
        s_and_b32 s{t}, s{t}, {P-1}
        s_lshl_b32 s{t}, s{t}, 2
        s_lshr_b32 s{t}, {packed}, s{t}
        s_and_b32 s{t}, s{t}, 15
        s_add_u32 s{t}, s{t}, s{t+2}
        s_sub_u32 s{t}, s{t}, 8
        s_and_b32 s{t}, s{t}, 15
        s_lshl_b32 s{t}, s{t}, 1
        s_and_b32 s{t+1}, s{S_TAU}, 1
        s_add_u32 s{t}, s{t}, s{t+1}""")
        return
    if c.kbase is not False:
        q = c.kbase if c.kbase >= 0 else 's93'
        k.e(f"""s_cmp_gt_u32 s{S_TAU}, {q}
        s_subb_u32 s{t+1}, s{S_TAU}, 0
        s_cmp_ge_u32 s{t+1}, s{S_KB}
        s_addc_u32 s{t+1}, s{t+1}, 0
        s_cmp_eq_u32 s{S_TAU}, {q}
        s_cselect_b32 s{t+1}, s{S_KB}, s{t+1}""")
        src = t+1
    if c.rot:
        P = len(c.rot); packed = 0
        for u, d in enumerate(c.rot): packed |= ((d+8) & 15) << (4*u)
        k.e(f"""s_sub_u32 s{t}, s{src}, s{S_PH}
        s_and_b32 s{t}, s{t}, {P-1}
        s_lshl_b32 s{t}, s{t}, 2
        s_lshr_b32 s{t}, {packed}, s{t}
        s_and_b32 s{t}, s{t}, 15
        s_add_u32 s{t}, s{t}, s{src}""")
        if c.half == 16:
            k.e(f"""s_sub_u32 s{t}, s{t}, 8
            s_sub_u32 s{t+1}, s{S_PH}, s{src}
            s_and_b32 s{t+1}, s{t+1}, 3
            s_add_u32 s{t+1}, s{t+1}, s{src}
            s_sub_u32 s{t+1}, s{t+1}, 2
            s_cmp_ge_u32 s{t+1}, {c.T-2}
            s_cselect_b32 s{t}, s{src}, s{t}""")
        elif c.half == 8:
            k.e(f"s_and_b32 s{t}, s{t}, 7\ns_and_b32 s{t+1}, s{src}, 8\ns_or_b32 s{t}, s{t}, s{t+1}")
        elif c.half == 7:
            k.e(f"""s_sub_u32 s{t}, s{t}, 8
            s_add_u32 s{t+1}, s{t}, s{src}
            s_cmp_eq_u32 s{t+1}, 13
            s_cselect_b32 s{t}, s{src}, s{t}
            s_cmp_ge_u32 s{t}, 14
            s_cselect_b32 s{t}, s{src}, s{t}
            s_add_u32 s{t+1}, s{t}, 7
            s_cmp_ge_u32 s{t}, 7
            s_cselect_b32 s{t}, s{t+1}, s{t}""")
        elif c.T & (c.T-1) == 0:
            k.e(f"s_sub_u32 s{t}, s{t}, 8\ns_and_b32 s{t}, s{t}, {c.T-1}")
        else:
            RT = c.T - c.T % 4
            k.e(f"""s_add_u32 s{t}, s{t}, {RT-8}
            s_sub_u32 s{t+1}, s{t}, {RT}
            s_cmp_ge_u32 s{t}, {RT}
            s_cselect_b32 s{t}, s{t+1}, s{t}
            s_sub_u32 s{t+1}, s{t}, {RT}
            s_cmp_ge_u32 s{t}, {RT}
            s_cselect_b32 s{t}, s{t+1}, s{t}""")
            if RT != c.T: k.e(f"s_cmp_ge_u32 s{src}, {RT}\ns_cselect_b32 s{t}, s{src}, s{t}")
    else:
        k.e(f"s_mov_b32 s{t}, s{src}")
    if c.own2 == 1:
        k.e(f"""s_min_u32 s{t+1}, s{t}, s{S_TAU}
        s_max_u32 s{t+2}, s{t}, s{S_TAU}
        s_cmp_lt_u32 s{t+1}, 2
        s_cselect_b32 s{t+1}, s{t+2}, 0
        s_cmp_ge_u32 s{t+1}, 2
        s_cselect_b32 s{t}, s{S_TAU}, s{t}
        s_add_u32 s{t}, s{t}, s{S_KB}
        s_and_b32 s{t}, s{t}, {c.T-1}""")

def issue(k, c, vS, vF, parts="SF", fbase=False):
    t = S_T+8
    kstep(k, c, t)
    if DG[0] & 2: k.e(f"s_and_b32 s{t}, s{t}, 1")
    stepS = 7 if c.smode == 'rows' else 12
    stepF = 64*c.strideF if c.fmode == 'rows' else c.BN*128
    if 'S' in parts:
        k.e(f"""s_lshl_b32 s{S_OS}, s{t}, {stepS}
        s_mul_i32 s{t+1}, s{S_SLOT}, {c.slotS}
        s_add_u32 s{t+1}, s{t+1}, s{S_M0W}
        s_add_u32 m0, s{t+1}, {c.baseS}
        {gapi()}""")
        for i in range(c.nS):
            k.e(f"buffer_load_dwordx4 v{vS+i}, {srd(SRD_S)}, s{S_OS} offen {c.auxS} lds")
            if i < c.nS-1: k.e("s_add_u32 m0, m0, 2048\n" + gapi())
    if 'F' in parts:
        k.e(f"""s_mul_i32 s{S_OF}, s{t}, {stepF}
        s_mul_i32 s{t+1}, s{S_SLOT}, {c.slotF}
        s_add_u32 s{t+1}, s{t+1}, s{S_M0W}
        s_add_u32 m0, s{t+1}, {c.baseF}""")
        if fbase: k.e(f"s_add_u32 s{S_OF}, s{S_OF}, s{S_FB}")
        if CAP[0] or not fbase: k.e(gapi())
        for i in range(c.nF):
            k.e(f"buffer_load_dwordx4 v{vF+i}, {srd(SRD_F)}, s{S_OF} offen {c.auxF} lds")
            if i < c.nF-1: k.e("s_add_u32 m0, m0, 2048\n" + gapi())
    k.e(f"""s_add_u32 s{S_TAU}, s{S_TAU}, 1
    s_add_u32 s{S_SLOT}, s{S_SLOT}, 1
    s_cmp_eq_u32 s{S_SLOT}, {c.NS}
    s_cselect_b32 s{S_SLOT}, 0, s{S_SLOT}""")

def issue_first(k, c, vS, vF, parts, fbase=False, pbarrier=True, t0=0, t1=None):
    n = (c.nS if 'S' in parts else 0) + (c.nF if 'F' in parts else 0)
    top = k.lab("if"); l1 = k.lab("if1")
    t1 = c.NS if t1 is None else t1
    k.e(f"s_mov_b32 s{S_TAU}, {t0}\ns_mov_b32 s{S_SLOT}, {(t0+c.slot0) % c.NS}\n{top}:")
    issue(k, c, vS, vF, parts, fbase)
    if pbarrier:
        k.e(f"s_cmp_lg_u32 s{S_TAU}, 2\ns_cbranch_scc1 {l1}\ns_waitcnt vmcnt({n})\ns_barrier\n{l1}:")
    k.e(f"s_cmp_lt_u32 s{S_TAU}, {t1}\ns_cbranch_scc1 {top}")

CAP = [0]
DG = [0]
def gapi():
    return f"s_waitcnt vmcnt({CAP[0]})" if CAP[0] else "s_nop 0"
ITST = [0, 254]
def itstamp(k):
    if ITST[0]:
        k.e(f"{'s_memtime' if ITST[0] == 2 else 's_memrealtime'} s[{S_ST}:{S_ST+1}]\ns_waitcnt lgkmcnt(0)\ns_mov_b32 m0, s97\ns_nop 0\nv_writelane_b32 v{ITST[1]}, s{S_ST}, m0\ns_add_u32 s97, s97, 1")

S_PA = 60
UNR = [2]
def prep_groups(k, c, dst, fbase):
    t = S_T+8
    tk = Kern(k.name); kstep(tk, c, t)
    if DG[0] & 2: tk.e(f"s_and_b32 s{t}, s{t}, 1")
    stepS = 7 if c.smode == 'rows' else 12
    stepF = 64*c.strideF if c.fmode == 'rows' else c.BN*128
    tk.e(f"s_lshl_b32 s{dst}, s{t}, {stepS}\ns_mul_i32 s{dst+1}, s{t}, {stepF}")
    if fbase: tk.e(f"s_add_u32 s{dst+1}, s{dst+1}, s{S_FB}")
    tk.e(f"""s_mul_i32 s{dst+2}, s{S_SLOT}, {c.slotS}
    s_add_u32 s{dst+2}, s{dst+2}, s{S_M0W}
    s_mul_i32 s{dst+3}, s{S_SLOT}, {c.slotF}
    s_add_u32 s{dst+3}, s{dst+3}, s{S_M0W}
    s_add_u32 s{S_TAU}, s{S_TAU}, 1
    s_add_u32 s{S_SLOT}, s{S_SLOT}, 1
    s_cmp_eq_u32 s{S_SLOT}, {c.NS}
    s_cselect_b32 s{S_SLOT}, 0, s{S_SLOT}""")
    L = [x.strip() for x in tk.L]; G = []
    for x in L:
        if x.startswith(("s_cselect", "s_addc", "s_subb")): G[-1].append(x)
        else: G.append([x])
    return G

def steady(k, c, vS, vF, upto, fbase=False, wait=None):
    top = k.lab("st"); done = k.lab("std")
    w = (c.NS-2)*c.nI if wait is None else wait
    sets = [S_PA, S_PA+8]
    for g in prep_groups(k, c, sets[0], fbase):
        for x in g: k.e(x)
    k.e(f"{top}:")
    for h in range(2):
        cur, nx = sets[h], sets[h ^ 1]
        G = prep_groups(k, c, nx, fbase)
        dm = []
        if not DG[0] & 4: dm += [(f"buffer_load_dwordx4 v{vS+i}, {srd(SRD_S)}, s{cur} offen {c.auxS} lds", f"s_add_u32 m0, s{cur+2}, {c.baseS + i*2048}") for i in range(c.nS)]
        if not DG[0] & 8: dm += [(f"buffer_load_dwordx4 v{vF+i}, {srd(SRD_F)}, s{cur+1} offen {c.auxF} lds", f"s_add_u32 m0, s{cur+3}, {c.baseF + i*2048}") for i in range(c.nF)]
        if dm and not ITST[0]: k.e(dm[0][1])
        k.e(f"s_waitcnt vmcnt({w})\ns_barrier")
        if ITST[0]:
            itstamp(k)
            if dm: k.e(dm[0][1] + "\ns_nop 0")
        ng = max(len(dm)-1, 1); gi = 0
        for i, (ld, m0) in enumerate(dm):
            k.e(ld)
            if i < len(dm)-1:
                k.e(dm[i+1][1])
                tgt = -(-len(G)*(i+1)//ng); n0 = gi
                while gi < tgt:
                    for x in G[gi]: k.e(x)
                    gi += 1
                if gi == n0: k.e("s_nop 0")
        while gi < len(G):
            for x in G[gi]: k.e(x)
            gi += 1
        if h == 0: k.e(f"s_cmp_gt_u32 s{S_TAU}, {upto}\ns_cbranch_scc1 {done}")
        else: k.e(f"s_cmp_le_u32 s{S_TAU}, {upto}\ns_cbranch_scc1 {top}")
    k.e(f"""{done}:
    s_sub_u32 s{S_TAU}, s{S_TAU}, 1
    s_cmp_eq_u32 s{S_SLOT}, 0
    s_cselect_b32 s{S_SLOT}, {c.NS}, s{S_SLOT}
    s_sub_u32 s{S_SLOT}, s{S_SLOT}, 1""")

class Seg:
    def __init__(s_, c, vS, vF, fbase=False, srdS=SRD_S, srdF=SRD_F):
        s_.c = c; s_.vS = vS; s_.vF = vF; s_.fbase = fbase; s_.srdS = srdS; s_.srdF = srdF

class LProg:
    def __init__(s_, k): s_.k = k; s_.h = 0
    def prep(s_, seg, pre=()):
        for x in pre: s_.k.e(x)
        for g in prep_groups(s_.k, seg.c, S_PA + 8*s_.h, seg.fbase):
            for x in g: s_.k.e(x)
    def stage(s_, seg, parts="SF", sync="", nxt=True, pre=(), stampit=False):
        k = s_.k; c = seg.c; cur = S_PA + 8*s_.h; nx = S_PA + 8*(s_.h ^ 1)
        ns = seg if nxt is True else nxt
        G = ([[x] for x in pre] + prep_groups(k, ns.c, nx, ns.fbase)) if ns else []
        dm = []
        if 'S' in parts: dm += [(f"buffer_load_dwordx4 v{seg.vS+i}, {srd(seg.srdS)}, s{cur} offen {c.auxS} lds", f"s_add_u32 m0, s{cur+2}, {c.baseS + i*2048}") for i in range(c.nS)]
        if 'F' in parts: dm += [(f"buffer_load_dwordx4 v{seg.vF+i}, {srd(seg.srdF)}, s{cur+1} offen {c.auxF} lds", f"s_add_u32 m0, s{cur+3}, {c.baseF + i*2048}") for i in range(c.nF)]
        st = stampit and ITST[0]
        if not st: k.e(dm[0][1])
        k.e(sync if sync else "s_nop 0")
        if st:
            itstamp(k); k.e(dm[0][1] + "\ns_nop 0")
        ng = max(len(dm)-1, 1); gi = 0
        for i, (ld, m0) in enumerate(dm):
            k.e(ld)
            if i < len(dm)-1:
                k.e(dm[i+1][1])
                tgt = -(-len(G)*(i+1)//ng); n0 = gi
                while gi < tgt:
                    for x in G[gi]: k.e(x)
                    gi += 1
                if gi == n0: k.e("s_nop 0")
        s_.h ^= 1
    def run(s_, seg, n, wait, nxt=False, pre=()):
        k = s_.k; sync = f"s_waitcnt vmcnt({wait})\ns_barrier"
        m = n - 1
        if m % 2: s_.stage(seg, sync=sync, stampit=True); m -= 1
        if m >= 4:
            top = k.lab("lp")
            k.e(f"s_mov_b32 s{S_CNT}, {m//2}\n{top}:")
            s_.stage(seg, sync=sync, stampit=True, pre=[f"s_sub_u32 s{S_CNT}, s{S_CNT}, 1"]); s_.stage(seg, sync=sync, stampit=True)
            k.e(f"s_cmp_lg_u32 s{S_CNT}, 0\ns_cbranch_scc1 {top}")
        else:
            for _ in range(m): s_.stage(seg, sync=sync, stampit=True)
        s_.stage(seg, sync=sync, nxt=nxt, pre=pre, stampit=True)

def issue_noadv(k, c, vS, vF, parts, fbase=False):
    n0 = len(k.L)
    issue(k, c, vS, vF, parts, fbase)
    del k.L[-4:]

def steady_skew(k, c, vS, vF):
    top = k.lab("sk"); done = k.lab("skd")
    k.e(f"{top}:\ns_waitcnt vmcnt({c.nS+2*c.nF})\ns_barrier")
    itstamp(k)
    issue(k, c, vS, vF, "S")
    k.e(f"s_cmp_eq_u32 s{S_TAU}, {c.T}\ns_cbranch_scc1 {done}")
    issue_noadv(k, c, vS, vF, "F")
    k.e(f"s_branch {top}\n{done}:")

def one(k, c, vS, vF, fbase=False, wait=None):
    w = (c.NS-2)*c.nI if wait is None else wait
    k.e(f"s_waitcnt vmcnt({w})\ns_barrier")
    itstamp(k)
    issue(k, c, vS, vF, "SF", fbase)

def after_split_prologue(k, c, vS, vF, first_n, fbase=False):
    for j in range(c.NS-2):
        one(k, c, vS, vF, fbase, wait=(c.NS-2-j)*first_n + j*c.nI)

def consumer_addr(k, c, R, slot=None, t=16, setslot=True):
    wm = S_WM; wn = S_WN
    lw = int(math.log2(c.WN))
    slot = c.slot0 if slot is None else slot
    if setslot:
        k.e(f"s_mov_b32 s{S_SLOT}, {slot}\ns_mov_b32 s{S_OS}, {-(c.NS-1)*c.slotS}\ns_mov_b32 s{S_OF}, {-(c.NS-1)*c.slotF}")
        for g in slot_adv(c): k.e(g)
    k.e(f"s_lshr_b32 s{wm}, s{S_WAVE}, {lw}\ns_and_b32 s{wn}, s{S_WAVE}, {c.WN-1}")
    k.e(f"s_mul_i32 s{S_T+6}, s{wm}, {c.TM*4096}\ns_add_u32 s{S_T+6}, s{S_T+6}, {c.baseS + slot*c.slotS}")
    k.e(f"v_and_b32 v{t}, 15, v1\nv_lshrrev_b32 v{t+1}, 4, v1")
    if c.smode == 'rows':
        k.e(f"""v_bfe_u32 v{t+2}, v1, 1, 3
        v_xor_b32 v{t+2}, v{t+2}, v{t+1}
        v_lshlrev_b32 v{t+2}, 4, v{t+2}
        v_lshl_add_u32 v{t+2}, v{t}, 7, v{t+2}
        v_add_u32 v{R.aS[0]}, s{S_T+6}, v{t+2}
        v_xor_b32 v{R.aS[1]}, 64, v{R.aS[0]}""")
    else:
        k.e(f"""v_lshlrev_b32 v{t+2}, 4, v{t}
        v_lshl_add_u32 v{t+2}, v{t+1}, 9, v{t+2}
        v_add_u32 v{R.aS[0]}, s{S_T+6}, v{t+2}""")
    a0 = R.aF[0]
    if c.fmode == 'rows':
        k.e(f"""v_bfe_u32 v{t+2}, v1, 2, 2
        v_lshlrev_b32 v{a0}, 7, v{t+2}
        v_lshl_add_u32 v{a0}, v{t+1}, 10, v{a0}
        v_bfe_u32 v{t+2}, v1, 3, 1
        v_lshl_add_u32 v{a0}, v{t+2}, 6, v{a0}
        v_bfe_u32 v{t+2}, v1, 4, 1
        v_lshl_add_u32 v{a0}, v{t+2}, 5, v{a0}
        s_mov_b32 s{S_T+6}, {c.baseF + slot*c.slotF}""")
        if c.panel_from_wave: k.e(f"s_lshl_b32 s{S_T+7}, s{wn}, 13\ns_add_u32 s{S_T+6}, s{S_T+6}, s{S_T+7}")
        k.e(f"v_add_u32 v{a0}, s{S_T+6}, v{a0}")
        if c.nb_from_wave:
            k.e(f"s_lshl_b32 s{S_T+7}, s{wn}, 6\nv_xor_b32 v{a0}, s{S_T+7}, v{a0}")
            k.e(f"""v_and_b32 v{t+2}, 1, v1
            v_lshl_add_u32 v{R.aF[2]}, v{t+2}, 4, v{a0}
            v_bfe_u32 v{t+2}, v1, 1, 1
            v_lshl_add_u32 v{R.aF[2]}, v{t+2}, 3, v{R.aF[2]}
            v_add_u32 v{R.aF[2]}, {8192*c.ftiles[c.orient.index('N')][0]}, v{R.aF[2]}
            v_xor_b32 v{R.aF[3]}, 32, v{R.aF[2]}""")
        k.e(f"v_and_b32 v{t+2}, 3, v1\nv_lshl_add_u32 v{a0}, v{t+2}, 3, v{a0}")
        for b in range(1, 2 if c.nb_from_wave else 4): k.e(f"v_xor_b32 v{R.aF[b]}, {32*b}, v{a0}")
    else:
        k.e(f"""v_bfe_u32 v{t+2}, v1, 2, 2
        v_lshl_add_u32 v{t+2}, v{t+1}, 3, v{t+2}
        v_lshlrev_b32 v{a0}, 4, v{t+2}
        v_bfe_u32 v{t+2}, v1, 1, 1
        v_lshl_add_u32 v{a0}, v{t+2}, 6, v{a0}
        v_lshl_add_u32 v{a0}, v{t+2}, 9, v{a0}
        v_and_b32 v{t+2}, 1, v1
        v_lshl_add_u32 v{a0}, v{t+2}, 3, v{a0}
        s_lshl_b32 s{S_T+6}, s{wn}, 12
        s_add_u32 s{S_T+6}, s{S_T+6}, {c.baseF + slot*c.slotF}
        v_add_u32 v{a0}, s{S_T+6}, v{a0}
        v_xor_b32 v{R.aF[1]}, 64, v{a0}""")

def slot_adv(c):
    if c.NS == 4:
        g = [f"s_add_u32 s{S_SLOT}, s{S_SLOT}, 1", f"s_and_b32 s{S_SLOT}, s{S_SLOT}, 3\ns_cselect_b32 s{S_DS}, {c.slotS}, s{S_OS}"]
        if c.slotF != c.slotS:
            assert 2*c.slotF == c.slotS
            g.append(f"s_ashr_i32 s{S_DF}, s{S_DS}, 1")
        return g
    return [f"s_add_u32 s{S_SLOT}, s{S_SLOT}, 1\ns_cmp_lg_u32 s{S_SLOT}, {c.NS}",
            f"s_cselect_b32 s{S_DS}, {c.slotS}, s{S_OS}\ns_cselect_b32 s{S_DF}, {c.slotF}, s{S_OF}", f"s_cselect_b32 s{S_SLOT}, s{S_SLOT}, 0"]

M16 = "v_mfma_f32_16x16x32_bf16"
class Cons:
    def __init__(s_, k, c, R):
        s_.k = k; s_.c = c; s_.R = R
        s_.TS = 2*c.TM; s_.TF = 2*c.TN
        s_.NF = (getattr(R, 'nfr', 48) - 8*s_.TS)//4
        assert (2*s_.TF) % s_.NF == 0
        s_.NM = 2*s_.TS*s_.TF
        s_.jo = list(c.jorder) if c.jorder else list(range(2*s_.TF))
        s_.pos = {j: i for i, j in enumerate(s_.jo)}
        s_.plan()
    def acc(s_, st, ft): return s_.R.acc + 16*(ft*s_.c.TM+st)
    def sub(s_, t, f):
        a = s_.acc(t >> 1, f >> 1)
        return a + (8*(f & 1) + 4*(t & 1) if s_.c.orient[f >> 1] == 'T' else 8*(t & 1) + 4*(f & 1))
    def rS(s_, u, t): return s_.R.fr + (u*s_.TS + t)*4
    def rF(s_, j): return s_.R.fr + 8*s_.TS + (s_.pos[j] % s_.NF)*4
    def order(s_, f): return list(range(s_.TS)) if f % 2 == 0 else list(range(s_.TS-1, -1, -1))
    def rdS(s_, u, t):
        c, R = s_.c, s_.R
        if c.smode == 'rows': return f"ds_read_b128 {vr(s_.rS(u,t),4)}, v{R.aS[u]} offset:{t*2048}"
        return f"ds_read_b128 {vr(s_.rS(u,t),4)}, v{R.aS[0]} offset:{(t>>1)*4096 + u*2048 + (t&1)*256}"
    def rdF(s_, j, rd):
        c, R = s_.c, s_.R
        u, f = divmod(j, s_.TF); P, nb = c.ftiles[f >> 1]
        if c.fmode == 'rows':
            if c.nb_from_wave:
                a = R.aF[(f & 1) + (2 if c.orient[f >> 1] == 'N' else 0)]
                if c.orient[f >> 1] == 'N': P = 0
            else: a = R.aF[2*nb + (f & 1)]
            return f"ds_read_b64_tr_b16 {vr(s_.rF(j)+2*rd,2)}, v{a} offset:{P*8192 + u*4096 + rd*512}"
        return f"ds_read_b64_tr_b16 {vr(s_.rF(j)+2*rd,2)}, v{R.aF[rd]} offset:{u*c.BN*64 + ((P*2+nb)*2 + (f&1))*1024}"
    def plan(s_):
        TS, TF, NF, NM = s_.TS, s_.TF, s_.NF, s_.NM
        G = TS*TF
        pb = s_.c.pb
        items = []
        for u in range(2):
            ps = [s_.pos[j] for j in range(u*TF, (u+1)*TF)]
            for t in range(TS): items.append((min(ps)*TS + t, (max(ps)+1)*TS - NM, s_.rdS(u, t), ('S', u, t)))
        for j in range(2*TF):
            i = s_.pos[j]
            for rd in range(2): items.append((i*TS - 0.5 + 0.1*rd, (i-NF+1)*TS, s_.rdF(j, rd), ('F', j)))
        items.sort(key=lambda x: x[0])
        cnt = {}; sched = []; g = pb - NM
        for use, e, txt, tag in items:
            g = max(g, e)
            cap = lambda gg: 2 if (gg < pb - NM + s_.c.burst or s_.c.cap2 is True) else 1
            while cnt.get(g, 0) >= cap(g): g += 1
            cnt[g] = cnt.get(g, 0) + 1
            sched.append((g, txt, tag))
            assert g <= use + 0.5, (g, use, tag)
        s_.sched = sched; s_.lastcur = max(g for g, _, _ in sched)
        assert s_.lastcur < pb, (s_.lastcur, pb)
    def first_reads_static(s_, slot):
        for g, txt, tag in s_.sched:
            if g < 0:
                a, b = txt.rsplit("offset:", 1)
                s_.k.e(f"{a}offset:{int(b) + slot*(s_.c.slotS if tag[0] == 'S' else s_.c.slotF)}")
    def loop4(s_, nrep, slot):
        k = s_.k; lp = k.lab("c4")
        k.e(f"s_mov_b32 s{S_CNT}, {nrep}\n.p2align 6\n{lp}:")
        for i in range(s_.c.NS):
            s_.loop(1, slot=(slot+i) % s_.c.NS, fillers=([f"s_sub_u32 s{S_CNT}, s{S_CNT}, 1", f"s_cmp_lg_u32 s{S_CNT}, 0"] if i == s_.c.NS-1 else None))
        k.e(f"s_cbranch_scc1 {lp}")
    def loopu(s_, nrep, unr):
        k = s_.k; lp = k.lab("cu")
        if nrep > 1: k.e(f"s_mov_b32 s{S_CNT}, {nrep}\n.p2align 6\n{lp}:")
        for i in range(unr): s_.loop(1)
        if nrep > 1: k.e(f"s_sub_u32 s{S_CNT}, s{S_CNT}, 1\ns_cmp_lg_u32 s{S_CNT}, 0\ns_cbranch_scc1 {lp}")
    def zero(s_):
        for i in range(0, s_.c.TM*s_.c.TN*16, 2): s_.k.e(f"v_mov_b64 v[{s_.R.acc+i}:{s_.R.acc+i+1}], 0")
    def first_reads(s_):
        for g, txt, tag in s_.sched:
            if g < 0: s_.k.e(txt)
    def loop(s_, nsteps, pre_barrier=None, fillers=None, budget=8, next_cons=None, tail=None, slot=None, nslot=None, fstart=1):
        k, c, R = s_.k, s_.c, s_.R
        TS, TF, NM, pb = s_.TS, s_.TF, s_.NM, s_.c.pb
        q = [tag for g, _, tag in s_.sched if g < 0]
        lp = k.lab("cloop")
        if nsteps > 1: k.e(f"s_mov_b32 s{S_CNT}, 0\n.p2align 6\n{lp}:")
        gaps = [[] for _ in range(NM+1)]; mfs = []
        nxt = s_ if next_cons is None else next_cons
        byg = {}
        def sh(txt, tag, cc, sl):
            if sl is None: return txt
            a, b = txt.rsplit("offset:", 1)
            o = int(b) + sl*(cc.slotS if tag[0] == 'S' else cc.slotF)
            assert o < 65536
            return f"{a}offset:{o}"
        if slot is not None and nslot is None: nslot = (slot+1) % c.NS
        for g, txt, tag in s_.sched:
            if g >= 0: byg.setdefault(g, []).append((sh(txt, tag, c, slot), tag))
        if nxt:
            for g, txt, tag in nxt.sched:
                if g < 0: byg.setdefault(max(g + NM, pb), []).append((sh(txt, tag, nxt.c, nslot), ('n',)+tag))
        for i, txt in enumerate(tail or []): byg.setdefault(min(pb + i//2, NM), []).append((txt, ('x', i)))
        dF = S_DF if c.slotF != c.slotS else S_DS
        upd = [f"v_add_u32 v{a}, s{S_DS}, v{a}" for a in R.aS] + [f"v_add_u32 v{a}, s{dF}, v{a}" for a in R.aF]
        if slot is not None: upd = []
        ng = max(pb - s_.lastcur - 1, 1); per = max(-(-len(upd)//ng), 1)
        misc = {}
        for i, x in enumerate(upd): misc.setdefault(s_.lastcur + 1 + i//per, []).append(x)
        sal = ([f"s_add_u32 s{S_CNT}, s{S_CNT}, 1"] if nsteps > 1 else []) + slot_adv(c)
        if slot is not None: sal = []
        assert c.NS == 4 or not fillers or slot is not None
        assert len(sal) <= NM-pb-1
        free = sorted(range(pb+1, NM), key=lambda g: (len(byg.get(g, [])), -g))[:len(sal)]
        for g, x in zip(sorted(free), sal): misc.setdefault(g, []).extend(x.split("\n"))
        when = {tag: g for g, _, tag in s_.sched}
        p = 0
        for j in s_.jo:
            u, f = divmod(j, TF)
            for t in s_.order(f):
                G_ = gaps[p]
                G_ += misc.get(p, [])
                if p == pb:
                    G_.append("s_waitcnt lgkmcnt(0)" + (" vmcnt(0)" if pre_barrier == "vm" else "")); q.clear()
                    G_.append("s_barrier")
                tags = [('S', u, t), ('F', j)]
                if len(q) + len(byg.get(p, [])) > 15:
                    idx = max([i for i, tg in enumerate(q) if tg in tags] + [len(q) + len(byg[p]) - 16])
                    while idx+1 < len(q) and when.get(q[idx+1], 99) <= p - c.old: idx += 1
                    G_.append(f"s_waitcnt lgkmcnt({len(q)-1-idx})"); del q[:idx+1]
                for txt, tag in byg.get(p, []): G_.append(txt); q.append(tag)
                idx = max([i for i, tg in enumerate(q) if tg in tags], default=-1)
                if idx >= 0:
                    while idx+1 < len(q) and when.get(q[idx+1], 99) <= p - c.old: idx += 1
                    n = len(q) - 1 - idx
                    assert n <= 15
                    G_.append(f"s_waitcnt lgkmcnt({n})"); del q[:idx+1]
                a, b = (s_.rF(j), s_.rS(u, t)) if c.orient[f >> 1] == 'T' else (s_.rS(u, t), s_.rF(j))
                d = s_.sub(t, f)
                mfs.append(f"{M16} {vr(d,4)}, {vr(a,4)}, {vr(b,4)}, {vr(d,4)}")
                p += 1
        for txt, tag in byg.get(NM, []): gaps[NM].append(txt)
        if nsteps > 1: gaps[NM] += [f"s_cmp_lt_u32 s{S_CNT}, {nsteps}", f"s_cbranch_scc1 {lp}"]
        isv = lambda x: x.startswith("v_")
        tr = lambda x: x.startswith(("v_exp", "v_rcp", "v_rsq", "v_sqrt"))
        def cost(x):
            if tr(x) or x.startswith("buffer_"): return 2
            if x.startswith("s_"): return 0.5
            return 1
        def base_used(g):
            nd = sum(x.startswith("ds_") for x in g); nw = sum(x.startswith("s_waitcnt") for x in g)
            if any(x.startswith(("s_barrier", "s_cbranch")) for x in g): return 9
            return nd*(1 if nd < 2 else 0.5) + (nw if nd else 0.5*nw) + sum(isv(x) for x in g) + 0.3*sum(x.startswith("s_") and not x.startswith("s_waitcnt") for x in g)
        fl = list(fillers or [])
        place = [[] for _ in gaps]
        if fl:
            ngp = len(gaps) - 1
            used = [base_used(g) for g in gaps]
            b = budget/4
            while True:
                fi = 0; place = [[] for _ in gaps]
                tot = sum(cost(x) for x in fl); fre = sum(max(int(b-used[g]), 0) for g in range(fstart, ngp)); acc = 0; done = 0
                for g in range(fstart, ngp):
                    room = max(int(b - used[g]), 0); acc += room
                    while fi < len(fl) and cost(fl[fi]) <= room and done < 1.15*acc*tot/max(fre, 1):
                        room -= cost(fl[fi]); done += cost(fl[fi]); place[g].append(fl[fi]); fi += 1
                if fi == len(fl): break
                b += 1
        for g in range(len(gaps)):
            G_ = gaps[g]
            if g != pb: G_ = [x for x in G_ if not isv(x)] + [x for x in G_ if isv(x)]
            for x in G_: k.e(x)
            for x in place[g]:
                if x != 'PAD': k.e(x)
            if g < len(mfs): k.e(mfs[g])
```

```python
import sys, struct
from core4 import *

MB = 1<<20
WS_O=4*MB; WS_H=8*MB; WS_Z2N=20*MB; WS_U=28*MB
WS_KVP=36*MB; WS_ZP=38*MB; WS_KVF=38*MB+131072; WS_ZF=38*MB+262144; WS_HC=38*MB+524288; WS_XS=39*MB; WS_CQP=39*MB+65536; WS_CSP=39*MB+512*1024
WS_XP=12*MB; WS_HH=41*MB+512*1024; WS_HST=40*MB; WS_ZST=41*MB
FLS=4352
WS_FLAG=42*MB; F_O=WS_FLAG; F_H=WS_FLAG+16*FLS; F_Z=WS_FLAG+32*FLS; F_U=WS_FLAG+48*FLS
WS_END=43*MB
P_X=0; P_WQKV=1; P_WPHI=2; P_WO=3; P_WIN=5; P_WSP=6; P_BSP=7; P_WOUT=8; P_OUT=9; P_DBG=10; P_WS=11
S_Q=92; S_CW=90
L_CW=131072
L_WPHI=147456; L_XS=L_WPHI+4096; L_CQ=L_XS+1024; L_HS=L_CQ+1024; L_CS=L_HS+2048; L_ZP=L_CS+1024; L_ZS=L_ZP+2048; L_END=L_ZS+1024
KNAME = "sequential_preLN__linear_kernel_hedgehog__mixer_gmlp__prompt_kernel"

def f2u(x): return struct.unpack("<I", struct.pack("<f", x))[0]
LOG2E = 1.4426950408889634
C0 = -2*LOG2E*0.7978845608028654; C1 = C0*0.044715
MF = "v_mfma_f32_32x32x16_bf16"
W = srd(SRD_W)

class Opt:
    stamps = 0
    pf = 2
    slp = 4
    vslp = 2
    pfw = 0
    gat = 18
    spq = -1
    z1fill = 1
    nfill = 2
    p1ph = 1
    own2 = 3
    p4ph = 0
    vprio = 0
    zsp = 4
    dsx = 0
    kfslp = 17
    pfd = 1
    qpf = 0
    pb1 = 40
    pb2 = 10
    pb3 = 24
    bu = 2
    kst = 0
    zg = 1
    h3 = 16
    nw5 = 1
    nw2 = 1
    hh = 1
    hhs = 24
    fw = 0
    late = 0
    two = 1
    tw = 0
    tlb = 0
    wpos = 1
    hsp = 1
    hpos = 1
    zdma = 1
    xis = 4
    bu5 = 9
    nprio = 1
    qm = 4
    q0 = 2
    pads = 1
    xa = 0
    gb = 1
    nst = 0
    xl = 0
    sk = 1
    jo = 1
    jpad = 10
    f5 = 1
    pb5 = 25
    xslp = 6
    ct = 2
    p4loop = 0
    u1 = 3
    u3 = 3
    dg = 0
    bud = 8
    r1 = 0
    r2 = 0
    r3 = 0
    r4 = 0
    r5 = 0
    st4 = 5
    old = 7
    old2 = 7
    cyc = 0
    lead = 6
    fpos = 1
    l2 = 0
    r8 = 0
    kfe = 0
    kvr = 5
    probe = 0
    pwg = 83
    pfrom = 0
    pwave = 0
    cap = 0
    vmd = 1
    z1n = 2
    pa = 3
    pl = 2
    pc = 0
    kvslp = 14
OPT = Opt()

def unpack(k, lo, hi, src):
    k.e(f"v_lshlrev_b32 v{lo}, 16, v{src}\nv_and_b32 v{hi}, 0xffff0000, v{src}")
def cvt16(k, dst, src):
    for i in range(8): k.e(f"v_cvt_pk_bf16_f32 v{dst+i}, v{src+2*i}, v{src+2*i+1}")
def stamp(k, i):
    if OPT.stamps:
        k.e(f"s_memrealtime s[{S_ST}:{S_ST+1}]\ns_waitcnt lgkmcnt(0)\nv_writelane_b32 v255, s{S_ST}, {i}")
        if OPT.cyc: k.e(f"s_memtime s[{S_ST}:{S_ST+1}]\ns_waitcnt lgkmcnt(0)\nv_writelane_b32 v255, s{S_ST}, {i+32}")
def bars(k, n):
    if n <= 4:
        for _ in range(n): k.e("s_barrier")
    else:
        t = k.lab("bars")
        k.e(f"s_mov_b32 s{S_CNT}, {n}\n{t}:\ns_barrier\ns_sub_u32 s{S_CNT}, s{S_CNT}, 1\ns_cmp_lg_u32 s{S_CNT}, 0\ns_cbranch_scc1 {t}")

def if_par(k, par, text):
    sk = k.lab("par")
    k.e(f"s_bitcmp1_b32 s2, 0\ns_cbranch_scc{1 if par == 0 else 0} {sk}\n{text}\n{sk}:")

def check_flags(k, nflags, val, oklab):
    k.e(f"""v_cmp_le_u32 vcc, {val}, v8
    s_and_b32 s{S_T+11}, vcc_lo, {(1<<nflags)-1}
    s_cmp_eq_u32 s{S_T+11}, {(1<<nflags)-1}
    s_cbranch_scc1 {oklab}""")
def spin_tail(k, top, slp=None):
    k.e(f"s_sleep {OPT.slp if slp is None else slp}\ns_sub_u32 s{S_T+10}, s{S_T+10}, 1\ns_cmp_lg_u32 s{S_T+10}, 0\ns_cbranch_scc1 {top}")
def poll(k, voff, nflags, srdn=SRD_W, val=1, pre=False):
    top = k.lab("poll"); done = k.lab("polld")
    k.e(f"s_cmp_lg_u32 s{S_LW}, 0\ns_cbranch_scc1 {done}")
    if pre:
        k.e("s_waitcnt vmcnt(0)")
        check_flags(k, nflags, val, done)
    k.e(f"s_mov_b32 s{S_T+10}, 0x40000\n{top}:")
    k.e(f"buffer_load_dword v8, v{voff}, {srd(srdn)}, 0 offen sc1\ns_waitcnt vmcnt(0)")
    check_flags(k, nflags, val, done)
    spin_tail(k, top)
    k.e(f"{done}:")
def sample(k, voff, srdn=SRD_W):
    sk = k.lab("nosm")
    k.e(f"s_cmp_lg_u32 s{S_LW}, 0\ns_cbranch_scc1 {sk}\nbuffer_load_dword v8, v{voff}, {srd(srdn)}, 0 offen sc1\n{sk}:")
def tagcheck(k, regs, t, ok):
    regs = list(regs)
    if len(regs) % 2 == 0:
        k.e(f"v_max_u32 v{t}, v{regs[0]}, v{regs[1]}"); rest = regs[2:]
    else:
        k.e(f"v_max3_u32 v{t}, v{regs[0]}, v{regs[1]}, v{regs[2]}"); rest = regs[3:]
    for i in range(0, len(rest), 2): k.e(f"v_max3_u32 v{t}, v{t}, v{rest[i]}, v{rest[i+1]}")
    k.e(f"v_cmp_eq_u32 vcc, -1, v{t}\ns_cmp_eq_u64 vcc, 0\ns_cbranch_scc1 {ok}")
def validated(k, gather, regs, t, pre=True):
    top = k.lab("vsp"); ok = k.lab("vok")
    if pre: tagcheck(k, regs, t, ok)
    k.e(f"s_mov_b32 s{S_T+10}, 0x40000\n{top}:")
    gather()
    k.e("s_waitcnt vmcnt(0)")
    tagcheck(k, regs, t, ok)
    spin_tail(k, top, OPT.vslp)
    k.e(f"{ok}:")

def cnt_addr(k, v, base, sline):
    k.e(f"""s_mul_i32 s{S_T}, s{sline}, {FLS}
    s_add_u32 s{S_T}, s{S_T}, {base}
    v_mov_b32 v{v}, s{S_T}""")
def set_flag(k, vset, lanes=1):
    sk = k.lab("nofl")
    k.e(f"""s_cmp_lg_u32 s{S_LW}, {OPT.fw}
    s_cbranch_scc1 {sk}
    s_mov_b64 exec, {lanes}
    buffer_atomic_add v11, v{vset}, {W}, 0 offen sc1
    s_mov_b64 exec, -1
    {sk}:""")

def softmax_pm(k0, P, EP, EN, T, OP, ON, inject=(), wpos=(), wneg=()):
    L = S_K
    k = Kern(k0.name)
    k.e(f"v_max3_f32 v{T}, v{P}, v{P+1}, v{P+2}\nv_min3_f32 v{T+1}, v{P}, v{P+1}, v{P+2}")
    for i in range(3, 15, 2):
        k.e(f"v_max3_f32 v{T}, v{T}, v{P+i}, v{P+i+1}\nv_min3_f32 v{T+1}, v{T+1}, v{P+i}, v{P+i+1}")
    k.e(f"""v_max_f32 v{T}, v{T}, v{P+15}
    v_max_f32 v{T+1}, -v{T+1}, -v{P+15}
    s_nop 1
    v_permlane32_swap_b32 v{T}, v{T+1}
    v_max_f32 v{T}, v{T}, v{T+1}
    v_mul_f32 v{T}, {f2u(-LOG2E)}, v{T}
    v_mov_b32 v{T+1}, v{T}
    s_nop 1
    v_permlane32_swap_b32 v{T}, v{T+1}""")
    for i in range(8):
        k.e(f"v_pk_fma_f32 v[{EP+2*i}:{EP+2*i+1}], v[{P+2*i}:{P+2*i+1}], s[{L}:{L+1}], v[{T}:{T+1}] op_sel_hi:[1,1,0]")
        k.e(f"v_pk_fma_f32 v[{EN+2*i}:{EN+2*i+1}], v[{P+2*i}:{P+2*i+1}], s[{L}:{L+1}], v[{T}:{T+1}] op_sel:[0,0,1] op_sel_hi:[1,1,1] neg_lo:[0,1,0] neg_hi:[0,1,0]")
    for i in range(16):
        k.e(f"v_exp_f32 v{EP+i}, v{EP+i}\nv_exp_f32 v{EN+i}, v{EN+i}")
    k.e(f"v_pk_add_f32 v[{T}:{T+1}], v[{EP}:{EP+1}], v[{EP+2}:{EP+3}]\nv_pk_add_f32 v[{T+2}:{T+3}], v[{EN}:{EN+1}], v[{EN+2}:{EN+3}]")
    for i in range(2, 8):
        k.e(f"v_pk_add_f32 v[{T}:{T+1}], v[{T}:{T+1}], v[{EP+2*i}:{EP+2*i+1}]\nv_pk_add_f32 v[{T+2}:{T+3}], v[{T+2}:{T+3}], v[{EN+2*i}:{EN+2*i+1}]")
    k.e(f"""v_add_f32 v{T}, v{T}, v{T+1}
    v_add_f32 v{T+1}, v{T+2}, v{T+3}
    s_nop 1
    v_permlane32_swap_b32 v{T}, v{T+1}
    v_add_f32 v{T}, v{T}, v{T+1}
    v_rcp_f32 v{T}, v{T}
    s_nop 0
    v_mov_b32 v{T+1}, v{T}
    s_nop 1
    v_permlane32_swap_b32 v{T}, v{T+1}""")
    inj = list(inject); step = max(len(k.L)//(len(inj)+1), 1)
    for i, x in enumerate(k.L):
        k0.e(x)
        if inj and i % step == step-1: k0.e(inj.pop(0))
    for x in inj: k0.e(x)
    k = k0
    for E, O, sel, wr in ((EP, OP, "op_sel_hi:[1,0]", wpos), (EN, ON, "op_sel:[0,1] op_sel_hi:[1,1]", wneg)):
        for hh in range(2):
            for i in range(4*hh, 4*hh+4): k.e(f"v_pk_mul_f32 v[{E+2*i}:{E+2*i+1}], v[{E+2*i}:{E+2*i+1}], v[{T}:{T+1}] {sel}")
            for i in range(4*hh, 4*hh+4): k.e(f"v_cvt_pk_bf16_f32 v{O+i}, v{E+2*i}, v{E+2*i+1}")
            if wr: k.e(wr[hh])

def softmax2(k, argsA, argsB, inject=(), wA=((), ()), wB=((), ())):
    ta = Kern(k.name); softmax_pm(ta, *argsA, wpos=wA[0], wneg=wA[1])
    tb = Kern(k.name); softmax_pm(tb, *argsB, wpos=wB[0], wneg=wB[1])
    L = []
    for x, y in zip(ta.L, tb.L):
        x = x.strip(); y = y.strip()
        if x == "s_nop 1": L.append("s_nop 0")
        elif x == "s_nop 0": pass
        else: L += [x, y]
    inj = list(inject); step = max((len(L)*2//3)//(len(inj)+1), 1)
    for i, x in enumerate(L):
        k.e(x)
        if inj and i % step == step-1: k.e(inj.pop(0))

def xhalf_sum2(k, a):
    k.e(f"""s_nop 1
    v_permlane32_swap_b32 v{a}, v{a+1}
    v_add_f32 v{a}, v{a}, v{a+1}
    v_mov_b32 v{a+1}, v{a}
    s_nop 1
    v_permlane32_swap_b32 v{a}, v{a+1}""")
def xswap_sum1(k, a, t, which=32):
    k.e(f"v_mov_b32 v{t}, v{a}\ns_nop 1\nv_permlane{which}_swap_b32 v{a}, v{t}\nv_add_f32 v{a}, v{a}, v{t}")
def xswap_sum(k, a, t, n, which):
    for i in range(n): k.e(f"v_mov_b32 v{t+i}, v{a+i}")
    k.e("s_nop 1")
    for i in range(n): k.e(f"v_permlane{which}_swap_b32 v{a+i}, v{t+i}")
    for i in range(n): k.e(f"v_add_f32 v{a+i}, v{a+i}, v{t+i}")
def ror_sum(k, a, n, sh):
    k.e("s_nop 1")
    for i in range(n): k.e(f"v_add_f32_dpp v{a+i}, v{a+i}, v{a+i} row_ror:{sh} row_mask:0xf bank_mask:0xf")
def acc_bf16(k, A, src, n, first, t, plain=False):
    for j in range(n):
        if first: unpack(k, A+2*j, A+2*j+1, src+j)
        elif plain:
            tt = t+2*(j & 1)
            unpack(k, tt, tt+1, src+j)
            k.e(f"v_add_f32 v{A+2*j}, v{A+2*j}, v{tt}\nv_add_f32 v{A+2*j+1}, v{A+2*j+1}, v{tt+1}")
        else:
            tt = t+2*(j & 1)
            unpack(k, tt, tt+1, src+j)
            k.e(f"v_pk_add_f32 v[{A+2*j}:{A+2*j+1}], v[{A+2*j}:{A+2*j+1}], v[{tt}:{tt+1}]")
def combine(k, P, n, cnt, d, t):
    k.e(f"v_pk_add_f32 v[{d}:{d+1}], v[{P}:{P+1}], v[{P+2}:{P+3}]")
    for i in range(2, n): k.e(f"v_pk_add_f32 v[{d}:{d+1}], v[{d}:{d+1}], v[{P+2*i}:{P+2*i+1}]")
    k.e(f"v_mul_f32 v{d}, {f2u(1.0/n)}, v{d}\nv_mov_b32 v{t+1}, 0")
    for i in range(n): k.e(f"v_sub_f32 v{t}, v{P+2*i}, v{d}\nv_fmac_f32 v{t+1}, v{t}, v{t}")
    k.e(f"v_fmac_f32 v{d+1}, {f2u(float(cnt))}, v{t+1}")
def finish_rstd(k, d, total):
    k.e(f"""v_mul_f32 v{d+1}, {f2u(1.0/total)}, v{d+1}
    v_add_f32 v{d+1}, {f2u(1e-5)}, v{d+1}
    v_rsq_f32 v{d+1}, v{d+1}
    s_nop 0
    v_mul_f32 v{d}, -v{d}, v{d+1}""")

ROTS = [(-1,0,2,-1), (-1,0,0,1), (-1,3,-1,-1), (-2,-2,-1,5), (0,0,0,0), (-2,-2,6,-2)]
def cfgs():
    c1 = Cfg(128,192,16,3,2,2,1, 2048, 6144, [(1,0),(2,0),(0,0)], True, False, orient=['T','N','T'], smode='rows', baseS=0, baseF=49152, kbase=OPT.spq, rot=ROTS[OPT.r1], pb=OPT.pb1, burst=OPT.bu, old=OPT.old)
    c2 = Cfg(128,64,16,4,4,1,2, 2048, 2048, [(0,0),(0,1)], False, False, smode='frag', auxS="sc1", rot=ROTS[OPT.r2], half=(16 if OPT.nw2 else 0), pb=OPT.pb2, cap2=True, old=OPT.old2)
    c3 = Cfg(128,128,16,4,2,2,1, 2048, 7168, [(0,0),(0,1)], False, True, smode='frag', auxS="sc1", slot0=2, rot=ROTS[OPT.r3], half=OPT.h3, pb=OPT.pb3, burst=OPT.bu, old=OPT.old)
    c4 = Cfg(128,128,32,4,2,2,1, 4096, 0, [(0,0),(0,1)], False, True, smode='rows', fmode='blk', auxF="sc1", rot=(-1,0,0,1) if OPT.own2 == 1 else ROTS[OPT.r4], own2=OPT.own2, pb=OPT.pb3, burst=OPT.bu, old=OPT.old)
    c5 = Cfg(128,64,28,4,4,1,2, 3584, 2048, [(0,0),(0,1)], False, False, smode='frag', auxS="sc1", baseF=114688, slot0=2, rot=ROTS[OPT.r5], pb=OPT.pb2, cap2=True, old=OPT.old2)
    if OPT.sk:
        c5 = Cfg(128,128,14,4,4,1,2, 3584, 2048, [(0,0),(0,1),(1,0),(1,1)], False, False, smode='frag', auxS="sc1", baseF=98304, slot0=2, rot=ROTS[1 if OPT.two & 2 else OPT.r5], half=(7 if OPT.two & 2 else (16 if OPT.nw5 else 0)), pb=OPT.pb5, cap2=(OPT.bu5 == 0), burst=OPT.bu5, old=OPT.old2, jorder=[0,1,2,3,8,9,10,11,4,5,6,7,12,13,14,15] if OPT.jo else None)
    return c1, c2, c3, c4, c5
VS=16; VF=24; VS4=36; VF4=44; VS5=52; VF5=60; VF3=68
L_PHK=0; L_VX=32768; L_KV=49152; L_Z=57344

def tail_barriers(k, c, extra=0):
    for r in range(c.NS-1):
        k.e(f"s_waitcnt vmcnt({max(c.NS-2-r,0)*c.nI + extra})\ns_barrier")

def win_loads(k, tag):
    mk_srd(k, SRD_A, P_WO, 2*MB); mk_srd(k, SRD_B, P_WIN, 7*MB)
    n = 8
    k.e(f"""s_lshr_b32 s{S_T}, s2, 3
    s_lshl_b32 s{S_T+2}, s{S_T}, 2
    s_add_u32 s{S_T+2}, s{S_T+2}, s{S_Q}
    s_and_b32 s{S_T+3}, s2, 1""")
    if OPT.l2 & 1:
        k.e(f"""s_lshl_b32 s{S_T+1}, s{S_T+2}, 14
        s_lshl_b32 s{S_T+4}, s{S_T+3}, 10
        s_add_u32 s{S_T+1}, s{S_T+1}, s{S_T+4}
        v_lshrrev_b32 v3, 3, v1
        v_lshlrev_b32 v3, 11, v3
        v_and_b32 v4, 7, v1
        v_lshl_add_u32 v3, v4, 7, v3
        buffer_load_dword v250, v3, {srd(SRD_A)}, s{S_T+1} offen""")
    else:
        k.e(f"""s_lshl_b32 s{S_T+1}, s2, 2
        s_add_u32 s{S_T+1}, s{S_T+1}, s{S_Q}
        s_lshl_b32 s{S_T+1}, s{S_T+1}, 11
        v_lshlrev_b32 v3, 7, v1
        s_mov_b64 exec, 0xffff
        buffer_load_dword v250, v3, {srd(SRD_A)}, s{S_T+1} offen
        s_mov_b64 exec, -1""")
    n += 1
    k.e(f"""s_lshr_b32 s{S_T+4}, s{S_T}, 1
    s_cmp_ge_u32 s{S_T+4}, 7
    s_cselect_b32 s{S_T+5}, 7, 0
    s_add_u32 s{S_T+4}, s{S_T+4}, s{S_T+5}
    s_mul_i32 s{S_T+5}, s{S_T+3}, 7
    s_add_u32 s{S_CW}, s{S_T+4}, s{S_T+5}
    s_and_b32 s{S_T+5}, s2, 6
    s_and_b32 s{S_T+6}, s{S_T}, 1
    s_add_u32 s{S_CW+1}, s{S_T+5}, s{S_T+6}
    s_lshl_b32 s{S_T+5}, s{S_CW+1}, 2
    s_add_u32 s{S_T+5}, s{S_T+5}, s{S_Q}
    s_mul_i32 s{S_T+5}, s{S_T+5}, {32*7168}
    s_lshl_b32 s{S_T+4}, s{S_CW}, 8
    s_add_u32 s{S_T+5}, s{S_T+5}, s{S_T+4}
    s_cmp_ge_u32 s2, 224
    s_cselect_b32 s{S_T+5}, {7*MB}, s{S_T+5}
    v_lshrrev_b32 v3, 4, v1
    v_mul_u32_u24 v3, 7168, v3
    v_and_b32 v4, 15, v1
    v_lshl_add_u32 v5, v4, 4, v3""")
    for j in range(8):
        k.e(f"buffer_load_dwordx4 v[{192+4*j}:{195+4*j}], v5, {srd(SRD_B)}, s{S_T+5} offen\ns_add_u32 s{S_T+5}, s{S_T+5}, {4*7168}")
    if OPT.l2 & 2:
        k.e(f"""v_min_u32 v4, 13, v4
        v_lshl_add_u32 v3, v4, 7, v3
        s_mul_i32 s{S_T+1}, s{S_T+2}, {4*7168}
        s_mul_i32 s{S_T+4}, s{S_T+3}, 1792
        s_add_u32 s{S_T+1}, s{S_T+1}, s{S_T+4}
        s_add_u32 s{S_T+1}, s{S_T+1}, 3584
        buffer_load_dword v251, v3, {srd(SRD_B)}, s{S_T+1} offen
        s_add_u32 s{S_T+1}, s{S_T+1}, {512*7168}
        buffer_load_dword v252, v3, {srd(SRD_B)}, s{S_T+1} offen""")
        n += 2
    return n
def win_reduce(k):
    for j in range(8): acc_bf16(k, 224, 192+4*j, 4, j == 0, 232)
    xswap_sum(k, 224, 232, 8, 32)
    k.e(f"""s_lshl_b32 s{S_T}, s{S_Q}, 10
    s_add_u32 s{S_T}, s{S_T}, {L_CW}
    v_and_b32 v4, 31, v1
    v_lshl_add_u32 v4, v4, 5, s{S_T}
    ds_write_b128 v4, v[224:227]
    ds_write_b128 v4, v[228:231] offset:16
    s_waitcnt lgkmcnt(0)""")

def pf_loop(k, srdn, n, stride):
    t = k.lab("pf")
    k.e(f"s_mov_b32 s{S_CNT}, {n}\n{t}:")
    k.e(f"buffer_load_dword v3, v2, {srd(srdn)}, s{S_T+4} offen\ns_add_u32 s{S_T+4}, s{S_T+4}, {stride}")
    k.e(f"s_waitcnt vmcnt({OPT.pfd})\ns_sub_u32 s{S_CNT}, s{S_CNT}, 1\ns_cmp_lg_u32 s{S_CNT}, 0\ns_cbranch_scc1 {t}")

def helper_pf(k, role):
    nw = OPT.pf
    if OPT.tlb and role == 'c':
        st = 1 << OPT.tlb
        mk_srd(k, SRD_A, P_WOUT, 1792*2048); mk_srd(k, SRD_B, P_WSP, 8*MB)
        k.e(f"""s_lshr_b32 s{S_T}, s2, 3
        s_sub_u32 s{S_T}, s{S_T}, 28
        s_lshl_b32 s{S_T}, s{S_T}, 2
        s_add_u32 s{S_T}, s{S_T}, s{S_WAVE}
        s_lshl_b32 s{S_T+4}, s{S_T}, {OPT.tlb+6}
        v_and_b32 v3, 31, v1
        v_lshlrev_b32 v3, 7, v3
        v_lshlrev_b32 v2, {OPT.tlb}, v1
        v_add_u32 v2, v2, v3""")
        pf_loop(k, SRD_B, max(8*MB//(st*1024), 1), st*1024)
        k.e(f"s_lshl_b32 s{S_T+4}, s{S_T}, {OPT.tlb+6}")
        pf_loop(k, SRD_A, max(4*MB//(st*1024), 1), st*1024)
        k.e("s_waitcnt vmcnt(0)")
        return
    if not nw or role != 'c': return
    k.e(f"s_cmp_ge_u32 s{S_WAVE}, {nw}\ns_cbranch_scc1 L_nopf")
    mk_srd(k, SRD_A, P_WOUT, 1792*2048); mk_srd(k, SRD_B, P_WSP, 8*MB)
    k.e(f"""s_sub_u32 s{S_T}, s2, 224
    s_mul_i32 s{S_T}, s{S_T}, {nw}
    s_add_u32 s{S_T}, s{S_T}, s{S_WAVE}
    s_lshl_b32 s{S_T+4}, s{S_T}, 13
    v_lshlrev_b32 v2, 7, v1""")
    for _ in range(OPT.pfw): k.e("s_sleep 127")
    pf_loop(k, SRD_B, 32//nw, 8192*32*nw)
    stamp(k, 12)
    k.e(f"s_lshl_b32 s{S_T+4}, s{S_T}, 13")
    pf_loop(k, SRD_A, -(-14//nw), 8192*32*nw)
    k.e("s_waitcnt vmcnt(0)\nL_nopf:")

def inv_pos(k, rot):
    inv = [0]*4
    for u, d in enumerate(rot): inv[(u+d) & 3] = -d
    packed = sum(((d+8) & 15) << (4*u) for u, d in enumerate(inv))
    k.e(f"""s_sub_u32 s{S_T}, s{S_M}, s{S_PH}
    s_and_b32 s{S_T}, s{S_T}, 3
    s_lshl_b32 s{S_T}, s{S_T}, 2
    s_lshr_b32 s{S_T}, {packed}, s{S_T}
    s_and_b32 s{S_T}, s{S_T}, 15
    s_add_u32 s{S_T}, s{S_T}, s{S_M}
    s_sub_u32 s{S_T}, s{S_T}, 8
    s_and_b32 s{S_KB}, s{S_T}, 15""")

def loader(k):
    c1, c2, c3, c4, c5 = cfgs()
    LP = LProg(k)
    def start(c, t=0): return [f"s_mov_b32 s{S_TAU}, {t}", f"s_mov_b32 s{S_SLOT}, {(t+c.slot0) % c.NS}"]
    def W_(n): return f"s_waitcnt vmcnt({n})\ns_barrier"
    k.e(f"s_lshl_b32 s{S_M0W}, s{S_LW}, 10")
    c = c1; g1 = Seg(c1, VS, VF)
    inv_pos(k, c.rot)
    k.e(f"s_lshl_b32 s{S_T0}, s{S_N}, 7")
    loader_voff_S(k, c, VS)
    loader_voff_F(k, c, VF, S_T0, lambda P: P*2048)
    LP.prep(g1, start(c))
    k.e("s_waitcnt lgkmcnt(0)")
    mk_srd(k, SRD_S, P_X, 4*MB); mk_srd(k, SRD_F, P_WQKV, 6*MB)
    stamp(k, 0); stamp(k, 1)
    LP.stage(g1); LP.stage(g1)
    LP.stage(g1, sync=W_(c.nI))
    mk_srd(k, SRD_W, P_WS, WS_END)
    if OPT.pads:
        for d in (SRD_A, SRD_B, SRD_D): mk_srd(k, d, P_X, 0)
    LP.run(g1, 13, c.nI)
    if OPT.pads: k.e("s_branch L_ld\nALIGN4K\nL_ld:")
    k.e(W_(c.nI)); itstamp(k)
    n = win_loads(k, "l")
    k.e(W_(n)); itstamp(k)
    k.e(f"""s_lshl_b32 s{S_T+12}, s{S_N}, 4
    s_add_u32 s{S_T+12}, s{S_T+12}, s{S_M}
    s_lshl_b32 s{S_T+14}, s{S_T+12}, 4
    s_add_u32 s{S_T+14}, s{S_T+14}, {WS_ZF}
    s_lshl_b32 s{S_T+12}, s{S_T+12}, 8
    s_add_u32 s{S_T+12}, s{S_T+12}, {WS_ZP}
    v_and_b32 v13, 15, v1
    v_lshlrev_b32 v13, 4, v13""")
    tile_map(k, 4, 8, 16)
    c = c2; g2 = Seg(c2, VS, VF)
    mk_srd(k, SRD_S, P_WS, 4*MB, WS_O); mk_srd(k, SRD_F, P_WO, 2*MB)
    k.e(f"s_lshl_b32 s{S_T0}, s{S_N}, 7")
    loader_voff_S(k, c, VS); loader_voff_F(k, c, VF, S_T0, lambda P: 0)
    k.e("s_barrier"); itstamp(k)
    if OPT.tw:
        mk_srd(k, SRD_D, P_OUT, 4*MB)
        k.e(f"""s_lshr_b32 s{S_T}, s2, 3
        s_lshl_b32 s{S_T}, s{S_T}, 1
        s_add_u32 s{S_T}, s{S_T}, s{S_LW}
        s_and_b32 s{S_T}, s{S_T}, {(1 << (20-OPT.tw)) - 1}
        s_lshl_b32 s{S_T}, s{S_T}, {OPT.tw}
        v_lshlrev_b32 v3, 20, v1
        v_lshl_add_u32 v3, v1, 7, v3
        buffer_load_dword v251, v3, {W}, s{S_T} offen
        buffer_load_dword v252, v3, {srd(SRD_D)}, s{S_T} offen""")
    k.e("s_barrier")
    issue_first(k, c, VS, VF, "F", pbarrier=False)
    k.e("s_barrier")
    grp(k, 1)
    loader_voff_S(k, c5, VS5); loader_voff_F(k, c5, VF5, S_T0, lambda P: 0)
    k.e(f"""s_and_b32 s{S_T}, s2, 1
    s_mul_i32 s{S_T+1}, s{S_T}, {(7 if OPT.two & 2 else 14)*4096}
    s_mul_i32 s{S_T+2}, s{S_T}, {(7 if OPT.two & 2 else 14)*64*2048}""")
    for i in range(c5.nS): k.e(f"v_add_u32 v{VS5+i}, s{S_T+1}, v{VS5+i}")
    for i in range(c5.nF):
        if i < 4: k.e(f"v_xor_b32 v{VF5+i}, 1024, v{VF5+i}")
        k.e(f"v_add_u32 v{VF5+i}, s{S_T+2}, v{VF5+i}")
    k.e(f"s_sub_u32 s{S_T0}, s{S_N}, s{S_T}\ns_lshl_b32 s{S_T0}, s{S_T0}, 8\ns_mov_b32 s{S_FB}, 3584")
    loader_voff_F(k, c3, VF3, S_T0, lambda P: P*128)
    k.e(f"s_cmp_eq_u32 s{S_LW}, 0\ns_cbranch_scc1 L_l_noz\ns_sleep {max(OPT.kvslp-8, 1)}")
    def zg(): k.e(f"buffer_load_dwordx4 v[128:131], v13, {W}, s{S_T+12} offen sc1")
    validated(k, zg, range(128, 132), 3, pre=False)
    acc_bf16(k, 136, 128, 4, True, 132)
    for sh in (8, 4, 2, 1): ror_sum(k, 136, 8, sh)
    for i in range(4): k.e(f"v_cvt_pk_bf16_f32 v{132+i}, v{136+2*i}, v{137+2*i}")
    k.e(f"s_mov_b64 exec, 1\nbuffer_store_dwordx4 v[132:135], v13, {W}, s{S_T+14} offen sc1\ns_mov_b64 exec, -1\nL_l_noz:")
    bars(k, 2)
    k.e(f"s_waitcnt vmcnt({c.NS*c.nF})")
    win_reduce(k)
    LP.prep(g2, start(c))
    LP.stage(g2, "S", sync="s_barrier")
    LP.stage(g2, "S")
    LP.stage(g2, "S", sync=W_(c.nS))
    LP.stage(g2, "S")
    LP.stage(g2, sync=W_(2*c.nS), stampit=True)
    LP.stage(g2, sync=W_(c.nS+c.nI), stampit=True)
    g3 = Seg(c3, VS, VF3, True, SRD_S, SRD_B); g4 = Seg(c4, VS4, VF4, False, SRD_A, SRD_D); g5 = Seg(c5, VS5, VF5)
    LP.run(g2, 10, 2*c.nI, nxt=g3, pre=start(c3))
    k.e("s_cmp_ge_u32 s2, 224\ns_cbranch_scc1 L_ld_helper")
    c = c3
    LP.stage(g3, "F", sync=W_(2*c2.nI))
    LP.stage(g3, "F", sync=W_(c2.nI+c.nF), nxt=False)
    k.e(W_(2*c.nF) + "\ns_barrier")
    tile_map(k, 4, 7, 14)
    mk_srd(k, SRD_S, P_WS, 4*MB, WS_H); mk_srd(k, SRD_A, P_WSP, 8*MB); mk_srd(k, SRD_D, P_WS, 7*MB, WS_Z2N)
    if not OPT.two & 1: k.e("s_barrier")
    loader_voff_S(k, c, VS); loader_voff_S(k, c4, VS4); loader_voff_F(k, c4, VF4)
    if OPT.own2 == 2: inv_pos(k, c4.rot)
    else: k.e(f"s_and_b32 s{S_KB}, s{S_M}, 3\ns_lshl_b32 s{S_KB}, s{S_KB}, 1\ns_lshr_b32 s93, s{S_M}, 2\ns_lshl_b32 s93, s93, 3")
    LP.prep(g3, start(c))
    ITST[1] = 253
    if ITST[0]: k.e("s_mov_b32 s97, 0")
    if OPT.two & 1: if_par(k, 0, "s_barrier")
    LP.stage(g3, "S", sync="s_barrier")
    LP.stage(g3, "S")
    if OPT.two & 1: if_par(k, 1, "s_barrier")
    LP.stage(g3, sync=W_(c.nS))
    LP.run(g3, 13, c.nI, nxt=g3, pre=[f"s_mov_b32 s{S_TAU}, 0", f"s_mov_b32 s{S_FB}, 0"])
    LP.run(g3, 3, c.nI, nxt=g3)
    LP.stage(g3)
    if OPT.gb: k.e("s_barrier")
    LP.run(g3, 12, 2*c.nI, nxt=g4, pre=[f"s_mov_b32 s{S_TAU}, 0"])
    mk_srd(k, SRD_S, P_WS, 7*MB, WS_U); mk_srd(k, SRD_F, P_WOUT, 1792*2048)
    c = c4
    LP.run(g4, 32, 2*c.nI, nxt=g5, pre=start(c5))
    LP.stage(g5, "F", sync=W_(2*c.nI))
    LP.stage(g5, "F", sync=W_(c.nI+c5.nF), nxt=False)
    k.e(W_(2*c5.nF))
    bars(k, 1 if OPT.two & 2 else 2)
    k.e("L_ld_p5:")
    ITST[1] = 254
    if ITST[0]: k.e("s_mov_b32 s97, 32")
    c = c5
    LP.prep(g5, start(c))
    if OPT.two & 2: if_par(k, 0, "s_barrier")
    LP.stage(g5, "S", sync="s_barrier")
    LP.stage(g5, "S")
    if OPT.two & 2: if_par(k, 1, "s_barrier")
    LP.stage(g5, sync=W_(c.nS))
    LP.run(g5, 11, c.nI)
    k.e(W_(c.nI) + "\n" + W_(0) + "\ns_barrier")
    k.e("s_branch L_fin")
    k.e("L_ld_helper:")
    k.e(W_(2*c2.nI) + "\n" + W_(c2.nI) + "\n" + W_(0))
    bars(k, 3)
    mk_srd(k, SRD_S, P_WS, 7*MB, WS_U); mk_srd(k, SRD_F, P_WOUT, 1792*2048)
    issue_first(k, c5, VS5, VF5, "F", pbarrier=False, t1=2)
    k.e("s_branch L_ld_p5")

def spread(k, fn, nbar):
    t = Kern(k.name); t.uid = k.uid
    fn(t); k.uid = t.uid
    L = [x.strip() for x in t.L]
    assert not any(x.endswith(":") for x in L)
    wt = lambda x: 10 if x.startswith("buffer_") else (1 if x.startswith(("v_", "ds_")) else 0.25)
    tot = sum(map(wt, L)); acc = 0; nb = 0
    low = OPT.vprio and sum(x.startswith("v_") for x in L) > 20
    if low: k.e("s_setprio 0")
    for x in L:
        k.e(x); acc += wt(x)
        if nb < nbar-1 and acc >= tot*(nb+1)/nbar - 1e-9:
            k.e("s_barrier"); nb += 1
    if low: k.e(f"s_setprio {OPT.pa}")
    while nb < nbar:
        k.e("s_barrier"); nb += 1

_carry = []
def merge(k, vm, va, nbar, share, hook=None):
    def cap(fns):
        t = Kern(k.name); t.uid = k.uid
        for f in fns: f(t)
        k.uid = t.uid
        return [x.strip() for x in t.L]
    M = cap(vm); _carry.extend(cap(va))
    nv = len(_carry) if share >= 1 else int(len(_carry)*share)
    V = _carry[:nv]; del _carry[:nv]
    nm = sum(x.startswith("buffer_") for x in M)
    mi = 0; seen = 0; full = True
    for b in range(nbar):
        tgt = nm*(b+1)/nbar
        while mi < len(M) and (seen < tgt or not full or b == nbar-1):
            x = M[mi]; k.e(x); mi += 1
            if x.startswith("buffer_"): seen += 1
            if "exec" in x.split(",")[0]: full = x.replace(" ", "") == "s_mov_b64exec,-1"
        for x in V[len(V)*b//nbar: len(V)*(b+1)//nbar]: k.e(x)
        k.e("s_barrier")
        if hook: hook(b)

def combine_half(k, P, stride, n, ntot, cnt, d, t):
    k.e(f"v_add_f32 v{d}, v{P}, v{P+stride}\nv_add_f32 v{d+1}, v{P+1}, v{P+stride+1}")
    for i in range(2, n): k.e(f"v_add_f32 v{d}, v{d}, v{P+stride*i}\nv_add_f32 v{d+1}, v{d+1}, v{P+stride*i+1}")
    if ntot != n: xswap_sum1(k, d, t)
    k.e(f"v_mul_f32 v{d}, {f2u(1.0/ntot)}, v{d}\nv_sub_f32 v{t}, v{P}, v{d}\nv_mul_f32 v{t+1}, v{t}, v{t}")
    for i in range(1, n): k.e(f"v_sub_f32 v{t}, v{P+stride*i}, v{d}\nv_fmac_f32 v{t+1}, v{t}, v{t}")
    k.e(f"v_fmac_f32 v{d+1}, {f2u(float(cnt))}, v{t+1}")
    if ntot != n: xswap_sum1(k, d+1, t)

def code_touch(k, lo, first, nlines):
    if not OPT.ct: return
    here = k.lab("pc")
    k.e(f"""s_getpc_b64 s[{S_X}:{S_X+1}]
    {here}:
    s_add_u32 s{S_X}, s{S_X}, {lo}-{here}
    s_addc_u32 s{S_X+1}, s{S_X+1}, {'-1' if lo == KNAME else '0'}
    s_lshr_b32 s{S_T}, s2, 3
    s_sub_u32 s{S_T}, s{S_T}, {first}
    s_lshl_b32 s{S_T}, s{S_T}, 1
    s_add_u32 s{S_T}, s{S_T}, s{S_LW}
    s_mul_i32 s{S_T}, s{S_T}, {nlines*128}
    v_min_u32 v249, {nlines-1}, v1
    v_lshlrev_b32 v249, 7, v249
    v_add_u32 v249, s{S_T}, v249
    v_min_u32 v249, L_end-{lo}, v249
    global_load_dword v250, v249, s[{S_X}:{S_X+1}]""")

def xp_init(k):
    if not OPT.sk: return
    k.e(f"""s_lshl_b32 s{S_T}, s2, 14
    s_lshl_b32 s{S_T+1}, s{S_LW}, 13
    s_add_u32 s{S_T}, s{S_T}, s{S_T+1}
    s_add_u32 s{S_T}, s{S_T}, {WS_XP}
    s_add_u32 s{S_T+1}, s{S_T}, 4096""")
    for i in range(8): k.e(f"buffer_store_dwordx4 v[44:47], v2, {W}, s{S_T+(i>>2)} offen offset:{(i&3)*1024} sc1")
    k.e("s_waitcnt vmcnt(0)")
def u_cnt(k):
    cnt_addr(k, 9, F_U, S_M)
    if OPT.sk: k.e(f"s_and_b32 s{S_T}, s2, 1\ns_lshl_b32 s{S_T}, s{S_T}, 7\nv_add_u32 v9, s{S_T}, v9")

def aux(k):
    c1, c2, c3, c4, c5 = cfgs()
    a = S_LW
    k.e(f"""s_lshl_b32 s{S_T}, s{S_M}, 7
    s_lshl_b32 s{S_T+1}, s{S_N}, 3
    s_add_u32 s{S_T}, s{S_T}, s{S_T+1}
    s_lshl_b32 s{S_T+1}, s{a}, 2
    s_add_u32 s{S_T}, s{S_T}, s{S_T+1}
    v_lshrrev_b32 v14, 4, v1
    v_add_u32 v14, s{S_T}, v14
    v_and_b32 v3, 15, v1
    v_lshlrev_b32 v3, 4, v3
    v_lshl_add_u32 v3, v14, 11, v3
    s_waitcnt lgkmcnt(0)""")
    mk_srd(k, SRD_B, P_X, 4*MB)
    XR = 192 if OPT.xa else 64
    if OPT.xa: k.e(f"s_sleep {OPT.xa}")
    for j in range(8): k.e(f"buffer_load_dwordx4 v[{XR+4*j}:{XR+3+4*j}], v3, {srd(SRD_B)}, 0 offen offset:{256*j}")
    mk_srd(k, SRD_W, P_WS, WS_END); mk_srd(k, SRD_A, P_WPHI, 65536); mk_srd(k, SRD_D, P_DBG, 256)
    if OPT.pads:
        for d in (SRD_S, SRD_F): mk_srd(k, d, P_X, 0)
    stamp(k, 0)
    q = OPT.spq
    k.e(f"""v_lshlrev_b32 v2, 4, v1
    v_mov_b32 v11, 1
    v_mov_b32 v44, -1
    v_mov_b32 v45, -1
    v_mov_b32 v46, -1
    v_mov_b32 v47, -1
    v_lshrrev_b32 v4, 5, v1
    v_lshlrev_b32 v4, 13, v4
    v_and_b32 v5, 31, v1
    v_lshl_add_u32 v4, v5, 4, v4
    v_bfe_u32 v12, v1, 2, 2
    v_min_u32 v12, 2, v12
    v_lshlrev_b32 v12, 13, v12
    v_lshrrev_b32 v5, 4, v1
    v_lshl_add_u32 v12, v5, 11, v12
    v_and_b32 v5, 3, v1
    v_lshl_add_u32 v12, v5, 4, v12
    s_mov_b32 s{S_T}, {q if q >= 0 else 's93'}
    s_sub_u32 s{S_T+1}, s{S_T}, 3
    s_cmp_ge_u32 s{S_T}, 3
    s_cselect_b32 s{S_T}, s{S_T+1}, s{S_T}
    s_mul_i32 s{S_T}, s{S_T}, {c1.slotF}
    s_add_u32 s{S_T}, s{S_T}, {c1.baseF}
    v_add_u32 v12, s{S_T}, v12
    v_bfe_u32 v13, v1, 2, 2
    v_lshl_add_u32 v12, v13, 7, v12
    v_lshrrev_b32 v13, 1, v13
    v_xor_b32 v13, s{a}, v13
    v_lshl_add_u32 v24, v13, 6, v12
    v_xor_b32 v25, 128, v24
    v_xor_b32 v26, 320, v24
    v_xor_b32 v27, 448, v24
    v_lshlrev_b32 v14, 2, v14""")
    X = 128
    for j in range(0 if OPT.xa else 8):
        k.e(f"s_waitcnt vmcnt({7-j})")
        for i in range(4*j, 4*j+4):
            unpack(k, X+2*i, X+2*i+1, 64+i)
            t = 32+2*(i & 1)
            if i >= 2: k.e(f"v_pk_add_f32 v[{t}:{t+1}], v[{X+2*i-4 if i < 4 else t}:{X+2*i-3 if i < 4 else t+1}], v[{X+2*i}:{X+2*i+1}]")
    stamp(k, 10)
    k.e("s_barrier")
    def init(k):
        k.e(f"""s_mov_b32 s{S_T+14}, {WS_XS}
        s_mov_b32 s{S_T+15}, {WS_XS+8192}
        s_mov_b32 exec_lo, 0x10001
        s_mov_b32 exec_hi, 0x10001
        buffer_store_dword v44, v14, {W}, s{S_T+14} offen sc1
        buffer_store_dword v44, v14, {W}, s{S_T+15} offen sc1
        s_mov_b64 exec, -1
        s_lshl_b32 s{S_T}, s{S_N}, 17
        s_lshl_b32 s{S_T+1}, s{S_M}, 9
        s_add_u32 s{S_T}, s{S_T}, s{S_T+1}
        s_lshl_b32 s{S_T+1}, s{a}, 16
        s_add_u32 s{S_T}, s{S_T}, s{S_T+1}
        s_add_u32 s{S_T}, s{S_T}, {WS_KVP}""")
        for x in range(4): k.e(f"buffer_store_dwordx4 v[44:47], v4, {W}, s{S_T} offen sc1\ns_add_u32 s{S_T}, s{S_T}, 16384")
        k.e(f"""s_lshl_b32 s{S_T+12}, s{S_N}, 4
        s_add_u32 s{S_T+12}, s{S_T+12}, s{S_M}
        s_lshl_b32 s{S_T+12}, s{S_T+12}, 1
        s_add_u32 s{S_T+12}, s{S_T+12}, s{a}
        s_mul_i32 s{S_T+12}, s{S_T+12}, 384
        s_add_u32 s{S_T+12}, s{S_T+12}, {WS_CQP}
        s_mov_b64 exec, 0xffffff
        buffer_store_dwordx4 v[44:47], v2, {W}, s{S_T+12} offen sc1
        s_lshl_b32 s{S_T}, s2, 10
        s_add_u32 s{S_T}, s{S_T}, {WS_HST}
        s_mul_i32 s{S_T+1}, s2, 528
        s_add_u32 s{S_T+1}, s{S_T+1}, {WS_KVF}
        s_mul_i32 s{S_T+2}, s2, 896
        s_add_u32 s{S_T+3}, s{S_T+2}, {WS_CSP}
        s_add_u32 s{S_T+2}, s{S_T+2}, {WS_ZST}
        s_mov_b32 s{S_T+4}, 0xffffff
        s_cmp_eq_u32 s{a}, 0
        s_cselect_b32 s{S_T}, s{S_T}, s{S_T+2}
        s_cselect_b32 s{S_T+1}, s{S_T+1}, s{S_T+3}
        s_cselect_b32 s{S_T+5}, -1, s{S_T+4}
        s_cselect_b32 s{S_T+6}, 1, s{S_T+4}
        s_mov_b32 exec_lo, -1
        s_mov_b32 exec_hi, s{S_T+5}
        buffer_store_dwordx4 v[44:47], v2, {W}, s{S_T} offen sc1
        s_mov_b32 exec_hi, s{S_T+6}
        buffer_store_dwordx4 v[44:47], v2, {W}, s{S_T+1} offen sc1
        s_mov_b64 exec, -1
        s_mul_i32 s{S_T}, s2, {FLS}
        s_add_u32 s{S_T}, s{S_T}, {WS_FLAG}
        s_cmp_lt_u32 s2, 64
        s_cselect_b32 s{S_T}, s{S_T}, {WS_END}
        s_lshl_b32 s{S_T+1}, s2, 8
        s_add_u32 s{S_T+1}, s{S_T+1}, {WS_ZP}
        s_cmp_eq_u32 s{a}, 0
        s_cselect_b32 s{S_T}, s{S_T}, s{S_T+1}
        s_cselect_b32 s{S_T+1}, 0, -1
        v_mov_b32 v48, s{S_T+1}
        v_lshlrev_b32 v5, 2, v1
        buffer_store_dword v48, v5, {W}, s{S_T} offen sc1""")
    def xs2(k):
        if OPT.xa:
            for i in range(32):
                unpack(k, X+2*i, X+2*i+1, XR+i)
                t = 32+2*(i & 1)
                if i >= 2:
                    for e_ in range(2): k.e(f"v_add_f32 v{t+e_}, v{X+2*i-4+e_ if i < 4 else t+e_}, v{X+2*i+e_}")
        k.e("v_add_f32 v32, v32, v34\nv_add_f32 v33, v33, v35\nv_add_f32 v32, v32, v33")
        for sh in (8, 4, 2, 1): ror_sum(k, 32, 1, sh)
        k.e(f"v_mul_f32 v32, {f2u(1/1024.)}, v32")
        for i in range(64):
            d = 40+(i & 3); t = 34+(i & 3)
            k.e(f"v_sub_f32 v{d}, v{X+i}, v32")
            k.e(f"v_mul_f32 v{t}, v{d}, v{d}" if i < 4 else f"v_fmac_f32 v{t}, v{d}, v{d}")
        k.e("v_add_f32 v34, v34, v35\nv_add_f32 v36, v36, v37\nv_add_f32 v33, v34, v36")
        for sh in (8, 4, 2, 1): ror_sum(k, 33, 1, sh)
        finish_rstd(k, 32, 1024)
    def qld(k):
        k.e(f"""s_lshl_b32 s{S_T}, s{S_N}, 12
        s_lshl_b32 s{S_T+1}, s{a}, 11
        s_add_u32 s{S_T}, s{S_T}, s{S_T+1}
        s_add_u32 m0, s{S_T+1}, {L_WPHI}
        s_nop 0
        buffer_load_dwordx4 v2, {srd(SRD_A)}, s{S_T} offen lds
        buffer_load_dwordx4 v2, {srd(SRD_A)}, s{S_T} offen offset:1024 lds""")
    def sprd(b):
        if b == q-1 or (q < 0 and OPT.q0 <= b+1 <= OPT.q0 + 7*OPT.qm//8):
            if q < 0: k.e(f"s_cmp_lg_u32 s93, {b+1}\ns_cbranch_scc1 L_nsp{b+1}")
            for j in range(16):
                k.e(f"ds_read_b128 v[{64+4*j}:{67+4*j}], v{24 + (j&3)} offset:{(j>>2)*512}")
                if j == 7:
                    k.e("s_waitcnt lgkmcnt(4)")
                    for r_ in range(24, 28): k.e(f"v_xor_b32 v{r_}, 32, v{r_}")
            k.e("s_waitcnt lgkmcnt(0)")
            if q < 0: k.e(f"L_nsp{b+1}:")
    assert q <= 5
    sprd(-1)
    if OPT.qpf:
        mk_srd(k, SRD_B, P_WQKV, 6*MB)
        k.e(f"""s_lshl_b32 s{S_T}, s2, 1
        s_add_u32 s{S_T}, s{S_T}, s{a}
        s_mul_i32 s{S_T}, s{S_T}, {96*128}
        v_lshlrev_b32 v3, 7, v1
        buffer_load_dword v250, v3, {srd(SRD_B)}, s{S_T} offen
        s_add_u32 s{S_T}, s{S_T}, 4096
        buffer_load_dword v251, v3, {srd(SRD_B)}, s{S_T} offen""")
    if OPT.xa: k.e("s_waitcnt vmcnt(0)")
    A = 128
    arr = f"""s_cmp_lg_u32 s{a}, 0
    s_cbranch_scc1 L_a_noarr
    s_and_b32 s{S_T}, s2, 7
    s_lshl_b32 s{S_T}, s{S_T}, 5
    v_mov_b32 v4, s{S_T}
    s_mov_b64 exec, 1
    buffer_atomic_add v11, v4, {srd(SRD_D)}, 0 offen sc1
    s_mov_b64 exec, -1
    L_a_noarr:"""
    xst = f"""s_mov_b32 exec_lo, 0x10001
    s_mov_b32 exec_hi, 0x10001
    buffer_store_dword v32, v14, {W}, s{S_T+14} offen sc1
    buffer_store_dword v33, v14, {W}, s{S_T+15} offen sc1
    s_mov_b64 exec, -1"""
    def csum(k):
        for j in range(16): acc_bf16(k, A, 64+4*j, 4, j == 0, 50, plain=True)
        xswap_sum(k, A, 160, 8, 16); xswap_sum(k, A, 160, 8, 32)
    cst = f"""v_lshlrev_b32 v4, 5, v1
    s_mov_b64 exec, 0xfff
    buffer_store_dwordx4 v[{A}:{A+3}], v4, {W}, s{S_T+12} offen sc1
    buffer_store_dwordx4 v[{A+4}:{A+7}], v4, {W}, s{S_T+12} offen offset:16 sc1
    s_mov_b64 exec, -1
    v_lshlrev_b32 v10, 5, v1"""
    def before_bar(text):
        b = k.L.pop(); k.e(text); k.L.append(b)
    if not OPT.late:
        code_touch(k, KNAME, 0, 11)
        merge(k, [init], [xs2], 2, 0.3, hook=sprd)
        merge(k, [], [], 1, 0.4); sprd(2)
        merge(k, [], [], 1, 0.67)
        before_bar("s_waitcnt vmcnt(0)")
        k.e(arr); sprd(3)
        merge(k, [qld], [], 1, 1.0)
        k.e(xst); sprd(4)
        k.e("s_barrier")
        merge(k, [], [csum], 5, 1.0)
    else:
        merge(k, [], [xs2], 3, 0.8, hook=sprd)
        code_touch(k, KNAME, 0, 11)
        merge(k, [init], [], 3, 1.0, hook=lambda b: sprd(b+3) if b < 2 else None)
        merge(k, [], [csum], 2, 0.4)
        before_bar("s_waitcnt vmcnt(0)")
        k.e(arr); k.e(xst)
        merge(k, [qld], [], 3, 1.0)
    before_bar(cst)
    sample(k, 10, SRD_D)
    k.e(f"""s_lshl_b32 s{S_T+14}, s{a}, 13
    s_lshl_b32 s{S_T+1}, s{S_M}, 9
    s_add_u32 s{S_T+14}, s{S_T+14}, s{S_T+1}
    s_add_u32 s{S_T+14}, s{S_T+14}, {WS_XS}
    s_mul_i32 s{S_T+12}, s{S_N}, {16*768}
    s_mul_i32 s{S_T+13}, s{a}, 384
    s_add_u32 s{S_T+12}, s{S_T+12}, s{S_T+13}
    s_add_u32 s{S_T+12}, s{S_T+12}, {WS_CQP}
    v_and_b32 v12, 31, v1
    v_min_u32 v12, 23, v12
    v_lshlrev_b32 v12, 4, v12
    v_lshrrev_b32 v13, 5, v1
    v_mul_u32_u24 v13, 768, v13
    v_add_u32 v13, v13, v12
    v_lshlrev_b32 v5, 3, v1""")
    k.e("s_barrier")
    poll(k, 10, 8, SRD_D, 32, pre=True)
    stamp(k, 1)
    k.e("s_barrier")
    def cqg():
        k.e(f"s_mov_b32 s{S_T}, s{S_T+12}")
        for i in range(8):
            k.e(f"buffer_load_dwordx4 v[{64+4*i}:{67+4*i}], v13, {W}, s{S_T} offen offset:{(i&1)*1536} sc1")
            if i & 1: k.e(f"s_add_u32 s{S_T}, s{S_T}, 3072")
        k.e(f"buffer_load_dwordx2 v[96:97], v5, {W}, s{S_T+14} offen sc1")
    cqg()
    k.e("s_barrier")
    k.e("s_waitcnt vmcnt(0)")
    validated(k, cqg, range(64, 98), 3)
    for i in range(1, 8):
        for j in range(4): k.e(f"v_add_f32 v{64+j}, v{64+j}, v{64+4*i+j}")
    k.e("s_barrier")
    xswap_sum(k, 64, 68, 4, 32)
    k.e(f"""s_add_u32 s{S_T+13}, s{S_T+13}, {L_CQ}
    v_add_u32 v3, s{S_T+13}, v12
    ds_write_b128 v3, v[64:67]
    s_lshl_b32 s{S_T}, s{a}, 9
    s_add_u32 s{S_T}, s{S_T}, {L_XS}
    v_add_u32 v5, s{S_T}, v5
    ds_write_b64 v5, v[96:97]
    s_waitcnt lgkmcnt(0)
    s_barrier""")
    stamp(k, 2)
    win_loads(k, "a")
    cnt_addr(k, 9, F_O, S_M)
    k.e(f"""s_lshl_b32 s{S_T+12}, s{S_N}, 17
    s_lshl_b32 s{S_T+1}, s{S_M}, 13
    s_add_u32 s{S_T+12}, s{S_T+12}, s{S_T+1}
    s_lshl_b32 s{S_T+2}, s{a}, 8
    s_add_u32 s{S_T+12}, s{S_T+12}, s{S_T+2}
    s_add_u32 s{S_T+12}, s{S_T+12}, {WS_KVP}
    s_add_u32 s{S_T+13}, s{S_T+12}, 4096
    s_lshl_b32 s{S_T+14}, s{S_N}, 13
    s_lshl_b32 s{S_T+1}, s{S_M}, 9
    s_add_u32 s{S_T+14}, s{S_T+14}, s{S_T+1}
    s_add_u32 s{S_T+14}, s{S_T+14}, s{S_T+2}
    s_add_u32 s{S_T+14}, s{S_T+14}, {WS_KVF}
    v_and_b32 v12, 15, v1
    v_lshlrev_b32 v12, 4, v12
    v_lshrrev_b32 v5, 4, v1
    v_lshl_add_u32 v13, v5, 9, v12
    v_lshl_add_u32 v12, v5, 2, v12""")
    bars(k, 2)
    if OPT.kvslp: k.e(f"s_sleep {OPT.kvslp}")
    def kvg(k=k):
        for i in range(4): k.e(f"buffer_load_dwordx4 v[{64+4*i}:{67+4*i}], v13, {W}, s{S_T+12+(i>>1)} offen offset:{(i&1)*2048} sc1")
    validated(k, kvg, range(64, 80), 3, pre=False)
    stamp(k, 3)
    for i in range(4): acc_bf16(k, 128, 64+4*i, 4, i == 0, 48)
    k.e("s_nop 0")
    for i in range(4): k.e(f"v_permlane32_swap_b32 v{128+i}, v{132+i}")
    k.e("v_pk_add_f32 v[128:129], v[128:129], v[132:133]\nv_pk_add_f32 v[130:131], v[130:131], v[134:135]\ns_nop 1")
    k.e("v_permlane16_swap_b32 v128, v130\nv_permlane16_swap_b32 v129, v131\nv_pk_add_f32 v[128:129], v[128:129], v[130:131]\nv_cvt_pk_bf16_f32 v52, v128, v129")
    k.e(f"buffer_store_dword v52, v12, {W}, s{S_T+14} offen sc1")
    stamp(k, 4)
    if OPT.kfslp: k.e(f"s_sleep {OPT.kfslp}")
    k.e("L_a_kvd:")
    k.e(f"""s_lshl_b32 s{S_T}, s{S_N}, 1
    s_add_u32 s{S_T}, s{S_T}, s{a}
    s_lshl_b32 s{S_T+12}, s{S_T}, 12
    s_add_u32 s{S_T+12}, s{S_T+12}, {WS_KVF}
    s_lshl_b32 s{S_T+13}, s{S_T}, 7
    s_add_u32 s{S_T+13}, s{S_T+13}, {WS_ZF}
    v_and_b32 v13, 7, v1
    v_lshlrev_b32 v13, 4, v13
    s_lshl_b32 s{S_T}, s{a}, 12
    v_add_u32 v4, s{S_T}, v2
    s_lshl_b32 s{S_T}, s{a}, 7
    v_add_u32 v5, s{S_T}, v13""")
    def kfg():
        for i in range(4): k.e(f"buffer_load_dwordx4 v[{64+4*i}:{67+4*i}], v2, {W}, s{S_T+12} offen offset:{i*1024} sc1")
        k.e(f"buffer_load_dwordx4 v[80:83], v13, {W}, s{S_T+13} offen sc1")
    validated(k, kfg, range(64, 84), 3, pre=False)
    for i in range(4): k.e(f"ds_write_b128 v4, v[{64+4*i}:{67+4*i}] offset:{L_KV+i*1024}")
    k.e(f"ds_write_b128 v5, v[80:83] offset:{L_Z}\ns_waitcnt lgkmcnt(0)\ns_barrier")
    grp(k, 1)
    tile_map(k, 4, 8, 16)
    cnt_addr(k, 10, F_O, S_M)
    k.e("s_barrier")
    set_flag(k, 9)
    win_reduce(k)
    poll(k, 10, 1, val=16)
    stamp(k, 11)
    k.e("s_barrier")
    stamp(k, 12)
    k.e(f"""s_cmp_eq_u32 s{a}, 0
    s_cbranch_scc1 L_a_nocw
    s_cmp_ge_u32 s2, 224
    s_cbranch_scc1 L_a_nocw
    v_lshlrev_b32 v4, 3, v1
    v_add_u32 v3, {L_CW}, v4""")
    for i in range(8): k.e(f"ds_read_b64 v[{192+2*i}:{193+2*i}], v3 offset:{i*512}")
    k.e(f"""s_mul_i32 s{S_T}, s{S_CW+1}, 14336
    s_lshl_b32 s{S_T+1}, s{S_CW}, 9
    s_add_u32 s{S_T}, s{S_T}, s{S_T+1}
    s_add_u32 s{S_T}, s{S_T}, {WS_CSP}
    s_waitcnt lgkmcnt(0)""")
    for i in range(1, 8): k.e(f"v_pk_add_f32 v[192:193], v[192:193], v[{192+2*i}:{193+2*i}]")
    k.e(f"buffer_store_dwordx2 v[192:193], v4, {W}, s{S_T} offen sc1\nL_a_nocw:")
    cnt_addr(k, 9, F_H, S_M)
    tile_map(k, 4, 7, 14)
    k.e(f"""v_and_b32 v14, 31, v1
    v_lshlrev_b32 v14, 4, v14
    v_lshrrev_b32 v15, 5, v1
    v_mul_u32_u24 v13, {1792*4}, v15
    v_add_u32 v13, v13, v14
    s_lshl_b32 s{S_T}, s{a}, 9
    v_add_u32 v14, s{S_T}, v14
    s_lshl_b32 s{S_T+13}, s{S_N}, 9
    s_add_u32 s{S_T+13}, s{S_T+13}, {WS_CSP}
    s_lshl_b32 s{S_T+12}, s{S_M}, 10
    s_add_u32 s{S_T+12}, s{S_T+12}, {WS_HST}""")
    def cap_(fn):
        t = Kern(k.name); t.uid = k.uid; fn(t); k.uid = t.uid; return "\n".join(t.L)
    def two_addr():
        k.e(f"v_mov_b32 v23, v9\nv_add_u32 v24, 128, v9\ns_and_b32 s{S_T}, s2, 1\ns_lshl_b32 s{S_T}, s{S_T}, 7\nv_add_u32 v9, s{S_T}, v9")
    def two_sync(val, st):
        if_par(k, 0, "s_barrier\n" + cap_(lambda t: set_flag(t, 9)))
        poll(k, 23, 1, val=val)
        stamp(k, st)
        k.e("s_barrier")
        if_par(k, 1, "s_barrier\n" + cap_(lambda t: set_flag(t, 9)))
    if OPT.two & 1: two_addr()
    def cg():
        k.e(f"s_mov_b32 s{S_T}, s{S_T+13}")
        for i in range(8): k.e(f"buffer_load_dwordx4 v[{64+4*i}:{67+4*i}], v13, {W}, s{S_T} offen sc1\ns_add_u32 s{S_T}, s{S_T}, 14336")
    if OPT.hh:
        k.e(f"""s_lshl_b32 s{S_T+15}, s{S_M}, 1
        s_and_b32 s{S_T}, s2, 1
        s_add_u32 s{S_T+15}, s{S_T+15}, s{S_T}
        s_lshl_b32 s{S_T+15}, s{S_T+15}, 1
        s_add_u32 s{S_T+15}, s{S_T+15}, s{a}
        s_lshl_b32 s{S_T+15}, s{S_T+15}, 10
        s_add_u32 s{S_T+15}, s{S_T+15}, {WS_HH}
        s_cmp_ge_u32 s2, 224
        s_cselect_b32 s{S_T}, s{S_T+15}, {WS_END}
        buffer_store_dwordx4 v[44:47], v2, {W}, s{S_T} offen sc1""")
    bars(k, 14)
    k.e(f"s_cmp_ge_u32 s2, 224\ns_cbranch_scc1 L_a_helper\ns_cmp_eq_u32 s{a}, 0\ns_cbranch_scc1 L_a_nocs")
    cg()
    k.e("s_barrier\ns_barrier\ns_barrier\ns_waitcnt vmcnt(0)")
    validated(k, cg, range(64, 96), 3)
    for i in range(1, 8): k.e(f"v_pk_add_f32 v[64:65], v[64:65], v[{64+4*i}:{65+4*i}]\nv_pk_add_f32 v[66:67], v[66:67], v[{66+4*i}:{67+4*i}]")
    k.e(f"v_add_u32 v3, {L_CS}, v2\nds_write_b128 v3, v[64:67]\ns_branch L_a_cs\nL_a_nocs:\ns_barrier\ns_barrier\ns_barrier\nL_a_cs:")
    if OPT.two & 1: two_sync(8, 13)
    else:
        k.e("s_barrier")
        set_flag(k, 9)
        poll(k, 9, 1, val=16)
        stamp(k, 13)
        k.e("s_barrier")
    stamp(k, 14)
    k.e(f"v_lshl_add_u32 v13, v15, 17, v14")
    def hg(k=k):
        k.e(f"s_mov_b32 s{S_T}, s{S_T+12}")
        for i in range(8): k.e(f"buffer_load_dwordx4 v[{64+4*i}:{67+4*i}], v13, {W}, s{S_T} offen sc1\ns_add_u32 s{S_T}, s{S_T}, 16384")
    def hcomp(k):
        for r in range(2):
            d = 4+4*r if r == 0 else 16
            combine_half(k, 64+2*r, 4, 8, 16, 64, d, 20)
            k.e(f"""v_mul_f32 v{d+1}, {f2u(1.0/1024)}, v{d+1}
            v_add_f32 v{d+1}, {f2u(1e-5)}, v{d+1}
            v_rsq_f32 v20, v{d+1}
            v_sqrt_f32 v{d+3}, v{d+1}
            v_sub_f32 v{d}, 0, v{d}
            v_mul_f32 v{d+1}, {f2u(C0)}, v20
            v_mul_f32 v{d+2}, v20, v20
            v_mul_f32 v{d+2}, v{d+2}, v20
            v_mul_f32 v{d+2}, {f2u(C1)}, v{d+2}""")
        k.e(f"""v_and_b32 v3, 31, v1
        v_lshlrev_b32 v3, 5, v3
        v_cmp_gt_u32 vcc, 32, v1
        v_lshl_add_u32 v3, v15, 4, v3
        s_nop 0
        v_cndmask_b32 v4, v16, v4, vcc
        v_cndmask_b32 v5, v17, v5, vcc
        v_cndmask_b32 v6, v18, v6, vcc
        v_cndmask_b32 v7, v19, v7, vcc""")
    def zaddr(k):
        k.e(f"""s_lshl_b32 s{S_T+14}, s2, 11
        s_add_u32 s{S_T+14}, s{S_T+14}, {WS_HC}
        s_lshl_b32 s{S_T}, s{a}, 10
        s_add_u32 s{S_T+14}, s{S_T+14}, s{S_T}
        s_add_u32 m0, s{S_T}, {L_HS}
        s_mul_i32 s{S_T+12}, s{S_M}, {14*1024}
        s_add_u32 s{S_T+12}, s{S_T+12}, {WS_ZST}
        s_lshl_b32 s{S_T+13}, s{S_N}, 10
        s_add_u32 s{S_T+13}, s{S_T+13}, s{S_T+12}
        s_lshl_b32 s{S_T}, s{a}, 9
        v_lshlrev_b32 v22, 3, v1
        v_add_u32 v22, s{S_T}, v22
        v_add_u32 v12, {L_ZP}, v22
        v_mul_u32_u24 v13, {7*1024}, v15
        v_add_u32 v13, v13, v14""")
        cnt_addr(k, 10, F_Z, S_N); u_cnt(k)
        if OPT.zg:
            k.e(f"""s_lshr_b32 s{S_T}, s{S_M}, 2
            s_lshl_b32 s{S_T}, s{S_T}, 5
            s_add_u32 s{S_T}, s{S_T}, 128
            v_add_u32 v25, s{S_T}, v10
            v_mul_u32_u24 v26, s{S_T}, v1
            v_add_u32 v26, v26, v10""")
    assert OPT.two & 1
    e_ = 2 if OPT.h3 == 16 else 0
    bars(k, 4-e_)
    sample(k, 24)
    bars(k, 2)
    poll(k, 24, 1, val=8, pre=True)
    bars(k, e_)
    if OPT.hh:
        k.e("s_barrier")
        zaddr(k)
        bars(k, 4)
        def hhg(): k.e(f"buffer_load_dwordx4 v[64:67], v2, {W}, s{S_T+15} offen sc1")
        hhg()
        k.e("s_barrier\ns_barrier\ns_waitcnt vmcnt(0) lgkmcnt(0)")
        validated(k, hhg, range(64, 68), 3)
        k.e(f"buffer_load_dwordx4 v2, {W}, s{S_T+15} offen sc1 lds")
        k.e("s_barrier\ns_barrier\ns_barrier\ns_waitcnt vmcnt(0)")
    else:
        hg()
        k.e("s_barrier\ns_barrier\ns_waitcnt vmcnt(0)")
        validated(k, hg, range(65, 96, 2), 3)
        def hfin(k):
            hcomp(k); zaddr(k)
            k.e(f"buffer_store_dwordx4 v[4:7], v3, {W}, s{S_T+14} offen")
        spread(k, hfin, 4)
        k.e(f"s_barrier\ns_barrier\ns_waitcnt vmcnt(0) lgkmcnt(0)\nbuffer_load_dwordx4 v2, {W}, s{S_T+14} offen sc1 lds")
        k.e("s_barrier\ns_barrier\ns_waitcnt vmcnt(0)")
    k.e("s_barrier")
    if OPT.sk and OPT.xis: k.e(f"s_sleep {OPT.xis}")
    xp_init(k)
    k.e("s_barrier")
    k.e(f"""ds_read_b64 v[64:65], v12
    ds_read_b64 v[66:67], v12 offset:1024
    s_waitcnt lgkmcnt(0)
    v_add_f32 v4, v64, v66
    v_mul_f32 v4, 0.5, v4
    v_sub_f32 v6, v64, v66
    v_mul_f32 v6, v6, v6
    v_add_f32 v5, v65, v67
    v_fmac_f32 v5, {f2u(32.0)}, v6
    buffer_store_dwordx2 v[4:5], v22, {W}, s{S_T+13} offen sc1""")
    stamp(k, 6)
    g = OPT.gat
    bars(k, g-16+OPT.gb)
    def zsg():
        k.e(f"s_add_u32 s{S_T}, s{S_T+12}, 4096")
        for i in range(7):
            k.e(f"buffer_load_dwordx4 v[{64+4*i}:{67+4*i}], v13, {W}, s{S_T+12 if i < 4 else S_T} offen offset:{(i&3)*1024} sc1")
    zsg()
    k.e("s_barrier\ns_waitcnt vmcnt(0)")
    validated(k, zsg, range(65, 92, 2), 3)
    stamp(k, 7)
    def zfin(k):
        for r in range(2):
            combine_half(k, 64+2*r, 4, 7, 14, 128, 4+2*r, 20); finish_rstd(k, 4+2*r, 1792)
        if OPT.zdma:
            k.e(f"""s_lshl_b32 s{S_T}, s{a}, 9
            s_add_u32 m0, s{S_T}, {L_ZS}
            s_mov_b32 exec_hi, 0
            buffer_store_dwordx4 v[4:7], v2, {W}, s{S_T+14} offen""")
        else: k.e(f"v_add_u32 v3, {L_ZS}, v14")
    if OPT.zdma:
        spread(k, zfin, OPT.zsp-2)
        k.e(f"s_waitcnt vmcnt(0)\nbuffer_load_dwordx4 v2, {W}, s{S_T+14} offen sc1 lds\ns_mov_b32 exec_hi, -1\ns_barrier\ns_waitcnt vmcnt(0)\ns_barrier")
    else:
        spread(k, zfin, OPT.zsp-1)
        k.e("ds_write_b128 v3, v[4:7]\ns_waitcnt lgkmcnt(0)\ns_barrier")
    nf = OPT.nst
    zb = g+1+OPT.zsp
    fb = zb+nf+1+OPT.vmd
    cb = 28 if OPT.own2 else 26
    assert fb <= cb
    bars(k, fb-zb)
    if OPT.zg:
        assert OPT.own2 == 3
        set_flag(k, 26, 3)
        bars(k, cb-fb)
        sample(k, 25)
        k.e("s_barrier")
        poll(k, 25, 1, val=4, pre=True)
        bars(k, 2)
        sample(k, 10)
        bars(k, 2)
        poll(k, 10, 1, val=16, pre=True)
        cb += 4
    else:
        set_flag(k, 10)
        bars(k, cb-fb)
        sample(k, 10)
        k.e("s_barrier")
        poll(k, 10, 1, val=16, pre=True)
    stamp(k, 8)
    if OPT.two & 2:
        bars(k, 62-cb)
        k.e("L_a_p5:")
        cnt_addr(k, 9, F_U, S_M); two_addr()
        two_sync(7, 15)
        bars(k, 3)
        sample(k, 24)
        bars(k, 2)
        poll(k, 24, 1, val=7, pre=True)
    else:
        bars(k, 63-cb)
        set_flag(k, 9)
        k.e("L_a_p5:")
        poll(k, 9, 1, val=7 if OPT.sk else 14)
        stamp(k, 15)
        k.e("s_barrier")
    k.e("s_branch L_fin")
    k.e("L_a_helper:")
    bars(k, 3)
    k.e("s_waitcnt vmcnt(0)\ns_barrier")
    set_flag(k, 9)
    if OPT.hh:
        k.e(f"v_lshl_add_u32 v13, v15, 17, v14\ns_sleep {OPT.hhs}")
        validated(k, hg, range(65, 96, 2), 3, pre=False)
        hcomp(k)
        k.e(f"buffer_store_dwordx4 v[4:7], v3, {W}, s{S_T+15} offen sc1")
    k.e("s_barrier")
    if OPT.ct > 1: code_touch(k, "L_c_p3", 28, 44)
    if OPT.sk:
        xp_init(k)
        k.e(f"""v_mov_b32 v9, {F_Z + 14*FLS}
        s_mov_b64 exec, 1
        buffer_atomic_add v11, v9, {W}, 0 offen sc1
        s_mov_b64 exec, -1
        s_sleep 64""")
        poll(k, 9, 1, val=64)
    u_cnt(k)
    k.e("v_mov_b32 v11, 0")
    k.e("s_branch L_a_p5")

def swaps(p):
    return [f"v_permlane16_swap_b32 v{p}, v{p+2}", f"v_permlane16_swap_b32 v{p+1}, v{p+3}"]
def pack32(k, dst, a):
    cvt16(k, dst, a)
    for x in swaps(dst): k.e(x)
    for x in swaps(dst+4): k.e(x)

def gelu_quads(k, quads, t, post=None):
    Gs = []
    for gi, g in enumerate(range(0, len(quads), 2)):
        tt = t + 8*(gi & 1)
        P = [(y+2*i, cs+2*i, s, tt+4*j+2*i) for j, (y, cs, s) in enumerate(quads[g:g+2]) for i in range(2)]
        A = [f"v_pk_fma_f32 v[{y}:{y+1}], v[{cs}:{cs+1}], v[{s}:{s+1}], v[{y}:{y+1}] op_sel_hi:[1,0,1]" for y, cs, s, p in P]
        A += [f"v_pk_mul_f32 v[{p}:{p+1}], v[{y}:{y+1}], v[{y}:{y+1}]" for y, cs, s, p in P]
        A += [f"v_pk_fma_f32 v[{p}:{p+1}], v[{p}:{p+1}], v[{s+2}:{s+3}], v[{s}:{s+1}] op_sel:[0,0,1] op_sel_hi:[1,0,1]" for y, cs, s, p in P]
        A += [f"v_pk_mul_f32 v[{p}:{p+1}], v[{p}:{p+1}], v[{y}:{y+1}]" for y, cs, s, p in P]
        E = [f"v_exp_f32 v{tt+j}, v{tt+j}" for j in range(8)]
        D = [f"v_pk_fma_f32 v[{p}:{p+1}], v[{p}:{p+1}], v[{s+2}:{s+3}], v[{s+2}:{s+3}] op_sel:[0,1,1] op_sel_hi:[1,1,1]" for y, cs, s, p in P]
        R = [f"v_rcp_f32 v{tt+j}, v{tt+j}" for j in range(8)]
        M = [f"v_pk_mul_f32 v[{y}:{y+1}], v[{y}:{y+1}], v[{p}:{p+1}]" for y, cs, s, p in P]
        Gs.append((A, E, D, R, M))
    L = list(Gs[0][0])
    for g, (A, E, D, R, M) in enumerate(Gs):
        N = Gs[g+1][0] if g+1 < len(Gs) else []
        Q = post(g-1) if post and g else []
        L += E + N[:8] + Q[:4] + D + N[8:12] + R + N[12:] + Q[4:] + M
    if post: L += post(len(Gs)-1)
    for x in L: k.e(x)

def gelu_fill(y, cs, s, n, t):
    E = range(n); L = []
    L += [f"v_fmac_f32 v{y+j}, v{cs+j}, v{s}" for j in E]
    L += [f"v_mul_f32 v{t+j}, v{y+j}, v{y+j}" for j in E]
    L += [f"v_fma_f32 v{t+j}, v{t+j}, v{s+2}, v{s+1}" for j in E]
    L += [f"v_mul_f32 v{t+j}, v{t+j}, v{y+j}" for j in E]
    L += [f"v_exp_f32 v{t+j}, v{t+j}" for j in E]
    L += [f"v_fma_f32 v{t+j}, v{t+j}, v{s+3}, v{s+3}" for j in E]
    L += [f"v_rcp_f32 v{t+j}, v{t+j}" for j in E]
    L += [f"v_mul_f32 v{y+j}, v{t+j}, v{y+j}" for j in E]
    return L

def treduce(k, a):
    k.e(f"""s_nop 1
    v_permlane32_swap_b32 v{a}, v{a+2}
    v_permlane32_swap_b32 v{a+1}, v{a+3}
    v_add_f32 v{a}, v{a}, v{a+2}
    v_add_f32 v{a+1}, v{a+1}, v{a+3}
    s_nop 1
    v_permlane16_swap_b32 v{a}, v{a+1}
    v_add_f32 v{a}, v{a}, v{a+1}""")

NWARM = [8, 8, 8, 4]
def grp(k, g):
    if OPT.pads: k.e(f'GRP {g}')
def warm(k, grp):
    if not OPT.pads: return
    k.e("s_mov_b64 exec, 0")
    for i in range(NWARM[grp]): k.e(f"WARM {grp} {i}")
    k.e("s_mov_b64 exec, -1")

def consumer(k):
    c1, c2, c3, c4, c5 = cfgs()
    def regs(aS, aF, acc):
        R = Regs(); R.aS = aS; R.aF = aF; R.fr = 16; R.acc = acc; return R
    k.e(f"s_mov_b32 s{S_K}, {f2u(LOG2E)}\ns_mov_b32 s{S_K+1}, {f2u(LOG2E)}")
    c = c1; R = regs([8, 9], [10, 11, 12, 13], 64); C = Cons(k, c, R)
    k.e("s_waitcnt lgkmcnt(0)")
    mk_srd(k, SRD_B, P_X, 4*MB); mk_srd(k, SRD_W, P_WS, WS_END)
    if OPT.pads:
        for d in (SRD_S, SRD_F, SRD_A, SRD_D): mk_srd(k, d, P_X, 0)
    stamp(k, 0)
    consumer_addr(k, c, R)
    C.zero()
    aWP=240; aXS=241; aCQ=242; aCV=243; aVS=244; aPW=245; aVX=247; aVW=248; aPR=249; L16=15
    tr_lane_base(k, aWP, 3, 9, rowshift=6, swz=False)
    k.e(f"""s_lshl_b32 s{S_T}, s{S_WN}, 11
    s_add_u32 s{S_T}, s{S_T}, {L_WPHI}
    v_add_u32 v{aWP}, s{S_T}, v{aWP}
    v_lshrrev_b32 v3, 4, v1
    v_and_b32 v4, 15, v1
    s_lshl_b32 s{S_T}, s{S_WM}, 8
    s_add_u32 s{S_T}, s{S_T}, {L_XS}
    v_lshl_add_u32 v{aXS}, v4, 2, s{S_T}
    v_lshl_add_u32 v{aVS}, v3, 4, s{S_T}
    s_mul_i32 s{S_T+1}, s{S_WN}, 384
    s_add_u32 s{S_T+1}, s{S_T+1}, {L_CQ}
    v_lshl_add_u32 v{aCQ}, v3, 4, s{S_T+1}
    v_and_b32 v7, 3, v4
    v_bfe_u32 v5, v4, 2, 1
    v_lshl_or_b32 v7, v5, 3, v7
    v_bfe_u32 v5, v4, 3, 1
    v_lshl_or_b32 v7, v5, 2, v7
    v_lshl_add_u32 v{aCV}, v7, 2, s{S_T+1}
    v_lshrrev_b32 v3, 5, v1
    v_and_b32 v4, 31, v1
    v_lshlrev_b32 v5, 2, v3
    v_xor_b32 v5, v4, v5
    v_lshlrev_b32 v5, 4, v5
    v_lshl_add_u32 v5, v3, 9, v5
    s_lshl_b32 s{S_T}, s{S_WN}, 14
    s_add_u32 s{S_T}, s{S_T}, {L_PHK}
    s_lshl_b32 s{S_T+1}, s{S_WM}, 13
    s_add_u32 s{S_T+2}, s{S_T}, s{S_T+1}
    v_add_u32 v{aPW}, s{S_T+2}, v5
    v_xor_b32 v{aPW+1}, 128, v{aPW}
    v_lshlrev_b32 v{L16}, 4, v1
    s_lshl_b32 s{S_T+3}, s{S_WN}, 13
    s_add_u32 s{S_T+3}, s{S_T+3}, {L_VX}
    v_add_u32 v{aVX}, s{S_T+3}, v{L16}
    s_lshl_b32 s{S_T+4}, s{S_WM}, 12
    v_add_u32 v{aVW}, s{S_T+4}, v{aVX}
    v_lshlrev_b32 v14, 13, v3
    v_lshl_add_u32 v14, v4, 4, v14
    v_lshlrev_b32 v251, 8, v3
    v_lshlrev_b32 v252, 4, v3""")
    blk_tr_base(k, aPR, 2, 3, 3)
    k.e(f"""s_lshl_b32 s{S_T+1}, s{S_WM}, 11
    s_add_u32 s{S_T+1}, s{S_T+1}, s{S_T}
    v_add_u32 v{aPR}, s{S_T+1}, v{aPR}
    v_xor_b32 v{aPR+1}, 64, v{aPR}""")
    ONES=4
    for i in range(4): k.e(f"v_mov_b32 v{ONES+i}, 0x3f803f80")
    k.e(f"""s_lshl_b32 s{S_T}, s{S_WN}, 1
    s_add_u32 s{S_T}, s{S_T}, s{S_WM}
    s_lshl_b32 s{S_T+1}, s{S_N}, 2
    s_add_u32 s{S_T}, s{S_T}, s{S_T+1}
    s_lshl_b32 s{S_T+2}, s{S_T}, 15
    s_lshl_b32 s{S_T+1}, s{S_M}, 9
    s_add_u32 s{S_T+2}, s{S_T+2}, s{S_T+1}
    s_add_u32 s{S_T+2}, s{S_T+2}, {WS_KVP}
    s_add_u32 s{S_T+3}, s{S_T+2}, 16384
    s_lshl_b32 s{S_T+4}, s{S_T}, 10
    s_lshl_b32 s{S_T+1}, s{S_M}, 4
    s_add_u32 s{S_T+4}, s{S_T+4}, s{S_T+1}
    s_add_u32 s{S_T+4}, s{S_T+4}, {WS_ZP}
    s_lshl_b32 s{S_T}, s{S_N}, 1
    s_add_u32 s{S_T}, s{S_T}, s{S_WN}
    s_lshl_b32 s{S_T+12}, s{S_M}, 2
    s_lshl_b32 s{S_T+1}, s{S_WM}, 1
    s_add_u32 s{S_T+12}, s{S_T+12}, s{S_T+1}
    s_lshl_b32 s{S_T+12}, s{S_T+12}, 16
    s_lshl_b32 s{S_T+1}, s{S_T}, 11
    s_add_u32 s{S_T+12}, s{S_T+12}, s{S_T+1}
    s_add_u32 s{S_T+12}, s{S_T+12}, {WS_O}
    s_add_u32 s{S_T+13}, s{S_T+12}, 65536""")
    warm(k, 0)
    k.e("s_barrier")
    stamp(k, 1)
    K0,K1,V0,V1,Q0,Q1 = 64,80,96,112,128,144
    WP=224; ST=232; KB=24; VB=40; PK=160; NM=192; RSD=208; CK=160; CV=2
    tl = [f"ds_read2_b32 v[{ST+2*t}:{ST+2*t+1}], v{aXS} offset0:{16*t} offset1:{128+16*t}" for t in range(4)]
    tl += [f"ds_read_b128 v[{CK+4*fh}:{CK+4*fh+3}], v{aCQ} offset:{128+64*fh}" for fh in range(2)]
    tl += [f"ds_read_b64_tr_b16 v[{WP+4*cc+2*rd}:{WP+4*cc+2*rd+1}], v{aWP} offset:{cc*1024+rd*256}" for cc in range(2) for rd in range(2)]
    tl += [f"ds_read2_b32 v[{CV}:{CV+1}], v{aCV} offset0:64 offset1:80"]
    C.first_reads(); C.loop4(5, 0); C.loop(1, next_cons=False, tail=tl, slot=0)
    stamp(k, 2)
    k.e("s_waitcnt lgkmcnt(5)")
    for t in range(4):
        k.e(f"ds_read_b128 v[{NM+4*t}:{NM+3+4*t}], v{aVS} offset:{64*t}\nds_read_b128 v[{RSD+4*t}:{RSD+3+4*t}], v{aVS} offset:{512+64*t}")
    def corrT(a, cs, st, t):
        for fh in range(2):
            P = [(a+8*fh+4*sh+2*i, cs+4*fh+2*i, ST+2*(2*st+sh), t+4*sh+2*i) for sh in range(2) for i in range(2)]
            for y, c_, s_, p in P: k.e(f"v_pk_mul_f32 v[{p}:{p+1}], v[{c_}:{c_+1}], v[{s_}:{s_+1}] op_sel_hi:[1,0]")
            for y, c_, s_, p in P: k.e(f"v_pk_fma_f32 v[{y}:{y+1}], v[{y}:{y+1}], v[{s_}:{s_+1}], v[{p}:{p+1}] op_sel:[0,1,0] op_sel_hi:[1,1,1]")
    def corrN(a, st, t):
        for sh in range(2):
            P = [(a+8*sh+4*dh+2*i, 4*(2*st+sh)+2*i, dh, t+4*dh+2*i) for dh in range(2) for i in range(2)]
            for y, o_, dh, p in P: k.e(f"v_pk_mul_f32 v[{p}:{p+1}], v[{NM+o_}:{NM+o_+1}], v[{CV}:{CV+1}] op_sel:[0,{dh}] op_sel_hi:[1,{dh}]")
            for y, o_, dh, p in P: k.e(f"v_pk_fma_f32 v[{y}:{y+1}], v[{y}:{y+1}], v[{RSD+o_}:{RSD+o_+1}], v[{p}:{p+1}]")
    def pmf(P, B, st):
        k.e(f"{MF} v[{P+16*st}:{P+16*st+15}], v[{WP}:{WP+3}], v[{B+8*st}:{B+8*st+3}], 0")
        k.e(f"{MF} v[{P+16*st}:{P+16*st+15}], v[{WP+4}:{WP+7}], v[{B+8*st+4}:{B+8*st+7}], v[{P+16*st}:{P+16*st+15}]")
    corrT(K0, CK, 0, 16); corrT(K1, CK, 1, 16)
    pack32(k, KB, K0); pack32(k, KB+8, K1)
    k.e("s_waitcnt lgkmcnt(0)")
    if OPT.kst: stamp(k, 23)
    pmf(PK, KB, 0); pmf(PK, KB, 1)
    corrN(V0, 0, 16); corrN(V1, 1, 16)
    pack32(k, VB, V0); pack32(k, VB+8, V1)
    if OPT.kst: stamp(k, 24)
    CK = 192
    EP=64; EN=80; T=56
    def wr(st, O, nb): return [f"ds_write_b128 v{aPW+hh}, v[{O+4*hh}:{O+4*hh+3}] offset:{st*4096+nb*2048+hh*1024}" for hh in range(2)]
    inj = [f"ds_write_b128 v{aVW}, v[{VB+4*i}:{VB+4*i+3}] offset:{i*1024}" for i in range(4)]
    inj += [f"ds_read_b128 v[{CK+4*fh}:{CK+4*fh+3}], v{aCQ} offset:{64*fh}" for fh in range(2)]
    softmax2(k, (PK, 64, 80, 56, 160, 168), (PK+16, 96, 112, 60, 176, 184), inject=inj,
             wA=(wr(0, 160, 0), wr(0, 168, 1)), wB=(wr(1, 176, 0), wr(1, 184, 1)))
    if OPT.kst: stamp(k, 25)
    k.e("s_waitcnt lgkmcnt(0)\ns_barrier")
    stamp(k, 3)
    AF=64; VF_=96; KV=160; ZZ=176
    def rdkc(kc):
        off = (kc>>1)*4096 + (kc&1)*256
        k.e(f"""ds_read_b64_tr_b16 v[{AF+4*kc}:{AF+4*kc+1}], v{aPR} offset:{off}
        ds_read_b64_tr_b16 v[{AF+4*kc+2}:{AF+4*kc+3}], v{aPR+1} offset:{off}
        ds_read_b128 v[{VF_+4*kc}:{VF_+4*kc+3}], v{aVX} offset:{kc*1024}""")
    for kc in range(5): rdkc(kc)
    for kc in range(8):
        k.e(f"s_waitcnt lgkmcnt({3*(min(kc+5, 8)-kc-1)})")
        k.e(f"{MF} v[{KV}:{KV+15}], v[{AF+4*kc}:{AF+4*kc+3}], v[{VF_+4*kc}:{VF_+4*kc+3}], {'0' if kc==0 else f'v[{KV}:{KV+15}]'}")
        if kc+5 < 8: rdkc(kc+5)
    for kc in range(8):
        k.e(f"{MF} v[{ZZ}:{ZZ+15}], v[{AF+4*kc}:{AF+4*kc+3}], v[{ONES}:{ONES+3}], {'0' if kc==0 else f'v[{ZZ}:{ZZ+15}]'}")
        if kc == 2:
            k.e("s_nop 7\ns_nop 1")
            for i in range(4): k.e(f"v_cvt_pk_bf16_f32 v{212+i}, v{KV+2*i}, v{KV+2*i+1}")
            k.e(f"buffer_store_dwordx4 v[212:215], v14, {W}, s{S_T+2} offen sc1")
        if kc == 3:
            for i in range(4, 8): k.e(f"v_cvt_pk_bf16_f32 v{212+i}, v{KV+2*i}, v{KV+2*i+1}")
            k.e(f"buffer_store_dwordx4 v[216:219], v14, {W}, s{S_T+3} offen sc1")
    k.e("s_barrier")
    k.e("s_nop 7\ns_nop 2")
    cvt16(k, 16, ZZ)
    k.e(f"""s_mov_b32 exec_lo, 1
    s_mov_b32 exec_hi, 1
    buffer_store_dwordx4 v[16:19], v251, {W}, s{S_T+4} offen sc1
    buffer_store_dwordx4 v[20:23], v251, {W}, s{S_T+4} offen offset:512 sc1
    s_mov_b64 exec, -1""")
    stamp(k, 4)
    QB=32; PQ=160
    def p25_addr():
        tile_map(k, 4, 8, 16)
        k.e(f"""s_lshl_b32 s{S_T}, s{S_M}, 2
        s_add_u32 s{S_T}, s{S_T}, s{S_WAVE}
        s_lshl_b32 s{S_T+1}, s{S_T}, 16
        s_lshl_b32 s{S_T+2}, s{S_N}, 7
        s_add_u32 s{S_T+2}, s{S_T+2}, s{S_T+1}
        v_and_b32 v4, 31, v1
        v_lshlrev_b32 v14, 11, v4
        v_lshrrev_b32 v5, 5, v1
        v_lshl_add_u32 v14, v5, 4, v14
        v_add_u32 v14, s{S_T+2}, v14""")
    corrT(Q0, CK, 0, 48); corrT(Q1, CK, 1, 48)
    pack32(k, QB, Q0); pack32(k, QB+8, Q1)
    pmf(PQ, QB, 0); pmf(PQ, QB, 1)
    p25_addr()
    RS = 224
    for i in range(4): k.e(f"buffer_load_dwordx4 v[{RS+4*i}:{RS+4*i+3}], v14, {srd(SRD_B)}, 0 offen offset:{32*i}")
    k.e(f"""s_lshl_b32 s{S_T+2}, s{S_N}, 12
    s_add_u32 s{S_T+2}, s{S_T+2}, s{S_T+1}
    s_add_u32 s{S_T+2}, s{S_T+2}, {WS_H}
    v_add_u32 v7, s{S_T+2}, v{L16}
    s_lshl_b32 s{S_T}, s{S_T}, 8
    s_lshl_b32 s{S_T+1}, s{S_N}, 14
    s_add_u32 s{S_T}, s{S_T}, s{S_T+1}
    s_add_u32 s{S_T}, s{S_T}, {WS_HST}
    v_lshlrev_b32 v9, 3, v4
    v_add_u32 v9, s{S_T}, v9
    s_lshl_b32 s{S_T}, s{S_WN}, 12
    v_add_u32 v2, s{S_T}, v{L16}
    s_lshl_b32 s{S_T}, s{S_WN}, 7
    v_add_u32 v3, s{S_T}, v252""")
    PH=128; KF=16; ZF=32; NUM=96; DEN=192
    softmax2(k, (PQ, 64, 80, 56, PH, PH+8), (PQ+16, 96, 112, 60, PH+16, PH+24))
    def res_init():
        for j in range(4):
            for x in swaps(RS+4*j): k.e(x)
        for i in range(16): unpack(k, 64+2*i, 65+2*i, RS+i)
    R25 = regs([8], [10, 11, 12, 13], 64)
    consumer_addr(k, c2, R25, t=48)
    k.e("s_waitcnt vmcnt(0)")
    res_init()
    stamp(k, 21)
    warm(k, 1); grp(k, 1)
    k.e("s_barrier")
    stamp(k, 5)
    for i in range(4): k.e(f"ds_read_b128 v[{ZF+4*i}:{ZF+4*i+3}], v3 offset:{L_Z+i*32}")
    for i in range(4): k.e(f"ds_read_b128 v[{KF+4*i}:{KF+4*i+3}], v2 offset:{L_KV+i*1024}")
    for st in range(2):
        for A_, D_ in ((ZF, DEN), (KF, NUM)):
            if st == 0: k.e(f"s_waitcnt lgkmcnt({4 if A_ == ZF else 0})")
            for i in range(4):
                b = PH+16*st+4*i
                k.e(f"{MF} v[{D_+16*st}:{D_+16*st+15}], v[{A_+4*i}:{A_+4*i+3}], v[{b}:{b+3}], {'0' if i==0 else f'v[{D_+16*st}:{D_+16*st+15}]'}")
    k.e("s_nop 0")
    for st in range(2):
        d = DEN+16*st; n = NUM+16*st; o = 160+8*st
        k.e(f"v_add_f32 v{d}, {f2u(1e-6)}, v{d}\nv_rcp_f32 v{d}, v{d}\ns_nop 0")
        for hh in range(2):
            for i in range(4*hh, 4*hh+4): k.e(f"v_pk_mul_f32 v[{n+2*i}:{n+2*i+1}], v[{n+2*i}:{n+2*i+1}], v[{d}:{d+1}] op_sel_hi:[1,0]")
            for i in range(4*hh, 4*hh+4): k.e(f"v_cvt_pk_bf16_f32 v{o+i}, v{n+2*i}, v{n+2*i+1}")
            k.e(f"buffer_store_dwordx4 v[{o+4*hh}:{o+4*hh+3}], v{L16}, {W}, s{S_T+12+st} offen offset:{1024*hh} sc1")
    C = Cons(k, c2, R25)
    k.e("s_waitcnt vmcnt(0)\ns_barrier")
    stamp(k, 6)
    warm(k, 2)
    k.e("s_barrier\ns_barrier")
    stamp(k, 7)
    if OPT.st4 & 1:
        C.first_reads(); C.loopu(5, 3); C.loop(1, next_cons=False)
    else:
        C.first_reads(); C.loop(15); C.loop(1, next_cons=False)
    stamp(k, 8)
    A = 64
    def out4(dst, store):
        k.e("s_nop 1")
        for i in range(4): k.e(f"v_cvt_pk_bf16_f32 v{dst+i}, v{A+2*i}, v{A+2*i+1}")
        for j in range(4):
            if j < 3:
                for i in range(4*j+4, 4*j+8): k.e(f"v_cvt_pk_bf16_f32 v{dst+i}, v{A+2*i}, v{A+2*i+1}")
            for x in swaps(dst+4*j): k.e(x)
            k.e(store(dst+4*j, j))
    out4(RS, lambda r, j: f"buffer_store_dwordx4 v[{r}:{r+3}], v7, {W}, 0 offen offset:{1024*j} sc1")
    for i in range(16): unpack(k, A+2*i, A+2*i+1, RS+i)
    k.e(f"v_pk_add_f32 v[20:21], v[{A}:{A+1}], v[{A+2}:{A+3}]\nv_pk_add_f32 v[22:23], v[{A+4}:{A+5}], v[{A+6}:{A+7}]")
    for i in range(4, 16):
        t = 20 + 2*(i & 1); k.e(f"v_pk_add_f32 v[{t}:{t+1}], v[{t}:{t+1}], v[{A+2*i}:{A+2*i+1}]")
    k.e("v_pk_add_f32 v[20:21], v[20:21], v[22:23]\nv_add_f32 v20, v20, v21")
    xswap_sum1(k, 20, 21)
    k.e(f"v_mul_f32 v20, {f2u(1/64.)}, v20")
    for i in range(16):
        k.e(f"v_pk_add_f32 v[{A+2*i}:{A+2*i+1}], v[{A+2*i}:{A+2*i+1}], v[20:21] op_sel_hi:[1,0] neg_lo:[0,1] neg_hi:[0,1]")
    k.e(f"v_pk_mul_f32 v[22:23], v[{A}:{A+1}], v[{A}:{A+1}]\nv_pk_mul_f32 v[24:25], v[{A+2}:{A+3}], v[{A+2}:{A+3}]")
    for i in range(2, 16):
        t = 22 + 2*(i & 1); k.e(f"v_pk_fma_f32 v[{t}:{t+1}], v[{A+2*i}:{A+2*i+1}], v[{A+2*i}:{A+2*i+1}], v[{t}:{t+1}]")
    k.e("v_pk_add_f32 v[22:23], v[22:23], v[24:25]\nv_add_f32 v22, v22, v23")
    xswap_sum1(k, 22, 23)
    k.e(f"""v_mov_b32 v21, v22
    s_mov_b32 exec_hi, 0
    buffer_store_dwordx2 v[20:21], v9, {W}, 0 offen sc1
    s_mov_b32 exec_hi, -1""")
    k.e("s_cmp_ge_u32 s2, 224\ns_cbranch_scc1 L_c_helper")
    if OPT.two & 1: if_par(k, 0, "s_waitcnt vmcnt(1)")
    else: k.e("s_waitcnt vmcnt(1)")
    k.e("s_barrier")
    stamp(k, 9)
    k.e("L_c_p3:")
    tile_map(k, 4, 7, 14)
    Ra = regs([2], [3, 4, 5, 6], 128); Rb = regs([2], [3, 4, 5, 6], 64); R4 = regs([8, 9], [10, 11], 128)
    Ca = Cons(k, c3, Ra); Cb = Cons(k, c3, Rb); C4 = Cons(k, c4, R4)
    consumer_addr(k, c3, Ra, t=32, slot=0); consumer_addr(k, c4, R4, slot=0, t=32, setslot=False)
    Ca.zero(); Cb.zero()
    mk_srd(k, SRD_A, P_BSP, 4096)
    aCS=7; aZN=12; aHS=13; aZS=14; aZP=252; CS=192; HS=208; BB=240; ZS=244
    k.e(f"""v_and_b32 v32, 15, v1
    v_lshlrev_b32 v33, 1, v32
    s_lshl_b32 s{S_T+2}, s{S_M}, 8
    s_lshl_b32 s{S_T+3}, s{S_WM}, 7
    s_add_u32 s{S_T+2}, s{S_T+2}, s{S_T+3}""")
    for t in range(4): k.e(f"buffer_load_ushort v{BB+t}, v33, {srd(SRD_A)}, s{S_T+2} offen offset:{32*t}")
    k.e(f"""s_lshl_b32 s{S_T}, s{S_WM}, 6
    v_add_u32 v32, s{S_T}, v32
    v_lshlrev_b32 v{aZS}, 3, v32
    v_add_u32 v{aZS}, {L_ZS}, v{aZS}
    v_lshlrev_b32 v{aHS}, 4, v32
    v_add_u32 v{aHS}, {L_HS}, v{aHS}
    v_lshrrev_b32 v34, 4, v1
    s_lshl_b32 s{S_T}, s{S_WN}, 8
    s_add_u32 s{S_T}, s{S_T}, {L_CS}
    v_lshl_add_u32 v{aCS}, v34, 4, s{S_T}
    v_lshrrev_b32 v34, 5, v1
    v_lshlrev_b32 v34, 6, v34
    v_xor_b32 v{aZN}, v34, v{L16}
    s_lshl_b32 s{S_T}, s{S_WM}, 9
    s_lshl_b32 s{S_T+1}, s{S_WN}, 10
    s_add_u32 s{S_T}, s{S_T}, s{S_T+1}
    s_add_u32 s{S_T}, s{S_T}, {L_ZP}
    v_lshl_add_u32 v{aZP}, v1, 3, s{S_T}
    s_lshl_b32 s{S_T+12}, s{S_N}, 19
    s_lshl_b32 s{S_T+1}, s{S_M}, 15
    s_add_u32 s{S_T+12}, s{S_T+12}, s{S_T+1}
    s_lshl_b32 s{S_T+1}, s{S_WM}, 14
    s_add_u32 s{S_T+12}, s{S_T+12}, s{S_T+1}
    s_lshl_b32 s{S_T+1}, s{S_WN}, 12
    s_add_u32 s{S_T+12}, s{S_T+12}, s{S_T+1}
    s_add_u32 s{S_T+12}, s{S_T+12}, {WS_Z2N}
    s_add_u32 s{S_T+13}, s{S_T+12}, 8192
    s_lshl_b32 s{S_T}, s{S_M}, 2
    s_lshl_b32 s{S_T+1}, s{S_WM}, 1
    s_add_u32 s{S_T}, s{S_T}, s{S_T+1}
    s_mul_i32 s{S_T}, s{S_T}, 112
    s_lshl_b32 s{S_T+1}, s{S_N}, 3
    s_add_u32 s{S_T}, s{S_T}, s{S_T+1}
    s_lshl_b32 s{S_T+1}, s{S_WN}, 2
    s_add_u32 s{S_T}, s{S_T}, s{S_T+1}
    s_lshl_b32 s{S_T}, s{S_T}, 10
    s_add_u32 s{S_T+14}, s{S_T}, {WS_U}
    s_add_u32 s{S_T+15}, s{S_T+14}, {112*1024}""")
    warm(k, 3)
    k.e("s_waitcnt vmcnt(0)\ns_barrier\ns_barrier")
    stamp(k, 10)
    rcs = lambda half: [f"ds_read_b128 v[{CS+4*f}:{CS+4*f+3}], v{aCS} offset:{half*512 + f*64}" for f in range(4)]
    rhs = [f"ds_read_b128 v[{HS+4*t}:{HS+4*t+3}], v{aHS} offset:{t*256}" for t in range(4)]
    Ca.first_reads_static(2); Ca.loop4(3, 2)
    for j in range(3): Ca.loop(1, slot=(2+j) % 4)
    Ca.loop(1, next_cons=False, tail=rhs+rcs(1), slot=1)
    stamp(k, 11)
    k.e("s_waitcnt lgkmcnt(0)")
    Cb.first_reads_static(2)
    zq = [(Ca.sub(t, f), CS+4*f, HS+4*t) for t in range(4) for f in range(4)]
    def zpost(g):
        t = g >> 1; ys = [zq[2*g][0], zq[2*g][0]+2, zq[2*g+1][0], zq[2*g+1][0]+2]; L = []
        for i, y in enumerate(ys):
            if g & 1 == 0 and i == 0:
                L.append(f"v_pk_mul_f32 v[62:63], v[{y}:{y+1}], v[{y}:{y+1}]")
            elif g & 1 == 0 and i == 1:
                L += [f"v_pk_add_f32 v[60:61], v[{ys[0]}:{ys[0]+1}], v[{y}:{y+1}]", f"v_pk_fma_f32 v[62:63], v[{y}:{y+1}], v[{y}:{y+1}], v[62:63]"]
            else:
                L += [f"v_pk_add_f32 v[60:61], v[60:61], v[{y}:{y+1}]", f"v_pk_fma_f32 v[62:63], v[{y}:{y+1}], v[{y}:{y+1}], v[62:63]"]
        if g & 1: L += [f"v_add_f32 v{ZS+t}, v60, v61", f"v_add_f32 v{ZS+4+t}, v62, v63"]
        return L
    k.e("s_nop 3")
    gelu_quads(k, zq, 32, post=zpost)
    for x in rcs(0): k.e(x)
    a_, b_ = ZS, ZS+4
    k.e(f"""v_permlane32_swap_b32 v{a_}, v{a_+2}
    v_permlane32_swap_b32 v{a_+1}, v{a_+3}
    v_permlane32_swap_b32 v{b_}, v{b_+2}
    v_permlane32_swap_b32 v{b_+1}, v{b_+3}
    v_pk_add_f32 v[{a_}:{a_+1}], v[{a_}:{a_+1}], v[{a_+2}:{a_+3}]
    v_pk_add_f32 v[{b_}:{b_+1}], v[{b_}:{b_+1}], v[{b_+2}:{b_+3}]
    s_nop 0
    v_permlane16_swap_b32 v{a_}, v{a_+1}
    v_permlane16_swap_b32 v{b_}, v{b_+1}
    v_add_f32 v{a_+2}, v{a_}, v{a_+1}
    v_add_f32 v{b_}, v{b_}, v{b_+1}
    v_mul_f32 v{a_}, {f2u(1/64.)}, v{a_+2}
    v_fma_f32 v{a_+1}, -v{a_}, v{a_+2}, v{b_}
    v_max_f32 v{a_+1}, 0, v{a_+1}
    ds_write_b64 v{aZP}, v[{ZS}:{ZS+1}]
    s_waitcnt lgkmcnt(0)""")
    if OPT.gb: k.e("s_barrier")
    grp(k, 2)
    stamp(k, 12)
    g = OPT.gat
    n1 = g+1+OPT.zsp-16+1
    def norm_tile(st, ft):
        a = Ca.acc(st, ft); L = []
        for fh in range(2):
            for sh in range(2):
                s = ZS+2*(2*st+sh)
                L += [f"v_fma_f32 v{a+8*fh+4*sh+i}, v{a+8*fh+4*sh+i}, v{s+1}, v{s}" for i in range(4)]
        L += [f"v_cvt_pk_bf16_f32 v{a+8*fh+i}, v{a+8*fh+2*i}, v{a+8*fh+2*i+1}" for fh in range(2) for i in range(4)]
        for fh in range(2):
            L += swaps(a+8*fh)
            L += [f"buffer_store_dwordx4 v[{a+8*fh}:{a+8*fh+3}], v{aZN}, {W}, s{S_T+12+st} offen offset:{ft*2048+fh*1024} sc1"]
        return L
    NL = sum((norm_tile(st, ft) for st in range(2) for ft in range(2)), [])
    nf = OPT.nst
    zl = [f"v_lshlrev_b32 v{C4.sub(t, f)+i}, 16, v{BB+t}" for f in range(4) for t in range(4) for i in range(4)]
    vm = n1+nf+OPT.vmd
    nz = 15-vm
    rz = [f"ds_read_b64 v[{ZS+2*t}:{ZS+2*t+1}], v{aZS} offset:{t*128}" for t in range(4)]
    for j in range(16):
        kw = dict(slot=(2+j) % 4)
        if j == n1-1: kw['tail'] = rz
        if j == n1:
            k.e("s_waitcnt lgkmcnt(4)"); stamp(k, 13)
            if OPT.nprio: k.e("s_setprio 3")
            if nf == 0:
                pend = []
                for st in range(2):
                    for f in range(4):
                        a = Ca.acc(st, f >> 1) + 8*(f & 1)
                        for i in range(4):
                            s_ = ZS+2*(2*st+(i >> 1))
                            k.e(f"v_pk_fma_f32 v[{a+2*i}:{a+2*i+1}], v[{a+2*i}:{a+2*i+1}], v[{s_}:{s_+1}], v[{s_}:{s_+1}] op_sel:[0,1,0] op_sel_hi:[1,1,0]")
                        for x in pend: k.e(x)
                        for i in range(4): k.e(f"v_cvt_pk_bf16_f32 v{a+i}, v{a+2*i}, v{a+2*i+1}")
                        pend = swaps(a) + [f"buffer_store_dwordx4 v[{a}:{a+3}], v{aZN}, {W}, s{S_T+12+st} offen offset:{f*1024} sc1"]
                k.e("s_nop 0")
                for x in pend: k.e(x)
        if OPT.nprio and j == n1+nf: k.e("s_setprio 0")
        if n1 <= j < n1+nf: kw['fillers'] = NL[len(NL)*(j-n1)//nf: len(NL)*(j-n1+1)//nf]
        if j == vm: kw['pre_barrier'] = "vm"
        if j > vm: kw['fillers'] = zl[64*(j-vm-1)//nz: 64*(j-vm)//nz]
        if j == 15: kw['next_cons'] = C4; kw['nslot'] = 2
        Cb.loop(1, **kw)
    stamp(k, 14)
    j = 0
    if not OPT.z1fill:
        OPT.dg |= 1
        gelu_quads(k, [(Cb.sub(t, f), CS+4*f, HS+4*t) for f in range(4) for t in Cb.order(f)], 32)
        stamp(k, 15)
    if OPT.p4loop:
        C4.loop4(8, 2); k.e("s_waitcnt lgkmcnt(0)")
    for f in range(0 if OPT.p4loop else 4):
        for t in Cb.order(f):
            for i in range(2):
                C4.loop(1, fillers=(gelu_fill(Cb.sub(t, f)+2*i, CS+4*f+2*i, HS+4*t, 2, ZS) if not OPT.dg & 1 else None), budget=OPT.bud, next_cons=(False if j == 31 else None), slot=(2+j) % 4)
                j += 1
                if j == 18: grp(k, 3)
    stamp(k, 16)
    pend = None
    for f in range(4):
        for st in range(2):
            a = C4.acc(st, f >> 1) + 8*(f & 1); z = Cb.acc(st, f >> 1) + 8*(f & 1); o = 16+4*(f*2+st)
            for i in range(4): k.e(f"v_pk_mul_f32 v[{a+2*i}:{a+2*i+1}], v[{a+2*i}:{a+2*i+1}], v[{z+2*i}:{z+2*i+1}]")
            if pend:
                for x in pend: k.e(x)
            for i in range(4): k.e(f"v_cvt_pk_bf16_f32 v{o+i}, v{a+2*i}, v{a+2*i+1}")
            pend = swaps(o) + [f"buffer_store_dwordx4 v[{o}:{o+3}], v{L16}, {W}, s{S_T+14+st} offen offset:{f*1024} sc1"]
    k.e("s_nop 0")
    for x in pend: k.e(x)
    if OPT.two & 2:
        k.e("L_c_p5:")
        if_par(k, 0, "s_waitcnt vmcnt(0)")
        k.e("s_barrier")
        stamp(k, 17)
    else:
        k.e("s_waitcnt vmcnt(0)\ns_barrier")
        stamp(k, 17)
        k.e("L_c_p5:")
    p25_addr()
    if OPT.sk:
        R5 = regs([8], [10, 11, 12, 13], 96)
        if OPT.bu5: R5.nfr = 80
        C = Cons(k, c5, R5)
        consumer_addr(k, c5, R5, t=48, slot=0)
        A = 128
        for j in range(4):
            for x in swaps(RS+4*j): k.e(x)
        for i in range(16): unpack(k, A+2*i, A+1+2*i, RS+i)
        for i in range(96, 128, 2): k.e(f"v_mov_b64 v[{i}:{i+1}], 0")
        k.e(f"""s_lshl_b32 s{S_T+12}, s2, 2
        s_add_u32 s{S_T+12}, s{S_T+12}, s{S_WAVE}
        s_lshl_b32 s{S_T+12}, s{S_T+12}, 12
        s_xor_b32 s{S_T+13}, s{S_T+12}, 16384
        s_add_u32 s{S_T+12}, s{S_T+12}, {WS_XP}
        s_add_u32 s{S_T+13}, s{S_T+13}, {WS_XP}""")
        mk_srd(k, SRD_B, P_OUT, 4*MB)
        k.e("s_waitcnt vmcnt(0)\ns_barrier\ns_barrier")
        stamp(k, 18)
        C.first_reads_static(2); C.loop4(3, 2); C.loop(1, slot=2)
        snd = []
        for j in range(4):
            snd += [f"v_cvt_pk_bf16_f32 v{176+i}, v{96+2*i}, v{97+2*i}" for i in range(4*j, 4*j+4)]
            snd += [f"buffer_store_dwordx4 v[{176+4*j}:{179+4*j}], v{L16}, {W}, s{S_T+12} offen offset:{1024*j} sc1"]
        if OPT.jo:
            C.loop(1, slot=3, next_cons=False, fillers=snd + ["PAD"]*OPT.jpad, fstart=15, budget=12)
        else:
            C.loop(1, slot=3, next_cons=False)
            for x in snd: k.e(x)
        stamp(k, 19)
        if OPT.xslp: k.e(f"s_sleep {OPT.xslp}")
        def xg():
            for j in range(4): k.e(f"buffer_load_dwordx4 v[{80+4*j}:{83+4*j}], v{L16}, {W}, s{S_T+13} offen offset:{1024*j} sc1")
        validated(k, xg, range(80, 96), 2, pre=False)
        stamp(k, 22)
        pend = []
        for j in range(4):
            acc_bf16(k, A+8*j, 80+4*j, 4, False, 16)
            for x in pend: k.e(x)
            for i in range(4): k.e(f"v_cvt_pk_bf16_f32 v{160+4*j+i}, v{A+8*j+2*i}, v{A+8*j+2*i+1}")
            pend = swaps(160+4*j) + [f"buffer_store_dwordx4 v[{160+4*j}:{163+4*j}], v14, {srd(SRD_B)}, 0 offen offset:{32*j}"]
        k.e("s_nop 0")
        for x in pend: k.e(x)
    else:
        C = Cons(k, c5, R25)
        consumer_addr(k, c5, R25, t=48, slot=(0 if OPT.st4 & 4 else None))
        res_init()
        mk_srd(k, SRD_B, P_OUT, 4*MB)
        k.e("s_barrier\ns_barrier")
        stamp(k, 18)
        if OPT.st4 & 4:
            C.first_reads_static(2); C.loop4(7, 2); k.e("s_waitcnt lgkmcnt(0)")
        else:
            C.first_reads(); C.loop(27); C.loop(1, next_cons=False)
        stamp(k, 19)
        out4(96, lambda r, j: f"buffer_store_dwordx4 v[{r}:{r+3}], v14, {srd(SRD_B)}, 0 offen offset:{32*j}")
    k.e("s_branch L_fin")
    k.e("L_c_helper:")
    k.e("s_waitcnt vmcnt(1)\ns_barrier")
    stamp(k, 9)
    k.e("s_barrier")
    helper_pf(k, 'c')
    stamp(k, 17)
    k.e("s_branch L_c_p5")

def place_pads(k):
    import subprocess, re, tempfile, os
    L = [x.strip() for x in k.L]
    isins = lambda x: not (x.endswith(":") or x.startswith(".") or x.startswith(("WARM", "ALIGN4K", "GRP")))
    txt = '.amdgcn_target "amdgcn-amd-amdhsa--gfx950"\n.text\n' + KNAME + ":\n" + "\n".join(x for x in L if isins(x) or x.endswith(":")) + "\n"
    d = tempfile.mkdtemp(); open(d+"/a.s", "w").write(txt)
    subprocess.run(["clang", "-x", "assembler", "-target", "amdgcn-amd-amdhsa", "-mcpu=gfx950", "-c", d+"/a.s", "-o", d+"/a.o"], check=True)
    dis = subprocess.run(["llvm-objdump", "-d", "--mcpu=gfx950", d+"/a.o"], capture_output=True, text=True).stdout
    sizes = [4*len(m.group(1).split()) for m in re.finditer(r"// [0-9A-F]{12}: ((?:[0-9A-F]{8} ?)+)", dis)]
    assert len(sizes) == sum(map(isins, L)), (len(sizes), sum(map(isins, L)))
    out = []; off = None; it = iter(sizes); nextpage = 0; pads = [[] for _ in NWARM]; grp = 0; inwarm = False
    for x in L:
        if x == "ALIGN4K":
            out.append(".p2align 12"); off = 0; continue
        if x.startswith("GRP"):
            grp = int(x.split()[1]); continue
        if x == "s_mov_b64 exec, 0": inwarm = True
        if off is not None and off >= nextpage and not inwarm and (isins(x) or x.startswith(".p2align")):
            n = sum(map(len, pads)); pads[grp].append(n)
            out.append(f"L_pad{n}:"); out.append(f"s_cbranch_execz L_padr{n}"); off += 4; nextpage += 4096
        if x == "s_mov_b64 exec, -1": inwarm = False
        out.append(x)
        if isins(x):
            sz = next(it)
            if off is not None: off += sz
        elif x.startswith("WARM"): off += 12
        elif x.startswith(".p2align") and off is not None:
            a = 1 << int(x.split()[1]); off = (off + a-1)//a*a
    fin = []
    for x in out:
        if x.startswith("WARM"):
            g, i = map(int, x.split()[1:])
            if i < len(pads[g]):
                n = pads[g][i]
                fin += [f"s_cmp_lg_u32 s{S_WAVE}, {i % 4}", f"s_cbranch_scc1 L_padr{n}", f"s_branch L_pad{n}", f"L_padr{n}:"]
            else: fin += ["s_nop 0"]*3
        else: fin.append(x)
    assert all(len(p) <= n for p, n in zip(pads, NWARM)), pads
    print('pads', pads, file=sys.stderr)
    k.L = [("" if x.endswith(":") else "    ") + x for x in fin]

def build():
    k = Kern("p")
    if OPT.probe: k.e("s_memrealtime s[94:95]")
    k.e("s_cmp_ge_u32 s2, 256\ns_cbranch_scc1 L_end")
    k.e("s_load_dwordx16 s[32:47], s[0:1], 0\ns_load_dwordx8 s[48:55], s[0:1], 64")
    k.e(f"v_lshrrev_b32 v2, 6, v0\nv_and_b32 v1, 63, v0\nv_readfirstlane_b32 s{S_WAVE}, v2")
    if OPT.stamps: k.e("v_mov_b32 v255, 0\nv_mov_b32 v254, 0\nv_mov_b32 v253, 0\ns_mov_b32 s97, 0")
    import core4; core4.DG[0] = OPT.dg
    ITST[0] = max(OPT.stamps - 1, 0); ITST[1] = 254; CAP[0] = OPT.cap
    tile_map(k, 8, 4, 16)
    k.e(f"s_cmp_lt_u32 s{S_WAVE}, 4\ns_cbranch_scc1 L_cons")
    if OPT.spq < 0:
        k.e(f"s_and_b32 s93, s{S_M}, 7\ns_mul_i32 s93, s93, {OPT.qm}\ns_lshr_b32 s93, s93, 3\ns_add_u32 s93, s93, {OPT.q0}")
    k.e(f"s_and_b32 s{S_LW}, s{S_WAVE}, 1\ns_sub_u32 s{S_Q}, s{S_WAVE}, 4\ns_cmp_ge_u32 s{S_WAVE}, 6\ns_cbranch_scc1 L_aux")
    if OPT.pl: k.e(f"s_setprio {OPT.pl}")
    loader(k)
    k.e("L_aux:")
    grp(k, 0)
    if OPT.pa: k.e(f"s_setprio {OPT.pa}")
    aux(k)
    k.e("L_cons:")
    grp(k, 0)
    if OPT.pc: k.e(f"s_setprio {OPT.pc}")
    consumer(k)
    k.e("L_fin:")
    if OPT.stamps:
        k.e("s_waitcnt vmcnt(0)")
        stamp(k, 20)
        mk_srd(k, SRD_D, P_WS, 2*MB, WS_END)
        k.e(f"""s_lshl_b32 s{S_T}, s2, 3
        s_add_u32 s{S_T}, s{S_T}, s{S_WAVE}
        s_lshl_b32 s{S_T}, s{S_T}, 8
        v_lshlrev_b32 v2, 2, v1
        buffer_store_dword v255, v2, {srd(SRD_D)}, s{S_T} offen
        s_add_u32 s{S_T}, s{S_T}, 0x80000
        buffer_store_dword v254, v2, {srd(SRD_D)}, s{S_T} offen
        s_add_u32 s{S_T}, s{S_T}, 0x80000
        buffer_store_dword v253, v2, {srd(SRD_D)}, s{S_T} offen""")
    if OPT.probe:
        k.e(f"s_cmp_lg_u32 s{S_WAVE}, {OPT.pwave}\ns_cbranch_scc1 L_end\ns_cmp_ge_u32 s2, 224\ns_cbranch_scc1 L_end")
        if OPT.pwg >= 0: k.e(f"s_cmp_lg_u32 s2, {OPT.pwg}\ns_cbranch_scc1 L_end")
        k.e(f"v_writelane_b32 v255, s94, 31\ns_nop 1")
        k.e(f"v_readlane_b32 s{S_T}, v255, {OPT.probe}\nv_readlane_b32 s{S_T+1}, v255, {OPT.pfrom}\ns_nop 3\ns_sub_u32 s{S_T}, s{S_T}, s{S_T+1}\ns_mul_i32 s{S_T}, s{S_T}, 10\ns_add_u32 s{S_T}, s{S_T}, s94\ns_add_u32 s{S_T}, s{S_T}, 10000\nL_spin:\ns_memrealtime s[{S_ST}:{S_ST+1}]\ns_waitcnt lgkmcnt(0)\ns_sub_u32 s{S_T+1}, s{S_ST}, s{S_T}\ns_cmp_lt_i32 s{S_T+1}, 0\ns_cbranch_scc1 L_spin")
    k.e("L_end:\ns_endpgm")
    if OPT.pads: place_pads(k)
    out = [f"; @launch grid=(256,1,1) block=(512,1,1) lds={163840 if OPT.sk else L_END}",
           '.amdgcn_target "amdgcn-amd-amdhsa--gfx950"\n.text', header(KNAME) + k.text(), '.section .rodata,"a"', descriptor(KNAME, 256, 100)]
    return "\n".join(out)

if __name__ == "__main__":
    for a in sys.argv[2:]:
        kk, v = a.split("="); setattr(OPT, kk, int(v))
    open(sys.argv[1], "w").write(build())
```

```python
import sys, struct
from core4 import *

MB = 1<<20
WS_O=4*MB; WS_H=8*MB; WS_Z2N=20*MB; WS_U=28*MB
WS_KVP=36*MB; WS_ZP=38*MB; WS_KVF=38*MB+131072; WS_ZF=38*MB+262144; WS_HC=38*MB+524288; WS_XS=39*MB; WS_CQP=39*MB+65536; WS_CSP=39*MB+512*1024
WS_XP=12*MB; WS_HH=41*MB+512*1024; WS_HST=40*MB; WS_ZST=41*MB
FLS=4352
WS_FLAG=42*MB; F_O=WS_FLAG; F_H=WS_FLAG+16*FLS; F_Z=WS_FLAG+32*FLS; F_U=WS_FLAG+48*FLS
WS_END=43*MB
P_X=0; P_WQKV=1; P_WPHI=2; P_WO=3; P_WIN=5; P_WSP=6; P_BSP=7; P_WOUT=8; P_OUT=9; P_DBG=10; P_WS=11
S_Q=92; S_CW=90
L_CW=131072
L_WPHI=147456; L_XS=L_WPHI+4096; L_CQ=L_XS+1024; L_HS=L_CQ+1024; L_CS=L_HS+2048; L_ZP=L_CS+1024; L_ZS=L_ZP+2048; L_END=L_ZS+1024
KNAME = "sequential_preLN__linear_kernel_hedgehog__mixer_gmlp__prompt_kernel"

def f2u(x): return struct.unpack("<I", struct.pack("<f", x))[0]
LOG2E = 1.4426950408889634
C0 = -2*LOG2E*0.7978845608028654; C1 = C0*0.044715
MF = "v_mfma_f32_32x32x16_bf16"
W = srd(SRD_W)

class Opt:
    stamps = 0
    pf = 2
    slp = 4
    vslp = 2
    pfw = 0
    gat = 18
    spq = -1
    z1fill = 1
    nfill = 2
    p1ph = 1
    own2 = 3
    p4ph = 0
    vprio = 0
    zsp = 4
    dsx = 0
    kfslp = 17
    pfd = 1
    qpf = 0
    pb1 = 40
    pb2 = 10
    pb3 = 24
    bu = 2
    wa = 15
    wl = 13
    wsb = 0
    kst = 0
    zg = 1
    h3 = 16
    nw5 = 1
    nw2 = 1
    hh = 1
    hhs = 24
    fw = 0
    late = 0
    two = 1
    tw = 0
    tlb = 0
    wpos = 1
    hsp = 1
    hpos = 1
    zdma = 1
    xis = 4
    bu5 = 9
    nprio = 1
    qm = 4
    q0 = 2
    pads = 1
    xa = 0
    gb = 1
    nst = 0
    xl = 0
    sk = 1
    jo = 1
    jpad = 10
    f5 = 1
    pb5 = 25
    xslp = 6
    ct = 2
    p4loop = 0
    u1 = 3
    u3 = 3
    dg = 0
    bud = 8
    r1 = 0
    r2 = 0
    r3 = 0
    r4 = 0
    r5 = 0
    st4 = 5
    old = 7
    old2 = 7
    cyc = 0
    lead = 6
    fpos = 1
    l2 = 0
    r8 = 0
    kfe = 0
    kvr = 5
    probe = 0
    pwg = 83
    pfrom = 0
    pwave = 0
    cap = 0
    vmd = 1
    z1n = 2
    pa = 3
    pl = 2
    pc = 0
    kvslp = 14
OPT = Opt()

def unpack(k, lo, hi, src):
    k.e(f"v_lshlrev_b32 v{lo}, 16, v{src}\nv_and_b32 v{hi}, 0xffff0000, v{src}")
def cvt16(k, dst, src):
    for i in range(8): k.e(f"v_cvt_pk_bf16_f32 v{dst+i}, v{src+2*i}, v{src+2*i+1}")
def stamp(k, i):
    if OPT.stamps:
        k.e(f"s_memrealtime s[{S_ST}:{S_ST+1}]\ns_waitcnt lgkmcnt(0)\nv_writelane_b32 v255, s{S_ST}, {i}")
        if OPT.cyc: k.e(f"s_memtime s[{S_ST}:{S_ST+1}]\ns_waitcnt lgkmcnt(0)\nv_writelane_b32 v255, s{S_ST}, {i+32}")
def bars(k, n):
    if n <= 4:
        for _ in range(n): k.e("s_barrier")
    else:
        t = k.lab("bars")
        k.e(f"s_mov_b32 s{S_CNT}, {n}\n{t}:\ns_barrier\ns_sub_u32 s{S_CNT}, s{S_CNT}, 1\ns_cmp_lg_u32 s{S_CNT}, 0\ns_cbranch_scc1 {t}")

def if_par(k, par, text):
    sk = k.lab("par")
    k.e(f"s_bitcmp1_b32 s2, 0\ns_cbranch_scc{1 if par == 0 else 0} {sk}\n{text}\n{sk}:")

def check_flags(k, nflags, val, oklab):
    k.e(f"""v_cmp_le_u32 vcc, {val}, v8
    s_and_b32 s{S_T+11}, vcc_lo, {(1<<nflags)-1}
    s_cmp_eq_u32 s{S_T+11}, {(1<<nflags)-1}
    s_cbranch_scc1 {oklab}""")
def spin_tail(k, top, slp=None):
    k.e(f"s_sleep {OPT.slp if slp is None else slp}\ns_sub_u32 s{S_T+10}, s{S_T+10}, 1\ns_cmp_lg_u32 s{S_T+10}, 0\ns_cbranch_scc1 {top}")
def poll(k, voff, nflags, srdn=SRD_W, val=1, pre=False):
    top = k.lab("poll"); done = k.lab("polld")
    k.e(f"s_cmp_lg_u32 s{S_LW}, 0\ns_cbranch_scc1 {done}")
    if pre:
        k.e("s_waitcnt vmcnt(0)")
        check_flags(k, nflags, val, done)
    k.e(f"s_mov_b32 s{S_T+10}, 0x40000\n{top}:")
    k.e(f"buffer_load_dword v8, v{voff}, {srd(srdn)}, 0 offen sc1\ns_waitcnt vmcnt(0)")
    check_flags(k, nflags, val, done)
    spin_tail(k, top)
    k.e(f"{done}:")
def sample(k, voff, srdn=SRD_W):
    sk = k.lab("nosm")
    k.e(f"s_cmp_lg_u32 s{S_LW}, 0\ns_cbranch_scc1 {sk}\nbuffer_load_dword v8, v{voff}, {srd(srdn)}, 0 offen sc1\n{sk}:")
def tagcheck(k, regs, t, ok):
    regs = list(regs)
    if len(regs) % 2 == 0:
        k.e(f"v_max_u32 v{t}, v{regs[0]}, v{regs[1]}"); rest = regs[2:]
    else:
        k.e(f"v_max3_u32 v{t}, v{regs[0]}, v{regs[1]}, v{regs[2]}"); rest = regs[3:]
    for i in range(0, len(rest), 2): k.e(f"v_max3_u32 v{t}, v{t}, v{rest[i]}, v{rest[i+1]}")
    k.e(f"v_cmp_eq_u32 vcc, -1, v{t}\ns_cmp_eq_u64 vcc, 0\ns_cbranch_scc1 {ok}")
def validated(k, gather, regs, t, pre=True):
    top = k.lab("vsp"); ok = k.lab("vok")
    if pre: tagcheck(k, regs, t, ok)
    k.e(f"s_mov_b32 s{S_T+10}, 0x40000\n{top}:")
    gather()
    k.e("s_waitcnt vmcnt(0)")
    tagcheck(k, regs, t, ok)
    spin_tail(k, top, OPT.vslp)
    k.e(f"{ok}:")

def cnt_addr(k, v, base, sline):
    k.e(f"""s_mul_i32 s{S_T}, s{sline}, {FLS}
    s_add_u32 s{S_T}, s{S_T}, {base}
    v_mov_b32 v{v}, s{S_T}""")
def set_flag(k, vset, lanes=1):
    sk = k.lab("nofl")
    k.e(f"""s_cmp_lg_u32 s{S_LW}, {OPT.fw}
    s_cbranch_scc1 {sk}
    s_mov_b64 exec, {lanes}
    buffer_atomic_add v11, v{vset}, {W}, 0 offen sc1
    s_mov_b64 exec, -1
    {sk}:""")

def softmax_pm(k0, P, EP, EN, T, OP, ON, inject=(), wpos=(), wneg=()):
    L = S_K
    k = Kern(k0.name)
    k.e(f"v_max3_f32 v{T}, v{P}, v{P+1}, v{P+2}\nv_min3_f32 v{T+1}, v{P}, v{P+1}, v{P+2}")
    for i in range(3, 15, 2):
        k.e(f"v_max3_f32 v{T}, v{T}, v{P+i}, v{P+i+1}\nv_min3_f32 v{T+1}, v{T+1}, v{P+i}, v{P+i+1}")
    k.e(f"""v_max_f32 v{T}, v{T}, v{P+15}
    v_max_f32 v{T+1}, -v{T+1}, -v{P+15}
    s_nop 1
    v_permlane32_swap_b32 v{T}, v{T+1}
    v_max_f32 v{T}, v{T}, v{T+1}
    v_mul_f32 v{T}, {f2u(-LOG2E)}, v{T}
    v_mov_b32 v{T+1}, v{T}
    s_nop 1
    v_permlane32_swap_b32 v{T}, v{T+1}""")
    for i in range(8):
        k.e(f"v_pk_fma_f32 v[{EP+2*i}:{EP+2*i+1}], v[{P+2*i}:{P+2*i+1}], s[{L}:{L+1}], v[{T}:{T+1}] op_sel_hi:[1,1,0]")
        k.e(f"v_pk_fma_f32 v[{EN+2*i}:{EN+2*i+1}], v[{P+2*i}:{P+2*i+1}], s[{L}:{L+1}], v[{T}:{T+1}] op_sel:[0,0,1] op_sel_hi:[1,1,1] neg_lo:[0,1,0] neg_hi:[0,1,0]")
    for i in range(16):
        k.e(f"v_exp_f32 v{EP+i}, v{EP+i}\nv_exp_f32 v{EN+i}, v{EN+i}")
    k.e(f"v_pk_add_f32 v[{T}:{T+1}], v[{EP}:{EP+1}], v[{EP+2}:{EP+3}]\nv_pk_add_f32 v[{T+2}:{T+3}], v[{EN}:{EN+1}], v[{EN+2}:{EN+3}]")
    for i in range(2, 8):
        k.e(f"v_pk_add_f32 v[{T}:{T+1}], v[{T}:{T+1}], v[{EP+2*i}:{EP+2*i+1}]\nv_pk_add_f32 v[{T+2}:{T+3}], v[{T+2}:{T+3}], v[{EN+2*i}:{EN+2*i+1}]")
    k.e(f"""v_add_f32 v{T}, v{T}, v{T+1}
    v_add_f32 v{T+1}, v{T+2}, v{T+3}
    s_nop 1
    v_permlane32_swap_b32 v{T}, v{T+1}
    v_add_f32 v{T}, v{T}, v{T+1}
    v_rcp_f32 v{T}, v{T}
    s_nop 0
    v_mov_b32 v{T+1}, v{T}
    s_nop 1
    v_permlane32_swap_b32 v{T}, v{T+1}""")
    inj = list(inject); step = max(len(k.L)//(len(inj)+1), 1)
    for i, x in enumerate(k.L):
        k0.e(x)
        if inj and i % step == step-1: k0.e(inj.pop(0))
    for x in inj: k0.e(x)
    k = k0
    for E, O, sel, wr in ((EP, OP, "op_sel_hi:[1,0]", wpos), (EN, ON, "op_sel:[0,1] op_sel_hi:[1,1]", wneg)):
        for hh in range(2):
            for i in range(4*hh, 4*hh+4): k.e(f"v_pk_mul_f32 v[{E+2*i}:{E+2*i+1}], v[{E+2*i}:{E+2*i+1}], v[{T}:{T+1}] {sel}")
            for i in range(4*hh, 4*hh+4): k.e(f"v_cvt_pk_bf16_f32 v{O+i}, v{E+2*i}, v{E+2*i+1}")
            if wr: k.e(wr[hh])

def softmax2(k, argsA, argsB, inject=(), wA=((), ()), wB=((), ())):
    ta = Kern(k.name); softmax_pm(ta, *argsA, wpos=wA[0], wneg=wA[1])
    tb = Kern(k.name); softmax_pm(tb, *argsB, wpos=wB[0], wneg=wB[1])
    L = []
    for x, y in zip(ta.L, tb.L):
        x = x.strip(); y = y.strip()
        if x == "s_nop 1": L.append("s_nop 0")
        elif x == "s_nop 0": pass
        else: L += [x, y]
    inj = list(inject); step = max((len(L)*2//3)//(len(inj)+1), 1)
    for i, x in enumerate(L):
        k.e(x)
        if inj and i % step == step-1: k.e(inj.pop(0))

def xhalf_sum2(k, a):
    k.e(f"""s_nop 1
    v_permlane32_swap_b32 v{a}, v{a+1}
    v_add_f32 v{a}, v{a}, v{a+1}
    v_mov_b32 v{a+1}, v{a}
    s_nop 1
    v_permlane32_swap_b32 v{a}, v{a+1}""")
def xswap_sum1(k, a, t, which=32):
    k.e(f"v_mov_b32 v{t}, v{a}\ns_nop 1\nv_permlane{which}_swap_b32 v{a}, v{t}\nv_add_f32 v{a}, v{a}, v{t}")
def xswap_sum(k, a, t, n, which):
    for i in range(n): k.e(f"v_mov_b32 v{t+i}, v{a+i}")
    k.e("s_nop 1")
    for i in range(n): k.e(f"v_permlane{which}_swap_b32 v{a+i}, v{t+i}")
    for i in range(n): k.e(f"v_add_f32 v{a+i}, v{a+i}, v{t+i}")
def ror_sum(k, a, n, sh):
    k.e("s_nop 1")
    for i in range(n): k.e(f"v_add_f32_dpp v{a+i}, v{a+i}, v{a+i} row_ror:{sh} row_mask:0xf bank_mask:0xf")
def acc_bf16(k, A, src, n, first, t, plain=False):
    for j in range(n):
        if first: unpack(k, A+2*j, A+2*j+1, src+j)
        elif plain:
            tt = t+2*(j & 1)
            unpack(k, tt, tt+1, src+j)
            k.e(f"v_add_f32 v{A+2*j}, v{A+2*j}, v{tt}\nv_add_f32 v{A+2*j+1}, v{A+2*j+1}, v{tt+1}")
        else:
            tt = t+2*(j & 1)
            unpack(k, tt, tt+1, src+j)
            k.e(f"v_pk_add_f32 v[{A+2*j}:{A+2*j+1}], v[{A+2*j}:{A+2*j+1}], v[{tt}:{tt+1}]")
def combine(k, P, n, cnt, d, t):
    k.e(f"v_pk_add_f32 v[{d}:{d+1}], v[{P}:{P+1}], v[{P+2}:{P+3}]")
    for i in range(2, n): k.e(f"v_pk_add_f32 v[{d}:{d+1}], v[{d}:{d+1}], v[{P+2*i}:{P+2*i+1}]")
    k.e(f"v_mul_f32 v{d}, {f2u(1.0/n)}, v{d}\nv_mov_b32 v{t+1}, 0")
    for i in range(n): k.e(f"v_sub_f32 v{t}, v{P+2*i}, v{d}\nv_fmac_f32 v{t+1}, v{t}, v{t}")
    k.e(f"v_fmac_f32 v{d+1}, {f2u(float(cnt))}, v{t+1}")
def finish_rstd(k, d, total):
    k.e(f"""v_mul_f32 v{d+1}, {f2u(1.0/total)}, v{d+1}
    v_add_f32 v{d+1}, {f2u(1e-5)}, v{d+1}
    v_rsq_f32 v{d+1}, v{d+1}
    s_nop 0
    v_mul_f32 v{d}, -v{d}, v{d+1}""")

ROTS = [(-1,0,2,-1), (-1,0,0,1), (-1,3,-1,-1), (-2,-2,-1,5), (0,0,0,0), (-2,-2,6,-2)]
def cfgs():
    c1 = Cfg(128,192,16,3,2,2,1, 2048, 6144, [(1,0),(2,0),(0,0)], True, False, orient=['T','N','T'], smode='rows', baseS=0, baseF=49152, kbase=OPT.spq, rot=ROTS[OPT.r1], pb=OPT.pb1, burst=OPT.bu, old=OPT.old)
    c2 = Cfg(128,64,16,4,4,1,2, 2048, 2048, [(0,0),(0,1)], False, False, smode='frag', auxS="sc1", rot=ROTS[OPT.r2], half=(16 if OPT.nw2 else 0), pb=OPT.pb2, cap2=True, old=OPT.old2)
    c3 = Cfg(128,128,16,4,2,2,1, 2048, 7168, [(0,0),(0,1)], False, True, smode='frag', auxS="sc1", slot0=2, rot=ROTS[OPT.r3], half=OPT.h3, pb=OPT.pb3, burst=OPT.bu, old=OPT.old)
    c4 = Cfg(128,128,32,4,2,2,1, 4096, 0, [(0,0),(0,1)], False, True, smode='rows', fmode='blk', auxF="sc1", rot=(-1,0,0,1) if OPT.own2 == 1 else ROTS[OPT.r4], own2=OPT.own2, pb=OPT.pb3, burst=OPT.bu, old=OPT.old)
    c5 = Cfg(128,64,28,4,4,1,2, 3584, 2048, [(0,0),(0,1)], False, False, smode='frag', auxS="sc1", baseF=114688, slot0=2, rot=ROTS[OPT.r5], pb=OPT.pb2, cap2=True, old=OPT.old2)
    if OPT.sk:
        c5 = Cfg(128,128,14,4,4,1,2, 3584, 2048, [(0,0),(0,1),(1,0),(1,1)], False, False, smode='frag', auxS="sc1", baseF=98304, slot0=2, rot=ROTS[1 if OPT.two & 2 else OPT.r5], half=(7 if OPT.two & 2 else (16 if OPT.nw5 else 0)), pb=OPT.pb5, cap2=(OPT.bu5 == 0), burst=OPT.bu5, old=OPT.old2, jorder=[0,1,2,3,8,9,10,11,4,5,6,7,12,13,14,15] if OPT.jo else None)
    return c1, c2, c3, c4, c5
VS=16; VF=24; VS4=36; VF4=44; VS5=52; VF5=60; VF3=68
L_PHK=0; L_VX=32768; L_KV=49152; L_Z=57344

def tail_barriers(k, c, extra=0):
    for r in range(c.NS-1):
        k.e(f"s_waitcnt vmcnt({max(c.NS-2-r,0)*c.nI + extra})\ns_barrier")

def win_loads(k, tag):
    mk_srd(k, SRD_A, P_WO, 2*MB); mk_srd(k, SRD_B, P_WIN, 7*MB)
    n = 8
    k.e(f"""s_lshr_b32 s{S_T}, s2, 3
    s_lshl_b32 s{S_T+2}, s{S_T}, 2
    s_add_u32 s{S_T+2}, s{S_T+2}, s{S_Q}
    s_and_b32 s{S_T+3}, s2, 1""")
    if OPT.l2 & 1:
        k.e(f"""s_lshl_b32 s{S_T+1}, s{S_T+2}, 14
        s_lshl_b32 s{S_T+4}, s{S_T+3}, 10
        s_add_u32 s{S_T+1}, s{S_T+1}, s{S_T+4}
        v_lshrrev_b32 v3, 3, v1
        v_lshlrev_b32 v3, 11, v3
        v_and_b32 v4, 7, v1
        v_lshl_add_u32 v3, v4, 7, v3
        buffer_load_dword v250, v3, {srd(SRD_A)}, s{S_T+1} offen""")
    else:
        k.e(f"""s_lshl_b32 s{S_T+1}, s2, 2
        s_add_u32 s{S_T+1}, s{S_T+1}, s{S_Q}
        s_lshl_b32 s{S_T+1}, s{S_T+1}, 11
        v_lshlrev_b32 v3, 7, v1
        s_mov_b64 exec, 0xffff
        buffer_load_dword v250, v3, {srd(SRD_A)}, s{S_T+1} offen
        s_mov_b64 exec, -1""")
    n += 1
    k.e(f"""s_lshr_b32 s{S_T+4}, s{S_T}, 1
    s_cmp_ge_u32 s{S_T+4}, 7
    s_cselect_b32 s{S_T+5}, 7, 0
    s_add_u32 s{S_T+4}, s{S_T+4}, s{S_T+5}
    s_mul_i32 s{S_T+5}, s{S_T+3}, 7
    s_add_u32 s{S_CW}, s{S_T+4}, s{S_T+5}
    s_and_b32 s{S_T+5}, s2, 6
    s_and_b32 s{S_T+6}, s{S_T}, 1
    s_add_u32 s{S_CW+1}, s{S_T+5}, s{S_T+6}
    s_lshl_b32 s{S_T+5}, s{S_CW+1}, 2
    s_add_u32 s{S_T+5}, s{S_T+5}, s{S_Q}
    s_mul_i32 s{S_T+5}, s{S_T+5}, {32*7168}
    s_lshl_b32 s{S_T+4}, s{S_CW}, 8
    s_add_u32 s{S_T+5}, s{S_T+5}, s{S_T+4}
    s_cmp_ge_u32 s2, 224
    s_cselect_b32 s{S_T+5}, {7*MB}, s{S_T+5}
    v_lshrrev_b32 v3, 4, v1
    v_mul_u32_u24 v3, 7168, v3
    v_and_b32 v4, 15, v1
    v_lshl_add_u32 v5, v4, 4, v3""")
    for j in range(8):
        k.e(f"buffer_load_dwordx4 v[{192+4*j}:{195+4*j}], v5, {srd(SRD_B)}, s{S_T+5} offen\ns_add_u32 s{S_T+5}, s{S_T+5}, {4*7168}")
    if OPT.l2 & 2:
        k.e(f"""v_min_u32 v4, 13, v4
        v_lshl_add_u32 v3, v4, 7, v3
        s_mul_i32 s{S_T+1}, s{S_T+2}, {4*7168}
        s_mul_i32 s{S_T+4}, s{S_T+3}, 1792
        s_add_u32 s{S_T+1}, s{S_T+1}, s{S_T+4}
        s_add_u32 s{S_T+1}, s{S_T+1}, 3584
        buffer_load_dword v251, v3, {srd(SRD_B)}, s{S_T+1} offen
        s_add_u32 s{S_T+1}, s{S_T+1}, {512*7168}
        buffer_load_dword v252, v3, {srd(SRD_B)}, s{S_T+1} offen""")
        n += 2
    return n
def win_reduce(k):
    for j in range(8): acc_bf16(k, 224, 192+4*j, 4, j == 0, 232)
    xswap_sum(k, 224, 232, 8, 32)
    k.e(f"""s_lshl_b32 s{S_T}, s{S_Q}, 10
    s_add_u32 s{S_T}, s{S_T}, {L_CW}
    v_and_b32 v4, 31, v1
    v_lshl_add_u32 v4, v4, 5, s{S_T}
    ds_write_b128 v4, v[224:227]
    ds_write_b128 v4, v[228:231] offset:16
    s_waitcnt lgkmcnt(0)""")

def pf_loop(k, srdn, n, stride):
    t = k.lab("pf")
    k.e(f"s_mov_b32 s{S_CNT}, {n}\n{t}:")
    k.e(f"buffer_load_dword v3, v2, {srd(srdn)}, s{S_T+4} offen\ns_add_u32 s{S_T+4}, s{S_T+4}, {stride}")
    k.e(f"s_waitcnt vmcnt({OPT.pfd})\ns_sub_u32 s{S_CNT}, s{S_CNT}, 1\ns_cmp_lg_u32 s{S_CNT}, 0\ns_cbranch_scc1 {t}")

def helper_pf(k, role):
    nw = OPT.pf
    if OPT.tlb and role == 'c':
        st = 1 << OPT.tlb
        mk_srd(k, SRD_A, P_WOUT, 1792*2048); mk_srd(k, SRD_B, P_WSP, 8*MB)
        k.e(f"""s_lshr_b32 s{S_T}, s2, 3
        s_sub_u32 s{S_T}, s{S_T}, 28
        s_lshl_b32 s{S_T}, s{S_T}, 2
        s_add_u32 s{S_T}, s{S_T}, s{S_WAVE}
        s_lshl_b32 s{S_T+4}, s{S_T}, {OPT.tlb+6}
        v_and_b32 v3, 31, v1
        v_lshlrev_b32 v3, 7, v3
        v_lshlrev_b32 v2, {OPT.tlb}, v1
        v_add_u32 v2, v2, v3""")
        pf_loop(k, SRD_B, max(8*MB//(st*1024), 1), st*1024)
        k.e(f"s_lshl_b32 s{S_T+4}, s{S_T}, {OPT.tlb+6}")
        pf_loop(k, SRD_A, max(4*MB//(st*1024), 1), st*1024)
        k.e("s_waitcnt vmcnt(0)")
        return
    if not nw or role != 'c': return
    k.e(f"s_cmp_ge_u32 s{S_WAVE}, {nw}\ns_cbranch_scc1 L_nopf")
    mk_srd(k, SRD_A, P_WOUT, 1792*2048); mk_srd(k, SRD_B, P_WSP, 8*MB)
    k.e(f"""s_sub_u32 s{S_T}, s2, 224
    s_mul_i32 s{S_T}, s{S_T}, {nw}
    s_add_u32 s{S_T}, s{S_T}, s{S_WAVE}
    s_lshl_b32 s{S_T+4}, s{S_T}, 13
    v_lshlrev_b32 v2, 7, v1""")
    for _ in range(OPT.pfw): k.e("s_sleep 127")
    pf_loop(k, SRD_B, 32//nw, 8192*32*nw)
    stamp(k, 12)
    k.e(f"s_lshl_b32 s{S_T+4}, s{S_T}, 13")
    pf_loop(k, SRD_A, -(-14//nw), 8192*32*nw)
    k.e("s_waitcnt vmcnt(0)\nL_nopf:")

def inv_pos(k, rot):
    inv = [0]*4
    for u, d in enumerate(rot): inv[(u+d) & 3] = -d
    packed = sum(((d+8) & 15) << (4*u) for u, d in enumerate(inv))
    k.e(f"""s_sub_u32 s{S_T}, s{S_M}, s{S_PH}
    s_and_b32 s{S_T}, s{S_T}, 3
    s_lshl_b32 s{S_T}, s{S_T}, 2
    s_lshr_b32 s{S_T}, {packed}, s{S_T}
    s_and_b32 s{S_T}, s{S_T}, 15
    s_add_u32 s{S_T}, s{S_T}, s{S_M}
    s_sub_u32 s{S_T}, s{S_T}, 8
    s_and_b32 s{S_KB}, s{S_T}, 15""")

def loader(k):
    c1, c2, c3, c4, c5 = cfgs()
    LP = LProg(k)
    def start(c, t=0): return [f"s_mov_b32 s{S_TAU}, {t}", f"s_mov_b32 s{S_SLOT}, {(t+c.slot0) % c.NS}"]
    def W_(n): return f"s_waitcnt vmcnt({n})\ns_barrier"
    k.e(f"s_lshl_b32 s{S_M0W}, s{S_LW}, 10")
    c = c1; g1 = Seg(c1, VS, VF)
    inv_pos(k, c.rot)
    k.e(f"s_lshl_b32 s{S_T0}, s{S_N}, 7")
    loader_voff_S(k, c, VS)
    loader_voff_F(k, c, VF, S_T0, lambda P: P*2048)
    LP.prep(g1, start(c))
    k.e("s_waitcnt lgkmcnt(0)")
    mk_srd(k, SRD_S, P_X, 4*MB); mk_srd(k, SRD_F, P_WQKV, 6*MB)
    stamp(k, 0); stamp(k, 1)
    LP.stage(g1); LP.stage(g1)
    LP.stage(g1, sync=W_(c.nI))
    mk_srd(k, SRD_W, P_WS, WS_END)
    if OPT.pads:
        for d in (SRD_A, SRD_B, SRD_D): mk_srd(k, d, P_X, 0)
    if OPT.wl < 13:
        LP.run(g1, OPT.wl+1, c.nI)
        if OPT.pads: k.e("s_branch L_ld\nALIGN4K\nL_ld:")
        n = win_loads(k, "l")
        LP.prep(g1)
        LP.stage(g1, sync=W_(c.nI+n), stampit=True)
        LP.stage(g1, sync=W_(c.nI+n), stampit=True)
        LP.run(g1, 10-OPT.wl, c.nI)
        k.e(W_(c.nI) + "\n" + W_(0))
    else:
        LP.run(g1, 13, c.nI)
        if OPT.pads: k.e("s_branch L_ld\nALIGN4K\nL_ld:")
        k.e(W_(c.nI)); itstamp(k)
        n = win_loads(k, "l")
        k.e(W_(n)); itstamp(k)
    k.e(f"""s_lshl_b32 s{S_T+12}, s{S_N}, 4
    s_add_u32 s{S_T+12}, s{S_T+12}, s{S_M}
    s_lshl_b32 s{S_T+14}, s{S_T+12}, 4
    s_add_u32 s{S_T+14}, s{S_T+14}, {WS_ZF}
    s_lshl_b32 s{S_T+12}, s{S_T+12}, 8
    s_add_u32 s{S_T+12}, s{S_T+12}, {WS_ZP}
    v_and_b32 v13, 15, v1
    v_lshlrev_b32 v13, 4, v13""")
    tile_map(k, 4, 8, 16)
    c = c2; g2 = Seg(c2, VS, VF)
    mk_srd(k, SRD_S, P_WS, 4*MB, WS_O); mk_srd(k, SRD_F, P_WO, 2*MB)
    k.e(f"s_lshl_b32 s{S_T0}, s{S_N}, 7")
    loader_voff_S(k, c, VS); loader_voff_F(k, c, VF, S_T0, lambda P: 0)
    k.e("s_barrier"); itstamp(k)
    if OPT.tw:
        mk_srd(k, SRD_D, P_OUT, 4*MB)
        k.e(f"""s_lshr_b32 s{S_T}, s2, 3
        s_lshl_b32 s{S_T}, s{S_T}, 1
        s_add_u32 s{S_T}, s{S_T}, s{S_LW}
        s_and_b32 s{S_T}, s{S_T}, {(1 << (20-OPT.tw)) - 1}
        s_lshl_b32 s{S_T}, s{S_T}, {OPT.tw}
        v_lshlrev_b32 v3, 20, v1
        v_lshl_add_u32 v3, v1, 7, v3
        buffer_load_dword v251, v3, {W}, s{S_T} offen
        buffer_load_dword v252, v3, {srd(SRD_D)}, s{S_T} offen""")
    k.e("s_barrier")
    issue_first(k, c, VS, VF, "F", pbarrier=False)
    k.e("s_barrier")
    grp(k, 1)
    loader_voff_S(k, c5, VS5); loader_voff_F(k, c5, VF5, S_T0, lambda P: 0)
    k.e(f"""s_and_b32 s{S_T}, s2, 1
    s_mul_i32 s{S_T+1}, s{S_T}, {(7 if OPT.two & 2 else 14)*4096}
    s_mul_i32 s{S_T+2}, s{S_T}, {(7 if OPT.two & 2 else 14)*64*2048}""")
    for i in range(c5.nS): k.e(f"v_add_u32 v{VS5+i}, s{S_T+1}, v{VS5+i}")
    for i in range(c5.nF):
        if i < 4: k.e(f"v_xor_b32 v{VF5+i}, 1024, v{VF5+i}")
        k.e(f"v_add_u32 v{VF5+i}, s{S_T+2}, v{VF5+i}")
    k.e(f"s_sub_u32 s{S_T0}, s{S_N}, s{S_T}\ns_lshl_b32 s{S_T0}, s{S_T0}, 8\ns_mov_b32 s{S_FB}, 3584")
    loader_voff_F(k, c3, VF3, S_T0, lambda P: P*128)
    k.e(f"s_cmp_eq_u32 s{S_LW}, 0\ns_cbranch_scc1 L_l_noz\ns_sleep {max(OPT.kvslp-8, 1)}")
    def zg(): k.e(f"buffer_load_dwordx4 v[128:131], v13, {W}, s{S_T+12} offen sc1")
    validated(k, zg, range(128, 132), 3, pre=False)
    acc_bf16(k, 136, 128, 4, True, 132)
    for sh in (8, 4, 2, 1): ror_sum(k, 136, 8, sh)
    for i in range(4): k.e(f"v_cvt_pk_bf16_f32 v{132+i}, v{136+2*i}, v{137+2*i}")
    k.e(f"s_mov_b64 exec, 1\nbuffer_store_dwordx4 v[132:135], v13, {W}, s{S_T+14} offen sc1\ns_mov_b64 exec, -1\nL_l_noz:")
    bars(k, 2)
    k.e(f"s_waitcnt vmcnt({c.NS*c.nF})")
    win_reduce(k)
    LP.prep(g2, start(c))
    LP.stage(g2, "S", sync="s_barrier")
    LP.stage(g2, "S")
    LP.stage(g2, "S", sync=W_(c.nS))
    LP.stage(g2, "S")
    LP.stage(g2, sync=W_(2*c.nS), stampit=True)
    LP.stage(g2, sync=W_(c.nS+c.nI), stampit=True)
    g3 = Seg(c3, VS, VF3, True, SRD_S, SRD_B); g4 = Seg(c4, VS4, VF4, False, SRD_A, SRD_D); g5 = Seg(c5, VS5, VF5)
    LP.run(g2, 10, 2*c.nI, nxt=g3, pre=start(c3))
    k.e("s_cmp_ge_u32 s2, 224\ns_cbranch_scc1 L_ld_helper")
    c = c3
    LP.stage(g3, "F", sync=W_(2*c2.nI))
    LP.stage(g3, "F", sync=W_(c2.nI+c.nF), nxt=False)
    k.e(W_(2*c.nF) + "\ns_barrier")
    tile_map(k, 4, 7, 14)
    mk_srd(k, SRD_S, P_WS, 4*MB, WS_H); mk_srd(k, SRD_A, P_WSP, 8*MB); mk_srd(k, SRD_D, P_WS, 7*MB, WS_Z2N)
    if not OPT.two & 1: k.e("s_barrier")
    loader_voff_S(k, c, VS); loader_voff_S(k, c4, VS4); loader_voff_F(k, c4, VF4)
    if OPT.own2 == 2: inv_pos(k, c4.rot)
    else: k.e(f"s_and_b32 s{S_KB}, s{S_M}, 3\ns_lshl_b32 s{S_KB}, s{S_KB}, 1\ns_lshr_b32 s93, s{S_M}, 2\ns_lshl_b32 s93, s93, 3")
    LP.prep(g3, start(c))
    ITST[1] = 253
    if ITST[0]: k.e("s_mov_b32 s97, 0")
    if OPT.two & 1: if_par(k, 0, "s_barrier")
    LP.stage(g3, "S", sync="s_barrier")
    LP.stage(g3, "S")
    if OPT.two & 1: if_par(k, 1, "s_barrier")
    LP.stage(g3, sync=W_(c.nS))
    LP.run(g3, 13, c.nI, nxt=g3, pre=[f"s_mov_b32 s{S_TAU}, 0", f"s_mov_b32 s{S_FB}, 0"])
    LP.run(g3, 3, c.nI, nxt=g3)
    LP.stage(g3)
    if OPT.gb: k.e("s_barrier")
    LP.run(g3, 12, 2*c.nI, nxt=g4, pre=[f"s_mov_b32 s{S_TAU}, 0"])
    mk_srd(k, SRD_S, P_WS, 7*MB, WS_U); mk_srd(k, SRD_F, P_WOUT, 1792*2048)
    c = c4
    LP.run(g4, 32, 2*c.nI, nxt=g5, pre=start(c5))
    LP.stage(g5, "F", sync=W_(2*c.nI))
    LP.stage(g5, "F", sync=W_(c.nI+c5.nF), nxt=False)
    k.e(W_(2*c5.nF))
    bars(k, 1 if OPT.two & 2 else 2)
    k.e("L_ld_p5:")
    ITST[1] = 254
    if ITST[0]: k.e("s_mov_b32 s97, 32")
    c = c5
    LP.prep(g5, start(c))
    if OPT.two & 2: if_par(k, 0, "s_barrier")
    LP.stage(g5, "S", sync="s_barrier")
    LP.stage(g5, "S")
    if OPT.two & 2: if_par(k, 1, "s_barrier")
    LP.stage(g5, sync=W_(c.nS))
    LP.run(g5, 11, c.nI)
    k.e(W_(c.nI) + "\n" + W_(0) + "\ns_barrier")
    k.e("s_branch L_fin")
    k.e("L_ld_helper:")
    k.e(W_(2*c2.nI) + "\n" + W_(c2.nI) + "\n" + W_(0))
    bars(k, 3)
    mk_srd(k, SRD_S, P_WS, 7*MB, WS_U); mk_srd(k, SRD_F, P_WOUT, 1792*2048)
    issue_first(k, c5, VS5, VF5, "F", pbarrier=False, t1=2)
    k.e("s_branch L_ld_p5")

def spread(k, fn, nbar):
    t = Kern(k.name); t.uid = k.uid
    fn(t); k.uid = t.uid
    L = [x.strip() for x in t.L]
    assert not any(x.endswith(":") for x in L)
    wt = lambda x: 10 if x.startswith("buffer_") else (1 if x.startswith(("v_", "ds_")) else 0.25)
    tot = sum(map(wt, L)); acc = 0; nb = 0
    low = OPT.vprio and sum(x.startswith("v_") for x in L) > 20
    if low: k.e("s_setprio 0")
    for x in L:
        k.e(x); acc += wt(x)
        if nb < nbar-1 and acc >= tot*(nb+1)/nbar - 1e-9:
            k.e("s_barrier"); nb += 1
    if low: k.e(f"s_setprio {OPT.pa}")
    while nb < nbar:
        k.e("s_barrier"); nb += 1

_carry = []
def merge(k, vm, va, nbar, share, hook=None):
    def cap(fns):
        t = Kern(k.name); t.uid = k.uid
        for f in fns: f(t)
        k.uid = t.uid
        return [x.strip() for x in t.L]
    M = cap(vm); _carry.extend(cap(va))
    nv = len(_carry) if share >= 1 else int(len(_carry)*share)
    V = _carry[:nv]; del _carry[:nv]
    nm = sum(x.startswith("buffer_") for x in M)
    mi = 0; seen = 0; full = True
    for b in range(nbar):
        tgt = nm*(b+1)/nbar
        while mi < len(M) and (seen < tgt or not full or b == nbar-1):
            x = M[mi]; k.e(x); mi += 1
            if x.startswith("buffer_"): seen += 1
            if "exec" in x.split(",")[0]: full = x.replace(" ", "") == "s_mov_b64exec,-1"
        for x in V[len(V)*b//nbar: len(V)*(b+1)//nbar]: k.e(x)
        k.e("s_barrier")
        if hook: hook(b)

def combine_half(k, P, stride, n, ntot, cnt, d, t):
    k.e(f"v_add_f32 v{d}, v{P}, v{P+stride}\nv_add_f32 v{d+1}, v{P+1}, v{P+stride+1}")
    for i in range(2, n): k.e(f"v_add_f32 v{d}, v{d}, v{P+stride*i}\nv_add_f32 v{d+1}, v{d+1}, v{P+stride*i+1}")
    if ntot != n: xswap_sum1(k, d, t)
    k.e(f"v_mul_f32 v{d}, {f2u(1.0/ntot)}, v{d}\nv_sub_f32 v{t}, v{P}, v{d}\nv_mul_f32 v{t+1}, v{t}, v{t}")
    for i in range(1, n): k.e(f"v_sub_f32 v{t}, v{P+stride*i}, v{d}\nv_fmac_f32 v{t+1}, v{t}, v{t}")
    k.e(f"v_fmac_f32 v{d+1}, {f2u(float(cnt))}, v{t+1}")
    if ntot != n: xswap_sum1(k, d+1, t)

def code_touch(k, lo, first, nlines):
    if not OPT.ct: return
    here = k.lab("pc")
    k.e(f"""s_getpc_b64 s[{S_X}:{S_X+1}]
    {here}:
    s_add_u32 s{S_X}, s{S_X}, {lo}-{here}
    s_addc_u32 s{S_X+1}, s{S_X+1}, {'-1' if lo == KNAME else '0'}
    s_lshr_b32 s{S_T}, s2, 3
    s_sub_u32 s{S_T}, s{S_T}, {first}
    s_lshl_b32 s{S_T}, s{S_T}, 1
    s_add_u32 s{S_T}, s{S_T}, s{S_LW}
    s_mul_i32 s{S_T}, s{S_T}, {nlines*128}
    v_min_u32 v249, {nlines-1}, v1
    v_lshlrev_b32 v249, 7, v249
    v_add_u32 v249, s{S_T}, v249
    v_min_u32 v249, L_end-{lo}, v249
    global_load_dword v250, v249, s[{S_X}:{S_X+1}]""")

def xp_init(k):
    if not OPT.sk: return
    k.e(f"""s_lshl_b32 s{S_T}, s2, 14
    s_lshl_b32 s{S_T+1}, s{S_LW}, 13
    s_add_u32 s{S_T}, s{S_T}, s{S_T+1}
    s_add_u32 s{S_T}, s{S_T}, {WS_XP}
    s_add_u32 s{S_T+1}, s{S_T}, 4096""")
    for i in range(8): k.e(f"buffer_store_dwordx4 v[44:47], v2, {W}, s{S_T+(i>>2)} offen offset:{(i&3)*1024} sc1")
    k.e("s_waitcnt vmcnt(0)")
def u_cnt(k):
    cnt_addr(k, 9, F_U, S_M)
    if OPT.sk: k.e(f"s_and_b32 s{S_T}, s2, 1\ns_lshl_b32 s{S_T}, s{S_T}, 7\nv_add_u32 v9, s{S_T}, v9")

def aux(k):
    c1, c2, c3, c4, c5 = cfgs()
    a = S_LW
    k.e(f"""s_lshl_b32 s{S_T}, s{S_M}, 7
    s_lshl_b32 s{S_T+1}, s{S_N}, 3
    s_add_u32 s{S_T}, s{S_T}, s{S_T+1}
    s_lshl_b32 s{S_T+1}, s{a}, 2
    s_add_u32 s{S_T}, s{S_T}, s{S_T+1}
    v_lshrrev_b32 v14, 4, v1
    v_add_u32 v14, s{S_T}, v14
    v_and_b32 v3, 15, v1
    v_lshlrev_b32 v3, 4, v3
    v_lshl_add_u32 v3, v14, 11, v3
    s_waitcnt lgkmcnt(0)""")
    mk_srd(k, SRD_B, P_X, 4*MB)
    XR = 192 if OPT.xa else 64
    if OPT.xa: k.e(f"s_sleep {OPT.xa}")
    for j in range(8): k.e(f"buffer_load_dwordx4 v[{XR+4*j}:{XR+3+4*j}], v3, {srd(SRD_B)}, 0 offen offset:{256*j}")
    mk_srd(k, SRD_W, P_WS, WS_END); mk_srd(k, SRD_A, P_WPHI, 65536); mk_srd(k, SRD_D, P_DBG, 256)
    if OPT.pads:
        for d in (SRD_S, SRD_F): mk_srd(k, d, P_X, 0)
    stamp(k, 0)
    q = OPT.spq
    k.e(f"""v_lshlrev_b32 v2, 4, v1
    v_mov_b32 v11, 1
    v_mov_b32 v44, -1
    v_mov_b32 v45, -1
    v_mov_b32 v46, -1
    v_mov_b32 v47, -1
    v_lshrrev_b32 v4, 5, v1
    v_lshlrev_b32 v4, 13, v4
    v_and_b32 v5, 31, v1
    v_lshl_add_u32 v4, v5, 4, v4
    v_bfe_u32 v12, v1, 2, 2
    v_min_u32 v12, 2, v12
    v_lshlrev_b32 v12, 13, v12
    v_lshrrev_b32 v5, 4, v1
    v_lshl_add_u32 v12, v5, 11, v12
    v_and_b32 v5, 3, v1
    v_lshl_add_u32 v12, v5, 4, v12
    s_mov_b32 s{S_T}, {q if q >= 0 else 's93'}
    s_sub_u32 s{S_T+1}, s{S_T}, 3
    s_cmp_ge_u32 s{S_T}, 3
    s_cselect_b32 s{S_T}, s{S_T+1}, s{S_T}
    s_mul_i32 s{S_T}, s{S_T}, {c1.slotF}
    s_add_u32 s{S_T}, s{S_T}, {c1.baseF}
    v_add_u32 v12, s{S_T}, v12
    v_bfe_u32 v13, v1, 2, 2
    v_lshl_add_u32 v12, v13, 7, v12
    v_lshrrev_b32 v13, 1, v13
    v_xor_b32 v13, s{a}, v13
    v_lshl_add_u32 v24, v13, 6, v12
    v_xor_b32 v25, 128, v24
    v_xor_b32 v26, 320, v24
    v_xor_b32 v27, 448, v24
    v_lshlrev_b32 v14, 2, v14""")
    X = 128
    for j in range(0 if OPT.xa else 8):
        k.e(f"s_waitcnt vmcnt({7-j})")
        for i in range(4*j, 4*j+4):
            unpack(k, X+2*i, X+2*i+1, 64+i)
            t = 32+2*(i & 1)
            if i >= 2: k.e(f"v_pk_add_f32 v[{t}:{t+1}], v[{X+2*i-4 if i < 4 else t}:{X+2*i-3 if i < 4 else t+1}], v[{X+2*i}:{X+2*i+1}]")
    stamp(k, 10)
    k.e("s_barrier")
    def init(k):
        k.e(f"""s_mov_b32 s{S_T+14}, {WS_XS}
        s_mov_b32 s{S_T+15}, {WS_XS+8192}
        s_mov_b32 exec_lo, 0x10001
        s_mov_b32 exec_hi, 0x10001
        buffer_store_dword v44, v14, {W}, s{S_T+14} offen sc1
        buffer_store_dword v44, v14, {W}, s{S_T+15} offen sc1
        s_mov_b64 exec, -1
        s_lshl_b32 s{S_T}, s{S_N}, 17
        s_lshl_b32 s{S_T+1}, s{S_M}, 9
        s_add_u32 s{S_T}, s{S_T}, s{S_T+1}
        s_lshl_b32 s{S_T+1}, s{a}, 16
        s_add_u32 s{S_T}, s{S_T}, s{S_T+1}
        s_add_u32 s{S_T}, s{S_T}, {WS_KVP}""")
        for x in range(4): k.e(f"buffer_store_dwordx4 v[44:47], v4, {W}, s{S_T} offen sc1\ns_add_u32 s{S_T}, s{S_T}, 16384")
        k.e(f"""s_lshl_b32 s{S_T+12}, s{S_N}, 4
        s_add_u32 s{S_T+12}, s{S_T+12}, s{S_M}
        s_lshl_b32 s{S_T+12}, s{S_T+12}, 1
        s_add_u32 s{S_T+12}, s{S_T+12}, s{a}
        s_mul_i32 s{S_T+12}, s{S_T+12}, 384
        s_add_u32 s{S_T+12}, s{S_T+12}, {WS_CQP}
        s_mov_b64 exec, 0xffffff
        buffer_store_dwordx4 v[44:47], v2, {W}, s{S_T+12} offen sc1
        s_lshl_b32 s{S_T}, s2, 10
        s_add_u32 s{S_T}, s{S_T}, {WS_HST}
        s_mul_i32 s{S_T+1}, s2, 528
        s_add_u32 s{S_T+1}, s{S_T+1}, {WS_KVF}
        s_mul_i32 s{S_T+2}, s2, 896
        s_add_u32 s{S_T+3}, s{S_T+2}, {WS_CSP}
        s_add_u32 s{S_T+2}, s{S_T+2}, {WS_ZST}
        s_mov_b32 s{S_T+4}, 0xffffff
        s_cmp_eq_u32 s{a}, 0
        s_cselect_b32 s{S_T}, s{S_T}, s{S_T+2}
        s_cselect_b32 s{S_T+1}, s{S_T+1}, s{S_T+3}
        s_cselect_b32 s{S_T+5}, -1, s{S_T+4}
        s_cselect_b32 s{S_T+6}, 1, s{S_T+4}
        s_mov_b32 exec_lo, -1
        s_mov_b32 exec_hi, s{S_T+5}
        buffer_store_dwordx4 v[44:47], v2, {W}, s{S_T} offen sc1
        s_mov_b32 exec_hi, s{S_T+6}
        buffer_store_dwordx4 v[44:47], v2, {W}, s{S_T+1} offen sc1
        s_mov_b64 exec, -1
        s_mul_i32 s{S_T}, s2, {FLS}
        s_add_u32 s{S_T}, s{S_T}, {WS_FLAG}
        s_cmp_lt_u32 s2, 64
        s_cselect_b32 s{S_T}, s{S_T}, {WS_END}
        s_lshl_b32 s{S_T+1}, s2, 8
        s_add_u32 s{S_T+1}, s{S_T+1}, {WS_ZP}
        s_cmp_eq_u32 s{a}, 0
        s_cselect_b32 s{S_T}, s{S_T}, s{S_T+1}
        s_cselect_b32 s{S_T+1}, 0, -1
        v_mov_b32 v48, s{S_T+1}
        v_lshlrev_b32 v5, 2, v1
        buffer_store_dword v48, v5, {W}, s{S_T} offen sc1""")
    def xs2(k):
        if OPT.xa:
            for i in range(32):
                unpack(k, X+2*i, X+2*i+1, XR+i)
                t = 32+2*(i & 1)
                if i >= 2:
                    for e_ in range(2): k.e(f"v_add_f32 v{t+e_}, v{X+2*i-4+e_ if i < 4 else t+e_}, v{X+2*i+e_}")
        k.e("v_add_f32 v32, v32, v34\nv_add_f32 v33, v33, v35\nv_add_f32 v32, v32, v33")
        for sh in (8, 4, 2, 1): ror_sum(k, 32, 1, sh)
        k.e(f"v_mul_f32 v32, {f2u(1/1024.)}, v32")
        for i in range(64):
            d = 40+(i & 3); t = 34+(i & 3)
            k.e(f"v_sub_f32 v{d}, v{X+i}, v32")
            k.e(f"v_mul_f32 v{t}, v{d}, v{d}" if i < 4 else f"v_fmac_f32 v{t}, v{d}, v{d}")
        k.e("v_add_f32 v34, v34, v35\nv_add_f32 v36, v36, v37\nv_add_f32 v33, v34, v36")
        for sh in (8, 4, 2, 1): ror_sum(k, 33, 1, sh)
        finish_rstd(k, 32, 1024)
    def qld(k):
        k.e(f"""s_lshl_b32 s{S_T}, s{S_N}, 12
        s_lshl_b32 s{S_T+1}, s{a}, 11
        s_add_u32 s{S_T}, s{S_T}, s{S_T+1}
        s_add_u32 m0, s{S_T+1}, {L_WPHI}
        s_nop 0
        buffer_load_dwordx4 v2, {srd(SRD_A)}, s{S_T} offen lds
        buffer_load_dwordx4 v2, {srd(SRD_A)}, s{S_T} offen offset:1024 lds""")
    def sprd(b):
        if b == q-1 or (q < 0 and OPT.q0 <= b+1 <= OPT.q0 + 7*OPT.qm//8):
            if q < 0: k.e(f"s_cmp_lg_u32 s93, {b+1}\ns_cbranch_scc1 L_nsp{b+1}")
            for j in range(16):
                k.e(f"ds_read_b128 v[{64+4*j}:{67+4*j}], v{24 + (j&3)} offset:{(j>>2)*512}")
                if j == 7:
                    k.e("s_waitcnt lgkmcnt(4)")
                    for r_ in range(24, 28): k.e(f"v_xor_b32 v{r_}, 32, v{r_}")
            k.e("s_waitcnt lgkmcnt(0)")
            if q < 0: k.e(f"L_nsp{b+1}:")
    assert q <= 5
    sprd(-1)
    if OPT.qpf:
        mk_srd(k, SRD_B, P_WQKV, 6*MB)
        k.e(f"""s_lshl_b32 s{S_T}, s2, 1
        s_add_u32 s{S_T}, s{S_T}, s{a}
        s_mul_i32 s{S_T}, s{S_T}, {96*128}
        v_lshlrev_b32 v3, 7, v1
        buffer_load_dword v250, v3, {srd(SRD_B)}, s{S_T} offen
        s_add_u32 s{S_T}, s{S_T}, 4096
        buffer_load_dword v251, v3, {srd(SRD_B)}, s{S_T} offen""")
    if OPT.xa: k.e("s_waitcnt vmcnt(0)")
    A = 128
    arr = f"""s_cmp_lg_u32 s{a}, 0
    s_cbranch_scc1 L_a_noarr
    s_and_b32 s{S_T}, s2, 7
    s_lshl_b32 s{S_T}, s{S_T}, 5
    v_mov_b32 v4, s{S_T}
    s_mov_b64 exec, 1
    buffer_atomic_add v11, v4, {srd(SRD_D)}, 0 offen sc1
    s_mov_b64 exec, -1
    L_a_noarr:"""
    xst = f"""s_mov_b32 exec_lo, 0x10001
    s_mov_b32 exec_hi, 0x10001
    buffer_store_dword v32, v14, {W}, s{S_T+14} offen sc1
    buffer_store_dword v33, v14, {W}, s{S_T+15} offen sc1
    s_mov_b64 exec, -1"""
    def csum(k):
        for j in range(16): acc_bf16(k, A, 64+4*j, 4, j == 0, 50, plain=True)
        xswap_sum(k, A, 160, 8, 16); xswap_sum(k, A, 160, 8, 32)
    cst = f"""v_lshlrev_b32 v4, 5, v1
    s_mov_b64 exec, 0xfff
    buffer_store_dwordx4 v[{A}:{A+3}], v4, {W}, s{S_T+12} offen sc1
    buffer_store_dwordx4 v[{A+4}:{A+7}], v4, {W}, s{S_T+12} offen offset:16 sc1
    s_mov_b64 exec, -1
    v_lshlrev_b32 v10, 5, v1"""
    def before_bar(text):
        b = k.L.pop(); k.e(text); k.L.append(b)
    if not OPT.late:
        code_touch(k, KNAME, 0, 11)
        merge(k, [init], [xs2], 2, 0.3, hook=sprd)
        merge(k, [], [], 1, 0.4); sprd(2)
        merge(k, [], [], 1, 0.67)
        before_bar("s_waitcnt vmcnt(0)")
        k.e(arr); sprd(3)
        merge(k, [qld], [], 1, 1.0)
        k.e(xst); sprd(4)
        k.e("s_barrier")
        if OPT.wa == 5: win_loads(k, "a")
        merge(k, [], [csum], 5, 1.0, hook=lambda b: win_loads(k, "a") if b+6 == OPT.wa and b < 4 else None)
    else:
        merge(k, [], [xs2], 3, 0.8, hook=sprd)
        code_touch(k, KNAME, 0, 11)
        merge(k, [init], [], 3, 1.0, hook=lambda b: sprd(b+3) if b < 2 else None)
        merge(k, [], [csum], 2, 0.4)
        before_bar("s_waitcnt vmcnt(0)")
        k.e(arr); k.e(xst)
        merge(k, [qld], [], 3, 1.0)
    before_bar(cst)
    sample(k, 10, SRD_D)
    k.e(f"""s_lshl_b32 s{S_T+14}, s{a}, 13
    s_lshl_b32 s{S_T+1}, s{S_M}, 9
    s_add_u32 s{S_T+14}, s{S_T+14}, s{S_T+1}
    s_add_u32 s{S_T+14}, s{S_T+14}, {WS_XS}
    s_mul_i32 s{S_T+12}, s{S_N}, {16*768}
    s_mul_i32 s{S_T+13}, s{a}, 384
    s_add_u32 s{S_T+12}, s{S_T+12}, s{S_T+13}
    s_add_u32 s{S_T+12}, s{S_T+12}, {WS_CQP}
    v_and_b32 v12, 31, v1
    v_min_u32 v12, 23, v12
    v_lshlrev_b32 v12, 4, v12
    v_lshrrev_b32 v13, 5, v1
    v_mul_u32_u24 v13, 768, v13
    v_add_u32 v13, v13, v12
    v_lshlrev_b32 v5, 3, v1""")
    k.e("s_barrier")
    poll(k, 10, 8, SRD_D, 32, pre=True)
    stamp(k, 1)
    k.e("s_barrier")
    def cqg():
        k.e(f"s_mov_b32 s{S_T}, s{S_T+12}")
        for i in range(8):
            k.e(f"buffer_load_dwordx4 v[{64+4*i}:{67+4*i}], v13, {W}, s{S_T} offen offset:{(i&1)*1536} sc1")
            if i & 1: k.e(f"s_add_u32 s{S_T}, s{S_T}, 3072")
        k.e(f"buffer_load_dwordx2 v[96:97], v5, {W}, s{S_T+14} offen sc1")
    cqg()
    k.e("s_barrier")
    k.e("s_waitcnt vmcnt(0)")
    validated(k, cqg, range(64, 98), 3)
    for i in range(1, 8):
        for j in range(4): k.e(f"v_add_f32 v{64+j}, v{64+j}, v{64+4*i+j}")
    k.e("s_barrier")
    xswap_sum(k, 64, 68, 4, 32)
    k.e(f"""s_add_u32 s{S_T+13}, s{S_T+13}, {L_CQ}
    v_add_u32 v3, s{S_T+13}, v12
    ds_write_b128 v3, v[64:67]
    s_lshl_b32 s{S_T}, s{a}, 9
    s_add_u32 s{S_T}, s{S_T}, {L_XS}
    v_add_u32 v5, s{S_T}, v5
    ds_write_b64 v5, v[96:97]
    s_waitcnt lgkmcnt(0)
    s_barrier""")
    stamp(k, 2)
    if OPT.wa == 15: win_loads(k, "a")
    cnt_addr(k, 9, F_O, S_M)
    k.e(f"""s_lshl_b32 s{S_T+12}, s{S_N}, 17
    s_lshl_b32 s{S_T+1}, s{S_M}, 13
    s_add_u32 s{S_T+12}, s{S_T+12}, s{S_T+1}
    s_lshl_b32 s{S_T+2}, s{a}, 8
    s_add_u32 s{S_T+12}, s{S_T+12}, s{S_T+2}
    s_add_u32 s{S_T+12}, s{S_T+12}, {WS_KVP}
    s_add_u32 s{S_T+13}, s{S_T+12}, 4096
    s_lshl_b32 s{S_T+14}, s{S_N}, 13
    s_lshl_b32 s{S_T+1}, s{S_M}, 9
    s_add_u32 s{S_T+14}, s{S_T+14}, s{S_T+1}
    s_add_u32 s{S_T+14}, s{S_T+14}, s{S_T+2}
    s_add_u32 s{S_T+14}, s{S_T+14}, {WS_KVF}
    v_and_b32 v12, 15, v1
    v_lshlrev_b32 v12, 4, v12
    v_lshrrev_b32 v5, 4, v1
    v_lshl_add_u32 v13, v5, 9, v12
    v_lshl_add_u32 v12, v5, 2, v12""")
    bars(k, 2)
    if OPT.kvslp: k.e(f"s_sleep {OPT.kvslp}")
    def kvg(k=k):
        for i in range(4): k.e(f"buffer_load_dwordx4 v[{64+4*i}:{67+4*i}], v13, {W}, s{S_T+12+(i>>1)} offen offset:{(i&1)*2048} sc1")
    validated(k, kvg, range(64, 80), 3, pre=False)
    stamp(k, 3)
    for i in range(4): acc_bf16(k, 128, 64+4*i, 4, i == 0, 48)
    k.e("s_nop 0")
    for i in range(4): k.e(f"v_permlane32_swap_b32 v{128+i}, v{132+i}")
    k.e("v_pk_add_f32 v[128:129], v[128:129], v[132:133]\nv_pk_add_f32 v[130:131], v[130:131], v[134:135]\ns_nop 1")
    k.e("v_permlane16_swap_b32 v128, v130\nv_permlane16_swap_b32 v129, v131\nv_pk_add_f32 v[128:129], v[128:129], v[130:131]\nv_cvt_pk_bf16_f32 v52, v128, v129")
    k.e(f"buffer_store_dword v52, v12, {W}, s{S_T+14} offen sc1")
    stamp(k, 4)
    if OPT.kfslp: k.e(f"s_sleep {OPT.kfslp}")
    k.e("L_a_kvd:")
    k.e(f"""s_lshl_b32 s{S_T}, s{S_N}, 1
    s_add_u32 s{S_T}, s{S_T}, s{a}
    s_lshl_b32 s{S_T+12}, s{S_T}, 12
    s_add_u32 s{S_T+12}, s{S_T+12}, {WS_KVF}
    s_lshl_b32 s{S_T+13}, s{S_T}, 7
    s_add_u32 s{S_T+13}, s{S_T+13}, {WS_ZF}
    v_and_b32 v13, 7, v1
    v_lshlrev_b32 v13, 4, v13
    s_lshl_b32 s{S_T}, s{a}, 12
    v_add_u32 v4, s{S_T}, v2
    s_lshl_b32 s{S_T}, s{a}, 7
    v_add_u32 v5, s{S_T}, v13""")
    def kfg():
        for i in range(4): k.e(f"buffer_load_dwordx4 v[{64+4*i}:{67+4*i}], v2, {W}, s{S_T+12} offen offset:{i*1024} sc1")
        k.e(f"buffer_load_dwordx4 v[80:83], v13, {W}, s{S_T+13} offen sc1")
    validated(k, kfg, range(64, 84), 3, pre=False)
    for i in range(4): k.e(f"ds_write_b128 v4, v[{64+4*i}:{67+4*i}] offset:{L_KV+i*1024}")
    k.e(f"ds_write_b128 v5, v[80:83] offset:{L_Z}\ns_waitcnt lgkmcnt(0)\ns_barrier")
    grp(k, 1)
    tile_map(k, 4, 8, 16)
    cnt_addr(k, 10, F_O, S_M)
    k.e("s_barrier")
    set_flag(k, 9)
    win_reduce(k)
    poll(k, 10, 1, val=16)
    stamp(k, 11)
    k.e("s_barrier")
    stamp(k, 12)
    k.e(f"""s_cmp_eq_u32 s{a}, 0
    s_cbranch_scc1 L_a_nocw
    s_cmp_ge_u32 s2, 224
    s_cbranch_scc1 L_a_nocw
    v_lshlrev_b32 v4, 3, v1
    v_add_u32 v3, {L_CW}, v4""")
    for i in range(8): k.e(f"ds_read_b64 v[{192+2*i}:{193+2*i}], v3 offset:{i*512}")
    k.e(f"""s_mul_i32 s{S_T}, s{S_CW+1}, 14336
    s_lshl_b32 s{S_T+1}, s{S_CW}, 9
    s_add_u32 s{S_T}, s{S_T}, s{S_T+1}
    s_add_u32 s{S_T}, s{S_T}, {WS_CSP}
    s_waitcnt lgkmcnt(0)""")
    for i in range(1, 8): k.e(f"v_pk_add_f32 v[192:193], v[192:193], v[{192+2*i}:{193+2*i}]")
    k.e(f"buffer_store_dwordx2 v[192:193], v4, {W}, s{S_T} offen sc1\nL_a_nocw:")
    cnt_addr(k, 9, F_H, S_M)
    tile_map(k, 4, 7, 14)
    k.e(f"""v_and_b32 v14, 31, v1
    v_lshlrev_b32 v14, 4, v14
    v_lshrrev_b32 v15, 5, v1
    v_mul_u32_u24 v13, {1792*4}, v15
    v_add_u32 v13, v13, v14
    s_lshl_b32 s{S_T}, s{a}, 9
    v_add_u32 v14, s{S_T}, v14
    s_lshl_b32 s{S_T+13}, s{S_N}, 9
    s_add_u32 s{S_T+13}, s{S_T+13}, {WS_CSP}
    s_lshl_b32 s{S_T+12}, s{S_M}, 10
    s_add_u32 s{S_T+12}, s{S_T+12}, {WS_HST}""")
    def cap_(fn):
        t = Kern(k.name); t.uid = k.uid; fn(t); k.uid = t.uid; return "\n".join(t.L)
    def two_addr():
        k.e(f"v_mov_b32 v23, v9\nv_add_u32 v24, 128, v9\ns_and_b32 s{S_T}, s2, 1\ns_lshl_b32 s{S_T}, s{S_T}, 7\nv_add_u32 v9, s{S_T}, v9")
    def two_sync(val, st):
        if_par(k, 0, "s_barrier\n" + cap_(lambda t: set_flag(t, 9)))
        poll(k, 23, 1, val=val)
        stamp(k, st)
        k.e("s_barrier")
        if_par(k, 1, "s_barrier\n" + cap_(lambda t: set_flag(t, 9)))
    if OPT.two & 1: two_addr()
    def cg():
        k.e(f"s_mov_b32 s{S_T}, s{S_T+13}")
        for i in range(8): k.e(f"buffer_load_dwordx4 v[{64+4*i}:{67+4*i}], v13, {W}, s{S_T} offen sc1\ns_add_u32 s{S_T}, s{S_T}, 14336")
    if OPT.hh:
        k.e(f"""s_lshl_b32 s{S_T+15}, s{S_M}, 1
        s_and_b32 s{S_T}, s2, 1
        s_add_u32 s{S_T+15}, s{S_T+15}, s{S_T}
        s_lshl_b32 s{S_T+15}, s{S_T+15}, 1
        s_add_u32 s{S_T+15}, s{S_T+15}, s{a}
        s_lshl_b32 s{S_T+15}, s{S_T+15}, 10
        s_add_u32 s{S_T+15}, s{S_T+15}, {WS_HH}
        s_cmp_ge_u32 s2, 224
        s_cselect_b32 s{S_T}, s{S_T+15}, {WS_END}
        buffer_store_dwordx4 v[44:47], v2, {W}, s{S_T} offen sc1""")
    bars(k, 14)
    k.e(f"s_cmp_ge_u32 s2, 224\ns_cbranch_scc1 L_a_helper\ns_cmp_eq_u32 s{a}, 0\ns_cbranch_scc1 L_a_nocs")
    cg()
    k.e("s_barrier\ns_barrier\ns_barrier\ns_waitcnt vmcnt(0)")
    validated(k, cg, range(64, 96), 3)
    for i in range(1, 8): k.e(f"v_pk_add_f32 v[64:65], v[64:65], v[{64+4*i}:{65+4*i}]\nv_pk_add_f32 v[66:67], v[66:67], v[{66+4*i}:{67+4*i}]")
    k.e(f"v_add_u32 v3, {L_CS}, v2\nds_write_b128 v3, v[64:67]\ns_branch L_a_cs\nL_a_nocs:\ns_barrier\ns_barrier\ns_barrier\nL_a_cs:")
    if OPT.two & 1: two_sync(8, 13)
    else:
        k.e("s_barrier")
        set_flag(k, 9)
        poll(k, 9, 1, val=16)
        stamp(k, 13)
        k.e("s_barrier")
    stamp(k, 14)
    k.e(f"v_lshl_add_u32 v13, v15, 17, v14")
    def hg(k=k):
        k.e(f"s_mov_b32 s{S_T}, s{S_T+12}")
        for i in range(8): k.e(f"buffer_load_dwordx4 v[{64+4*i}:{67+4*i}], v13, {W}, s{S_T} offen sc1\ns_add_u32 s{S_T}, s{S_T}, 16384")
    def hcomp(k):
        for r in range(2):
            d = 4+4*r if r == 0 else 16
            combine_half(k, 64+2*r, 4, 8, 16, 64, d, 20)
            k.e(f"""v_mul_f32 v{d+1}, {f2u(1.0/1024)}, v{d+1}
            v_add_f32 v{d+1}, {f2u(1e-5)}, v{d+1}
            v_rsq_f32 v20, v{d+1}
            v_sqrt_f32 v{d+3}, v{d+1}
            v_sub_f32 v{d}, 0, v{d}
            v_mul_f32 v{d+1}, {f2u(C0)}, v20
            v_mul_f32 v{d+2}, v20, v20
            v_mul_f32 v{d+2}, v{d+2}, v20
            v_mul_f32 v{d+2}, {f2u(C1)}, v{d+2}""")
        k.e(f"""v_and_b32 v3, 31, v1
        v_lshlrev_b32 v3, 5, v3
        v_cmp_gt_u32 vcc, 32, v1
        v_lshl_add_u32 v3, v15, 4, v3
        s_nop 0
        v_cndmask_b32 v4, v16, v4, vcc
        v_cndmask_b32 v5, v17, v5, vcc
        v_cndmask_b32 v6, v18, v6, vcc
        v_cndmask_b32 v7, v19, v7, vcc""")
    def zaddr(k):
        k.e(f"""s_lshl_b32 s{S_T+14}, s2, 11
        s_add_u32 s{S_T+14}, s{S_T+14}, {WS_HC}
        s_lshl_b32 s{S_T}, s{a}, 10
        s_add_u32 s{S_T+14}, s{S_T+14}, s{S_T}
        s_add_u32 m0, s{S_T}, {L_HS}
        s_mul_i32 s{S_T+12}, s{S_M}, {14*1024}
        s_add_u32 s{S_T+12}, s{S_T+12}, {WS_ZST}
        s_lshl_b32 s{S_T+13}, s{S_N}, 10
        s_add_u32 s{S_T+13}, s{S_T+13}, s{S_T+12}
        s_lshl_b32 s{S_T}, s{a}, 9
        v_lshlrev_b32 v22, 3, v1
        v_add_u32 v22, s{S_T}, v22
        v_add_u32 v12, {L_ZP}, v22
        v_mul_u32_u24 v13, {7*1024}, v15
        v_add_u32 v13, v13, v14""")
        cnt_addr(k, 10, F_Z, S_N); u_cnt(k)
        if OPT.zg:
            k.e(f"""s_lshr_b32 s{S_T}, s{S_M}, 2
            s_lshl_b32 s{S_T}, s{S_T}, 5
            s_add_u32 s{S_T}, s{S_T}, 128
            v_add_u32 v25, s{S_T}, v10
            v_mul_u32_u24 v26, s{S_T}, v1
            v_add_u32 v26, v26, v10""")
    assert OPT.two & 1
    e_ = 2 if OPT.h3 == 16 else 0
    bars(k, 4-e_)
    sample(k, 24)
    bars(k, 2)
    poll(k, 24, 1, val=8, pre=True)
    bars(k, e_)
    if OPT.hh:
        k.e("s_barrier")
        zaddr(k)
        bars(k, 4)
        def hhg(): k.e(f"buffer_load_dwordx4 v[64:67], v2, {W}, s{S_T+15} offen sc1")
        hhg()
        k.e("s_barrier\ns_barrier\ns_waitcnt vmcnt(0) lgkmcnt(0)")
        validated(k, hhg, range(64, 68), 3)
        k.e(f"buffer_load_dwordx4 v2, {W}, s{S_T+15} offen sc1 lds")
        k.e("s_barrier\ns_barrier\ns_barrier\ns_waitcnt vmcnt(0)")
    else:
        hg()
        k.e("s_barrier\ns_barrier\ns_waitcnt vmcnt(0)")
        validated(k, hg, range(65, 96, 2), 3)
        def hfin(k):
            hcomp(k); zaddr(k)
            k.e(f"buffer_store_dwordx4 v[4:7], v3, {W}, s{S_T+14} offen")
        spread(k, hfin, 4)
        k.e(f"s_barrier\ns_barrier\ns_waitcnt vmcnt(0) lgkmcnt(0)\nbuffer_load_dwordx4 v2, {W}, s{S_T+14} offen sc1 lds")
        k.e("s_barrier\ns_barrier\ns_waitcnt vmcnt(0)")
    k.e("s_barrier")
    if OPT.sk and OPT.xis: k.e(f"s_sleep {OPT.xis}")
    xp_init(k)
    k.e("s_barrier")
    k.e(f"""ds_read_b64 v[64:65], v12
    ds_read_b64 v[66:67], v12 offset:1024
    s_waitcnt lgkmcnt(0)
    v_add_f32 v4, v64, v66
    v_mul_f32 v4, 0.5, v4
    v_sub_f32 v6, v64, v66
    v_mul_f32 v6, v6, v6
    v_add_f32 v5, v65, v67
    v_fmac_f32 v5, {f2u(32.0)}, v6
    buffer_store_dwordx2 v[4:5], v22, {W}, s{S_T+13} offen sc1""")
    stamp(k, 6)
    g = OPT.gat
    bars(k, g-16+OPT.gb)
    def zsg():
        k.e(f"s_add_u32 s{S_T}, s{S_T+12}, 4096")
        for i in range(7):
            k.e(f"buffer_load_dwordx4 v[{64+4*i}:{67+4*i}], v13, {W}, s{S_T+12 if i < 4 else S_T} offen offset:{(i&3)*1024} sc1")
    zsg()
    k.e("s_barrier\ns_waitcnt vmcnt(0)")
    validated(k, zsg, range(65, 92, 2), 3)
    stamp(k, 7)
    def zfin(k):
        for r in range(2):
            combine_half(k, 64+2*r, 4, 7, 14, 128, 4+2*r, 20); finish_rstd(k, 4+2*r, 1792)
        if OPT.zdma:
            k.e(f"""s_lshl_b32 s{S_T}, s{a}, 9
            s_add_u32 m0, s{S_T}, {L_ZS}
            s_mov_b32 exec_hi, 0
            buffer_store_dwordx4 v[4:7], v2, {W}, s{S_T+14} offen""")
        else: k.e(f"v_add_u32 v3, {L_ZS}, v14")
    if OPT.zdma:
        spread(k, zfin, OPT.zsp-2)
        k.e(f"s_waitcnt vmcnt(0)\nbuffer_load_dwordx4 v2, {W}, s{S_T+14} offen sc1 lds\ns_mov_b32 exec_hi, -1\ns_barrier\ns_waitcnt vmcnt(0)\ns_barrier")
    else:
        spread(k, zfin, OPT.zsp-1)
        k.e("ds_write_b128 v3, v[4:7]\ns_waitcnt lgkmcnt(0)\ns_barrier")
    nf = OPT.nst
    zb = g+1+OPT.zsp
    fb = zb+nf+1+OPT.vmd
    cb = 28 if OPT.own2 else 26
    assert fb <= cb
    bars(k, fb-zb)
    if OPT.zg:
        assert OPT.own2 == 3
        set_flag(k, 26, 3)
        bars(k, cb-fb)
        sample(k, 25)
        k.e("s_barrier")
        poll(k, 25, 1, val=4, pre=True)
        bars(k, 2)
        sample(k, 10)
        bars(k, 2)
        poll(k, 10, 1, val=16, pre=True)
        cb += 4
    else:
        set_flag(k, 10)
        bars(k, cb-fb)
        sample(k, 10)
        k.e("s_barrier")
        poll(k, 10, 1, val=16, pre=True)
    stamp(k, 8)
    if OPT.two & 2:
        bars(k, 62-cb)
        k.e("L_a_p5:")
        cnt_addr(k, 9, F_U, S_M); two_addr()
        two_sync(7, 15)
        bars(k, 3)
        sample(k, 24)
        bars(k, 2)
        poll(k, 24, 1, val=7, pre=True)
    else:
        bars(k, 63-cb)
        set_flag(k, 9)
        k.e("L_a_p5:")
        poll(k, 9, 1, val=7 if OPT.sk else 14)
        stamp(k, 15)
        k.e("s_barrier")
    k.e("s_branch L_fin")
    k.e("L_a_helper:")
    bars(k, 3)
    k.e("s_waitcnt vmcnt(0)\ns_barrier")
    set_flag(k, 9)
    if OPT.hh:
        k.e(f"v_lshl_add_u32 v13, v15, 17, v14\ns_sleep {OPT.hhs}")
        validated(k, hg, range(65, 96, 2), 3, pre=False)
        hcomp(k)
        k.e(f"buffer_store_dwordx4 v[4:7], v3, {W}, s{S_T+15} offen sc1")
    k.e("s_barrier")
    if OPT.ct > 1: code_touch(k, "L_c_p3", 28, 44)
    if OPT.sk:
        xp_init(k)
        k.e(f"""v_mov_b32 v9, {F_Z + 14*FLS}
        s_mov_b64 exec, 1
        buffer_atomic_add v11, v9, {W}, 0 offen sc1
        s_mov_b64 exec, -1
        s_sleep 64""")
        poll(k, 9, 1, val=64)
    u_cnt(k)
    k.e("v_mov_b32 v11, 0")
    k.e("s_branch L_a_p5")

def swaps(p):
    return [f"v_permlane16_swap_b32 v{p}, v{p+2}", f"v_permlane16_swap_b32 v{p+1}, v{p+3}"]
def pack32(k, dst, a):
    cvt16(k, dst, a)
    for x in swaps(dst): k.e(x)
    for x in swaps(dst+4): k.e(x)

def gelu_quads(k, quads, t, post=None):
    Gs = []
    for gi, g in enumerate(range(0, len(quads), 2)):
        tt = t + 8*(gi & 1)
        P = [(y+2*i, cs+2*i, s, tt+4*j+2*i) for j, (y, cs, s) in enumerate(quads[g:g+2]) for i in range(2)]
        A = [f"v_pk_fma_f32 v[{y}:{y+1}], v[{cs}:{cs+1}], v[{s}:{s+1}], v[{y}:{y+1}] op_sel_hi:[1,0,1]" for y, cs, s, p in P]
        A += [f"v_pk_mul_f32 v[{p}:{p+1}], v[{y}:{y+1}], v[{y}:{y+1}]" for y, cs, s, p in P]
        A += [f"v_pk_fma_f32 v[{p}:{p+1}], v[{p}:{p+1}], v[{s+2}:{s+3}], v[{s}:{s+1}] op_sel:[0,0,1] op_sel_hi:[1,0,1]" for y, cs, s, p in P]
        A += [f"v_pk_mul_f32 v[{p}:{p+1}], v[{p}:{p+1}], v[{y}:{y+1}]" for y, cs, s, p in P]
        E = [f"v_exp_f32 v{tt+j}, v{tt+j}" for j in range(8)]
        D = [f"v_pk_fma_f32 v[{p}:{p+1}], v[{p}:{p+1}], v[{s+2}:{s+3}], v[{s+2}:{s+3}] op_sel:[0,1,1] op_sel_hi:[1,1,1]" for y, cs, s, p in P]
        R = [f"v_rcp_f32 v{tt+j}, v{tt+j}" for j in range(8)]
        M = [f"v_pk_mul_f32 v[{y}:{y+1}], v[{y}:{y+1}], v[{p}:{p+1}]" for y, cs, s, p in P]
        Gs.append((A, E, D, R, M))
    L = list(Gs[0][0])
    for g, (A, E, D, R, M) in enumerate(Gs):
        N = Gs[g+1][0] if g+1 < len(Gs) else []
        Q = post(g-1) if post and g else []
        L += E + N[:8] + Q[:4] + D + N[8:12] + R + N[12:] + Q[4:] + M
    if post: L += post(len(Gs)-1)
    for x in L: k.e(x)

def gelu_fill(y, cs, s, n, t):
    E = range(n); L = []
    L += [f"v_fmac_f32 v{y+j}, v{cs+j}, v{s}" for j in E]
    L += [f"v_mul_f32 v{t+j}, v{y+j}, v{y+j}" for j in E]
    L += [f"v_fma_f32 v{t+j}, v{t+j}, v{s+2}, v{s+1}" for j in E]
    L += [f"v_mul_f32 v{t+j}, v{t+j}, v{y+j}" for j in E]
    L += [f"v_exp_f32 v{t+j}, v{t+j}" for j in E]
    L += [f"v_fma_f32 v{t+j}, v{t+j}, v{s+3}, v{s+3}" for j in E]
    L += [f"v_rcp_f32 v{t+j}, v{t+j}" for j in E]
    L += [f"v_mul_f32 v{y+j}, v{t+j}, v{y+j}" for j in E]
    return L

def treduce(k, a):
    k.e(f"""s_nop 1
    v_permlane32_swap_b32 v{a}, v{a+2}
    v_permlane32_swap_b32 v{a+1}, v{a+3}
    v_add_f32 v{a}, v{a}, v{a+2}
    v_add_f32 v{a+1}, v{a+1}, v{a+3}
    s_nop 1
    v_permlane16_swap_b32 v{a}, v{a+1}
    v_add_f32 v{a}, v{a}, v{a+1}""")

NWARM = [8, 8, 8, 4]
def grp(k, g):
    if OPT.pads: k.e(f'GRP {g}')
def warm(k, grp):
    if not OPT.pads: return
    k.e("s_mov_b64 exec, 0")
    for i in range(NWARM[grp]): k.e(f"WARM {grp} {i}")
    k.e("s_mov_b64 exec, -1")

def consumer(k):
    c1, c2, c3, c4, c5 = cfgs()
    def regs(aS, aF, acc):
        R = Regs(); R.aS = aS; R.aF = aF; R.fr = 16; R.acc = acc; return R
    k.e(f"s_mov_b32 s{S_K}, {f2u(LOG2E)}\ns_mov_b32 s{S_K+1}, {f2u(LOG2E)}")
    c = c1; R = regs([8, 9], [10, 11, 12, 13], 64); C = Cons(k, c, R)
    k.e("s_waitcnt lgkmcnt(0)")
    mk_srd(k, SRD_B, P_X, 4*MB); mk_srd(k, SRD_W, P_WS, WS_END)
    if OPT.pads:
        for d in (SRD_S, SRD_F, SRD_A, SRD_D): mk_srd(k, d, P_X, 0)
    stamp(k, 0)
    consumer_addr(k, c, R)
    C.zero()
    aWP=240; aXS=241; aCQ=242; aCV=243; aVS=244; aPW=245; aVX=247; aVW=248; aPR=249; L16=15
    tr_lane_base(k, aWP, 3, 9, rowshift=6, swz=False)
    k.e(f"""s_lshl_b32 s{S_T}, s{S_WN}, 11
    s_add_u32 s{S_T}, s{S_T}, {L_WPHI}
    v_add_u32 v{aWP}, s{S_T}, v{aWP}
    v_lshrrev_b32 v3, 4, v1
    v_and_b32 v4, 15, v1
    s_lshl_b32 s{S_T}, s{S_WM}, 8
    s_add_u32 s{S_T}, s{S_T}, {L_XS}
    v_lshl_add_u32 v{aXS}, v4, 2, s{S_T}
    v_lshl_add_u32 v{aVS}, v3, 4, s{S_T}
    s_mul_i32 s{S_T+1}, s{S_WN}, 384
    s_add_u32 s{S_T+1}, s{S_T+1}, {L_CQ}
    v_lshl_add_u32 v{aCQ}, v3, 4, s{S_T+1}
    v_and_b32 v7, 3, v4
    v_bfe_u32 v5, v4, 2, 1
    v_lshl_or_b32 v7, v5, 3, v7
    v_bfe_u32 v5, v4, 3, 1
    v_lshl_or_b32 v7, v5, 2, v7
    v_lshl_add_u32 v{aCV}, v7, 2, s{S_T+1}
    v_lshrrev_b32 v3, 5, v1
    v_and_b32 v4, 31, v1
    v_lshlrev_b32 v5, 2, v3
    v_xor_b32 v5, v4, v5
    v_lshlrev_b32 v5, 4, v5
    v_lshl_add_u32 v5, v3, 9, v5
    s_lshl_b32 s{S_T}, s{S_WN}, 14
    s_add_u32 s{S_T}, s{S_T}, {L_PHK}
    s_lshl_b32 s{S_T+1}, s{S_WM}, 13
    s_add_u32 s{S_T+2}, s{S_T}, s{S_T+1}
    v_add_u32 v{aPW}, s{S_T+2}, v5
    v_xor_b32 v{aPW+1}, 128, v{aPW}
    v_lshlrev_b32 v{L16}, 4, v1
    s_lshl_b32 s{S_T+3}, s{S_WN}, 13
    s_add_u32 s{S_T+3}, s{S_T+3}, {L_VX}
    v_add_u32 v{aVX}, s{S_T+3}, v{L16}
    s_lshl_b32 s{S_T+4}, s{S_WM}, 12
    v_add_u32 v{aVW}, s{S_T+4}, v{aVX}
    v_lshlrev_b32 v14, 13, v3
    v_lshl_add_u32 v14, v4, 4, v14
    v_lshlrev_b32 v251, 8, v3
    v_lshlrev_b32 v252, 4, v3""")
    blk_tr_base(k, aPR, 2, 3, 3)
    k.e(f"""s_lshl_b32 s{S_T+1}, s{S_WM}, 11
    s_add_u32 s{S_T+1}, s{S_T+1}, s{S_T}
    v_add_u32 v{aPR}, s{S_T+1}, v{aPR}
    v_xor_b32 v{aPR+1}, 64, v{aPR}""")
    ONES=4
    for i in range(4): k.e(f"v_mov_b32 v{ONES+i}, 0x3f803f80")
    k.e(f"""s_lshl_b32 s{S_T}, s{S_WN}, 1
    s_add_u32 s{S_T}, s{S_T}, s{S_WM}
    s_lshl_b32 s{S_T+1}, s{S_N}, 2
    s_add_u32 s{S_T}, s{S_T}, s{S_T+1}
    s_lshl_b32 s{S_T+2}, s{S_T}, 15
    s_lshl_b32 s{S_T+1}, s{S_M}, 9
    s_add_u32 s{S_T+2}, s{S_T+2}, s{S_T+1}
    s_add_u32 s{S_T+2}, s{S_T+2}, {WS_KVP}
    s_add_u32 s{S_T+3}, s{S_T+2}, 16384
    s_lshl_b32 s{S_T+4}, s{S_T}, 10
    s_lshl_b32 s{S_T+1}, s{S_M}, 4
    s_add_u32 s{S_T+4}, s{S_T+4}, s{S_T+1}
    s_add_u32 s{S_T+4}, s{S_T+4}, {WS_ZP}
    s_lshl_b32 s{S_T}, s{S_N}, 1
    s_add_u32 s{S_T}, s{S_T}, s{S_WN}
    s_lshl_b32 s{S_T+12}, s{S_M}, 2
    s_lshl_b32 s{S_T+1}, s{S_WM}, 1
    s_add_u32 s{S_T+12}, s{S_T+12}, s{S_T+1}
    s_lshl_b32 s{S_T+12}, s{S_T+12}, 16
    s_lshl_b32 s{S_T+1}, s{S_T}, 11
    s_add_u32 s{S_T+12}, s{S_T+12}, s{S_T+1}
    s_add_u32 s{S_T+12}, s{S_T+12}, {WS_O}
    s_add_u32 s{S_T+13}, s{S_T+12}, 65536""")
    warm(k, 0)
    k.e("s_barrier")
    stamp(k, 1)
    K0,K1,V0,V1,Q0,Q1 = 64,80,96,112,128,144
    WP=224; ST=232; KB=24; VB=40; PK=160; NM=192; RSD=208; CK=160; CV=2
    tl = [f"ds_read2_b32 v[{ST+2*t}:{ST+2*t+1}], v{aXS} offset0:{16*t} offset1:{128+16*t}" for t in range(4)]
    tl += [f"ds_read_b128 v[{CK+4*fh}:{CK+4*fh+3}], v{aCQ} offset:{128+64*fh}" for fh in range(2)]
    tl += [f"ds_read_b64_tr_b16 v[{WP+4*cc+2*rd}:{WP+4*cc+2*rd+1}], v{aWP} offset:{cc*1024+rd*256}" for cc in range(2) for rd in range(2)]
    tl += [f"ds_read2_b32 v[{CV}:{CV+1}], v{aCV} offset0:64 offset1:80"]
    C.first_reads(); C.loop4(5, 0); C.loop(1, next_cons=False, tail=tl, slot=0)
    stamp(k, 2)
    k.e("s_waitcnt lgkmcnt(5)")
    for t in range(4):
        k.e(f"ds_read_b128 v[{NM+4*t}:{NM+3+4*t}], v{aVS} offset:{64*t}\nds_read_b128 v[{RSD+4*t}:{RSD+3+4*t}], v{aVS} offset:{512+64*t}")
    def corrT(a, cs, st, t):
        for fh in range(2):
            P = [(a+8*fh+4*sh+2*i, cs+4*fh+2*i, ST+2*(2*st+sh), t+4*sh+2*i) for sh in range(2) for i in range(2)]
            for y, c_, s_, p in P: k.e(f"v_pk_mul_f32 v[{p}:{p+1}], v[{c_}:{c_+1}], v[{s_}:{s_+1}] op_sel_hi:[1,0]")
            for y, c_, s_, p in P: k.e(f"v_pk_fma_f32 v[{y}:{y+1}], v[{y}:{y+1}], v[{s_}:{s_+1}], v[{p}:{p+1}] op_sel:[0,1,0] op_sel_hi:[1,1,1]")
    def corrN(a, st, t):
        for sh in range(2):
            P = [(a+8*sh+4*dh+2*i, 4*(2*st+sh)+2*i, dh, t+4*dh+2*i) for dh in range(2) for i in range(2)]
            for y, o_, dh, p in P: k.e(f"v_pk_mul_f32 v[{p}:{p+1}], v[{NM+o_}:{NM+o_+1}], v[{CV}:{CV+1}] op_sel:[0,{dh}] op_sel_hi:[1,{dh}]")
            for y, o_, dh, p in P: k.e(f"v_pk_fma_f32 v[{y}:{y+1}], v[{y}:{y+1}], v[{RSD+o_}:{RSD+o_+1}], v[{p}:{p+1}]")
    def pmf(P, B, st):
        k.e(f"{MF} v[{P+16*st}:{P+16*st+15}], v[{WP}:{WP+3}], v[{B+8*st}:{B+8*st+3}], 0")
        k.e(f"{MF} v[{P+16*st}:{P+16*st+15}], v[{WP+4}:{WP+7}], v[{B+8*st+4}:{B+8*st+7}], v[{P+16*st}:{P+16*st+15}]")
    corrT(K0, CK, 0, 16); corrT(K1, CK, 1, 16)
    pack32(k, KB, K0); pack32(k, KB+8, K1)
    k.e("s_waitcnt lgkmcnt(0)")
    if OPT.kst: stamp(k, 23)
    pmf(PK, KB, 0); pmf(PK, KB, 1)
    corrN(V0, 0, 16); corrN(V1, 1, 16)
    pack32(k, VB, V0); pack32(k, VB+8, V1)
    if OPT.kst: stamp(k, 24)
    CK = 192
    EP=64; EN=80; T=56
    def wr(st, O, nb): return [f"ds_write_b128 v{aPW+hh}, v[{O+4*hh}:{O+4*hh+3}] offset:{st*4096+nb*2048+hh*1024}" for hh in range(2)]
    inj = [f"ds_write_b128 v{aVW}, v[{VB+4*i}:{VB+4*i+3}] offset:{i*1024}" for i in range(4)]
    inj += [f"ds_read_b128 v[{CK+4*fh}:{CK+4*fh+3}], v{aCQ} offset:{64*fh}" for fh in range(2)]
    softmax2(k, (PK, 64, 80, 56, 160, 168), (PK+16, 96, 112, 60, 176, 184), inject=inj,
             wA=(wr(0, 160, 0), wr(0, 168, 1)), wB=(wr(1, 176, 0), wr(1, 184, 1)))
    if OPT.kst: stamp(k, 25)
    k.e("s_waitcnt lgkmcnt(0)\ns_barrier")
    stamp(k, 3)
    AF=64; VF_=96; KV=160; ZZ=176
    def rdkc(kc):
        off = (kc>>1)*4096 + (kc&1)*256
        k.e(f"""ds_read_b64_tr_b16 v[{AF+4*kc}:{AF+4*kc+1}], v{aPR} offset:{off}
        ds_read_b64_tr_b16 v[{AF+4*kc+2}:{AF+4*kc+3}], v{aPR+1} offset:{off}
        ds_read_b128 v[{VF_+4*kc}:{VF_+4*kc+3}], v{aVX} offset:{kc*1024}""")
    for kc in range(5): rdkc(kc)
    for kc in range(8):
        k.e(f"s_waitcnt lgkmcnt({3*(min(kc+5, 8)-kc-1)})")
        k.e(f"{MF} v[{KV}:{KV+15}], v[{AF+4*kc}:{AF+4*kc+3}], v[{VF_+4*kc}:{VF_+4*kc+3}], {'0' if kc==0 else f'v[{KV}:{KV+15}]'}")
        if kc+5 < 8: rdkc(kc+5)
    for kc in range(8):
        k.e(f"{MF} v[{ZZ}:{ZZ+15}], v[{AF+4*kc}:{AF+4*kc+3}], v[{ONES}:{ONES+3}], {'0' if kc==0 else f'v[{ZZ}:{ZZ+15}]'}")
        if kc == 2:
            k.e("s_nop 7\ns_nop 1")
            for i in range(4): k.e(f"v_cvt_pk_bf16_f32 v{212+i}, v{KV+2*i}, v{KV+2*i+1}")
            k.e(f"buffer_store_dwordx4 v[212:215], v14, {W}, s{S_T+2} offen sc1")
        if kc == 3:
            for i in range(4, 8): k.e(f"v_cvt_pk_bf16_f32 v{212+i}, v{KV+2*i}, v{KV+2*i+1}")
            k.e(f"buffer_store_dwordx4 v[216:219], v14, {W}, s{S_T+3} offen sc1")
    k.e("s_barrier")
    k.e("s_nop 7\ns_nop 2")
    cvt16(k, 16, ZZ)
    k.e(f"""s_mov_b32 exec_lo, 1
    s_mov_b32 exec_hi, 1
    buffer_store_dwordx4 v[16:19], v251, {W}, s{S_T+4} offen sc1
    buffer_store_dwordx4 v[20:23], v251, {W}, s{S_T+4} offen offset:512 sc1
    s_mov_b64 exec, -1""")
    stamp(k, 4)
    QB=32; PQ=160
    def p25_addr():
        tile_map(k, 4, 8, 16)
        k.e(f"""s_lshl_b32 s{S_T}, s{S_M}, 2
        s_add_u32 s{S_T}, s{S_T}, s{S_WAVE}
        s_lshl_b32 s{S_T+1}, s{S_T}, 16
        s_lshl_b32 s{S_T+2}, s{S_N}, 7
        s_add_u32 s{S_T+2}, s{S_T+2}, s{S_T+1}
        v_and_b32 v4, 31, v1
        v_lshlrev_b32 v14, 11, v4
        v_lshrrev_b32 v5, 5, v1
        v_lshl_add_u32 v14, v5, 4, v14
        v_add_u32 v14, s{S_T+2}, v14""")
    corrT(Q0, CK, 0, 48); corrT(Q1, CK, 1, 48)
    pack32(k, QB, Q0); pack32(k, QB+8, Q1)
    pmf(PQ, QB, 0); pmf(PQ, QB, 1)
    p25_addr()
    RS = 224
    for i in range(4): k.e(f"buffer_load_dwordx4 v[{RS+4*i}:{RS+4*i+3}], v14, {srd(SRD_B)}, 0 offen offset:{32*i}")
    k.e(f"""s_lshl_b32 s{S_T+2}, s{S_N}, 12
    s_add_u32 s{S_T+2}, s{S_T+2}, s{S_T+1}
    s_add_u32 s{S_T+2}, s{S_T+2}, {WS_H}
    v_add_u32 v7, s{S_T+2}, v{L16}
    s_lshl_b32 s{S_T}, s{S_T}, 8
    s_lshl_b32 s{S_T+1}, s{S_N}, 14
    s_add_u32 s{S_T}, s{S_T}, s{S_T+1}
    s_add_u32 s{S_T}, s{S_T}, {WS_HST}
    v_lshlrev_b32 v9, 3, v4
    v_add_u32 v9, s{S_T}, v9
    s_lshl_b32 s{S_T}, s{S_WN}, 12
    v_add_u32 v2, s{S_T}, v{L16}
    s_lshl_b32 s{S_T}, s{S_WN}, 7
    v_add_u32 v3, s{S_T}, v252""")
    BB = 240
    mk_srd(k, SRD_A, P_BSP, 4096)
    k.e(f"""v_and_b32 v4, 15, v1
    v_lshlrev_b32 v4, 1, v4
    s_lshl_b32 s{S_T+2}, s{S_M}, 8
    s_lshl_b32 s{S_T+3}, s{S_WM}, 7
    s_add_u32 s{S_T+2}, s{S_T+2}, s{S_T+3}""")
    for t in range(4): k.e(f"buffer_load_ushort v{BB+t}, v4, {srd(SRD_A)}, s{S_T+2} offen offset:{32*t}")
    PH=128; KF=16; ZF=32; NUM=96; DEN=192
    softmax2(k, (PQ, 64, 80, 56, PH, PH+8), (PQ+16, 96, 112, 60, PH+16, PH+24))
    def res_init():
        for j in range(4):
            for x in swaps(RS+4*j): k.e(x)
        for i in range(16): unpack(k, 64+2*i, 65+2*i, RS+i)
    R25 = regs([8], [10, 11, 12, 13], 64)
    consumer_addr(k, c2, R25, t=48)
    k.e("s_waitcnt vmcnt(0)")
    res_init()
    stamp(k, 21)
    warm(k, 1); grp(k, 1)
    k.e("s_barrier")
    stamp(k, 5)
    for i in range(4): k.e(f"ds_read_b128 v[{ZF+4*i}:{ZF+4*i+3}], v3 offset:{L_Z+i*32}")
    for i in range(4): k.e(f"ds_read_b128 v[{KF+4*i}:{KF+4*i+3}], v2 offset:{L_KV+i*1024}")
    for st in range(2):
        for A_, D_ in ((ZF, DEN), (KF, NUM)):
            if st == 0: k.e(f"s_waitcnt lgkmcnt({4 if A_ == ZF else 0})")
            for i in range(4):
                b = PH+16*st+4*i
                k.e(f"{MF} v[{D_+16*st}:{D_+16*st+15}], v[{A_+4*i}:{A_+4*i+3}], v[{b}:{b+3}], {'0' if i==0 else f'v[{D_+16*st}:{D_+16*st+15}]'}")
    k.e("s_nop 0")
    for st in range(2):
        d = DEN+16*st; n = NUM+16*st; o = 160+8*st
        k.e(f"v_add_f32 v{d}, {f2u(1e-6)}, v{d}\nv_rcp_f32 v{d}, v{d}\ns_nop 0")
        for hh in range(2):
            for i in range(4*hh, 4*hh+4): k.e(f"v_pk_mul_f32 v[{n+2*i}:{n+2*i+1}], v[{n+2*i}:{n+2*i+1}], v[{d}:{d+1}] op_sel_hi:[1,0]")
            for i in range(4*hh, 4*hh+4): k.e(f"v_cvt_pk_bf16_f32 v{o+i}, v{n+2*i}, v{n+2*i+1}")
            k.e(f"buffer_store_dwordx4 v[{o+4*hh}:{o+4*hh+3}], v{L16}, {W}, s{S_T+12+st} offen offset:{1024*hh} sc1")
    C = Cons(k, c2, R25)
    k.e("s_waitcnt vmcnt(0)\ns_barrier")
    stamp(k, 6)
    warm(k, 2)
    k.e("s_barrier\ns_barrier")
    stamp(k, 7)
    if OPT.st4 & 1:
        C.first_reads(); C.loopu(5, 3); C.loop(1, next_cons=False)
    else:
        C.first_reads(); C.loop(15); C.loop(1, next_cons=False)
    stamp(k, 8)
    A = 64
    def out4(dst, store):
        k.e("s_nop 1")
        for i in range(4): k.e(f"v_cvt_pk_bf16_f32 v{dst+i}, v{A+2*i}, v{A+2*i+1}")
        for j in range(4):
            if j < 3:
                for i in range(4*j+4, 4*j+8): k.e(f"v_cvt_pk_bf16_f32 v{dst+i}, v{A+2*i}, v{A+2*i+1}")
            for x in swaps(dst+4*j): k.e(x)
            k.e(store(dst+4*j, j))
    out4(RS, lambda r, j: f"buffer_store_dwordx4 v[{r}:{r+3}], v7, {W}, 0 offen offset:{1024*j} sc1")
    for i in range(16): unpack(k, A+2*i, A+2*i+1, RS+i)
    k.e(f"v_pk_add_f32 v[20:21], v[{A}:{A+1}], v[{A+2}:{A+3}]\nv_pk_add_f32 v[22:23], v[{A+4}:{A+5}], v[{A+6}:{A+7}]")
    for i in range(4, 16):
        t = 20 + 2*(i & 1); k.e(f"v_pk_add_f32 v[{t}:{t+1}], v[{t}:{t+1}], v[{A+2*i}:{A+2*i+1}]")
    k.e("v_pk_add_f32 v[20:21], v[20:21], v[22:23]\nv_add_f32 v20, v20, v21")
    xswap_sum1(k, 20, 21)
    k.e(f"v_mul_f32 v20, {f2u(1/64.)}, v20")
    for i in range(16):
        k.e(f"v_pk_add_f32 v[{A+2*i}:{A+2*i+1}], v[{A+2*i}:{A+2*i+1}], v[20:21] op_sel_hi:[1,0] neg_lo:[0,1] neg_hi:[0,1]")
    k.e(f"v_pk_mul_f32 v[22:23], v[{A}:{A+1}], v[{A}:{A+1}]\nv_pk_mul_f32 v[24:25], v[{A+2}:{A+3}], v[{A+2}:{A+3}]")
    for i in range(2, 16):
        t = 22 + 2*(i & 1); k.e(f"v_pk_fma_f32 v[{t}:{t+1}], v[{A+2*i}:{A+2*i+1}], v[{A+2*i}:{A+2*i+1}], v[{t}:{t+1}]")
    k.e("v_pk_add_f32 v[22:23], v[22:23], v[24:25]\nv_add_f32 v22, v22, v23")
    xswap_sum1(k, 22, 23)
    k.e(f"""v_mov_b32 v21, v22
    s_mov_b32 exec_hi, 0
    buffer_store_dwordx2 v[20:21], v9, {W}, 0 offen sc1
    s_mov_b32 exec_hi, -1""")
    k.e("s_cmp_ge_u32 s2, 224\ns_cbranch_scc1 L_c_helper")
    if OPT.two & 1: if_par(k, 0, "s_waitcnt vmcnt(1)")
    else: k.e("s_waitcnt vmcnt(1)")
    k.e("s_barrier")
    stamp(k, 9)
    k.e("L_c_p3:")
    tile_map(k, 4, 7, 14)
    Ra = regs([2], [3, 4, 5, 6], 128); Rb = regs([2], [3, 4, 5, 6], 64); R4 = regs([8, 9], [10, 11], 128)
    Ca = Cons(k, c3, Ra); Cb = Cons(k, c3, Rb); C4 = Cons(k, c4, R4)
    consumer_addr(k, c3, Ra, t=32, slot=0); consumer_addr(k, c4, R4, slot=0, t=32, setslot=False)
    Ca.zero(); Cb.zero()
    aCS=7; aZN=12; aHS=13; aZS=14; aZP=252; CS=192; HS=208; ZS=244
    k.e("v_and_b32 v32, 15, v1")
    k.e(f"""s_lshl_b32 s{S_T}, s{S_WM}, 6
    v_add_u32 v32, s{S_T}, v32
    v_lshlrev_b32 v{aZS}, 3, v32
    v_add_u32 v{aZS}, {L_ZS}, v{aZS}
    v_lshlrev_b32 v{aHS}, 4, v32
    v_add_u32 v{aHS}, {L_HS}, v{aHS}
    v_lshrrev_b32 v34, 4, v1
    s_lshl_b32 s{S_T}, s{S_WN}, 8
    s_add_u32 s{S_T}, s{S_T}, {L_CS}
    v_lshl_add_u32 v{aCS}, v34, 4, s{S_T}
    v_lshrrev_b32 v34, 5, v1
    v_lshlrev_b32 v34, 6, v34
    v_xor_b32 v{aZN}, v34, v{L16}
    s_lshl_b32 s{S_T}, s{S_WM}, 9
    s_lshl_b32 s{S_T+1}, s{S_WN}, 10
    s_add_u32 s{S_T}, s{S_T}, s{S_T+1}
    s_add_u32 s{S_T}, s{S_T}, {L_ZP}
    v_lshl_add_u32 v{aZP}, v1, 3, s{S_T}
    s_lshl_b32 s{S_T+12}, s{S_N}, 19
    s_lshl_b32 s{S_T+1}, s{S_M}, 15
    s_add_u32 s{S_T+12}, s{S_T+12}, s{S_T+1}
    s_lshl_b32 s{S_T+1}, s{S_WM}, 14
    s_add_u32 s{S_T+12}, s{S_T+12}, s{S_T+1}
    s_lshl_b32 s{S_T+1}, s{S_WN}, 12
    s_add_u32 s{S_T+12}, s{S_T+12}, s{S_T+1}
    s_add_u32 s{S_T+12}, s{S_T+12}, {WS_Z2N}
    s_add_u32 s{S_T+13}, s{S_T+12}, 8192
    s_lshl_b32 s{S_T}, s{S_M}, 2
    s_lshl_b32 s{S_T+1}, s{S_WM}, 1
    s_add_u32 s{S_T}, s{S_T}, s{S_T+1}
    s_mul_i32 s{S_T}, s{S_T}, 112
    s_lshl_b32 s{S_T+1}, s{S_N}, 3
    s_add_u32 s{S_T}, s{S_T}, s{S_T+1}
    s_lshl_b32 s{S_T+1}, s{S_WN}, 2
    s_add_u32 s{S_T}, s{S_T}, s{S_T+1}
    s_lshl_b32 s{S_T}, s{S_T}, 10
    s_add_u32 s{S_T+14}, s{S_T}, {WS_U}
    s_add_u32 s{S_T+15}, s{S_T+14}, {112*1024}""")
    warm(k, 3)
    k.e("s_waitcnt vmcnt(0)\ns_barrier\ns_barrier")
    stamp(k, 10)
    rcs = lambda half: [f"ds_read_b128 v[{CS+4*f}:{CS+4*f+3}], v{aCS} offset:{half*512 + f*64}" for f in range(4)]
    rhs = [f"ds_read_b128 v[{HS+4*t}:{HS+4*t+3}], v{aHS} offset:{t*256}" for t in range(4)]
    Ca.first_reads_static(2); Ca.loop4(3, 2)
    for j in range(3): Ca.loop(1, slot=(2+j) % 4)
    Ca.loop(1, next_cons=False, tail=rhs+rcs(1), slot=1)
    stamp(k, 11)
    k.e("s_waitcnt lgkmcnt(0)")
    Cb.first_reads_static(2)
    zq = [(Ca.sub(t, f), CS+4*f, HS+4*t) for t in range(4) for f in range(4)]
    def zpost(g):
        t = g >> 1; ys = [zq[2*g][0], zq[2*g][0]+2, zq[2*g+1][0], zq[2*g+1][0]+2]; L = []
        for i, y in enumerate(ys):
            if g & 1 == 0 and i == 0:
                L.append(f"v_pk_mul_f32 v[62:63], v[{y}:{y+1}], v[{y}:{y+1}]")
            elif g & 1 == 0 and i == 1:
                L += [f"v_pk_add_f32 v[60:61], v[{ys[0]}:{ys[0]+1}], v[{y}:{y+1}]", f"v_pk_fma_f32 v[62:63], v[{y}:{y+1}], v[{y}:{y+1}], v[62:63]"]
            else:
                L += [f"v_pk_add_f32 v[60:61], v[60:61], v[{y}:{y+1}]", f"v_pk_fma_f32 v[62:63], v[{y}:{y+1}], v[{y}:{y+1}], v[62:63]"]
        if g & 1: L += [f"v_add_f32 v{ZS+t}, v60, v61", f"v_add_f32 v{ZS+4+t}, v62, v63"]
        return L
    k.e("s_nop 3")
    gelu_quads(k, zq, 32, post=zpost)
    for x in rcs(0): k.e(x)
    a_, b_ = ZS, ZS+4
    k.e(f"""v_permlane32_swap_b32 v{a_}, v{a_+2}
    v_permlane32_swap_b32 v{a_+1}, v{a_+3}
    v_permlane32_swap_b32 v{b_}, v{b_+2}
    v_permlane32_swap_b32 v{b_+1}, v{b_+3}
    v_pk_add_f32 v[{a_}:{a_+1}], v[{a_}:{a_+1}], v[{a_+2}:{a_+3}]
    v_pk_add_f32 v[{b_}:{b_+1}], v[{b_}:{b_+1}], v[{b_+2}:{b_+3}]
    s_nop 0
    v_permlane16_swap_b32 v{a_}, v{a_+1}
    v_permlane16_swap_b32 v{b_}, v{b_+1}
    v_add_f32 v{a_+2}, v{a_}, v{a_+1}
    v_add_f32 v{b_}, v{b_}, v{b_+1}
    v_mul_f32 v{a_}, {f2u(1/64.)}, v{a_+2}
    v_fma_f32 v{a_+1}, -v{a_}, v{a_+2}, v{b_}
    v_max_f32 v{a_+1}, 0, v{a_+1}
    ds_write_b64 v{aZP}, v[{ZS}:{ZS+1}]
    s_waitcnt lgkmcnt(0)""")
    if OPT.gb: k.e("s_barrier")
    grp(k, 2)
    stamp(k, 12)
    g = OPT.gat
    n1 = g+1+OPT.zsp-16+1
    def norm_tile(st, ft):
        a = Ca.acc(st, ft); L = []
        for fh in range(2):
            for sh in range(2):
                s = ZS+2*(2*st+sh)
                L += [f"v_fma_f32 v{a+8*fh+4*sh+i}, v{a+8*fh+4*sh+i}, v{s+1}, v{s}" for i in range(4)]
        L += [f"v_cvt_pk_bf16_f32 v{a+8*fh+i}, v{a+8*fh+2*i}, v{a+8*fh+2*i+1}" for fh in range(2) for i in range(4)]
        for fh in range(2):
            L += swaps(a+8*fh)
            L += [f"buffer_store_dwordx4 v[{a+8*fh}:{a+8*fh+3}], v{aZN}, {W}, s{S_T+12+st} offen offset:{ft*2048+fh*1024} sc1"]
        return L
    NL = sum((norm_tile(st, ft) for st in range(2) for ft in range(2)), [])
    nf = OPT.nst
    zl = [f"v_lshlrev_b32 v{C4.sub(t, f)+i}, 16, v{BB+t}" for f in range(4) for t in range(4) for i in range(4)]
    vm = n1+nf+OPT.vmd
    nz = 15-vm
    rz = [f"ds_read_b64 v[{ZS+2*t}:{ZS+2*t+1}], v{aZS} offset:{t*128}" for t in range(4)]
    for j in range(16):
        kw = dict(slot=(2+j) % 4)
        if j == n1-1: kw['tail'] = rz
        if j == n1:
            k.e("s_waitcnt lgkmcnt(4)"); stamp(k, 13)
            if OPT.nprio: k.e("s_setprio 3")
            if nf == 0:
                pend = []
                for st in range(2):
                    for f in range(4):
                        a = Ca.acc(st, f >> 1) + 8*(f & 1)
                        for i in range(4):
                            s_ = ZS+2*(2*st+(i >> 1))
                            k.e(f"v_pk_fma_f32 v[{a+2*i}:{a+2*i+1}], v[{a+2*i}:{a+2*i+1}], v[{s_}:{s_+1}], v[{s_}:{s_+1}] op_sel:[0,1,0] op_sel_hi:[1,1,0]")
                        for x in pend: k.e(x)
                        for i in range(4): k.e(f"v_cvt_pk_bf16_f32 v{a+i}, v{a+2*i}, v{a+2*i+1}")
                        pend = swaps(a) + [f"buffer_store_dwordx4 v[{a}:{a+3}], v{aZN}, {W}, s{S_T+12+st} offen offset:{f*1024} sc1"]
                k.e("s_nop 0")
                for x in pend: k.e(x)
        if OPT.nprio and j == n1+nf: k.e("s_setprio 0")
        if n1 <= j < n1+nf: kw['fillers'] = NL[len(NL)*(j-n1)//nf: len(NL)*(j-n1+1)//nf]
        if j == vm: kw['pre_barrier'] = "vm"
        if j > vm: kw['fillers'] = zl[64*(j-vm-1)//nz: 64*(j-vm)//nz]
        if j == 15: kw['next_cons'] = C4; kw['nslot'] = 2
        Cb.loop(1, **kw)
    stamp(k, 14)
    j = 0
    if not OPT.z1fill:
        OPT.dg |= 1
        gelu_quads(k, [(Cb.sub(t, f), CS+4*f, HS+4*t) for f in range(4) for t in Cb.order(f)], 32)
        stamp(k, 15)
    if OPT.p4loop:
        C4.loop4(8, 2); k.e("s_waitcnt lgkmcnt(0)")
    for f in range(0 if OPT.p4loop else 4):
        for t in Cb.order(f):
            for i in range(2):
                C4.loop(1, fillers=(gelu_fill(Cb.sub(t, f)+2*i, CS+4*f+2*i, HS+4*t, 2, ZS) if not OPT.dg & 1 else None), budget=OPT.bud, next_cons=(False if j == 31 else None), slot=(2+j) % 4)
                j += 1
                if j == 18: grp(k, 3)
    stamp(k, 16)
    pend = None
    for f in range(4):
        for st in range(2):
            a = C4.acc(st, f >> 1) + 8*(f & 1); z = Cb.acc(st, f >> 1) + 8*(f & 1); o = 16+4*(f*2+st)
            for i in range(4): k.e(f"v_pk_mul_f32 v[{a+2*i}:{a+2*i+1}], v[{a+2*i}:{a+2*i+1}], v[{z+2*i}:{z+2*i+1}]")
            if pend:
                for x in pend: k.e(x)
            for i in range(4): k.e(f"v_cvt_pk_bf16_f32 v{o+i}, v{a+2*i}, v{a+2*i+1}")
            pend = swaps(o) + [f"buffer_store_dwordx4 v[{o}:{o+3}], v{L16}, {W}, s{S_T+14+st} offen offset:{f*1024} sc1"]
    k.e("s_nop 0")
    for x in pend: k.e(x)
    if OPT.two & 2:
        k.e("L_c_p5:")
        if_par(k, 0, "s_waitcnt vmcnt(0)")
        k.e("s_barrier")
        stamp(k, 17)
    else:
        k.e("s_waitcnt vmcnt(0)\ns_barrier")
        stamp(k, 17)
        k.e("L_c_p5:")
    p25_addr()
    if OPT.sk:
        R5 = regs([8], [10, 11, 12, 13], 96)
        if OPT.bu5: R5.nfr = 80
        C = Cons(k, c5, R5)
        consumer_addr(k, c5, R5, t=48, slot=0)
        A = 128
        for j in range(4):
            for x in swaps(RS+4*j): k.e(x)
        for i in range(16): unpack(k, A+2*i, A+1+2*i, RS+i)
        for i in range(96, 128, 2): k.e(f"v_mov_b64 v[{i}:{i+1}], 0")
        k.e(f"""s_lshl_b32 s{S_T+12}, s2, 2
        s_add_u32 s{S_T+12}, s{S_T+12}, s{S_WAVE}
        s_lshl_b32 s{S_T+12}, s{S_T+12}, 12
        s_xor_b32 s{S_T+13}, s{S_T+12}, 16384
        s_add_u32 s{S_T+12}, s{S_T+12}, {WS_XP}
        s_add_u32 s{S_T+13}, s{S_T+13}, {WS_XP}""")
        mk_srd(k, SRD_B, P_OUT, 4*MB)
        k.e("s_waitcnt vmcnt(0)\ns_barrier\ns_barrier")
        stamp(k, 18)
        C.first_reads_static(2); C.loop4(3, 2); C.loop(1, slot=2)
        snd = []
        for j in range(4):
            snd += [f"v_cvt_pk_bf16_f32 v{176+i}, v{96+2*i}, v{97+2*i}" for i in range(4*j, 4*j+4)]
            snd += [f"buffer_store_dwordx4 v[{176+4*j}:{179+4*j}], v{L16}, {W}, s{S_T+12} offen offset:{1024*j} sc1"]
        if OPT.jo:
            C.loop(1, slot=3, next_cons=False, fillers=snd + ["PAD"]*OPT.jpad, fstart=15, budget=12)
        else:
            C.loop(1, slot=3, next_cons=False)
            for x in snd: k.e(x)
        stamp(k, 19)
        if OPT.xslp: k.e(f"s_sleep {OPT.xslp}")
        def xg():
            for j in range(4): k.e(f"buffer_load_dwordx4 v[{80+4*j}:{83+4*j}], v{L16}, {W}, s{S_T+13} offen offset:{1024*j} sc1")
        validated(k, xg, range(80, 96), 2, pre=False)
        stamp(k, 22)
        pend = []
        for j in range(4):
            acc_bf16(k, A+8*j, 80+4*j, 4, False, 16)
            for x in pend: k.e(x)
            for i in range(4): k.e(f"v_cvt_pk_bf16_f32 v{160+4*j+i}, v{A+8*j+2*i}, v{A+8*j+2*i+1}")
            pend = swaps(160+4*j) + [f"buffer_store_dwordx4 v[{160+4*j}:{163+4*j}], v14, {srd(SRD_B)}, 0 offen offset:{32*j}"]
        k.e("s_nop 0")
        for x in pend: k.e(x)
    else:
        C = Cons(k, c5, R25)
        consumer_addr(k, c5, R25, t=48, slot=(0 if OPT.st4 & 4 else None))
        res_init()
        mk_srd(k, SRD_B, P_OUT, 4*MB)
        k.e("s_barrier\ns_barrier")
        stamp(k, 18)
        if OPT.st4 & 4:
            C.first_reads_static(2); C.loop4(7, 2); k.e("s_waitcnt lgkmcnt(0)")
        else:
            C.first_reads(); C.loop(27); C.loop(1, next_cons=False)
        stamp(k, 19)
        out4(96, lambda r, j: f"buffer_store_dwordx4 v[{r}:{r+3}], v14, {srd(SRD_B)}, 0 offen offset:{32*j}")
    k.e("s_branch L_fin")
    k.e("L_c_helper:")
    k.e("s_waitcnt vmcnt(1)\ns_barrier")
    stamp(k, 9)
    k.e("s_barrier")
    helper_pf(k, 'c')
    stamp(k, 17)
    k.e("s_branch L_c_p5")

def place_pads(k):
    import subprocess, re, tempfile, os
    L = [x.strip() for x in k.L]
    isins = lambda x: not (x.endswith(":") or x.startswith(".") or x.startswith(("WARM", "ALIGN4K", "GRP")))
    txt = '.amdgcn_target "amdgcn-amd-amdhsa--gfx950"\n.text\n' + KNAME + ":\n" + "\n".join(x for x in L if isins(x) or x.endswith(":")) + "\n"
    d = tempfile.mkdtemp(); open(d+"/a.s", "w").write(txt)
    subprocess.run(["clang", "-x", "assembler", "-target", "amdgcn-amd-amdhsa", "-mcpu=gfx950", "-c", d+"/a.s", "-o", d+"/a.o"], check=True)
    dis = subprocess.run(["llvm-objdump", "-d", "--mcpu=gfx950", d+"/a.o"], capture_output=True, text=True).stdout
    sizes = [4*len(m.group(1).split()) for m in re.finditer(r"// [0-9A-F]{12}: ((?:[0-9A-F]{8} ?)+)", dis)]
    assert len(sizes) == sum(map(isins, L)), (len(sizes), sum(map(isins, L)))
    out = []; off = None; it = iter(sizes); nextpage = 0; pads = [[] for _ in NWARM]; grp = 0; inwarm = False
    for x in L:
        if x == "ALIGN4K":
            out.append(".p2align 12"); off = 0; continue
        if x.startswith("GRP"):
            grp = int(x.split()[1]); continue
        if x == "s_mov_b64 exec, 0": inwarm = True
        if off is not None and off >= nextpage and not inwarm and (isins(x) or x.startswith(".p2align")):
            n = sum(map(len, pads)); pads[grp].append(n)
            out.append(f"L_pad{n}:"); out.append(f"s_cbranch_execz L_padr{n}"); off += 4; nextpage += 4096
        if x == "s_mov_b64 exec, -1": inwarm = False
        out.append(x)
        if isins(x):
            sz = next(it)
            if off is not None: off += sz
        elif x.startswith("WARM"): off += 12
        elif x.startswith(".p2align") and off is not None:
            a = 1 << int(x.split()[1]); off = (off + a-1)//a*a
    fin = []
    for x in out:
        if x.startswith("WARM"):
            g, i = map(int, x.split()[1:])
            if i < len(pads[g]):
                n = pads[g][i]
                fin += [f"s_cmp_lg_u32 s{S_WAVE}, {i % 4}", f"s_cbranch_scc1 L_padr{n}", f"s_branch L_pad{n}", f"L_padr{n}:"]
            else: fin += ["s_nop 0"]*3
        else: fin.append(x)
    assert all(len(p) <= n for p, n in zip(pads, NWARM)), pads
    print('pads', pads, file=sys.stderr)
    k.L = [("" if x.endswith(":") else "    ") + x for x in fin]

def build():
    k = Kern("p")
    if OPT.probe: k.e("s_memrealtime s[94:95]")
    k.e("s_cmp_ge_u32 s2, 256\ns_cbranch_scc1 L_end")
    k.e("s_load_dwordx16 s[32:47], s[0:1], 0\ns_load_dwordx8 s[48:55], s[0:1], 64")
    k.e(f"v_lshrrev_b32 v2, 6, v0\nv_and_b32 v1, 63, v0\nv_readfirstlane_b32 s{S_WAVE}, v2")
    if OPT.stamps: k.e("v_mov_b32 v255, 0\nv_mov_b32 v254, 0\nv_mov_b32 v253, 0\ns_mov_b32 s97, 0")
    import core4; core4.DG[0] = OPT.dg; core4.WSB[0] = OPT.wsb*MB
    ITST[0] = max(OPT.stamps - 1, 0); ITST[1] = 254; CAP[0] = OPT.cap
    tile_map(k, 8, 4, 16)
    k.e(f"s_cmp_lt_u32 s{S_WAVE}, 4\ns_cbranch_scc1 L_cons")
    if OPT.spq < 0:
        k.e(f"s_and_b32 s93, s{S_M}, 7\ns_mul_i32 s93, s93, {OPT.qm}\ns_lshr_b32 s93, s93, 3\ns_add_u32 s93, s93, {OPT.q0}")
    k.e(f"s_and_b32 s{S_LW}, s{S_WAVE}, 1\ns_sub_u32 s{S_Q}, s{S_WAVE}, 4\ns_cmp_ge_u32 s{S_WAVE}, 6\ns_cbranch_scc1 L_aux")
    if OPT.pl: k.e(f"s_setprio {OPT.pl}")
    loader(k)
    k.e("L_aux:")
    grp(k, 0)
    if OPT.pa: k.e(f"s_setprio {OPT.pa}")
    aux(k)
    k.e("L_cons:")
    grp(k, 0)
    if OPT.pc: k.e(f"s_setprio {OPT.pc}")
    consumer(k)
    k.e("L_fin:")
    if OPT.stamps:
        k.e("s_waitcnt vmcnt(0)")
        stamp(k, 20)
        mk_srd(k, SRD_D, P_WS, 2*MB, WS_END)
        k.e(f"""s_lshl_b32 s{S_T}, s2, 3
        s_add_u32 s{S_T}, s{S_T}, s{S_WAVE}
        s_lshl_b32 s{S_T}, s{S_T}, 8
        v_lshlrev_b32 v2, 2, v1
        buffer_store_dword v255, v2, {srd(SRD_D)}, s{S_T} offen
        s_add_u32 s{S_T}, s{S_T}, 0x80000
        buffer_store_dword v254, v2, {srd(SRD_D)}, s{S_T} offen
        s_add_u32 s{S_T}, s{S_T}, 0x80000
        buffer_store_dword v253, v2, {srd(SRD_D)}, s{S_T} offen""")
    if OPT.probe:
        k.e(f"s_cmp_lg_u32 s{S_WAVE}, {OPT.pwave}\ns_cbranch_scc1 L_end\ns_cmp_ge_u32 s2, 224\ns_cbranch_scc1 L_end")
        if OPT.pwg >= 0: k.e(f"s_cmp_lg_u32 s2, {OPT.pwg}\ns_cbranch_scc1 L_end")
        k.e(f"v_writelane_b32 v255, s94, 31\ns_nop 1")
        k.e(f"v_readlane_b32 s{S_T}, v255, {OPT.probe}\nv_readlane_b32 s{S_T+1}, v255, {OPT.pfrom}\ns_nop 3\ns_sub_u32 s{S_T}, s{S_T}, s{S_T+1}\ns_mul_i32 s{S_T}, s{S_T}, 10\ns_add_u32 s{S_T}, s{S_T}, s94\ns_add_u32 s{S_T}, s{S_T}, 10000\nL_spin:\ns_memrealtime s[{S_ST}:{S_ST+1}]\ns_waitcnt lgkmcnt(0)\ns_sub_u32 s{S_T+1}, s{S_ST}, s{S_T}\ns_cmp_lt_i32 s{S_T+1}, 0\ns_cbranch_scc1 L_spin")
    k.e("L_end:\ns_endpgm")
    if OPT.pads: place_pads(k)
    out = [f"; @launch grid=(256,1,1) block=(512,1,1) lds={163840 if OPT.sk else L_END}",
           '.amdgcn_target "amdgcn-amd-amdhsa--gfx950"\n.text', header(KNAME) + k.text(), '.section .rodata,"a"', descriptor(KNAME, 256, 100)]
    return "\n".join(out)

if __name__ == "__main__":
    for a in sys.argv[2:]:
        kk, v = a.split("="); setattr(OPT, kk, int(v))
    open(sys.argv[1], "w").write(build())
```

```python
import math
from core import Kern, header, descriptor, vr, sr, srd, Regs, tr_lane_base, blk_tr_base

S_WAVE=3; S_M=4; S_N=5; S_PH=6; S_T0=7
SRD_S=8; SRD_F=12; SRD_A=16; SRD_B=20; SRD_W=24; SRD_D=28
P0=32
S_T=56
S_WM=72; S_WN=73; S_LW=74; S_KB=75
S_X=76
S_CNT=80; S_SLOT=81; S_DS=82; S_DF=83; S_OS=84; S_OF=85; S_M0W=86; S_TAU=87
S_K=88
S_FB=96
S_ST=98

def ptr(i): return P0 + 2*i

WSB = [0]
def mk_srd(k, d, p, nbytes, off=0):
    if p == 11: off += WSB[0]
    if off:
        k.e(f"s_add_u32 s{d}, s{ptr(p)}, {off}\ns_addc_u32 s{d+1}, s{ptr(p)+1}, 0")
    else:
        k.e(f"s_mov_b32 s{d}, s{ptr(p)}\ns_mov_b32 s{d+1}, s{ptr(p)+1}")
    k.e(f"s_mov_b32 s{d+2}, {nbytes}\ns_mov_b32 s{d+3}, 0x20000")

class Cfg:
    def __init__(self, BM, BN, T, NS, WM, WN, U, strideS, strideF, ftiles, nb_from_wave, panel_from_wave, orient=None,
                 rot=(-1,0,2,-1), pre_mfma=2, smode='rows', fmode='rows', baseS=0, baseF=65536, auxS="", auxF="", kbase=False, slot0=0, own2=False, pb=22, burst=3, cap2=False, old=7, jorder=None, half=0, chain=0):
        self.BM=BM; self.BN=BN; self.T=T; self.NS=NS; self.WM=WM; self.WN=WN; self.U=U
        self.strideS=strideS; self.strideF=strideF
        self.TM = BM//WM//32
        self.ftiles = ftiles; self.TN = len(ftiles)
        self.nb_from_wave = nb_from_wave; self.panel_from_wave = panel_from_wave
        self.orient = orient or ['T']*self.TN
        self.NP = BN//64
        self.slotS = BM*128; self.slotF = BN*128
        self.nS = BM//16; self.nF = BN//16
        self.nI = self.nS + self.nF
        self.rot = rot; self.pre_mfma = pre_mfma
        self.smode = smode; self.fmode = fmode
        self.baseS = baseS; self.baseF = baseF
        self.auxS = auxS; self.auxF = auxF
        self.slot0 = slot0; self.own2 = own2; self.pb = pb; self.burst = burst; self.cap2 = cap2; self.old = old; self.jorder = jorder; self.half = half; self.chain = chain
        self.kbase = kbase

def tile_map(k, gm, gn, ntn):
    xn = ntn // gn
    lg = int(math.log2(gm)); lx = int(math.log2(xn))
    k.e(f"""s_and_b32 s{S_T}, s2, 7
    s_lshr_b32 s{S_T+1}, s2, 3
    s_and_b32 s{S_T+2}, s{S_T+1}, {gm-1}
    s_lshr_b32 s{S_T+3}, s{S_T+1}, {lg}
    s_lshr_b32 s{S_M}, s{S_T}, {lx}
    s_mul_i32 s{S_M}, s{S_M}, {gm}
    s_add_u32 s{S_M}, s{S_M}, s{S_T+2}
    s_and_b32 s{S_N}, s{S_T}, {xn-1}
    s_mul_i32 s{S_N}, s{S_N}, {gn}
    s_add_u32 s{S_N}, s{S_N}, s{S_T+3}
    s_add_u32 s{S_PH}, s{S_T+2}, s{S_T+3}""")

def loader_voff_S(k, c, vb):
    w = S_LW
    if c.smode == 'rows':
        k.e(f"""v_lshrrev_b32 v2, 3, v1
        v_and_b32 v4, 7, v1
        s_lshl_b32 s{S_T+6}, s{w}, 3
        v_lshrrev_b32 v3, 4, v1
        s_lshl_b32 s{S_T+5}, s{w}, 2
        v_add_u32 v3, s{S_T+5}, v3
        v_xor_b32 v3, v3, v4
        v_lshlrev_b32 v3, 4, v3
        s_mul_i32 s{S_T+5}, s{S_M}, {c.BM}
        s_add_u32 s{S_T+5}, s{S_T+5}, s{S_T+6}
        v_add_u32 v5, s{S_T+5}, v2
        s_mov_b32 s{S_T+7}, {c.strideS}
        v_mul_lo_u32 v5, v5, s{S_T+7}
        v_add_u32 v{vb}, v5, v3""")
        for i in range(1, c.nS):
            k.e(f"v_add_u32 v{vb+i}, {i*16*c.strideS}, v{vb}")
    else:
        k.e(f"""s_mul_i32 s{S_T+5}, s{S_M}, {c.BM*c.strideS}
        s_add_u32 s{S_T+5}, s{S_T+5}, s{S_M0W}
        v_lshlrev_b32 v3, 4, v1
        v_add_u32 v{vb}, s{S_T+5}, v3""")
        for i in range(1, c.nS):
            k.e(f"v_add_u32 v{vb+i}, {(i>>1)*32*c.strideS + (i&1)*2048}, v{vb}")

def loader_voff_F(k, c, vb, colsg=None, panelconst=None):
    w = S_LW
    if c.fmode == 'rows':
        k.e(f"""v_lshrrev_b32 v2, 3, v1
        v_and_b32 v4, 7, v1
        s_lshl_b32 s{S_T+6}, s{w}, 3
        v_lshrrev_b32 v3, 2, v1
        v_and_b32 v3, 4, v3
        v_xor_b32 v3, v3, v4
        s_lshl_b32 s{S_T+5}, s{w}, 1
        v_xor_b32 v3, s{S_T+5}, v3
        v_lshlrev_b32 v3, 4, v3
        v_add_u32 v5, s{S_T+6}, v2
        s_mov_b32 s{S_T+7}, {c.strideF}
        v_mul_lo_u32 v5, v5, s{S_T+7}
        v_add3_u32 v5, v5, v3, s{colsg}""")
        for i in range(c.nF):
            k.e(f"v_add_u32 v{vb+i}, {panelconst(i>>2) + (i&3)*16*c.strideF}, v5")
    else:
        k.e(f"""s_mul_i32 s{S_T+5}, s{S_N}, {c.T*c.BN*128}
        s_add_u32 s{S_T+5}, s{S_T+5}, s{S_M0W}
        v_lshlrev_b32 v3, 4, v1
        v_add_u32 v{vb}, s{S_T+5}, v3""")
        for i in range(1, c.nF):
            k.e(f"v_add_u32 v{vb+i}, {i*2048}, v{vb}")

def kstep(k, c, t):
    src = S_TAU
    if c.own2 == 3:
        packed = sum(((d+8) & 15) << (4*u) for u, d in enumerate(c.rot))
        k.e(f"""s_sub_u32 s{t}, s{S_TAU}, s{S_PH}
        s_and_b32 s{t}, s{t}, 3
        s_lshl_b32 s{t}, s{t}, 2
        s_lshr_b32 s{t}, {packed}, s{t}
        s_and_b32 s{t}, s{t}, 15
        s_add_u32 s{t}, s{t}, s{S_TAU}
        s_sub_u32 s{t}, s{t}, 8
        s_sub_u32 s{t+1}, s{S_PH}, s{S_TAU}
        s_and_b32 s{t+1}, s{t+1}, 3
        s_add_u32 s{t+1}, s{t+1}, s{S_TAU}
        s_sub_u32 s{t+1}, s{t+1}, 4
        s_cmp_ge_u32 s{t+1}, 28
        s_cselect_b32 s{t}, s{S_TAU}, s{t}
        s_sub_u32 s{t+1}, s{t}, 2
        s_cmp_lt_u32 s{t+1}, s{S_KB}
        s_cselect_b32 s{t}, s{t+1}, s{t}
        s_add_u32 s{t+1}, s{S_KB}, s{S_TAU}
        s_cmp_lt_u32 s{S_TAU}, 2
        s_cselect_b32 s{t}, s{t+1}, s{t}
        s_add_u32 s{t}, s{t}, s93
        s_and_b32 s{t}, s{t}, 31""")
        return
    if c.own2 == 2:
        P = len(c.rot); packed = 0
        for u, d in enumerate(c.rot): packed |= ((d+8) & 15) << (4*u)
        k.e(f"""s_lshr_b32 s{t+1}, s{S_TAU}, 1
        s_sub_u32 s{t+2}, s{t+1}, 1
        s_cmp_ge_u32 s{t+2}, s{S_KB}
        s_addc_u32 s{t+2}, s{t+2}, 0
        s_cmp_eq_u32 s{t+1}, 0
        s_cselect_b32 s{t+2}, s{S_KB}, s{t+2}
        s_sub_u32 s{t}, s{t+2}, s{S_PH}
        s_and_b32 s{t}, s{t}, {P-1}
        s_lshl_b32 s{t}, s{t}, 2
        s_lshr_b32 s{t}, {packed}, s{t}
        s_and_b32 s{t}, s{t}, 15
        s_add_u32 s{t}, s{t}, s{t+2}
        s_sub_u32 s{t}, s{t}, 8
        s_and_b32 s{t}, s{t}, 15
        s_lshl_b32 s{t}, s{t}, 1
        s_and_b32 s{t+1}, s{S_TAU}, 1
        s_add_u32 s{t}, s{t}, s{t+1}""")
        return
    if c.kbase is not False:
        q = c.kbase if c.kbase >= 0 else 's93'
        k.e(f"""s_cmp_gt_u32 s{S_TAU}, {q}
        s_subb_u32 s{t+1}, s{S_TAU}, 0
        s_cmp_ge_u32 s{t+1}, s{S_KB}
        s_addc_u32 s{t+1}, s{t+1}, 0
        s_cmp_eq_u32 s{S_TAU}, {q}
        s_cselect_b32 s{t+1}, s{S_KB}, s{t+1}""")
        src = t+1
    if c.rot:
        P = len(c.rot); packed = 0
        for u, d in enumerate(c.rot): packed |= ((d+8) & 15) << (4*u)
        k.e(f"""s_sub_u32 s{t}, s{src}, s{S_PH}
        s_and_b32 s{t}, s{t}, {P-1}
        s_lshl_b32 s{t}, s{t}, 2
        s_lshr_b32 s{t}, {packed}, s{t}
        s_and_b32 s{t}, s{t}, 15
        s_add_u32 s{t}, s{t}, s{src}""")
        if c.half == 6:
            k.e(f"""s_sub_u32 s{t}, s{t}, 8
            s_sub_u32 s{t+1}, s{S_PH}, s{src}
            s_and_b32 s{t+1}, s{t+1}, 3
            s_add_u32 s{t+1}, s{t+1}, s{src}
            s_lshr_b32 s{t+1}, 0xff3c, s{t+1}
            s_and_b32 s{t+1}, s{t+1}, 1
            s_cselect_b32 s{t}, s{t}, s{src}
            s_lshl_b32 s{t}, s{t}, 2
            s_lshr_b64 s[{t+2}:{t+3}], s[88:89], s{t}
            s_and_b32 s{t}, s{t+2}, 15""")
        elif c.half == 16:
            k.e(f"""s_sub_u32 s{t}, s{t}, 8
            s_sub_u32 s{t+1}, s{S_PH}, s{src}
            s_and_b32 s{t+1}, s{t+1}, 3
            s_add_u32 s{t+1}, s{t+1}, s{src}
            s_sub_u32 s{t+1}, s{t+1}, 2
            s_cmp_ge_u32 s{t+1}, {c.T-2}
            s_cselect_b32 s{t}, s{src}, s{t}""")
        elif c.half == 8:
            k.e(f"s_and_b32 s{t}, s{t}, 7\ns_and_b32 s{t+1}, s{src}, 8\ns_or_b32 s{t}, s{t}, s{t+1}")
        elif c.half == 7:
            k.e(f"""s_sub_u32 s{t}, s{t}, 8
            s_add_u32 s{t+1}, s{t}, s{src}
            s_cmp_eq_u32 s{t+1}, 13
            s_cselect_b32 s{t}, s{src}, s{t}
            s_cmp_ge_u32 s{t}, 14
            s_cselect_b32 s{t}, s{src}, s{t}
            s_add_u32 s{t+1}, s{t}, 7
            s_cmp_ge_u32 s{t}, 7
            s_cselect_b32 s{t}, s{t+1}, s{t}""")
        elif c.T & (c.T-1) == 0:
            k.e(f"s_sub_u32 s{t}, s{t}, 8\ns_and_b32 s{t}, s{t}, {c.T-1}")
        else:
            RT = c.T - c.T % 4
            k.e(f"""s_add_u32 s{t}, s{t}, {RT-8}
            s_sub_u32 s{t+1}, s{t}, {RT}
            s_cmp_ge_u32 s{t}, {RT}
            s_cselect_b32 s{t}, s{t+1}, s{t}
            s_sub_u32 s{t+1}, s{t}, {RT}
            s_cmp_ge_u32 s{t}, {RT}
            s_cselect_b32 s{t}, s{t+1}, s{t}""")
            if RT != c.T: k.e(f"s_cmp_ge_u32 s{src}, {RT}\ns_cselect_b32 s{t}, s{src}, s{t}")
    else:
        k.e(f"s_mov_b32 s{t}, s{src}")
    if c.own2 == 1:
        k.e(f"""s_min_u32 s{t+1}, s{t}, s{S_TAU}
        s_max_u32 s{t+2}, s{t}, s{S_TAU}
        s_cmp_lt_u32 s{t+1}, 2
        s_cselect_b32 s{t+1}, s{t+2}, 0
        s_cmp_ge_u32 s{t+1}, 2
        s_cselect_b32 s{t}, s{S_TAU}, s{t}
        s_add_u32 s{t}, s{t}, s{S_KB}
        s_and_b32 s{t}, s{t}, {c.T-1}""")

def issue(k, c, vS, vF, parts="SF", fbase=False):
    t = S_T+8
    kstep(k, c, t)
    if DG[0] & 2: k.e(f"s_and_b32 s{t}, s{t}, 1")
    stepS = 7 if c.smode == 'rows' else 12
    stepF = 64*c.strideF if c.fmode == 'rows' else c.BN*128
    if 'S' in parts:
        k.e(f"""s_lshl_b32 s{S_OS}, s{t}, {stepS}
        s_mul_i32 s{t+1}, s{S_SLOT}, {c.slotS}
        s_add_u32 s{t+1}, s{t+1}, s{S_M0W}
        s_add_u32 m0, s{t+1}, {c.baseS}
        {gapi()}""")
        for i in range(c.nS):
            k.e(f"buffer_load_dwordx4 v{vS+i}, {srd(SRD_S)}, s{S_OS} offen {c.auxS} lds")
            if i < c.nS-1: k.e("s_add_u32 m0, m0, 2048\n" + gapi())
    if 'F' in parts:
        k.e(f"""s_mul_i32 s{S_OF}, s{t}, {stepF}
        s_mul_i32 s{t+1}, s{S_SLOT}, {c.slotF}
        s_add_u32 s{t+1}, s{t+1}, s{S_M0W}
        s_add_u32 m0, s{t+1}, {c.baseF}""")
        if fbase: k.e(f"s_add_u32 s{S_OF}, s{S_OF}, s{S_FB}")
        if CAP[0] or not fbase: k.e(gapi())
        for i in range(c.nF):
            k.e(f"buffer_load_dwordx4 v{vF+i}, {srd(SRD_F)}, s{S_OF} offen {c.auxF} lds")
            if i < c.nF-1: k.e("s_add_u32 m0, m0, 2048\n" + gapi())
    k.e(f"""s_add_u32 s{S_TAU}, s{S_TAU}, 1
    s_add_u32 s{S_SLOT}, s{S_SLOT}, 1
    s_cmp_eq_u32 s{S_SLOT}, {c.NS}
    s_cselect_b32 s{S_SLOT}, 0, s{S_SLOT}""")

def issue_first(k, c, vS, vF, parts, fbase=False, pbarrier=True, t0=0, t1=None):
    n = (c.nS if 'S' in parts else 0) + (c.nF if 'F' in parts else 0)
    top = k.lab("if"); l1 = k.lab("if1")
    t1 = c.NS if t1 is None else t1
    k.e(f"s_mov_b32 s{S_TAU}, {t0}\ns_mov_b32 s{S_SLOT}, {(t0+c.slot0) % c.NS}\n{top}:")
    issue(k, c, vS, vF, parts, fbase)
    if pbarrier:
        k.e(f"s_cmp_lg_u32 s{S_TAU}, 2\ns_cbranch_scc1 {l1}\ns_waitcnt vmcnt({n})\ns_barrier\n{l1}:")
    k.e(f"s_cmp_lt_u32 s{S_TAU}, {t1}\ns_cbranch_scc1 {top}")

CAP = [0]
DG = [0]
def gapi():
    return f"s_waitcnt vmcnt({CAP[0]})" if CAP[0] else "s_nop 0"
ITST = [0, 254]
def itstamp(k):
    if ITST[0]:
        k.e(f"{'s_memtime' if ITST[0] == 2 else 's_memrealtime'} s[{S_ST}:{S_ST+1}]\ns_waitcnt lgkmcnt(0)\ns_mov_b32 m0, s97\ns_nop 0\nv_writelane_b32 v{ITST[1]}, s{S_ST}, m0\ns_add_u32 s97, s97, 1")

S_PA = 60
UNR = [2]
def prep_groups(k, c, dst, fbase):
    t = S_T+8
    tk = Kern(k.name); kstep(tk, c, t)
    if DG[0] & 2: tk.e(f"s_and_b32 s{t}, s{t}, 1")
    stepS = 7 if c.smode == 'rows' else 12
    stepF = 64*c.strideF if c.fmode == 'rows' else c.BN*128
    tk.e(f"s_lshl_b32 s{dst}, s{t}, {stepS}\ns_mul_i32 s{dst+1}, s{t}, {stepF}")
    if fbase: tk.e(f"s_add_u32 s{dst+1}, s{dst+1}, s{S_FB}")
    tk.e(f"""s_mul_i32 s{dst+2}, s{S_SLOT}, {c.slotS}
    s_add_u32 s{dst+2}, s{dst+2}, s{S_M0W}
    s_mul_i32 s{dst+3}, s{S_SLOT}, {c.slotF}
    s_add_u32 s{dst+3}, s{dst+3}, s{S_M0W}
    s_add_u32 s{S_TAU}, s{S_TAU}, 1
    s_add_u32 s{S_SLOT}, s{S_SLOT}, 1
    s_cmp_eq_u32 s{S_SLOT}, {c.NS}
    s_cselect_b32 s{S_SLOT}, 0, s{S_SLOT}""")
    L = [x.strip() for x in tk.L]; G = []
    for x in L:
        if x.startswith(("s_cselect", "s_addc", "s_subb")): G[-1].append(x)
        else: G.append([x])
    return G

def steady(k, c, vS, vF, upto, fbase=False, wait=None):
    top = k.lab("st"); done = k.lab("std")
    w = (c.NS-2)*c.nI if wait is None else wait
    sets = [S_PA, S_PA+8]
    for g in prep_groups(k, c, sets[0], fbase):
        for x in g: k.e(x)
    k.e(f"{top}:")
    for h in range(2):
        cur, nx = sets[h], sets[h ^ 1]
        G = prep_groups(k, c, nx, fbase)
        dm = []
        if not DG[0] & 4: dm += [(f"buffer_load_dwordx4 v{vS+i}, {srd(SRD_S)}, s{cur} offen {c.auxS} lds", f"s_add_u32 m0, s{cur+2}, {c.baseS + i*2048}") for i in range(c.nS)]
        if not DG[0] & 8: dm += [(f"buffer_load_dwordx4 v{vF+i}, {srd(SRD_F)}, s{cur+1} offen {c.auxF} lds", f"s_add_u32 m0, s{cur+3}, {c.baseF + i*2048}") for i in range(c.nF)]
        if dm and not ITST[0]: k.e(dm[0][1])
        k.e(f"s_waitcnt vmcnt({w})\ns_barrier")
        if ITST[0]:
            itstamp(k)
            if dm: k.e(dm[0][1] + "\ns_nop 0")
        ng = max(len(dm)-1, 1); gi = 0
        for i, (ld, m0) in enumerate(dm):
            k.e(ld)
            if i < len(dm)-1:
                k.e(dm[i+1][1])
                tgt = -(-len(G)*(i+1)//ng); n0 = gi
                while gi < tgt:
                    for x in G[gi]: k.e(x)
                    gi += 1
                if gi == n0: k.e("s_nop 0")
        while gi < len(G):
            for x in G[gi]: k.e(x)
            gi += 1
        if h == 0: k.e(f"s_cmp_gt_u32 s{S_TAU}, {upto}\ns_cbranch_scc1 {done}")
        else: k.e(f"s_cmp_le_u32 s{S_TAU}, {upto}\ns_cbranch_scc1 {top}")
    k.e(f"""{done}:
    s_sub_u32 s{S_TAU}, s{S_TAU}, 1
    s_cmp_eq_u32 s{S_SLOT}, 0
    s_cselect_b32 s{S_SLOT}, {c.NS}, s{S_SLOT}
    s_sub_u32 s{S_SLOT}, s{S_SLOT}, 1""")

class Seg:
    def __init__(s_, c, vS, vF, fbase=False, srdS=SRD_S, srdF=SRD_F):
        s_.c = c; s_.vS = vS; s_.vF = vF; s_.fbase = fbase; s_.srdS = srdS; s_.srdF = srdF

class LProg:
    def __init__(s_, k): s_.k = k; s_.h = 0
    def prep(s_, seg, pre=()):
        for x in pre: s_.k.e(x)
        for g in prep_groups(s_.k, seg.c, S_PA + 8*s_.h, seg.fbase):
            for x in g: s_.k.e(x)
    def stage(s_, seg, parts="SF", sync="", nxt=True, pre=(), stampit=False):
        k = s_.k; c = seg.c; cur = S_PA + 8*s_.h; nx = S_PA + 8*(s_.h ^ 1)
        ns = seg if nxt is True else nxt
        G = ([[x] for x in pre] + prep_groups(k, ns.c, nx, ns.fbase)) if ns else []
        dm = []
        if 'S' in parts: dm += [(f"buffer_load_dwordx4 v{seg.vS+i}, {srd(seg.srdS)}, s{cur} offen {c.auxS} lds", f"s_add_u32 m0, s{cur+2}, {c.baseS + i*2048}") for i in range(c.nS)]
        if 'F' in parts: dm += [(f"buffer_load_dwordx4 v{seg.vF+i}, {srd(seg.srdF)}, s{cur+1} offen {c.auxF} lds", f"s_add_u32 m0, s{cur+3}, {c.baseF + i*2048}") for i in range(c.nF)]
        st = stampit and ITST[0]
        if not st: k.e(dm[0][1])
        k.e(sync if sync else "s_nop 0")
        if st:
            itstamp(k); k.e(dm[0][1] + "\ns_nop 0")
        ng = max(len(dm)-1, 1); gi = 0
        for i, (ld, m0) in enumerate(dm):
            k.e(ld)
            if i < len(dm)-1:
                k.e(dm[i+1][1])
                tgt = -(-len(G)*(i+1)//ng); n0 = gi
                while gi < tgt:
                    for x in G[gi]: k.e(x)
                    gi += 1
                if gi == n0: k.e("s_nop 0")
        s_.h ^= 1
    def run(s_, seg, n, wait, nxt=False, pre=()):
        k = s_.k; sync = f"s_waitcnt vmcnt({wait})\ns_barrier"
        m = n - 1
        if m % 2: s_.stage(seg, sync=sync, stampit=True); m -= 1
        if m >= 4:
            top = k.lab("lp")
            k.e(f"s_mov_b32 s{S_CNT}, {m//2}\n{top}:")
            s_.stage(seg, sync=sync, stampit=True, pre=[f"s_sub_u32 s{S_CNT}, s{S_CNT}, 1"]); s_.stage(seg, sync=sync, stampit=True)
            k.e(f"s_cmp_lg_u32 s{S_CNT}, 0\ns_cbranch_scc1 {top}")
        else:
            for _ in range(m): s_.stage(seg, sync=sync, stampit=True)
        s_.stage(seg, sync=sync, nxt=nxt, pre=pre, stampit=True)

def issue_noadv(k, c, vS, vF, parts, fbase=False):
    n0 = len(k.L)
    issue(k, c, vS, vF, parts, fbase)
    del k.L[-4:]

def steady_skew(k, c, vS, vF):
    top = k.lab("sk"); done = k.lab("skd")
    k.e(f"{top}:\ns_waitcnt vmcnt({c.nS+2*c.nF})\ns_barrier")
    itstamp(k)
    issue(k, c, vS, vF, "S")
    k.e(f"s_cmp_eq_u32 s{S_TAU}, {c.T}\ns_cbranch_scc1 {done}")
    issue_noadv(k, c, vS, vF, "F")
    k.e(f"s_branch {top}\n{done}:")

def one(k, c, vS, vF, fbase=False, wait=None):
    w = (c.NS-2)*c.nI if wait is None else wait
    k.e(f"s_waitcnt vmcnt({w})\ns_barrier")
    itstamp(k)
    issue(k, c, vS, vF, "SF", fbase)

def after_split_prologue(k, c, vS, vF, first_n, fbase=False):
    for j in range(c.NS-2):
        one(k, c, vS, vF, fbase, wait=(c.NS-2-j)*first_n + j*c.nI)

def consumer_addr(k, c, R, slot=None, t=16, setslot=True):
    wm = S_WM; wn = S_WN
    lw = int(math.log2(c.WN))
    slot = c.slot0 if slot is None else slot
    if setslot:
        k.e(f"s_mov_b32 s{S_SLOT}, {slot}\ns_mov_b32 s{S_OS}, {-(c.NS-1)*c.slotS}\ns_mov_b32 s{S_OF}, {-(c.NS-1)*c.slotF}")
        for g in slot_adv(c): k.e(g)
    k.e(f"s_lshr_b32 s{wm}, s{S_WAVE}, {lw}\ns_and_b32 s{wn}, s{S_WAVE}, {c.WN-1}")
    k.e(f"s_mul_i32 s{S_T+6}, s{wm}, {c.TM*4096}\ns_add_u32 s{S_T+6}, s{S_T+6}, {c.baseS + slot*c.slotS}")
    k.e(f"v_and_b32 v{t}, 15, v1\nv_lshrrev_b32 v{t+1}, 4, v1")
    if c.smode == 'rows':
        k.e(f"""v_bfe_u32 v{t+2}, v1, 1, 3
        v_xor_b32 v{t+2}, v{t+2}, v{t+1}
        v_lshlrev_b32 v{t+2}, 4, v{t+2}
        v_lshl_add_u32 v{t+2}, v{t}, 7, v{t+2}
        v_add_u32 v{R.aS[0]}, s{S_T+6}, v{t+2}
        v_xor_b32 v{R.aS[1]}, 64, v{R.aS[0]}""")
    else:
        k.e(f"""v_lshlrev_b32 v{t+2}, 4, v{t}
        v_lshl_add_u32 v{t+2}, v{t+1}, 9, v{t+2}
        v_add_u32 v{R.aS[0]}, s{S_T+6}, v{t+2}""")
    a0 = R.aF[0]
    if c.fmode == 'rows':
        k.e(f"""v_bfe_u32 v{t+2}, v1, 2, 2
        v_lshlrev_b32 v{a0}, 7, v{t+2}
        v_lshl_add_u32 v{a0}, v{t+1}, 10, v{a0}
        v_bfe_u32 v{t+2}, v1, 3, 1
        v_lshl_add_u32 v{a0}, v{t+2}, 6, v{a0}
        v_bfe_u32 v{t+2}, v1, 4, 1
        v_lshl_add_u32 v{a0}, v{t+2}, 5, v{a0}
        s_mov_b32 s{S_T+6}, {c.baseF + slot*c.slotF}""")
        if c.panel_from_wave: k.e(f"s_lshl_b32 s{S_T+7}, s{wn}, 13\ns_add_u32 s{S_T+6}, s{S_T+6}, s{S_T+7}")
        k.e(f"v_add_u32 v{a0}, s{S_T+6}, v{a0}")
        if c.nb_from_wave:
            k.e(f"s_lshl_b32 s{S_T+7}, s{wn}, 6\nv_xor_b32 v{a0}, s{S_T+7}, v{a0}")
            k.e(f"""v_and_b32 v{t+2}, 1, v1
            v_lshl_add_u32 v{R.aF[2]}, v{t+2}, 4, v{a0}
            v_bfe_u32 v{t+2}, v1, 1, 1
            v_lshl_add_u32 v{R.aF[2]}, v{t+2}, 3, v{R.aF[2]}
            v_add_u32 v{R.aF[2]}, {8192*c.ftiles[c.orient.index('N')][0]}, v{R.aF[2]}
            v_xor_b32 v{R.aF[3]}, 32, v{R.aF[2]}""")
        k.e(f"v_and_b32 v{t+2}, 3, v1\nv_lshl_add_u32 v{a0}, v{t+2}, 3, v{a0}")
        for b in range(1, 2 if c.nb_from_wave else 4): k.e(f"v_xor_b32 v{R.aF[b]}, {32*b}, v{a0}")
    else:
        k.e(f"""v_bfe_u32 v{t+2}, v1, 2, 2
        v_lshl_add_u32 v{t+2}, v{t+1}, 3, v{t+2}
        v_lshlrev_b32 v{a0}, 4, v{t+2}
        v_bfe_u32 v{t+2}, v1, 1, 1
        v_lshl_add_u32 v{a0}, v{t+2}, 6, v{a0}
        v_lshl_add_u32 v{a0}, v{t+2}, 9, v{a0}
        v_and_b32 v{t+2}, 1, v1
        v_lshl_add_u32 v{a0}, v{t+2}, 3, v{a0}
        s_lshl_b32 s{S_T+6}, s{wn}, 12
        s_add_u32 s{S_T+6}, s{S_T+6}, {c.baseF + slot*c.slotF}
        v_add_u32 v{a0}, s{S_T+6}, v{a0}
        v_xor_b32 v{R.aF[1]}, 64, v{a0}""")

def slot_adv(c):
    if c.NS == 4:
        g = [f"s_add_u32 s{S_SLOT}, s{S_SLOT}, 1", f"s_and_b32 s{S_SLOT}, s{S_SLOT}, 3\ns_cselect_b32 s{S_DS}, {c.slotS}, s{S_OS}"]
        if c.slotF != c.slotS:
            assert 2*c.slotF == c.slotS
            g.append(f"s_ashr_i32 s{S_DF}, s{S_DS}, 1")
        return g
    return [f"s_add_u32 s{S_SLOT}, s{S_SLOT}, 1\ns_cmp_lg_u32 s{S_SLOT}, {c.NS}",
            f"s_cselect_b32 s{S_DS}, {c.slotS}, s{S_OS}\ns_cselect_b32 s{S_DF}, {c.slotF}, s{S_OF}", f"s_cselect_b32 s{S_SLOT}, s{S_SLOT}, 0"]

M16 = "v_mfma_f32_16x16x32_bf16"
class Cons:
    def __init__(s_, k, c, R):
        s_.k = k; s_.c = c; s_.R = R
        s_.TS = 2*c.TM; s_.TF = 2*c.TN
        s_.NF = (getattr(R, 'nfr', 48) - 8*s_.TS)//4
        assert (2*s_.TF) % s_.NF == 0
        s_.NM = 2*s_.TS*s_.TF
        s_.jo = list(c.jorder) if c.jorder else list(range(2*s_.TF))
        if c.chain:
            s_.jo = [u*s_.TF + f for f in range(s_.TF) for u in range(2)]
            s_.seq = [(u, t, f) for f in range(s_.TF) for t in (s_.order(f) if f < s_.TF-1 or c.chain == 2 else range(s_.TS)) for u in range(2)]
        else:
            s_.seq = [(j // s_.TF, t, j % s_.TF) for j in s_.jo for t in s_.order(j % s_.TF)]
        s_.pos = {j: i for i, j in enumerate(s_.jo)}
        s_.plan()
    def acc(s_, st, ft): return s_.R.acc + 16*(ft*s_.c.TM+st)
    def sub(s_, t, f):
        a = s_.acc(t >> 1, f >> 1)
        return a + (8*(f & 1) + 4*(t & 1) if s_.c.orient[f >> 1] == 'T' else 8*(t & 1) + 4*(f & 1))
    def rS(s_, u, t, par=0): return (s_.R.s2 if par and s_.c.chain == 2 else s_.R.fr) + (u*s_.TS + t)*4
    def rF(s_, j): return s_.R.fr + 8*s_.TS + (s_.pos[j] % s_.NF)*4
    def order(s_, f): return list(range(s_.TS)) if f % 2 == 0 else list(range(s_.TS-1, -1, -1))
    def rdS(s_, u, t):
        c, R = s_.c, s_.R
        if c.smode == 'rows': return f"ds_read_b128 {vr(s_.rS(u,t),4)}, v{R.aS[u]} offset:{t*2048}"
        return f"ds_read_b128 {vr(s_.rS(u,t),4)}, v{R.aS[0]} offset:{(t>>1)*4096 + u*2048 + (t&1)*256}"
    def rdF(s_, j, rd):
        c, R = s_.c, s_.R
        u, f = divmod(j, s_.TF); P, nb = c.ftiles[f >> 1]
        if c.fmode == 'rows':
            if c.nb_from_wave:
                a = R.aF[(f & 1) + (2 if c.orient[f >> 1] == 'N' else 0)]
                if c.orient[f >> 1] == 'N': P = 0
            else: a = R.aF[2*nb + (f & 1)]
            return f"ds_read_b64_tr_b16 {vr(s_.rF(j)+2*rd,2)}, v{a} offset:{P*8192 + u*4096 + rd*512}"
        return f"ds_read_b64_tr_b16 {vr(s_.rF(j)+2*rd,2)}, v{R.aF[rd]} offset:{u*c.BN*64 + ((P*2+nb)*2 + (f&1))*1024}"
    def plan(s_):
        TS, TF, NF, NM = s_.TS, s_.TF, s_.NF, s_.NM
        G = TS*TF
        pb = s_.c.pb
        items = []
        useS = {}; useF = {}
        for p, (u, t, f) in enumerate(s_.seq):
            useS.setdefault((u, t), []).append(p); useF.setdefault(u*TF+f, []).append(p)
        for (u, t), ps in useS.items():
            lastp = -1 if s_.c.chain == 2 else ps[-1] if s_.c.chain else max(useS[(u, tt)][-1] for tt in range(TS))
            items.append((ps[0], lastp+1 - NM, s_.rdS(u, t), ('S', u, t)))
        for j, ps in useF.items():
            i = s_.pos[j] - NF
            e = useF[s_.jo[i % (2*TF)]][-1] + 1 - (NM if i < 0 else 0)
            for rd in range(2): items.append((ps[0] - (0.6 + 0.75*(j // TF) if s_.c.chain else 0.5) + 0.1*rd, e, s_.rdF(j, rd), ('F', j)))
        items.sort(key=lambda x: x[0])
        cnt = {}; sched = []; g = pb - NM
        for use, e, txt, tag in items:
            g = max(g, e)
            cap = lambda gg: 2 if (gg < pb - NM + s_.c.burst or s_.c.cap2 is True) else 1
            while cnt.get(g, 0) >= cap(g): g += 1
            cnt[g] = cnt.get(g, 0) + 1
            sched.append((g, txt, tag))
            assert g <= use + 1.5, (g, use, tag)
        s_.sched = sched; s_.lastcur = max(g for g, _, _ in sched)
        assert s_.lastcur < pb, (s_.lastcur, pb)
    def first_reads_static(s_, slot):
        for g, txt, tag in s_.sched:
            if g < 0:
                a, b = txt.rsplit("offset:", 1)
                s_.k.e(f"{a}offset:{int(b) + slot*(s_.c.slotS if tag[0] == 'S' else s_.c.slotF)}")
    def loop4(s_, nrep, slot):
        k = s_.k; lp = k.lab("c4")
        k.e(f"s_mov_b32 s{S_CNT}, {nrep}\n.p2align 6\n{lp}:")
        for i in range(s_.c.NS):
            s_.loop(1, slot=(slot+i) % s_.c.NS, fillers=([f"s_sub_u32 s{S_CNT}, s{S_CNT}, 1", f"s_cmp_lg_u32 s{S_CNT}, 0"] if i == s_.c.NS-1 else None))
        k.e(f"s_cbranch_scc1 {lp}")
    def loopu(s_, nrep, unr):
        k = s_.k; lp = k.lab("cu")
        if nrep > 1: k.e(f"s_mov_b32 s{S_CNT}, {nrep}\n.p2align 6\n{lp}:")
        for i in range(unr): s_.loop(1)
        if nrep > 1: k.e(f"s_sub_u32 s{S_CNT}, s{S_CNT}, 1\ns_cmp_lg_u32 s{S_CNT}, 0\ns_cbranch_scc1 {lp}")
    def zero(s_):
        for i in range(0, s_.c.TM*s_.c.TN*16, 2): s_.k.e(f"v_mov_b64 v[{s_.R.acc+i}:{s_.R.acc+i+1}], 0")
    def first_reads(s_):
        for g, txt, tag in s_.sched:
            if g < 0: s_.k.e(txt)
    def loop(s_, nsteps, pre_barrier=None, fillers=None, budget=8, next_cons=None, tail=None, slot=None, nslot=None, fstart=1):
        k, c, R = s_.k, s_.c, s_.R
        TS, TF, NM, pb = s_.TS, s_.TF, s_.NM, s_.c.pb
        q = [tag for g, _, tag in s_.sched if g < 0]
        lp = k.lab("cloop")
        if nsteps > 1: k.e(f"s_mov_b32 s{S_CNT}, 0\n.p2align 6\n{lp}:")
        gaps = [[] for _ in range(NM+1)]; mfs = []
        nxt = s_ if next_cons is None else next_cons
        byg = {}
        def sh(txt, tag, cc, sl):
            if sl is None: return txt
            a, b = txt.rsplit("offset:", 1)
            o = int(b) + sl*(cc.slotS if tag[0] == 'S' else cc.slotF)
            if tag[0] == 'S' and cc.chain == 2 and sl & 1: a = a.replace(vr(s_.rS(tag[1], tag[2]), 4), vr(s_.rS(tag[1], tag[2], 1), 4))
            assert o < 65536
            return f"{a}offset:{o}"
        if slot is not None and nslot is None: nslot = (slot+1) % c.NS
        for g, txt, tag in s_.sched:
            if g >= 0: byg.setdefault(g, []).append((sh(txt, tag, c, slot), tag))
        if nxt:
            for g, txt, tag in nxt.sched:
                if g < 0: byg.setdefault(max(g + NM, pb), []).append((sh(txt, tag, nxt.c, nslot), ('n',)+tag))
        for i, txt in enumerate(tail or []): byg.setdefault(min(pb + i//2, NM), []).append((txt, ('x', i)))
        dF = S_DF if c.slotF != c.slotS else S_DS
        upd = [f"v_add_u32 v{a}, s{S_DS}, v{a}" for a in R.aS] + [f"v_add_u32 v{a}, s{dF}, v{a}" for a in R.aF]
        if slot is not None: upd = []
        ng = max(pb - s_.lastcur - 1, 1); per = max(-(-len(upd)//ng), 1)
        misc = {}
        for i, x in enumerate(upd): misc.setdefault(s_.lastcur + 1 + i//per, []).append(x)
        sal = ([f"s_add_u32 s{S_CNT}, s{S_CNT}, 1"] if nsteps > 1 else []) + slot_adv(c)
        if slot is not None: sal = []
        assert c.NS == 4 or not fillers or slot is not None
        assert len(sal) <= NM-pb-1
        free = sorted(range(pb+1, NM), key=lambda g: (len(byg.get(g, [])), -g))[:len(sal)]
        for g, x in zip(sorted(free), sal): misc.setdefault(g, []).extend(x.split("\n"))
        when = {tag: g for g, _, tag in s_.sched}
        p = 0
        for u, t, f in s_.seq:
            j = u*TF + f
            if True:
                G_ = gaps[p]
                G_ += misc.get(p, [])
                if p == pb:
                    G_.append("s_waitcnt lgkmcnt(0)" + (" vmcnt(0)" if pre_barrier == "vm" else "")); q.clear()
                    G_.append("s_barrier")
                tags = [('S', u, t), ('F', j)]
                if len(q) + len(byg.get(p, [])) > 15:
                    idx = max([i for i, tg in enumerate(q) if tg in tags] + [len(q) + len(byg[p]) - 16])
                    while idx+1 < len(q) and when.get(q[idx+1], 99) <= p - c.old: idx += 1
                    G_.append(f"s_waitcnt lgkmcnt({len(q)-1-idx})"); del q[:idx+1]
                for txt, tag in byg.get(p, []): G_.append(txt); q.append(tag)
                idx = max([i for i, tg in enumerate(q) if tg in tags], default=-1)
                if idx >= 0:
                    while idx+1 < len(q) and when.get(q[idx+1], 99) <= p - c.old: idx += 1
                    n = len(q) - 1 - idx
                    assert n <= 15
                    G_.append(f"s_waitcnt lgkmcnt({n})"); del q[:idx+1]
                pr = (slot or 0) & 1
                assert slot is not None or c.chain != 2
                a, b = (s_.rF(j), s_.rS(u, t, pr)) if c.orient[f >> 1] == 'T' else (s_.rS(u, t, pr), s_.rF(j))
                d = s_.sub(t, f)
                mfs.append(f"{M16} {vr(d,4)}, {vr(a,4)}, {vr(b,4)}, {vr(d,4)}")
                p += 1
        for txt, tag in byg.get(NM, []): gaps[NM].append(txt)
        if nsteps > 1: gaps[NM] += [f"s_cmp_lt_u32 s{S_CNT}, {nsteps}", f"s_cbranch_scc1 {lp}"]
        isv = lambda x: x.startswith("v_")
        tr = lambda x: x.startswith(("v_exp", "v_rcp", "v_rsq", "v_sqrt"))
        def cost(x):
            if tr(x) or x.startswith("buffer_"): return 2
            if x.startswith("s_"): return 0.5
            return 1
        def base_used(g):
            nd = sum(x.startswith("ds_") for x in g); nw = sum(x.startswith("s_waitcnt") for x in g)
            if any(x.startswith(("s_barrier", "s_cbranch")) for x in g): return 9
            return nd*(1 if nd < 2 else 0.5) + (nw if nd else 0.5*nw) + sum(isv(x) for x in g) + 0.3*sum(x.startswith("s_") and not x.startswith("s_waitcnt") for x in g)
        fl = []; ming = []; cg_ = 0
        for x in (fillers or []):
            if isinstance(x, int): cg_ = x
            else: fl.append(x); ming.append(cg_)
        place = [[] for _ in gaps]
        if fl:
            ngp = len(gaps) - 1
            used = [base_used(g) for g in gaps]
            b = budget/4
            while True:
                fi = 0; place = [[] for _ in gaps]
                tot = sum(cost(x) for x in fl); fre = sum(max(int(b-used[g]), 0) for g in range(fstart, ngp)); acc = 0; done = 0
                for g in range(fstart, ngp):
                    room = max(int(b - used[g]), 0); acc += room
                    while fi < len(fl) and g >= ming[fi] and cost(fl[fi]) <= room and done < 1.15*acc*tot/max(fre, 1):
                        room -= cost(fl[fi]); done += cost(fl[fi]); place[g].append(fl[fi]); fi += 1
                if fi == len(fl): break
                b += 1
        for g in range(len(gaps)):
            G_ = gaps[g]
            if g != pb: G_ = [x for x in G_ if not isv(x)] + [x for x in G_ if isv(x)]
            for x in G_: k.e(x)
            for x in place[g]:
                if x != 'PAD': k.e(x)
            if g < len(mfs): k.e(mfs[g])
```

```python
import sys, struct
from core4 import *

MB = 1<<20
WS_O=4*MB; WS_H=8*MB; WS_Z2N=20*MB; WS_U=28*MB
WS_KVP=36*MB; WS_ZP=38*MB; WS_KVF=38*MB+131072; WS_ZF=38*MB+262144; WS_HC=38*MB+524288; WS_XS=39*MB; WS_CQP=39*MB+65536; WS_CSP=39*MB+512*1024
WS_XP=12*MB; WS_HH=41*MB+512*1024; WS_HST=40*MB; WS_ZST=41*MB
FLS=4352
WS_FLAG=42*MB; F_O=WS_FLAG; F_H=WS_FLAG+16*FLS; F_Z=WS_FLAG+32*FLS; F_U=WS_FLAG+48*FLS
WS_END=43*MB
P_X=0; P_WQKV=1; P_WPHI=2; P_WO=3; P_WIN=5; P_WSP=6; P_BSP=7; P_WOUT=8; P_OUT=9; P_DBG=10; P_WS=11
S_Q=92; S_CW=90
L_CW=131072
L_WPHI=147456; L_XS=L_WPHI+4096; L_CQ=L_XS+1024; L_HS=L_CQ+1024; L_CS=L_HS+2048; L_ZP=L_CS+1024; L_ZS=L_ZP+2048; L_END=L_ZS+1024
KNAME = "sequential_preLN__linear_kernel_hedgehog__mixer_gmlp__prompt_kernel"

def f2u(x): return struct.unpack("<I", struct.pack("<f", x))[0]
LOG2E = 1.4426950408889634
C0 = -2*LOG2E*0.7978845608028654; C1 = C0*0.044715
MF = "v_mfma_f32_32x32x16_bf16"
W = srd(SRD_W)

class Opt:
    stamps = 0
    pf = 2
    slp = 4
    vslp = 2
    pfw = 0
    gat = 18
    spq = -1
    z1fill = 1
    nfill = 2
    p1ph = 1
    own2 = 3
    p4ph = 0
    vprio = 0
    zsp = 4
    dsx = 0
    kfslp = 21
    pfd = 1
    qpf = 0
    pb1 = 40
    pb2 = 10
    pb3 = 24
    bu = 2
    ue = 0
    ug = 2
    ch = 29
    fs5 = 11
    ot = 2
    xw = 0
    wa = 15
    wl = 13
    wsb = 0
    kst = 0
    zg = 1
    h3 = 16
    nw5 = 1
    nw2 = 1
    hh = 1
    hhs = 10
    fw = 0
    late = 0
    two = 7
    tw = 0
    tlb = 0
    wpos = 1
    hsp = 1
    hpos = 1
    zdma = 1
    xis = 4
    bu5 = 9
    nprio = 1
    qm = 5
    q0 = 1
    pads = 1
    xa = 0
    gb = 1
    nst = 0
    xl = 0
    sk = 1
    jo = 1
    jpad = 10
    f5 = 1
    pb5 = 25
    xslp = 3
    ct = 2
    p4loop = 0
    u1 = 3
    u3 = 3
    dg = 0
    bud = 8
    r1 = 0
    r2 = 0
    r3 = 0
    r4 = 0
    r5 = 0
    st4 = 5
    old = 5
    old2 = 7
    cyc = 0
    lead = 6
    fpos = 1
    l2 = 0
    r8 = 0
    kfe = 0
    kvr = 5
    probe = 0
    pwg = 83
    pfrom = 0
    pwave = 0
    cap = 0
    vmd = 1
    z1n = 2
    pa = 3
    pl = 2
    pc = 1
    kvslp = 20
OPT = Opt()

def unpack(k, lo, hi, src):
    k.e(f"v_lshlrev_b32 v{lo}, 16, v{src}\nv_and_b32 v{hi}, 0xffff0000, v{src}")
def cvt16(k, dst, src):
    for i in range(8): k.e(f"v_cvt_pk_bf16_f32 v{dst+i}, v{src+2*i}, v{src+2*i+1}")
def stamp(k, i):
    if OPT.stamps:
        k.e(f"s_memrealtime s[{S_ST}:{S_ST+1}]\ns_waitcnt lgkmcnt(0)\nv_writelane_b32 v255, s{S_ST}, {i}")
        if OPT.cyc: k.e(f"s_memtime s[{S_ST}:{S_ST+1}]\ns_waitcnt lgkmcnt(0)\nv_writelane_b32 v255, s{S_ST}, {i+32}")
def bars(k, n):
    if n <= 4:
        for _ in range(n): k.e("s_barrier")
    else:
        t = k.lab("bars")
        k.e(f"s_mov_b32 s{S_CNT}, {n}\n{t}:\ns_barrier\ns_sub_u32 s{S_CNT}, s{S_CNT}, 1\ns_cmp_lg_u32 s{S_CNT}, 0\ns_cbranch_scc1 {t}")

S_CLS = 101
def if_par(k, par, text, reg=2):
    sk = k.lab("par")
    k.e(f"s_bitcmp1_b32 s{reg}, 0\ns_cbranch_scc{1 if par == 0 else 0} {sk}\n{text}\n{sk}:")

def check_flags(k, nflags, val, oklab):
    k.e(f"""v_cmp_le_u32 vcc, {val}, v8
    s_and_b32 s{S_T+11}, vcc_lo, {(1<<nflags)-1}
    s_cmp_eq_u32 s{S_T+11}, {(1<<nflags)-1}
    s_cbranch_scc1 {oklab}""")
def spin_tail(k, top, slp=None):
    k.e(f"s_sleep {OPT.slp if slp is None else slp}\ns_sub_u32 s{S_T+10}, s{S_T+10}, 1\ns_cmp_lg_u32 s{S_T+10}, 0\ns_cbranch_scc1 {top}")
def poll(k, voff, nflags, srdn=SRD_W, val=1, pre=False):
    top = k.lab("poll"); done = k.lab("polld")
    k.e(f"s_cmp_lg_u32 s{S_LW}, 0\ns_cbranch_scc1 {done}")
    if pre:
        k.e("s_waitcnt vmcnt(0)")
        check_flags(k, nflags, val, done)
    k.e(f"s_mov_b32 s{S_T+10}, 0x40000\n{top}:")
    k.e(f"buffer_load_dword v8, v{voff}, {srd(srdn)}, 0 offen sc1\ns_waitcnt vmcnt(0)")
    check_flags(k, nflags, val, done)
    spin_tail(k, top)
    k.e(f"{done}:")
def sample(k, voff, srdn=SRD_W):
    sk = k.lab("nosm")
    k.e(f"s_cmp_lg_u32 s{S_LW}, 0\ns_cbranch_scc1 {sk}\nbuffer_load_dword v8, v{voff}, {srd(srdn)}, 0 offen sc1\n{sk}:")
def tagcheck(k, regs, t, ok):
    regs = list(regs)
    if len(regs) % 2 == 0:
        k.e(f"v_max_u32 v{t}, v{regs[0]}, v{regs[1]}"); rest = regs[2:]
    else:
        k.e(f"v_max3_u32 v{t}, v{regs[0]}, v{regs[1]}, v{regs[2]}"); rest = regs[3:]
    for i in range(0, len(rest), 2): k.e(f"v_max3_u32 v{t}, v{t}, v{rest[i]}, v{rest[i+1]}")
    k.e(f"v_cmp_eq_u32 vcc, -1, v{t}\ns_cmp_eq_u64 vcc, 0\ns_cbranch_scc1 {ok}")
def validated(k, gather, regs, t, pre=True):
    top = k.lab("vsp"); ok = k.lab("vok")
    if pre: tagcheck(k, regs, t, ok)
    k.e(f"s_mov_b32 s{S_T+10}, 0x40000\n{top}:")
    gather()
    k.e("s_waitcnt vmcnt(0)")
    tagcheck(k, regs, t, ok)
    spin_tail(k, top, OPT.vslp)
    k.e(f"{ok}:")

def cnt_addr(k, v, base, sline):
    k.e(f"""s_mul_i32 s{S_T}, s{sline}, {FLS}
    s_add_u32 s{S_T}, s{S_T}, {base}
    v_mov_b32 v{v}, s{S_T}""")
def set_flag(k, vset, lanes=1):
    sk = k.lab("nofl")
    k.e(f"""s_cmp_lg_u32 s{S_LW}, {OPT.fw}
    s_cbranch_scc1 {sk}
    s_mov_b64 exec, {lanes}
    buffer_atomic_add v11, v{vset}, {W}, 0 offen sc1
    s_mov_b64 exec, -1
    {sk}:""")

def softmax_pm(k0, P, EP, EN, T, OP, ON, inject=(), wpos=(), wneg=()):
    L = S_K
    k = Kern(k0.name)
    k.e(f"v_max3_f32 v{T}, v{P}, v{P+1}, v{P+2}\nv_min3_f32 v{T+1}, v{P}, v{P+1}, v{P+2}")
    for i in range(3, 15, 2):
        k.e(f"v_max3_f32 v{T}, v{T}, v{P+i}, v{P+i+1}\nv_min3_f32 v{T+1}, v{T+1}, v{P+i}, v{P+i+1}")
    k.e(f"""v_max_f32 v{T}, v{T}, v{P+15}
    v_max_f32 v{T+1}, -v{T+1}, -v{P+15}
    s_nop 1
    v_permlane32_swap_b32 v{T}, v{T+1}
    v_max_f32 v{T}, v{T}, v{T+1}
    v_mul_f32 v{T}, {f2u(-LOG2E)}, v{T}
    v_mov_b32 v{T+1}, v{T}
    s_nop 1
    v_permlane32_swap_b32 v{T}, v{T+1}""")
    for i in range(8):
        k.e(f"v_pk_fma_f32 v[{EP+2*i}:{EP+2*i+1}], v[{P+2*i}:{P+2*i+1}], s[{L}:{L+1}], v[{T}:{T+1}] op_sel_hi:[1,1,0]")
        k.e(f"v_pk_fma_f32 v[{EN+2*i}:{EN+2*i+1}], v[{P+2*i}:{P+2*i+1}], s[{L}:{L+1}], v[{T}:{T+1}] op_sel:[0,0,1] op_sel_hi:[1,1,1] neg_lo:[0,1,0] neg_hi:[0,1,0]")
    for i in range(16):
        k.e(f"v_exp_f32 v{EP+i}, v{EP+i}\nv_exp_f32 v{EN+i}, v{EN+i}")
    k.e(f"v_pk_add_f32 v[{T}:{T+1}], v[{EP}:{EP+1}], v[{EP+2}:{EP+3}]\nv_pk_add_f32 v[{T+2}:{T+3}], v[{EN}:{EN+1}], v[{EN+2}:{EN+3}]")
    for i in range(2, 8):
        k.e(f"v_pk_add_f32 v[{T}:{T+1}], v[{T}:{T+1}], v[{EP+2*i}:{EP+2*i+1}]\nv_pk_add_f32 v[{T+2}:{T+3}], v[{T+2}:{T+3}], v[{EN+2*i}:{EN+2*i+1}]")
    k.e(f"""v_add_f32 v{T}, v{T}, v{T+1}
    v_add_f32 v{T+1}, v{T+2}, v{T+3}
    s_nop 1
    v_permlane32_swap_b32 v{T}, v{T+1}
    v_add_f32 v{T}, v{T}, v{T+1}
    v_rcp_f32 v{T}, v{T}
    s_nop 0
    v_mov_b32 v{T+1}, v{T}
    s_nop 1
    v_permlane32_swap_b32 v{T}, v{T+1}""")
    inj = list(inject); step = max(len(k.L)//(len(inj)+1), 1)
    for i, x in enumerate(k.L):
        k0.e(x)
        if inj and i % step == step-1: k0.e(inj.pop(0))
    for x in inj: k0.e(x)
    k = k0
    for E, O, sel, wr in ((EP, OP, "op_sel_hi:[1,0]", wpos), (EN, ON, "op_sel:[0,1] op_sel_hi:[1,1]", wneg)):
        for hh in range(2):
            for i in range(4*hh, 4*hh+4): k.e(f"v_pk_mul_f32 v[{E+2*i}:{E+2*i+1}], v[{E+2*i}:{E+2*i+1}], v[{T}:{T+1}] {sel}")
            for i in range(4*hh, 4*hh+4): k.e(f"v_cvt_pk_bf16_f32 v{O+i}, v{E+2*i}, v{E+2*i+1}")
            if wr: k.e(wr[hh])

def softmax2(k, argsA, argsB, inject=(), wA=((), ()), wB=((), ())):
    ta = Kern(k.name); softmax_pm(ta, *argsA, wpos=wA[0], wneg=wA[1])
    tb = Kern(k.name); softmax_pm(tb, *argsB, wpos=wB[0], wneg=wB[1])
    L = []
    for x, y in zip(ta.L, tb.L):
        x = x.strip(); y = y.strip()
        if x == "s_nop 1": L.append("s_nop 0")
        elif x == "s_nop 0": pass
        else: L += [x, y]
    inj = list(inject); step = max((len(L)*2//3)//(len(inj)+1), 1)
    for i, x in enumerate(L):
        k.e(x)
        if inj and i % step == step-1: k.e(inj.pop(0))

def xhalf_sum2(k, a):
    k.e(f"""s_nop 1
    v_permlane32_swap_b32 v{a}, v{a+1}
    v_add_f32 v{a}, v{a}, v{a+1}
    v_mov_b32 v{a+1}, v{a}
    s_nop 1
    v_permlane32_swap_b32 v{a}, v{a+1}""")
def xswap_sum1(k, a, t, which=32):
    k.e(f"v_mov_b32 v{t}, v{a}\ns_nop 1\nv_permlane{which}_swap_b32 v{a}, v{t}\nv_add_f32 v{a}, v{a}, v{t}")
def xswap_sum(k, a, t, n, which):
    for i in range(n): k.e(f"v_mov_b32 v{t+i}, v{a+i}")
    k.e("s_nop 1")
    for i in range(n): k.e(f"v_permlane{which}_swap_b32 v{a+i}, v{t+i}")
    for i in range(n): k.e(f"v_add_f32 v{a+i}, v{a+i}, v{t+i}")
def ror_sum(k, a, n, sh):
    k.e("s_nop 1")
    for i in range(n): k.e(f"v_add_f32_dpp v{a+i}, v{a+i}, v{a+i} row_ror:{sh} row_mask:0xf bank_mask:0xf")
def acc_bf16(k, A, src, n, first, t, plain=False):
    for j in range(n):
        if first: unpack(k, A+2*j, A+2*j+1, src+j)
        elif plain:
            tt = t+2*(j & 1)
            unpack(k, tt, tt+1, src+j)
            k.e(f"v_add_f32 v{A+2*j}, v{A+2*j}, v{tt}\nv_add_f32 v{A+2*j+1}, v{A+2*j+1}, v{tt+1}")
        else:
            tt = t+2*(j & 1)
            unpack(k, tt, tt+1, src+j)
            k.e(f"v_pk_add_f32 v[{A+2*j}:{A+2*j+1}], v[{A+2*j}:{A+2*j+1}], v[{tt}:{tt+1}]")
def combine(k, P, n, cnt, d, t):
    k.e(f"v_pk_add_f32 v[{d}:{d+1}], v[{P}:{P+1}], v[{P+2}:{P+3}]")
    for i in range(2, n): k.e(f"v_pk_add_f32 v[{d}:{d+1}], v[{d}:{d+1}], v[{P+2*i}:{P+2*i+1}]")
    k.e(f"v_mul_f32 v{d}, {f2u(1.0/n)}, v{d}\nv_mov_b32 v{t+1}, 0")
    for i in range(n): k.e(f"v_sub_f32 v{t}, v{P+2*i}, v{d}\nv_fmac_f32 v{t+1}, v{t}, v{t}")
    k.e(f"v_fmac_f32 v{d+1}, {f2u(float(cnt))}, v{t+1}")
def finish_rstd(k, d, total):
    k.e(f"""v_mul_f32 v{d+1}, {f2u(1.0/total)}, v{d+1}
    v_add_f32 v{d+1}, {f2u(1e-5)}, v{d+1}
    v_rsq_f32 v{d+1}, v{d+1}
    s_nop 0
    v_mul_f32 v{d}, -v{d}, v{d+1}""")

ROTS = [(-1,0,2,-1), (-1,0,0,1), (-1,3,-1,-1), (-2,-2,-1,5), (0,0,0,0), (-2,-2,6,-2)]
def cfgs():
    c1 = Cfg(128,192,16,3,2,2,1, 2048, 6144, [(1,0),(2,0),(0,0)], True, False, orient=['T','N','T'], smode='rows', baseS=0, baseF=49152, kbase=OPT.spq, rot=ROTS[OPT.r1], pb=OPT.pb1, burst=OPT.bu, old=OPT.old)
    c2 = Cfg(128,64,16,4,4,1,2, 2048, 2048, [(0,0),(0,1)], False, False, smode='frag', auxS="sc1", rot=ROTS[OPT.r2], half=(6 if OPT.two & 4 else 16 if OPT.nw2 else 0), pb=OPT.pb2, cap2=True, old=OPT.old2)
    c3 = Cfg(128,128,16,4,2,2,1, 2048, 7168, [(0,0),(0,1)], False, True, smode='frag', auxS="sc1", slot0=2, rot=ROTS[OPT.r3], half=OPT.h3, pb=OPT.pb3, burst=OPT.bu, old=OPT.old)
    c4 = Cfg(128,128,32,4,2,2,1, 4096, 0, [(0,0),(0,1)], False, True, smode='rows', fmode='blk', auxF="sc1", rot=(-1,0,0,1) if OPT.own2 == 1 else ROTS[OPT.r4], own2=OPT.own2, pb=OPT.pb3, burst=OPT.bu, old=OPT.old)
    c5 = Cfg(128,64,28,4,4,1,2, 3584, 2048, [(0,0),(0,1)], False, False, smode='frag', auxS="sc1", baseF=114688, slot0=2, rot=ROTS[OPT.r5], pb=OPT.pb2, cap2=True, old=OPT.old2)
    if OPT.sk:
        c5 = Cfg(128,128,14,4,4,1,2, 3584, 2048, [(0,0),(0,1),(1,0),(1,1)], False, False, smode='frag', auxS="sc1", baseF=98304, slot0=2, rot=ROTS[1 if OPT.two & 2 else OPT.r5], half=(7 if OPT.two & 2 else (16 if OPT.nw5 else 0)), pb=OPT.pb5, cap2=(OPT.bu5 == 0), burst=OPT.bu5, old=OPT.old2, jorder=[0,1,2,3,8,9,10,11,4,5,6,7,12,13,14,15] if OPT.jo else None)
    for i_, c_ in enumerate((c1, c2, c3, c4, c5)): c_.chain = ((OPT.ch >> i_) & 1) * (2 if i_ in (1, 4) else 1)
    return c1, c2, c3, c4, c5
VS=16; VF=24; VS4=36; VF4=44; VS5=52; VF5=60; VF3=68
L_PHK=0; L_VX=32768; L_KV=49152; L_Z=57344

def tail_barriers(k, c, extra=0):
    for r in range(c.NS-1):
        k.e(f"s_waitcnt vmcnt({max(c.NS-2-r,0)*c.nI + extra})\ns_barrier")

def win_loads(k, tag):
    mk_srd(k, SRD_A, P_WO, 2*MB); mk_srd(k, SRD_B, P_WIN, 7*MB)
    n = 8
    k.e(f"""s_lshr_b32 s{S_T}, s2, 3
    s_lshl_b32 s{S_T+2}, s{S_T}, 2
    s_add_u32 s{S_T+2}, s{S_T+2}, s{S_Q}
    s_and_b32 s{S_T+3}, s2, 1""")
    if OPT.l2 & 1:
        k.e(f"""s_lshl_b32 s{S_T+1}, s{S_T+2}, 14
        s_lshl_b32 s{S_T+4}, s{S_T+3}, 10
        s_add_u32 s{S_T+1}, s{S_T+1}, s{S_T+4}
        v_lshrrev_b32 v3, 3, v1
        v_lshlrev_b32 v3, 11, v3
        v_and_b32 v4, 7, v1
        v_lshl_add_u32 v3, v4, 7, v3
        buffer_load_dword v250, v3, {srd(SRD_A)}, s{S_T+1} offen""")
    else:
        k.e(f"""s_lshl_b32 s{S_T+1}, s2, 2
        s_add_u32 s{S_T+1}, s{S_T+1}, s{S_Q}
        s_lshl_b32 s{S_T+1}, s{S_T+1}, 11
        v_lshlrev_b32 v3, 7, v1
        s_mov_b64 exec, 0xffff
        buffer_load_dword v250, v3, {srd(SRD_A)}, s{S_T+1} offen
        s_mov_b64 exec, -1""")
    n += 1
    k.e(f"""s_lshr_b32 s{S_T+4}, s{S_T}, 1
    s_cmp_ge_u32 s{S_T+4}, 7
    s_cselect_b32 s{S_T+5}, 7, 0
    s_add_u32 s{S_T+4}, s{S_T+4}, s{S_T+5}
    s_mul_i32 s{S_T+5}, s{S_T+3}, 7
    s_add_u32 s{S_CW}, s{S_T+4}, s{S_T+5}
    s_and_b32 s{S_T+5}, s2, 6
    s_and_b32 s{S_T+6}, s{S_T}, 1
    s_add_u32 s{S_CW+1}, s{S_T+5}, s{S_T+6}
    s_lshl_b32 s{S_T+5}, s{S_CW+1}, 2
    s_add_u32 s{S_T+5}, s{S_T+5}, s{S_Q}
    s_mul_i32 s{S_T+5}, s{S_T+5}, {32*7168}
    s_lshl_b32 s{S_T+4}, s{S_CW}, 8
    s_add_u32 s{S_T+5}, s{S_T+5}, s{S_T+4}
    s_cmp_ge_u32 s2, 224
    s_cselect_b32 s{S_T+5}, {7*MB}, s{S_T+5}
    v_lshrrev_b32 v3, 4, v1
    v_mul_u32_u24 v3, 7168, v3
    v_and_b32 v4, 15, v1
    v_lshl_add_u32 v5, v4, 4, v3""")
    for j in range(8):
        k.e(f"buffer_load_dwordx4 v[{192+4*j}:{195+4*j}], v5, {srd(SRD_B)}, s{S_T+5} offen\ns_add_u32 s{S_T+5}, s{S_T+5}, {4*7168}")
    if OPT.xw:
        mk_srd(k, SRD_A, P_WSP, 8*MB)
        k.e(f"""s_lshl_b32 s{S_T+1}, s2, 2
        s_add_u32 s{S_T+1}, s{S_T+1}, s{S_Q}
        s_lshl_b32 s{S_T+1}, s{S_T+1}, 13
        v_min_u32 v3, {OPT.xw-1}, v1
        v_lshlrev_b32 v3, 7, v3
        buffer_load_dword v251, v3, {srd(SRD_A)}, s{S_T+1} offen""")
        n += 1
    if OPT.l2 & 2:
        k.e(f"""v_min_u32 v4, 13, v4
        v_lshl_add_u32 v3, v4, 7, v3
        s_mul_i32 s{S_T+1}, s{S_T+2}, {4*7168}
        s_mul_i32 s{S_T+4}, s{S_T+3}, 1792
        s_add_u32 s{S_T+1}, s{S_T+1}, s{S_T+4}
        s_add_u32 s{S_T+1}, s{S_T+1}, 3584
        buffer_load_dword v251, v3, {srd(SRD_B)}, s{S_T+1} offen
        s_add_u32 s{S_T+1}, s{S_T+1}, {512*7168}
        buffer_load_dword v252, v3, {srd(SRD_B)}, s{S_T+1} offen""")
        n += 2
    return n
def win_reduce(k):
    for j in range(8): acc_bf16(k, 224, 192+4*j, 4, j == 0, 232)
    xswap_sum(k, 224, 232, 8, 32)
    k.e(f"""s_lshl_b32 s{S_T}, s{S_Q}, 10
    s_add_u32 s{S_T}, s{S_T}, {L_CW}
    v_and_b32 v4, 31, v1
    v_lshl_add_u32 v4, v4, 5, s{S_T}
    ds_write_b128 v4, v[224:227]
    ds_write_b128 v4, v[228:231] offset:16
    s_waitcnt lgkmcnt(0)""")

def pf_loop(k, srdn, n, stride):
    t = k.lab("pf")
    k.e(f"s_mov_b32 s{S_CNT}, {n}\n{t}:")
    k.e(f"buffer_load_dword v3, v2, {srd(srdn)}, s{S_T+4} offen\ns_add_u32 s{S_T+4}, s{S_T+4}, {stride}")
    k.e(f"s_waitcnt vmcnt({OPT.pfd})\ns_sub_u32 s{S_CNT}, s{S_CNT}, 1\ns_cmp_lg_u32 s{S_CNT}, 0\ns_cbranch_scc1 {t}")

def helper_pf(k, role):
    nw = OPT.pf
    if OPT.tlb and role == 'c':
        st = 1 << OPT.tlb
        mk_srd(k, SRD_A, P_WOUT, 1792*2048); mk_srd(k, SRD_B, P_WSP, 8*MB)
        k.e(f"""s_lshr_b32 s{S_T}, s2, 3
        s_sub_u32 s{S_T}, s{S_T}, 28
        s_lshl_b32 s{S_T}, s{S_T}, 2
        s_add_u32 s{S_T}, s{S_T}, s{S_WAVE}
        s_lshl_b32 s{S_T+4}, s{S_T}, {OPT.tlb+6}
        v_and_b32 v3, 31, v1
        v_lshlrev_b32 v3, 7, v3
        v_lshlrev_b32 v2, {OPT.tlb}, v1
        v_add_u32 v2, v2, v3""")
        pf_loop(k, SRD_B, max(8*MB//(st*1024), 1), st*1024)
        k.e(f"s_lshl_b32 s{S_T+4}, s{S_T}, {OPT.tlb+6}")
        pf_loop(k, SRD_A, max(4*MB//(st*1024), 1), st*1024)
        k.e("s_waitcnt vmcnt(0)")
        return
    if not nw or role != 'c': return
    k.e(f"s_cmp_ge_u32 s{S_WAVE}, {nw}\ns_cbranch_scc1 L_nopf")
    mk_srd(k, SRD_A, P_WOUT, 1792*2048); mk_srd(k, SRD_B, P_WSP, 8*MB)
    k.e(f"""s_sub_u32 s{S_T}, s2, 224
    s_mul_i32 s{S_T}, s{S_T}, {nw}
    s_add_u32 s{S_T}, s{S_T}, s{S_WAVE}
    s_lshl_b32 s{S_T+4}, s{S_T}, 13
    v_lshlrev_b32 v2, 7, v1""")
    for _ in range(OPT.pfw): k.e("s_sleep 127")
    pf_loop(k, SRD_B, 32//nw, 8192*32*nw)
    stamp(k, 12)
    k.e(f"s_lshl_b32 s{S_T+4}, s{S_T}, 13")
    pf_loop(k, SRD_A, -(-14//nw), 8192*32*nw)
    k.e("s_waitcnt vmcnt(0)\nL_nopf:")

def inv_pos(k, rot):
    inv = [0]*4
    for u, d in enumerate(rot): inv[(u+d) & 3] = -d
    packed = sum(((d+8) & 15) << (4*u) for u, d in enumerate(inv))
    k.e(f"""s_sub_u32 s{S_T}, s{S_M}, s{S_PH}
    s_and_b32 s{S_T}, s{S_T}, 3
    s_lshl_b32 s{S_T}, s{S_T}, 2
    s_lshr_b32 s{S_T}, {packed}, s{S_T}
    s_and_b32 s{S_T}, s{S_T}, 15
    s_add_u32 s{S_T}, s{S_T}, s{S_M}
    s_sub_u32 s{S_T}, s{S_T}, 8
    s_and_b32 s{S_KB}, s{S_T}, 15""")

def loader(k):
    c1, c2, c3, c4, c5 = cfgs()
    LP = LProg(k)
    def start(c, t=0): return [f"s_mov_b32 s{S_TAU}, {t}", f"s_mov_b32 s{S_SLOT}, {(t+c.slot0) % c.NS}"]
    def W_(n): return f"s_waitcnt vmcnt({n})\ns_barrier"
    k.e(f"s_lshl_b32 s{S_M0W}, s{S_LW}, 10")
    c = c1; g1 = Seg(c1, VS, VF)
    inv_pos(k, c.rot)
    k.e(f"s_lshl_b32 s{S_T0}, s{S_N}, 7")
    loader_voff_S(k, c, VS)
    loader_voff_F(k, c, VF, S_T0, lambda P: P*2048)
    LP.prep(g1, start(c))
    k.e("s_waitcnt lgkmcnt(0)")
    mk_srd(k, SRD_S, P_X, 4*MB); mk_srd(k, SRD_F, P_WQKV, 6*MB)
    stamp(k, 0); stamp(k, 1)
    LP.stage(g1); LP.stage(g1)
    LP.stage(g1, sync=W_(c.nI))
    mk_srd(k, SRD_W, P_WS, WS_END)
    if OPT.pads:
        for d in (SRD_A, SRD_B, SRD_D): mk_srd(k, d, P_X, 0)
    if OPT.wl < 13:
        LP.run(g1, OPT.wl+1, c.nI)
        if OPT.pads: k.e("s_branch L_ld\nALIGN4K\nL_ld:")
        n = win_loads(k, "l")
        LP.prep(g1)
        LP.stage(g1, sync=W_(c.nI+n), stampit=True)
        LP.stage(g1, sync=W_(c.nI+n), stampit=True)
        LP.run(g1, 10-OPT.wl, c.nI)
        k.e(W_(c.nI) + "\n" + W_(0))
    else:
        LP.run(g1, 13, c.nI)
        if OPT.pads: k.e("s_branch L_ld\nALIGN4K\nL_ld:")
        k.e(W_(c.nI)); itstamp(k)
        n = win_loads(k, "l")
        k.e(W_(n)); itstamp(k)
    k.e(f"""s_lshl_b32 s{S_T+12}, s{S_N}, 4
    s_add_u32 s{S_T+12}, s{S_T+12}, s{S_M}
    s_lshl_b32 s{S_T+14}, s{S_T+12}, 4
    s_add_u32 s{S_T+14}, s{S_T+14}, {WS_ZF}
    s_lshl_b32 s{S_T+12}, s{S_T+12}, 8
    s_add_u32 s{S_T+12}, s{S_T+12}, {WS_ZP}
    v_and_b32 v13, 15, v1
    v_lshlrev_b32 v13, 4, v13""")
    tile_map(k, 4, 8, 16)
    c = c2; g2 = Seg(c2, VS, VF)
    k.e("s_mov_b32 s88, 0xb3a98210\ns_mov_b32 s89, 0xfedc7654")
    mk_srd(k, SRD_S, P_WS, 4*MB, WS_O); mk_srd(k, SRD_F, P_WO, 2*MB)
    k.e(f"s_lshl_b32 s{S_T0}, s{S_N}, 7")
    loader_voff_S(k, c, VS); loader_voff_F(k, c, VF, S_T0, lambda P: 0)
    k.e("s_barrier"); itstamp(k)
    if OPT.tw:
        mk_srd(k, SRD_D, P_OUT, 4*MB)
        k.e(f"""s_lshr_b32 s{S_T}, s2, 3
        s_lshl_b32 s{S_T}, s{S_T}, 1
        s_add_u32 s{S_T}, s{S_T}, s{S_LW}
        s_and_b32 s{S_T}, s{S_T}, {(1 << (20-OPT.tw)) - 1}
        s_lshl_b32 s{S_T}, s{S_T}, {OPT.tw}
        v_lshlrev_b32 v3, 20, v1
        v_lshl_add_u32 v3, v1, 7, v3
        buffer_load_dword v251, v3, {W}, s{S_T} offen
        buffer_load_dword v252, v3, {srd(SRD_D)}, s{S_T} offen""")
    k.e("s_barrier")
    issue_first(k, c, VS, VF, "F", pbarrier=False)
    k.e("s_barrier")
    grp(k, 1)
    loader_voff_S(k, c5, VS5); loader_voff_F(k, c5, VF5, S_T0, lambda P: 0)
    k.e(f"""s_and_b32 s{S_T}, s2, 1
    s_mul_i32 s{S_T+1}, s{S_T}, {(7 if OPT.two & 2 else 14)*4096}
    s_mul_i32 s{S_T+2}, s{S_T}, {(7 if OPT.two & 2 else 14)*64*2048}""")
    for i in range(c5.nS): k.e(f"v_add_u32 v{VS5+i}, s{S_T+1}, v{VS5+i}")
    for i in range(c5.nF):
        if i < 4: k.e(f"v_xor_b32 v{VF5+i}, 1024, v{VF5+i}")
        k.e(f"v_add_u32 v{VF5+i}, s{S_T+2}, v{VF5+i}")
    k.e(f"s_sub_u32 s{S_T0}, s{S_N}, s{S_T}\ns_lshl_b32 s{S_T0}, s{S_T0}, 8\ns_mov_b32 s{S_FB}, 3584")
    loader_voff_F(k, c3, VF3, S_T0, lambda P: P*128)
    k.e(f"s_cmp_eq_u32 s{S_LW}, 0\ns_cbranch_scc1 L_l_noz\ns_sleep {max(OPT.kvslp-8, 1)}")
    def zg(): k.e(f"buffer_load_dwordx4 v[128:131], v13, {W}, s{S_T+12} offen sc1")
    validated(k, zg, range(128, 132), 3, pre=False)
    acc_bf16(k, 136, 128, 4, True, 132)
    for sh in (8, 4, 2, 1): ror_sum(k, 136, 8, sh)
    for i in range(4): k.e(f"v_cvt_pk_bf16_f32 v{132+i}, v{136+2*i}, v{137+2*i}")
    k.e(f"s_mov_b64 exec, 1\nbuffer_store_dwordx4 v[132:135], v13, {W}, s{S_T+14} offen sc1\ns_mov_b64 exec, -1\nL_l_noz:")
    if OPT.two & 4:
        k.e(f"s_waitcnt vmcnt({c.NS*c.nF})")
        win_reduce(k)
        LP.prep(g2, start(c))
        k.e("s_barrier")
        if_par(k, 0, "s_barrier", S_CLS)
    else:
        bars(k, 2)
        k.e(f"s_waitcnt vmcnt({c.NS*c.nF})")
        win_reduce(k)
        LP.prep(g2, start(c))
    LP.stage(g2, "S", sync="s_barrier")
    LP.stage(g2, "S")
    if OPT.two & 4: if_par(k, 1, "s_barrier", S_CLS)
    LP.stage(g2, "S", sync=W_(c.nS))
    LP.stage(g2, "S")
    LP.stage(g2, sync=W_(2*c.nS), stampit=True)
    LP.stage(g2, sync=W_(c.nS+c.nI), stampit=True)
    g3 = Seg(c3, VS, VF3, True, SRD_S, SRD_B); g4 = Seg(c4, VS4, VF4, False, SRD_A, SRD_D); g5 = Seg(c5, VS5, VF5)
    LP.run(g2, 10, 2*c.nI, nxt=g3, pre=start(c3))
    k.e("s_cmp_ge_u32 s2, 224\ns_cbranch_scc1 L_ld_helper")
    c = c3
    LP.stage(g3, "F", sync=W_(2*c2.nI))
    LP.stage(g3, "F", sync=W_(c2.nI+c.nF), nxt=False)
    k.e(W_(2*c.nF) + "\ns_barrier")
    tile_map(k, 4, 7, 14)
    mk_srd(k, SRD_S, P_WS, 4*MB, WS_H); mk_srd(k, SRD_A, P_WSP, 8*MB); mk_srd(k, SRD_D, P_WS, 7*MB, WS_Z2N)
    if not OPT.two & 1: k.e("s_barrier")
    loader_voff_S(k, c, VS); loader_voff_S(k, c4, VS4); loader_voff_F(k, c4, VF4)
    if OPT.own2 == 2: inv_pos(k, c4.rot)
    else: k.e(f"s_and_b32 s{S_KB}, s{S_M}, 3\ns_lshl_b32 s{S_KB}, s{S_KB}, 1\ns_lshr_b32 s93, s{S_M}, 2\ns_lshl_b32 s93, s93, 3")
    LP.prep(g3, start(c))
    ITST[1] = 253
    if ITST[0]: k.e("s_mov_b32 s97, 0")
    if OPT.two & 1: if_par(k, 0, "s_barrier")
    LP.stage(g3, "S", sync="s_barrier")
    LP.stage(g3, "S")
    if OPT.two & 1: if_par(k, 1, "s_barrier")
    LP.stage(g3, sync=W_(c.nS))
    LP.run(g3, 13, c.nI, nxt=g3, pre=[f"s_mov_b32 s{S_TAU}, 0", f"s_mov_b32 s{S_FB}, 0"])
    LP.run(g3, 3, c.nI, nxt=g3)
    LP.stage(g3)
    if OPT.gb: k.e("s_barrier")
    LP.run(g3, 12, 2*c.nI, nxt=g4, pre=[f"s_mov_b32 s{S_TAU}, 0"])
    mk_srd(k, SRD_S, P_WS, 7*MB, WS_U); mk_srd(k, SRD_F, P_WOUT, 1792*2048)
    c = c4
    LP.run(g4, 32, 2*c.nI, nxt=g5, pre=start(c5))
    LP.stage(g5, "F", sync=W_(2*c.nI))
    LP.stage(g5, "F", sync=W_(c.nI+c5.nF), nxt=False)
    k.e(W_(2*c5.nF))
    bars(k, 1 if OPT.two & 2 else 2)
    k.e("L_ld_p5:")
    ITST[1] = 254
    if ITST[0]: k.e("s_mov_b32 s97, 32")
    c = c5
    LP.prep(g5, start(c))
    if OPT.two & 2: if_par(k, 0, "s_barrier")
    LP.stage(g5, "S", sync="s_barrier")
    LP.stage(g5, "S")
    if OPT.two & 2: if_par(k, 1, "s_barrier")
    LP.stage(g5, sync=W_(c.nS))
    LP.run(g5, 11, c.nI)
    k.e(W_(c.nI) + "\n" + W_(0) + "\ns_barrier")
    k.e("s_branch L_fin")
    k.e("L_ld_helper:")
    k.e(W_(2*c2.nI) + "\n" + W_(c2.nI) + "\n" + W_(0))
    bars(k, 3)
    mk_srd(k, SRD_S, P_WS, 7*MB, WS_U); mk_srd(k, SRD_F, P_WOUT, 1792*2048)
    issue_first(k, c5, VS5, VF5, "F", pbarrier=False, t1=2)
    k.e("s_branch L_ld_p5")

def spread(k, fn, nbar):
    t = Kern(k.name); t.uid = k.uid
    fn(t); k.uid = t.uid
    L = [x.strip() for x in t.L]
    assert not any(x.endswith(":") for x in L)
    wt = lambda x: 10 if x.startswith("buffer_") else (1 if x.startswith(("v_", "ds_")) else 0.25)
    tot = sum(map(wt, L)); acc = 0; nb = 0
    low = OPT.vprio and sum(x.startswith("v_") for x in L) > 20
    if low: k.e("s_setprio 0")
    for x in L:
        k.e(x); acc += wt(x)
        if nb < nbar-1 and acc >= tot*(nb+1)/nbar - 1e-9:
            k.e("s_barrier"); nb += 1
    if low: k.e(f"s_setprio {OPT.pa}")
    while nb < nbar:
        k.e("s_barrier"); nb += 1

_carry = []
def merge(k, vm, va, nbar, share, hook=None):
    def cap(fns):
        t = Kern(k.name); t.uid = k.uid
        for f in fns: f(t)
        k.uid = t.uid
        return [x.strip() for x in t.L]
    M = cap(vm); _carry.extend(cap(va))
    nv = len(_carry) if share >= 1 else int(len(_carry)*share)
    V = _carry[:nv]; del _carry[:nv]
    nm = sum(x.startswith("buffer_") for x in M)
    mi = 0; seen = 0; full = True
    for b in range(nbar):
        tgt = nm*(b+1)/nbar
        while mi < len(M) and (seen < tgt or not full or b == nbar-1):
            x = M[mi]; k.e(x); mi += 1
            if x.startswith("buffer_"): seen += 1
            if "exec" in x.split(",")[0]: full = x.replace(" ", "") == "s_mov_b64exec,-1"
        for x in V[len(V)*b//nbar: len(V)*(b+1)//nbar]: k.e(x)
        k.e("s_barrier")
        if hook: hook(b)

def combine_half(k, P, stride, n, ntot, cnt, d, t):
    k.e(f"v_add_f32 v{d}, v{P}, v{P+stride}\nv_add_f32 v{d+1}, v{P+1}, v{P+stride+1}")
    for i in range(2, n): k.e(f"v_add_f32 v{d}, v{d}, v{P+stride*i}\nv_add_f32 v{d+1}, v{d+1}, v{P+stride*i+1}")
    if ntot != n: xswap_sum1(k, d, t)
    k.e(f"v_mul_f32 v{d}, {f2u(1.0/ntot)}, v{d}\nv_sub_f32 v{t}, v{P}, v{d}\nv_mul_f32 v{t+1}, v{t}, v{t}")
    for i in range(1, n): k.e(f"v_sub_f32 v{t}, v{P+stride*i}, v{d}\nv_fmac_f32 v{t+1}, v{t}, v{t}")
    k.e(f"v_fmac_f32 v{d+1}, {f2u(float(cnt))}, v{t+1}")
    if ntot != n: xswap_sum1(k, d+1, t)

def code_touch(k, lo, first, nlines):
    if not OPT.ct: return
    here = k.lab("pc")
    k.e(f"""s_getpc_b64 s[{S_X}:{S_X+1}]
    {here}:
    s_add_u32 s{S_X}, s{S_X}, {lo}-{here}
    s_addc_u32 s{S_X+1}, s{S_X+1}, {'-1' if lo == KNAME else '0'}
    s_lshr_b32 s{S_T}, s2, 3
    s_sub_u32 s{S_T}, s{S_T}, {first}
    s_lshl_b32 s{S_T}, s{S_T}, 1
    s_add_u32 s{S_T}, s{S_T}, s{S_LW}
    s_mul_i32 s{S_T}, s{S_T}, {nlines*128}
    v_min_u32 v249, {nlines-1}, v1
    v_lshlrev_b32 v249, 7, v249
    v_add_u32 v249, s{S_T}, v249
    v_min_u32 v249, L_end-{lo}, v249
    global_load_dword v250, v249, s[{S_X}:{S_X+1}]""")

def xp_init(k):
    if not OPT.sk: return
    k.e(f"""s_lshl_b32 s{S_T}, s2, 14
    s_lshl_b32 s{S_T+1}, s{S_LW}, 13
    s_add_u32 s{S_T}, s{S_T}, s{S_T+1}
    s_add_u32 s{S_T}, s{S_T}, {WS_XP}
    s_add_u32 s{S_T+1}, s{S_T}, 4096""")
    for i in range(8): k.e(f"buffer_store_dwordx4 v[44:47], v2, {W}, s{S_T+(i>>2)} offen offset:{(i&3)*1024} sc1")
    k.e("s_waitcnt vmcnt(0)")
def u_cnt(k):
    cnt_addr(k, 9, F_U, S_M)
    if OPT.sk: k.e(f"s_and_b32 s{S_T}, s2, 1\ns_lshl_b32 s{S_T}, s{S_T}, 7\nv_add_u32 v9, s{S_T}, v9")

def aux(k):
    c1, c2, c3, c4, c5 = cfgs()
    a = S_LW
    k.e(f"""s_lshl_b32 s{S_T}, s{S_M}, 7
    s_lshl_b32 s{S_T+1}, s{S_N}, 3
    s_add_u32 s{S_T}, s{S_T}, s{S_T+1}
    s_lshl_b32 s{S_T+1}, s{a}, 2
    s_add_u32 s{S_T}, s{S_T}, s{S_T+1}
    v_lshrrev_b32 v14, 4, v1
    v_add_u32 v14, s{S_T}, v14
    v_and_b32 v3, 15, v1
    v_lshlrev_b32 v3, 4, v3
    v_lshl_add_u32 v3, v14, 11, v3
    s_waitcnt lgkmcnt(0)""")
    mk_srd(k, SRD_B, P_X, 4*MB)
    XR = 192 if OPT.xa else 64
    if OPT.xa: k.e(f"s_sleep {OPT.xa}")
    for j in range(8): k.e(f"buffer_load_dwordx4 v[{XR+4*j}:{XR+3+4*j}], v3, {srd(SRD_B)}, 0 offen offset:{256*j}")
    mk_srd(k, SRD_W, P_WS, WS_END); mk_srd(k, SRD_A, P_WPHI, 65536); mk_srd(k, SRD_D, P_DBG, 256)
    if OPT.pads:
        for d in (SRD_S, SRD_F): mk_srd(k, d, P_X, 0)
    stamp(k, 0)
    q = OPT.spq
    k.e(f"""v_lshlrev_b32 v2, 4, v1
    v_mov_b32 v11, 1
    v_mov_b32 v44, -1
    v_mov_b32 v45, -1
    v_mov_b32 v46, -1
    v_mov_b32 v47, -1
    v_lshrrev_b32 v4, 5, v1
    v_lshlrev_b32 v4, 13, v4
    v_and_b32 v5, 31, v1
    v_lshl_add_u32 v4, v5, 4, v4
    v_bfe_u32 v12, v1, 2, 2
    v_min_u32 v12, 2, v12
    v_lshlrev_b32 v12, 13, v12
    v_lshrrev_b32 v5, 4, v1
    v_lshl_add_u32 v12, v5, 11, v12
    v_and_b32 v5, 3, v1
    v_lshl_add_u32 v12, v5, 4, v12
    s_mov_b32 s{S_T}, {q if q >= 0 else 's93'}
    s_sub_u32 s{S_T+1}, s{S_T}, 3
    s_cmp_ge_u32 s{S_T}, 3
    s_cselect_b32 s{S_T}, s{S_T+1}, s{S_T}
    s_mul_i32 s{S_T}, s{S_T}, {c1.slotF}
    s_add_u32 s{S_T}, s{S_T}, {c1.baseF}
    v_add_u32 v12, s{S_T}, v12
    v_bfe_u32 v13, v1, 2, 2
    v_lshl_add_u32 v12, v13, 7, v12
    v_lshrrev_b32 v13, 1, v13
    v_xor_b32 v13, s{a}, v13
    v_lshl_add_u32 v24, v13, 6, v12
    v_xor_b32 v25, 128, v24
    v_xor_b32 v26, 320, v24
    v_xor_b32 v27, 448, v24
    v_lshlrev_b32 v14, 2, v14""")
    X = 128
    for j in range(0 if OPT.xa else 8):
        k.e(f"s_waitcnt vmcnt({7-j})")
        for i in range(4*j, 4*j+4):
            unpack(k, X+2*i, X+2*i+1, 64+i)
            t = 32+2*(i & 1)
            if i >= 2: k.e(f"v_pk_add_f32 v[{t}:{t+1}], v[{X+2*i-4 if i < 4 else t}:{X+2*i-3 if i < 4 else t+1}], v[{X+2*i}:{X+2*i+1}]")
    stamp(k, 10)
    k.e("s_barrier")
    def init(k):
        k.e(f"""s_mov_b32 s{S_T+14}, {WS_XS}
        s_mov_b32 s{S_T+15}, {WS_XS+8192}
        s_mov_b32 exec_lo, 0x10001
        s_mov_b32 exec_hi, 0x10001
        buffer_store_dword v44, v14, {W}, s{S_T+14} offen sc1
        buffer_store_dword v44, v14, {W}, s{S_T+15} offen sc1
        s_mov_b64 exec, -1
        s_lshl_b32 s{S_T}, s{S_N}, 17
        s_lshl_b32 s{S_T+1}, s{S_M}, 9
        s_add_u32 s{S_T}, s{S_T}, s{S_T+1}
        s_lshl_b32 s{S_T+1}, s{a}, 16
        s_add_u32 s{S_T}, s{S_T}, s{S_T+1}
        s_add_u32 s{S_T}, s{S_T}, {WS_KVP}""")
        for x in range(4): k.e(f"buffer_store_dwordx4 v[44:47], v4, {W}, s{S_T} offen sc1\ns_add_u32 s{S_T}, s{S_T}, 16384")
        k.e(f"""s_lshl_b32 s{S_T+12}, s{S_N}, 4
        s_add_u32 s{S_T+12}, s{S_T+12}, s{S_M}
        s_lshl_b32 s{S_T+12}, s{S_T+12}, 1
        s_add_u32 s{S_T+12}, s{S_T+12}, s{a}
        s_mul_i32 s{S_T+12}, s{S_T+12}, 384
        s_add_u32 s{S_T+12}, s{S_T+12}, {WS_CQP}
        s_mov_b64 exec, 0xffffff
        buffer_store_dwordx4 v[44:47], v2, {W}, s{S_T+12} offen sc1
        s_lshl_b32 s{S_T}, s2, 10
        s_add_u32 s{S_T}, s{S_T}, {WS_HST}
        s_mul_i32 s{S_T+1}, s2, 528
        s_add_u32 s{S_T+1}, s{S_T+1}, {WS_KVF}
        s_mul_i32 s{S_T+2}, s2, 896
        s_add_u32 s{S_T+3}, s{S_T+2}, {WS_CSP}
        s_add_u32 s{S_T+2}, s{S_T+2}, {WS_ZST}
        s_mov_b32 s{S_T+4}, 0xffffff
        s_cmp_eq_u32 s{a}, 0
        s_cselect_b32 s{S_T}, s{S_T}, s{S_T+2}
        s_cselect_b32 s{S_T+1}, s{S_T+1}, s{S_T+3}
        s_cselect_b32 s{S_T+5}, -1, s{S_T+4}
        s_cselect_b32 s{S_T+6}, 1, s{S_T+4}
        s_mov_b32 exec_lo, -1
        s_mov_b32 exec_hi, s{S_T+5}
        buffer_store_dwordx4 v[44:47], v2, {W}, s{S_T} offen sc1
        s_mov_b32 exec_hi, s{S_T+6}
        buffer_store_dwordx4 v[44:47], v2, {W}, s{S_T+1} offen sc1
        s_mov_b64 exec, -1
        s_mul_i32 s{S_T}, s2, {FLS}
        s_add_u32 s{S_T}, s{S_T}, {WS_FLAG}
        s_cmp_lt_u32 s2, 64
        s_cselect_b32 s{S_T}, s{S_T}, {WS_END}
        s_lshl_b32 s{S_T+1}, s2, 8
        s_add_u32 s{S_T+1}, s{S_T+1}, {WS_ZP}
        s_cmp_eq_u32 s{a}, 0
        s_cselect_b32 s{S_T}, s{S_T}, s{S_T+1}
        s_cselect_b32 s{S_T+1}, 0, -1
        v_mov_b32 v48, s{S_T+1}
        v_lshlrev_b32 v5, 2, v1
        buffer_store_dword v48, v5, {W}, s{S_T} offen sc1""")
    def xs2(k):
        if OPT.xa:
            for i in range(32):
                unpack(k, X+2*i, X+2*i+1, XR+i)
                t = 32+2*(i & 1)
                if i >= 2:
                    for e_ in range(2): k.e(f"v_add_f32 v{t+e_}, v{X+2*i-4+e_ if i < 4 else t+e_}, v{X+2*i+e_}")
        k.e("v_add_f32 v32, v32, v34\nv_add_f32 v33, v33, v35\nv_add_f32 v32, v32, v33")
        for sh in (8, 4, 2, 1): ror_sum(k, 32, 1, sh)
        k.e(f"v_mul_f32 v32, {f2u(1/1024.)}, v32")
        for i in range(64):
            d = 40+(i & 3); t = 34+(i & 3)
            k.e(f"v_sub_f32 v{d}, v{X+i}, v32")
            k.e(f"v_mul_f32 v{t}, v{d}, v{d}" if i < 4 else f"v_fmac_f32 v{t}, v{d}, v{d}")
        k.e("v_add_f32 v34, v34, v35\nv_add_f32 v36, v36, v37\nv_add_f32 v33, v34, v36")
        for sh in (8, 4, 2, 1): ror_sum(k, 33, 1, sh)
        finish_rstd(k, 32, 1024)
    def qld(k):
        k.e(f"""s_lshl_b32 s{S_T}, s{S_N}, 12
        s_lshl_b32 s{S_T+1}, s{a}, 11
        s_add_u32 s{S_T}, s{S_T}, s{S_T+1}
        s_add_u32 m0, s{S_T+1}, {L_WPHI}
        s_nop 0
        buffer_load_dwordx4 v2, {srd(SRD_A)}, s{S_T} offen lds
        buffer_load_dwordx4 v2, {srd(SRD_A)}, s{S_T} offen offset:1024 lds""")
    def sprd(b):
        if b == q-1 or (q < 0 and OPT.q0 <= b+1 <= OPT.q0 + 7*OPT.qm//8):
            if q < 0: k.e(f"s_cmp_lg_u32 s93, {b+1}\ns_cbranch_scc1 L_nsp{b+1}")
            for j in range(16):
                k.e(f"ds_read_b128 v[{64+4*j}:{67+4*j}], v{24 + (j&3)} offset:{(j>>2)*512}")
                if j == 7:
                    k.e("s_waitcnt lgkmcnt(4)")
                    for r_ in range(24, 28): k.e(f"v_xor_b32 v{r_}, 32, v{r_}")
            k.e("s_waitcnt lgkmcnt(0)")
            if q < 0: k.e(f"L_nsp{b+1}:")
    assert q <= 5
    sprd(-1)
    if OPT.qpf:
        mk_srd(k, SRD_B, P_WQKV, 6*MB)
        k.e(f"""s_lshl_b32 s{S_T}, s2, 1
        s_add_u32 s{S_T}, s{S_T}, s{a}
        s_mul_i32 s{S_T}, s{S_T}, {96*128}
        v_lshlrev_b32 v3, 7, v1
        buffer_load_dword v250, v3, {srd(SRD_B)}, s{S_T} offen
        s_add_u32 s{S_T}, s{S_T}, 4096
        buffer_load_dword v251, v3, {srd(SRD_B)}, s{S_T} offen""")
    if OPT.xa: k.e("s_waitcnt vmcnt(0)")
    A = 128
    arr = f"""s_cmp_lg_u32 s{a}, 0
    s_cbranch_scc1 L_a_noarr
    s_and_b32 s{S_T}, s2, 7
    s_lshl_b32 s{S_T}, s{S_T}, 5
    v_mov_b32 v4, s{S_T}
    s_mov_b64 exec, 1
    buffer_atomic_add v11, v4, {srd(SRD_D)}, 0 offen sc1
    s_mov_b64 exec, -1
    L_a_noarr:"""
    xst = f"""s_mov_b32 exec_lo, 0x10001
    s_mov_b32 exec_hi, 0x10001
    buffer_store_dword v32, v14, {W}, s{S_T+14} offen sc1
    buffer_store_dword v33, v14, {W}, s{S_T+15} offen sc1
    s_mov_b64 exec, -1"""
    def csum(k):
        for j in range(16): acc_bf16(k, A, 64+4*j, 4, j == 0, 50, plain=True)
        xswap_sum(k, A, 160, 8, 16); xswap_sum(k, A, 160, 8, 32)
    cst = f"""v_lshlrev_b32 v4, 5, v1
    s_mov_b64 exec, 0xfff
    buffer_store_dwordx4 v[{A}:{A+3}], v4, {W}, s{S_T+12} offen sc1
    buffer_store_dwordx4 v[{A+4}:{A+7}], v4, {W}, s{S_T+12} offen offset:16 sc1
    s_mov_b64 exec, -1
    v_lshlrev_b32 v10, 5, v1"""
    def before_bar(text):
        b = k.L.pop(); k.e(text); k.L.append(b)
    if not OPT.late:
        code_touch(k, KNAME, 0, 11)
        merge(k, [init], [xs2], 2, 0.3, hook=sprd)
        merge(k, [], [], 1, 0.4); sprd(2)
        merge(k, [], [], 1, 0.67)
        before_bar("s_waitcnt vmcnt(0)")
        k.e(arr); sprd(3)
        merge(k, [qld], [], 1, 1.0)
        k.e(xst); sprd(4)
        k.e("s_barrier")
        if OPT.wa == 5: win_loads(k, "a")
        merge(k, [], [csum], 5, 1.0, hook=lambda b: win_loads(k, "a") if b+6 == OPT.wa and b < 4 else None)
    else:
        merge(k, [], [xs2], 3, 0.8, hook=sprd)
        code_touch(k, KNAME, 0, 11)
        merge(k, [init], [], 3, 1.0, hook=lambda b: sprd(b+3) if b < 2 else None)
        merge(k, [], [csum], 2, 0.4)
        before_bar("s_waitcnt vmcnt(0)")
        k.e(arr); k.e(xst)
        merge(k, [qld], [], 3, 1.0)
    before_bar(cst)
    sample(k, 10, SRD_D)
    k.e(f"""s_lshl_b32 s{S_T+14}, s{a}, 13
    s_lshl_b32 s{S_T+1}, s{S_M}, 9
    s_add_u32 s{S_T+14}, s{S_T+14}, s{S_T+1}
    s_add_u32 s{S_T+14}, s{S_T+14}, {WS_XS}
    s_mul_i32 s{S_T+12}, s{S_N}, {16*768}
    s_mul_i32 s{S_T+13}, s{a}, 384
    s_add_u32 s{S_T+12}, s{S_T+12}, s{S_T+13}
    s_add_u32 s{S_T+12}, s{S_T+12}, {WS_CQP}
    v_and_b32 v12, 31, v1
    v_min_u32 v12, 23, v12
    v_lshlrev_b32 v12, 4, v12
    v_lshrrev_b32 v13, 5, v1
    v_mul_u32_u24 v13, 768, v13
    v_add_u32 v13, v13, v12
    v_lshlrev_b32 v5, 3, v1""")
    k.e("s_barrier")
    poll(k, 10, 8, SRD_D, 32, pre=True)
    stamp(k, 1)
    k.e("s_barrier")
    def cqg():
        k.e(f"s_mov_b32 s{S_T}, s{S_T+12}")
        for i in range(8):
            k.e(f"buffer_load_dwordx4 v[{64+4*i}:{67+4*i}], v13, {W}, s{S_T} offen offset:{(i&1)*1536} sc1")
            if i & 1: k.e(f"s_add_u32 s{S_T}, s{S_T}, 3072")
        k.e(f"buffer_load_dwordx2 v[96:97], v5, {W}, s{S_T+14} offen sc1")
    cqg()
    k.e("s_barrier")
    k.e("s_waitcnt vmcnt(0)")
    validated(k, cqg, range(64, 98), 3)
    for i in range(1, 8):
        for j in range(4): k.e(f"v_add_f32 v{64+j}, v{64+j}, v{64+4*i+j}")
    k.e("s_barrier")
    xswap_sum(k, 64, 68, 4, 32)
    k.e(f"""s_add_u32 s{S_T+13}, s{S_T+13}, {L_CQ}
    v_add_u32 v3, s{S_T+13}, v12
    ds_write_b128 v3, v[64:67]
    s_lshl_b32 s{S_T}, s{a}, 9
    s_add_u32 s{S_T}, s{S_T}, {L_XS}
    v_add_u32 v5, s{S_T}, v5
    ds_write_b64 v5, v[96:97]
    s_waitcnt lgkmcnt(0)
    s_barrier""")
    stamp(k, 2)
    if OPT.wa == 15: win_loads(k, "a")
    cnt_addr(k, 9, F_O, S_M)
    k.e(f"""s_lshl_b32 s{S_T+12}, s{S_N}, 17
    s_lshl_b32 s{S_T+1}, s{S_M}, 13
    s_add_u32 s{S_T+12}, s{S_T+12}, s{S_T+1}
    s_lshl_b32 s{S_T+2}, s{a}, 8
    s_add_u32 s{S_T+12}, s{S_T+12}, s{S_T+2}
    s_add_u32 s{S_T+12}, s{S_T+12}, {WS_KVP}
    s_add_u32 s{S_T+13}, s{S_T+12}, 4096
    s_lshl_b32 s{S_T+14}, s{S_N}, 13
    s_lshl_b32 s{S_T+1}, s{S_M}, 9
    s_add_u32 s{S_T+14}, s{S_T+14}, s{S_T+1}
    s_add_u32 s{S_T+14}, s{S_T+14}, s{S_T+2}
    s_add_u32 s{S_T+14}, s{S_T+14}, {WS_KVF}
    v_and_b32 v12, 15, v1
    v_lshlrev_b32 v12, 4, v12
    v_lshrrev_b32 v5, 4, v1
    v_lshl_add_u32 v13, v5, 9, v12
    v_lshl_add_u32 v12, v5, 2, v12""")
    bars(k, 2)
    if OPT.kvslp: k.e(f"s_sleep {OPT.kvslp}")
    def kvg(k=k):
        for i in range(4): k.e(f"buffer_load_dwordx4 v[{64+4*i}:{67+4*i}], v13, {W}, s{S_T+12+(i>>1)} offen offset:{(i&1)*2048} sc1")
    validated(k, kvg, range(64, 80), 3, pre=False)
    stamp(k, 3)
    for i in range(4): acc_bf16(k, 128, 64+4*i, 4, i == 0, 48)
    k.e("s_nop 0")
    for i in range(4): k.e(f"v_permlane32_swap_b32 v{128+i}, v{132+i}")
    k.e("v_pk_add_f32 v[128:129], v[128:129], v[132:133]\nv_pk_add_f32 v[130:131], v[130:131], v[134:135]\ns_nop 1")
    k.e("v_permlane16_swap_b32 v128, v130\nv_permlane16_swap_b32 v129, v131\nv_pk_add_f32 v[128:129], v[128:129], v[130:131]\nv_cvt_pk_bf16_f32 v52, v128, v129")
    k.e(f"buffer_store_dword v52, v12, {W}, s{S_T+14} offen sc1")
    stamp(k, 4)
    if OPT.kfslp: k.e(f"s_sleep {OPT.kfslp}")
    k.e("L_a_kvd:")
    k.e(f"""s_lshl_b32 s{S_T}, s{S_N}, 1
    s_add_u32 s{S_T}, s{S_T}, s{a}
    s_lshl_b32 s{S_T+12}, s{S_T}, 12
    s_add_u32 s{S_T+12}, s{S_T+12}, {WS_KVF}
    s_lshl_b32 s{S_T+13}, s{S_T}, 7
    s_add_u32 s{S_T+13}, s{S_T+13}, {WS_ZF}
    v_and_b32 v13, 7, v1
    v_lshlrev_b32 v13, 4, v13
    s_lshl_b32 s{S_T}, s{a}, 12
    v_add_u32 v4, s{S_T}, v2
    s_lshl_b32 s{S_T}, s{a}, 7
    v_add_u32 v5, s{S_T}, v13""")
    def kfg():
        for i in range(4): k.e(f"buffer_load_dwordx4 v[{64+4*i}:{67+4*i}], v2, {W}, s{S_T+12} offen offset:{i*1024} sc1")
        k.e(f"buffer_load_dwordx4 v[80:83], v13, {W}, s{S_T+13} offen sc1")
    validated(k, kfg, range(64, 84), 3, pre=False)
    for i in range(4): k.e(f"ds_write_b128 v4, v[{64+4*i}:{67+4*i}] offset:{L_KV+i*1024}")
    k.e(f"ds_write_b128 v5, v[80:83] offset:{L_Z}\ns_waitcnt lgkmcnt(0)\ns_barrier")
    grp(k, 1)
    tile_map(k, 4, 8, 16)
    cnt_addr(k, 10, F_O, S_M)
    def cap_(fn):
        t = Kern(k.name); t.uid = k.uid; fn(t); k.uid = t.uid; return "\n".join(t.L)
    if OPT.two & 4:
        k.e(f"s_and_b32 s{S_T}, s{S_CLS}, 1\ns_lshl_b32 s{S_T}, s{S_T}, 7\nv_add_u32 v9, s{S_T}, v9\nv_add_u32 v27, 128, v10\ns_setprio 0")
        win_reduce(k)
        k.e(f"s_setprio {OPT.pa}")
        if_par(k, 0, "s_barrier\n" + cap_(lambda t: set_flag(t, 9)), S_CLS)
        poll(k, 10, 1, val=6)
        stamp(k, 11)
        k.e("s_barrier")
        if_par(k, 1, "s_barrier\n" + cap_(lambda t: set_flag(t, 9)), S_CLS)
    else:
        k.e("s_barrier")
        set_flag(k, 9)
        win_reduce(k)
        poll(k, 10, 1, val=16)
        stamp(k, 11)
        k.e("s_barrier")
    stamp(k, 12)
    k.e(f"""s_cmp_eq_u32 s{a}, 0
    s_cbranch_scc1 L_a_nocw
    s_cmp_ge_u32 s2, 224
    s_cbranch_scc1 L_a_nocw
    v_lshlrev_b32 v4, 3, v1
    v_add_u32 v3, {L_CW}, v4""")
    for i in range(8): k.e(f"ds_read_b64 v[{192+2*i}:{193+2*i}], v3 offset:{i*512}")
    k.e(f"""s_mul_i32 s{S_T}, s{S_CW+1}, 14336
    s_lshl_b32 s{S_T+1}, s{S_CW}, 9
    s_add_u32 s{S_T}, s{S_T}, s{S_T+1}
    s_add_u32 s{S_T}, s{S_T}, {WS_CSP}
    s_waitcnt lgkmcnt(0)""")
    for i in range(1, 8): k.e(f"v_pk_add_f32 v[192:193], v[192:193], v[{192+2*i}:{193+2*i}]")
    k.e(f"buffer_store_dwordx2 v[192:193], v4, {W}, s{S_T} offen sc1\nL_a_nocw:")
    cnt_addr(k, 9, F_H, S_M)
    tile_map(k, 4, 7, 14)
    k.e(f"""v_and_b32 v14, 31, v1
    v_lshlrev_b32 v14, 4, v14
    v_lshrrev_b32 v15, 5, v1
    v_mul_u32_u24 v13, {1792*4}, v15
    v_add_u32 v13, v13, v14
    s_lshl_b32 s{S_T}, s{a}, 9
    v_add_u32 v14, s{S_T}, v14
    s_lshl_b32 s{S_T+13}, s{S_N}, 9
    s_add_u32 s{S_T+13}, s{S_T+13}, {WS_CSP}
    s_lshl_b32 s{S_T+12}, s{S_M}, 10
    s_add_u32 s{S_T+12}, s{S_T+12}, {WS_HST}""")
    def cap_(fn):
        t = Kern(k.name); t.uid = k.uid; fn(t); k.uid = t.uid; return "\n".join(t.L)
    def two_addr():
        k.e(f"v_mov_b32 v23, v9\nv_add_u32 v24, 128, v9\ns_and_b32 s{S_T}, s2, 1\ns_lshl_b32 s{S_T}, s{S_T}, 7\nv_add_u32 v9, s{S_T}, v9")
    def two_sync(val, st):
        if_par(k, 0, "s_barrier\n" + cap_(lambda t: set_flag(t, 9)))
        poll(k, 23, 1, val=val)
        stamp(k, st)
        k.e("s_barrier")
        if_par(k, 1, "s_barrier\n" + cap_(lambda t: set_flag(t, 9)))
    if OPT.two & 1: two_addr()
    def cg():
        k.e(f"s_mov_b32 s{S_T}, s{S_T+13}")
        for i in range(8): k.e(f"buffer_load_dwordx4 v[{64+4*i}:{67+4*i}], v13, {W}, s{S_T} offen sc1\ns_add_u32 s{S_T}, s{S_T}, 14336")
    if OPT.hh:
        k.e(f"""s_lshl_b32 s{S_T+15}, s{S_M}, 1
        s_and_b32 s{S_T}, s2, 1
        s_add_u32 s{S_T+15}, s{S_T+15}, s{S_T}
        s_lshl_b32 s{S_T+15}, s{S_T+15}, 1
        s_add_u32 s{S_T+15}, s{S_T+15}, s{a}
        s_lshl_b32 s{S_T+15}, s{S_T+15}, 10
        s_add_u32 s{S_T+15}, s{S_T+15}, {WS_HH}
        s_cmp_ge_u32 s2, 224
        s_cselect_b32 s{S_T}, s{S_T+15}, {WS_END}
        buffer_store_dwordx4 v[44:47], v2, {W}, s{S_T} offen sc1""")
    if OPT.two & 4:
        bars(k, 2)
        sample(k, 27)
        k.e("s_barrier")
        poll(k, 27, 1, val=10, pre=True)
        bars(k, 11)
    else:
        bars(k, 14)
    k.e(f"s_cmp_ge_u32 s2, 224\ns_cbranch_scc1 L_a_helper\ns_cmp_eq_u32 s{a}, 0\ns_cbranch_scc1 L_a_nocs")
    cg()
    k.e("s_barrier\ns_barrier\ns_barrier\ns_waitcnt vmcnt(0)")
    validated(k, cg, range(64, 96), 3)
    for i in range(1, 8): k.e(f"v_pk_add_f32 v[64:65], v[64:65], v[{64+4*i}:{65+4*i}]\nv_pk_add_f32 v[66:67], v[66:67], v[{66+4*i}:{67+4*i}]")
    k.e(f"v_add_u32 v3, {L_CS}, v2\nds_write_b128 v3, v[64:67]\ns_branch L_a_cs\nL_a_nocs:\ns_barrier\ns_barrier\ns_barrier\nL_a_cs:")
    if OPT.two & 1: two_sync(8, 13)
    else:
        k.e("s_barrier")
        set_flag(k, 9)
        poll(k, 9, 1, val=16)
        stamp(k, 13)
        k.e("s_barrier")
    stamp(k, 14)
    k.e(f"v_lshl_add_u32 v13, v15, 17, v14")
    def hg(k=k):
        k.e(f"s_mov_b32 s{S_T}, s{S_T+12}")
        for i in range(8): k.e(f"buffer_load_dwordx4 v[{64+4*i}:{67+4*i}], v13, {W}, s{S_T} offen sc1\ns_add_u32 s{S_T}, s{S_T}, 16384")
    def hcomp(k):
        for r in range(2):
            d = 4+4*r if r == 0 else 16
            combine_half(k, 64+2*r, 4, 8, 16, 64, d, 20)
            k.e(f"""v_mul_f32 v{d+1}, {f2u(1.0/1024)}, v{d+1}
            v_add_f32 v{d+1}, {f2u(1e-5)}, v{d+1}
            v_rsq_f32 v20, v{d+1}
            v_sqrt_f32 v{d+3}, v{d+1}
            v_sub_f32 v{d}, 0, v{d}
            v_mul_f32 v{d+1}, {f2u(C0)}, v20
            v_mul_f32 v{d+2}, v20, v20
            v_mul_f32 v{d+2}, v{d+2}, v20
            v_mul_f32 v{d+2}, {f2u(C1)}, v{d+2}""")
        k.e(f"""v_and_b32 v3, 31, v1
        v_lshlrev_b32 v3, 5, v3
        v_cmp_gt_u32 vcc, 32, v1
        v_lshl_add_u32 v3, v15, 4, v3
        s_nop 0
        v_cndmask_b32 v4, v16, v4, vcc
        v_cndmask_b32 v5, v17, v5, vcc
        v_cndmask_b32 v6, v18, v6, vcc
        v_cndmask_b32 v7, v19, v7, vcc""")
    def zaddr(k):
        k.e(f"""s_lshl_b32 s{S_T+14}, s2, 11
        s_add_u32 s{S_T+14}, s{S_T+14}, {WS_HC}
        s_lshl_b32 s{S_T}, s{a}, 10
        s_add_u32 s{S_T+14}, s{S_T+14}, s{S_T}
        s_add_u32 m0, s{S_T}, {L_HS}
        s_mul_i32 s{S_T+12}, s{S_M}, {14*1024}
        s_add_u32 s{S_T+12}, s{S_T+12}, {WS_ZST}
        s_lshl_b32 s{S_T+13}, s{S_N}, 10
        s_add_u32 s{S_T+13}, s{S_T+13}, s{S_T+12}
        s_lshl_b32 s{S_T}, s{a}, 9
        v_lshlrev_b32 v22, 3, v1
        v_add_u32 v22, s{S_T}, v22
        v_add_u32 v12, {L_ZP}, v22
        v_mul_u32_u24 v13, {7*1024}, v15
        v_add_u32 v13, v13, v14""")
        cnt_addr(k, 10, F_Z, S_N); u_cnt(k)
        if OPT.zg:
            k.e(f"""s_lshr_b32 s{S_T}, s{S_M}, 2
            s_lshl_b32 s{S_T}, s{S_T}, 5
            s_add_u32 s{S_T}, s{S_T}, 128
            v_add_u32 v25, s{S_T}, v10
            v_mul_u32_u24 v26, s{S_T}, v1
            v_add_u32 v26, v26, v10""")
    assert OPT.two & 1
    e_ = 2 if OPT.h3 == 16 else 0
    bars(k, 4-e_)
    sample(k, 24)
    bars(k, 2)
    poll(k, 24, 1, val=8, pre=True)
    bars(k, e_)
    if OPT.hh:
        k.e("s_barrier")
        zaddr(k)
        bars(k, 4)
        def hhg(): k.e(f"buffer_load_dwordx4 v[64:67], v2, {W}, s{S_T+15} offen sc1")
        hhg()
        k.e("s_barrier\ns_barrier\ns_waitcnt vmcnt(0) lgkmcnt(0)")
        validated(k, hhg, range(64, 68), 3)
        k.e(f"buffer_load_dwordx4 v2, {W}, s{S_T+15} offen sc1 lds")
        k.e("s_barrier\ns_barrier\ns_barrier\ns_waitcnt vmcnt(0)")
    else:
        hg()
        k.e("s_barrier\ns_barrier\ns_waitcnt vmcnt(0)")
        validated(k, hg, range(65, 96, 2), 3)
        def hfin(k):
            hcomp(k); zaddr(k)
            k.e(f"buffer_store_dwordx4 v[4:7], v3, {W}, s{S_T+14} offen")
        spread(k, hfin, 4)
        k.e(f"s_barrier\ns_barrier\ns_waitcnt vmcnt(0) lgkmcnt(0)\nbuffer_load_dwordx4 v2, {W}, s{S_T+14} offen sc1 lds")
        k.e("s_barrier\ns_barrier\ns_waitcnt vmcnt(0)")
    k.e("s_barrier")
    if OPT.sk and OPT.xis: k.e(f"s_sleep {OPT.xis}")
    xp_init(k)
    k.e("s_barrier")
    k.e(f"""ds_read_b64 v[64:65], v12
    ds_read_b64 v[66:67], v12 offset:1024
    s_waitcnt lgkmcnt(0)
    v_add_f32 v4, v64, v66
    v_mul_f32 v4, 0.5, v4
    v_sub_f32 v6, v64, v66
    v_mul_f32 v6, v6, v6
    v_add_f32 v5, v65, v67
    v_fmac_f32 v5, {f2u(32.0)}, v6
    buffer_store_dwordx2 v[4:5], v22, {W}, s{S_T+13} offen sc1""")
    stamp(k, 6)
    g = OPT.gat
    bars(k, g-16+OPT.gb)
    def zsg():
        k.e(f"s_add_u32 s{S_T}, s{S_T+12}, 4096")
        for i in range(7):
            k.e(f"buffer_load_dwordx4 v[{64+4*i}:{67+4*i}], v13, {W}, s{S_T+12 if i < 4 else S_T} offen offset:{(i&3)*1024} sc1")
    zsg()
    k.e("s_barrier\ns_waitcnt vmcnt(0)")
    validated(k, zsg, range(65, 92, 2), 3)
    stamp(k, 7)
    def zfin(k):
        for r in range(2):
            combine_half(k, 64+2*r, 4, 7, 14, 128, 4+2*r, 20); finish_rstd(k, 4+2*r, 1792)
        if OPT.zdma:
            k.e(f"""s_lshl_b32 s{S_T}, s{a}, 9
            s_add_u32 m0, s{S_T}, {L_ZS}
            s_mov_b32 exec_hi, 0
            buffer_store_dwordx4 v[4:7], v2, {W}, s{S_T+14} offen""")
        else: k.e(f"v_add_u32 v3, {L_ZS}, v14")
    if OPT.zdma:
        spread(k, zfin, OPT.zsp-2)
        k.e(f"s_waitcnt vmcnt(0)\nbuffer_load_dwordx4 v2, {W}, s{S_T+14} offen sc1 lds\ns_mov_b32 exec_hi, -1\ns_barrier\ns_waitcnt vmcnt(0)\ns_barrier")
    else:
        spread(k, zfin, OPT.zsp-1)
        k.e("ds_write_b128 v3, v[4:7]\ns_waitcnt lgkmcnt(0)\ns_barrier")
    nf = OPT.nst
    zb = g+1+OPT.zsp
    fb = zb+nf+1+OPT.vmd
    cb = 28 if OPT.own2 else 26
    assert fb <= cb
    bars(k, fb-zb)
    if OPT.zg:
        assert OPT.own2 == 3
        set_flag(k, 26, 3)
        bars(k, cb-fb)
        sample(k, 25)
        k.e("s_barrier")
        poll(k, 25, 1, val=4, pre=True)
        bars(k, 2)
        sample(k, 10)
        bars(k, 2)
        poll(k, 10, 1, val=16, pre=True)
        cb += 4
    else:
        set_flag(k, 10)
        bars(k, cb-fb)
        sample(k, 10)
        k.e("s_barrier")
        poll(k, 10, 1, val=16, pre=True)
    stamp(k, 8)
    if OPT.two & 2:
        bars(k, 62-cb)
        k.e("L_a_p5:")
        cnt_addr(k, 9, F_U, S_M); two_addr()
        two_sync(7, 15)
        bars(k, 3)
        sample(k, 24)
        bars(k, 2)
        poll(k, 24, 1, val=7, pre=True)
    else:
        bars(k, 63-cb)
        set_flag(k, 9)
        k.e("L_a_p5:")
        poll(k, 9, 1, val=7 if OPT.sk else 14)
        stamp(k, 15)
        k.e("s_barrier")
    k.e("s_branch L_fin")
    k.e("L_a_helper:")
    bars(k, 3)
    k.e("s_waitcnt vmcnt(0)\ns_barrier")
    set_flag(k, 9)
    if OPT.hh:
        k.e(f"v_lshl_add_u32 v13, v15, 17, v14\ns_sleep {OPT.hhs}")
        validated(k, hg, range(65, 96, 2), 3, pre=False)
        hcomp(k)
        k.e(f"buffer_store_dwordx4 v[4:7], v3, {W}, s{S_T+15} offen sc1")
    k.e("s_barrier")
    if OPT.ct > 1: code_touch(k, "L_c_p3", 28, 44)
    if OPT.sk:
        xp_init(k)
        k.e(f"""v_mov_b32 v9, {F_Z + 14*FLS}
        s_mov_b64 exec, 1
        buffer_atomic_add v11, v9, {W}, 0 offen sc1
        s_mov_b64 exec, -1
        s_sleep 64""")
        poll(k, 9, 1, val=64)
    u_cnt(k)
    k.e("v_mov_b32 v11, 0")
    k.e("s_branch L_a_p5")

def swaps(p):
    return [f"v_permlane16_swap_b32 v{p}, v{p+2}", f"v_permlane16_swap_b32 v{p+1}, v{p+3}"]
def pack32(k, dst, a):
    cvt16(k, dst, a)
    for x in swaps(dst): k.e(x)
    for x in swaps(dst+4): k.e(x)

def gelu_quads(k, quads, t, post=None):
    Gs = []
    for gi, g in enumerate(range(0, len(quads), 2)):
        tt = t + 8*(gi & 1)
        P = [(y+2*i, cs+2*i, s, tt+4*j+2*i) for j, (y, cs, s) in enumerate(quads[g:g+2]) for i in range(2)]
        A = [f"v_pk_fma_f32 v[{y}:{y+1}], v[{cs}:{cs+1}], v[{s}:{s+1}], v[{y}:{y+1}] op_sel_hi:[1,0,1]" for y, cs, s, p in P]
        A += [f"v_pk_mul_f32 v[{p}:{p+1}], v[{y}:{y+1}], v[{y}:{y+1}]" for y, cs, s, p in P]
        A += [f"v_pk_fma_f32 v[{p}:{p+1}], v[{p}:{p+1}], v[{s+2}:{s+3}], v[{s}:{s+1}] op_sel:[0,0,1] op_sel_hi:[1,0,1]" for y, cs, s, p in P]
        A += [f"v_pk_mul_f32 v[{p}:{p+1}], v[{p}:{p+1}], v[{y}:{y+1}]" for y, cs, s, p in P]
        E = [f"v_exp_f32 v{tt+j}, v{tt+j}" for j in range(8)]
        D = [f"v_pk_fma_f32 v[{p}:{p+1}], v[{p}:{p+1}], v[{s+2}:{s+3}], v[{s+2}:{s+3}] op_sel:[0,1,1] op_sel_hi:[1,1,1]" for y, cs, s, p in P]
        R = [f"v_rcp_f32 v{tt+j}, v{tt+j}" for j in range(8)]
        M = [f"v_pk_mul_f32 v[{y}:{y+1}], v[{y}:{y+1}], v[{p}:{p+1}]" for y, cs, s, p in P]
        Gs.append((A, E, D, R, M))
    L = list(Gs[0][0])
    for g, (A, E, D, R, M) in enumerate(Gs):
        N = Gs[g+1][0] if g+1 < len(Gs) else []
        Q = post(g-1) if post and g else []
        L += E + N[:8] + Q[:4] + D + N[8:12] + R + N[12:] + Q[4:] + M
    if post: L += post(len(Gs)-1)
    for x in L: k.e(x)

def gelu_fill(y, cs, s, n, t):
    E = range(n); L = []
    L += [f"v_fmac_f32 v{y+j}, v{cs+j}, v{s}" for j in E]
    L += [f"v_mul_f32 v{t+j}, v{y+j}, v{y+j}" for j in E]
    L += [f"v_fma_f32 v{t+j}, v{t+j}, v{s+2}, v{s+1}" for j in E]
    L += [f"v_mul_f32 v{t+j}, v{t+j}, v{y+j}" for j in E]
    L += [f"v_exp_f32 v{t+j}, v{t+j}" for j in E]
    L += [f"v_fma_f32 v{t+j}, v{t+j}, v{s+3}, v{s+3}" for j in E]
    L += [f"v_rcp_f32 v{t+j}, v{t+j}" for j in E]
    L += [f"v_mul_f32 v{y+j}, v{t+j}, v{y+j}" for j in E]
    return L

def treduce(k, a):
    k.e(f"""s_nop 1
    v_permlane32_swap_b32 v{a}, v{a+2}
    v_permlane32_swap_b32 v{a+1}, v{a+3}
    v_add_f32 v{a}, v{a}, v{a+2}
    v_add_f32 v{a+1}, v{a+1}, v{a+3}
    s_nop 1
    v_permlane16_swap_b32 v{a}, v{a+1}
    v_add_f32 v{a}, v{a}, v{a+1}""")

NWARM = [8, 8, 8, 4]
def grp(k, g):
    if OPT.pads: k.e(f'GRP {g}')
def warm(k, grp):
    if not OPT.pads: return
    k.e("s_mov_b64 exec, 0")
    for i in range(NWARM[grp]): k.e(f"WARM {grp} {i}")
    k.e("s_mov_b64 exec, -1")

def consumer(k):
    c1, c2, c3, c4, c5 = cfgs()
    def regs(aS, aF, acc):
        R = Regs(); R.aS = aS; R.aF = aF; R.fr = 16; R.acc = acc; return R
    k.e(f"s_mov_b32 s{S_K}, {f2u(LOG2E)}\ns_mov_b32 s{S_K+1}, {f2u(LOG2E)}")
    c = c1; R = regs([8, 9], [10, 11, 12, 13], 64); C = Cons(k, c, R)
    k.e("s_waitcnt lgkmcnt(0)")
    mk_srd(k, SRD_B, P_X, 4*MB); mk_srd(k, SRD_W, P_WS, WS_END)
    if OPT.pads:
        for d in (SRD_S, SRD_F, SRD_A, SRD_D): mk_srd(k, d, P_X, 0)
    stamp(k, 0)
    consumer_addr(k, c, R)
    C.zero()
    aWP=240; aXS=241; aCQ=242; aCV=243; aVS=244; aPW=245; aVX=247; aVW=248; aPR=249; L16=15
    tr_lane_base(k, aWP, 3, 9, rowshift=6, swz=False)
    k.e(f"""s_lshl_b32 s{S_T}, s{S_WN}, 11
    s_add_u32 s{S_T}, s{S_T}, {L_WPHI}
    v_add_u32 v{aWP}, s{S_T}, v{aWP}
    v_lshrrev_b32 v3, 4, v1
    v_and_b32 v4, 15, v1
    s_lshl_b32 s{S_T}, s{S_WM}, 8
    s_add_u32 s{S_T}, s{S_T}, {L_XS}
    v_lshl_add_u32 v{aXS}, v4, 2, s{S_T}
    v_lshl_add_u32 v{aVS}, v3, 4, s{S_T}
    s_mul_i32 s{S_T+1}, s{S_WN}, 384
    s_add_u32 s{S_T+1}, s{S_T+1}, {L_CQ}
    v_lshl_add_u32 v{aCQ}, v3, 4, s{S_T+1}
    v_and_b32 v7, 3, v4
    v_bfe_u32 v5, v4, 2, 1
    v_lshl_or_b32 v7, v5, 3, v7
    v_bfe_u32 v5, v4, 3, 1
    v_lshl_or_b32 v7, v5, 2, v7
    v_lshl_add_u32 v{aCV}, v7, 2, s{S_T+1}
    v_lshrrev_b32 v3, 5, v1
    v_and_b32 v4, 31, v1
    v_lshlrev_b32 v5, 2, v3
    v_xor_b32 v5, v4, v5
    v_lshlrev_b32 v5, 4, v5
    v_lshl_add_u32 v5, v3, 9, v5
    s_lshl_b32 s{S_T}, s{S_WN}, 14
    s_add_u32 s{S_T}, s{S_T}, {L_PHK}
    s_lshl_b32 s{S_T+1}, s{S_WM}, 13
    s_add_u32 s{S_T+2}, s{S_T}, s{S_T+1}
    v_add_u32 v{aPW}, s{S_T+2}, v5
    v_xor_b32 v{aPW+1}, 128, v{aPW}
    v_lshlrev_b32 v{L16}, 4, v1
    s_lshl_b32 s{S_T+3}, s{S_WN}, 13
    s_add_u32 s{S_T+3}, s{S_T+3}, {L_VX}
    v_add_u32 v{aVX}, s{S_T+3}, v{L16}
    s_lshl_b32 s{S_T+4}, s{S_WM}, 12
    v_add_u32 v{aVW}, s{S_T+4}, v{aVX}
    v_lshlrev_b32 v14, 13, v3
    v_lshl_add_u32 v14, v4, 4, v14
    v_lshlrev_b32 v251, 8, v3
    v_lshlrev_b32 v252, 4, v3""")
    blk_tr_base(k, aPR, 2, 3, 3)
    k.e(f"""s_lshl_b32 s{S_T+1}, s{S_WM}, 11
    s_add_u32 s{S_T+1}, s{S_T+1}, s{S_T}
    v_add_u32 v{aPR}, s{S_T+1}, v{aPR}
    v_xor_b32 v{aPR+1}, 64, v{aPR}""")
    ONES=4
    for i in range(4): k.e(f"v_mov_b32 v{ONES+i}, 0x3f803f80")
    k.e(f"""s_lshl_b32 s{S_T}, s{S_WN}, 1
    s_add_u32 s{S_T}, s{S_T}, s{S_WM}
    s_lshl_b32 s{S_T+1}, s{S_N}, 2
    s_add_u32 s{S_T}, s{S_T}, s{S_T+1}
    s_lshl_b32 s{S_T+2}, s{S_T}, 15
    s_lshl_b32 s{S_T+1}, s{S_M}, 9
    s_add_u32 s{S_T+2}, s{S_T+2}, s{S_T+1}
    s_add_u32 s{S_T+2}, s{S_T+2}, {WS_KVP}
    s_add_u32 s{S_T+3}, s{S_T+2}, 16384
    s_lshl_b32 s{S_T+4}, s{S_T}, 10
    s_lshl_b32 s{S_T+1}, s{S_M}, 4
    s_add_u32 s{S_T+4}, s{S_T+4}, s{S_T+1}
    s_add_u32 s{S_T+4}, s{S_T+4}, {WS_ZP}
    s_lshl_b32 s{S_T}, s{S_N}, 1
    s_add_u32 s{S_T}, s{S_T}, s{S_WN}
    s_lshl_b32 s{S_T+12}, s{S_M}, 2
    s_lshl_b32 s{S_T+1}, s{S_WM}, 1
    s_add_u32 s{S_T+12}, s{S_T+12}, s{S_T+1}
    s_lshl_b32 s{S_T+12}, s{S_T+12}, 16
    s_lshl_b32 s{S_T+1}, s{S_T}, 11
    s_add_u32 s{S_T+12}, s{S_T+12}, s{S_T+1}
    s_add_u32 s{S_T+12}, s{S_T+12}, {WS_O}
    s_add_u32 s{S_T+13}, s{S_T+12}, 65536""")
    warm(k, 0)
    k.e("s_barrier")
    stamp(k, 1)
    K0,K1,V0,V1,Q0,Q1 = 64,80,96,112,128,144
    WP=224; ST=232; KB=24; VB=40; PK=160; NM=192; RSD=208; CK=160; CV=2
    tl = [f"ds_read2_b32 v[{ST+2*t}:{ST+2*t+1}], v{aXS} offset0:{16*t} offset1:{128+16*t}" for t in range(4)]
    tl += [f"ds_read_b128 v[{CK+4*fh}:{CK+4*fh+3}], v{aCQ} offset:{128+64*fh}" for fh in range(2)]
    tl += [f"ds_read_b64_tr_b16 v[{WP+4*cc+2*rd}:{WP+4*cc+2*rd+1}], v{aWP} offset:{cc*1024+rd*256}" for cc in range(2) for rd in range(2)]
    tl += [f"ds_read2_b32 v[{CV}:{CV+1}], v{aCV} offset0:64 offset1:80"]
    C.first_reads(); C.loop4(5, 0); C.loop(1, next_cons=False, tail=tl, slot=0)
    stamp(k, 2)
    k.e("s_waitcnt lgkmcnt(5)")
    for t in range(4):
        k.e(f"ds_read_b128 v[{NM+4*t}:{NM+3+4*t}], v{aVS} offset:{64*t}\nds_read_b128 v[{RSD+4*t}:{RSD+3+4*t}], v{aVS} offset:{512+64*t}")
    def corrT(a, cs, st, t):
        for fh in range(2):
            P = [(a+8*fh+4*sh+2*i, cs+4*fh+2*i, ST+2*(2*st+sh), t+4*sh+2*i) for sh in range(2) for i in range(2)]
            for y, c_, s_, p in P: k.e(f"v_pk_mul_f32 v[{p}:{p+1}], v[{c_}:{c_+1}], v[{s_}:{s_+1}] op_sel_hi:[1,0]")
            for y, c_, s_, p in P: k.e(f"v_pk_fma_f32 v[{y}:{y+1}], v[{y}:{y+1}], v[{s_}:{s_+1}], v[{p}:{p+1}] op_sel:[0,1,0] op_sel_hi:[1,1,1]")
    def corrN(a, st, t):
        for sh in range(2):
            P = [(a+8*sh+4*dh+2*i, 4*(2*st+sh)+2*i, dh, t+4*dh+2*i) for dh in range(2) for i in range(2)]
            for y, o_, dh, p in P: k.e(f"v_pk_mul_f32 v[{p}:{p+1}], v[{NM+o_}:{NM+o_+1}], v[{CV}:{CV+1}] op_sel:[0,{dh}] op_sel_hi:[1,{dh}]")
            for y, o_, dh, p in P: k.e(f"v_pk_fma_f32 v[{y}:{y+1}], v[{y}:{y+1}], v[{RSD+o_}:{RSD+o_+1}], v[{p}:{p+1}]")
    def pmf(P, B, st):
        k.e(f"{MF} v[{P+16*st}:{P+16*st+15}], v[{WP}:{WP+3}], v[{B+8*st}:{B+8*st+3}], 0")
        k.e(f"{MF} v[{P+16*st}:{P+16*st+15}], v[{WP+4}:{WP+7}], v[{B+8*st+4}:{B+8*st+7}], v[{P+16*st}:{P+16*st+15}]")
    corrT(K0, CK, 0, 16); corrT(K1, CK, 1, 16)
    pack32(k, KB, K0); pack32(k, KB+8, K1)
    k.e("s_waitcnt lgkmcnt(0)")
    if OPT.kst: stamp(k, 23)
    pmf(PK, KB, 0); pmf(PK, KB, 1)
    corrN(V0, 0, 16); corrN(V1, 1, 16)
    pack32(k, VB, V0); pack32(k, VB+8, V1)
    if OPT.kst: stamp(k, 24)
    CK = 192
    EP=64; EN=80; T=56
    def wr(st, O, nb): return [f"ds_write_b128 v{aPW+hh}, v[{O+4*hh}:{O+4*hh+3}] offset:{st*4096+nb*2048+hh*1024}" for hh in range(2)]
    inj = [f"ds_write_b128 v{aVW}, v[{VB+4*i}:{VB+4*i+3}] offset:{i*1024}" for i in range(4)]
    inj += [f"ds_read_b128 v[{CK+4*fh}:{CK+4*fh+3}], v{aCQ} offset:{64*fh}" for fh in range(2)]
    softmax2(k, (PK, 64, 80, 56, 160, 168), (PK+16, 96, 112, 60, 176, 184), inject=inj,
             wA=(wr(0, 160, 0), wr(0, 168, 1)), wB=(wr(1, 176, 0), wr(1, 184, 1)))
    if OPT.kst: stamp(k, 25)
    k.e("s_waitcnt lgkmcnt(0)\ns_barrier")
    stamp(k, 3)
    AF=64; VF_=96; KV=160; ZZ=176
    def rdkc(kc):
        off = (kc>>1)*4096 + (kc&1)*256
        k.e(f"""ds_read_b64_tr_b16 v[{AF+4*kc}:{AF+4*kc+1}], v{aPR} offset:{off}
        ds_read_b64_tr_b16 v[{AF+4*kc+2}:{AF+4*kc+3}], v{aPR+1} offset:{off}
        ds_read_b128 v[{VF_+4*kc}:{VF_+4*kc+3}], v{aVX} offset:{kc*1024}""")
    for kc in range(5): rdkc(kc)
    for kc in range(8):
        k.e(f"s_waitcnt lgkmcnt({3*(min(kc+5, 8)-kc-1)})")
        k.e(f"{MF} v[{KV}:{KV+15}], v[{AF+4*kc}:{AF+4*kc+3}], v[{VF_+4*kc}:{VF_+4*kc+3}], {'0' if kc==0 else f'v[{KV}:{KV+15}]'}")
        if kc+5 < 8: rdkc(kc+5)
    for kc in range(8):
        k.e(f"{MF} v[{ZZ}:{ZZ+15}], v[{AF+4*kc}:{AF+4*kc+3}], v[{ONES}:{ONES+3}], {'0' if kc==0 else f'v[{ZZ}:{ZZ+15}]'}")
        if kc == 2:
            k.e("s_nop 7\ns_nop 1")
            for i in range(4): k.e(f"v_cvt_pk_bf16_f32 v{212+i}, v{KV+2*i}, v{KV+2*i+1}")
            k.e(f"buffer_store_dwordx4 v[212:215], v14, {W}, s{S_T+2} offen sc1")
        if kc == 3:
            for i in range(4, 8): k.e(f"v_cvt_pk_bf16_f32 v{212+i}, v{KV+2*i}, v{KV+2*i+1}")
            k.e(f"buffer_store_dwordx4 v[216:219], v14, {W}, s{S_T+3} offen sc1")
    k.e("s_barrier")
    k.e("s_nop 7\ns_nop 2")
    cvt16(k, 16, ZZ)
    k.e(f"""s_mov_b32 exec_lo, 1
    s_mov_b32 exec_hi, 1
    buffer_store_dwordx4 v[16:19], v251, {W}, s{S_T+4} offen sc1
    buffer_store_dwordx4 v[20:23], v251, {W}, s{S_T+4} offen offset:512 sc1
    s_mov_b64 exec, -1""")
    stamp(k, 4)
    QB=32; PQ=160
    def p25_addr():
        tile_map(k, 4, 8, 16)
        k.e(f"""s_lshl_b32 s{S_T}, s{S_M}, 2
        s_add_u32 s{S_T}, s{S_T}, s{S_WAVE}
        s_lshl_b32 s{S_T+1}, s{S_T}, 16
        s_lshl_b32 s{S_T+2}, s{S_N}, 7
        s_add_u32 s{S_T+2}, s{S_T+2}, s{S_T+1}
        v_and_b32 v4, 31, v1
        v_lshlrev_b32 v14, 11, v4
        v_lshrrev_b32 v5, 5, v1
        v_lshl_add_u32 v14, v5, 4, v14
        v_add_u32 v14, s{S_T+2}, v14""")
    corrT(Q0, CK, 0, 48); corrT(Q1, CK, 1, 48)
    pack32(k, QB, Q0); pack32(k, QB+8, Q1)
    pmf(PQ, QB, 0); pmf(PQ, QB, 1)
    p25_addr()
    RS = 224
    for i in range(4): k.e(f"buffer_load_dwordx4 v[{RS+4*i}:{RS+4*i+3}], v14, {srd(SRD_B)}, 0 offen offset:{32*i}")
    k.e(f"""s_lshl_b32 s{S_T+2}, s{S_N}, 12
    s_add_u32 s{S_T+2}, s{S_T+2}, s{S_T+1}
    s_add_u32 s{S_T+2}, s{S_T+2}, {WS_H}
    v_add_u32 v7, s{S_T+2}, v{L16}
    s_lshl_b32 s{S_T}, s{S_T}, 8
    s_lshl_b32 s{S_T+1}, s{S_N}, 14
    s_add_u32 s{S_T}, s{S_T}, s{S_T+1}
    s_add_u32 s{S_T}, s{S_T}, {WS_HST}
    v_lshlrev_b32 v9, 3, v4
    v_add_u32 v9, s{S_T}, v9
    s_lshl_b32 s{S_T}, s{S_WN}, 12
    v_add_u32 v2, s{S_T}, v{L16}
    s_lshl_b32 s{S_T}, s{S_WN}, 7
    v_add_u32 v3, s{S_T}, v252""")
    BB = 240
    mk_srd(k, SRD_A, P_BSP, 4096)
    k.e(f"""v_and_b32 v4, 15, v1
    v_lshlrev_b32 v4, 1, v4
    s_lshl_b32 s{S_T+2}, s{S_M}, 8
    s_lshl_b32 s{S_T+3}, s{S_WM}, 7
    s_add_u32 s{S_T+2}, s{S_T+2}, s{S_T+3}""")
    for t in range(4): k.e(f"buffer_load_ushort v{BB+t}, v4, {srd(SRD_A)}, s{S_T+2} offen offset:{32*t}")
    PH=128; KF=16; ZF=32; NUM=96; DEN=192
    softmax2(k, (PQ, 64, 80, 56, PH, PH+8), (PQ+16, 96, 112, 60, PH+16, PH+24))
    def res_init():
        for j in range(4):
            for x in swaps(RS+4*j): k.e(x)
        for i in range(16): unpack(k, 64+2*i, 65+2*i, RS+i)
    R25 = regs([8], [10, 11, 12, 13], 64); R25.s2 = 96
    consumer_addr(k, c2, R25, t=48)
    k.e("s_waitcnt vmcnt(0)")
    res_init()
    stamp(k, 21)
    warm(k, 1); grp(k, 1)
    k.e("s_barrier")
    stamp(k, 5)
    for i in range(4): k.e(f"ds_read_b128 v[{ZF+4*i}:{ZF+4*i+3}], v3 offset:{L_Z+i*32}")
    for i in range(4): k.e(f"ds_read_b128 v[{KF+4*i}:{KF+4*i+3}], v2 offset:{L_KV+i*1024}")
    for st in range(2):
        for A_, D_ in ((ZF, DEN), (KF, NUM)):
            if st == 0: k.e(f"s_waitcnt lgkmcnt({4 if A_ == ZF else 0})")
            for i in range(4):
                b = PH+16*st+4*i
                k.e(f"{MF} v[{D_+16*st}:{D_+16*st+15}], v[{A_+4*i}:{A_+4*i+3}], v[{b}:{b+3}], {'0' if i==0 else f'v[{D_+16*st}:{D_+16*st+15}]'}")
    k.e("s_nop 0")
    for st in range(2):
        d = DEN+16*st; n = NUM+16*st; o = 160+8*st
        k.e(f"v_add_f32 v{d}, {f2u(1e-6)}, v{d}\nv_rcp_f32 v{d}, v{d}\ns_nop 0")
        for hh in range(2):
            for i in range(4*hh, 4*hh+4): k.e(f"v_pk_mul_f32 v[{n+2*i}:{n+2*i+1}], v[{n+2*i}:{n+2*i+1}], v[{d}:{d+1}] op_sel_hi:[1,0]")
            for i in range(4*hh, 4*hh+4): k.e(f"v_cvt_pk_bf16_f32 v{o+i}, v{n+2*i}, v{n+2*i+1}")
            k.e(f"buffer_store_dwordx4 v[{o+4*hh}:{o+4*hh+3}], v{L16}, {W}, s{S_T+12+st} offen offset:{1024*hh} sc1")
    C = Cons(k, c2, R25)
    if OPT.two & 4: if_par(k, 0, "s_waitcnt vmcnt(0)", S_CLS)
    else: k.e("s_waitcnt vmcnt(0)")
    k.e("s_barrier")
    stamp(k, 6)
    warm(k, 2)
    k.e("s_waitcnt vmcnt(0)\ns_barrier\ns_barrier")
    stamp(k, 7)
    if OPT.st4 & 1:
        C.first_reads()
        if c2.chain:
            C.loop4(3, 0)
            for j in range(3): C.loop(1, slot=j)
            C.loop(1, slot=3, next_cons=False)
        else:
            C.loopu(5, 3); C.loop(1, next_cons=False)
    else:
        C.first_reads(); C.loop(15); C.loop(1, next_cons=False)
    stamp(k, 8)
    A = 64
    def out4(dst, store):
        k.e("s_nop 1")
        for i in range(4): k.e(f"v_cvt_pk_bf16_f32 v{dst+i}, v{A+2*i}, v{A+2*i+1}")
        for j in range(4):
            if j < 3:
                for i in range(4*j+4, 4*j+8): k.e(f"v_cvt_pk_bf16_f32 v{dst+i}, v{A+2*i}, v{A+2*i+1}")
            for x in swaps(dst+4*j): k.e(x)
            k.e(store(dst+4*j, j))
    out4(RS, lambda r, j: f"buffer_store_dwordx4 v[{r}:{r+3}], v7, {W}, 0 offen offset:{1024*j} sc1")
    for i in range(16): unpack(k, A+2*i, A+2*i+1, RS+i)
    k.e(f"v_pk_add_f32 v[20:21], v[{A}:{A+1}], v[{A+2}:{A+3}]\nv_pk_add_f32 v[22:23], v[{A+4}:{A+5}], v[{A+6}:{A+7}]")
    for i in range(4, 16):
        t = 20 + 2*(i & 1); k.e(f"v_pk_add_f32 v[{t}:{t+1}], v[{t}:{t+1}], v[{A+2*i}:{A+2*i+1}]")
    k.e("v_pk_add_f32 v[20:21], v[20:21], v[22:23]\nv_add_f32 v20, v20, v21")
    xswap_sum1(k, 20, 21)
    k.e(f"v_mul_f32 v20, {f2u(1/64.)}, v20")
    for i in range(16):
        k.e(f"v_pk_add_f32 v[{A+2*i}:{A+2*i+1}], v[{A+2*i}:{A+2*i+1}], v[20:21] op_sel_hi:[1,0] neg_lo:[0,1] neg_hi:[0,1]")
    k.e(f"v_pk_mul_f32 v[22:23], v[{A}:{A+1}], v[{A}:{A+1}]\nv_pk_mul_f32 v[24:25], v[{A+2}:{A+3}], v[{A+2}:{A+3}]")
    for i in range(2, 16):
        t = 22 + 2*(i & 1); k.e(f"v_pk_fma_f32 v[{t}:{t+1}], v[{A+2*i}:{A+2*i+1}], v[{A+2*i}:{A+2*i+1}], v[{t}:{t+1}]")
    k.e("v_pk_add_f32 v[22:23], v[22:23], v[24:25]\nv_add_f32 v22, v22, v23")
    xswap_sum1(k, 22, 23)
    k.e(f"""v_mov_b32 v21, v22
    s_mov_b32 exec_hi, 0
    buffer_store_dwordx2 v[20:21], v9, {W}, 0 offen sc1
    s_mov_b32 exec_hi, -1""")
    k.e("s_cmp_ge_u32 s2, 224\ns_cbranch_scc1 L_c_helper")
    if OPT.two & 1: if_par(k, 0, "s_waitcnt vmcnt(1)")
    else: k.e("s_waitcnt vmcnt(1)")
    k.e("s_barrier")
    stamp(k, 9)
    k.e("L_c_p3:")
    tile_map(k, 4, 7, 14)
    Ra = regs([2], [3, 4, 5, 6], 128); Rb = regs([2], [3, 4, 5, 6], 64); R4 = regs([8, 9], [10, 11], 128)
    Ca = Cons(k, c3, Ra); Cb = Cons(k, c3, Rb); C4 = Cons(k, c4, R4)
    consumer_addr(k, c3, Ra, t=32, slot=0); consumer_addr(k, c4, R4, slot=0, t=32, setslot=False)
    Ca.zero(); Cb.zero()
    aCS=7; aZN=12; aHS=13; aZS=14; aZP=252; CS=192; HS=208; ZS=244
    k.e("v_and_b32 v32, 15, v1")
    k.e(f"""s_lshl_b32 s{S_T}, s{S_WM}, 6
    v_add_u32 v32, s{S_T}, v32
    v_lshlrev_b32 v{aZS}, 3, v32
    v_add_u32 v{aZS}, {L_ZS}, v{aZS}
    v_lshlrev_b32 v{aHS}, 4, v32
    v_add_u32 v{aHS}, {L_HS}, v{aHS}
    v_lshrrev_b32 v34, 4, v1
    s_lshl_b32 s{S_T}, s{S_WN}, 8
    s_add_u32 s{S_T}, s{S_T}, {L_CS}
    v_lshl_add_u32 v{aCS}, v34, 4, s{S_T}
    v_lshrrev_b32 v34, 5, v1
    v_lshlrev_b32 v34, 6, v34
    v_xor_b32 v{aZN}, v34, v{L16}
    s_lshl_b32 s{S_T}, s{S_WM}, 9
    s_lshl_b32 s{S_T+1}, s{S_WN}, 10
    s_add_u32 s{S_T}, s{S_T}, s{S_T+1}
    s_add_u32 s{S_T}, s{S_T}, {L_ZP}
    v_lshl_add_u32 v{aZP}, v1, 3, s{S_T}
    s_lshl_b32 s{S_T+12}, s{S_N}, 19
    s_lshl_b32 s{S_T+1}, s{S_M}, 15
    s_add_u32 s{S_T+12}, s{S_T+12}, s{S_T+1}
    s_lshl_b32 s{S_T+1}, s{S_WM}, 14
    s_add_u32 s{S_T+12}, s{S_T+12}, s{S_T+1}
    s_lshl_b32 s{S_T+1}, s{S_WN}, 12
    s_add_u32 s{S_T+12}, s{S_T+12}, s{S_T+1}
    s_add_u32 s{S_T+12}, s{S_T+12}, {WS_Z2N}
    s_add_u32 s{S_T+13}, s{S_T+12}, 8192
    s_lshl_b32 s{S_T}, s{S_M}, 2
    s_lshl_b32 s{S_T+1}, s{S_WM}, 1
    s_add_u32 s{S_T}, s{S_T}, s{S_T+1}
    s_mul_i32 s{S_T}, s{S_T}, 112
    s_lshl_b32 s{S_T+1}, s{S_N}, 3
    s_add_u32 s{S_T}, s{S_T}, s{S_T+1}
    s_lshl_b32 s{S_T+1}, s{S_WN}, 2
    s_add_u32 s{S_T}, s{S_T}, s{S_T+1}
    s_lshl_b32 s{S_T}, s{S_T}, 10
    s_add_u32 s{S_T+14}, s{S_T}, {WS_U}
    s_add_u32 s{S_T+15}, s{S_T+14}, {112*1024}""")
    warm(k, 3)
    k.e("s_waitcnt vmcnt(0)\ns_barrier\ns_barrier")
    stamp(k, 10)
    rcs = lambda half: [f"ds_read_b128 v[{CS+4*f}:{CS+4*f+3}], v{aCS} offset:{half*512 + f*64}" for f in range(4)]
    rhs = [f"ds_read_b128 v[{HS+4*t}:{HS+4*t+3}], v{aHS} offset:{t*256}" for t in range(4)]
    Ca.first_reads_static(2); Ca.loop4(3, 2)
    for j in range(3): Ca.loop(1, slot=(2+j) % 4)
    Ca.loop(1, next_cons=False, tail=rhs+rcs(1), slot=1)
    stamp(k, 11)
    k.e("s_waitcnt lgkmcnt(0)")
    if not c3.chain: Cb.first_reads_static(2)
    zq = [(Ca.sub(t, f), CS+4*f, HS+4*t) for t in range(4) for f in range(4)]
    def zpost(g):
        t = g >> 1; ys = [zq[2*g][0], zq[2*g][0]+2, zq[2*g+1][0], zq[2*g+1][0]+2]; L = []
        for i, y in enumerate(ys):
            if g & 1 == 0 and i == 0:
                L.append(f"v_pk_mul_f32 v[62:63], v[{y}:{y+1}], v[{y}:{y+1}]")
            elif g & 1 == 0 and i == 1:
                L += [f"v_pk_add_f32 v[60:61], v[{ys[0]}:{ys[0]+1}], v[{y}:{y+1}]", f"v_pk_fma_f32 v[62:63], v[{y}:{y+1}], v[{y}:{y+1}], v[62:63]"]
            else:
                L += [f"v_pk_add_f32 v[60:61], v[60:61], v[{y}:{y+1}]", f"v_pk_fma_f32 v[62:63], v[{y}:{y+1}], v[{y}:{y+1}], v[62:63]"]
        if g & 1: L += [f"v_add_f32 v{ZS+t}, v60, v61", f"v_add_f32 v{ZS+4+t}, v62, v63"]
        return L
    k.e("s_nop 3")
    gelu_quads(k, zq, 32, post=zpost)
    if c3.chain: Cb.first_reads_static(2)
    for x in rcs(0): k.e(x)
    a_, b_ = ZS, ZS+4
    k.e(f"""v_permlane32_swap_b32 v{a_}, v{a_+2}
    v_permlane32_swap_b32 v{a_+1}, v{a_+3}
    v_permlane32_swap_b32 v{b_}, v{b_+2}
    v_permlane32_swap_b32 v{b_+1}, v{b_+3}
    v_pk_add_f32 v[{a_}:{a_+1}], v[{a_}:{a_+1}], v[{a_+2}:{a_+3}]
    v_pk_add_f32 v[{b_}:{b_+1}], v[{b_}:{b_+1}], v[{b_+2}:{b_+3}]
    s_nop 0
    v_permlane16_swap_b32 v{a_}, v{a_+1}
    v_permlane16_swap_b32 v{b_}, v{b_+1}
    v_add_f32 v{a_+2}, v{a_}, v{a_+1}
    v_add_f32 v{b_}, v{b_}, v{b_+1}
    v_mul_f32 v{a_}, {f2u(1/64.)}, v{a_+2}
    v_fma_f32 v{a_+1}, -v{a_}, v{a_+2}, v{b_}
    v_max_f32 v{a_+1}, 0, v{a_+1}
    ds_write_b64 v{aZP}, v[{ZS}:{ZS+1}]
    s_waitcnt lgkmcnt(0)""")
    if OPT.gb: k.e("s_barrier")
    grp(k, 2)
    stamp(k, 12)
    g = OPT.gat
    n1 = g+1+OPT.zsp-16+1
    def norm_tile(st, ft):
        a = Ca.acc(st, ft); L = []
        for fh in range(2):
            for sh in range(2):
                s = ZS+2*(2*st+sh)
                L += [f"v_fma_f32 v{a+8*fh+4*sh+i}, v{a+8*fh+4*sh+i}, v{s+1}, v{s}" for i in range(4)]
        L += [f"v_cvt_pk_bf16_f32 v{a+8*fh+i}, v{a+8*fh+2*i}, v{a+8*fh+2*i+1}" for fh in range(2) for i in range(4)]
        for fh in range(2):
            L += swaps(a+8*fh)
            L += [f"buffer_store_dwordx4 v[{a+8*fh}:{a+8*fh+3}], v{aZN}, {W}, s{S_T+12+st} offen offset:{ft*2048+fh*1024} sc1"]
        return L
    NL = sum((norm_tile(st, ft) for st in range(2) for ft in range(2)), [])
    nf = OPT.nst
    zl = [f"v_lshlrev_b32 v{C4.sub(t, f)+i}, 16, v{BB+t}" for f in range(4) for t in range(4) for i in range(4)]
    vm = n1+nf+OPT.vmd
    nz = 15-vm
    rz = [f"ds_read_b64 v[{ZS+2*t}:{ZS+2*t+1}], v{aZS} offset:{t*128}" for t in range(4)]
    for j in range(16):
        kw = dict(slot=(2+j) % 4)
        if j == n1-1: kw['tail'] = rz
        if j == n1:
            k.e("s_waitcnt lgkmcnt(4)"); stamp(k, 13)
            if OPT.nprio: k.e("s_setprio 3")
            if nf == 0:
                pend = []
                for st in range(2):
                    for f in range(4):
                        a = Ca.acc(st, f >> 1) + 8*(f & 1)
                        for i in range(4):
                            s_ = ZS+2*(2*st+(i >> 1))
                            k.e(f"v_pk_fma_f32 v[{a+2*i}:{a+2*i+1}], v[{a+2*i}:{a+2*i+1}], v[{s_}:{s_+1}], v[{s_}:{s_+1}] op_sel:[0,1,0] op_sel_hi:[1,1,0]")
                        for x in pend: k.e(x)
                        for i in range(4): k.e(f"v_cvt_pk_bf16_f32 v{a+i}, v{a+2*i}, v{a+2*i+1}")
                        pend = swaps(a) + [f"buffer_store_dwordx4 v[{a}:{a+3}], v{aZN}, {W}, s{S_T+12+st} offen offset:{f*1024} sc1"]
                k.e("s_nop 0")
                for x in pend: k.e(x)
        if OPT.nprio and j == n1+nf: k.e(f"s_setprio {OPT.pc}")
        if n1 <= j < n1+nf: kw['fillers'] = NL[len(NL)*(j-n1)//nf: len(NL)*(j-n1+1)//nf]
        if j == vm: kw['pre_barrier'] = "vm"
        if j > vm: kw['fillers'] = zl[64*(j-vm-1)//nz: 64*(j-vm)//nz]
        if j == 15: kw['next_cons'] = C4; kw['nslot'] = 2
        Cb.loop(1, **kw)
    stamp(k, 14)
    j = 0
    if not OPT.z1fill:
        OPT.dg |= 1
        gelu_quads(k, [(Cb.sub(t, f), CS+4*f, HS+4*t) for f in range(4) for t in Cb.order(f)], 32)
        stamp(k, 15)
    if OPT.p4loop:
        C4.loop4(8, 2); k.e("s_waitcnt lgkmcnt(0)")
    UO = 192
    def uepi(f, st, pk):
        a = C4.acc(st, f >> 1) + 8*(f & 1); z = Cb.acc(st, f >> 1) + 8*(f & 1); o = z
        L = [f"v_pk_mul_f32 v[{a+2*i}:{a+2*i+1}], v[{a+2*i}:{a+2*i+1}], v[{z+2*i}:{z+2*i+1}]" for i in range(4)] if pk else [f"v_mul_f32 v{a+i}, v{a+i}, v{z+i}" for i in range(8)]
        Cv = [f"v_cvt_pk_bf16_f32 v{o+i}, v{a+2*i}, v{a+2*i+1}" for i in range(4)]
        return L, Cv, swaps(o) + [f"buffer_store_dwordx4 v[{o}:{o+3}], v{L16}, {W}, s{S_T+14+st} offen offset:{f*1024} sc1"]
    ne = OPT.ue if c4.chain else 0
    pend = []
    for f in range(4):
        for t in Cb.order(f):
            for i in range(2):
                fl = gelu_fill(Cb.sub(t, f)+2*i, CS+4*f+2*i, HS+4*t, 2, ZS)
                if j == 31:
                    for fe in range(ne):
                        fl.append(8*(fe+1) + OPT.ug)
                        for st in ((0, 1) if fe % 2 == 0 else (1, 0)):
                            L_, Cv, P_ = uepi(fe, st, False)
                            fl += L_ + pend + Cv; pend = P_
                C4.loop(1, fillers=fl, budget=OPT.bud, next_cons=(False if j == 31 else None), slot=(2+j) % 4)
                j += 1
                if j == 18: grp(k, 3)
    stamp(k, 16)
    if ne == 3: k.e("s_nop 1")
    for f in range(ne, 4):
        for st in range(2):
            L_, Cv, P_ = uepi(f, st, True)
            for x in L_ + pend + Cv: k.e(x)
            pend = P_
    k.e("s_nop 0")
    for x in pend: k.e(x)
    if OPT.two & 2:
        k.e("L_c_p5:")
        if_par(k, 0, "s_waitcnt vmcnt(0)")
        k.e("s_barrier")
        stamp(k, 17)
    else:
        k.e("s_waitcnt vmcnt(0)\ns_barrier")
        stamp(k, 17)
        k.e("L_c_p5:")
    p25_addr()
    if OPT.sk:
        R5 = regs([8], [10, 11, 12, 13], 96)
        if OPT.bu5: R5.nfr = 80
        R5.s2 = 192
        C = Cons(k, c5, R5)
        consumer_addr(k, c5, R5, t=48, slot=0)
        A = 128
        for j in range(4):
            for x in swaps(RS+4*j): k.e(x)
        for i in range(16): unpack(k, A+2*i, A+1+2*i, RS+i)
        for i in range(96, 128, 2): k.e(f"v_mov_b64 v[{i}:{i+1}], 0")
        k.e(f"""s_lshl_b32 s{S_T+12}, s2, 2
        s_add_u32 s{S_T+12}, s{S_T+12}, s{S_WAVE}
        s_lshl_b32 s{S_T+12}, s{S_T+12}, 12
        s_xor_b32 s{S_T+13}, s{S_T+12}, 16384
        s_add_u32 s{S_T+12}, s{S_T+12}, {WS_XP}
        s_add_u32 s{S_T+13}, s{S_T+13}, {WS_XP}""")
        mk_srd(k, SRD_B, P_OUT, 4*MB)
        if OPT.ot:
            k.e(f"""s_mul_i32 s{S_T}, s{S_WAVE}, {32*144}
            s_add_u32 s{S_T}, s{S_T}, 65536
            v_and_b32 v2, 15, v1
            v_mul_u32_u24 v5, 144, v2
            v_lshrrev_b32 v2, 4, v1
            v_lshl_add_u32 v5, v2, 3, v5
            v_add_u32 v5, s{S_T}, v5
            v_lshrrev_b32 v2, 3, v1
            v_and_b32 v3, 7, v1
            v_mul_u32_u24 v6, 144, v2
            v_lshl_add_u32 v6, v3, 4, v6
            v_add_u32 v6, s{S_T}, v6
            v_lshlrev_b32 v7, 11, v2
            v_lshl_add_u32 v7, v3, 4, v7
            s_mov_b32 s{S_T+14}, s{S_T+2}""")
        k.e("s_waitcnt vmcnt(0)\ns_barrier\ns_barrier")
        stamp(k, 18)
        C.first_reads_static(2); C.loop4(3, 2); C.loop(1, slot=2)
        snd = []
        for j in range(4):
            snd += [f"v_cvt_pk_bf16_f32 v{176+i}, v{96+2*i}, v{97+2*i}" for i in range(4*j, 4*j+4)]
            snd += [f"buffer_store_dwordx4 v[{176+4*j}:{179+4*j}], v{L16}, {W}, s{S_T+12} offen offset:{1024*j} sc1"]
        if OPT.jo:
            C.loop(1, slot=3, next_cons=False, fillers=snd + ["PAD"]*OPT.jpad, fstart=OPT.fs5, budget=12)
        else:
            C.loop(1, slot=3, next_cons=False)
            for x in snd: k.e(x)
        stamp(k, 19)
        if OPT.xslp: k.e(f"s_sleep {OPT.xslp}")
        def xg():
            for j in range(4): k.e(f"buffer_load_dwordx4 v[{80+4*j}:{83+4*j}], v{L16}, {W}, s{S_T+13} offen offset:{1024*j} sc1")
        validated(k, xg, range(80, 96), 2, pre=False)
        stamp(k, 22)
        if OPT.ot:
            aux_ = ['', '', 'sc1', 'nt'][OPT.ot]
            for j in range(4):
                acc_bf16(k, A+8*j, 80+4*j, 4, False, 16)
                for i in range(4): k.e(f"v_cvt_pk_bf16_f32 v{160+4*j+i}, v{A+8*j+2*i}, v{A+8*j+2*i+1}")
                k.e(f"ds_write_b64 v5, v[{160+4*j}:{161+4*j}] offset:{32*j}\nds_write_b64 v5, v[{162+4*j}:{163+4*j}] offset:{32*j+16*144}")
            k.e("s_waitcnt lgkmcnt(0)")
            for j in range(4): k.e(f"ds_read_b128 v[{176+4*j}:{179+4*j}], v6 offset:{j*8*144}")
            for j in range(4): k.e(f"s_waitcnt lgkmcnt({3-j})\nbuffer_store_dwordx4 v[{176+4*j}:{179+4*j}], v7, {srd(SRD_B)}, s{S_T+14} offen {aux_}\ns_add_u32 s{S_T+14}, s{S_T+14}, 16384")
        else:
            pend = []
            for j in range(4):
                acc_bf16(k, A+8*j, 80+4*j, 4, False, 16)
                for x in pend: k.e(x)
                for i in range(4): k.e(f"v_cvt_pk_bf16_f32 v{160+4*j+i}, v{A+8*j+2*i}, v{A+8*j+2*i+1}")
                pend = swaps(160+4*j) + [f"buffer_store_dwordx4 v[{160+4*j}:{163+4*j}], v14, {srd(SRD_B)}, 0 offen offset:{32*j}"]
            k.e("s_nop 0")
            for x in pend: k.e(x)
    else:
        C = Cons(k, c5, R25)
        consumer_addr(k, c5, R25, t=48, slot=(0 if OPT.st4 & 4 else None))
        res_init()
        mk_srd(k, SRD_B, P_OUT, 4*MB)
        k.e("s_barrier\ns_barrier")
        stamp(k, 18)
        if OPT.st4 & 4:
            C.first_reads_static(2); C.loop4(7, 2); k.e("s_waitcnt lgkmcnt(0)")
        else:
            C.first_reads(); C.loop(27); C.loop(1, next_cons=False)
        stamp(k, 19)
        out4(96, lambda r, j: f"buffer_store_dwordx4 v[{r}:{r+3}], v14, {srd(SRD_B)}, 0 offen offset:{32*j}")
    k.e("s_branch L_fin")
    k.e("L_c_helper:")
    k.e("s_waitcnt vmcnt(1)\ns_barrier")
    stamp(k, 9)
    k.e("s_barrier")
    helper_pf(k, 'c')
    stamp(k, 17)
    k.e("s_branch L_c_p5")

def place_pads(k):
    import subprocess, re, tempfile, os
    L = [x.strip() for x in k.L]
    isins = lambda x: not (x.endswith(":") or x.startswith(".") or x.startswith(("WARM", "ALIGN4K", "GRP")))
    txt = '.amdgcn_target "amdgcn-amd-amdhsa--gfx950"\n.text\n' + KNAME + ":\n" + "\n".join(x for x in L if isins(x) or x.endswith(":")) + "\n"
    d = tempfile.mkdtemp(); open(d+"/a.s", "w").write(txt)
    subprocess.run(["clang", "-x", "assembler", "-target", "amdgcn-amd-amdhsa", "-mcpu=gfx950", "-c", d+"/a.s", "-o", d+"/a.o"], check=True)
    dis = subprocess.run(["llvm-objdump", "-d", "--mcpu=gfx950", d+"/a.o"], capture_output=True, text=True).stdout
    sizes = [4*len(m.group(1).split()) for m in re.finditer(r"// [0-9A-F]{12}: ((?:[0-9A-F]{8} ?)+)", dis)]
    assert len(sizes) == sum(map(isins, L)), (len(sizes), sum(map(isins, L)))
    out = []; off = None; it = iter(sizes); nextpage = 0; pads = [[] for _ in NWARM]; grp = 0; inwarm = False
    for x in L:
        if x == "ALIGN4K":
            out.append(".p2align 12"); off = 0; continue
        if x.startswith("GRP"):
            grp = int(x.split()[1]); continue
        if x == "s_mov_b64 exec, 0": inwarm = True
        if off is not None and off >= nextpage and not inwarm and (isins(x) or x.startswith(".p2align")):
            n = sum(map(len, pads)); pads[grp].append(n)
            out.append(f"L_pad{n}:"); out.append(f"s_cbranch_execz L_padr{n}"); off += 4; nextpage += 4096
        if x == "s_mov_b64 exec, -1": inwarm = False
        out.append(x)
        if isins(x):
            sz = next(it)
            if off is not None: off += sz
        elif x.startswith("WARM"): off += 12
        elif x.startswith(".p2align") and off is not None:
            a = 1 << int(x.split()[1]); off = (off + a-1)//a*a
    fin = []
    for x in out:
        if x.startswith("WARM"):
            g, i = map(int, x.split()[1:])
            if i < len(pads[g]):
                n = pads[g][i]
                fin += [f"s_cmp_lg_u32 s{S_WAVE}, {i % 4}", f"s_cbranch_scc1 L_padr{n}", f"s_branch L_pad{n}", f"L_padr{n}:"]
            else: fin += ["s_nop 0"]*3
        else: fin.append(x)
    assert all(len(p) <= n for p, n in zip(pads, NWARM)), pads
    print('pads', pads, file=sys.stderr)
    k.L = [("" if x.endswith(":") else "    ") + x for x in fin]

def build():
    k = Kern("p")
    if OPT.probe: k.e("s_memrealtime s[94:95]")
    k.e("s_cmp_ge_u32 s2, 256\ns_cbranch_scc1 L_end")
    k.e("s_load_dwordx16 s[32:47], s[0:1], 0\ns_load_dwordx8 s[48:55], s[0:1], 64")
    k.e(f"v_lshrrev_b32 v2, 6, v0\nv_and_b32 v1, 63, v0\nv_readfirstlane_b32 s{S_WAVE}, v2")
    if OPT.stamps: k.e("v_mov_b32 v255, 0\nv_mov_b32 v254, 0\nv_mov_b32 v253, 0\ns_mov_b32 s97, 0")
    import core4; core4.DG[0] = OPT.dg; core4.WSB[0] = OPT.wsb*MB
    ITST[0] = max(OPT.stamps - 1, 0); ITST[1] = 254; CAP[0] = OPT.cap
    tile_map(k, 8, 4, 16)
    k.e(f"s_cmp_ge_u32 s2, 192\ns_cselect_b32 s{S_CLS}, 1, s2")
    k.e(f"s_cmp_lt_u32 s{S_WAVE}, 4\ns_cbranch_scc1 L_cons")
    if OPT.spq < 0:
        k.e(f"s_and_b32 s93, s{S_M}, 7\ns_mul_i32 s93, s93, {OPT.qm}\ns_lshr_b32 s93, s93, 3\ns_add_u32 s93, s93, {OPT.q0}")
    k.e(f"s_and_b32 s{S_LW}, s{S_WAVE}, 1\ns_sub_u32 s{S_Q}, s{S_WAVE}, 4\ns_cmp_ge_u32 s{S_WAVE}, 6\ns_cbranch_scc1 L_aux")
    if OPT.pl: k.e(f"s_setprio {OPT.pl}")
    loader(k)
    k.e("L_aux:")
    grp(k, 0)
    if OPT.pa: k.e(f"s_setprio {OPT.pa}")
    aux(k)
    k.e("L_cons:")
    grp(k, 0)
    if OPT.pc: k.e(f"s_setprio {OPT.pc}")
    consumer(k)
    k.e("L_fin:")
    if OPT.stamps:
        k.e("s_waitcnt vmcnt(0)")
        stamp(k, 20)
        mk_srd(k, SRD_D, P_WS, 2*MB, WS_END)
        k.e(f"""s_lshl_b32 s{S_T}, s2, 3
        s_add_u32 s{S_T}, s{S_T}, s{S_WAVE}
        s_lshl_b32 s{S_T}, s{S_T}, 8
        v_lshlrev_b32 v2, 2, v1
        buffer_store_dword v255, v2, {srd(SRD_D)}, s{S_T} offen
        s_add_u32 s{S_T}, s{S_T}, 0x80000
        buffer_store_dword v254, v2, {srd(SRD_D)}, s{S_T} offen
        s_add_u32 s{S_T}, s{S_T}, 0x80000
        buffer_store_dword v253, v2, {srd(SRD_D)}, s{S_T} offen""")
    if OPT.probe:
        k.e(f"s_cmp_lg_u32 s{S_WAVE}, {OPT.pwave}\ns_cbranch_scc1 L_end\ns_cmp_ge_u32 s2, 224\ns_cbranch_scc1 L_end")
        if OPT.pwg >= 0: k.e(f"s_cmp_lg_u32 s2, {OPT.pwg}\ns_cbranch_scc1 L_end")
        k.e(f"v_writelane_b32 v255, s94, 31\ns_nop 1")
        k.e(f"v_readlane_b32 s{S_T}, v255, {OPT.probe}\nv_readlane_b32 s{S_T+1}, v255, {OPT.pfrom}\ns_nop 3\ns_sub_u32 s{S_T}, s{S_T}, s{S_T+1}\ns_mul_i32 s{S_T}, s{S_T}, 10\ns_add_u32 s{S_T}, s{S_T}, s94\ns_add_u32 s{S_T}, s{S_T}, 10000\nL_spin:\ns_memrealtime s[{S_ST}:{S_ST+1}]\ns_waitcnt lgkmcnt(0)\ns_sub_u32 s{S_T+1}, s{S_ST}, s{S_T}\ns_cmp_lt_i32 s{S_T+1}, 0\ns_cbranch_scc1 L_spin")
    k.e("L_end:\ns_endpgm")
    if OPT.pads: place_pads(k)
    out = [f"; @launch grid=(256,1,1) block=(512,1,1) lds={163840 if OPT.sk else L_END}",
           '.amdgcn_target "amdgcn-amd-amdhsa--gfx950"\n.text', header(KNAME) + k.text(), '.section .rodata,"a"', descriptor(KNAME, 256, 102)]
    return "\n".join(out)

if __name__ == "__main__":
    for a in sys.argv[2:]:
        kk, v = a.split("="); setattr(OPT, kk, int(v))
    open(sys.argv[1], "w").write(build())
```

```python
import math
from core import Kern, header, descriptor, vr, sr, srd, Regs, tr_lane_base, blk_tr_base

S_WAVE=3; S_M=4; S_N=5; S_PH=6; S_T0=7
SRD_S=8; SRD_F=12; SRD_A=16; SRD_B=20; SRD_W=24; SRD_D=28
P0=32
S_T=56
S_WM=72; S_WN=73; S_LW=74; S_KB=75
S_X=76
S_CNT=80; S_SLOT=81; S_DS=82; S_DF=83; S_OS=84; S_OF=85; S_M0W=86; S_TAU=87
S_K=88
S_FB=96
S_ST=98

def ptr(i): return P0 + 2*i

WSB = [0]
def mk_srd(k, d, p, nbytes, off=0):
    if p == 11: off += WSB[0]
    if off:
        k.e(f"s_add_u32 s{d}, s{ptr(p)}, {off}\ns_addc_u32 s{d+1}, s{ptr(p)+1}, 0")
    else:
        k.e(f"s_mov_b32 s{d}, s{ptr(p)}\ns_mov_b32 s{d+1}, s{ptr(p)+1}")
    k.e(f"s_mov_b32 s{d+2}, {nbytes}\ns_mov_b32 s{d+3}, 0x20000")

class Cfg:
    def __init__(self, BM, BN, T, NS, WM, WN, U, strideS, strideF, ftiles, nb_from_wave, panel_from_wave, orient=None,
                 rot=(-1,0,2,-1), pre_mfma=2, smode='rows', fmode='rows', baseS=0, baseF=65536, auxS="", auxF="", kbase=False, slot0=0, own2=False, pb=22, burst=3, cap2=False, old=7, jorder=None, half=0, chain=0):
        self.BM=BM; self.BN=BN; self.T=T; self.NS=NS; self.WM=WM; self.WN=WN; self.U=U
        self.strideS=strideS; self.strideF=strideF
        self.TM = BM//WM//32
        self.ftiles = ftiles; self.TN = len(ftiles)
        self.nb_from_wave = nb_from_wave; self.panel_from_wave = panel_from_wave
        self.orient = orient or ['T']*self.TN
        self.NP = BN//64
        self.slotS = BM*128; self.slotF = BN*128
        self.nS = BM//16; self.nF = BN//16
        self.nI = self.nS + self.nF
        self.rot = rot; self.pre_mfma = pre_mfma
        self.smode = smode; self.fmode = fmode
        self.baseS = baseS; self.baseF = baseF
        self.auxS = auxS; self.auxF = auxF
        self.slot0 = slot0; self.own2 = own2; self.pb = pb; self.burst = burst; self.cap2 = cap2; self.old = old; self.jorder = jorder; self.half = half; self.chain = chain
        self.kbase = kbase

def tile_map(k, gm, gn, ntn):
    xn = ntn // gn
    lg = int(math.log2(gm)); lx = int(math.log2(xn))
    k.e(f"""s_and_b32 s{S_T}, s2, 7
    s_lshr_b32 s{S_T+1}, s2, 3
    s_and_b32 s{S_T+2}, s{S_T+1}, {gm-1}
    s_lshr_b32 s{S_T+3}, s{S_T+1}, {lg}
    s_lshr_b32 s{S_M}, s{S_T}, {lx}
    s_mul_i32 s{S_M}, s{S_M}, {gm}
    s_add_u32 s{S_M}, s{S_M}, s{S_T+2}
    s_and_b32 s{S_N}, s{S_T}, {xn-1}
    s_mul_i32 s{S_N}, s{S_N}, {gn}
    s_add_u32 s{S_N}, s{S_N}, s{S_T+3}
    s_add_u32 s{S_PH}, s{S_T+2}, s{S_T+3}""")

def loader_voff_S(k, c, vb):
    w = S_LW
    if c.smode == 'rows':
        k.e(f"""v_lshrrev_b32 v2, 3, v1
        v_and_b32 v4, 7, v1
        s_lshl_b32 s{S_T+6}, s{w}, 3
        v_lshrrev_b32 v3, 4, v1
        s_lshl_b32 s{S_T+5}, s{w}, 2
        v_add_u32 v3, s{S_T+5}, v3
        v_xor_b32 v3, v3, v4
        v_lshlrev_b32 v3, 4, v3
        s_mul_i32 s{S_T+5}, s{S_M}, {c.BM}
        s_add_u32 s{S_T+5}, s{S_T+5}, s{S_T+6}
        v_add_u32 v5, s{S_T+5}, v2
        s_mov_b32 s{S_T+7}, {c.strideS}
        v_mul_lo_u32 v5, v5, s{S_T+7}
        v_add_u32 v{vb}, v5, v3""")
        for i in range(1, c.nS):
            k.e(f"v_add_u32 v{vb+i}, {i*16*c.strideS}, v{vb}")
    else:
        k.e(f"""s_mul_i32 s{S_T+5}, s{S_M}, {c.BM*c.strideS}
        s_add_u32 s{S_T+5}, s{S_T+5}, s{S_M0W}
        v_lshlrev_b32 v3, 4, v1
        v_add_u32 v{vb}, s{S_T+5}, v3""")
        for i in range(1, c.nS):
            k.e(f"v_add_u32 v{vb+i}, {(i>>1)*32*c.strideS + (i&1)*2048}, v{vb}")

def loader_voff_F(k, c, vb, colsg=None, panelconst=None):
    w = S_LW
    if c.fmode == 'rows':
        k.e(f"""v_lshrrev_b32 v2, 3, v1
        v_and_b32 v4, 7, v1
        s_lshl_b32 s{S_T+6}, s{w}, 3
        v_lshrrev_b32 v3, 2, v1
        v_and_b32 v3, 4, v3
        v_xor_b32 v3, v3, v4
        s_lshl_b32 s{S_T+5}, s{w}, 1
        v_xor_b32 v3, s{S_T+5}, v3
        v_lshlrev_b32 v3, 4, v3
        v_add_u32 v5, s{S_T+6}, v2
        s_mov_b32 s{S_T+7}, {c.strideF}
        v_mul_lo_u32 v5, v5, s{S_T+7}
        v_add3_u32 v5, v5, v3, s{colsg}""")
        for i in range(c.nF):
            k.e(f"v_add_u32 v{vb+i}, {panelconst(i>>2) + (i&3)*16*c.strideF}, v5")
    else:
        k.e(f"""s_mul_i32 s{S_T+5}, s{S_N}, {c.T*c.BN*128}
        s_add_u32 s{S_T+5}, s{S_T+5}, s{S_M0W}
        v_lshlrev_b32 v3, 4, v1
        v_add_u32 v{vb}, s{S_T+5}, v3""")
        for i in range(1, c.nF):
            k.e(f"v_add_u32 v{vb+i}, {i*2048}, v{vb}")

def kstep(k, c, t):
    src = S_TAU
    if c.own2 == 3:
        packed = sum(((d+8) & 15) << (4*u) for u, d in enumerate(c.rot))
        k.e(f"""s_sub_u32 s{t}, s{S_TAU}, s{S_PH}
        s_and_b32 s{t}, s{t}, 3
        s_lshl_b32 s{t}, s{t}, 2
        s_lshr_b32 s{t}, {packed}, s{t}
        s_and_b32 s{t}, s{t}, 15
        s_add_u32 s{t}, s{t}, s{S_TAU}
        s_sub_u32 s{t}, s{t}, 8
        s_sub_u32 s{t+1}, s{S_PH}, s{S_TAU}
        s_and_b32 s{t+1}, s{t+1}, 3
        s_add_u32 s{t+1}, s{t+1}, s{S_TAU}
        s_sub_u32 s{t+1}, s{t+1}, 4
        s_cmp_ge_u32 s{t+1}, 28
        s_cselect_b32 s{t}, s{S_TAU}, s{t}
        s_sub_u32 s{t+1}, s{t}, 2
        s_cmp_lt_u32 s{t+1}, s{S_KB}
        s_cselect_b32 s{t}, s{t+1}, s{t}
        s_add_u32 s{t+1}, s{S_KB}, s{S_TAU}
        s_cmp_lt_u32 s{S_TAU}, 2
        s_cselect_b32 s{t}, s{t+1}, s{t}
        s_add_u32 s{t}, s{t}, s93
        s_and_b32 s{t}, s{t}, 31""")
        return
    if c.own2 == 2:
        P = len(c.rot); packed = 0
        for u, d in enumerate(c.rot): packed |= ((d+8) & 15) << (4*u)
        k.e(f"""s_lshr_b32 s{t+1}, s{S_TAU}, 1
        s_sub_u32 s{t+2}, s{t+1}, 1
        s_cmp_ge_u32 s{t+2}, s{S_KB}
        s_addc_u32 s{t+2}, s{t+2}, 0
        s_cmp_eq_u32 s{t+1}, 0
        s_cselect_b32 s{t+2}, s{S_KB}, s{t+2}
        s_sub_u32 s{t}, s{t+2}, s{S_PH}
        s_and_b32 s{t}, s{t}, {P-1}
        s_lshl_b32 s{t}, s{t}, 2
        s_lshr_b32 s{t}, {packed}, s{t}
        s_and_b32 s{t}, s{t}, 15
        s_add_u32 s{t}, s{t}, s{t+2}
        s_sub_u32 s{t}, s{t}, 8
        s_and_b32 s{t}, s{t}, 15
        s_lshl_b32 s{t}, s{t}, 1
        s_and_b32 s{t+1}, s{S_TAU}, 1
        s_add_u32 s{t}, s{t}, s{t+1}""")
        return
    if c.kbase is not False:
        q = c.kbase if c.kbase >= 0 else 's93'
        k.e(f"""s_cmp_gt_u32 s{S_TAU}, {q}
        s_subb_u32 s{t+1}, s{S_TAU}, 0
        s_cmp_ge_u32 s{t+1}, s{S_KB}
        s_addc_u32 s{t+1}, s{t+1}, 0
        s_cmp_eq_u32 s{S_TAU}, {q}
        s_cselect_b32 s{t+1}, s{S_KB}, s{t+1}""")
        src = t+1
    if c.rot:
        P = len(c.rot); packed = 0
        for u, d in enumerate(c.rot): packed |= ((d+8) & 15) << (4*u)
        k.e(f"""s_sub_u32 s{t}, s{src}, s{S_PH}
        s_and_b32 s{t}, s{t}, {P-1}
        s_lshl_b32 s{t}, s{t}, 2
        s_lshr_b32 s{t}, {packed}, s{t}
        s_and_b32 s{t}, s{t}, 15
        s_add_u32 s{t}, s{t}, s{src}""")
        if c.half == 6:
            k.e(f"""s_sub_u32 s{t}, s{t}, 8
            s_sub_u32 s{t+1}, s{S_PH}, s{src}
            s_and_b32 s{t+1}, s{t+1}, 3
            s_add_u32 s{t+1}, s{t+1}, s{src}
            s_lshr_b32 s{t+1}, 0xff3c, s{t+1}
            s_and_b32 s{t+1}, s{t+1}, 1
            s_cselect_b32 s{t}, s{t}, s{src}
            s_lshl_b32 s{t}, s{t}, 2
            s_lshr_b64 s[{t+2}:{t+3}], s[88:89], s{t}
            s_and_b32 s{t}, s{t+2}, 15""")
        elif c.half == 16:
            k.e(f"""s_sub_u32 s{t}, s{t}, 8
            s_sub_u32 s{t+1}, s{S_PH}, s{src}
            s_and_b32 s{t+1}, s{t+1}, 3
            s_add_u32 s{t+1}, s{t+1}, s{src}
            s_sub_u32 s{t+1}, s{t+1}, 2
            s_cmp_ge_u32 s{t+1}, {c.T-2}
            s_cselect_b32 s{t}, s{src}, s{t}""")
        elif c.half == 8:
            k.e(f"s_and_b32 s{t}, s{t}, 7\ns_and_b32 s{t+1}, s{src}, 8\ns_or_b32 s{t}, s{t}, s{t+1}")
        elif c.half == 12:
            k.e(f"""s_sub_u32 s{t}, s{t}, 8
            s_add_u32 s{t+1}, s{t}, s{src}
            s_cmp_eq_u32 s{t+1}, 11
            s_cselect_b32 s{t}, s{src}, s{t}
            s_cmp_eq_u32 s{t+1}, 23
            s_cselect_b32 s{t}, s{src}, s{t}
            s_cmp_ge_u32 s{t}, 16
            s_cselect_b32 s{t}, s{src}, s{t}
            s_cmp_ge_u32 s{t}, 6
            s_cselect_b32 s{t+1}, s91, s90
            s_cmp_ge_u32 s{t}, 12
            s_cselect_b32 s{t+1}, 0, s{t+1}
            s_cmp_ge_u32 s{t}, 14
            s_cselect_b32 s{t+1}, 12, s{t+1}
            s_add_u32 s{t}, s{t}, s{t+1}""")
        elif c.half == 7:
            k.e(f"""s_sub_u32 s{t}, s{t}, 8
            s_add_u32 s{t+1}, s{t}, s{src}
            s_cmp_eq_u32 s{t+1}, 13
            s_cselect_b32 s{t}, s{src}, s{t}
            s_cmp_ge_u32 s{t}, 14
            s_cselect_b32 s{t}, s{src}, s{t}
            s_add_u32 s{t+1}, s{t}, 7
            s_cmp_ge_u32 s{t}, 7
            s_cselect_b32 s{t}, s{t+1}, s{t}""")
        elif c.T & (c.T-1) == 0:
            k.e(f"s_sub_u32 s{t}, s{t}, 8\ns_and_b32 s{t}, s{t}, {c.T-1}")
        else:
            RT = c.T - c.T % 4
            k.e(f"""s_add_u32 s{t}, s{t}, {RT-8}
            s_sub_u32 s{t+1}, s{t}, {RT}
            s_cmp_ge_u32 s{t}, {RT}
            s_cselect_b32 s{t}, s{t+1}, s{t}
            s_sub_u32 s{t+1}, s{t}, {RT}
            s_cmp_ge_u32 s{t}, {RT}
            s_cselect_b32 s{t}, s{t+1}, s{t}""")
            if RT != c.T: k.e(f"s_cmp_ge_u32 s{src}, {RT}\ns_cselect_b32 s{t}, s{src}, s{t}")
    else:
        k.e(f"s_mov_b32 s{t}, s{src}")
    if c.own2 == 1:
        k.e(f"""s_min_u32 s{t+1}, s{t}, s{S_TAU}
        s_max_u32 s{t+2}, s{t}, s{S_TAU}
        s_cmp_lt_u32 s{t+1}, 2
        s_cselect_b32 s{t+1}, s{t+2}, 0
        s_cmp_ge_u32 s{t+1}, 2
        s_cselect_b32 s{t}, s{S_TAU}, s{t}
        s_add_u32 s{t}, s{t}, s{S_KB}
        s_and_b32 s{t}, s{t}, {c.T-1}""")

def issue(k, c, vS, vF, parts="SF", fbase=False):
    t = S_T+8
    kstep(k, c, t)
    if DG[0] & 2: k.e(f"s_and_b32 s{t}, s{t}, 1")
    stepS = 7 if c.smode == 'rows' else 12
    stepF = 64*c.strideF if c.fmode == 'rows' else c.BN*128
    if 'S' in parts:
        k.e(f"""s_lshl_b32 s{S_OS}, s{t}, {stepS}
        s_mul_i32 s{t+1}, s{S_SLOT}, {c.slotS}
        s_add_u32 s{t+1}, s{t+1}, s{S_M0W}
        s_add_u32 m0, s{t+1}, {c.baseS}
        {gapi()}""")
        for i in range(c.nS):
            k.e(f"buffer_load_dwordx4 v{vS+i}, {srd(SRD_S)}, s{S_OS} offen {c.auxS} lds")
            if i < c.nS-1: k.e("s_add_u32 m0, m0, 2048\n" + gapi())
    if 'F' in parts:
        k.e(f"""s_mul_i32 s{S_OF}, s{t}, {stepF}
        s_mul_i32 s{t+1}, s{S_SLOT}, {c.slotF}
        s_add_u32 s{t+1}, s{t+1}, s{S_M0W}
        s_add_u32 m0, s{t+1}, {c.baseF}""")
        if fbase: k.e(f"s_add_u32 s{S_OF}, s{S_OF}, s{S_FB}")
        if CAP[0] or not fbase: k.e(gapi())
        for i in range(c.nF):
            k.e(f"buffer_load_dwordx4 v{vF+i}, {srd(SRD_F)}, s{S_OF} offen {c.auxF} lds")
            if i < c.nF-1: k.e("s_add_u32 m0, m0, 2048\n" + gapi())
    k.e(f"""s_add_u32 s{S_TAU}, s{S_TAU}, 1
    s_add_u32 s{S_SLOT}, s{S_SLOT}, 1
    s_cmp_eq_u32 s{S_SLOT}, {c.NS}
    s_cselect_b32 s{S_SLOT}, 0, s{S_SLOT}""")

def issue_first(k, c, vS, vF, parts, fbase=False, pbarrier=True, t0=0, t1=None):
    n = (c.nS if 'S' in parts else 0) + (c.nF if 'F' in parts else 0)
    top = k.lab("if"); l1 = k.lab("if1")
    t1 = c.NS if t1 is None else t1
    k.e(f"s_mov_b32 s{S_TAU}, {t0}\ns_mov_b32 s{S_SLOT}, {(t0+c.slot0) % c.NS}\n{top}:")
    issue(k, c, vS, vF, parts, fbase)
    if pbarrier:
        k.e(f"s_cmp_lg_u32 s{S_TAU}, 2\ns_cbranch_scc1 {l1}\ns_waitcnt vmcnt({n})\ns_barrier\n{l1}:")
    k.e(f"s_cmp_lt_u32 s{S_TAU}, {t1}\ns_cbranch_scc1 {top}")

CAP = [0]
DG = [0]
def gapi():
    return f"s_waitcnt vmcnt({CAP[0]})" if CAP[0] else "s_nop 0"
ITST = [0, 254]
def itstamp(k):
    if ITST[0]:
        k.e(f"{'s_memtime' if ITST[0] == 2 else 's_memrealtime'} s[{S_ST}:{S_ST+1}]\ns_waitcnt lgkmcnt(0)\ns_mov_b32 m0, s97\ns_nop 0\nv_writelane_b32 v{ITST[1]}, s{S_ST}, m0\ns_add_u32 s97, s97, 1")

S_PA = 60
UNR = [2]
def prep_groups(k, c, dst, fbase):
    t = S_T+8
    tk = Kern(k.name); kstep(tk, c, t)
    if DG[0] & 2: tk.e(f"s_and_b32 s{t}, s{t}, 1")
    stepS = 7 if c.smode == 'rows' else 12
    stepF = 64*c.strideF if c.fmode == 'rows' else c.BN*128
    tk.e(f"s_lshl_b32 s{dst}, s{t}, {stepS}\ns_mul_i32 s{dst+1}, s{t}, {stepF}")
    if fbase: tk.e(f"s_add_u32 s{dst+1}, s{dst+1}, s{S_FB}")
    tk.e(f"""s_mul_i32 s{dst+2}, s{S_SLOT}, {c.slotS}
    s_add_u32 s{dst+2}, s{dst+2}, s{S_M0W}
    s_mul_i32 s{dst+3}, s{S_SLOT}, {c.slotF}
    s_add_u32 s{dst+3}, s{dst+3}, s{S_M0W}
    s_add_u32 s{S_TAU}, s{S_TAU}, 1
    s_add_u32 s{S_SLOT}, s{S_SLOT}, 1
    s_cmp_eq_u32 s{S_SLOT}, {c.NS}
    s_cselect_b32 s{S_SLOT}, 0, s{S_SLOT}""")
    L = [x.strip() for x in tk.L]; G = []
    for x in L:
        if x.startswith(("s_cselect", "s_addc", "s_subb")): G[-1].append(x)
        else: G.append([x])
    return G

def steady(k, c, vS, vF, upto, fbase=False, wait=None):
    top = k.lab("st"); done = k.lab("std")
    w = (c.NS-2)*c.nI if wait is None else wait
    sets = [S_PA, S_PA+8]
    for g in prep_groups(k, c, sets[0], fbase):
        for x in g: k.e(x)
    k.e(f"{top}:")
    for h in range(2):
        cur, nx = sets[h], sets[h ^ 1]
        G = prep_groups(k, c, nx, fbase)
        dm = []
        if not DG[0] & 4: dm += [(f"buffer_load_dwordx4 v{vS+i}, {srd(SRD_S)}, s{cur} offen {c.auxS} lds", f"s_add_u32 m0, s{cur+2}, {c.baseS + i*2048}") for i in range(c.nS)]
        if not DG[0] & 8: dm += [(f"buffer_load_dwordx4 v{vF+i}, {srd(SRD_F)}, s{cur+1} offen {c.auxF} lds", f"s_add_u32 m0, s{cur+3}, {c.baseF + i*2048}") for i in range(c.nF)]
        if dm and not ITST[0]: k.e(dm[0][1])
        k.e(f"s_waitcnt vmcnt({w})\ns_barrier")
        if ITST[0]:
            itstamp(k)
            if dm: k.e(dm[0][1] + "\ns_nop 0")
        ng = max(len(dm)-1, 1); gi = 0
        for i, (ld, m0) in enumerate(dm):
            k.e(ld)
            if i < len(dm)-1:
                k.e(dm[i+1][1])
                tgt = -(-len(G)*(i+1)//ng); n0 = gi
                while gi < tgt:
                    for x in G[gi]: k.e(x)
                    gi += 1
                if gi == n0: k.e("s_nop 0")
        while gi < len(G):
            for x in G[gi]: k.e(x)
            gi += 1
        if h == 0: k.e(f"s_cmp_gt_u32 s{S_TAU}, {upto}\ns_cbranch_scc1 {done}")
        else: k.e(f"s_cmp_le_u32 s{S_TAU}, {upto}\ns_cbranch_scc1 {top}")
    k.e(f"""{done}:
    s_sub_u32 s{S_TAU}, s{S_TAU}, 1
    s_cmp_eq_u32 s{S_SLOT}, 0
    s_cselect_b32 s{S_SLOT}, {c.NS}, s{S_SLOT}
    s_sub_u32 s{S_SLOT}, s{S_SLOT}, 1""")

class Seg:
    def __init__(s_, c, vS, vF, fbase=False, srdS=SRD_S, srdF=SRD_F):
        s_.c = c; s_.vS = vS; s_.vF = vF; s_.fbase = fbase; s_.srdS = srdS; s_.srdF = srdF

class LProg:
    def __init__(s_, k): s_.k = k; s_.h = 0
    def prep(s_, seg, pre=()):
        for x in pre: s_.k.e(x)
        for g in prep_groups(s_.k, seg.c, S_PA + 8*s_.h, seg.fbase):
            for x in g: s_.k.e(x)
    def stage(s_, seg, parts="SF", sync="", nxt=True, pre=(), stampit=False):
        k = s_.k; c = seg.c; cur = S_PA + 8*s_.h; nx = S_PA + 8*(s_.h ^ 1)
        ns = seg if nxt is True else nxt
        G = ([[x] for x in pre] + prep_groups(k, ns.c, nx, ns.fbase)) if ns else []
        dm = []
        if 'S' in parts: dm += [(f"buffer_load_dwordx4 v{seg.vS+i}, {srd(seg.srdS)}, s{cur} offen {c.auxS} lds", f"s_add_u32 m0, s{cur+2}, {c.baseS + i*2048}") for i in range(c.nS)]
        if 'F' in parts: dm += [(f"buffer_load_dwordx4 v{seg.vF+i}, {srd(seg.srdF)}, s{cur+1} offen {c.auxF} lds", f"s_add_u32 m0, s{cur+3}, {c.baseF + i*2048}") for i in range(c.nF)]
        if 'H' in parts: dm += [(f"buffer_load_dwordx4 v{seg.vF+i}, {srd(seg.srdF)}, s{cur+1} offen {c.auxF} lds", f"s_add_u32 m0, s{cur+3}, {c.baseF + i*2048}") for i in range(c.nF//2, c.nF)]
        st = stampit and ITST[0]
        if not st: k.e(dm[0][1])
        k.e(sync if sync else "s_nop 0")
        if st:
            itstamp(k); k.e(dm[0][1] + "\ns_nop 0")
        ng = max(len(dm)-1, 1); gi = 0
        for i, (ld, m0) in enumerate(dm):
            k.e(ld)
            if i < len(dm)-1:
                k.e(dm[i+1][1])
                tgt = -(-len(G)*(i+1)//ng); n0 = gi
                while gi < tgt:
                    for x in G[gi]: k.e(x)
                    gi += 1
                if gi == n0: k.e("s_nop 0")
        s_.h ^= 1
    def run(s_, seg, n, wait, nxt=False, pre=()):
        k = s_.k; sync = f"s_waitcnt vmcnt({wait})\ns_barrier"
        m = n - 1
        if m % 2: s_.stage(seg, sync=sync, stampit=True); m -= 1
        if m >= 4:
            top = k.lab("lp")
            k.e(f"s_mov_b32 s{S_CNT}, {m//2}\n{top}:")
            s_.stage(seg, sync=sync, stampit=True, pre=[f"s_sub_u32 s{S_CNT}, s{S_CNT}, 1"]); s_.stage(seg, sync=sync, stampit=True)
            k.e(f"s_cmp_lg_u32 s{S_CNT}, 0\ns_cbranch_scc1 {top}")
        else:
            for _ in range(m): s_.stage(seg, sync=sync, stampit=True)
        s_.stage(seg, sync=sync, nxt=nxt, pre=pre, stampit=True)

def issue_noadv(k, c, vS, vF, parts, fbase=False):
    n0 = len(k.L)
    issue(k, c, vS, vF, parts, fbase)
    del k.L[-4:]

def steady_skew(k, c, vS, vF):
    top = k.lab("sk"); done = k.lab("skd")
    k.e(f"{top}:\ns_waitcnt vmcnt({c.nS+2*c.nF})\ns_barrier")
    itstamp(k)
    issue(k, c, vS, vF, "S")
    k.e(f"s_cmp_eq_u32 s{S_TAU}, {c.T}\ns_cbranch_scc1 {done}")
    issue_noadv(k, c, vS, vF, "F")
    k.e(f"s_branch {top}\n{done}:")

def one(k, c, vS, vF, fbase=False, wait=None):
    w = (c.NS-2)*c.nI if wait is None else wait
    k.e(f"s_waitcnt vmcnt({w})\ns_barrier")
    itstamp(k)
    issue(k, c, vS, vF, "SF", fbase)

def after_split_prologue(k, c, vS, vF, first_n, fbase=False):
    for j in range(c.NS-2):
        one(k, c, vS, vF, fbase, wait=(c.NS-2-j)*first_n + j*c.nI)

def consumer_addr(k, c, R, slot=None, t=16, setslot=True):
    wm = S_WM; wn = S_WN
    lw = int(math.log2(c.WN))
    slot = c.slot0 if slot is None else slot
    if setslot:
        k.e(f"s_mov_b32 s{S_SLOT}, {slot}\ns_mov_b32 s{S_OS}, {-(c.NS-1)*c.slotS}\ns_mov_b32 s{S_OF}, {-(c.NS-1)*c.slotF}")
        for g in slot_adv(c): k.e(g)
    k.e(f"s_lshr_b32 s{wm}, s{S_WAVE}, {lw}\ns_and_b32 s{wn}, s{S_WAVE}, {c.WN-1}")
    k.e(f"s_mul_i32 s{S_T+6}, s{wm}, {c.TM*4096}\ns_add_u32 s{S_T+6}, s{S_T+6}, {c.baseS + slot*c.slotS}")
    k.e(f"v_and_b32 v{t}, 15, v1\nv_lshrrev_b32 v{t+1}, 4, v1")
    if c.smode == 'rows':
        k.e(f"""v_bfe_u32 v{t+2}, v1, 1, 3
        v_xor_b32 v{t+2}, v{t+2}, v{t+1}
        v_lshlrev_b32 v{t+2}, 4, v{t+2}
        v_lshl_add_u32 v{t+2}, v{t}, 7, v{t+2}
        v_add_u32 v{R.aS[0]}, s{S_T+6}, v{t+2}
        v_xor_b32 v{R.aS[1]}, 64, v{R.aS[0]}""")
    else:
        k.e(f"""v_lshlrev_b32 v{t+2}, 4, v{t}
        v_lshl_add_u32 v{t+2}, v{t+1}, 9, v{t+2}
        v_add_u32 v{R.aS[0]}, s{S_T+6}, v{t+2}""")
    a0 = R.aF[0]
    if c.fmode == 'rows':
        k.e(f"""v_bfe_u32 v{t+2}, v1, 2, 2
        v_lshlrev_b32 v{a0}, 7, v{t+2}
        v_lshl_add_u32 v{a0}, v{t+1}, 10, v{a0}
        v_bfe_u32 v{t+2}, v1, 3, 1
        v_lshl_add_u32 v{a0}, v{t+2}, 6, v{a0}
        v_bfe_u32 v{t+2}, v1, 4, 1
        v_lshl_add_u32 v{a0}, v{t+2}, 5, v{a0}
        s_mov_b32 s{S_T+6}, {c.baseF + slot*c.slotF}""")
        if c.panel_from_wave: k.e(f"s_lshl_b32 s{S_T+7}, s{wn}, 13\ns_add_u32 s{S_T+6}, s{S_T+6}, s{S_T+7}")
        k.e(f"v_add_u32 v{a0}, s{S_T+6}, v{a0}")
        if c.nb_from_wave:
            k.e(f"s_lshl_b32 s{S_T+7}, s{wn}, 6\nv_xor_b32 v{a0}, s{S_T+7}, v{a0}")
            k.e(f"""v_and_b32 v{t+2}, 1, v1
            v_lshl_add_u32 v{R.aF[2]}, v{t+2}, 4, v{a0}
            v_bfe_u32 v{t+2}, v1, 1, 1
            v_lshl_add_u32 v{R.aF[2]}, v{t+2}, 3, v{R.aF[2]}
            v_add_u32 v{R.aF[2]}, {8192*c.ftiles[c.orient.index('N')][0]}, v{R.aF[2]}
            v_xor_b32 v{R.aF[3]}, 32, v{R.aF[2]}""")
        k.e(f"v_and_b32 v{t+2}, 3, v1\nv_lshl_add_u32 v{a0}, v{t+2}, 3, v{a0}")
        for b in range(1, 2 if c.nb_from_wave else 4): k.e(f"v_xor_b32 v{R.aF[b]}, {32*b}, v{a0}")
    else:
        k.e(f"""v_bfe_u32 v{t+2}, v1, 2, 2
        v_lshl_add_u32 v{t+2}, v{t+1}, 3, v{t+2}
        v_lshlrev_b32 v{a0}, 4, v{t+2}
        v_bfe_u32 v{t+2}, v1, 1, 1
        v_lshl_add_u32 v{a0}, v{t+2}, 6, v{a0}
        v_lshl_add_u32 v{a0}, v{t+2}, 9, v{a0}
        v_and_b32 v{t+2}, 1, v1
        v_lshl_add_u32 v{a0}, v{t+2}, 3, v{a0}
        s_lshl_b32 s{S_T+6}, s{wn}, 12
        s_add_u32 s{S_T+6}, s{S_T+6}, {c.baseF + slot*c.slotF}
        v_add_u32 v{a0}, s{S_T+6}, v{a0}
        v_xor_b32 v{R.aF[1]}, 64, v{a0}""")

def slot_adv(c):
    if c.NS == 4:
        g = [f"s_add_u32 s{S_SLOT}, s{S_SLOT}, 1", f"s_and_b32 s{S_SLOT}, s{S_SLOT}, 3\ns_cselect_b32 s{S_DS}, {c.slotS}, s{S_OS}"]
        if c.slotF != c.slotS:
            assert 2*c.slotF == c.slotS
            g.append(f"s_ashr_i32 s{S_DF}, s{S_DS}, 1")
        return g
    return [f"s_add_u32 s{S_SLOT}, s{S_SLOT}, 1\ns_cmp_lg_u32 s{S_SLOT}, {c.NS}",
            f"s_cselect_b32 s{S_DS}, {c.slotS}, s{S_OS}\ns_cselect_b32 s{S_DF}, {c.slotF}, s{S_OF}", f"s_cselect_b32 s{S_SLOT}, s{S_SLOT}, 0"]

M16 = "v_mfma_f32_16x16x32_bf16"
class Cons:
    def __init__(s_, k, c, R):
        s_.k = k; s_.c = c; s_.R = R
        s_.TS = 2*c.TM; s_.TF = 2*c.TN
        s_.NF = (getattr(R, 'nfr', 48) - 8*s_.TS)//4
        assert (2*s_.TF) % s_.NF == 0
        s_.NM = 2*s_.TS*s_.TF
        s_.jo = list(c.jorder) if c.jorder else list(range(2*s_.TF))
        if c.chain:
            s_.jo = [u*s_.TF + f for f in range(s_.TF) for u in range(2)]
            s_.seq = [(u, t, f) for f in range(s_.TF) for t in (s_.order(f) if f < s_.TF-1 or c.chain == 2 else range(s_.TS)) for u in range(2)]
        else:
            s_.seq = [(j // s_.TF, t, j % s_.TF) for j in s_.jo for t in s_.order(j % s_.TF)]
        s_.pos = {j: i for i, j in enumerate(s_.jo)}
        s_.plan()
    def acc(s_, st, ft): return s_.R.acc + 16*(ft*s_.c.TM+st)
    def sub(s_, t, f):
        a = s_.acc(t >> 1, f >> 1)
        return a + (8*(f & 1) + 4*(t & 1) if s_.c.orient[f >> 1] == 'T' else 8*(t & 1) + 4*(f & 1))
    def rS(s_, u, t, par=0): return (s_.R.s2 if par and s_.c.chain == 2 else s_.R.fr) + (u*s_.TS + t)*4
    def rF(s_, j): return s_.R.fr + 8*s_.TS + (s_.pos[j] % s_.NF)*4
    def order(s_, f): return list(range(s_.TS)) if f % 2 == 0 else list(range(s_.TS-1, -1, -1))
    def rdS(s_, u, t):
        c, R = s_.c, s_.R
        if c.smode == 'rows': return f"ds_read_b128 {vr(s_.rS(u,t),4)}, v{R.aS[u]} offset:{t*2048}"
        return f"ds_read_b128 {vr(s_.rS(u,t),4)}, v{R.aS[0]} offset:{(t>>1)*4096 + u*2048 + (t&1)*256}"
    def rdF(s_, j, rd):
        c, R = s_.c, s_.R
        u, f = divmod(j, s_.TF); P, nb = c.ftiles[f >> 1]
        if c.fmode == 'rows':
            if c.nb_from_wave:
                a = R.aF[(f & 1) + (2 if c.orient[f >> 1] == 'N' else 0)]
                if c.orient[f >> 1] == 'N': P = 0
            else: a = R.aF[2*nb + (f & 1)]
            return f"ds_read_b64_tr_b16 {vr(s_.rF(j)+2*rd,2)}, v{a} offset:{P*8192 + u*4096 + rd*512}"
        return f"ds_read_b64_tr_b16 {vr(s_.rF(j)+2*rd,2)}, v{R.aF[rd]} offset:{u*c.BN*64 + ((P*2+nb)*2 + (f&1))*1024}"
    def plan(s_):
        TS, TF, NF, NM = s_.TS, s_.TF, s_.NF, s_.NM
        G = TS*TF
        pb = s_.c.pb
        items = []
        useS = {}; useF = {}
        for p, (u, t, f) in enumerate(s_.seq):
            useS.setdefault((u, t), []).append(p); useF.setdefault(u*TF+f, []).append(p)
        for (u, t), ps in useS.items():
            lastp = -1 if s_.c.chain == 2 else ps[-1] if s_.c.chain else max(useS[(u, tt)][-1] for tt in range(TS))
            items.append((ps[0], lastp+1 - NM, s_.rdS(u, t), ('S', u, t)))
        for j, ps in useF.items():
            i = s_.pos[j] - NF
            e = useF[s_.jo[i % (2*TF)]][-1] + 1 - (NM if i < 0 else 0)
            for rd in range(2): items.append((ps[0] - (0.6 + 0.75*(j // TF) if s_.c.chain else 0.5) + 0.1*rd, e, s_.rdF(j, rd), ('F', j)))
        items.sort(key=lambda x: x[0])
        cnt = {}; sched = []; g = pb - NM
        for use, e, txt, tag in items:
            g = max(g, e)
            cap = lambda gg: 2 if (gg < pb - NM + s_.c.burst or s_.c.cap2 is True) else 1
            while cnt.get(g, 0) >= cap(g): g += 1
            cnt[g] = cnt.get(g, 0) + 1
            sched.append((g, txt, tag))
            assert g <= use + 1.5, (g, use, tag)
        s_.sched = sched; s_.lastcur = max(g for g, _, _ in sched)
        assert s_.lastcur < pb, (s_.lastcur, pb)
    def first_reads_static(s_, slot):
        for g, txt, tag in s_.sched:
            if g < 0:
                a, b = txt.rsplit("offset:", 1)
                s_.k.e(f"{a}offset:{int(b) + slot*(s_.c.slotS if tag[0] == 'S' else s_.c.slotF)}")
    def loop4(s_, nrep, slot):
        k = s_.k; lp = k.lab("c4")
        k.e(f"s_mov_b32 s{S_CNT}, {nrep}\n.p2align 6\n{lp}:")
        for i in range(s_.c.NS):
            s_.loop(1, slot=(slot+i) % s_.c.NS, fillers=([f"s_sub_u32 s{S_CNT}, s{S_CNT}, 1", f"s_cmp_lg_u32 s{S_CNT}, 0"] if i == s_.c.NS-1 else None))
        k.e(f"s_cbranch_scc1 {lp}")
    def loopu(s_, nrep, unr):
        k = s_.k; lp = k.lab("cu")
        if nrep > 1: k.e(f"s_mov_b32 s{S_CNT}, {nrep}\n.p2align 6\n{lp}:")
        for i in range(unr): s_.loop(1)
        if nrep > 1: k.e(f"s_sub_u32 s{S_CNT}, s{S_CNT}, 1\ns_cmp_lg_u32 s{S_CNT}, 0\ns_cbranch_scc1 {lp}")
    def zero(s_):
        for i in range(0, s_.c.TM*s_.c.TN*16, 2): s_.k.e(f"v_mov_b64 v[{s_.R.acc+i}:{s_.R.acc+i+1}], 0")
    def first_reads(s_):
        for g, txt, tag in s_.sched:
            if g < 0: s_.k.e(txt)
    def loop(s_, nsteps, pre_barrier=None, fillers=None, budget=8, next_cons=None, tail=None, slot=None, nslot=None, fstart=1):
        k, c, R = s_.k, s_.c, s_.R
        TS, TF, NM, pb = s_.TS, s_.TF, s_.NM, s_.c.pb
        q = [tag for g, _, tag in s_.sched if g < 0]
        lp = k.lab("cloop")
        if nsteps > 1: k.e(f"s_mov_b32 s{S_CNT}, 0\n.p2align 6\n{lp}:")
        gaps = [[] for _ in range(NM+1)]; mfs = []
        nxt = s_ if next_cons is None else next_cons
        byg = {}
        def sh(txt, tag, cc, sl):
            if sl is None: return txt
            a, b = txt.rsplit("offset:", 1)
            o = int(b) + sl*(cc.slotS if tag[0] == 'S' else cc.slotF)
            if tag[0] == 'S' and cc.chain == 2 and sl & 1: a = a.replace(vr(s_.rS(tag[1], tag[2]), 4), vr(s_.rS(tag[1], tag[2], 1), 4))
            assert o < 65536
            return f"{a}offset:{o}"
        if slot is not None and nslot is None: nslot = (slot+1) % c.NS
        def nmin(tag):
            if nxt is s_ or tag[0] != 'F': return 0
            r = nxt.rF(tag[1])
            return max([p+1 for p, (u, t, f) in enumerate(s_.seq) if s_.rF(u*TF+f) == r] + [0])
        for g, txt, tag in s_.sched:
            if g >= 0: byg.setdefault(g, []).append((sh(txt, tag, c, slot), tag))
        if nxt:
            for g, txt, tag in nxt.sched:
                if g < 0: byg.setdefault(max(g + NM, pb, nmin(tag)), []).append((sh(txt, tag, nxt.c, nslot), ('n',)+tag))
        for i, txt in enumerate(tail or []): byg.setdefault(min(pb + i//2, NM), []).append((txt, ('x', i)))
        dF = S_DF if c.slotF != c.slotS else S_DS
        upd = [f"v_add_u32 v{a}, s{S_DS}, v{a}" for a in R.aS] + [f"v_add_u32 v{a}, s{dF}, v{a}" for a in R.aF]
        if slot is not None: upd = []
        ng = max(pb - s_.lastcur - 1, 1); per = max(-(-len(upd)//ng), 1)
        misc = {}
        for i, x in enumerate(upd): misc.setdefault(s_.lastcur + 1 + i//per, []).append(x)
        sal = ([f"s_add_u32 s{S_CNT}, s{S_CNT}, 1"] if nsteps > 1 else []) + slot_adv(c)
        if slot is not None: sal = []
        assert c.NS == 4 or not fillers or slot is not None
        assert len(sal) <= NM-pb-1
        free = sorted(range(pb+1, NM), key=lambda g: (len(byg.get(g, [])), -g))[:len(sal)]
        for g, x in zip(sorted(free), sal): misc.setdefault(g, []).extend(x.split("\n"))
        when = {tag: g for g, _, tag in s_.sched}
        p = 0
        for u, t, f in s_.seq:
            j = u*TF + f
            if True:
                G_ = gaps[p]
                G_ += misc.get(p, [])
                if p == pb:
                    G_.append("s_waitcnt lgkmcnt(0)" + (" vmcnt(0)" if pre_barrier == "vm" else "")); q.clear()
                    G_.append("s_barrier")
                tags = [('S', u, t), ('F', j)]
                if len(q) + len(byg.get(p, [])) > 15:
                    idx = max([i for i, tg in enumerate(q) if tg in tags] + [len(q) + len(byg[p]) - 16])
                    while idx+1 < len(q) and when.get(q[idx+1], 99) <= p - c.old: idx += 1
                    G_.append(f"s_waitcnt lgkmcnt({len(q)-1-idx})"); del q[:idx+1]
                for txt, tag in byg.get(p, []): G_.append(txt); q.append(tag)
                idx = max([i for i, tg in enumerate(q) if tg in tags], default=-1)
                if idx >= 0:
                    while idx+1 < len(q) and when.get(q[idx+1], 99) <= p - c.old: idx += 1
                    n = len(q) - 1 - idx
                    assert n <= 15
                    G_.append(f"s_waitcnt lgkmcnt({n})"); del q[:idx+1]
                pr = (slot or 0) & 1
                assert slot is not None or c.chain != 2
                a, b = (s_.rF(j), s_.rS(u, t, pr)) if c.orient[f >> 1] == 'T' else (s_.rS(u, t, pr), s_.rF(j))
                d = s_.sub(t, f)
                mfs.append(f"{M16} {vr(d,4)}, {vr(a,4)}, {vr(b,4)}, {vr(d,4)}")
                p += 1
        for txt, tag in byg.get(NM, []): gaps[NM].append(txt)
        if nsteps > 1: gaps[NM] += [f"s_cmp_lt_u32 s{S_CNT}, {nsteps}", f"s_cbranch_scc1 {lp}"]
        isv = lambda x: x.startswith("v_")
        tr = lambda x: x.startswith(("v_exp", "v_rcp", "v_rsq", "v_sqrt"))
        def cost(x):
            if tr(x) or x.startswith("buffer_"): return 2
            if x.startswith("s_"): return 0.5
            return 1
        def base_used(g):
            nd = sum(x.startswith("ds_") for x in g); nw = sum(x.startswith("s_waitcnt") for x in g)
            if any(x.startswith(("s_barrier", "s_cbranch")) for x in g): return 9
            return nd*(1 if nd < 2 else 0.5) + (nw if nd else 0.5*nw) + sum(isv(x) for x in g) + 0.3*sum(x.startswith("s_") and not x.startswith("s_waitcnt") for x in g)
        fl = []; ming = []; cg_ = 0
        for x in (fillers or []):
            if isinstance(x, int): cg_ = x
            else: fl.append(x); ming.append(cg_)
        place = [[] for _ in gaps]
        if fl:
            ngp = len(gaps) - 1
            used = [base_used(g) for g in gaps]
            b = budget/4
            while True:
                fi = 0; place = [[] for _ in gaps]
                tot = sum(cost(x) for x in fl); fre = sum(max(int(b-used[g]), 0) for g in range(fstart, ngp)); acc = 0; done = 0
                for g in range(fstart, ngp):
                    room = max(int(b - used[g]), 0); acc += room
                    while fi < len(fl) and g >= ming[fi] and cost(fl[fi]) <= room and done < 1.15*acc*tot/max(fre, 1):
                        room -= cost(fl[fi]); done += cost(fl[fi]); place[g].append(fl[fi]); fi += 1
                if fi == len(fl): break
                b += 1
        for g in range(len(gaps)):
            G_ = gaps[g]
            if g != pb: G_ = [x for x in G_ if not isv(x)] + [x for x in G_ if isv(x)]
            for x in G_: k.e(x)
            for x in place[g]:
                if x != 'PAD': k.e(x)
            if g < len(mfs): k.e(mfs[g])
```

```python
import sys, struct
from core4 import *

MB = 1<<20
WS_O=4*MB; WS_H=8*MB; WS_Z2N=20*MB; WS_U=28*MB
WS_KVP=36*MB; WS_ZP=38*MB; WS_KVF=38*MB+131072; WS_ZF=38*MB+262144; WS_HC=38*MB+524288; WS_XS=39*MB; WS_CQP=39*MB+65536; WS_CSP=39*MB+512*1024
WS_XP=12*MB; WS_HH=41*MB+512*1024; WS_HST=40*MB; WS_ZST=41*MB
FLS=4352
WS_FLAG=42*MB; F_O=WS_FLAG; F_H=WS_FLAG+16*FLS; F_Z=WS_FLAG+32*FLS; F_U=WS_FLAG+48*FLS
WS_END=43*MB
P_X=0; P_WQKV=1; P_WPHI=2; P_WO=3; P_WIN=5; P_WSP=6; P_BSP=7; P_WOUT=8; P_OUT=9; P_DBG=10; P_WS=11
S_Q=92; S_CW=90
L_CW=131072
L_WPHI=147456; L_XS=L_WPHI+4096; L_CQ=L_XS+1024; L_HS=L_CQ+1024; L_CS=L_HS+2048; L_ZP=L_CS+1024; L_ZS=L_ZP+2048; L_END=L_ZS+1024
KNAME = "sequential_preLN__linear_kernel_hedgehog__mixer_gmlp__prompt_kernel"

def f2u(x): return struct.unpack("<I", struct.pack("<f", x))[0]
LOG2E = 1.4426950408889634
C0 = -2*LOG2E*0.7978845608028654; C1 = C0*0.044715
MF = "v_mfma_f32_32x32x16_bf16"
W = srd(SRD_W)

class Opt:
    stamps = 0
    pf = 2
    slp = 4
    vslp = 2
    pfw = 0
    gat = 18
    spq = -1
    z1fill = 1
    nfill = 2
    p1ph = 1
    own2 = 3
    p4ph = 0
    vprio = 0
    zsp = 4
    dsx = 0
    kfslp = 21
    pfd = 1
    qpf = 0
    pb1 = 40
    pb2 = 10
    pb3 = 24
    bu = 2
    solo = 1
    xq = 2
    ue = 0
    ug = 2
    ch = 29
    fs5 = 11
    ot = 2
    xw = 0
    wa = 15
    wl = 13
    wsb = 0
    kst = 0
    zg = 1
    h3 = 16
    nw5 = 1
    nw2 = 1
    hh = 1
    hhs = 10
    fw = 0
    late = 0
    two = 7
    tw = 0
    tlb = 0
    wpos = 1
    hsp = 1
    hpos = 1
    zdma = 1
    xis = 4
    bu5 = 9
    nprio = 1
    qm = 5
    q0 = 1
    pads = 1
    xa = 0
    gb = 1
    nst = 0
    xl = 0
    sk = 1
    jo = 1
    jpad = 10
    f5 = 1
    pb5 = 25
    xslp = 3
    ct = 2
    p4loop = 0
    u1 = 3
    u3 = 3
    dg = 0
    bud = 8
    r1 = 0
    r2 = 0
    r3 = 0
    r4 = 0
    r5 = 0
    st4 = 5
    old = 5
    old2 = 7
    cyc = 0
    lead = 6
    fpos = 1
    l2 = 0
    r8 = 0
    kfe = 0
    kvr = 5
    probe = 0
    pwg = 83
    pfrom = 0
    pwave = 0
    cap = 0
    vmd = 1
    z1n = 2
    pa = 3
    pl = 2
    pc = 1
    kvslp = 20
OPT = Opt()

def unpack(k, lo, hi, src):
    k.e(f"v_lshlrev_b32 v{lo}, 16, v{src}\nv_and_b32 v{hi}, 0xffff0000, v{src}")
def cvt16(k, dst, src):
    for i in range(8): k.e(f"v_cvt_pk_bf16_f32 v{dst+i}, v{src+2*i}, v{src+2*i+1}")
def stamp(k, i):
    if OPT.stamps:
        k.e(f"s_memrealtime s[{S_ST}:{S_ST+1}]\ns_waitcnt lgkmcnt(0)\nv_writelane_b32 v255, s{S_ST}, {i}")
        if OPT.cyc: k.e(f"s_memtime s[{S_ST}:{S_ST+1}]\ns_waitcnt lgkmcnt(0)\nv_writelane_b32 v255, s{S_ST}, {i+32}")
def bars(k, n):
    if n <= 4:
        for _ in range(n): k.e("s_barrier")
    else:
        t = k.lab("bars")
        k.e(f"s_mov_b32 s{S_CNT}, {n}\n{t}:\ns_barrier\ns_sub_u32 s{S_CNT}, s{S_CNT}, 1\ns_cmp_lg_u32 s{S_CNT}, 0\ns_cbranch_scc1 {t}")

S_CLS = 101
def if_par(k, par, text, reg=2):
    sk = k.lab("par")
    k.e(f"s_bitcmp1_b32 s{reg}, 0\ns_cbranch_scc{1 if par == 0 else 0} {sk}\n{text}\n{sk}:")

def check_flags(k, nflags, val, oklab):
    k.e(f"""v_cmp_le_u32 vcc, {val}, v8
    s_and_b32 s{S_T+11}, vcc_lo, {(1<<nflags)-1}
    s_cmp_eq_u32 s{S_T+11}, {(1<<nflags)-1}
    s_cbranch_scc1 {oklab}""")
def spin_tail(k, top, slp=None):
    k.e(f"s_sleep {OPT.slp if slp is None else slp}\ns_sub_u32 s{S_T+10}, s{S_T+10}, 1\ns_cmp_lg_u32 s{S_T+10}, 0\ns_cbranch_scc1 {top}")
def poll(k, voff, nflags, srdn=SRD_W, val=1, pre=False):
    top = k.lab("poll"); done = k.lab("polld")
    k.e(f"s_cmp_lg_u32 s{S_LW}, 0\ns_cbranch_scc1 {done}")
    if pre:
        k.e("s_waitcnt vmcnt(0)")
        check_flags(k, nflags, val, done)
    k.e(f"s_mov_b32 s{S_T+10}, 0x40000\n{top}:")
    k.e(f"buffer_load_dword v8, v{voff}, {srd(srdn)}, 0 offen sc1\ns_waitcnt vmcnt(0)")
    check_flags(k, nflags, val, done)
    spin_tail(k, top)
    k.e(f"{done}:")
def sample(k, voff, srdn=SRD_W):
    sk = k.lab("nosm")
    k.e(f"s_cmp_lg_u32 s{S_LW}, 0\ns_cbranch_scc1 {sk}\nbuffer_load_dword v8, v{voff}, {srd(srdn)}, 0 offen sc1\n{sk}:")
def tagcheck(k, regs, t, ok):
    regs = list(regs)
    if len(regs) % 2 == 0:
        k.e(f"v_max_u32 v{t}, v{regs[0]}, v{regs[1]}"); rest = regs[2:]
    else:
        k.e(f"v_max3_u32 v{t}, v{regs[0]}, v{regs[1]}, v{regs[2]}"); rest = regs[3:]
    for i in range(0, len(rest), 2): k.e(f"v_max3_u32 v{t}, v{t}, v{rest[i]}, v{rest[i+1]}")
    k.e(f"v_cmp_eq_u32 vcc, -1, v{t}\ns_cmp_eq_u64 vcc, 0\ns_cbranch_scc1 {ok}")
def validated(k, gather, regs, t, pre=True):
    top = k.lab("vsp"); ok = k.lab("vok")
    if pre: tagcheck(k, regs, t, ok)
    k.e(f"s_mov_b32 s{S_T+10}, 0x40000\n{top}:")
    gather()
    k.e("s_waitcnt vmcnt(0)")
    tagcheck(k, regs, t, ok)
    spin_tail(k, top, OPT.vslp)
    k.e(f"{ok}:")

def cnt_addr(k, v, base, sline):
    k.e(f"""s_mul_i32 s{S_T}, s{sline}, {FLS}
    s_add_u32 s{S_T}, s{S_T}, {base}
    v_mov_b32 v{v}, s{S_T}""")
def set_flag(k, vset, lanes=1):
    sk = k.lab("nofl")
    k.e(f"""s_cmp_lg_u32 s{S_LW}, {OPT.fw}
    s_cbranch_scc1 {sk}
    s_mov_b64 exec, {lanes}
    buffer_atomic_add v11, v{vset}, {W}, 0 offen sc1
    s_mov_b64 exec, -1
    {sk}:""")

def softmax_pm(k0, P, EP, EN, T, OP, ON, inject=(), wpos=(), wneg=()):
    L = S_K
    k = Kern(k0.name)
    k.e(f"v_max3_f32 v{T}, v{P}, v{P+1}, v{P+2}\nv_min3_f32 v{T+1}, v{P}, v{P+1}, v{P+2}")
    for i in range(3, 15, 2):
        k.e(f"v_max3_f32 v{T}, v{T}, v{P+i}, v{P+i+1}\nv_min3_f32 v{T+1}, v{T+1}, v{P+i}, v{P+i+1}")
    k.e(f"""v_max_f32 v{T}, v{T}, v{P+15}
    v_max_f32 v{T+1}, -v{T+1}, -v{P+15}
    s_nop 1
    v_permlane32_swap_b32 v{T}, v{T+1}
    v_max_f32 v{T}, v{T}, v{T+1}
    v_mul_f32 v{T}, {f2u(-LOG2E)}, v{T}
    v_mov_b32 v{T+1}, v{T}
    s_nop 1
    v_permlane32_swap_b32 v{T}, v{T+1}""")
    for i in range(8):
        k.e(f"v_pk_fma_f32 v[{EP+2*i}:{EP+2*i+1}], v[{P+2*i}:{P+2*i+1}], s[{L}:{L+1}], v[{T}:{T+1}] op_sel_hi:[1,1,0]")
        k.e(f"v_pk_fma_f32 v[{EN+2*i}:{EN+2*i+1}], v[{P+2*i}:{P+2*i+1}], s[{L}:{L+1}], v[{T}:{T+1}] op_sel:[0,0,1] op_sel_hi:[1,1,1] neg_lo:[0,1,0] neg_hi:[0,1,0]")
    for i in range(16):
        k.e(f"v_exp_f32 v{EP+i}, v{EP+i}\nv_exp_f32 v{EN+i}, v{EN+i}")
    k.e(f"v_pk_add_f32 v[{T}:{T+1}], v[{EP}:{EP+1}], v[{EP+2}:{EP+3}]\nv_pk_add_f32 v[{T+2}:{T+3}], v[{EN}:{EN+1}], v[{EN+2}:{EN+3}]")
    for i in range(2, 8):
        k.e(f"v_pk_add_f32 v[{T}:{T+1}], v[{T}:{T+1}], v[{EP+2*i}:{EP+2*i+1}]\nv_pk_add_f32 v[{T+2}:{T+3}], v[{T+2}:{T+3}], v[{EN+2*i}:{EN+2*i+1}]")
    k.e(f"""v_add_f32 v{T}, v{T}, v{T+1}
    v_add_f32 v{T+1}, v{T+2}, v{T+3}
    s_nop 1
    v_permlane32_swap_b32 v{T}, v{T+1}
    v_add_f32 v{T}, v{T}, v{T+1}
    v_rcp_f32 v{T}, v{T}
    s_nop 0
    v_mov_b32 v{T+1}, v{T}
    s_nop 1
    v_permlane32_swap_b32 v{T}, v{T+1}""")
    inj = list(inject); step = max(len(k.L)//(len(inj)+1), 1)
    for i, x in enumerate(k.L):
        k0.e(x)
        if inj and i % step == step-1: k0.e(inj.pop(0))
    for x in inj: k0.e(x)
    k = k0
    for E, O, sel, wr in ((EP, OP, "op_sel_hi:[1,0]", wpos), (EN, ON, "op_sel:[0,1] op_sel_hi:[1,1]", wneg)):
        for hh in range(2):
            for i in range(4*hh, 4*hh+4): k.e(f"v_pk_mul_f32 v[{E+2*i}:{E+2*i+1}], v[{E+2*i}:{E+2*i+1}], v[{T}:{T+1}] {sel}")
            for i in range(4*hh, 4*hh+4): k.e(f"v_cvt_pk_bf16_f32 v{O+i}, v{E+2*i}, v{E+2*i+1}")
            if wr: k.e(wr[hh])

def softmax2(k, argsA, argsB, inject=(), wA=((), ()), wB=((), ())):
    ta = Kern(k.name); softmax_pm(ta, *argsA, wpos=wA[0], wneg=wA[1])
    tb = Kern(k.name); softmax_pm(tb, *argsB, wpos=wB[0], wneg=wB[1])
    L = []
    for x, y in zip(ta.L, tb.L):
        x = x.strip(); y = y.strip()
        if x == "s_nop 1": L.append("s_nop 0")
        elif x == "s_nop 0": pass
        else: L += [x, y]
    inj = list(inject); step = max((len(L)*2//3)//(len(inj)+1), 1)
    for i, x in enumerate(L):
        k.e(x)
        if inj and i % step == step-1: k.e(inj.pop(0))

def xhalf_sum2(k, a):
    k.e(f"""s_nop 1
    v_permlane32_swap_b32 v{a}, v{a+1}
    v_add_f32 v{a}, v{a}, v{a+1}
    v_mov_b32 v{a+1}, v{a}
    s_nop 1
    v_permlane32_swap_b32 v{a}, v{a+1}""")
def xswap_sum1(k, a, t, which=32):
    k.e(f"v_mov_b32 v{t}, v{a}\ns_nop 1\nv_permlane{which}_swap_b32 v{a}, v{t}\nv_add_f32 v{a}, v{a}, v{t}")
def xswap_sum(k, a, t, n, which):
    for i in range(n): k.e(f"v_mov_b32 v{t+i}, v{a+i}")
    k.e("s_nop 1")
    for i in range(n): k.e(f"v_permlane{which}_swap_b32 v{a+i}, v{t+i}")
    for i in range(n): k.e(f"v_add_f32 v{a+i}, v{a+i}, v{t+i}")
def ror_sum(k, a, n, sh):
    k.e("s_nop 1")
    for i in range(n): k.e(f"v_add_f32_dpp v{a+i}, v{a+i}, v{a+i} row_ror:{sh} row_mask:0xf bank_mask:0xf")
def acc_bf16(k, A, src, n, first, t, plain=False):
    for j in range(n):
        if first: unpack(k, A+2*j, A+2*j+1, src+j)
        elif plain:
            tt = t+2*(j & 1)
            unpack(k, tt, tt+1, src+j)
            k.e(f"v_add_f32 v{A+2*j}, v{A+2*j}, v{tt}\nv_add_f32 v{A+2*j+1}, v{A+2*j+1}, v{tt+1}")
        else:
            tt = t+2*(j & 1)
            unpack(k, tt, tt+1, src+j)
            k.e(f"v_pk_add_f32 v[{A+2*j}:{A+2*j+1}], v[{A+2*j}:{A+2*j+1}], v[{tt}:{tt+1}]")
def combine(k, P, n, cnt, d, t):
    k.e(f"v_pk_add_f32 v[{d}:{d+1}], v[{P}:{P+1}], v[{P+2}:{P+3}]")
    for i in range(2, n): k.e(f"v_pk_add_f32 v[{d}:{d+1}], v[{d}:{d+1}], v[{P+2*i}:{P+2*i+1}]")
    k.e(f"v_mul_f32 v{d}, {f2u(1.0/n)}, v{d}\nv_mov_b32 v{t+1}, 0")
    for i in range(n): k.e(f"v_sub_f32 v{t}, v{P+2*i}, v{d}\nv_fmac_f32 v{t+1}, v{t}, v{t}")
    k.e(f"v_fmac_f32 v{d+1}, {f2u(float(cnt))}, v{t+1}")
def finish_rstd(k, d, total):
    k.e(f"""v_mul_f32 v{d+1}, {f2u(1.0/total)}, v{d+1}
    v_add_f32 v{d+1}, {f2u(1e-5)}, v{d+1}
    v_rsq_f32 v{d+1}, v{d+1}
    s_nop 0
    v_mul_f32 v{d}, -v{d}, v{d+1}""")

ROTS = [(-1,0,2,-1), (-1,0,0,1), (-1,3,-1,-1), (-2,-2,-1,5), (0,0,0,0), (-2,-2,6,-2)]
def cfgs():
    c1 = Cfg(128,192,16,3,2,2,1, 2048, 6144, [(1,0),(2,0),(0,0)], True, False, orient=['T','N','T'], smode='rows', baseS=0, baseF=49152, kbase=OPT.spq, rot=ROTS[OPT.r1], pb=OPT.pb1, burst=OPT.bu, old=OPT.old)
    c2 = Cfg(128,64,16,4,4,1,2, 2048, 2048, [(0,0),(0,1)], False, False, smode='frag', auxS="sc1", rot=ROTS[OPT.r2], half=(6 if OPT.two & 4 else 16 if OPT.nw2 else 0), pb=OPT.pb2, cap2=True, old=OPT.old2)
    c3 = Cfg(128,128,16,4,2,2,1, 2048, 7168, [(0,0),(0,1)], False, True, smode='frag', auxS="sc1", slot0=2, rot=ROTS[OPT.r3], half=OPT.h3, pb=OPT.pb3, burst=OPT.bu, old=OPT.old)
    c4 = Cfg(128,128,32,4,2,2,1, 4096, 0, [(0,0),(0,1)], False, True, smode='rows', fmode='blk', auxF="sc1", rot=(-1,0,0,1) if OPT.own2 == 1 else ROTS[OPT.r4], own2=OPT.own2, pb=OPT.pb3, burst=OPT.bu, old=OPT.old)
    c5 = Cfg(128,64,28,4,4,1,2, 3584, 2048, [(0,0),(0,1)], False, False, smode='frag', auxS="sc1", baseF=114688, slot0=2, rot=ROTS[OPT.r5], pb=OPT.pb2, cap2=True, old=OPT.old2)
    if OPT.sk:
        c5 = Cfg(128,128,14,4,4,1,2, 3584, 2048, [(0,0),(0,1),(1,0),(1,1)], False, False, smode='frag', auxS="sc1", baseF=98304, slot0=2, rot=ROTS[1 if OPT.two & 2 else OPT.r5], half=(12 if OPT.solo else 7 if OPT.two & 2 else (16 if OPT.nw5 else 0)), pb=OPT.pb5, cap2=(OPT.bu5 == 0), burst=OPT.bu5, old=OPT.old2, jorder=[0,1,2,3,8,9,10,11,4,5,6,7,12,13,14,15] if OPT.jo else None)
    for i_, c_ in enumerate((c1, c2, c3, c4, c5)): c_.chain = ((OPT.ch >> i_) & 1) * (2 if i_ in (1, 4) else 1)
    return c1, c2, c3, c4, c5
VS=16; VF=24; VS4=36; VF4=44; VS5=52; VF5=60; VF3=68
L_PHK=0; L_VX=32768; L_KV=49152; L_Z=57344

def tail_barriers(k, c, extra=0):
    for r in range(c.NS-1):
        k.e(f"s_waitcnt vmcnt({max(c.NS-2-r,0)*c.nI + extra})\ns_barrier")

def win_loads(k, tag):
    mk_srd(k, SRD_A, P_WO, 2*MB); mk_srd(k, SRD_B, P_WIN, 7*MB)
    n = 8
    k.e(f"""s_lshr_b32 s{S_T}, s2, 3
    s_lshl_b32 s{S_T+2}, s{S_T}, 2
    s_add_u32 s{S_T+2}, s{S_T+2}, s{S_Q}
    s_and_b32 s{S_T+3}, s2, 1""")
    if OPT.l2 & 1:
        k.e(f"""s_lshl_b32 s{S_T+1}, s{S_T+2}, 14
        s_lshl_b32 s{S_T+4}, s{S_T+3}, 10
        s_add_u32 s{S_T+1}, s{S_T+1}, s{S_T+4}
        v_lshrrev_b32 v3, 3, v1
        v_lshlrev_b32 v3, 11, v3
        v_and_b32 v4, 7, v1
        v_lshl_add_u32 v3, v4, 7, v3
        buffer_load_dword v250, v3, {srd(SRD_A)}, s{S_T+1} offen""")
    else:
        k.e(f"""s_lshl_b32 s{S_T+1}, s2, 2
        s_add_u32 s{S_T+1}, s{S_T+1}, s{S_Q}
        s_lshl_b32 s{S_T+1}, s{S_T+1}, 11
        v_lshlrev_b32 v3, 7, v1
        s_mov_b64 exec, 0xffff
        buffer_load_dword v250, v3, {srd(SRD_A)}, s{S_T+1} offen
        s_mov_b64 exec, -1""")
    n += 1
    k.e(f"""s_lshr_b32 s{S_T+4}, s{S_T}, 1
    s_cmp_ge_u32 s{S_T+4}, 7
    s_cselect_b32 s{S_T+5}, 7, 0
    s_add_u32 s{S_T+4}, s{S_T+4}, s{S_T+5}
    s_mul_i32 s{S_T+5}, s{S_T+3}, 7
    s_add_u32 s{S_CW}, s{S_T+4}, s{S_T+5}
    s_and_b32 s{S_T+5}, s2, 6
    s_and_b32 s{S_T+6}, s{S_T}, 1
    s_add_u32 s{S_CW+1}, s{S_T+5}, s{S_T+6}
    s_lshl_b32 s{S_T+5}, s{S_CW+1}, 2
    s_add_u32 s{S_T+5}, s{S_T+5}, s{S_Q}
    s_mul_i32 s{S_T+5}, s{S_T+5}, {32*7168}
    s_lshl_b32 s{S_T+4}, s{S_CW}, 8
    s_add_u32 s{S_T+5}, s{S_T+5}, s{S_T+4}
    s_cmp_ge_u32 s2, 224
    s_cselect_b32 s{S_T+5}, {7*MB}, s{S_T+5}
    v_lshrrev_b32 v3, 4, v1
    v_mul_u32_u24 v3, 7168, v3
    v_and_b32 v4, 15, v1
    v_lshl_add_u32 v5, v4, 4, v3""")
    for j in range(8):
        k.e(f"buffer_load_dwordx4 v[{192+4*j}:{195+4*j}], v5, {srd(SRD_B)}, s{S_T+5} offen\ns_add_u32 s{S_T+5}, s{S_T+5}, {4*7168}")
    if OPT.xw:
        mk_srd(k, SRD_A, P_WSP, 8*MB)
        k.e(f"""s_lshl_b32 s{S_T+1}, s2, 2
        s_add_u32 s{S_T+1}, s{S_T+1}, s{S_Q}
        s_lshl_b32 s{S_T+1}, s{S_T+1}, 13
        v_min_u32 v3, {OPT.xw-1}, v1
        v_lshlrev_b32 v3, 7, v3
        buffer_load_dword v251, v3, {srd(SRD_A)}, s{S_T+1} offen""")
        n += 1
    if OPT.l2 & 2:
        k.e(f"""v_min_u32 v4, 13, v4
        v_lshl_add_u32 v3, v4, 7, v3
        s_mul_i32 s{S_T+1}, s{S_T+2}, {4*7168}
        s_mul_i32 s{S_T+4}, s{S_T+3}, 1792
        s_add_u32 s{S_T+1}, s{S_T+1}, s{S_T+4}
        s_add_u32 s{S_T+1}, s{S_T+1}, 3584
        buffer_load_dword v251, v3, {srd(SRD_B)}, s{S_T+1} offen
        s_add_u32 s{S_T+1}, s{S_T+1}, {512*7168}
        buffer_load_dword v252, v3, {srd(SRD_B)}, s{S_T+1} offen""")
        n += 2
    return n
def win_reduce(k):
    for j in range(8): acc_bf16(k, 224, 192+4*j, 4, j == 0, 232)
    xswap_sum(k, 224, 232, 8, 32)
    k.e(f"""s_lshl_b32 s{S_T}, s{S_Q}, 10
    s_add_u32 s{S_T}, s{S_T}, {L_CW}
    v_and_b32 v4, 31, v1
    v_lshl_add_u32 v4, v4, 5, s{S_T}
    ds_write_b128 v4, v[224:227]
    ds_write_b128 v4, v[228:231] offset:16
    s_waitcnt lgkmcnt(0)""")

def pf_loop(k, srdn, n, stride):
    t = k.lab("pf")
    k.e(f"s_mov_b32 s{S_CNT}, {n}\n{t}:")
    k.e(f"buffer_load_dword v3, v2, {srd(srdn)}, s{S_T+4} offen\ns_add_u32 s{S_T+4}, s{S_T+4}, {stride}")
    k.e(f"s_waitcnt vmcnt({OPT.pfd})\ns_sub_u32 s{S_CNT}, s{S_CNT}, 1\ns_cmp_lg_u32 s{S_CNT}, 0\ns_cbranch_scc1 {t}")

def helper_pf(k, role):
    nw = OPT.pf
    if OPT.tlb and role == 'c':
        st = 1 << OPT.tlb
        mk_srd(k, SRD_A, P_WOUT, 1792*2048); mk_srd(k, SRD_B, P_WSP, 8*MB)
        k.e(f"""s_lshr_b32 s{S_T}, s2, 3
        s_sub_u32 s{S_T}, s{S_T}, 28
        s_lshl_b32 s{S_T}, s{S_T}, 2
        s_add_u32 s{S_T}, s{S_T}, s{S_WAVE}
        s_lshl_b32 s{S_T+4}, s{S_T}, {OPT.tlb+6}
        v_and_b32 v3, 31, v1
        v_lshlrev_b32 v3, 7, v3
        v_lshlrev_b32 v2, {OPT.tlb}, v1
        v_add_u32 v2, v2, v3""")
        pf_loop(k, SRD_B, max(8*MB//(st*1024), 1), st*1024)
        k.e(f"s_lshl_b32 s{S_T+4}, s{S_T}, {OPT.tlb+6}")
        pf_loop(k, SRD_A, max(4*MB//(st*1024), 1), st*1024)
        k.e("s_waitcnt vmcnt(0)")
        return
    if not nw or role != 'c': return
    k.e(f"s_cmp_ge_u32 s{S_WAVE}, {nw}\ns_cbranch_scc1 L_nopf")
    mk_srd(k, SRD_A, P_WOUT, 1792*2048); mk_srd(k, SRD_B, P_WSP, 8*MB)
    k.e(f"""s_sub_u32 s{S_T}, s2, 224
    s_mul_i32 s{S_T}, s{S_T}, {nw}
    s_add_u32 s{S_T}, s{S_T}, s{S_WAVE}
    s_lshl_b32 s{S_T+4}, s{S_T}, 13
    v_lshlrev_b32 v2, 7, v1""")
    for _ in range(OPT.pfw): k.e("s_sleep 127")
    pf_loop(k, SRD_B, 32//nw, 8192*32*nw)
    stamp(k, 12)
    k.e(f"s_lshl_b32 s{S_T+4}, s{S_T}, 13")
    pf_loop(k, SRD_A, -(-14//nw), 8192*32*nw)
    k.e("s_waitcnt vmcnt(0)\nL_nopf:")

def inv_pos(k, rot):
    inv = [0]*4
    for u, d in enumerate(rot): inv[(u+d) & 3] = -d
    packed = sum(((d+8) & 15) << (4*u) for u, d in enumerate(inv))
    k.e(f"""s_sub_u32 s{S_T}, s{S_M}, s{S_PH}
    s_and_b32 s{S_T}, s{S_T}, 3
    s_lshl_b32 s{S_T}, s{S_T}, 2
    s_lshr_b32 s{S_T}, {packed}, s{S_T}
    s_and_b32 s{S_T}, s{S_T}, 15
    s_add_u32 s{S_T}, s{S_T}, s{S_M}
    s_sub_u32 s{S_T}, s{S_T}, 8
    s_and_b32 s{S_KB}, s{S_T}, 15""")

def loader(k):
    c1, c2, c3, c4, c5 = cfgs()
    LP = LProg(k)
    def start(c, t=0): return [f"s_mov_b32 s{S_TAU}, {t}", f"s_mov_b32 s{S_SLOT}, {(t+c.slot0) % c.NS}"]
    def W_(n): return f"s_waitcnt vmcnt({n})\ns_barrier"
    k.e(f"s_lshl_b32 s{S_M0W}, s{S_LW}, 10")
    c = c1; g1 = Seg(c1, VS, VF)
    inv_pos(k, c.rot)
    k.e(f"s_lshl_b32 s{S_T0}, s{S_N}, 7")
    loader_voff_S(k, c, VS)
    loader_voff_F(k, c, VF, S_T0, lambda P: P*2048)
    LP.prep(g1, start(c))
    k.e("s_waitcnt lgkmcnt(0)")
    mk_srd(k, SRD_S, P_X, 4*MB); mk_srd(k, SRD_F, P_WQKV, 6*MB)
    stamp(k, 0); stamp(k, 1)
    LP.stage(g1); LP.stage(g1)
    LP.stage(g1, sync=W_(c.nI))
    mk_srd(k, SRD_W, P_WS, WS_END)
    if OPT.pads:
        for d in (SRD_A, SRD_B, SRD_D): mk_srd(k, d, P_X, 0)
    if OPT.wl < 13:
        LP.run(g1, OPT.wl+1, c.nI)
        if OPT.pads: k.e("s_branch L_ld\nALIGN4K\nL_ld:")
        n = win_loads(k, "l")
        LP.prep(g1)
        LP.stage(g1, sync=W_(c.nI+n), stampit=True)
        LP.stage(g1, sync=W_(c.nI+n), stampit=True)
        LP.run(g1, 10-OPT.wl, c.nI)
        k.e(W_(c.nI) + "\n" + W_(0))
    else:
        LP.run(g1, 13, c.nI)
        if OPT.pads: k.e("s_branch L_ld\nALIGN4K\nL_ld:")
        k.e(W_(c.nI)); itstamp(k)
        n = win_loads(k, "l")
        k.e(W_(n)); itstamp(k)
    k.e(f"""s_lshl_b32 s{S_T+12}, s{S_N}, 4
    s_add_u32 s{S_T+12}, s{S_T+12}, s{S_M}
    s_lshl_b32 s{S_T+14}, s{S_T+12}, 4
    s_add_u32 s{S_T+14}, s{S_T+14}, {WS_ZF}
    s_lshl_b32 s{S_T+12}, s{S_T+12}, 8
    s_add_u32 s{S_T+12}, s{S_T+12}, {WS_ZP}
    v_and_b32 v13, 15, v1
    v_lshlrev_b32 v13, 4, v13""")
    tile_map(k, 4, 8, 16)
    c = c2; g2 = Seg(c2, VS, VF)
    k.e("s_mov_b32 s88, 0xb3a98210\ns_mov_b32 s89, 0xfedc7654")
    mk_srd(k, SRD_S, P_WS, 4*MB, WS_O); mk_srd(k, SRD_F, P_WO, 2*MB)
    k.e(f"s_lshl_b32 s{S_T0}, s{S_N}, 7")
    loader_voff_S(k, c, VS); loader_voff_F(k, c, VF, S_T0, lambda P: 0)
    k.e("s_barrier"); itstamp(k)
    if OPT.tw:
        mk_srd(k, SRD_D, P_OUT, 4*MB)
        k.e(f"""s_lshr_b32 s{S_T}, s2, 3
        s_lshl_b32 s{S_T}, s{S_T}, 1
        s_add_u32 s{S_T}, s{S_T}, s{S_LW}
        s_and_b32 s{S_T}, s{S_T}, {(1 << (20-OPT.tw)) - 1}
        s_lshl_b32 s{S_T}, s{S_T}, {OPT.tw}
        v_lshlrev_b32 v3, 20, v1
        v_lshl_add_u32 v3, v1, 7, v3
        buffer_load_dword v251, v3, {W}, s{S_T} offen
        buffer_load_dword v252, v3, {srd(SRD_D)}, s{S_T} offen""")
    k.e("s_barrier")
    issue_first(k, c, VS, VF, "F", pbarrier=False)
    k.e("s_barrier")
    grp(k, 1)
    loader_voff_S(k, c5, VS5); loader_voff_F(k, c5, VF5, S_T0, lambda P: 0)
    k.e(f"""s_and_b32 s{S_T}, s2, 1
    s_mul_i32 s{S_T+1}, s{S_T}, {(0 if OPT.solo else 7 if OPT.two & 2 else 14)*4096}
    s_mul_i32 s{S_T+2}, s{S_T}, {(0 if OPT.solo else 7 if OPT.two & 2 else 14)*64*2048}
    s_mul_i32 s90, s{S_T}, 6
    s_add_u32 s91, s90, 8""")
    for i in range(c5.nS): k.e(f"v_add_u32 v{VS5+i}, s{S_T+1}, v{VS5+i}")
    for i in range(c5.nF):
        if i < 4: k.e(f"v_xor_b32 v{VF5+i}, 1024, v{VF5+i}")
        k.e(f"v_add_u32 v{VF5+i}, s{S_T+2}, v{VF5+i}")
    k.e(f"s_sub_u32 s{S_T0}, s{S_N}, s{S_T}\ns_lshl_b32 s{S_T0}, s{S_T0}, 8\ns_mov_b32 s{S_FB}, 3584")
    loader_voff_F(k, c3, VF3, S_T0, lambda P: P*128)
    k.e(f"s_cmp_eq_u32 s{S_LW}, 0\ns_cbranch_scc1 L_l_noz\ns_sleep {max(OPT.kvslp-8, 1)}")
    def zg(): k.e(f"buffer_load_dwordx4 v[128:131], v13, {W}, s{S_T+12} offen sc1")
    validated(k, zg, range(128, 132), 3, pre=False)
    acc_bf16(k, 136, 128, 4, True, 132)
    for sh in (8, 4, 2, 1): ror_sum(k, 136, 8, sh)
    for i in range(4): k.e(f"v_cvt_pk_bf16_f32 v{132+i}, v{136+2*i}, v{137+2*i}")
    k.e(f"s_mov_b64 exec, 1\nbuffer_store_dwordx4 v[132:135], v13, {W}, s{S_T+14} offen sc1\ns_mov_b64 exec, -1\nL_l_noz:")
    if OPT.two & 4:
        k.e(f"s_waitcnt vmcnt({c.NS*c.nF})")
        win_reduce(k)
        LP.prep(g2, start(c))
        k.e("s_barrier")
        if_par(k, 0, "s_barrier", S_CLS)
    else:
        bars(k, 2)
        k.e(f"s_waitcnt vmcnt({c.NS*c.nF})")
        win_reduce(k)
        LP.prep(g2, start(c))
    LP.stage(g2, "S", sync="s_barrier")
    LP.stage(g2, "S")
    if OPT.two & 4: if_par(k, 1, "s_barrier", S_CLS)
    LP.stage(g2, "S", sync=W_(c.nS))
    LP.stage(g2, "S")
    LP.stage(g2, sync=W_(2*c.nS), stampit=True)
    LP.stage(g2, sync=W_(c.nS+c.nI), stampit=True)
    g3 = Seg(c3, VS, VF3, True, SRD_S, SRD_B); g4 = Seg(c4, VS4, VF4, False, SRD_A, SRD_D); g5 = Seg(c5, VS5, VF5)
    LP.run(g2, 10, 2*c.nI, nxt=g3, pre=start(c3))
    k.e("s_cmp_ge_u32 s2, 224\ns_cbranch_scc1 L_ld_helper")
    c = c3
    LP.stage(g3, "F", sync=W_(2*c2.nI))
    LP.stage(g3, "F", sync=W_(c2.nI+c.nF), nxt=False)
    k.e(W_(2*c.nF) + "\ns_barrier")
    tile_map(k, 4, 7, 14)
    mk_srd(k, SRD_S, P_WS, 4*MB, WS_H); mk_srd(k, SRD_A, P_WSP, 8*MB); mk_srd(k, SRD_D, P_WS, 7*MB, WS_Z2N)
    if not OPT.two & 1: k.e("s_barrier")
    loader_voff_S(k, c, VS); loader_voff_S(k, c4, VS4); loader_voff_F(k, c4, VF4)
    if OPT.own2 == 2: inv_pos(k, c4.rot)
    else: k.e(f"s_and_b32 s{S_KB}, s{S_M}, 3\ns_lshl_b32 s{S_KB}, s{S_KB}, 1\ns_lshr_b32 s93, s{S_M}, 2\ns_lshl_b32 s93, s93, 3")
    LP.prep(g3, start(c))
    ITST[1] = 253
    if ITST[0]: k.e("s_mov_b32 s97, 0")
    if OPT.two & 1: if_par(k, 0, "s_barrier")
    LP.stage(g3, "S", sync="s_barrier")
    LP.stage(g3, "S")
    if OPT.two & 1: if_par(k, 1, "s_barrier")
    LP.stage(g3, sync=W_(c.nS))
    LP.run(g3, 13, c.nI, nxt=g3, pre=[f"s_mov_b32 s{S_TAU}, 0", f"s_mov_b32 s{S_FB}, 0"])
    LP.run(g3, 3, c.nI, nxt=g3)
    LP.stage(g3)
    if OPT.gb: k.e("s_barrier")
    LP.run(g3, 12, 2*c.nI, nxt=g4, pre=[f"s_mov_b32 s{S_TAU}, 0"])
    mk_srd(k, SRD_S, P_WS, 7*MB, WS_U); mk_srd(k, SRD_F, P_WOUT, 1792*2048)
    c = c4
    LP.run(g4, 32, 2*c.nI, nxt=g5, pre=start(c5))
    LP.stage(g5, "F", sync=W_(2*c.nI))
    LP.stage(g5, "F", sync=W_(c.nI+c5.nF), nxt=False)
    k.e(W_(2*c5.nF))
    bars(k, 1 if OPT.two & 2 else 2)
    k.e("L_ld_p5:")
    ITST[1] = 254
    if ITST[0]: k.e("s_mov_b32 s97, 32")
    c = c5
    LP.prep(g5, start(c))
    if OPT.two & 2: if_par(k, 0, "s_barrier")
    LP.stage(g5, "S", sync="s_barrier")
    LP.stage(g5, "S")
    if OPT.two & 2: if_par(k, 1, "s_barrier")
    LP.stage(g5, sync=W_(c.nS))
    if OPT.solo:
        nh = c.nS + c.nF//2
        LP.run(g5, 9, c.nI, nxt=g5)
        LP.stage(g5, "SH", sync=W_(c.nI))
        LP.stage(g5, "SH", sync=W_(nh))
        LP.stage(g5, "SH")
        LP.stage(g5, "SH", sync=W_(2*nh), nxt=False)
        k.e(W_(2*nh) + "\n" + W_(nh) + "\n" + W_(0) + "\ns_barrier")
    else:
        LP.run(g5, 11, c.nI)
        k.e(W_(c.nI) + "\n" + W_(0) + "\ns_barrier")
    k.e("s_branch L_fin")
    k.e("L_ld_helper:")
    k.e(W_(2*c2.nI) + "\n" + W_(c2.nI) + "\n" + W_(0))
    bars(k, 3)
    mk_srd(k, SRD_S, P_WS, 7*MB, WS_U); mk_srd(k, SRD_F, P_WOUT, 1792*2048)
    issue_first(k, c5, VS5, VF5, "F", pbarrier=False, t1=2)
    k.e("s_branch L_ld_p5")

def spread(k, fn, nbar):
    t = Kern(k.name); t.uid = k.uid
    fn(t); k.uid = t.uid
    L = [x.strip() for x in t.L]
    assert not any(x.endswith(":") for x in L)
    wt = lambda x: 10 if x.startswith("buffer_") else (1 if x.startswith(("v_", "ds_")) else 0.25)
    tot = sum(map(wt, L)); acc = 0; nb = 0
    low = OPT.vprio and sum(x.startswith("v_") for x in L) > 20
    if low: k.e("s_setprio 0")
    for x in L:
        k.e(x); acc += wt(x)
        if nb < nbar-1 and acc >= tot*(nb+1)/nbar - 1e-9:
            k.e("s_barrier"); nb += 1
    if low: k.e(f"s_setprio {OPT.pa}")
    while nb < nbar:
        k.e("s_barrier"); nb += 1

_carry = []
def merge(k, vm, va, nbar, share, hook=None):
    def cap(fns):
        t = Kern(k.name); t.uid = k.uid
        for f in fns: f(t)
        k.uid = t.uid
        return [x.strip() for x in t.L]
    M = cap(vm); _carry.extend(cap(va))
    nv = len(_carry) if share >= 1 else int(len(_carry)*share)
    V = _carry[:nv]; del _carry[:nv]
    nm = sum(x.startswith("buffer_") for x in M)
    mi = 0; seen = 0; full = True
    for b in range(nbar):
        tgt = nm*(b+1)/nbar
        while mi < len(M) and (seen < tgt or not full or b == nbar-1):
            x = M[mi]; k.e(x); mi += 1
            if x.startswith("buffer_"): seen += 1
            if "exec" in x.split(",")[0]: full = x.replace(" ", "") == "s_mov_b64exec,-1"
        for x in V[len(V)*b//nbar: len(V)*(b+1)//nbar]: k.e(x)
        k.e("s_barrier")
        if hook: hook(b)

def combine_half(k, P, stride, n, ntot, cnt, d, t):
    k.e(f"v_add_f32 v{d}, v{P}, v{P+stride}\nv_add_f32 v{d+1}, v{P+1}, v{P+stride+1}")
    for i in range(2, n): k.e(f"v_add_f32 v{d}, v{d}, v{P+stride*i}\nv_add_f32 v{d+1}, v{d+1}, v{P+stride*i+1}")
    if ntot != n: xswap_sum1(k, d, t)
    k.e(f"v_mul_f32 v{d}, {f2u(1.0/ntot)}, v{d}\nv_sub_f32 v{t}, v{P}, v{d}\nv_mul_f32 v{t+1}, v{t}, v{t}")
    for i in range(1, n): k.e(f"v_sub_f32 v{t}, v{P+stride*i}, v{d}\nv_fmac_f32 v{t+1}, v{t}, v{t}")
    k.e(f"v_fmac_f32 v{d+1}, {f2u(float(cnt))}, v{t+1}")
    if ntot != n: xswap_sum1(k, d+1, t)

def code_touch(k, lo, first, nlines):
    if not OPT.ct: return
    here = k.lab("pc")
    k.e(f"""s_getpc_b64 s[{S_X}:{S_X+1}]
    {here}:
    s_add_u32 s{S_X}, s{S_X}, {lo}-{here}
    s_addc_u32 s{S_X+1}, s{S_X+1}, {'-1' if lo == KNAME else '0'}
    s_lshr_b32 s{S_T}, s2, 3
    s_sub_u32 s{S_T}, s{S_T}, {first}
    s_lshl_b32 s{S_T}, s{S_T}, 1
    s_add_u32 s{S_T}, s{S_T}, s{S_LW}
    s_mul_i32 s{S_T}, s{S_T}, {nlines*128}
    v_min_u32 v249, {nlines-1}, v1
    v_lshlrev_b32 v249, 7, v249
    v_add_u32 v249, s{S_T}, v249
    v_min_u32 v249, L_end-{lo}, v249
    global_load_dword v250, v249, s[{S_X}:{S_X+1}]""")

def xp_init(k):
    if not OPT.sk: return
    k.e(f"""s_lshl_b32 s{S_T}, s2, 14
    s_lshl_b32 s{S_T+1}, s{S_LW}, 13
    s_add_u32 s{S_T}, s{S_T}, s{S_T+1}
    s_add_u32 s{S_T}, s{S_T}, {WS_XP}
    s_add_u32 s{S_T+1}, s{S_T}, 4096""")
    for i in range(8): k.e(f"buffer_store_dwordx4 v[44:47], v2, {W}, s{S_T+(i>>2)} offen offset:{(i&3)*1024} sc1")
    k.e("s_waitcnt vmcnt(0)")
def u_cnt(k):
    cnt_addr(k, 9, F_U, S_M)
    if OPT.sk: k.e(f"s_and_b32 s{S_T}, s2, 1\ns_lshl_b32 s{S_T}, s{S_T}, 7\nv_add_u32 v9, s{S_T}, v9")

def aux(k):
    c1, c2, c3, c4, c5 = cfgs()
    a = S_LW
    k.e(f"""s_lshl_b32 s{S_T}, s{S_M}, 7
    s_lshl_b32 s{S_T+1}, s{S_N}, 3
    s_add_u32 s{S_T}, s{S_T}, s{S_T+1}
    s_lshl_b32 s{S_T+1}, s{a}, 2
    s_add_u32 s{S_T}, s{S_T}, s{S_T+1}
    v_lshrrev_b32 v14, 4, v1
    v_add_u32 v14, s{S_T}, v14
    v_and_b32 v3, 15, v1
    v_lshlrev_b32 v3, 4, v3
    v_lshl_add_u32 v3, v14, 11, v3
    s_waitcnt lgkmcnt(0)""")
    mk_srd(k, SRD_B, P_X, 4*MB)
    XR = 192 if OPT.xa else 64
    if OPT.xa: k.e(f"s_sleep {OPT.xa}")
    for j in range(8): k.e(f"buffer_load_dwordx4 v[{XR+4*j}:{XR+3+4*j}], v3, {srd(SRD_B)}, 0 offen offset:{256*j}")
    mk_srd(k, SRD_W, P_WS, WS_END); mk_srd(k, SRD_A, P_WPHI, 65536); mk_srd(k, SRD_D, P_DBG, 256)
    if OPT.pads:
        for d in (SRD_S, SRD_F): mk_srd(k, d, P_X, 0)
    stamp(k, 0)
    q = OPT.spq
    k.e(f"""v_lshlrev_b32 v2, 4, v1
    v_mov_b32 v11, 1
    v_mov_b32 v44, -1
    v_mov_b32 v45, -1
    v_mov_b32 v46, -1
    v_mov_b32 v47, -1
    v_lshrrev_b32 v4, 5, v1
    v_lshlrev_b32 v4, 13, v4
    v_and_b32 v5, 31, v1
    v_lshl_add_u32 v4, v5, 4, v4
    v_bfe_u32 v12, v1, 2, 2
    v_min_u32 v12, 2, v12
    v_lshlrev_b32 v12, 13, v12
    v_lshrrev_b32 v5, 4, v1
    v_lshl_add_u32 v12, v5, 11, v12
    v_and_b32 v5, 3, v1
    v_lshl_add_u32 v12, v5, 4, v12
    s_mov_b32 s{S_T}, {q if q >= 0 else 's93'}
    s_sub_u32 s{S_T+1}, s{S_T}, 3
    s_cmp_ge_u32 s{S_T}, 3
    s_cselect_b32 s{S_T}, s{S_T+1}, s{S_T}
    s_mul_i32 s{S_T}, s{S_T}, {c1.slotF}
    s_add_u32 s{S_T}, s{S_T}, {c1.baseF}
    v_add_u32 v12, s{S_T}, v12
    v_bfe_u32 v13, v1, 2, 2
    v_lshl_add_u32 v12, v13, 7, v12
    v_lshrrev_b32 v13, 1, v13
    v_xor_b32 v13, s{a}, v13
    v_lshl_add_u32 v24, v13, 6, v12
    v_xor_b32 v25, 128, v24
    v_xor_b32 v26, 320, v24
    v_xor_b32 v27, 448, v24
    v_lshlrev_b32 v14, 2, v14""")
    X = 128
    for j in range(0 if OPT.xa else 8):
        k.e(f"s_waitcnt vmcnt({7-j})")
        for i in range(4*j, 4*j+4):
            unpack(k, X+2*i, X+2*i+1, 64+i)
            t = 32+2*(i & 1)
            if i >= 2: k.e(f"v_pk_add_f32 v[{t}:{t+1}], v[{X+2*i-4 if i < 4 else t}:{X+2*i-3 if i < 4 else t+1}], v[{X+2*i}:{X+2*i+1}]")
    stamp(k, 10)
    k.e("s_barrier")
    def init(k):
        k.e(f"""s_mov_b32 s{S_T+14}, {WS_XS}
        s_mov_b32 s{S_T+15}, {WS_XS+8192}
        s_mov_b32 exec_lo, 0x10001
        s_mov_b32 exec_hi, 0x10001
        buffer_store_dword v44, v14, {W}, s{S_T+14} offen sc1
        buffer_store_dword v44, v14, {W}, s{S_T+15} offen sc1
        s_mov_b64 exec, -1
        s_lshl_b32 s{S_T}, s{S_N}, 17
        s_lshl_b32 s{S_T+1}, s{S_M}, 9
        s_add_u32 s{S_T}, s{S_T}, s{S_T+1}
        s_lshl_b32 s{S_T+1}, s{a}, 16
        s_add_u32 s{S_T}, s{S_T}, s{S_T+1}
        s_add_u32 s{S_T}, s{S_T}, {WS_KVP}""")
        for x in range(4): k.e(f"buffer_store_dwordx4 v[44:47], v4, {W}, s{S_T} offen sc1\ns_add_u32 s{S_T}, s{S_T}, 16384")
        k.e(f"""s_lshl_b32 s{S_T+12}, s{S_N}, 4
        s_add_u32 s{S_T+12}, s{S_T+12}, s{S_M}
        s_lshl_b32 s{S_T+12}, s{S_T+12}, 1
        s_add_u32 s{S_T+12}, s{S_T+12}, s{a}
        s_mul_i32 s{S_T+12}, s{S_T+12}, 384
        s_add_u32 s{S_T+12}, s{S_T+12}, {WS_CQP}
        s_mov_b64 exec, 0xffffff
        buffer_store_dwordx4 v[44:47], v2, {W}, s{S_T+12} offen sc1
        s_lshl_b32 s{S_T}, s2, 10
        s_add_u32 s{S_T}, s{S_T}, {WS_HST}
        s_mul_i32 s{S_T+1}, s2, 528
        s_add_u32 s{S_T+1}, s{S_T+1}, {WS_KVF}
        s_mul_i32 s{S_T+2}, s2, 896
        s_add_u32 s{S_T+3}, s{S_T+2}, {WS_CSP}
        s_add_u32 s{S_T+2}, s{S_T+2}, {WS_ZST}
        s_mov_b32 s{S_T+4}, 0xffffff
        s_cmp_eq_u32 s{a}, 0
        s_cselect_b32 s{S_T}, s{S_T}, s{S_T+2}
        s_cselect_b32 s{S_T+1}, s{S_T+1}, s{S_T+3}
        s_cselect_b32 s{S_T+5}, -1, s{S_T+4}
        s_cselect_b32 s{S_T+6}, 1, s{S_T+4}
        s_mov_b32 exec_lo, -1
        s_mov_b32 exec_hi, s{S_T+5}
        buffer_store_dwordx4 v[44:47], v2, {W}, s{S_T} offen sc1
        s_mov_b32 exec_hi, s{S_T+6}
        buffer_store_dwordx4 v[44:47], v2, {W}, s{S_T+1} offen sc1
        s_mov_b64 exec, -1
        s_mul_i32 s{S_T}, s2, {FLS}
        s_add_u32 s{S_T}, s{S_T}, {WS_FLAG}
        s_cmp_lt_u32 s2, 64
        s_cselect_b32 s{S_T}, s{S_T}, {WS_END}
        s_lshl_b32 s{S_T+1}, s2, 8
        s_add_u32 s{S_T+1}, s{S_T+1}, {WS_ZP}
        s_cmp_eq_u32 s{a}, 0
        s_cselect_b32 s{S_T}, s{S_T}, s{S_T+1}
        s_cselect_b32 s{S_T+1}, 0, -1
        v_mov_b32 v48, s{S_T+1}
        v_lshlrev_b32 v5, 2, v1
        buffer_store_dword v48, v5, {W}, s{S_T} offen sc1""")
    def xs2(k):
        if OPT.xa:
            for i in range(32):
                unpack(k, X+2*i, X+2*i+1, XR+i)
                t = 32+2*(i & 1)
                if i >= 2:
                    for e_ in range(2): k.e(f"v_add_f32 v{t+e_}, v{X+2*i-4+e_ if i < 4 else t+e_}, v{X+2*i+e_}")
        k.e("v_add_f32 v32, v32, v34\nv_add_f32 v33, v33, v35\nv_add_f32 v32, v32, v33")
        for sh in (8, 4, 2, 1): ror_sum(k, 32, 1, sh)
        k.e(f"v_mul_f32 v32, {f2u(1/1024.)}, v32")
        for i in range(64):
            d = 40+(i & 3); t = 34+(i & 3)
            k.e(f"v_sub_f32 v{d}, v{X+i}, v32")
            k.e(f"v_mul_f32 v{t}, v{d}, v{d}" if i < 4 else f"v_fmac_f32 v{t}, v{d}, v{d}")
        k.e("v_add_f32 v34, v34, v35\nv_add_f32 v36, v36, v37\nv_add_f32 v33, v34, v36")
        for sh in (8, 4, 2, 1): ror_sum(k, 33, 1, sh)
        finish_rstd(k, 32, 1024)
    def qld(k):
        k.e(f"""s_lshl_b32 s{S_T}, s{S_N}, 12
        s_lshl_b32 s{S_T+1}, s{a}, 11
        s_add_u32 s{S_T}, s{S_T}, s{S_T+1}
        s_add_u32 m0, s{S_T+1}, {L_WPHI}
        s_nop 0
        buffer_load_dwordx4 v2, {srd(SRD_A)}, s{S_T} offen lds
        buffer_load_dwordx4 v2, {srd(SRD_A)}, s{S_T} offen offset:1024 lds""")
    def sprd(b):
        if b == q-1 or (q < 0 and OPT.q0 <= b+1 <= OPT.q0 + 7*OPT.qm//8):
            if q < 0: k.e(f"s_cmp_lg_u32 s93, {b+1}\ns_cbranch_scc1 L_nsp{b+1}")
            for j in range(16):
                k.e(f"ds_read_b128 v[{64+4*j}:{67+4*j}], v{24 + (j&3)} offset:{(j>>2)*512}")
                if j == 7:
                    k.e("s_waitcnt lgkmcnt(4)")
                    for r_ in range(24, 28): k.e(f"v_xor_b32 v{r_}, 32, v{r_}")
            k.e("s_waitcnt lgkmcnt(0)")
            if q < 0: k.e(f"L_nsp{b+1}:")
    assert q <= 5
    sprd(-1)
    if OPT.qpf:
        mk_srd(k, SRD_B, P_WQKV, 6*MB)
        k.e(f"""s_lshl_b32 s{S_T}, s2, 1
        s_add_u32 s{S_T}, s{S_T}, s{a}
        s_mul_i32 s{S_T}, s{S_T}, {96*128}
        v_lshlrev_b32 v3, 7, v1
        buffer_load_dword v250, v3, {srd(SRD_B)}, s{S_T} offen
        s_add_u32 s{S_T}, s{S_T}, 4096
        buffer_load_dword v251, v3, {srd(SRD_B)}, s{S_T} offen""")
    if OPT.xa: k.e("s_waitcnt vmcnt(0)")
    A = 128
    arr = f"""s_cmp_lg_u32 s{a}, 0
    s_cbranch_scc1 L_a_noarr
    s_and_b32 s{S_T}, s2, 7
    s_lshl_b32 s{S_T}, s{S_T}, 5
    v_mov_b32 v4, s{S_T}
    s_mov_b64 exec, 1
    buffer_atomic_add v11, v4, {srd(SRD_D)}, 0 offen sc1
    s_mov_b64 exec, -1
    L_a_noarr:"""
    xst = f"""s_mov_b32 exec_lo, 0x10001
    s_mov_b32 exec_hi, 0x10001
    buffer_store_dword v32, v14, {W}, s{S_T+14} offen sc1
    buffer_store_dword v33, v14, {W}, s{S_T+15} offen sc1
    s_mov_b64 exec, -1"""
    def csum(k):
        for j in range(16): acc_bf16(k, A, 64+4*j, 4, j == 0, 50, plain=True)
        xswap_sum(k, A, 160, 8, 16); xswap_sum(k, A, 160, 8, 32)
    cst = f"""v_lshlrev_b32 v4, 5, v1
    s_mov_b64 exec, 0xfff
    buffer_store_dwordx4 v[{A}:{A+3}], v4, {W}, s{S_T+12} offen sc1
    buffer_store_dwordx4 v[{A+4}:{A+7}], v4, {W}, s{S_T+12} offen offset:16 sc1
    s_mov_b64 exec, -1
    v_lshlrev_b32 v10, 5, v1"""
    def before_bar(text):
        b = k.L.pop(); k.e(text); k.L.append(b)
    if not OPT.late:
        code_touch(k, KNAME, 0, 11)
        merge(k, [init], [xs2], 2, 0.3, hook=sprd)
        merge(k, [], [], 1, 0.4); sprd(2)
        merge(k, [], [], 1, 0.67)
        before_bar("s_waitcnt vmcnt(0)")
        k.e(arr); sprd(3)
        merge(k, [qld], [], 1, 1.0)
        k.e(xst); sprd(4)
        k.e("s_barrier")
        if OPT.wa == 5: win_loads(k, "a")
        merge(k, [], [csum], 5, 1.0, hook=lambda b: win_loads(k, "a") if b+6 == OPT.wa and b < 4 else None)
    else:
        merge(k, [], [xs2], 3, 0.8, hook=sprd)
        code_touch(k, KNAME, 0, 11)
        merge(k, [init], [], 3, 1.0, hook=lambda b: sprd(b+3) if b < 2 else None)
        merge(k, [], [csum], 2, 0.4)
        before_bar("s_waitcnt vmcnt(0)")
        k.e(arr); k.e(xst)
        merge(k, [qld], [], 3, 1.0)
    before_bar(cst)
    sample(k, 10, SRD_D)
    k.e(f"""s_lshl_b32 s{S_T+14}, s{a}, 13
    s_lshl_b32 s{S_T+1}, s{S_M}, 9
    s_add_u32 s{S_T+14}, s{S_T+14}, s{S_T+1}
    s_add_u32 s{S_T+14}, s{S_T+14}, {WS_XS}
    s_mul_i32 s{S_T+12}, s{S_N}, {16*768}
    s_mul_i32 s{S_T+13}, s{a}, 384
    s_add_u32 s{S_T+12}, s{S_T+12}, s{S_T+13}
    s_add_u32 s{S_T+12}, s{S_T+12}, {WS_CQP}
    v_and_b32 v12, 31, v1
    v_min_u32 v12, 23, v12
    v_lshlrev_b32 v12, 4, v12
    v_lshrrev_b32 v13, 5, v1
    v_mul_u32_u24 v13, 768, v13
    v_add_u32 v13, v13, v12
    v_lshlrev_b32 v5, 3, v1""")
    k.e("s_barrier")
    poll(k, 10, 8, SRD_D, 32, pre=True)
    stamp(k, 1)
    k.e("s_barrier")
    def cqg():
        k.e(f"s_mov_b32 s{S_T}, s{S_T+12}")
        for i in range(8):
            k.e(f"buffer_load_dwordx4 v[{64+4*i}:{67+4*i}], v13, {W}, s{S_T} offen offset:{(i&1)*1536} sc1")
            if i & 1: k.e(f"s_add_u32 s{S_T}, s{S_T}, 3072")
        k.e(f"buffer_load_dwordx2 v[96:97], v5, {W}, s{S_T+14} offen sc1")
    cqg()
    k.e("s_barrier")
    k.e("s_waitcnt vmcnt(0)")
    validated(k, cqg, range(64, 98), 3)
    for i in range(1, 8):
        for j in range(4): k.e(f"v_add_f32 v{64+j}, v{64+j}, v{64+4*i+j}")
    k.e("s_barrier")
    xswap_sum(k, 64, 68, 4, 32)
    k.e(f"""s_add_u32 s{S_T+13}, s{S_T+13}, {L_CQ}
    v_add_u32 v3, s{S_T+13}, v12
    ds_write_b128 v3, v[64:67]
    s_lshl_b32 s{S_T}, s{a}, 9
    s_add_u32 s{S_T}, s{S_T}, {L_XS}
    v_add_u32 v5, s{S_T}, v5
    ds_write_b64 v5, v[96:97]
    s_waitcnt lgkmcnt(0)
    s_barrier""")
    stamp(k, 2)
    if OPT.wa == 15: win_loads(k, "a")
    cnt_addr(k, 9, F_O, S_M)
    k.e(f"""s_lshl_b32 s{S_T+12}, s{S_N}, 17
    s_lshl_b32 s{S_T+1}, s{S_M}, 13
    s_add_u32 s{S_T+12}, s{S_T+12}, s{S_T+1}
    s_lshl_b32 s{S_T+2}, s{a}, 8
    s_add_u32 s{S_T+12}, s{S_T+12}, s{S_T+2}
    s_add_u32 s{S_T+12}, s{S_T+12}, {WS_KVP}
    s_add_u32 s{S_T+13}, s{S_T+12}, 4096
    s_lshl_b32 s{S_T+14}, s{S_N}, 13
    s_lshl_b32 s{S_T+1}, s{S_M}, 9
    s_add_u32 s{S_T+14}, s{S_T+14}, s{S_T+1}
    s_add_u32 s{S_T+14}, s{S_T+14}, s{S_T+2}
    s_add_u32 s{S_T+14}, s{S_T+14}, {WS_KVF}
    v_and_b32 v12, 15, v1
    v_lshlrev_b32 v12, 4, v12
    v_lshrrev_b32 v5, 4, v1
    v_lshl_add_u32 v13, v5, 9, v12
    v_lshl_add_u32 v12, v5, 2, v12""")
    bars(k, 2)
    if OPT.kvslp: k.e(f"s_sleep {OPT.kvslp}")
    def kvg(k=k):
        for i in range(4): k.e(f"buffer_load_dwordx4 v[{64+4*i}:{67+4*i}], v13, {W}, s{S_T+12+(i>>1)} offen offset:{(i&1)*2048} sc1")
    validated(k, kvg, range(64, 80), 3, pre=False)
    stamp(k, 3)
    for i in range(4): acc_bf16(k, 128, 64+4*i, 4, i == 0, 48)
    k.e("s_nop 0")
    for i in range(4): k.e(f"v_permlane32_swap_b32 v{128+i}, v{132+i}")
    k.e("v_pk_add_f32 v[128:129], v[128:129], v[132:133]\nv_pk_add_f32 v[130:131], v[130:131], v[134:135]\ns_nop 1")
    k.e("v_permlane16_swap_b32 v128, v130\nv_permlane16_swap_b32 v129, v131\nv_pk_add_f32 v[128:129], v[128:129], v[130:131]\nv_cvt_pk_bf16_f32 v52, v128, v129")
    k.e(f"buffer_store_dword v52, v12, {W}, s{S_T+14} offen sc1")
    stamp(k, 4)
    if OPT.kfslp: k.e(f"s_sleep {OPT.kfslp}")
    k.e("L_a_kvd:")
    k.e(f"""s_lshl_b32 s{S_T}, s{S_N}, 1
    s_add_u32 s{S_T}, s{S_T}, s{a}
    s_lshl_b32 s{S_T+12}, s{S_T}, 12
    s_add_u32 s{S_T+12}, s{S_T+12}, {WS_KVF}
    s_lshl_b32 s{S_T+13}, s{S_T}, 7
    s_add_u32 s{S_T+13}, s{S_T+13}, {WS_ZF}
    v_and_b32 v13, 7, v1
    v_lshlrev_b32 v13, 4, v13
    s_lshl_b32 s{S_T}, s{a}, 12
    v_add_u32 v4, s{S_T}, v2
    s_lshl_b32 s{S_T}, s{a}, 7
    v_add_u32 v5, s{S_T}, v13""")
    def kfg():
        for i in range(4): k.e(f"buffer_load_dwordx4 v[{64+4*i}:{67+4*i}], v2, {W}, s{S_T+12} offen offset:{i*1024} sc1")
        k.e(f"buffer_load_dwordx4 v[80:83], v13, {W}, s{S_T+13} offen sc1")
    validated(k, kfg, range(64, 84), 3, pre=False)
    for i in range(4): k.e(f"ds_write_b128 v4, v[{64+4*i}:{67+4*i}] offset:{L_KV+i*1024}")
    k.e(f"ds_write_b128 v5, v[80:83] offset:{L_Z}\ns_waitcnt lgkmcnt(0)\ns_barrier")
    grp(k, 1)
    tile_map(k, 4, 8, 16)
    cnt_addr(k, 10, F_O, S_M)
    def cap_(fn):
        t = Kern(k.name); t.uid = k.uid; fn(t); k.uid = t.uid; return "\n".join(t.L)
    if OPT.two & 4:
        k.e(f"s_and_b32 s{S_T}, s{S_CLS}, 1\ns_lshl_b32 s{S_T}, s{S_T}, 7\nv_add_u32 v9, s{S_T}, v9\nv_add_u32 v27, 128, v10\ns_setprio 0")
        win_reduce(k)
        k.e(f"s_setprio {OPT.pa}")
        if_par(k, 0, "s_barrier\n" + cap_(lambda t: set_flag(t, 9)), S_CLS)
        poll(k, 10, 1, val=6)
        stamp(k, 11)
        k.e("s_barrier")
        if_par(k, 1, "s_barrier\n" + cap_(lambda t: set_flag(t, 9)), S_CLS)
    else:
        k.e("s_barrier")
        set_flag(k, 9)
        win_reduce(k)
        poll(k, 10, 1, val=16)
        stamp(k, 11)
        k.e("s_barrier")
    stamp(k, 12)
    k.e(f"""s_cmp_eq_u32 s{a}, 0
    s_cbranch_scc1 L_a_nocw
    s_cmp_ge_u32 s2, 224
    s_cbranch_scc1 L_a_nocw
    v_lshlrev_b32 v4, 3, v1
    v_add_u32 v3, {L_CW}, v4""")
    for i in range(8): k.e(f"ds_read_b64 v[{192+2*i}:{193+2*i}], v3 offset:{i*512}")
    k.e(f"""s_mul_i32 s{S_T}, s{S_CW+1}, 14336
    s_lshl_b32 s{S_T+1}, s{S_CW}, 9
    s_add_u32 s{S_T}, s{S_T}, s{S_T+1}
    s_add_u32 s{S_T}, s{S_T}, {WS_CSP}
    s_waitcnt lgkmcnt(0)""")
    for i in range(1, 8): k.e(f"v_pk_add_f32 v[192:193], v[192:193], v[{192+2*i}:{193+2*i}]")
    k.e(f"buffer_store_dwordx2 v[192:193], v4, {W}, s{S_T} offen sc1\nL_a_nocw:")
    cnt_addr(k, 9, F_H, S_M)
    tile_map(k, 4, 7, 14)
    k.e(f"""v_and_b32 v14, 31, v1
    v_lshlrev_b32 v14, 4, v14
    v_lshrrev_b32 v15, 5, v1
    v_mul_u32_u24 v13, {1792*4}, v15
    v_add_u32 v13, v13, v14
    s_lshl_b32 s{S_T}, s{a}, 9
    v_add_u32 v14, s{S_T}, v14
    s_lshl_b32 s{S_T+13}, s{S_N}, 9
    s_add_u32 s{S_T+13}, s{S_T+13}, {WS_CSP}
    s_lshl_b32 s{S_T+12}, s{S_M}, 10
    s_add_u32 s{S_T+12}, s{S_T+12}, {WS_HST}""")
    def cap_(fn):
        t = Kern(k.name); t.uid = k.uid; fn(t); k.uid = t.uid; return "\n".join(t.L)
    def two_addr():
        k.e(f"v_mov_b32 v23, v9\nv_add_u32 v24, 128, v9\ns_and_b32 s{S_T}, s2, 1\ns_lshl_b32 s{S_T}, s{S_T}, 7\nv_add_u32 v9, s{S_T}, v9")
    def two_sync(val, st):
        if_par(k, 0, "s_barrier\n" + cap_(lambda t: set_flag(t, 9)))
        poll(k, 23, 1, val=val)
        stamp(k, st)
        k.e("s_barrier")
        if_par(k, 1, "s_barrier\n" + cap_(lambda t: set_flag(t, 9)))
    if OPT.two & 1: two_addr()
    def cg():
        k.e(f"s_mov_b32 s{S_T}, s{S_T+13}")
        for i in range(8): k.e(f"buffer_load_dwordx4 v[{64+4*i}:{67+4*i}], v13, {W}, s{S_T} offen sc1\ns_add_u32 s{S_T}, s{S_T}, 14336")
    if OPT.hh:
        k.e(f"""s_lshl_b32 s{S_T+15}, s{S_M}, 1
        s_and_b32 s{S_T}, s2, 1
        s_add_u32 s{S_T+15}, s{S_T+15}, s{S_T}
        s_lshl_b32 s{S_T+15}, s{S_T+15}, 1
        s_add_u32 s{S_T+15}, s{S_T+15}, s{a}
        s_lshl_b32 s{S_T+15}, s{S_T+15}, 10
        s_add_u32 s{S_T+15}, s{S_T+15}, {WS_HH}
        s_cmp_ge_u32 s2, 224
        s_cselect_b32 s{S_T}, s{S_T+15}, {WS_END}
        buffer_store_dwordx4 v[44:47], v2, {W}, s{S_T} offen sc1""")
    if OPT.two & 4:
        bars(k, 2)
        sample(k, 27)
        k.e("s_barrier")
        poll(k, 27, 1, val=10, pre=True)
        bars(k, 11)
    else:
        bars(k, 14)
    k.e(f"s_cmp_ge_u32 s2, 224\ns_cbranch_scc1 L_a_helper\ns_cmp_eq_u32 s{a}, 0\ns_cbranch_scc1 L_a_nocs")
    cg()
    k.e("s_barrier\ns_barrier\ns_barrier\ns_waitcnt vmcnt(0)")
    validated(k, cg, range(64, 96), 3)
    for i in range(1, 8): k.e(f"v_pk_add_f32 v[64:65], v[64:65], v[{64+4*i}:{65+4*i}]\nv_pk_add_f32 v[66:67], v[66:67], v[{66+4*i}:{67+4*i}]")
    k.e(f"v_add_u32 v3, {L_CS}, v2\nds_write_b128 v3, v[64:67]\ns_branch L_a_cs\nL_a_nocs:\ns_barrier\ns_barrier\ns_barrier\nL_a_cs:")
    if OPT.two & 1: two_sync(8, 13)
    else:
        k.e("s_barrier")
        set_flag(k, 9)
        poll(k, 9, 1, val=16)
        stamp(k, 13)
        k.e("s_barrier")
    stamp(k, 14)
    k.e(f"v_lshl_add_u32 v13, v15, 17, v14")
    def hg(k=k):
        k.e(f"s_mov_b32 s{S_T}, s{S_T+12}")
        for i in range(8): k.e(f"buffer_load_dwordx4 v[{64+4*i}:{67+4*i}], v13, {W}, s{S_T} offen sc1\ns_add_u32 s{S_T}, s{S_T}, 16384")
    def hcomp(k):
        for r in range(2):
            d = 4+4*r if r == 0 else 16
            combine_half(k, 64+2*r, 4, 8, 16, 64, d, 20)
            k.e(f"""v_mul_f32 v{d+1}, {f2u(1.0/1024)}, v{d+1}
            v_add_f32 v{d+1}, {f2u(1e-5)}, v{d+1}
            v_rsq_f32 v20, v{d+1}
            v_sqrt_f32 v{d+3}, v{d+1}
            v_sub_f32 v{d}, 0, v{d}
            v_mul_f32 v{d+1}, {f2u(C0)}, v20
            v_mul_f32 v{d+2}, v20, v20
            v_mul_f32 v{d+2}, v{d+2}, v20
            v_mul_f32 v{d+2}, {f2u(C1)}, v{d+2}""")
        k.e(f"""v_and_b32 v3, 31, v1
        v_lshlrev_b32 v3, 5, v3
        v_cmp_gt_u32 vcc, 32, v1
        v_lshl_add_u32 v3, v15, 4, v3
        s_nop 0
        v_cndmask_b32 v4, v16, v4, vcc
        v_cndmask_b32 v5, v17, v5, vcc
        v_cndmask_b32 v6, v18, v6, vcc
        v_cndmask_b32 v7, v19, v7, vcc""")
    def zaddr(k):
        k.e(f"""s_lshl_b32 s{S_T+14}, s2, 11
        s_add_u32 s{S_T+14}, s{S_T+14}, {WS_HC}
        s_lshl_b32 s{S_T}, s{a}, 10
        s_add_u32 s{S_T+14}, s{S_T+14}, s{S_T}
        s_add_u32 m0, s{S_T}, {L_HS}
        s_mul_i32 s{S_T+12}, s{S_M}, {14*1024}
        s_add_u32 s{S_T+12}, s{S_T+12}, {WS_ZST}
        s_lshl_b32 s{S_T+13}, s{S_N}, 10
        s_add_u32 s{S_T+13}, s{S_T+13}, s{S_T+12}
        s_lshl_b32 s{S_T}, s{a}, 9
        v_lshlrev_b32 v22, 3, v1
        v_add_u32 v22, s{S_T}, v22
        v_add_u32 v12, {L_ZP}, v22
        v_mul_u32_u24 v13, {7*1024}, v15
        v_add_u32 v13, v13, v14""")
        cnt_addr(k, 10, F_Z, S_N); u_cnt(k)
        if OPT.zg:
            k.e(f"""s_lshr_b32 s{S_T}, s{S_M}, 2
            s_lshl_b32 s{S_T}, s{S_T}, 5
            s_add_u32 s{S_T}, s{S_T}, 128
            v_add_u32 v25, s{S_T}, v10
            v_mul_u32_u24 v26, s{S_T}, v1
            v_add_u32 v26, v26, v10""")
    assert OPT.two & 1
    e_ = 2 if OPT.h3 == 16 else 0
    bars(k, 4-e_)
    sample(k, 24)
    bars(k, 2)
    poll(k, 24, 1, val=8, pre=True)
    bars(k, e_)
    if OPT.hh:
        k.e("s_barrier")
        zaddr(k)
        bars(k, 4)
        def hhg(): k.e(f"buffer_load_dwordx4 v[64:67], v2, {W}, s{S_T+15} offen sc1")
        hhg()
        k.e("s_barrier\ns_barrier\ns_waitcnt vmcnt(0) lgkmcnt(0)")
        validated(k, hhg, range(64, 68), 3)
        k.e(f"buffer_load_dwordx4 v2, {W}, s{S_T+15} offen sc1 lds")
        k.e("s_barrier\ns_barrier\ns_barrier\ns_waitcnt vmcnt(0)")
    else:
        hg()
        k.e("s_barrier\ns_barrier\ns_waitcnt vmcnt(0)")
        validated(k, hg, range(65, 96, 2), 3)
        def hfin(k):
            hcomp(k); zaddr(k)
            k.e(f"buffer_store_dwordx4 v[4:7], v3, {W}, s{S_T+14} offen")
        spread(k, hfin, 4)
        k.e(f"s_barrier\ns_barrier\ns_waitcnt vmcnt(0) lgkmcnt(0)\nbuffer_load_dwordx4 v2, {W}, s{S_T+14} offen sc1 lds")
        k.e("s_barrier\ns_barrier\ns_waitcnt vmcnt(0)")
    k.e("s_barrier")
    if OPT.sk and OPT.xis: k.e(f"s_sleep {OPT.xis}")
    xp_init(k)
    k.e("s_barrier")
    k.e(f"""ds_read_b64 v[64:65], v12
    ds_read_b64 v[66:67], v12 offset:1024
    s_waitcnt lgkmcnt(0)
    v_add_f32 v4, v64, v66
    v_mul_f32 v4, 0.5, v4
    v_sub_f32 v6, v64, v66
    v_mul_f32 v6, v6, v6
    v_add_f32 v5, v65, v67
    v_fmac_f32 v5, {f2u(32.0)}, v6
    buffer_store_dwordx2 v[4:5], v22, {W}, s{S_T+13} offen sc1""")
    stamp(k, 6)
    g = OPT.gat
    bars(k, g-16+OPT.gb)
    def zsg():
        k.e(f"s_add_u32 s{S_T}, s{S_T+12}, 4096")
        for i in range(7):
            k.e(f"buffer_load_dwordx4 v[{64+4*i}:{67+4*i}], v13, {W}, s{S_T+12 if i < 4 else S_T} offen offset:{(i&3)*1024} sc1")
    zsg()
    k.e("s_barrier\ns_waitcnt vmcnt(0)")
    validated(k, zsg, range(65, 92, 2), 3)
    stamp(k, 7)
    def zfin(k):
        for r in range(2):
            combine_half(k, 64+2*r, 4, 7, 14, 128, 4+2*r, 20); finish_rstd(k, 4+2*r, 1792)
        if OPT.zdma:
            k.e(f"""s_lshl_b32 s{S_T}, s{a}, 9
            s_add_u32 m0, s{S_T}, {L_ZS}
            s_mov_b32 exec_hi, 0
            buffer_store_dwordx4 v[4:7], v2, {W}, s{S_T+14} offen""")
        else: k.e(f"v_add_u32 v3, {L_ZS}, v14")
    if OPT.zdma:
        spread(k, zfin, OPT.zsp-2)
        k.e(f"s_waitcnt vmcnt(0)\nbuffer_load_dwordx4 v2, {W}, s{S_T+14} offen sc1 lds\ns_mov_b32 exec_hi, -1\ns_barrier\ns_waitcnt vmcnt(0)\ns_barrier")
    else:
        spread(k, zfin, OPT.zsp-1)
        k.e("ds_write_b128 v3, v[4:7]\ns_waitcnt lgkmcnt(0)\ns_barrier")
    nf = OPT.nst
    zb = g+1+OPT.zsp
    fb = zb+nf+1+OPT.vmd
    cb = 28 if OPT.own2 else 26
    assert fb <= cb
    bars(k, fb-zb)
    if OPT.zg:
        assert OPT.own2 == 3
        set_flag(k, 26, 3)
        bars(k, cb-fb)
        sample(k, 25)
        k.e("s_barrier")
        poll(k, 25, 1, val=4, pre=True)
        bars(k, 2)
        sample(k, 10)
        bars(k, 2)
        poll(k, 10, 1, val=16, pre=True)
        cb += 4
    else:
        set_flag(k, 10)
        bars(k, cb-fb)
        sample(k, 10)
        k.e("s_barrier")
        poll(k, 10, 1, val=16, pre=True)
    stamp(k, 8)
    if OPT.two & 2:
        bars(k, 62-cb)
        k.e("L_a_p5:")
        cnt_addr(k, 9, F_U, S_M); two_addr()
        two_sync(7, 15)
        bars(k, 3-OPT.solo)
        sample(k, 24)
        bars(k, 2)
        poll(k, 24, 1, val=7, pre=True)
    else:
        bars(k, 63-cb)
        set_flag(k, 9)
        k.e("L_a_p5:")
        poll(k, 9, 1, val=7 if OPT.sk else 14)
        stamp(k, 15)
        k.e("s_barrier")
    k.e("s_branch L_fin")
    k.e("L_a_helper:")
    bars(k, 3)
    k.e("s_waitcnt vmcnt(0)\ns_barrier")
    set_flag(k, 9)
    if OPT.hh:
        k.e(f"v_lshl_add_u32 v13, v15, 17, v14\ns_sleep {OPT.hhs}")
        validated(k, hg, range(65, 96, 2), 3, pre=False)
        hcomp(k)
        k.e(f"buffer_store_dwordx4 v[4:7], v3, {W}, s{S_T+15} offen sc1")
    k.e("s_barrier")
    if OPT.ct > 1: code_touch(k, "L_c_p3", 28, 44)
    if OPT.sk:
        xp_init(k)
        k.e(f"""v_mov_b32 v9, {F_Z + 14*FLS}
        s_mov_b64 exec, 1
        buffer_atomic_add v11, v9, {W}, 0 offen sc1
        s_mov_b64 exec, -1
        s_sleep 64""")
        poll(k, 9, 1, val=64)
    u_cnt(k)
    k.e("v_mov_b32 v11, 0")
    k.e("s_branch L_a_p5")

def swaps(p):
    return [f"v_permlane16_swap_b32 v{p}, v{p+2}", f"v_permlane16_swap_b32 v{p+1}, v{p+3}"]
def pack32(k, dst, a):
    cvt16(k, dst, a)
    for x in swaps(dst): k.e(x)
    for x in swaps(dst+4): k.e(x)

def gelu_quads(k, quads, t, post=None):
    Gs = []
    for gi, g in enumerate(range(0, len(quads), 2)):
        tt = t + 8*(gi & 1)
        P = [(y+2*i, cs+2*i, s, tt+4*j+2*i) for j, (y, cs, s) in enumerate(quads[g:g+2]) for i in range(2)]
        A = [f"v_pk_fma_f32 v[{y}:{y+1}], v[{cs}:{cs+1}], v[{s}:{s+1}], v[{y}:{y+1}] op_sel_hi:[1,0,1]" for y, cs, s, p in P]
        A += [f"v_pk_mul_f32 v[{p}:{p+1}], v[{y}:{y+1}], v[{y}:{y+1}]" for y, cs, s, p in P]
        A += [f"v_pk_fma_f32 v[{p}:{p+1}], v[{p}:{p+1}], v[{s+2}:{s+3}], v[{s}:{s+1}] op_sel:[0,0,1] op_sel_hi:[1,0,1]" for y, cs, s, p in P]
        A += [f"v_pk_mul_f32 v[{p}:{p+1}], v[{p}:{p+1}], v[{y}:{y+1}]" for y, cs, s, p in P]
        E = [f"v_exp_f32 v{tt+j}, v{tt+j}" for j in range(8)]
        D = [f"v_pk_fma_f32 v[{p}:{p+1}], v[{p}:{p+1}], v[{s+2}:{s+3}], v[{s+2}:{s+3}] op_sel:[0,1,1] op_sel_hi:[1,1,1]" for y, cs, s, p in P]
        R = [f"v_rcp_f32 v{tt+j}, v{tt+j}" for j in range(8)]
        M = [f"v_pk_mul_f32 v[{y}:{y+1}], v[{y}:{y+1}], v[{p}:{p+1}]" for y, cs, s, p in P]
        Gs.append((A, E, D, R, M))
    L = list(Gs[0][0])
    for g, (A, E, D, R, M) in enumerate(Gs):
        N = Gs[g+1][0] if g+1 < len(Gs) else []
        Q = post(g-1) if post and g else []
        L += E + N[:8] + Q[:4] + D + N[8:12] + R + N[12:] + Q[4:] + M
    if post: L += post(len(Gs)-1)
    for x in L: k.e(x)

def gelu_fill(y, cs, s, n, t):
    E = range(n); L = []
    L += [f"v_fmac_f32 v{y+j}, v{cs+j}, v{s}" for j in E]
    L += [f"v_mul_f32 v{t+j}, v{y+j}, v{y+j}" for j in E]
    L += [f"v_fma_f32 v{t+j}, v{t+j}, v{s+2}, v{s+1}" for j in E]
    L += [f"v_mul_f32 v{t+j}, v{t+j}, v{y+j}" for j in E]
    L += [f"v_exp_f32 v{t+j}, v{t+j}" for j in E]
    L += [f"v_fma_f32 v{t+j}, v{t+j}, v{s+3}, v{s+3}" for j in E]
    L += [f"v_rcp_f32 v{t+j}, v{t+j}" for j in E]
    L += [f"v_mul_f32 v{y+j}, v{t+j}, v{y+j}" for j in E]
    return L

def treduce(k, a):
    k.e(f"""s_nop 1
    v_permlane32_swap_b32 v{a}, v{a+2}
    v_permlane32_swap_b32 v{a+1}, v{a+3}
    v_add_f32 v{a}, v{a}, v{a+2}
    v_add_f32 v{a+1}, v{a+1}, v{a+3}
    s_nop 1
    v_permlane16_swap_b32 v{a}, v{a+1}
    v_add_f32 v{a}, v{a}, v{a+1}""")

NWARM = [8, 8, 8, 6]
def grp(k, g):
    if OPT.pads: k.e(f'GRP {g}')
def warm(k, grp):
    if not OPT.pads: return
    k.e("s_mov_b64 exec, 0")
    for i in range(NWARM[grp]): k.e(f"WARM {grp} {i}")
    k.e("s_mov_b64 exec, -1")

def consumer(k):
    c1, c2, c3, c4, c5 = cfgs()
    def regs(aS, aF, acc):
        R = Regs(); R.aS = aS; R.aF = aF; R.fr = 16; R.acc = acc; return R
    k.e(f"s_mov_b32 s{S_K}, {f2u(LOG2E)}\ns_mov_b32 s{S_K+1}, {f2u(LOG2E)}")
    c = c1; R = regs([8, 9], [10, 11, 12, 13], 64); C = Cons(k, c, R)
    k.e("s_waitcnt lgkmcnt(0)")
    mk_srd(k, SRD_B, P_X, 4*MB); mk_srd(k, SRD_W, P_WS, WS_END)
    if OPT.pads:
        for d in (SRD_S, SRD_F, SRD_A, SRD_D): mk_srd(k, d, P_X, 0)
    stamp(k, 0)
    consumer_addr(k, c, R)
    C.zero()
    aWP=240; aXS=241; aCQ=242; aCV=243; aVS=244; aPW=245; aVX=247; aVW=248; aPR=249; L16=15
    tr_lane_base(k, aWP, 3, 9, rowshift=6, swz=False)
    k.e(f"""s_lshl_b32 s{S_T}, s{S_WN}, 11
    s_add_u32 s{S_T}, s{S_T}, {L_WPHI}
    v_add_u32 v{aWP}, s{S_T}, v{aWP}
    v_lshrrev_b32 v3, 4, v1
    v_and_b32 v4, 15, v1
    s_lshl_b32 s{S_T}, s{S_WM}, 8
    s_add_u32 s{S_T}, s{S_T}, {L_XS}
    v_lshl_add_u32 v{aXS}, v4, 2, s{S_T}
    v_lshl_add_u32 v{aVS}, v3, 4, s{S_T}
    s_mul_i32 s{S_T+1}, s{S_WN}, 384
    s_add_u32 s{S_T+1}, s{S_T+1}, {L_CQ}
    v_lshl_add_u32 v{aCQ}, v3, 4, s{S_T+1}
    v_and_b32 v7, 3, v4
    v_bfe_u32 v5, v4, 2, 1
    v_lshl_or_b32 v7, v5, 3, v7
    v_bfe_u32 v5, v4, 3, 1
    v_lshl_or_b32 v7, v5, 2, v7
    v_lshl_add_u32 v{aCV}, v7, 2, s{S_T+1}
    v_lshrrev_b32 v3, 5, v1
    v_and_b32 v4, 31, v1
    v_lshlrev_b32 v5, 2, v3
    v_xor_b32 v5, v4, v5
    v_lshlrev_b32 v5, 4, v5
    v_lshl_add_u32 v5, v3, 9, v5
    s_lshl_b32 s{S_T}, s{S_WN}, 14
    s_add_u32 s{S_T}, s{S_T}, {L_PHK}
    s_lshl_b32 s{S_T+1}, s{S_WM}, 13
    s_add_u32 s{S_T+2}, s{S_T}, s{S_T+1}
    v_add_u32 v{aPW}, s{S_T+2}, v5
    v_xor_b32 v{aPW+1}, 128, v{aPW}
    v_lshlrev_b32 v{L16}, 4, v1
    s_lshl_b32 s{S_T+3}, s{S_WN}, 13
    s_add_u32 s{S_T+3}, s{S_T+3}, {L_VX}
    v_add_u32 v{aVX}, s{S_T+3}, v{L16}
    s_lshl_b32 s{S_T+4}, s{S_WM}, 12
    v_add_u32 v{aVW}, s{S_T+4}, v{aVX}
    v_lshlrev_b32 v14, 13, v3
    v_lshl_add_u32 v14, v4, 4, v14
    v_lshlrev_b32 v251, 8, v3
    v_lshlrev_b32 v252, 4, v3""")
    blk_tr_base(k, aPR, 2, 3, 3)
    k.e(f"""s_lshl_b32 s{S_T+1}, s{S_WM}, 11
    s_add_u32 s{S_T+1}, s{S_T+1}, s{S_T}
    v_add_u32 v{aPR}, s{S_T+1}, v{aPR}
    v_xor_b32 v{aPR+1}, 64, v{aPR}""")
    ONES=4
    for i in range(4): k.e(f"v_mov_b32 v{ONES+i}, 0x3f803f80")
    k.e(f"""s_lshl_b32 s{S_T}, s{S_WN}, 1
    s_add_u32 s{S_T}, s{S_T}, s{S_WM}
    s_lshl_b32 s{S_T+1}, s{S_N}, 2
    s_add_u32 s{S_T}, s{S_T}, s{S_T+1}
    s_lshl_b32 s{S_T+2}, s{S_T}, 15
    s_lshl_b32 s{S_T+1}, s{S_M}, 9
    s_add_u32 s{S_T+2}, s{S_T+2}, s{S_T+1}
    s_add_u32 s{S_T+2}, s{S_T+2}, {WS_KVP}
    s_add_u32 s{S_T+3}, s{S_T+2}, 16384
    s_lshl_b32 s{S_T+4}, s{S_T}, 10
    s_lshl_b32 s{S_T+1}, s{S_M}, 4
    s_add_u32 s{S_T+4}, s{S_T+4}, s{S_T+1}
    s_add_u32 s{S_T+4}, s{S_T+4}, {WS_ZP}
    s_lshl_b32 s{S_T}, s{S_N}, 1
    s_add_u32 s{S_T}, s{S_T}, s{S_WN}
    s_lshl_b32 s{S_T+12}, s{S_M}, 2
    s_lshl_b32 s{S_T+1}, s{S_WM}, 1
    s_add_u32 s{S_T+12}, s{S_T+12}, s{S_T+1}
    s_lshl_b32 s{S_T+12}, s{S_T+12}, 16
    s_lshl_b32 s{S_T+1}, s{S_T}, 11
    s_add_u32 s{S_T+12}, s{S_T+12}, s{S_T+1}
    s_add_u32 s{S_T+12}, s{S_T+12}, {WS_O}
    s_add_u32 s{S_T+13}, s{S_T+12}, 65536""")
    warm(k, 0)
    k.e("s_barrier")
    stamp(k, 1)
    K0,K1,V0,V1,Q0,Q1 = 64,80,96,112,128,144
    WP=224; ST=232; KB=24; VB=40; PK=160; NM=192; RSD=208; CK=160; CV=2
    tl = [f"ds_read2_b32 v[{ST+2*t}:{ST+2*t+1}], v{aXS} offset0:{16*t} offset1:{128+16*t}" for t in range(4)]
    tl += [f"ds_read_b128 v[{CK+4*fh}:{CK+4*fh+3}], v{aCQ} offset:{128+64*fh}" for fh in range(2)]
    tl += [f"ds_read_b64_tr_b16 v[{WP+4*cc+2*rd}:{WP+4*cc+2*rd+1}], v{aWP} offset:{cc*1024+rd*256}" for cc in range(2) for rd in range(2)]
    tl += [f"ds_read2_b32 v[{CV}:{CV+1}], v{aCV} offset0:64 offset1:80"]
    C.first_reads(); C.loop4(5, 0); C.loop(1, next_cons=False, tail=tl, slot=0)
    stamp(k, 2)
    k.e("s_waitcnt lgkmcnt(5)")
    for t in range(4):
        k.e(f"ds_read_b128 v[{NM+4*t}:{NM+3+4*t}], v{aVS} offset:{64*t}\nds_read_b128 v[{RSD+4*t}:{RSD+3+4*t}], v{aVS} offset:{512+64*t}")
    def corrT(a, cs, st, t):
        for fh in range(2):
            P = [(a+8*fh+4*sh+2*i, cs+4*fh+2*i, ST+2*(2*st+sh), t+4*sh+2*i) for sh in range(2) for i in range(2)]
            for y, c_, s_, p in P: k.e(f"v_pk_mul_f32 v[{p}:{p+1}], v[{c_}:{c_+1}], v[{s_}:{s_+1}] op_sel_hi:[1,0]")
            for y, c_, s_, p in P: k.e(f"v_pk_fma_f32 v[{y}:{y+1}], v[{y}:{y+1}], v[{s_}:{s_+1}], v[{p}:{p+1}] op_sel:[0,1,0] op_sel_hi:[1,1,1]")
    def corrN(a, st, t):
        for sh in range(2):
            P = [(a+8*sh+4*dh+2*i, 4*(2*st+sh)+2*i, dh, t+4*dh+2*i) for dh in range(2) for i in range(2)]
            for y, o_, dh, p in P: k.e(f"v_pk_mul_f32 v[{p}:{p+1}], v[{NM+o_}:{NM+o_+1}], v[{CV}:{CV+1}] op_sel:[0,{dh}] op_sel_hi:[1,{dh}]")
            for y, o_, dh, p in P: k.e(f"v_pk_fma_f32 v[{y}:{y+1}], v[{y}:{y+1}], v[{RSD+o_}:{RSD+o_+1}], v[{p}:{p+1}]")
    def pmf(P, B, st):
        k.e(f"{MF} v[{P+16*st}:{P+16*st+15}], v[{WP}:{WP+3}], v[{B+8*st}:{B+8*st+3}], 0")
        k.e(f"{MF} v[{P+16*st}:{P+16*st+15}], v[{WP+4}:{WP+7}], v[{B+8*st+4}:{B+8*st+7}], v[{P+16*st}:{P+16*st+15}]")
    corrT(K0, CK, 0, 16); corrT(K1, CK, 1, 16)
    pack32(k, KB, K0); pack32(k, KB+8, K1)
    k.e("s_waitcnt lgkmcnt(0)")
    if OPT.kst: stamp(k, 23)
    pmf(PK, KB, 0); pmf(PK, KB, 1)
    corrN(V0, 0, 16); corrN(V1, 1, 16)
    pack32(k, VB, V0); pack32(k, VB+8, V1)
    if OPT.kst: stamp(k, 24)
    CK = 192
    EP=64; EN=80; T=56
    def wr(st, O, nb): return [f"ds_write_b128 v{aPW+hh}, v[{O+4*hh}:{O+4*hh+3}] offset:{st*4096+nb*2048+hh*1024}" for hh in range(2)]
    inj = [f"ds_write_b128 v{aVW}, v[{VB+4*i}:{VB+4*i+3}] offset:{i*1024}" for i in range(4)]
    inj += [f"ds_read_b128 v[{CK+4*fh}:{CK+4*fh+3}], v{aCQ} offset:{64*fh}" for fh in range(2)]
    softmax2(k, (PK, 64, 80, 56, 160, 168), (PK+16, 96, 112, 60, 176, 184), inject=inj,
             wA=(wr(0, 160, 0), wr(0, 168, 1)), wB=(wr(1, 176, 0), wr(1, 184, 1)))
    if OPT.kst: stamp(k, 25)
    k.e("s_waitcnt lgkmcnt(0)\ns_barrier")
    stamp(k, 3)
    AF=64; VF_=96; KV=160; ZZ=176
    def rdkc(kc):
        off = (kc>>1)*4096 + (kc&1)*256
        k.e(f"""ds_read_b64_tr_b16 v[{AF+4*kc}:{AF+4*kc+1}], v{aPR} offset:{off}
        ds_read_b64_tr_b16 v[{AF+4*kc+2}:{AF+4*kc+3}], v{aPR+1} offset:{off}
        ds_read_b128 v[{VF_+4*kc}:{VF_+4*kc+3}], v{aVX} offset:{kc*1024}""")
    for kc in range(5): rdkc(kc)
    for kc in range(8):
        k.e(f"s_waitcnt lgkmcnt({3*(min(kc+5, 8)-kc-1)})")
        k.e(f"{MF} v[{KV}:{KV+15}], v[{AF+4*kc}:{AF+4*kc+3}], v[{VF_+4*kc}:{VF_+4*kc+3}], {'0' if kc==0 else f'v[{KV}:{KV+15}]'}")
        if kc+5 < 8: rdkc(kc+5)
    for kc in range(8):
        k.e(f"{MF} v[{ZZ}:{ZZ+15}], v[{AF+4*kc}:{AF+4*kc+3}], v[{ONES}:{ONES+3}], {'0' if kc==0 else f'v[{ZZ}:{ZZ+15}]'}")
        if kc == 2:
            k.e("s_nop 7\ns_nop 1")
            for i in range(4): k.e(f"v_cvt_pk_bf16_f32 v{212+i}, v{KV+2*i}, v{KV+2*i+1}")
            k.e(f"buffer_store_dwordx4 v[212:215], v14, {W}, s{S_T+2} offen sc1")
        if kc == 3:
            for i in range(4, 8): k.e(f"v_cvt_pk_bf16_f32 v{212+i}, v{KV+2*i}, v{KV+2*i+1}")
            k.e(f"buffer_store_dwordx4 v[216:219], v14, {W}, s{S_T+3} offen sc1")
    k.e("s_barrier")
    k.e("s_nop 7\ns_nop 2")
    cvt16(k, 16, ZZ)
    k.e(f"""s_mov_b32 exec_lo, 1
    s_mov_b32 exec_hi, 1
    buffer_store_dwordx4 v[16:19], v251, {W}, s{S_T+4} offen sc1
    buffer_store_dwordx4 v[20:23], v251, {W}, s{S_T+4} offen offset:512 sc1
    s_mov_b64 exec, -1""")
    stamp(k, 4)
    QB=32; PQ=160
    def p25_addr():
        tile_map(k, 4, 8, 16)
        k.e(f"""s_lshl_b32 s{S_T}, s{S_M}, 2
        s_add_u32 s{S_T}, s{S_T}, s{S_WAVE}
        s_lshl_b32 s{S_T+1}, s{S_T}, 16
        s_lshl_b32 s{S_T+2}, s{S_N}, 7
        s_add_u32 s{S_T+2}, s{S_T+2}, s{S_T+1}
        v_and_b32 v4, 31, v1
        v_lshlrev_b32 v14, 11, v4
        v_lshrrev_b32 v5, 5, v1
        v_lshl_add_u32 v14, v5, 4, v14
        v_add_u32 v14, s{S_T+2}, v14""")
    corrT(Q0, CK, 0, 48); corrT(Q1, CK, 1, 48)
    pack32(k, QB, Q0); pack32(k, QB+8, Q1)
    pmf(PQ, QB, 0); pmf(PQ, QB, 1)
    p25_addr()
    RS = 224
    for i in range(4): k.e(f"buffer_load_dwordx4 v[{RS+4*i}:{RS+4*i+3}], v14, {srd(SRD_B)}, 0 offen offset:{32*i}")
    k.e(f"""s_lshl_b32 s{S_T+2}, s{S_N}, 12
    s_add_u32 s{S_T+2}, s{S_T+2}, s{S_T+1}
    s_add_u32 s{S_T+2}, s{S_T+2}, {WS_H}
    v_add_u32 v7, s{S_T+2}, v{L16}
    s_lshl_b32 s{S_T}, s{S_T}, 8
    s_lshl_b32 s{S_T+1}, s{S_N}, 14
    s_add_u32 s{S_T}, s{S_T}, s{S_T+1}
    s_add_u32 s{S_T}, s{S_T}, {WS_HST}
    v_lshlrev_b32 v9, 3, v4
    v_add_u32 v9, s{S_T}, v9
    s_lshl_b32 s{S_T}, s{S_WN}, 12
    v_add_u32 v2, s{S_T}, v{L16}
    s_lshl_b32 s{S_T}, s{S_WN}, 7
    v_add_u32 v3, s{S_T}, v252""")
    BB = 240
    mk_srd(k, SRD_A, P_BSP, 4096)
    k.e(f"""v_and_b32 v4, 15, v1
    v_lshlrev_b32 v4, 1, v4
    s_lshl_b32 s{S_T+2}, s{S_M}, 8
    s_lshl_b32 s{S_T+3}, s{S_WM}, 7
    s_add_u32 s{S_T+2}, s{S_T+2}, s{S_T+3}""")
    for t in range(4): k.e(f"buffer_load_ushort v{BB+t}, v4, {srd(SRD_A)}, s{S_T+2} offen offset:{32*t}")
    PH=128; KF=16; ZF=32; NUM=96; DEN=192
    softmax2(k, (PQ, 64, 80, 56, PH, PH+8), (PQ+16, 96, 112, 60, PH+16, PH+24))
    def res_init():
        for j in range(4):
            for x in swaps(RS+4*j): k.e(x)
        for i in range(16): unpack(k, 64+2*i, 65+2*i, RS+i)
    R25 = regs([8], [10, 11, 12, 13], 64); R25.s2 = 96
    consumer_addr(k, c2, R25, t=48)
    k.e("s_waitcnt vmcnt(0)")
    res_init()
    stamp(k, 21)
    warm(k, 1); grp(k, 1)
    k.e("s_barrier")
    stamp(k, 5)
    for i in range(4): k.e(f"ds_read_b128 v[{ZF+4*i}:{ZF+4*i+3}], v3 offset:{L_Z+i*32}")
    for i in range(4): k.e(f"ds_read_b128 v[{KF+4*i}:{KF+4*i+3}], v2 offset:{L_KV+i*1024}")
    for st in range(2):
        for A_, D_ in ((ZF, DEN), (KF, NUM)):
            if st == 0: k.e(f"s_waitcnt lgkmcnt({4 if A_ == ZF else 0})")
            for i in range(4):
                b = PH+16*st+4*i
                k.e(f"{MF} v[{D_+16*st}:{D_+16*st+15}], v[{A_+4*i}:{A_+4*i+3}], v[{b}:{b+3}], {'0' if i==0 else f'v[{D_+16*st}:{D_+16*st+15}]'}")
    k.e("s_nop 0")
    for st in range(2):
        d = DEN+16*st; n = NUM+16*st; o = 160+8*st
        k.e(f"v_add_f32 v{d}, {f2u(1e-6)}, v{d}\nv_rcp_f32 v{d}, v{d}\ns_nop 0")
        for hh in range(2):
            for i in range(4*hh, 4*hh+4): k.e(f"v_pk_mul_f32 v[{n+2*i}:{n+2*i+1}], v[{n+2*i}:{n+2*i+1}], v[{d}:{d+1}] op_sel_hi:[1,0]")
            for i in range(4*hh, 4*hh+4): k.e(f"v_cvt_pk_bf16_f32 v{o+i}, v{n+2*i}, v{n+2*i+1}")
            k.e(f"buffer_store_dwordx4 v[{o+4*hh}:{o+4*hh+3}], v{L16}, {W}, s{S_T+12+st} offen offset:{1024*hh} sc1")
    C = Cons(k, c2, R25)
    if OPT.two & 4: if_par(k, 0, "s_waitcnt vmcnt(0)", S_CLS)
    else: k.e("s_waitcnt vmcnt(0)")
    k.e("s_barrier")
    stamp(k, 6)
    warm(k, 2)
    k.e("s_waitcnt vmcnt(0)\ns_barrier\ns_barrier")
    stamp(k, 7)
    if OPT.st4 & 1:
        C.first_reads()
        if c2.chain:
            C.loop4(3, 0)
            for j in range(3): C.loop(1, slot=j)
            C.loop(1, slot=3, next_cons=False)
        else:
            C.loopu(5, 3); C.loop(1, next_cons=False)
    else:
        C.first_reads(); C.loop(15); C.loop(1, next_cons=False)
    stamp(k, 8)
    A = 64
    def out4(dst, store):
        k.e("s_nop 1")
        for i in range(4): k.e(f"v_cvt_pk_bf16_f32 v{dst+i}, v{A+2*i}, v{A+2*i+1}")
        for j in range(4):
            if j < 3:
                for i in range(4*j+4, 4*j+8): k.e(f"v_cvt_pk_bf16_f32 v{dst+i}, v{A+2*i}, v{A+2*i+1}")
            for x in swaps(dst+4*j): k.e(x)
            k.e(store(dst+4*j, j))
    out4(RS, lambda r, j: f"buffer_store_dwordx4 v[{r}:{r+3}], v7, {W}, 0 offen offset:{1024*j} sc1")
    for i in range(16): unpack(k, A+2*i, A+2*i+1, RS+i)
    k.e(f"v_pk_add_f32 v[20:21], v[{A}:{A+1}], v[{A+2}:{A+3}]\nv_pk_add_f32 v[22:23], v[{A+4}:{A+5}], v[{A+6}:{A+7}]")
    for i in range(4, 16):
        t = 20 + 2*(i & 1); k.e(f"v_pk_add_f32 v[{t}:{t+1}], v[{t}:{t+1}], v[{A+2*i}:{A+2*i+1}]")
    k.e("v_pk_add_f32 v[20:21], v[20:21], v[22:23]\nv_add_f32 v20, v20, v21")
    xswap_sum1(k, 20, 21)
    k.e(f"v_mul_f32 v20, {f2u(1/64.)}, v20")
    for i in range(16):
        k.e(f"v_pk_add_f32 v[{A+2*i}:{A+2*i+1}], v[{A+2*i}:{A+2*i+1}], v[20:21] op_sel_hi:[1,0] neg_lo:[0,1] neg_hi:[0,1]")
    k.e(f"v_pk_mul_f32 v[22:23], v[{A}:{A+1}], v[{A}:{A+1}]\nv_pk_mul_f32 v[24:25], v[{A+2}:{A+3}], v[{A+2}:{A+3}]")
    for i in range(2, 16):
        t = 22 + 2*(i & 1); k.e(f"v_pk_fma_f32 v[{t}:{t+1}], v[{A+2*i}:{A+2*i+1}], v[{A+2*i}:{A+2*i+1}], v[{t}:{t+1}]")
    k.e("v_pk_add_f32 v[22:23], v[22:23], v[24:25]\nv_add_f32 v22, v22, v23")
    xswap_sum1(k, 22, 23)
    k.e(f"""v_mov_b32 v21, v22
    s_mov_b32 exec_hi, 0
    buffer_store_dwordx2 v[20:21], v9, {W}, 0 offen sc1
    s_mov_b32 exec_hi, -1""")
    k.e("s_cmp_ge_u32 s2, 224\ns_cbranch_scc1 L_c_helper")
    if OPT.two & 1: if_par(k, 0, "s_waitcnt vmcnt(1)")
    else: k.e("s_waitcnt vmcnt(1)")
    k.e("s_barrier")
    stamp(k, 9)
    k.e("L_c_p3:")
    tile_map(k, 4, 7, 14)
    Ra = regs([2], [3, 4, 5, 6], 128); Rb = regs([2], [3, 4, 5, 6], 64); R4 = regs([8, 9], [10, 11], 128)
    Ca = Cons(k, c3, Ra); Cb = Cons(k, c3, Rb); C4 = Cons(k, c4, R4)
    consumer_addr(k, c3, Ra, t=32, slot=0); consumer_addr(k, c4, R4, slot=0, t=32, setslot=False)
    Ca.zero(); Cb.zero()
    aCS=7; aZN=12; aHS=13; aZS=14; aZP=252; CS=192; HS=208; ZS=244
    k.e("v_and_b32 v32, 15, v1")
    k.e(f"""s_lshl_b32 s{S_T}, s{S_WM}, 6
    v_add_u32 v32, s{S_T}, v32
    v_lshlrev_b32 v{aZS}, 3, v32
    v_add_u32 v{aZS}, {L_ZS}, v{aZS}
    v_lshlrev_b32 v{aHS}, 4, v32
    v_add_u32 v{aHS}, {L_HS}, v{aHS}
    v_lshrrev_b32 v34, 4, v1
    s_lshl_b32 s{S_T}, s{S_WN}, 8
    s_add_u32 s{S_T}, s{S_T}, {L_CS}
    v_lshl_add_u32 v{aCS}, v34, 4, s{S_T}
    v_lshrrev_b32 v34, 5, v1
    v_lshlrev_b32 v34, 6, v34
    v_xor_b32 v{aZN}, v34, v{L16}
    s_lshl_b32 s{S_T}, s{S_WM}, 9
    s_lshl_b32 s{S_T+1}, s{S_WN}, 10
    s_add_u32 s{S_T}, s{S_T}, s{S_T+1}
    s_add_u32 s{S_T}, s{S_T}, {L_ZP}
    v_lshl_add_u32 v{aZP}, v1, 3, s{S_T}
    s_lshl_b32 s{S_T+12}, s{S_N}, 19
    s_lshl_b32 s{S_T+1}, s{S_M}, 15
    s_add_u32 s{S_T+12}, s{S_T+12}, s{S_T+1}
    s_lshl_b32 s{S_T+1}, s{S_WM}, 14
    s_add_u32 s{S_T+12}, s{S_T+12}, s{S_T+1}
    s_lshl_b32 s{S_T+1}, s{S_WN}, 12
    s_add_u32 s{S_T+12}, s{S_T+12}, s{S_T+1}
    s_add_u32 s{S_T+12}, s{S_T+12}, {WS_Z2N}
    s_add_u32 s{S_T+13}, s{S_T+12}, 8192
    s_lshl_b32 s{S_T}, s{S_M}, 2
    s_lshl_b32 s{S_T+1}, s{S_WM}, 1
    s_add_u32 s{S_T}, s{S_T}, s{S_T+1}
    s_mul_i32 s{S_T}, s{S_T}, 112
    s_lshl_b32 s{S_T+1}, s{S_N}, 3
    s_add_u32 s{S_T}, s{S_T}, s{S_T+1}
    s_lshl_b32 s{S_T+1}, s{S_WN}, 2
    s_add_u32 s{S_T}, s{S_T}, s{S_T+1}
    s_lshl_b32 s{S_T}, s{S_T}, 10
    s_add_u32 s{S_T+14}, s{S_T}, {WS_U}
    s_add_u32 s{S_T+15}, s{S_T+14}, {112*1024}""")
    warm(k, 3)
    k.e("s_waitcnt vmcnt(0)\ns_barrier\ns_barrier")
    stamp(k, 10)
    rcs = lambda half: [f"ds_read_b128 v[{CS+4*f}:{CS+4*f+3}], v{aCS} offset:{half*512 + f*64}" for f in range(4)]
    rhs = [f"ds_read_b128 v[{HS+4*t}:{HS+4*t+3}], v{aHS} offset:{t*256}" for t in range(4)]
    Ca.first_reads_static(2); Ca.loop4(3, 2)
    for j in range(3): Ca.loop(1, slot=(2+j) % 4)
    Ca.loop(1, next_cons=False, tail=rhs+rcs(1), slot=1)
    stamp(k, 11)
    k.e("s_waitcnt lgkmcnt(0)")
    if not c3.chain: Cb.first_reads_static(2)
    zq = [(Ca.sub(t, f), CS+4*f, HS+4*t) for t in range(4) for f in range(4)]
    def zpost(g):
        t = g >> 1; ys = [zq[2*g][0], zq[2*g][0]+2, zq[2*g+1][0], zq[2*g+1][0]+2]; L = []
        for i, y in enumerate(ys):
            if g & 1 == 0 and i == 0:
                L.append(f"v_pk_mul_f32 v[62:63], v[{y}:{y+1}], v[{y}:{y+1}]")
            elif g & 1 == 0 and i == 1:
                L += [f"v_pk_add_f32 v[60:61], v[{ys[0]}:{ys[0]+1}], v[{y}:{y+1}]", f"v_pk_fma_f32 v[62:63], v[{y}:{y+1}], v[{y}:{y+1}], v[62:63]"]
            else:
                L += [f"v_pk_add_f32 v[60:61], v[60:61], v[{y}:{y+1}]", f"v_pk_fma_f32 v[62:63], v[{y}:{y+1}], v[{y}:{y+1}], v[62:63]"]
        if g & 1: L += [f"v_add_f32 v{ZS+t}, v60, v61", f"v_add_f32 v{ZS+4+t}, v62, v63"]
        return L
    k.e("s_nop 3")
    gelu_quads(k, zq, 32, post=zpost)
    if c3.chain: Cb.first_reads_static(2)
    for x in rcs(0): k.e(x)
    a_, b_ = ZS, ZS+4
    k.e(f"""v_permlane32_swap_b32 v{a_}, v{a_+2}
    v_permlane32_swap_b32 v{a_+1}, v{a_+3}
    v_permlane32_swap_b32 v{b_}, v{b_+2}
    v_permlane32_swap_b32 v{b_+1}, v{b_+3}
    v_pk_add_f32 v[{a_}:{a_+1}], v[{a_}:{a_+1}], v[{a_+2}:{a_+3}]
    v_pk_add_f32 v[{b_}:{b_+1}], v[{b_}:{b_+1}], v[{b_+2}:{b_+3}]
    s_nop 0
    v_permlane16_swap_b32 v{a_}, v{a_+1}
    v_permlane16_swap_b32 v{b_}, v{b_+1}
    v_add_f32 v{a_+2}, v{a_}, v{a_+1}
    v_add_f32 v{b_}, v{b_}, v{b_+1}
    v_mul_f32 v{a_}, {f2u(1/64.)}, v{a_+2}
    v_fma_f32 v{a_+1}, -v{a_}, v{a_+2}, v{b_}
    v_max_f32 v{a_+1}, 0, v{a_+1}
    ds_write_b64 v{aZP}, v[{ZS}:{ZS+1}]
    s_waitcnt lgkmcnt(0)""")
    if OPT.gb: k.e("s_barrier")
    grp(k, 2)
    stamp(k, 12)
    g = OPT.gat
    n1 = g+1+OPT.zsp-16+1
    def norm_tile(st, ft):
        a = Ca.acc(st, ft); L = []
        for fh in range(2):
            for sh in range(2):
                s = ZS+2*(2*st+sh)
                L += [f"v_fma_f32 v{a+8*fh+4*sh+i}, v{a+8*fh+4*sh+i}, v{s+1}, v{s}" for i in range(4)]
        L += [f"v_cvt_pk_bf16_f32 v{a+8*fh+i}, v{a+8*fh+2*i}, v{a+8*fh+2*i+1}" for fh in range(2) for i in range(4)]
        for fh in range(2):
            L += swaps(a+8*fh)
            L += [f"buffer_store_dwordx4 v[{a+8*fh}:{a+8*fh+3}], v{aZN}, {W}, s{S_T+12+st} offen offset:{ft*2048+fh*1024} sc1"]
        return L
    NL = sum((norm_tile(st, ft) for st in range(2) for ft in range(2)), [])
    nf = OPT.nst
    zl = [f"v_lshlrev_b32 v{C4.sub(t, f)+i}, 16, v{BB+t}" for f in range(4) for t in range(4) for i in range(4)]
    vm = n1+nf+OPT.vmd
    nz = 15-vm
    rz = [f"ds_read_b64 v[{ZS+2*t}:{ZS+2*t+1}], v{aZS} offset:{t*128}" for t in range(4)]
    for j in range(16):
        kw = dict(slot=(2+j) % 4)
        if j == n1-1: kw['tail'] = rz
        if j == n1:
            k.e("s_waitcnt lgkmcnt(4)"); stamp(k, 13)
            if OPT.nprio: k.e("s_setprio 3")
            if nf == 0:
                pend = []
                for st in range(2):
                    for f in range(4):
                        a = Ca.acc(st, f >> 1) + 8*(f & 1)
                        for i in range(4):
                            s_ = ZS+2*(2*st+(i >> 1))
                            k.e(f"v_pk_fma_f32 v[{a+2*i}:{a+2*i+1}], v[{a+2*i}:{a+2*i+1}], v[{s_}:{s_+1}], v[{s_}:{s_+1}] op_sel:[0,1,0] op_sel_hi:[1,1,0]")
                        for x in pend: k.e(x)
                        for i in range(4): k.e(f"v_cvt_pk_bf16_f32 v{a+i}, v{a+2*i}, v{a+2*i+1}")
                        pend = swaps(a) + [f"buffer_store_dwordx4 v[{a}:{a+3}], v{aZN}, {W}, s{S_T+12+st} offen offset:{f*1024} sc1"]
                k.e("s_nop 0")
                for x in pend: k.e(x)
        if OPT.nprio and j == n1+nf: k.e(f"s_setprio {OPT.pc}")
        if n1 <= j < n1+nf: kw['fillers'] = NL[len(NL)*(j-n1)//nf: len(NL)*(j-n1+1)//nf]
        if j == vm: kw['pre_barrier'] = "vm"
        if j > vm: kw['fillers'] = zl[64*(j-vm-1)//nz: 64*(j-vm)//nz]
        if j == 15: kw['next_cons'] = C4; kw['nslot'] = 2
        Cb.loop(1, **kw)
    stamp(k, 14)
    j = 0
    if not OPT.z1fill:
        OPT.dg |= 1
        gelu_quads(k, [(Cb.sub(t, f), CS+4*f, HS+4*t) for f in range(4) for t in Cb.order(f)], 32)
        stamp(k, 15)
    if OPT.p4loop:
        C4.loop4(8, 2); k.e("s_waitcnt lgkmcnt(0)")
    UO = 192
    def uepi(f, st, pk):
        a = C4.acc(st, f >> 1) + 8*(f & 1); z = Cb.acc(st, f >> 1) + 8*(f & 1); o = z
        L = [f"v_pk_mul_f32 v[{a+2*i}:{a+2*i+1}], v[{a+2*i}:{a+2*i+1}], v[{z+2*i}:{z+2*i+1}]" for i in range(4)] if pk else [f"v_mul_f32 v{a+i}, v{a+i}, v{z+i}" for i in range(8)]
        Cv = [f"v_cvt_pk_bf16_f32 v{o+i}, v{a+2*i}, v{a+2*i+1}" for i in range(4)]
        return L, Cv, swaps(o) + [f"buffer_store_dwordx4 v[{o}:{o+3}], v{L16}, {W}, s{S_T+14+st} offen offset:{f*1024} sc1"]
    ne = OPT.ue if c4.chain else 0
    pend = []
    for f in range(4):
        for t in Cb.order(f):
            for i in range(2):
                fl = gelu_fill(Cb.sub(t, f)+2*i, CS+4*f+2*i, HS+4*t, 2, ZS)
                if j == 31:
                    for fe in range(ne):
                        fl.append(8*(fe+1) + OPT.ug)
                        for st in ((0, 1) if fe % 2 == 0 else (1, 0)):
                            L_, Cv, P_ = uepi(fe, st, False)
                            fl += L_ + pend + Cv; pend = P_
                C4.loop(1, fillers=fl, budget=OPT.bud, next_cons=(False if j == 31 else None), slot=(2+j) % 4)
                j += 1
                if j == 18: grp(k, 3)
    stamp(k, 16)
    if ne == 3: k.e("s_nop 1")
    for f in range(ne, 4):
        for st in range(2):
            L_, Cv, P_ = uepi(f, st, True)
            for x in L_ + pend + Cv: k.e(x)
            pend = P_
    k.e("s_nop 0")
    for x in pend: k.e(x)
    if OPT.two & 2:
        k.e("L_c_p5:")
        if_par(k, 0, "s_waitcnt vmcnt(0)")
        k.e("s_barrier")
        stamp(k, 17)
    else:
        k.e("s_waitcnt vmcnt(0)\ns_barrier")
        stamp(k, 17)
        k.e("L_c_p5:")
    p25_addr()
    if OPT.sk:
        R5 = regs([8], [10, 11, 12, 13], 96)
        if OPT.bu5: R5.nfr = 80
        R5.s2 = 192
        C = Cons(k, c5, R5)
        consumer_addr(k, c5, R5, t=48, slot=0)
        A = 128
        for j in range(4):
            for x in swaps(RS+4*j): k.e(x)
        for i in range(16): unpack(k, A+2*i, A+1+2*i, RS+i)
        for i in range(96, 128, 2): k.e(f"v_mov_b64 v[{i}:{i+1}], 0")
        k.e(f"""s_lshl_b32 s{S_T+12}, s2, 2
        s_add_u32 s{S_T+12}, s{S_T+12}, s{S_WAVE}
        s_lshl_b32 s{S_T+12}, s{S_T+12}, 12
        s_xor_b32 s{S_T+13}, s{S_T+12}, 16384
        s_add_u32 s{S_T+12}, s{S_T+12}, {WS_XP}
        s_add_u32 s{S_T+13}, s{S_T+13}, {WS_XP}""")
        mk_srd(k, SRD_B, P_OUT, 4*MB)
        if OPT.ot:
            k.e(f"""s_mul_i32 s{S_T}, s{S_WAVE}, {32*144}
            s_add_u32 s{S_T}, s{S_T}, 65536
            v_and_b32 v2, 15, v1
            v_mul_u32_u24 v5, 144, v2
            v_lshrrev_b32 v2, 4, v1
            v_lshl_add_u32 v5, v2, 3, v5
            v_add_u32 v5, s{S_T}, v5
            v_lshrrev_b32 v2, 3, v1
            v_and_b32 v3, 7, v1
            v_mul_u32_u24 v6, 144, v2
            v_lshl_add_u32 v6, v3, 4, v6
            v_add_u32 v6, s{S_T}, v6
            v_lshlrev_b32 v7, 11, v2
            v_lshl_add_u32 v7, v3, 4, v7
            s_mov_b32 s{S_T+14}, s{S_T+2}""")
        k.e("s_waitcnt vmcnt(0)\ns_barrier\ns_barrier")
        stamp(k, 18)
        snd = []
        for j in range(4):
            snd += [f"v_cvt_pk_bf16_f32 v{176+i}, v{96+2*i}, v{97+2*i}" for i in range(4*j, 4*j+4)]
            snd += [f"buffer_store_dwordx4 v[{176+4*j}:{179+4*j}], v{L16}, {W}, s{S_T+12} offen offset:{1024*j} sc1"]
        xl = [f"buffer_load_dwordx4 v[{80+4*j}:{83+4*j}], v{L16}, {W}, s{S_T+13} offen offset:{1024*j} sc1" for j in range(4)]
        def xg():
            for x in xl: k.e(x)
        if OPT.solo:
            import copy
            cs_ = copy.copy(c5); cs_.ftiles = [(1,0),(1,1)]; cs_.TN = 2; cs_.orient = ['T','T']; cs_.pb = OPT.pb2; cs_.cap2 = True; cs_.jorder = None
            Rs = regs([8], [10, 11, 12, 13], 128); Rs.s2 = 192
            Cs = Cons(k, cs_, Rs)
            C.first_reads_static(2); C.loop4(2, 2)
            for j in range(3): C.loop(1, slot=(2+j) % 4)
            C.loop(1, slot=1, next_cons=Cs, nslot=2, fillers=snd + ["PAD"]*OPT.jpad, fstart=OPT.fs5, budget=12)
            for j in range(4):
                Cs.loop(1, slot=(2+j) % 4, next_cons=(False if j == 3 else None), fillers=(xl if j == OPT.xq else None), budget=12)
            stamp(k, 19)
            if OPT.xq < 4: k.e("s_waitcnt vmcnt(0)")
            validated(k, xg, range(80, 96), 2, pre=(OPT.xq < 4))
        else:
            C.first_reads_static(2); C.loop4(3, 2); C.loop(1, slot=2)
            C.loop(1, slot=3, next_cons=False, fillers=snd + ["PAD"]*OPT.jpad, fstart=OPT.fs5, budget=12)
            stamp(k, 19)
            if OPT.xslp: k.e(f"s_sleep {OPT.xslp}")
            validated(k, xg, range(80, 96), 2, pre=False)
        stamp(k, 22)
        if OPT.ot:
            aux_ = ['', '', 'sc1', 'nt'][OPT.ot]
            for j in range(4):
                acc_bf16(k, A+8*j, 80+4*j, 4, False, 16)
                for i in range(4): k.e(f"v_cvt_pk_bf16_f32 v{160+4*j+i}, v{A+8*j+2*i}, v{A+8*j+2*i+1}")
                k.e(f"ds_write_b64 v5, v[{160+4*j}:{161+4*j}] offset:{32*j}\nds_write_b64 v5, v[{162+4*j}:{163+4*j}] offset:{32*j+16*144}")
            k.e("s_waitcnt lgkmcnt(0)")
            for j in range(4): k.e(f"ds_read_b128 v[{176+4*j}:{179+4*j}], v6 offset:{j*8*144}")
            for j in range(4): k.e(f"s_waitcnt lgkmcnt({3-j})\nbuffer_store_dwordx4 v[{176+4*j}:{179+4*j}], v7, {srd(SRD_B)}, s{S_T+14} offen {aux_}\ns_add_u32 s{S_T+14}, s{S_T+14}, 16384")
        else:
            pend = []
            for j in range(4):
                acc_bf16(k, A+8*j, 80+4*j, 4, False, 16)
                for x in pend: k.e(x)
                for i in range(4): k.e(f"v_cvt_pk_bf16_f32 v{160+4*j+i}, v{A+8*j+2*i}, v{A+8*j+2*i+1}")
                pend = swaps(160+4*j) + [f"buffer_store_dwordx4 v[{160+4*j}:{163+4*j}], v14, {srd(SRD_B)}, 0 offen offset:{32*j}"]
            k.e("s_nop 0")
            for x in pend: k.e(x)
    else:
        C = Cons(k, c5, R25)
        consumer_addr(k, c5, R25, t=48, slot=(0 if OPT.st4 & 4 else None))
        res_init()
        mk_srd(k, SRD_B, P_OUT, 4*MB)
        k.e("s_barrier\ns_barrier")
        stamp(k, 18)
        if OPT.st4 & 4:
            C.first_reads_static(2); C.loop4(7, 2); k.e("s_waitcnt lgkmcnt(0)")
        else:
            C.first_reads(); C.loop(27); C.loop(1, next_cons=False)
        stamp(k, 19)
        out4(96, lambda r, j: f"buffer_store_dwordx4 v[{r}:{r+3}], v14, {srd(SRD_B)}, 0 offen offset:{32*j}")
    k.e("s_branch L_fin")
    k.e("L_c_helper:")
    k.e("s_waitcnt vmcnt(1)\ns_barrier")
    stamp(k, 9)
    k.e("s_barrier")
    helper_pf(k, 'c')
    stamp(k, 17)
    k.e("s_branch L_c_p5")

def place_pads(k):
    import subprocess, re, tempfile, os
    L = [x.strip() for x in k.L]
    isins = lambda x: not (x.endswith(":") or x.startswith(".") or x.startswith(("WARM", "ALIGN4K", "GRP")))
    txt = '.amdgcn_target "amdgcn-amd-amdhsa--gfx950"\n.text\n' + KNAME + ":\n" + "\n".join(x for x in L if isins(x) or x.endswith(":")) + "\n"
    d = tempfile.mkdtemp(); open(d+"/a.s", "w").write(txt)
    subprocess.run(["clang", "-x", "assembler", "-target", "amdgcn-amd-amdhsa", "-mcpu=gfx950", "-c", d+"/a.s", "-o", d+"/a.o"], check=True)
    dis = subprocess.run(["llvm-objdump", "-d", "--mcpu=gfx950", d+"/a.o"], capture_output=True, text=True).stdout
    sizes = [4*len(m.group(1).split()) for m in re.finditer(r"// [0-9A-F]{12}: ((?:[0-9A-F]{8} ?)+)", dis)]
    assert len(sizes) == sum(map(isins, L)), (len(sizes), sum(map(isins, L)))
    out = []; off = None; it = iter(sizes); nextpage = 0; pads = [[] for _ in NWARM]; grp = 0; inwarm = False
    for x in L:
        if x == "ALIGN4K":
            out.append(".p2align 12"); off = 0; continue
        if x.startswith("GRP"):
            grp = int(x.split()[1]); continue
        if x == "s_mov_b64 exec, 0": inwarm = True
        if off is not None and off >= nextpage and not inwarm and (isins(x) or x.startswith(".p2align")):
            n = sum(map(len, pads)); pads[grp].append(n)
            out.append(f"L_pad{n}:"); out.append(f"s_cbranch_execz L_padr{n}"); off += 4; nextpage += 4096
        if x == "s_mov_b64 exec, -1": inwarm = False
        out.append(x)
        if isins(x):
            sz = next(it)
            if off is not None: off += sz
        elif x.startswith("WARM"): off += 12
        elif x.startswith(".p2align") and off is not None:
            a = 1 << int(x.split()[1]); off = (off + a-1)//a*a
    fin = []
    for x in out:
        if x.startswith("WARM"):
            g, i = map(int, x.split()[1:])
            if i < len(pads[g]):
                n = pads[g][i]
                fin += [f"s_cmp_lg_u32 s{S_WAVE}, {i % 4}", f"s_cbranch_scc1 L_padr{n}", f"s_branch L_pad{n}", f"L_padr{n}:"]
            else: fin += ["s_nop 0"]*3
        else: fin.append(x)
    assert all(len(p) <= n for p, n in zip(pads, NWARM)), pads
    print('pads', pads, file=sys.stderr)
    k.L = [("" if x.endswith(":") else "    ") + x for x in fin]

def build():
    k = Kern("p")
    if OPT.probe: k.e("s_memrealtime s[94:95]")
    k.e("s_cmp_ge_u32 s2, 256\ns_cbranch_scc1 L_end")
    k.e("s_load_dwordx16 s[32:47], s[0:1], 0\ns_load_dwordx8 s[48:55], s[0:1], 64")
    k.e(f"v_lshrrev_b32 v2, 6, v0\nv_and_b32 v1, 63, v0\nv_readfirstlane_b32 s{S_WAVE}, v2")
    if OPT.stamps: k.e("v_mov_b32 v255, 0\nv_mov_b32 v254, 0\nv_mov_b32 v253, 0\ns_mov_b32 s97, 0")
    import core4; core4.DG[0] = OPT.dg; core4.WSB[0] = OPT.wsb*MB
    ITST[0] = max(OPT.stamps - 1, 0); ITST[1] = 254; CAP[0] = OPT.cap
    tile_map(k, 8, 4, 16)
    k.e(f"s_cmp_ge_u32 s2, 192\ns_cselect_b32 s{S_CLS}, 1, s2")
    k.e(f"s_cmp_lt_u32 s{S_WAVE}, 4\ns_cbranch_scc1 L_cons")
    if OPT.spq < 0:
        k.e(f"s_and_b32 s93, s{S_M}, 7\ns_mul_i32 s93, s93, {OPT.qm}\ns_lshr_b32 s93, s93, 3\ns_add_u32 s93, s93, {OPT.q0}")
    k.e(f"s_and_b32 s{S_LW}, s{S_WAVE}, 1\ns_sub_u32 s{S_Q}, s{S_WAVE}, 4\ns_cmp_ge_u32 s{S_WAVE}, 6\ns_cbranch_scc1 L_aux")
    if OPT.pl: k.e(f"s_setprio {OPT.pl}")
    loader(k)
    k.e("L_aux:")
    grp(k, 0)
    if OPT.pa: k.e(f"s_setprio {OPT.pa}")
    aux(k)
    k.e("L_cons:")
    grp(k, 0)
    if OPT.pc: k.e(f"s_setprio {OPT.pc}")
    consumer(k)
    k.e("L_fin:")
    if OPT.stamps:
        k.e("s_waitcnt vmcnt(0)")
        stamp(k, 20)
        mk_srd(k, SRD_D, P_WS, 2*MB, WS_END)
        k.e(f"""s_lshl_b32 s{S_T}, s2, 3
        s_add_u32 s{S_T}, s{S_T}, s{S_WAVE}
        s_lshl_b32 s{S_T}, s{S_T}, 8
        v_lshlrev_b32 v2, 2, v1
        buffer_store_dword v255, v2, {srd(SRD_D)}, s{S_T} offen
        s_add_u32 s{S_T}, s{S_T}, 0x80000
        buffer_store_dword v254, v2, {srd(SRD_D)}, s{S_T} offen
        s_add_u32 s{S_T}, s{S_T}, 0x80000
        buffer_store_dword v253, v2, {srd(SRD_D)}, s{S_T} offen""")
    if OPT.probe:
        k.e(f"s_cmp_lg_u32 s{S_WAVE}, {OPT.pwave}\ns_cbranch_scc1 L_end\ns_cmp_ge_u32 s2, 224\ns_cbranch_scc1 L_end")
        if OPT.pwg >= 0: k.e(f"s_cmp_lg_u32 s2, {OPT.pwg}\ns_cbranch_scc1 L_end")
        k.e(f"v_writelane_b32 v255, s94, 31\ns_nop 1")
        k.e(f"v_readlane_b32 s{S_T}, v255, {OPT.probe}\nv_readlane_b32 s{S_T+1}, v255, {OPT.pfrom}\ns_nop 3\ns_sub_u32 s{S_T}, s{S_T}, s{S_T+1}\ns_mul_i32 s{S_T}, s{S_T}, 10\ns_add_u32 s{S_T}, s{S_T}, s94\ns_add_u32 s{S_T}, s{S_T}, 10000\nL_spin:\ns_memrealtime s[{S_ST}:{S_ST+1}]\ns_waitcnt lgkmcnt(0)\ns_sub_u32 s{S_T+1}, s{S_ST}, s{S_T}\ns_cmp_lt_i32 s{S_T+1}, 0\ns_cbranch_scc1 L_spin")
    k.e("L_end:\ns_endpgm")
    if OPT.pads: place_pads(k)
    out = [f"; @launch grid=(256,1,1) block=(512,1,1) lds={163840 if OPT.sk else L_END}",
           '.amdgcn_target "amdgcn-amd-amdhsa--gfx950"\n.text', header(KNAME) + k.text(), '.section .rodata,"a"', descriptor(KNAME, 256, 102)]
    return "\n".join(out)

if __name__ == "__main__":
    for a in sys.argv[2:]:
        kk, v = a.split("="); setattr(OPT, kk, int(v))
    open(sys.argv[1], "w").write(build())
```
